```python
import torch

def _softmax(x, axis=-1):
    return torch.softmax(x, dim=axis)
def _gelu(x):
    return torch.nn.functional.gelu(x, approximate="tanh")
def _silu(x):
    return torch.nn.functional.silu(x)
def _sigmoid(x):
    return torch.sigmoid(x)
def _layernorm(x, axis=-1, eps=1e-5):
    m = x.mean(dim=axis, keepdim=True)
    v = x.var(dim=axis, keepdim=True, unbiased=False)
    return (x - m) / torch.sqrt(v + eps)
def _scatter_add(tgt, idx, src, axis=0):
    return tgt.clone().index_add_(axis, idx, src)
def _segment_sum(src, seg, n):
    out = torch.zeros((n,) + src.shape[1:], dtype=src.dtype)
    return out.index_add_(0, seg, src)
def _pad(x, pw):
    flat = tuple(v for pair in reversed(pw) for v in pair)
    return torch.nn.functional.pad(x, flat)

kernel_name = 'concat_heads__ssm_conv_s4d__softmax_full_mha__prompt'

def setup_inputs():

    _w = (lambda a: (lambda t: t.to(torch.bfloat16) if t.is_floating_point() else t)(torch.as_tensor(a)))
    def _A_setup():
        Bsz, L, D, N = 1, 2048, 448, 256
        return {
            "u": _w((lambda *s: torch.randn(*s, dtype=torch.bfloat16) * 0.05)(Bsz, L, D)),
            "log_A_real": _w((lambda *s: torch.randn(*s, dtype=torch.bfloat16) * 6.4)(D, N) * 0.5),
            "A_imag": _w((lambda *s: torch.randn(*s, dtype=torch.bfloat16) * 0.1)(D, N) * 3.14),
            "C_real": _w((lambda *s: torch.randn(*s, dtype=torch.bfloat16) * 0.4)(D, N) / N ** 0.5),
            "C_imag": _w((lambda *s: torch.randn(*s, dtype=torch.bfloat16) * 0.4)(D, N) / N ** 0.5),
            "log_dt": _w((lambda *s: torch.randn(*s, dtype=torch.bfloat16) * 0.1)(D) * 0.5 - 4.0),
            "D_skip": _w((lambda *s: torch.randn(*s, dtype=torch.bfloat16) * 0.1)(D)),
        }
    _A_in = _A_setup()

    def _B_setup():
        B, S, D = 1, 2048, 448
        return {
            "x": _w((lambda *s: torch.randn(*s, dtype=torch.bfloat16) * 0.2)(B, S, D)),
            "wqkv": _w((lambda *s: torch.randn(*s, dtype=torch.bfloat16) * 0.2)(D, 3 * D)),
            "wo": _w((lambda *s: torch.randn(*s, dtype=torch.bfloat16) * 0.05)(D, D)),
        }
    _B_in = _B_setup()

    return {
        "A_u": _A_in["u"],
        "A_log_A_real": _A_in["log_A_real"],
        "A_A_imag": _A_in["A_imag"],
        "A_C_real": _A_in["C_real"],
        "A_C_imag": _A_in["C_imag"],
        "A_log_dt": _A_in["log_dt"],
        "A_D_skip": _A_in["D_skip"],
        "B_x": _B_in["x"],
        "B_wqkv": _B_in["wqkv"],
        "B_wo": _B_in["wo"],
    }

def reference(A_u, A_log_A_real, A_A_imag, A_C_real, A_C_imag, A_log_dt, A_D_skip, B_x, B_wqkv, B_wo):
    def _A_ref(u, log_A_real, A_imag, C_real, C_imag, log_dt, D_skip):
        L = u.shape[1]
        dt = torch.exp(log_dt)
        A = -torch.exp(log_A_real) + 1j * A_imag
        C = (C_real + 1j * C_imag) * dt[:, None]
        pos = (lambda x, dt: x.to(dt))(torch.arange(L), log_dt.dtype)
        P = torch.exp((A * dt[:, None])[:, :, None] * pos[None, None, :])
        K = 2.0 * torch.einsum("dn,dnl->dl", C, P).real
        L2 = 2 * L
        u_t = (lambda x, *d: x.permute(*d))(u, 0, 2, 1)
        Kf = (lambda x, *a, **k: torch.fft.rfft(x.float(), *a, **k))(K, L2)
        Uf = (lambda x, *a, **k: torch.fft.rfft(x.float(), *a, **k))(u_t, L2)
        y = (lambda x, *a, **k: torch.fft.irfft(x, *a, **k).to(torch.bfloat16))(Uf * Kf[None, :, :], L2)[:, :, :L]
        y = (lambda x, *d: x.permute(*d))(y, 0, 2, 1)
        return y + u * D_skip[None, None, :]

    def _B_ref(x, wqkv, wo):
        B, S, D = x.shape
        H = 16; Dh = D // H
        qkv = (lambda x, *d: x.permute(*d))((x @ wqkv).reshape(B, S, 3, H, Dh), 2, 0, 3, 1, 4)
        q, k, v = qkv[0], qkv[1], qkv[2]
        scale = Dh ** -0.5
        scores = torch.einsum("bhqd,bhkd->bhqk", q, k) * scale
        p = _softmax(scores, axis=-1)
        o = torch.einsum("bhqk,bhkd->bhqd", p, v)
        return (lambda x, *d: x.permute(*d))(o, 0, 2, 1, 3).reshape(B, S, D) @ wo

    a = _A_ref(A_u, A_log_A_real, A_A_imag, A_C_real, A_C_imag, A_log_dt, A_D_skip)
    b = _B_ref(B_x, B_wqkv, B_wo)
    return torch.concatenate([a, b], axis=-1)
```

```python
import sys

KN = 'concat_heads__ssm_conv_s4d__softmax_full_mha__prompt_kernel'
OPT = dict(only=0, safe=0, rot=1, prof=0, fs=16, force_fb=0, wq_early=0, prio=1)
for a in sys.argv[2:]:
    k, v = a.split('=')
    assert k in OPT, k
    OPT[k] = int(v, 0)

FS = OPT['fs']
FSH = FS.bit_length() - 1
F_KV = 0x1000
F_O = F_KV + 1024 * FS
F_U = F_O + 1024 * FS
F_Y = F_U + 1024 * FS
WS_K = 0x100000
WS_V = 0x300000
WS_O = 0x500000
WS_U = 0x700000
WS_Y = 0x900000
WS_PROF = 0xb00000
WS_SIZE = 0xc00000
L_SSM = 1024
L_W = 57344
L_RB = 65536
L_X = 114688
L_TOT = 163840
L_TAB = L_SSM
L_KD = L_SSM + 49152
L_UC = L_SSM
UC_S = 4160
UC_D = 4 * UC_S + 64
L_KP = L_UC + 2 * UC_D
assert L_KP + 12288 <= L_KD and L_KP % 16 == 0
L_WO = L_SSM

S_WV, S_W, S_HG, S_C, S_TILE, S_J, S_H, S_NONCE, S_O0, S_ROT = range(30, 40)
SRD_WS, SRD_A, SRD_B, SRD_C = 40, 44, 48, 52
S_BOUND = 56
S_T0 = 58

out = []
def e(s):
    for l in s.split('\n'):
        l = l.strip()
        if l:
            out.append(l if l.endswith(':') else '    ' + l)
_lab = [0]
def lab(p):
    _lab[0] += 1
    return f'L_{p}_{_lab[0]}'
def vr(a, n):
    return f'v[{a}:{a+n-1}]' if n > 1 else f'v{a}'
def srd(d, b, n):
    e(f's_mov_b64 s[{d}:{d+1}], s[{b}:{b+1}]\ns_mov_b32 s{d+2}, {n}\ns_mov_b32 s{d+3}, 0x20000')
def sr(d): return f's[{d}:{d+3}]'

V_LANE, V_T, V_OWN, V_GRP, V_PROF = 0, 1, 2, 3, 4

def stamp(i):
    if OPT['prof']:
        e(f's_memtime s[96:97]\ns_waitcnt lgkmcnt(0)\ns_sub_u32 s96, s96, s{S_T0}\nv_writelane_b32 v{V_PROF}, s96, {i}')
def prof_out():
    if OPT['prof']:
        e(f'''s_memrealtime s[96:97]
        s_waitcnt lgkmcnt(0)
        v_writelane_b32 v{V_PROF}, s96, 31
        v_writelane_b32 v{V_PROF}, s98, 30
        s_lshl_b32 s96, s2, 3
        s_add_u32 s96, s96, s{S_WV}
        s_lshl_b32 s96, s96, 7
        s_add_u32 s96, s96, {WS_PROF}
        v_lshlrev_b32 v{V_T}, 2, v{V_LANE}
        s_mov_b32 exec_hi, 0
        buffer_store_dword v{V_PROF}, v{V_T}, {sr(SRD_WS)}, s96 offen
        s_mov_b64 exec, -1''')

def arrive(stage):
    e(f'v_mov_b32 v{V_T}, {stage}\nds_write_b32 v{V_OWN}, v{V_T}')
def lwait(stage, addr=V_GRP, sleep=0):
    l = lab('lw')
    e(f'{l}:')
    if sleep: e(f's_sleep {sleep}')
    e(f'''ds_read_b32 v{V_T}, v{addr}
    s_waitcnt lgkmcnt(0)
    v_cmp_gt_u32 vcc, {stage}, v{V_T}''')
    if OPT['safe']:
        d = lab('ld')
        e(f'''s_cbranch_vccz {d}
        s_sub_u32 s{S_BOUND}, s{S_BOUND}, 1
        s_cbranch_scc0 {l}
        s_mov_b32 s{S_BOUND}, 0
        {d}:''')
    else:
        e(f's_cbranch_vccnz {l}')
def sync(stage):
    arrive(stage); lwait(stage)
def poll(voff, first_issued=False):
    l, d, m = lab('pl'), lab('pd'), lab('pm')
    if first_issued: e(f's_branch {m}')
    e(f'''{l}:
    buffer_load_dword v{V_T}, v{voff}, {sr(SRD_WS)}, 0 offen sc1
    {m}:
    s_waitcnt vmcnt(0)
    v_cmp_ne_u32 vcc, s{S_NONCE}, v{V_T}
    s_cbranch_vccz {d}
    s_sub_u32 s{S_BOUND}, s{S_BOUND}, 1
    s_cbranch_scc0 {l}
    s_mov_b32 s{S_BOUND}, 0
    {d}:''')
def publish(soff, tmp):
    e(f'''v_mov_b32 v{V_T}, s{S_NONCE}
    v_mov_b32 v{tmp}, 0
    s_mov_b64 exec, 1
    buffer_store_dword v{V_T}, v{tmp}, {sr(SRD_WS)}, s{soff} offen sc1
    s_mov_b64 exec, -1''')
def swap23(d, s, t):
    e(f'''v_lshrrev_b32 v{t}, 1, v{s}
    v_xor_b32 v{t}, v{t}, v{s}
    v_and_b32 v{t}, 4, v{t}
    v_mul_u32_u24 v{t}, 3, v{t}
    v_xor_b32 v{d}, v{t}, v{s}''')
def rot_next(s):
    e(f's_add_u32 s{s}, s{s}, 1\ns_cmp_eq_u32 s{s}, 7\ns_cselect_b32 s{s}, 0, s{s}')

e(f'''s_cmp_ge_u32 s2, 256
s_cbranch_scc1 L_end''')
if OPT['prof']:
    e(f's_memtime s[{S_T0}:{S_T0+1}]\ns_memrealtime s[98:99]\nv_mov_b32 v{V_PROF}, 0')
e(f'''s_load_dwordx16 s[4:19], s[0:1], 0
s_load_dwordx8 s[20:27], s[0:1], 64
s_load_dwordx2 s[28:29], s[0:1], 96
v_lshrrev_b32 v{V_OWN}, 6, v0
v_and_b32 v{V_LANE}, 63, v0
v_readfirstlane_b32 s{S_WV}, v{V_OWN}
v_lshlrev_b32 v{V_OWN}, 2, v{V_OWN}
v_mov_b32 v{V_T}, 0
ds_write_b32 v{V_OWN}, v{V_T}
v_and_b32 v{V_GRP}, 3, v{V_LANE}
v_lshlrev_b32 v{V_GRP}, 2, v{V_GRP}
s_and_b32 s{S_HG}, s2, 1
s_bfe_u32 s60, s2, 0x20001
s_bfe_u32 s{S_C}, s2, 0x30003
s_lshr_b32 s61, s2, 6
s_lshl2_add_u32 s{S_TILE}, s60, s61
s_lshl1_add_u32 s{S_J}, s{S_TILE}, s{S_HG}
s_lshl3_add_u32 s{S_H}, s{S_HG}, s{S_C}
s_and_b32 s{S_W}, s{S_WV}, 3
s_mov_b32 s{S_BOUND}, 0x40000
s_cmp_ge_u32 s{S_WV}, 4
s_cbranch_scc1 L_ssm''')

VX = 144; VACC = 96; VWF = 32; VPK = 128
VV, VK, VS, VO, VQ = 32, 64, 96, 160, 224
vWd = [5, 6]; vXd = [7, 8, 9, 10]; vXr = [11, 12, 13, 14]; vWb, vW0, vW1 = 15, 16, 17
vRho, vG, vSt, vQd, vQr, vFl, vA, vB, vC = 18, 19, 20, 21, 22, 23, 24, 25, 26
vKo0, vKo1, vVo, vIdx = 27, 28, 29, 30
sXb, sWb, sCh, sCw, sLx, sTmp, sTmp2, sSt, sS1, sS2, sFl = range(60, 71)
sK, sV, sIt = 71, 72, 73
sMask = 74
sOdd = 76

if OPT['prio']: e('s_setprio 3')
e(f'''s_mul_i32 s{S_O0}, s{S_H}, 7
s_lshr_b32 s{S_O0}, s{S_O0}, 1''')
if OPT['rot']:
    e(f'''s_lshl1_add_u32 s{S_ROT}, s61, s{S_C}
    s_cmp_ge_u32 s{S_ROT}, 7
    s_cselect_b32 s{sTmp}, 7, 0
    s_sub_u32 s{S_ROT}, s{S_ROT}, s{sTmp}''')
else:
    e(f's_mov_b32 s{S_ROT}, 0')
e(f'''v_lshrrev_b32 v{vA}, 3, v{V_LANE}          ; r
v_and_b32 v{vB}, 7, v{V_LANE}                    ; p
v_lshlrev_b32 v{vC}, 1, v{vA}
v_and_b32 v{vC}, 4, v{vC}
v_xor_b32 v{vC}, v{vC}, v{vB}
v_lshlrev_b32 v{vC}, 4, v{vC}
v_mul_u32_u24 v{vWd[0]}, 2688, v{vA}
v_add_u32 v{vWd[0]}, v{vWd[0]}, v{vC}
v_add_u32 v{vWd[1]}, {8*2688-1024}, v{vWd[0]}
v_lshrrev_b32 v{vC}, 1, v{vA}
v_xor_b32 v{vC}, v{vC}, v{vB}
v_lshlrev_b32 v{vC}, 4, v{vC}
v_mul_u32_u24 v{vA}, 896, v{vA}
v_add_u32 v{vXd[0]}, v{vA}, v{vC}
v_xor_b32 v{vC}, 64, v{vC}
v_add_u32 v{vXd[1]}, v{vA}, v{vC}
v_add_u32 v{vXd[1]}, {7168-1024}, v{vXd[1]}
v_add_u32 v{vXd[2]}, {2*(7168-1024)}, v{vXd[0]}
v_add_u32 v{vXd[3]}, {2*(7168-1024)}, v{vXd[1]}
s_lshl2_add_u32 s{sXb}, s{S_TILE}, s{S_W}
s_lshl_b32 s{sFl}, s{S_H}, 6
s_add_u32 s{sFl}, s{sFl}, s{sXb}
s_lshl_b32 s{sFl}, s{sFl}, {FSH}
s_add_u32 s{sFl}, s{sFl}, {F_KV}
s_mul_i32 s{sXb}, s{sXb}, {32*896}
s_min_u32 s{sTmp}, s{S_C}, 6
s_lshl_b32 s{sTmp}, s{sTmp}, 7
s_mul_i32 s{sWb}, s{S_HG}, 896
s_add_u32 s{sWb}, s{sWb}, s{sTmp}
s_mul_i32 s{sTmp}, s{S_W}, {16*2688}
s_add_u32 s{sWb}, s{sWb}, s{sTmp}
s_add_u32 s{sWb}, s{sWb}, 896
s_mul_i32 s{sLx}, s{S_W}, 12288
s_add_u32 s{sLx}, s{sLx}, {L_X}
s_lshl_b32 s{sS1}, s{S_W}, 11
s_add_u32 s{sS1}, s{sS1}, {L_W}
s_mov_b32 s{sCh}, s{S_ROT}
s_waitcnt lgkmcnt(0)''')
srd(SRD_B, 20, 448 * 1344 * 2)
e(f's_load_dword s{S_NONCE}, s[28:29], 0')
def w_dma():
    e(f'''s_lshl_b32 s{sTmp}, s{sCh}, 13
    s_add_u32 m0, s{sTmp}, s{sS1}
    s_mul_i32 s{sTmp}, s{sCh}, {64*2688}
    s_add_u32 s{sTmp}, s{sTmp}, s{sWb}
    buffer_load_dwordx4 v{vWd[0]}, {sr(SRD_B)}, s{sTmp} offen lds
    buffer_load_dwordx4 v{vWd[1]}, {sr(SRD_B)}, s{sTmp} offen offset:1024 lds''')
    rot_next(sCh)
def x_dma_setup(slot):
    return [f's_add_u32 m0, s{sLx}, {slot*4096}', f's_lshl_b32 s{sTmp2}, s{sCh}, 7', f's_add_u32 s{sTmp2}, s{sTmp2}, s{sXb}']
def x_dma_loads():
    return [f'buffer_load_dwordx4 v{vXd[i]}, {sr(SRD_A)}, s{sTmp2} offen offset:{1024*i} lds' for i in range(4)]
def rot_lines(s):
    return [f's_add_u32 s{s}, s{s}, 1', f's_cmp_eq_u32 s{s}, 7', f's_cselect_b32 s{s}, 0, s{s}']
for i in range(4): w_dma()
srd(SRD_A, 18, 2048 * 896)
srd(SRD_WS, 28, WS_SIZE)
e('s_waitcnt lgkmcnt(0)\ns_barrier')
if OPT['only'] == 1: e('s_endpgm')
e(f's_add_u32 s{S_NONCE}, s{S_NONCE}, 1')
for i in range(3): w_dma()
for s in range(3):
    e('\n'.join(x_dma_setup(s) + x_dma_loads() + rot_lines(sCh)))
stamp(0)
e(f'''v_and_b32 v{vA}, 31, v{V_LANE}
v_lshrrev_b32 v{vG}, 5, v{V_LANE}''')
swap23(vRho, vA, vB)
e(f'''v_bfe_u32 v{vB}, v{vRho}, 1, 3
v_xor_b32 v{vB}, v{vB}, v{vG}
v_lshlrev_b32 v{vB}, 4, v{vB}
v_lshl_add_u32 v{vB}, v{vRho}, 7, v{vB}
v_add_u32 v{vXr[0]}, s{sLx}, v{vB}
v_xor_b32 v{vXr[1]}, 32, v{vXr[0]}
v_xor_b32 v{vXr[2]}, 64, v{vXr[0]}
v_xor_b32 v{vXr[3]}, 0x60, v{vXr[0]}
v_and_b32 v{vB}, 3, v{V_LANE}                     ; cc
v_lshrrev_b32 v{vC}, 1, v{vB}
v_and_b32 v{vQd}, 1, v{vB}
v_lshl_or_b32 v{vC}, v{vQd}, 1, v{vC}
v_bfe_u32 v{vQd}, v{V_LANE}, 4, 1
v_lshl_or_b32 v{vB}, v{vQd}, 2, v{vB}
v_lshl_or_b32 v{vC}, v{vQd}, 2, v{vC}
v_bfe_u32 v{vQd}, v{V_LANE}, 2, 2                  ; r'
v_lshl_or_b32 v{vFl}, v{vG}, 3, v{vQd}             ; 8g + r'
v_lshlrev_b32 v{vQr}, 6, v{vFl}
v_lshl_add_u32 v{vQr}, v{vC}, 3, v{vQr}
v_add_u32 v{vQr}, {L_X + 4096}, v{vQr}
s_cmp_eq_u32 s{S_HG}, 0
s_cselect_b64 vcc, -1, 0
v_cndmask_b32 v{vB}, v{vB}, v{vC}, vcc
v_lshlrev_b32 v{vWb}, 7, v{vFl}
v_lshl_add_u32 v{vWb}, v{vB}, 3, v{vWb}
v_lshrrev_b32 v{vQd}, 1, v{vQd}
v_lshl_add_u32 v{vWb}, v{vQd}, 6, v{vWb}
v_add_u32 v{vWb}, {L_W}, v{vWb}
v_lshlrev_b32 v{vB}, 4, v{vRho}
v_lshl_add_u32 v{vB}, v{vG}, 15, v{vB}             ; K: g*32768 + token*16
v_lshrrev_b32 v{vC}, 2, v{vA}
v_lshlrev_b32 v{vC}, 14, v{vC}
v_lshl_add_u32 v{vC}, v{vG}, 6, v{vC}
v_and_b32 v{vQd}, 3, v{vA}
v_lshl_add_u32 v{vC}, v{vQd}, 4, v{vC}
v_cndmask_b32 v{vSt}, v{vC}, v{vB}, vcc
s_lshl2_add_u32 s{sTmp}, s{S_TILE}, s{S_W}
s_lshl_b32 s{sTmp2}, s{sTmp}, 9
s_add_u32 s{sTmp2}, s{sTmp2}, {WS_K}
s_lshl_b32 s{sTmp}, s{sTmp}, 8
s_add_u32 s{sTmp}, s{sTmp}, {WS_V}
s_movk_i32 s{sS2}, 128
s_cmp_eq_u32 s{S_HG}, 0
s_cselect_b32 s{sSt}, s{sTmp2}, s{sTmp}
s_cselect_b32 s{sS2}, 0x10000, s{sS2}
s_lshl_b32 s{sTmp}, s{S_C}, 18
s_add_u32 s{sSt}, s{sSt}, s{sTmp}
v_lshrrev_b32 v{vB}, 2, v{V_LANE}
v_mul_u32_u24 v{vB}, 2688, v{vB}
v_lshl_add_u32 v{vQd}, v{vQd}, 4, v{vB}
s_mov_b32 s{sCw}, s{S_ROT}
s_lshl_b32 s{sTmp}, s{sCw}, 13
v_add_u32 v{vW0}, s{sTmp}, v{vWb}
v_xor_b32 v{vW1}, 64, v{vW0}
s_waitcnt vmcnt(12)''')
stamp(1)
sync(1)
stamp(2)
def w_reads(s):
    r = []
    for ks in range(4):
        for ct in range(2):
            for hf in range(2):
                d = VWF + 32 * (s & 1) + 8 * ks + 4 * ct + 2 * hf
                r.append(f'ds_read_b64_tr_b16 {vr(d,2)}, v{(vW0, vW1)[ct]} offset:{ks*2048 + hf*512}')
    return r
def x_reads(s):
    return [f'ds_read_b128 {vr(VX + 16*s + 4*ks, 4)}, v{vXr[ks]} offset:{(s%3)*4096}' for ks in range(4)]
def w_addr_next():
    return rot_lines(sCw) + [f's_lshl_b32 s{sTmp}, s{sCw}, 13', f'v_add_u32 v{vW0}, s{sTmp}, v{vWb}', f'v_xor_b32 v{vW1}, 64, v{vW0}']
e('\n'.join(w_reads(0)))
e('s_waitcnt vmcnt(8)')
e('\n'.join(x_reads(0) + w_addr_next()))
e(f'''s_waitcnt lgkmcnt(0)
s_cmp_lg_u32 s{S_HG}, 0
s_cbranch_scc1 L_gemm_v''')
def gemm1(vpart):
    for s in range(7):
        M = []
        for ks in range(4):
            for ct in range(2):
                wf = vr(VWF + 32 * (s & 1) + 8 * ks + 4 * ct, 4); xf = vr(VX + 16 * s + 4 * ks, 4)
                acc = vr(VACC + 16 * ct, 16)
                a, b = (xf, wf) if vpart else (wf, xf)
                M.append(f'v_mfma_f32_32x32x16_bf16 {acc}, {a}, {b}, {"0" if s == 0 and ks == 0 else acc}')
        gaps = [[] for _ in range(8)]
        if s + 3 <= 6:
            gaps[0] = x_dma_setup(s % 3) + x_dma_loads()
            gaps[7] = rot_lines(sCh)
        if s < 6:
            wr = w_reads(s + 1)
            for i in range(4): gaps[1 + i] += wr[4*i:4*i+4]
            n = 4 * sum(1 for c in (s + 2, s + 3) if c <= 6)
            gaps[4] += [f's_waitcnt vmcnt({n})'] + x_reads(s + 1)
            if s < 5: gaps[5] += w_addr_next()
            gaps[7] += ['s_waitcnt lgkmcnt(0)']
        for i in range(8):
            e(M[i]); e('\n'.join(gaps[i]))
gemm1(False)
e('s_branch L_gemm_done\nL_gemm_v:')
gemm1(True)
e('L_gemm_done:')
stamp(3)
e(f'''s_lshl_b32 s{sWb}, s{S_O0}, 4
s_mul_i32 s{sTmp}, s{S_W}, {16*2688}
s_add_u32 s{sWb}, s{sWb}, s{sTmp}
s_mov_b32 s{sCh}, s{S_ROT}
s_add_u32 s{sS1}, s{sSt}, s{sS2}
s_add_u32 s{sXb}, s{sSt}, 0x20000
s_add_u32 s{sCw}, s{sS1}, 0x20000
s_lshr_b32 s{sTmp}, s{S_O0}, 3
s_add_u32 s{sTmp2}, s{S_O0}, 3
s_lshr_b32 s{sTmp2}, s{sTmp2}, 3
s_cmp_eq_u32 s{S_H}, 15
s_cselect_b32 s{sTmp2}, 7, s{sTmp2}
s_sub_u32 s{sTmp2}, s{sTmp2}, s{sTmp}''')
for ct in range(2):
    for i in range(8):
        e(f'v_cvt_pk_bf16_f32 v{VPK + 8*ct + i}, v{VACC + 16*ct + 2*i}, v{VACC + 16*ct + 2*i + 1}')
e(f'''s_cmp_eq_u32 s{S_C}, 7
s_cbranch_scc1 L_nokv
buffer_store_dwordx4 {vr(VPK,4)}, v{vSt}, {sr(SRD_WS)}, s{sSt} offen sc1
buffer_store_dwordx4 {vr(VPK+4,4)}, v{vSt}, {sr(SRD_WS)}, s{sS1} offen sc1
buffer_store_dwordx4 {vr(VPK+8,4)}, v{vSt}, {sr(SRD_WS)}, s{sXb} offen sc1
buffer_store_dwordx4 {vr(VPK+12,4)}, v{vSt}, {sr(SRD_WS)}, s{sCw} offen sc1
L_nokv:
v_bfe_u32 v{vA}, v{V_LANE}, 4, 1
v_mul_u32_u24 v{vA}, s{sTmp2}, v{vA}
v_lshl_add_u32 v{vA}, v{vG}, 3, v{vA}
v_add_u32 v{vA}, s{sTmp}, v{vA}
v_and_b32 v{vB}, 15, v{V_LANE}
v_lshl_add_u32 v{vA}, v{vA}, 6, v{vB}
s_lshl_b32 s{sTmp}, s{S_W}, 4
v_add_u32 v{vA}, s{sTmp}, v{vA}
v_lshlrev_b32 v{vA}, {FSH}, v{vA}
v_add_u32 v{vFl}, {F_KV}, v{vA}''')
for s in range(7):
    e(f'''s_add_u32 m0, s{sLx}, {4096 + 1024*s}
    s_mul_i32 s{sTmp}, s{sCh}, {64*2688}
    s_add_u32 s{sTmp}, s{sTmp}, s{sWb}
    buffer_load_dwordx4 v{vQd}, {sr(SRD_B)}, s{sTmp} offen lds''')
    if s < 6: rot_next(sCh)
stamp(4)
e(f'''v_and_b32 v{vA}, 31, v{V_LANE}
v_lshlrev_b32 v{vKo0}, 4, v{vA}
v_lshl_add_u32 v{vKo0}, v{vG}, 15, v{vKo0}
v_add_u32 v{vKo1}, 0x10000, v{vKo0}
v_lshrrev_b32 v{vA}, 2, v{vRho}
v_lshlrev_b32 v{vA}, 14, v{vA}
v_lshl_add_u32 v{vA}, v{vG}, 6, v{vA}
v_and_b32 v{vB}, 3, v{V_LANE}
v_lshl_add_u32 v{vVo}, v{vB}, 4, v{vA}
v_mov_b32 v{vIdx}, 0xdddddddd
s_lshl_b32 s{sTmp}, s{S_O0}, 15
s_lshl_b32 s{sK}, s{S_W}, 13
s_add_u32 s{sK}, s{sK}, s{sTmp}
s_add_u32 s{sK}, s{sK}, {WS_K}
s_lshl_b32 s{sV}, s{S_W}, 12
s_add_u32 s{sV}, s{sV}, s{sTmp}
s_add_u32 s{sV}, s{sV}, {WS_V}
s_bitcmp1_b32 s{S_H}, 0
s_cselect_b64 s[{sOdd}:{sOdd+1}], -1, 0
s_cselect_b32 s{sMask}, -16, 0x0fffffff
s_mov_b32 s{sMask+1}, s{sMask}
s_mov_b32 s78, 0x3f803f80
s_mov_b32 s79, s78''')
srd(SRD_C, 28, WS_SIZE)
for i in range(16): e(f'v_mov_b64 {vr(VV+2*i,2)}, s[78:79]')
e('s_waitcnt vmcnt(7)')
publish(sFl, vA)
stamp(5)
e(f'''; per-lane multipliers for Q: scale*log2(e), zero on the four slots that belong to the neighbour head
v_mov_b32 v{vC}, 0x3e8b97f6
v_cmp_gt_u32 vcc, 32, v{V_LANE}
s_and_b64 s[78:79], vcc, s[{sOdd}:{sOdd+1}]
s_nor_b64 s[80:81], vcc, s[{sOdd}:{sOdd+1}]
v_cndmask_b32 v{vA}, v{vC}, 0, s[78:79]
v_cndmask_b32 v{vB}, v{vC}, 0, s[80:81]
s_waitcnt vmcnt(1)''')
sync(2)
stamp(6)
e(f'buffer_load_dword v{V_T}, v{vFl}, {sr(SRD_WS)}, 0 offen sc1')
def q_reads(k):
    s, ks = divmod(k, 4)
    return [f'ds_read_b64_tr_b16 {vr(112 + 4*(k%8) + 2*hf, 2)}, v{vQr} offset:{ks*12288 + s*1024 + hf*256}' for hf in range(2)]
for k in range(6): e('\n'.join(q_reads(k)))
for k in range(28):
    e(f's_waitcnt lgkmcnt({min(10, 2*(27-k))})')
    e(f'v_mfma_f32_32x32x16_bf16 {vr(VACC,16)}, {vr(112 + 4*(k%8), 4)}, {vr(VX + 4*k, 4)}, {"0" if k == 0 else vr(VACC,16)}')
    if k + 6 < 28: e('\n'.join(q_reads(k + 6)))
stamp(7)
poll(vFl, first_issued=True)
stamp(8)
def kv_loads(buf, i, srdn=SRD_C):
    return [f'buffer_load_dwordx4 {vr(VK + 8*buf, 4)}, v{vKo0}, {sr(srdn)}, s{sK} offen offset:{512*i} sc1',
            f'buffer_load_dwordx4 {vr(VK + 8*buf + 4, 4)}, v{vKo1}, {sr(srdn)}, s{sK} offen offset:{512*i} sc1',
            f's_mov_b64 exec, s[{sMask}:{sMask+1}]',
            f'buffer_load_dwordx4 {vr(VV + 8*buf, 4)}, v{vVo}, {sr(srdn)}, s{sV} offen offset:{256*i} sc1',
            f'buffer_load_dwordx4 {vr(VV + 8*buf + 4, 4)}, v{vVo}, {sr(srdn)}, s{sV} offen offset:{256*i + 128} sc1',
            's_mov_b64 exec, -1']
for t in range(3): e('\n'.join(kv_loads(t, t)))
for r in range(16):
    m = vA if r < 4 else (vB if r >= 12 else vC)
    e(f'v_mul_f32 v{VACC + r}, v{m}, v{VACC + r}')
for i in range(8):
    e(f'v_cvt_pk_bf16_f32 v{VQ + 24 + i}, v{VACC + 2*i}, v{VACC + 2*i + 1}')
e(f'''v_lshlrev_b32 v{vA}, 4, v{V_LANE}
v_add_u32 v{vB}, s{sLx}, v{vA}
ds_write_b128 v{vB}, {vr(VQ+24,4)}
ds_write_b128 v{vB}, {vr(VQ+28,4)} offset:1024''')
arrive(3)
vRb = [5, 6, 7]; vQx = [8, 9, 10]; vRr = 11
for s in range(3):
    e(f'''s_add_u32 s{sTmp}, s{S_W}, {1+s}
    s_and_b32 s{sTmp}, s{sTmp}, 3
    s_mul_i32 s{sTmp}, s{sTmp}, 12288
    s_add_u32 s{sTmp2}, s{sTmp}, {L_X}
    v_add_u32 v{vQx[s]}, s{sTmp2}, v{vA}
    s_add_u32 s{sTmp}, s{sTmp}, {L_RB + 4096*s}
    v_add_u32 v{vRb[s]}, s{sTmp}, v{vA}''')
e(f'v_subrev_u32 v{vRr}, {L_X - L_RB}, v{vB}')
for i in range(32): e(f'v_mov_b64 {vr(VO+2*i,2)}, 0')
for i in range(8): e(f'v_mov_b64 {vr(VS+48+2*i,2)}, 0')
lwait(3)
for s in range(3):
    e(f'ds_read_b128 {vr(VQ+8*s,4)}, v{vQx[s]}\nds_read_b128 {vr(VQ+8*s+4,4)}, v{vQx[s]} offset:1024')
def qk(buf, slot, js):
    d = vr(VS + 16*slot, 16)
    return f'v_mfma_f32_32x32x16_bf16 {d}, {vr(VK + 8*buf + 4*js, 4)}, {vr(VQ + 8*slot + 4*js, 4)}, {"0" if js == 0 else d}'
def pv(buf, slot, js, oslot=None):
    oslot = slot if oslot is None else oslot
    return f'v_smfmac_f32_32x32x32_bf16 {vr(VO + 16*oslot, 16)}, {vr(VV + 8*buf + 4*js, 4)}, {vr(VS + 16*slot + 8*js, 8)}, v{vIdx}'
e(f's_mov_b32 s{sIt}, 0\ns_waitcnt vmcnt(8) lgkmcnt(0)')
stamp(9)
e(qk(0, 0, 0)); e(qk(0, 0, 1)); e('s_nop 10')
e('L_att:')
for t in range(4):
    for s in range(4):
        ex = [f'v_exp_f32 v{VS + 16*s + r}, v{VS + 16*s + r}' for r in range(16)]
        nb = t if s < 3 else (t + 1) & 3
        pb = t if s > 0 else (t - 1) & 3
        if s == 3: e('s_waitcnt vmcnt(8)')
        e(qk(nb, (s+1) & 3, 0)); e('\n'.join(ex[0:4]))
        e(qk(nb, (s+1) & 3, 1)); e('\n'.join(ex[4:8]))
        e(pv(pb, (s-1) & 3, 0))
        if s == 1:
            e('\n'.join(kv_loads((t + 3) & 3, t + 3)))
            if t == 0:
                e(f's_cmp_eq_u32 s{sIt}, 3\ns_cselect_b32 s{SRD_C+2}, 0, s{SRD_C+2}')
            if t == 3:
                e(f's_add_u32 s{sK}, s{sK}, 2048\ns_add_u32 s{sV}, s{sV}, 1024\ns_add_u32 s{sIt}, s{sIt}, 1\ns_cmp_lg_u32 s{sIt}, 4')
        e('\n'.join(ex[8:12]))
        e(pv(pb, (s-1) & 3, 1)); e('\n'.join(ex[12:16]))
e('s_cbranch_scc1 L_att')
e(pv(3, 3, 0))
stamp(10)
for s in range(2):
    for i in range(4): e(f'ds_write_b128 v{vRb[s]}, {vr(VO + 16*s + 4*i, 4)} offset:{1024*i}')
    if s == 0: e(pv(3, 3, 1))
for i in range(4): e(f'ds_write_b128 v{vRb[2]}, {vr(VO + 32 + 4*i, 4)} offset:{1024*i}')
arrive(4)
e(f'''s_lshl2_add_u32 s{sTmp}, s{S_TILE}, s{S_W}
s_lshl_b32 s{sFl}, s{sTmp}, 4
s_add_u32 s{sFl}, s{sFl}, s{S_H}
s_lshl_b32 s{sFl}, s{sFl}, {FSH}
s_add_u32 s{sFl}, s{sFl}, {F_O}
s_lshl_b32 s{sTmp}, s{sTmp}, 9
s_lshl_b32 s{sSt}, s{S_O0}, 15
s_add_u32 s{sSt}, s{sSt}, s{sTmp}
s_add_u32 s{sSt}, s{sSt}, {WS_O}
s_add_u32 s{sS1}, s{sSt}, 0x10000
v_lshlrev_b32 v{vSt}, 4, v{vRho}
v_lshl_add_u32 v{vSt}, v{vG}, 15, v{vSt}''')
lwait(4)
for i in range(12): e(f'ds_read_b128 {vr(VS + 4*i, 4)}, v{vRr} offset:{1024*i}')
OA = VO + 48
for s in range(3):
    e(f's_waitcnt lgkmcnt({8 - 4*s})')
    for i in range(8): e(f'v_pk_add_f32 {vr(OA+2*i,2)}, {vr(OA+2*i,2)}, {vr(VS+16*s+2*i,2)}')
e(f's_mov_b32 s{sIt}, {1 if OPT["force_fb"] else 0}')
e(f'''L_norm:
v_cndmask_b32 v{vA}, v{OA+12}, v{OA}, s[{sOdd}:{sOdd+1}]
v_max3_f32 v{vC}, abs(v{OA}), abs(v{OA+1}), abs(v{OA+2})
v_mov_b32 v{vB}, v{vA}
v_max3_f32 v{vC}, abs(v{OA+3}), abs(v{OA+4}), v{vC}
v_max3_f32 v{vC}, abs(v{OA+5}), abs(v{OA+6}), v{vC}
v_permlane32_swap_b32 v{vA}, v{vB}
v_max3_f32 v{vC}, abs(v{OA+7}), abs(v{OA+8}), v{vC}
v_cndmask_b32 v{vB}, v{vB}, v{vA}, s[{sOdd}:{sOdd+1}]
v_max3_f32 v{vC}, abs(v{OA+9}), abs(v{OA+10}), v{vC}
v_rcp_f32 v{vA}, v{vB}
v_max3_f32 v{vC}, abs(v{OA+11}), abs(v{OA+12}), v{vC}
v_max3_f32 v{vC}, abs(v{OA+13}), abs(v{OA+14}), v{vC}
v_max_f32 v{vC}, abs(v{OA+15}), v{vC}
v_cmp_nle_f32 vcc, 0x30800000, v{vB}
s_mov_b64 s[78:79], vcc
v_cmp_nge_f32 vcc, 0x4e800000, v{vB}
s_or_b64 s[78:79], s[78:79], vcc
v_cmp_ngt_f32 vcc, 0x7f000000, v{vC}
s_or_b64 vcc, s[78:79], vcc''')
if OPT['force_fb']:
    e(f's_cmp_eq_u32 s{sIt}, 1\ns_cbranch_scc1 L_fb')
e('s_cbranch_vccnz L_fb0\nL_norm2:')
for i in range(8): e(f'v_pk_mul_f32 {vr(OA+2*i,2)}, {vr(OA+2*i,2)}, {vr(vA,2)} op_sel_hi:[1,0]')
for i in range(8): e(f'v_cvt_pk_bf16_f32 v{VS+i}, v{OA+2*i}, v{OA+2*i+1}')
e(f'''s_bitcmp1_b32 s{S_H}, 0
s_cbranch_scc1 L_ost_odd
buffer_store_dwordx4 {vr(VS,4)}, v{vSt}, {sr(SRD_WS)}, s{sSt} offen sc1
s_mov_b32 exec_hi, 0
buffer_store_dwordx4 {vr(VS+4,4)}, v{vSt}, {sr(SRD_WS)}, s{sS1} offen sc1
s_not_b64 exec, exec
buffer_store_dwordx2 {vr(VS+4,2)}, v{vSt}, {sr(SRD_WS)}, s{sS1} offen sc1
s_branch L_ost_done
L_ost_odd:
buffer_store_dwordx4 {vr(VS+4,4)}, v{vSt}, {sr(SRD_WS)}, s{sS1} offen sc1
s_mov_b32 exec_hi, 0
buffer_store_dwordx2 {vr(VS+2,2)}, v{vSt}, {sr(SRD_WS)}, s{sSt} offen offset:8 sc1
s_not_b64 exec, exec
buffer_store_dwordx4 {vr(VS,4)}, v{vSt}, {sr(SRD_WS)}, s{sSt} offen sc1
L_ost_done:
s_mov_b64 exec, -1''')
stamp(11)
e('s_waitcnt vmcnt(0)')
publish(sFl, vA)
arrive(5)
stamp(12)
prof_out()
e('s_endpgm')

e(f'''L_fb0:
s_cmp_eq_u32 s{sIt}, 2
s_cbranch_scc1 L_norm2
L_fb:
s_waitcnt vmcnt(0)
s_lshl_b32 s{sTmp}, s{S_O0}, 15
s_add_u32 s{sK}, s{sTmp}, {WS_K}
s_add_u32 s{sV}, s{sTmp}, {WS_V}
v_mov_b32 v{vC}, 0xff800000
s_mov_b32 s{sIt}, 0
L_fb1:''')
e('\n'.join(kv_loads(0, 0, SRD_WS)[:2]))
e('s_waitcnt vmcnt(0)')
e(qk(0, 3, 0)); e(qk(0, 3, 1)); e('s_nop 11')
for i in range(8): e(f'v_max3_f32 v{vC}, v{VS+48+2*i}, v{VS+49+2*i}, v{vC}')
e(f'''s_add_u32 s{sK}, s{sK}, 512
s_add_u32 s{sIt}, s{sIt}, 1
s_cmp_lg_u32 s{sIt}, 64
s_cbranch_scc1 L_fb1
v_mov_b32 v{vA}, v{vC}
s_sub_u32 s{sK}, s{sK}, 0x8000
s_mov_b32 s{sIt}, 0
v_permlane32_swap_b32 v{vA}, v{vC}
v_max_f32 v{vC}, v{vA}, v{vC}''')
for i in range(8): e(f'v_mov_b64 {vr(OA+2*i,2)}, 0')
e('L_fb2:')
e('\n'.join(kv_loads(0, 0, SRD_WS)))
e('s_waitcnt vmcnt(0)')
e(qk(0, 3, 0)); e(qk(0, 3, 1)); e('s_nop 11')
for i in range(16): e(f'v_sub_f32 v{VS+48+i}, v{VS+48+i}, v{vC}')
for i in range(16): e(f'v_exp_f32 v{VS+48+i}, v{VS+48+i}')
e('s_nop 1')
e(pv(0, 3, 0)); e(pv(0, 3, 1))
e(f'''s_add_u32 s{sK}, s{sK}, 512
s_add_u32 s{sV}, s{sV}, 256
s_add_u32 s{sIt}, s{sIt}, 1
s_cmp_lg_u32 s{sIt}, 64
s_cbranch_scc1 L_fb2
s_mov_b32 s{sIt}, 2
s_nop 11
s_branch L_norm''')

sD0, sD, sHw, sDs, sTab, sA, sB, sLd, sSk, sIt2, sFlU, sInv, sUns = range(60, 73)
a0, a1, a2, a3 = 5, 6, 7, 8
vPar = 10
vKc = 18
vWa = 20
vRa = 28
vEx = 32
vAc = 48
vOne = 56; vScl = 57; vAdd = 58
vOp = 64
vY = 112
vXt = 128
vAn = 160
vZ = 168
e(f'''L_ssm:
v_add_u32 v{V_GRP}, 16, v{V_GRP}
s_lshr_b32 s{sDs}, s{S_W}, 1
s_and_b32 s{sHw}, s{S_W}, 1
s_lshl_b32 s{sD0}, s{S_C}, 6
s_lshl1_add_u32 s{sD0}, s{S_J}, s{sD0}
s_add_u32 s{sD}, s{sD0}, s{sDs}
s_mul_i32 s{sTab}, s{S_W}, 12288
s_add_u32 s{sTab}, s{sTab}, {L_TAB}
s_lshl_b32 s{sA}, s{sD}, 9
v_lshl_add_u32 v{a0}, v{V_LANE}, 3, s{sA}
v_lshrrev_b32 v{a1}, 3, v{V_LANE}
v_mul_u32_u24 v{a1}, 896, v{a1}
v_and_b32 v{a2}, 7, v{V_LANE}
v_lshl_add_u32 v{a1}, v{a2}, 4, v{a1}
v_add_u32 v{a2}, {7168-1024}, v{a1}
s_lshl2_add_u32 s{sFlU}, s{S_J}, s{S_W}
s_mul_i32 s{sA}, s{sFlU}, {16*896}
s_lshl_b32 s{sB}, s{S_C}, 7
s_add_u32 s{sA}, s{sA}, s{sB}
s_add_u32 s{sFlU}, s{sFlU}, s{sB}
s_lshl_b32 s{sFlU}, s{sFlU}, {FSH}
s_add_u32 s{sFlU}, s{sFlU}, {F_U}
s_mov_b32 m0, s{sTab}
s_lshl_b32 s{sB}, s{sD0}, 1
s_waitcnt lgkmcnt(0)
s_cmp_{'eq' if OPT['only'] != 2 else 'le'}_u32 s{S_C}, 7
s_cbranch_scc0 L_ssm_go
s_barrier
s_endpgm
L_ssm_go:''')
srd(SRD_A, 4, 2048 * 896)
e(f'''s_load_dword s{S_NONCE}, s[28:29], 0
s_load_dword s{sLd}, s[14:15], s{sB}
s_load_dword s{sSk}, s[16:17], s{sB}
buffer_load_dwordx4 v{a1}, {sr(SRD_A)}, s{sA} offen lds
buffer_load_dwordx4 v{a2}, {sr(SRD_A)}, s{sA} offen offset:1024 lds
global_load_dwordx2 {vr(vPar,2)}, v{a0}, s[6:7]
global_load_dwordx2 {vr(vPar+2,2)}, v{a0}, s[8:9]
global_load_dwordx2 {vr(vPar+4,2)}, v{a0}, s[10:11]
global_load_dwordx2 {vr(vPar+6,2)}, v{a0}, s[12:13]''')
srd(SRD_WS, 28, WS_SIZE)
srd(SRD_B, 22, 448 * 896)
srd(SRD_C, 24, 2048 * 1792)
e(f'''s_waitcnt lgkmcnt(0)
s_barrier
s_add_u32 s{S_NONCE}, s{S_NONCE}, 1''')
e(f'v_lshlrev_b32 v{a0}, 2, v{V_LANE}')
for r in range(8):
    e(f'v_add_u32 v{a1}, {32*r}, v{a0}\nv_and_b32 v{a1}, 0xff, v{a1}\nv_add_u32 v{vWa+r}, s{sTab}, v{a1}')
e(f'''v_and_b32 v{a0}, 15, v{V_LANE}
v_lshrrev_b32 v{a1}, 4, v{V_LANE}
v_lshl_add_u32 v{a1}, v{a0}, 1, v{a1}
v_lshl_add_u32 v{a0}, v{a0}, 8, s{sTab}''')
for k in range(4):
    e(f'v_add_u32 v{a2}, {4*k}, v{a1}\nv_and_b32 v{a2}, 15, v{a2}\nv_lshl_add_u32 v{vRa+k}, v{a2}, 4, v{a0}')
e(f'''s_lshl_b32 s{sA}, s{sHw}, 10
v_lshl_add_u32 v{a0}, v{V_LANE}, 3, s{sA}
v_cvt_f32_u32 v{a0}, v{a0}
s_lshl_b32 s{sA}, s{sDs}, 11
s_add_u32 s{sA}, s{sA}, {L_KD}
v_cvt_f32_u32 v{vZ}, s{sA}
v_add_f32 v{vZ+1}, 0x44400000, v{vZ}''')
import struct
def fl(x): return hex(struct.unpack('<I', struct.pack('<f', x))[0])
for k in range(2):
    for i in range(0, 8, 2):
        e(f'''v_add_f32 v{a1}, {fl(512*k + 7 - i)}, v{a0}
        v_add_f32 v{a2}, {fl(512*k + 6 - i)}, v{a0}
        v_cvt_pk_bf16_f32 v{a2}, v{a1}, v{a2}
        v_lshlrev_b32 v{a1}, 16, v{a2}
        v_and_b32 v{a2}, 0xffff0000, v{a2}''')
        for q, src in ((0, a1), (1, a2)):
            e(f'''v_fma_f32 v{a3}, v{src}, 0.5, v{vZ+1}
            v_fma_f32 v{src}, v{src}, 2.0, v{vZ}
            v_min_f32 v{src}, v{src}, v{a3}
            v_cvt_u32_f32 v{vEx + 8*k + i + q}, v{src}''')
e(f'''s_lshl_b32 s{sA}, s{sDs}, 4
s_lshr_b32 s{sLd}, s{sLd}, s{sA}
s_lshl_b32 s{sLd}, s{sLd}, 16
s_lshr_b32 s{sSk}, s{sSk}, s{sA}
s_lshl_b32 s{sSk}, s{sSk}, 16
v_mov_b32 v{a0}, s{sLd}
v_mul_f32 v{a0}, 0x3fb8aa3b, v{a0}
v_exp_f32 v{a0}, v{a0}
s_cmp_eq_u32 s{sHw}, 0
s_cselect_b32 s{sA}, 1.0, 4.0
s_cselect_b32 s{sSk}, s{sSk}, 0
v_cvt_pk_bf16_f32 v{a0}, v{a0}, v{a0}
v_and_b32 v{vScl}, 0xffff0000, v{a0}
v_mul_f32 v{a0}, s{sA}, v{vScl}
v_mul_f32 v{vKc}, 0xbfb8aa3b, v{a0}
v_mul_f32 v{vKc+1}, 0.15915494, v{a0}
v_mov_b32 v{vOne}, 0x3c00
v_mov_b32 v{a1}, s{sSk}
v_cmp_eq_u32 vcc, 0, v{V_LANE}
v_mov_b64 {vr(vAc,2)}, 0
v_mov_b64 {vr(vAc+2,2)}, 0
v_cndmask_b32 v{vAdd}, 0, v{a1}, vcc
v_mov_b64 {vr(vAc+4,2)}, 0
v_mov_b64 {vr(vAc+6,2)}, 0
v_bfe_u32 v{a0}, v{V_LANE}, 2, 2
v_and_b32 v{a1}, 1, v{V_LANE}
v_lshl_or_b32 v{a0}, v{a1}, 3, v{a0}
v_lshl_add_u32 v{a0}, v{a0}, 7, s{sTab}
v_lshrrev_b32 v{a1}, 4, v{V_LANE}
v_bfe_u32 v{a2}, v{V_LANE}, 1, 1
v_lshl_or_b32 v{a1}, v{a1}, 1, v{a2}
v_lshl_add_u32 v{a0}, v{a1}, 3, v{a0}
v_lshrrev_b32 v{a1}, 3, v{V_LANE}
v_lshlrev_b32 v{a1}, 14, v{a1}
v_and_b32 v{a2}, 7, v{V_LANE}
v_lshl_add_u32 v{a1}, v{a2}, 4, v{a1}
s_lshl_b32 s{sA}, s{S_C}, 18
s_lshl2_add_u32 s{sB}, s{S_J}, s{S_W}
s_lshl_b32 s{sB}, s{sB}, 7
s_add_u32 s{sA}, s{sA}, s{sB}
s_add_u32 s{sA}, s{sA}, {WS_U}
s_add_u32 s{sB}, s{sA}, 0x20000''')
stamp(0)
e('s_waitcnt vmcnt(4)')
for z in range(2):
    for hf in range(2):
        e(f'ds_read_b64_tr_b16 {vr(vOp + 4*z + 2*hf, 2)}, v{a0} offset:{64*z + 512*hf}')
e(f'''s_waitcnt vmcnt(0) lgkmcnt(0)
buffer_store_dwordx4 {vr(vOp,4)}, v{a1}, {sr(SRD_WS)}, s{sA} offen sc1
buffer_store_dwordx4 {vr(vOp+4,4)}, v{a1}, {sr(SRD_WS)}, s{sB} offen sc1''')
stamp(1)
e(f'''v_and_b32 v{a0}, 0x7f807f80, v{vPar+4}
v_and_b32 v{a1}, 0x7f807f80, v{vPar+5}
v_and_b32 v{a2}, 0x7f807f80, v{vPar+6}
v_and_b32 v{a3}, 0x7f807f80, v{vPar+7}
v_pk_max_u16 v{a0}, v{a0}, v{a1}
v_pk_max_u16 v{a2}, v{a2}, v{a3}
v_pk_max_u16 v{a0}, v{a0}, v{a2}
v_lshlrev_b32 v{a1}, 16, v{a0}
v_max_u32 v{a0}, v{a0}, v{a1}''')
for n in (1, 2, 4, 8):
    e(f's_nop 1\nv_max_u32_dpp v{a0}, v{a0}, v{a0} row_ror:{n} row_mask:0xf bank_mask:0xf')
e(f'''s_nop 0
v_readlane_b32 s{sA}, v{a0}, 0
v_readlane_b32 s{sB}, v{a0}, 16
v_readlane_b32 s{sInv}, v{a0}, 32
v_readlane_b32 s{sUns}, v{a0}, 48
s_max_u32 s{sA}, s{sA}, s{sB}
s_max_u32 s{sUns}, s{sUns}, s{sInv}
s_max_u32 s{sUns}, s{sUns}, s{sA}
s_and_b32 s{sUns}, s{sUns}, 0x7f800000
s_min_u32 s{sUns}, s{sUns}, 0x7e800000
s_sub_u32 s{sInv}, 0x7f000000, s{sUns}
v_add_f32 v{vScl}, v{vScl}, v{vScl}
s_mov_b32 s{sIt2}, 0
v_mul_f32 v{vScl}, s{sUns}, v{vScl}''')
def cmul16(jobs, conj):
    ng = 'neg_hi:[1,0,0]' if conj else 'neg_lo:[1,0,0]'
    for i in range(0, len(jobs), 4):
        grp = jobs[i:i+4]
        for d, x, w in grp: e(f'v_pk_mul_f16 v{d}, v{x}, v{w} op_sel_hi:[1,0]')
        for d, x, w in grp: e(f'v_pk_fma_f16 v{d}, v{x}, v{w}, v{d} op_sel:[1,1,0] op_sel_hi:[0,1,1] {ng}')
def kg_mfma():
    for k in range(4):
        for t in range(2):
            e(f'v_mfma_f32_16x16x32_f16 {vr(vAc+4*t,4)}, {vr(vOp+12*k,4)}, {vr(vOp+12*k+4+4*t,4)}, {vr(vAc+4*t,4)}')
zA, zB, tA, tB, pA, pB = vZ, vZ+2, vZ+4, vZ+6, vZ+8, vZ+10
e(f'''L_kg:
v_lshlrev_b32 v{pA}, 16, v{vPar}
v_mul_f32 v{pA}, 0x3fb8aa3b, v{pA}
v_exp_f32 v{pA}, v{pA}
v_lshlrev_b32 v{pA+1}, 16, v{vPar+2}
v_lshlrev_b32 v{tA}, 16, v{vPar+4}
v_lshlrev_b32 v{tA+1}, 16, v{vPar+6}
v_cvt_pk_bf16_f32 v{pA}, v{pA}, v{pA}
v_mul_f32 v{tA}, s{sInv}, v{tA}
v_and_b32 v{pA}, 0xffff0000, v{pA}
v_mul_f32 v{tA+1}, s{sInv}, v{tA+1}
v_pk_mul_f32 {vr(pA,2)}, {vr(pA,2)}, {vr(vKc,2)}
v_cvt_pk_f16_f32 v{vXt}, v{tA}, -v{tA+1}
v_mul_f32 v{pB}, 0x41800000, v{pA}
v_mul_f32 v{pB+1}, 0x41800000, v{pA+1}
v_exp_f32 v{pA}, v{pA}
v_fract_f32 v{pA+1}, v{pA+1}
v_exp_f32 v{pB}, v{pB}
v_fract_f32 v{pB+1}, v{pB+1}
v_cos_f32 v{zA}, v{pA+1}
v_sin_f32 v{zA+1}, v{pA+1}
v_cos_f32 v{zB}, v{pB+1}
v_sin_f32 v{zB+1}, v{pB+1}''')
for p in range(4):
    e(f'v_alignbit_b32 v{vPar+2*p}, v{vPar+2*p+1}, v{vPar+2*p}, 16\nv_lshrrev_b32 v{vPar+2*p+1}, 16, v{vPar+2*p+1}')
e(f'''v_pk_mul_f32 {vr(zA,2)}, {vr(zA,2)}, {vr(pA,2)} op_sel_hi:[1,0]
v_pk_mul_f32 {vr(zB,2)}, {vr(zB,2)}, {vr(pB,2)} op_sel_hi:[1,0]''')
for st in range(5):
    chains = [(zB, tB, vAn + st)] + ([(zA, tA, vY + (1 << st))] if st < 4 else [])
    for z, t, d in chains: e(f'v_cvt_pk_f16_f32 v{d}, v{z}, v{z+1}')
    chains = [c for c in chains if st < (4 if c[0] == zB else 3)]
    for z, t, d in chains: e(f'v_pk_mul_f32 {vr(t,2)}, {vr(z,2)}, {vr(z,2)} op_sel_hi:[0,1]')
    for z, t, d in chains: e(f'v_pk_fma_f32 {vr(z,2)}, {vr(z,2)}, {vr(z,2)}, {vr(t,2)} op_sel:[1,1,0] op_sel_hi:[0,1,1] neg_lo:[1,0,0]')
e(f'''s_cmp_eq_u32 s{sIt2}, 0
s_cbranch_scc1 L_kg_a
s_waitcnt lgkmcnt(0)''')
kg_mfma()
e(f'''s_cmp_lg_u32 s{sIt2}, 1
s_cbranch_scc1 L_kg_a
s_waitcnt vmcnt(0)''')
publish(sFlU, a0)
e(f'''L_kg_a:
s_cmp_eq_u32 s{sHw}, 0
s_cbranch_scc1 L_kg_b
v_mov_b32 v{tA}, v{vXt}''')
cmul16([(vXt, tA, vAn + 3)], True)
e('L_kg_b:')
cmul16([(vY+3, vY+1, vY+2), (vY+12, vY+4, vY+8)], False)
cmul16([(vXt+1, vXt, vAn), (vXt+2, vXt, vAn+1), (vXt+4, vXt, vAn+2), (vXt+8, vXt, vAn+3)], True)
cmul16([(vY+hi+lo, vY+hi, vY+lo) for hi in (4, 8, 12) for lo in (1, 2, 3)], False)
cmul16([(vXt+3, vXt+1, vAn+1), (vXt+5, vXt+1, vAn+2), (vXt+6, vXt+2, vAn+2), (vXt+9, vXt+1, vAn+3)], True)
for i in range(8):
    e(f'ds_write2st64_b32 v{vWa+i}, v{vOne if i == 0 else vY+i}, v{vY+8+i} offset0:{i} offset1:{i+8}')
cmul16([(vXt+7, vXt+3, vAn+2), (vXt+10, vXt+2, vAn+3), (vXt+11, vXt+3, vAn+3), (vXt+12, vXt+4, vAn+3)], True)
cmul16([(vXt+13, vXt+5, vAn+3), (vXt+14, vXt+6, vAn+3), (vXt+15, vXt+7, vAn+3)], True)
for q in range(4):
    cmul16([(vXt+16+i, vXt+i, vAn+4) for i in range(4*q, 4*q+4)], True)
    for i in range(4*q, 4*q+4):
        e(f'ds_write2st64_b32 v{vWa+(i&7)}, v{vXt+i}, v{vXt+16+i} offset0:{16+i} offset1:{32+i}')
for k in range(4):
    for t in range(3):
        e(f'ds_read_b128 {vr(vOp+12*k+4*t,4)}, v{vRa+k} offset:{4096*t}')
e(f'''s_add_u32 s{sIt2}, s{sIt2}, 1
s_cmp_lg_u32 s{sIt2}, 4
s_cbranch_scc1 L_kg''')
vFu, vUa = 60, 61
e(f'''v_min_u32 v{a0}, 32, v{V_LANE}
s_lshl_b32 s{sA}, s{S_W}, 5
s_sub_u32 s{sA}, s{sA}, 1
v_add_u32 v{a0}, s{sA}, v{a0}
v_max_i32 v{a0}, 0, v{a0}
s_lshl_b32 s{sA}, s{S_C}, 7
v_add_u32 v{a0}, s{sA}, v{a0}
v_lshlrev_b32 v{a0}, {FSH}, v{a0}
v_add_u32 v{vFu}, {F_U}, v{a0}
s_waitcnt lgkmcnt(0)''')
kg_mfma()
e(f'''buffer_load_dword v{V_T}, v{vFu}, {sr(SRD_WS)}, 0 offen sc1
v_lshrrev_b32 v{a0}, 1, v{V_LANE}
v_and_b32 v{a1}, 1, v{V_LANE}
v_lshlrev_b32 v{vUa}, 6, v{a0}
v_lshl_add_u32 v{vUa}, v{a1}, 4, v{vUa}
s_lshr_b32 s{sA}, s{sD0}, 2
s_lshl_b32 s{sA}, s{sA}, 14
s_and_b32 s{sB}, s{sD0}, 3
s_lshl4_add_u32 s{sA}, s{sB}, s{sA}
s_lshl_b32 s{sB}, s{S_W}, 12
s_add_u32 s{sA}, s{sA}, s{sB}
s_add_u32 s{sLd}, s{sA}, {WS_U - 64}
v_fma_f32 v{vAc}, v{vAc}, v{vScl}, v{vAdd}''')
for i in range(1, 8): e(f'v_mul_f32 v{vAc+i}, v{vScl}, v{vAc+i}')
for i in range(4): e(f'v_cvt_pk_bf16_f32 v{vAc+i}, v{vAc+2*i}, v{vAc+2*i+1}')
e(f'''v_and_b32 v{a2}, 15, v{V_LANE}
v_lshrrev_b32 v{a3}, 4, v{V_LANE}
v_lshlrev_b32 v{a2}, 5, v{a2}
v_lshl_add_u32 v{a2}, v{a3}, 3, v{a2}
s_lshl_b32 s{sA}, s{S_W}, 10
s_add_u32 s{sA}, s{sA}, {L_KD}
v_add_u32 v{a2}, s{sA}, v{a2}
ds_write_b64 v{a2}, {vr(vAc,2)}
ds_write_b64 v{a2}, {vr(vAc+2,2)} offset:512''')
stamp(2)
poll(vFu, first_issued=True)
stamp(3)
U = 64
for k in range(2):
    e(f'''buffer_load_dwordx4 {vr(U+8*k+4,4)}, v{vUa}, {sr(SRD_WS)}, s{sLd} offen offset:{64 + 2048*k} sc1
    buffer_load_dwordx2 {vr(U+8*k+2,2)}, v{vUa}, {sr(SRD_WS)}, s{sLd} offen offset:{8 + 2048*k} sc1''')
sync(1)
G = 96
for i in range(16): e(f'ds_read_u16 v{G+i}, v{vEx+i}')
e(f'''v_mov_b64 {vr(112,2)}, 0
v_mov_b64 {vr(114,2)}, 0
s_mul_i32 s{sA}, s{sDs}, 6144
s_add_u32 s{sA}, s{sA}, {L_KP}
s_mul_i32 s{sB}, s{sHw}, 3072
s_add_u32 s{sB}, s{sB}, s{sA}
v_lshrrev_b32 v{a2}, 5, v{V_LANE}
v_mul_u32_u24 v{a2}, 1536, v{a2}
v_and_b32 v{a3}, 31, v{V_LANE}
v_lshl_add_u32 v{a2}, v{a3}, 4, v{a2}
v_add_u32 v62, s{sB}, v{a2}
ds_write_b128 v62, {vr(112,4)}
v_bfe_u32 v{a2}, v{V_LANE}, 2, 2
v_mul_u32_u24 v{a2}, {UC_S}, v{a2}
v_and_b32 v{a3}, 3, v{V_LANE}
v_lshl_add_u32 v{a2}, v{a3}, 4, v{a2}
s_mul_i32 s{sB}, s{sDs}, {UC_D}
s_add_u32 s{sB}, s{sB}, {L_UC}
v_add_u32 v{a2}, s{sB}, v{a2}
ds_write_b128 v{a2}, {vr(112,4)}
v_mul_u32_u24 v{a2}, 1536, v{a3}
v_lshrrev_b32 v9, 2, v{V_LANE}
v_lshl_add_u32 v{a2}, v9, 4, v{a2}
s_lshl_b32 s{sSk}, s{sHw}, 9
s_add_u32 s{sA}, s{sA}, s{sSk}
v_add_u32 v{a2}, s{sA}, v{a2}
v_xor_b32 v{a3}, 3, v{a3}
v_mul_u32_u24 v{a3}, {UC_S}, v{a3}
v_bfe_u32 v9, v{V_LANE}, 2, 3
v_lshl_add_u32 v{a3}, v9, 3, v{a3}
v_lshrrev_b32 v9, 5, v{V_LANE}
v_lshlrev_b32 v9, 4, v9
v_sub_u32 v{a3}, v{a3}, v9
s_lshl_b32 s{sSk}, s{sHw}, 5
s_sub_u32 s{sB}, s{sB}, s{sSk}
s_add_u32 s{sB}, s{sB}, 56
v_add_u32 v63, s{sB}, v{a3}
v_add_u32 v62, {512 - 80}, v62
v_mul_u32_u24 v{a1}, {UC_D}, v{a1}
v_lshl_add_u32 v{a0}, v{a0}, 4, v{a1}
s_lshl_b32 s{sA}, s{S_W}, 10
s_add_u32 s{sA}, s{sA}, {L_UC + 64}
v_add_u32 v{a0}, s{sA}, v{a0}
s_waitcnt lgkmcnt(2)''')
for i in range(8): e(f'v_lshl_or_b32 v{116+i}, v{G+2*i+1}, 16, v{G+2*i}')
e(f'''ds_write_b128 v{a2}, {vr(116,4)} offset:512
ds_write_b128 v{a2}, {vr(120,4)} offset:{512 + 256}
s_cmp_eq_u32 s{S_W}, 0
s_cselect_b64 vcc, 3, 0
s_waitcnt vmcnt(2)
v_cndmask_b32 v{U+2}, v{U+2}, v112, vcc
v_cndmask_b32 v{U+3}, v{U+3}, v112, vcc''')
for k in range(2):
    b = U + 8*k + 4; t = 128 + 12*k
    if k == 1: e('s_waitcnt vmcnt(0)')
    e(f'ds_write_b128 v{a0}, {vr(b,4)} offset:{512*k}')
    for i in range(4): e(f'v_alignbit_b32 v{t+i}, v{b+i}, v{b+i-1}, 16')
    e(f'ds_write_b128 v{a0}, {vr(t,4)} offset:{UC_S + 512*k}')
    for i in range(4): e(f'v_mov_b32 v{t+4+i}, v{b+i-1}')
    e(f'ds_write_b128 v{a0}, {vr(t+4,4)} offset:{2*UC_S + 512*k}')
    for i in range(4): e(f'v_alignbit_b32 v{t+8+i}, v{b+i-1}, v{b+i-2}, 16')
    e(f'ds_write_b128 v{a0}, {vr(t+8,4)} offset:{3*UC_S + 512*k}')
arrive(2)
T0, T1, CB = 160, 176, 64
for i in range(16): e(f'v_mov_b64 {vr(T0+2*i,2)}, 0')
lwait(2)
stamp(4)
def cv_reads(k):
    b = CB + 16 * (k & 3)
    return [f'ds_read_b128 {vr(b+8,4)}, v62 offset:{80 - 16*k}',
            f'ds_read_b64 {vr(b,2)}, v63 offset:{64*k}', f'ds_read_b64 {vr(b+2,2)}, v63 offset:{64*k + 8}',
            f'ds_read_b128 {vr(b+12,4)}, v62 offset:{512 + 80 - 16*k}',
            f'ds_read_b64 {vr(b+4,2)}, v63 offset:{2048 + 64*k}', f'ds_read_b64 {vr(b+6,2)}, v63 offset:{2048 + 64*k + 8}']
e('\n'.join(cv_reads(0) + cv_reads(1)))
e(f's_mov_b32 s{sIt2}, 0\nL_cv:')
for k in range(4):
    b = CB + 16 * k
    rd = cv_reads(k + 2)
    e('s_waitcnt lgkmcnt(6)')
    e(f'v_mfma_f32_32x32x16_bf16 {vr(T1,16)}, {vr(b,4)}, {vr(b+12,4)}, {vr(T1,16)}')
    e('\n'.join(rd[0:3]))
    e(f'v_mfma_f32_32x32x16_bf16 {vr(T0,16)}, {vr(b,4)}, {vr(b+8,4)}, {vr(T0,16)}')
    e('\n'.join(rd[3:6]))
    e(f'v_mfma_f32_32x32x16_bf16 {vr(T1,16)}, {vr(b+4,4)}, {vr(b+8,4)}, {vr(T1,16)}')
e(f'''v_add_u32 v63, 256, v63
v_subrev_u32 v62, 64, v62
s_add_u32 s{sIt2}, s{sIt2}, 1
s_cmp_lg_u32 s{sIt2}, 8
s_cbranch_scc1 L_cv''')
stamp(5)
sync(3)
e(f'''v_lshlrev_b32 v{a0}, 4, v{V_LANE}
s_lshl_b32 s{sA}, s{S_W}, 12
s_add_u32 s{sA}, s{sA}, {L_SSM}
v_add_u32 v{a1}, s{sA}, v{a0}
s_xor_b32 s{sB}, s{S_W}, 1
s_lshl_b32 s{sB}, s{sB}, 12
s_add_u32 s{sB}, s{sB}, {L_SSM}
v_add_u32 v{a2}, s{sB}, v{a0}
s_cmp_eq_u32 s{sHw}, 0
s_cbranch_scc1 L_noswap''')
for i in range(16): e(f'v_swap_b32 v{T0+i}, v{T1+i}')
e('L_noswap:')
for i in range(4): e(f'ds_write_b128 v{a2}, {vr(T1+4*i,4)} offset:{1024*i}')
sync(4)
for i in range(4): e(f'ds_read_b128 {vr(T1+4*i,4)}, v{a1} offset:{1024*i}')
e(f'''s_lshl1_add_u32 s{sA}, s{sD}, s{sHw}
s_lshl_b32 s{sA}, s{sA}, 11
s_add_u32 s{sA}, s{sA}, {WS_Y}
s_lshl_b32 s{sB}, s{sHw}, 9
s_add_u32 s{sB}, s{sB}, s{sD}
s_lshl_b32 s{sB}, s{sB}, {FSH}
s_add_u32 s{sB}, s{sB}, {F_Y}
s_waitcnt lgkmcnt(0)''')
for i in range(8): e(f'v_pk_add_f32 {vr(T0+2*i,2)}, {vr(T0+2*i,2)}, {vr(T1+2*i,2)}')
for i in range(8): e(f'v_cvt_pk_bf16_f32 v{T1+i}, v{T0+2*i}, v{T0+2*i+1}')
e(f'''buffer_store_dwordx4 {vr(T1,4)}, v{a0}, {sr(SRD_WS)}, s{sA} offen sc1
buffer_store_dwordx4 {vr(T1+4,4)}, v{a0}, {sr(SRD_WS)}, s{sA} offen offset:1024 sc1
s_lshl2_add_u32 s{sLd}, s{S_C}, s{S_W}
s_lshl_b32 s{sLd}, s{sLd}, 4
s_lshr_b32 s{sSk}, s{S_J}, 4
s_lshl_b32 s{sSk}, s{sSk}, 9
s_add_u32 s{sSk}, s{sSk}, s{sLd}
v_and_b32 v{a2}, 15, v{V_LANE}
v_add_u32 v{a2}, s{sSk}, v{a2}
v_lshlrev_b32 v{a2}, {FSH}, v{a2}
v_add_u32 v{vFu}, {F_Y}, v{a2}
v_lshrrev_b32 v{a2}, 3, v{V_LANE}
v_and_b32 v{a3}, 7, v{V_LANE}
v_lshlrev_b32 v{vUa}, 12, v{a2}
v_lshl_add_u32 v{vUa}, v{a3}, 4, v{vUa}
s_lshl_b32 s{sA}, s{sLd}, 12
s_lshl_b32 s{sSk}, s{S_J}, 7
s_add_u32 s{sA}, s{sA}, s{sSk}
s_add_u32 s{sA}, s{sA}, {WS_Y}
s_add_u32 s{sSk}, s{sA}, 0x8000
s_waitcnt vmcnt(0)''')
publish(sB, 9)
stamp(6)
poll(vFu)
stamp(7)
e(f'''buffer_load_dwordx4 {vr(64,4)}, v{vUa}, {sr(SRD_WS)}, s{sA} offen sc1
buffer_load_dwordx4 {vr(68,4)}, v{vUa}, {sr(SRD_WS)}, s{sSk} offen sc1
v_lshlrev_b32 v9, 1, v{a2}
v_and_b32 v9, 4, v9
v_xor_b32 v9, v9, v{a3}
v_mul_u32_u24 v10, 896, v{a2}
v_lshl_add_u32 v10, v9, 4, v10
v_add_u32 v11, {7168-1024}, v10
v_bfe_u32 v12, v{V_LANE}, 2, 2
v_and_b32 v13, 1, v{V_LANE}
v_lshl_or_b32 v12, v13, 3, v12
v_lshlrev_b32 v12, 7, v12
v_lshrrev_b32 v13, 4, v{V_LANE}
v_bfe_u32 v14, v{V_LANE}, 1, 1
v_lshl_or_b32 v13, v13, 1, v14
v_lshl_add_u32 v12, v13, 3, v12
s_lshl_b32 s{sA}, s{S_W}, 12
s_add_u32 s{sA}, s{sA}, {L_SSM}
v_add_u32 v12, s{sA}, v12
v_and_b32 v13, 3, v{V_LANE}
v_and_b32 v14, 8, v{V_LANE}
v_or_b32 v13, v13, v14
v_lshrrev_b32 v14, 4, v{V_LANE}
v_lshl_or_b32 v13, v14, 5, v13
v_mul_u32_u24 v13, 1792, v13
v_and_b32 v14, 4, v{V_LANE}
v_lshl_add_u32 v13, v14, 2, v13
s_lshr_b32 s{sA}, s{S_J}, 4
s_lshl_b32 s{sA}, s{sA}, 10
s_and_b32 s{sB}, s{S_J}, 3
s_lshl_b32 s{sB}, s{sB}, 8
s_add_u32 s{sA}, s{sA}, s{sB}
s_and_b32 s{sB}, s{S_J}, 8
s_lshl1_add_u32 s{sA}, s{sB}, s{sA}
s_and_b32 s{sB}, s{S_J}, 4
s_add_u32 s{sA}, s{sA}, s{sB}
s_mul_i32 s{sA}, s{sA}, 1792
s_lshl1_add_u32 s{sA}, s{sLd}, s{sA}
s_add_u32 s{sB}, s{sA}, {128*1792}
s_waitcnt vmcnt(0)
ds_write_b128 v{a1}, {vr(64,4)}
ds_write_b128 v{a1}, {vr(68,4)} offset:1024''')
for z in range(2):
    for hf in range(2):
        e(f'ds_read_b64_tr_b16 {vr(72 + 4*z + 2*hf, 2)}, v12 offset:{64*z + 512*hf}')
e(f'''s_waitcnt lgkmcnt(0)
buffer_store_dwordx4 {vr(72,4)}, v13, {sr(SRD_C)}, s{sA} offen
buffer_store_dwordx4 {vr(76,4)}, v13, {sr(SRD_C)}, s{sB} offen
v_subrev_u32 v14, 16, v{V_GRP}''')
sync(5)
if OPT['only'] == 1:
    stamp(8); stamp(13); prof_out(); e('s_endpgm')
lwait(2, addr=14)
stamp(8)
e(f'''s_mul_i32 s{sA}, s{S_W}, {16*896}
s_lshl_b32 s{sB}, s{S_C}, 7
s_add_u32 s{sA}, s{sA}, s{sB}
s_lshl_b32 s{sB}, s{S_W}, 11
s_add_u32 s{sB}, s{sB}, {L_WO}''')
for ch in range(7):
    e(f'''s_add_u32 m0, s{sB}, {8192*ch}
    s_add_u32 s{sSk}, s{sA}, {64*896*ch}
    buffer_load_dwordx4 v10, {sr(SRD_B)}, s{sSk} offen lds
    buffer_load_dwordx4 v11, {sr(SRD_B)}, s{sSk} offen offset:1024 lds
    s_waitcnt vmcnt(2)''')
WF, OF, OC = 16, 176, 232
e(f'''; Wo read address: row 8g + r', byte 16cc, half swizzled by r'>>1
v_lshrrev_b32 v5, 4, v{V_LANE}
v_bfe_u32 v6, v{V_LANE}, 2, 2
v_lshl_or_b32 v7, v5, 3, v6
v_lshlrev_b32 v7, 7, v7
v_lshrrev_b32 v6, 1, v6
v_lshl_add_u32 v7, v6, 6, v7
v_and_b32 v6, 3, v{V_LANE}
v_lshl_add_u32 v7, v6, 4, v7
v_add_u32 v8, {L_WO}, v7
v_xor_b32 v7, 64, v7
v_add_u32 v9, {L_WO}, v7
v_and_b32 v6, 15, v{V_LANE}
v_lshlrev_b32 v10, 4, v6
v_lshl_add_u32 v10, v5, 15, v10
s_lshl2_add_u32 s{sLd}, s{S_J}, s{S_W}
s_lshr_b32 s{sA}, s{sLd}, 1
s_lshl_b32 s{sA}, s{sA}, 4
v_add_u32 v11, s{sA}, v6
v_lshlrev_b32 v11, {FSH}, v11
v_add_u32 v11, {F_O}, v11
s_lshl_b32 s{sA}, s{S_W}, 11
s_add_u32 s{sA}, s{sA}, {L_SSM}
v_and_b32 v7, 7, v{V_LANE}
v_xor_b32 v12, v5, v7
v_lshlrev_b32 v12, 4, v12
v_lshl_add_u32 v12, v6, 7, v12
v_add_u32 v12, s{sA}, v12
v_xor_b32 v13, 64, v12
v_lshl_add_u32 v15, v{V_LANE}, 4, s{sA}
v_lshrrev_b32 v5, 3, v{V_LANE}
v_xor_b32 v7, v5, v7
v_mul_u32_u24 v5, 1792, v5
v_lshl_add_u32 v5, v7, 4, v5
s_mul_i32 s{sD0}, s{sLd}, {16*1792}
s_lshl_b32 s{sA}, s{S_C}, 7
s_add_u32 s{sD0}, s{sD0}, s{sA}
s_add_u32 s{sD0}, s{sD0}, 896
s_add_u32 s{sD}, s{sD0}, {8*1792}
s_lshl_b32 s{sLd}, s{sLd}, 8
s_add_u32 s{sLd}, s{sLd}, {WS_O}
s_waitcnt vmcnt(0)''')
sync(6)
def wo_reads(k):
    r = []
    for t in range(4):
        for hf in range(2):
            r.append(f'ds_read_b64_tr_b16 {vr(WF + 16*(k%10) + 4*t + 2*hf, 2)}, v{8 + (t>>1)} offset:{4096*k + 512*hf + 8*(t&1)}')
    return r
for k in range(10): e('\n'.join(wo_reads(k)))
e('s_waitcnt lgkmcnt(0)')
sync(7)
stamp(9)
lwait(5, addr=14, sleep=2)
stamp(10)
poll(11)
stamp(11)
for k in range(14):
    e(f'buffer_load_dwordx4 {vr(OF+4*k,4)}, v10, {sr(SRD_WS)}, s{sLd} offen sc1')
    if k < 13: e(f's_add_u32 s{sLd}, s{sLd}, 0x20000')
for k in range(14):
    e(f's_waitcnt vmcnt({13-k})' + (' lgkmcnt(0)' if k == 10 else ''))
    for t in range(4):
        c = vr(OC+4*t, 4)
        e(f'v_mfma_f32_16x16x32_bf16 {c}, {vr(WF + 16*(k%10) + 4*t, 4)}, {vr(OF+4*k,4)}, {"0" if k == 0 else c}')
    if 1 <= k <= 4: e('\n'.join(wo_reads(k + 9)))
stamp(12)
e(f'''s_or_b32 s{sA}, s2, s{S_W}
s_cmp_lg_u32 s{sA}, 0
s_cbranch_scc1 L_noepoch
s_mov_b32 s{sA}, 0''')
publish(sA, 6)
e('L_noepoch:\ns_nop 4')
for i in range(8): e(f'v_cvt_pk_bf16_f32 v{16+i}, v{OC+2*i}, v{OC+2*i+1}')
e(f'''ds_write_b128 v12, {vr(16,4)}
ds_write_b128 v13, {vr(20,4)}
ds_read_b128 {vr(24,4)}, v15
ds_read_b128 {vr(28,4)}, v15 offset:1024
s_waitcnt lgkmcnt(1)
buffer_store_dwordx4 {vr(24,4)}, v5, {sr(SRD_C)}, s{sD0} offen
s_waitcnt lgkmcnt(0)
buffer_store_dwordx4 {vr(28,4)}, v5, {sr(SRD_C)}, s{sD} offen''')
if OPT['prof']:
    e('s_waitcnt vmcnt(0)')
stamp(13)
prof_out()
e('L_end:\ns_endpgm')

hdr = open('header.txt').read()
txt = hdr + f'''; @launch grid=(256,1,1) block=(512,1,1) lds={L_TOT}
.amdgcn_target "amdgcn-amd-amdhsa--gfx950"
.text
.globl {KN}
.p2align 8
.type {KN},@function
{KN}:
''' + '\n'.join(out) + f'''
.section .rodata,"a"
.p2align 6
.amdhsa_kernel {KN}
  .amdhsa_next_free_vgpr 256
  .amdhsa_next_free_sgpr 102
  .amdhsa_accum_offset 256
  .amdhsa_group_segment_fixed_size 0
  .amdhsa_kernarg_size 104
  .amdhsa_user_sgpr_count 2
  .amdhsa_user_sgpr_kernarg_segment_ptr 1
  .amdhsa_system_sgpr_workgroup_id_x 1
.end_amdhsa_kernel
'''
open(sys.argv[1], 'w').write(txt)
```

```python
import sys

KN = 'concat_heads__ssm_conv_s4d__softmax_full_mha__prompt_kernel'
OPT = dict(rd=-1, rdrole=0, only=0, safe=0, rot=1, prof=0, fs=16, force_fb=0, wq_early=0, prio=1)
for a in sys.argv[2:]:
    k, v = a.split('=')
    assert k in OPT, k
    OPT[k] = int(v, 0)

FS = OPT['fs']
FSH = FS.bit_length() - 1
F_KV = 0x1000
F_O = F_KV + 1024 * FS
F_U = F_O + 1024 * FS
F_Y = F_U + 1024 * FS
WS_K = 0x100000
WS_V = 0x300000
WS_O = 0x500000
WS_U = 0x700000
WS_Y = 0x900000
WS_PROF = 0xb00000
WS_SIZE = 0xc00000
L_SSM = 1024
L_W = 57344
L_RB = 65536
L_X = 114688
L_TOT = 163840
L_TAB = L_SSM
L_KD = L_SSM + 49152
L_UC = L_SSM
UC_S = 4160
UC_D = 4 * UC_S + 64
L_KP = L_UC + 2 * UC_D
assert L_KP + 12288 <= L_KD and L_KP % 16 == 0
L_WO = L_SSM

S_WV, S_W, S_HG, S_C, S_TILE, S_J, S_H, S_NONCE, S_O0, S_ROT = range(30, 40)
SRD_WS, SRD_A, SRD_B, SRD_C = 40, 44, 48, 52
S_BOUND = 56
S_T0 = 58

out = []
def e(s):
    for l in s.split('\n'):
        l = l.strip()
        if l:
            out.append(l if l.endswith(':') else '    ' + l)
_lab = [0]
def lab(p):
    _lab[0] += 1
    return f'L_{p}_{_lab[0]}'
def vr(a, n):
    return f'v[{a}:{a+n-1}]' if n > 1 else f'v{a}'
def srd(d, b, n):
    e(f's_mov_b64 s[{d}:{d+1}], s[{b}:{b+1}]\ns_mov_b32 s{d+2}, {n}\ns_mov_b32 s{d+3}, 0x20000')
def sr(d): return f's[{d}:{d+3}]'

V_LANE, V_T, V_OWN, V_GRP, V_PROF = 0, 1, 2, 3, 4

ROLE = [0]
def stamp(i):
    if OPT['rd'] == i and OPT['rdrole'] == ROLE[0]:
        e('s_memrealtime s[100:101]\ns_waitcnt lgkmcnt(0)')
    if OPT['prof']:
        e(f's_memtime s[96:97]\ns_waitcnt lgkmcnt(0)\ns_sub_u32 s96, s96, s{S_T0}\nv_writelane_b32 v{V_PROF}, s96, {i}')
def prof_out():
    if OPT['rd'] >= 0 and OPT['rdrole'] == ROLE[0]:
        l = lab('pad')
        e(f'''s_add_u32 s100, s100, 6000
        {l}:
        s_sleep 1
        s_memrealtime s[96:97]
        s_waitcnt lgkmcnt(0)
        s_sub_u32 s96, s96, s100
        s_cmp_lt_i32 s96, 0
        s_cbranch_scc1 {l}''')
    if OPT['prof']:
        e(f'''s_memrealtime s[96:97]
        s_waitcnt lgkmcnt(0)
        v_writelane_b32 v{V_PROF}, s96, 31
        v_writelane_b32 v{V_PROF}, s98, 30
        s_lshl_b32 s96, s2, 3
        s_add_u32 s96, s96, s{S_WV}
        s_lshl_b32 s96, s96, 7
        s_add_u32 s96, s96, {WS_PROF}
        v_lshlrev_b32 v{V_T}, 2, v{V_LANE}
        s_mov_b32 exec_hi, 0
        buffer_store_dword v{V_PROF}, v{V_T}, {sr(SRD_WS)}, s96 offen
        s_mov_b64 exec, -1''')

def arrive(stage):
    e(f'v_mov_b32 v{V_T}, {stage}\nds_write_b32 v{V_OWN}, v{V_T}')
def lwait(stage, addr=V_GRP, sleep=0):
    l = lab('lw')
    e(f'{l}:')
    if sleep: e(f's_sleep {sleep}')
    e(f'''ds_read_b32 v{V_T}, v{addr}
    s_waitcnt lgkmcnt(0)
    v_cmp_gt_u32 vcc, {stage}, v{V_T}''')
    if OPT['safe']:
        d = lab('ld')
        e(f'''s_cbranch_vccz {d}
        s_sub_u32 s{S_BOUND}, s{S_BOUND}, 1
        s_cbranch_scc0 {l}
        s_mov_b32 s{S_BOUND}, 0
        {d}:''')
    else:
        e(f's_cbranch_vccnz {l}')
def sync(stage):
    arrive(stage); lwait(stage)
def poll(voff, first_issued=False):
    l, d, m = lab('pl'), lab('pd'), lab('pm')
    if first_issued: e(f's_branch {m}')
    e(f'''{l}:
    buffer_load_dword v{V_T}, v{voff}, {sr(SRD_WS)}, 0 offen sc1
    {m}:
    s_waitcnt vmcnt(0)
    v_cmp_ne_u32 vcc, s{S_NONCE}, v{V_T}
    s_cbranch_vccz {d}
    s_sub_u32 s{S_BOUND}, s{S_BOUND}, 1
    s_cbranch_scc0 {l}
    s_mov_b32 s{S_BOUND}, 0
    {d}:''')
def publish(soff, tmp):
    e(f'''v_mov_b32 v{V_T}, s{S_NONCE}
    v_mov_b32 v{tmp}, 0
    s_mov_b64 exec, 1
    buffer_store_dword v{V_T}, v{tmp}, {sr(SRD_WS)}, s{soff} offen sc1
    s_mov_b64 exec, -1''')
def swap23(d, s, t):
    e(f'''v_lshrrev_b32 v{t}, 1, v{s}
    v_xor_b32 v{t}, v{t}, v{s}
    v_and_b32 v{t}, 4, v{t}
    v_mul_u32_u24 v{t}, 3, v{t}
    v_xor_b32 v{d}, v{t}, v{s}''')
def rot_next(s):
    e(f's_add_u32 s{s}, s{s}, 1\ns_cmp_eq_u32 s{s}, 7\ns_cselect_b32 s{s}, 0, s{s}')

e(f'''s_cmp_ge_u32 s2, 256
s_cbranch_scc1 L_end''')
if OPT['prof']:
    e(f's_memtime s[{S_T0}:{S_T0+1}]\ns_memrealtime s[98:99]\nv_mov_b32 v{V_PROF}, 0')
if OPT['rd'] >= 0: e('s_memrealtime s[100:101]')
e(f'''s_load_dwordx16 s[4:19], s[0:1], 0
s_load_dwordx8 s[20:27], s[0:1], 64
s_load_dwordx2 s[28:29], s[0:1], 96
v_lshrrev_b32 v{V_OWN}, 6, v0
v_and_b32 v{V_LANE}, 63, v0
v_readfirstlane_b32 s{S_WV}, v{V_OWN}
v_lshlrev_b32 v{V_OWN}, 2, v{V_OWN}
v_mov_b32 v{V_T}, 0
ds_write_b32 v{V_OWN}, v{V_T}
v_and_b32 v{V_GRP}, 3, v{V_LANE}
v_lshlrev_b32 v{V_GRP}, 2, v{V_GRP}
s_and_b32 s{S_HG}, s2, 1
s_bfe_u32 s60, s2, 0x20001
s_bfe_u32 s{S_C}, s2, 0x30003
s_lshr_b32 s61, s2, 6
s_lshl2_add_u32 s{S_TILE}, s60, s61
s_lshl1_add_u32 s{S_J}, s{S_TILE}, s{S_HG}
s_lshl3_add_u32 s{S_H}, s{S_HG}, s{S_C}
s_and_b32 s{S_W}, s{S_WV}, 3
s_mov_b32 s{S_BOUND}, 0x40000
s_cmp_ge_u32 s{S_WV}, 4
s_cbranch_scc1 L_ssm''')

VX = 144; VACC = 96; VWF = 32; VPK = 128
VV, VK, VS, VO, VQ = 32, 64, 96, 160, 224
vWd = [5, 6]; vXd = [7, 8, 9, 10]; vXr = [11, 12, 13, 14]; vWb, vW0, vW1 = 15, 16, 17
vRho, vG, vSt, vQd, vQr, vFl, vA, vB, vC = 18, 19, 20, 21, 22, 23, 24, 25, 26
vKo0, vKo1, vVo, vIdx = 27, 28, 29, 30
sXb, sWb, sCh, sCw, sLx, sTmp, sTmp2, sSt, sS1, sS2, sFl = range(60, 71)
sK, sV, sIt = 71, 72, 73
sMask = 74
sOdd = 76

if OPT['prio']: e('s_setprio 3')
e(f'''s_mul_i32 s{S_O0}, s{S_H}, 7
s_lshr_b32 s{S_O0}, s{S_O0}, 1''')
if OPT['rot']:
    e(f'''s_lshl1_add_u32 s{S_ROT}, s61, s{S_C}
    s_cmp_ge_u32 s{S_ROT}, 7
    s_cselect_b32 s{sTmp}, 7, 0
    s_sub_u32 s{S_ROT}, s{S_ROT}, s{sTmp}''')
else:
    e(f's_mov_b32 s{S_ROT}, 0')
e(f'''v_lshrrev_b32 v{vA}, 3, v{V_LANE}          ; r
v_and_b32 v{vB}, 7, v{V_LANE}                    ; p
v_lshlrev_b32 v{vC}, 1, v{vA}
v_and_b32 v{vC}, 4, v{vC}
v_xor_b32 v{vC}, v{vC}, v{vB}
v_lshlrev_b32 v{vC}, 4, v{vC}
v_mul_u32_u24 v{vWd[0]}, 2688, v{vA}
v_add_u32 v{vWd[0]}, v{vWd[0]}, v{vC}
v_add_u32 v{vWd[1]}, {8*2688-1024}, v{vWd[0]}
v_lshrrev_b32 v{vC}, 1, v{vA}
v_xor_b32 v{vC}, v{vC}, v{vB}
v_lshlrev_b32 v{vC}, 4, v{vC}
v_mul_u32_u24 v{vA}, 896, v{vA}
v_add_u32 v{vXd[0]}, v{vA}, v{vC}
v_xor_b32 v{vC}, 64, v{vC}
v_add_u32 v{vXd[1]}, v{vA}, v{vC}
v_add_u32 v{vXd[1]}, {7168-1024}, v{vXd[1]}
v_add_u32 v{vXd[2]}, {2*(7168-1024)}, v{vXd[0]}
v_add_u32 v{vXd[3]}, {2*(7168-1024)}, v{vXd[1]}
s_lshl2_add_u32 s{sXb}, s{S_TILE}, s{S_W}
s_lshl_b32 s{sFl}, s{S_H}, 6
s_add_u32 s{sFl}, s{sFl}, s{sXb}
s_lshl_b32 s{sFl}, s{sFl}, {FSH}
s_add_u32 s{sFl}, s{sFl}, {F_KV}
s_mul_i32 s{sXb}, s{sXb}, {32*896}
s_min_u32 s{sTmp}, s{S_C}, 6
s_lshl_b32 s{sTmp}, s{sTmp}, 7
s_mul_i32 s{sWb}, s{S_HG}, 896
s_add_u32 s{sWb}, s{sWb}, s{sTmp}
s_mul_i32 s{sTmp}, s{S_W}, {16*2688}
s_add_u32 s{sWb}, s{sWb}, s{sTmp}
s_add_u32 s{sWb}, s{sWb}, 896
s_mul_i32 s{sLx}, s{S_W}, 12288
s_add_u32 s{sLx}, s{sLx}, {L_X}
s_lshl_b32 s{sS1}, s{S_W}, 11
s_add_u32 s{sS1}, s{sS1}, {L_W}
s_mov_b32 s{sCh}, s{S_ROT}
s_waitcnt lgkmcnt(0)''')
srd(SRD_B, 20, 448 * 1344 * 2)
e(f's_load_dword s{S_NONCE}, s[28:29], 0')
def w_dma():
    e(f'''s_lshl_b32 s{sTmp}, s{sCh}, 13
    s_add_u32 m0, s{sTmp}, s{sS1}
    s_mul_i32 s{sTmp}, s{sCh}, {64*2688}
    s_add_u32 s{sTmp}, s{sTmp}, s{sWb}
    buffer_load_dwordx4 v{vWd[0]}, {sr(SRD_B)}, s{sTmp} offen lds
    buffer_load_dwordx4 v{vWd[1]}, {sr(SRD_B)}, s{sTmp} offen offset:1024 lds''')
    rot_next(sCh)
def x_dma_setup(slot):
    return [f's_add_u32 m0, s{sLx}, {slot*4096}', f's_lshl_b32 s{sTmp2}, s{sCh}, 7', f's_add_u32 s{sTmp2}, s{sTmp2}, s{sXb}']
def x_dma_loads():
    return [f'buffer_load_dwordx4 v{vXd[i]}, {sr(SRD_A)}, s{sTmp2} offen offset:{1024*i} lds' for i in range(4)]
def rot_lines(s):
    return [f's_add_u32 s{s}, s{s}, 1', f's_cmp_eq_u32 s{s}, 7', f's_cselect_b32 s{s}, 0, s{s}']
for i in range(4): w_dma()
srd(SRD_A, 18, 2048 * 896)
srd(SRD_WS, 28, WS_SIZE)
e('s_waitcnt lgkmcnt(0)\ns_barrier')
if OPT['only'] == 1: e('s_endpgm')
e(f's_add_u32 s{S_NONCE}, s{S_NONCE}, 1')
for i in range(3): w_dma()
for s in range(3):
    e('\n'.join(x_dma_setup(s) + x_dma_loads() + rot_lines(sCh)))
stamp(0)
e(f'''v_and_b32 v{vA}, 31, v{V_LANE}
v_lshrrev_b32 v{vG}, 5, v{V_LANE}''')
swap23(vRho, vA, vB)
e(f'''v_bfe_u32 v{vB}, v{vRho}, 1, 3
v_xor_b32 v{vB}, v{vB}, v{vG}
v_lshlrev_b32 v{vB}, 4, v{vB}
v_lshl_add_u32 v{vB}, v{vRho}, 7, v{vB}
v_add_u32 v{vXr[0]}, s{sLx}, v{vB}
v_xor_b32 v{vXr[1]}, 32, v{vXr[0]}
v_xor_b32 v{vXr[2]}, 64, v{vXr[0]}
v_xor_b32 v{vXr[3]}, 0x60, v{vXr[0]}
v_and_b32 v{vB}, 3, v{V_LANE}                     ; cc
v_lshrrev_b32 v{vC}, 1, v{vB}
v_and_b32 v{vQd}, 1, v{vB}
v_lshl_or_b32 v{vC}, v{vQd}, 1, v{vC}
v_bfe_u32 v{vQd}, v{V_LANE}, 4, 1
v_lshl_or_b32 v{vB}, v{vQd}, 2, v{vB}
v_lshl_or_b32 v{vC}, v{vQd}, 2, v{vC}
v_bfe_u32 v{vQd}, v{V_LANE}, 2, 2                  ; r'
v_lshl_or_b32 v{vFl}, v{vG}, 3, v{vQd}             ; 8g + r'
v_lshlrev_b32 v{vQr}, 6, v{vFl}
v_lshl_add_u32 v{vQr}, v{vC}, 3, v{vQr}
v_add_u32 v{vQr}, {L_X + 4096}, v{vQr}
s_cmp_eq_u32 s{S_HG}, 0
s_cselect_b64 vcc, -1, 0
v_cndmask_b32 v{vB}, v{vB}, v{vC}, vcc             ; K slabs use the exchanged order, V slabs the natural one
v_lshlrev_b32 v{vWb}, 7, v{vFl}
v_lshl_add_u32 v{vWb}, v{vB}, 3, v{vWb}
v_lshrrev_b32 v{vQd}, 1, v{vQd}
v_lshl_add_u32 v{vWb}, v{vQd}, 6, v{vWb}
v_add_u32 v{vWb}, {L_W}, v{vWb}
v_lshlrev_b32 v{vB}, 4, v{vRho}
v_lshl_add_u32 v{vB}, v{vG}, 15, v{vB}             ; K: g*32768 + token*16
v_lshrrev_b32 v{vC}, 2, v{vA}
v_lshlrev_b32 v{vC}, 14, v{vC}
v_lshl_add_u32 v{vC}, v{vG}, 6, v{vC}
v_and_b32 v{vQd}, 3, v{vA}
v_lshl_add_u32 v{vC}, v{vQd}, 4, v{vC}
v_cndmask_b32 v{vSt}, v{vC}, v{vB}, vcc
s_lshl2_add_u32 s{sTmp}, s{S_TILE}, s{S_W}
s_lshl_b32 s{sTmp2}, s{sTmp}, 9
s_add_u32 s{sTmp2}, s{sTmp2}, {WS_K}
s_lshl_b32 s{sTmp}, s{sTmp}, 8
s_add_u32 s{sTmp}, s{sTmp}, {WS_V}
s_movk_i32 s{sS2}, 128
s_cmp_eq_u32 s{S_HG}, 0
s_cselect_b32 s{sSt}, s{sTmp2}, s{sTmp}
s_cselect_b32 s{sS2}, 0x10000, s{sS2}
s_lshl_b32 s{sTmp}, s{S_C}, 18
s_add_u32 s{sSt}, s{sSt}, s{sTmp}
v_lshrrev_b32 v{vB}, 2, v{V_LANE}
v_mul_u32_u24 v{vB}, 2688, v{vB}
v_lshl_add_u32 v{vQd}, v{vQd}, 4, v{vB}
s_mov_b32 s{sCw}, s{S_ROT}
s_lshl_b32 s{sTmp}, s{sCw}, 13
v_add_u32 v{vW0}, s{sTmp}, v{vWb}
v_xor_b32 v{vW1}, 64, v{vW0}
s_waitcnt vmcnt(12)''')
stamp(1)
sync(1)
stamp(2)
def w_reads(s):
    r = []
    for ks in range(4):
        for ct in range(2):
            for hf in range(2):
                d = VWF + 32 * (s & 1) + 8 * ks + 4 * ct + 2 * hf
                r.append(f'ds_read_b64_tr_b16 {vr(d,2)}, v{(vW0, vW1)[ct]} offset:{ks*2048 + hf*512}')
    return r
def x_reads(s):
    return [f'ds_read_b128 {vr(VX + 16*s + 4*ks, 4)}, v{vXr[ks]} offset:{(s%3)*4096}' for ks in range(4)]
def w_addr_next():
    return rot_lines(sCw) + [f's_lshl_b32 s{sTmp}, s{sCw}, 13', f'v_add_u32 v{vW0}, s{sTmp}, v{vWb}', f'v_xor_b32 v{vW1}, 64, v{vW0}']
e('\n'.join(w_reads(0)))
e('s_waitcnt vmcnt(8)')
e('\n'.join(x_reads(0) + w_addr_next()))
e(f'''s_waitcnt lgkmcnt(0)
s_cmp_lg_u32 s{S_HG}, 0
s_cbranch_scc1 L_gemm_v''')
def gemm1(vpart):
    for s in range(7):
        M = []
        for ks in range(4):
            for ct in range(2):
                wf = vr(VWF + 32 * (s & 1) + 8 * ks + 4 * ct, 4); xf = vr(VX + 16 * s + 4 * ks, 4)
                acc = vr(VACC + 16 * ct, 16)
                a, b = (xf, wf) if vpart else (wf, xf)
                M.append(f'v_mfma_f32_32x32x16_bf16 {acc}, {a}, {b}, {"0" if s == 0 and ks == 0 else acc}')
        gaps = [[] for _ in range(8)]
        if s + 3 <= 6:
            gaps[0] = x_dma_setup(s % 3) + x_dma_loads()
            gaps[7] = rot_lines(sCh)
        if s < 6:
            wr = w_reads(s + 1)
            for i in range(4): gaps[1 + i] += wr[4*i:4*i+4]
            n = 4 * sum(1 for c in (s + 2, s + 3) if c <= 6)
            gaps[4] += [f's_waitcnt vmcnt({n})'] + x_reads(s + 1)
            if s < 5: gaps[5] += w_addr_next()
            gaps[7] += ['s_waitcnt lgkmcnt(0)']
        for i in range(8):
            e(M[i]); e('\n'.join(gaps[i]))
gemm1(False)
e('s_branch L_gemm_done\nL_gemm_v:')
gemm1(True)
e('L_gemm_done:')
stamp(3)
e(f'''s_lshl_b32 s{sWb}, s{S_O0}, 4
s_mul_i32 s{sTmp}, s{S_W}, {16*2688}
s_add_u32 s{sWb}, s{sWb}, s{sTmp}
s_mov_b32 s{sCh}, s{S_ROT}
s_add_u32 s{sS1}, s{sSt}, s{sS2}
s_add_u32 s{sXb}, s{sSt}, 0x20000
s_add_u32 s{sCw}, s{sS1}, 0x20000
s_lshr_b32 s{sTmp}, s{S_O0}, 3
s_add_u32 s{sTmp2}, s{S_O0}, 3
s_lshr_b32 s{sTmp2}, s{sTmp2}, 3
s_cmp_eq_u32 s{S_H}, 15
s_cselect_b32 s{sTmp2}, 7, s{sTmp2}
s_sub_u32 s{sTmp2}, s{sTmp2}, s{sTmp}''')
for ct in range(2):
    for i in range(8):
        e(f'v_cvt_pk_bf16_f32 v{VPK + 8*ct + i}, v{VACC + 16*ct + 2*i}, v{VACC + 16*ct + 2*i + 1}')
e(f'''s_cmp_eq_u32 s{S_C}, 7
s_cbranch_scc1 L_nokv
buffer_store_dwordx4 {vr(VPK,4)}, v{vSt}, {sr(SRD_WS)}, s{sSt} offen sc1
buffer_store_dwordx4 {vr(VPK+4,4)}, v{vSt}, {sr(SRD_WS)}, s{sS1} offen sc1
buffer_store_dwordx4 {vr(VPK+8,4)}, v{vSt}, {sr(SRD_WS)}, s{sXb} offen sc1
buffer_store_dwordx4 {vr(VPK+12,4)}, v{vSt}, {sr(SRD_WS)}, s{sCw} offen sc1
L_nokv:
v_bfe_u32 v{vA}, v{V_LANE}, 4, 1
v_mul_u32_u24 v{vA}, s{sTmp2}, v{vA}
v_lshl_add_u32 v{vA}, v{vG}, 3, v{vA}
v_add_u32 v{vA}, s{sTmp}, v{vA}
v_and_b32 v{vB}, 15, v{V_LANE}
v_lshl_add_u32 v{vA}, v{vA}, 6, v{vB}
s_lshl_b32 s{sTmp}, s{S_W}, 4
v_add_u32 v{vA}, s{sTmp}, v{vA}
v_lshlrev_b32 v{vA}, {FSH}, v{vA}
v_add_u32 v{vFl}, {F_KV}, v{vA}''')
for s in range(7):
    e(f'''s_add_u32 m0, s{sLx}, {4096 + 1024*s}
    s_mul_i32 s{sTmp}, s{sCh}, {64*2688}
    s_add_u32 s{sTmp}, s{sTmp}, s{sWb}
    buffer_load_dwordx4 v{vQd}, {sr(SRD_B)}, s{sTmp} offen lds''')
    if s < 6: rot_next(sCh)
stamp(4)
e(f'''v_and_b32 v{vA}, 31, v{V_LANE}
v_lshlrev_b32 v{vKo0}, 4, v{vA}
v_lshl_add_u32 v{vKo0}, v{vG}, 15, v{vKo0}
v_add_u32 v{vKo1}, 0x10000, v{vKo0}
v_lshrrev_b32 v{vA}, 2, v{vRho}
v_lshlrev_b32 v{vA}, 14, v{vA}
v_lshl_add_u32 v{vA}, v{vG}, 6, v{vA}
v_and_b32 v{vB}, 3, v{V_LANE}
v_lshl_add_u32 v{vVo}, v{vB}, 4, v{vA}
v_mov_b32 v{vIdx}, 0xdddddddd
s_lshl_b32 s{sTmp}, s{S_O0}, 15
s_lshl_b32 s{sK}, s{S_W}, 13
s_add_u32 s{sK}, s{sK}, s{sTmp}
s_add_u32 s{sK}, s{sK}, {WS_K}
s_lshl_b32 s{sV}, s{S_W}, 12
s_add_u32 s{sV}, s{sV}, s{sTmp}
s_add_u32 s{sV}, s{sV}, {WS_V}
s_bitcmp1_b32 s{S_H}, 0
s_cselect_b64 s[{sOdd}:{sOdd+1}], -1, 0
s_cselect_b32 s{sMask}, -16, 0x0fffffff
s_mov_b32 s{sMask+1}, s{sMask}
s_mov_b32 s78, 0x3f803f80
s_mov_b32 s79, s78''')
srd(SRD_C, 28, WS_SIZE)
for i in range(16): e(f'v_mov_b64 {vr(VV+2*i,2)}, s[78:79]')
e('s_waitcnt vmcnt(7)')
publish(sFl, vA)
stamp(5)
e(f'''; per-lane multipliers for Q: scale*log2(e), zero on the four slots that belong to the neighbour head
v_mov_b32 v{vC}, 0x3e8b97f6
v_cmp_gt_u32 vcc, 32, v{V_LANE}
s_and_b64 s[78:79], vcc, s[{sOdd}:{sOdd+1}]
s_nor_b64 s[80:81], vcc, s[{sOdd}:{sOdd+1}]
v_cndmask_b32 v{vA}, v{vC}, 0, s[78:79]
v_cndmask_b32 v{vB}, v{vC}, 0, s[80:81]
s_waitcnt vmcnt(1)''')
sync(2)
stamp(6)
e(f'buffer_load_dword v{V_T}, v{vFl}, {sr(SRD_WS)}, 0 offen sc1')
def q_reads(k):
    s, ks = divmod(k, 4)
    return [f'ds_read_b64_tr_b16 {vr(112 + 4*(k%8) + 2*hf, 2)}, v{vQr} offset:{ks*12288 + s*1024 + hf*256}' for hf in range(2)]
for k in range(6): e('\n'.join(q_reads(k)))
for k in range(28):
    e(f's_waitcnt lgkmcnt({min(10, 2*(27-k))})')
    e(f'v_mfma_f32_32x32x16_bf16 {vr(VACC,16)}, {vr(112 + 4*(k%8), 4)}, {vr(VX + 4*k, 4)}, {"0" if k == 0 else vr(VACC,16)}')
    if k + 6 < 28: e('\n'.join(q_reads(k + 6)))
stamp(7)
poll(vFl, first_issued=True)
stamp(8)
def kv_loads(buf, i, srdn=SRD_C):
    return [f'buffer_load_dwordx4 {vr(VK + 8*buf, 4)}, v{vKo0}, {sr(srdn)}, s{sK} offen offset:{512*i} sc1',
            f'buffer_load_dwordx4 {vr(VK + 8*buf + 4, 4)}, v{vKo1}, {sr(srdn)}, s{sK} offen offset:{512*i} sc1',
            f's_mov_b64 exec, s[{sMask}:{sMask+1}]',
            f'buffer_load_dwordx4 {vr(VV + 8*buf, 4)}, v{vVo}, {sr(srdn)}, s{sV} offen offset:{256*i} sc1',
            f'buffer_load_dwordx4 {vr(VV + 8*buf + 4, 4)}, v{vVo}, {sr(srdn)}, s{sV} offen offset:{256*i + 128} sc1',
            's_mov_b64 exec, -1']
for t in range(3): e('\n'.join(kv_loads(t, t)))
for r in range(16):
    m = vA if r < 4 else (vB if r >= 12 else vC)
    e(f'v_mul_f32 v{VACC + r}, v{m}, v{VACC + r}')
for i in range(8):
    e(f'v_cvt_pk_bf16_f32 v{VQ + 24 + i}, v{VACC + 2*i}, v{VACC + 2*i + 1}')
e(f'''v_lshlrev_b32 v{vA}, 4, v{V_LANE}
v_add_u32 v{vB}, s{sLx}, v{vA}
ds_write_b128 v{vB}, {vr(VQ+24,4)}
ds_write_b128 v{vB}, {vr(VQ+28,4)} offset:1024''')
arrive(3)
vRb = [5, 6, 7]; vQx = [8, 9, 10]; vRr = 11
for s in range(3):
    e(f'''s_add_u32 s{sTmp}, s{S_W}, {1+s}
    s_and_b32 s{sTmp}, s{sTmp}, 3
    s_mul_i32 s{sTmp}, s{sTmp}, 12288
    s_add_u32 s{sTmp2}, s{sTmp}, {L_X}
    v_add_u32 v{vQx[s]}, s{sTmp2}, v{vA}
    s_add_u32 s{sTmp}, s{sTmp}, {L_RB + 4096*s}
    v_add_u32 v{vRb[s]}, s{sTmp}, v{vA}''')
e(f'v_subrev_u32 v{vRr}, {L_X - L_RB}, v{vB}')
for i in range(32): e(f'v_mov_b64 {vr(VO+2*i,2)}, 0')
for i in range(8): e(f'v_mov_b64 {vr(VS+48+2*i,2)}, 0')
lwait(3)
for s in range(3):
    e(f'ds_read_b128 {vr(VQ+8*s,4)}, v{vQx[s]}\nds_read_b128 {vr(VQ+8*s+4,4)}, v{vQx[s]} offset:1024')
def qk(buf, slot, js):
    d = vr(VS + 16*slot, 16)
    return f'v_mfma_f32_32x32x16_bf16 {d}, {vr(VK + 8*buf + 4*js, 4)}, {vr(VQ + 8*slot + 4*js, 4)}, {"0" if js == 0 else d}'
def pv(buf, slot, js, oslot=None):
    oslot = slot if oslot is None else oslot
    return f'v_smfmac_f32_32x32x32_bf16 {vr(VO + 16*oslot, 16)}, {vr(VV + 8*buf + 4*js, 4)}, {vr(VS + 16*slot + 8*js, 8)}, v{vIdx}'
e(f's_mov_b32 s{sIt}, 0\ns_waitcnt vmcnt(8) lgkmcnt(0)')
stamp(9)
e(qk(0, 0, 0)); e(qk(0, 0, 1)); e('s_nop 10')
e('L_att:')
for t in range(4):
    for s in range(4):
        ex = [f'v_exp_f32 v{VS + 16*s + r}, v{VS + 16*s + r}' for r in range(16)]
        nb = t if s < 3 else (t + 1) & 3
        pb = t if s > 0 else (t - 1) & 3
        if s == 3: e('s_waitcnt vmcnt(8)')
        e(qk(nb, (s+1) & 3, 0)); e('\n'.join(ex[0:4]))
        e(qk(nb, (s+1) & 3, 1)); e('\n'.join(ex[4:8]))
        e(pv(pb, (s-1) & 3, 0))
        if s == 1:
            e('\n'.join(kv_loads((t + 3) & 3, t + 3)))
            if t == 0:
                e(f's_cmp_eq_u32 s{sIt}, 3\ns_cselect_b32 s{SRD_C+2}, 0, s{SRD_C+2}')
            if t == 3:
                e(f's_add_u32 s{sK}, s{sK}, 2048\ns_add_u32 s{sV}, s{sV}, 1024\ns_add_u32 s{sIt}, s{sIt}, 1\ns_cmp_lg_u32 s{sIt}, 4')
        e('\n'.join(ex[8:12]))
        e(pv(pb, (s-1) & 3, 1)); e('\n'.join(ex[12:16]))
e('s_cbranch_scc1 L_att')
e(pv(3, 3, 0))
stamp(10)
for s in range(2):
    for i in range(4): e(f'ds_write_b128 v{vRb[s]}, {vr(VO + 16*s + 4*i, 4)} offset:{1024*i}')
    if s == 0: e(pv(3, 3, 1))
for i in range(4): e(f'ds_write_b128 v{vRb[2]}, {vr(VO + 32 + 4*i, 4)} offset:{1024*i}')
arrive(4)
e(f'''s_lshl2_add_u32 s{sTmp}, s{S_TILE}, s{S_W}
s_lshl_b32 s{sFl}, s{sTmp}, 4
s_add_u32 s{sFl}, s{sFl}, s{S_H}
s_lshl_b32 s{sFl}, s{sFl}, {FSH}
s_add_u32 s{sFl}, s{sFl}, {F_O}
s_lshl_b32 s{sTmp}, s{sTmp}, 9
s_lshl_b32 s{sSt}, s{S_O0}, 15
s_add_u32 s{sSt}, s{sSt}, s{sTmp}
s_add_u32 s{sSt}, s{sSt}, {WS_O}
s_add_u32 s{sS1}, s{sSt}, 0x10000
v_lshlrev_b32 v{vSt}, 4, v{vRho}
v_lshl_add_u32 v{vSt}, v{vG}, 15, v{vSt}''')
lwait(4)
for i in range(12): e(f'ds_read_b128 {vr(VS + 4*i, 4)}, v{vRr} offset:{1024*i}')
OA = VO + 48
for s in range(3):
    e(f's_waitcnt lgkmcnt({8 - 4*s})')
    for i in range(8): e(f'v_pk_add_f32 {vr(OA+2*i,2)}, {vr(OA+2*i,2)}, {vr(VS+16*s+2*i,2)}')
e(f's_mov_b32 s{sIt}, {1 if OPT["force_fb"] else 0}')
e(f'''L_norm:
v_cndmask_b32 v{vA}, v{OA+12}, v{OA}, s[{sOdd}:{sOdd+1}]
v_max3_f32 v{vC}, abs(v{OA}), abs(v{OA+1}), abs(v{OA+2})
v_mov_b32 v{vB}, v{vA}
v_max3_f32 v{vC}, abs(v{OA+3}), abs(v{OA+4}), v{vC}
v_max3_f32 v{vC}, abs(v{OA+5}), abs(v{OA+6}), v{vC}
v_permlane32_swap_b32 v{vA}, v{vB}
v_max3_f32 v{vC}, abs(v{OA+7}), abs(v{OA+8}), v{vC}
v_cndmask_b32 v{vB}, v{vB}, v{vA}, s[{sOdd}:{sOdd+1}]
v_max3_f32 v{vC}, abs(v{OA+9}), abs(v{OA+10}), v{vC}
v_rcp_f32 v{vA}, v{vB}
v_max3_f32 v{vC}, abs(v{OA+11}), abs(v{OA+12}), v{vC}
v_max3_f32 v{vC}, abs(v{OA+13}), abs(v{OA+14}), v{vC}
v_max_f32 v{vC}, abs(v{OA+15}), v{vC}
v_cmp_nle_f32 vcc, 0x30800000, v{vB}
s_mov_b64 s[78:79], vcc
v_cmp_nge_f32 vcc, 0x4e800000, v{vB}
s_or_b64 s[78:79], s[78:79], vcc
v_cmp_ngt_f32 vcc, 0x7f000000, v{vC}
s_or_b64 vcc, s[78:79], vcc''')
if OPT['force_fb']:
    e(f's_cmp_eq_u32 s{sIt}, 1\ns_cbranch_scc1 L_fb')
e('s_cbranch_vccnz L_fb0\nL_norm2:')
for i in range(8): e(f'v_pk_mul_f32 {vr(OA+2*i,2)}, {vr(OA+2*i,2)}, {vr(vA,2)} op_sel_hi:[1,0]')
for i in range(8): e(f'v_cvt_pk_bf16_f32 v{VS+i}, v{OA+2*i}, v{OA+2*i+1}')
e(f'''s_bitcmp1_b32 s{S_H}, 0
s_cbranch_scc1 L_ost_odd
buffer_store_dwordx4 {vr(VS,4)}, v{vSt}, {sr(SRD_WS)}, s{sSt} offen sc1
s_mov_b32 exec_hi, 0
buffer_store_dwordx4 {vr(VS+4,4)}, v{vSt}, {sr(SRD_WS)}, s{sS1} offen sc1
s_not_b64 exec, exec
buffer_store_dwordx2 {vr(VS+4,2)}, v{vSt}, {sr(SRD_WS)}, s{sS1} offen sc1
s_branch L_ost_done
L_ost_odd:
buffer_store_dwordx4 {vr(VS+4,4)}, v{vSt}, {sr(SRD_WS)}, s{sS1} offen sc1
s_mov_b32 exec_hi, 0
buffer_store_dwordx2 {vr(VS+2,2)}, v{vSt}, {sr(SRD_WS)}, s{sSt} offen offset:8 sc1
s_not_b64 exec, exec
buffer_store_dwordx4 {vr(VS,4)}, v{vSt}, {sr(SRD_WS)}, s{sSt} offen sc1
L_ost_done:
s_mov_b64 exec, -1''')
stamp(11)
e('s_waitcnt vmcnt(0)')
publish(sFl, vA)
arrive(5)
stamp(12)
prof_out()
e('s_endpgm')

e(f'''L_fb0:
s_cmp_eq_u32 s{sIt}, 2
s_cbranch_scc1 L_norm2
L_fb:
s_waitcnt vmcnt(0)
s_lshl_b32 s{sTmp}, s{S_O0}, 15
s_add_u32 s{sK}, s{sTmp}, {WS_K}
s_add_u32 s{sV}, s{sTmp}, {WS_V}
v_mov_b32 v{vC}, 0xff800000
s_mov_b32 s{sIt}, 0
L_fb1:''')
e('\n'.join(kv_loads(0, 0, SRD_WS)[:2]))
e('s_waitcnt vmcnt(0)')
e(qk(0, 3, 0)); e(qk(0, 3, 1)); e('s_nop 11')
for i in range(8): e(f'v_max3_f32 v{vC}, v{VS+48+2*i}, v{VS+49+2*i}, v{vC}')
e(f'''s_add_u32 s{sK}, s{sK}, 512
s_add_u32 s{sIt}, s{sIt}, 1
s_cmp_lg_u32 s{sIt}, 64
s_cbranch_scc1 L_fb1
v_mov_b32 v{vA}, v{vC}
s_sub_u32 s{sK}, s{sK}, 0x8000
s_mov_b32 s{sIt}, 0
v_permlane32_swap_b32 v{vA}, v{vC}
v_max_f32 v{vC}, v{vA}, v{vC}''')
for i in range(8): e(f'v_mov_b64 {vr(OA+2*i,2)}, 0')
e('L_fb2:')
e('\n'.join(kv_loads(0, 0, SRD_WS)))
e('s_waitcnt vmcnt(0)')
e(qk(0, 3, 0)); e(qk(0, 3, 1)); e('s_nop 11')
for i in range(16): e(f'v_sub_f32 v{VS+48+i}, v{VS+48+i}, v{vC}')
for i in range(16): e(f'v_exp_f32 v{VS+48+i}, v{VS+48+i}')
e('s_nop 1')
e(pv(0, 3, 0)); e(pv(0, 3, 1))
e(f'''s_add_u32 s{sK}, s{sK}, 512
s_add_u32 s{sV}, s{sV}, 256
s_add_u32 s{sIt}, s{sIt}, 1
s_cmp_lg_u32 s{sIt}, 64
s_cbranch_scc1 L_fb2
s_mov_b32 s{sIt}, 2
s_nop 11
s_branch L_norm''')

sD0, sD, sHw, sDs, sTab, sA, sB, sLd, sSk, sIt2, sFlU, sInv, sUns = range(60, 73)
a0, a1, a2, a3 = 5, 6, 7, 8
vPar = 10
vKc = 18
vWa = 20
vRa = 28
vEx = 32
vAc = 48
vOne = 56; vScl = 57; vAdd = 58
vOp = 64
vY = 112
vXt = 128
vAn = 160
vZ = 168
ROLE[0] = 1
e(f'''L_ssm:
v_add_u32 v{V_GRP}, 16, v{V_GRP}
s_lshr_b32 s{sDs}, s{S_W}, 1
s_and_b32 s{sHw}, s{S_W}, 1
s_lshl_b32 s{sD0}, s{S_C}, 6
s_lshl1_add_u32 s{sD0}, s{S_J}, s{sD0}
s_add_u32 s{sD}, s{sD0}, s{sDs}
s_mul_i32 s{sTab}, s{S_W}, 12288
s_add_u32 s{sTab}, s{sTab}, {L_TAB}
s_lshl_b32 s{sA}, s{sD}, 9
v_lshl_add_u32 v{a0}, v{V_LANE}, 3, s{sA}
v_lshrrev_b32 v{a1}, 3, v{V_LANE}
v_mul_u32_u24 v{a1}, 896, v{a1}
v_and_b32 v{a2}, 7, v{V_LANE}
v_lshl_add_u32 v{a1}, v{a2}, 4, v{a1}
v_add_u32 v{a2}, {7168-1024}, v{a1}
s_lshl2_add_u32 s{sFlU}, s{S_J}, s{S_W}
s_mul_i32 s{sA}, s{sFlU}, {16*896}
s_lshl_b32 s{sB}, s{S_C}, 7
s_add_u32 s{sA}, s{sA}, s{sB}
s_add_u32 s{sFlU}, s{sFlU}, s{sB}
s_lshl_b32 s{sFlU}, s{sFlU}, {FSH}
s_add_u32 s{sFlU}, s{sFlU}, {F_U}
s_mov_b32 m0, s{sTab}
s_lshl_b32 s{sB}, s{sD0}, 1
s_waitcnt lgkmcnt(0)
s_cmp_{'eq' if OPT['only'] != 2 else 'le'}_u32 s{S_C}, 7
s_cbranch_scc0 L_ssm_go
s_barrier
s_endpgm
L_ssm_go:''')
srd(SRD_A, 4, 2048 * 896)
e(f'''s_load_dword s{S_NONCE}, s[28:29], 0
s_load_dword s{sLd}, s[14:15], s{sB}
s_load_dword s{sSk}, s[16:17], s{sB}
buffer_load_dwordx4 v{a1}, {sr(SRD_A)}, s{sA} offen lds
buffer_load_dwordx4 v{a2}, {sr(SRD_A)}, s{sA} offen offset:1024 lds
global_load_dwordx2 {vr(vPar,2)}, v{a0}, s[6:7]
global_load_dwordx2 {vr(vPar+2,2)}, v{a0}, s[8:9]
global_load_dwordx2 {vr(vPar+4,2)}, v{a0}, s[10:11]
global_load_dwordx2 {vr(vPar+6,2)}, v{a0}, s[12:13]''')
srd(SRD_WS, 28, WS_SIZE)
srd(SRD_B, 22, 448 * 896)
srd(SRD_C, 24, 2048 * 1792)
e(f'''s_waitcnt lgkmcnt(0)
s_barrier
s_add_u32 s{S_NONCE}, s{S_NONCE}, 1''')
e(f'v_lshlrev_b32 v{a0}, 2, v{V_LANE}')
for r in range(8):
    e(f'v_add_u32 v{a1}, {32*r}, v{a0}\nv_and_b32 v{a1}, 0xff, v{a1}\nv_add_u32 v{vWa+r}, s{sTab}, v{a1}')
e(f'''v_and_b32 v{a0}, 15, v{V_LANE}
v_lshrrev_b32 v{a1}, 4, v{V_LANE}
v_lshl_add_u32 v{a1}, v{a0}, 1, v{a1}
v_lshl_add_u32 v{a0}, v{a0}, 8, s{sTab}''')
for k in range(4):
    e(f'v_add_u32 v{a2}, {4*k}, v{a1}\nv_and_b32 v{a2}, 15, v{a2}\nv_lshl_add_u32 v{vRa+k}, v{a2}, 4, v{a0}')
e(f'''s_lshl_b32 s{sA}, s{sHw}, 10
v_lshl_add_u32 v{a0}, v{V_LANE}, 3, s{sA}
v_cvt_f32_u32 v{a0}, v{a0}
s_lshl_b32 s{sA}, s{sDs}, 11
s_add_u32 s{sA}, s{sA}, {L_KD}
v_cvt_f32_u32 v{vZ}, s{sA}
v_add_f32 v{vZ+1}, 0x44400000, v{vZ}''')
import struct
def fl(x): return hex(struct.unpack('<I', struct.pack('<f', x))[0])
for k in range(2):
    for i in range(0, 8, 2):
        e(f'''v_add_f32 v{a1}, {fl(512*k + 7 - i)}, v{a0}
        v_add_f32 v{a2}, {fl(512*k + 6 - i)}, v{a0}
        v_cvt_pk_bf16_f32 v{a2}, v{a1}, v{a2}
        v_lshlrev_b32 v{a1}, 16, v{a2}
        v_and_b32 v{a2}, 0xffff0000, v{a2}''')
        for q, src in ((0, a1), (1, a2)):
            e(f'''v_fma_f32 v{a3}, v{src}, 0.5, v{vZ+1}
            v_fma_f32 v{src}, v{src}, 2.0, v{vZ}
            v_min_f32 v{src}, v{src}, v{a3}
            v_cvt_u32_f32 v{vEx + 8*k + i + q}, v{src}''')
e(f'''s_lshl_b32 s{sA}, s{sDs}, 4
s_lshr_b32 s{sLd}, s{sLd}, s{sA}
s_lshl_b32 s{sLd}, s{sLd}, 16
s_lshr_b32 s{sSk}, s{sSk}, s{sA}
s_lshl_b32 s{sSk}, s{sSk}, 16
v_mov_b32 v{a0}, s{sLd}
v_mul_f32 v{a0}, 0x3fb8aa3b, v{a0}
v_exp_f32 v{a0}, v{a0}
s_cmp_eq_u32 s{sHw}, 0
s_cselect_b32 s{sA}, 1.0, 4.0
s_cselect_b32 s{sSk}, s{sSk}, 0
v_cvt_pk_bf16_f32 v{a0}, v{a0}, v{a0}
v_and_b32 v{vScl}, 0xffff0000, v{a0}
v_mul_f32 v{a0}, s{sA}, v{vScl}
v_mul_f32 v{vKc}, 0xbfb8aa3b, v{a0}
v_mul_f32 v{vKc+1}, 0.15915494, v{a0}
v_mov_b32 v{vOne}, 0x3c00
v_mov_b32 v{a1}, s{sSk}
v_cmp_eq_u32 vcc, 0, v{V_LANE}
v_mov_b64 {vr(vAc,2)}, 0
v_mov_b64 {vr(vAc+2,2)}, 0
v_cndmask_b32 v{vAdd}, 0, v{a1}, vcc
v_mov_b64 {vr(vAc+4,2)}, 0
v_mov_b64 {vr(vAc+6,2)}, 0
v_bfe_u32 v{a0}, v{V_LANE}, 2, 2
v_and_b32 v{a1}, 1, v{V_LANE}
v_lshl_or_b32 v{a0}, v{a1}, 3, v{a0}
v_lshl_add_u32 v{a0}, v{a0}, 7, s{sTab}
v_lshrrev_b32 v{a1}, 4, v{V_LANE}
v_bfe_u32 v{a2}, v{V_LANE}, 1, 1
v_lshl_or_b32 v{a1}, v{a1}, 1, v{a2}
v_lshl_add_u32 v{a0}, v{a1}, 3, v{a0}
v_lshrrev_b32 v{a1}, 3, v{V_LANE}
v_lshlrev_b32 v{a1}, 14, v{a1}
v_and_b32 v{a2}, 7, v{V_LANE}
v_lshl_add_u32 v{a1}, v{a2}, 4, v{a1}
s_lshl_b32 s{sA}, s{S_C}, 18
s_lshl2_add_u32 s{sB}, s{S_J}, s{S_W}
s_lshl_b32 s{sB}, s{sB}, 7
s_add_u32 s{sA}, s{sA}, s{sB}
s_add_u32 s{sA}, s{sA}, {WS_U}
s_add_u32 s{sB}, s{sA}, 0x20000''')
stamp(0)
e('s_waitcnt vmcnt(4)')
for z in range(2):
    for hf in range(2):
        e(f'ds_read_b64_tr_b16 {vr(vOp + 4*z + 2*hf, 2)}, v{a0} offset:{64*z + 512*hf}')
e(f'''s_waitcnt vmcnt(0) lgkmcnt(0)
buffer_store_dwordx4 {vr(vOp,4)}, v{a1}, {sr(SRD_WS)}, s{sA} offen sc1
buffer_store_dwordx4 {vr(vOp+4,4)}, v{a1}, {sr(SRD_WS)}, s{sB} offen sc1''')
stamp(1)
e(f'''v_and_b32 v{a0}, 0x7f807f80, v{vPar+4}
v_and_b32 v{a1}, 0x7f807f80, v{vPar+5}
v_and_b32 v{a2}, 0x7f807f80, v{vPar+6}
v_and_b32 v{a3}, 0x7f807f80, v{vPar+7}
v_pk_max_u16 v{a0}, v{a0}, v{a1}
v_pk_max_u16 v{a2}, v{a2}, v{a3}
v_pk_max_u16 v{a0}, v{a0}, v{a2}
v_lshlrev_b32 v{a1}, 16, v{a0}
v_max_u32 v{a0}, v{a0}, v{a1}''')
for n in (1, 2, 4, 8):
    e(f's_nop 1\nv_max_u32_dpp v{a0}, v{a0}, v{a0} row_ror:{n} row_mask:0xf bank_mask:0xf')
e(f'''s_nop 0
v_readlane_b32 s{sA}, v{a0}, 0
v_readlane_b32 s{sB}, v{a0}, 16
v_readlane_b32 s{sInv}, v{a0}, 32
v_readlane_b32 s{sUns}, v{a0}, 48
s_max_u32 s{sA}, s{sA}, s{sB}
s_max_u32 s{sUns}, s{sUns}, s{sInv}
s_max_u32 s{sUns}, s{sUns}, s{sA}
s_and_b32 s{sUns}, s{sUns}, 0x7f800000
s_min_u32 s{sUns}, s{sUns}, 0x7e800000
s_sub_u32 s{sInv}, 0x7f000000, s{sUns}
v_add_f32 v{vScl}, v{vScl}, v{vScl}
s_mov_b32 s{sIt2}, 0
v_mul_f32 v{vScl}, s{sUns}, v{vScl}''')
def cmul16(jobs, conj):
    ng = 'neg_hi:[1,0,0]' if conj else 'neg_lo:[1,0,0]'
    for i in range(0, len(jobs), 4):
        grp = jobs[i:i+4]
        for d, x, w in grp: e(f'v_pk_mul_f16 v{d}, v{x}, v{w} op_sel_hi:[1,0]')
        for d, x, w in grp: e(f'v_pk_fma_f16 v{d}, v{x}, v{w}, v{d} op_sel:[1,1,0] op_sel_hi:[0,1,1] {ng}')
def kg_mfma():
    for k in range(4):
        for t in range(2):
            e(f'v_mfma_f32_16x16x32_f16 {vr(vAc+4*t,4)}, {vr(vOp+12*k,4)}, {vr(vOp+12*k+4+4*t,4)}, {vr(vAc+4*t,4)}')
zA, zB, tA, tB, pA, pB = vZ, vZ+2, vZ+4, vZ+6, vZ+8, vZ+10
e(f'''L_kg:
v_lshlrev_b32 v{pA}, 16, v{vPar}
v_mul_f32 v{pA}, 0x3fb8aa3b, v{pA}
v_exp_f32 v{pA}, v{pA}
v_lshlrev_b32 v{pA+1}, 16, v{vPar+2}
v_lshlrev_b32 v{tA}, 16, v{vPar+4}
v_lshlrev_b32 v{tA+1}, 16, v{vPar+6}
v_cvt_pk_bf16_f32 v{pA}, v{pA}, v{pA}
v_mul_f32 v{tA}, s{sInv}, v{tA}
v_and_b32 v{pA}, 0xffff0000, v{pA}
v_mul_f32 v{tA+1}, s{sInv}, v{tA+1}
v_pk_mul_f32 {vr(pA,2)}, {vr(pA,2)}, {vr(vKc,2)}
v_cvt_pk_f16_f32 v{vXt}, v{tA}, -v{tA+1}
v_mul_f32 v{pB}, 0x41800000, v{pA}
v_mul_f32 v{pB+1}, 0x41800000, v{pA+1}
v_exp_f32 v{pA}, v{pA}
v_fract_f32 v{pA+1}, v{pA+1}
v_exp_f32 v{pB}, v{pB}
v_fract_f32 v{pB+1}, v{pB+1}
v_cos_f32 v{zA}, v{pA+1}
v_sin_f32 v{zA+1}, v{pA+1}
v_cos_f32 v{zB}, v{pB+1}
v_sin_f32 v{zB+1}, v{pB+1}''')
for p in range(4):
    e(f'v_alignbit_b32 v{vPar+2*p}, v{vPar+2*p+1}, v{vPar+2*p}, 16\nv_lshrrev_b32 v{vPar+2*p+1}, 16, v{vPar+2*p+1}')
e(f'''v_pk_mul_f32 {vr(zA,2)}, {vr(zA,2)}, {vr(pA,2)} op_sel_hi:[1,0]
v_pk_mul_f32 {vr(zB,2)}, {vr(zB,2)}, {vr(pB,2)} op_sel_hi:[1,0]''')
for st in range(5):
    chains = [(zB, tB, vAn + st)] + ([(zA, tA, vY + (1 << st))] if st < 4 else [])
    for z, t, d in chains: e(f'v_cvt_pk_f16_f32 v{d}, v{z}, v{z+1}')
    chains = [c for c in chains if st < (4 if c[0] == zB else 3)]
    for z, t, d in chains: e(f'v_pk_mul_f32 {vr(t,2)}, {vr(z,2)}, {vr(z,2)} op_sel_hi:[0,1]')
    for z, t, d in chains: e(f'v_pk_fma_f32 {vr(z,2)}, {vr(z,2)}, {vr(z,2)}, {vr(t,2)} op_sel:[1,1,0] op_sel_hi:[0,1,1] neg_lo:[1,0,0]')
e(f'''s_cmp_eq_u32 s{sIt2}, 0
s_cbranch_scc1 L_kg_a
s_waitcnt lgkmcnt(0)''')
kg_mfma()
e(f'''s_cmp_lg_u32 s{sIt2}, 1
s_cbranch_scc1 L_kg_a
s_waitcnt vmcnt(0)''')
publish(sFlU, a0)
e(f'''L_kg_a:
s_cmp_eq_u32 s{sHw}, 0
s_cbranch_scc1 L_kg_b
v_mov_b32 v{tA}, v{vXt}''')
cmul16([(vXt, tA, vAn + 3)], True)
e('L_kg_b:')
cmul16([(vY+3, vY+1, vY+2), (vY+12, vY+4, vY+8)], False)
cmul16([(vXt+1, vXt, vAn), (vXt+2, vXt, vAn+1), (vXt+4, vXt, vAn+2), (vXt+8, vXt, vAn+3)], True)
cmul16([(vY+hi+lo, vY+hi, vY+lo) for hi in (4, 8, 12) for lo in (1, 2, 3)], False)
cmul16([(vXt+3, vXt+1, vAn+1), (vXt+5, vXt+1, vAn+2), (vXt+6, vXt+2, vAn+2), (vXt+9, vXt+1, vAn+3)], True)
for i in range(8):
    e(f'ds_write2st64_b32 v{vWa+i}, v{vOne if i == 0 else vY+i}, v{vY+8+i} offset0:{i} offset1:{i+8}')
cmul16([(vXt+7, vXt+3, vAn+2), (vXt+10, vXt+2, vAn+3), (vXt+11, vXt+3, vAn+3), (vXt+12, vXt+4, vAn+3)], True)
cmul16([(vXt+13, vXt+5, vAn+3), (vXt+14, vXt+6, vAn+3), (vXt+15, vXt+7, vAn+3)], True)
for q in range(4):
    cmul16([(vXt+16+i, vXt+i, vAn+4) for i in range(4*q, 4*q+4)], True)
    for i in range(4*q, 4*q+4):
        e(f'ds_write2st64_b32 v{vWa+(i&7)}, v{vXt+i}, v{vXt+16+i} offset0:{16+i} offset1:{32+i}')
for k in range(4):
    for t in range(3):
        e(f'ds_read_b128 {vr(vOp+12*k+4*t,4)}, v{vRa+k} offset:{4096*t}')
e(f'''s_add_u32 s{sIt2}, s{sIt2}, 1
s_cmp_lg_u32 s{sIt2}, 4
s_cbranch_scc1 L_kg''')
vFu, vUa = 60, 61
e(f'''v_min_u32 v{a0}, 32, v{V_LANE}
s_lshl_b32 s{sA}, s{S_W}, 5
s_sub_u32 s{sA}, s{sA}, 1
v_add_u32 v{a0}, s{sA}, v{a0}
v_max_i32 v{a0}, 0, v{a0}
s_lshl_b32 s{sA}, s{S_C}, 7
v_add_u32 v{a0}, s{sA}, v{a0}
v_lshlrev_b32 v{a0}, {FSH}, v{a0}
v_add_u32 v{vFu}, {F_U}, v{a0}
s_waitcnt lgkmcnt(0)''')
kg_mfma()
e(f'''buffer_load_dword v{V_T}, v{vFu}, {sr(SRD_WS)}, 0 offen sc1
v_lshrrev_b32 v{a0}, 1, v{V_LANE}
v_and_b32 v{a1}, 1, v{V_LANE}
v_lshlrev_b32 v{vUa}, 6, v{a0}
v_lshl_add_u32 v{vUa}, v{a1}, 4, v{vUa}
s_lshr_b32 s{sA}, s{sD0}, 2
s_lshl_b32 s{sA}, s{sA}, 14
s_and_b32 s{sB}, s{sD0}, 3
s_lshl4_add_u32 s{sA}, s{sB}, s{sA}
s_lshl_b32 s{sB}, s{S_W}, 12
s_add_u32 s{sA}, s{sA}, s{sB}
s_add_u32 s{sLd}, s{sA}, {WS_U - 64}
v_fma_f32 v{vAc}, v{vAc}, v{vScl}, v{vAdd}''')
for i in range(1, 8): e(f'v_mul_f32 v{vAc+i}, v{vScl}, v{vAc+i}')
for i in range(4): e(f'v_cvt_pk_bf16_f32 v{vAc+i}, v{vAc+2*i}, v{vAc+2*i+1}')
e(f'''v_and_b32 v{a2}, 15, v{V_LANE}
v_lshrrev_b32 v{a3}, 4, v{V_LANE}
v_lshlrev_b32 v{a2}, 5, v{a2}
v_lshl_add_u32 v{a2}, v{a3}, 3, v{a2}
s_lshl_b32 s{sA}, s{S_W}, 10
s_add_u32 s{sA}, s{sA}, {L_KD}
v_add_u32 v{a2}, s{sA}, v{a2}
ds_write_b64 v{a2}, {vr(vAc,2)}
ds_write_b64 v{a2}, {vr(vAc+2,2)} offset:512''')
stamp(2)
poll(vFu, first_issued=True)
stamp(3)
U = 64
for k in range(2):
    e(f'''buffer_load_dwordx4 {vr(U+8*k+4,4)}, v{vUa}, {sr(SRD_WS)}, s{sLd} offen offset:{64 + 2048*k} sc1
    buffer_load_dwordx2 {vr(U+8*k+2,2)}, v{vUa}, {sr(SRD_WS)}, s{sLd} offen offset:{8 + 2048*k} sc1''')
sync(1)
G = 96
for i in range(16): e(f'ds_read_u16 v{G+i}, v{vEx+i}')
e(f'''v_mov_b64 {vr(112,2)}, 0
v_mov_b64 {vr(114,2)}, 0
s_mul_i32 s{sA}, s{sDs}, 6144
s_add_u32 s{sA}, s{sA}, {L_KP}
s_mul_i32 s{sB}, s{sHw}, 3072
s_add_u32 s{sB}, s{sB}, s{sA}
v_lshrrev_b32 v{a2}, 5, v{V_LANE}
v_mul_u32_u24 v{a2}, 1536, v{a2}
v_and_b32 v{a3}, 31, v{V_LANE}
v_lshl_add_u32 v{a2}, v{a3}, 4, v{a2}
v_add_u32 v62, s{sB}, v{a2}
ds_write_b128 v62, {vr(112,4)}
v_bfe_u32 v{a2}, v{V_LANE}, 2, 2
v_mul_u32_u24 v{a2}, {UC_S}, v{a2}
v_and_b32 v{a3}, 3, v{V_LANE}
v_lshl_add_u32 v{a2}, v{a3}, 4, v{a2}
s_mul_i32 s{sB}, s{sDs}, {UC_D}
s_add_u32 s{sB}, s{sB}, {L_UC}
v_add_u32 v{a2}, s{sB}, v{a2}
ds_write_b128 v{a2}, {vr(112,4)}
v_mul_u32_u24 v{a2}, 1536, v{a3}
v_lshrrev_b32 v9, 2, v{V_LANE}
v_lshl_add_u32 v{a2}, v9, 4, v{a2}
s_lshl_b32 s{sSk}, s{sHw}, 9
s_add_u32 s{sA}, s{sA}, s{sSk}
v_add_u32 v{a2}, s{sA}, v{a2}
v_xor_b32 v{a3}, 3, v{a3}
v_mul_u32_u24 v{a3}, {UC_S}, v{a3}
v_bfe_u32 v9, v{V_LANE}, 2, 3
v_lshl_add_u32 v{a3}, v9, 3, v{a3}
v_lshrrev_b32 v9, 5, v{V_LANE}
v_lshlrev_b32 v9, 4, v9
v_sub_u32 v{a3}, v{a3}, v9
s_lshl_b32 s{sSk}, s{sHw}, 5
s_sub_u32 s{sB}, s{sB}, s{sSk}
s_add_u32 s{sB}, s{sB}, 56
v_add_u32 v63, s{sB}, v{a3}
v_add_u32 v62, {512 - 80}, v62
v_mul_u32_u24 v{a1}, {UC_D}, v{a1}
v_lshl_add_u32 v{a0}, v{a0}, 4, v{a1}
s_lshl_b32 s{sA}, s{S_W}, 10
s_add_u32 s{sA}, s{sA}, {L_UC + 64}
v_add_u32 v{a0}, s{sA}, v{a0}
s_waitcnt lgkmcnt(2)''')
for i in range(8): e(f'v_lshl_or_b32 v{116+i}, v{G+2*i+1}, 16, v{G+2*i}')
e(f'''ds_write_b128 v{a2}, {vr(116,4)} offset:512
ds_write_b128 v{a2}, {vr(120,4)} offset:{512 + 256}
s_cmp_eq_u32 s{S_W}, 0
s_cselect_b64 vcc, 3, 0
s_waitcnt vmcnt(2)
v_cndmask_b32 v{U+2}, v{U+2}, v112, vcc
v_cndmask_b32 v{U+3}, v{U+3}, v112, vcc''')
for k in range(2):
    b = U + 8*k + 4; t = 128 + 12*k
    if k == 1: e('s_waitcnt vmcnt(0)')
    e(f'ds_write_b128 v{a0}, {vr(b,4)} offset:{512*k}')
    for i in range(4): e(f'v_alignbit_b32 v{t+i}, v{b+i}, v{b+i-1}, 16')
    e(f'ds_write_b128 v{a0}, {vr(t,4)} offset:{UC_S + 512*k}')
    for i in range(4): e(f'v_mov_b32 v{t+4+i}, v{b+i-1}')
    e(f'ds_write_b128 v{a0}, {vr(t+4,4)} offset:{2*UC_S + 512*k}')
    for i in range(4): e(f'v_alignbit_b32 v{t+8+i}, v{b+i-1}, v{b+i-2}, 16')
    e(f'ds_write_b128 v{a0}, {vr(t+8,4)} offset:{3*UC_S + 512*k}')
arrive(2)
T0, T1, CB = 160, 176, 64
for i in range(16): e(f'v_mov_b64 {vr(T0+2*i,2)}, 0')
lwait(2)
stamp(4)
def cv_reads(k):
    b = CB + 16 * (k & 3)
    return [f'ds_read_b128 {vr(b+8,4)}, v62 offset:{80 - 16*k}',
            f'ds_read_b64 {vr(b,2)}, v63 offset:{64*k}', f'ds_read_b64 {vr(b+2,2)}, v63 offset:{64*k + 8}',
            f'ds_read_b128 {vr(b+12,4)}, v62 offset:{512 + 80 - 16*k}',
            f'ds_read_b64 {vr(b+4,2)}, v63 offset:{2048 + 64*k}', f'ds_read_b64 {vr(b+6,2)}, v63 offset:{2048 + 64*k + 8}']
e('\n'.join(cv_reads(0) + cv_reads(1)))
e(f's_mov_b32 s{sIt2}, 0\nL_cv:')
for k in range(4):
    b = CB + 16 * k
    rd = cv_reads(k + 2)
    e('s_waitcnt lgkmcnt(6)')
    e(f'v_mfma_f32_32x32x16_bf16 {vr(T1,16)}, {vr(b,4)}, {vr(b+12,4)}, {vr(T1,16)}')
    e('\n'.join(rd[0:3]))
    e(f'v_mfma_f32_32x32x16_bf16 {vr(T0,16)}, {vr(b,4)}, {vr(b+8,4)}, {vr(T0,16)}')
    e('\n'.join(rd[3:6]))
    e(f'v_mfma_f32_32x32x16_bf16 {vr(T1,16)}, {vr(b+4,4)}, {vr(b+8,4)}, {vr(T1,16)}')
e(f'''v_add_u32 v63, 256, v63
v_subrev_u32 v62, 64, v62
s_add_u32 s{sIt2}, s{sIt2}, 1
s_cmp_lg_u32 s{sIt2}, 8
s_cbranch_scc1 L_cv''')
stamp(5)
sync(3)
e(f'''v_lshlrev_b32 v{a0}, 4, v{V_LANE}
s_lshl_b32 s{sA}, s{S_W}, 12
s_add_u32 s{sA}, s{sA}, {L_SSM}
v_add_u32 v{a1}, s{sA}, v{a0}
s_xor_b32 s{sB}, s{S_W}, 1
s_lshl_b32 s{sB}, s{sB}, 12
s_add_u32 s{sB}, s{sB}, {L_SSM}
v_add_u32 v{a2}, s{sB}, v{a0}
s_cmp_eq_u32 s{sHw}, 0
s_cbranch_scc1 L_noswap''')
for i in range(16): e(f'v_swap_b32 v{T0+i}, v{T1+i}')
e('L_noswap:')
for i in range(4): e(f'ds_write_b128 v{a2}, {vr(T1+4*i,4)} offset:{1024*i}')
sync(4)
for i in range(4): e(f'ds_read_b128 {vr(T1+4*i,4)}, v{a1} offset:{1024*i}')
e(f'''s_lshl1_add_u32 s{sA}, s{sD}, s{sHw}
s_lshl_b32 s{sA}, s{sA}, 11
s_add_u32 s{sA}, s{sA}, {WS_Y}
s_lshl_b32 s{sB}, s{sHw}, 9
s_add_u32 s{sB}, s{sB}, s{sD}
s_lshl_b32 s{sB}, s{sB}, {FSH}
s_add_u32 s{sB}, s{sB}, {F_Y}
s_waitcnt lgkmcnt(0)''')
for i in range(8): e(f'v_pk_add_f32 {vr(T0+2*i,2)}, {vr(T0+2*i,2)}, {vr(T1+2*i,2)}')
for i in range(8): e(f'v_cvt_pk_bf16_f32 v{T1+i}, v{T0+2*i}, v{T0+2*i+1}')
e(f'''buffer_store_dwordx4 {vr(T1,4)}, v{a0}, {sr(SRD_WS)}, s{sA} offen sc1
buffer_store_dwordx4 {vr(T1+4,4)}, v{a0}, {sr(SRD_WS)}, s{sA} offen offset:1024 sc1
s_lshl2_add_u32 s{sLd}, s{S_C}, s{S_W}
s_lshl_b32 s{sLd}, s{sLd}, 4
s_lshr_b32 s{sSk}, s{S_J}, 4
s_lshl_b32 s{sSk}, s{sSk}, 9
s_add_u32 s{sSk}, s{sSk}, s{sLd}
v_and_b32 v{a2}, 15, v{V_LANE}
v_add_u32 v{a2}, s{sSk}, v{a2}
v_lshlrev_b32 v{a2}, {FSH}, v{a2}
v_add_u32 v{vFu}, {F_Y}, v{a2}
v_lshrrev_b32 v{a2}, 3, v{V_LANE}
v_and_b32 v{a3}, 7, v{V_LANE}
v_lshlrev_b32 v{vUa}, 12, v{a2}
v_lshl_add_u32 v{vUa}, v{a3}, 4, v{vUa}
s_lshl_b32 s{sA}, s{sLd}, 12
s_lshl_b32 s{sSk}, s{S_J}, 7
s_add_u32 s{sA}, s{sA}, s{sSk}
s_add_u32 s{sA}, s{sA}, {WS_Y}
s_add_u32 s{sSk}, s{sA}, 0x8000
s_waitcnt vmcnt(0)''')
publish(sB, 9)
stamp(6)
poll(vFu)
stamp(7)
e(f'''buffer_load_dwordx4 {vr(64,4)}, v{vUa}, {sr(SRD_WS)}, s{sA} offen sc1
buffer_load_dwordx4 {vr(68,4)}, v{vUa}, {sr(SRD_WS)}, s{sSk} offen sc1
v_lshlrev_b32 v9, 1, v{a2}
v_and_b32 v9, 4, v9
v_xor_b32 v9, v9, v{a3}
v_mul_u32_u24 v10, 896, v{a2}
v_lshl_add_u32 v10, v9, 4, v10
v_add_u32 v11, {7168-1024}, v10
v_bfe_u32 v12, v{V_LANE}, 2, 2
v_and_b32 v13, 1, v{V_LANE}
v_lshl_or_b32 v12, v13, 3, v12
v_lshlrev_b32 v12, 7, v12
v_lshrrev_b32 v13, 4, v{V_LANE}
v_bfe_u32 v14, v{V_LANE}, 1, 1
v_lshl_or_b32 v13, v13, 1, v14
v_lshl_add_u32 v12, v13, 3, v12
s_lshl_b32 s{sA}, s{S_W}, 12
s_add_u32 s{sA}, s{sA}, {L_SSM}
v_add_u32 v12, s{sA}, v12
v_and_b32 v13, 3, v{V_LANE}
v_and_b32 v14, 8, v{V_LANE}
v_or_b32 v13, v13, v14
v_lshrrev_b32 v14, 4, v{V_LANE}
v_lshl_or_b32 v13, v14, 5, v13
v_mul_u32_u24 v13, 1792, v13
v_and_b32 v14, 4, v{V_LANE}
v_lshl_add_u32 v13, v14, 2, v13
s_lshr_b32 s{sA}, s{S_J}, 4
s_lshl_b32 s{sA}, s{sA}, 10
s_and_b32 s{sB}, s{S_J}, 3
s_lshl_b32 s{sB}, s{sB}, 8
s_add_u32 s{sA}, s{sA}, s{sB}
s_and_b32 s{sB}, s{S_J}, 8
s_lshl1_add_u32 s{sA}, s{sB}, s{sA}
s_and_b32 s{sB}, s{S_J}, 4
s_add_u32 s{sA}, s{sA}, s{sB}
s_mul_i32 s{sA}, s{sA}, 1792
s_lshl1_add_u32 s{sA}, s{sLd}, s{sA}
s_add_u32 s{sB}, s{sA}, {128*1792}
s_waitcnt vmcnt(0)
ds_write_b128 v{a1}, {vr(64,4)}
ds_write_b128 v{a1}, {vr(68,4)} offset:1024''')
for z in range(2):
    for hf in range(2):
        e(f'ds_read_b64_tr_b16 {vr(72 + 4*z + 2*hf, 2)}, v12 offset:{64*z + 512*hf}')
e(f'''s_waitcnt lgkmcnt(0)
buffer_store_dwordx4 {vr(72,4)}, v13, {sr(SRD_C)}, s{sA} offen
buffer_store_dwordx4 {vr(76,4)}, v13, {sr(SRD_C)}, s{sB} offen
v_subrev_u32 v14, 16, v{V_GRP}''')
sync(5)
if OPT['only'] == 1:
    stamp(8); stamp(13); prof_out(); e('s_endpgm')
lwait(2, addr=14)
stamp(8)
e(f'''s_mul_i32 s{sA}, s{S_W}, {16*896}
s_lshl_b32 s{sB}, s{S_C}, 7
s_add_u32 s{sA}, s{sA}, s{sB}
s_lshl_b32 s{sB}, s{S_W}, 11
s_add_u32 s{sB}, s{sB}, {L_WO}''')
for ch in range(7):
    e(f'''s_add_u32 m0, s{sB}, {8192*ch}
    s_add_u32 s{sSk}, s{sA}, {64*896*ch}
    buffer_load_dwordx4 v10, {sr(SRD_B)}, s{sSk} offen lds
    buffer_load_dwordx4 v11, {sr(SRD_B)}, s{sSk} offen offset:1024 lds
    s_waitcnt vmcnt(2)''')
WF, OF, OC = 16, 176, 232
e(f'''; Wo read address: row 8g + r', byte 16cc, half swizzled by r'>>1
v_lshrrev_b32 v5, 4, v{V_LANE}
v_bfe_u32 v6, v{V_LANE}, 2, 2
v_lshl_or_b32 v7, v5, 3, v6
v_lshlrev_b32 v7, 7, v7
v_lshrrev_b32 v6, 1, v6
v_lshl_add_u32 v7, v6, 6, v7
v_and_b32 v6, 3, v{V_LANE}
v_lshl_add_u32 v7, v6, 4, v7
v_add_u32 v8, {L_WO}, v7
v_xor_b32 v7, 64, v7
v_add_u32 v9, {L_WO}, v7
v_and_b32 v6, 15, v{V_LANE}
v_lshlrev_b32 v10, 4, v6
v_lshl_add_u32 v10, v5, 15, v10
s_lshl2_add_u32 s{sLd}, s{S_J}, s{S_W}
s_lshr_b32 s{sA}, s{sLd}, 1
s_lshl_b32 s{sA}, s{sA}, 4
v_add_u32 v11, s{sA}, v6
v_lshlrev_b32 v11, {FSH}, v11
v_add_u32 v11, {F_O}, v11
s_lshl_b32 s{sA}, s{S_W}, 11
s_add_u32 s{sA}, s{sA}, {L_SSM}
v_and_b32 v7, 7, v{V_LANE}
v_xor_b32 v12, v5, v7
v_lshlrev_b32 v12, 4, v12
v_lshl_add_u32 v12, v6, 7, v12
v_add_u32 v12, s{sA}, v12
v_xor_b32 v13, 64, v12
v_lshl_add_u32 v15, v{V_LANE}, 4, s{sA}
v_lshrrev_b32 v5, 3, v{V_LANE}
v_xor_b32 v7, v5, v7
v_mul_u32_u24 v5, 1792, v5
v_lshl_add_u32 v5, v7, 4, v5
s_mul_i32 s{sD0}, s{sLd}, {16*1792}
s_lshl_b32 s{sA}, s{S_C}, 7
s_add_u32 s{sD0}, s{sD0}, s{sA}
s_add_u32 s{sD0}, s{sD0}, 896
s_add_u32 s{sD}, s{sD0}, {8*1792}
s_lshl_b32 s{sLd}, s{sLd}, 8
s_add_u32 s{sLd}, s{sLd}, {WS_O}
s_waitcnt vmcnt(0)''')
sync(6)
def wo_reads(k):
    r = []
    for t in range(4):
        for hf in range(2):
            r.append(f'ds_read_b64_tr_b16 {vr(WF + 16*(k%10) + 4*t + 2*hf, 2)}, v{8 + (t>>1)} offset:{4096*k + 512*hf + 8*(t&1)}')
    return r
for k in range(10): e('\n'.join(wo_reads(k)))
e('s_waitcnt lgkmcnt(0)')
sync(7)
stamp(9)
lwait(5, addr=14, sleep=2)
stamp(10)
poll(11)
stamp(11)
for k in range(14):
    e(f'buffer_load_dwordx4 {vr(OF+4*k,4)}, v10, {sr(SRD_WS)}, s{sLd} offen sc1')
    if k < 13: e(f's_add_u32 s{sLd}, s{sLd}, 0x20000')
for k in range(14):
    e(f's_waitcnt vmcnt({13-k})' + (' lgkmcnt(0)' if k == 10 else ''))
    for t in range(4):
        c = vr(OC+4*t, 4)
        e(f'v_mfma_f32_16x16x32_bf16 {c}, {vr(WF + 16*(k%10) + 4*t, 4)}, {vr(OF+4*k,4)}, {"0" if k == 0 else c}')
    if 1 <= k <= 4: e('\n'.join(wo_reads(k + 9)))
stamp(12)
e(f'''s_or_b32 s{sA}, s2, s{S_W}
s_cmp_lg_u32 s{sA}, 0
s_cbranch_scc1 L_noepoch
s_mov_b32 s{sA}, 0''')
publish(sA, 6)
e('L_noepoch:\ns_nop 4')
for i in range(8): e(f'v_cvt_pk_bf16_f32 v{16+i}, v{OC+2*i}, v{OC+2*i+1}')
e(f'''ds_write_b128 v12, {vr(16,4)}
ds_write_b128 v13, {vr(20,4)}
ds_read_b128 {vr(24,4)}, v15
ds_read_b128 {vr(28,4)}, v15 offset:1024
s_waitcnt lgkmcnt(1)
buffer_store_dwordx4 {vr(24,4)}, v5, {sr(SRD_C)}, s{sD0} offen
s_waitcnt lgkmcnt(0)
buffer_store_dwordx4 {vr(28,4)}, v5, {sr(SRD_C)}, s{sD} offen''')
if OPT['prof']:
    e('s_waitcnt vmcnt(0)')
stamp(13)
prof_out()
e('L_end:\ns_endpgm')

hdr = open('header.txt').read()
txt = hdr + f'''; @launch grid=(256,1,1) block=(512,1,1) lds={L_TOT}
.amdgcn_target "amdgcn-amd-amdhsa--gfx950"
.text
.globl {KN}
.p2align 8
.type {KN},@function
{KN}:
''' + '\n'.join(out) + f'''
.section .rodata,"a"
.p2align 6
.amdhsa_kernel {KN}
  .amdhsa_next_free_vgpr 256
  .amdhsa_next_free_sgpr 102
  .amdhsa_accum_offset 256
  .amdhsa_group_segment_fixed_size 0
  .amdhsa_kernarg_size 104
  .amdhsa_user_sgpr_count 2
  .amdhsa_user_sgpr_kernarg_segment_ptr 1
  .amdhsa_system_sgpr_workgroup_id_x 1
.end_amdhsa_kernel
'''
open(sys.argv[1], 'w').write(txt)
```

```python
import sys, struct
def fl(x): return hex(struct.unpack('<I', struct.pack('<f', x))[0])

KN = 'concat_heads__ssm_conv_s4d__softmax_full_mha__prompt_kernel'
OPT = dict(xg=5, gx=0, pm=2, ps=1, rt=0, upub=2, kgx=0, outsc=0, ysleep=8, wodepth=4, wq_mid=2, pollk=14, rd=-1, rdrole=0, only=0, safe=0, rot=1, prof=0, fs=128, force_fb=0, wq_early=2, prio=1)
for a in sys.argv[2:]:
    k, v = a.split('=')
    assert k in OPT, k
    OPT[k] = int(v, 0)

FS = OPT['fs']
FSH = FS.bit_length() - 1
F_KV = 0x1000
F_O = F_KV + 1024 * FS
F_U = F_O + 1024 * FS
F_Y = F_U + 1024 * FS
WS_K = 0x100000
WS_V = 0x300000
WS_O = 0x500000
WS_U = 0x700000
WS_Y = 0x900000
WS_PROF = 0xb00000
WS_SIZE = 0xc00000
L_SSM = 1024
L_W = 57344
L_RB = 65536
L_X = 114688
L_TOT = 163840
TROW = 288
TABSZ = 33 * TROW
L_TAB = L_SSM
L_UC = L_SSM
UC_S = 4160
UC_D = 4 * UC_S + 64
L_KP = L_TAB + 4 * TABSZ
L_KD = L_KP + 12288
assert L_UC + 2 * UC_D <= L_KP and L_KP % 16 == 0 and L_KD + 4096 <= L_W
L_WO = L_SSM

S_WV, S_W, S_HG, S_C, S_TILE, S_J, S_H, S_NONCE, S_O0, S_ROT = range(30, 40)
SRD_WS, SRD_A, SRD_B, SRD_C = 40, 44, 48, 52
S_BOUND = 56
S_T0 = 58

SEC = {}
out = None
def sec(n):
    global out
    out = SEC.setdefault(n, [])
sec('pro')
def e(s):
    for l in s.split('\n'):
        l = l.strip()
        if l:
            out.append(l if l.endswith(':') else '    ' + l)
_lab = [0]
def lab(p):
    _lab[0] += 1
    return f'L_{p}_{_lab[0]}'
def vr(a, n):
    return f'v[{a}:{a+n-1}]' if n > 1 else f'v{a}'
def srd(d, b, n):
    e(f's_mov_b64 s[{d}:{d+1}], s[{b}:{b+1}]\ns_mov_b32 s{d+2}, {n}\ns_mov_b32 s{d+3}, 0x20000')
def sr(d): return f's[{d}:{d+3}]'

V_LANE, V_T, V_OWN, V_GRP, V_PROF = 0, 1, 2, 3, 4

ROLE = [0]
def stamp(i):
    if OPT['rd'] == i and OPT['rdrole'] == ROLE[0]:
        e('s_memrealtime s[100:101]\ns_waitcnt lgkmcnt(0)')
    if OPT['prof'] > (i >= 14):
        e(f's_mem{"real" if OPT["rt"] else ""}time s[96:97]\ns_waitcnt lgkmcnt(0)\ns_sub_u32 s96, s96, s{98 if OPT["rt"] else S_T0}\nv_writelane_b32 v{V_PROF}, s96, {i}')
def prof_out():
    if OPT['rd'] >= 0 and OPT['rdrole'] == ROLE[0]:
        l = lab('pad')
        if ROLE[0] == 0: e('s_barrier')
        e(f'''s_add_u32 s100, s100, 6000
        {l}:
        s_sleep 1
        s_memrealtime s[96:97]
        s_waitcnt lgkmcnt(0)
        s_sub_u32 s96, s96, s100
        s_cmp_lt_i32 s96, 0
        s_cbranch_scc1 {l}''')
    if OPT['prof']:
        e(f'''s_memrealtime s[96:97]
        s_waitcnt lgkmcnt(0)
        v_writelane_b32 v{V_PROF}, s96, 31
        v_writelane_b32 v{V_PROF}, s98, 30
        s_lshl_b32 s96, s2, 3
        s_add_u32 s96, s96, s{S_WV}
        s_lshl_b32 s96, s96, 7
        s_add_u32 s96, s96, {WS_PROF}
        v_lshlrev_b32 v{V_T}, 2, v{V_LANE}
        s_mov_b32 exec_hi, 0
        buffer_store_dword v{V_PROF}, v{V_T}, {sr(SRD_WS)}, s96 offen
        s_mov_b64 exec, -1''')

def arrive(stage):
    e(f'v_mov_b32 v{V_T}, {stage}\nds_write_b32 v{V_OWN}, v{V_T}')
def lwait(stage, addr=V_GRP, sleep=0):
    l = lab('lw')
    e(f'{l}:')
    if sleep: e(f's_sleep {sleep}')
    e(f'''ds_read_b32 v{V_T}, v{addr}
    s_waitcnt lgkmcnt(0)
    v_cmp_gt_u32 vcc, {stage}, v{V_T}''')
    if OPT['safe']:
        d = lab('ld')
        e(f'''s_cbranch_vccz {d}
        s_sub_u32 s{S_BOUND}, s{S_BOUND}, 1
        s_cbranch_scc0 {l}
        s_mov_b32 s{S_BOUND}, 0
        {d}:''')
    else:
        e(f's_cbranch_vccnz {l}')
def sync(stage):
    arrive(stage); lwait(stage)
def poll(voff, first_issued=False, sleep=0, reg=V_T):
    l, d, m = lab('pl'), lab('pd'), lab('pm')
    if first_issued: e(f's_branch {m}')
    e(f'{l}:')
    if sleep: e(f's_sleep {sleep}')
    e(f'''buffer_load_dword v{reg}, v{voff}, {sr(SRD_WS)}, 0 offen sc1
    {m}:
    s_waitcnt vmcnt(0)
    v_cmp_ne_u32 vcc, s{S_NONCE}, v{reg}
    s_cbranch_vccz {d}
    s_sub_u32 s{S_BOUND}, s{S_BOUND}, 1
    s_cbranch_scc0 {l}
    s_mov_b32 s{S_BOUND}, 0
    {d}:''')
def publish(soff, tmp):
    e(f'''v_mov_b32 v{V_T}, s{S_NONCE}
    v_mov_b32 v{tmp}, 0
    s_mov_b64 exec, 1
    buffer_store_dword v{V_T}, v{tmp}, {sr(SRD_WS)}, s{soff} offen sc1
    s_mov_b64 exec, -1''')
def swap23(d, s, t):
    e(f'''v_lshrrev_b32 v{t}, 1, v{s}
    v_xor_b32 v{t}, v{t}, v{s}
    v_and_b32 v{t}, 4, v{t}
    v_mul_u32_u24 v{t}, 3, v{t}
    v_xor_b32 v{d}, v{t}, v{s}''')
def rot_next(s):
    e(f's_add_u32 s{s}, s{s}, 1\ns_cmp_eq_u32 s{s}, 7\ns_cselect_b32 s{s}, 0, s{s}')

e(f'''s_cmp_ge_u32 s2, 256
s_cbranch_scc1 L_end''')
if OPT['prof']:
    e(f's_memtime s[{S_T0}:{S_T0+1}]\ns_memrealtime s[98:99]\nv_mov_b32 v{V_PROF}, 0')
if OPT['rd'] >= 0: e('s_memrealtime s[100:101]')
e(f'''s_load_dwordx16 s[4:19], s[0:1], 0
s_load_dwordx8 s[20:27], s[0:1], 64
s_load_dwordx2 s[28:29], s[0:1], 96
v_lshrrev_b32 v{V_OWN}, 6, v0
v_and_b32 v{V_LANE}, 63, v0
v_readfirstlane_b32 s{S_WV}, v{V_OWN}
v_lshlrev_b32 v{V_OWN}, 2, v{V_OWN}
v_mov_b32 v{V_T}, 0
ds_write_b32 v{V_OWN}, v{V_T}
v_and_b32 v{V_GRP}, 3, v{V_LANE}
v_lshlrev_b32 v{V_GRP}, 2, v{V_GRP}
s_and_b32 s{S_HG}, s2, 1
s_bfe_u32 s60, s2, 0x20001
s_bfe_u32 s{S_C}, s2, 0x30003
s_lshr_b32 s61, s2, 6
s_lshl2_add_u32 s{S_TILE}, s60, s61
s_lshl1_add_u32 s{S_J}, s{S_TILE}, s{S_HG}
s_lshl3_add_u32 s{S_H}, s{S_HG}, s{S_C}
s_and_b32 s{S_W}, s{S_WV}, 3
s_mov_b32 s{S_BOUND}, 0x40000
s_cmp_lt_u32 s{S_WV}, 4
s_cbranch_scc1 L_mha''')

VX = 144; VACC = 96; VWF = 32; VPK = 128
VV, VK, VS, VO, VQ = 32, 64, 96, 160, 224
vWd = [5, 6]; vXd = [7, 8, 9, 10]; vXr = [11, 12, 13, 14]; vWb, vW0, vW1 = 15, 16, 17
vRho, vG, vSt, vQd, vQr, vFl, vA, vB, vC = 18, 19, 20, 21, 22, 23, 24, 25, 26
vKo0, vKo1, vVo, vIdx = 27, 28, 29, 30
sXb, sWb, sCh, sCw, sLx, sTmp, sTmp2, sSt, sS1, sS2, sFl = range(60, 71)
sK, sV, sIt = 71, 72, 73
sFo, sO0, sO1, sCx = 84, 85, 86, 87
vOs, vQw = vRho, vG
vRb = [7, 8, 9]; vQx = [11, 12, 13]; vRr = 10
sMask = 74
sOdd = 76

sec('mha')
e('L_mha:')
if OPT['prio']: e(f"s_setprio {OPT['pm']}")
e(f'''s_mul_i32 s{S_O0}, s{S_H}, 7
s_lshr_b32 s{S_O0}, s{S_O0}, 1''')
if OPT['rot']:
    e(f'''s_lshl1_add_u32 s{S_ROT}, s61, s{S_C}
    s_cmp_ge_u32 s{S_ROT}, 7
    s_cselect_b32 s{sTmp}, 7, 0
    s_sub_u32 s{S_ROT}, s{S_ROT}, s{sTmp}''')
else:
    e(f's_mov_b32 s{S_ROT}, 0')
e(f'''v_lshrrev_b32 v{vA}, 3, v{V_LANE}          ; r
v_and_b32 v{vB}, 7, v{V_LANE}                    ; p
v_lshlrev_b32 v{vC}, 1, v{vA}
v_and_b32 v{vC}, 4, v{vC}
v_xor_b32 v{vC}, v{vC}, v{vB}
v_lshlrev_b32 v{vC}, 4, v{vC}
v_mul_u32_u24 v{vWd[0]}, 2688, v{vA}
v_add_u32 v{vWd[0]}, v{vWd[0]}, v{vC}
v_add_u32 v{vWd[1]}, {8*2688-1024}, v{vWd[0]}
v_lshrrev_b32 v{vC}, 1, v{vA}
v_xor_b32 v{vC}, v{vC}, v{vB}
v_lshlrev_b32 v{vC}, 4, v{vC}
v_mul_u32_u24 v{vA}, 896, v{vA}
v_add_u32 v{vXd[0]}, v{vA}, v{vC}
v_xor_b32 v{vC}, 64, v{vC}
v_add_u32 v{vXd[1]}, v{vA}, v{vC}
v_add_u32 v{vXd[1]}, {7168-1024}, v{vXd[1]}
v_add_u32 v{vXd[2]}, {2*(7168-1024)}, v{vXd[0]}
v_add_u32 v{vXd[3]}, {2*(7168-1024)}, v{vXd[1]}
s_lshl2_add_u32 s{sXb}, s{S_TILE}, s{S_W}
s_lshl_b32 s{sFl}, s{S_H}, 6
s_add_u32 s{sFl}, s{sFl}, s{sXb}
s_lshl_b32 s{sFl}, s{sFl}, {FSH}
s_add_u32 s{sFl}, s{sFl}, {F_KV}
s_mul_i32 s{sXb}, s{sXb}, {32*896}
s_mul_i32 s{sTmp2}, s{S_HG}, 3
s_lshr_b32 s{sTmp}, s2, 6
s_add_u32 s{sTmp2}, s{sTmp2}, s{sTmp}
s_mul_i32 s{sWb}, s{S_HG}, 7
s_add_u32 s{sWb}, s{sWb}, s{S_C}
s_add_u32 s{sWb}, s{sWb}, 7
s_cmp_eq_u32 s{S_C}, 7
s_cselect_b32 s{sWb}, s{sTmp2}, s{sWb}
s_lshl_b32 s{sWb}, s{sWb}, 7
s_mul_i32 s{sTmp}, s{S_W}, {16*2688}
s_add_u32 s{sWb}, s{sWb}, s{sTmp}
s_mul_i32 s{sLx}, s{S_W}, 12288
s_add_u32 s{sLx}, s{sLx}, {L_X}
s_lshl_b32 s{sS1}, s{S_W}, 11
s_add_u32 s{sS1}, s{sS1}, {L_W}
s_mov_b32 s{sCh}, s{S_ROT}
s_waitcnt lgkmcnt(0)''')
e(f's_load_dword s{S_NONCE}, s[28:29], 0')
srd(SRD_B, 20, 448 * 1344 * 2)
srd(SRD_A, 18, 2048 * 896)
e(f'''s_lshl_b32 s4, s{sCh}, 7
s_add_u32 s4, s4, s{sXb}
s_mul_i32 s88, s{sCh}, {64*2688}
s_add_u32 s11, s88, s{sWb}''')
rot_next(sCh)
e('s_barrier')
if OPT['only'] == 1: e('s_endpgm')
def rot_lines(s):
    return [f's_add_u32 s{s}, s{s}, 1', f's_cmp_eq_u32 s{s}, 7', f's_cselect_b32 s{s}, 0, s{s}']
sXo, sWo, sQo = 4, 11, 88
def offs(st):
    return [f's_lshl_b32 s{sXo+st}, s{sCh}, 7', f's_add_u32 s{sXo+st}, s{sXo+st}, s{sXb}', f's_mul_i32 s{sQo+st}, s{sCh}, {64*2688}',
            f's_add_u32 s{sWo+st}, s{sQo+st}, s{sWb}'] + (rot_lines(sCh) if st < 6 else [])
def w_lines(st):
    return [f's_add_u32 m0, s{sS1}, {8192*st}', 's_nop 0'] + \
           [f'buffer_load_dwordx4 v{vWd[i]}, {sr(SRD_B)}, s{sWo+st} offen offset:{1024*i} lds' for i in range(2)]
def x_chunk(st):
    return [f's_add_u32 m0, s{sLx}, {(st%3)*4096}', 's_nop 0'] + \
           [f'buffer_load_dwordx4 v{vXd[i]}, {sr(SRD_A)}, s{sXo+st} offen offset:{1024*i} lds' for i in range(4)]
e('\n'.join(x_chunk(0) + w_lines(0) + offs(1) + w_lines(1)))
for st in range(2, 7): e('\n'.join(offs(st)))
srd(SRD_WS, 28, WS_SIZE)
e(f'''v_and_b32 v{vA}, 31, v{V_LANE}
v_lshrrev_b32 v{vG}, 5, v{V_LANE}''')
swap23(vRho, vA, vB)
e(f'''v_bfe_u32 v{vB}, v{vRho}, 1, 3
v_xor_b32 v{vB}, v{vB}, v{vG}
v_lshlrev_b32 v{vB}, 4, v{vB}
v_lshl_add_u32 v{vB}, v{vRho}, 7, v{vB}
v_add_u32 v{vXr[0]}, s{sLx}, v{vB}
v_xor_b32 v{vXr[1]}, 32, v{vXr[0]}
v_xor_b32 v{vXr[2]}, 64, v{vXr[0]}
v_xor_b32 v{vXr[3]}, 0x60, v{vXr[0]}
v_and_b32 v{vB}, 3, v{V_LANE}                     ; cc
v_lshrrev_b32 v{vC}, 1, v{vB}
v_and_b32 v{vQd}, 1, v{vB}
v_lshl_or_b32 v{vC}, v{vQd}, 1, v{vC}
v_bfe_u32 v{vQd}, v{V_LANE}, 4, 1
v_lshl_or_b32 v{vB}, v{vQd}, 2, v{vB}
v_lshl_or_b32 v{vC}, v{vQd}, 2, v{vC}
v_bfe_u32 v{vQd}, v{V_LANE}, 2, 2                  ; r'
v_lshl_or_b32 v{vFl}, v{vG}, 3, v{vQd}             ; 8g + r'
v_lshlrev_b32 v{vQr}, 6, v{vFl}
v_lshl_add_u32 v{vQr}, v{vC}, 3, v{vQr}
v_add_u32 v{vQr}, {L_X + 4096}, v{vQr}
s_cmp_eq_u32 s{S_HG}, 0
s_cselect_b64 vcc, -1, 0
v_cndmask_b32 v{vB}, v{vB}, v{vC}, vcc             ; K slabs use the exchanged order, V slabs the natural one
v_lshlrev_b32 v{vWb}, 7, v{vFl}
v_lshl_add_u32 v{vWb}, v{vB}, 3, v{vWb}
v_lshrrev_b32 v{vQd}, 1, v{vQd}
v_lshl_add_u32 v{vWb}, v{vQd}, 6, v{vWb}
v_add_u32 v{vW0}, {L_W}, v{vWb}
v_lshlrev_b32 v{vB}, 4, v{vRho}
v_lshl_add_u32 v{vB}, v{vG}, 15, v{vB}             ; K: g*32768 + token*16
v_lshrrev_b32 v{vC}, 2, v{vA}
v_lshlrev_b32 v{vC}, 14, v{vC}
v_lshl_add_u32 v{vC}, v{vG}, 6, v{vC}
v_and_b32 v{vQd}, 3, v{vA}
v_lshl_add_u32 v{vC}, v{vQd}, 4, v{vC}
v_cndmask_b32 v{vSt}, v{vC}, v{vB}, vcc
s_lshl2_add_u32 s{sTmp}, s{S_TILE}, s{S_W}
s_lshl_b32 s{sTmp2}, s{sTmp}, 9
s_add_u32 s{sTmp2}, s{sTmp2}, {WS_K}
s_lshl_b32 s{sTmp}, s{sTmp}, 8
s_add_u32 s{sTmp}, s{sTmp}, {WS_V}
s_movk_i32 s{sS2}, 128
s_cmp_eq_u32 s{S_HG}, 0
s_cselect_b32 s{sSt}, s{sTmp2}, s{sTmp}
s_cselect_b32 s{sS2}, 0x10000, s{sS2}
s_lshl_b32 s{sTmp}, s{S_C}, 18
s_add_u32 s{sSt}, s{sSt}, s{sTmp}
v_lshrrev_b32 v{vB}, 2, v{V_LANE}
v_mul_u32_u24 v{vB}, 2688, v{vB}
v_lshl_add_u32 v{vQd}, v{vQd}, 4, v{vB}
s_lshl_b32 s82, s{S_O0}, 4
s_mul_i32 s{sTmp}, s{S_W}, {16*2688}
s_add_u32 s82, s82, s{sTmp}
s_lshr_b32 s{sTmp}, s{S_O0}, 3
s_add_u32 s{sTmp2}, s{S_O0}, 3
s_lshr_b32 s{sTmp2}, s{sTmp2}, 3
s_cmp_eq_u32 s{S_H}, 15
s_cselect_b32 s{sTmp2}, 7, s{sTmp2}
s_sub_u32 s{sTmp2}, s{sTmp2}, s{sTmp}
v_bfe_u32 v{vC}, v{V_LANE}, 4, 1
v_mul_u32_u24 v{vC}, s{sTmp2}, v{vC}
v_lshl_add_u32 v{vC}, v{vG}, 3, v{vC}
v_add_u32 v{vC}, s{sTmp}, v{vC}
v_and_b32 v{vB}, 15, v{V_LANE}
v_lshl_add_u32 v{vC}, v{vC}, 6, v{vB}
s_lshl_b32 s{sTmp}, s{S_W}, 4
v_add_u32 v{vC}, s{sTmp}, v{vC}
v_lshlrev_b32 v{vC}, {FSH}, v{vC}
v_add_u32 v{vFl}, {F_KV}, v{vC}
v_lshlrev_b32 v{vKo0}, 4, v{vA}
v_lshl_add_u32 v{vKo0}, v{vG}, 15, v{vKo0}
v_add_u32 v{vKo1}, 0x10000, v{vKo0}
v_lshrrev_b32 v{vA}, 2, v{vRho}
v_lshlrev_b32 v{vA}, 14, v{vA}
v_lshl_add_u32 v{vA}, v{vG}, 6, v{vA}
v_and_b32 v{vB}, 3, v{V_LANE}
v_lshl_add_u32 v{vVo}, v{vB}, 4, v{vA}
v_mov_b32 v{vIdx}, 0xdddddddd
s_lshl_b32 s{sTmp}, s{S_O0}, 15
s_lshl_b32 s{sK}, s{S_W}, 13
s_add_u32 s{sK}, s{sK}, s{sTmp}
s_add_u32 s{sK}, s{sK}, {WS_K}
s_lshl_b32 s{sV}, s{S_W}, 12
s_add_u32 s{sV}, s{sV}, s{sTmp}
s_add_u32 s{sV}, s{sV}, {WS_V}
s_lshl2_add_u32 s{sTmp2}, s{S_TILE}, s{S_W}
s_lshl_b32 s{sFo}, s{sTmp2}, 4
s_add_u32 s{sFo}, s{sFo}, s{S_H}
s_lshl_b32 s{sFo}, s{sFo}, {FSH}
s_add_u32 s{sFo}, s{sFo}, {F_O}
s_lshl_b32 s{sTmp2}, s{sTmp2}, 9
s_add_u32 s{sO0}, s{sTmp}, s{sTmp2}
s_add_u32 s{sO0}, s{sO0}, {WS_O}
s_add_u32 s{sO1}, s{sO0}, 0x10000
s_bitcmp1_b32 s{S_H}, 0
s_cselect_b64 s[{sOdd}:{sOdd+1}], -1, 0
s_cselect_b32 s{sMask}, -16, 0x0fffffff
s_mov_b32 s{sMask+1}, s{sMask}
v_mov_b32 v{vC}, 0x3e8b97f6
v_cmp_gt_u32 vcc, 32, v{V_LANE}
s_and_b64 s[78:79], vcc, s[{sOdd}:{sOdd+1}]
s_nor_b64 s[80:81], vcc, s[{sOdd}:{sOdd+1}]
v_cndmask_b32 v{vA}, v{vC}, 0, s[78:79]
v_cndmask_b32 v{vB}, v{vC}, 0, s[80:81]
s_mov_b32 s78, 0x3f803f80
s_mov_b32 s79, s78
v_xor_b32 v{vW1}, 64, v{vW0}
v_and_b32 v31, 7, v{V_LANE}
v_lshlrev_b32 v31, 2, v31
v_lshlrev_b32 v{vOs}, 4, v{vRho}
v_lshl_add_u32 v{vOs}, v{vG}, 15, v{vOs}
v_lshl_add_u32 v{vQw}, v{V_LANE}, 4, s{sLx}''')
srd(SRD_C, 28, WS_SIZE)
for st in range(7): e(f's_add_u32 s{sQo+st}, s{sQo+st}, s82')
for s in range(1, 3): e('\n'.join(w_lines(s + 1) + x_chunk(s)))
stamp(0)
def x_reads(s):
    return [f'ds_read_b128 {vr(VX + 16*s + 4*ks, 4)}, v{vXr[ks]} offset:{(s%3)*4096}' for ks in range(4)]
e('s_waitcnt vmcnt(12)')
arrive(1)
e('\n'.join(x_reads(0)))
stamp(1)
lwait(1, addr=31)
e(f's_add_u32 s{S_NONCE}, s{S_NONCE}, 1')
stamp(2)
def w_reads(s):
    r = []
    for ks in range(4):
        for ct in range(2):
            for hf in range(2):
                d = VWF + 32 * (s & 1) + 8 * ks + 4 * ct + 2 * hf
                r.append(f'ds_read_b64_tr_b16 {vr(d,2)}, v{(vW0, vW1)[ct]} offset:{s*8192 + ks*2048 + hf*512}')
    return r
e('\n'.join(w_reads(0)))
e(f'''s_waitcnt lgkmcnt(0)
s_cmp_lg_u32 s{S_HG}, 0
s_cbranch_scc1 L_gemm_v''')
sQb, sQc = 82, 83
NE = OPT['wq_early']
def wq_dma(st):
    return [f's_add_u32 m0, s{sLx}, {4096 + 1024*st}', 's_nop 0', f'buffer_load_dwordx4 v{vQd}, {sr(SRD_B)}, s{sQo+st} offen lds']
SPIN = []
def gemm1(vpart):
    for s in range(7):
        M = []
        for ks in range(4):
            for ct in range(2):
                wf = vr(VWF + 32 * (s & 1) + 8 * ks + 4 * ct, 4); xf = vr(VX + 16 * s + 4 * ks, 4)
                acc = vr(VACC + 16 * ct, 16)
                a, b = (xf, wf) if vpart else (wf, xf)
                M.append(f'v_mfma_f32_32x32x16_bf16 {acc}, {a}, {b}, {"0" if s == 0 and ks == 0 else acc}')
        gaps = [[] for _ in range(8)]
        tag = f'{"v" if vpart else "k"}{s}'
        pre = []
        if 1 <= s <= 5:
            pre += [f'ds_read_b32 v31, v{V_GRP}']
            gaps[1] += ['s_waitcnt lgkmcnt(0)', f'v_cmp_gt_u32 vcc, {s+1}, v31', f's_cbranch_vccnz L_ws_{tag}', f'L_wb_{tag}:']
            SPIN.append((tag, s + 1))
        if s <= 2:
            w = w_lines(s + 4); x = x_chunk(s + 3)
            pre += [w[0]]; gaps[0] += [w[2]]; gaps[1] = [w[3], x[0]] + gaps[1]
            for i in range(4): gaps[2 + i] += [x[2 + i]]
        elif s == 3:
            x = x_chunk(6)
            pre += [x[0]]; gaps[0] += [x[2]]; gaps[1] = [x[3]] + gaps[1]; gaps[2] += [x[4]]; gaps[3] += [x[5]]
        if s < 6:
            wr = w_reads(s + 1)
            for i, (p, q) in enumerate(((0, 2), (2, 6), (6, 10), (10, 13), (13, 16))): gaps[1 + i] += wr[p:q]
            n = 4 * sum(1 for c in (s + 2, s + 3) if c <= 6) + 2 * sum(1 for c in (s + 3, s + 4) if c <= 6)
            g = OPT['xg']
            gaps[g] += [f's_waitcnt vmcnt({n})'] + x_reads(s + 1)
            if s < 5: gaps[g] += [f'v_mov_b32 v{V_T}, {s+2}', f'ds_write_b32 v{V_OWN}, v{V_T}']
            gaps[7] += [f's_waitcnt lgkmcnt({1 if s < 5 else 0})']
        e('\n'.join(pre))
        if s == 5:
            for i in range(min(NE, 2)): gaps[6] += wq_dma(i)
        if s == 6:
            for i in range(2, NE): gaps[i - 2] += wq_dma(i)
        if OPT['gx'] & 1: M = ['s_nop 0'] * 8
        if OPT['gx'] & 2: gaps = [[x for x in g if 'tr_b16' not in x] for g in gaps]
        for i in range(8):
            e(M[i]); e('\n'.join(gaps[i]))
        stamp(14 + s)
gemm1(False)
e('s_branch L_gemm_done\nL_gemm_v:')
gemm1(True)
e('L_gemm_done:')
stamp(3)
e(f"""s_add_u32 s{sS1}, s{sSt}, s{sS2}
s_add_u32 s{sXb}, s{sSt}, 0x20000
s_add_u32 s{sCw}, s{sS1}, 0x20000
s_cmp_eq_u32 s{S_C}, 7
s_cbranch_scc1 L_nokv
s_nop 5""")
for q, so in enumerate((sSt, sS1, sXb, sCw)):
    for i in range(4*q, 4*q+4):
        e(f'v_cvt_pk_bf16_f32 v{VPK + i}, v{VACC + 2*i}, v{VACC + 2*i + 1}')
    e(f'buffer_store_dwordx4 {vr(VPK+4*q,4)}, v{vSt}, {sr(SRD_WS)}, s{so} offen sc1')
e('L_nokv:')
NM = OPT['wq_mid']
for st in range(NE, NM): e('\n'.join(wq_dma(st)))
stamp(4)
for i in range(16): e(f'v_mov_b64 {vr(VV+2*i,2)}, s[78:79]')
e(f'v_subrev_u32 v{vRr}, {L_X - L_RB}, v{vQw}')
for s in range(3):
    e(f'''s_add_u32 s{sTmp}, s{S_W}, {1+s}
    s_and_b32 s{sTmp}, s{sTmp}, 3
    s_sub_u32 s{sTmp}, s{sTmp}, s{S_W}
    s_mul_i32 s{sTmp}, s{sTmp}, 12288
    v_add_u32 v{vQx[s]}, s{sTmp}, v{vQw}
    v_subrev_u32 v{vRb[s]}, {L_X - L_RB - 4096*s}, v{vQx[s]}''')
e(f's_waitcnt vmcnt({NM - NE})')
publish(sFl, 31)
stamp(5)
for st in range(NM, 7): e('\n'.join(wq_dma(st)))
e(f's_waitcnt vmcnt({1 if NM == 7 else 0})')
sync(7)
stamp(6)
def q_reads(k):
    s, ks = divmod(k, 4)
    return [f'ds_read_b64_tr_b16 {vr(112 + 4*(k%8) + 2*hf, 2)}, v{vQr} offset:{ks*12288 + s*1024 + hf*256}' for hf in range(2)]
for k in range(6): e('\n'.join(q_reads(k)))
zi = 0
for k in range(28):
    e(f's_waitcnt lgkmcnt({min(10, 2*(27-k))})')
    e(f'v_mfma_f32_32x32x16_bf16 {vr(VACC,16)}, {vr(112 + 4*(k%8), 4)}, {vr(VX + 4*k, 4)}, {"0" if k == 0 else vr(VACC,16)}')
    if k + 6 < 28: e('\n'.join(q_reads(k + 6)))
    while zi < 40 and VX + 2*zi + 1 < VX + 4*k - 4 and zi < 2*k:
        e(f'v_mov_b64 {vr(VX + 2*zi, 2)}, 0'); zi += 1
    if k == OPT['pollk']: e(f'buffer_load_dword v31, v{vFl}, {sr(SRD_WS)}, 0 offen sc1')
assert zi == 40 and VX == VS + 48
stamp(7)
def kv_loads(buf, i, srdn=SRD_C):
    return [f'buffer_load_dwordx4 {vr(VK + 8*buf, 4)}, v{vKo0}, {sr(srdn)}, s{sK} offen offset:{512*i} sc1',
            f'buffer_load_dwordx4 {vr(VK + 8*buf + 4, 4)}, v{vKo1}, {sr(srdn)}, s{sK} offen offset:{512*i} sc1',
            f's_mov_b64 exec, s[{sMask}:{sMask+1}]',
            f'buffer_load_dwordx4 {vr(VV + 8*buf, 4)}, v{vVo}, {sr(srdn)}, s{sV} offen offset:{256*i} sc1',
            f'buffer_load_dwordx4 {vr(VV + 8*buf + 4, 4)}, v{vVo}, {sr(srdn)}, s{sV} offen offset:{256*i + 128} sc1',
            's_mov_b64 exec, -1']
e(f"""s_waitcnt vmcnt(0)
v_cmp_ne_u32 vcc, s{S_NONCE}, v31
s_mov_b64 s[80:81], vcc
s_cbranch_vccnz L_kv_late""")
for t in range(3): e('\n'.join(kv_loads(t, t)))
e('L_kv_late:\ns_nop 7')
for r in range(16):
    m = vA if r < 4 else (vB if r >= 12 else vC)
    e(f'v_mul_f32 v{VACC + r}, v{m}, v{VACC + r}')
for i in range(8):
    e(f'v_cvt_pk_bf16_f32 v{VQ + 24 + i}, v{VACC + 2*i}, v{VACC + 2*i + 1}')
e(f"""ds_write_b128 v{vQw}, {vr(VQ+24,4)}
ds_write_b128 v{vQw}, {vr(VQ+28,4)} offset:1024""")
arrive(8)
e('s_cmp_eq_u64 s[80:81], 0\ns_cbranch_scc1 L_kv_done')
poll(vFl)
for t in range(3): e('\n'.join(kv_loads(t, t)))
e('L_kv_done:')
stamp(8)
lwait(8)
for s in range(3):
    e(f'ds_read_b128 {vr(VQ+8*s,4)}, v{vQx[s]}\nds_read_b128 {vr(VQ+8*s+4,4)}, v{vQx[s]} offset:1024')
def qk(buf, slot, js):
    d = vr(VS + 16*slot, 16)
    return f'v_mfma_f32_32x32x16_bf16 {d}, {vr(VK + 8*buf + 4*js, 4)}, {vr(VQ + 8*slot + 4*js, 4)}, {"0" if js == 0 else d}'
def pv(buf, slot, js):
    return f'v_smfmac_f32_32x32x32_bf16 {vr(VO + 16*slot, 16)}, {vr(VV + 8*buf + 4*js, 4)}, {vr(VS + 16*slot + 8*js, 8)}, v{vIdx}'
def exps(s): return [f'v_exp_f32 v{VS + 16*s + r}, v{VS + 16*s + r}' for r in range(16)]
def unit(t, s):
    ex = exps(s)
    nb = t if s < 3 else (t + 1) & 3
    pb = t if s > 0 else (t - 1) & 3
    if s == 3: e('s_waitcnt vmcnt(8)')
    e(qk(nb, (s+1) & 3, 0)); e('\n'.join(ex[0:4]))
    e(qk(nb, (s+1) & 3, 1)); e('\n'.join(ex[4:8]))
    e(pv(pb, (s-1) & 3, 0))
    if s == 1:
        e('\n'.join(kv_loads((t + 3) & 3, t + 3)))
        if t == 0:
            e(f's_cmp_eq_u32 s{sIt}, 3\ns_cselect_b32 s{SRD_C+2}, 0, s{SRD_C+2}')
        if t == 3:
            e(f's_add_u32 s{sK}, s{sK}, 2048\ns_add_u32 s{sV}, s{sV}, 1024\ns_add_u32 s{sIt}, s{sIt}, 1\ns_cmp_lg_u32 s{sIt}, 4')
    e('\n'.join(ex[8:12]))
    e(pv(pb, (s-1) & 3, 1)); e('\n'.join(ex[12:16]))
e(f's_mov_b32 s{sIt}, 0\ns_waitcnt vmcnt(8) lgkmcnt(0)')
stamp(9)
e(qk(0, 0, 0)); e(qk(0, 0, 1))
e('s_setprio 0\ns_nop 8\ns_branch L_att_in' if OPT['prio'] else 's_nop 9\ns_branch L_att_in')
e('L_att:')
unit(3, 2); unit(3, 3)
e('L_att_in:')
for t in range(4):
    for s in range(4):
        if (t, s) < (3, 2): unit(t, s)
e('s_cbranch_scc1 L_att')
if OPT['prio']: e(f"s_setprio {OPT['pm']}")
def rbw(s): return [f'ds_write_b128 v{vRb[s]}, {vr(VO + 16*s + 4*i, 4)} offset:{1024*i}' for i in range(4)]
ex = exps(2); w0 = rbw(0)
e(qk(3, 3, 0)); e('\n'.join(ex[0:4])); e(qk(3, 3, 1)); e('\n'.join(ex[4:7] + [w0[0]]))
e(pv(3, 1, 0)); e('\n'.join(ex[7:10] + [w0[1]])); e(pv(3, 1, 1)); e('\n'.join(ex[10:13] + [w0[2]] + ex[13:16] + [w0[3]]))
ex = exps(3); w1 = rbw(1); w2 = rbw(2)
e(pv(3, 2, 0)); e('\n'.join(ex[0:3])); e(pv(3, 2, 1))
e('\n'.join([w1[0]] + ex[3:5] + [w1[1]] + ex[5:7] + [w1[2]] + ex[7:9] + [w1[3]] + ex[9:10]))
e(pv(3, 3, 0))
e('\n'.join([w2[0]] + ex[10:12] + [w2[1]] + ex[12:14] + [w2[2]] + ex[14:16] + [w2[3]]))
arrive(9)
e(pv(3, 3, 1))
stamp(10)
lwait(9)
for i in range(12): e(f'ds_read_b128 {vr(VS + 4*i, 4)}, v{vRr} offset:{1024*i}')
OA = VO + 48
for s in range(3):
    e(f's_waitcnt lgkmcnt({8 - 4*s})')
    for i in range(8): e(f'v_pk_add_f32 {vr(OA+2*i,2)}, {vr(OA+2*i,2)}, {vr(VS+16*s+2*i,2)}')
e(f's_mov_b32 s{sIt}, {1 if OPT["force_fb"] else 0}')
e(f'''L_norm:
v_cndmask_b32 v{vA}, v{OA+12}, v{OA}, s[{sOdd}:{sOdd+1}]
v_max3_f32 v{vC}, abs(v{OA}), abs(v{OA+1}), abs(v{OA+2})
v_mov_b32 v{vB}, v{vA}
v_max3_f32 v{vC}, abs(v{OA+3}), abs(v{OA+4}), v{vC}
v_max3_f32 v{vC}, abs(v{OA+5}), abs(v{OA+6}), v{vC}
v_permlane32_swap_b32 v{vA}, v{vB}
v_max3_f32 v{vC}, abs(v{OA+7}), abs(v{OA+8}), v{vC}
v_cndmask_b32 v{vB}, v{vB}, v{vA}, s[{sOdd}:{sOdd+1}]
v_max3_f32 v{vC}, abs(v{OA+9}), abs(v{OA+10}), v{vC}
v_rcp_f32 v{vA}, v{vB}
v_max3_f32 v{vC}, abs(v{OA+11}), abs(v{OA+12}), v{vC}
v_max3_f32 v{vC}, abs(v{OA+13}), abs(v{OA+14}), v{vC}
v_max_f32 v{vC}, abs(v{OA+15}), v{vC}
v_cmp_nle_f32 vcc, 0x30800000, v{vB}
s_mov_b64 s[78:79], vcc
v_cmp_nge_f32 vcc, 0x4e800000, v{vB}
s_or_b64 s[78:79], s[78:79], vcc
v_cmp_ngt_f32 vcc, 0x7f000000, v{vC}
s_or_b64 vcc, s[78:79], vcc''')
if OPT['force_fb']:
    e(f's_cmp_eq_u32 s{sIt}, 1\ns_cbranch_scc1 L_fb')
e('s_cbranch_vccnz L_fb0\nL_norm2:')
for i in range(8): e(f'v_pk_mul_f32 {vr(OA+2*i,2)}, {vr(OA+2*i,2)}, {vr(vA,2)} op_sel_hi:[1,0]')
for i in range(8): e(f'v_cvt_pk_bf16_f32 v{VS+i}, v{OA+2*i}, v{OA+2*i+1}')
e(f'''s_bitcmp1_b32 s{S_H}, 0
s_cbranch_scc1 L_ost_odd
buffer_store_dwordx4 {vr(VS,4)}, v{vOs}, {sr(SRD_WS)}, s{sO0} offen sc1
s_mov_b32 exec_hi, 0
buffer_store_dwordx4 {vr(VS+4,4)}, v{vOs}, {sr(SRD_WS)}, s{sO1} offen sc1
s_not_b64 exec, exec
buffer_store_dwordx2 {vr(VS+4,2)}, v{vOs}, {sr(SRD_WS)}, s{sO1} offen sc1
s_branch L_ost_done
L_ost_odd:
buffer_store_dwordx4 {vr(VS+4,4)}, v{vOs}, {sr(SRD_WS)}, s{sO1} offen sc1
s_mov_b32 exec_hi, 0
buffer_store_dwordx2 {vr(VS+2,2)}, v{vOs}, {sr(SRD_WS)}, s{sO0} offen offset:8 sc1
s_not_b64 exec, exec
buffer_store_dwordx4 {vr(VS,4)}, v{vOs}, {sr(SRD_WS)}, s{sO0} offen sc1
L_ost_done:
s_mov_b64 exec, -1''')
stamp(11)
e('s_waitcnt vmcnt(0)')
publish(sFo, vA)
stamp(12)
prof_out()
e('s_endpgm')

for tag, st in SPIN:
    e(f'L_ws_{tag}:'); lwait(st); e(f's_branch L_wb_{tag}')
sec('fb')
e(f'''L_fb0:
s_cmp_eq_u32 s{sIt}, 2
s_cbranch_scc1 L_norm2
L_fb:
s_waitcnt vmcnt(0)
s_lshl_b32 s{sTmp}, s{S_O0}, 15
s_add_u32 s{sK}, s{sTmp}, {WS_K}
s_add_u32 s{sV}, s{sTmp}, {WS_V}
v_mov_b32 v{vC}, 0xff800000
s_mov_b32 s{sIt}, 0
L_fb1:''')
e('\n'.join(kv_loads(0, 0, SRD_WS)[:2]))
e('s_waitcnt vmcnt(0)')
e(qk(0, 3, 0)); e(qk(0, 3, 1)); e('s_nop 11')
for i in range(8): e(f'v_max3_f32 v{vC}, v{VS+48+2*i}, v{VS+49+2*i}, v{vC}')
e(f'''s_add_u32 s{sK}, s{sK}, 512
s_add_u32 s{sIt}, s{sIt}, 1
s_cmp_lg_u32 s{sIt}, 64
s_cbranch_scc1 L_fb1
v_mov_b32 v{vA}, v{vC}
s_sub_u32 s{sK}, s{sK}, 0x8000
s_mov_b32 s{sIt}, 0
v_permlane32_swap_b32 v{vA}, v{vC}
v_max_f32 v{vC}, v{vA}, v{vC}''')
for i in range(8): e(f'v_mov_b64 {vr(OA+2*i,2)}, 0')
e('L_fb2:')
e('\n'.join(kv_loads(0, 0, SRD_WS)))
e('s_waitcnt vmcnt(0)')
e(qk(0, 3, 0)); e(qk(0, 3, 1)); e('s_nop 11')
for i in range(16): e(f'v_sub_f32 v{VS+48+i}, v{VS+48+i}, v{vC}')
for i in range(16): e(f'v_exp_f32 v{VS+48+i}, v{VS+48+i}')
e('s_nop 1')
e(pv(0, 3, 0)); e(pv(0, 3, 1))
e(f'''s_add_u32 s{sK}, s{sK}, 512
s_add_u32 s{sV}, s{sV}, 256
s_add_u32 s{sIt}, s{sIt}, 1
s_cmp_lg_u32 s{sIt}, 64
s_cbranch_scc1 L_fb2
s_mov_b32 s{sIt}, 2
s_nop 11
s_branch L_norm''')

sD0, sD, sHw, sDs, sTab, sA, sB, sLd, sSk, sIt2, sFlU, sInv, sUns, sSel, sUl, sOl, sCh0 = range(60, 77)
sUs, sOut, sHm = 78, 80, 82
sE2, sE0, sE3 = 84, 85, 86
OUTM = 'sc1' if OPT['outsc'] & 1 else ''
OUTM2 = 'sc1' if OPT['outsc'] & 2 else ''
a0, a1, a2, a3 = 5, 6, 7, 9
vPar = 10
vKc = 18
vRa, vRb_, vKd, vUs, vFu, vE1, vE2, vSa, vSb, vS1, vFr = range(20, 31)
vAc = 48
vOne, vScl, vAdd, vC0 = range(56, 60)
vOp = 64
vY = 112
vXt = 128
vX1 = 144
vAn = 152
T0, T1 = 160, 176
vZ = 192
U = 204
vZer = 220
vUa, vCd, vG_, vZp, vKp, vF_, vL16, vXo, vXp, vTr, vYl, vYs, vFy = range(224, 237)
vWoD = 238
vWoR = 240
vOl, vFo, vBw, vBr, vOut = range(242, 247)
def hi():
    if OPT['prio']: e('s_setprio 3')
def lo():
    if OPT['prio']: e(f"s_setprio {OPT['ps']}")
ROLE[0] = 1
sec('ssm0')
e(f"""s_lshr_b32 s{sDs}, s{S_W}, 1
s_lshl_b32 s{sD0}, s{S_C}, 6
s_lshl1_add_u32 s{sD0}, s{S_J}, s{sD0}
s_add_u32 s{sD}, s{sD0}, s{sDs}
s_mul_i32 s{sTab}, s{S_W}, {TABSZ}
s_add_u32 s{sTab}, s{sTab}, {L_TAB}
s_lshl_b32 s{sA}, s{sD}, 9
v_lshl_add_u32 v{a0}, v{V_LANE}, 3, s{sA}
v_lshrrev_b32 v{a1}, 3, v{V_LANE}
v_mul_u32_u24 v{a1}, 896, v{a1}
v_and_b32 v{a2}, 7, v{V_LANE}
v_lshl_add_u32 v{a1}, v{a2}, 4, v{a1}
v_add_u32 v{a2}, {7168-1024}, v{a1}
s_lshl2_add_u32 s{sFlU}, s{S_J}, s{S_W}
s_mul_i32 s{sA}, s{sFlU}, {16*896}
s_lshl_b32 s{sB}, s{S_C}, 7
s_add_u32 s{sA}, s{sA}, s{sB}
s_mov_b32 m0, s{sTab}
s_lshl_b32 s{sB}, s{sD0}, 1
s_mov_b32 s{SRD_A+2}, {2048*896}
s_mov_b32 s{SRD_A+3}, 0x20000
s_cmp_{'eq' if OPT['only'] != 2 else 'le'}_u32 s{S_C}, 7
s_waitcnt lgkmcnt(0)
s_cbranch_scc1 L_ssm_idle
s_mov_b64 s[{SRD_A}:{SRD_A+1}], s[4:5]
global_load_dwordx2 {vr(vPar,2)}, v{a0}, s[6:7]
global_load_dwordx2 {vr(vPar+2,2)}, v{a0}, s[8:9]
global_load_dwordx2 {vr(vPar+4,2)}, v{a0}, s[10:11]
global_load_dwordx2 {vr(vPar+6,2)}, v{a0}, s[12:13]
buffer_load_dwordx4 v{a1}, {sr(SRD_A)}, s{sA} offen lds
buffer_load_dwordx4 v{a2}, {sr(SRD_A)}, s{sA} offen offset:1024 lds
s_barrier
s_load_dword s{S_NONCE}, s[28:29], 0
s_load_dword s{sLd}, s[14:15], s{sB}
s_load_dword s{sSk}, s[16:17], s{sB}
s_branch L_ssm
L_ssm_idle:
s_barrier""")
arrive(1)
e('s_endpgm')
sec('ssm')
e('L_ssm:')
lo()
srd(SRD_WS, 28, WS_SIZE)
e(f"""v_add_u32 v{V_GRP}, 16, v{V_GRP}
s_lshl_b32 s{sUs}, s{sFlU}, 7
s_lshl_b32 s{sA}, s{S_C}, 18
s_add_u32 s{sUs}, s{sUs}, s{sA}
s_add_u32 s{sUs}, s{sUs}, {WS_U}
s_add_u32 s{sUs+1}, s{sUs}, 0x20000
s_lshl_b32 s{sA}, s{S_C}, {7 + FSH}
s_add_u32 s{sA}, s{sA}, {F_U}
s_lshl_b32 s{sFlU}, s{sFlU}, {FSH}
s_add_u32 s{sFlU}, s{sFlU}, s{sA}
v_min_u32 v{a0}, 32, v{V_LANE}
s_lshl_b32 s{sB}, s{S_W}, 5
s_sub_u32 s{sB}, s{sB}, 1
v_add_u32 v{a0}, s{sB}, v{a0}
v_max_i32 v{a0}, 0, v{a0}
v_lshl_add_u32 v{vFu}, v{a0}, {FSH}, s{sA}
s_and_b32 s{sHw}, s{S_W}, 1
s_cselect_b64 s[{sHm}:{sHm+1}], -1, 0
s_mov_b32 s{sE0}, 0x05040504
s_mov_b32 s{sE3}, 0x01000100
s_cselect_b32 s{sE2}, s{sE3}, 0x01000302
v_and_b32 v{a0}, 15, v{V_LANE}
v_lshrrev_b32 v{a1}, 4, v{V_LANE}
v_lshl_add_u32 v{vRb_}, v{a1}, 4, s{sTab}
v_mul_u32_u24 v{a2}, {TROW}, v{a0}
v_add_u32 v{vRa}, v{a2}, v{vRb_}
v_lshlrev_b32 v{a2}, 5, v{a0}
v_lshl_add_u32 v{a2}, v{a1}, 3, v{a2}
s_lshl_b32 s{sA}, s{S_W}, 10
s_add_u32 s{sA}, s{sA}, {L_KD}
v_add_u32 v{vKd}, s{sA}, v{a2}
v_bfe_u32 v{a0}, v{V_LANE}, 2, 2
v_and_b32 v{a3}, 1, v{V_LANE}
v_lshl_or_b32 v{a2}, v{a3}, 3, v{a0}
v_lshl_add_u32 v{vTr}, v{a2}, 7, v{vRb_}
v_and_b32 v{a2}, 2, v{V_LANE}
v_lshl_add_u32 v{vTr}, v{a2}, 2, v{vTr}
v_lshlrev_b32 v{vL16}, 4, v{V_LANE}
v_lshrrev_b32 v{a1}, 3, v{V_LANE}
v_and_b32 v{a2}, 0x70, v{vL16}
v_lshl_add_u32 v{vUs}, v{a1}, 14, v{a2}
v_lshrrev_b32 v{a1}, 1, v{V_LANE}
v_lshlrev_b32 v{vUa}, 6, v{a1}
v_lshl_add_u32 v{vUa}, v{a3}, 4, v{vUa}
s_lshr_b32 s{sA}, s{sD0}, 2
s_lshl_b32 s{sA}, s{sA}, 14
s_and_b32 s{sB}, s{sD0}, 3
s_lshl4_add_u32 s{sA}, s{sB}, s{sA}
s_lshl_b32 s{sB}, s{S_W}, 12
s_add_u32 s{sA}, s{sA}, s{sB}
s_add_u32 s{sUl}, s{sA}, {WS_U - 64}
v_mul_u32_u24 v{a2}, {UC_D}, v{a3}
v_lshl_add_u32 v{a2}, v{a1}, 4, v{a2}
s_lshl_b32 s{sA}, s{S_W}, 10
s_add_u32 s{sA}, s{sA}, {L_UC + 64}
v_add_u32 v{vCd}, s{sA}, v{a2}
v_mul_u32_u24 v{a3}, 0x0404, v{a3}
v_lshlrev_b32 v{a3}, 16, v{a3}
v_add_u32 v{a3}, 0x01000504, v{a3}
v_mov_b32 v{vS1}, 0x03020302
v_cndmask_b32 v{vS1}, v{vS1}, v{a3}, s[{sHm}:{sHm+1}]
v_lshrrev_b32 v{a1}, 5, v{V_LANE}
v_mul_u32_u24 v{a3}, 0x0202, v{a1}
v_add_u32 v{vSa}, 0x01000302, v{a3}
v_sub_u32 v{vSb}, 0x01000302, v{a3}
s_lshl_b32 s{sA}, s{sDs}, 11
s_add_u32 s{sA}, s{sA}, {L_KD}
v_add_u32 v{vE1}, s{sA}, v{vL16}
s_lshl_b32 s{sB}, s{sHw}, 9
s_add_u32 s{sA}, s{sA}, s{sB}
s_add_u32 s{sA}, s{sA}, 768
v_lshl_add_u32 v{vE2}, v{V_LANE}, 2, s{sA}
s_mul_i32 s{sA}, s{sDs}, 6144
s_add_u32 s{sA}, s{sA}, {L_KP}
s_add_u32 s{sInv}, s{sA}, s{sB}
s_mul_i32 s{sB}, s{sHw}, 3072
s_add_u32 s{sB}, s{sB}, s{sA}
v_lshl_add_u32 v{a2}, v{a1}, 10, v{vL16}
v_add_u32 v{vG_}, s{sB}, v{a2}
v_mov_b64 {vr(vZer,2)}, 0
v_mov_b64 {vr(vZer+2,2)}, 0
ds_write_b128 v{vG_}, {vr(vZer,4)}
v_and_b32 v{a3}, 3, v{V_LANE}
v_mul_u32_u24 v{a2}, {UC_S}, v{a0}
v_lshl_add_u32 v{a2}, v{a3}, 4, v{a2}
s_mul_i32 s{sB}, s{sDs}, {UC_D}
s_add_u32 s{sB}, s{sB}, {L_UC}
v_add_u32 v{vZp}, s{sB}, v{a2}
v_mul_u32_u24 v{a2}, {1536 - 4}, v{a3}
v_lshl_add_u32 v{a2}, v{V_LANE}, 2, v{a2}
v_add_u32 v{vKp}, s{sInv}, v{a2}
v_xor_b32 v{a3}, 3, v{a3}
v_mul_u32_u24 v{a3}, {UC_S}, v{a3}
v_bfe_u32 v{a2}, v{V_LANE}, 2, 3
v_lshl_add_u32 v{a3}, v{a2}, 3, v{a3}
v_lshlrev_b32 v{a1}, 4, v{a1}
v_sub_u32 v{a3}, v{a3}, v{a1}
s_lshl_b32 s{sA}, s{sHw}, 5
s_sub_u32 s{sB}, s{sB}, s{sA}
s_add_u32 s{sB}, s{sB}, 56
v_add_u32 v{vF_}, s{sB}, v{a3}
v_add_u32 v{vG_}, {512 - 80}, v{vG_}
v_mov_b32 v{vOne}, 0x3c00
s_waitcnt lgkmcnt(0)
s_add_u32 s{S_NONCE}, s{S_NONCE}, 1""")
arrive(1)
e(f"""s_lshl_b32 s{sA}, s{sDs}, 4
s_lshr_b32 s{sLd}, s{sLd}, s{sA}
s_lshl_b32 s{sLd}, s{sLd}, 16
s_lshr_b32 s{sSk}, s{sSk}, s{sA}
s_lshl_b32 s{sSk}, s{sSk}, 16
v_mov_b32 v{a0}, s{sLd}
v_mul_f32 v{a0}, 0x3fb8aa3b, v{a0}
v_exp_f32 v{a0}, v{a0}
s_cmp_eq_u32 s{sHw}, 0
s_cselect_b32 s{sA}, 1.0, 4.0
s_cselect_b32 s{sSk}, s{sSk}, 0
v_cvt_pk_bf16_f32 v{a0}, v{a0}, v{a0}
v_and_b32 v{vScl}, 0xffff0000, v{a0}
v_mul_f32 v{a0}, s{sA}, v{vScl}
v_mul_f32 v{vKc}, 0xbfb8aa3b, v{a0}
v_mul_f32 v{vKc+1}, 0.15915494, v{a0}
v_mov_b32 v{vAdd}, 0
v_add_f32 v{vScl}, v{vScl}, v{vScl}
v_writelane_b32 v{vAdd}, s{sSk}, 0
s_mov_b32 s{sIt2}, 0
s_mov_b32 s{sSel}, 0x01000c0c""")
stamp(0)
e(f"""s_waitcnt vmcnt(2)
v_and_b32 v{a0}, 0x7f807f80, v{vPar+4}
v_and_b32 v{a1}, 0x7f807f80, v{vPar+5}
v_and_b32 v{a2}, 0x7f807f80, v{vPar+6}
v_and_b32 v{a3}, 0x7f807f80, v{vPar+7}
v_pk_max_u16 v{a0}, v{a0}, v{a1}
v_pk_max_u16 v{a2}, v{a2}, v{a3}
v_pk_max_u16 v{a0}, v{a0}, v{a2}
v_lshlrev_b32 v{a1}, 16, v{a0}
v_max_u32 v{a0}, v{a0}, v{a1}
s_waitcnt vmcnt(0)""")
for q, n in enumerate((1, 2, 4, 8)):
    z, hf = divmod(q, 2)
    e(f'ds_read_b64_tr_b16 {vr(U + 4*z + 2*hf, 2)}, v{vTr} offset:{64*z + 512*hf}')
    e(f's_nop 0\nv_max_u32_dpp v{a0}, v{a0}, v{a0} row_ror:{n} row_mask:0xf bank_mask:0xf')
e(f"""s_nop 0
v_readlane_b32 s{sA}, v{a0}, 0
v_readlane_b32 s{sB}, v{a0}, 16
v_readlane_b32 s{sInv}, v{a0}, 32
v_readlane_b32 s{sUns}, v{a0}, 48
s_max_u32 s{sA}, s{sA}, s{sB}
s_max_u32 s{sUns}, s{sUns}, s{sInv}
s_max_u32 s{sUns}, s{sUns}, s{sA}
s_and_b32 s{sUns}, s{sUns}, 0x7f800000
s_min_u32 s{sUns}, s{sUns}, 0x7e800000
s_sub_u32 s{sInv}, 0x7f000000, s{sUns}
v_mul_f32 v{vScl}, s{sUns}, v{vScl}""")
hi()
e(f"""s_waitcnt lgkmcnt(0)
buffer_store_dwordx4 {vr(U,4)}, v{vUs}, {sr(SRD_WS)}, s{sUs} offen sc1
buffer_store_dwordx4 {vr(U+4,4)}, v{vUs}, {sr(SRD_WS)}, s{sUs+1} offen sc1""")
lo()
e(f'ds_write_addtid_b32 v{vOne}')
stamp(1)
def cm(jobs, conj):
    ng = 'neg_hi:[1,0,0]' if conj else 'neg_lo:[1,0,0]'
    return [f'v_pk_mul_f16 v{d}, v{x}, v{w} op_sel_hi:[1,0]' for d, x, w in jobs] + \
           [f'v_pk_fma_f16 v{d}, v{x}, v{w}, v{d} op_sel:[1,1,0] op_sel_hi:[0,1,1] {ng}' for d, x, w in jobs]
def kg_step(k):
    o = vOp + 12*k; x1 = vX1 + 4*(k & 1)
    return [f'v_mfma_f32_16x16x32_f16 {vr(vAc,4)}, {vr(o,4)}, {vr(o+4,4)}, {vr(vAc,4)}'] + \
        cm([(x1+r, o+4+r, o+8+r) for r in range(4)], True), \
        [f'v_mfma_f32_16x16x32_f16 {vr(vAc+4,4)}, {vr(o,4)}, {vr(x1,4)}, {vr(vAc+4,4)}']
def wr(reg):
    row = reg - vY if reg < vX1 else 32
    return f'ds_write_addtid_b32 v{reg} offset:{TROW*row}'
assert vXt == vY + 16
zA, zB, tA, tB, pA, pB = vZ, vZ+2, vZ+4, vZ+6, vZ+8, vZ+10
e('L_kg:')
stamp(14)
seq = f"""v_perm_b32 v{pA}, v{vPar+1}, v{vPar}, s{sSel}
v_mul_f32 v{pA}, 0x3fb8aa3b, v{pA}
v_exp_f32 v{pA}, v{pA}
v_perm_b32 v{pA+1}, v{vPar+3}, v{vPar+2}, s{sSel}
v_perm_b32 v{tA}, v{vPar+5}, v{vPar+4}, s{sSel}
v_perm_b32 v{tA+1}, v{vPar+7}, v{vPar+6}, s{sSel}
v_cvt_pk_bf16_f32 v{pA}, v{pA}, v{pA}
v_mul_f32 v{tA}, s{sInv}, v{tA}
v_and_b32 v{pA}, 0xffff0000, v{pA}
v_mul_f32 v{tA+1}, s{sInv}, v{tA+1}
v_pk_mul_f32 {vr(pA,2)}, {vr(pA,2)}, {vr(vKc,2)}
v_cvt_pk_f16_f32 v{vC0}, v{tA}, -v{tA+1}
v_mul_f32 v{pB}, 0x41800000, v{pA}
v_mul_f32 v{pB+1}, 0x41800000, v{pA+1}
v_exp_f32 v{pA}, v{pA}
v_fract_f32 v{pA+1}, v{pA+1}
v_exp_f32 v{pB}, v{pB}
v_fract_f32 v{pB+1}, v{pB+1}
v_cos_f32 v{zA}, v{pA+1}
v_sin_f32 v{zA+1}, v{pA+1}
v_cos_f32 v{zB}, v{pB+1}
v_sin_f32 v{zB+1}, v{pB+1}
v_pk_mul_f32 {vr(zA,2)}, {vr(zA,2)}, {vr(pA,2)} op_sel_hi:[1,0]
v_pk_mul_f32 {vr(zB,2)}, {vr(zB,2)}, {vr(pB,2)} op_sel_hi:[1,0]""".split('\n')
for st in range(5):
    chains = [(zB, tB, vAn + st)] + ([(zA, tA, vY + (1 << st))] if st < 4 else [])
    for z, t, d in chains: seq.append(f'v_cvt_pk_f16_f32 v{d}, v{z}, v{z+1}')
    chains = [c for c in chains if st < (4 if c[0] == zB else 3)]
    for z, t, d in chains: seq.append(f'v_pk_mul_f32 {vr(t,2)}, {vr(z,2)}, {vr(z,2)} op_sel_hi:[0,1]')
    if st == 3: seq.append(f'v_cndmask_b32 v{tA}, v{vOne}, v{vAn+3}, s[{sHm}:{sHm+1}]')
    for z, t, d in chains: seq.append(f'v_pk_fma_f32 {vr(z,2)}, {vr(z,2)}, {vr(z,2)}, {vr(t,2)} op_sel:[1,1,0] op_sel_hi:[0,1,1] neg_lo:[1,0,0]')
    if st < 4: seq.append(wr(vY + (1 << st)))
seq += [f's_cmp_lg_u32 s{sIt2}, 0', 's_cbranch_scc1 L_kg_side' if not OPT['kgx'] & 8 else 's_nop 0', 'L_kg_back:', 's_waitcnt lgkmcnt(4)']
X = vXt; A = vAn; Y = vY
p0, m0_ = kg_step(0); p1, m1_ = kg_step(1); p2, m2_ = kg_step(2); p3, m3_ = kg_step(3)
pend = [wr(A+4)]
def grp(ops, done=(), every=3, mf=None):
    for i, o in enumerate(ops):
        seq.append(o)
        if mf and i == 1: seq.extend(mf)
        if (i + 1) % every == 0 and pend: seq.append(pend.pop(0))
    pend.extend(wr(r) for r in done)
def prods(jobs, conj, mf=None): grp(cm(jobs, conj), [j[0] for j in jobs], mf=mf, every=2 if len(pend) > 4 else 3)
c0 = cm([(X, vC0, tA)], True); c1 = cm([(Y+3, Y+1, Y+2), (Y+12, Y+4, Y+8), (Y+9, Y+8, Y+1)], False)
grp([c0[0]] + c1[:3] + [c0[1]] + c1[3:], [X, Y+3, Y+12, Y+9])
prods([(X+8, X, A+3), (X+1, X, A), (X+2, X, A+1), (X+4, X, A+2)], True)
grp(p0)
prods([(Y+10, Y+8, Y+2), (Y+11, Y+8, Y+3), (Y+5, Y+4, Y+1), (Y+13, Y+12, Y+1)], False, m0_)
prods([(X+9, X+1, A+3), (X+10, X+2, A+3), (X+12, X+4, A+3), (X+3, X+1, A+1)], True)
grp(p1)
prods([(Y+6, Y+4, Y+2), (Y+14, Y+12, Y+2), (Y+7, Y+4, Y+3), (Y+15, Y+12, Y+3)], False, m1_)
prods([(X+11, X+3, A+3), (X+5, X+1, A+2), (X+6, X+2, A+2), (X+7, X+3, A+2)], True)
prods([(X+13, X+5, A+3), (X+14, X+6, A+3), (X+15, X+7, A+3)], True)
grp(p2)
grp(p3, mf=m2_)
seq += pend
rd = [f'ds_read_b128 {vr(vOp+12*k+4*t,4)}, v{vRa} offset:{16*TROW*t + 64*k}' if t < 2 else
      f'ds_read_b128 {vr(vOp+12*k+8,4)}, v{vRb_} offset:{32*TROW + 64*k}' for k in range(4) for t in range(3)]
seq += rd[:2] + m3_ + rd[2:]
if OPT['kgx'] & 1: seq = [x for x in seq if not x.startswith('ds_write')]
if OPT['kgx'] & 2: seq = [x for x in seq if not x.startswith('v_mfma')]
if OPT['kgx'] & 4: seq = [x for x in seq if not x.startswith('ds_read')]
e('\n'.join(seq))
e(f"""s_add_u32 s{sSel}, s{sSel}, 0x02020000
s_add_u32 s{sIt2}, s{sIt2}, 1
s_cmp_lg_u32 s{sIt2}, 4
s_cbranch_scc1 L_kg""")
stamp(15)
def u_fetch():
    hi()
    poll(vFu, first_issued=True, reg=vFr)
    for k in range(2):
        e(f"""buffer_load_dwordx4 {vr(U+8*k+4,4)}, v{vUa}, {sr(SRD_WS)}, s{sUl} offen offset:{64 + 2048*k} sc1
        buffer_load_dwordx2 {vr(U+8*k+2,2)}, v{vUa}, {sr(SRD_WS)}, s{sUl} offen offset:{8 + 2048*k} sc1""")
    lo()
UP = OPT['upub']
if UP == 2 and not OPT['kgx'] & 8: u_fetch()
stamp(16)
e('s_waitcnt lgkmcnt(9)')
e('\n'.join(p0)); e('s_waitcnt lgkmcnt(6)'); e('\n'.join(p1[:2] + m0_ + p1[2:])); e('s_waitcnt lgkmcnt(3)')
e('\n'.join(p2[:1] + m1_ + p2[1:])); e('s_waitcnt lgkmcnt(0)'); e('\n'.join(p3[:1] + m2_ + p3[1:]))
e(f'v_fma_f32 v{vAc}, v{vAc}, v{vScl}, v{vAdd}\nv_mul_f32 v{vAc+1}, v{vScl}, v{vAc+1}')
e('\n'.join(m3_))
e(f"""v_mul_f32 v{vAc+2}, v{vScl}, v{vAc+2}
v_mul_f32 v{vAc+3}, v{vScl}, v{vAc+3}
v_cvt_pk_bf16_f32 v{vAc}, v{vAc}, v{vAc+1}
v_cvt_pk_bf16_f32 v{vAc+1}, v{vAc+2}, v{vAc+3}
ds_write_b64 v{vKd}, {vr(vAc,2)}
s_cmp_eq_u32 s{S_W}, 0
s_cselect_b64 s[88:89], 3, 0
s_nop 0""")
for i in range(4, 8): e(f'v_mul_f32 v{vAc+i}, v{vScl}, v{vAc+i}')
for i in range(2, 4): e(f'v_cvt_pk_bf16_f32 v{vAc+i}, v{vAc+2*i}, v{vAc+2*i+1}')
e(f'ds_write_b64 v{vKd}, {vr(vAc+2,2)} offset:512')
sync(2)
stamp(2)
E = 96
e(f"""ds_read2_b32 {vr(E+6,2)}, v{vE2} offset0:64 offset1:65
s_cmp_lg_u32 s{sHw}, 0
s_cbranch_scc1 L_ex1
ds_read_b128 {vr(E,4)}, v{vE1}
ds_read_b32 v{E+4}, v{vE1} offset:16
ds_write_b128 v{vZp}, {vr(vZer,4)}
s_waitcnt lgkmcnt(1)
v_perm_b32 v{E+8}, v{E+4}, v{E+3}, v{vSa}
v_perm_b32 v{E+9}, v{E+2}, v{E+2}, v{vSb}
v_perm_b32 v{E+10}, v{E+2}, v{E+1}, v{vSa}
v_perm_b32 v{E+11}, v{E}, v{E}, v{vSb}
s_branch L_ex2
L_ex1:
ds_read2_b32 {vr(E,2)}, v{vE2} offset0:0 offset1:1
s_waitcnt lgkmcnt(0)""")
def ex2(d, p):
    e(f"""v_perm_b32 v{d}, v{p+1}, v{p}, s{sE0}
    v_perm_b32 v{d+1}, v{p+1}, v{p}, v{vS1}
    v_perm_b32 v{d+2}, v{p+1}, v{p}, s{sE2}
    v_perm_b32 v{d+3}, v{p+1}, v{p}, s{sE3}""")
ex2(E+8, E)
e('L_ex2:')
ex2(E+12, E+6)
e(f"""ds_write_b128 v{vKp}, {vr(E+8,4)} offset:512
ds_write_b128 v{vKp}, {vr(E+12,4)} offset:{512 + 256}
s_waitcnt vmcnt(2)
v_cndmask_b32 v{U+2}, v{U+2}, v{vZer}, s[88:89]
v_cndmask_b32 v{U+3}, v{U+3}, v{vZer}, s[88:89]""")
stamp(3)
SH = 128
for k in range(2):
    b = U + 8*k + 4; t = SH + 12*k
    if k: e('s_waitcnt vmcnt(0)')
    e(f'ds_write_b128 v{vCd}, {vr(b,4)} offset:{512*k}')
    for i in range(4): e(f'v_alignbit_b32 v{t+i}, v{b+i}, v{b+i-1}, 16')
    e(f'ds_write_b128 v{vCd}, {vr(t,4)} offset:{UC_S + 512*k}')
    for i in range(4): e(f'v_mov_b32 v{t+4+i}, v{b+i-1}')
    e(f'ds_write_b128 v{vCd}, {vr(t+4,4)} offset:{2*UC_S + 512*k}')
    for i in range(4): e(f'v_alignbit_b32 v{t+8+i}, v{b+i-1}, v{b+i-2}, 16')
    e(f'ds_write_b128 v{vCd}, {vr(t+8,4)} offset:{3*UC_S + 512*k}')
sync(3)
stamp(4)
CB = 64
def cv_reads(k):
    b = CB + 16 * (k & 3)
    return [f'ds_read_b128 {vr(b+8,4)}, v{vG_} offset:{80 - 16*k}',
            f'ds_read_b64 {vr(b,2)}, v{vF_} offset:{64*k}', f'ds_read_b64 {vr(b+2,2)}, v{vF_} offset:{64*k + 8}',
            f'ds_read_b128 {vr(b+12,4)}, v{vG_} offset:{512 + 80 - 16*k}',
            f'ds_read_b64 {vr(b+4,2)}, v{vF_} offset:{2048 + 64*k}', f'ds_read_b64 {vr(b+6,2)}, v{vF_} offset:{2048 + 64*k + 8}']
e('\n'.join(cv_reads(0) + cv_reads(1)))
late = f"""s_mov_b64 s[{SRD_B}:{SRD_B+1}], s[22:23]
s_mov_b32 s{SRD_B+2}, {448*896}
s_mov_b32 s{SRD_B+3}, 0x20000
s_mov_b64 s[{SRD_C}:{SRD_C+1}], s[24:25]
s_mov_b32 s{SRD_C+2}, {2048*1792}
s_mov_b32 s{SRD_C+3}, 0x20000
v_lshrrev_b32 v{a1}, 3, v{V_LANE}
v_and_b32 v{a2}, 7, v{V_LANE}
v_and_b32 v{a0}, 0x70, v{vL16}
v_lshl_add_u32 v{vYl}, v{a1}, 12, v{a0}
v_lshlrev_b32 v{a3}, 2, v{V_LANE}
v_and_b32 v{a3}, 64, v{a3}
v_xor_b32 v{a0}, v{a0}, v{a3}
v_mul_u32_u24 v{vWoD}, 896, v{a1}
v_xor_b32 v{a3}, v{a1}, v{a2}
v_lshlrev_b32 v{a3}, 4, v{a3}
v_lshl_add_u32 v{vOut}, v{vWoD}, 1, v{a3}
v_add_u32 v{vWoD}, v{a0}, v{vWoD}
v_add_u32 v{vWoD+1}, {7168-1024}, v{vWoD}
v_lshrrev_b32 v{a0}, 4, v{V_LANE}
v_bfe_u32 v{a1}, v{V_LANE}, 2, 2
v_lshl_or_b32 v{a3}, v{a0}, 3, v{a1}
v_lshlrev_b32 v{a3}, 7, v{a3}
v_lshrrev_b32 v{a1}, 1, v{a1}
v_lshl_add_u32 v{a3}, v{a1}, 6, v{a3}
v_and_b32 v{a1}, 0x30, v{vL16}
s_movk_i32 s{sA}, {L_WO}
v_add3_u32 v{vWoR}, v{a1}, v{a3}, s{sA}
v_xor_b32 v{vWoR+1}, 64, v{vWoR}
v_and_b32 v{a1}, 15, v{V_LANE}
v_lshlrev_b32 v{vOl}, 4, v{a1}
v_lshl_add_u32 v{vOl}, v{a0}, 15, v{vOl}
s_lshl2_add_u32 s{sOl}, s{S_J}, s{S_W}
s_lshr_b32 s{sA}, s{sOl}, 1
s_lshl_b32 s{sA}, s{sA}, {4 + FSH}
s_add_u32 s{sA}, s{sA}, {F_O}
v_lshl_add_u32 v{vFo}, v{a1}, {FSH}, s{sA}
s_lshl_b32 s{sA}, s{S_W}, 11
s_add_u32 s{sA}, s{sA}, {L_SSM}
v_xor_b32 v{a3}, v{a0}, v{a2}
v_lshl_add_u32 v{a3}, v{a3}, 4, s{sA}
v_lshl_add_u32 v{vBw}, v{a1}, 7, v{a3}
v_add_u32 v{vBr}, s{sA}, v{vL16}
s_mul_i32 s{sOut}, s{sOl}, {16*1792}
s_lshl_b32 s{sA}, s{S_C}, 7
s_add_u32 s{sOut}, s{sOut}, s{sA}
s_add_u32 s{sOut}, s{sOut}, 896
s_add_u32 s{sOut+1}, s{sOut}, {8*1792}
s_lshl_b32 s{sOl}, s{sOl}, 8
s_add_u32 s{sOl}, s{sOl}, {WS_O}
s_lshl2_add_u32 s{sCh0}, s{S_C}, s{S_W}
s_lshl_b32 s{sCh0}, s{sCh0}, 4
s_lshr_b32 s{sA}, s{S_J}, 4
s_lshl_b32 s{sA}, s{sA}, 9
s_add_u32 s{sA}, s{sA}, s{sCh0}
s_lshl_b32 s{sA}, s{sA}, {FSH}
s_add_u32 s{sA}, s{sA}, {F_Y}
v_lshl_add_u32 v{vFy}, v{a1}, {FSH}, s{sA}
v_and_b32 v{a1}, 11, v{V_LANE}
v_lshl_or_b32 v{a1}, v{a0}, 5, v{a1}
v_mul_u32_u24 v{a1}, 1792, v{a1}
v_and_b32 v{a3}, 4, v{V_LANE}
v_lshl_add_u32 v{vYs}, v{a3}, 2, v{a1}
v_add_u32 v{vXo}, s{sTab}, v{vL16}
s_xor_b32 s{sB}, s{S_W}, 1
s_mul_i32 s{sB}, s{sB}, {TABSZ}
s_add_u32 s{sB}, s{sB}, {L_TAB}
v_add_u32 v{vXp}, s{sB}, v{vL16}""".split('\n')
e('\n'.join(late[:20])); late = late[20:]
def cv_iter(first):
    for k in range(4):
        b = CB + 16 * k
        rd = cv_reads(k + 2)
        z = first and k == 0
        def fill(n):
            if first:
                e('\n'.join(late[:n])); del late[:n]
        e('s_waitcnt lgkmcnt(6)')
        e(f'v_mfma_f32_32x32x16_bf16 {vr(T1,16)}, {vr(b,4)}, {vr(b+12,4)}, {"0" if z else vr(T1,16)}')
        e('\n'.join(rd[0:3])); fill(3)
        e(f'v_mfma_f32_32x32x16_bf16 {vr(T0,16)}, {vr(b,4)}, {vr(b+8,4)}, {"0" if z else vr(T0,16)}')
        e('\n'.join(rd[3:6])); fill(3)
        if k == 3:
            e(f'v_add_u32 v{vF_}, 256, v{vF_}\nv_subrev_u32 v{vG_}, 64, v{vG_}')
            if not first: e(f's_add_u32 s{sIt2}, s{sIt2}, 1\ns_cmp_lg_u32 s{sIt2}, 11')
        e(f'v_mfma_f32_32x32x16_bf16 {vr(T1,16)}, {vr(b+4,4)}, {vr(b+8,4)}, {vr(T1,16)}')
        fill(6 if k < 3 else 99)
cv_iter(True)
e('L_cv:')
cv_iter(False)
e('s_cbranch_scc1 L_cv')
stamp(5)
arrive(4)
e(f"""s_lshl1_add_u32 s{sA}, s{sD}, s{sHw}
s_lshl_b32 s{sA}, s{sA}, 11
s_add_u32 s{sA}, s{sA}, {WS_Y}
s_lshl_b32 s{sB}, s{sHw}, 9
s_add_u32 s{sB}, s{sB}, s{sD}
s_lshl_b32 s{sB}, s{sB}, {FSH}
s_add_u32 s{sB}, s{sB}, {F_Y}""")
lwait(4)
def xch(give, keep):
    for i in range(4): e(f'ds_write_b128 v{vXp}, {vr(give+4*i,4)} offset:{1024*i}')
    sync(5)
    for i in range(4): e(f'ds_read_b128 {vr(give+4*i,4)}, v{vXo} offset:{1024*i}')
    e('s_waitcnt lgkmcnt(0)')
e(f's_cmp_eq_u32 s{sHw}, 0\ns_cbranch_scc1 L_x0')
xch(T0, T1)
e('s_branch L_x1\nL_x0:')
xch(T1, T0)
e('L_x1:')
for i in range(8): e(f'v_pk_add_f32 {vr(T0+2*i,2)}, {vr(T0+2*i,2)}, {vr(T1+2*i,2)}')
for i in range(8): e(f'v_cvt_pk_bf16_f32 v{T1+i}, v{T0+2*i}, v{T0+2*i+1}')
e(f"""buffer_store_dwordx4 {vr(T1,4)}, v{vL16}, {sr(SRD_WS)}, s{sA} offen sc1
buffer_store_dwordx4 {vr(T1+4,4)}, v{vL16}, {sr(SRD_WS)}, s{sA} offen offset:1024 sc1
s_lshl_b32 s{sA}, s{sCh0}, 12
s_lshl_b32 s{sSk}, s{S_J}, 7
s_add_u32 s{sA}, s{sA}, s{sSk}
s_add_u32 s{sA}, s{sA}, {WS_Y}
s_add_u32 s{sSk}, s{sA}, 0x8000
s_waitcnt vmcnt(0)""")
publish(sB, a0)
stamp(6)
poll(vFy, sleep=OPT['ysleep'])
stamp(7)
e(f"""buffer_load_dwordx4 {vr(64,4)}, v{vYl}, {sr(SRD_WS)}, s{sA} offen sc1
buffer_load_dwordx4 {vr(68,4)}, v{vYl}, {sr(SRD_WS)}, s{sSk} offen sc1
s_lshr_b32 s{sA}, s{S_J}, 4
s_lshl_b32 s{sA}, s{sA}, 10
s_and_b32 s{sB}, s{S_J}, 3
s_lshl_b32 s{sB}, s{sB}, 8
s_add_u32 s{sA}, s{sA}, s{sB}
s_and_b32 s{sB}, s{S_J}, 8
s_lshl1_add_u32 s{sA}, s{sB}, s{sA}
s_and_b32 s{sB}, s{S_J}, 4
s_add_u32 s{sA}, s{sA}, s{sB}
s_mul_i32 s{sA}, s{sA}, 1792
s_lshl1_add_u32 s{sA}, s{sCh0}, s{sA}
s_add_u32 s{sB}, s{sA}, {128*1792}
s_waitcnt vmcnt(0)
ds_write_b128 v{vXo}, {vr(64,4)}
ds_write_b128 v{vXo}, {vr(68,4)} offset:1024""")
for z in range(2):
    for hf in range(2):
        e(f'ds_read_b64_tr_b16 {vr(72 + 4*z + 2*hf, 2)}, v{vTr} offset:{64*z + 512*hf}')
e(f"""s_waitcnt lgkmcnt(0)
buffer_store_dwordx4 {vr(72,4)}, v{vYs}, {sr(SRD_C)}, s{sA} offen {OUTM}
buffer_store_dwordx4 {vr(76,4)}, v{vYs}, {sr(SRD_C)}, s{sB} offen {OUTM}
v_subrev_u32 v{a0}, 16, v{V_GRP}""")
sync(6)
if OPT['only'] == 1:
    stamp(8); stamp(13); prof_out(); e('s_endpgm')
lwait(7, addr=a0)
stamp(8)
e(f"""s_mul_i32 s{sA}, s{S_W}, {16*896}
s_lshl_b32 s{sB}, s{S_C}, 7
s_add_u32 s{sA}, s{sA}, s{sB}
s_lshl_b32 s{sB}, s{S_W}, 11
s_add_u32 s{sB}, s{sB}, {L_WO}""")
for ch in range(7):
    e(f"""s_add_u32 m0, s{sB}, {8192*ch}
    s_add_u32 s{sSk}, s{sA}, {64*896*ch}
    buffer_load_dwordx4 v{vWoD}, {sr(SRD_B)}, s{sSk} offen lds
    buffer_load_dwordx4 v{vWoD+1}, {sr(SRD_B)}, s{sSk} offen offset:1024 lds
    s_waitcnt vmcnt({OPT['wodepth'] if ch < 6 else 0})""")
WF, OF, OC = 8, 168, 224
sync(7)
def wo_reads(k):
    r = []
    for t in range(4):
        for hf in range(2):
            r.append(f'ds_read_b64_tr_b16 {vr(WF + 16*(k%10) + 4*t + 2*hf, 2)}, v{vWoR + (t>>1)} offset:{4096*k + 512*hf + 8*(t&1)}')
    return r
for k in range(10): e('\n'.join(wo_reads(k)))
e(f'v_xor_b32 v{a0}, 64, v{vBw}\ns_waitcnt lgkmcnt(0)')
stamp(9)
e('s_barrier')
stamp(10)
poll(vFo)
stamp(11)
for k in range(14):
    e(f'buffer_load_dwordx4 {vr(OF+4*k,4)}, v{vOl}, {sr(SRD_WS)}, s{sOl} offen sc1')
    if k < 13: e(f's_add_u32 s{sOl}, s{sOl}, 0x20000')
for k in range(14):
    e(f's_waitcnt vmcnt({13-k})' + (' lgkmcnt(0)' if k == 10 else ''))
    for t in range(4):
        c = vr(OC+4*t, 4)
        e(f'v_mfma_f32_16x16x32_bf16 {c}, {vr(WF + 16*(k%10) + 4*t, 4)}, {vr(OF+4*k,4)}, {"0" if k == 0 else c}')
    if 1 <= k <= 4: e('\n'.join(wo_reads(k + 9)))
stamp(12)
e('s_nop 4')
for i in range(8): e(f'v_cvt_pk_bf16_f32 v{16+i}, v{OC+2*i}, v{OC+2*i+1}')
e(f"""ds_write_b128 v{vBw}, {vr(16,4)}
ds_write_b128 v{a0}, {vr(20,4)}
ds_read_b128 {vr(24,4)}, v{vBr}
ds_read_b128 {vr(28,4)}, v{vBr} offset:1024
s_or_b32 s{sA}, s2, s{S_W}
s_waitcnt lgkmcnt(1)
buffer_store_dwordx4 {vr(24,4)}, v{vOut}, {sr(SRD_C)}, s{sOut} offen {OUTM2}
s_waitcnt lgkmcnt(0)
buffer_store_dwordx4 {vr(28,4)}, v{vOut}, {sr(SRD_C)}, s{sOut+1} offen {OUTM2}
s_cbranch_scc1 L_noepoch""")
publish(sA, 6)
e('L_noepoch:')
if OPT['prof']:
    e('s_waitcnt vmcnt(0)')
stamp(13)
prof_out()
e('L_end:\ns_endpgm')
e(f"""L_kg_side:
s_cmp_lg_u32 s{sIt2}, 1
s_cbranch_scc1 L_kg_s2""")
for i in range(4): e(f'v_mov_b64 {vr(vAc+2*i,2)}, 0')
def s_pub():
    hi(); e('s_waitcnt vmcnt(0)'); publish(sFlU, a0); lo()
def s_look():
    hi(); e(f'buffer_load_dword v{vFr}, v{vFu}, {sr(SRD_WS)}, 0 offen sc1'); lo()
if UP == 1: s_pub()
e(f's_branch L_kg_back\nL_kg_s2:\ns_cmp_lg_u32 s{sIt2}, 2\ns_cbranch_scc1 L_kg_s3')
(s_look if UP == 1 else s_pub)()
e('s_branch L_kg_back\nL_kg_s3:')
(u_fetch if UP == 1 else s_look)()
e('s_branch L_kg_back')

ORDER = ['pro', 'ssm0', 'mha', 'ssm', 'fb']
hdr = open('header.txt').read()
txt = hdr + f'''; @launch grid=(256,1,1) block=(512,1,1) lds={L_TOT}
.amdgcn_target "amdgcn-amd-amdhsa--gfx950"
.text
.globl {KN}
.p2align 8
.type {KN},@function
{KN}:
''' + '\n'.join(sum((SEC[n] for n in ORDER), [])) + f'''
.section .rodata,"a"
.p2align 6
.amdhsa_kernel {KN}
  .amdhsa_next_free_vgpr 256
  .amdhsa_next_free_sgpr 102
  .amdhsa_accum_offset 256
  .amdhsa_group_segment_fixed_size 0
  .amdhsa_kernarg_size 104
  .amdhsa_user_sgpr_count 2
  .amdhsa_user_sgpr_kernarg_segment_ptr 1
  .amdhsa_system_sgpr_workgroup_id_x 1
.end_amdhsa_kernel
'''
open(sys.argv[1], 'w').write(txt)
```

```python
import sys, struct
def fl(x): return hex(struct.unpack('<I', struct.pack('<f', x))[0])

KN = 'concat_heads__ssm_conv_s4d__softmax_full_mha__prompt_kernel'
OPT = dict(omode=0, ksleep=0, usleep=4, obar=1, osleep=12, pubk=18, abl=0, touch=1024, gs=0, kgw=0, xg=5, gx=0, pm=2, ps=1, rt=0, upub=1, kgx=0, outsc=0, ysleep=8, wodepth=4, wq_mid=0, pollk=27, rd=-1, rdrole=0, only=0, safe=0, rot=1, prof=0, fs=32, force_fb=0, wq_early=4, prio=1)
for a in sys.argv[2:]:
    k, v = a.split('=')
    assert k in OPT, k
    OPT[k] = int(v, 0)

FS = OPT['fs']
FSH = FS.bit_length() - 1
F_KV = 0x1000
F_O = F_KV + 1024 * FS
F_U = F_O + 1024 * FS
F_Y = F_U + 1024 * FS
F_H = F_Y + 1024 * FS
WS_K = 0x100000
WS_V = 0x300000
WS_O = 0x500000
WS_U = 0x700000
WS_Y = 0x900000
WS_PROF = 0xb00000
WS_SIZE = 0xc00000
L_SSM = 1024
L_W = 57344
L_RB = 65536
L_X = 114688
L_TOT = 163840
TROW = 288
TABSZ = 38 * TROW
L_TAB = L_SSM
L_UC = L_SSM
UC_S = 4160
UC_D = 4 * UC_S + 64
L_KP = L_TAB + 4 * TABSZ
L_KD = L_SSM + 36864
assert L_UC + 2 * UC_D <= L_KD and 3 * TABSZ + 2048 <= 36864 and L_KD + 6144 <= L_KP and L_KP % 16 == 0 and L_KP + 12288 <= L_W
L_WO = L_SSM

S_WV, S_W, S_HG, S_C, S_TILE, S_J, S_H, S_NONCE, S_O0, S_ROT = range(30, 40)
SRD_WS, SRD_A, SRD_B, SRD_C = 40, 44, 48, 52
S_BOUND = 56
S_T0 = 58

SEC = {}
out = None
def sec(n):
    global out
    out = SEC.setdefault(n, [])
sec('pro')
def e(s):
    for l in s.split('\n'):
        l = l.strip()
        if l:
            out.append(l if l.endswith(':') else '    ' + l)
_lab = [0]
def lab(p):
    _lab[0] += 1
    return f'L_{p}_{_lab[0]}'
def vr(a, n):
    return f'v[{a}:{a+n-1}]' if n > 1 else f'v{a}'
def srd(d, b, n):
    e(f's_mov_b64 s[{d}:{d+1}], s[{b}:{b+1}]\ns_mov_b32 s{d+2}, {n}\ns_mov_b32 s{d+3}, 0x20000')
def sr(d): return f's[{d}:{d+3}]'

V_LANE, V_T, V_OWN, V_GRP, V_PROF = 0, 1, 2, 3, 4

ROLE = [0]
def stamp(i):
    if OPT['rd'] == i and OPT['rdrole'] == ROLE[0]:
        e('s_memrealtime s[100:101]\ns_waitcnt lgkmcnt(0)')
    if OPT['prof'] > (i >= 14):
        e(f's_mem{"real" if OPT["rt"] else ""}time s[96:97]\ns_waitcnt lgkmcnt(0)\ns_sub_u32 s96, s96, s{98 if OPT["rt"] else S_T0}\nv_writelane_b32 v{V_PROF}, s96, {i}')
def prof_out():
    if OPT['rd'] >= 0 and OPT['rdrole'] == ROLE[0]:
        l = lab('pad')
        if ROLE[0] == 0 and not OPT['obar']: e('s_barrier')
        e(f'''s_add_u32 s100, s100, 6000
        {l}:
        s_sleep 1
        s_memrealtime s[96:97]
        s_waitcnt lgkmcnt(0)
        s_sub_u32 s96, s96, s100
        s_cmp_lt_i32 s96, 0
        s_cbranch_scc1 {l}''')
    if OPT['prof']:
        e(f'''s_memrealtime s[96:97]
        s_waitcnt lgkmcnt(0)
        v_writelane_b32 v{V_PROF}, s96, 31
        v_writelane_b32 v{V_PROF}, s98, 30
        s_lshl_b32 s96, s2, 3
        s_add_u32 s96, s96, s{S_WV}
        s_lshl_b32 s96, s96, 7
        s_add_u32 s96, s96, {WS_PROF}
        v_lshlrev_b32 v{V_T}, 2, v{V_LANE}
        s_mov_b32 exec_hi, 0
        buffer_store_dword v{V_PROF}, v{V_T}, {sr(SRD_WS)}, s96 offen
        s_mov_b64 exec, -1''')

def arrive(stage):
    e(f'v_mov_b32 v{V_T}, {stage}\nds_write_b32 v{V_OWN}, v{V_T}')
def lwait(stage, addr=V_GRP, sleep=0):
    l = lab('lw')
    e(f'{l}:')
    if sleep: e(f's_sleep {sleep}')
    e(f'''ds_read_b32 v{V_T}, v{addr}
    s_waitcnt lgkmcnt(0)
    v_cmp_gt_u32 vcc, {stage}, v{V_T}''')
    if OPT['safe']:
        d = lab('ld')
        e(f'''s_cbranch_vccz {d}
        s_sub_u32 s{S_BOUND}, s{S_BOUND}, 1
        s_cbranch_scc0 {l}
        s_mov_b32 s{S_BOUND}, 0
        {d}:''')
    else:
        e(f's_cbranch_vccnz {l}')
def sync(stage):
    arrive(stage); lwait(stage)
def poll(voff, first_issued=False, sleep=0, reg=V_T):
    l, d, m = lab('pl'), lab('pd'), lab('pm')
    if first_issued: e(f's_branch {m}')
    e(f'{l}:')
    if sleep: e(f's_sleep {sleep}')
    e(f'''buffer_load_dword v{reg}, v{voff}, {sr(SRD_WS)}, 0 offen sc1
    {m}:
    s_waitcnt vmcnt(0)
    v_cmp_ne_u32 vcc, s{S_NONCE}, v{reg}
    s_cbranch_vccz {d}
    s_sub_u32 s{S_BOUND}, s{S_BOUND}, 1
    s_cbranch_scc0 {l}
    s_mov_b32 s{S_BOUND}, 0
    {d}:''')
def publish(soff, tmp):
    e(f'''v_mov_b32 v{V_T}, s{S_NONCE}
    v_mov_b32 v{tmp}, 0
    s_mov_b64 exec, 1
    buffer_store_dword v{V_T}, v{tmp}, {sr(SRD_WS)}, s{soff} offen sc1
    s_mov_b64 exec, -1''')
def swap23(d, s, t):
    e(f'''v_lshrrev_b32 v{t}, 1, v{s}
    v_xor_b32 v{t}, v{t}, v{s}
    v_and_b32 v{t}, 4, v{t}
    v_mul_u32_u24 v{t}, 3, v{t}
    v_xor_b32 v{d}, v{t}, v{s}''')
def rot_next(s):
    e(f's_add_u32 s{s}, s{s}, 1\ns_cmp_eq_u32 s{s}, 7\ns_cselect_b32 s{s}, 0, s{s}')

e(f'''s_cmp_ge_u32 s2, 256
s_cbranch_scc1 L_end''')
if OPT['prof']:
    e(f's_memtime s[{S_T0}:{S_T0+1}]\ns_memrealtime s[98:99]\nv_mov_b32 v{V_PROF}, 0')
if OPT['rd'] >= 0: e('s_memrealtime s[100:101]')
e(f'''s_load_dwordx16 s[4:19], s[0:1], 0
s_load_dwordx8 s[20:27], s[0:1], 64
s_load_dwordx2 s[28:29], s[0:1], 96
v_lshrrev_b32 v{V_OWN}, 6, v0
v_and_b32 v{V_LANE}, 63, v0
v_readfirstlane_b32 s{S_WV}, v{V_OWN}
v_lshlrev_b32 v{V_OWN}, 2, v{V_OWN}
v_mov_b32 v{V_T}, 0
ds_write_b32 v{V_OWN}, v{V_T}
v_and_b32 v{V_GRP}, 3, v{V_LANE}
v_lshlrev_b32 v{V_GRP}, 2, v{V_GRP}
s_and_b32 s{S_HG}, s2, 1
s_bfe_u32 s60, s2, 0x20001
s_bfe_u32 s{S_C}, s2, 0x30003
s_lshr_b32 s61, s2, 6
s_lshl2_add_u32 s{S_TILE}, s60, s61
s_lshl1_add_u32 s{S_J}, s{S_TILE}, s{S_HG}
s_lshl3_add_u32 s{S_H}, s{S_HG}, s{S_C}
s_and_b32 s{S_W}, s{S_WV}, 3
s_mov_b32 s{S_BOUND}, 0x40000
s_cmp_lt_u32 s{S_WV}, 4
s_cbranch_scc1 L_mha''')

VX = 144; VACC = 96; VWF = 32; VPK = 128
VV, VK, VS, VO, VQ = 32, 64, 96, 160, 224
vWd = [5, 6]; vXd = [7, 8, 9, 10]; vXr = [11, 12, 13, 14]; vWb, vW0, vW1 = 15, 16, 17
vRho, vG, vSt, vQd, vQr, vFl, vA, vB, vC = 18, 19, 20, 21, 22, 23, 24, 25, 26
vKo0, vKo1, vVo, vIdx = 27, 28, 29, 30
sXb, sWb, sCh, sCw, sLx, sTmp, sTmp2, sSt, sS1, sS2, sFl = range(60, 71)
sK, sV, sIt = 71, 72, 73
sFo, sO0, sO1 = 84, 85, 86
vOs, vQw = vRho, vG
vRb = [7, 8, 9]; vQx = [11, 12, 13]; vRr = 10
sMask = 74
sOdd = 76

sec('mha0')
e('L_mha:')
if OPT['prio']: e(f"s_setprio {OPT['pm']}")
e(f'''s_mul_i32 s{S_O0}, s{S_H}, 7
s_lshr_b32 s{S_O0}, s{S_O0}, 1''')
if OPT['rot']:
    e(f'''s_lshl1_add_u32 s{S_ROT}, s61, s{S_C}
    s_cmp_ge_u32 s{S_ROT}, 7
    s_cselect_b32 s{sTmp}, 7, 0
    s_sub_u32 s{S_ROT}, s{S_ROT}, s{sTmp}''')
else:
    e(f's_mov_b32 s{S_ROT}, 0')
e(f'''v_lshrrev_b32 v{vA}, 3, v{V_LANE}          ; r
v_and_b32 v{vB}, 7, v{V_LANE}                    ; p
v_lshlrev_b32 v{vC}, 1, v{vA}
v_and_b32 v{vC}, 4, v{vC}
v_xor_b32 v{vC}, v{vC}, v{vB}
v_lshlrev_b32 v{vC}, 4, v{vC}
v_mul_u32_u24 v{vWd[0]}, 2688, v{vA}
v_add_u32 v{vWd[0]}, v{vWd[0]}, v{vC}
v_add_u32 v{vWd[1]}, {8*2688-1024}, v{vWd[0]}
v_lshrrev_b32 v{vC}, 1, v{vA}
v_xor_b32 v{vC}, v{vC}, v{vB}
v_lshlrev_b32 v{vC}, 4, v{vC}
v_mul_u32_u24 v{vA}, 896, v{vA}
v_add_u32 v{vXd[0]}, v{vA}, v{vC}
v_xor_b32 v{vC}, 64, v{vC}
v_add_u32 v{vXd[1]}, v{vA}, v{vC}
v_add_u32 v{vXd[1]}, {7168-1024}, v{vXd[1]}
v_add_u32 v{vXd[2]}, {2*(7168-1024)}, v{vXd[0]}
v_add_u32 v{vXd[3]}, {2*(7168-1024)}, v{vXd[1]}
s_lshl2_add_u32 s{sXb}, s{S_TILE}, s{S_W}
s_lshl_b32 s{sFl}, s{S_H}, 6
s_add_u32 s{sFl}, s{sFl}, s{sXb}
s_lshl_b32 s{sFl}, s{sFl}, {FSH}
s_add_u32 s{sFl}, s{sFl}, {F_KV}
s_mul_i32 s{sXb}, s{sXb}, {32*896}
s_mul_i32 s{sTmp2}, s{S_HG}, 3
s_lshr_b32 s{sTmp}, s2, 6
s_add_u32 s{sTmp2}, s{sTmp2}, s{sTmp}
s_mul_i32 s{sWb}, s{S_HG}, 7
s_add_u32 s{sWb}, s{sWb}, s{S_C}
s_add_u32 s{sWb}, s{sWb}, 7
s_cmp_eq_u32 s{S_C}, 7
s_cselect_b32 s{sWb}, s{sTmp2}, s{sWb}
s_lshl_b32 s{sWb}, s{sWb}, 7
s_mul_i32 s{sTmp}, s{S_W}, {16*2688}
s_add_u32 s{sWb}, s{sWb}, s{sTmp}
s_mul_i32 s{sLx}, s{S_W}, 12288
s_add_u32 s{sLx}, s{sLx}, {L_X}
s_lshl_b32 s{sS1}, s{S_W}, 11
s_add_u32 s{sS1}, s{sS1}, {L_W}
s_mov_b32 s{sCh}, s{S_ROT}
s_waitcnt lgkmcnt(0)''')
e(f's_load_dword s{S_NONCE}, s[28:29], 0')
srd(SRD_B, 20, 448 * 1344 * 2)
srd(SRD_A, 18, 2048 * 896)
e(f'''s_lshl_b32 s4, s{sCh}, 7
s_add_u32 s4, s4, s{sXb}
s_mul_i32 s88, s{sCh}, {64*2688}
s_add_u32 s11, s88, s{sWb}''')
rot_next(sCh)
e('s_barrier')
if OPT['only'] == 1: e('s_endpgm')
def rot_lines(s):
    return [f's_add_u32 s{s}, s{s}, 1', f's_cmp_eq_u32 s{s}, 7', f's_cselect_b32 s{s}, 0, s{s}']
sXo, sWo, sQo = 4, 11, 88
def offs(st):
    return [f's_lshl_b32 s{sXo+st}, s{sCh}, 7', f's_add_u32 s{sXo+st}, s{sXo+st}, s{sXb}', f's_mul_i32 s{sQo+st}, s{sCh}, {64*2688}',
            f's_add_u32 s{sWo+st}, s{sQo+st}, s{sWb}'] + (rot_lines(sCh) if st < 6 else [])
def w_lines(st):
    return [f's_add_u32 m0, s{sS1}, {8192*st}', 's_nop 0'] + \
           [f'buffer_load_dwordx4 v{vWd[i]}, {sr(SRD_B)}, s{sWo+st} offen offset:{1024*i} lds' for i in range(2)]
def x_chunk(st):
    return [f's_add_u32 m0, s{sLx}, {(st%3)*4096}', 's_nop 0'] + \
           [f'buffer_load_dwordx4 v{vXd[i]}, {sr(SRD_A)}, s{sXo+st} offen offset:{1024*i} lds' for i in range(4)]
e('\n'.join(x_chunk(0) + w_lines(0) + offs(1) + w_lines(1)))
e('s_branch L_mha1')
sec('mha')
e('L_mha1:')
for st in range(2, 7): e('\n'.join(offs(st)))
srd(SRD_WS, 28, WS_SIZE)
e(f'''v_and_b32 v{vA}, 31, v{V_LANE}
v_lshrrev_b32 v{vG}, 5, v{V_LANE}''')
swap23(vRho, vA, vB)
e(f'''v_bfe_u32 v{vB}, v{vRho}, 1, 3
v_xor_b32 v{vB}, v{vB}, v{vG}
v_lshlrev_b32 v{vB}, 4, v{vB}
v_lshl_add_u32 v{vB}, v{vRho}, 7, v{vB}
v_add_u32 v{vXr[0]}, s{sLx}, v{vB}
v_xor_b32 v{vXr[1]}, 32, v{vXr[0]}
v_xor_b32 v{vXr[2]}, 64, v{vXr[0]}
v_xor_b32 v{vXr[3]}, 0x60, v{vXr[0]}
v_and_b32 v{vB}, 3, v{V_LANE}                     ; cc
v_lshrrev_b32 v{vC}, 1, v{vB}
v_and_b32 v{vQd}, 1, v{vB}
v_lshl_or_b32 v{vC}, v{vQd}, 1, v{vC}
v_bfe_u32 v{vQd}, v{V_LANE}, 4, 1
v_lshl_or_b32 v{vB}, v{vQd}, 2, v{vB}
v_lshl_or_b32 v{vC}, v{vQd}, 2, v{vC}
v_bfe_u32 v{vQd}, v{V_LANE}, 2, 2                  ; r'
v_lshl_or_b32 v{vFl}, v{vG}, 3, v{vQd}             ; 8g + r'
v_lshlrev_b32 v{vQr}, 6, v{vFl}
v_lshl_add_u32 v{vQr}, v{vC}, 3, v{vQr}
v_add_u32 v{vQr}, {L_X + 4096}, v{vQr}
s_cmp_eq_u32 s{S_HG}, 0
s_cselect_b64 vcc, -1, 0
v_cndmask_b32 v{vB}, v{vB}, v{vC}, vcc             ; K slabs use the exchanged order, V slabs the natural one
v_lshlrev_b32 v{vWb}, 7, v{vFl}
v_lshl_add_u32 v{vWb}, v{vB}, 3, v{vWb}
v_lshrrev_b32 v{vQd}, 1, v{vQd}
v_lshl_add_u32 v{vWb}, v{vQd}, 6, v{vWb}
v_add_u32 v{vW0}, {L_W}, v{vWb}
v_lshlrev_b32 v{vB}, 4, v{vRho}
v_lshl_add_u32 v{vB}, v{vG}, 15, v{vB}             ; K: g*32768 + token*16
v_lshrrev_b32 v{vC}, 2, v{vA}
v_lshlrev_b32 v{vC}, 14, v{vC}
v_lshl_add_u32 v{vC}, v{vG}, 6, v{vC}
v_and_b32 v{vQd}, 3, v{vA}
v_lshl_add_u32 v{vC}, v{vQd}, 4, v{vC}
v_cndmask_b32 v{vSt}, v{vC}, v{vB}, vcc
s_lshl2_add_u32 s{sTmp}, s{S_TILE}, s{S_W}
s_lshl_b32 s{sTmp2}, s{sTmp}, 9
s_add_u32 s{sTmp2}, s{sTmp2}, {WS_K}
s_lshl_b32 s{sTmp}, s{sTmp}, 8
s_add_u32 s{sTmp}, s{sTmp}, {WS_V}
s_movk_i32 s{sS2}, 128
s_cmp_eq_u32 s{S_HG}, 0
s_cselect_b32 s{sSt}, s{sTmp2}, s{sTmp}
s_cselect_b32 s{sS2}, 0x10000, s{sS2}
s_lshl_b32 s{sTmp}, s{S_C}, 18
s_add_u32 s{sSt}, s{sSt}, s{sTmp}
v_lshrrev_b32 v{vB}, 2, v{V_LANE}
v_mul_u32_u24 v{vB}, 2688, v{vB}
v_lshl_add_u32 v{vQd}, v{vQd}, 4, v{vB}
s_lshl_b32 s82, s{S_O0}, 4
s_mul_i32 s{sTmp}, s{S_W}, {16*2688}
s_add_u32 s82, s82, s{sTmp}
s_lshr_b32 s{sTmp}, s{S_O0}, 3
s_add_u32 s{sTmp2}, s{S_O0}, 3
s_lshr_b32 s{sTmp2}, s{sTmp2}, 3
s_cmp_eq_u32 s{S_H}, 15
s_cselect_b32 s{sTmp2}, 7, s{sTmp2}
s_sub_u32 s{sTmp2}, s{sTmp2}, s{sTmp}
v_bfe_u32 v{vC}, v{V_LANE}, 4, 1
v_mul_u32_u24 v{vC}, s{sTmp2}, v{vC}
v_lshl_add_u32 v{vC}, v{vG}, 3, v{vC}
v_add_u32 v{vC}, s{sTmp}, v{vC}
v_and_b32 v{vB}, 15, v{V_LANE}
v_lshl_add_u32 v{vC}, v{vC}, 6, v{vB}
s_lshl_b32 s{sTmp}, s{S_W}, 4
v_add_u32 v{vC}, s{sTmp}, v{vC}
v_lshlrev_b32 v{vC}, {FSH}, v{vC}
v_add_u32 v{vFl}, {F_KV}, v{vC}
v_lshlrev_b32 v{vKo0}, 4, v{vA}
v_lshl_add_u32 v{vKo0}, v{vG}, 15, v{vKo0}
v_add_u32 v{vKo1}, 0x10000, v{vKo0}
v_lshrrev_b32 v{vA}, 2, v{vRho}
v_lshlrev_b32 v{vA}, 14, v{vA}
v_lshl_add_u32 v{vA}, v{vG}, 6, v{vA}
v_and_b32 v{vB}, 3, v{V_LANE}
v_lshl_add_u32 v{vVo}, v{vB}, 4, v{vA}
v_mov_b32 v{vIdx}, 0xdddddddd
s_lshl_b32 s{sTmp}, s{S_O0}, 15
s_lshl_b32 s{sK}, s{S_W}, 13
s_add_u32 s{sK}, s{sK}, s{sTmp}
s_add_u32 s{sK}, s{sK}, {WS_K}
s_lshl_b32 s{sV}, s{S_W}, 12
s_add_u32 s{sV}, s{sV}, s{sTmp}
s_add_u32 s{sV}, s{sV}, {WS_V}
s_lshl2_add_u32 s{sTmp2}, s{S_TILE}, s{S_W}
s_lshl_b32 s{sFo}, s{sTmp2}, 4
s_add_u32 s{sFo}, s{sFo}, s{S_H}
s_lshl_b32 s{sFo}, s{sFo}, {FSH}
s_add_u32 s{sFo}, s{sFo}, {F_O}
s_lshl_b32 s{sTmp2}, s{sTmp2}, 9
s_add_u32 s{sO0}, s{sTmp}, s{sTmp2}
s_add_u32 s{sO0}, s{sO0}, {WS_O}
s_add_u32 s{sO1}, s{sO0}, 0x10000
s_bitcmp1_b32 s{S_H}, 0
s_cselect_b64 s[{sOdd}:{sOdd+1}], -1, 0
s_cselect_b32 s{sMask}, -16, 0x0fffffff
s_mov_b32 s{sMask+1}, s{sMask}
v_mov_b32 v{vC}, 0x3e8b97f6
v_cmp_gt_u32 vcc, 32, v{V_LANE}
s_and_b64 s[78:79], vcc, s[{sOdd}:{sOdd+1}]
s_nor_b64 s[80:81], vcc, s[{sOdd}:{sOdd+1}]
v_cndmask_b32 v{vA}, v{vC}, 0, s[78:79]
v_cndmask_b32 v{vB}, v{vC}, 0, s[80:81]
s_mov_b32 s78, 0x3f803f80
s_mov_b32 s79, s78
v_xor_b32 v{vW1}, 64, v{vW0}
v_lshlrev_b32 v{vOs}, 4, v{vRho}
v_lshl_add_u32 v{vOs}, v{vG}, 15, v{vOs}
v_lshl_add_u32 v{vQw}, v{V_LANE}, 4, s{sLx}''')
srd(SRD_C, 28, WS_SIZE)
for st in range(7): e(f's_add_u32 s{sQo+st}, s{sQo+st}, s82')
def o_stores(r0, r1, tag):
    e(f'''s_bitcmp1_b32 s{S_H}, 0
    s_cbranch_scc1 L_ost_odd{tag}
    buffer_store_dwordx4 {vr(r0,4)}, v{vOs}, {sr(SRD_WS)}, s{sO0} offen sc1
    s_mov_b32 exec_hi, 0
    buffer_store_dwordx4 {vr(r1,4)}, v{vOs}, {sr(SRD_WS)}, s{sO1} offen sc1
    s_not_b64 exec, exec
    buffer_store_dwordx2 {vr(r1,2)}, v{vOs}, {sr(SRD_WS)}, s{sO1} offen sc1
    s_branch L_ost_done{tag}
    L_ost_odd{tag}:
    buffer_store_dwordx4 {vr(r1,4)}, v{vOs}, {sr(SRD_WS)}, s{sO1} offen sc1
    s_mov_b32 exec_hi, 0
    buffer_store_dwordx2 {vr(r0+2,2)}, v{vOs}, {sr(SRD_WS)}, s{sO0} offen offset:8 sc1
    s_not_b64 exec, exec
    buffer_store_dwordx4 {vr(r0,4)}, v{vOs}, {sr(SRD_WS)}, s{sO0} offen sc1
    L_ost_done{tag}:
    s_mov_b64 exec, -1''')
GS = OPT['gs']
if GS == 1:
    for s in range(1, 3): e('\n'.join(w_lines(s + 1) + x_chunk(s)))
elif GS == 0:
    for s in range(2, 7): e('\n'.join(w_lines(s)))
    for s in range(1, 3): e('\n'.join(x_chunk(s)))
else:
    e('\n'.join(x_chunk(1) + w_lines(2) + w_lines(3)))
stamp(0)
def x_reads(s):
    return [f'ds_read_b128 {vr(VX + 16*s + 4*ks, 4)}, v{vXr[ks]} offset:{(s%3)*4096}' for ks in range(4)]
e(f's_waitcnt vmcnt({(8, 12, 8)[GS]})')
arrive(1)
e('\n'.join(x_reads(0)))
stamp(1)
lwait(1)
e(f's_add_u32 s{S_NONCE}, s{S_NONCE}, 1')
stamp(2)
def w_reads(s):
    r = []
    for ks in range(4):
        for ct in range(2):
            for hf in range(2):
                d = VWF + 32 * (s & 1) + 8 * ks + 4 * ct + 2 * hf
                r.append(f'ds_read_b64_tr_b16 {vr(d,2)}, v{(vW0, vW1)[ct]} offset:{s*8192 + ks*2048 + hf*512}')
    return r
e('\n'.join(w_reads(0)))
e(f'''s_waitcnt lgkmcnt(0)
s_cmp_lg_u32 s{S_HG}, 0
s_cbranch_scc1 L_gemm_v''')
sQb, sQc = 82, 83
NE = OPT['wq_early']
def wq_dma(st):
    return [f's_add_u32 m0, s{sLx}, {4096 + 1024*st}', 's_nop 0', f'buffer_load_dwordx4 v{vQd}, {sr(SRD_B)}, s{sQo+st} offen lds']
SPIN = []
def gemm1(vpart):
    for s in range(7):
        M = []
        for ks in range(4):
            for ct in range(2):
                wf = vr(VWF + 32 * (s & 1) + 8 * ks + 4 * ct, 4); xf = vr(VX + 16 * s + 4 * ks, 4)
                acc = vr(VACC + 16 * ct, 16)
                a, b = (xf, wf) if vpart else (wf, xf)
                M.append(f'v_mfma_f32_32x32x16_bf16 {acc}, {a}, {b}, {"0" if s == 0 and ks == 0 else acc}')
        gaps = [[] for _ in range(8)]
        tag = f'{"v" if vpart else "k"}{s}'
        pre = []
        dm = []
        def add(l): dm.extend([(l[0], l[2])] + [(None, x) for x in l[3:]])
        if GS == 1:
            if s <= 2: add(w_lines(s + 4))
            if s <= 3: add(x_chunk(s + 3))
            chk = s + 1 if 1 <= s <= 5 else 0
            arr = s + 2 if s < 5 else 0
            n = 4 * sum(1 for c in (s + 2, s + 3) if c <= 6) + 2 * sum(1 for c in (s + 3, s + 4) if c <= 6)
        elif GS == 0:
            if s <= 3: add(x_chunk(s + 3))
            chk = arr = 0
            n = 4 * sum(1 for c in (s + 2, s + 3) if c <= 6)
            if s == 4:
                for i in range(min(NE, 4)): add(wq_dma(i))
                n += min(NE, 4)
            if s == 5:
                for i in range(4, NE): add(wq_dma(i))
                n += NE
        else:
            if s == 0: add(x_chunk(2)); add(w_lines(4))
            if s == 1: add(w_lines(5)); add(w_lines(6)); add(x_chunk(3)[:4])
            if s == 2: dm.extend([(None, x) for x in x_chunk(3)[4:]]); add(x_chunk(4))
            if s == 3: add(x_chunk(5))
            if s == 4: add(x_chunk(6))
            chk = {1: 2, 3: 3}.get(s, 0)
            arr = {0: 2, 2: 3}.get(s, 0)
            n = {0: 6, 1: 8, 2: 4, 3: 4, 4: 4, 5: 0}.get(s, 0)
        for i, (m, l) in enumerate(dm):
            if m: (pre if i == 0 else gaps[i - 1]).append(m)
            gaps[i].append(l)
        if chk:
            pre += [f'ds_read_b32 v31, v{V_GRP}']
            gaps[1] += [f's_branch L_wb_{tag}' if 0 else '', f'L_ws_{tag}:', 's_waitcnt lgkmcnt(0)', f'v_cmp_gt_u32 vcc, {chk}, v31', f'ds_read_b32 v31, v{V_GRP}', f's_cbranch_vccnz L_ws_{tag}']
        if s < 6:
            wr = w_reads(s + 1)
            for i, (p, q) in enumerate(((0, 2), (2, 6), (6, 10), (10, 13), (13, 16))): gaps[1 + i] += wr[p:q]
            g = OPT['xg']
            gaps[g] += [f's_waitcnt vmcnt({n})'] + x_reads(s + 1)
            if arr: gaps[g] += [f'v_mov_b32 v{V_T}, {arr}', f'ds_write_b32 v{V_OWN}, v{V_T}']
            gaps[7] += [f's_waitcnt lgkmcnt({1 if arr else 0})']
        e('\n'.join(pre))
        if OPT['gx'] & 1: M = ['s_nop 0'] * 8
        if OPT['gx'] & 2: gaps = [[x for x in g if 'tr_b16' not in x] for g in gaps]
        for i in range(8):
            e(M[i]); e('\n'.join(gaps[i]))
        stamp(14 + s)
gemm1(False)
e('s_branch L_gemm_done\nL_gemm_v:')
gemm1(True)
e('L_gemm_done:')
stamp(3)
e(f"""s_add_u32 s{sS1}, s{sSt}, s{sS2}
s_add_u32 s{sXb}, s{sSt}, 0x20000
s_add_u32 s{sCw}, s{sS1}, 0x20000
s_cmp_eq_u32 s{S_C}, 7
s_cbranch_scc1 L_nokv
s_nop 5""")
for q, so in enumerate((sSt, sS1, sXb, sCw)):
    for i in range(4*q, 4*q+4):
        e(f'v_cvt_pk_bf16_f32 v{VPK + i}, v{VACC + 2*i}, v{VACC + 2*i + 1}')
    e(f'buffer_store_dwordx4 {vr(VPK+4*q,4)}, v{vSt}, {sr(SRD_WS)}, s{so} offen sc1')
e('L_nokv:')
NM = max(NE, OPT['wq_mid'])
for st in range(NE, NM): e('\n'.join(wq_dma(st)))
stamp(4)
e(f'v_add_u32 v31, 16, v{V_GRP}')
lwait(1, addr=31)
e(f's_waitcnt vmcnt({NM - NE})')
publish(sFl, 31)
stamp(5)
for st in range(NM, 7): e('\n'.join(wq_dma(st)))
e(f's_waitcnt vmcnt({1 if NM == 7 else 0})')
arrive(7)
lwait(7)
stamp(6)
fill = [f'v_mov_b64 {vr(VV+2*i,2)}, s[78:79]' for i in range(16)] + [f'v_subrev_u32 v{vRr}, {L_X - L_RB}, v{vQw}']
for s in range(3):
    fill += f'''s_add_u32 s{sTmp}, s{S_W}, {1+s}
    s_and_b32 s{sTmp}, s{sTmp}, 3
    s_sub_u32 s{sTmp}, s{sTmp}, s{S_W}
    s_mul_i32 s{sTmp}, s{sTmp}, 12288
    v_add_u32 v{vQx[s]}, s{sTmp}, v{vQw}
    v_subrev_u32 v{vRb[s]}, {L_X - L_RB - 4096*s}, v{vQx[s]}'''.split('\n')
def q_reads(k):
    s, ks = divmod(k, 4)
    return [f'ds_read_b64_tr_b16 {vr(64 + 4*(k%8) + 2*hf, 2)}, v{vQr} offset:{ks*12288 + s*1024 + hf*256}' for hf in range(2)]
for k in range(6): e('\n'.join(q_reads(k)))
e('\n'.join(fill[:12])); fill = fill[12:]
zi = 0
for k in range(28):
    e(f's_waitcnt lgkmcnt({min(10, 2*(27-k))})')
    e(f'v_mfma_f32_32x32x16_bf16 {vr(VACC,16)}, {vr(64 + 4*(k%8), 4)}, {vr(VX + 4*k, 4)}, {"0" if k == 0 else vr(VACC,16)}')
    if k + 6 < 28: e('\n'.join(q_reads(k + 6)))
    while zi < 40 and VX + 2*zi + 1 < VX + 4*k - 4 and zi < 2*k:
        e(f'v_mov_b64 {vr(VX + 2*zi, 2)}, 0'); zi += 1
    if k >= 22 or k < 2:
        e('\n'.join(fill[:4])); fill = fill[4:]
    if k == OPT['pollk']: e(f'buffer_load_dword v31, v{vFl}, {sr(SRD_WS)}, 0 offen sc1')
assert zi == 40 and VX == VS + 48 and not fill
stamp(7)
def kv_loads(buf, i, srdn=SRD_C):
    return [f'buffer_load_dwordx4 {vr(VK + 8*buf, 4)}, v{vKo0}, {sr(srdn)}, s{sK} offen offset:{512*i} sc1',
            f'buffer_load_dwordx4 {vr(VK + 8*buf + 4, 4)}, v{vKo1}, {sr(srdn)}, s{sK} offen offset:{512*i} sc1',
            f's_mov_b64 exec, s[{sMask}:{sMask+1}]',
            f'buffer_load_dwordx4 {vr(VV + 8*buf, 4)}, v{vVo}, {sr(srdn)}, s{sV} offen offset:{256*i} sc1',
            f'buffer_load_dwordx4 {vr(VV + 8*buf + 4, 4)}, v{vVo}, {sr(srdn)}, s{sV} offen offset:{256*i + 128} sc1',
            's_mov_b64 exec, -1']
e('s_nop 11')
for r in range(16):
    m = vA if r < 4 else (vB if r >= 12 else vC)
    e(f'v_mul_f32 v{VACC + r}, v{m}, v{VACC + r}')
for i in range(8):
    e(f'v_cvt_pk_bf16_f32 v{VQ + 24 + i}, v{VACC + 2*i}, v{VACC + 2*i + 1}')
e(f"""ds_write_b128 v{vQw}, {vr(VQ+24,4)}
ds_write_b128 v{vQw}, {vr(VQ+28,4)} offset:1024""")
arrive(8)
poll(vFl, first_issued=OPT['pollk'] < 28, reg=31, sleep=OPT['ksleep'])
for t in range(3): e('\n'.join(kv_loads(t, t)))
OM = OPT['omode']
if OM:
    e(f'v_mov_b64 v[128:129], -1\nv_mov_b64 v[130:131], -1\nv_mov_b32 v{vSt}, s{S_NONCE}\nv_mov_b32 v31, 0')
    o_stores(128, 128, 'c')
stamp(8)
lwait(8)
for s in range(3):
    e(f'ds_read_b128 {vr(VQ+8*s,4)}, v{vQx[s]}\nds_read_b128 {vr(VQ+8*s+4,4)}, v{vQx[s]} offset:1024')
def qk(buf, slot, js):
    d = vr(VS + 16*slot, 16)
    return f'v_mfma_f32_32x32x16_bf16 {d}, {vr(VK + 8*buf + 4*js, 4)}, {vr(VQ + 8*slot + 4*js, 4)}, {"0" if js == 0 else d}'
def pv(buf, slot, js):
    return f'v_smfmac_f32_32x32x32_bf16 {vr(VO + 16*slot, 16)}, {vr(VV + 8*buf + 4*js, 4)}, {vr(VS + 16*slot + 8*js, 8)}, v{vIdx}'
def exps(s): return [f'v_exp_f32 v{VS + 16*s + r}, v{VS + 16*s + r}' for r in range(16)]
def unit(t, s):
    ex = exps(s)
    nb = t if s < 3 else (t + 1) & 3
    pb = t if s > 0 else (t - 1) & 3
    if s == 3: e('s_waitcnt vmcnt(8)')
    e(qk(nb, (s+1) & 3, 0)); e('\n'.join(ex[0:4]))
    e(qk(nb, (s+1) & 3, 1)); e('\n'.join(ex[4:8]))
    e(pv(pb, (s-1) & 3, 0))
    if s == 1:
        kl = kv_loads((t + 3) & 3, t + 3)
        if t == 2 and OM:
            kl[-1:-1] = ['s_mov_b64 exec, 1', f'buffer_store_dword v{vSt}, v31, {sr(SRD_C)}, s{sFo} offen sc1']
        e('\n'.join(kl))
        if t == 0:
            e(f's_cmp_eq_u32 s{sIt}, 3\ns_cselect_b32 s{SRD_C+2}, 0, s{SRD_C+2}')
        if t == 3:
            e(f's_add_u32 s{sK}, s{sK}, 2048\ns_add_u32 s{sV}, s{sV}, 1024\ns_add_u32 s{sIt}, s{sIt}, 1\ns_cmp_lg_u32 s{sIt}, 4')
    e('\n'.join(ex[8:12]))
    e(pv(pb, (s-1) & 3, 1)); e('\n'.join(ex[12:16]))
e(f's_mov_b32 s{sIt}, 0\ns_waitcnt vmcnt({11 if OM else 8}) lgkmcnt(0)')
stamp(9)
e(qk(0, 0, 0)); e(qk(0, 0, 1))
e('s_setprio 0\ns_nop 8\ns_branch L_att_in' if OPT['prio'] else 's_nop 9\ns_branch L_att_in')
e('L_att:')
unit(3, 2); unit(3, 3)
e('L_att_in:')
for t in range(4):
    for s in range(4):
        if (t, s) < (3, 2): unit(t, s)
e('s_cbranch_scc1 L_att')
if OPT['prio']: e(f"s_setprio {OPT['pm']}")
def rbw(s): return [f'ds_write_b128 v{vRb[s]}, {vr(VO + 16*s + 4*i, 4)} offset:{1024*i}' for i in range(4)]
ex = exps(2); w0 = rbw(0)
e(qk(3, 3, 0)); e('\n'.join(ex[0:4])); e(qk(3, 3, 1)); e('\n'.join(ex[4:7] + [w0[0]]))
e(pv(3, 1, 0)); e('\n'.join(ex[7:10] + [w0[1]])); e(pv(3, 1, 1)); e('\n'.join(ex[10:13] + [w0[2]] + ex[13:16] + [w0[3]]))
ex = exps(3); w1 = rbw(1); w2 = rbw(2)
e(pv(3, 2, 0)); e('\n'.join(ex[0:3])); e(pv(3, 2, 1))
e('\n'.join([w1[0]] + ex[3:5] + [w1[1]] + ex[5:7] + [w1[2]] + ex[7:9] + [w1[3]] + ex[9:10]))
e(pv(3, 3, 0))
e('\n'.join([w2[0]] + ex[10:12] + [w2[1]] + ex[12:14] + [w2[2]] + ex[14:16] + [w2[3]]))
arrive(9)
e(pv(3, 3, 1))
stamp(10)
lwait(9)
for i in range(12): e(f'ds_read_b128 {vr(VS + 4*i, 4)}, v{vRr} offset:{1024*i}')
OA = VO + 48
for s in range(3):
    e(f's_waitcnt lgkmcnt({8 - 4*s})')
    for i in range(8): e(f'v_pk_add_f32 {vr(OA+2*i,2)}, {vr(OA+2*i,2)}, {vr(VS+16*s+2*i,2)}')
e(f's_mov_b32 s{sIt}, {1 if OPT["force_fb"] else 0}')
e(f'''L_norm:
v_cndmask_b32 v{vA}, v{OA+12}, v{OA}, s[{sOdd}:{sOdd+1}]
v_max3_f32 v{vC}, abs(v{OA}), abs(v{OA+1}), abs(v{OA+2})
v_mov_b32 v{vB}, v{vA}
v_max3_f32 v{vC}, abs(v{OA+3}), abs(v{OA+4}), v{vC}
v_max3_f32 v{vC}, abs(v{OA+5}), abs(v{OA+6}), v{vC}
v_permlane32_swap_b32 v{vA}, v{vB}
v_max3_f32 v{vC}, abs(v{OA+7}), abs(v{OA+8}), v{vC}
v_cndmask_b32 v{vB}, v{vB}, v{vA}, s[{sOdd}:{sOdd+1}]
v_max3_f32 v{vC}, abs(v{OA+9}), abs(v{OA+10}), v{vC}
v_rcp_f32 v{vA}, v{vB}
v_max3_f32 v{vC}, abs(v{OA+11}), abs(v{OA+12}), v{vC}
v_max3_f32 v{vC}, abs(v{OA+13}), abs(v{OA+14}), v{vC}
v_max_f32 v{vC}, abs(v{OA+15}), v{vC}
v_cmp_nle_f32 vcc, 0x30800000, v{vB}
s_mov_b64 s[78:79], vcc
v_cmp_nge_f32 vcc, 0x4e800000, v{vB}
s_or_b64 s[78:79], s[78:79], vcc
v_cmp_ngt_f32 vcc, 0x7f000000, v{vC}
s_or_b64 vcc, s[78:79], vcc''')
if OPT['force_fb']:
    e(f's_cmp_eq_u32 s{sIt}, 1\ns_cbranch_scc1 L_fb')
e('s_cbranch_vccnz L_fb0\nL_norm2:')
for i in range(8): e(f'v_pk_mul_f32 {vr(OA+2*i,2)}, {vr(OA+2*i,2)}, {vr(vA,2)} op_sel_hi:[1,0]')
for i in range(8): e(f'v_cvt_pk_bf16_f32 v{VS+i}, v{OA+2*i}, v{OA+2*i+1}')
o_stores(VS, VS + 4, '')
stamp(11)
if OM == 2:
    e(f's_add_u32 s{sFo}, s{sFo}, {F_H - F_O}'); publish(sFo, vA)
if OPT['obar']: e('s_barrier')
if OM == 0:
    e('s_waitcnt vmcnt(0)'); publish(sFo, vA)
stamp(12)
prof_out()
e('s_endpgm')

for tag, st in SPIN:
    e(f'L_ws_{tag}:'); lwait(st); e(f's_branch L_wb_{tag}')
sec('fb')
e(f'''L_fb0:
s_cmp_eq_u32 s{sIt}, 2
s_cbranch_scc1 L_norm2
L_fb:
s_waitcnt vmcnt(0)
s_lshl_b32 s{sTmp}, s{S_O0}, 15
s_add_u32 s{sK}, s{sTmp}, {WS_K}
s_add_u32 s{sV}, s{sTmp}, {WS_V}
v_mov_b32 v{vC}, 0xff800000
s_mov_b32 s{sIt}, 0
L_fb1:''')
e('\n'.join(kv_loads(0, 0, SRD_WS)[:2]))
e('s_waitcnt vmcnt(0)')
e(qk(0, 3, 0)); e(qk(0, 3, 1)); e('s_nop 11')
for i in range(8): e(f'v_max3_f32 v{vC}, v{VS+48+2*i}, v{VS+49+2*i}, v{vC}')
e(f'''s_add_u32 s{sK}, s{sK}, 512
s_add_u32 s{sIt}, s{sIt}, 1
s_cmp_lg_u32 s{sIt}, 64
s_cbranch_scc1 L_fb1
v_mov_b32 v{vA}, v{vC}
s_sub_u32 s{sK}, s{sK}, 0x8000
s_mov_b32 s{sIt}, 0
v_permlane32_swap_b32 v{vA}, v{vC}
v_max_f32 v{vC}, v{vA}, v{vC}''')
for i in range(8): e(f'v_mov_b64 {vr(OA+2*i,2)}, 0')
e('L_fb2:')
e('\n'.join(kv_loads(0, 0, SRD_WS)))
e('s_waitcnt vmcnt(0)')
e(qk(0, 3, 0)); e(qk(0, 3, 1)); e('s_nop 11')
for i in range(16): e(f'v_sub_f32 v{VS+48+i}, v{VS+48+i}, v{vC}')
for i in range(16): e(f'v_exp_f32 v{VS+48+i}, v{VS+48+i}')
e('s_nop 1')
e(pv(0, 3, 0)); e(pv(0, 3, 1))
e(f'''s_add_u32 s{sK}, s{sK}, 512
s_add_u32 s{sV}, s{sV}, 256
s_add_u32 s{sIt}, s{sIt}, 1
s_cmp_lg_u32 s{sIt}, 64
s_cbranch_scc1 L_fb2
s_mov_b32 s{sIt}, 2
s_nop 11
s_branch L_norm''')

sD0, sD, sHw, sDs, sTab, sA, sB, sLd, sSk, sIt2, sFlU, sInv, sUns, sSel, sUl, sOl, sCh0 = range(60, 77)
sUs, sOut, sHm = 78, 80, 82
sE2, sE0, sE3, sKd = 84, 85, 86, 87
OUTM = 'sc1' if OPT['outsc'] & 1 else ''
OUTM2 = 'sc1' if OPT['outsc'] & 2 else ''
a0, a1, a2, a3 = 5, 6, 7, 9
vPar = 10
vKc = 18
vRa, vRb_, vKd, vKd1, vKd2, vUs, vFu, vE1, vE1b, vE2, vSa, vSb, vS1, vFr = range(20, 34)
vAc = 40
vOne, vScl, vAdd, vC0 = range(56, 60)
vOp = 64
vY = 128
vXt = 144
vAn = 166
vX1 = 172
T0, T1 = 160, 176
vZ = 192
U = 204
vZer = 220
vUa, vCd, vG_, vZp, vKp, vF_, vL16, vXo, vXp, vTr, vYl, vYs, vFy = range(224, 237)
vWoD = 238
vWoR = 240
vOl, vFo, vBw, vBr, vOut = range(242, 247)
def hi():
    if OPT['prio']: e('s_setprio 3')
def lo():
    if OPT['prio']: e(f"s_setprio {OPT['ps']}")
ROLE[0] = 1
sec('ssm0')
e(f"""s_cmp_{'eq' if OPT['only'] != 2 else 'le'}_u32 s{S_C}, 7
s_cbranch_scc1 L_ssm_idle
s_lshr_b32 s{sDs}, s{S_W}, 1
s_lshl_b32 s{sD0}, s{S_C}, 6
s_lshl1_add_u32 s{sD0}, s{S_J}, s{sD0}
s_add_u32 s{sD}, s{sD0}, s{sDs}
s_mul_i32 s{sTab}, s{S_W}, {TABSZ}
s_add_u32 s{sTab}, s{sTab}, {L_TAB}
s_lshl1_add_u32 s{sA}, s{sD0}, s{S_W}
s_lshl_b32 s{sA}, s{sA}, 8
v_lshl_add_u32 v{a0}, v{V_LANE}, 2, s{sA}
v_lshrrev_b32 v{a1}, 3, v{V_LANE}
v_mul_u32_u24 v{a1}, 896, v{a1}
v_and_b32 v{a2}, 7, v{V_LANE}
v_lshl_add_u32 v{a1}, v{a2}, 4, v{a1}
v_add_u32 v{a2}, {7168-1024}, v{a1}
s_lshl2_add_u32 s{sFlU}, s{S_J}, s{S_W}
s_mul_i32 s{sA}, s{sFlU}, {16*896}
s_lshl_b32 s{sB}, s{S_C}, 7
s_add_u32 s{sA}, s{sA}, s{sB}
s_mov_b32 m0, s{sTab}
s_lshl_b32 s{sB}, s{sD0}, 1
s_mov_b32 s{SRD_A+2}, {2048*896}
s_mov_b32 s{SRD_A+3}, 0x20000
s_waitcnt lgkmcnt(0)
s_load_dword s{sLd}, s[14:15], s{sB}
s_load_dword s{S_NONCE}, s[28:29], 0
s_load_dword s{sSk}, s[16:17], s{sB}
s_mov_b64 s[{SRD_A}:{SRD_A+1}], s[4:5]
global_load_dword v{vPar+0}, v{a0}, s[6:7]
global_load_dword v{vPar+1}, v{a0}, s[8:9]
global_load_dword v{vPar+2}, v{a0}, s[10:11]
global_load_dword v{vPar+3}, v{a0}, s[12:13]
buffer_load_dwordx4 v{a1}, {sr(SRD_A)}, s{sA} offen lds
buffer_load_dwordx4 v{a2}, {sr(SRD_A)}, s{sA} offen offset:1024 lds
s_barrier
s_branch L_ssm""")
sec('ssm')
e('L_ssm:')
if OPT['abl'] == 1:
    arrive(1); e('s_waitcnt vmcnt(0) lgkmcnt(0)\ns_endpgm')
lo()
srd(SRD_WS, 28, WS_SIZE)
e(f"""v_add_u32 v{V_GRP}, 16, v{V_GRP}
s_lshl_b32 s{sUs}, s{sFlU}, 7
s_lshl_b32 s{sA}, s{S_C}, 18
s_add_u32 s{sUs}, s{sUs}, s{sA}
s_add_u32 s{sUs}, s{sUs}, {WS_U}
s_add_u32 s{sUs+1}, s{sUs}, 0x20000
s_lshl_b32 s{sA}, s{S_C}, {7 + FSH}
s_add_u32 s{sA}, s{sA}, {F_U}
s_lshl_b32 s{sFlU}, s{sFlU}, {FSH}
s_add_u32 s{sFlU}, s{sFlU}, s{sA}
v_min_u32 v{a0}, 32, v{V_LANE}
s_lshl_b32 s{sB}, s{S_W}, 5
s_sub_u32 s{sB}, s{sB}, 1
v_add_u32 v{a0}, s{sB}, v{a0}
v_max_i32 v{a0}, 0, v{a0}
v_lshl_add_u32 v{vFu}, v{a0}, {FSH}, s{sA}
s_and_b32 s{sHw}, s{S_W}, 1
s_cselect_b64 s[{sHm}:{sHm+1}], -1, 0
s_mov_b32 s{sE0}, 0x05040504
s_mov_b32 s{sE3}, 0x01000100
s_cselect_b32 s{sE2}, s{sE3}, 0x01000302
v_and_b32 v{a0}, 15, v{V_LANE}
v_lshrrev_b32 v{a1}, 4, v{V_LANE}
v_lshl_add_u32 v{vRb_}, v{a1}, 4, s{sTab}
v_mul_u32_u24 v{a2}, {TROW}, v{a0}
v_add_u32 v{vRa}, v{a2}, v{vRb_}
s_mul_i32 s{sKd}, s{sDs}, 3072
s_add_u32 s{sKd}, s{sKd}, {L_KD}
s_lshl_b32 s{sA}, s{sHw}, 4
v_add_u32 v{a0}, s{sA}, v{a0}
v_lshlrev_b32 v{a2}, 9, v{a1}
v_lshl_add_u32 v{a2}, v{a0}, 2, v{a2}
s_add_u32 s{sA}, s{sKd}, 1024
v_add_u32 v{vKd2}, s{sA}, v{a2}
v_max_u32 v{a2}, 1, v{a1}
v_sub_u32 v{a2}, 5, v{a2}
v_lshlrev_b32 v{a0}, v{a2}, v{a0}
v_lshlrev_b32 v{a2}, 3, v{a1}
s_mov_b32 s{sA}, 0x60400100
v_bfe_u32 v{a3}, s{sA}, v{a2}, 8
v_lshl_add_u32 v{a0}, v{a3}, 3, v{a0}
v_add_u32 v{vKd}, s{sKd}, v{a0}
s_mov_b32 s{sA}, 0x80040404
v_bfe_u32 v{a3}, s{sA}, v{a2}, 8
v_add_u32 v{vKd1}, v{a3}, v{vKd}
v_bfe_u32 v{a0}, v{V_LANE}, 2, 2
v_and_b32 v{a3}, 1, v{V_LANE}
v_lshl_or_b32 v{a2}, v{a3}, 3, v{a0}
v_lshl_add_u32 v{vTr}, v{a2}, 7, v{vRb_}
v_and_b32 v{a2}, 2, v{V_LANE}
v_lshl_add_u32 v{vTr}, v{a2}, 2, v{vTr}
v_lshlrev_b32 v{vL16}, 4, v{V_LANE}
v_lshrrev_b32 v{a1}, 3, v{V_LANE}
v_and_b32 v{a2}, 0x70, v{vL16}
v_lshl_add_u32 v{vUs}, v{a1}, 14, v{a2}
v_lshrrev_b32 v{a1}, 1, v{V_LANE}
v_lshlrev_b32 v{vUa}, 6, v{a1}
v_lshl_add_u32 v{vUa}, v{a3}, 4, v{vUa}
s_lshr_b32 s{sA}, s{sD0}, 2
s_lshl_b32 s{sA}, s{sA}, 14
s_and_b32 s{sB}, s{sD0}, 3
s_lshl4_add_u32 s{sA}, s{sB}, s{sA}
s_lshl_b32 s{sB}, s{S_W}, 12
s_add_u32 s{sA}, s{sA}, s{sB}
s_add_u32 s{sUl}, s{sA}, {WS_U - 64}
v_mul_u32_u24 v{a2}, {UC_D}, v{a3}
v_lshl_add_u32 v{a2}, v{a1}, 4, v{a2}
s_lshl_b32 s{sA}, s{S_W}, 10
s_add_u32 s{sA}, s{sA}, {L_UC + 64}
v_add_u32 v{vCd}, s{sA}, v{a2}
v_mul_u32_u24 v{a3}, 0x0404, v{a3}
v_lshlrev_b32 v{a3}, 16, v{a3}
v_add_u32 v{a3}, 0x01000504, v{a3}
v_mov_b32 v{vS1}, 0x03020302
v_cndmask_b32 v{vS1}, v{vS1}, v{a3}, s[{sHm}:{sHm+1}]
v_lshrrev_b32 v{a1}, 5, v{V_LANE}
v_mul_u32_u24 v{a3}, 0x0202, v{a1}
v_sub_u32 v{vSb}, 0x01000302, v{a3}
v_lshl_or_b32 v{a3}, v{a3}, 16, v{a3}
v_sub_u32 v{vSa}, 0x05040706, v{a3}
v_lshrrev_b32 v{a3}, v{a1}, v{vL16}
v_lshl_add_u32 v{a3}, v{a1}, 8, v{a3}
v_add_u32 v{vE1}, s{sKd}, v{a3}
v_lshlrev_b32 v{a3}, 2, v{a1}
v_sub_u32 v{vE1b}, v{vE1}, v{a3}
s_lshl_b32 s{sB}, s{sHw}, 9
s_add_u32 s{sA}, s{sKd}, s{sB}
s_add_u32 s{sA}, s{sA}, 512
v_lshl_add_u32 v{vE2}, v{V_LANE}, 2, s{sA}
v_add_u32 v{vXo}, s{sTab}, v{vL16}
s_xor_b32 s{sA}, s{S_W}, 1
s_mul_i32 s{sA}, s{sA}, {TABSZ}
s_add_u32 s{sA}, s{sA}, {L_TAB}
v_add_u32 v{vXp}, s{sA}, v{vL16}
s_mul_i32 s{sA}, s{sDs}, 6144
s_add_u32 s{sA}, s{sA}, {L_KP}
s_add_u32 s{sInv}, s{sA}, s{sB}
s_mul_i32 s{sB}, s{sHw}, 3072
s_add_u32 s{sB}, s{sB}, s{sA}
v_lshl_add_u32 v{a2}, v{a1}, 10, v{vL16}
v_add_u32 v{vG_}, s{sB}, v{a2}
v_mov_b64 {vr(vZer,2)}, 0
v_mov_b64 {vr(vZer+2,2)}, 0
ds_write_b128 v{vG_}, {vr(vZer,4)}
v_and_b32 v{a3}, 3, v{V_LANE}
v_mul_u32_u24 v{a2}, {UC_S}, v{a0}
v_lshl_add_u32 v{a2}, v{a3}, 4, v{a2}
s_mul_i32 s{sB}, s{sDs}, {UC_D}
s_add_u32 s{sB}, s{sB}, {L_UC}
v_add_u32 v{vZp}, s{sB}, v{a2}
v_mul_u32_u24 v{a2}, {1536 - 4}, v{a3}
v_lshl_add_u32 v{a2}, v{V_LANE}, 2, v{a2}
v_add_u32 v{vKp}, s{sInv}, v{a2}
v_xor_b32 v{a3}, 3, v{a3}
v_mul_u32_u24 v{a3}, {UC_S}, v{a3}
v_bfe_u32 v{a2}, v{V_LANE}, 2, 3
v_lshl_add_u32 v{a3}, v{a2}, 3, v{a3}
v_lshlrev_b32 v{a1}, 4, v{a1}
v_sub_u32 v{a3}, v{a3}, v{a1}
s_lshl_b32 s{sA}, s{sHw}, 5
s_sub_u32 s{sB}, s{sB}, s{sA}
s_add_u32 s{sB}, s{sB}, 56
v_add_u32 v{vF_}, s{sB}, v{a3}
v_add_u32 v{vG_}, {512 - 80}, v{vG_}
v_mov_b32 v{vOne}, 0x3c00
s_waitcnt lgkmcnt(0)
s_add_u32 s{S_NONCE}, s{S_NONCE}, 1""")
arrive(1)
e(f"""s_lshl_b32 s{sA}, s{sDs}, 4
s_lshr_b32 s{sLd}, s{sLd}, s{sA}
s_lshl_b32 s{sLd}, s{sLd}, 16
s_lshr_b32 s{sSk}, s{sSk}, s{sA}
s_lshl_b32 s{sSk}, s{sSk}, 16
v_mov_b32 v{a0}, s{sLd}
v_mul_f32 v{a0}, 0x3fb8aa3b, v{a0}
v_exp_f32 v{a0}, v{a0}
s_cmp_eq_u32 s{sHw}, 0
s_cselect_b32 s{sSk}, s{sSk}, 0
v_cvt_pk_bf16_f32 v{a0}, v{a0}, v{a0}
v_and_b32 v{vScl}, 0xffff0000, v{a0}
v_mul_f32 v{vKc}, 0xbfb8aa3b, v{vScl}
v_mul_f32 v{vKc+1}, 0.15915494, v{vScl}
v_mov_b32 v{vAdd}, 0
v_add_f32 v{vScl}, v{vScl}, v{vScl}
v_writelane_b32 v{vAdd}, s{sSk}, 0
s_mov_b32 s{sIt2}, 0
s_mov_b32 s{sSel}, 0x01000c0c""")
for i in range(8): e(f'v_mov_b64 {vr(vAc+2*i,2)}, 0')
stamp(0)
e(f"""s_waitcnt vmcnt(2)
v_and_b32 v{a0}, 0x7f807f80, v{vPar+2}
v_and_b32 v{a1}, 0x7f807f80, v{vPar+3}
v_pk_max_u16 v{a0}, v{a0}, v{a1}
v_lshlrev_b32 v{a1}, 16, v{a0}
v_max_u32 v{a0}, v{a0}, v{a1}
s_waitcnt vmcnt(0)""")
for q, n in enumerate((1, 2, 4, 8)):
    z, hf = divmod(q, 2)
    e(f'ds_read_b64_tr_b16 {vr(U + 4*z + 2*hf, 2)}, v{vTr} offset:{64*z + 512*hf}')
    e(f's_nop 0\nv_max_u32_dpp v{a0}, v{a0}, v{a0} row_ror:{n} row_mask:0xf bank_mask:0xf')
e(f"""s_nop 0
v_readlane_b32 s{sA}, v{a0}, 0
v_readlane_b32 s{sB}, v{a0}, 16
v_readlane_b32 s{sInv}, v{a0}, 32
v_readlane_b32 s{sUns}, v{a0}, 48
s_max_u32 s{sA}, s{sA}, s{sB}
s_max_u32 s{sUns}, s{sUns}, s{sInv}
s_max_u32 s{sUns}, s{sUns}, s{sA}
s_and_b32 s{sUns}, s{sUns}, 0x7f800000
s_min_u32 s{sUns}, s{sUns}, 0x7e800000
s_sub_u32 s{sInv}, 0x7f000000, s{sUns}
v_mul_f32 v{vScl}, s{sUns}, v{vScl}""")
hi()
e(f"""s_waitcnt lgkmcnt(0)
buffer_store_dwordx4 {vr(U,4)}, v{vUs}, {sr(SRD_WS)}, s{sUs} offen sc1
buffer_store_dwordx4 {vr(U+4,4)}, v{vUs}, {sr(SRD_WS)}, s{sUs+1} offen sc1""")
lo()
e(f'ds_write_addtid_b32 v{vOne}')
stamp(1)
if OPT['abl'] == 2: e('s_endpgm')
def cm(jobs, conj):
    ng = 'neg_hi:[1,0,0]' if conj else 'neg_lo:[1,0,0]'
    return [f'v_pk_mul_f16 v{d}, v{x}, v{w} op_sel_hi:[1,0]' for d, x, w in jobs] + \
           [f'v_pk_fma_f16 v{d}, v{x}, v{w}, v{d} op_sel:[1,1,0] op_sel_hi:[0,1,1] {ng}' for d, x, w in jobs]
def wr(reg): return f'ds_write_addtid_b32 v{reg} offset:{TROW*(reg - vY)}'
assert vXt == vY + 16
zA, zB, tA, tB, pA, pB = vZ, vZ+2, vZ+4, vZ+6, vZ+8, vZ+10
X = vXt; Y = vY
an = {1: vAn, 2: vAn+1, 4: vAn+2, 8: Y+1, 16: Y+2, 32: Y+4, 64: Y+8, 128: X+21, 256: vAn+3, 512: vAn+4, 1024: vAn+5}
e('L_kg:')
stamp(14)
seq = f"""v_perm_b32 v{pA}, v{vPar}, v{vPar}, s{sSel}
v_mul_f32 v{pA}, 0x3fb8aa3b, v{pA}
v_exp_f32 v{pA}, v{pA}
v_perm_b32 v{pA+1}, v{vPar+1}, v{vPar+1}, s{sSel}
v_perm_b32 v{tA}, v{vPar+2}, v{vPar+2}, s{sSel}
v_perm_b32 v{tA+1}, v{vPar+3}, v{vPar+3}, s{sSel}
v_cvt_pk_bf16_f32 v{pA}, v{pA}, v{pA}
v_mul_f32 v{tA}, s{sInv}, v{tA}
v_and_b32 v{pA}, 0xffff0000, v{pA}
v_mul_f32 v{tA+1}, s{sInv}, v{tA+1}
v_pk_mul_f32 {vr(pA,2)}, {vr(pA,2)}, {vr(vKc,2)}
v_cvt_pk_f16_f32 v{X}, v{tA}, -v{tA+1}
v_mul_f32 v{pB}, 0x42800000, v{pA}
v_mul_f32 v{pB+1}, 0x42800000, v{pA+1}
v_exp_f32 v{pA}, v{pA}
v_fract_f32 v{pA+1}, v{pA+1}
v_exp_f32 v{pB}, v{pB}
v_fract_f32 v{pB+1}, v{pB+1}
v_cos_f32 v{zA}, v{pA+1}
v_sin_f32 v{zA+1}, v{pA+1}
v_cos_f32 v{zB}, v{pB+1}
v_sin_f32 v{zB+1}, v{pB+1}
v_pk_mul_f32 {vr(zA,2)}, {vr(zA,2)}, {vr(pA,2)} op_sel_hi:[1,0]
v_pk_mul_f32 {vr(zB,2)}, {vr(zB,2)}, {vr(pB,2)} op_sel_hi:[1,0]""".split('\n')
for st in range(6):
    chains = [(zA, tA, an[1 << st], st < 5)] + ([(zB, tB, an[64 << st], st < 4)] if st < 5 else [])
    for z, t, d, sq in chains:
        if sq: seq.append(f'v_pk_mul_f32 {vr(t,2)}, {vr(z,2)}, {vr(z,2)} op_sel_hi:[0,1]')
    for z, t, d, sq in chains: seq.append(f'v_cvt_pk_f16_f32 v{d}, v{z}, v{z+1}')
    for z, t, d, sq in chains:
        if sq: seq.append(f'v_pk_fma_f32 {vr(z,2)}, {vr(z,2)}, {vr(z,2)}, {vr(t,2)} op_sel:[1,1,0] op_sel_hi:[0,1,1] neg_lo:[1,0,0]')
seq += cm([(X+1, X, an[1]), (X+2, X, an[2]), (X+4, X, an[4]), (X+8, X, an[256]), (X+12, X, an[512]), (X+16, X, an[1024])], True)
seq += cm([(Y+3, Y+1, Y+2), (Y+12, Y+4, Y+8), (Y+5, Y+4, Y+1), (Y+6, Y+4, Y+2), (Y+9, Y+8, Y+1), (Y+10, Y+8, Y+2)], False)
seq += cm([(X+3, X+1, an[2]), (X+5, X+1, an[4]), (X+6, X+2, an[4]), (X+9, X+2, an[256]), (X+10, X+4, an[256]), (X+13, X+4, an[512]),
           (X+14, X+8, an[512]), (X+17, X+8, an[1024]), (X+18, X+12, an[1024]), (X+20, X+16, an[1024])], True)
seq += cm([(Y+7, Y+4, Y+3), (Y+11, Y+8, Y+3), (Y+13, Y+12, Y+1), (Y+14, Y+12, Y+2), (Y+15, Y+12, Y+3)], False)
seq += cm([(X+7, X+3, an[4]), (X+11, X+6, an[256]), (X+15, X+10, an[512]), (X+19, X+14, an[1024])], True)
e('\n'.join(seq))
stamp(15)
if OPT['kgw']:
    e(f'v_subrev_u32 v{a0}, 16, v{V_GRP}'); lwait(OPT['kgw'], addr=a0)
hi()
if OPT['abl'] != 4: e('\n'.join(wr(r) for r in range(Y + 1, X + 22)))
for k in range(4):
    o = vOp + 16*k
    e(f"""ds_read_b128 {vr(o,4)}, v{vRa} offset:{64*k}
    ds_read_b128 {vr(o+4,4)}, v{vRb_} offset:{37*TROW + 64*k}
    ds_read_b128 {vr(o+8,4)}, v{vRa} offset:{16*TROW + 64*k}
    ds_read_b128 {vr(o+12,4)}, v{vRa} offset:{32*TROW + 64*k}""")
stamp(16)
def mf(c, a, b): return f'v_mfma_f32_16x16x32_f16 {vr(c,4)}, {vr(a,4)}, {vr(b,4)}, {vr(c,4)}'
late_m = []
for k in range(4):
    o = vOp + 16*k; y1 = vX1 + 4*(k & 1)
    p = cm([(y1+r, o+r, o+4+r) for r in range(4)], False)
    e(f's_waitcnt lgkmcnt({12 - 4*k})')
    e('\n'.join([mf(vAc, o+8, o)] + p[0:2] + late_m[:1] + p[2:4] + [mf(vAc+4, o+12, o)] + p[4:6] + late_m[1:] + p[6:8]))
    late_m = [mf(vAc+8, o+8, y1), mf(vAc+12, o+12, y1)]
e(f"""s_add_u32 s{sSel}, s{sSel}, 0x02020000
s_add_u32 s{sIt2}, s{sIt2}, 1
s_cmp_lg_u32 s{sIt2}, 2""")
e('\n'.join(late_m))
if OPT['upub'] == 1:
    e('s_cbranch_scc0 L_kg_e\ns_waitcnt vmcnt(0)'); publish(sFlU, a0); lo(); e('s_branch L_kg\nL_kg_e:')
else:
    lo(); e('s_cbranch_scc1 L_kg'); hi(); e('s_waitcnt vmcnt(0)'); publish(sFlU, a0)
lo()
stamp(17)
if OPT['abl'] in (4, 8): e('s_endpgm')
for i in range(8): e(f'v_mul_f32 v{vAc+i}, v{vScl}, v{vAc+i}')
e(f's_cmp_eq_u32 s{sHw}, 0')
for i in range(8, 16): e(f'v_mul_f32 v{vAc+i}, v{vScl}, v{vAc+i}')
e('s_cbranch_scc1 L_kx')
for i in range(8): e(f'v_swap_b32 v{vAc+i}, v{vAc+8+i}')
e(f"""L_kx:
ds_write_b128 v{vXo}, {vr(vAc+8,4)}
ds_write_b128 v{vXo}, {vr(vAc+12,4)} offset:1024""")
arrive(2)
e(f'v_add_f32 v{vAc}, v{vAdd}, v{vAc}')
hi()
e(f'buffer_load_dword v{vFr}, v{vFu}, {sr(SRD_WS)}, 0 offen sc1')
lo()
stamp(18)
lwait(2)
e(f"""ds_read_b128 {vr(vAc+8,4)}, v{vXp}
ds_read_b128 {vr(vAc+12,4)}, v{vXp} offset:1024
s_cmp_eq_u32 s{S_W}, 0
s_cselect_b64 s[88:89], 3, 0
s_mov_b32 s{sIt2}, 4
s_waitcnt lgkmcnt(0)""")
for i in range(4): e(f'v_pk_add_f32 {vr(vAc+2*i,2)}, {vr(vAc+2*i,2)}, {vr(vAc+8+2*i,2)}')
for i in range(4): e(f'v_cvt_pk_bf16_f32 v{vAc+8+i}, v{vAc+2*i}, v{vAc+2*i+1}')
e(f"""ds_write_b32 v{vKd}, v{vAc+8}
ds_write_b32 v{vKd1}, v{vAc+9}
ds_write_b16 v{vKd2}, v{vAc+10}
ds_write_b16_d16_hi v{vKd2}, v{vAc+10} offset:128
ds_write_b16 v{vKd2}, v{vAc+11} offset:256
ds_write_b16_d16_hi v{vKd2}, v{vAc+11} offset:384""")
arrive(3)
hi()
poll(vFu, first_issued=True, reg=vFr, sleep=OPT['usleep'])
for k in range(2):
    e(f"""buffer_load_dwordx4 {vr(U+8*k+4,4)}, v{vUa}, {sr(SRD_WS)}, s{sUl} offen offset:{64 + 2048*k} sc1
    buffer_load_dwordx2 {vr(U+8*k+2,2)}, v{vUa}, {sr(SRD_WS)}, s{sUl} offen offset:{8 + 2048*k} sc1""")
lo()
lwait(3)
stamp(2)
E = 96
e(f"""ds_read2_b32 {vr(E+6,2)}, v{vE2} offset0:64 offset1:65
s_cmp_lg_u32 s{sHw}, 0
s_cbranch_scc1 L_ex1
ds_read_b64 {vr(E,2)}, v{vE1}
ds_read2_b32 {vr(E+2,2)}, v{vE1b} offset0:2 offset1:3
ds_write_b128 v{vZp}, {vr(vZer,4)}
s_waitcnt lgkmcnt(1)
v_perm_b32 v{E+8}, v{E+3}, v{E+2}, v{vSa}
v_perm_b32 v{E+9}, v{E+2}, v{E+2}, v{vSb}
v_perm_b32 v{E+10}, v{E+1}, v{E}, v{vSa}
v_perm_b32 v{E+11}, v{E}, v{E}, v{vSb}
s_branch L_ex2
L_ex1:
ds_read2_b32 {vr(E,2)}, v{vE2} offset0:0 offset1:1
s_waitcnt lgkmcnt(0)""")
def ex2(d, p):
    e(f"""v_perm_b32 v{d}, v{p+1}, v{p}, s{sE0}
    v_perm_b32 v{d+1}, v{p+1}, v{p}, v{vS1}
    v_perm_b32 v{d+2}, v{p+1}, v{p}, s{sE2}
    v_perm_b32 v{d+3}, v{p+1}, v{p}, s{sE3}""")
ex2(E+8, E)
e('L_ex2:')
ex2(E+12, E+6)
e(f"""ds_write_b128 v{vKp}, {vr(E+8,4)} offset:512
ds_write_b128 v{vKp}, {vr(E+12,4)} offset:{512 + 256}
s_waitcnt vmcnt(2)
v_cndmask_b32 v{U+2}, v{U+2}, v{vZer}, s[88:89]
v_cndmask_b32 v{U+3}, v{U+3}, v{vZer}, s[88:89]""")
stamp(3)
SH = 128
for k in range(2):
    b = U + 8*k + 4; t = SH + 12*k
    if k: e('s_waitcnt vmcnt(0)')
    e(f'ds_write_b128 v{vCd}, {vr(b,4)} offset:{512*k}')
    for i in range(4): e(f'v_alignbit_b32 v{t+i}, v{b+i}, v{b+i-1}, 16')
    e(f'ds_write_b128 v{vCd}, {vr(t,4)} offset:{UC_S + 512*k}')
    for i in range(4): e(f'v_mov_b32 v{t+4+i}, v{b+i-1}')
    e(f'ds_write_b128 v{vCd}, {vr(t+4,4)} offset:{2*UC_S + 512*k}')
    for i in range(4): e(f'v_alignbit_b32 v{t+8+i}, v{b+i-1}, v{b+i-2}, 16')
    e(f'ds_write_b128 v{vCd}, {vr(t+8,4)} offset:{3*UC_S + 512*k}')
sync(4)
stamp(4)
if OPT['abl'] == 16: e('s_endpgm')
CB = 64
def cv_reads(k):
    b = CB + 16 * (k & 3)
    return [f'ds_read_b128 {vr(b+8,4)}, v{vG_} offset:{80 - 16*k}',
            f'ds_read_b64 {vr(b,2)}, v{vF_} offset:{64*k}', f'ds_read_b64 {vr(b+2,2)}, v{vF_} offset:{64*k + 8}',
            f'ds_read_b128 {vr(b+12,4)}, v{vG_} offset:{512 + 80 - 16*k}',
            f'ds_read_b64 {vr(b+4,2)}, v{vF_} offset:{2048 + 64*k}', f'ds_read_b64 {vr(b+6,2)}, v{vF_} offset:{2048 + 64*k + 8}']
e('\n'.join(cv_reads(0) + cv_reads(1)))
late = f"""s_mov_b64 s[{SRD_B}:{SRD_B+1}], s[22:23]
s_mov_b32 s{SRD_B+2}, {448*896}
s_mov_b32 s{SRD_B+3}, 0x20000
s_mov_b64 s[{SRD_C}:{SRD_C+1}], s[24:25]
s_mov_b32 s{SRD_C+2}, {2048*1792}
s_mov_b32 s{SRD_C+3}, 0x20000
v_lshrrev_b32 v{a1}, 3, v{V_LANE}
v_and_b32 v{a2}, 7, v{V_LANE}
v_and_b32 v{a0}, 0x70, v{vL16}
v_lshl_add_u32 v{vYl}, v{a1}, 12, v{a0}
v_lshlrev_b32 v{a3}, 2, v{V_LANE}
v_and_b32 v{a3}, 64, v{a3}
v_xor_b32 v{a0}, v{a0}, v{a3}
v_mul_u32_u24 v{vWoD}, 896, v{a1}
v_xor_b32 v{a3}, v{a1}, v{a2}
v_lshlrev_b32 v{a3}, 4, v{a3}
v_lshl_add_u32 v{vOut}, v{vWoD}, 1, v{a3}
v_add_u32 v{vWoD}, v{a0}, v{vWoD}
v_add_u32 v{vWoD+1}, {7168-1024}, v{vWoD}
v_lshrrev_b32 v{a0}, 4, v{V_LANE}
v_bfe_u32 v{a1}, v{V_LANE}, 2, 2
v_lshl_or_b32 v{a3}, v{a0}, 3, v{a1}
v_lshlrev_b32 v{a3}, 7, v{a3}
v_lshrrev_b32 v{a1}, 1, v{a1}
v_lshl_add_u32 v{a3}, v{a1}, 6, v{a3}
v_and_b32 v{a1}, 0x30, v{vL16}
s_movk_i32 s{sA}, {L_WO}
v_add3_u32 v{vWoR}, v{a1}, v{a3}, s{sA}
v_xor_b32 v{vWoR+1}, 64, v{vWoR}
v_and_b32 v{a1}, 15, v{V_LANE}
v_lshlrev_b32 v{vOl}, 4, v{a1}
v_lshl_add_u32 v{vOl}, v{a0}, 15, v{vOl}
s_lshl2_add_u32 s{sOl}, s{S_J}, s{S_W}
s_lshr_b32 s{sA}, s{sOl}, 1
s_lshl_b32 s{sA}, s{sA}, {4 + FSH}
s_add_u32 s{sA}, s{sA}, {F_O}
v_lshl_add_u32 v{vFo}, v{a1}, {FSH}, s{sA}
s_lshl_b32 s{sA}, s{S_W}, 11
s_add_u32 s{sA}, s{sA}, {L_SSM}
v_xor_b32 v{a3}, v{a0}, v{a2}
v_lshl_add_u32 v{a3}, v{a3}, 4, s{sA}
v_lshl_add_u32 v{vBw}, v{a1}, 7, v{a3}
v_add_u32 v{vBr}, s{sA}, v{vL16}
s_mul_i32 s{sOut}, s{sOl}, {16*1792}
s_lshl_b32 s{sA}, s{S_C}, 7
s_add_u32 s{sOut}, s{sOut}, s{sA}
s_add_u32 s{sOut}, s{sOut}, 896
s_add_u32 s{sOut+1}, s{sOut}, {8*1792}
s_lshl_b32 s{sOl}, s{sOl}, 8
s_add_u32 s{sOl}, s{sOl}, {WS_O}
s_lshl2_add_u32 s{sCh0}, s{S_C}, s{S_W}
s_lshl_b32 s{sCh0}, s{sCh0}, 4
s_lshr_b32 s{sA}, s{S_J}, 4
s_lshl_b32 s{sA}, s{sA}, 9
s_add_u32 s{sA}, s{sA}, s{sCh0}
s_lshl_b32 s{sA}, s{sA}, {FSH}
s_add_u32 s{sA}, s{sA}, {F_Y}
v_lshl_add_u32 v{vFy}, v{a1}, {FSH}, s{sA}
v_and_b32 v{a1}, 11, v{V_LANE}
v_lshl_or_b32 v{a1}, v{a0}, 5, v{a1}
v_mul_u32_u24 v{a1}, 1792, v{a1}
v_and_b32 v{a3}, 4, v{V_LANE}
v_lshl_add_u32 v{vYs}, v{a3}, 2, v{a1}""".split('\n')
e('\n'.join(late[:20])); late = late[20:]
def cv_iter(first):
    for k in range(4):
        b = CB + 16 * k
        rd = cv_reads(k + 2)
        z = first and k == 0
        def fill(n):
            if first:
                e('\n'.join(late[:n])); del late[:n]
        e('s_waitcnt lgkmcnt(6)')
        e(f'v_mfma_f32_32x32x16_bf16 {vr(T1,16)}, {vr(b,4)}, {vr(b+12,4)}, {"0" if z else vr(T1,16)}')
        e('\n'.join(rd[0:3])); fill(3)
        e(f'v_mfma_f32_32x32x16_bf16 {vr(T0,16)}, {vr(b,4)}, {vr(b+8,4)}, {"0" if z else vr(T0,16)}')
        e('\n'.join(rd[3:6])); fill(3)
        if k == 3:
            e(f'v_add_u32 v{vF_}, 256, v{vF_}\nv_subrev_u32 v{vG_}, 64, v{vG_}')
            if not first: e(f's_add_u32 s{sIt2}, s{sIt2}, 1\ns_cmp_lg_u32 s{sIt2}, 11')
        e(f'v_mfma_f32_32x32x16_bf16 {vr(T1,16)}, {vr(b+4,4)}, {vr(b+8,4)}, {vr(T1,16)}')
        fill(6 if k < 3 else 99)
cv_iter(True)
e('L_cv:')
cv_iter(False)
e('s_cbranch_scc1 L_cv')
stamp(5)
if OPT['abl'] == 32: e('s_endpgm')
arrive(5)
e(f"""s_lshl1_add_u32 s{sA}, s{sD}, s{sHw}
s_lshl_b32 s{sA}, s{sA}, 11
s_add_u32 s{sA}, s{sA}, {WS_Y}
s_lshl_b32 s{sB}, s{sHw}, 9
s_add_u32 s{sB}, s{sB}, s{sD}
s_lshl_b32 s{sB}, s{sB}, {FSH}
s_add_u32 s{sB}, s{sB}, {F_Y}""")
lwait(5)
def xch(give, keep):
    for i in range(4): e(f'ds_write_b128 v{vXp}, {vr(give+4*i,4)} offset:{1024*i}')
    sync(6)
    for i in range(4): e(f'ds_read_b128 {vr(give+4*i,4)}, v{vXo} offset:{1024*i}')
    e('s_waitcnt lgkmcnt(0)')
e(f's_cmp_eq_u32 s{sHw}, 0\ns_cbranch_scc1 L_x0')
xch(T0, T1)
e('s_branch L_x1\nL_x0:')
xch(T1, T0)
e('L_x1:')
for i in range(8): e(f'v_pk_add_f32 {vr(T0+2*i,2)}, {vr(T0+2*i,2)}, {vr(T1+2*i,2)}')
for i in range(8): e(f'v_cvt_pk_bf16_f32 v{T1+i}, v{T0+2*i}, v{T0+2*i+1}')
e(f"""buffer_store_dwordx4 {vr(T1,4)}, v{vL16}, {sr(SRD_WS)}, s{sA} offen sc1
buffer_store_dwordx4 {vr(T1+4,4)}, v{vL16}, {sr(SRD_WS)}, s{sA} offen offset:1024 sc1
s_lshl_b32 s{sA}, s{sCh0}, 12
s_lshl_b32 s{sSk}, s{S_J}, 7
s_add_u32 s{sA}, s{sA}, s{sSk}
s_add_u32 s{sA}, s{sA}, {WS_Y}
s_add_u32 s{sSk}, s{sA}, 0x8000
s_waitcnt vmcnt(0)""")
publish(sB, a0)
stamp(6)
poll(vFy, sleep=OPT['ysleep'])
stamp(7)
e(f"""buffer_load_dwordx4 {vr(64,4)}, v{vYl}, {sr(SRD_WS)}, s{sA} offen sc1
buffer_load_dwordx4 {vr(68,4)}, v{vYl}, {sr(SRD_WS)}, s{sSk} offen sc1
s_lshr_b32 s{sA}, s{S_J}, 4
s_lshl_b32 s{sA}, s{sA}, 10
s_and_b32 s{sB}, s{S_J}, 3
s_lshl_b32 s{sB}, s{sB}, 8
s_add_u32 s{sA}, s{sA}, s{sB}
s_and_b32 s{sB}, s{S_J}, 8
s_lshl1_add_u32 s{sA}, s{sB}, s{sA}
s_and_b32 s{sB}, s{S_J}, 4
s_add_u32 s{sA}, s{sA}, s{sB}
s_mul_i32 s{sA}, s{sA}, 1792
s_lshl1_add_u32 s{sA}, s{sCh0}, s{sA}
s_add_u32 s{sB}, s{sA}, {128*1792}
s_waitcnt vmcnt(0)
ds_write_b128 v{vXo}, {vr(64,4)}
ds_write_b128 v{vXo}, {vr(68,4)} offset:1024""")
for z in range(2):
    for hf in range(2):
        e(f'ds_read_b64_tr_b16 {vr(72 + 4*z + 2*hf, 2)}, v{vTr} offset:{64*z + 512*hf}')
e(f"""s_waitcnt lgkmcnt(0)
buffer_store_dwordx4 {vr(72,4)}, v{vYs}, {sr(SRD_C)}, s{sA} offen {OUTM}
buffer_store_dwordx4 {vr(76,4)}, v{vYs}, {sr(SRD_C)}, s{sB} offen {OUTM}
v_subrev_u32 v{a0}, 16, v{V_GRP}""")
sync(7)
if OPT['only'] == 1:
    stamp(8); stamp(13); prof_out(); e('s_endpgm')
lwait(7, addr=a0)
stamp(8)
e(f"""s_mul_i32 s{sA}, s{S_W}, {16*896}
s_lshl_b32 s{sB}, s{S_C}, 7
s_add_u32 s{sA}, s{sA}, s{sB}
s_lshl_b32 s{sB}, s{S_W}, 11
s_add_u32 s{sB}, s{sB}, {L_WO}""")
for ch in range(7):
    e(f"""s_add_u32 m0, s{sB}, {8192*ch}
    s_add_u32 s{sSk}, s{sA}, {64*896*ch}
    buffer_load_dwordx4 v{vWoD}, {sr(SRD_B)}, s{sSk} offen lds
    buffer_load_dwordx4 v{vWoD+1}, {sr(SRD_B)}, s{sSk} offen offset:1024 lds
    s_waitcnt vmcnt({OPT['wodepth'] if ch < 6 else 0})""")
WF, OF, OC = 8, 168, 224
sync(8)
def wo_reads(k):
    r = []
    for t in range(4):
        for hf in range(2):
            r.append(f'ds_read_b64_tr_b16 {vr(WF + 16*(k%10) + 4*t + 2*hf, 2)}, v{vWoR + (t>>1)} offset:{4096*k + 512*hf + 8*(t&1)}')
    return r
for k in range(10): e('\n'.join(wo_reads(k)))
e(f'v_xor_b32 v{a0}, 64, v{vBw}\ns_waitcnt lgkmcnt(0)')
if OM: poll(vFo, sleep=8)
if OM == 2: e(f'v_add_u32 v{vFo}, {F_H - F_O}, v{vFo}')
sOk = 4
for k in range(14): e(f's_add_u32 s{sOk+k}, s{sOl}, {0x20000*k}')
stamp(9)
e('s_barrier')
stamp(10)
if OPT['osleep']: e(f"s_sleep {OPT['osleep']}")
if OM != 1: poll(vFo)
stamp(11)
e(f's_min_u32 s{S_BOUND}, s{S_BOUND}, 0x2000')
for k in range(14): e(f'buffer_load_dwordx4 {vr(OF+4*k,4)}, v{vOl}, {sr(SRD_WS)}, s{sOk+k} offen sc1')
for k in range(14):
    o = OF + 4*k
    e(f'''L_ow{k}:
    s_waitcnt vmcnt({13-k}){' lgkmcnt(0)' if k == 10 else ''}''')
    if OM: e(f'''v_max3_u32 v6, v{o}, v{o+1}, v{o+2}
    v_max_u32 v6, v6, v{o+3}
    v_cmp_eq_u32 vcc, -1, v6
    s_cbranch_vccnz L_or{k}''')
    e(f'L_og{k}:')
    for t in range(4):
        c = vr(OC+4*t, 4)
        e(f'v_mfma_f32_16x16x32_bf16 {c}, {vr(WF + 16*(k%10) + 4*t, 4)}, {vr(o,4)}, {"0" if k == 0 else c}')
    if 1 <= k <= 4: e('\n'.join(wo_reads(k + 9)))
stamp(12)
e('s_nop 4')
for i in range(8): e(f'v_cvt_pk_bf16_f32 v{16+i}, v{OC+2*i}, v{OC+2*i+1}')
e(f"""ds_write_b128 v{vBw}, {vr(16,4)}
ds_write_b128 v{a0}, {vr(20,4)}
ds_read_b128 {vr(24,4)}, v{vBr}
ds_read_b128 {vr(28,4)}, v{vBr} offset:1024
s_or_b32 s{sA}, s2, s{S_W}
s_waitcnt lgkmcnt(1)
buffer_store_dwordx4 {vr(24,4)}, v{vOut}, {sr(SRD_C)}, s{sOut} offen {OUTM2}
s_waitcnt lgkmcnt(0)
buffer_store_dwordx4 {vr(28,4)}, v{vOut}, {sr(SRD_C)}, s{sOut+1} offen {OUTM2}
s_cbranch_scc1 L_noepoch""")
publish(sA, 6)
e('L_noepoch:')
if OPT['prof']:
    e('s_waitcnt vmcnt(0)')
stamp(13)
prof_out()
e('L_end:\ns_endpgm')
for k in range(14):
    e(f'''L_or{k}:
    s_sub_i32 s{S_BOUND}, s{S_BOUND}, 1
    s_cmp_lt_i32 s{S_BOUND}, 0
    s_cbranch_scc1 L_og{k}
    s_call_b64 s[90:91], L_re{k}
    s_branch L_ow{k}''')
for k in range(14):
    e(f'L_re{k}:\nbuffer_load_dwordx4 {vr(OF+4*k,4)}, v{vOl}, {sr(SRD_WS)}, s{sOk+k} offen sc1')
e('s_setpc_b64 s[90:91]')
def ilen(l):
    l = l.split(';')[0].strip()
    if not l or l.endswith(':'): return 0
    op = l.split()[0]
    if op.startswith(('buffer_', 'global_', 'ds_', 'v_mfma', 'v_smfmac', 'v_pk_', 's_load', 'v_cvt_pk', 'v_lshl_', 'v_perm', 'v_bfe', 'v_max3', 'v_align')): return 8
    return 8 if '0x' in l else 4
pads = []
if OPT['touch']:
    for n in ('ssm', 'mha'):
        new = []; acc = OPT['touch'] if n == 'mha' else 0; loop = None
        for l in SEC[n]:
            t = l.strip()
            if t in ('L_att:', 'L_cv:'):
                pads.append(len(pads)); new += [f'L_pad{pads[-1]}:', f'    s_cbranch_execz L_nxt{pads[-1]}']; acc = 0
            if t in ('L_att:', 'L_cv:', 'L_kg:'): loop = t[:-1]
            if acc >= OPT['touch'] and (loop is None or loop == 'L_kg' or acc >= 1200) and not t.endswith(':') and 'exec' not in ''.join(new[-3:]).replace('execz', ''):
                pads.append(len(pads)); new += [f'L_pad{pads[-1]}:', f'    s_cbranch_execz L_nxt{pads[-1]}']; acc = 0
            if loop and t in (f's_cbranch_scc1 {loop}', f's_branch {loop}'): loop = None
            if t == 'L_gemm_v:' or t == 'L_gemm_done:': acc = OPT['touch']
            new.append(l); acc += ilen(l)
        SEC[n] = new
sec('idle')
e('L_ssm_idle:')
arrive(1)
e(f's_lshl2_add_u32 s60, s61, s{S_W}\ns_mov_b64 exec, 0')
for i in range(min(16, len(pads))):
    e(f's_cmp_eq_u32 s60, {i}\ns_cbranch_scc1 L_pad{i}')
e('L_idle_end:\ns_endpgm')
txt_fix = {f'L_nxt{i}': (f'L_pad{i+16}' if i + 16 < len(pads) else 'L_idle_end') for i in pads}
for n in SEC:
    SEC[n] = [(l.rsplit(' ', 1)[0] + ' ' + txt_fix[l.rsplit(' ', 1)[1]]) if 'L_nxt' in l else l for l in SEC[n]]
print('pads', len(pads), file=sys.stderr)
ORDER = ['pro', 'ssm0', 'idle', 'mha0', 'ssm', 'mha', 'fb']
hdr = open('header.txt').read()
txt = hdr + f'''; @launch grid=(256,1,1) block=(512,1,1) lds={L_TOT}
.amdgcn_target "amdgcn-amd-amdhsa--gfx950"
.text
.globl {KN}
.p2align 8
.type {KN},@function
{KN}:
''' + '\n'.join(sum((SEC[n] for n in ORDER), [])) + f'''
.section .rodata,"a"
.p2align 6
.amdhsa_kernel {KN}
  .amdhsa_next_free_vgpr 256
  .amdhsa_next_free_sgpr 102
  .amdhsa_accum_offset 256
  .amdhsa_group_segment_fixed_size 0
  .amdhsa_kernarg_size 104
  .amdhsa_user_sgpr_count 2
  .amdhsa_user_sgpr_kernarg_segment_ptr 1
  .amdhsa_system_sgpr_workgroup_id_x 1
.end_amdhsa_kernel
'''
open(sys.argv[1], 'w').write(txt)
```

```python
import sys, struct
def fl(x): return hex(struct.unpack('<I', struct.pack('<f', x))[0])

KN = 'concat_heads__ssm_conv_s4d__softmax_full_mha__prompt_kernel'
OPT = dict(ax=0, bp=3, qa=7, n0=4, ilv=8, tlb=1, ulook=1, kgp=3, pad=0, ypad=0, omode=0, ksleep=0, usleep=4, obar=1, osleep=12, pubk=14, abl=0, touch=1024, gs=0, kgw=0, xg=5, gx=0, pm=2, ps=1, rt=0, upub=1, kgx=0, outsc=0, ysleep=8, wodepth=4, wq_mid=0, pollk=99, rd=-1, rdrole=0, only=0, safe=0, rot=0, prof=0, fs=128, force_fb=0, wq_early=7, prio=1)
for a in sys.argv[2:]:
    k, v = a.split('=')
    assert k in OPT, k
    OPT[k] = int(v, 0)

FS = OPT['fs']
FSH = FS.bit_length() - 1
F_KV = 0x1000
F_O = F_KV + 1024 * FS
F_U = F_O + 1024 * FS
F_Y = F_U + 1024 * FS
F_H = F_Y + 1024 * FS
WS_K = 0x100000
WS_V = 0x300000
WS_O = 0x500000
WS_U = 0x700000
WS_Y = 0x900000
QS = 16384 + OPT['pad']; KS = 2 * QS; YS = 4096 + OPT['ypad']
S_KS = 57
WS_PROF = 0xb00000
WS_SIZE = 0xc00000
L_SSM = 1024
L_W = 57344
L_RB = 65536
L_X = 114688
L_TOT = 163840
TROW = 288
TABSZ = 38 * TROW
L_TAB = L_SSM
L_UC = L_SSM
UC_S = 4160
UC_D = 4 * UC_S + 64
L_KP = L_UC + 2 * UC_D
L_KX = L_KP + 12288
L_KD = L_KX + 6144
assert L_TAB + 4 * TABSZ <= L_KX and L_KP % 16 == 0 and L_KD + 4096 <= L_W
L_WO = L_SSM

S_WV, S_W, S_HG, S_C, S_TILE, S_J, S_H, S_NONCE, S_O0, S_ROT = range(30, 40)
SRD_WS, SRD_A, SRD_B, SRD_C = 40, 44, 48, 52
S_BOUND = 56
S_T0 = 58

SEC = {}
out = None
def sec(n):
    global out
    out = SEC.setdefault(n, [])
sec('pro')
def e(s):
    for l in s.split('\n'):
        l = l.strip()
        if l:
            out.append(l if l.endswith(':') else '    ' + l)
_lab = [0]
def lab(p):
    _lab[0] += 1
    return f'L_{p}_{_lab[0]}'
def vr(a, n):
    return f'v[{a}:{a+n-1}]' if n > 1 else f'v{a}'
def srd(d, b, n):
    e(f's_mov_b64 s[{d}:{d+1}], s[{b}:{b+1}]\ns_mov_b32 s{d+2}, {n}\ns_mov_b32 s{d+3}, 0x20000')
def sr(d): return f's[{d}:{d+3}]'

V_LANE, V_T, V_OWN, V_GRP, V_PROF = 0, 1, 2, 3, 4

ROLE = [0]
def stamp(i):
    if OPT['rd'] == i and OPT['rdrole'] == ROLE[0]:
        e('s_memrealtime s[100:101]\ns_waitcnt lgkmcnt(0)')
    if OPT['prof'] > (i >= 14):
        e(f's_mem{"real" if OPT["rt"] else ""}time s[96:97]\ns_waitcnt lgkmcnt(0)\ns_sub_u32 s96, s96, s{98 if OPT["rt"] else S_T0}\nv_writelane_b32 v{V_PROF}, s96, {i}')
def prof_out():
    if OPT['rd'] >= 0 and OPT['rdrole'] == ROLE[0]:
        l = lab('pad')
        if ROLE[0] == 0 and not OPT['obar']: e('s_barrier')
        e(f'''s_add_u32 s100, s100, 6000
        {l}:
        s_sleep 1
        s_memrealtime s[96:97]
        s_waitcnt lgkmcnt(0)
        s_sub_u32 s96, s96, s100
        s_cmp_lt_i32 s96, 0
        s_cbranch_scc1 {l}''')
    if OPT['prof']:
        e(f'''s_memrealtime s[96:97]
        s_waitcnt lgkmcnt(0)
        v_writelane_b32 v{V_PROF}, s96, 31
        v_writelane_b32 v{V_PROF}, s98, 30
        s_lshl_b32 s96, s2, 3
        s_add_u32 s96, s96, s{S_WV}
        s_lshl_b32 s96, s96, 7
        s_add_u32 s96, s96, {WS_PROF}
        v_lshlrev_b32 v{V_T}, 2, v{V_LANE}
        s_mov_b32 exec_hi, 0
        buffer_store_dword v{V_PROF}, v{V_T}, {sr(SRD_WS)}, s96 offen
        s_mov_b64 exec, -1''')

def arrive(stage):
    e(f'v_mov_b32 v{V_T}, {stage}\nds_write_b32 v{V_OWN}, v{V_T}')
def lwait(stage, addr=V_GRP, sleep=0):
    l = lab('lw')
    e(f'{l}:')
    if sleep: e(f's_sleep {sleep}')
    e(f'''ds_read_b32 v{V_T}, v{addr}
    s_waitcnt lgkmcnt(0)
    v_cmp_gt_u32 vcc, {stage}, v{V_T}''')
    if OPT['safe']:
        d = lab('ld')
        e(f'''s_cbranch_vccz {d}
        s_sub_u32 s{S_BOUND}, s{S_BOUND}, 1
        s_cbranch_scc0 {l}
        s_mov_b32 s{S_BOUND}, 0
        {d}:''')
    else:
        e(f's_cbranch_vccnz {l}')
def sync(stage):
    arrive(stage); lwait(stage)
def poll(voff, first_issued=False, sleep=0, reg=V_T):
    l, d, m = lab('pl'), lab('pd'), lab('pm')
    if first_issued: e(f's_branch {m}')
    e(f'{l}:')
    if sleep: e(f's_sleep {sleep}')
    e(f'''buffer_load_dword v{reg}, v{voff}, {sr(SRD_WS)}, 0 offen sc1
    {m}:
    s_waitcnt vmcnt(0)
    v_cmp_ne_u32 vcc, s{S_NONCE}, v{reg}
    s_cbranch_vccz {d}
    s_sub_u32 s{S_BOUND}, s{S_BOUND}, 1
    s_cbranch_scc0 {l}
    s_mov_b32 s{S_BOUND}, 0
    {d}:''')
def publish(soff, tmp):
    e(f'''v_mov_b32 v{V_T}, s{S_NONCE}
    v_mov_b32 v{tmp}, 0
    s_mov_b64 exec, 1
    buffer_store_dword v{V_T}, v{tmp}, {sr(SRD_WS)}, s{soff} offen sc1
    s_mov_b64 exec, -1''')
def swap23(d, s, t):
    e(f'''v_lshrrev_b32 v{t}, 1, v{s}
    v_xor_b32 v{t}, v{t}, v{s}
    v_and_b32 v{t}, 4, v{t}
    v_mul_u32_u24 v{t}, 3, v{t}
    v_xor_b32 v{d}, v{t}, v{s}''')
def rot_next(s):
    e(f's_add_u32 s{s}, s{s}, 1\ns_cmp_eq_u32 s{s}, 7\ns_cselect_b32 s{s}, 0, s{s}')

e(f'''s_cmp_ge_u32 s2, 256
s_cbranch_scc1 L_end''')
if OPT['prof']:
    e(f's_memtime s[{S_T0}:{S_T0+1}]\ns_memrealtime s[98:99]\nv_mov_b32 v{V_PROF}, 0')
if OPT['rd'] >= 0: e('s_memrealtime s[100:101]')
e(f'''s_load_dwordx16 s[4:19], s[0:1], 0
s_load_dwordx8 s[20:27], s[0:1], 64
s_load_dwordx2 s[28:29], s[0:1], 96
v_lshrrev_b32 v{V_OWN}, 6, v0
v_and_b32 v{V_LANE}, 63, v0
v_readfirstlane_b32 s{S_WV}, v{V_OWN}
v_lshlrev_b32 v{V_OWN}, 2, v{V_OWN}
v_mov_b32 v{V_T}, 0
ds_write_b32 v{V_OWN}, v{V_T}
v_and_b32 v{V_GRP}, 3, v{V_LANE}
v_lshlrev_b32 v{V_GRP}, 2, v{V_GRP}
s_and_b32 s{S_HG}, s2, 1
s_bfe_u32 s60, s2, 0x20001
s_bfe_u32 s{S_C}, s2, 0x30003
s_lshr_b32 s61, s2, 6
s_lshl2_add_u32 s{S_TILE}, s60, s61
s_lshl1_add_u32 s{S_J}, s{S_TILE}, s{S_HG}
s_lshl3_add_u32 s{S_H}, s{S_HG}, s{S_C}
s_and_b32 s{S_W}, s{S_WV}, 3
s_mov_b32 s{S_BOUND}, 0x40000
s_mov_b32 s{S_KS}, {KS}
s_cmp_lt_u32 s{S_WV}, 4
s_cbranch_scc1 L_mha''')

VX = 144; VACC = 96; VWF = 32; VPK = 128
VV, VK, VS, VO, VQ = 32, 64, 96, 160, 224
vWd = [5, 6]; vXd = [7, 8, 9, 10]; vXr = [11, 12, 13, 14]; vWb, vW0, vW1 = 15, 16, 17
vRho, vG, vSt, vQd, vQr, vFl, vA, vB, vC = 18, 19, 20, 21, 22, 23, 24, 25, 26
vKo0, vKo1, vVo, vIdx = 27, 28, 29, 30
sXb, sWb, sCh, sCw, sLx, sTmp, sTmp2, sSt, sS1, sS2, sFl = range(60, 71)
sK, sV, sIt = 71, 72, 73
sFo, sO0, sO1 = 84, 85, 86
vOs, vQw = vRho, vG
vRb = [7, 8, 9]; vQx = [11, 12, 13]; vRr = 10
sMask = 74
sOdd = 76

sec('mha0')
e('L_mha:')
if OPT['prio']: e(f"s_setprio {OPT['pm']}")
e(f'''s_mul_i32 s{S_O0}, s{S_H}, 7
s_lshr_b32 s{S_O0}, s{S_O0}, 1''')
if OPT['rot']:
    e(f'''s_lshl1_add_u32 s{S_ROT}, s61, s{S_C}
    s_cmp_ge_u32 s{S_ROT}, 7
    s_cselect_b32 s{sTmp}, 7, 0
    s_sub_u32 s{S_ROT}, s{S_ROT}, s{sTmp}''')
else:
    e(f's_mov_b32 s{S_ROT}, 0')
e(f'''v_lshrrev_b32 v{vA}, 3, v{V_LANE}          ; r
v_and_b32 v{vB}, 7, v{V_LANE}                    ; p
v_lshlrev_b32 v{vC}, 1, v{vA}
v_and_b32 v{vC}, 4, v{vC}
v_xor_b32 v{vC}, v{vC}, v{vB}
v_lshlrev_b32 v{vC}, 4, v{vC}
v_mul_u32_u24 v{vWd[0]}, 2688, v{vA}
v_add_u32 v{vWd[0]}, v{vWd[0]}, v{vC}
v_add_u32 v{vWd[1]}, {8*2688-1024}, v{vWd[0]}
v_lshrrev_b32 v{vC}, 1, v{vA}
v_xor_b32 v{vC}, v{vC}, v{vB}
v_lshlrev_b32 v{vC}, 4, v{vC}
v_mul_u32_u24 v{vA}, 896, v{vA}
v_add_u32 v{vXd[0]}, v{vA}, v{vC}
v_xor_b32 v{vC}, 64, v{vC}
v_add_u32 v{vXd[1]}, v{vA}, v{vC}
v_add_u32 v{vXd[1]}, {7168-1024}, v{vXd[1]}
v_add_u32 v{vXd[2]}, {2*(7168-1024)}, v{vXd[0]}
v_add_u32 v{vXd[3]}, {2*(7168-1024)}, v{vXd[1]}
s_lshl2_add_u32 s{sXb}, s{S_TILE}, s{S_W}
s_lshl_b32 s{sFl}, s{S_H}, 6
s_add_u32 s{sFl}, s{sFl}, s{sXb}
s_lshl_b32 s{sFl}, s{sFl}, {FSH}
s_add_u32 s{sFl}, s{sFl}, {F_KV}
s_mul_i32 s{sXb}, s{sXb}, {32*896}
s_mul_i32 s{sTmp2}, s{S_HG}, 3
s_lshr_b32 s{sTmp}, s2, 6
s_add_u32 s{sTmp2}, s{sTmp2}, s{sTmp}
s_mul_i32 s{sWb}, s{S_HG}, 7
s_add_u32 s{sWb}, s{sWb}, s{S_C}
s_add_u32 s{sWb}, s{sWb}, 7
s_cmp_eq_u32 s{S_C}, 7
s_cselect_b32 s{sWb}, s{sTmp2}, s{sWb}
s_lshl_b32 s{sWb}, s{sWb}, 7
s_mul_i32 s{sTmp}, s{S_W}, {16*2688}
s_add_u32 s{sWb}, s{sWb}, s{sTmp}
s_mul_i32 s{sLx}, s{S_W}, 12288
s_add_u32 s{sLx}, s{sLx}, {L_X}
s_lshl_b32 s{sS1}, s{S_W}, 11
s_add_u32 s{sS1}, s{sS1}, {L_W}
s_mov_b32 s{sCh}, s{S_ROT}
s_waitcnt lgkmcnt(0)''')
e(f's_load_dword s{S_NONCE}, s[28:29], 0')
srd(SRD_B, 20, 448 * 1344 * 2)
srd(SRD_A, 18, 2048 * 896)
e(f'''s_lshl_b32 s4, s{sCh}, 7
s_add_u32 s4, s4, s{sXb}
s_mul_i32 s88, s{sCh}, {64*2688}
s_add_u32 s11, s88, s{sWb}''')
rot_next(sCh)
stamp(22)
e('s_barrier')
stamp(23)
if OPT['only'] == 1: e('s_endpgm')
def rot_lines(s):
    return [f's_add_u32 s{s}, s{s}, 1', f's_cmp_eq_u32 s{s}, 7', f's_cselect_b32 s{s}, 0, s{s}']
sXo, sWo, sQo = 4, 11, 88
def offs(st):
    return [f's_lshl_b32 s{sXo+st}, s{sCh}, 7', f's_add_u32 s{sXo+st}, s{sXo+st}, s{sXb}', f's_mul_i32 s{sQo+st}, s{sCh}, {64*2688}',
            f's_add_u32 s{sWo+st}, s{sQo+st}, s{sWb}'] + (rot_lines(sCh) if st < 6 else [])
def w_lines(st):
    return [f's_add_u32 m0, s{sS1}, {8192*st}', 's_nop 0'] + \
           [f'buffer_load_dwordx4 v{vWd[i]}, {sr(SRD_B)}, s{sWo+st} offen offset:{1024*i} lds' for i in range(2)]
def x_chunk(st):
    return [f's_add_u32 m0, s{sLx}, {(st%3)*4096}', 's_nop 0'] + \
           [f'buffer_load_dwordx4 v{vXd[i]}, {sr(SRD_A)}, s{sXo+st} offen offset:{1024*i} lds' for i in range(4)]
DM = []
for l in [x_chunk(0), w_lines(0)] + [w_lines(i) for i in range(1, 7)] + [x_chunk(1), x_chunk(2)]:
    DM += [l[:3]] + [[x] for x in l[3:]]
for g in DM[:OPT['n0']]: e('\n'.join(g))
DM = DM[OPT['n0']:]
stamp(24)
e('s_branch L_mha1')
sec('mha')
e('L_mha1:')
stamp(25)
for st in range(1, 7): e('\n'.join(offs(st)))
sec('tmp')
srd(SRD_WS, 28, WS_SIZE)
e(f'''v_and_b32 v{vA}, 31, v{V_LANE}
v_lshrrev_b32 v{vG}, 5, v{V_LANE}''')
swap23(vRho, vA, vB)
e(f'''v_bfe_u32 v{vB}, v{vRho}, 1, 3
v_xor_b32 v{vB}, v{vB}, v{vG}
v_lshlrev_b32 v{vB}, 4, v{vB}
v_lshl_add_u32 v{vB}, v{vRho}, 7, v{vB}
v_add_u32 v{vXr[0]}, s{sLx}, v{vB}
v_xor_b32 v{vXr[1]}, 32, v{vXr[0]}
v_xor_b32 v{vXr[2]}, 64, v{vXr[0]}
v_xor_b32 v{vXr[3]}, 0x60, v{vXr[0]}
v_and_b32 v{vB}, 3, v{V_LANE}                     ; cc
v_lshrrev_b32 v{vC}, 1, v{vB}
v_and_b32 v{vQd}, 1, v{vB}
v_lshl_or_b32 v{vC}, v{vQd}, 1, v{vC}
v_bfe_u32 v{vQd}, v{V_LANE}, 4, 1
v_lshl_or_b32 v{vB}, v{vQd}, 2, v{vB}
v_lshl_or_b32 v{vC}, v{vQd}, 2, v{vC}
v_bfe_u32 v{vQd}, v{V_LANE}, 2, 2                  ; r'
v_lshl_or_b32 v{vFl}, v{vG}, 3, v{vQd}             ; 8g + r'
v_lshlrev_b32 v{vQr}, 6, v{vFl}
v_lshl_add_u32 v{vQr}, v{vC}, 3, v{vQr}
v_add_u32 v{vQr}, {L_X + 4096}, v{vQr}
s_cmp_eq_u32 s{S_HG}, 0
s_cselect_b64 vcc, -1, 0
v_cndmask_b32 v{vB}, v{vB}, v{vC}, vcc             ; K slabs use the exchanged order, V slabs the natural one
v_lshlrev_b32 v{vWb}, 7, v{vFl}
v_lshl_add_u32 v{vWb}, v{vB}, 3, v{vWb}
v_lshrrev_b32 v{vQd}, 1, v{vQd}
v_lshl_add_u32 v{vWb}, v{vQd}, 6, v{vWb}
v_add_u32 v{vW0}, {L_W}, v{vWb}
v_lshlrev_b32 v{vB}, 4, v{vRho}
v_mad_u32_u24 v{vB}, v{vG}, s{S_KS}, v{vB}
v_lshrrev_b32 v{vC}, 2, v{vA}
v_mul_u32_u24 v{vC}, {QS}, v{vC}
v_lshl_add_u32 v{vC}, v{vG}, 6, v{vC}
v_and_b32 v{vQd}, 3, v{vA}
v_lshl_add_u32 v{vC}, v{vQd}, 4, v{vC}
v_cndmask_b32 v{vSt}, v{vC}, v{vB}, vcc
s_lshl2_add_u32 s{sTmp}, s{S_TILE}, s{S_W}
s_lshl_b32 s{sTmp2}, s{sTmp}, 9
s_add_u32 s{sTmp2}, s{sTmp2}, {WS_K}
s_lshl_b32 s{sTmp}, s{sTmp}, 8
s_add_u32 s{sTmp}, s{sTmp}, {WS_V}
s_movk_i32 s{sS2}, 128
s_cmp_eq_u32 s{S_HG}, 0
s_cselect_b32 s{sSt}, s{sTmp2}, s{sTmp}
s_cselect_b32 s{sS2}, {2*KS}, s{sS2}
s_mul_i32 s{sTmp}, s{S_C}, {8*KS}
s_add_u32 s{sSt}, s{sSt}, s{sTmp}
v_lshrrev_b32 v{vB}, 2, v{V_LANE}
v_mul_u32_u24 v{vB}, 2688, v{vB}
v_lshl_add_u32 v{vQd}, v{vQd}, 4, v{vB}
s_lshl_b32 s82, s{S_O0}, 4
s_mul_i32 s{sTmp}, s{S_W}, {16*2688}
s_add_u32 s82, s82, s{sTmp}
s_lshr_b32 s{sTmp}, s{S_O0}, 3
s_add_u32 s{sTmp2}, s{S_O0}, 3
s_lshr_b32 s{sTmp2}, s{sTmp2}, 3
s_cmp_eq_u32 s{S_H}, 15
s_cselect_b32 s{sTmp2}, 7, s{sTmp2}
s_sub_u32 s{sTmp2}, s{sTmp2}, s{sTmp}
v_bfe_u32 v{vC}, v{V_LANE}, 4, 1
v_mul_u32_u24 v{vC}, s{sTmp2}, v{vC}
v_lshl_add_u32 v{vC}, v{vG}, 3, v{vC}
v_add_u32 v{vC}, s{sTmp}, v{vC}
v_and_b32 v{vB}, 15, v{V_LANE}
v_lshl_add_u32 v{vC}, v{vC}, 6, v{vB}
s_lshl_b32 s{sTmp}, s{S_W}, 4
v_add_u32 v{vC}, s{sTmp}, v{vC}
v_lshlrev_b32 v{vC}, {FSH}, v{vC}
v_add_u32 v{vFl}, {F_KV}, v{vC}
v_lshlrev_b32 v{vKo0}, 4, v{vA}
v_mad_u32_u24 v{vKo0}, v{vG}, s{S_KS}, v{vKo0}
v_add_u32 v{vKo1}, {2*KS}, v{vKo0}
v_lshrrev_b32 v{vA}, 2, v{vRho}
v_mul_u32_u24 v{vA}, {QS}, v{vA}
v_lshl_add_u32 v{vA}, v{vG}, 6, v{vA}
v_and_b32 v{vB}, 3, v{V_LANE}
v_lshl_add_u32 v{vVo}, v{vB}, 4, v{vA}
v_mov_b32 v{vIdx}, 0xdddddddd
s_mul_i32 s{sTmp}, s{S_O0}, {KS}
s_lshl_b32 s{sK}, s{S_W}, 13
s_add_u32 s{sK}, s{sK}, s{sTmp}
s_add_u32 s{sK}, s{sK}, {WS_K}
s_lshl_b32 s{sV}, s{S_W}, 12
s_add_u32 s{sV}, s{sV}, s{sTmp}
s_add_u32 s{sV}, s{sV}, {WS_V}
s_lshl2_add_u32 s{sTmp2}, s{S_TILE}, s{S_W}
s_lshl_b32 s{sFo}, s{sTmp2}, 4
s_add_u32 s{sFo}, s{sFo}, s{S_H}
s_lshl_b32 s{sFo}, s{sFo}, {FSH}
s_add_u32 s{sFo}, s{sFo}, {F_O}
s_lshl_b32 s{sTmp2}, s{sTmp2}, 9
s_add_u32 s{sO0}, s{sTmp}, s{sTmp2}
s_add_u32 s{sO0}, s{sO0}, {WS_O}
s_add_u32 s{sO1}, s{sO0}, {2*KS}
s_bitcmp1_b32 s{S_H}, 0
s_cselect_b64 s[{sOdd}:{sOdd+1}], -1, 0
s_cselect_b32 s{sMask}, -16, 0x0fffffff
s_mov_b32 s{sMask+1}, s{sMask}
v_mov_b32 v{vC}, 0x3e8b97f6
v_cmp_gt_u32 vcc, 32, v{V_LANE}
s_and_b64 s[78:79], vcc, s[{sOdd}:{sOdd+1}]
s_nor_b64 s[80:81], vcc, s[{sOdd}:{sOdd+1}]
v_cndmask_b32 v{vA}, v{vC}, 0, s[78:79]
v_cndmask_b32 v{vB}, v{vC}, 0, s[80:81]
s_mov_b32 s78, 0x3f803f80
s_mov_b32 s79, s78
v_xor_b32 v{vW1}, 64, v{vW0}
v_lshlrev_b32 v{vOs}, 4, v{vRho}
v_mad_u32_u24 v{vOs}, v{vG}, s{S_KS}, v{vOs}
v_lshl_add_u32 v{vQw}, v{V_LANE}, 4, s{sLx}''')
srd(SRD_C, 28, WS_SIZE)
for st in range(7): e(f's_add_u32 s{sQo+st}, s{sQo+st}, s82')
def o_stores(r0, r1, tag):
    e(f'''s_bitcmp1_b32 s{S_H}, 0
    s_cbranch_scc1 L_ost_odd{tag}
    buffer_store_dwordx4 {vr(r0,4)}, v{vOs}, {sr(SRD_WS)}, s{sO0} offen sc1
    s_mov_b32 exec_hi, 0
    buffer_store_dwordx4 {vr(r1,4)}, v{vOs}, {sr(SRD_WS)}, s{sO1} offen sc1
    s_not_b64 exec, exec
    buffer_store_dwordx2 {vr(r1,2)}, v{vOs}, {sr(SRD_WS)}, s{sO1} offen sc1
    s_branch L_ost_done{tag}
    L_ost_odd{tag}:
    buffer_store_dwordx4 {vr(r1,4)}, v{vOs}, {sr(SRD_WS)}, s{sO1} offen sc1
    s_mov_b32 exec_hi, 0
    buffer_store_dwordx2 {vr(r0+2,2)}, v{vOs}, {sr(SRD_WS)}, s{sO0} offen offset:8 sc1
    s_not_b64 exec, exec
    buffer_store_dwordx4 {vr(r0,4)}, v{vOs}, {sr(SRD_WS)}, s{sO0} offen sc1
    L_ost_done{tag}:
    s_mov_b64 exec, -1''')
GS = 0
AB = [l for l in SEC.pop('tmp') if not l.strip().startswith(';')]
sec('mha')
def scc_pending(i):
    return i < len(AB) and AB[i].strip().startswith(('s_cselect', 's_mov_b32 s75'))
pos = 0
for g in DM:
    n = pos + OPT['ilv']
    while scc_pending(n): n += 1
    e('\n'.join(AB[pos:n])); pos = n
    e('\n'.join(g))
e('\n'.join(AB[pos:]))
stamp(0)
def x_reads(s):
    return [f'ds_read_b128 {vr(VX + 16*s + 4*ks, 4)}, v{vXr[ks]} offset:{(s%3)*4096}' for ks in range(4)]
e('s_waitcnt vmcnt(22)')
e('\n'.join(x_reads(0)))
e('s_waitcnt vmcnt(8) lgkmcnt(0)')
arrive(1)
stamp(1)
e('\n'.join(x_chunk(3)))
e('s_waitcnt vmcnt(8)')
e('\n'.join(x_reads(1)))
lwait(1)
e(f's_add_u32 s{S_NONCE}, s{S_NONCE}, 1')
stamp(2)
def w_reads(s):
    r = []
    for ks in range(4):
        for ct in range(2):
            for hf in range(2):
                d = VWF + 32 * (s & 1) + 8 * ks + 4 * ct + 2 * hf
                r.append(f'ds_read_b64_tr_b16 {vr(d,2)}, v{(vW0, vW1)[ct]} offset:{s*8192 + ks*2048 + hf*512}')
    return r
e('\n'.join(w_reads(0)))
e(f'''s_waitcnt lgkmcnt(0)
s_cmp_lg_u32 s{S_HG}, 0
s_cbranch_scc1 L_gemm_v''')
sQb, sQc = 82, 83
NE = OPT['wq_early']
def wq_dma(st):
    return [f's_add_u32 m0, s{sLx}, {4096 + 1024*st}', 's_nop 0', f'buffer_load_dwordx4 v{vQd}, {sr(SRD_B)}, s{sQo+st} offen lds']
SPIN = []
def gemm1(vpart):
    for s in range(7):
        M = []
        for ks in range(4):
            for ct in range(2):
                wf = vr(VWF + 32 * (s & 1) + 8 * ks + 4 * ct, 4); xf = vr(VX + 16 * s + 4 * ks, 4)
                acc = vr(VACC + 16 * ct, 16)
                a, b = (xf, wf) if vpart else (wf, xf)
                M.append(f'v_mfma_f32_32x32x16_bf16 {acc}, {a}, {b}, {"0" if s == 0 and ks == 0 else acc}')
        gaps = [[] for _ in range(8)]
        tag = f'{"v" if vpart else "k"}{s}'
        pre = []
        dm = []
        def add(l): dm.extend([(l[0], l[2])] + [(None, x) for x in l[3:]])
        if s <= 2: add(x_chunk(s + 4))
        if s == 3:
            for i in range(min(NE, 4)): add(wq_dma(i))
        if s == 4:
            for i in range(4, NE): add(wq_dma(i))
        n = {0: 8, 1: 8, 2: 8, 3: 4 + min(NE, 4), 4: NE}.get(s)
        for i, (m, l) in enumerate(dm):
            if m: (pre if i == 0 else gaps[i - 1]).append(m)
            gaps[i].append(l)
        if s < 6:
            wr = w_reads(s + 1)
            for i, (p, q) in enumerate(((0, 3), (3, 6), (6, 9), (9, 12), (12, 16))): gaps[i] += wr[p:q]
            if s <= 4: gaps[OPT['xg']] += [f's_waitcnt vmcnt({n})'] + x_reads(s + 2)
            gaps[7] += [f's_waitcnt lgkmcnt({4 if s == 4 else 0})']
        if s == 5 and NE == 7:
            gaps[7] += [f'v_add_u32 v31, 16, v{V_GRP}', f'ds_read_b32 v31, v31']
        if s == 6 and NE == 7:
            gaps[OPT['qa']] += ['s_waitcnt vmcnt(0)', f'v_mov_b32 v{V_T}, 7', f'ds_write_b32 v{V_OWN}, v{V_T}']
        e('\n'.join(pre))
        if OPT['gx'] & 1: M = ['s_nop 0'] * 8
        if OPT['gx'] & 2: gaps = [[x for x in g if 'tr_b16' not in x] for g in gaps]
        for i in range(8):
            e(M[i]); e('\n'.join(gaps[i]))
        stamp(14 + s)
gemm1(False)
e('s_branch L_gemm_done\nL_gemm_v:')
gemm1(True)
e('L_gemm_done:')
stamp(3)
e(f"""s_add_u32 s{sS1}, s{sSt}, s{sS2}
s_add_u32 s{sXb}, s{sSt}, {4*KS}
s_add_u32 s{sCw}, s{sS1}, {4*KS}
s_cmp_eq_u32 s{S_C}, 7
s_waitcnt lgkmcnt(0)
s_cbranch_scc1 L_nokv
s_nop 4""")
for q, so in enumerate((sSt, sS1, sXb, sCw)):
    for i in range(4*q, 4*q+4):
        e(f'v_cvt_pk_bf16_f32 v{VPK + i}, v{VACC + 2*i}, v{VACC + 2*i + 1}')
    e(f'buffer_store_dwordx4 {vr(VPK+4*q,4)}, v{vSt}, {sr(SRD_WS)}, s{so} offen sc1')
e('L_nokv:')
if NE < 7:
    NM = max(NE, OPT['wq_mid'])
    for st in range(NE, NM): e('\n'.join(wq_dma(st)))
    stamp(4)
    e(f'v_add_u32 v31, 16, v{V_GRP}')
    lwait(1, addr=31)
    e(f's_waitcnt vmcnt({NM - NE})')
    publish(sFl, 31)
    stamp(5)
    for st in range(NM, 7): e('\n'.join(wq_dma(st)))
    e(f's_waitcnt vmcnt({1 if NM == 7 else 0})')
    arrive(7)
else:
    stamp(4)
    e(f'v_cmp_gt_u32 vcc, 1, v31\ns_cbranch_vccz L_eok\nv_add_u32 v31, 16, v{V_GRP}')
    lwait(1, addr=31)
    e('L_eok:')
lwait(7)
stamp(6)
fill = [f'v_mov_b64 {vr(VV+2*i,2)}, s[78:79]' for i in range(16)] + [f'v_subrev_u32 v{vRr}, {L_X - L_RB}, v{vQw}']
for s in range(3):
    fill += f'''s_add_u32 s{sTmp}, s{S_W}, {1+s}
    s_and_b32 s{sTmp}, s{sTmp}, 3
    s_sub_u32 s{sTmp}, s{sTmp}, s{S_W}
    s_mul_i32 s{sTmp}, s{sTmp}, 12288
    v_add_u32 v{vQx[s]}, s{sTmp}, v{vQw}
    v_subrev_u32 v{vRb[s]}, {L_X - L_RB - 4096*s}, v{vQx[s]}'''.split('\n')
def q_reads(k):
    s, ks = divmod(k, 4)
    return [f'ds_read_b64_tr_b16 {vr(64 + 4*(k%8) + 2*hf, 2)}, v{vQr} offset:{ks*12288 + s*1024 + hf*256}' for hf in range(2)]
for k in range(6): e('\n'.join(q_reads(k)))
e('\n'.join(fill[:12])); fill = fill[12:]
zi = 0
for k in range(28):
    e(f's_waitcnt lgkmcnt({min(10, 2*(27-k))})')
    e(f'v_mfma_f32_32x32x16_bf16 {vr(VACC,16)}, {vr(64 + 4*(k%8), 4)}, {vr(VX + 4*k, 4)}, {"0" if k == 0 else vr(VACC,16)}')
    if k + 6 < 28: e('\n'.join(q_reads(k + 6)))
    while zi < 40 and VX + 2*zi + 1 < VX + 4*k - 4 and zi < 2*k:
        e(f'v_mov_b64 {vr(VX + 2*zi, 2)}, 0'); zi += 1
    if k >= 22 or k < 2:
        e('\n'.join(fill[:4])); fill = fill[4:]
    if NE == 7 and k == OPT['pubk']:
        e('s_waitcnt vmcnt(0)'); publish(sFl, 31); stamp(5)
    if k == OPT['pollk']: e(f'buffer_load_dword v31, v{vFl}, {sr(SRD_WS)}, 0 offen sc1')
assert zi == 40 and VX == VS + 48 and not fill
stamp(7)
def kv_loads(buf, i, srdn=SRD_C):
    return [f'buffer_load_dwordx4 {vr(VK + 8*buf, 4)}, v{vKo0}, {sr(srdn)}, s{sK} offen offset:{512*i} sc1',
            f'buffer_load_dwordx4 {vr(VK + 8*buf + 4, 4)}, v{vKo1}, {sr(srdn)}, s{sK} offen offset:{512*i} sc1',
            f's_mov_b64 exec, s[{sMask}:{sMask+1}]',
            f'buffer_load_dwordx4 {vr(VV + 8*buf, 4)}, v{vVo}, {sr(srdn)}, s{sV} offen offset:{256*i} sc1',
            f'buffer_load_dwordx4 {vr(VV + 8*buf + 4, 4)}, v{vVo}, {sr(srdn)}, s{sV} offen offset:{256*i + 128} sc1',
            's_mov_b64 exec, -1']
e('s_nop 11')
for r in range(16):
    m = vA if r < 4 else (vB if r >= 12 else vC)
    e(f'v_mul_f32 v{VACC + r}, v{m}, v{VACC + r}')
for i in range(8):
    e(f'v_cvt_pk_bf16_f32 v{VQ + 24 + i}, v{VACC + 2*i}, v{VACC + 2*i + 1}')
e(f"""ds_write_b128 v{vQw}, {vr(VQ+24,4)}
ds_write_b128 v{vQw}, {vr(VQ+28,4)} offset:1024""")
arrive(8)
poll(vFl, first_issued=OPT['pollk'] < 28, reg=31, sleep=OPT['ksleep'])
for t in range(3): e('\n'.join(kv_loads(t, t)))
OM = OPT['omode']
if OM:
    e(f'v_mov_b64 v[128:129], -1\nv_mov_b64 v[130:131], -1\nv_mov_b32 v{vSt}, s{S_NONCE}\nv_mov_b32 v31, 0')
    o_stores(128, 128, 'c')
stamp(8)
lwait(8)
for s in range(3):
    e(f'ds_read_b128 {vr(VQ+8*s,4)}, v{vQx[s]}\nds_read_b128 {vr(VQ+8*s+4,4)}, v{vQx[s]} offset:1024')
def qk(buf, slot, js):
    d = vr(VS + 16*slot, 16)
    return f'v_mfma_f32_32x32x16_bf16 {d}, {vr(VK + 8*buf + 4*js, 4)}, {vr(VQ + 8*slot + 4*js, 4)}, {"0" if js == 0 else d}'
def pv(buf, slot, js):
    return f'v_smfmac_f32_32x32x32_bf16 {vr(VO + 16*slot, 16)}, {vr(VV + 8*buf + 4*js, 4)}, {vr(VS + 16*slot + 8*js, 8)}, v{vIdx}'
def exps(s): return [f'v_exp_f32 v{VS + 16*s + r}, v{VS + 16*s + r}' for r in range(16)]
SPREAD = []
def unit(t, s):
    ex = exps(s)
    if OPT['ax'] & 16 and s in (0, 1, 2):
        pass
    nb = t if s < 3 else (t + 1) & 3
    pb = t if s > 0 else (t - 1) & 3
    if s == 3: e('s_waitcnt vmcnt(8)')
    e(qk(nb, (s+1) & 3, 0)); e('\n'.join(ex[0:4]))
    e(qk(nb, (s+1) & 3, 1)); e('\n'.join(ex[4:8]))
    e(pv(pb, (s-1) & 3, 0))
    if s == 1:
        kl = kv_loads((t + 3) & 3, t + 3)
        if t == 2 and OM:
            kl[-1:-1] = ['s_mov_b64 exec, 1', f'buffer_store_dword v{vSt}, v31, {sr(SRD_C)}, s{sFo} offen sc1']
        if OPT['ax'] & 1: kl = [x for x in kl if 'exec' not in x]
        if OPT['ax'] & 2: kl = [x for x in kl if 'buffer' not in x]
        if OPT['ax'] & 4: kl = [x.replace(' sc1', '') for x in kl]
        if OPT['ax'] & 8: SPREAD.extend(kl); kl = []
        e('\n'.join(kl))
        if t == 0:
            e(f's_cmp_eq_u32 s{sIt}, 3\ns_cselect_b32 s{SRD_C+2}, 0, s{SRD_C+2}')
        if t == 3:
            e(f's_add_u32 s{sK}, s{sK}, 2048\ns_add_u32 s{sV}, s{sV}, 1024\ns_add_u32 s{sIt}, s{sIt}, 1\ns_cmp_lg_u32 s{sIt}, 4')
    e('\n'.join(ex[8:12]))
    e(pv(pb, (s-1) & 3, 1)); e('\n'.join(ex[12:16]))
e(f's_mov_b32 s{sIt}, 0\ns_waitcnt vmcnt({11 if OM else 8}) lgkmcnt(0)')
stamp(9)
e(qk(0, 0, 0)); e(qk(0, 0, 1))
e('s_setprio 0\ns_nop 8\ns_branch L_att_in' if OPT['prio'] else 's_nop 9\ns_branch L_att_in')
e('L_att:')
unit(3, 2); unit(3, 3)
e('L_att_in:')
for t in range(4):
    for s in range(4):
        if (t, s) < (3, 2): unit(t, s)
e('s_cbranch_scc1 L_att')
if OPT['prio']: e(f"s_setprio {OPT['pm']}")
def rbw(s): return [f'ds_write_b128 v{vRb[s]}, {vr(VO + 16*s + 4*i, 4)} offset:{1024*i}' for i in range(4)]
ex = exps(2); w0 = rbw(0)
e(qk(3, 3, 0)); e('\n'.join(ex[0:4])); e(qk(3, 3, 1)); e('\n'.join(ex[4:7] + [w0[0]]))
e(pv(3, 1, 0)); e('\n'.join(ex[7:10] + [w0[1]])); e(pv(3, 1, 1)); e('\n'.join(ex[10:13] + [w0[2]] + ex[13:16] + [w0[3]]))
ex = exps(3); w1 = rbw(1); w2 = rbw(2)
e(pv(3, 2, 0)); e('\n'.join(ex[0:3])); e(pv(3, 2, 1))
e('\n'.join([w1[0]] + ex[3:5] + [w1[1]] + ex[5:7] + [w1[2]] + ex[7:9] + [w1[3]] + ex[9:10]))
e(pv(3, 3, 0))
e('\n'.join([w2[0]] + ex[10:12] + [w2[1]] + ex[12:14] + [w2[2]] + ex[14:16] + [w2[3]]))
arrive(9)
e(pv(3, 3, 1))
stamp(10)
lwait(9)
for i in range(12): e(f'ds_read_b128 {vr(VS + 4*i, 4)}, v{vRr} offset:{1024*i}')
OA = VO + 48
for s in range(3):
    e(f's_waitcnt lgkmcnt({8 - 4*s})')
    for i in range(8): e(f'v_pk_add_f32 {vr(OA+2*i,2)}, {vr(OA+2*i,2)}, {vr(VS+16*s+2*i,2)}')
e(f's_mov_b32 s{sIt}, {1 if OPT["force_fb"] else 0}')
e(f'''L_norm:
v_cndmask_b32 v{vA}, v{OA+12}, v{OA}, s[{sOdd}:{sOdd+1}]
v_max3_f32 v{vC}, abs(v{OA}), abs(v{OA+1}), abs(v{OA+2})
v_mov_b32 v{vB}, v{vA}
v_max3_f32 v{vC}, abs(v{OA+3}), abs(v{OA+4}), v{vC}
v_max3_f32 v{vC}, abs(v{OA+5}), abs(v{OA+6}), v{vC}
v_permlane32_swap_b32 v{vA}, v{vB}
v_max3_f32 v{vC}, abs(v{OA+7}), abs(v{OA+8}), v{vC}
v_cndmask_b32 v{vB}, v{vB}, v{vA}, s[{sOdd}:{sOdd+1}]
v_max3_f32 v{vC}, abs(v{OA+9}), abs(v{OA+10}), v{vC}
v_rcp_f32 v{vA}, v{vB}
v_max3_f32 v{vC}, abs(v{OA+11}), abs(v{OA+12}), v{vC}
v_max3_f32 v{vC}, abs(v{OA+13}), abs(v{OA+14}), v{vC}
v_max_f32 v{vC}, abs(v{OA+15}), v{vC}
v_cmp_nle_f32 vcc, 0x30800000, v{vB}
s_mov_b64 s[78:79], vcc
v_cmp_nge_f32 vcc, 0x4e800000, v{vB}
s_or_b64 s[78:79], s[78:79], vcc
v_cmp_ngt_f32 vcc, 0x7f000000, v{vC}
s_or_b64 vcc, s[78:79], vcc''')
if OPT['force_fb']:
    e(f's_cmp_eq_u32 s{sIt}, 1\ns_cbranch_scc1 L_fb')
e('s_cbranch_vccnz L_fb0\nL_norm2:')
for i in range(8): e(f'v_pk_mul_f32 {vr(OA+2*i,2)}, {vr(OA+2*i,2)}, {vr(vA,2)} op_sel_hi:[1,0]')
for i in range(8): e(f'v_cvt_pk_bf16_f32 v{VS+i}, v{OA+2*i}, v{OA+2*i+1}')
o_stores(VS, VS + 4, '')
stamp(11)
if OM == 2:
    e(f's_add_u32 s{sFo}, s{sFo}, {F_H - F_O}'); publish(sFo, vA)
if OPT['obar']: e('s_barrier')
if OM == 0:
    e('s_waitcnt vmcnt(0)'); publish(sFo, vA)
stamp(12)
prof_out()
e('s_endpgm')

for tag, st in SPIN:
    e(f'L_ws_{tag}:'); lwait(st); e(f's_branch L_wb_{tag}')
sec('fb')
e(f'''L_fb0:
s_cmp_eq_u32 s{sIt}, 2
s_cbranch_scc1 L_norm2
L_fb:
s_waitcnt vmcnt(0)
s_mul_i32 s{sTmp}, s{S_O0}, {KS}
s_add_u32 s{sK}, s{sTmp}, {WS_K}
s_add_u32 s{sV}, s{sTmp}, {WS_V}
v_mov_b32 v{vC}, 0xff800000
s_mov_b32 s{sIt}, 0
L_fb1:''')
e('\n'.join(kv_loads(0, 0, SRD_WS)[:2]))
e('s_waitcnt vmcnt(0)')
e(qk(0, 3, 0)); e(qk(0, 3, 1)); e('s_nop 11')
for i in range(8): e(f'v_max3_f32 v{vC}, v{VS+48+2*i}, v{VS+49+2*i}, v{vC}')
e(f'''s_add_u32 s{sK}, s{sK}, 512
s_add_u32 s{sIt}, s{sIt}, 1
s_cmp_lg_u32 s{sIt}, 64
s_cbranch_scc1 L_fb1
v_mov_b32 v{vA}, v{vC}
s_sub_u32 s{sK}, s{sK}, 0x8000
s_mov_b32 s{sIt}, 0
v_permlane32_swap_b32 v{vA}, v{vC}
v_max_f32 v{vC}, v{vA}, v{vC}''')
for i in range(8): e(f'v_mov_b64 {vr(OA+2*i,2)}, 0')
e('L_fb2:')
e('\n'.join(kv_loads(0, 0, SRD_WS)))
e('s_waitcnt vmcnt(0)')
e(qk(0, 3, 0)); e(qk(0, 3, 1)); e('s_nop 11')
for i in range(16): e(f'v_sub_f32 v{VS+48+i}, v{VS+48+i}, v{vC}')
for i in range(16): e(f'v_exp_f32 v{VS+48+i}, v{VS+48+i}')
e('s_nop 1')
e(pv(0, 3, 0)); e(pv(0, 3, 1))
e(f'''s_add_u32 s{sK}, s{sK}, 512
s_add_u32 s{sV}, s{sV}, 256
s_add_u32 s{sIt}, s{sIt}, 1
s_cmp_lg_u32 s{sIt}, 64
s_cbranch_scc1 L_fb2
s_mov_b32 s{sIt}, 2
s_nop 11
s_branch L_norm''')

sD0, sD, sHw, sDs, sTab, sA, sB, sLd, sSk, sIt2, sFlU, sInv, sUns, sSel, sUl, sOl, sCh0 = range(60, 77)
sUs, sOut, sHm = 78, 80, 82
sE2, sE0, sE3, sKd = 84, 85, 86, 87
OUTM = 'sc1' if OPT['outsc'] & 1 else ''
OUTM2 = 'sc1' if OPT['outsc'] & 2 else ''
a0, a1, a2, a3 = 5, 6, 7, 9
vPar = 10
vKc = 18
vRa, vRb_, vKd, vKd1, vKd2, vUs, vFu, vE1, vE1b, vE2, vSa, vSb, vS1, vFr, vKxo, vKxp = range(20, 36)
vAc = 40
vOne, vScl, vAdd, vC0 = range(56, 60)
vOp = 64
vY = 128
vXt = 144
vAn = 166
vX1 = 172
T0, T1 = 160, 176
vZ = 192
U = 204
vZer = 220
vUa, vCd, vG_, vZp, vKp, vF_, vL16, vXo, vXp, vTr, vYl, vYs, vFy = range(224, 237)
vWoD = 238
vWoR = 240
vOl, vFo, vBw, vBr, vOut = range(242, 247)
def hi():
    if OPT['prio']: e('s_setprio 3')
KG = [True]
def lo():
    if OPT['prio']: e(f"s_setprio {OPT['kgp'] if KG[0] else OPT['ps']}")
ROLE[0] = 1
sec('ssm0')
e(f"""s_cmp_{'eq' if OPT['only'] != 2 else 'le'}_u32 s{S_C}, 7
s_cbranch_scc1 L_ssm_idle
s_lshr_b32 s{sDs}, s{S_W}, 1
s_lshl_b32 s{sD0}, s{S_C}, 6
s_lshl1_add_u32 s{sD0}, s{S_J}, s{sD0}
s_add_u32 s{sD}, s{sD0}, s{sDs}
s_mul_i32 s{sTab}, s{S_W}, {TABSZ}
s_add_u32 s{sTab}, s{sTab}, {L_TAB}
s_lshl1_add_u32 s{sA}, s{sD0}, s{S_W}
s_lshl_b32 s{sA}, s{sA}, 8
v_lshl_add_u32 v{a0}, v{V_LANE}, 2, s{sA}
v_lshrrev_b32 v{a1}, 3, v{V_LANE}
v_mul_u32_u24 v{a1}, 896, v{a1}
v_and_b32 v{a2}, 7, v{V_LANE}
v_lshl_add_u32 v{a1}, v{a2}, 4, v{a1}
v_add_u32 v{a2}, {7168-1024}, v{a1}
s_lshl2_add_u32 s{sFlU}, s{S_J}, s{S_W}
s_mul_i32 s{sA}, s{sFlU}, {16*896}
s_lshl_b32 s{sB}, s{S_C}, 7
s_add_u32 s{sA}, s{sA}, s{sB}
s_mov_b32 m0, s{sTab}
s_lshl_b32 s{sB}, s{sD0}, 1
s_mov_b32 s{SRD_A+2}, {2048*896}
s_mov_b32 s{SRD_A+3}, 0x20000
s_waitcnt lgkmcnt(0)
s_load_dword s{sLd}, s[14:15], s{sB}
s_load_dword s{S_NONCE}, s[28:29], 0
s_load_dword s{sSk}, s[16:17], s{sB}
s_mov_b64 s[{SRD_A}:{SRD_A+1}], s[4:5]
global_load_dword v{vPar+0}, v{a0}, s[6:7]
global_load_dword v{vPar+1}, v{a0}, s[8:9]
global_load_dword v{vPar+2}, v{a0}, s[10:11]
global_load_dword v{vPar+3}, v{a0}, s[12:13]
buffer_load_dwordx4 v{a1}, {sr(SRD_A)}, s{sA} offen lds
buffer_load_dwordx4 v{a2}, {sr(SRD_A)}, s{sA} offen offset:1024 lds
s_barrier""")
if OPT['tlb']:
    e(f'''v_and_b32 v{a0}, 7, v{V_LANE}
    v_min_u32 v{a0}, 5, v{a0}
    v_lshlrev_b32 v{a0}, 21, v{a0}
    v_add_u32 v{a0}, 0xf8000, v{a0}
    v_mov_b32 v{a1}, 0
    global_load_dword v8, v{a0}, s[28:29]
    global_load_dword v8, v{a1}, s[22:23]''')
e('s_branch L_ssm')
sec('ssm')
e('L_ssm:')
if OPT['abl'] == 1:
    arrive(1); e('s_waitcnt vmcnt(0) lgkmcnt(0)\ns_endpgm')
lo()
srd(SRD_WS, 28, WS_SIZE)
e(f"""s_lshl_b32 s{sUs}, s{sFlU}, 7
s_mul_i32 s{sA}, s{S_C}, {16*QS}
s_add_u32 s{sUs}, s{sUs}, s{sA}
s_add_u32 s{sUs}, s{sUs}, {WS_U}
s_add_u32 s{sUs+1}, s{sUs}, {8*QS}
s_lshl_b32 s{sA}, s{S_C}, {7 + FSH}
s_add_u32 s{sUl}, s{sA}, {F_U}
s_lshl_b32 s{sFlU}, s{sFlU}, {FSH}
s_add_u32 s{sFlU}, s{sFlU}, s{sUl}
s_and_b32 s{sHw}, s{S_W}, 1
v_add_u32 v{V_GRP}, 16, v{V_GRP}
v_and_b32 v{a0}, 15, v{V_LANE}
v_lshrrev_b32 v{a1}, 4, v{V_LANE}
v_lshl_add_u32 v{vRb_}, v{a1}, 4, s{sTab}
v_mul_u32_u24 v{a2}, {TROW}, v{a0}
v_add_u32 v{vRa}, v{a2}, v{vRb_}
v_bfe_u32 v{a0}, v{V_LANE}, 2, 2
v_and_b32 v{a3}, 1, v{V_LANE}
v_lshl_or_b32 v{a2}, v{a3}, 3, v{a0}
v_lshl_add_u32 v{vTr}, v{a2}, 7, v{vRb_}
v_and_b32 v{a2}, 2, v{V_LANE}
v_lshl_add_u32 v{vTr}, v{a2}, 2, v{vTr}
v_lshlrev_b32 v{vL16}, 4, v{V_LANE}
v_lshrrev_b32 v{a1}, 3, v{V_LANE}
v_and_b32 v{a2}, 0x70, v{vL16}
v_mul_u32_u24 v{a1}, {QS}, v{a1}
v_add_u32 v{vUs}, v{a1}, v{a2}
v_add_u32 v{vXo}, s{sTab}, v{vL16}
v_mov_b32 v{vOne}, 0x3c00""")
for i in range(8): e(f'v_mov_b64 {vr(vAc+2*i,2)}, 0')
mid = f"""v_min_u32 v{a0}, 32, v{V_LANE}
s_lshl_b32 s{sB}, s{S_W}, 5
s_sub_u32 s{sB}, s{sB}, 1
v_add_u32 v{a0}, s{sB}, v{a0}
v_max_i32 v{a0}, 0, v{a0}
v_lshl_add_u32 v{vFu}, v{a0}, {FSH}, s{sUl}
s_cmp_lg_u32 s{sHw}, 0
s_cselect_b64 s[{sHm}:{sHm+1}], -1, 0
s_mov_b32 s{sE0}, 0x05040504
s_mov_b32 s{sE3}, 0x01000100
s_cselect_b32 s{sE2}, s{sE3}, 0x01000302
v_and_b32 v{a0}, 15, v{V_LANE}
v_lshrrev_b32 v{a1}, 4, v{V_LANE}
s_lshl_b32 s{sKd}, s{sDs}, 11
s_add_u32 s{sKd}, s{sKd}, {L_KD}
s_lshl_b32 s{sA}, s{sHw}, 4
v_add_u32 v{a0}, s{sA}, v{a0}
v_lshlrev_b32 v{a2}, 9, v{a1}
v_lshl_add_u32 v{a2}, v{a0}, 2, v{a2}
s_add_u32 s{sA}, s{sKd}, 1024
v_add_u32 v{vKd2}, s{sA}, v{a2}
v_max_u32 v{a2}, 1, v{a1}
v_sub_u32 v{a2}, 5, v{a2}
v_lshlrev_b32 v{a0}, v{a2}, v{a0}
v_lshlrev_b32 v{a2}, 3, v{a1}
s_mov_b32 s{sA}, 0x60400100
v_bfe_u32 v{a3}, s{sA}, v{a2}, 8
v_lshl_add_u32 v{a0}, v{a3}, 3, v{a0}
v_add_u32 v{vKd}, s{sKd}, v{a0}
s_mov_b32 s{sA}, 0x80040404
v_bfe_u32 v{a3}, s{sA}, v{a2}, 8
v_add_u32 v{vKd1}, v{a3}, v{vKd}
v_bfe_u32 v{a0}, v{V_LANE}, 2, 2
v_and_b32 v{a3}, 1, v{V_LANE}
v_lshrrev_b32 v{a1}, 1, v{V_LANE}
v_lshlrev_b32 v{vUa}, 6, v{a1}
v_lshl_add_u32 v{vUa}, v{a3}, 4, v{vUa}
s_lshr_b32 s{sA}, s{sD0}, 2
s_mul_i32 s{sA}, s{sA}, {QS}
s_and_b32 s{sB}, s{sD0}, 3
s_lshl4_add_u32 s{sA}, s{sB}, s{sA}
s_lshl_b32 s{sB}, s{S_W}, 12
s_add_u32 s{sA}, s{sA}, s{sB}
s_add_u32 s{sUl}, s{sA}, {WS_U - 64}
v_mul_u32_u24 v{a2}, {UC_D}, v{a3}
v_lshl_add_u32 v{a2}, v{a1}, 4, v{a2}
s_lshl_b32 s{sA}, s{S_W}, 10
s_add_u32 s{sA}, s{sA}, {L_UC + 64}
v_add_u32 v{vCd}, s{sA}, v{a2}
v_mul_u32_u24 v{a3}, 0x0404, v{a3}
v_lshlrev_b32 v{a3}, 16, v{a3}
v_add_u32 v{a3}, 0x01000504, v{a3}
v_mov_b32 v{vS1}, 0x03020302
v_cndmask_b32 v{vS1}, v{vS1}, v{a3}, s[{sHm}:{sHm+1}]
v_lshrrev_b32 v{a1}, 5, v{V_LANE}
v_mul_u32_u24 v{a3}, 0x0202, v{a1}
v_sub_u32 v{vSb}, 0x01000302, v{a3}
v_lshl_or_b32 v{a3}, v{a3}, 16, v{a3}
v_sub_u32 v{vSa}, 0x05040706, v{a3}
v_lshrrev_b32 v{a3}, v{a1}, v{vL16}
v_lshl_add_u32 v{a3}, v{a1}, 8, v{a3}
v_add_u32 v{vE1}, s{sKd}, v{a3}
v_lshlrev_b32 v{a3}, 2, v{a1}
v_sub_u32 v{vE1b}, v{vE1}, v{a3}
s_lshl_b32 s{sB}, s{sHw}, 9
s_add_u32 s{sA}, s{sKd}, s{sB}
s_add_u32 s{sA}, s{sA}, 512
v_lshl_add_u32 v{vE2}, v{V_LANE}, 2, s{sA}
s_xor_b32 s{sA}, s{S_W}, 1
s_mul_i32 s{sA}, s{sA}, {TABSZ}
s_add_u32 s{sA}, s{sA}, {L_TAB}
v_add_u32 v{vXp}, s{sA}, v{vL16}
s_mul_i32 s{sA}, s{sDs}, 6144
s_add_u32 s{sA}, s{sA}, {L_KP}
s_add_u32 s{sInv}, s{sA}, s{sB}
s_mul_i32 s{sB}, s{sHw}, 3072
s_add_u32 s{sB}, s{sB}, s{sA}
v_lshl_add_u32 v{a2}, v{a1}, 10, v{vL16}
v_add_u32 v{vG_}, s{sB}, v{a2}
v_mov_b64 {vr(vZer,2)}, 0
v_mov_b64 {vr(vZer+2,2)}, 0
v_and_b32 v{a3}, 3, v{V_LANE}
v_mul_u32_u24 v{a2}, {UC_S}, v{a0}
v_lshl_add_u32 v{a2}, v{a3}, 4, v{a2}
s_mul_i32 s{sB}, s{sDs}, {UC_D}
s_add_u32 s{sB}, s{sB}, {L_UC}
v_add_u32 v{vZp}, s{sB}, v{a2}
v_mul_u32_u24 v{a2}, {1536 - 4}, v{a3}
v_lshl_add_u32 v{a2}, v{V_LANE}, 2, v{a2}
v_add_u32 v{vKp}, s{sInv}, v{a2}
v_xor_b32 v{a3}, 3, v{a3}
v_mul_u32_u24 v{a3}, {UC_S}, v{a3}
v_bfe_u32 v{a2}, v{V_LANE}, 2, 3
v_lshl_add_u32 v{a3}, v{a2}, 3, v{a3}
v_lshlrev_b32 v{a1}, 4, v{a1}
v_sub_u32 v{a3}, v{a3}, v{a1}
s_lshl_b32 s{sA}, s{sHw}, 5
s_sub_u32 s{sB}, s{sB}, s{sA}
s_add_u32 s{sB}, s{sB}, 56
v_add_u32 v{vF_}, s{sB}, v{a3}
s_mul_i32 s{sA}, s{S_W}, 1536
s_add_u32 s{sA}, s{sA}, {L_KX}
v_add_u32 v{vKxo}, s{sA}, v{vL16}
s_xor_b32 s{sA}, s{S_W}, 1
s_mul_i32 s{sA}, s{sA}, 1536
s_add_u32 s{sA}, s{sA}, {L_KX}
v_add_u32 v{vKxp}, s{sA}, v{vL16}
s_cmp_eq_u32 s{S_W}, 0
s_cselect_b64 s[88:89], 3, 0
"""
e(mid)
stamp(22)
e(f's_waitcnt lgkmcnt(0)\ns_add_u32 s{S_NONCE}, s{S_NONCE}, 1')
arrive(1)
e(f"""s_lshl_b32 s{sA}, s{sDs}, 4
s_lshr_b32 s{sLd}, s{sLd}, s{sA}
s_lshl_b32 s{sLd}, s{sLd}, 16
s_lshr_b32 s{sSk}, s{sSk}, s{sA}
s_lshl_b32 s{sSk}, s{sSk}, 16
v_mov_b32 v{a0}, s{sLd}
v_mul_f32 v{a0}, 0x3fb8aa3b, v{a0}
v_exp_f32 v{a0}, v{a0}
s_cmp_eq_u32 s{sHw}, 0
s_cselect_b32 s{sSk}, s{sSk}, 0
v_cvt_pk_bf16_f32 v{a0}, v{a0}, v{a0}
v_and_b32 v{vScl}, 0xffff0000, v{a0}
v_mul_f32 v{vKc}, 0xbfb8aa3b, v{vScl}
v_mul_f32 v{vKc+1}, 0.15915494, v{vScl}
v_mov_b32 v{vAdd}, 0
v_add_f32 v{vScl}, v{vScl}, v{vScl}
v_writelane_b32 v{vAdd}, s{sSk}, 0
s_mov_b32 s{sIt2}, 0
s_mov_b32 s{sSel}, 0x01000c0c""")
stamp(0)
e(f"""s_waitcnt vmcnt({4 if OPT['tlb'] else 2})
v_and_b32 v{a0}, 0x7f807f80, v{vPar+2}
v_and_b32 v{a1}, 0x7f807f80, v{vPar+3}
v_pk_max_u16 v{a0}, v{a0}, v{a1}
v_lshlrev_b32 v{a1}, 16, v{a0}
v_max_u32 v{a0}, v{a0}, v{a1}
s_waitcnt vmcnt({2 if OPT['tlb'] else 0})""")
for q, n in enumerate((1, 2, 4, 8)):
    z, hf = divmod(q, 2)
    e(f'ds_read_b64_tr_b16 {vr(U + 4*z + 2*hf, 2)}, v{vTr} offset:{64*z + 512*hf}')
    e(f's_nop 0\nv_max_u32_dpp v{a0}, v{a0}, v{a0} row_ror:{n} row_mask:0xf bank_mask:0xf')
e(f"""s_nop 0
v_readlane_b32 s{sA}, v{a0}, 0
v_readlane_b32 s{sB}, v{a0}, 16
v_readlane_b32 s{sInv}, v{a0}, 32
v_readlane_b32 s{sUns}, v{a0}, 48
s_max_u32 s{sA}, s{sA}, s{sB}
s_max_u32 s{sUns}, s{sUns}, s{sInv}
s_max_u32 s{sUns}, s{sUns}, s{sA}
s_and_b32 s{sUns}, s{sUns}, 0x7f800000
s_min_u32 s{sUns}, s{sUns}, 0x7e800000
s_sub_u32 s{sInv}, 0x7f000000, s{sUns}
v_mul_f32 v{vScl}, s{sUns}, v{vScl}""")
hi()
e(f"""s_waitcnt lgkmcnt(0)
buffer_store_dwordx4 {vr(U,4)}, v{vUs}, {sr(SRD_WS)}, s{sUs} offen sc1
buffer_store_dwordx4 {vr(U+4,4)}, v{vUs}, {sr(SRD_WS)}, s{sUs+1} offen sc1""")
lo()
e(f'ds_write_addtid_b32 v{vOne}')
stamp(1)
if OPT['abl'] == 2: e('s_endpgm')
def cm(jobs, conj):
    ng = 'neg_hi:[1,0,0]' if conj else 'neg_lo:[1,0,0]'
    return [f'v_pk_mul_f16 v{d}, v{x}, v{w} op_sel_hi:[1,0]' for d, x, w in jobs] + \
           [f'v_pk_fma_f16 v{d}, v{x}, v{w}, v{d} op_sel:[1,1,0] op_sel_hi:[0,1,1] {ng}' for d, x, w in jobs]
def wr(reg): return f'ds_write_addtid_b32 v{reg} offset:{TROW*(reg - vY)}'
assert vXt == vY + 16
zA, zB, tA, tB, pA, pB = vZ, vZ+2, vZ+4, vZ+6, vZ+8, vZ+10
X = vXt; Y = vY
an = {1: vAn, 2: vAn+1, 4: vAn+2, 8: Y+1, 16: Y+2, 32: Y+4, 64: Y+8, 128: X+21, 256: vAn+3, 512: vAn+4, 1024: vAn+5}
e('L_kg:')
stamp(14)
seq = f"""v_perm_b32 v{pA}, v{vPar}, v{vPar}, s{sSel}
v_mul_f32 v{pA}, 0x3fb8aa3b, v{pA}
v_exp_f32 v{pA}, v{pA}
v_perm_b32 v{pA+1}, v{vPar+1}, v{vPar+1}, s{sSel}
v_perm_b32 v{tA}, v{vPar+2}, v{vPar+2}, s{sSel}
v_perm_b32 v{tA+1}, v{vPar+3}, v{vPar+3}, s{sSel}
v_cvt_pk_bf16_f32 v{pA}, v{pA}, v{pA}
v_mul_f32 v{tA}, s{sInv}, v{tA}
v_and_b32 v{pA}, 0xffff0000, v{pA}
v_mul_f32 v{tA+1}, s{sInv}, v{tA+1}
v_pk_mul_f32 {vr(pA,2)}, {vr(pA,2)}, {vr(vKc,2)}
v_cvt_pk_f16_f32 v{X}, v{tA}, -v{tA+1}
v_mul_f32 v{pB}, 0x42800000, v{pA}
v_mul_f32 v{pB+1}, 0x42800000, v{pA+1}
v_exp_f32 v{pA}, v{pA}
v_fract_f32 v{pA+1}, v{pA+1}
v_exp_f32 v{pB}, v{pB}
v_fract_f32 v{pB+1}, v{pB+1}
v_cos_f32 v{zA}, v{pA+1}
v_sin_f32 v{zA+1}, v{pA+1}
v_cos_f32 v{zB}, v{pB+1}
v_sin_f32 v{zB+1}, v{pB+1}
v_pk_mul_f32 {vr(zA,2)}, {vr(zA,2)}, {vr(pA,2)} op_sel_hi:[1,0]
v_pk_mul_f32 {vr(zB,2)}, {vr(zB,2)}, {vr(pB,2)} op_sel_hi:[1,0]""".split('\n')
for st in range(6):
    chains = [(zA, tA, an[1 << st], st < 5)] + ([(zB, tB, an[64 << st], st < 4)] if st < 5 else [])
    for z, t, d, sq in chains:
        if sq: seq.append(f'v_pk_mul_f32 {vr(t,2)}, {vr(z,2)}, {vr(z,2)} op_sel_hi:[0,1]')
    for z, t, d, sq in chains: seq.append(f'v_cvt_pk_f16_f32 v{d}, v{z}, v{z+1}')
    for z, t, d, sq in chains:
        if sq: seq.append(f'v_pk_fma_f32 {vr(z,2)}, {vr(z,2)}, {vr(z,2)}, {vr(t,2)} op_sel:[1,1,0] op_sel_hi:[0,1,1] neg_lo:[1,0,0]')
seq += cm([(X+1, X, an[1]), (X+2, X, an[2]), (X+4, X, an[4]), (X+8, X, an[256]), (X+12, X, an[512]), (X+16, X, an[1024])], True)
seq += cm([(Y+3, Y+1, Y+2), (Y+12, Y+4, Y+8), (Y+5, Y+4, Y+1), (Y+6, Y+4, Y+2), (Y+9, Y+8, Y+1), (Y+10, Y+8, Y+2)], False)
seq += cm([(X+3, X+1, an[2]), (X+5, X+1, an[4]), (X+6, X+2, an[4]), (X+9, X+2, an[256]), (X+10, X+4, an[256]), (X+13, X+4, an[512]),
           (X+14, X+8, an[512]), (X+17, X+8, an[1024]), (X+18, X+12, an[1024]), (X+20, X+16, an[1024])], True)
seq += cm([(Y+7, Y+4, Y+3), (Y+11, Y+8, Y+3), (Y+13, Y+12, Y+1), (Y+14, Y+12, Y+2), (Y+15, Y+12, Y+3)], False)
seq += cm([(X+7, X+3, an[4]), (X+11, X+6, an[256]), (X+15, X+10, an[512]), (X+19, X+14, an[1024])], True)
e('\n'.join(seq))
stamp(15)
if OPT['kgw']:
    e(f'v_subrev_u32 v{a0}, 16, v{V_GRP}'); lwait(OPT['kgw'], addr=a0)
hi()
if OPT['abl'] != 4: e('\n'.join(wr(r) for r in range(Y + 1, X + 22)))
for k in range(4):
    o = vOp + 16*k
    e(f"""ds_read_b128 {vr(o,4)}, v{vRa} offset:{64*k}
    ds_read_b128 {vr(o+4,4)}, v{vRb_} offset:{37*TROW + 64*k}
    ds_read_b128 {vr(o+8,4)}, v{vRa} offset:{16*TROW + 64*k}
    ds_read_b128 {vr(o+12,4)}, v{vRa} offset:{32*TROW + 64*k}""")
e(f's_cmp_eq_u32 s{sIt2}, 0\ns_cbranch_scc1 L_kg_n\nbuffer_load_dword v{vFr}, v{vFu}, {sr(SRD_WS)}, 0 offen sc1\nL_kg_n:')
stamp(16)
def mf(c, a, b): return f'v_mfma_f32_16x16x32_f16 {vr(c,4)}, {vr(a,4)}, {vr(b,4)}, {vr(c,4)}'
late_m = []
for k in range(4):
    o = vOp + 16*k; y1 = vX1 + 4*(k & 1)
    p = cm([(y1+r, o+r, o+4+r) for r in range(4)], False)
    e(f's_waitcnt lgkmcnt({12 - 4*k})')
    e('\n'.join([mf(vAc, o+8, o)] + p[0:2] + late_m[:1] + p[2:4] + [mf(vAc+4, o+12, o)] + p[4:6] + late_m[1:] + p[6:8]))
    late_m = [mf(vAc+8, o+8, y1), mf(vAc+12, o+12, y1)]
e(f"""s_add_u32 s{sSel}, s{sSel}, 0x02020000
s_add_u32 s{sIt2}, s{sIt2}, 1
s_cmp_lg_u32 s{sIt2}, 2""")
e('\n'.join(late_m))
if OPT['upub'] == 1:
    e('s_cbranch_scc0 L_kg_e'); stamp(21); e('s_waitcnt vmcnt(0)'); publish(sFlU, a0); lo(); e('s_branch L_kg\nL_kg_e:')
else:
    lo(); e('s_cbranch_scc1 L_kg'); hi(); e('s_waitcnt vmcnt(0)'); publish(sFlU, a0)
lo()
stamp(17)
if OPT['abl'] in (4, 8): e('s_endpgm')
for i in range(8): e(f'v_mul_f32 v{vAc+i}, v{vScl}, v{vAc+i}')
e(f's_cmp_eq_u32 s{sHw}, 0')
for i in range(8, 16): e(f'v_mul_f32 v{vAc+i}, v{vScl}, v{vAc+i}')
e('s_cbranch_scc1 L_kx')
for i in range(8): e(f'v_swap_b32 v{vAc+i}, v{vAc+8+i}')
e(f"""L_kx:
ds_write_b128 v{vKxo}, {vr(vAc+8,4)}
s_mov_b32 exec_hi, 0
ds_write_b128 v{vKxo}, {vr(vAc+12,4)} offset:1024
s_mov_b64 exec, -1""")
arrive(2)
e(f'v_add_f32 v{vAc}, v{vAdd}, v{vAc}')
stamp(18)
poll(vFu, first_issued=True, reg=vFr, sleep=OPT['usleep'])
for k in range(2):
    e(f"""buffer_load_dwordx4 {vr(U+8*k+4,4)}, v{vUa}, {sr(SRD_WS)}, s{sUl} offen offset:{64 + 2048*k} sc1
    buffer_load_dwordx2 {vr(U+8*k+2,2)}, v{vUa}, {sr(SRD_WS)}, s{sUl} offen offset:{8 + 2048*k} sc1""")
if OPT['prio']: e(f"s_setprio {OPT['bp']}")
stamp(19)
lwait(2)
e(f"""ds_read_b128 {vr(vAc+8,4)}, v{vKxp}
ds_read_b128 {vr(vAc+12,4)}, v{vKxp} offset:1024
ds_write_b128 v{vG_}, {vr(vZer,4)}
ds_write_b128 v{vZp}, {vr(vZer,4)}
v_add_u32 v{vG_}, {512 - 80}, v{vG_}
s_mov_b32 s{sIt2}, 4
s_waitcnt lgkmcnt(2)""")
for i in range(4): e(f'v_pk_add_f32 {vr(vAc+2*i,2)}, {vr(vAc+2*i,2)}, {vr(vAc+8+2*i,2)}')
for i in range(4): e(f'v_cvt_pk_bf16_f32 v{vAc+8+i}, v{vAc+2*i}, v{vAc+2*i+1}')
e(f"""ds_write_b32 v{vKd}, v{vAc+8}
ds_write_b32 v{vKd1}, v{vAc+9}
s_mov_b32 exec_hi, 0
ds_write_b16 v{vKd2}, v{vAc+10}
ds_write_b16_d16_hi v{vKd2}, v{vAc+10} offset:128
ds_write_b16 v{vKd2}, v{vAc+11} offset:256
ds_write_b16_d16_hi v{vKd2}, v{vAc+11} offset:384
s_mov_b64 exec, -1""")
sync(3)
stamp(2)
E = 96
e(f"""ds_read2_b32 {vr(E+6,2)}, v{vE2} offset0:64 offset1:65
s_cmp_lg_u32 s{sHw}, 0
s_cbranch_scc1 L_ex1
ds_read_b64 {vr(E,2)}, v{vE1}
ds_read2_b32 {vr(E+2,2)}, v{vE1b} offset0:2 offset1:3
s_waitcnt lgkmcnt(0)
v_perm_b32 v{E+8}, v{E+3}, v{E+2}, v{vSa}
v_perm_b32 v{E+9}, v{E+2}, v{E+2}, v{vSb}
v_perm_b32 v{E+10}, v{E+1}, v{E}, v{vSa}
v_perm_b32 v{E+11}, v{E}, v{E}, v{vSb}
s_branch L_ex2
L_ex1:
ds_read2_b32 {vr(E,2)}, v{vE2} offset0:0 offset1:1
s_waitcnt lgkmcnt(0)""")
def ex2(d, p):
    e(f"""v_perm_b32 v{d}, v{p+1}, v{p}, s{sE0}
    v_perm_b32 v{d+1}, v{p+1}, v{p}, v{vS1}
    v_perm_b32 v{d+2}, v{p+1}, v{p}, s{sE2}
    v_perm_b32 v{d+3}, v{p+1}, v{p}, s{sE3}""")
ex2(E+8, E)
e('L_ex2:')
ex2(E+12, E+6)
e(f"""ds_write_b128 v{vKp}, {vr(E+8,4)} offset:512
ds_write_b128 v{vKp}, {vr(E+12,4)} offset:{512 + 256}
s_waitcnt vmcnt(2)
v_cndmask_b32 v{U+2}, v{U+2}, v{vZer}, s[88:89]
v_cndmask_b32 v{U+3}, v{U+3}, v{vZer}, s[88:89]""")
stamp(3)
SH = 128
for k in range(2):
    b = U + 8*k + 4; t = SH + 12*k
    if k: e('s_waitcnt vmcnt(0)')
    e(f'ds_write_b128 v{vCd}, {vr(b,4)} offset:{512*k}')
    for i in range(4): e(f'v_alignbit_b32 v{t+i}, v{b+i}, v{b+i-1}, 16')
    e(f'ds_write_b128 v{vCd}, {vr(t,4)} offset:{UC_S + 512*k}')
    for i in range(4): e(f'v_mov_b32 v{t+4+i}, v{b+i-1}')
    e(f'ds_write_b128 v{vCd}, {vr(t+4,4)} offset:{2*UC_S + 512*k}')
    for i in range(4): e(f'v_alignbit_b32 v{t+8+i}, v{b+i-1}, v{b+i-2}, 16')
    e(f'ds_write_b128 v{vCd}, {vr(t+8,4)} offset:{3*UC_S + 512*k}')
sync(4)
KG[0] = False
lo()
stamp(4)
if OPT['abl'] == 16: e('s_endpgm')
CB = 64
def cv_reads(k):
    b = CB + 16 * (k & 3)
    return [f'ds_read_b128 {vr(b+8,4)}, v{vG_} offset:{80 - 16*k}',
            f'ds_read_b64 {vr(b,2)}, v{vF_} offset:{64*k}', f'ds_read_b64 {vr(b+2,2)}, v{vF_} offset:{64*k + 8}',
            f'ds_read_b128 {vr(b+12,4)}, v{vG_} offset:{512 + 80 - 16*k}',
            f'ds_read_b64 {vr(b+4,2)}, v{vF_} offset:{2048 + 64*k}', f'ds_read_b64 {vr(b+6,2)}, v{vF_} offset:{2048 + 64*k + 8}']
e('\n'.join(cv_reads(0) + cv_reads(1)))
late = f"""s_mov_b64 s[{SRD_B}:{SRD_B+1}], s[22:23]
s_mov_b32 s{SRD_B+2}, {448*896}
s_mov_b32 s{SRD_B+3}, 0x20000
s_mov_b64 s[{SRD_C}:{SRD_C+1}], s[24:25]
s_mov_b32 s{SRD_C+2}, {2048*1792}
s_mov_b32 s{SRD_C+3}, 0x20000
v_lshrrev_b32 v{a1}, 3, v{V_LANE}
v_and_b32 v{a2}, 7, v{V_LANE}
v_and_b32 v{a0}, 0x70, v{vL16}
v_mul_u32_u24 v{vYl}, {YS}, v{a1}
v_add_u32 v{vYl}, v{vYl}, v{a0}
v_lshlrev_b32 v{a3}, 2, v{V_LANE}
v_and_b32 v{a3}, 64, v{a3}
v_xor_b32 v{a0}, v{a0}, v{a3}
v_mul_u32_u24 v{vWoD}, 896, v{a1}
v_xor_b32 v{a3}, v{a1}, v{a2}
v_lshlrev_b32 v{a3}, 4, v{a3}
v_lshl_add_u32 v{vOut}, v{vWoD}, 1, v{a3}
v_add_u32 v{vWoD}, v{a0}, v{vWoD}
v_add_u32 v{vWoD+1}, {7168-1024}, v{vWoD}
v_lshrrev_b32 v{a0}, 4, v{V_LANE}
v_bfe_u32 v{a1}, v{V_LANE}, 2, 2
v_lshl_or_b32 v{a3}, v{a0}, 3, v{a1}
v_lshlrev_b32 v{a3}, 7, v{a3}
v_lshrrev_b32 v{a1}, 1, v{a1}
v_lshl_add_u32 v{a3}, v{a1}, 6, v{a3}
v_and_b32 v{a1}, 0x30, v{vL16}
s_movk_i32 s{sA}, {L_WO}
v_add3_u32 v{vWoR}, v{a1}, v{a3}, s{sA}
v_xor_b32 v{vWoR+1}, 64, v{vWoR}
v_and_b32 v{a1}, 15, v{V_LANE}
v_lshlrev_b32 v{vOl}, 4, v{a1}
v_mad_u32_u24 v{vOl}, v{a0}, s{S_KS}, v{vOl}
s_lshl2_add_u32 s{sOl}, s{S_J}, s{S_W}
s_lshr_b32 s{sA}, s{sOl}, 1
s_lshl_b32 s{sA}, s{sA}, {4 + FSH}
s_add_u32 s{sA}, s{sA}, {F_O}
v_lshl_add_u32 v{vFo}, v{a1}, {FSH}, s{sA}
s_lshl_b32 s{sA}, s{S_W}, 11
s_add_u32 s{sA}, s{sA}, {L_SSM}
v_xor_b32 v{a3}, v{a0}, v{a2}
v_lshl_add_u32 v{a3}, v{a3}, 4, s{sA}
v_lshl_add_u32 v{vBw}, v{a1}, 7, v{a3}
v_add_u32 v{vBr}, s{sA}, v{vL16}
s_mul_i32 s{sOut}, s{sOl}, {16*1792}
s_lshl_b32 s{sA}, s{S_C}, 7
s_add_u32 s{sOut}, s{sOut}, s{sA}
s_add_u32 s{sOut}, s{sOut}, 896
s_add_u32 s{sOut+1}, s{sOut}, {8*1792}
s_lshl_b32 s{sOl}, s{sOl}, 8
s_add_u32 s{sOl}, s{sOl}, {WS_O}
s_lshl2_add_u32 s{sCh0}, s{S_C}, s{S_W}
s_lshl_b32 s{sCh0}, s{sCh0}, 4
s_lshr_b32 s{sA}, s{S_J}, 4
s_lshl_b32 s{sA}, s{sA}, 9
s_add_u32 s{sA}, s{sA}, s{sCh0}
s_lshl_b32 s{sA}, s{sA}, {FSH}
s_add_u32 s{sA}, s{sA}, {F_Y}
v_lshl_add_u32 v{vFy}, v{a1}, {FSH}, s{sA}
v_and_b32 v{a1}, 11, v{V_LANE}
v_lshl_or_b32 v{a1}, v{a0}, 5, v{a1}
v_mul_u32_u24 v{a1}, 1792, v{a1}
v_and_b32 v{a3}, 4, v{V_LANE}
v_lshl_add_u32 v{vYs}, v{a3}, 2, v{a1}""".split('\n')
e('\n'.join(late[:20])); late = late[20:]
def cv_iter(first):
    for k in range(4):
        b = CB + 16 * k
        rd = cv_reads(k + 2)
        z = first and k == 0
        def fill(n):
            if first:
                e('\n'.join(late[:n])); del late[:n]
        e('s_waitcnt lgkmcnt(6)')
        e(f'v_mfma_f32_32x32x16_bf16 {vr(T1,16)}, {vr(b,4)}, {vr(b+12,4)}, {"0" if z else vr(T1,16)}')
        e('\n'.join(rd[0:3])); fill(3)
        e(f'v_mfma_f32_32x32x16_bf16 {vr(T0,16)}, {vr(b,4)}, {vr(b+8,4)}, {"0" if z else vr(T0,16)}')
        e('\n'.join(rd[3:6])); fill(3)
        if k == 3:
            e(f'v_add_u32 v{vF_}, 256, v{vF_}\nv_subrev_u32 v{vG_}, 64, v{vG_}')
            if not first: e(f's_add_u32 s{sIt2}, s{sIt2}, 1\ns_cmp_lg_u32 s{sIt2}, 11')
        e(f'v_mfma_f32_32x32x16_bf16 {vr(T1,16)}, {vr(b+4,4)}, {vr(b+8,4)}, {vr(T1,16)}')
        fill(6 if k < 3 else 99)
cv_iter(True)
e('L_cv:')
cv_iter(False)
e('s_cbranch_scc1 L_cv')
stamp(5)
if OPT['abl'] == 32: e('s_endpgm')
arrive(5)
e(f"""s_mul_i32 s{sA}, s{sD}, {YS}
s_lshl_b32 s{sB}, s{sHw}, 11
s_add_u32 s{sA}, s{sA}, s{sB}
s_add_u32 s{sA}, s{sA}, {WS_Y}
s_lshl_b32 s{sB}, s{sHw}, 9
s_add_u32 s{sB}, s{sB}, s{sD}
s_lshl_b32 s{sB}, s{sB}, {FSH}
s_add_u32 s{sB}, s{sB}, {F_Y}""")
lwait(5)
def xch(give, keep):
    for i in range(4): e(f'ds_write_b128 v{vXp}, {vr(give+4*i,4)} offset:{1024*i}')
    sync(6)
    for i in range(4): e(f'ds_read_b128 {vr(give+4*i,4)}, v{vXo} offset:{1024*i}')
    e('s_waitcnt lgkmcnt(0)')
e(f's_cmp_eq_u32 s{sHw}, 0\ns_cbranch_scc1 L_x0')
xch(T0, T1)
e('s_branch L_x1\nL_x0:')
xch(T1, T0)
e('L_x1:')
for i in range(8): e(f'v_pk_add_f32 {vr(T0+2*i,2)}, {vr(T0+2*i,2)}, {vr(T1+2*i,2)}')
for i in range(8): e(f'v_cvt_pk_bf16_f32 v{T1+i}, v{T0+2*i}, v{T0+2*i+1}')
e(f"""buffer_store_dwordx4 {vr(T1,4)}, v{vL16}, {sr(SRD_WS)}, s{sA} offen sc1
buffer_store_dwordx4 {vr(T1+4,4)}, v{vL16}, {sr(SRD_WS)}, s{sA} offen offset:1024 sc1
s_mul_i32 s{sA}, s{sCh0}, {YS}
s_lshl_b32 s{sSk}, s{S_J}, 7
s_add_u32 s{sA}, s{sA}, s{sSk}
s_add_u32 s{sA}, s{sA}, {WS_Y}
s_add_u32 s{sSk}, s{sA}, {8*YS}
s_waitcnt vmcnt(0)""")
publish(sB, a0)
stamp(6)
poll(vFy, sleep=OPT['ysleep'])
stamp(7)
e(f"""buffer_load_dwordx4 {vr(64,4)}, v{vYl}, {sr(SRD_WS)}, s{sA} offen sc1
buffer_load_dwordx4 {vr(68,4)}, v{vYl}, {sr(SRD_WS)}, s{sSk} offen sc1
s_lshr_b32 s{sA}, s{S_J}, 4
s_lshl_b32 s{sA}, s{sA}, 10
s_and_b32 s{sB}, s{S_J}, 3
s_lshl_b32 s{sB}, s{sB}, 8
s_add_u32 s{sA}, s{sA}, s{sB}
s_and_b32 s{sB}, s{S_J}, 8
s_lshl1_add_u32 s{sA}, s{sB}, s{sA}
s_and_b32 s{sB}, s{S_J}, 4
s_add_u32 s{sA}, s{sA}, s{sB}
s_mul_i32 s{sA}, s{sA}, 1792
s_lshl1_add_u32 s{sA}, s{sCh0}, s{sA}
s_add_u32 s{sB}, s{sA}, {128*1792}
s_waitcnt vmcnt(0)
ds_write_b128 v{vXo}, {vr(64,4)}
ds_write_b128 v{vXo}, {vr(68,4)} offset:1024""")
for z in range(2):
    for hf in range(2):
        e(f'ds_read_b64_tr_b16 {vr(72 + 4*z + 2*hf, 2)}, v{vTr} offset:{64*z + 512*hf}')
e(f"""s_waitcnt lgkmcnt(0)
buffer_store_dwordx4 {vr(72,4)}, v{vYs}, {sr(SRD_C)}, s{sA} offen {OUTM}
buffer_store_dwordx4 {vr(76,4)}, v{vYs}, {sr(SRD_C)}, s{sB} offen {OUTM}
v_subrev_u32 v{a0}, 16, v{V_GRP}""")
sync(7)
if OPT['only'] == 1:
    stamp(8); stamp(13); prof_out(); e('s_endpgm')
lwait(7, addr=a0)
stamp(8)
e(f"""s_mul_i32 s{sA}, s{S_W}, {16*896}
s_lshl_b32 s{sB}, s{S_C}, 7
s_add_u32 s{sA}, s{sA}, s{sB}
s_lshl_b32 s{sB}, s{S_W}, 11
s_add_u32 s{sB}, s{sB}, {L_WO}""")
for ch in range(7):
    e(f"""s_add_u32 m0, s{sB}, {8192*ch}
    s_add_u32 s{sSk}, s{sA}, {64*896*ch}
    buffer_load_dwordx4 v{vWoD}, {sr(SRD_B)}, s{sSk} offen lds
    buffer_load_dwordx4 v{vWoD+1}, {sr(SRD_B)}, s{sSk} offen offset:1024 lds
    s_waitcnt vmcnt({OPT['wodepth'] if ch < 6 else 0})""")
WF, OF, OC = 8, 168, 224
sync(8)
def wo_reads(k):
    r = []
    for t in range(4):
        for hf in range(2):
            r.append(f'ds_read_b64_tr_b16 {vr(WF + 16*(k%10) + 4*t + 2*hf, 2)}, v{vWoR + (t>>1)} offset:{4096*k + 512*hf + 8*(t&1)}')
    return r
for k in range(10): e('\n'.join(wo_reads(k)))
e(f'v_xor_b32 v{a0}, 64, v{vBw}\ns_waitcnt lgkmcnt(0)')
if OM: poll(vFo, sleep=8)
if OM == 2: e(f'v_add_u32 v{vFo}, {F_H - F_O}, v{vFo}')
sOk = 4
for k in range(14): e(f's_add_u32 s{sOk+k}, s{sOl}, {4*KS*k}')
stamp(9)
e('s_barrier')
stamp(10)
if OPT['osleep']: e(f"s_sleep {OPT['osleep']}")
if OM != 1: poll(vFo)
stamp(11)
e(f's_min_u32 s{S_BOUND}, s{S_BOUND}, 0x2000')
for k in range(14): e(f'buffer_load_dwordx4 {vr(OF+4*k,4)}, v{vOl}, {sr(SRD_WS)}, s{sOk+k} offen sc1')
for k in range(14):
    o = OF + 4*k
    e(f'''L_ow{k}:
    s_waitcnt vmcnt({13-k}){' lgkmcnt(0)' if k == 10 else ''}''')
    if OM: e(f'''v_max3_u32 v6, v{o}, v{o+1}, v{o+2}
    v_max_u32 v6, v6, v{o+3}
    v_cmp_eq_u32 vcc, -1, v6
    s_cbranch_vccnz L_or{k}''')
    e(f'L_og{k}:')
    for t in range(4):
        c = vr(OC+4*t, 4)
        e(f'v_mfma_f32_16x16x32_bf16 {c}, {vr(WF + 16*(k%10) + 4*t, 4)}, {vr(o,4)}, {"0" if k == 0 else c}')
    if 1 <= k <= 4: e('\n'.join(wo_reads(k + 9)))
stamp(12)
e('s_nop 4')
for i in range(8): e(f'v_cvt_pk_bf16_f32 v{16+i}, v{OC+2*i}, v{OC+2*i+1}')
e(f"""ds_write_b128 v{vBw}, {vr(16,4)}
ds_write_b128 v{a0}, {vr(20,4)}
ds_read_b128 {vr(24,4)}, v{vBr}
ds_read_b128 {vr(28,4)}, v{vBr} offset:1024
s_or_b32 s{sA}, s2, s{S_W}
s_waitcnt lgkmcnt(1)
buffer_store_dwordx4 {vr(24,4)}, v{vOut}, {sr(SRD_C)}, s{sOut} offen {OUTM2}
s_waitcnt lgkmcnt(0)
buffer_store_dwordx4 {vr(28,4)}, v{vOut}, {sr(SRD_C)}, s{sOut+1} offen {OUTM2}
s_cbranch_scc1 L_noepoch""")
publish(sA, 6)
e('L_noepoch:')
if OPT['prof']:
    e('s_waitcnt vmcnt(0)')
stamp(13)
prof_out()
e('L_end:\ns_endpgm')
for k in range(14):
    e(f'''L_or{k}:
    s_sub_i32 s{S_BOUND}, s{S_BOUND}, 1
    s_cmp_lt_i32 s{S_BOUND}, 0
    s_cbranch_scc1 L_og{k}
    s_call_b64 s[90:91], L_re{k}
    s_branch L_ow{k}''')
for k in range(14):
    e(f'L_re{k}:\nbuffer_load_dwordx4 {vr(OF+4*k,4)}, v{vOl}, {sr(SRD_WS)}, s{sOk+k} offen sc1')
e('s_setpc_b64 s[90:91]')
def ilen(l):
    l = l.split(';')[0].strip()
    if not l or l.endswith(':'): return 0
    op = l.split()[0]
    if op.startswith(('buffer_', 'global_', 'ds_', 'v_mfma', 'v_smfmac', 'v_pk_', 's_load', 'v_cvt_pk', 'v_lshl_', 'v_perm', 'v_bfe', 'v_max3', 'v_align')): return 8
    return 8 if '0x' in l else 4
pads = []
if OPT['touch']:
    for n in ('ssm', 'mha'):
        new = []; acc = OPT['touch'] if n == 'mha' else 0; loop = None
        for l in SEC[n]:
            t = l.strip()
            if t in ('L_att:', 'L_cv:'):
                pads.append(len(pads)); new += [f'L_pad{pads[-1]}:', f'    s_cbranch_execz L_nxt{pads[-1]}']; acc = 0
            if t in ('L_att:', 'L_cv:', 'L_kg:'): loop = t[:-1]
            if acc >= OPT['touch'] and (loop is None or loop == 'L_kg' or acc >= 1200) and not t.endswith(':') and 'exec' not in ''.join(new[-3:]).replace('execz', ''):
                pads.append(len(pads)); new += [f'L_pad{pads[-1]}:', f'    s_cbranch_execz L_nxt{pads[-1]}']; acc = 0
            if loop and t in (f's_cbranch_scc1 {loop}', f's_branch {loop}'): loop = None
            if t == 'L_gemm_v:' or t == 'L_gemm_done:': acc = OPT['touch']
            new.append(l); acc += ilen(l)
        SEC[n] = new
sec('idle')
e('L_ssm_idle:')
arrive(1)
e(f's_lshl2_add_u32 s60, s61, s{S_W}\ns_mov_b64 exec, 0')
for i in range(min(16, len(pads))):
    e(f's_cmp_eq_u32 s60, {i}\ns_cbranch_scc1 L_pad{i}')
e('L_idle_end:\ns_endpgm')
txt_fix = {f'L_nxt{i}': (f'L_pad{i+16}' if i + 16 < len(pads) else 'L_idle_end') for i in pads}
for n in SEC:
    SEC[n] = [(l.rsplit(' ', 1)[0] + ' ' + txt_fix[l.rsplit(' ', 1)[1]]) if 'L_nxt' in l else l for l in SEC[n]]
print('pads', len(pads), file=sys.stderr)
ORDER = ['pro', 'ssm0', 'idle', 'mha0', 'ssm', 'mha', 'fb']
hdr = open('header.txt').read()
txt = hdr + f'''; @launch grid=(256,1,1) block=(512,1,1) lds={L_TOT}
.amdgcn_target "amdgcn-amd-amdhsa--gfx950"
.text
.globl {KN}
.p2align 8
.type {KN},@function
{KN}:
''' + '\n'.join(sum((SEC[n] for n in ORDER), [])) + f'''
.section .rodata,"a"
.p2align 6
.amdhsa_kernel {KN}
  .amdhsa_next_free_vgpr 256
  .amdhsa_next_free_sgpr 102
  .amdhsa_accum_offset 256
  .amdhsa_group_segment_fixed_size 0
  .amdhsa_kernarg_size 104
  .amdhsa_user_sgpr_count 2
  .amdhsa_user_sgpr_kernarg_segment_ptr 1
  .amdhsa_system_sgpr_workgroup_id_x 1
.end_amdhsa_kernel
'''
open(sys.argv[1], 'w').write(txt)
```

```python
import sys, struct
def fl(x): return hex(struct.unpack('<I', struct.pack('<f', x))[0])

KN = 'concat_heads__ssm_conv_s4d__softmax_full_mha__prompt_kernel'
OPT = dict(tskip=1, ones=1, pa=1, pr=2, pf=2, wgf=2, ax=0, bp=1, qa=7, n0=4, ilv=8, tlb=1, ulook=1, kgp=3, pad=0, ypad=0, omode=3, ksleep=0, usleep=4, obar=0, osleep=0, pubk=8, abl=0, touch=0, gs=0, kgw=0, xg=5, gx=0, pm=2, ps=0, rt=0, upub=1, kgx=0, outsc=0, ysleep=8, wodepth=4, wq_mid=0, pollk=99, rd=-1, rdrole=0, only=0, safe=0, rot=0, prof=0, fs=128, force_fb=0, wq_early=7, prio=1)
for a in sys.argv[2:]:
    k, v = a.split('=')
    assert k in OPT, k
    OPT[k] = int(v, 0)

FS = OPT['fs']
FSH = FS.bit_length() - 1
F_KV = 0x1000
F_O = F_KV + 1024 * FS
F_U = F_O + 1024 * FS
F_Y = F_U + 1024 * FS
F_H = F_Y + 1024 * FS
WS_K = 0x100000
WS_V = 0x300000
WS_O = 0x500000
WS_U = 0x700000
WS_Y = 0x900000
QS = 16384 + OPT['pad']; KS = 2 * QS; YS = 4096 + OPT['ypad']
S_KS = 57
WS_PROF = 0xb00000
WS_SIZE = 0xc00000
L_SSM = 1024
L_W = 57344
L_RB = 65536
L_X = 114688
L_TOT = 163840
TROW = 288
TABSZ = 38 * TROW
L_TAB = L_SSM
L_UC = L_SSM
UC_S = 4160
UC_D = 4 * UC_S + 64
L_KP = L_UC + 2 * UC_D
L_KX = L_KP + 12288
L_KD = L_KX + 6144
assert L_TAB + 4 * TABSZ <= L_KX and L_KP % 16 == 0 and L_KD + 4096 <= L_W
L_WO = L_SSM

S_WV, S_W, S_HG, S_C, S_TILE, S_J, S_H, S_NONCE, S_O0, S_ROT = range(30, 40)
SRD_WS, SRD_A, SRD_B, SRD_C = 40, 44, 48, 52
S_BOUND = 56
S_T0 = 58

SEC = {}
out = None
def sec(n):
    global out
    out = SEC.setdefault(n, [])
sec('pro')
def e(s):
    for l in s.split('\n'):
        l = l.strip()
        if l:
            out.append(l if l.endswith(':') else '    ' + l)
_lab = [0]
def lab(p):
    _lab[0] += 1
    return f'L_{p}_{_lab[0]}'
def vr(a, n):
    return f'v[{a}:{a+n-1}]' if n > 1 else f'v{a}'
def srd(d, b, n):
    e(f's_mov_b64 s[{d}:{d+1}], s[{b}:{b+1}]\ns_mov_b32 s{d+2}, {n}\ns_mov_b32 s{d+3}, 0x20000')
def sr(d): return f's[{d}:{d+3}]'

V_LANE, V_T, V_OWN, V_GRP, V_PROF = 0, 1, 2, 3, 4

ROLE = [0]
def stamp(i):
    if OPT['rd'] == i and OPT['rdrole'] == ROLE[0]:
        e('s_memrealtime s[100:101]\ns_waitcnt lgkmcnt(0)')
    if OPT['prof'] > (i >= 14):
        e(f's_mem{"real" if OPT["rt"] else ""}time s[96:97]\ns_waitcnt lgkmcnt(0)\ns_sub_u32 s96, s96, s{98 if OPT["rt"] else S_T0}\nv_writelane_b32 v{V_PROF}, s96, {i}')
def prof_out():
    if OPT['rd'] >= 0 and OPT['rdrole'] == ROLE[0]:
        l = lab('pad')
        if ROLE[0] == 0 and not OPT['obar']: e('s_barrier')
        e(f'''s_add_u32 s100, s100, 6000
        {l}:
        s_sleep 1
        s_memrealtime s[96:97]
        s_waitcnt lgkmcnt(0)
        s_sub_u32 s96, s96, s100
        s_cmp_lt_i32 s96, 0
        s_cbranch_scc1 {l}''')
    if OPT['prof']:
        e(f'''s_memrealtime s[96:97]
        s_waitcnt lgkmcnt(0)
        v_writelane_b32 v{V_PROF}, s96, 31
        v_writelane_b32 v{V_PROF}, s98, 30
        s_lshl_b32 s96, s2, 3
        s_add_u32 s96, s96, s{S_WV}
        s_lshl_b32 s96, s96, 7
        s_add_u32 s96, s96, {WS_PROF}
        v_lshlrev_b32 v{V_T}, 2, v{V_LANE}
        s_mov_b32 exec_hi, 0
        buffer_store_dword v{V_PROF}, v{V_T}, {sr(SRD_WS)}, s96 offen
        s_mov_b64 exec, -1''')

def arrive(stage):
    e(f'v_mov_b32 v{V_T}, {stage}\nds_write_b32 v{V_OWN}, v{V_T}')
def lwait(stage, addr=V_GRP, sleep=0):
    l = lab('lw')
    e(f'{l}:')
    if sleep: e(f's_sleep {sleep}')
    e(f'''ds_read_b32 v{V_T}, v{addr}
    s_waitcnt lgkmcnt(0)
    v_cmp_gt_u32 vcc, {stage}, v{V_T}''')
    if OPT['safe']:
        d = lab('ld')
        e(f'''s_cbranch_vccz {d}
        s_sub_u32 s{S_BOUND}, s{S_BOUND}, 1
        s_cbranch_scc0 {l}
        s_mov_b32 s{S_BOUND}, 0
        {d}:''')
    else:
        e(f's_cbranch_vccnz {l}')
def sync(stage):
    arrive(stage); lwait(stage)
def poll(voff, first_issued=False, sleep=0, reg=V_T):
    l, d, m = lab('pl'), lab('pd'), lab('pm')
    if first_issued == 2:
        e(f's_waitcnt vmcnt(0)\nv_cmp_ne_u32 vcc, s{S_NONCE}, v{reg}\ns_cbranch_vccnz {l}\n{d}:')
        cur = [n for n in SEC if SEC[n] is out][0]
        sec('cold')
        e(f'''{l}:
        buffer_load_dword v{reg}, v{voff}, {sr(SRD_WS)}, 0 offen sc1
        s_waitcnt vmcnt(0)
        v_cmp_ne_u32 vcc, s{S_NONCE}, v{reg}
        s_cbranch_vccz {d}
        s_sub_u32 s{S_BOUND}, s{S_BOUND}, 1
        s_cbranch_scc0 {l}
        s_mov_b32 s{S_BOUND}, 0
        s_branch {d}''')
        sec(cur)
        return
    if first_issued: e(f's_branch {m}')
    e(f'{l}:')
    if sleep: e(f's_sleep {sleep}')
    e(f'''buffer_load_dword v{reg}, v{voff}, {sr(SRD_WS)}, 0 offen sc1
    {m}:
    s_waitcnt vmcnt(0)
    v_cmp_ne_u32 vcc, s{S_NONCE}, v{reg}
    s_cbranch_vccz {d}
    s_sub_u32 s{S_BOUND}, s{S_BOUND}, 1
    s_cbranch_scc0 {l}
    s_mov_b32 s{S_BOUND}, 0
    {d}:''')
def publish(soff, tmp):
    e(f'''v_mov_b32 v{V_T}, s{S_NONCE}
    v_mov_b32 v{tmp}, 0
    s_mov_b64 exec, 1
    buffer_store_dword v{V_T}, v{tmp}, {sr(SRD_WS)}, s{soff} offen sc1
    s_mov_b64 exec, -1''')
def swap23(d, s, t):
    e(f'''v_lshrrev_b32 v{t}, 1, v{s}
    v_xor_b32 v{t}, v{t}, v{s}
    v_and_b32 v{t}, 4, v{t}
    v_mul_u32_u24 v{t}, 3, v{t}
    v_xor_b32 v{d}, v{t}, v{s}''')
def rot_next(s):
    e(f's_add_u32 s{s}, s{s}, 1\ns_cmp_eq_u32 s{s}, 7\ns_cselect_b32 s{s}, 0, s{s}')

e(f'''s_cmp_ge_u32 s2, 256
s_cbranch_scc1 L_end''')
if OPT['prof']:
    e(f's_memtime s[{S_T0}:{S_T0+1}]\ns_memrealtime s[98:99]\nv_mov_b32 v{V_PROF}, 0')
if OPT['rd'] >= 0: e('s_memrealtime s[100:101]')
e(f'''s_load_dwordx16 s[4:19], s[0:1], 0
s_load_dwordx8 s[20:27], s[0:1], 64
s_load_dwordx2 s[28:29], s[0:1], 96
v_lshrrev_b32 v{V_OWN}, 6, v0
v_and_b32 v{V_LANE}, 63, v0
v_readfirstlane_b32 s{S_WV}, v{V_OWN}
v_lshlrev_b32 v{V_OWN}, 2, v{V_OWN}
v_mov_b32 v{V_T}, 0
ds_write2_b32 v{V_OWN}, v{V_T}, v{V_T} offset1:8
v_and_b32 v{V_GRP}, 3, v{V_LANE}
v_lshlrev_b32 v{V_GRP}, 2, v{V_GRP}
s_and_b32 s{S_HG}, s2, 1
s_bfe_u32 s60, s2, 0x20001
s_bfe_u32 s{S_C}, s2, 0x30003
s_lshr_b32 s61, s2, 6
s_lshl2_add_u32 s{S_TILE}, s60, s61
s_lshl1_add_u32 s{S_J}, s{S_TILE}, s{S_HG}
s_lshl3_add_u32 s{S_H}, s{S_HG}, s{S_C}
s_and_b32 s{S_W}, s{S_WV}, 3
s_mov_b32 s{S_BOUND}, 0x40000
s_mov_b32 s{S_KS}, {KS}
s_cmp_lt_u32 s{S_WV}, 4
s_cbranch_scc1 L_mha''')

VX = 144; VACC = 96; VWF = 32; VPK = 128
VV, VK, VS, VO, VQ = 32, 64, 96, 160, 224
vWd = [5, 6]; vXd = [7, 8, 9, 10]; vXr = [11, 12, 13, 14]; vWb, vW0, vW1 = 15, 16, 17
vRho, vG, vSt, vQd, vQr, vFl, vA, vB, vC = 18, 19, 20, 21, 22, 23, 24, 25, 26
vKo0, vKo1, vVo, vIdx = 27, 28, 29, 30
sXb, sWb, sCh, sCw, sLx, sTmp, sTmp2, sSt, sS1, sS2, sFl = range(60, 71)
sK, sV, sIt = 71, 72, 73
sFo, sO0, sO1 = 84, 85, 86
vOs, vQw = vRho, vG
vRb = [7, 8, 9]; vQx = [11, 12, 13]; vRr = 10
sMask = 74
sOdd = 76

sec('mha0')
e('L_mha:')
if OPT['prio']: e(f"s_setprio {OPT['pm']}")
e(f'''s_mul_i32 s{S_O0}, s{S_H}, 7
s_lshr_b32 s{S_O0}, s{S_O0}, 1''')
if OPT['rot']:
    e(f'''s_lshl1_add_u32 s{S_ROT}, s61, s{S_C}
    s_cmp_ge_u32 s{S_ROT}, 7
    s_cselect_b32 s{sTmp}, 7, 0
    s_sub_u32 s{S_ROT}, s{S_ROT}, s{sTmp}''')
else:
    e(f's_mov_b32 s{S_ROT}, 0')
e(f'''v_lshrrev_b32 v{vA}, 3, v{V_LANE}          ; r
v_and_b32 v{vB}, 7, v{V_LANE}                    ; p
v_lshlrev_b32 v{vC}, 1, v{vA}
v_and_b32 v{vC}, 4, v{vC}
v_xor_b32 v{vC}, v{vC}, v{vB}
v_lshlrev_b32 v{vC}, 4, v{vC}
v_mul_u32_u24 v{vWd[0]}, 2688, v{vA}
v_add_u32 v{vWd[0]}, v{vWd[0]}, v{vC}
v_add_u32 v{vWd[1]}, {8*2688-1024}, v{vWd[0]}
v_lshrrev_b32 v{vC}, 1, v{vA}
v_xor_b32 v{vC}, v{vC}, v{vB}
v_lshlrev_b32 v{vC}, 4, v{vC}
v_mul_u32_u24 v{vA}, 896, v{vA}
v_add_u32 v{vXd[0]}, v{vA}, v{vC}
v_xor_b32 v{vC}, 64, v{vC}
v_add_u32 v{vXd[1]}, v{vA}, v{vC}
v_add_u32 v{vXd[1]}, {7168-1024}, v{vXd[1]}
v_add_u32 v{vXd[2]}, {2*(7168-1024)}, v{vXd[0]}
v_add_u32 v{vXd[3]}, {2*(7168-1024)}, v{vXd[1]}
s_lshl2_add_u32 s{sXb}, s{S_TILE}, s{S_W}
s_lshl_b32 s{sFl}, s{S_H}, 6
s_add_u32 s{sFl}, s{sFl}, s{S_TILE if OPT['wgf'] else sXb}
s_lshl_b32 s{sFl}, s{sFl}, {FSH}
s_add_u32 s{sFl}, s{sFl}, {F_KV}
s_mul_i32 s{sXb}, s{sXb}, {32*896}
s_mul_i32 s{sTmp2}, s{S_HG}, 3
s_lshr_b32 s{sTmp}, s2, 6
s_add_u32 s{sTmp2}, s{sTmp2}, s{sTmp}
s_mul_i32 s{sWb}, s{S_HG}, 7
s_add_u32 s{sWb}, s{sWb}, s{S_C}
s_add_u32 s{sWb}, s{sWb}, 7
s_cmp_eq_u32 s{S_C}, 7
s_cselect_b32 s{sWb}, s{sTmp2}, s{sWb}
s_lshl_b32 s{sWb}, s{sWb}, 7
s_mul_i32 s{sTmp}, s{S_W}, {16*2688}
s_add_u32 s{sWb}, s{sWb}, s{sTmp}
s_mul_i32 s{sLx}, s{S_W}, 12288
s_add_u32 s{sLx}, s{sLx}, {L_X}
s_lshl_b32 s{sS1}, s{S_W}, 11
s_add_u32 s{sS1}, s{sS1}, {L_W}
s_mov_b32 s{sCh}, s{S_ROT}
s_waitcnt lgkmcnt(0)''')
e(f's_load_dword s{S_NONCE}, s[28:29], 0')
srd(SRD_B, 20, 448 * 1344 * 2)
srd(SRD_A, 18, 2048 * 896)
e(f'''s_lshl_b32 s4, s{sCh}, 7
s_add_u32 s4, s4, s{sXb}
s_mul_i32 s88, s{sCh}, {64*2688}
s_add_u32 s11, s88, s{sWb}''')
rot_next(sCh)
stamp(22)
e('s_barrier')
stamp(23)
if OPT['only'] == 1: e('s_endpgm')
def rot_lines(s):
    return [f's_add_u32 s{s}, s{s}, 1', f's_cmp_eq_u32 s{s}, 7', f's_cselect_b32 s{s}, 0, s{s}']
sXo, sWo, sQo = 4, 11, 88
def offs(st):
    return [f's_lshl_b32 s{sXo+st}, s{sCh}, 7', f's_add_u32 s{sXo+st}, s{sXo+st}, s{sXb}', f's_mul_i32 s{sQo+st}, s{sCh}, {64*2688}',
            f's_add_u32 s{sWo+st}, s{sQo+st}, s{sWb}'] + (rot_lines(sCh) if st < 6 else [])
def w_lines(st):
    return [f's_add_u32 m0, s{sS1}, {8192*st}', 's_nop 0'] + \
           [f'buffer_load_dwordx4 v{vWd[i]}, {sr(SRD_B)}, s{sWo+st} offen offset:{1024*i} lds' for i in range(2)]
def x_chunk(st):
    return [f's_add_u32 m0, s{sLx}, {(st%3)*4096}', 's_nop 0'] + \
           [f'buffer_load_dwordx4 v{vXd[i]}, {sr(SRD_A)}, s{sXo+st} offen offset:{1024*i} lds' for i in range(4)]
DM = []
for l in [x_chunk(0), w_lines(0)] + [w_lines(i) for i in range(1, 7)] + [x_chunk(1), x_chunk(2)]:
    DM += [l[:3]] + [[x] for x in l[3:]]
for g in DM[:OPT['n0']]: e('\n'.join(g))
DM = DM[OPT['n0']:]
stamp(24)
e('s_branch L_mha1')
sec('mha')
e('L_mha1:')
stamp(25)
for st in range(1, 7): e('\n'.join(offs(st)))
sec('tmp')
srd(SRD_WS, 28, WS_SIZE)
ONES = f'''s_bitcmp1_b32 s{S_H}, 0
s_cselect_b32 s{sTmp}, 0, 7
v_cmp_eq_u32 vcc, s{sTmp}, v{vA}
s_lshl_b32 s{sTmp}, s{S_O0}, 1
s_sub_u32 s{sTmp}, s{S_HG}, s{sTmp}
s_add_u32 s{sTmp}, s{sTmp}, 112
v_mov_b32 v{vB}, s{sTmp}
v_cndmask_b32 v{vA}, v{vA}, v{vB}, vcc
''' if OPT['ones'] else ''
FIX = f'''v_cmp_lt_u32 vcc, 7, v{vB}
s_lshl3_add_u32 s{sTmp}, s{S_HG}, 7
v_mov_b32 v{vB}, s{sTmp}
v_cndmask_b32 v{vC}, v{vC}, v{vB}, vcc
''' if OPT['ones'] else ''
e(f'''v_and_b32 v{vA}, 31, v{V_LANE}
v_lshrrev_b32 v{vG}, 5, v{V_LANE}''')
swap23(vRho, vA, vB)
e(f'''v_bfe_u32 v{vB}, v{vRho}, 1, 3
v_xor_b32 v{vB}, v{vB}, v{vG}
v_lshlrev_b32 v{vB}, 4, v{vB}
v_lshl_add_u32 v{vB}, v{vRho}, 7, v{vB}
v_add_u32 v{vXr[0]}, s{sLx}, v{vB}
v_xor_b32 v{vXr[1]}, 32, v{vXr[0]}
v_xor_b32 v{vXr[2]}, 64, v{vXr[0]}
v_xor_b32 v{vXr[3]}, 0x60, v{vXr[0]}
v_and_b32 v{vB}, 3, v{V_LANE}                     ; cc
v_lshrrev_b32 v{vC}, 1, v{vB}
v_and_b32 v{vQd}, 1, v{vB}
v_lshl_or_b32 v{vC}, v{vQd}, 1, v{vC}
v_bfe_u32 v{vQd}, v{V_LANE}, 4, 1
v_lshl_or_b32 v{vB}, v{vQd}, 2, v{vB}
v_lshl_or_b32 v{vC}, v{vQd}, 2, v{vC}
v_bfe_u32 v{vQd}, v{V_LANE}, 2, 2                  ; r'
v_lshl_or_b32 v{vFl}, v{vG}, 3, v{vQd}             ; 8g + r'
v_lshlrev_b32 v{vQr}, 6, v{vFl}
v_lshl_add_u32 v{vQr}, v{vC}, 3, v{vQr}
v_add_u32 v{vQr}, {L_X + 4096}, v{vQr}
s_cmp_eq_u32 s{S_HG}, 0
s_cselect_b64 vcc, -1, 0
v_cndmask_b32 v{vB}, v{vB}, v{vC}, vcc             ; K slabs use the exchanged order, V slabs the natural one
v_lshlrev_b32 v{vWb}, 7, v{vFl}
v_lshl_add_u32 v{vWb}, v{vB}, 3, v{vWb}
v_lshrrev_b32 v{vQd}, 1, v{vQd}
v_lshl_add_u32 v{vWb}, v{vQd}, 6, v{vWb}
v_add_u32 v{vW0}, {L_W}, v{vWb}
v_lshlrev_b32 v{vB}, 4, v{vRho}
v_mad_u32_u24 v{vB}, v{vG}, s{S_KS}, v{vB}
v_lshrrev_b32 v{vC}, 2, v{vA}
v_mul_u32_u24 v{vC}, {QS}, v{vC}
v_lshl_add_u32 v{vC}, v{vG}, 6, v{vC}
v_and_b32 v{vQd}, 3, v{vA}
v_lshl_add_u32 v{vC}, v{vQd}, 4, v{vC}
v_cndmask_b32 v{vSt}, v{vC}, v{vB}, vcc
s_lshl2_add_u32 s{sTmp}, s{S_TILE}, s{S_W}
s_lshl_b32 s{sTmp2}, s{sTmp}, 9
s_add_u32 s{sTmp2}, s{sTmp2}, {WS_K}
s_lshl_b32 s{sTmp}, s{sTmp}, 8
s_add_u32 s{sTmp}, s{sTmp}, {WS_V}
s_movk_i32 s{sS2}, 128
s_cmp_eq_u32 s{S_HG}, 0
s_cselect_b32 s{sSt}, s{sTmp2}, s{sTmp}
s_cselect_b32 s{sS2}, {2*KS}, s{sS2}
s_mul_i32 s{sTmp}, s{S_C}, {8*KS}
s_add_u32 s{sSt}, s{sSt}, s{sTmp}
v_lshrrev_b32 v{vB}, 2, v{V_LANE}
v_mul_u32_u24 v{vB}, 2688, v{vB}
v_lshl_add_u32 v{vQd}, v{vQd}, 4, v{vB}
s_lshl_b32 s82, s{S_O0}, 4
s_mul_i32 s{sTmp}, s{S_W}, {16*2688}
s_add_u32 s82, s82, s{sTmp}
s_lshr_b32 s{sTmp}, s{S_O0}, 3
s_add_u32 s{sTmp2}, s{S_O0}, 3
s_lshr_b32 s{sTmp2}, s{sTmp2}, 3
s_cmp_eq_u32 s{S_H}, 15
s_cselect_b32 s{sTmp2}, 7, s{sTmp2}
s_sub_u32 s{sTmp2}, s{sTmp2}, s{sTmp}
v_bfe_u32 v{vC}, v{V_LANE}, 4, 1
v_mul_u32_u24 v{vC}, s{sTmp2}, v{vC}
v_lshl_add_u32 v{vC}, v{vG}, 3, v{vC}
v_add_u32 v{vC}, s{sTmp}, v{vC}
v_and_b32 v{vB}, 15, v{V_LANE}
{FIX}v_and_b32 v{vB}, {3 if OPT['wgf'] else 15}, v{V_LANE}
v_lshl_add_u32 v{vC}, v{vC}, 6, v{vB}
s_lshl_b32 s{sTmp}, s{S_W}, {2 if OPT['wgf'] else 4}
v_add_u32 v{vC}, s{sTmp}, v{vC}
v_lshlrev_b32 v{vC}, {FSH}, v{vC}
v_add_u32 v{vFl}, {F_KV}, v{vC}
v_lshlrev_b32 v{vKo0}, 4, v{vA}
v_mad_u32_u24 v{vKo0}, v{vG}, s{S_KS}, v{vKo0}
v_add_u32 v{vKo1}, {2*KS}, v{vKo0}
v_lshrrev_b32 v{vA}, 2, v{vRho}
{ONES}v_mul_u32_u24 v{vA}, {QS}, v{vA}
v_lshl_add_u32 v{vA}, v{vG}, 6, v{vA}
v_and_b32 v{vB}, 3, v{V_LANE}
v_lshl_add_u32 v{vVo}, v{vB}, 4, v{vA}
v_mov_b32 v{vIdx}, 0xdddddddd
s_mul_i32 s{sTmp}, s{S_O0}, {KS}
s_lshl_b32 s{sK}, s{S_W}, 13
s_add_u32 s{sK}, s{sK}, s{sTmp}
s_add_u32 s{sK}, s{sK}, {WS_K}
s_lshl_b32 s{sV}, s{S_W}, 12
s_add_u32 s{sV}, s{sV}, s{sTmp}
s_add_u32 s{sV}, s{sV}, {WS_V}
s_lshl2_add_u32 s{sTmp2}, s{S_TILE}, s{S_W}
s_lshl_b32 s{sFo}, s{sTmp2}, 4
s_add_u32 s{sFo}, s{sFo}, s{S_H}
s_lshl_b32 s{sFo}, s{sFo}, {FSH}
s_add_u32 s{sFo}, s{sFo}, {F_O}
s_lshl_b32 s{sTmp2}, s{sTmp2}, 9
s_add_u32 s{sO0}, s{sTmp}, s{sTmp2}
s_add_u32 s{sO0}, s{sO0}, {WS_O}
s_add_u32 s{sO1}, s{sO0}, {2*KS}
s_bitcmp1_b32 s{S_H}, 0
s_cselect_b64 s[{sOdd}:{sOdd+1}], -1, 0
s_cselect_b32 s{sMask}, -16, 0x0fffffff
s_mov_b32 s{sMask+1}, s{sMask}
v_mov_b32 v{vC}, 0x3e8b97f6
v_cmp_gt_u32 vcc, 32, v{V_LANE}
s_and_b64 s[78:79], vcc, s[{sOdd}:{sOdd+1}]
s_nor_b64 s[80:81], vcc, s[{sOdd}:{sOdd+1}]
v_cndmask_b32 v{vA}, v{vC}, 0, s[78:79]
v_cndmask_b32 v{vB}, v{vC}, 0, s[80:81]
s_mov_b32 s78, 0x3f803f80
s_mov_b32 s79, s78
v_xor_b32 v{vW1}, 64, v{vW0}
v_lshlrev_b32 v{vOs}, 4, v{vRho}
v_mad_u32_u24 v{vOs}, v{vG}, s{S_KS}, v{vOs}
v_lshl_add_u32 v{vQw}, v{V_LANE}, 4, s{sLx}''')
srd(SRD_C, 28, WS_SIZE)
for st in range(7): e(f's_add_u32 s{sQo+st}, s{sQo+st}, s82')
def o_stores(r0, r1, tag):
    e(f'''s_bitcmp1_b32 s{S_H}, 0
    s_cbranch_scc1 L_ost_odd{tag}
    buffer_store_dwordx4 {vr(r0,4)}, v{vOs}, {sr(SRD_WS)}, s{sO0} offen sc1
    s_mov_b32 exec_hi, 0
    buffer_store_dwordx4 {vr(r1,4)}, v{vOs}, {sr(SRD_WS)}, s{sO1} offen sc1
    s_not_b64 exec, exec
    buffer_store_dwordx2 {vr(r1,2)}, v{vOs}, {sr(SRD_WS)}, s{sO1} offen sc1
    s_branch L_ost_done{tag}
    L_ost_odd{tag}:
    buffer_store_dwordx4 {vr(r1,4)}, v{vOs}, {sr(SRD_WS)}, s{sO1} offen sc1
    s_mov_b32 exec_hi, 0
    buffer_store_dwordx2 {vr(r0+2,2)}, v{vOs}, {sr(SRD_WS)}, s{sO0} offen offset:8 sc1
    s_not_b64 exec, exec
    buffer_store_dwordx4 {vr(r0,4)}, v{vOs}, {sr(SRD_WS)}, s{sO0} offen sc1
    L_ost_done{tag}:
    s_mov_b64 exec, -1''')
GS = 0
AB = [l for l in SEC.pop('tmp') if not l.strip().startswith(';')]
sec('mha')
def scc_pending(i):
    return i < len(AB) and AB[i].strip().startswith(('s_cselect', 's_mov_b32 s75'))
pos = 0
for g in DM:
    n = pos + OPT['ilv']
    while scc_pending(n): n += 1
    e('\n'.join(AB[pos:n])); pos = n
    e('\n'.join(g))
e('\n'.join(AB[pos:]))
stamp(0)
def x_reads(s):
    return [f'ds_read_b128 {vr(VX + 16*s + 4*ks, 4)}, v{vXr[ks]} offset:{(s%3)*4096}' for ks in range(4)]
e('s_waitcnt vmcnt(22)')
e('\n'.join(x_reads(0)))
e('s_waitcnt vmcnt(8) lgkmcnt(0)')
arrive(1)
stamp(1)
e('\n'.join(x_chunk(3)))
e('s_waitcnt vmcnt(8)')
e('\n'.join(x_reads(1)))
lwait(1)
e(f's_add_u32 s{S_NONCE}, s{S_NONCE}, 1')
stamp(2)
def w_reads(s):
    r = []
    for ks in range(4):
        for ct in range(2):
            for hf in range(2):
                d = VWF + 32 * (s & 1) + 8 * ks + 4 * ct + 2 * hf
                r.append(f'ds_read_b64_tr_b16 {vr(d,2)}, v{(vW0, vW1)[ct]} offset:{s*8192 + ks*2048 + hf*512}')
    return r
if OPT['tskip']: e(f's_cmp_eq_u32 s{S_C}, 7\ns_cbranch_scc1 L_gemm_t')
e('\n'.join(w_reads(0)))
e(f'''s_waitcnt lgkmcnt(0)
s_cmp_lg_u32 s{S_HG}, 0
s_cbranch_scc1 L_gemm_v''')
sQb, sQc = 82, 83
NE = OPT['wq_early']
def wq_dma(st):
    return [f's_add_u32 m0, s{sLx}, {4096 + 1024*st}', 's_nop 0', f'buffer_load_dwordx4 v{vQd}, {sr(SRD_B)}, s{sQo+st} offen lds']
SPIN = []
def gemm1(vpart):
    for s in range(7):
        M = []
        for ks in range(4):
            for ct in range(2):
                wf = vr(VWF + 32 * (s & 1) + 8 * ks + 4 * ct, 4); xf = vr(VX + 16 * s + 4 * ks, 4)
                acc = vr(VACC + 16 * ct, 16)
                a, b = (xf, wf) if vpart else (wf, xf)
                M.append(f'v_mfma_f32_32x32x16_bf16 {acc}, {a}, {b}, {"0" if s == 0 and ks == 0 else acc}')
        gaps = [[] for _ in range(8)]
        tag = f'{"v" if vpart else "k"}{s}'
        pre = []
        dm = []
        def add(l): dm.extend([(l[0], l[2])] + [(None, x) for x in l[3:]])
        if s <= 2: add(x_chunk(s + 4))
        if s == 3:
            for i in range(min(NE, 4)): add(wq_dma(i))
        if s == 4:
            for i in range(4, NE): add(wq_dma(i))
        n = {0: 8, 1: 8, 2: 8, 3: 4 + min(NE, 4), 4: NE}.get(s)
        for i, (m, l) in enumerate(dm):
            if m: (pre if i == 0 else gaps[i - 1]).append(m)
            gaps[i].append(l)
        if s < 6:
            wr = w_reads(s + 1)
            for i, (p, q) in enumerate(((0, 3), (3, 6), (6, 9), (9, 12), (12, 16))): gaps[i] += wr[p:q]
            if s <= 4: gaps[OPT['xg']] += [f's_waitcnt vmcnt({n})'] + x_reads(s + 2)
            gaps[7] += [f's_waitcnt lgkmcnt({4 if s == 4 else 0})']
        if s == 5 and NE == 7:
            gaps[7] += [f'v_add_u32 v31, 16, v{V_GRP}', f'ds_read_b32 v31, v31']
        if s == 6 and NE == 7:
            gaps[OPT['qa']] += ['s_waitcnt vmcnt(0)', f'v_mov_b32 v{V_T}, 7', f'ds_write_b32 v{V_OWN}, v{V_T}']
        e('\n'.join(pre))
        if OPT['gx'] & 1 or vpart == 2: M = ['s_nop 0'] * 8
        if OPT['gx'] & 2 or vpart == 2: gaps = [[x for x in g if 'tr_b16' not in x] for g in gaps]
        for i in range(8):
            e(M[i]); e('\n'.join(gaps[i]))
        stamp(14 + s)
if OPT['tskip']:
    sec('gt'); e('L_gemm_t:'); gemm1(2); e('s_branch L_gemm_done'); sec('mha')
else: SEC['gt'] = []
gemm1(False)
e('s_branch L_gemm_done\nL_gemm_v:')
gemm1(True)
e('L_gemm_done:')
stamp(3)
e(f"""s_add_u32 s{sS1}, s{sSt}, s{sS2}
s_add_u32 s{sXb}, s{sSt}, {4*KS}
s_add_u32 s{sCw}, s{sS1}, {4*KS}
s_cmp_eq_u32 s{S_C}, 7
s_waitcnt lgkmcnt(0)
s_cbranch_scc1 L_nokv
s_nop 4""")
for q, so in enumerate((sSt, sS1, sXb, sCw)):
    for i in range(4*q, 4*q+4):
        e(f'v_cvt_pk_bf16_f32 v{VPK + i}, v{VACC + 2*i}, v{VACC + 2*i + 1}')
    e(f'buffer_store_dwordx4 {vr(VPK+4*q,4)}, v{vSt}, {sr(SRD_WS)}, s{so} offen sc1')
if OPT['ones']:
    e(f'''s_branch L_kvst
    L_nokv:
    v_mov_b64 v[128:129], s[78:79]
    v_mov_b64 v[130:131], s[78:79]
    v_lshlrev_b32 v132, 4, v{V_LANE}
    s_lshl2_add_u32 s{sTmp}, s{S_TILE}, s{S_W}
    s_lshl_b32 s{sTmp}, s{sTmp}, 8
    s_mul_i32 s{sTmp2}, s{S_HG}, {QS}
    s_add_u32 s{sTmp}, s{sTmp}, s{sTmp2}
    s_add_u32 s{sTmp}, s{sTmp}, {WS_V + 112*QS}
    s_mov_b64 exec, 0xffff
    buffer_store_dwordx4 v[128:131], v132, {sr(SRD_WS)}, s{sTmp} offen sc1
    s_mov_b64 exec, -1
    L_kvst:''')
else: e('L_nokv:')
if NE < 7:
    NM = max(NE, OPT['wq_mid'])
    for st in range(NE, NM): e('\n'.join(wq_dma(st)))
    stamp(4)
    e(f'v_add_u32 v31, 16, v{V_GRP}')
    lwait(1, addr=31)
    e(f's_waitcnt vmcnt({NM - NE})')
    publish(sFl, 31)
    stamp(5)
    for st in range(NM, 7): e('\n'.join(wq_dma(st)))
    e(f's_waitcnt vmcnt({1 if NM == 7 else 0})')
    arrive(7)
else:
    stamp(4)
    e(f'v_cmp_gt_u32 vcc, 1, v31\ns_cbranch_vccz L_eok\nv_add_u32 v31, 16, v{V_GRP}')
    lwait(1, addr=31)
    e('L_eok:')
lwait(7)
stamp(6)
fill = [f'v_mov_b64 {vr(VV+2*i,2)}, s[78:79]' for i in range(12 if OPT['ones'] else 0, 16)] + [f'v_subrev_u32 v{vRr}, {L_X - L_RB}, v{vQw}']
for s in range(3):
    fill += f'''s_add_u32 s{sTmp}, s{S_W}, {1+s}
    s_and_b32 s{sTmp}, s{sTmp}, 3
    s_sub_u32 s{sTmp}, s{sTmp}, s{S_W}
    s_mul_i32 s{sTmp}, s{sTmp}, 12288
    v_add_u32 v{vQx[s]}, s{sTmp}, v{vQw}
    v_subrev_u32 v{vRb[s]}, {L_X - L_RB - 4096*s}, v{vQx[s]}'''.split('\n')
def q_reads(k):
    s, ks = divmod(k, 4)
    return [f'ds_read_b64_tr_b16 {vr(64 + 4*(k%8) + 2*hf, 2)}, v{vQr} offset:{ks*12288 + s*1024 + hf*256}' for hf in range(2)]
for k in range(6): e('\n'.join(q_reads(k)))
e('\n'.join(fill[:12])); fill = fill[12:]
zi = 0
for k in range(28):
    PK = OPT['pubk']
    extra = 1 if OPT['wgf'] and PK < k <= PK + 5 else 0
    e(f's_waitcnt lgkmcnt({min(10, 2*(27-k)) + extra})')
    e(f'v_mfma_f32_32x32x16_bf16 {vr(VACC,16)}, {vr(64 + 4*(k%8), 4)}, {vr(VX + 4*k, 4)}, {"0" if k == 0 else vr(VACC,16)}')
    if k + 6 < 28: e('\n'.join(q_reads(k + 6)))
    while zi < 40 and VX + 2*zi + 1 < VX + 4*k - 4 and zi < 2*k:
        e(f'v_mov_b64 {vr(VX + 2*zi, 2)}, 0'); zi += 1
    if k >= 22 or k < 2:
        e('\n'.join(fill[:4])); fill = fill[4:]
    if NE == 7 and k == PK and not OPT['wgf']:
        e('s_waitcnt vmcnt(0)'); publish(sFl, 31); stamp(5)
    if k == PK and OPT['wgf']:
        e(f'''v_mov_b32 v{V_T}, 1
        v_mov_b32 v31, 0
        s_waitcnt vmcnt(0)
        s_mov_b64 exec, 1
        ds_add_rtn_u32 v{vSt}, v31, v{V_T} offset:32
        s_mov_b64 exec, -1''')
    if k == PK + OPT['wgf'] and OPT['wgf']:
        e(f's_waitcnt lgkmcnt({2*OPT["wgf"]})\nv_readfirstlane_b32 s{sTmp2}, v{vSt}\ns_cmp_lg_u32 s{sTmp2}, 3\ns_cbranch_scc1 L_nopub')
        publish(sFl, 31)
        e('L_nopub:'); stamp(5)
    if k == OPT['pollk']: e(f'buffer_load_dword v31, v{vFl}, {sr(SRD_WS)}, 0 offen sc1')
assert zi == 40 and VX == VS + 48 and not fill
stamp(7)
def kv_loads(buf, i, srdn=SRD_C):
    return [f'buffer_load_dwordx4 {vr(VK + 8*buf, 4)}, v{vKo0}, {sr(srdn)}, s{sK} offen offset:{512*i} sc1',
            f'buffer_load_dwordx4 {vr(VK + 8*buf + 4, 4)}, v{vKo1}, {sr(srdn)}, s{sK} offen offset:{512*i} sc1',
            f's_mov_b64 exec, s[{sMask}:{sMask+1}]',
            f'buffer_load_dwordx4 {vr(VV + 8*buf, 4)}, v{vVo}, {sr(srdn)}, s{sV} offen offset:{256*i} sc1',
            f'buffer_load_dwordx4 {vr(VV + 8*buf + 4, 4)}, v{vVo}, {sr(srdn)}, s{sV} offen offset:{256*i + 128} sc1',
            's_mov_b64 exec, -1']
_kvl = kv_loads
if OPT['ones']:
    assert OPT['wgf']
    def kv_loads(*a): return [x for x in _kvl(*a) if 'exec' not in x]
e('s_nop 11')
for r in range(16):
    m = vA if r < 4 else (vB if r >= 12 else vC)
    e(f'v_mul_f32 v{VACC + r}, v{m}, v{VACC + r}')
for i in range(8):
    e(f'v_cvt_pk_bf16_f32 v{VQ + 24 + i}, v{VACC + 2*i}, v{VACC + 2*i + 1}')
e(f"""ds_write_b128 v{vQw}, {vr(VQ+24,4)}
ds_write_b128 v{vQw}, {vr(VQ+28,4)} offset:1024""")
arrive(8)
lwait(8)
for s in range(3):
    e(f'ds_read_b128 {vr(VQ+8*s,4)}, v{vQx[s]}\nds_read_b128 {vr(VQ+8*s+4,4)}, v{vQx[s]} offset:1024')
PF = OPT['pf']
poll(vFl, first_issued=OPT['pollk'] < 28, reg=31, sleep=OPT['ksleep'])
stamp(8)
for t in range(PF): e('\n'.join(kv_loads(t, t)))
OM = OPT['omode']
if OM:
    e(f'''s_lshr_b32 s{sTmp}, s{S_O0}, 3
    s_add_u32 s{sTmp2}, s{S_O0}, 3
    s_lshr_b32 s{sTmp2}, s{sTmp2}, 3
    s_sub_u32 s{sTmp2}, s{sTmp2}, s{sTmp}
    s_lshl_b32 s{sTmp2}, s{sTmp2}, 6
    s_lshl_b32 s{sTmp}, s{sTmp}, 6
    s_lshl2_add_u32 s{sSt}, s{S_TILE}, s{S_W}
    s_add_u32 s{sTmp}, s{sTmp}, s{sSt}
    s_lshl_b32 s{sTmp}, s{sTmp}, {FSH}
    s_add_u32 s{sTmp}, s{sTmp}, {F_Y}
    v_and_b32 v{vFl}, 1, v{V_LANE}
    v_mul_u32_u24 v{vFl}, s{sTmp2}, v{vFl}
    v_and_b32 v31, 2, v{V_LANE}
    v_lshl_add_u32 v{vFl}, v31, 8, v{vFl}
    v_lshl_add_u32 v{vFl}, v{vFl}, {FSH}, s{sTmp}''')
def qk(buf, slot, js):
    d = vr(VS + 16*slot, 16)
    return f'v_mfma_f32_32x32x16_bf16 {d}, {vr(VK + 8*buf + 4*js, 4)}, {vr(VQ + 8*slot + 4*js, 4)}, {"0" if js == 0 else d}'
def pv(buf, slot, js):
    return f'v_smfmac_f32_32x32x32_bf16 {vr(VO + 16*slot, 16)}, {vr(VV + 8*buf + 4*js, 4)}, {vr(VS + 16*slot + 8*js, 8)}, v{vIdx}'
def exps(s): return [f'v_exp_f32 v{VS + 16*s + r}, v{VS + 16*s + r}' for r in range(16)]
SPREAD = []
def unit(t, s):
    ex = exps(s)
    if OPT['ax'] & 16 and s in (0, 1, 2):
        pass
    nb = t if s < 3 else (t + 1) & 3
    pb = t if s > 0 else (t - 1) & 3
    if s == 3: e(f's_waitcnt vmcnt({4*PF-4})')
    e(qk(nb, (s+1) & 3, 0)); e('\n'.join(ex[0:4]))
    e(qk(nb, (s+1) & 3, 1)); e('\n'.join(ex[4:8]))
    e(pv(pb, (s-1) & 3, 0))
    if s == 1:
        kl = kv_loads((t + PF) & 3, t + PF)
        if OPT['ax'] & 1: kl = [x for x in kl if 'exec' not in x]
        if OPT['ax'] & 2: kl = [x for x in kl if 'buffer' not in x]
        if OPT['ax'] & 4: kl = [x.replace(' sc1', '') for x in kl]
        if OPT['ax'] & 8: SPREAD.extend(kl); kl = []
        e('\n'.join(kl))
        if t == 3 - PF:
            e(f's_cmp_eq_u32 s{sIt}, 3\ns_cselect_b32 s{SRD_C+2}, 0, s{SRD_C+2}')
        if t == 3:
            e(f's_add_u32 s{sK}, s{sK}, 2048\ns_add_u32 s{sV}, s{sV}, 1024\ns_add_u32 s{sIt}, s{sIt}, 1\ns_cmp_lg_u32 s{sIt}, 4')
    e('\n'.join(ex[8:12]))
    e(pv(pb, (s-1) & 3, 1)); e('\n'.join(ex[12:16]))
e(f's_mov_b32 s{sIt}, 0\ns_waitcnt vmcnt({4*PF - 4}) lgkmcnt(0)')
stamp(9)
e(qk(0, 0, 0)); e(qk(0, 0, 1))
e(f"s_setprio {OPT['pa']}\ns_nop 8\ns_branch L_att_in" if OPT['prio'] else 's_nop 9\ns_branch L_att_in')
e('L_att:')
unit(3, 2); unit(3, 3)
e('L_att_in:')
for t in range(4):
    for s in range(4):
        if (t, s) < (3, 2): unit(t, s)
e('s_cbranch_scc1 L_att')
if OPT['prio']: e(f"s_setprio {OPT['pm']}")
if OM: e(f'buffer_load_dword v31, v{vFl}, {sr(SRD_WS)}, 0 offen sc1')
def rbw(s): return [f'ds_write_b128 v{vRb[s]}, {vr(VO + 16*s + 4*i, 4)} offset:{1024*i}' for i in range(4)]
ex = exps(2); w0 = rbw(0)
e(qk(3, 3, 0)); e('\n'.join(ex[0:4])); e(qk(3, 3, 1)); e('\n'.join(ex[4:7] + [w0[0]]))
e(pv(3, 1, 0)); e('\n'.join(ex[7:10] + [w0[1]])); e(pv(3, 1, 1)); e('\n'.join(ex[10:13] + [w0[2]] + ex[13:16] + [w0[3]]))
ex = exps(3); w1 = rbw(1); w2 = rbw(2)
e(pv(3, 2, 0)); e('\n'.join(ex[0:3])); e(pv(3, 2, 1))
e('\n'.join([w1[0]] + ex[3:5] + [w1[1]] + ex[5:7] + [w1[2]] + ex[7:9] + [w1[3]] + ex[9:10]))
e(pv(3, 3, 0))
e('\n'.join([w2[0]] + ex[10:12] + [w2[1]] + ex[12:14] + [w2[2]] + ex[14:16] + [w2[3]]))
arrive(9)
e(pv(3, 3, 1))
stamp(10)
lwait(9)
for i in range(12): e(f'ds_read_b128 {vr(VS + 4*i, 4)}, v{vRr} offset:{1024*i}')
OA = VO + 48
for s in range(3):
    e(f's_waitcnt lgkmcnt({8 - 4*s})')
    for i in range(8): e(f'v_pk_add_f32 {vr(OA+2*i,2)}, {vr(OA+2*i,2)}, {vr(VS+16*s+2*i,2)}')
e(f's_mov_b32 s{sIt}, {1 if OPT["force_fb"] else 0}')
e(f'''L_norm:
v_cndmask_b32 v{vA}, v{OA+12}, v{OA}, s[{sOdd}:{sOdd+1}]
v_max3_f32 v{vC}, abs(v{OA}), abs(v{OA+1}), abs(v{OA+2})
v_mov_b32 v{vB}, v{vA}
v_max3_f32 v{vC}, abs(v{OA+3}), abs(v{OA+4}), v{vC}
v_max3_f32 v{vC}, abs(v{OA+5}), abs(v{OA+6}), v{vC}
v_permlane32_swap_b32 v{vA}, v{vB}
v_max3_f32 v{vC}, abs(v{OA+7}), abs(v{OA+8}), v{vC}
v_cndmask_b32 v{vB}, v{vB}, v{vA}, s[{sOdd}:{sOdd+1}]
v_max3_f32 v{vC}, abs(v{OA+9}), abs(v{OA+10}), v{vC}
v_rcp_f32 v{vA}, v{vB}
v_max3_f32 v{vC}, abs(v{OA+11}), abs(v{OA+12}), v{vC}
v_max3_f32 v{vC}, abs(v{OA+13}), abs(v{OA+14}), v{vC}
v_max_f32 v{vC}, abs(v{OA+15}), v{vC}
v_cmp_nle_f32 vcc, 0x30800000, v{vB}
s_mov_b64 s[78:79], vcc
v_cmp_nge_f32 vcc, 0x4e800000, v{vB}
s_or_b64 s[78:79], s[78:79], vcc
v_cmp_ngt_f32 vcc, 0x7f000000, v{vC}
s_or_b64 vcc, s[78:79], vcc''')
if OPT['force_fb']:
    e(f's_cmp_eq_u32 s{sIt}, 1\ns_cbranch_scc1 L_fb')
e('s_cbranch_vccnz L_fb0\nL_norm2:')
for i in range(8): e(f'v_pk_mul_f32 {vr(OA+2*i,2)}, {vr(OA+2*i,2)}, {vr(vA,2)} op_sel_hi:[1,0]')
for i in range(8): e(f'v_cvt_pk_bf16_f32 v{VS+i}, v{OA+2*i}, v{OA+2*i+1}')
if OM: poll(vFl, first_issued=2, reg=31)
o_stores(VS, VS + 4, '')
stamp(11)
if OPT['obar'] == 1: e('s_barrier')
if OPT['obar'] >= 3: e(f"s_waitcnt vmcnt({5 - OPT['obar']})\ns_barrier")
if OM == 0:
    e('s_waitcnt vmcnt(0)'); publish(sFo, vA)
if OPT['obar'] == 2: e('s_barrier')
stamp(12)
prof_out()
e('s_endpgm')

for tag, st in SPIN:
    e(f'L_ws_{tag}:'); lwait(st); e(f's_branch L_wb_{tag}')
sec('fb')
e(f'''L_fb0:
s_cmp_eq_u32 s{sIt}, 2
s_cbranch_scc1 L_norm2
L_fb:
s_waitcnt vmcnt(0)
s_mul_i32 s{sTmp}, s{S_O0}, {KS}
s_add_u32 s{sK}, s{sTmp}, {WS_K}
s_add_u32 s{sV}, s{sTmp}, {WS_V}
v_mov_b32 v{vC}, 0xff800000
s_mov_b32 s{sIt}, 0
L_fb1:''')
e('\n'.join(kv_loads(0, 0, SRD_WS)[:2]))
e('s_waitcnt vmcnt(0)')
e(qk(0, 3, 0)); e(qk(0, 3, 1)); e('s_nop 11')
for i in range(8): e(f'v_max3_f32 v{vC}, v{VS+48+2*i}, v{VS+49+2*i}, v{vC}')
e(f'''s_add_u32 s{sK}, s{sK}, 512
s_add_u32 s{sIt}, s{sIt}, 1
s_cmp_lg_u32 s{sIt}, 64
s_cbranch_scc1 L_fb1
v_mov_b32 v{vA}, v{vC}
s_sub_u32 s{sK}, s{sK}, 0x8000
s_mov_b32 s{sIt}, 0
v_permlane32_swap_b32 v{vA}, v{vC}
v_max_f32 v{vC}, v{vA}, v{vC}''')
for i in range(8): e(f'v_mov_b64 {vr(OA+2*i,2)}, 0')
e('L_fb2:')
e('\n'.join(kv_loads(0, 0, SRD_WS)))
e('s_waitcnt vmcnt(0)')
e(qk(0, 3, 0)); e(qk(0, 3, 1)); e('s_nop 11')
for i in range(16): e(f'v_sub_f32 v{VS+48+i}, v{VS+48+i}, v{vC}')
for i in range(16): e(f'v_exp_f32 v{VS+48+i}, v{VS+48+i}')
e('s_nop 1')
e(pv(0, 3, 0)); e(pv(0, 3, 1))
e(f'''s_add_u32 s{sK}, s{sK}, 512
s_add_u32 s{sV}, s{sV}, 256
s_add_u32 s{sIt}, s{sIt}, 1
s_cmp_lg_u32 s{sIt}, 64
s_cbranch_scc1 L_fb2
s_mov_b32 s{sIt}, 2
s_nop 11
s_branch L_norm''')

sD0, sD, sHw, sDs, sTab, sA, sB, sLd, sSk, sIt2, sFlU, sInv, sUns, sSel, sUl, sOl, sCh0 = range(60, 77)
sUs, sOut, sHm = 78, 80, 82
sE2, sE0, sE3, sKd = 84, 85, 86, 87
OUTM = 'sc1' if OPT['outsc'] & 1 else ''
OUTM2 = 'sc1' if OPT['outsc'] & 2 else ''
a0, a1, a2, a3 = 5, 6, 7, 9
vPar = 10
vKc = 18
vRa, vRb_, vKd, vKd1, vKd2, vUs, vFu, vE1, vE1b, vE2, vSa, vSb, vS1, vFr, vKxo, vKxp = range(20, 36)
vAc = 40
vOne, vScl, vAdd, vC0 = range(56, 60)
vOp = 64
vY = 128
vXt = 144
vAn = 166
vX1 = 172
T0, T1 = 160, 176
vZ = 192
U = 204
vZer = 220
vUa, vCd, vG_, vZp, vKp, vF_, vL16, vXo, vXp, vTr, vYl, vYs, vFy = range(224, 237)
vWoD = 238
vWoR = 240
vOl, vFo, vBw, vBr, vOut = range(242, 247)
def hi():
    if OPT['prio']: e('s_setprio 3')
KG = [True]
def lo():
    if OPT['prio']: e(f"s_setprio {OPT['kgp'] if KG[0] else OPT['ps']}")
ROLE[0] = 1
sec('ssm0')
e(f"""s_cmp_{'eq' if OPT['only'] != 2 else 'le'}_u32 s{S_C}, 7
s_cbranch_scc1 L_ssm_idle
s_lshr_b32 s{sDs}, s{S_W}, 1
s_lshl_b32 s{sD0}, s{S_C}, 6
s_lshl1_add_u32 s{sD0}, s{S_J}, s{sD0}
s_add_u32 s{sD}, s{sD0}, s{sDs}
s_mul_i32 s{sTab}, s{S_W}, {TABSZ}
s_add_u32 s{sTab}, s{sTab}, {L_TAB}
s_lshl1_add_u32 s{sA}, s{sD0}, s{S_W}
s_lshl_b32 s{sA}, s{sA}, 8
v_lshl_add_u32 v{a0}, v{V_LANE}, 2, s{sA}
v_lshrrev_b32 v{a1}, 3, v{V_LANE}
v_mul_u32_u24 v{a1}, 896, v{a1}
v_and_b32 v{a2}, 7, v{V_LANE}
v_lshl_add_u32 v{a1}, v{a2}, 4, v{a1}
v_add_u32 v{a2}, {7168-1024}, v{a1}
s_lshl2_add_u32 s{sFlU}, s{S_J}, s{S_W}
s_mul_i32 s{sA}, s{sFlU}, {16*896}
s_lshl_b32 s{sB}, s{S_C}, 7
s_add_u32 s{sA}, s{sA}, s{sB}
s_mov_b32 m0, s{sTab}
s_lshl_b32 s{sB}, s{sD0}, 1
s_mov_b32 s{SRD_A+2}, {2048*896}
s_mov_b32 s{SRD_A+3}, 0x20000
s_waitcnt lgkmcnt(0)
s_load_dword s{sLd}, s[14:15], s{sB}
s_load_dword s{S_NONCE}, s[28:29], 0
s_load_dword s{sSk}, s[16:17], s{sB}
s_mov_b64 s[{SRD_A}:{SRD_A+1}], s[4:5]
global_load_dword v{vPar+0}, v{a0}, s[6:7]
global_load_dword v{vPar+1}, v{a0}, s[8:9]
global_load_dword v{vPar+2}, v{a0}, s[10:11]
global_load_dword v{vPar+3}, v{a0}, s[12:13]
buffer_load_dwordx4 v{a1}, {sr(SRD_A)}, s{sA} offen lds
buffer_load_dwordx4 v{a2}, {sr(SRD_A)}, s{sA} offen offset:1024 lds
s_barrier""")
if OPT['tlb']:
    e(f'''v_and_b32 v{a0}, 7, v{V_LANE}
    v_min_u32 v{a0}, 5, v{a0}
    v_lshlrev_b32 v{a0}, 21, v{a0}
    v_add_u32 v{a0}, 0xf8000, v{a0}
    v_mov_b32 v{a1}, 0
    global_load_dword v8, v{a0}, s[28:29]
    global_load_dword v8, v{a1}, s[22:23]''')
e('s_branch L_ssm')
sec('ssm')
e('L_ssm:')
if OPT['abl'] == 1:
    arrive(1); e('s_waitcnt vmcnt(0) lgkmcnt(0)\ns_endpgm')
lo()
srd(SRD_WS, 28, WS_SIZE)
e(f"""s_lshl_b32 s{sUs}, s{sFlU}, 7
s_mul_i32 s{sA}, s{S_C}, {16*QS}
s_add_u32 s{sUs}, s{sUs}, s{sA}
s_add_u32 s{sUs}, s{sUs}, {WS_U}
s_add_u32 s{sUs+1}, s{sUs}, {8*QS}
s_lshl_b32 s{sA}, s{S_C}, {7 + FSH}
s_add_u32 s{sUl}, s{sA}, {F_U}
s_lshl_b32 s{sFlU}, s{sFlU}, {FSH}
s_add_u32 s{sFlU}, s{sFlU}, s{sUl}
s_and_b32 s{sHw}, s{S_W}, 1
v_add_u32 v{V_GRP}, 16, v{V_GRP}
v_and_b32 v{a0}, 15, v{V_LANE}
v_lshrrev_b32 v{a1}, 4, v{V_LANE}
v_lshl_add_u32 v{vRb_}, v{a1}, 4, s{sTab}
v_mul_u32_u24 v{a2}, {TROW}, v{a0}
v_add_u32 v{vRa}, v{a2}, v{vRb_}
v_bfe_u32 v{a0}, v{V_LANE}, 2, 2
v_and_b32 v{a3}, 1, v{V_LANE}
v_lshl_or_b32 v{a2}, v{a3}, 3, v{a0}
v_lshl_add_u32 v{vTr}, v{a2}, 7, v{vRb_}
v_and_b32 v{a2}, 2, v{V_LANE}
v_lshl_add_u32 v{vTr}, v{a2}, 2, v{vTr}
v_lshlrev_b32 v{vL16}, 4, v{V_LANE}
v_lshrrev_b32 v{a1}, 3, v{V_LANE}
v_and_b32 v{a2}, 0x70, v{vL16}
v_mul_u32_u24 v{a1}, {QS}, v{a1}
v_add_u32 v{vUs}, v{a1}, v{a2}
v_add_u32 v{vXo}, s{sTab}, v{vL16}
v_mov_b32 v{vOne}, 0x3c00""")
for i in range(8): e(f'v_mov_b64 {vr(vAc+2*i,2)}, 0')
mid = f"""v_min_u32 v{a0}, 32, v{V_LANE}
s_lshl_b32 s{sB}, s{S_W}, 5
s_sub_u32 s{sB}, s{sB}, 1
v_add_u32 v{a0}, s{sB}, v{a0}
v_max_i32 v{a0}, 0, v{a0}
v_lshl_add_u32 v{vFu}, v{a0}, {FSH}, s{sUl}
s_cmp_lg_u32 s{sHw}, 0
s_cselect_b64 s[{sHm}:{sHm+1}], -1, 0
s_mov_b32 s{sE0}, 0x05040504
s_mov_b32 s{sE3}, 0x01000100
s_cselect_b32 s{sE2}, s{sE3}, 0x01000302
v_and_b32 v{a0}, 15, v{V_LANE}
v_lshrrev_b32 v{a1}, 4, v{V_LANE}
s_lshl_b32 s{sKd}, s{sDs}, 11
s_add_u32 s{sKd}, s{sKd}, {L_KD}
s_lshl_b32 s{sA}, s{sHw}, 4
v_add_u32 v{a0}, s{sA}, v{a0}
v_lshlrev_b32 v{a2}, 9, v{a1}
v_lshl_add_u32 v{a2}, v{a0}, 2, v{a2}
s_add_u32 s{sA}, s{sKd}, 1024
v_add_u32 v{vKd2}, s{sA}, v{a2}
v_max_u32 v{a2}, 1, v{a1}
v_sub_u32 v{a2}, 5, v{a2}
v_lshlrev_b32 v{a0}, v{a2}, v{a0}
v_lshlrev_b32 v{a2}, 3, v{a1}
s_mov_b32 s{sA}, 0x60400100
v_bfe_u32 v{a3}, s{sA}, v{a2}, 8
v_lshl_add_u32 v{a0}, v{a3}, 3, v{a0}
v_add_u32 v{vKd}, s{sKd}, v{a0}
s_mov_b32 s{sA}, 0x80040404
v_bfe_u32 v{a3}, s{sA}, v{a2}, 8
v_add_u32 v{vKd1}, v{a3}, v{vKd}
v_bfe_u32 v{a0}, v{V_LANE}, 2, 2
v_and_b32 v{a3}, 1, v{V_LANE}
v_lshrrev_b32 v{a1}, 1, v{V_LANE}
v_lshlrev_b32 v{vUa}, 6, v{a1}
v_lshl_add_u32 v{vUa}, v{a3}, 4, v{vUa}
s_lshr_b32 s{sA}, s{sD0}, 2
s_mul_i32 s{sA}, s{sA}, {QS}
s_and_b32 s{sB}, s{sD0}, 3
s_lshl4_add_u32 s{sA}, s{sB}, s{sA}
s_lshl_b32 s{sB}, s{S_W}, 12
s_add_u32 s{sA}, s{sA}, s{sB}
s_add_u32 s{sUl}, s{sA}, {WS_U - 64}
v_mul_u32_u24 v{a2}, {UC_D}, v{a3}
v_lshl_add_u32 v{a2}, v{a1}, 4, v{a2}
s_lshl_b32 s{sA}, s{S_W}, 10
s_add_u32 s{sA}, s{sA}, {L_UC + 64}
v_add_u32 v{vCd}, s{sA}, v{a2}
v_mul_u32_u24 v{a3}, 0x0404, v{a3}
v_lshlrev_b32 v{a3}, 16, v{a3}
v_add_u32 v{a3}, 0x01000504, v{a3}
v_mov_b32 v{vS1}, 0x03020302
v_cndmask_b32 v{vS1}, v{vS1}, v{a3}, s[{sHm}:{sHm+1}]
v_lshrrev_b32 v{a1}, 5, v{V_LANE}
v_mul_u32_u24 v{a3}, 0x0202, v{a1}
v_sub_u32 v{vSb}, 0x01000302, v{a3}
v_lshl_or_b32 v{a3}, v{a3}, 16, v{a3}
v_sub_u32 v{vSa}, 0x05040706, v{a3}
v_lshrrev_b32 v{a3}, v{a1}, v{vL16}
v_lshl_add_u32 v{a3}, v{a1}, 8, v{a3}
v_add_u32 v{vE1}, s{sKd}, v{a3}
v_lshlrev_b32 v{a3}, 2, v{a1}
v_sub_u32 v{vE1b}, v{vE1}, v{a3}
s_lshl_b32 s{sB}, s{sHw}, 9
s_add_u32 s{sA}, s{sKd}, s{sB}
s_add_u32 s{sA}, s{sA}, 512
v_lshl_add_u32 v{vE2}, v{V_LANE}, 2, s{sA}
s_xor_b32 s{sA}, s{S_W}, 1
s_mul_i32 s{sA}, s{sA}, {TABSZ}
s_add_u32 s{sA}, s{sA}, {L_TAB}
v_add_u32 v{vXp}, s{sA}, v{vL16}
s_mul_i32 s{sA}, s{sDs}, 6144
s_add_u32 s{sA}, s{sA}, {L_KP}
s_add_u32 s{sInv}, s{sA}, s{sB}
s_mul_i32 s{sB}, s{sHw}, 3072
s_add_u32 s{sB}, s{sB}, s{sA}
v_lshl_add_u32 v{a2}, v{a1}, 10, v{vL16}
v_add_u32 v{vG_}, s{sB}, v{a2}
v_mov_b64 {vr(vZer,2)}, 0
v_mov_b64 {vr(vZer+2,2)}, 0
v_and_b32 v{a3}, 3, v{V_LANE}
v_mul_u32_u24 v{a2}, {UC_S}, v{a0}
v_lshl_add_u32 v{a2}, v{a3}, 4, v{a2}
s_mul_i32 s{sB}, s{sDs}, {UC_D}
s_add_u32 s{sB}, s{sB}, {L_UC}
v_add_u32 v{vZp}, s{sB}, v{a2}
v_mul_u32_u24 v{a2}, {1536 - 4}, v{a3}
v_lshl_add_u32 v{a2}, v{V_LANE}, 2, v{a2}
v_add_u32 v{vKp}, s{sInv}, v{a2}
v_xor_b32 v{a3}, 3, v{a3}
v_mul_u32_u24 v{a3}, {UC_S}, v{a3}
v_bfe_u32 v{a2}, v{V_LANE}, 2, 3
v_lshl_add_u32 v{a3}, v{a2}, 3, v{a3}
v_lshlrev_b32 v{a1}, 4, v{a1}
v_sub_u32 v{a3}, v{a3}, v{a1}
s_lshl_b32 s{sA}, s{sHw}, 5
s_sub_u32 s{sB}, s{sB}, s{sA}
s_add_u32 s{sB}, s{sB}, 56
v_add_u32 v{vF_}, s{sB}, v{a3}
s_mul_i32 s{sA}, s{S_W}, 1536
s_add_u32 s{sA}, s{sA}, {L_KX}
v_add_u32 v{vKxo}, s{sA}, v{vL16}
s_xor_b32 s{sA}, s{S_W}, 1
s_mul_i32 s{sA}, s{sA}, 1536
s_add_u32 s{sA}, s{sA}, {L_KX}
v_add_u32 v{vKxp}, s{sA}, v{vL16}
s_cmp_eq_u32 s{S_W}, 0
s_cselect_b64 s[88:89], 3, 0
"""
e(mid)
stamp(22)
e(f's_waitcnt lgkmcnt(0)\ns_add_u32 s{S_NONCE}, s{S_NONCE}, 1')
arrive(1)
e(f"""s_lshl_b32 s{sA}, s{sDs}, 4
s_lshr_b32 s{sLd}, s{sLd}, s{sA}
s_lshl_b32 s{sLd}, s{sLd}, 16
s_lshr_b32 s{sSk}, s{sSk}, s{sA}
s_lshl_b32 s{sSk}, s{sSk}, 16
v_mov_b32 v{a0}, s{sLd}
v_mul_f32 v{a0}, 0x3fb8aa3b, v{a0}
v_exp_f32 v{a0}, v{a0}
s_cmp_eq_u32 s{sHw}, 0
s_cselect_b32 s{sSk}, s{sSk}, 0
v_cvt_pk_bf16_f32 v{a0}, v{a0}, v{a0}
v_and_b32 v{vScl}, 0xffff0000, v{a0}
v_mul_f32 v{vKc}, 0xbfb8aa3b, v{vScl}
v_mul_f32 v{vKc+1}, 0.15915494, v{vScl}
v_mov_b32 v{vAdd}, 0
v_add_f32 v{vScl}, v{vScl}, v{vScl}
v_writelane_b32 v{vAdd}, s{sSk}, 0
s_mov_b32 s{sIt2}, 0
s_mov_b32 s{sSel}, 0x01000c0c""")
stamp(0)
e(f"""s_waitcnt vmcnt({4 if OPT['tlb'] else 2})
v_and_b32 v{a0}, 0x7f807f80, v{vPar+2}
v_and_b32 v{a1}, 0x7f807f80, v{vPar+3}
v_pk_max_u16 v{a0}, v{a0}, v{a1}
v_lshlrev_b32 v{a1}, 16, v{a0}
v_max_u32 v{a0}, v{a0}, v{a1}
s_waitcnt vmcnt({2 if OPT['tlb'] else 0})""")
for q, n in enumerate((1, 2, 4, 8)):
    z, hf = divmod(q, 2)
    e(f'ds_read_b64_tr_b16 {vr(U + 4*z + 2*hf, 2)}, v{vTr} offset:{64*z + 512*hf}')
    e(f's_nop 0\nv_max_u32_dpp v{a0}, v{a0}, v{a0} row_ror:{n} row_mask:0xf bank_mask:0xf')
e(f"""s_nop 0
v_readlane_b32 s{sA}, v{a0}, 0
v_readlane_b32 s{sB}, v{a0}, 16
v_readlane_b32 s{sInv}, v{a0}, 32
v_readlane_b32 s{sUns}, v{a0}, 48
s_max_u32 s{sA}, s{sA}, s{sB}
s_max_u32 s{sUns}, s{sUns}, s{sInv}
s_max_u32 s{sUns}, s{sUns}, s{sA}
s_and_b32 s{sUns}, s{sUns}, 0x7f800000
s_min_u32 s{sUns}, s{sUns}, 0x7e800000
s_sub_u32 s{sInv}, 0x7f000000, s{sUns}
v_mul_f32 v{vScl}, s{sUns}, v{vScl}""")
hi()
e(f"""s_waitcnt lgkmcnt(0)
buffer_store_dwordx4 {vr(U,4)}, v{vUs}, {sr(SRD_WS)}, s{sUs} offen sc1
buffer_store_dwordx4 {vr(U+4,4)}, v{vUs}, {sr(SRD_WS)}, s{sUs+1} offen sc1""")
lo()
e(f'ds_write_addtid_b32 v{vOne}')
stamp(1)
if OPT['abl'] == 2: e('s_endpgm')
def cm(jobs, conj):
    ng = 'neg_hi:[1,0,0]' if conj else 'neg_lo:[1,0,0]'
    return [f'v_pk_mul_f16 v{d}, v{x}, v{w} op_sel_hi:[1,0]' for d, x, w in jobs] + \
           [f'v_pk_fma_f16 v{d}, v{x}, v{w}, v{d} op_sel:[1,1,0] op_sel_hi:[0,1,1] {ng}' for d, x, w in jobs]
def wr(reg): return f'ds_write_addtid_b32 v{reg} offset:{TROW*(reg - vY)}'
assert vXt == vY + 16
zA, zB, tA, tB, pA, pB = vZ, vZ+2, vZ+4, vZ+6, vZ+8, vZ+10
X = vXt; Y = vY
an = {1: vAn, 2: vAn+1, 4: vAn+2, 8: Y+1, 16: Y+2, 32: Y+4, 64: Y+8, 128: X+21, 256: vAn+3, 512: vAn+4, 1024: vAn+5}
e('L_kg:')
stamp(14)
seq = f"""v_perm_b32 v{pA}, v{vPar}, v{vPar}, s{sSel}
v_mul_f32 v{pA}, 0x3fb8aa3b, v{pA}
v_exp_f32 v{pA}, v{pA}
v_perm_b32 v{pA+1}, v{vPar+1}, v{vPar+1}, s{sSel}
v_perm_b32 v{tA}, v{vPar+2}, v{vPar+2}, s{sSel}
v_perm_b32 v{tA+1}, v{vPar+3}, v{vPar+3}, s{sSel}
v_cvt_pk_bf16_f32 v{pA}, v{pA}, v{pA}
v_mul_f32 v{tA}, s{sInv}, v{tA}
v_and_b32 v{pA}, 0xffff0000, v{pA}
v_mul_f32 v{tA+1}, s{sInv}, v{tA+1}
v_pk_mul_f32 {vr(pA,2)}, {vr(pA,2)}, {vr(vKc,2)}
v_cvt_pk_f16_f32 v{X}, v{tA}, -v{tA+1}
v_mul_f32 v{pB}, 0x42800000, v{pA}
v_mul_f32 v{pB+1}, 0x42800000, v{pA+1}
v_exp_f32 v{pA}, v{pA}
v_fract_f32 v{pA+1}, v{pA+1}
v_exp_f32 v{pB}, v{pB}
v_fract_f32 v{pB+1}, v{pB+1}
v_cos_f32 v{zA}, v{pA+1}
v_sin_f32 v{zA+1}, v{pA+1}
v_cos_f32 v{zB}, v{pB+1}
v_sin_f32 v{zB+1}, v{pB+1}
v_pk_mul_f32 {vr(zA,2)}, {vr(zA,2)}, {vr(pA,2)} op_sel_hi:[1,0]
v_pk_mul_f32 {vr(zB,2)}, {vr(zB,2)}, {vr(pB,2)} op_sel_hi:[1,0]""".split('\n')
for st in range(6):
    chains = [(zA, tA, an[1 << st], st < 5)] + ([(zB, tB, an[64 << st], st < 4)] if st < 5 else [])
    for z, t, d, sq in chains:
        if sq: seq.append(f'v_pk_mul_f32 {vr(t,2)}, {vr(z,2)}, {vr(z,2)} op_sel_hi:[0,1]')
    for z, t, d, sq in chains: seq.append(f'v_cvt_pk_f16_f32 v{d}, v{z}, v{z+1}')
    for z, t, d, sq in chains:
        if sq: seq.append(f'v_pk_fma_f32 {vr(z,2)}, {vr(z,2)}, {vr(z,2)}, {vr(t,2)} op_sel:[1,1,0] op_sel_hi:[0,1,1] neg_lo:[1,0,0]')
seq += cm([(X+1, X, an[1]), (X+2, X, an[2]), (X+4, X, an[4]), (X+8, X, an[256]), (X+12, X, an[512]), (X+16, X, an[1024])], True)
seq += cm([(Y+3, Y+1, Y+2), (Y+12, Y+4, Y+8), (Y+5, Y+4, Y+1), (Y+6, Y+4, Y+2), (Y+9, Y+8, Y+1), (Y+10, Y+8, Y+2)], False)
seq += cm([(X+3, X+1, an[2]), (X+5, X+1, an[4]), (X+6, X+2, an[4]), (X+9, X+2, an[256]), (X+10, X+4, an[256]), (X+13, X+4, an[512]),
           (X+14, X+8, an[512]), (X+17, X+8, an[1024]), (X+18, X+12, an[1024]), (X+20, X+16, an[1024])], True)
seq += cm([(Y+7, Y+4, Y+3), (Y+11, Y+8, Y+3), (Y+13, Y+12, Y+1), (Y+14, Y+12, Y+2), (Y+15, Y+12, Y+3)], False)
seq += cm([(X+7, X+3, an[4]), (X+11, X+6, an[256]), (X+15, X+10, an[512]), (X+19, X+14, an[1024])], True)
e('\n'.join(seq))
stamp(15)
if OPT['kgw']:
    e(f'v_subrev_u32 v{a0}, 16, v{V_GRP}'); lwait(OPT['kgw'], addr=a0)
hi()
if OPT['abl'] != 4: e('\n'.join(wr(r) for r in range(Y + 1, X + 22)))
for k in range(4):
    o = vOp + 16*k
    e(f"""ds_read_b128 {vr(o,4)}, v{vRa} offset:{64*k}
    ds_read_b128 {vr(o+4,4)}, v{vRb_} offset:{37*TROW + 64*k}
    ds_read_b128 {vr(o+8,4)}, v{vRa} offset:{16*TROW + 64*k}
    ds_read_b128 {vr(o+12,4)}, v{vRa} offset:{32*TROW + 64*k}""")
e(f's_cmp_eq_u32 s{sIt2}, 0\ns_cbranch_scc1 L_kg_n\nbuffer_load_dword v{vFr}, v{vFu}, {sr(SRD_WS)}, 0 offen sc1\nL_kg_n:')
stamp(16)
def mf(c, a, b): return f'v_mfma_f32_16x16x32_f16 {vr(c,4)}, {vr(a,4)}, {vr(b,4)}, {vr(c,4)}'
late_m = []
for k in range(4):
    o = vOp + 16*k; y1 = vX1 + 4*(k & 1)
    p = cm([(y1+r, o+r, o+4+r) for r in range(4)], False)
    e(f's_waitcnt lgkmcnt({12 - 4*k})')
    e('\n'.join([mf(vAc, o+8, o)] + p[0:2] + late_m[:1] + p[2:4] + [mf(vAc+4, o+12, o)] + p[4:6] + late_m[1:] + p[6:8]))
    late_m = [mf(vAc+8, o+8, y1), mf(vAc+12, o+12, y1)]
e(f"""s_add_u32 s{sSel}, s{sSel}, 0x02020000
s_add_u32 s{sIt2}, s{sIt2}, 1
s_cmp_lg_u32 s{sIt2}, 2""")
e('\n'.join(late_m))
if OPT['upub'] == 1:
    e('s_cbranch_scc0 L_kg_e'); stamp(21); e('s_waitcnt vmcnt(0)'); publish(sFlU, a0); lo(); e('s_branch L_kg\nL_kg_e:')
else:
    lo(); e('s_cbranch_scc1 L_kg'); hi(); e('s_waitcnt vmcnt(0)'); publish(sFlU, a0)
lo()
stamp(17)
if OPT['abl'] in (4, 8): e('s_endpgm')
for i in range(8): e(f'v_mul_f32 v{vAc+i}, v{vScl}, v{vAc+i}')
e(f's_cmp_eq_u32 s{sHw}, 0')
for i in range(8, 16): e(f'v_mul_f32 v{vAc+i}, v{vScl}, v{vAc+i}')
e('s_cbranch_scc1 L_kx')
for i in range(8): e(f'v_swap_b32 v{vAc+i}, v{vAc+8+i}')
e(f"""L_kx:
ds_write_b128 v{vKxo}, {vr(vAc+8,4)}
s_mov_b32 exec_hi, 0
ds_write_b128 v{vKxo}, {vr(vAc+12,4)} offset:1024
s_mov_b64 exec, -1""")
arrive(2)
e(f'v_add_f32 v{vAc}, v{vAdd}, v{vAc}')
stamp(18)
poll(vFu, first_issued=True, reg=vFr, sleep=OPT['usleep'])
for k in range(2):
    e(f"""buffer_load_dwordx4 {vr(U+8*k+4,4)}, v{vUa}, {sr(SRD_WS)}, s{sUl} offen offset:{64 + 2048*k} sc1
    buffer_load_dwordx2 {vr(U+8*k+2,2)}, v{vUa}, {sr(SRD_WS)}, s{sUl} offen offset:{8 + 2048*k} sc1""")
if OPT['prio']: e(f"s_setprio {OPT['bp']}")
stamp(19)
lwait(2)
e(f"""ds_read_b128 {vr(vAc+8,4)}, v{vKxp}
ds_read_b128 {vr(vAc+12,4)}, v{vKxp} offset:1024
ds_write_b128 v{vG_}, {vr(vZer,4)}
ds_write_b128 v{vZp}, {vr(vZer,4)}
v_add_u32 v{vG_}, {512 - 80}, v{vG_}
s_mov_b32 s{sIt2}, 4
s_waitcnt lgkmcnt(2)""")
for i in range(4): e(f'v_pk_add_f32 {vr(vAc+2*i,2)}, {vr(vAc+2*i,2)}, {vr(vAc+8+2*i,2)}')
for i in range(4): e(f'v_cvt_pk_bf16_f32 v{vAc+8+i}, v{vAc+2*i}, v{vAc+2*i+1}')
e(f"""ds_write_b32 v{vKd}, v{vAc+8}
ds_write_b32 v{vKd1}, v{vAc+9}
s_mov_b32 exec_hi, 0
ds_write_b16 v{vKd2}, v{vAc+10}
ds_write_b16_d16_hi v{vKd2}, v{vAc+10} offset:128
ds_write_b16 v{vKd2}, v{vAc+11} offset:256
ds_write_b16_d16_hi v{vKd2}, v{vAc+11} offset:384
s_mov_b64 exec, -1""")
sync(3)
stamp(2)
E = 96
e(f"""ds_read2_b32 {vr(E+6,2)}, v{vE2} offset0:64 offset1:65
s_cmp_lg_u32 s{sHw}, 0
s_cbranch_scc1 L_ex1
ds_read_b64 {vr(E,2)}, v{vE1}
ds_read2_b32 {vr(E+2,2)}, v{vE1b} offset0:2 offset1:3
s_waitcnt lgkmcnt(0)
v_perm_b32 v{E+8}, v{E+3}, v{E+2}, v{vSa}
v_perm_b32 v{E+9}, v{E+2}, v{E+2}, v{vSb}
v_perm_b32 v{E+10}, v{E+1}, v{E}, v{vSa}
v_perm_b32 v{E+11}, v{E}, v{E}, v{vSb}
s_branch L_ex2
L_ex1:
ds_read2_b32 {vr(E,2)}, v{vE2} offset0:0 offset1:1
s_waitcnt lgkmcnt(0)""")
def ex2(d, p):
    e(f"""v_perm_b32 v{d}, v{p+1}, v{p}, s{sE0}
    v_perm_b32 v{d+1}, v{p+1}, v{p}, v{vS1}
    v_perm_b32 v{d+2}, v{p+1}, v{p}, s{sE2}
    v_perm_b32 v{d+3}, v{p+1}, v{p}, s{sE3}""")
ex2(E+8, E)
e('L_ex2:')
ex2(E+12, E+6)
e(f"""ds_write_b128 v{vKp}, {vr(E+8,4)} offset:512
ds_write_b128 v{vKp}, {vr(E+12,4)} offset:{512 + 256}
s_waitcnt vmcnt(2)
v_cndmask_b32 v{U+2}, v{U+2}, v{vZer}, s[88:89]
v_cndmask_b32 v{U+3}, v{U+3}, v{vZer}, s[88:89]""")
stamp(3)
SH = 128
for k in range(2):
    b = U + 8*k + 4; t = SH + 12*k
    if k: e('s_waitcnt vmcnt(0)')
    e(f'ds_write_b128 v{vCd}, {vr(b,4)} offset:{512*k}')
    for i in range(4): e(f'v_alignbit_b32 v{t+i}, v{b+i}, v{b+i-1}, 16')
    e(f'ds_write_b128 v{vCd}, {vr(t,4)} offset:{UC_S + 512*k}')
    for i in range(4): e(f'v_mov_b32 v{t+4+i}, v{b+i-1}')
    e(f'ds_write_b128 v{vCd}, {vr(t+4,4)} offset:{2*UC_S + 512*k}')
    for i in range(4): e(f'v_alignbit_b32 v{t+8+i}, v{b+i-1}, v{b+i-2}, 16')
    e(f'ds_write_b128 v{vCd}, {vr(t+8,4)} offset:{3*UC_S + 512*k}')
sync(4)
KG[0] = False
lo()
stamp(4)
if OPT['abl'] == 16: e('s_endpgm')
CB = 64
def cv_reads(k):
    b = CB + 16 * (k & 3)
    return [f'ds_read_b128 {vr(b+8,4)}, v{vG_} offset:{80 - 16*k}',
            f'ds_read_b64 {vr(b,2)}, v{vF_} offset:{64*k}', f'ds_read_b64 {vr(b+2,2)}, v{vF_} offset:{64*k + 8}',
            f'ds_read_b128 {vr(b+12,4)}, v{vG_} offset:{512 + 80 - 16*k}',
            f'ds_read_b64 {vr(b+4,2)}, v{vF_} offset:{2048 + 64*k}', f'ds_read_b64 {vr(b+6,2)}, v{vF_} offset:{2048 + 64*k + 8}']
e('\n'.join(cv_reads(0) + cv_reads(1)))
FOA = f'''s_lshr_b32 s{sA}, s{sOl}, 1
s_lshl_b32 s{sA}, s{sA}, {4 + FSH}
s_add_u32 s{sA}, s{sA}, {F_O}
v_lshl_add_u32 v{vFo}, v{a1}, {FSH}, s{sA}''' if not OM else f'''s_lshr_b32 s{sA}, s{sOl}, 1
s_lshl_b32 s{sB}, s{sHw}, 9
s_add_u32 s{sA}, s{sA}, s{sB}
s_lshl_b32 s{sA}, s{sA}, {FSH}
s_add_u32 s{sA}, s{sA}, {F_Y}
v_min_u32 v{vFo}, 6, v{a1}
v_lshl_add_u32 v{vFo}, v{vFo}, {6 + FSH}, s{sA}'''
late = f"""s_mov_b64 s[{SRD_B}:{SRD_B+1}], s[22:23]
s_mov_b32 s{SRD_B+2}, {448*896}
s_mov_b32 s{SRD_B+3}, 0x20000
s_mov_b64 s[{SRD_C}:{SRD_C+1}], s[24:25]
s_mov_b32 s{SRD_C+2}, {2048*1792}
s_mov_b32 s{SRD_C+3}, 0x20000
v_lshrrev_b32 v{a1}, 3, v{V_LANE}
v_and_b32 v{a2}, 7, v{V_LANE}
v_and_b32 v{a0}, 0x70, v{vL16}
v_mul_u32_u24 v{vYl}, {YS}, v{a1}
v_add_u32 v{vYl}, v{vYl}, v{a0}
v_lshlrev_b32 v{a3}, 2, v{V_LANE}
v_and_b32 v{a3}, 64, v{a3}
v_xor_b32 v{a0}, v{a0}, v{a3}
v_mul_u32_u24 v{vWoD}, 896, v{a1}
v_xor_b32 v{a3}, v{a1}, v{a2}
v_lshlrev_b32 v{a3}, 4, v{a3}
v_lshl_add_u32 v{vOut}, v{vWoD}, 1, v{a3}
v_add_u32 v{vWoD}, v{a0}, v{vWoD}
v_add_u32 v{vWoD+1}, {7168-1024}, v{vWoD}
v_lshrrev_b32 v{a0}, 4, v{V_LANE}
v_bfe_u32 v{a1}, v{V_LANE}, 2, 2
v_lshl_or_b32 v{a3}, v{a0}, 3, v{a1}
v_lshlrev_b32 v{a3}, 7, v{a3}
v_lshrrev_b32 v{a1}, 1, v{a1}
v_lshl_add_u32 v{a3}, v{a1}, 6, v{a3}
v_and_b32 v{a1}, 0x30, v{vL16}
s_movk_i32 s{sA}, {L_WO}
v_add3_u32 v{vWoR}, v{a1}, v{a3}, s{sA}
v_xor_b32 v{vWoR+1}, 64, v{vWoR}
v_and_b32 v{a1}, 15, v{V_LANE}
v_lshlrev_b32 v{vOl}, 4, v{a1}
v_mad_u32_u24 v{vOl}, v{a0}, s{S_KS}, v{vOl}
s_lshl2_add_u32 s{sOl}, s{S_J}, s{S_W}
{FOA}
s_lshl_b32 s{sA}, s{S_W}, 11
s_add_u32 s{sA}, s{sA}, {L_SSM}
v_xor_b32 v{a3}, v{a0}, v{a2}
v_lshl_add_u32 v{a3}, v{a3}, 4, s{sA}
v_lshl_add_u32 v{vBw}, v{a1}, 7, v{a3}
v_add_u32 v{vBr}, s{sA}, v{vL16}
s_mul_i32 s{sOut}, s{sOl}, {16*1792}
s_lshl_b32 s{sA}, s{S_C}, 7
s_add_u32 s{sOut}, s{sOut}, s{sA}
s_add_u32 s{sOut}, s{sOut}, 896
s_add_u32 s{sOut+1}, s{sOut}, {8*1792}
s_lshl_b32 s{sOl}, s{sOl}, 8
s_add_u32 s{sOl}, s{sOl}, {WS_O}
s_lshl2_add_u32 s{sCh0}, s{S_C}, s{S_W}
s_lshl_b32 s{sCh0}, s{sCh0}, 4
s_lshr_b32 s{sA}, s{S_J}, 4
s_lshl_b32 s{sA}, s{sA}, 9
s_add_u32 s{sA}, s{sA}, s{sCh0}
s_lshl_b32 s{sA}, s{sA}, {FSH}
s_add_u32 s{sA}, s{sA}, {F_Y}
v_lshl_add_u32 v{vFy}, v{a1}, {FSH}, s{sA}
v_and_b32 v{a1}, 11, v{V_LANE}
v_lshl_or_b32 v{a1}, v{a0}, 5, v{a1}
v_mul_u32_u24 v{a1}, 1792, v{a1}
v_and_b32 v{a3}, 4, v{V_LANE}
v_lshl_add_u32 v{vYs}, v{a3}, 2, v{a1}""".split('\n')
e('\n'.join(late[:20])); late = late[20:]
def cv_iter(first):
    for k in range(4):
        b = CB + 16 * k
        rd = cv_reads(k + 2)
        z = first and k == 0
        def fill(n):
            if first:
                e('\n'.join(late[:n])); del late[:n]
        e('s_waitcnt lgkmcnt(6)')
        e(f'v_mfma_f32_32x32x16_bf16 {vr(T1,16)}, {vr(b,4)}, {vr(b+12,4)}, {"0" if z else vr(T1,16)}')
        e('\n'.join(rd[0:3])); fill(3)
        e(f'v_mfma_f32_32x32x16_bf16 {vr(T0,16)}, {vr(b,4)}, {vr(b+8,4)}, {"0" if z else vr(T0,16)}')
        e('\n'.join(rd[3:6])); fill(3)
        if k == 3:
            e(f'v_add_u32 v{vF_}, 256, v{vF_}\nv_subrev_u32 v{vG_}, 64, v{vG_}')
            if not first: e(f's_add_u32 s{sIt2}, s{sIt2}, 1\ns_cmp_lg_u32 s{sIt2}, 11')
        e(f'v_mfma_f32_32x32x16_bf16 {vr(T1,16)}, {vr(b+4,4)}, {vr(b+8,4)}, {vr(T1,16)}')
        fill(6 if k < 3 else 99)
cv_iter(True)
e('L_cv:')
cv_iter(False)
e('s_cbranch_scc1 L_cv')
if OPT['prio']: e(f"s_setprio {OPT['pr']}")
stamp(5)
if OPT['abl'] == 32: e('s_endpgm')
arrive(5)
e(f"""s_mul_i32 s{sA}, s{sD}, {YS}
s_lshl_b32 s{sB}, s{sHw}, 11
s_add_u32 s{sA}, s{sA}, s{sB}
s_add_u32 s{sA}, s{sA}, {WS_Y}
s_lshl_b32 s{sB}, s{sHw}, 9
s_add_u32 s{sB}, s{sB}, s{sD}
s_lshl_b32 s{sB}, s{sB}, {FSH}
s_add_u32 s{sB}, s{sB}, {F_Y}""")
lwait(5)
def xch(give, keep):
    for i in range(4): e(f'ds_write_b128 v{vXp}, {vr(give+4*i,4)} offset:{1024*i}')
    sync(6)
    for i in range(4): e(f'ds_read_b128 {vr(give+4*i,4)}, v{vXo} offset:{1024*i}')
    e('s_waitcnt lgkmcnt(0)')
e(f's_cmp_eq_u32 s{sHw}, 0\ns_cbranch_scc1 L_x0')
xch(T0, T1)
e('s_branch L_x1\nL_x0:')
xch(T1, T0)
e('L_x1:')
for i in range(8): e(f'v_pk_add_f32 {vr(T0+2*i,2)}, {vr(T0+2*i,2)}, {vr(T1+2*i,2)}')
for i in range(8): e(f'v_cvt_pk_bf16_f32 v{T1+i}, v{T0+2*i}, v{T0+2*i+1}')
e(f"""buffer_store_dwordx4 {vr(T1,4)}, v{vL16}, {sr(SRD_WS)}, s{sA} offen sc1
buffer_store_dwordx4 {vr(T1+4,4)}, v{vL16}, {sr(SRD_WS)}, s{sA} offen offset:1024 sc1
v_subrev_u32 v{a0}, 16, v{V_GRP}""")
if OM:
    e(f'''v_mov_b64 {vr(T0,2)}, -1
    v_mov_b64 {vr(T0+2,2)}, -1
    s_mul_i32 s{sA}, s{S_C}, {8*KS}
    s_add_u32 s{sA}, s{sA}, s{sOl}
    s_add_u32 s{sSk}, s{sA}, {4*KS}
    buffer_store_dwordx4 {vr(T0,4)}, v{vOl}, {sr(SRD_WS)}, s{sA} offen sc1
    buffer_store_dwordx4 {vr(T0,4)}, v{vOl}, {sr(SRD_WS)}, s{sSk} offen sc1''')
sync(7)
if OPT['only'] != 1: lwait(7, addr=a0)
e('s_waitcnt vmcnt(0)')
publish(sB, a0)
stamp(6)
if OPT['abl'] == 33: e('s_endpgm')
e(f"""s_mul_i32 s{sA}, s{S_W}, {16*896}
s_lshl_b32 s{sB}, s{S_C}, 7
s_add_u32 s{sA}, s{sA}, s{sB}
s_lshl_b32 s{sB}, s{S_W}, 11
s_add_u32 s{sB}, s{sB}, {L_WO}""")
for ch in range(7):
    e(f"""s_add_u32 m0, s{sB}, {8192*ch}
    s_add_u32 s{sSk}, s{sA}, {64*896*ch}
    buffer_load_dwordx4 v{vWoD}, {sr(SRD_B)}, s{sSk} offen lds
    buffer_load_dwordx4 v{vWoD+1}, {sr(SRD_B)}, s{sSk} offen offset:1024 lds
    s_waitcnt vmcnt({OPT['wodepth'] if ch < 6 else 0})""")
WF, OF, OC = 8, 168, 224
arrive(8)
e(f"""buffer_load_dword v{a0}, v{vFy}, {sr(SRD_WS)}, 0 offen sc1
s_mul_i32 s{sA}, s{sCh0}, {YS}
s_lshl_b32 s{sSk}, s{S_J}, 7
s_add_u32 s{sA}, s{sA}, s{sSk}
s_add_u32 s{sA}, s{sA}, {WS_Y}
s_add_u32 s{sSk}, s{sA}, {8*YS}""")
lwait(8)
stamp(7)
if OPT['abl'] == 34: e('s_endpgm')
def wo_reads(k):
    r = []
    for t in range(4):
        for hf in range(2):
            r.append(f'ds_read_b64_tr_b16 {vr(WF + 16*(k%10) + 4*t + 2*hf, 2)}, v{vWoR + (t>>1)} offset:{4096*k + 512*hf + 8*(t&1)}')
    return r
for k in range(10): e('\n'.join(wo_reads(k)))
arrive(9)
poll(vFy, first_issued=True, sleep=OPT['ysleep'], reg=a0)
stamp(8)
if OPT['abl'] == 35: e('s_endpgm')
e(f"""buffer_load_dwordx4 {vr(OF,4)}, v{vYl}, {sr(SRD_WS)}, s{sA} offen sc1
buffer_load_dwordx4 {vr(OF+4,4)}, v{vYl}, {sr(SRD_WS)}, s{sSk} offen sc1
s_lshr_b32 s{sA}, s{S_J}, 4
s_lshl_b32 s{sA}, s{sA}, 10
s_and_b32 s{sB}, s{S_J}, 3
s_lshl_b32 s{sB}, s{sB}, 8
s_add_u32 s{sA}, s{sA}, s{sB}
s_and_b32 s{sB}, s{S_J}, 8
s_lshl1_add_u32 s{sA}, s{sB}, s{sA}
s_and_b32 s{sB}, s{S_J}, 4
s_add_u32 s{sA}, s{sA}, s{sB}
s_mul_i32 s{sA}, s{sA}, 1792
s_lshl1_add_u32 s{sA}, s{sCh0}, s{sA}
s_add_u32 s{sB}, s{sA}, {128*1792}
v_xor_b32 v{a0}, 64, v{vBw}""")
lwait(9)
e(f"""s_waitcnt vmcnt(0)
ds_write_b128 v{vXo}, {vr(OF,4)}
ds_write_b128 v{vXo}, {vr(OF+4,4)} offset:1024""")
for z in range(2):
    for hf in range(2):
        e(f'ds_read_b64_tr_b16 {vr(OF + 8 + 4*z + 2*hf, 2)}, v{vTr} offset:{64*z + 512*hf}')
e(f"""s_waitcnt lgkmcnt(0)
buffer_store_dwordx4 {vr(OF+8,4)}, v{vYs}, {sr(SRD_C)}, s{sA} offen {OUTM}
buffer_store_dwordx4 {vr(OF+12,4)}, v{vYs}, {sr(SRD_C)}, s{sB} offen {OUTM}""")
if OPT['only'] == 1:
    stamp(9); stamp(13); prof_out(); e('s_endpgm')
if OM: poll(vFo, sleep=8)
sOk, sLast = 4, 18
for k in range(14): e(f's_add_u32 s{sOk+k}, s{sOl}, {4*KS*k}')
if OM: e(f's_min_u32 s{S_BOUND}, s{S_BOUND}, 0x4000\ns_mov_b32 s{sLast}, -1')
stamp(9)
e('s_barrier')
stamp(10)
if OPT['osleep']: e(f"s_sleep {OPT['osleep']}")
if not OM: poll(vFo)
stamp(11)
def o_load(k): return f'buffer_load_dwordx4 {vr(OF+4*k,4)}, v{vOl}, {sr(SRD_WS)}, s{sOk+k} offen sc1'
def o_chk(k):
    o = OF + 4*k
    return [f's_waitcnt vmcnt({13-k})', f'v_max3_u32 v6, v{o}, v{o+1}, v{o+2}', f'v_max_u32 v6, v6, v{o+3}', 'v_cmp_eq_u32 vcc, -1, v6']
for k in range(14): e(o_load(k))
if OM: e('\n'.join(o_chk(0)))
for k in range(14):
    o = OF + 4*k
    m = [f'v_mfma_f32_16x16x32_bf16 {vr(OC+4*t,4)}, {vr(WF + 16*(k%10) + 4*t, 4)}, {vr(o,4)}, {"0" if k == 0 else vr(OC+4*t,4)}' for t in range(4)]
    rd = wo_reads(k + 9) if 1 <= k <= 4 else []
    if k == 10: e('s_waitcnt lgkmcnt(0)')
    if OM:
        e(f's_cbranch_vccnz L_or{k}\nL_og{k}:')
        c = o_chk(k + 1) if k < 13 else ['', '', '', '']
        e('\n'.join([m[0]] + rd[:4] + [m[1]] + rd[4:] + [m[2], c[0], c[1], c[2], m[3], c[3]]))
    else:
        e(f's_waitcnt vmcnt({13-k})'); e('\n'.join(m + rd))
stamp(12)
e('s_nop 4')
for i in range(8): e(f'v_cvt_pk_bf16_f32 v{16+i}, v{OC+2*i}, v{OC+2*i+1}')
e(f"""ds_write_b128 v{vBw}, {vr(16,4)}
ds_write_b128 v{a0}, {vr(20,4)}
ds_read_b128 {vr(24,4)}, v{vBr}
ds_read_b128 {vr(28,4)}, v{vBr} offset:1024
s_or_b32 s{sA}, s2, s{S_W}
s_waitcnt lgkmcnt(1)
buffer_store_dwordx4 {vr(24,4)}, v{vOut}, {sr(SRD_C)}, s{sOut} offen {OUTM2}
s_waitcnt lgkmcnt(0)
buffer_store_dwordx4 {vr(28,4)}, v{vOut}, {sr(SRD_C)}, s{sOut+1} offen {OUTM2}
s_cbranch_scc1 L_noepoch""")
publish(sA, 6)
e('L_noepoch:')
if OPT['prof']:
    e('s_waitcnt vmcnt(0)')
stamp(13)
prof_out()
e('L_end:\ns_endpgm')
if OM:
    for k in range(14):
        c = o_chk(k)
        e(f'''L_or{k}:
        s_call_b64 s[90:91], L_re{k}
        {c[0]}
        L_oc{k}:
        {c[1]}
        {c[2]}
        {c[3]}
        s_cbranch_vccz L_og{k}
        {o_load(k)}
        s_sub_u32 s{S_BOUND}, s{S_BOUND}, 1
        s_waitcnt vmcnt(0)
        s_cbranch_scc0 L_oc{k}
        s_mov_b32 s{S_BOUND}, 0
        s_branch L_og{k}''')
    for k in range(14): e(f'L_re{k}:\n{o_load(k)}')
    e('s_setpc_b64 s[90:91]')
def ilen(l):
    l = l.split(';')[0].strip()
    if not l or l.endswith(':'): return 0
    op = l.split()[0]
    if op.startswith(('buffer_', 'global_', 'ds_', 'v_mfma', 'v_smfmac', 'v_pk_', 's_load', 'v_cvt_pk', 'v_lshl_', 'v_perm', 'v_bfe', 'v_max3', 'v_align')): return 8
    return 8 if '0x' in l else 4
pads = []
if OPT['touch']:
    for n in ('ssm', 'mha'):
        new = []; acc = OPT['touch'] if n == 'mha' else 0; loop = None
        for l in SEC[n]:
            t = l.strip()
            if t in ('L_att:', 'L_cv:'):
                pads.append(len(pads)); new += [f'L_pad{pads[-1]}:', f'    s_cbranch_execz L_nxt{pads[-1]}']; acc = 0
            if t in ('L_att:', 'L_cv:', 'L_kg:'): loop = t[:-1]
            if acc >= OPT['touch'] and (loop is None or loop == 'L_kg' or acc >= 1200) and not t.endswith(':') and 'exec' not in ''.join(new[-3:]).replace('execz', ''):
                pads.append(len(pads)); new += [f'L_pad{pads[-1]}:', f'    s_cbranch_execz L_nxt{pads[-1]}']; acc = 0
            if loop and t in (f's_cbranch_scc1 {loop}', f's_branch {loop}'): loop = None
            if t == 'L_gemm_v:' or t == 'L_gemm_done:': acc = OPT['touch']
            new.append(l); acc += ilen(l)
        SEC[n] = new
sec('idle')
e('L_ssm_idle:')
arrive(1)
e(f's_lshl2_add_u32 s60, s61, s{S_W}\ns_mov_b64 exec, 0')
for i in range(min(16, len(pads))):
    e(f's_cmp_eq_u32 s60, {i}\ns_cbranch_scc1 L_pad{i}')
e('L_idle_end:\ns_endpgm')
txt_fix = {f'L_nxt{i}': (f'L_pad{i+16}' if i + 16 < len(pads) else 'L_idle_end') for i in pads}
for n in SEC:
    SEC[n] = [(l.rsplit(' ', 1)[0] + ' ' + txt_fix[l.rsplit(' ', 1)[1]]) if 'L_nxt' in l else l for l in SEC[n]]
print('pads', len(pads), file=sys.stderr)
ORDER = ['pro', 'ssm0', 'idle', 'mha0', 'ssm', 'mha', 'cold', 'gt', 'fb']
SEC.setdefault('cold', [])
hdr = open('header.txt').read()
txt = hdr + f'''; @launch grid=(256,1,1) block=(512,1,1) lds={L_TOT}
.amdgcn_target "amdgcn-amd-amdhsa--gfx950"
.text
.globl {KN}
.p2align 8
.type {KN},@function
{KN}:
''' + '\n'.join(sum((SEC[n] for n in ORDER), [])) + f'''
.section .rodata,"a"
.p2align 6
.amdhsa_kernel {KN}
  .amdhsa_next_free_vgpr 256
  .amdhsa_next_free_sgpr 102
  .amdhsa_accum_offset 256
  .amdhsa_group_segment_fixed_size 0
  .amdhsa_kernarg_size 104
  .amdhsa_user_sgpr_count 2
  .amdhsa_user_sgpr_kernarg_segment_ptr 1
  .amdhsa_system_sgpr_workgroup_id_x 1
.end_amdhsa_kernel
'''
open(sys.argv[1], 'w').write(txt)
```

```python
import sys, struct
def fl(x): return hex(struct.unpack('<I', struct.pack('<f', x))[0])

KN = 'concat_heads__ssm_conv_s4d__softmax_full_mha__prompt_kernel'
OPT = dict(tskip=1, ones=1, pa=1, pr=2, pf=2, wgf=2, ax=0, bp=1, qa=7, n0=4, ilv=8, tlb=1, ulook=1, kgp=3, pad=0, ypad=0, omode=3, ksleep=0, usleep=4, obar=5, osleep=0, pubk=8, abl=0, touch=0, gs=0, kgw=0, xg=5, gx=0, pm=2, ps=0, rt=0, upub=1, kgx=0, outsc=0, ysleep=8, wodepth=4, wq_mid=0, pollk=99, rd=-1, rdrole=0, only=0, safe=0, rot=0, prof=0, fs=128, force_fb=0, wq_early=7, prio=1)
for a in sys.argv[2:]:
    k, v = a.split('=')
    assert k in OPT, k
    OPT[k] = int(v, 0)

FS = OPT['fs']
FSH = FS.bit_length() - 1
F_KV = 0x1000
F_O = F_KV + 1024 * FS
F_U = F_O + 1024 * FS
F_Y = F_U + 1024 * FS
F_H = F_Y + 1024 * FS
WS_K = 0x100000
WS_V = 0x300000
WS_O = 0x500000
WS_U = 0x700000
WS_Y = 0x900000
QS = 16384 + OPT['pad']; KS = 2 * QS; YS = 4096 + OPT['ypad']
S_KS = 57
WS_PROF = 0xb00000
WS_SIZE = 0xc00000
L_SSM = 1024
L_W = 57344
L_RB = 65536
L_X = 114688
L_TOT = 163840
TROW = 288
TABSZ = 38 * TROW
L_TAB = L_SSM
L_UC = L_SSM
UC_S = 4160
UC_D = 4 * UC_S + 64
L_KP = L_UC + 2 * UC_D
L_KX = L_KP + 12288
L_KD = L_KX + 6144
assert L_TAB + 4 * TABSZ <= L_KX and L_KP % 16 == 0 and L_KD + 4096 <= L_W
L_WO = L_SSM

S_WV, S_W, S_HG, S_C, S_TILE, S_J, S_H, S_NONCE, S_O0, S_ROT = range(30, 40)
SRD_WS, SRD_A, SRD_B, SRD_C = 40, 44, 48, 52
S_BOUND = 56
S_T0 = 58

SEC = {}
out = None
def sec(n):
    global out
    out = SEC.setdefault(n, [])
sec('pro')
def e(s):
    for l in s.split('\n'):
        l = l.strip()
        if l:
            out.append(l if l.endswith(':') else '    ' + l)
_lab = [0]
def lab(p):
    _lab[0] += 1
    return f'L_{p}_{_lab[0]}'
def vr(a, n):
    return f'v[{a}:{a+n-1}]' if n > 1 else f'v{a}'
def srd(d, b, n):
    e(f's_mov_b64 s[{d}:{d+1}], s[{b}:{b+1}]\ns_mov_b32 s{d+2}, {n}\ns_mov_b32 s{d+3}, 0x20000')
def sr(d): return f's[{d}:{d+3}]'

V_LANE, V_T, V_OWN, V_GRP, V_PROF = 0, 1, 2, 3, 4

ROLE = [0]
def stamp(i):
    if OPT['rd'] == i and OPT['rdrole'] == ROLE[0]:
        e('s_memrealtime s[100:101]\ns_waitcnt lgkmcnt(0)')
    if OPT['prof'] > (i >= 14):
        e(f's_mem{"real" if OPT["rt"] else ""}time s[96:97]\ns_waitcnt lgkmcnt(0)\ns_sub_u32 s96, s96, s{98 if OPT["rt"] else S_T0}\nv_writelane_b32 v{V_PROF}, s96, {i}')
def prof_out():
    if OPT['rd'] >= 0 and OPT['rdrole'] == ROLE[0]:
        l = lab('pad')
        if ROLE[0] == 0 and not OPT['obar']: e('s_barrier')
        if OPT['rd'] == 98:
            e(f'''s_not_b32 s100, s100
            v_mov_b32 v5, s100
            v_mov_b32 v6, 0
            s_mov_b64 exec, 1
            global_atomic_umax v6, v5, s[26:27]
            s_waitcnt vmcnt(0)
            s_sleep 127
            s_sleep 127
            s_sleep 127
            s_sleep 127
            s_sleep 127
            global_load_dword v5, v6, s[26:27] sc1
            s_waitcnt vmcnt(0)
            v_readfirstlane_b32 s100, v5
            s_not_b32 s100, s100''')
        e(f'''s_add_u32 s100, s100, 6000
        {l}:
        s_sleep 1
        s_memrealtime s[96:97]
        s_waitcnt lgkmcnt(0)
        s_sub_u32 s96, s96, s100
        s_cmp_lt_i32 s96, 0
        s_cbranch_scc1 {l}''')
    if OPT['prof']:
        e(f'''s_memrealtime s[96:97]
        s_waitcnt lgkmcnt(0)
        v_writelane_b32 v{V_PROF}, s96, 31
        v_writelane_b32 v{V_PROF}, s98, 30
        s_lshl_b32 s96, s2, 3
        s_add_u32 s96, s96, s{S_WV}
        s_lshl_b32 s96, s96, 7
        s_add_u32 s96, s96, {WS_PROF}
        v_lshlrev_b32 v{V_T}, 2, v{V_LANE}
        s_mov_b32 exec_hi, 0
        buffer_store_dword v{V_PROF}, v{V_T}, {sr(SRD_WS)}, s96 offen
        s_mov_b64 exec, -1''')

def arrive(stage):
    e(f'v_mov_b32 v{V_T}, {stage}\nds_write_b32 v{V_OWN}, v{V_T}')
def lwait(stage, addr=V_GRP, sleep=0):
    l = lab('lw')
    e(f'{l}:')
    if sleep: e(f's_sleep {sleep}')
    e(f'''ds_read_b32 v{V_T}, v{addr}
    s_waitcnt lgkmcnt(0)
    v_cmp_gt_u32 vcc, {stage}, v{V_T}''')
    if OPT['safe']:
        d = lab('ld')
        e(f'''s_cbranch_vccz {d}
        s_sub_u32 s{S_BOUND}, s{S_BOUND}, 1
        s_cbranch_scc0 {l}
        s_mov_b32 s{S_BOUND}, 0
        {d}:''')
    else:
        e(f's_cbranch_vccnz {l}')
def sync(stage):
    arrive(stage); lwait(stage)
def poll(voff, first_issued=False, sleep=0, reg=V_T):
    l, d, m = lab('pl'), lab('pd'), lab('pm')
    if first_issued == 2:
        e(f's_waitcnt vmcnt(0)\nv_cmp_ne_u32 vcc, s{S_NONCE}, v{reg}\ns_cbranch_vccnz {l}\n{d}:')
        cur = [n for n in SEC if SEC[n] is out][0]
        sec('cold')
        e(f'''{l}:
        buffer_load_dword v{reg}, v{voff}, {sr(SRD_WS)}, 0 offen sc1
        s_waitcnt vmcnt(0)
        v_cmp_ne_u32 vcc, s{S_NONCE}, v{reg}
        s_cbranch_vccz {d}
        s_sub_u32 s{S_BOUND}, s{S_BOUND}, 1
        s_cbranch_scc0 {l}
        s_mov_b32 s{S_BOUND}, 0
        s_branch {d}''')
        sec(cur)
        return
    if first_issued: e(f's_branch {m}')
    e(f'{l}:')
    if sleep: e(f's_sleep {sleep}')
    e(f'''buffer_load_dword v{reg}, v{voff}, {sr(SRD_WS)}, 0 offen sc1
    {m}:
    s_waitcnt vmcnt(0)
    v_cmp_ne_u32 vcc, s{S_NONCE}, v{reg}
    s_cbranch_vccz {d}
    s_sub_u32 s{S_BOUND}, s{S_BOUND}, 1
    s_cbranch_scc0 {l}
    s_mov_b32 s{S_BOUND}, 0
    {d}:''')
def publish(soff, tmp):
    e(f'''v_mov_b32 v{V_T}, s{S_NONCE}
    v_mov_b32 v{tmp}, 0
    s_mov_b64 exec, 1
    buffer_store_dword v{V_T}, v{tmp}, {sr(SRD_WS)}, s{soff} offen sc1
    s_mov_b64 exec, -1''')
def swap23(d, s, t):
    e(f'''v_lshrrev_b32 v{t}, 1, v{s}
    v_xor_b32 v{t}, v{t}, v{s}
    v_and_b32 v{t}, 4, v{t}
    v_mul_u32_u24 v{t}, 3, v{t}
    v_xor_b32 v{d}, v{t}, v{s}''')
def rot_next(s):
    e(f's_add_u32 s{s}, s{s}, 1\ns_cmp_eq_u32 s{s}, 7\ns_cselect_b32 s{s}, 0, s{s}')

e(f'''s_cmp_ge_u32 s2, 256
s_cbranch_scc1 L_end''')
if OPT['prof']:
    e(f's_memtime s[{S_T0}:{S_T0+1}]\ns_memrealtime s[98:99]\nv_mov_b32 v{V_PROF}, 0')
if OPT['rd'] >= 0: e('s_memrealtime s[100:101]')
e(f'''s_load_dwordx16 s[4:19], s[0:1], 0
s_load_dwordx8 s[20:27], s[0:1], 64
s_load_dwordx2 s[28:29], s[0:1], 96
v_lshrrev_b32 v{V_OWN}, 6, v0
v_and_b32 v{V_LANE}, 63, v0
v_readfirstlane_b32 s{S_WV}, v{V_OWN}
v_lshlrev_b32 v{V_OWN}, 2, v{V_OWN}
v_mov_b32 v{V_T}, 0
ds_write2_b32 v{V_OWN}, v{V_T}, v{V_T} offset1:8
v_and_b32 v{V_GRP}, 3, v{V_LANE}
v_lshlrev_b32 v{V_GRP}, 2, v{V_GRP}
s_and_b32 s{S_HG}, s2, 1
s_bfe_u32 s60, s2, 0x20001
s_bfe_u32 s{S_C}, s2, 0x30003
s_lshr_b32 s61, s2, 6
s_lshl2_add_u32 s{S_TILE}, s60, s61
s_lshl1_add_u32 s{S_J}, s{S_TILE}, s{S_HG}
s_lshl3_add_u32 s{S_H}, s{S_HG}, s{S_C}
s_and_b32 s{S_W}, s{S_WV}, 3
s_mov_b32 s{S_BOUND}, 0x40000
s_mov_b32 s{S_KS}, {KS}
s_cmp_lt_u32 s{S_WV}, 4
s_cbranch_scc1 L_mha''')

VX = 144; VACC = 96; VWF = 32; VPK = 128
VV, VK, VS, VO, VQ = 32, 64, 96, 160, 224
vWd = [5, 6]; vXd = [7, 8, 9, 10]; vXr = [11, 12, 13, 14]; vWb, vW0, vW1 = 15, 16, 17
vRho, vG, vSt, vQd, vQr, vFl, vA, vB, vC = 18, 19, 20, 21, 22, 23, 24, 25, 26
vKo0, vKo1, vVo, vIdx = 27, 28, 29, 30
sXb, sWb, sCh, sCw, sLx, sTmp, sTmp2, sSt, sS1, sS2, sFl = range(60, 71)
sK, sV, sIt = 71, 72, 73
sFo, sO0, sO1 = 84, 85, 86
vOs, vQw = vRho, vG
vRb = [7, 8, 9]; vQx = [11, 12, 13]; vRr = 10
sMask = 74
sOdd = 76

sec('mha0')
e('L_mha:')
if OPT['prio']: e(f"s_setprio {OPT['pm']}")
e(f'''s_mul_i32 s{S_O0}, s{S_H}, 7
s_lshr_b32 s{S_O0}, s{S_O0}, 1''')
if OPT['rot']:
    e(f'''s_lshl1_add_u32 s{S_ROT}, s61, s{S_C}
    s_cmp_ge_u32 s{S_ROT}, 7
    s_cselect_b32 s{sTmp}, 7, 0
    s_sub_u32 s{S_ROT}, s{S_ROT}, s{sTmp}''')
else:
    e(f's_mov_b32 s{S_ROT}, 0')
e(f'''v_lshrrev_b32 v{vA}, 3, v{V_LANE}          ; r
v_and_b32 v{vB}, 7, v{V_LANE}                    ; p
v_lshlrev_b32 v{vC}, 1, v{vA}
v_and_b32 v{vC}, 4, v{vC}
v_xor_b32 v{vC}, v{vC}, v{vB}
v_lshlrev_b32 v{vC}, 4, v{vC}
v_mul_u32_u24 v{vWd[0]}, 2688, v{vA}
v_add_u32 v{vWd[0]}, v{vWd[0]}, v{vC}
v_add_u32 v{vWd[1]}, {8*2688-1024}, v{vWd[0]}
v_lshrrev_b32 v{vC}, 1, v{vA}
v_xor_b32 v{vC}, v{vC}, v{vB}
v_lshlrev_b32 v{vC}, 4, v{vC}
v_mul_u32_u24 v{vA}, 896, v{vA}
v_add_u32 v{vXd[0]}, v{vA}, v{vC}
v_xor_b32 v{vC}, 64, v{vC}
v_add_u32 v{vXd[1]}, v{vA}, v{vC}
v_add_u32 v{vXd[1]}, {7168-1024}, v{vXd[1]}
v_add_u32 v{vXd[2]}, {2*(7168-1024)}, v{vXd[0]}
v_add_u32 v{vXd[3]}, {2*(7168-1024)}, v{vXd[1]}
s_lshl2_add_u32 s{sXb}, s{S_TILE}, s{S_W}
s_lshl_b32 s{sFl}, s{S_H}, 6
s_add_u32 s{sFl}, s{sFl}, s{S_TILE if OPT['wgf'] else sXb}
s_lshl_b32 s{sFl}, s{sFl}, {FSH}
s_add_u32 s{sFl}, s{sFl}, {F_KV}
s_mul_i32 s{sXb}, s{sXb}, {32*896}
s_mul_i32 s{sTmp2}, s{S_HG}, 3
s_lshr_b32 s{sTmp}, s2, 6
s_add_u32 s{sTmp2}, s{sTmp2}, s{sTmp}
s_mul_i32 s{sWb}, s{S_HG}, 7
s_add_u32 s{sWb}, s{sWb}, s{S_C}
s_add_u32 s{sWb}, s{sWb}, 7
s_cmp_eq_u32 s{S_C}, 7
s_cselect_b32 s{sWb}, s{sTmp2}, s{sWb}
s_lshl_b32 s{sWb}, s{sWb}, 7
s_mul_i32 s{sTmp}, s{S_W}, {16*2688}
s_add_u32 s{sWb}, s{sWb}, s{sTmp}
s_mul_i32 s{sLx}, s{S_W}, 12288
s_add_u32 s{sLx}, s{sLx}, {L_X}
s_lshl_b32 s{sS1}, s{S_W}, 11
s_add_u32 s{sS1}, s{sS1}, {L_W}
s_mov_b32 s{sCh}, s{S_ROT}
s_waitcnt lgkmcnt(0)''')
e(f's_load_dword s{S_NONCE}, s[28:29], 0')
srd(SRD_B, 20, 448 * 1344 * 2)
srd(SRD_A, 18, 2048 * 896)
e(f'''s_lshl_b32 s4, s{sCh}, 7
s_add_u32 s4, s4, s{sXb}
s_mul_i32 s88, s{sCh}, {64*2688}
s_add_u32 s11, s88, s{sWb}''')
rot_next(sCh)
stamp(22)
e('s_barrier')
stamp(23)
if OPT['only'] == 1: e('s_endpgm')
def rot_lines(s):
    return [f's_add_u32 s{s}, s{s}, 1', f's_cmp_eq_u32 s{s}, 7', f's_cselect_b32 s{s}, 0, s{s}']
sXo, sWo, sQo = 4, 11, 88
def offs(st):
    return [f's_lshl_b32 s{sXo+st}, s{sCh}, 7', f's_add_u32 s{sXo+st}, s{sXo+st}, s{sXb}', f's_mul_i32 s{sQo+st}, s{sCh}, {64*2688}',
            f's_add_u32 s{sWo+st}, s{sQo+st}, s{sWb}'] + (rot_lines(sCh) if st < 6 else [])
def w_lines(st):
    return [f's_add_u32 m0, s{sS1}, {8192*st}', 's_nop 0'] + \
           [f'buffer_load_dwordx4 v{vWd[i]}, {sr(SRD_B)}, s{sWo+st} offen offset:{1024*i} lds' for i in range(2)]
def x_chunk(st):
    return [f's_add_u32 m0, s{sLx}, {(st%3)*4096}', 's_nop 0'] + \
           [f'buffer_load_dwordx4 v{vXd[i]}, {sr(SRD_A)}, s{sXo+st} offen offset:{1024*i} lds' for i in range(4)]
DM = []
for l in [x_chunk(0), w_lines(0)] + [w_lines(i) for i in range(1, 7)] + [x_chunk(1), x_chunk(2)]:
    DM += [l[:3]] + [[x] for x in l[3:]]
for g in DM[:OPT['n0']]: e('\n'.join(g))
DM = DM[OPT['n0']:]
stamp(24)
e('s_branch L_mha1')
sec('mha')
e('L_mha1:')
stamp(25)
for st in range(1, 7): e('\n'.join(offs(st)))
sec('tmp')
srd(SRD_WS, 28, WS_SIZE)
ONES = f'''s_bitcmp1_b32 s{S_H}, 0
s_cselect_b32 s{sTmp}, 0, 7
v_cmp_eq_u32 vcc, s{sTmp}, v{vA}
s_lshl_b32 s{sTmp}, s{S_O0}, 1
s_sub_u32 s{sTmp}, s{S_HG}, s{sTmp}
s_add_u32 s{sTmp}, s{sTmp}, 112
v_mov_b32 v{vB}, s{sTmp}
v_cndmask_b32 v{vA}, v{vA}, v{vB}, vcc
''' if OPT['ones'] else ''
FIX = f'''v_cmp_lt_u32 vcc, 7, v{vB}
s_lshl3_add_u32 s{sTmp}, s{S_HG}, 7
v_mov_b32 v{vB}, s{sTmp}
v_cndmask_b32 v{vC}, v{vC}, v{vB}, vcc
''' if OPT['ones'] else ''
e(f'''v_and_b32 v{vA}, 31, v{V_LANE}
v_lshrrev_b32 v{vG}, 5, v{V_LANE}''')
swap23(vRho, vA, vB)
e(f'''v_bfe_u32 v{vB}, v{vRho}, 1, 3
v_xor_b32 v{vB}, v{vB}, v{vG}
v_lshlrev_b32 v{vB}, 4, v{vB}
v_lshl_add_u32 v{vB}, v{vRho}, 7, v{vB}
v_add_u32 v{vXr[0]}, s{sLx}, v{vB}
v_xor_b32 v{vXr[1]}, 32, v{vXr[0]}
v_xor_b32 v{vXr[2]}, 64, v{vXr[0]}
v_xor_b32 v{vXr[3]}, 0x60, v{vXr[0]}
v_and_b32 v{vB}, 3, v{V_LANE}                     ; cc
v_lshrrev_b32 v{vC}, 1, v{vB}
v_and_b32 v{vQd}, 1, v{vB}
v_lshl_or_b32 v{vC}, v{vQd}, 1, v{vC}
v_bfe_u32 v{vQd}, v{V_LANE}, 4, 1
v_lshl_or_b32 v{vB}, v{vQd}, 2, v{vB}
v_lshl_or_b32 v{vC}, v{vQd}, 2, v{vC}
v_bfe_u32 v{vQd}, v{V_LANE}, 2, 2                  ; r'
v_lshl_or_b32 v{vFl}, v{vG}, 3, v{vQd}             ; 8g + r'
v_lshlrev_b32 v{vQr}, 6, v{vFl}
v_lshl_add_u32 v{vQr}, v{vC}, 3, v{vQr}
v_add_u32 v{vQr}, {L_X + 4096}, v{vQr}
s_cmp_eq_u32 s{S_HG}, 0
s_cselect_b64 vcc, -1, 0
v_cndmask_b32 v{vB}, v{vB}, v{vC}, vcc             ; K slabs use the exchanged order, V slabs the natural one
v_lshlrev_b32 v{vWb}, 7, v{vFl}
v_lshl_add_u32 v{vWb}, v{vB}, 3, v{vWb}
v_lshrrev_b32 v{vQd}, 1, v{vQd}
v_lshl_add_u32 v{vWb}, v{vQd}, 6, v{vWb}
v_add_u32 v{vW0}, {L_W}, v{vWb}
v_lshlrev_b32 v{vB}, 4, v{vRho}
v_mad_u32_u24 v{vB}, v{vG}, s{S_KS}, v{vB}
v_lshrrev_b32 v{vC}, 2, v{vA}
v_mul_u32_u24 v{vC}, {QS}, v{vC}
v_lshl_add_u32 v{vC}, v{vG}, 6, v{vC}
v_and_b32 v{vQd}, 3, v{vA}
v_lshl_add_u32 v{vC}, v{vQd}, 4, v{vC}
v_cndmask_b32 v{vSt}, v{vC}, v{vB}, vcc
s_lshl2_add_u32 s{sTmp}, s{S_TILE}, s{S_W}
s_lshl_b32 s{sTmp2}, s{sTmp}, 9
s_add_u32 s{sTmp2}, s{sTmp2}, {WS_K}
s_lshl_b32 s{sTmp}, s{sTmp}, 8
s_add_u32 s{sTmp}, s{sTmp}, {WS_V}
s_movk_i32 s{sS2}, 128
s_cmp_eq_u32 s{S_HG}, 0
s_cselect_b32 s{sSt}, s{sTmp2}, s{sTmp}
s_cselect_b32 s{sS2}, {2*KS}, s{sS2}
s_mul_i32 s{sTmp}, s{S_C}, {8*KS}
s_add_u32 s{sSt}, s{sSt}, s{sTmp}
v_lshrrev_b32 v{vB}, 2, v{V_LANE}
v_mul_u32_u24 v{vB}, 2688, v{vB}
v_lshl_add_u32 v{vQd}, v{vQd}, 4, v{vB}
s_lshl_b32 s82, s{S_O0}, 4
s_mul_i32 s{sTmp}, s{S_W}, {16*2688}
s_add_u32 s82, s82, s{sTmp}
s_lshr_b32 s{sTmp}, s{S_O0}, 3
s_add_u32 s{sTmp2}, s{S_O0}, 3
s_lshr_b32 s{sTmp2}, s{sTmp2}, 3
s_cmp_eq_u32 s{S_H}, 15
s_cselect_b32 s{sTmp2}, 7, s{sTmp2}
s_sub_u32 s{sTmp2}, s{sTmp2}, s{sTmp}
v_bfe_u32 v{vC}, v{V_LANE}, 4, 1
v_mul_u32_u24 v{vC}, s{sTmp2}, v{vC}
v_lshl_add_u32 v{vC}, v{vG}, 3, v{vC}
v_add_u32 v{vC}, s{sTmp}, v{vC}
v_and_b32 v{vB}, 15, v{V_LANE}
{FIX}v_and_b32 v{vB}, {3 if OPT['wgf'] else 15}, v{V_LANE}
v_lshl_add_u32 v{vC}, v{vC}, 6, v{vB}
s_lshl_b32 s{sTmp}, s{S_W}, {2 if OPT['wgf'] else 4}
v_add_u32 v{vC}, s{sTmp}, v{vC}
v_lshlrev_b32 v{vC}, {FSH}, v{vC}
v_add_u32 v{vFl}, {F_KV}, v{vC}
v_lshlrev_b32 v{vKo0}, 4, v{vA}
v_mad_u32_u24 v{vKo0}, v{vG}, s{S_KS}, v{vKo0}
v_add_u32 v{vKo1}, {2*KS}, v{vKo0}
v_lshrrev_b32 v{vA}, 2, v{vRho}
{ONES}v_mul_u32_u24 v{vA}, {QS}, v{vA}
v_lshl_add_u32 v{vA}, v{vG}, 6, v{vA}
v_and_b32 v{vB}, 3, v{V_LANE}
v_lshl_add_u32 v{vVo}, v{vB}, 4, v{vA}
v_mov_b32 v{vIdx}, 0xdddddddd
s_mul_i32 s{sTmp}, s{S_O0}, {KS}
s_lshl_b32 s{sK}, s{S_W}, 13
s_add_u32 s{sK}, s{sK}, s{sTmp}
s_add_u32 s{sK}, s{sK}, {WS_K}
s_lshl_b32 s{sV}, s{S_W}, 12
s_add_u32 s{sV}, s{sV}, s{sTmp}
s_add_u32 s{sV}, s{sV}, {WS_V}
s_lshl2_add_u32 s{sTmp2}, s{S_TILE}, s{S_W}
s_lshl_b32 s{sFo}, s{sTmp2}, 4
s_add_u32 s{sFo}, s{sFo}, s{S_H}
s_lshl_b32 s{sFo}, s{sFo}, {FSH}
s_add_u32 s{sFo}, s{sFo}, {F_O}
s_lshl_b32 s{sTmp2}, s{sTmp2}, 9
s_add_u32 s{sO0}, s{sTmp}, s{sTmp2}
s_add_u32 s{sO0}, s{sO0}, {WS_O}
s_add_u32 s{sO1}, s{sO0}, {2*KS}
s_bitcmp1_b32 s{S_H}, 0
s_cselect_b64 s[{sOdd}:{sOdd+1}], -1, 0
s_cselect_b32 s{sMask}, -16, 0x0fffffff
s_mov_b32 s{sMask+1}, s{sMask}
v_mov_b32 v{vC}, 0x3e8b97f6
v_cmp_gt_u32 vcc, 32, v{V_LANE}
s_and_b64 s[78:79], vcc, s[{sOdd}:{sOdd+1}]
s_nor_b64 s[80:81], vcc, s[{sOdd}:{sOdd+1}]
v_cndmask_b32 v{vA}, v{vC}, 0, s[78:79]
v_cndmask_b32 v{vB}, v{vC}, 0, s[80:81]
s_mov_b32 s78, 0x3f803f80
s_mov_b32 s79, s78
v_xor_b32 v{vW1}, 64, v{vW0}
v_lshlrev_b32 v{vOs}, 4, v{vRho}
v_mad_u32_u24 v{vOs}, v{vG}, s{S_KS}, v{vOs}
v_lshl_add_u32 v{vQw}, v{V_LANE}, 4, s{sLx}''')
srd(SRD_C, 28, WS_SIZE)
for st in range(7): e(f's_add_u32 s{sQo+st}, s{sQo+st}, s82')
def o_stores(r0, r1, tag):
    e(f'''s_bitcmp1_b32 s{S_H}, 0
    s_cbranch_scc1 L_ost_odd{tag}
    buffer_store_dwordx4 {vr(r0,4)}, v{vOs}, {sr(SRD_WS)}, s{sO0} offen sc1
    s_mov_b32 exec_hi, 0
    buffer_store_dwordx4 {vr(r1,4)}, v{vOs}, {sr(SRD_WS)}, s{sO1} offen sc1
    s_not_b64 exec, exec
    buffer_store_dwordx2 {vr(r1,2)}, v{vOs}, {sr(SRD_WS)}, s{sO1} offen sc1
    s_branch L_ost_done{tag}
    L_ost_odd{tag}:
    buffer_store_dwordx4 {vr(r1,4)}, v{vOs}, {sr(SRD_WS)}, s{sO1} offen sc1
    s_mov_b32 exec_hi, 0
    buffer_store_dwordx2 {vr(r0+2,2)}, v{vOs}, {sr(SRD_WS)}, s{sO0} offen offset:8 sc1
    s_not_b64 exec, exec
    buffer_store_dwordx4 {vr(r0,4)}, v{vOs}, {sr(SRD_WS)}, s{sO0} offen sc1
    L_ost_done{tag}:
    s_mov_b64 exec, -1''')
GS = 0
AB = [l for l in SEC.pop('tmp') if not l.strip().startswith(';')]
sec('mha')
def scc_pending(i):
    return i < len(AB) and AB[i].strip().startswith(('s_cselect', 's_mov_b32 s75'))
pos = 0
for g in DM:
    n = pos + OPT['ilv']
    while scc_pending(n): n += 1
    e('\n'.join(AB[pos:n])); pos = n
    e('\n'.join(g))
e('\n'.join(AB[pos:]))
stamp(0)
def x_reads(s):
    return [f'ds_read_b128 {vr(VX + 16*s + 4*ks, 4)}, v{vXr[ks]} offset:{(s%3)*4096}' for ks in range(4)]
e('s_waitcnt vmcnt(22)')
e('\n'.join(x_reads(0)))
e('s_waitcnt vmcnt(8) lgkmcnt(0)')
arrive(1)
stamp(1)
e('\n'.join(x_chunk(3)))
e('s_waitcnt vmcnt(8)')
e('\n'.join(x_reads(1)))
lwait(1)
e(f's_add_u32 s{S_NONCE}, s{S_NONCE}, 1')
stamp(2)
def w_reads(s):
    r = []
    for ks in range(4):
        for ct in range(2):
            for hf in range(2):
                d = VWF + 32 * (s & 1) + 8 * ks + 4 * ct + 2 * hf
                r.append(f'ds_read_b64_tr_b16 {vr(d,2)}, v{(vW0, vW1)[ct]} offset:{s*8192 + ks*2048 + hf*512}')
    return r
if OPT['tskip']: e(f's_cmp_eq_u32 s{S_C}, 7\ns_cbranch_scc1 L_gemm_t')
e('\n'.join(w_reads(0)))
e(f'''s_waitcnt lgkmcnt(0)
s_cmp_lg_u32 s{S_HG}, 0
s_cbranch_scc1 L_gemm_v''')
sQb, sQc = 82, 83
NE = OPT['wq_early']
def wq_dma(st):
    return [f's_add_u32 m0, s{sLx}, {4096 + 1024*st}', 's_nop 0', f'buffer_load_dwordx4 v{vQd}, {sr(SRD_B)}, s{sQo+st} offen lds']
SPIN = []
def gemm1(vpart):
    for s in range(7):
        M = []
        for ks in range(4):
            for ct in range(2):
                wf = vr(VWF + 32 * (s & 1) + 8 * ks + 4 * ct, 4); xf = vr(VX + 16 * s + 4 * ks, 4)
                acc = vr(VACC + 16 * ct, 16)
                a, b = (xf, wf) if vpart else (wf, xf)
                M.append(f'v_mfma_f32_32x32x16_bf16 {acc}, {a}, {b}, {"0" if s == 0 and ks == 0 else acc}')
        gaps = [[] for _ in range(8)]
        tag = f'{"v" if vpart else "k"}{s}'
        pre = []
        dm = []
        def add(l): dm.extend([(l[0], l[2])] + [(None, x) for x in l[3:]])
        if s <= 2: add(x_chunk(s + 4))
        if s == 3:
            for i in range(min(NE, 4)): add(wq_dma(i))
        if s == 4:
            for i in range(4, NE): add(wq_dma(i))
        n = {0: 8, 1: 8, 2: 8, 3: 4 + min(NE, 4), 4: NE}.get(s)
        for i, (m, l) in enumerate(dm):
            if m: (pre if i == 0 else gaps[i - 1]).append(m)
            gaps[i].append(l)
        if s < 6:
            wr = w_reads(s + 1)
            for i, (p, q) in enumerate(((0, 3), (3, 6), (6, 9), (9, 12), (12, 16))): gaps[i] += wr[p:q]
            if s <= 4: gaps[OPT['xg']] += [f's_waitcnt vmcnt({n})'] + x_reads(s + 2)
            gaps[7] += [f's_waitcnt lgkmcnt({4 if s == 4 else 0})']
        if s == 5 and NE == 7:
            gaps[7] += [f'v_add_u32 v31, 16, v{V_GRP}', f'ds_read_b32 v31, v31']
        if s == 6 and NE == 7:
            gaps[OPT['qa']] += ['s_waitcnt vmcnt(0)', f'v_mov_b32 v{V_T}, 7', f'ds_write_b32 v{V_OWN}, v{V_T}']
        e('\n'.join(pre))
        if OPT['gx'] & 1 or vpart == 2: M = ['s_nop 0'] * 8
        if OPT['gx'] & 2 or vpart == 2: gaps = [[x for x in g if 'tr_b16' not in x] for g in gaps]
        for i in range(8):
            e(M[i]); e('\n'.join(gaps[i]))
        stamp(14 + s)
if OPT['tskip']:
    sec('gt'); e('L_gemm_t:'); gemm1(2); e('s_branch L_gemm_done'); sec('mha')
else: SEC['gt'] = []
gemm1(False)
e('s_branch L_gemm_done\nL_gemm_v:')
gemm1(True)
e('L_gemm_done:')
stamp(3)
e(f"""s_add_u32 s{sS1}, s{sSt}, s{sS2}
s_add_u32 s{sXb}, s{sSt}, {4*KS}
s_add_u32 s{sCw}, s{sS1}, {4*KS}
s_cmp_eq_u32 s{S_C}, 7
s_waitcnt lgkmcnt(0)
s_cbranch_scc1 L_nokv
s_nop 4""")
for q, so in enumerate((sSt, sS1, sXb, sCw)):
    for i in range(4*q, 4*q+4):
        e(f'v_cvt_pk_bf16_f32 v{VPK + i}, v{VACC + 2*i}, v{VACC + 2*i + 1}')
    e(f'buffer_store_dwordx4 {vr(VPK+4*q,4)}, v{vSt}, {sr(SRD_WS)}, s{so} offen sc1')
if OPT['ones']:
    e(f'''s_branch L_kvst
    L_nokv:
    v_mov_b64 v[128:129], s[78:79]
    v_mov_b64 v[130:131], s[78:79]
    v_lshlrev_b32 v132, 4, v{V_LANE}
    s_lshl2_add_u32 s{sTmp}, s{S_TILE}, s{S_W}
    s_lshl_b32 s{sTmp}, s{sTmp}, 8
    s_mul_i32 s{sTmp2}, s{S_HG}, {QS}
    s_add_u32 s{sTmp}, s{sTmp}, s{sTmp2}
    s_add_u32 s{sTmp}, s{sTmp}, {WS_V + 112*QS}
    s_mov_b64 exec, 0xffff
    buffer_store_dwordx4 v[128:131], v132, {sr(SRD_WS)}, s{sTmp} offen sc1
    s_mov_b64 exec, -1
    L_kvst:''')
else: e('L_nokv:')
if NE < 7:
    NM = max(NE, OPT['wq_mid'])
    for st in range(NE, NM): e('\n'.join(wq_dma(st)))
    stamp(4)
    e(f'v_add_u32 v31, 16, v{V_GRP}')
    lwait(1, addr=31)
    e(f's_waitcnt vmcnt({NM - NE})')
    publish(sFl, 31)
    stamp(5)
    for st in range(NM, 7): e('\n'.join(wq_dma(st)))
    e(f's_waitcnt vmcnt({1 if NM == 7 else 0})')
    arrive(7)
else:
    stamp(4)
    e(f'v_cmp_gt_u32 vcc, 1, v31\ns_cbranch_vccz L_eok\nv_add_u32 v31, 16, v{V_GRP}')
    lwait(1, addr=31)
    e('L_eok:')
lwait(7)
stamp(6)
fill = [f'v_mov_b64 {vr(VV+2*i,2)}, s[78:79]' for i in range(12 if OPT['ones'] else 0, 16)] + [f'v_subrev_u32 v{vRr}, {L_X - L_RB}, v{vQw}']
for s in range(3):
    fill += f'''s_add_u32 s{sTmp}, s{S_W}, {1+s}
    s_and_b32 s{sTmp}, s{sTmp}, 3
    s_sub_u32 s{sTmp}, s{sTmp}, s{S_W}
    s_mul_i32 s{sTmp}, s{sTmp}, 12288
    v_add_u32 v{vQx[s]}, s{sTmp}, v{vQw}
    v_subrev_u32 v{vRb[s]}, {L_X - L_RB - 4096*s}, v{vQx[s]}'''.split('\n')
def q_reads(k):
    s, ks = divmod(k, 4)
    return [f'ds_read_b64_tr_b16 {vr(64 + 4*(k%8) + 2*hf, 2)}, v{vQr} offset:{ks*12288 + s*1024 + hf*256}' for hf in range(2)]
for k in range(6): e('\n'.join(q_reads(k)))
e('\n'.join(fill[:12])); fill = fill[12:]
zi = 0
for k in range(28):
    PK = OPT['pubk']
    extra = 1 if OPT['wgf'] and PK < k <= PK + 5 else 0
    e(f's_waitcnt lgkmcnt({min(10, 2*(27-k)) + extra})')
    e(f'v_mfma_f32_32x32x16_bf16 {vr(VACC,16)}, {vr(64 + 4*(k%8), 4)}, {vr(VX + 4*k, 4)}, {"0" if k == 0 else vr(VACC,16)}')
    if k + 6 < 28: e('\n'.join(q_reads(k + 6)))
    while zi < 40 and VX + 2*zi + 1 < VX + 4*k - 4 and zi < 2*k:
        e(f'v_mov_b64 {vr(VX + 2*zi, 2)}, 0'); zi += 1
    if k >= 22 or k < 2:
        e('\n'.join(fill[:4])); fill = fill[4:]
    if NE == 7 and k == PK and not OPT['wgf']:
        e('s_waitcnt vmcnt(0)'); publish(sFl, 31); stamp(5)
    if k == PK and OPT['wgf']:
        e(f'''v_mov_b32 v{V_T}, 1
        v_mov_b32 v31, 0
        s_waitcnt vmcnt(0)
        s_mov_b64 exec, 1
        ds_add_rtn_u32 v{vSt}, v31, v{V_T} offset:32
        s_mov_b64 exec, -1''')
    if k == PK + OPT['wgf'] and OPT['wgf']:
        e(f's_waitcnt lgkmcnt({2*OPT["wgf"]})\nv_readfirstlane_b32 s{sTmp2}, v{vSt}\ns_cmp_lg_u32 s{sTmp2}, 3\ns_cbranch_scc1 L_nopub')
        publish(sFl, 31)
        e('L_nopub:'); stamp(5)
    if k == OPT['pollk']: e(f'buffer_load_dword v31, v{vFl}, {sr(SRD_WS)}, 0 offen sc1')
assert zi == 40 and VX == VS + 48 and not fill
stamp(7)
def kv_loads(buf, i, srdn=SRD_C):
    return [f'buffer_load_dwordx4 {vr(VK + 8*buf, 4)}, v{vKo0}, {sr(srdn)}, s{sK} offen offset:{512*i} sc1',
            f'buffer_load_dwordx4 {vr(VK + 8*buf + 4, 4)}, v{vKo1}, {sr(srdn)}, s{sK} offen offset:{512*i} sc1',
            f's_mov_b64 exec, s[{sMask}:{sMask+1}]',
            f'buffer_load_dwordx4 {vr(VV + 8*buf, 4)}, v{vVo}, {sr(srdn)}, s{sV} offen offset:{256*i} sc1',
            f'buffer_load_dwordx4 {vr(VV + 8*buf + 4, 4)}, v{vVo}, {sr(srdn)}, s{sV} offen offset:{256*i + 128} sc1',
            's_mov_b64 exec, -1']
_kvl = kv_loads
if OPT['ones']:
    assert OPT['wgf']
    def kv_loads(*a): return [x for x in _kvl(*a) if 'exec' not in x]
e('s_nop 11')
for r in range(16):
    m = vA if r < 4 else (vB if r >= 12 else vC)
    e(f'v_mul_f32 v{VACC + r}, v{m}, v{VACC + r}')
for i in range(8):
    e(f'v_cvt_pk_bf16_f32 v{VQ + 24 + i}, v{VACC + 2*i}, v{VACC + 2*i + 1}')
e(f"""ds_write_b128 v{vQw}, {vr(VQ+24,4)}
ds_write_b128 v{vQw}, {vr(VQ+28,4)} offset:1024""")
arrive(8)
lwait(8)
for s in range(3):
    e(f'ds_read_b128 {vr(VQ+8*s,4)}, v{vQx[s]}\nds_read_b128 {vr(VQ+8*s+4,4)}, v{vQx[s]} offset:1024')
PF = OPT['pf']
poll(vFl, first_issued=OPT['pollk'] < 28, reg=31, sleep=OPT['ksleep'])
stamp(8)
for t in range(PF): e('\n'.join(kv_loads(t, t)))
OM = OPT['omode']
if OM:
    e(f'''s_lshr_b32 s{sTmp}, s{S_O0}, 3
    s_add_u32 s{sTmp2}, s{S_O0}, 3
    s_lshr_b32 s{sTmp2}, s{sTmp2}, 3
    s_sub_u32 s{sTmp2}, s{sTmp2}, s{sTmp}
    s_lshl_b32 s{sTmp2}, s{sTmp2}, 6
    s_lshl_b32 s{sTmp}, s{sTmp}, 6
    s_lshl2_add_u32 s{sSt}, s{S_TILE}, s{S_W}
    s_add_u32 s{sTmp}, s{sTmp}, s{sSt}
    s_lshl_b32 s{sTmp}, s{sTmp}, {FSH}
    s_add_u32 s{sTmp}, s{sTmp}, {F_Y}
    v_and_b32 v{vFl}, 1, v{V_LANE}
    v_mul_u32_u24 v{vFl}, s{sTmp2}, v{vFl}
    v_and_b32 v31, 2, v{V_LANE}
    v_lshl_add_u32 v{vFl}, v31, 8, v{vFl}
    v_lshl_add_u32 v{vFl}, v{vFl}, {FSH}, s{sTmp}''')
def qk(buf, slot, js):
    d = vr(VS + 16*slot, 16)
    return f'v_mfma_f32_32x32x16_bf16 {d}, {vr(VK + 8*buf + 4*js, 4)}, {vr(VQ + 8*slot + 4*js, 4)}, {"0" if js == 0 else d}'
def pv(buf, slot, js):
    return f'v_smfmac_f32_32x32x32_bf16 {vr(VO + 16*slot, 16)}, {vr(VV + 8*buf + 4*js, 4)}, {vr(VS + 16*slot + 8*js, 8)}, v{vIdx}'
def exps(s): return [f'v_exp_f32 v{VS + 16*s + r}, v{VS + 16*s + r}' for r in range(16)]
SPREAD = []
def unit(t, s):
    ex = exps(s)
    if OPT['ax'] & 16 and s in (0, 1, 2):
        pass
    nb = t if s < 3 else (t + 1) & 3
    pb = t if s > 0 else (t - 1) & 3
    if s == 3: e(f's_waitcnt vmcnt({4*PF-4})')
    e(qk(nb, (s+1) & 3, 0)); e('\n'.join(ex[0:4]))
    e(qk(nb, (s+1) & 3, 1)); e('\n'.join(ex[4:8]))
    e(pv(pb, (s-1) & 3, 0))
    if s == 1:
        kl = kv_loads((t + PF) & 3, t + PF)
        if OPT['ax'] & 1: kl = [x for x in kl if 'exec' not in x]
        if OPT['ax'] & 2: kl = [x for x in kl if 'buffer' not in x]
        if OPT['ax'] & 4: kl = [x.replace(' sc1', '') for x in kl]
        if OPT['ax'] & 8: SPREAD.extend(kl); kl = []
        e('\n'.join(kl))
        if t == 3 - PF:
            e(f's_cmp_eq_u32 s{sIt}, 3\ns_cselect_b32 s{SRD_C+2}, 0, s{SRD_C+2}')
        if t == 3:
            e(f's_add_u32 s{sK}, s{sK}, 2048\ns_add_u32 s{sV}, s{sV}, 1024\ns_add_u32 s{sIt}, s{sIt}, 1\ns_cmp_lg_u32 s{sIt}, 4')
    e('\n'.join(ex[8:12]))
    e(pv(pb, (s-1) & 3, 1)); e('\n'.join(ex[12:16]))
e(f's_mov_b32 s{sIt}, 0\ns_waitcnt vmcnt({4*PF - 4}) lgkmcnt(0)')
stamp(9)
e(qk(0, 0, 0)); e(qk(0, 0, 1))
e(f"s_setprio {OPT['pa']}\ns_nop 8\ns_branch L_att_in" if OPT['prio'] else 's_nop 9\ns_branch L_att_in')
e('L_att:')
unit(3, 2); unit(3, 3)
e('L_att_in:')
for t in range(4):
    for s in range(4):
        if (t, s) < (3, 2): unit(t, s)
e('s_cbranch_scc1 L_att')
if OPT['prio']: e(f"s_setprio {OPT['pm']}")
if OM: e(f'buffer_load_dword v31, v{vFl}, {sr(SRD_WS)}, 0 offen sc1')
def rbw(s): return [f'ds_write_b128 v{vRb[s]}, {vr(VO + 16*s + 4*i, 4)} offset:{1024*i}' for i in range(4)]
ex = exps(2); w0 = rbw(0)
e(qk(3, 3, 0)); e('\n'.join(ex[0:4])); e(qk(3, 3, 1)); e('\n'.join(ex[4:7] + [w0[0]]))
e(pv(3, 1, 0)); e('\n'.join(ex[7:10] + [w0[1]])); e(pv(3, 1, 1)); e('\n'.join(ex[10:13] + [w0[2]] + ex[13:16] + [w0[3]]))
ex = exps(3); w1 = rbw(1); w2 = rbw(2)
e(pv(3, 2, 0)); e('\n'.join(ex[0:3])); e(pv(3, 2, 1))
e('\n'.join([w1[0]] + ex[3:5] + [w1[1]] + ex[5:7] + [w1[2]] + ex[7:9] + [w1[3]] + ex[9:10]))
e(pv(3, 3, 0))
e('\n'.join([w2[0]] + ex[10:12] + [w2[1]] + ex[12:14] + [w2[2]] + ex[14:16] + [w2[3]]))
arrive(9)
e(pv(3, 3, 1))
stamp(10)
lwait(9)
for i in range(12): e(f'ds_read_b128 {vr(VS + 4*i, 4)}, v{vRr} offset:{1024*i}')
OA = VO + 48
for s in range(3):
    e(f's_waitcnt lgkmcnt({8 - 4*s})')
    for i in range(8): e(f'v_pk_add_f32 {vr(OA+2*i,2)}, {vr(OA+2*i,2)}, {vr(VS+16*s+2*i,2)}')
e(f's_mov_b32 s{sIt}, {1 if OPT["force_fb"] else 0}')
e(f'''L_norm:
v_cndmask_b32 v{vA}, v{OA+12}, v{OA}, s[{sOdd}:{sOdd+1}]
v_max3_f32 v{vC}, abs(v{OA}), abs(v{OA+1}), abs(v{OA+2})
v_mov_b32 v{vB}, v{vA}
v_max3_f32 v{vC}, abs(v{OA+3}), abs(v{OA+4}), v{vC}
v_max3_f32 v{vC}, abs(v{OA+5}), abs(v{OA+6}), v{vC}
v_permlane32_swap_b32 v{vA}, v{vB}
v_max3_f32 v{vC}, abs(v{OA+7}), abs(v{OA+8}), v{vC}
v_cndmask_b32 v{vB}, v{vB}, v{vA}, s[{sOdd}:{sOdd+1}]
v_max3_f32 v{vC}, abs(v{OA+9}), abs(v{OA+10}), v{vC}
v_rcp_f32 v{vA}, v{vB}
v_max3_f32 v{vC}, abs(v{OA+11}), abs(v{OA+12}), v{vC}
v_max3_f32 v{vC}, abs(v{OA+13}), abs(v{OA+14}), v{vC}
v_max_f32 v{vC}, abs(v{OA+15}), v{vC}
v_cmp_nle_f32 vcc, 0x30800000, v{vB}
s_mov_b64 s[78:79], vcc
v_cmp_nge_f32 vcc, 0x4e800000, v{vB}
s_or_b64 s[78:79], s[78:79], vcc
v_cmp_ngt_f32 vcc, 0x7f000000, v{vC}
s_or_b64 vcc, s[78:79], vcc''')
if OPT['force_fb']:
    e(f's_cmp_eq_u32 s{sIt}, 1\ns_cbranch_scc1 L_fb')
e('s_cbranch_vccnz L_fb0\nL_norm2:')
for i in range(8): e(f'v_pk_mul_f32 {vr(OA+2*i,2)}, {vr(OA+2*i,2)}, {vr(vA,2)} op_sel_hi:[1,0]')
for i in range(8): e(f'v_cvt_pk_bf16_f32 v{VS+i}, v{OA+2*i}, v{OA+2*i+1}')
if OM: poll(vFl, first_issued=2, reg=31)
o_stores(VS, VS + 4, '')
stamp(11)
if OPT['obar'] == 1: e('s_barrier')
if OPT['obar'] >= 3: e(f"s_waitcnt vmcnt({5 - OPT['obar']})\ns_barrier")
if OM == 0:
    e('s_waitcnt vmcnt(0)'); publish(sFo, vA)
if OPT['obar'] == 2: e('s_barrier')
stamp(12)
prof_out()
e('s_endpgm')

for tag, st in SPIN:
    e(f'L_ws_{tag}:'); lwait(st); e(f's_branch L_wb_{tag}')
sec('fb')
e(f'''L_fb0:
s_cmp_eq_u32 s{sIt}, 2
s_cbranch_scc1 L_norm2
L_fb:
s_waitcnt vmcnt(0)
s_mul_i32 s{sTmp}, s{S_O0}, {KS}
s_add_u32 s{sK}, s{sTmp}, {WS_K}
s_add_u32 s{sV}, s{sTmp}, {WS_V}
v_mov_b32 v{vC}, 0xff800000
s_mov_b32 s{sIt}, 0
L_fb1:''')
e('\n'.join(kv_loads(0, 0, SRD_WS)[:2]))
e('s_waitcnt vmcnt(0)')
e(qk(0, 3, 0)); e(qk(0, 3, 1)); e('s_nop 11')
for i in range(8): e(f'v_max3_f32 v{vC}, v{VS+48+2*i}, v{VS+49+2*i}, v{vC}')
e(f'''s_add_u32 s{sK}, s{sK}, 512
s_add_u32 s{sIt}, s{sIt}, 1
s_cmp_lg_u32 s{sIt}, 64
s_cbranch_scc1 L_fb1
v_mov_b32 v{vA}, v{vC}
s_sub_u32 s{sK}, s{sK}, 0x8000
s_mov_b32 s{sIt}, 0
v_permlane32_swap_b32 v{vA}, v{vC}
v_max_f32 v{vC}, v{vA}, v{vC}''')
for i in range(8): e(f'v_mov_b64 {vr(OA+2*i,2)}, 0')
e('L_fb2:')
e('\n'.join(kv_loads(0, 0, SRD_WS)))
e('s_waitcnt vmcnt(0)')
e(qk(0, 3, 0)); e(qk(0, 3, 1)); e('s_nop 11')
for i in range(16): e(f'v_sub_f32 v{VS+48+i}, v{VS+48+i}, v{vC}')
for i in range(16): e(f'v_exp_f32 v{VS+48+i}, v{VS+48+i}')
e('s_nop 1')
e(pv(0, 3, 0)); e(pv(0, 3, 1))
e(f'''s_add_u32 s{sK}, s{sK}, 512
s_add_u32 s{sV}, s{sV}, 256
s_add_u32 s{sIt}, s{sIt}, 1
s_cmp_lg_u32 s{sIt}, 64
s_cbranch_scc1 L_fb2
s_mov_b32 s{sIt}, 2
s_nop 11
s_branch L_norm''')

sD0, sD, sHw, sDs, sTab, sA, sB, sLd, sSk, sIt2, sFlU, sInv, sUns, sSel, sUl, sOl, sCh0 = range(60, 77)
sUs, sOut, sHm = 78, 80, 82
sE2, sE0, sE3, sKd = 84, 85, 86, 87
OUTM = 'sc1' if OPT['outsc'] & 1 else ''
OUTM2 = 'sc1' if OPT['outsc'] & 2 else ''
a0, a1, a2, a3 = 5, 6, 7, 9
vPar = 10
vKc = 18
vRa, vRb_, vKd, vKd1, vKd2, vUs, vFu, vE1, vE1b, vE2, vSa, vSb, vS1, vFr, vKxo, vKxp = range(20, 36)
vAc = 40
vOne, vScl, vAdd, vC0 = range(56, 60)
vOp = 64
vY = 128
vXt = 144
vAn = 166
vX1 = 172
T0, T1 = 160, 176
vZ = 192
U = 204
vZer = 220
vUa, vCd, vG_, vZp, vKp, vF_, vL16, vXo, vXp, vTr, vYl, vYs, vFy = range(224, 237)
vWoD = 238
vWoR = 240
vOl, vFo, vBw, vBr, vOut = range(242, 247)
def hi():
    if OPT['prio']: e('s_setprio 3')
KG = [True]
def lo():
    if OPT['prio']: e(f"s_setprio {OPT['kgp'] if KG[0] else OPT['ps']}")
ROLE[0] = 1
sec('ssm0')
e(f"""s_cmp_{'eq' if OPT['only'] != 2 else 'le'}_u32 s{S_C}, 7
s_cbranch_scc1 L_ssm_idle
s_lshr_b32 s{sDs}, s{S_W}, 1
s_lshl_b32 s{sD0}, s{S_C}, 6
s_lshl1_add_u32 s{sD0}, s{S_J}, s{sD0}
s_add_u32 s{sD}, s{sD0}, s{sDs}
s_mul_i32 s{sTab}, s{S_W}, {TABSZ}
s_add_u32 s{sTab}, s{sTab}, {L_TAB}
s_lshl1_add_u32 s{sA}, s{sD0}, s{S_W}
s_lshl_b32 s{sA}, s{sA}, 8
v_lshl_add_u32 v{a0}, v{V_LANE}, 2, s{sA}
v_lshrrev_b32 v{a1}, 3, v{V_LANE}
v_mul_u32_u24 v{a1}, 896, v{a1}
v_and_b32 v{a2}, 7, v{V_LANE}
v_lshl_add_u32 v{a1}, v{a2}, 4, v{a1}
v_add_u32 v{a2}, {7168-1024}, v{a1}
s_lshl2_add_u32 s{sFlU}, s{S_J}, s{S_W}
s_mul_i32 s{sA}, s{sFlU}, {16*896}
s_lshl_b32 s{sB}, s{S_C}, 7
s_add_u32 s{sA}, s{sA}, s{sB}
s_mov_b32 m0, s{sTab}
s_lshl_b32 s{sB}, s{sD0}, 1
s_mov_b32 s{SRD_A+2}, {2048*896}
s_mov_b32 s{SRD_A+3}, 0x20000
s_waitcnt lgkmcnt(0)
s_load_dword s{sLd}, s[14:15], s{sB}
s_load_dword s{S_NONCE}, s[28:29], 0
s_load_dword s{sSk}, s[16:17], s{sB}
s_mov_b64 s[{SRD_A}:{SRD_A+1}], s[4:5]
global_load_dword v{vPar+0}, v{a0}, s[6:7]
global_load_dword v{vPar+1}, v{a0}, s[8:9]
global_load_dword v{vPar+2}, v{a0}, s[10:11]
global_load_dword v{vPar+3}, v{a0}, s[12:13]
buffer_load_dwordx4 v{a1}, {sr(SRD_A)}, s{sA} offen lds
buffer_load_dwordx4 v{a2}, {sr(SRD_A)}, s{sA} offen offset:1024 lds
s_barrier""")
if OPT['tlb']:
    e(f'''v_and_b32 v{a0}, 7, v{V_LANE}
    v_min_u32 v{a0}, 5, v{a0}
    v_lshlrev_b32 v{a0}, 21, v{a0}
    v_add_u32 v{a0}, 0xf8000, v{a0}
    v_mov_b32 v{a1}, 0
    global_load_dword v8, v{a0}, s[28:29]
    global_load_dword v8, v{a1}, s[22:23]''')
e('s_branch L_ssm')
sec('ssm')
e('L_ssm:')
if OPT['abl'] == 1:
    arrive(1); e('s_waitcnt vmcnt(0) lgkmcnt(0)\ns_endpgm')
lo()
srd(SRD_WS, 28, WS_SIZE)
e(f"""s_lshl_b32 s{sUs}, s{sFlU}, 7
s_mul_i32 s{sA}, s{S_C}, {16*QS}
s_add_u32 s{sUs}, s{sUs}, s{sA}
s_add_u32 s{sUs}, s{sUs}, {WS_U}
s_add_u32 s{sUs+1}, s{sUs}, {8*QS}
s_lshl_b32 s{sA}, s{S_C}, {7 + FSH}
s_add_u32 s{sUl}, s{sA}, {F_U}
s_lshl_b32 s{sFlU}, s{sFlU}, {FSH}
s_add_u32 s{sFlU}, s{sFlU}, s{sUl}
s_and_b32 s{sHw}, s{S_W}, 1
v_add_u32 v{V_GRP}, 16, v{V_GRP}
v_and_b32 v{a0}, 15, v{V_LANE}
v_lshrrev_b32 v{a1}, 4, v{V_LANE}
v_lshl_add_u32 v{vRb_}, v{a1}, 4, s{sTab}
v_mul_u32_u24 v{a2}, {TROW}, v{a0}
v_add_u32 v{vRa}, v{a2}, v{vRb_}
v_bfe_u32 v{a0}, v{V_LANE}, 2, 2
v_and_b32 v{a3}, 1, v{V_LANE}
v_lshl_or_b32 v{a2}, v{a3}, 3, v{a0}
v_lshl_add_u32 v{vTr}, v{a2}, 7, v{vRb_}
v_and_b32 v{a2}, 2, v{V_LANE}
v_lshl_add_u32 v{vTr}, v{a2}, 2, v{vTr}
v_lshlrev_b32 v{vL16}, 4, v{V_LANE}
v_lshrrev_b32 v{a1}, 3, v{V_LANE}
v_and_b32 v{a2}, 0x70, v{vL16}
v_mul_u32_u24 v{a1}, {QS}, v{a1}
v_add_u32 v{vUs}, v{a1}, v{a2}
v_add_u32 v{vXo}, s{sTab}, v{vL16}
v_mov_b32 v{vOne}, 0x3c00""")
for i in range(8): e(f'v_mov_b64 {vr(vAc+2*i,2)}, 0')
mid = f"""v_min_u32 v{a0}, 32, v{V_LANE}
s_lshl_b32 s{sB}, s{S_W}, 5
s_sub_u32 s{sB}, s{sB}, 1
v_add_u32 v{a0}, s{sB}, v{a0}
v_max_i32 v{a0}, 0, v{a0}
v_lshl_add_u32 v{vFu}, v{a0}, {FSH}, s{sUl}
s_cmp_lg_u32 s{sHw}, 0
s_cselect_b64 s[{sHm}:{sHm+1}], -1, 0
s_mov_b32 s{sE0}, 0x05040504
s_mov_b32 s{sE3}, 0x01000100
s_cselect_b32 s{sE2}, s{sE3}, 0x01000302
v_and_b32 v{a0}, 15, v{V_LANE}
v_lshrrev_b32 v{a1}, 4, v{V_LANE}
s_lshl_b32 s{sKd}, s{sDs}, 11
s_add_u32 s{sKd}, s{sKd}, {L_KD}
s_lshl_b32 s{sA}, s{sHw}, 4
v_add_u32 v{a0}, s{sA}, v{a0}
v_lshlrev_b32 v{a2}, 9, v{a1}
v_lshl_add_u32 v{a2}, v{a0}, 2, v{a2}
s_add_u32 s{sA}, s{sKd}, 1024
v_add_u32 v{vKd2}, s{sA}, v{a2}
v_max_u32 v{a2}, 1, v{a1}
v_sub_u32 v{a2}, 5, v{a2}
v_lshlrev_b32 v{a0}, v{a2}, v{a0}
v_lshlrev_b32 v{a2}, 3, v{a1}
s_mov_b32 s{sA}, 0x60400100
v_bfe_u32 v{a3}, s{sA}, v{a2}, 8
v_lshl_add_u32 v{a0}, v{a3}, 3, v{a0}
v_add_u32 v{vKd}, s{sKd}, v{a0}
s_mov_b32 s{sA}, 0x80040404
v_bfe_u32 v{a3}, s{sA}, v{a2}, 8
v_add_u32 v{vKd1}, v{a3}, v{vKd}
v_bfe_u32 v{a0}, v{V_LANE}, 2, 2
v_and_b32 v{a3}, 1, v{V_LANE}
v_lshrrev_b32 v{a1}, 1, v{V_LANE}
v_lshlrev_b32 v{vUa}, 6, v{a1}
v_lshl_add_u32 v{vUa}, v{a3}, 4, v{vUa}
s_lshr_b32 s{sA}, s{sD0}, 2
s_mul_i32 s{sA}, s{sA}, {QS}
s_and_b32 s{sB}, s{sD0}, 3
s_lshl4_add_u32 s{sA}, s{sB}, s{sA}
s_lshl_b32 s{sB}, s{S_W}, 12
s_add_u32 s{sA}, s{sA}, s{sB}
s_add_u32 s{sUl}, s{sA}, {WS_U - 64}
v_mul_u32_u24 v{a2}, {UC_D}, v{a3}
v_lshl_add_u32 v{a2}, v{a1}, 4, v{a2}
s_lshl_b32 s{sA}, s{S_W}, 10
s_add_u32 s{sA}, s{sA}, {L_UC + 64}
v_add_u32 v{vCd}, s{sA}, v{a2}
v_mul_u32_u24 v{a3}, 0x0404, v{a3}
v_lshlrev_b32 v{a3}, 16, v{a3}
v_add_u32 v{a3}, 0x01000504, v{a3}
v_mov_b32 v{vS1}, 0x03020302
v_cndmask_b32 v{vS1}, v{vS1}, v{a3}, s[{sHm}:{sHm+1}]
v_lshrrev_b32 v{a1}, 5, v{V_LANE}
v_mul_u32_u24 v{a3}, 0x0202, v{a1}
v_sub_u32 v{vSb}, 0x01000302, v{a3}
v_lshl_or_b32 v{a3}, v{a3}, 16, v{a3}
v_sub_u32 v{vSa}, 0x05040706, v{a3}
v_lshrrev_b32 v{a3}, v{a1}, v{vL16}
v_lshl_add_u32 v{a3}, v{a1}, 8, v{a3}
v_add_u32 v{vE1}, s{sKd}, v{a3}
v_lshlrev_b32 v{a3}, 2, v{a1}
v_sub_u32 v{vE1b}, v{vE1}, v{a3}
s_lshl_b32 s{sB}, s{sHw}, 9
s_add_u32 s{sA}, s{sKd}, s{sB}
s_add_u32 s{sA}, s{sA}, 512
v_lshl_add_u32 v{vE2}, v{V_LANE}, 2, s{sA}
s_xor_b32 s{sA}, s{S_W}, 1
s_mul_i32 s{sA}, s{sA}, {TABSZ}
s_add_u32 s{sA}, s{sA}, {L_TAB}
v_add_u32 v{vXp}, s{sA}, v{vL16}
s_mul_i32 s{sA}, s{sDs}, 6144
s_add_u32 s{sA}, s{sA}, {L_KP}
s_add_u32 s{sInv}, s{sA}, s{sB}
s_mul_i32 s{sB}, s{sHw}, 3072
s_add_u32 s{sB}, s{sB}, s{sA}
v_lshl_add_u32 v{a2}, v{a1}, 10, v{vL16}
v_add_u32 v{vG_}, s{sB}, v{a2}
v_mov_b64 {vr(vZer,2)}, 0
v_mov_b64 {vr(vZer+2,2)}, 0
v_and_b32 v{a3}, 3, v{V_LANE}
v_mul_u32_u24 v{a2}, {UC_S}, v{a0}
v_lshl_add_u32 v{a2}, v{a3}, 4, v{a2}
s_mul_i32 s{sB}, s{sDs}, {UC_D}
s_add_u32 s{sB}, s{sB}, {L_UC}
v_add_u32 v{vZp}, s{sB}, v{a2}
v_mul_u32_u24 v{a2}, {1536 - 4}, v{a3}
v_lshl_add_u32 v{a2}, v{V_LANE}, 2, v{a2}
v_add_u32 v{vKp}, s{sInv}, v{a2}
v_xor_b32 v{a3}, 3, v{a3}
v_mul_u32_u24 v{a3}, {UC_S}, v{a3}
v_bfe_u32 v{a2}, v{V_LANE}, 2, 3
v_lshl_add_u32 v{a3}, v{a2}, 3, v{a3}
v_lshlrev_b32 v{a1}, 4, v{a1}
v_sub_u32 v{a3}, v{a3}, v{a1}
s_lshl_b32 s{sA}, s{sHw}, 5
s_sub_u32 s{sB}, s{sB}, s{sA}
s_add_u32 s{sB}, s{sB}, 56
v_add_u32 v{vF_}, s{sB}, v{a3}
s_mul_i32 s{sA}, s{S_W}, 1536
s_add_u32 s{sA}, s{sA}, {L_KX}
v_add_u32 v{vKxo}, s{sA}, v{vL16}
s_xor_b32 s{sA}, s{S_W}, 1
s_mul_i32 s{sA}, s{sA}, 1536
s_add_u32 s{sA}, s{sA}, {L_KX}
v_add_u32 v{vKxp}, s{sA}, v{vL16}
s_cmp_eq_u32 s{S_W}, 0
s_cselect_b64 s[88:89], 3, 0
"""
e(mid)
stamp(22)
e(f's_waitcnt lgkmcnt(0)\ns_add_u32 s{S_NONCE}, s{S_NONCE}, 1')
arrive(1)
e(f"""s_lshl_b32 s{sA}, s{sDs}, 4
s_lshr_b32 s{sLd}, s{sLd}, s{sA}
s_lshl_b32 s{sLd}, s{sLd}, 16
s_lshr_b32 s{sSk}, s{sSk}, s{sA}
s_lshl_b32 s{sSk}, s{sSk}, 16
v_mov_b32 v{a0}, s{sLd}
v_mul_f32 v{a0}, 0x3fb8aa3b, v{a0}
v_exp_f32 v{a0}, v{a0}
s_cmp_eq_u32 s{sHw}, 0
s_cselect_b32 s{sSk}, s{sSk}, 0
v_cvt_pk_bf16_f32 v{a0}, v{a0}, v{a0}
v_and_b32 v{vScl}, 0xffff0000, v{a0}
v_mul_f32 v{vKc}, 0xbfb8aa3b, v{vScl}
v_mul_f32 v{vKc+1}, 0.15915494, v{vScl}
v_mov_b32 v{vAdd}, 0
v_add_f32 v{vScl}, v{vScl}, v{vScl}
v_writelane_b32 v{vAdd}, s{sSk}, 0
s_mov_b32 s{sIt2}, 0
s_mov_b32 s{sSel}, 0x01000c0c""")
stamp(0)
e(f"""s_waitcnt vmcnt({4 if OPT['tlb'] else 2})
v_and_b32 v{a0}, 0x7f807f80, v{vPar+2}
v_and_b32 v{a1}, 0x7f807f80, v{vPar+3}
v_pk_max_u16 v{a0}, v{a0}, v{a1}
v_lshlrev_b32 v{a1}, 16, v{a0}
v_max_u32 v{a0}, v{a0}, v{a1}
s_waitcnt vmcnt({2 if OPT['tlb'] else 0})""")
for q, n in enumerate((1, 2, 4, 8)):
    z, hf = divmod(q, 2)
    e(f'ds_read_b64_tr_b16 {vr(U + 4*z + 2*hf, 2)}, v{vTr} offset:{64*z + 512*hf}')
    e(f's_nop 0\nv_max_u32_dpp v{a0}, v{a0}, v{a0} row_ror:{n} row_mask:0xf bank_mask:0xf')
e(f"""s_nop 0
v_readlane_b32 s{sA}, v{a0}, 0
v_readlane_b32 s{sB}, v{a0}, 16
v_readlane_b32 s{sInv}, v{a0}, 32
v_readlane_b32 s{sUns}, v{a0}, 48
s_max_u32 s{sA}, s{sA}, s{sB}
s_max_u32 s{sUns}, s{sUns}, s{sInv}
s_max_u32 s{sUns}, s{sUns}, s{sA}
s_and_b32 s{sUns}, s{sUns}, 0x7f800000
s_min_u32 s{sUns}, s{sUns}, 0x7e800000
s_sub_u32 s{sInv}, 0x7f000000, s{sUns}
v_mul_f32 v{vScl}, s{sUns}, v{vScl}""")
hi()
e(f"""s_waitcnt lgkmcnt(0)
buffer_store_dwordx4 {vr(U,4)}, v{vUs}, {sr(SRD_WS)}, s{sUs} offen sc1
buffer_store_dwordx4 {vr(U+4,4)}, v{vUs}, {sr(SRD_WS)}, s{sUs+1} offen sc1""")
lo()
e(f'ds_write_addtid_b32 v{vOne}')
stamp(1)
if OPT['abl'] == 2: e('s_endpgm')
def cm(jobs, conj):
    ng = 'neg_hi:[1,0,0]' if conj else 'neg_lo:[1,0,0]'
    return [f'v_pk_mul_f16 v{d}, v{x}, v{w} op_sel_hi:[1,0]' for d, x, w in jobs] + \
           [f'v_pk_fma_f16 v{d}, v{x}, v{w}, v{d} op_sel:[1,1,0] op_sel_hi:[0,1,1] {ng}' for d, x, w in jobs]
def wr(reg): return f'ds_write_addtid_b32 v{reg} offset:{TROW*(reg - vY)}'
assert vXt == vY + 16
zA, zB, tA, tB, pA, pB = vZ, vZ+2, vZ+4, vZ+6, vZ+8, vZ+10
X = vXt; Y = vY
an = {1: vAn, 2: vAn+1, 4: vAn+2, 8: Y+1, 16: Y+2, 32: Y+4, 64: Y+8, 128: X+21, 256: vAn+3, 512: vAn+4, 1024: vAn+5}
e('L_kg:')
stamp(14)
seq = f"""v_perm_b32 v{pA}, v{vPar}, v{vPar}, s{sSel}
v_mul_f32 v{pA}, 0x3fb8aa3b, v{pA}
v_exp_f32 v{pA}, v{pA}
v_perm_b32 v{pA+1}, v{vPar+1}, v{vPar+1}, s{sSel}
v_perm_b32 v{tA}, v{vPar+2}, v{vPar+2}, s{sSel}
v_perm_b32 v{tA+1}, v{vPar+3}, v{vPar+3}, s{sSel}
v_cvt_pk_bf16_f32 v{pA}, v{pA}, v{pA}
v_mul_f32 v{tA}, s{sInv}, v{tA}
v_and_b32 v{pA}, 0xffff0000, v{pA}
v_mul_f32 v{tA+1}, s{sInv}, v{tA+1}
v_pk_mul_f32 {vr(pA,2)}, {vr(pA,2)}, {vr(vKc,2)}
v_cvt_pk_f16_f32 v{X}, v{tA}, -v{tA+1}
v_mul_f32 v{pB}, 0x42800000, v{pA}
v_mul_f32 v{pB+1}, 0x42800000, v{pA+1}
v_exp_f32 v{pA}, v{pA}
v_fract_f32 v{pA+1}, v{pA+1}
v_exp_f32 v{pB}, v{pB}
v_fract_f32 v{pB+1}, v{pB+1}
v_cos_f32 v{zA}, v{pA+1}
v_sin_f32 v{zA+1}, v{pA+1}
v_cos_f32 v{zB}, v{pB+1}
v_sin_f32 v{zB+1}, v{pB+1}
v_pk_mul_f32 {vr(zA,2)}, {vr(zA,2)}, {vr(pA,2)} op_sel_hi:[1,0]
v_pk_mul_f32 {vr(zB,2)}, {vr(zB,2)}, {vr(pB,2)} op_sel_hi:[1,0]""".split('\n')
for st in range(6):
    chains = [(zA, tA, an[1 << st], st < 5)] + ([(zB, tB, an[64 << st], st < 4)] if st < 5 else [])
    for z, t, d, sq in chains:
        if sq: seq.append(f'v_pk_mul_f32 {vr(t,2)}, {vr(z,2)}, {vr(z,2)} op_sel_hi:[0,1]')
    for z, t, d, sq in chains: seq.append(f'v_cvt_pk_f16_f32 v{d}, v{z}, v{z+1}')
    for z, t, d, sq in chains:
        if sq: seq.append(f'v_pk_fma_f32 {vr(z,2)}, {vr(z,2)}, {vr(z,2)}, {vr(t,2)} op_sel:[1,1,0] op_sel_hi:[0,1,1] neg_lo:[1,0,0]')
seq += cm([(X+1, X, an[1]), (X+2, X, an[2]), (X+4, X, an[4]), (X+8, X, an[256]), (X+12, X, an[512]), (X+16, X, an[1024])], True)
seq += cm([(Y+3, Y+1, Y+2), (Y+12, Y+4, Y+8), (Y+5, Y+4, Y+1), (Y+6, Y+4, Y+2), (Y+9, Y+8, Y+1), (Y+10, Y+8, Y+2)], False)
seq += cm([(X+3, X+1, an[2]), (X+5, X+1, an[4]), (X+6, X+2, an[4]), (X+9, X+2, an[256]), (X+10, X+4, an[256]), (X+13, X+4, an[512]),
           (X+14, X+8, an[512]), (X+17, X+8, an[1024]), (X+18, X+12, an[1024]), (X+20, X+16, an[1024])], True)
seq += cm([(Y+7, Y+4, Y+3), (Y+11, Y+8, Y+3), (Y+13, Y+12, Y+1), (Y+14, Y+12, Y+2), (Y+15, Y+12, Y+3)], False)
seq += cm([(X+7, X+3, an[4]), (X+11, X+6, an[256]), (X+15, X+10, an[512]), (X+19, X+14, an[1024])], True)
e('\n'.join(seq))
stamp(15)
if OPT['kgw']:
    e(f'v_subrev_u32 v{a0}, 16, v{V_GRP}'); lwait(OPT['kgw'], addr=a0)
hi()
if OPT['abl'] != 4: e('\n'.join(wr(r) for r in range(Y + 1, X + 22)))
for k in range(4):
    o = vOp + 16*k
    e(f"""ds_read_b128 {vr(o,4)}, v{vRa} offset:{64*k}
    ds_read_b128 {vr(o+4,4)}, v{vRb_} offset:{37*TROW + 64*k}
    ds_read_b128 {vr(o+8,4)}, v{vRa} offset:{16*TROW + 64*k}
    ds_read_b128 {vr(o+12,4)}, v{vRa} offset:{32*TROW + 64*k}""")
e(f's_cmp_eq_u32 s{sIt2}, 0\ns_cbranch_scc1 L_kg_n\nbuffer_load_dword v{vFr}, v{vFu}, {sr(SRD_WS)}, 0 offen sc1\nL_kg_n:')
stamp(16)
def mf(c, a, b): return f'v_mfma_f32_16x16x32_f16 {vr(c,4)}, {vr(a,4)}, {vr(b,4)}, {vr(c,4)}'
late_m = []
for k in range(4):
    o = vOp + 16*k; y1 = vX1 + 4*(k & 1)
    p = cm([(y1+r, o+r, o+4+r) for r in range(4)], False)
    e(f's_waitcnt lgkmcnt({12 - 4*k})')
    e('\n'.join([mf(vAc, o+8, o)] + p[0:2] + late_m[:1] + p[2:4] + [mf(vAc+4, o+12, o)] + p[4:6] + late_m[1:] + p[6:8]))
    late_m = [mf(vAc+8, o+8, y1), mf(vAc+12, o+12, y1)]
e(f"""s_add_u32 s{sSel}, s{sSel}, 0x02020000
s_add_u32 s{sIt2}, s{sIt2}, 1
s_cmp_lg_u32 s{sIt2}, 2""")
e('\n'.join(late_m))
if OPT['upub'] == 1:
    e('s_cbranch_scc0 L_kg_e'); stamp(21); e('s_waitcnt vmcnt(0)'); publish(sFlU, a0); lo(); e('s_branch L_kg\nL_kg_e:')
else:
    lo(); e('s_cbranch_scc1 L_kg'); hi(); e('s_waitcnt vmcnt(0)'); publish(sFlU, a0)
lo()
stamp(17)
if OPT['abl'] in (4, 8): e('s_endpgm')
for i in range(8): e(f'v_mul_f32 v{vAc+i}, v{vScl}, v{vAc+i}')
e(f's_cmp_eq_u32 s{sHw}, 0')
for i in range(8, 16): e(f'v_mul_f32 v{vAc+i}, v{vScl}, v{vAc+i}')
e('s_cbranch_scc1 L_kx')
for i in range(8): e(f'v_swap_b32 v{vAc+i}, v{vAc+8+i}')
e(f"""L_kx:
ds_write_b128 v{vKxo}, {vr(vAc+8,4)}
s_mov_b32 exec_hi, 0
ds_write_b128 v{vKxo}, {vr(vAc+12,4)} offset:1024
s_mov_b64 exec, -1""")
arrive(2)
e(f'v_add_f32 v{vAc}, v{vAdd}, v{vAc}')
stamp(18)
poll(vFu, first_issued=True, reg=vFr, sleep=OPT['usleep'])
for k in range(2):
    e(f"""buffer_load_dwordx4 {vr(U+8*k+4,4)}, v{vUa}, {sr(SRD_WS)}, s{sUl} offen offset:{64 + 2048*k} sc1
    buffer_load_dwordx2 {vr(U+8*k+2,2)}, v{vUa}, {sr(SRD_WS)}, s{sUl} offen offset:{8 + 2048*k} sc1""")
if OPT['prio']: e(f"s_setprio {OPT['bp']}")
stamp(19)
lwait(2)
e(f"""ds_read_b128 {vr(vAc+8,4)}, v{vKxp}
ds_read_b128 {vr(vAc+12,4)}, v{vKxp} offset:1024
ds_write_b128 v{vG_}, {vr(vZer,4)}
ds_write_b128 v{vZp}, {vr(vZer,4)}
v_add_u32 v{vG_}, {512 - 80}, v{vG_}
s_mov_b32 s{sIt2}, 4
s_waitcnt lgkmcnt(2)""")
for i in range(4): e(f'v_pk_add_f32 {vr(vAc+2*i,2)}, {vr(vAc+2*i,2)}, {vr(vAc+8+2*i,2)}')
for i in range(4): e(f'v_cvt_pk_bf16_f32 v{vAc+8+i}, v{vAc+2*i}, v{vAc+2*i+1}')
e(f"""ds_write_b32 v{vKd}, v{vAc+8}
ds_write_b32 v{vKd1}, v{vAc+9}
s_mov_b32 exec_hi, 0
ds_write_b16 v{vKd2}, v{vAc+10}
ds_write_b16_d16_hi v{vKd2}, v{vAc+10} offset:128
ds_write_b16 v{vKd2}, v{vAc+11} offset:256
ds_write_b16_d16_hi v{vKd2}, v{vAc+11} offset:384
s_mov_b64 exec, -1""")
sync(3)
stamp(2)
E = 96
e(f"""ds_read2_b32 {vr(E+6,2)}, v{vE2} offset0:64 offset1:65
s_cmp_lg_u32 s{sHw}, 0
s_cbranch_scc1 L_ex1
ds_read_b64 {vr(E,2)}, v{vE1}
ds_read2_b32 {vr(E+2,2)}, v{vE1b} offset0:2 offset1:3
s_waitcnt lgkmcnt(0)
v_perm_b32 v{E+8}, v{E+3}, v{E+2}, v{vSa}
v_perm_b32 v{E+9}, v{E+2}, v{E+2}, v{vSb}
v_perm_b32 v{E+10}, v{E+1}, v{E}, v{vSa}
v_perm_b32 v{E+11}, v{E}, v{E}, v{vSb}
s_branch L_ex2
L_ex1:
ds_read2_b32 {vr(E,2)}, v{vE2} offset0:0 offset1:1
s_waitcnt lgkmcnt(0)""")
def ex2(d, p):
    e(f"""v_perm_b32 v{d}, v{p+1}, v{p}, s{sE0}
    v_perm_b32 v{d+1}, v{p+1}, v{p}, v{vS1}
    v_perm_b32 v{d+2}, v{p+1}, v{p}, s{sE2}
    v_perm_b32 v{d+3}, v{p+1}, v{p}, s{sE3}""")
ex2(E+8, E)
e('L_ex2:')
ex2(E+12, E+6)
e(f"""ds_write_b128 v{vKp}, {vr(E+8,4)} offset:512
ds_write_b128 v{vKp}, {vr(E+12,4)} offset:{512 + 256}
s_waitcnt vmcnt(2)
v_cndmask_b32 v{U+2}, v{U+2}, v{vZer}, s[88:89]
v_cndmask_b32 v{U+3}, v{U+3}, v{vZer}, s[88:89]""")
stamp(3)
SH = 128
for k in range(2):
    b = U + 8*k + 4; t = SH + 12*k
    if k: e('s_waitcnt vmcnt(0)')
    e(f'ds_write_b128 v{vCd}, {vr(b,4)} offset:{512*k}')
    for i in range(4): e(f'v_alignbit_b32 v{t+i}, v{b+i}, v{b+i-1}, 16')
    e(f'ds_write_b128 v{vCd}, {vr(t,4)} offset:{UC_S + 512*k}')
    for i in range(4): e(f'v_mov_b32 v{t+4+i}, v{b+i-1}')
    e(f'ds_write_b128 v{vCd}, {vr(t+4,4)} offset:{2*UC_S + 512*k}')
    for i in range(4): e(f'v_alignbit_b32 v{t+8+i}, v{b+i-1}, v{b+i-2}, 16')
    e(f'ds_write_b128 v{vCd}, {vr(t+8,4)} offset:{3*UC_S + 512*k}')
sync(4)
KG[0] = False
lo()
stamp(4)
if OPT['abl'] == 16: e('s_endpgm')
CB = 64
def cv_reads(k):
    b = CB + 16 * (k & 3)
    return [f'ds_read_b128 {vr(b+8,4)}, v{vG_} offset:{80 - 16*k}',
            f'ds_read_b64 {vr(b,2)}, v{vF_} offset:{64*k}', f'ds_read_b64 {vr(b+2,2)}, v{vF_} offset:{64*k + 8}',
            f'ds_read_b128 {vr(b+12,4)}, v{vG_} offset:{512 + 80 - 16*k}',
            f'ds_read_b64 {vr(b+4,2)}, v{vF_} offset:{2048 + 64*k}', f'ds_read_b64 {vr(b+6,2)}, v{vF_} offset:{2048 + 64*k + 8}']
e('\n'.join(cv_reads(0) + cv_reads(1)))
FOA = f'''s_lshr_b32 s{sA}, s{sOl}, 1
s_lshl_b32 s{sA}, s{sA}, {4 + FSH}
s_add_u32 s{sA}, s{sA}, {F_O}
v_lshl_add_u32 v{vFo}, v{a1}, {FSH}, s{sA}''' if not OM else f'''s_lshr_b32 s{sA}, s{sOl}, 1
s_lshl_b32 s{sB}, s{sHw}, 9
s_add_u32 s{sA}, s{sA}, s{sB}
s_lshl_b32 s{sA}, s{sA}, {FSH}
s_add_u32 s{sA}, s{sA}, {F_Y}
v_min_u32 v{vFo}, 6, v{a1}
v_lshl_add_u32 v{vFo}, v{vFo}, {6 + FSH}, s{sA}'''
late = f"""s_mov_b64 s[{SRD_B}:{SRD_B+1}], s[22:23]
s_mov_b32 s{SRD_B+2}, {448*896}
s_mov_b32 s{SRD_B+3}, 0x20000
s_mov_b64 s[{SRD_C}:{SRD_C+1}], s[24:25]
s_mov_b32 s{SRD_C+2}, {2048*1792}
s_mov_b32 s{SRD_C+3}, 0x20000
v_lshrrev_b32 v{a1}, 3, v{V_LANE}
v_and_b32 v{a2}, 7, v{V_LANE}
v_and_b32 v{a0}, 0x70, v{vL16}
v_mul_u32_u24 v{vYl}, {YS}, v{a1}
v_add_u32 v{vYl}, v{vYl}, v{a0}
v_lshlrev_b32 v{a3}, 2, v{V_LANE}
v_and_b32 v{a3}, 64, v{a3}
v_xor_b32 v{a0}, v{a0}, v{a3}
v_mul_u32_u24 v{vWoD}, 896, v{a1}
v_xor_b32 v{a3}, v{a1}, v{a2}
v_lshlrev_b32 v{a3}, 4, v{a3}
v_lshl_add_u32 v{vOut}, v{vWoD}, 1, v{a3}
v_add_u32 v{vWoD}, v{a0}, v{vWoD}
v_add_u32 v{vWoD+1}, {7168-1024}, v{vWoD}
v_lshrrev_b32 v{a0}, 4, v{V_LANE}
v_bfe_u32 v{a1}, v{V_LANE}, 2, 2
v_lshl_or_b32 v{a3}, v{a0}, 3, v{a1}
v_lshlrev_b32 v{a3}, 7, v{a3}
v_lshrrev_b32 v{a1}, 1, v{a1}
v_lshl_add_u32 v{a3}, v{a1}, 6, v{a3}
v_and_b32 v{a1}, 0x30, v{vL16}
s_movk_i32 s{sA}, {L_WO}
v_add3_u32 v{vWoR}, v{a1}, v{a3}, s{sA}
v_xor_b32 v{vWoR+1}, 64, v{vWoR}
v_and_b32 v{a1}, 15, v{V_LANE}
v_lshlrev_b32 v{vOl}, 4, v{a1}
v_mad_u32_u24 v{vOl}, v{a0}, s{S_KS}, v{vOl}
s_lshl2_add_u32 s{sOl}, s{S_J}, s{S_W}
{FOA}
s_lshl_b32 s{sA}, s{S_W}, 11
s_add_u32 s{sA}, s{sA}, {L_SSM}
v_xor_b32 v{a3}, v{a0}, v{a2}
v_lshl_add_u32 v{a3}, v{a3}, 4, s{sA}
v_lshl_add_u32 v{vBw}, v{a1}, 7, v{a3}
v_add_u32 v{vBr}, s{sA}, v{vL16}
s_mul_i32 s{sOut}, s{sOl}, {16*1792}
s_lshl_b32 s{sA}, s{S_C}, 7
s_add_u32 s{sOut}, s{sOut}, s{sA}
s_add_u32 s{sOut}, s{sOut}, 896
s_add_u32 s{sOut+1}, s{sOut}, {8*1792}
s_lshl_b32 s{sOl}, s{sOl}, 8
s_add_u32 s{sOl}, s{sOl}, {WS_O}
s_lshl2_add_u32 s{sCh0}, s{S_C}, s{S_W}
s_lshl_b32 s{sCh0}, s{sCh0}, 4
s_lshr_b32 s{sA}, s{S_J}, 4
s_lshl_b32 s{sA}, s{sA}, 9
s_add_u32 s{sA}, s{sA}, s{sCh0}
s_lshl_b32 s{sA}, s{sA}, {FSH}
s_add_u32 s{sA}, s{sA}, {F_Y}
v_lshl_add_u32 v{vFy}, v{a1}, {FSH}, s{sA}
v_and_b32 v{a1}, 11, v{V_LANE}
v_lshl_or_b32 v{a1}, v{a0}, 5, v{a1}
v_mul_u32_u24 v{a1}, 1792, v{a1}
v_and_b32 v{a3}, 4, v{V_LANE}
v_lshl_add_u32 v{vYs}, v{a3}, 2, v{a1}""".split('\n')
e('\n'.join(late[:20])); late = late[20:]
def cv_iter(first):
    for k in range(4):
        b = CB + 16 * k
        rd = cv_reads(k + 2)
        z = first and k == 0
        def fill(n):
            if first:
                e('\n'.join(late[:n])); del late[:n]
        e('s_waitcnt lgkmcnt(6)')
        e(f'v_mfma_f32_32x32x16_bf16 {vr(T1,16)}, {vr(b,4)}, {vr(b+12,4)}, {"0" if z else vr(T1,16)}')
        e('\n'.join(rd[0:3])); fill(3)
        e(f'v_mfma_f32_32x32x16_bf16 {vr(T0,16)}, {vr(b,4)}, {vr(b+8,4)}, {"0" if z else vr(T0,16)}')
        e('\n'.join(rd[3:6])); fill(3)
        if k == 3:
            e(f'v_add_u32 v{vF_}, 256, v{vF_}\nv_subrev_u32 v{vG_}, 64, v{vG_}')
            if not first: e(f's_add_u32 s{sIt2}, s{sIt2}, 1\ns_cmp_lg_u32 s{sIt2}, 11')
        e(f'v_mfma_f32_32x32x16_bf16 {vr(T1,16)}, {vr(b+4,4)}, {vr(b+8,4)}, {vr(T1,16)}')
        fill(6 if k < 3 else 99)
cv_iter(True)
e('L_cv:')
cv_iter(False)
e('s_cbranch_scc1 L_cv')
if OPT['prio']: e(f"s_setprio {OPT['pr']}")
stamp(5)
if OPT['abl'] == 32: e('s_endpgm')
arrive(5)
e(f"""s_mul_i32 s{sA}, s{sD}, {YS}
s_lshl_b32 s{sB}, s{sHw}, 11
s_add_u32 s{sA}, s{sA}, s{sB}
s_add_u32 s{sA}, s{sA}, {WS_Y}
s_lshl_b32 s{sB}, s{sHw}, 9
s_add_u32 s{sB}, s{sB}, s{sD}
s_lshl_b32 s{sB}, s{sB}, {FSH}
s_add_u32 s{sB}, s{sB}, {F_Y}""")
lwait(5)
def xch(give, keep):
    for i in range(4): e(f'ds_write_b128 v{vXp}, {vr(give+4*i,4)} offset:{1024*i}')
    sync(6)
    for i in range(4): e(f'ds_read_b128 {vr(give+4*i,4)}, v{vXo} offset:{1024*i}')
    e('s_waitcnt lgkmcnt(0)')
e(f's_cmp_eq_u32 s{sHw}, 0\ns_cbranch_scc1 L_x0')
xch(T0, T1)
e('s_branch L_x1\nL_x0:')
xch(T1, T0)
e('L_x1:')
for i in range(8): e(f'v_pk_add_f32 {vr(T0+2*i,2)}, {vr(T0+2*i,2)}, {vr(T1+2*i,2)}')
for i in range(8): e(f'v_cvt_pk_bf16_f32 v{T1+i}, v{T0+2*i}, v{T0+2*i+1}')
e(f"""buffer_store_dwordx4 {vr(T1,4)}, v{vL16}, {sr(SRD_WS)}, s{sA} offen sc1
buffer_store_dwordx4 {vr(T1+4,4)}, v{vL16}, {sr(SRD_WS)}, s{sA} offen offset:1024 sc1
v_subrev_u32 v{a0}, 16, v{V_GRP}""")
if OM:
    e(f'''v_mov_b64 {vr(T0,2)}, -1
    v_mov_b64 {vr(T0+2,2)}, -1
    s_mul_i32 s{sA}, s{S_C}, {8*KS}
    s_add_u32 s{sA}, s{sA}, s{sOl}
    s_add_u32 s{sSk}, s{sA}, {4*KS}
    buffer_store_dwordx4 {vr(T0,4)}, v{vOl}, {sr(SRD_WS)}, s{sA} offen sc1
    buffer_store_dwordx4 {vr(T0,4)}, v{vOl}, {sr(SRD_WS)}, s{sSk} offen sc1''')
sync(7)
if OPT['only'] != 1: lwait(7, addr=a0)
e('s_waitcnt vmcnt(0)')
publish(sB, a0)
stamp(6)
if OPT['abl'] == 33: e('s_endpgm')
e(f"""s_mul_i32 s{sA}, s{S_W}, {16*896}
s_lshl_b32 s{sB}, s{S_C}, 7
s_add_u32 s{sA}, s{sA}, s{sB}
s_lshl_b32 s{sB}, s{S_W}, 11
s_add_u32 s{sB}, s{sB}, {L_WO}""")
for ch in range(7):
    e(f"""s_add_u32 m0, s{sB}, {8192*ch}
    s_add_u32 s{sSk}, s{sA}, {64*896*ch}
    buffer_load_dwordx4 v{vWoD}, {sr(SRD_B)}, s{sSk} offen lds
    buffer_load_dwordx4 v{vWoD+1}, {sr(SRD_B)}, s{sSk} offen offset:1024 lds
    s_waitcnt vmcnt({OPT['wodepth'] if ch < 6 else 0})""")
WF, OF, OC = 8, 168, 224
arrive(8)
e(f"""buffer_load_dword v{a0}, v{vFy}, {sr(SRD_WS)}, 0 offen sc1
s_mul_i32 s{sA}, s{sCh0}, {YS}
s_lshl_b32 s{sSk}, s{S_J}, 7
s_add_u32 s{sA}, s{sA}, s{sSk}
s_add_u32 s{sA}, s{sA}, {WS_Y}
s_add_u32 s{sSk}, s{sA}, {8*YS}""")
lwait(8)
stamp(7)
if OPT['abl'] == 34: e('s_endpgm')
def wo_reads(k):
    r = []
    for t in range(4):
        for hf in range(2):
            r.append(f'ds_read_b64_tr_b16 {vr(WF + 16*(k%10) + 4*t + 2*hf, 2)}, v{vWoR + (t>>1)} offset:{4096*k + 512*hf + 8*(t&1)}')
    return r
for k in range(10): e('\n'.join(wo_reads(k)))
arrive(9)
poll(vFy, first_issued=True, sleep=OPT['ysleep'], reg=a0)
stamp(8)
if OPT['abl'] == 35: e('s_endpgm')
e(f"""buffer_load_dwordx4 {vr(OF,4)}, v{vYl}, {sr(SRD_WS)}, s{sA} offen sc1
buffer_load_dwordx4 {vr(OF+4,4)}, v{vYl}, {sr(SRD_WS)}, s{sSk} offen sc1
s_lshr_b32 s{sA}, s{S_J}, 4
s_lshl_b32 s{sA}, s{sA}, 10
s_and_b32 s{sB}, s{S_J}, 3
s_lshl_b32 s{sB}, s{sB}, 8
s_add_u32 s{sA}, s{sA}, s{sB}
s_and_b32 s{sB}, s{S_J}, 8
s_lshl1_add_u32 s{sA}, s{sB}, s{sA}
s_and_b32 s{sB}, s{S_J}, 4
s_add_u32 s{sA}, s{sA}, s{sB}
s_mul_i32 s{sA}, s{sA}, 1792
s_lshl1_add_u32 s{sA}, s{sCh0}, s{sA}
s_add_u32 s{sB}, s{sA}, {128*1792}
v_xor_b32 v{a0}, 64, v{vBw}""")
lwait(9)
e(f"""s_waitcnt vmcnt(0)
ds_write_b128 v{vXo}, {vr(OF,4)}
ds_write_b128 v{vXo}, {vr(OF+4,4)} offset:1024""")
for z in range(2):
    for hf in range(2):
        e(f'ds_read_b64_tr_b16 {vr(OF + 8 + 4*z + 2*hf, 2)}, v{vTr} offset:{64*z + 512*hf}')
e(f"""s_waitcnt lgkmcnt(0)
buffer_store_dwordx4 {vr(OF+8,4)}, v{vYs}, {sr(SRD_C)}, s{sA} offen {OUTM}
buffer_store_dwordx4 {vr(OF+12,4)}, v{vYs}, {sr(SRD_C)}, s{sB} offen {OUTM}""")
if OPT['only'] == 1:
    stamp(9); stamp(13); prof_out(); e('s_endpgm')
if OM: poll(vFo, sleep=8)
sOk, sLast = 4, 18
for k in range(14): e(f's_add_u32 s{sOk+k}, s{sOl}, {4*KS*k}')
if OM: e(f's_min_u32 s{S_BOUND}, s{S_BOUND}, 0x4000\ns_mov_b32 s{sLast}, -1')
stamp(9)
e('s_barrier')
stamp(10)
if OPT['osleep']: e(f"s_sleep {OPT['osleep']}")
if not OM: poll(vFo)
stamp(11)
def o_load(k): return f'buffer_load_dwordx4 {vr(OF+4*k,4)}, v{vOl}, {sr(SRD_WS)}, s{sOk+k} offen sc1'
def o_chk(k):
    o = OF + 4*k
    return [f's_waitcnt vmcnt({13-k})', f'v_max3_u32 v6, v{o}, v{o+1}, v{o+2}', f'v_max_u32 v6, v6, v{o+3}', 'v_cmp_eq_u32 vcc, -1, v6']
for k in range(14): e(o_load(k))
if OM: e('\n'.join(o_chk(0)))
for k in range(14):
    o = OF + 4*k
    m = [f'v_mfma_f32_16x16x32_bf16 {vr(OC+4*t,4)}, {vr(WF + 16*(k%10) + 4*t, 4)}, {vr(o,4)}, {"0" if k == 0 else vr(OC+4*t,4)}' for t in range(4)]
    rd = wo_reads(k + 9) if 1 <= k <= 4 else []
    if k == 10: e('s_waitcnt lgkmcnt(0)')
    if OM:
        e(f's_cbranch_vccnz L_or{k}\nL_og{k}:')
        c = o_chk(k + 1) if k < 13 else ['', '', '', '']
        e('\n'.join([m[0]] + rd[:4] + [m[1]] + rd[4:] + [m[2], c[0], c[1], c[2], m[3], c[3]]))
    else:
        e(f's_waitcnt vmcnt({13-k})'); e('\n'.join(m + rd))
stamp(12)
e('s_nop 4')
for i in range(8): e(f'v_cvt_pk_bf16_f32 v{16+i}, v{OC+2*i}, v{OC+2*i+1}')
e(f"""ds_write_b128 v{vBw}, {vr(16,4)}
ds_write_b128 v{a0}, {vr(20,4)}
ds_read_b128 {vr(24,4)}, v{vBr}
ds_read_b128 {vr(28,4)}, v{vBr} offset:1024
s_or_b32 s{sA}, s2, s{S_W}
s_waitcnt lgkmcnt(1)
buffer_store_dwordx4 {vr(24,4)}, v{vOut}, {sr(SRD_C)}, s{sOut} offen {OUTM2}
s_waitcnt lgkmcnt(0)
buffer_store_dwordx4 {vr(28,4)}, v{vOut}, {sr(SRD_C)}, s{sOut+1} offen {OUTM2}
s_cbranch_scc1 L_noepoch""")
publish(sA, 6)
e('L_noepoch:')
if OPT['prof']:
    e('s_waitcnt vmcnt(0)')
stamp(13)
prof_out()
e('L_end:\ns_endpgm')
if OM:
    for k in range(14):
        c = o_chk(k)
        e(f'''L_or{k}:
        s_call_b64 s[90:91], L_re{k}
        {c[0]}
        L_oc{k}:
        {c[1]}
        {c[2]}
        {c[3]}
        s_cbranch_vccz L_og{k}
        {o_load(k)}
        s_sub_u32 s{S_BOUND}, s{S_BOUND}, 1
        s_waitcnt vmcnt(0)
        s_cbranch_scc0 L_oc{k}
        s_mov_b32 s{S_BOUND}, 0
        s_branch L_og{k}''')
    for k in range(14): e(f'L_re{k}:\n{o_load(k)}')
    e('s_setpc_b64 s[90:91]')
def ilen(l):
    l = l.split(';')[0].strip()
    if not l or l.endswith(':'): return 0
    op = l.split()[0]
    if op.startswith(('buffer_', 'global_', 'ds_', 'v_mfma', 'v_smfmac', 'v_pk_', 's_load', 'v_cvt_pk', 'v_lshl_', 'v_perm', 'v_bfe', 'v_max3', 'v_align')): return 8
    return 8 if '0x' in l else 4
pads = []
if OPT['touch']:
    for n in ('ssm', 'mha'):
        new = []; acc = OPT['touch'] if n == 'mha' else 0; loop = None
        for l in SEC[n]:
            t = l.strip()
            if t in ('L_att:', 'L_cv:'):
                pads.append(len(pads)); new += [f'L_pad{pads[-1]}:', f'    s_cbranch_execz L_nxt{pads[-1]}']; acc = 0
            if t in ('L_att:', 'L_cv:', 'L_kg:'): loop = t[:-1]
            if acc >= OPT['touch'] and (loop is None or loop == 'L_kg' or acc >= 1200) and not t.endswith(':') and 'exec' not in ''.join(new[-3:]).replace('execz', ''):
                pads.append(len(pads)); new += [f'L_pad{pads[-1]}:', f'    s_cbranch_execz L_nxt{pads[-1]}']; acc = 0
            if loop and t in (f's_cbranch_scc1 {loop}', f's_branch {loop}'): loop = None
            if t == 'L_gemm_v:' or t == 'L_gemm_done:': acc = OPT['touch']
            new.append(l); acc += ilen(l)
        SEC[n] = new
sec('idle')
e('L_ssm_idle:')
arrive(1)
e(f's_lshl2_add_u32 s60, s61, s{S_W}\ns_mov_b64 exec, 0')
for i in range(min(16, len(pads))):
    e(f's_cmp_eq_u32 s60, {i}\ns_cbranch_scc1 L_pad{i}')
e('L_idle_end:\ns_endpgm')
txt_fix = {f'L_nxt{i}': (f'L_pad{i+16}' if i + 16 < len(pads) else 'L_idle_end') for i in pads}
for n in SEC:
    SEC[n] = [(l.rsplit(' ', 1)[0] + ' ' + txt_fix[l.rsplit(' ', 1)[1]]) if 'L_nxt' in l else l for l in SEC[n]]
print('pads', len(pads), file=sys.stderr)
ORDER = ['pro', 'ssm0', 'idle', 'mha0', 'ssm', 'mha', 'cold', 'gt', 'fb']
SEC.setdefault('cold', [])
hdr = open('header.txt').read()
txt = hdr + f'''; @launch grid=(256,1,1) block=(512,1,1) lds={L_TOT}
.amdgcn_target "amdgcn-amd-amdhsa--gfx950"
.text
.globl {KN}
.p2align 8
.type {KN},@function
{KN}:
''' + '\n'.join(sum((SEC[n] for n in ORDER), [])) + f'''
.section .rodata,"a"
.p2align 6
.amdhsa_kernel {KN}
  .amdhsa_next_free_vgpr 256
  .amdhsa_next_free_sgpr 102
  .amdhsa_accum_offset 256
  .amdhsa_group_segment_fixed_size 0
  .amdhsa_kernarg_size 104
  .amdhsa_user_sgpr_count 2
  .amdhsa_user_sgpr_kernarg_segment_ptr 1
  .amdhsa_system_sgpr_workgroup_id_x 1
.end_amdhsa_kernel
'''
open(sys.argv[1], 'w').write(txt)
```

```python
import sys, struct
def fl(x): return hex(struct.unpack('<I', struct.pack('<f', x))[0])

KN = 'concat_heads__ssm_conv_s4d__softmax_full_mha__prompt_kernel'
OPT = dict(al=1, alr=6, fw=0, rsleep=0, hsleep=0, ord=3, nb=0, tb=13, tq=1, chkk=99, uw=-2, cw=0, s6=5, tskip=1, ones=1, pa=1, pr=2, pf=2, wgf=2, ax=0, bp=3, qa=7, n0=4, ilv=8, tlb=0, ulook=1, kgp=1, pad=0, ypad=0, omode=3, ksleep=0, usleep=4, obar=5, osleep=0, pubk=8, abl=0, touch=0, gs=0, kgw=0, xg=5, gx=0, pm=2, ps=0, rt=0, upub=1, kgx=0, outsc=0, ysleep=8, wodepth=4, wq_mid=0, pollk=99, rd=-1, rdrole=0, only=0, safe=0, rot=0, prof=0, fs=128, force_fb=0, wq_early=7, prio=1)
for a in sys.argv[2:]:
    k, v = a.split('=')
    assert k in OPT, k
    OPT[k] = int(v, 0)

FS = OPT['fs']
FSH = FS.bit_length() - 1
F_KV = 0x1000
F_O = F_KV + 1024 * FS
F_U = F_O + 1024 * FS
F_Y = F_U + 1024 * FS
F_H = F_Y + 1024 * FS
WS_K = 0x100000
WS_V = 0x300000
WS_O = 0x500000
WS_U = 0x700000
WS_Y = 0x900000
QS = 16384 + OPT['pad']; KS = 2 * QS; YS = 4096 + OPT['ypad']
S_KS = 57
WS_PROF = 0xb00000
WS_SIZE = 0xc00000
L_SSM = 1024
L_W = 57344
L_RB = 65536
L_X = 114688
L_TOT = 163840
TROW = 288
TABSZ = 38 * TROW
L_TAB = L_SSM
P_SZ = 2 * TABSZ
P_UC = 1536
UC_S = 2240
P_KD = TABSZ + 1536
P_X = TABSZ
PS = 1552
PD = 4 * PS
L_KP = L_TAB + 4 * TABSZ
assert P_UC + 4 * UC_S <= TABSZ and P_KD + 1600 <= P_SZ and P_X + 8192 <= P_SZ and L_KP % 16 == 0 and L_KP + 2 * PD <= L_W
L_WO = L_SSM

S_WV, S_W, S_HG, S_C, S_TILE, S_J, S_H, S_NONCE, S_O0, S_ROT = range(30, 40)
SRD_WS, SRD_A, SRD_B, SRD_C = 40, 44, 48, 52
S_BOUND = 56
S_T0 = 58

SEC = {}
out = None
def sec(n):
    global out
    out = SEC.setdefault(n, [])
sec('pro')
def e(s):
    for l in s.split('\n'):
        l = l.strip()
        if l:
            out.append(l if l.endswith(':') else '    ' + l)
_lab = [0]
def lab(p):
    _lab[0] += 1
    return f'L_{p}_{_lab[0]}'
def vr(a, n):
    return f'v[{a}:{a+n-1}]' if n > 1 else f'v{a}'
def srd(d, b, n):
    e(f's_mov_b64 s[{d}:{d+1}], s[{b}:{b+1}]\ns_mov_b32 s{d+2}, {n}\ns_mov_b32 s{d+3}, 0x20000')
def sr(d): return f's[{d}:{d+3}]'

V_LANE, V_T, V_OWN, V_GRP, V_PROF = 0, 1, 2, 3, 4

ROLE = [0]
def stamp(i):
    if OPT['rd'] == i and OPT['rdrole'] == ROLE[0]:
        e('s_memrealtime s[100:101]\ns_waitcnt lgkmcnt(0)')
    if OPT['prof'] > (i >= 14):
        e(f's_mem{"real" if OPT["rt"] else ""}time s[96:97]\ns_waitcnt lgkmcnt(0)\ns_sub_u32 s96, s96, s{98 if OPT["rt"] else S_T0}\nv_writelane_b32 v{V_PROF}, s96, {i}')
def prof_out():
    if OPT['rd'] >= 0 and OPT['rdrole'] == ROLE[0]:
        l = lab('pad')
        if ROLE[0] == 0 and not OPT['obar']: e('s_barrier')
        if OPT['rd'] == 98:
            e(f'''s_not_b32 s100, s100
            v_mov_b32 v5, s100
            v_mov_b32 v6, 0
            s_mov_b64 exec, 1
            global_atomic_umax v6, v5, s[26:27]
            s_waitcnt vmcnt(0)
            s_sleep 127
            s_sleep 127
            s_sleep 127
            s_sleep 127
            s_sleep 127
            global_load_dword v5, v6, s[26:27] sc1
            s_waitcnt vmcnt(0)
            v_readfirstlane_b32 s100, v5
            s_not_b32 s100, s100''')
        e(f'''s_add_u32 s100, s100, 6000
        {l}:
        s_sleep 1
        s_memrealtime s[96:97]
        s_waitcnt lgkmcnt(0)
        s_sub_u32 s96, s96, s100
        s_cmp_lt_i32 s96, 0
        s_cbranch_scc1 {l}''')
    if OPT['prof']:
        e(f'''s_memrealtime s[96:97]
        s_waitcnt lgkmcnt(0)
        v_writelane_b32 v{V_PROF}, s96, 31
        v_writelane_b32 v{V_PROF}, s98, 30
        s_lshl_b32 s96, s2, 3
        s_add_u32 s96, s96, s{S_WV}
        s_lshl_b32 s96, s96, 7
        s_add_u32 s96, s96, {WS_PROF}
        v_lshlrev_b32 v{V_T}, 2, v{V_LANE}
        s_mov_b32 exec_hi, 0
        buffer_store_dword v{V_PROF}, v{V_T}, {sr(SRD_WS)}, s96 offen
        s_mov_b64 exec, -1''')

def arrive(stage):
    e(f'v_mov_b32 v{V_T}, {stage}\nds_write_b32 v{V_OWN}, v{V_T}')
def lwait(stage, addr=V_GRP, sleep=0):
    l = lab('lw')
    e(f'{l}:')
    if sleep: e(f's_sleep {sleep}')
    e(f'''ds_read_b32 v{V_T}, v{addr}
    s_waitcnt lgkmcnt(0)
    v_cmp_gt_u32 vcc, {stage}, v{V_T}''')
    if OPT['safe']:
        d = lab('ld')
        e(f'''s_cbranch_vccz {d}
        s_sub_u32 s{S_BOUND}, s{S_BOUND}, 1
        s_cbranch_scc0 {l}
        s_mov_b32 s{S_BOUND}, 0
        {d}:''')
    else:
        e(f's_cbranch_vccnz {l}')
def sync(stage):
    arrive(stage); lwait(stage)
def poll(voff, first_issued=False, sleep=0, reg=V_T):
    l, d, m = lab('pl'), lab('pd'), lab('pm')
    if first_issued == 2:
        e(f's_waitcnt vmcnt(0)\nv_cmp_ne_u32 vcc, s{S_NONCE}, v{reg}\ns_cbranch_vccnz {l}\n{d}:')
        cur = [n for n in SEC if SEC[n] is out][0]
        sec('cold')
        e(f'''{l}:
        buffer_load_dword v{reg}, v{voff}, {sr(SRD_WS)}, 0 offen sc1
        s_waitcnt vmcnt(0)
        v_cmp_ne_u32 vcc, s{S_NONCE}, v{reg}
        s_cbranch_vccz {d}
        s_sub_u32 s{S_BOUND}, s{S_BOUND}, 1
        s_cbranch_scc0 {l}
        s_mov_b32 s{S_BOUND}, 0
        s_branch {d}''')
        sec(cur)
        return
    if first_issued: e(f's_branch {m}')
    e(f'{l}:')
    if sleep: e(f's_sleep {sleep}')
    e(f'''buffer_load_dword v{reg}, v{voff}, {sr(SRD_WS)}, 0 offen sc1
    {m}:
    s_waitcnt vmcnt(0)
    v_cmp_ne_u32 vcc, s{S_NONCE}, v{reg}
    s_cbranch_vccz {d}
    s_sub_u32 s{S_BOUND}, s{S_BOUND}, 1
    s_cbranch_scc0 {l}
    s_mov_b32 s{S_BOUND}, 0
    {d}:''')
def publish(soff, tmp):
    if OPT['fw']:
        e(f'''v_mov_b32 v{V_T}, s{S_NONCE}
        v_lshlrev_b32 v{tmp}, 2, v{V_LANE}
        s_mov_b64 exec, {hex((1 << OPT['fw']) - 1)}
        buffer_store_dword v{V_T}, v{tmp}, {sr(SRD_WS)}, s{soff} offen sc1
        s_mov_b64 exec, -1'''.replace('s_mov_b64 exec, 0xffffffff', 's_mov_b32 exec_hi, 0'))
        return
    e(f'''v_mov_b32 v{V_T}, s{S_NONCE}
    v_mov_b32 v{tmp}, 0
    s_mov_b64 exec, 1
    buffer_store_dword v{V_T}, v{tmp}, {sr(SRD_WS)}, s{soff} offen sc1
    s_mov_b64 exec, -1''')
def swap23(d, s, t):
    e(f'''v_lshrrev_b32 v{t}, 1, v{s}
    v_xor_b32 v{t}, v{t}, v{s}
    v_and_b32 v{t}, 4, v{t}
    v_mul_u32_u24 v{t}, 3, v{t}
    v_xor_b32 v{d}, v{t}, v{s}''')
def rot_next(s):
    e(f's_add_u32 s{s}, s{s}, 1\ns_cmp_eq_u32 s{s}, 7\ns_cselect_b32 s{s}, 0, s{s}')

e(f'''s_cmp_ge_u32 s2, 256
s_cbranch_scc1 L_end''')
if OPT['prof']:
    e(f's_memtime s[{S_T0}:{S_T0+1}]\ns_memrealtime s[98:99]\nv_mov_b32 v{V_PROF}, 0')
if OPT['rd'] >= 0: e('s_memrealtime s[100:101]')
e(f'''s_load_dwordx16 s[4:19], s[0:1], 0
s_load_dwordx8 s[20:27], s[0:1], 64
s_load_dwordx2 s[28:29], s[0:1], 96
v_lshrrev_b32 v{V_OWN}, 6, v0
v_and_b32 v{V_LANE}, 63, v0
v_readfirstlane_b32 s{S_WV}, v{V_OWN}
v_lshlrev_b32 v{V_OWN}, 2, v{V_OWN}
v_mov_b32 v{V_T}, 0
ds_write2_b32 v{V_OWN}, v{V_T}, v{V_T} offset1:8
v_and_b32 v{V_GRP}, 3, v{V_LANE}
v_lshlrev_b32 v{V_GRP}, 2, v{V_GRP}
s_and_b32 s{S_HG}, s2, 1
s_bfe_u32 s60, s2, 0x20001
s_bfe_u32 s{S_C}, s2, 0x30003
s_lshr_b32 s61, s2, 6
s_lshl2_add_u32 s{S_TILE}, s60, s61
s_lshl1_add_u32 s{S_J}, s{S_TILE}, s{S_HG}
s_lshl3_add_u32 s{S_H}, s{S_HG}, s{S_C}
s_and_b32 s{S_W}, s{S_WV}, 3
s_mov_b32 s{S_BOUND}, 0x40000
s_mov_b32 s{S_KS}, {KS}
s_cmp_lt_u32 s{S_WV}, 4
s_cbranch_scc1 L_mha''')

VX = 144; VACC = 96; VWF = 32; VPK = 128
VV, VK, VS, VO, VQ = 32, 64, 96, 160, 224
vWd = [5, 6]; vXd = [7, 8, 9, 10]; vXr = [11, 12, 13, 14]; vWb, vW0, vW1 = 15, 16, 17
vRho, vG, vSt, vQd, vQr, vFl, vA, vB, vC = 18, 19, 20, 21, 22, 23, 24, 25, 26
vKo0, vKo1, vVo, vIdx = 27, 28, 29, 30
sXb, sWb, sCh, sCw, sLx, sTmp, sTmp2, sSt, sS1, sS2, sFl = range(60, 71)
sK, sV, sIt = 71, 72, 73
sFo, sO0, sO1 = 84, 85, 86
vOs, vQw = vRho, vG
vRb = [7, 8, 9]; vQx = [11, 12, 13]; vRr = 10
sMask = 74
sOdd = 76

sec('mha0')
e('L_mha:')
if OPT['prio']: e(f"s_setprio {OPT['pm']}")
e(f'''s_mul_i32 s{S_O0}, s{S_H}, 7
s_lshr_b32 s{S_O0}, s{S_O0}, 1''')
e(f'''v_lshrrev_b32 v{vA}, 3, v{V_LANE}          ; r
v_and_b32 v{vB}, 7, v{V_LANE}                    ; p
v_lshlrev_b32 v{vC}, 1, v{vA}
v_and_b32 v{vC}, 4, v{vC}
v_xor_b32 v{vC}, v{vC}, v{vB}
v_lshlrev_b32 v{vC}, 4, v{vC}
v_mul_u32_u24 v{vWd[0]}, 2688, v{vA}
v_add_u32 v{vWd[0]}, v{vWd[0]}, v{vC}
v_add_u32 v{vWd[1]}, {8*2688-1024}, v{vWd[0]}
v_lshrrev_b32 v{vC}, 1, v{vA}
v_xor_b32 v{vC}, v{vC}, v{vB}
v_lshlrev_b32 v{vC}, 4, v{vC}
v_mul_u32_u24 v{vA}, 896, v{vA}
v_add_u32 v{vXd[0]}, v{vA}, v{vC}
v_xor_b32 v{vC}, 64, v{vC}
v_add_u32 v{vXd[1]}, v{vA}, v{vC}
v_add_u32 v{vXd[1]}, {7168-1024}, v{vXd[1]}
v_add_u32 v{vXd[2]}, {2*(7168-1024)}, v{vXd[0]}
v_add_u32 v{vXd[3]}, {2*(7168-1024)}, v{vXd[1]}
s_lshl2_add_u32 s{sXb}, s{S_TILE}, s{S_W}
s_lshl_b32 s{sFl}, s{S_H}, 6
s_add_u32 s{sFl}, s{sFl}, s{S_TILE if OPT['wgf'] else sXb}
s_lshl_b32 s{sFl}, s{sFl}, {FSH}
s_add_u32 s{sFl}, s{sFl}, {F_KV}
s_mul_i32 s{sXb}, s{sXb}, {32*896}
s_mul_i32 s{sTmp2}, s{S_HG}, 3
s_lshr_b32 s{sTmp}, s2, 6
s_add_u32 s{sTmp2}, s{sTmp2}, s{sTmp}
s_mul_i32 s{sWb}, s{S_HG}, 7
s_add_u32 s{sWb}, s{sWb}, s{S_C}
s_add_u32 s{sWb}, s{sWb}, 7
s_cmp_eq_u32 s{S_C}, 7
s_cselect_b32 s{sWb}, {'s%d' % sTmp2 if OPT['tq'] else '0x100000'}, s{sWb}
s_cselect_b32 s{sS1}, 1, s{S_W}
s_lshl_b32 s{sWb}, s{sWb}, 7
s_mul_i32 s{sTmp}, s{S_W}, {16*2688}
s_add_u32 s{sWb}, s{sWb}, s{sTmp}
s_mul_i32 s{sLx}, s{S_W}, 12288
s_add_u32 s{sLx}, s{sLx}, {L_X}
s_lshl_b32 s{sS1}, s{sS1}, 11
s_add_u32 s{sS1}, s{sS1}, {L_W}
s_mov_b32 s{SRD_A+2}, {2048*896}
s_mov_b32 s{SRD_A+3}, 0x20000
s_mov_b32 s{SRD_B+2}, {448*1344*2}
s_mov_b32 s{SRD_B+3}, 0x20000
s_mov_b32 m0, s{sLx}
s_waitcnt lgkmcnt(0)
s_mov_b64 s[{SRD_A}:{SRD_A+1}], s[18:19]
s_mov_b64 s[{SRD_B}:{SRD_B+1}], s[20:21]
s_load_dword s{S_NONCE}, s[28:29], 0''')
stamp(22)
sWo = 88
def w_lines(st):
    return [f's_add_u32 m0, s{sS1}, {8192*st}', f's_add_u32 s{sWo+st}, s{sWb}, {64*2688*st}'] + \
           [f'buffer_load_dwordx4 v{vWd[i]}, {sr(SRD_B)}, s{sWo+st} offen offset:{1024*i} lds' for i in range(2)]
def x_chunk(st):
    return [f's_add_u32 m0, s{sLx}, {(st%3)*4096 - 128*st}', 's_nop 0'] + \
           [f'buffer_load_dwordx4 v{vXd[i]}, {sr(SRD_A)}, s{sXb} offen offset:{1024*i + 128*st} lds' for i in range(4)]
DM = []
for l in [x_chunk(0), w_lines(0)] + [w_lines(i) for i in range(1, 7)] + [x_chunk(1), x_chunk(2)]:
    DM += [l[:3]] + [[x] for x in l[3:]]
DM[0] = DM[0][2:]
for i, g in enumerate(DM[:OPT['n0']]):
    if i == OPT['nb']:
        e('s_barrier'); stamp(23)
        if OPT['only'] == 1: e('s_endpgm')
    e('\n'.join(g))
DM = DM[OPT['n0']:]
stamp(24)
if OPT['ord'] not in (1, 3): e('s_branch L_mha1')
sec('mha')
e('L_mha1:')
stamp(25)
sec('tmp')
srd(SRD_WS, 28, WS_SIZE)
ONES = f'''s_bitcmp1_b32 s{S_H}, 0
s_cselect_b32 s{sTmp}, 0, 7
v_cmp_eq_u32 vcc, s{sTmp}, v{vA}
s_lshl_b32 s{sTmp}, s{S_O0}, 1
s_sub_u32 s{sTmp}, s{S_HG}, s{sTmp}
s_add_u32 s{sTmp}, s{sTmp}, 112
v_mov_b32 v{vB}, s{sTmp}
v_cndmask_b32 v{vA}, v{vA}, v{vB}, vcc
''' if OPT['ones'] else ''
FIX = f'''v_cmp_lt_u32 vcc, 7, v{vB}
s_lshl3_add_u32 s{sTmp}, s{S_HG}, 7
v_mov_b32 v{vB}, s{sTmp}
v_cndmask_b32 v{vC}, v{vC}, v{vB}, vcc
''' if OPT['ones'] else ''
FOM = f'''s_lshl_b32 s{sFo}, s{sTmp2}, 4
s_add_u32 s{sFo}, s{sFo}, s{S_H}
s_lshl_b32 s{sFo}, s{sFo}, {FSH}
s_add_u32 s{sFo}, s{sFo}, {F_O}
''' if OPT['omode'] != 3 else ''
e(f'''v_and_b32 v{vA}, 31, v{V_LANE}
v_lshrrev_b32 v{vG}, 5, v{V_LANE}''')
swap23(vRho, vA, vB)
e(f'''v_bfe_u32 v{vB}, v{vRho}, 1, 3
v_xor_b32 v{vB}, v{vB}, v{vG}
v_lshlrev_b32 v{vB}, 4, v{vB}
v_lshl_add_u32 v{vB}, v{vRho}, 7, v{vB}
v_add_u32 v{vXr[0]}, s{sLx}, v{vB}
v_xor_b32 v{vXr[1]}, 32, v{vXr[0]}
v_xor_b32 v{vXr[2]}, 64, v{vXr[0]}
v_xor_b32 v{vXr[3]}, 0x60, v{vXr[0]}
v_and_b32 v{vB}, 3, v{V_LANE}                     ; cc
v_lshrrev_b32 v{vC}, 1, v{vB}
v_and_b32 v{vQd}, 1, v{vB}
v_lshl_or_b32 v{vC}, v{vQd}, 1, v{vC}
v_bfe_u32 v{vQd}, v{V_LANE}, 4, 1
v_lshl_or_b32 v{vB}, v{vQd}, 2, v{vB}
v_lshl_or_b32 v{vC}, v{vQd}, 2, v{vC}
v_bfe_u32 v{vQd}, v{V_LANE}, 2, 2                  ; r'
v_lshl_or_b32 v{vFl}, v{vG}, 3, v{vQd}             ; 8g + r'
v_lshlrev_b32 v{vQr}, 6, v{vFl}
v_lshl_add_u32 v{vQr}, v{vC}, 3, v{vQr}
v_add_u32 v{vQr}, {L_X + 4096}, v{vQr}
s_cmp_eq_u32 s{S_HG}, 0
s_cselect_b64 vcc, -1, 0
v_cndmask_b32 v{vB}, v{vB}, v{vC}, vcc             ; K slabs use the exchanged order, V slabs the natural one
v_lshlrev_b32 v{vWb}, 7, v{vFl}
v_lshl_add_u32 v{vWb}, v{vB}, 3, v{vWb}
v_lshrrev_b32 v{vQd}, 1, v{vQd}
v_lshl_add_u32 v{vWb}, v{vQd}, 6, v{vWb}
v_add_u32 v{vW0}, {L_W}, v{vWb}
v_lshlrev_b32 v{vB}, 4, v{vRho}
v_mad_u32_u24 v{vB}, v{vG}, s{S_KS}, v{vB}
v_lshrrev_b32 v{vC}, 2, v{vA}
v_mul_u32_u24 v{vC}, {QS}, v{vC}
v_lshl_add_u32 v{vC}, v{vG}, 6, v{vC}
v_and_b32 v{vQd}, 3, v{vA}
v_lshl_add_u32 v{vC}, v{vQd}, 4, v{vC}
v_cndmask_b32 v{vSt}, v{vC}, v{vB}, vcc
s_lshl2_add_u32 s{sTmp}, s{S_TILE}, s{S_W}
s_lshl_b32 s{sTmp2}, s{sTmp}, 9
s_add_u32 s{sTmp2}, s{sTmp2}, {WS_K}
s_lshl_b32 s{sTmp}, s{sTmp}, 8
s_add_u32 s{sTmp}, s{sTmp}, {WS_V}
s_movk_i32 s{sS2}, 128
s_cmp_eq_u32 s{S_HG}, 0
s_cselect_b32 s{sSt}, s{sTmp2}, s{sTmp}
s_cselect_b32 s{sS2}, {2*KS}, s{sS2}
s_mul_i32 s{sTmp}, s{S_C}, {8*KS}
s_add_u32 s{sSt}, s{sSt}, s{sTmp}
v_lshrrev_b32 v{vB}, 2, v{V_LANE}
v_mul_u32_u24 v{vB}, 2688, v{vB}
v_lshl_add_u32 v{vQd}, v{vQd}, 4, v{vB}
s_lshl_b32 s82, s{S_O0}, 4
s_mul_i32 s{sTmp}, s{S_W}, {16*2688}
s_add_u32 s82, s82, s{sTmp}
s_lshr_b32 s{sTmp}, s{S_O0}, 3
s_add_u32 s{sTmp2}, s{S_O0}, 3
s_lshr_b32 s{sTmp2}, s{sTmp2}, 3
s_sub_u32 s{sTmp2}, s{sTmp2}, s{sTmp}
v_bfe_u32 v{vC}, v{V_LANE}, 4, 1
v_mul_u32_u24 v{vC}, s{sTmp2}, v{vC}
v_lshl_add_u32 v{vC}, v{vG}, 3, v{vC}
v_add_u32 v{vC}, s{sTmp}, v{vC}
v_and_b32 v{vB}, 15, v{V_LANE}
{FIX}v_and_b32 v{vB}, {3 if OPT['wgf'] else 15}, v{V_LANE}
v_lshl_add_u32 v{vC}, v{vC}, 6, v{vB}
s_lshl_b32 s{sTmp}, s{S_W}, {2 if OPT['wgf'] else 4}
v_add_u32 v{vC}, s{sTmp}, v{vC}
v_lshlrev_b32 v{vC}, {FSH}, v{vC}
v_add_u32 v{vFl}, {F_KV}, v{vC}
v_lshlrev_b32 v{vKo0}, 4, v{vA}
v_mad_u32_u24 v{vKo0}, v{vG}, s{S_KS}, v{vKo0}
v_add_u32 v{vKo1}, {2*KS}, v{vKo0}
v_lshrrev_b32 v{vA}, 2, v{vRho}
{ONES}v_mul_u32_u24 v{vA}, {QS}, v{vA}
v_lshl_add_u32 v{vA}, v{vG}, 6, v{vA}
v_and_b32 v{vB}, 3, v{V_LANE}
v_lshl_add_u32 v{vVo}, v{vB}, 4, v{vA}
v_mov_b32 v{vIdx}, 0xdddddddd
s_mul_i32 s{sTmp}, s{S_O0}, {KS}
s_lshl_b32 s{sK}, s{S_W}, 13
s_add_u32 s{sK}, s{sK}, s{sTmp}
s_add_u32 s{sK}, s{sK}, {WS_K}
s_lshl_b32 s{sV}, s{S_W}, 12
s_add_u32 s{sV}, s{sV}, s{sTmp}
s_add_u32 s{sV}, s{sV}, {WS_V}
s_lshl2_add_u32 s{sTmp2}, s{S_TILE}, s{S_W}
{FOM}s_lshl_b32 s{sTmp2}, s{sTmp2}, 9
s_add_u32 s{sO0}, s{sTmp}, s{sTmp2}
s_add_u32 s{sO0}, s{sO0}, {WS_O}
s_add_u32 s{sO1}, s{sO0}, {2*KS}
s_bitcmp1_b32 s{S_H}, 0
s_cselect_b64 s[{sOdd}:{sOdd+1}], -1, 0
v_mov_b32 v{vC}, 0x3e8b97f6
v_cmp_gt_u32 vcc, 32, v{V_LANE}
s_and_b64 s[78:79], vcc, s[{sOdd}:{sOdd+1}]
s_nor_b64 s[80:81], vcc, s[{sOdd}:{sOdd+1}]
v_cndmask_b32 v{vA}, v{vC}, 0, s[78:79]
v_cndmask_b32 v{vB}, v{vC}, 0, s[80:81]
s_mov_b32 s78, 0x3f803f80
s_mov_b32 s79, s78
v_xor_b32 v{vW1}, 64, v{vW0}
v_lshlrev_b32 v{vOs}, 4, v{vRho}
v_mad_u32_u24 v{vOs}, v{vG}, s{S_KS}, v{vOs}
v_lshl_add_u32 v{vQw}, v{V_LANE}, 4, s{sLx}''')
srd(SRD_C, 28, WS_SIZE)
def o_stores(r0, r1, tag):
    e(f'''s_bitcmp1_b32 s{S_H}, 0
    s_cbranch_scc1 L_ost_odd{tag}
    buffer_store_dwordx4 {vr(r0,4)}, v{vOs}, {sr(SRD_WS)}, s{sO0} offen sc1
    s_mov_b32 exec_hi, 0
    buffer_store_dwordx4 {vr(r1,4)}, v{vOs}, {sr(SRD_WS)}, s{sO1} offen sc1
    s_not_b64 exec, exec
    buffer_store_dwordx2 {vr(r1,2)}, v{vOs}, {sr(SRD_WS)}, s{sO1} offen sc1
    s_branch L_ost_done{tag}
    L_ost_odd{tag}:
    buffer_store_dwordx4 {vr(r1,4)}, v{vOs}, {sr(SRD_WS)}, s{sO1} offen sc1
    s_mov_b32 exec_hi, 0
    buffer_store_dwordx2 {vr(r0+2,2)}, v{vOs}, {sr(SRD_WS)}, s{sO0} offen offset:8 sc1
    s_not_b64 exec, exec
    buffer_store_dwordx4 {vr(r0,4)}, v{vOs}, {sr(SRD_WS)}, s{sO0} offen sc1
    L_ost_done{tag}:
    s_mov_b64 exec, -1''')
GS = 0
AB = [l for l in SEC.pop('tmp') if not l.strip().startswith(';')]
sec('mha')
def scc_pending(i):
    return i < len(AB) and AB[i].strip().startswith(('s_cselect', 's_mov_b32 s75'))
pos = 0
for g in DM:
    n = pos + OPT['ilv']
    while scc_pending(n): n += 1
    e('\n'.join(AB[pos:n])); pos = n
    e('\n'.join(g))
e('\n'.join(AB[pos:]))
stamp(0)
def x_reads(s):
    return [f'ds_read_b128 {vr(VX + 16*s + 4*ks, 4)}, v{vXr[ks]} offset:{(s%3)*4096}' for ks in range(4)]
e('s_waitcnt vmcnt(22)')
e('\n'.join(x_reads(0)))
e('s_waitcnt vmcnt(8) lgkmcnt(0)')
arrive(1)
stamp(1)
e('\n'.join(x_chunk(3)))
e('s_waitcnt vmcnt(8)')
e('\n'.join(x_reads(1)))
lwait(1)
e(f's_add_u32 s{S_NONCE}, s{S_NONCE}, 1')
stamp(2)
def w_reads(s):
    r = []
    for ks in range(4):
        for ct in range(2):
            for hf in range(2):
                d = VWF + 32 * (s & 1) + 8 * ks + 4 * ct + 2 * hf
                r.append(f'ds_read_b64_tr_b16 {vr(d,2)}, v{(vW0, vW1)[ct]} offset:{s*8192 + ks*2048 + hf*512}')
    return r
if OPT['tskip']: e(f's_cmp_eq_u32 s{S_C}, 7\ns_cbranch_scc1 L_gemm_t')
e('\n'.join(w_reads(0)))
e(f'''s_waitcnt lgkmcnt(0)
s_cmp_lg_u32 s{S_HG}, 0
s_cbranch_scc1 L_gemm_v''')
sQb, sQc = 82, 83
NE = OPT['wq_early']
def wq_dma(st):
    return [f's_add_u32 m0, s{sLx}, {4096 + 1024*st}\ns_add_u32 s83, s82, {64*2688*st}', '', f'buffer_load_dwordx4 v{vQd}, {sr(SRD_B)}, s83 offen lds']
SPIN = []
def gemm1(vpart):
    for s in range(7):
        M = []
        for ks in range(4):
            for ct in range(2):
                wf = vr(VWF + 32 * (s & 1) + 8 * ks + 4 * ct, 4); xf = vr(VX + 16 * s + 4 * ks, 4)
                acc = vr(VACC + 16 * ct, 16)
                a, b = (xf, wf) if vpart else (wf, xf)
                M.append(f'v_mfma_f32_32x32x16_bf16 {acc}, {a}, {b}, {"0" if s == 0 and ks == 0 else acc}')
        gaps = [[] for _ in range(8)]
        tag = f'{"v" if vpart else "k"}{s}'
        pre = []
        dm = []
        def add(l): dm.extend([(l[0], l[2])] + [(None, x) for x in l[3:]])
        if s <= 2: add(x_chunk(s + 4))
        if s == 3:
            for i in range(min(NE, 4)): add(wq_dma(i))
        if s == 4:
            for i in range(4, NE): add(wq_dma(i))
        n = {0: 8, 1: 8, 2: 8, 3: 4 + min(NE, 4), 4: NE}.get(s)
        for i, (m, l) in enumerate(dm):
            if m: (pre if i == 0 else gaps[i - 1]).append(m)
            gaps[i].append(l)
        if s < 6:
            wr = w_reads(s + 1)
            for i, (p, q) in enumerate(((0, 3), (3, 6), (6, 9), (9, 12), (12, 16))): gaps[i] += wr[p:q]
            if s <= 4: gaps[OPT['xg']] += [f's_waitcnt vmcnt({n})'] + x_reads(s + 2)
            gaps[7] += [f's_waitcnt lgkmcnt({4 if s == 4 and OPT["s6"] != 4 else 0})']
        if s == OPT['s6'] and (OPT['uw'] == 6 or OPT['cw'] == 6): gaps[6] += [f'v_mov_b32 v{V_T}, 6', f'ds_write_b32 v{V_OWN}, v{V_T}']
        if s == 5:
            gaps[7] += [f'v_add_u32 v31, 16, v{V_GRP}', f'ds_read_b32 v31, v31']
        if s == 6 and NE == 7:
            gaps[OPT['qa']] += ['s_waitcnt vmcnt(0)', f'v_mov_b32 v{V_T}, 7', f'ds_write_b32 v{V_OWN}, v{V_T}']
        e('\n'.join(pre))
        if OPT['gx'] & 1 or vpart == 2: M = ['s_nop 0'] * 8
        if OPT['gx'] & 2 or vpart == 2: gaps = [[x for x in g if 'tr_b16' not in x] for g in gaps]
        for i in range(8):
            e(M[i]); e('\n'.join(gaps[i]))
        stamp(14 + s)
if OPT['tskip']:
    sec('gt'); e('L_gemm_t:'); gemm1(2); e('s_branch L_gemm_done'); sec('mha')
else: SEC['gt'] = []
gemm1(False)
e('s_branch L_gemm_done\nL_gemm_v:')
gemm1(True)
e('L_gemm_done:')
stamp(3)
e(f"""s_add_u32 s{sS1}, s{sSt}, s{sS2}
s_add_u32 s{sXb}, s{sSt}, {4*KS}
s_add_u32 s{sCw}, s{sS1}, {4*KS}
s_cmp_eq_u32 s{S_C}, 7
s_waitcnt lgkmcnt(0)
s_cbranch_scc1 L_nokv
s_nop 4""")
for q, so in enumerate((sSt, sS1, sXb, sCw)):
    for i in range(4*q, 4*q+4):
        e(f'v_cvt_pk_bf16_f32 v{VPK + i}, v{VACC + 2*i}, v{VACC + 2*i + 1}')
    e(f'buffer_store_dwordx4 {vr(VPK+4*q,4)}, v{vSt}, {sr(SRD_WS)}, s{so} offen sc1')
if OPT['ones']:
    e(f'''s_branch L_kvst
    L_nokv:
    v_mov_b64 v[128:129], s[78:79]
    v_mov_b64 v[130:131], s[78:79]
    v_lshlrev_b32 v132, 4, v{V_LANE}
    s_lshl2_add_u32 s{sTmp}, s{S_TILE}, s{S_W}
    s_lshl_b32 s{sTmp}, s{sTmp}, 8
    s_mul_i32 s{sTmp2}, s{S_HG}, {QS}
    s_add_u32 s{sTmp}, s{sTmp}, s{sTmp2}
    s_add_u32 s{sTmp}, s{sTmp}, {WS_V + 112*QS}
    s_mov_b64 exec, 0xffff
    buffer_store_dwordx4 v[128:131], v132, {sr(SRD_WS)}, s{sTmp} offen sc1
    s_mov_b64 exec, -1
    L_kvst:''')
else: e('L_nokv:')
assert OPT['wgf'] and OPT['ones'] and OPT['pf'] == 2
def kv_loads(buf, i, srdn=SRD_C):
    return [f'buffer_load_dwordx4 {vr(VK + 8*buf, 4)}, v{vKo0}, {sr(srdn)}, s{sK} offen offset:{512*i} sc1',
            f'buffer_load_dwordx4 {vr(VK + 8*buf + 4, 4)}, v{vKo1}, {sr(srdn)}, s{sK} offen offset:{512*i} sc1',
            f'buffer_load_dwordx4 {vr(VV + 8*buf, 4)}, v{vVo}, {sr(srdn)}, s{sV} offen offset:{256*i} sc1',
            f'buffer_load_dwordx4 {vr(VV + 8*buf + 4, 4)}, v{vVo}, {sr(srdn)}, s{sV} offen offset:{256*i + 128} sc1']
fill = [f'v_mov_b64 {vr(VV+2*i,2)}, s[78:79]' for i in range(12, 16)] + [f'v_subrev_u32 v{vRr}, {L_X - L_RB}, v{vQw}', 's_mov_b64 s[80:81], -1']
for s in range(3):
    fill += f"""s_add_u32 s{sTmp}, s{S_W}, {1+s}
    s_and_b32 s{sTmp}, s{sTmp}, 3
    s_sub_u32 s{sTmp}, s{sTmp}, s{S_W}
    s_mul_i32 s{sTmp}, s{sTmp}, 12288
    v_add_u32 v{vQx[s]}, s{sTmp}, v{vQw}
    v_subrev_u32 v{vRb[s]}, {L_X - L_RB - 4096*s}, v{vQx[s]}""".split('\n')
def count_in(n):
    e(f"""v_mov_b32 v{V_T}, 1
    v_mov_b32 v31, 0
    s_waitcnt vmcnt({n})
    s_mov_b64 exec, 1
    ds_add_rtn_u32 v{vSt}, v31, v{V_T} offset:32
    s_mov_b64 exec, -1""")
def count_out(n):
    e(f's_waitcnt lgkmcnt({n})\nv_readfirstlane_b32 s{sTmp2}, v{vSt}\ns_cmp_lg_u32 s{sTmp2}, 3\ns_cbranch_scc1 L_nopub')
    publish(sFl, 31)
    e('L_nopub:'); stamp(5)
NM = max(NE, OPT['wq_mid'])
for st in range(NE, NM): e('\n'.join(wq_dma(st)))
stamp(4)
e(f'v_cmp_gt_u32 vcc, 1, v31\ns_cbranch_vccz L_eok\nv_add_u32 v31, 16, v{V_GRP}')
lwait(1, addr=31)
e('L_eok:')
if NE < 7:
    e('\n'.join(fill)); fill = []
    count_in(NM - NE)
    if NM == 7:
        e('s_waitcnt vmcnt(0)'); arrive(7); count_out(1)
    else:
        count_out(0)
        for st in range(NM, 7): e('\n'.join(wq_dma(st)))
        e('s_waitcnt vmcnt(0)'); arrive(7)
lwait(7)
stamp(6)
QB = [80, 84, 88, 92, 112, 116, 120, 124]
def q_reads(k):
    s, ks = divmod(k, 4)
    return [f'ds_read_b64_tr_b16 {vr(QB[k%8] + 2*hf, 2)}, v{vQr} offset:{ks*12288 + s*1024 + hf*256}' for hf in range(2)]
for k in range(6): e('\n'.join(q_reads(k)))
e('\n'.join(fill[:12])); fill = fill[12:]
zi = 0
PK = OPT['pubk'] if NE == 7 else -99
for k in range(28):
    extra = 1 if PK < k <= PK + 5 else 0
    e(f's_waitcnt lgkmcnt({min(10, 2*(27-k)) + extra})')
    e(f'v_mfma_f32_32x32x16_bf16 {vr(VACC,16)}, {vr(QB[k%8], 4)}, {vr(VX + 4*k, 4)}, {"0" if k == 0 else vr(VACC,16)}')
    if k + 6 < 28: e('\n'.join(q_reads(k + 6)))
    while zi < 40 and VX + 2*zi + 1 < VX + 4*k - 4 and zi < 2*k:
        e(f'v_mov_b64 {vr(VX + 2*zi, 2)}, 0'); zi += 1
    if k >= 22 or k < 2:
        e('\n'.join(fill[:4])); fill = fill[4:]
    if k == PK: count_in(0)
    if k == PK + OPT['wgf']: count_out(2*OPT['wgf'])
    if k == OPT['pollk']: e(f'buffer_load_dword v31, v{vFl}, {sr(SRD_WS)}, 0 offen sc1')
    if k == OPT['chkk']:
        e(f's_waitcnt vmcnt(0)\nv_cmp_ne_u32 vcc, s{S_NONCE}, v31\ns_mov_b64 s[80:81], vcc\ns_cbranch_vccnz L_kv_late')
        for t in range(2): e('\n'.join(kv_loads(t, t)))
        e('L_kv_late:')
assert zi == 40 and VX == VS + 48 and not fill
stamp(7)
e('s_nop 11')
for r in range(16):
    m = vA if r < 4 else (vB if r >= 12 else vC)
    e(f'v_mul_f32 v{VACC + r}, v{m}, v{VACC + r}')
for i in range(8):
    e(f'v_cvt_pk_bf16_f32 v{VQ + 24 + i}, v{VACC + 2*i}, v{VACC + 2*i + 1}')
e(f"""ds_write_b128 v{vQw}, {vr(VQ+24,4)}
ds_write_b128 v{vQw}, {vr(VQ+28,4)} offset:1024""")
arrive(8)
lwait(8)
for s in range(3):
    e(f'ds_read_b128 {vr(VQ+8*s,4)}, v{vQx[s]}\nds_read_b128 {vr(VQ+8*s+4,4)}, v{vQx[s]} offset:1024')
PF = OPT['pf']
if OPT['chkk'] < 28: e('s_cmp_eq_u64 s[80:81], 0\ns_cbranch_scc1 L_kv_done')
poll(vFl, first_issued=OPT['pollk'] < 28 and OPT['chkk'] > 27, reg=31, sleep=OPT['ksleep'])
for t in range(PF): e('\n'.join(kv_loads(t, t)))
e('L_kv_done:')
stamp(8)
OM = OPT['omode']
if OM:
    e(f'''s_lshr_b32 s{sTmp}, s{S_O0}, 3
    s_add_u32 s{sTmp2}, s{S_O0}, 3
    s_lshr_b32 s{sTmp2}, s{sTmp2}, 3
    s_sub_u32 s{sTmp2}, s{sTmp2}, s{sTmp}
    s_lshl_b32 s{sTmp2}, s{sTmp2}, 6
    s_lshl_b32 s{sTmp}, s{sTmp}, 6
    s_lshl2_add_u32 s{sSt}, s{S_TILE}, s{S_W}
    s_add_u32 s{sTmp}, s{sTmp}, s{sSt}
    s_lshl_b32 s{sTmp}, s{sTmp}, {FSH}
    s_add_u32 s{sTmp}, s{sTmp}, {F_Y}
    v_and_b32 v{vFl}, 1, v{V_LANE}
    v_mul_u32_u24 v{vFl}, s{sTmp2}, v{vFl}
    v_and_b32 v31, 2, v{V_LANE}
    v_lshl_add_u32 v{vFl}, v31, 8, v{vFl}
    v_lshl_add_u32 v{vFl}, v{vFl}, {FSH}, s{sTmp}''')
def qk(buf, slot, js):
    d = vr(VS + 16*slot, 16)
    return f'v_mfma_f32_32x32x16_bf16 {d}, {vr(VK + 8*buf + 4*js, 4)}, {vr(VQ + 8*slot + 4*js, 4)}, {"0" if js == 0 else d}'
def pv(buf, slot, js):
    return f'v_smfmac_f32_32x32x32_bf16 {vr(VO + 16*slot, 16)}, {vr(VV + 8*buf + 4*js, 4)}, {vr(VS + 16*slot + 8*js, 8)}, v{vIdx}'
def exps(s): return [f'v_exp_f32 v{VS + 16*s + r}, v{VS + 16*s + r}' for r in range(16)]
SPREAD = []
def unit(t, s):
    ex = exps(s)
    if OPT['ax'] & 16 and s in (0, 1, 2):
        pass
    nb = t if s < 3 else (t + 1) & 3
    pb = t if s > 0 else (t - 1) & 3
    if s == 3: e(f's_waitcnt vmcnt({4*PF-4})')
    e(qk(nb, (s+1) & 3, 0)); e('\n'.join(ex[0:4]))
    e(qk(nb, (s+1) & 3, 1)); e('\n'.join(ex[4:8]))
    e(pv(pb, (s-1) & 3, 0))
    if s == 1:
        kl = kv_loads((t + PF) & 3, t + PF)
        if OPT['ax'] & 1: kl = [x for x in kl if 'exec' not in x]
        if OPT['ax'] & 2: kl = [x for x in kl if 'buffer' not in x]
        if OPT['ax'] & 4: kl = [x.replace(' sc1', '') for x in kl]
        if OPT['ax'] & 8: SPREAD.extend(kl); kl = []
        e('\n'.join(kl))
        if t == 3 - PF:
            e(f's_cmp_eq_u32 s{sIt}, 3\ns_cselect_b32 s{SRD_C+2}, 0, s{SRD_C+2}')
        if t == 3:
            e(f's_add_u32 s{sK}, s{sK}, 2048\ns_add_u32 s{sV}, s{sV}, 1024\ns_add_u32 s{sIt}, s{sIt}, 1\ns_cmp_lg_u32 s{sIt}, 4')
    e('\n'.join(ex[8:12]))
    e(pv(pb, (s-1) & 3, 1)); e('\n'.join(ex[12:16]))
e(f's_mov_b32 s{sIt}, 0\ns_waitcnt vmcnt({4*PF - 4}) lgkmcnt(0)')
stamp(9)
e(qk(0, 0, 0)); e(qk(0, 0, 1))
e(f"s_setprio {OPT['pa']}\ns_nop 8\ns_branch L_att_in" if OPT['prio'] else 's_nop 9\ns_branch L_att_in')
e('L_att:')
unit(3, 2); unit(3, 3)
e('L_att_in:')
for t in range(4):
    for s in range(4):
        if (t, s) < (3, 2): unit(t, s)
e('s_cbranch_scc1 L_att')
if OPT['prio']: e(f"s_setprio {OPT['pm']}")
if OM: e(f'buffer_load_dword v31, v{vFl}, {sr(SRD_WS)}, 0 offen sc1')
def rbw(s): return [f'ds_write_b128 v{vRb[s]}, {vr(VO + 16*s + 4*i, 4)} offset:{1024*i}' for i in range(4)]
ex = exps(2); w0 = rbw(0)
e(qk(3, 3, 0)); e('\n'.join(ex[0:4])); e(qk(3, 3, 1)); e('\n'.join(ex[4:7] + [w0[0]]))
e(pv(3, 1, 0)); e('\n'.join(ex[7:10] + [w0[1]])); e(pv(3, 1, 1)); e('\n'.join(ex[10:13] + [w0[2]] + ex[13:16] + [w0[3]]))
ex = exps(3); w1 = rbw(1); w2 = rbw(2)
e(pv(3, 2, 0)); e('\n'.join(ex[0:3])); e(pv(3, 2, 1))
e('\n'.join([w1[0]] + ex[3:5] + [w1[1]] + ex[5:7] + [w1[2]] + ex[7:9] + [w1[3]] + ex[9:10]))
e(pv(3, 3, 0))
e('\n'.join([w2[0]] + ex[10:12] + [w2[1]] + ex[12:14] + [w2[2]] + ex[14:16] + [w2[3]]))
arrive(9)
e(pv(3, 3, 1))
stamp(10)
lwait(9)
for i in range(12): e(f'ds_read_b128 {vr(VS + 4*i, 4)}, v{vRr} offset:{1024*i}')
OA = VO + 48
for s in range(3):
    e(f's_waitcnt lgkmcnt({8 - 4*s})')
    for i in range(8): e(f'v_pk_add_f32 {vr(OA+2*i,2)}, {vr(OA+2*i,2)}, {vr(VS+16*s+2*i,2)}')
e(f's_mov_b32 s{sIt}, {1 if OPT["force_fb"] else 0}')
e(f'''L_norm:
v_cndmask_b32 v{vA}, v{OA+12}, v{OA}, s[{sOdd}:{sOdd+1}]
v_max3_f32 v{vC}, abs(v{OA}), abs(v{OA+1}), abs(v{OA+2})
v_mov_b32 v{vB}, v{vA}
v_max3_f32 v{vC}, abs(v{OA+3}), abs(v{OA+4}), v{vC}
v_max3_f32 v{vC}, abs(v{OA+5}), abs(v{OA+6}), v{vC}
v_permlane32_swap_b32 v{vA}, v{vB}
v_max3_f32 v{vC}, abs(v{OA+7}), abs(v{OA+8}), v{vC}
v_cndmask_b32 v{vB}, v{vB}, v{vA}, s[{sOdd}:{sOdd+1}]
v_max3_f32 v{vC}, abs(v{OA+9}), abs(v{OA+10}), v{vC}
v_rcp_f32 v{vA}, v{vB}
v_max3_f32 v{vC}, abs(v{OA+11}), abs(v{OA+12}), v{vC}
v_max3_f32 v{vC}, abs(v{OA+13}), abs(v{OA+14}), v{vC}
v_max_f32 v{vC}, abs(v{OA+15}), v{vC}
v_cmp_nle_f32 vcc, 0x30800000, v{vB}
s_mov_b64 s[78:79], vcc
v_cmp_nge_f32 vcc, 0x4e800000, v{vB}
s_or_b64 s[78:79], s[78:79], vcc
v_cmp_ngt_f32 vcc, 0x7f000000, v{vC}
s_or_b64 vcc, s[78:79], vcc''')
if OPT['force_fb']:
    e(f's_cmp_eq_u32 s{sIt}, 1\ns_cbranch_scc1 L_fb')
e('s_cbranch_vccnz L_fb0\nL_norm2:')
for i in range(8): e(f'v_pk_mul_f32 {vr(OA+2*i,2)}, {vr(OA+2*i,2)}, {vr(vA,2)} op_sel_hi:[1,0]')
for i in range(8): e(f'v_cvt_pk_bf16_f32 v{VS+i}, v{OA+2*i}, v{OA+2*i+1}')
if OM: poll(vFl, first_issued=2, reg=31)
o_stores(VS, VS + 4, '')
stamp(11)
if OM == 4: publish(sFo, vA)
if OPT['obar'] == 1: e('s_barrier')
if OPT['obar'] >= 3: e(f"s_waitcnt vmcnt({5 - OPT['obar'] + (OM == 4)})\ns_barrier")
if OM == 0:
    e('s_waitcnt vmcnt(0)'); publish(sFo, vA)
if OPT['obar'] == 2: e('s_barrier')
stamp(12)
prof_out()
e('s_endpgm')

for tag, st in SPIN:
    e(f'L_ws_{tag}:'); lwait(st); e(f's_branch L_wb_{tag}')
sec('fb')
e(f'''L_fb0:
s_cmp_eq_u32 s{sIt}, 2
s_cbranch_scc1 L_norm2
L_fb:
s_waitcnt vmcnt(0)
s_mul_i32 s{sTmp}, s{S_O0}, {KS}
s_add_u32 s{sK}, s{sTmp}, {WS_K}
s_add_u32 s{sV}, s{sTmp}, {WS_V}
v_mov_b32 v{vC}, 0xff800000
s_mov_b32 s{sIt}, 0
L_fb1:''')
e('\n'.join(kv_loads(0, 0, SRD_WS)[:2]))
e('s_waitcnt vmcnt(0)')
e(qk(0, 3, 0)); e(qk(0, 3, 1)); e('s_nop 11')
for i in range(8): e(f'v_max3_f32 v{vC}, v{VS+48+2*i}, v{VS+49+2*i}, v{vC}')
e(f'''s_add_u32 s{sK}, s{sK}, 512
s_add_u32 s{sIt}, s{sIt}, 1
s_cmp_lg_u32 s{sIt}, 64
s_cbranch_scc1 L_fb1
v_mov_b32 v{vA}, v{vC}
s_sub_u32 s{sK}, s{sK}, 0x8000
s_mov_b32 s{sIt}, 0
v_permlane32_swap_b32 v{vA}, v{vC}
v_max_f32 v{vC}, v{vA}, v{vC}''')
for i in range(8): e(f'v_mov_b64 {vr(OA+2*i,2)}, 0')
e('L_fb2:')
e('\n'.join(kv_loads(0, 0, SRD_WS)))
e('s_waitcnt vmcnt(0)')
e(qk(0, 3, 0)); e(qk(0, 3, 1)); e('s_nop 11')
for i in range(16): e(f'v_sub_f32 v{VS+48+i}, v{VS+48+i}, v{vC}')
for i in range(16): e(f'v_exp_f32 v{VS+48+i}, v{VS+48+i}')
e('s_nop 1')
e(pv(0, 3, 0)); e(pv(0, 3, 1))
e(f'''s_add_u32 s{sK}, s{sK}, 512
s_add_u32 s{sV}, s{sV}, 256
s_add_u32 s{sIt}, s{sIt}, 1
s_cmp_lg_u32 s{sIt}, 64
s_cbranch_scc1 L_fb2
s_mov_b32 s{sIt}, 2
s_nop 11
s_branch L_norm''')

sD0, sD, sHw, sDs, sTab, sA, sB, sLd, sSk, sIt2, sFlU, sInv, sUns, sSel, sUl, sOl, sCh0 = range(60, 77)
sUs, sOut, sHm = 78, 80, 82
sE2, sP, sE3, sKd = 84, 85, 86, 87
OUTM = 'sc1' if OPT['outsc'] & 1 else ''
OUTM2 = 'sc1' if OPT['outsc'] & 2 else ''
a0, a1, a2, a3 = 5, 6, 7, 9
vPar = 10
vKc = 18
vRa, vRb_, vKd, vKd1, vKa, vKa0, vFu, vE1, vE1b, vFr, vKxo, vKxp, vPair, vRz, vBk, vA0, vA1, vKb, vSB, vSB0 = range(20, 40)
vSel = 180
vAc = 40
vOne, vScl, vAdd, vC0 = range(56, 60)
vOp = 64
vY = 128
vXt = 144
vAn = 166
vX1 = 172
T0, T1 = 160, 176
vZ = 192
U = 204
vZer = 220
vUa, vCd, vG_, vZp, vKp, vF_, vL16, vXo, vXp, vTr, vYl, vYs, vFy = range(224, 237)
vWoD = 238
vWoR = 240
vOl, vFo, vBw, vBr, vOut = range(242, 247)
def hi():
    if OPT['prio']: e('s_setprio 3')
KG = [True]
def lo():
    if OPT['prio']: e(f"s_setprio {OPT['kgp'] if KG[0] else OPT['ps']}")
ROLE[0] = 1
sec('ssm0')
e(f"""s_cmp_{'eq' if OPT['only'] != 2 else 'le'}_u32 s{S_C}, 7
s_cbranch_scc1 L_ssm_idle
s_lshr_b32 s{sDs}, s{S_W}, 1
s_lshl_b32 s{sD0}, s{S_C}, 6
s_lshl1_add_u32 s{sD0}, s{S_J}, s{sD0}
s_add_u32 s{sD}, s{sD0}, s{sDs}
s_mul_i32 s{sTab}, s{S_W}, {TABSZ}
s_add_u32 s{sTab}, s{sTab}, {L_TAB}
s_lshl1_add_u32 s{sA}, s{sD0}, s{S_W}
s_lshl_b32 s{sA}, s{sA}, 8
v_lshl_add_u32 v{a0}, v{V_LANE}, 2, s{sA}
s_mov_b32 m0, s{sTab}
s_lshl_b32 s{sB}, s{sD0}, 1
s_waitcnt lgkmcnt(0)
s_load_dword s{sLd}, s[14:15], s{sB}
s_load_dword s{S_NONCE}, s[28:29], 0
s_load_dword s{sSk}, s[16:17], s{sB}
global_load_dword v{vPar+0}, v{a0}, s[6:7]
global_load_dword v{vPar+1}, v{a0}, s[8:9]
global_load_dword v{vPar+2}, v{a0}, s[10:11]
global_load_dword v{vPar+3}, v{a0}, s[12:13]""")
if OPT['tlb'] != 2: e('s_barrier')
if OPT['tlb']:
    e(f'''v_and_b32 v{a0}, 7, v{V_LANE}
    v_min_u32 v{a0}, 5, v{a0}
    v_lshlrev_b32 v{a0}, 21, v{a0}
    v_add_u32 v{a0}, 0xf8000, v{a0}
    v_mov_b32 v{a1}, 0
    global_load_dword v8, v{a0}, s[28:29]
    global_load_dword v8, v{a1}, s[22:23]''')
if OPT['tlb'] == 2: e('s_barrier')
e('s_branch L_ssm')
sec('ssm')
e('L_ssm:')
if OPT['abl'] == 1:
    arrive(1); e('s_waitcnt vmcnt(0) lgkmcnt(0)\ns_endpgm')
lo()
srd(SRD_WS, 28, WS_SIZE)
e(f"""s_and_b32 s{sHw}, s{S_W}, 1
v_add_u32 v{V_GRP}, 16, v{V_GRP}
v_and_b32 v{a0}, 15, v{V_LANE}
v_lshrrev_b32 v{a1}, 4, v{V_LANE}
v_lshl_add_u32 v{vRb_}, v{a1}, 4, s{sTab}
v_mul_u32_u24 v{a2}, {TROW}, v{a0}
v_add_u32 v{vRa}, v{a2}, v{vRb_}
v_lshlrev_b32 v{vL16}, 4, v{V_LANE}
v_mov_b32 v{vOne}, 0x3c00
ds_write_addtid_b32 v{vOne}""")
for i in range(8): e(f'v_mov_b64 {vr(vAc+2*i,2)}, 0')
mid = f"""v_and_b32 v{a0}, 7, v{V_LANE}
s_lshl_b32 s{sB}, s{S_W}, {3 + FSH}
s_add_u32 s{sB}, s{sB}, {F_U}
v_lshl_add_u32 v{vFu}, v{a0}, {FSH}, s{sB}
s_mul_i32 s{sP}, s{sDs}, {P_SZ}
s_add_u32 s{sP}, s{sP}, {L_TAB}
s_add_u32 s{sKd}, s{sP}, {P_KD}
s_lshl_b32 s{sB}, s{sHw}, 8
s_add_u32 s{sInv}, s{sB}, s{sKd}
s_add_u32 s{sA}, s{sInv}, {1088 + 128}
v_lshl_add_u32 v{vRz}, v{a0}, 4, s{sA}
v_mov_b32 v{vKb}, s{sKd}
v_and_b32 v{a0}, 15, v{V_LANE}
v_lshrrev_b32 v{a1}, 4, v{V_LANE}
s_lshl_b32 s{sA}, s{sHw}, 4
v_add_u32 v{a0}, s{sA}, v{a0}
v_and_b32 v{a3}, 1, v{V_LANE}
v_mul_u32_u24 v{a2}, 255, v{a3}
v_sub_u32 v{a2}, v{a2}, v{a0}
s_add_u32 s{sA}, s{sKd}, {1088 + 32}
v_add_u32 v{vKa}, s{sA}, v{a2}
v_add_u32 v{vKa0}, 96, v{vKa}
s_lshl3_add_u32 s{sA}, s{sDs}, 16
v_lshl_add_u32 v{vPair}, v{a3}, 2, s{sA}
s_mul_i32 s{sA}, s{sHw}, {1088 + 112 - 1024}
s_add_u32 s{sA}, s{sA}, s{sKd}
s_add_u32 s{sA}, s{sA}, 1024
v_writelane_b32 v{vKa0}, s{sA}, 0
s_mul_i32 s{sA}, s{sHw}, 56
s_sub_u32 s{sA}, s{sKd}, s{sA}
s_add_u32 s{sA}, s{sA}, 1088
v_writelane_b32 v{vKa0}, s{sA}, 16
v_max_u32 v{a2}, 1, v{a1}
v_sub_u32 v{a2}, 5, v{a2}
v_lshlrev_b32 v{a0}, v{a2}, v{a0}
v_lshlrev_b32 v{a2}, 3, v{a1}
s_mov_b32 s{sA}, 0x60400100
v_bfe_u32 v{a1}, s{sA}, v{a2}, 8
v_lshl_add_u32 v{a0}, v{a1}, 3, v{a0}
v_add_u32 v{vKd}, s{sKd}, v{a0}
s_mov_b32 s{sA}, 0x80040404
v_bfe_u32 v{a1}, s{sA}, v{a2}, 8
v_add_u32 v{vKd1}, v{a1}, v{vKd}
v_lshrrev_b32 v{a1}, 1, v{V_LANE}
v_lshlrev_b32 v{vUa}, 6, v{a1}
v_lshl_add_u32 v{vUa}, v{a3}, 4, v{vUa}
s_lshr_b32 s{sA}, s{sD0}, 2
s_mul_i32 s{sA}, s{sA}, {QS}
s_and_b32 s{sB}, s{sD0}, 3
s_lshl4_add_u32 s{sA}, s{sB}, s{sA}
s_lshl_b32 s{sB}, s{S_W}, 12
s_add_u32 s{sA}, s{sA}, s{sB}
s_add_u32 s{sUl}, s{sA}, {WS_U}
v_and_b32 v{a1}, 3, v{a1}
v_lshl_add_u32 v{a1}, v{a3}, 2, v{a1}
v_mul_u32_u24 v{a1}, {PS}, v{a1}
v_lshrrev_b32 v{a2}, 3, v{V_LANE}
v_lshl_add_u32 v{a1}, v{a2}, 4, v{a1}
s_lshl_b32 s{sA}, s{S_W}, 8
s_add_u32 s{sA}, s{sA}, {L_KP + 512}
v_add_u32 v{vKp}, s{sA}, v{a1}
v_lshrrev_b32 v{a1}, 5, v{V_LANE}
s_lshl_b32 s{sA}, s{sHw}, 1
v_max_u32 v{a0}, s{sA}, v{a1}
v_min_u32 v{a2}, 1, v{a0}
v_mul_u32_u24 v{a2}, 0x0202, v{a2}
v_lshlrev_b32 v{a2}, 16, v{a2}
v_sub_u32 v{vSel}, 0x03020100, v{a2}
v_mul_u32_u24 v{a2}, 0x0202, v{a0}
v_lshl_or_b32 v{a2}, v{a2}, 16, v{a2}
v_sub_u32 v{vSel+1}, 0x07060504, v{a2}
s_mul_i32 s{sA}, s{sHw}, 0x02020202
v_add_u32 v{vSel+2}, s{sA}, v{vSel}
s_mul_i32 s{sA}, s{sHw}, 0x02020404
v_add_u32 v{vSel+3}, s{sA}, v{vSel+1}
v_lshrrev_b32 v{a2}, v{a0}, v{vL16}
s_movk_i32 s{sA}, 256
v_lshl_add_u32 v{a2}, s{sA}, v{a0}, v{a2}
s_sub_u32 s{sA}, s{sKd}, 256
v_add_u32 v{vE1}, s{sA}, v{a2}
v_lshlrev_b32 v{a2}, 2, v{a0}
v_sub_u32 v{vE1b}, v{vE1}, v{a2}
s_mov_b32 s{sA}, 0x0c0c0c0c
s_cmp_lg_u32 s{sHw}, 0
s_cselect_b32 s{sE2}, 0x01000100, s{sA}
s_cselect_b32 s{sE3}, 0x05040302, s{sA}
v_mov_b32 v{vSel+4}, s{sA}
v_mov_b32 v{vSel+5}, s{sA}
v_mov_b32 v{vSel+6}, s{sA}
v_mov_b32 v{vSel+7}, s{sA}
s_mov_b32 s{sA}, 0x05040504
s_mov_b64 exec, 15
v_mov_b32 v{vSel+4}, s{sA}
v_mov_b32 v{vSel+5}, s{sA}
v_mov_b32 v{vSel+6}, s{sA}
s_mov_b64 exec, -1
v_writelane_b32 v{vSel+7}, s{sA}, 3
s_mov_b32 s{sA}, 0x05040302
v_writelane_b32 v{vSel+4}, s{sA}, 3
s_mov_b32 s{sA}, 0x0c0c0504
v_writelane_b32 v{vSel+6}, s{sA}, 0
v_writelane_b32 v{vSel+7}, s{sA}, 2
s_mul_i32 s{sA}, s{S_W}, {2*PS}
s_add_u32 s{sA}, s{sA}, {L_KP}
v_mul_u32_u24 v{a2}, {PS - 512}, v{a1}
v_add3_u32 v{vG_}, v{a2}, v{vL16}, s{sA}
v_mov_b64 {vr(vZer,2)}, 0
v_mov_b64 {vr(vZer+2,2)}, 0
ds_write_b128 v{vG_}, {vr(vZer,4)}
s_lshl_b32 s{sA}, s{sHw}, 10
s_add_u32 s{sB}, s{sP}, {P_UC}
s_add_u32 s{sA}, s{sA}, s{sB}
s_add_u32 s{sA}, s{sA}, 64
v_add_u32 v{vCd}, s{sA}, v{vL16}
v_and_b32 v{a3}, 3, v{V_LANE}
v_and_b32 v{a0}, 0x1c, v{V_LANE}
v_lshlrev_b32 v{a2}, 2, v{a0}
v_and_b32 v{vZp}, 0x30, v{a2}
s_mov_b32 exec_hi, 0
v_add_u32 v{vZp}, 2112, v{a2}
s_mov_b64 exec, -1
v_mul_u32_u24 v{a2}, {UC_S}, v{a3}
v_add3_u32 v{vZp}, v{vZp}, v{a2}, s{sB}
v_lshlrev_b32 v{a0}, 1, v{a0}
v_sub_u32 v{a0}, v{a0}, v{a2}
v_lshlrev_b32 v{a1}, 4, v{a1}
v_sub_u32 v{a0}, v{a0}, v{a1}
s_lshl_b32 s{sA}, s{sHw}, 5
s_sub_u32 s{sB}, s{sB}, s{sA}
s_add_u32 s{sB}, s{sB}, {56 + 3*UC_S}
v_add_u32 v{vF_}, s{sB}, v{a0}
v_add_u32 v{vG_}, {512 - 80}, v{vG_}
v_add_u32 v{vKxo}, s{sTab}, v{vL16}
s_xor_b32 s{sA}, s{S_W}, 1
s_mul_i32 s{sA}, s{sA}, {TABSZ}
s_add_u32 s{sA}, s{sA}, {L_TAB}
v_add_u32 v{vKxp}, s{sA}, v{vL16}
v_and_b32 v{a0}, 31, v{V_LANE}
v_lshlrev_b32 v{a2}, 2, v{a0}
v_sub_u32 v{a2}, v{a1}, v{a2}
s_add_u32 s{sA}, s{sInv}, {1088 + 124}
v_add_u32 v{vBk}, s{sA}, v{a2}
"""
e(mid)
stamp(22)
e(f's_waitcnt lgkmcnt(0)\ns_add_u32 s{S_NONCE}, s{S_NONCE}, 1')
arrive(1)
e(f"""s_lshl_b32 s{sA}, s{sDs}, 4
s_lshr_b32 s{sLd}, s{sLd}, s{sA}
s_lshl_b32 s{sLd}, s{sLd}, 16
s_lshr_b32 s{sSk}, s{sSk}, s{sA}
s_lshl_b32 s{sSk}, s{sSk}, 16
v_mov_b32 v{a0}, s{sLd}
v_mul_f32 v{a0}, 0x3fb8aa3b, v{a0}
v_exp_f32 v{a0}, v{a0}
s_cmp_eq_u32 s{sHw}, 0
s_cselect_b32 s{sSk}, s{sSk}, 0
v_cvt_pk_bf16_f32 v{a0}, v{a0}, v{a0}
v_and_b32 v{vScl}, 0xffff0000, v{a0}
v_mul_f32 v{vKc}, 0xbfb8aa3b, v{vScl}
v_mul_f32 v{vKc+1}, 0.15915494, v{vScl}
v_mov_b32 v{vAdd}, 0
v_add_f32 v{vScl}, v{vScl}, v{vScl}
v_writelane_b32 v{vAdd}, s{sSk}, 0
s_mov_b32 s{sIt2}, 0
s_mov_b32 s{sSel}, 0x01000c0c""")
stamp(0)
e(f"""s_waitcnt vmcnt({2 if OPT['tlb'] else 0})
v_and_b32 v{a0}, 0x7f807f80, v{vPar+2}
v_and_b32 v{a1}, 0x7f807f80, v{vPar+3}
v_pk_max_u16 v{a0}, v{a0}, v{a1}
v_lshlrev_b32 v{a1}, 16, v{a0}
v_max_u32 v{a0}, v{a0}, v{a1}""")
for q, n in enumerate((1, 2, 4, 8)):
    e(f's_nop 1\nv_max_u32_dpp v{a0}, v{a0}, v{a0} row_ror:{n} row_mask:0xf bank_mask:0xf')
e(f"""s_nop 0
v_readlane_b32 s{sA}, v{a0}, 0
v_readlane_b32 s{sB}, v{a0}, 16
v_readlane_b32 s{sInv}, v{a0}, 32
v_readlane_b32 s{sUns}, v{a0}, 48
s_max_u32 s{sA}, s{sA}, s{sB}
s_max_u32 s{sUns}, s{sUns}, s{sInv}
s_max_u32 s{sUns}, s{sUns}, s{sA}
s_and_b32 s{sUns}, s{sUns}, 0x7f800000
s_min_u32 s{sUns}, s{sUns}, 0x7e800000
s_sub_u32 s{sInv}, 0x7f000000, s{sUns}
v_mul_f32 v{vScl}, s{sUns}, v{vScl}
v_mul_f32 v{vSB}, 0x43000000, v{vScl}
v_mov_b32 v{vSB0}, v{vSB}
s_mov_b64 exec, 1
v_mov_b32 v{vSB0}, v{vScl}
s_mov_b64 exec, -1""")
stamp(1)
if OPT['abl'] == 2: e('s_endpgm')
def cm(jobs, conj):
    ng = 'neg_hi:[1,0,0]' if conj else 'neg_lo:[1,0,0]'
    return [f'v_pk_mul_f16 v{d}, v{x}, v{w} op_sel_hi:[1,0]' for d, x, w in jobs] + \
           [f'v_pk_fma_f16 v{d}, v{x}, v{w}, v{d} op_sel:[1,1,0] op_sel_hi:[0,1,1] {ng}' for d, x, w in jobs]
def wr(reg): return f'ds_write_addtid_b32 v{reg} offset:{TROW*(reg - vY)}'
assert vXt == vY + 16
zA, zB, tA, tB, pA, pB = vZ, vZ+2, vZ+4, vZ+6, vZ+8, vZ+10
X = vXt; Y = vY
an = {1: vAn, 2: vAn+1, 4: vAn+2, 8: Y+1, 16: Y+2, 32: Y+4, 64: Y+8, 128: X+21, 256: vAn+3, 512: vAn+4, 1024: vAn+5}
e('L_kg:')
stamp(14)
seq = f"""v_perm_b32 v{pA}, v{vPar}, v{vPar}, s{sSel}
v_mul_f32 v{pA}, 0x3fb8aa3b, v{pA}
v_exp_f32 v{pA}, v{pA}
v_perm_b32 v{pA+1}, v{vPar+1}, v{vPar+1}, s{sSel}
v_perm_b32 v{tA}, v{vPar+2}, v{vPar+2}, s{sSel}
v_perm_b32 v{tA+1}, v{vPar+3}, v{vPar+3}, s{sSel}
v_cvt_pk_bf16_f32 v{pA}, v{pA}, v{pA}
v_mul_f32 v{tA}, s{sInv}, v{tA}
v_and_b32 v{pA}, 0xffff0000, v{pA}
v_mul_f32 v{tA+1}, s{sInv}, v{tA+1}
v_pk_mul_f32 {vr(pA,2)}, {vr(pA,2)}, {vr(vKc,2)}
v_cvt_pk_f16_f32 v{X}, v{tA}, -v{tA+1}
v_mul_f32 v{pB}, 0x42800000, v{pA}
v_mul_f32 v{pB+1}, 0x42800000, v{pA+1}
v_exp_f32 v{pA}, v{pA}
v_fract_f32 v{pA+1}, v{pA+1}
v_exp_f32 v{pB}, v{pB}
v_fract_f32 v{pB+1}, v{pB+1}
v_cos_f32 v{zA}, v{pA+1}
v_sin_f32 v{zA+1}, v{pA+1}
v_cos_f32 v{zB}, v{pB+1}
v_sin_f32 v{zB+1}, v{pB+1}
v_pk_mul_f32 {vr(zA,2)}, {vr(zA,2)}, {vr(pA,2)} op_sel_hi:[1,0]
v_pk_mul_f32 {vr(zB,2)}, {vr(zB,2)}, {vr(pB,2)} op_sel_hi:[1,0]""".split('\n')
for st in range(6):
    chains = [(zA, tA, an[1 << st], st < 5)] + ([(zB, tB, an[64 << st], st < 4)] if st < 5 else [])
    for z, t, d, sq in chains:
        if sq: seq.append(f'v_pk_mul_f32 {vr(t,2)}, {vr(z,2)}, {vr(z,2)} op_sel_hi:[0,1]')
    for z, t, d, sq in chains: seq.append(f'v_cvt_pk_f16_f32 v{d}, v{z}, v{z+1}')
    for z, t, d, sq in chains:
        if sq: seq.append(f'v_pk_fma_f32 {vr(z,2)}, {vr(z,2)}, {vr(z,2)}, {vr(t,2)} op_sel:[1,1,0] op_sel_hi:[0,1,1] neg_lo:[1,0,0]')
seq += cm([(X+1, X, an[1]), (X+2, X, an[2]), (X+4, X, an[4]), (X+8, X, an[256]), (X+12, X, an[512]), (X+16, X, an[1024])], True)
seq += cm([(Y+3, Y+1, Y+2), (Y+12, Y+4, Y+8), (Y+5, Y+4, Y+1), (Y+6, Y+4, Y+2), (Y+9, Y+8, Y+1), (Y+10, Y+8, Y+2)], False)
seq += cm([(X+3, X+1, an[2]), (X+5, X+1, an[4]), (X+6, X+2, an[4]), (X+9, X+2, an[256]), (X+10, X+4, an[256]), (X+13, X+4, an[512]),
           (X+14, X+8, an[512]), (X+17, X+8, an[1024]), (X+18, X+12, an[1024]), (X+20, X+16, an[1024])], True)
seq += cm([(Y+7, Y+4, Y+3), (Y+11, Y+8, Y+3), (Y+13, Y+12, Y+1), (Y+14, Y+12, Y+2), (Y+15, Y+12, Y+3)], False)
seq += cm([(X+7, X+3, an[4]), (X+11, X+6, an[256]), (X+15, X+10, an[512]), (X+19, X+14, an[1024])], True)
e('\n'.join(seq))
stamp(15)
if OPT['kgw']:
    e(f'v_subrev_u32 v{a0}, 16, v{V_GRP}'); lwait(OPT['kgw'], addr=a0)
hi()
if OPT['abl'] != 4: e('\n'.join(wr(r) for r in range(Y + 1, X + 22)))
for k in range(4):
    o = vOp + 16*k
    e(f"""ds_read_b128 {vr(o,4)}, v{vRa} offset:{64*k}
    ds_read_b128 {vr(o+4,4)}, v{vRb_} offset:{37*TROW + 64*k}
    ds_read_b128 {vr(o+8,4)}, v{vRa} offset:{16*TROW + 64*k}
    ds_read_b128 {vr(o+12,4)}, v{vRa} offset:{32*TROW + 64*k}""")
if not OPT['uw']: e(f's_cmp_eq_u32 s{sIt2}, 0\ns_cbranch_scc1 L_kg_n\nbuffer_load_dword v{vFr}, v{vFu}, {sr(SRD_WS)}, 0 offen sc1\nL_kg_n:')
stamp(16)
def mf(c, a, b): return f'v_mfma_f32_16x16x32_f16 {vr(c,4)}, {vr(a,4)}, {vr(b,4)}, {vr(c,4)}'
late_m = []
for k in range(4):
    o = vOp + 16*k; y1 = vX1 + 4*(k & 1)
    p = cm([(y1+r, o+r, o+4+r) for r in range(4)], False)
    e(f's_waitcnt lgkmcnt({12 - 4*k})')
    e('\n'.join([mf(vAc, o+8, o)] + p[0:2] + late_m[:1] + p[2:4] + [mf(vAc+4, o+12, o)] + p[4:6] + late_m[1:] + p[6:8]))
    late_m = [mf(vAc+8, o+8, y1), mf(vAc+12, o+12, y1)]
e(f"""s_add_u32 s{sSel}, s{sSel}, 0x02020000
s_add_u32 s{sIt2}, s{sIt2}, 1
s_cmp_lg_u32 s{sIt2}, 2""")
e('\n'.join(late_m))
lo()
e('s_cbranch_scc1 L_kg')
stamp(17)
if OPT['abl'] in (4, 8): e('s_endpgm')
def scl(i): return vSB0 if i == 4 else (vSB if i & 4 else vScl)
for i in range(8): e(f'v_mul_f32 v{vAc+i}, v{scl(i)}, v{vAc+i}')
e(f's_cmp_eq_u32 s{sHw}, 0')
for i in range(8, 16): e(f'v_mul_f32 v{vAc+i}, v{scl(i)}, v{vAc+i}')
e('s_cbranch_scc1 L_kx')
for i in range(8): e(f'v_swap_b32 v{vAc+i}, v{vAc+8+i}')
e(f"""L_kx:
ds_write_b128 v{vKxo}, {vr(vAc+8,4)}
s_mov_b32 exec_hi, 0
ds_write_b128 v{vKxo}, {vr(vAc+12,4)} offset:1024
s_mov_b64 exec, -1""")
arrive(2)
e(f'v_add_f32 v{vAc}, v{vAdd}, v{vAc}')
stamp(18)
def bprio():
    if OPT['prio']: e(f"s_setprio {OPT['bp']}")
def u_look():
    hi(); e(f'buffer_load_dword v{vFr}, v{vFu}, {sr(SRD_WS)}, 0 offen sc1'); bprio()
def u_fetch():
    hi()
    stamp(20)
    poll(vFu, first_issued=True, reg=vFr, sleep=OPT['usleep'])
    stamp(21)
    for k in range(2):
        e(f'buffer_load_dwordx4 {vr(U+4*k,4)}, v{vUa}, {sr(SRD_WS)}, s{sUl} offen offset:{2048*k} sc1')
    bprio()
if OPT['uw'] == -2: u_look()
else: bprio()
stamp(19)
lwait(2, addr=vPair)
e(f"""ds_read_b128 {vr(vAc+8,4)}, v{vKxp}
ds_read_b128 {vr(vAc+12,4)}, v{vKxp} offset:1024
ds_write_b128 v{vRz}, {vr(vZer,4)}
s_mov_b32 s{sIt2}, 4
s_waitcnt lgkmcnt(1)""")
for i in range(4): e(f'v_pk_add_f32 {vr(vAc+2*i,2)}, {vr(vAc+2*i,2)}, {vr(vAc+8+2*i,2)}')
for i in range(4): e(f'v_cvt_pk_bf16_f32 v{vAc+8+i}, v{vAc+2*i}, v{vAc+2*i+1}')
e(f"""ds_write_b32 v{vKd}, v{vAc+8}
ds_write_b32 v{vKd1}, v{vAc+9}
s_mov_b64 exec, 0x1ffff
ds_write_b16 v{vKa0}, v{vAc+10}
s_mov_b64 exec, 0xffff
ds_write_b16_d16_hi v{vKa}, v{vAc+10} offset:64
ds_write_b16 v{vKa}, v{vAc+11} offset:32
ds_write_b16_d16_hi v{vKa}, v{vAc+11}
s_mov_b64 exec, -1""")
arrive(3)
if OPT['uw'] == -1: u_look()
if OPT['uw'] == -2: u_fetch()
lwait(3, addr=vPair)
stamp(2)
E = 64; BF = 40
e(f"""ds_read2_b32 {vr(E,2)}, v{vE1} offset1:1
ds_read2_b32 {vr(E+2,2)}, v{vE1b} offset0:2 offset1:3
ds_read2_b32 {vr(E+4,2)}, v{vKb} offset0:191 offset1:192
ds_read_b32 v{E+6}, v{vKb} offset:1020
ds_read_b32 v{E+7}, v{vKb} offset:1024""")
for q in range(8): e(f'ds_read2_b32 {vr(BF+2*q,2)}, v{vBk} offset0:{8*(q>>1) + 2*(q&1)} offset1:{8*(q>>1) + 2*(q&1) + 1}')
b = E + 12; t = E + 16
e(f"""s_waitcnt lgkmcnt(10)
v_perm_b32 v{b+2}, v{E+2}, v{E+2}, v{vSel+2}
v_perm_b32 v{b+3}, v{E+3}, v{E+2}, v{vSel+3}
v_perm_b32 v{b-2}, v{E+5}, v{E+4}, s{sE2}
v_perm_b32 v{b-1}, v{E+5}, v{E+4}, s{sE3}
v_perm_b32 v{b}, v{E}, v{E}, v{vSel}
v_perm_b32 v{b+1}, v{E+1}, v{E}, v{vSel+1}
v_mov_b32_dpp v{b-2}, v{b+2} wave_shr:1 row_mask:0xf bank_mask:0xf
v_mov_b32_dpp v{b-1}, v{b+3} wave_shr:1 row_mask:0xf bank_mask:0xf
ds_write_b128 v{vCd}, {vr(b,4)}""")
for i in range(4): e(f'v_alignbit_b32 v{t+i}, v{b+i}, v{b+i-1}, 16')
e(f'ds_write_b128 v{vCd}, {vr(t,4)} offset:{UC_S}')
for i in range(4): e(f'v_mov_b32 v{t+4+i}, v{b+i-1}')
e(f'ds_write_b128 v{vCd}, {vr(t+4,4)} offset:{2*UC_S}')
for i in range(4): e(f'v_alignbit_b32 v{t+8+i}, v{b+i-1}, v{b+i-2}, 16')
e(f'ds_write_b128 v{vCd}, {vr(t+8,4)} offset:{3*UC_S}\ns_waitcnt lgkmcnt(12)')
for i in range(4): e(f'v_perm_b32 v{t+12+i}, v{E+7}, v{E+6}, v{vSel+4+i}')
e(f'ds_write_b128 v{vZp}, {vr(t+12,4)}')
if OPT['uw'] == -1: u_fetch()
stamp(3)
e(f'v_and_b32 v{a0}, 31, v{V_LANE}')
swap23(a1, a0, a2)
e(f"""v_lshrrev_b32 v{a2}, 5, v{V_LANE}
v_lshl_add_u32 v{a1}, v{a1}, 1, v{a2}
s_add_u32 s{sA}, s{sHw}, 123
v_add_u32 v{a1}, s{sA}, v{a1}
s_mul_i32 s{sA}, s{sDs}, {PD}
s_add_u32 s{sA}, s{sA}, {L_KP}
v_and_b32 v{a3}, 3, v{a1}
v_mul_u32_u24 v{a3}, {PS - 4}, v{a3}
v_lshl_add_u32 v{a3}, v{a1}, 2, v{a3}
v_add_u32 v{vA0}, s{sA}, v{a3}
v_add_u32 v{a1}, 2, v{a1}
v_and_b32 v{a3}, 3, v{a1}
v_mul_u32_u24 v{a3}, {PS - 4}, v{a3}
v_lshl_add_u32 v{a3}, v{a1}, 2, v{a3}
v_add_u32 v{vA1}, s{sA}, v{a3}
v_lshlrev_b32 v{a2}, 3, v{a2}
v_sub_u32 v{a2}, v{a2}, v{a0}
v_cvt_f32_i32 v{a2}, v{a2}
v_add_f32 v{a3}, -1.0, v{a2}
v_add_f32 v{a2}, -2.0, v{a2}
v_cvt_pk_f16_f32 v8, v{a3}, v{a2}
s_waitcnt vmcnt(1)
ds_write_b128 v{vKp}, {vr(U,4)}
s_waitcnt vmcnt(0)
ds_write_b128 v{vKp}, {vr(U+4,4)} offset:128""")
arrive(4)
AP, BD, DP = 112, 136, 192
band = [f's_mov_b32 s{sA}, 0x4a204a20', f's_cmp_eq_u32 s{sHw}, 0', f's_cselect_b32 s{sE2}, 0x4d104d10, s{sA}', f's_mov_b32 s{sE3}, 0x4d804d80']
for q in range(12):
    band.append(f'v_pk_fma_f16 v{BD+q}, v8, v8, s{sE2} neg_lo:[1,0,0] neg_hi:[1,0,0] clamp')
    if q < 11: band.append(f'v_pk_add_f16 v8, v8, s{sE3}' if q % 4 == 3 else 'v_pk_add_f16 v8, v8, -2.0 op_sel_hi:[1,0]')
e('\n'.join(band))
lwait(4)
KG[0] = False
lo()
stamp(4)
if OPT['abl'] == 16: e('s_endpgm')
CB = 64
def cv_reads(k):
    b = CB + 12 * (k & 3)
    return [f'ds_read_b64 {vr(b,2)}, v{vF_} offset:{64*k}', f'ds_read_b64 {vr(b+2,2)}, v{vF_} offset:{64*k + 8}',
            f'ds_read_b128 {vr(b+8,4)}, v{vG_} offset:{512 + 80 - 16*k}', f'ds_read_b128 {vr(b+4,4)}, v{vG_} offset:{80 - 16*k}']
for tau in range(2):
    for kp in range(3): e(f'ds_read_b128 {vr(AP + 12*tau + 4*kp, 4)}, v{(vA0, vA1)[kp & 1]} offset:{256*tau + 16*(kp >> 1)}')
e('\n'.join(cv_reads(0) + cv_reads(1)))
FOA = f'''s_lshr_b32 s{sA}, s{sOl}, 1
s_lshl_b32 s{sA}, s{sA}, {4 + FSH}
s_add_u32 s{sA}, s{sA}, {F_O}
v_lshl_add_u32 v{vFo}, v{a1}, {FSH}, s{sA}''' if not OM else f'''s_lshr_b32 s{sA}, s{sOl}, 1
s_lshl_b32 s{sB}, s{sHw}, 9
s_add_u32 s{sA}, s{sA}, s{sB}
s_lshl_b32 s{sA}, s{sA}, {FSH}
s_add_u32 s{sA}, s{sA}, {F_Y}
v_min_u32 v{vFo}, 6, v{a1}
v_lshl_add_u32 v{vFo}, v{vFo}, {6 + FSH}, s{sA}'''
late = f"""s_mov_b64 s[{SRD_B}:{SRD_B+1}], s[22:23]
s_mov_b32 s{SRD_B+2}, {448*896}
s_mov_b32 s{SRD_B+3}, 0x20000
s_mov_b64 s[{SRD_C}:{SRD_C+1}], s[24:25]
s_mov_b32 s{SRD_C+2}, {2048*1792}
s_mov_b32 s{SRD_C+3}, 0x20000
v_lshrrev_b32 v{a1}, 3, v{V_LANE}
v_and_b32 v{a2}, 7, v{V_LANE}
v_and_b32 v{a0}, 0x70, v{vL16}
v_mul_u32_u24 v{vYl}, {YS}, v{a1}
v_add_u32 v{vYl}, v{vYl}, v{a0}
v_lshlrev_b32 v{a3}, 2, v{V_LANE}
v_and_b32 v{a3}, 64, v{a3}
v_xor_b32 v{a0}, v{a0}, v{a3}
v_mul_u32_u24 v{vWoD}, 896, v{a1}
v_xor_b32 v{a3}, v{a1}, v{a2}
v_lshlrev_b32 v{a3}, 4, v{a3}
v_lshl_add_u32 v{vOut}, v{vWoD}, 1, v{a3}
v_add_u32 v{vWoD}, v{a0}, v{vWoD}
v_add_u32 v{vWoD+1}, {7168-1024}, v{vWoD}
v_lshrrev_b32 v{a0}, 4, v{V_LANE}
v_bfe_u32 v{a1}, v{V_LANE}, 2, 2
v_lshl_or_b32 v{a3}, v{a0}, 3, v{a1}
v_lshlrev_b32 v{a3}, 7, v{a3}
v_lshrrev_b32 v{a1}, 1, v{a1}
v_lshl_add_u32 v{a3}, v{a1}, 6, v{a3}
v_and_b32 v{a1}, 0x30, v{vL16}
s_movk_i32 s{sA}, {L_WO}
v_add3_u32 v{vWoR}, v{a1}, v{a3}, s{sA}
v_xor_b32 v{vWoR+1}, 64, v{vWoR}
v_and_b32 v{a1}, 15, v{V_LANE}
v_lshlrev_b32 v{vOl}, 4, v{a1}
v_mad_u32_u24 v{vOl}, v{a0}, s{S_KS}, v{vOl}
s_lshl2_add_u32 s{sOl}, s{S_J}, s{S_W}
{FOA}
s_lshl_b32 s{sA}, s{S_W}, 11
s_add_u32 s{sA}, s{sA}, {L_SSM}
v_xor_b32 v{a3}, v{a0}, v{a2}
v_lshl_add_u32 v{a3}, v{a3}, 4, s{sA}
v_lshl_add_u32 v{vBw}, v{a1}, 7, v{a3}
v_add_u32 v{vBr}, s{sA}, v{vL16}
s_mul_i32 s{sOut}, s{sOl}, {16*1792}
s_lshl_b32 s{sA}, s{S_C}, 7
s_add_u32 s{sOut}, s{sOut}, s{sA}
s_add_u32 s{sOut}, s{sOut}, 896
s_add_u32 s{sOut+1}, s{sOut}, {8*1792}
s_lshl_b32 s{sOl}, s{sOl}, 8
s_add_u32 s{sOl}, s{sOl}, {WS_O}
s_lshl2_add_u32 s{sCh0}, s{S_C}, s{S_W}
s_lshl_b32 s{sCh0}, s{sCh0}, 4
s_lshr_b32 s{sA}, s{S_J}, 4
s_lshl_b32 s{sA}, s{sA}, 9
s_add_u32 s{sA}, s{sA}, s{sCh0}
s_lshl_b32 s{sA}, s{sA}, {FSH}
s_add_u32 s{sA}, s{sA}, {F_Y}
v_lshl_add_u32 v{vFy}, v{a1}, {FSH}, s{sA}
v_and_b32 v{a1}, 11, v{V_LANE}
v_lshl_or_b32 v{a1}, v{a0}, 5, v{a1}
v_mul_u32_u24 v{a1}, 1792, v{a1}
v_and_b32 v{a3}, 4, v{V_LANE}
v_lshl_add_u32 v{vYs}, v{a3}, 2, v{a1}
s_lshl_b32 s{sA}, s{sHw}, 12
s_add_u32 s{sB}, s{sP}, {P_X + 4096}
s_sub_u32 s{sB}, s{sB}, s{sA}
v_add_u32 v{vXp}, s{sB}, v{vL16}
s_add_u32 s{sA}, s{sA}, s{sP}
s_add_u32 s{sA}, s{sA}, {P_X}
v_add_u32 v{vXo}, s{sA}, v{vL16}
v_lshl_add_u32 v{vRb_}, v{a0}, 4, s{sA}
v_bfe_u32 v{a0}, v{V_LANE}, 2, 2
v_and_b32 v{a3}, 1, v{V_LANE}
v_lshl_or_b32 v{a2}, v{a3}, 3, v{a0}
v_lshl_add_u32 v{vTr}, v{a2}, 7, v{vRb_}
v_and_b32 v{a2}, 2, v{V_LANE}
v_lshl_add_u32 v{vTr}, v{a2}, 2, v{vTr}""".split('\n')
def fill(n):
    e('\n'.join(late[:n])); del late[:n]
fill(16)
e('s_waitcnt lgkmcnt(8)')
for kp in range(3):
    for tau in range(2):
        d = vr(DP + 16*tau, 16)
        e(f'v_mfma_f32_32x32x16_bf16 {d}, {vr(AP + 12*tau + 4*kp, 4)}, {vr(BD + 4*kp, 4)}, {"0" if kp == 0 else d}')
        fill(6)
def cv_iter(first):
    for k in range(4):
        b = CB + 12 * k
        rd = cv_reads(k + 2)
        z = first and k == 0
        e('s_waitcnt lgkmcnt(4)')
        e(f'v_mfma_f32_32x32x16_bf16 {vr(T1,16)}, {vr(b,4)}, {vr(b+8,4)}, {"0" if z else vr(T1,16)}')
        e('\n'.join(rd))
        if k == 3:
            e(f'v_add_u32 v{vF_}, 256, v{vF_}\nv_subrev_u32 v{vG_}, 64, v{vG_}')
            if not first: e(f's_add_u32 s{sIt2}, s{sIt2}, 1\ns_cmp_lg_u32 s{sIt2}, 11')
        e(f'v_mfma_f32_32x32x16_bf16 {vr(T0,16)}, {vr(b,4)}, {vr(b+4,4)}, {"0" if z else vr(T0,16)}')
        if first: fill(6 if k < 3 else 99)
cv_iter(True)
e('L_cv:')
cv_iter(False)
e('s_cbranch_scc1 L_cv')
cv = [f'v_cvt_pk_bf16_f32 v{AP+i}, v{DP+2*i}, v{DP+2*i+1}' for i in range(16)]
for k in range(2):
    e('\n'.join(cv[4*k:4*k+4]))
    e(f's_waitcnt lgkmcnt({4 - 4*k})')
    e(f'v_mfma_f32_32x32x16_bf16 {vr(T1,16)}, {vr(CB+12*k,4)}, {vr(CB+12*k+8,4)}, {vr(T1,16)}')
for q in range(4):
    e('\n'.join(cv[8+4*q:12+4*q]))
    e(f'v_mfma_f32_32x32x16_bf16 {vr(T1,16)}, {vr(AP+4*q,4)}, {vr(BF+4*q,4)}, {vr(T1,16)}')
if OPT['prio']: e(f"s_setprio {OPT['pr']}")
stamp(5)
if OPT['abl'] == 32: e('s_endpgm')
e(f"""s_mul_i32 s{sA}, s{sD}, {YS}
s_lshl_b32 s{sB}, s{sHw}, 11
s_add_u32 s{sA}, s{sA}, s{sB}
s_add_u32 s{sA}, s{sA}, {WS_Y}
s_lshl_b32 s{sB}, s{sHw}, 9
s_add_u32 s{sB}, s{sB}, s{sD}
s_lshl_b32 s{sB}, s{sB}, {FSH}
s_add_u32 s{sB}, s{sB}, {F_Y}
s_nop 0""")
def xch(give, keep):
    for i in range(4): e(f'ds_write_b128 v{vXp}, {vr(give+4*i,4)} offset:{1024*i}')
    arrive(6); lwait(6, addr=vPair)
    for i in range(4): e(f'ds_read_b128 {vr(give+4*i,4)}, v{vXo} offset:{1024*i}')
    e('s_waitcnt lgkmcnt(0)')
e(f's_cmp_eq_u32 s{sHw}, 0\ns_cbranch_scc1 L_x0')
xch(T0, T1)
e('s_branch L_x1\nL_x0:')
xch(T1, T0)
e('L_x1:')
for i in range(8): e(f'v_pk_add_f32 {vr(T0+2*i,2)}, {vr(T0+2*i,2)}, {vr(T1+2*i,2)}')
for i in range(8): e(f'v_cvt_pk_bf16_f32 v{T1+i}, v{T0+2*i}, v{T0+2*i+1}')
e(f"""buffer_store_dwordx4 {vr(T1,4)}, v{vL16}, {sr(SRD_WS)}, s{sA} offen sc1
buffer_store_dwordx4 {vr(T1+4,4)}, v{vL16}, {sr(SRD_WS)}, s{sA} offen offset:1024 sc1
v_subrev_u32 v{a0}, 16, v{V_GRP}""")
if OM:
    e(f'''v_mov_b64 {vr(T0,2)}, -1
    v_mov_b64 {vr(T0+2,2)}, -1
    s_mul_i32 s{sA}, s{S_C}, {8*KS}
    s_add_u32 s{sA}, s{sA}, s{sOl}
    s_add_u32 s{sSk}, s{sA}, {4*KS}
    buffer_store_dwordx4 {vr(T0,4)}, v{vOl}, {sr(SRD_WS)}, s{sA} offen sc1
    buffer_store_dwordx4 {vr(T0,4)}, v{vOl}, {sr(SRD_WS)}, s{sSk} offen sc1''')
sync(7)
if OPT['only'] != 1: lwait(7, addr=a0)
e('s_waitcnt vmcnt(0)')
publish(sB, a0)
stamp(6)
if OPT['abl'] == 33: e('s_endpgm')
e(f"""s_mul_i32 s{sA}, s{S_W}, {16*896}
s_lshl_b32 s{sB}, s{S_C}, 7
s_add_u32 s{sA}, s{sA}, s{sB}
s_lshl_b32 s{sB}, s{S_W}, 11
s_add_u32 s{sB}, s{sB}, {L_WO}""")
for ch in range(7):
    e(f"""s_add_u32 m0, s{sB}, {8192*ch}
    s_add_u32 s{sSk}, s{sA}, {64*896*ch}
    buffer_load_dwordx4 v{vWoD}, {sr(SRD_B)}, s{sSk} offen lds
    buffer_load_dwordx4 v{vWoD+1}, {sr(SRD_B)}, s{sSk} offen offset:1024 lds
    s_waitcnt vmcnt({OPT['wodepth'] if ch < 6 else 0})""")
WF, OF, OC = 8, 168, 224
arrive(8)
e(f"""buffer_load_dword v{a0}, v{vFy}, {sr(SRD_WS)}, 0 offen sc1
s_mul_i32 s{sA}, s{sCh0}, {YS}
s_lshl_b32 s{sSk}, s{S_J}, 7
s_add_u32 s{sA}, s{sA}, s{sSk}
s_add_u32 s{sA}, s{sA}, {WS_Y}
s_add_u32 s{sSk}, s{sA}, {8*YS}""")
lwait(8)
stamp(7)
if OPT['abl'] == 34: e('s_endpgm')
def wo_reads(k):
    r = []
    for t in range(4):
        for hf in range(2):
            r.append(f'ds_read_b64_tr_b16 {vr(WF + 16*(k%10) + 4*t + 2*hf, 2)}, v{vWoR + (t>>1)} offset:{4096*k + 512*hf + 8*(t&1)}')
    return r
for k in range(10): e('\n'.join(wo_reads(k)))
arrive(9)
poll(vFy, first_issued=True, sleep=OPT['ysleep'], reg=a0)
stamp(8)
if OPT['abl'] == 35: e('s_endpgm')
e(f"""buffer_load_dwordx4 {vr(OF,4)}, v{vYl}, {sr(SRD_WS)}, s{sA} offen sc1
buffer_load_dwordx4 {vr(OF+4,4)}, v{vYl}, {sr(SRD_WS)}, s{sSk} offen sc1
s_lshr_b32 s{sA}, s{S_J}, 4
s_lshl_b32 s{sA}, s{sA}, 10
s_and_b32 s{sB}, s{S_J}, 3
s_lshl_b32 s{sB}, s{sB}, 8
s_add_u32 s{sA}, s{sA}, s{sB}
s_and_b32 s{sB}, s{S_J}, 8
s_lshl1_add_u32 s{sA}, s{sB}, s{sA}
s_and_b32 s{sB}, s{S_J}, 4
s_add_u32 s{sA}, s{sA}, s{sB}
s_mul_i32 s{sA}, s{sA}, 1792
s_lshl1_add_u32 s{sA}, s{sCh0}, s{sA}
s_add_u32 s{sB}, s{sA}, {128*1792}
v_xor_b32 v{a0}, 64, v{vBw}""")
lwait(9)
e(f"""s_waitcnt vmcnt(0)
ds_write_b128 v{vXo}, {vr(OF,4)}
ds_write_b128 v{vXo}, {vr(OF+4,4)} offset:1024""")
for z in range(2):
    for hf in range(2):
        e(f'ds_read_b64_tr_b16 {vr(OF + 8 + 4*z + 2*hf, 2)}, v{vTr} offset:{64*z + 512*hf}')
e(f"""s_waitcnt lgkmcnt(0)
buffer_store_dwordx4 {vr(OF+8,4)}, v{vYs}, {sr(SRD_C)}, s{sA} offen {OUTM}
buffer_store_dwordx4 {vr(OF+12,4)}, v{vYs}, {sr(SRD_C)}, s{sB} offen {OUTM}""")
if OPT['only'] == 1:
    stamp(9); stamp(13); prof_out(); e('s_endpgm')
if OM: poll(vFo, sleep=8)
if OM == 4:
    e(f'''s_lshl2_add_u32 s{sA}, s{S_J}, s{S_W}
    s_lshr_b32 s{sA}, s{sA}, 1
    s_lshl_b32 s{sA}, s{sA}, {4 + FSH}
    s_add_u32 s{sA}, s{sA}, {F_O}
    v_and_b32 v{vFo}, 15, v{V_LANE}
    v_lshl_add_u32 v{vFo}, v{vFo}, {FSH}, s{sA}''')
sOk, sLast = 4, 18
for k in range(14): e(f's_add_u32 s{sOk+k}, s{sOl}, {4*KS*k}')
stamp(9)
e('s_barrier')
stamp(10)
if OPT['osleep']: e(f"s_sleep {OPT['osleep']}")
if OM != 3: poll(vFo, sleep=OPT['hsleep'])
if OM: e(f's_min_u32 s{S_BOUND}, s{S_BOUND}, 0x4000')
stamp(11)
def o_load(k): return f'buffer_load_dwordx4 {vr(OF+4*k,4)}, v{vOl}, {sr(SRD_WS)}, s{sOk+k} offen sc1'
def o_chk(k):
    o = OF + 4*k
    return [f's_waitcnt vmcnt({13-k})', f'v_max3_u32 v6, v{o}, v{o+1}, v{o+2}', f'v_max_u32 v6, v6, v{o+3}', 'v_cmp_eq_u32 vcc, -1, v6']
for k in range(14): e(o_load(k))
if OM: e('\n'.join(o_chk(0)))
for k in range(14):
    o = OF + 4*k
    m = [f'v_mfma_f32_16x16x32_bf16 {vr(OC+4*t,4)}, {vr(WF + 16*(k%10) + 4*t, 4)}, {vr(o,4)}, {"0" if k == 0 else vr(OC+4*t,4)}' for t in range(4)]
    rd = wo_reads(k + 9) if 1 <= k <= 4 else []
    if k == 10: e('s_waitcnt lgkmcnt(0)')
    if OM:
        e(f's_cbranch_vccnz L_or{k}\nL_og{k}:')
        c = o_chk(k + 1) if k < 13 else ['', '', '', '']
        e('\n'.join([m[0]] + rd[:4] + [m[1]] + rd[4:] + [m[2], c[0], c[1], c[2], m[3], c[3]]))
    else:
        e(f's_waitcnt vmcnt({13-k})'); e('\n'.join(m + rd))
stamp(12)
e('s_nop 4')
for i in range(8): e(f'v_cvt_pk_bf16_f32 v{16+i}, v{OC+2*i}, v{OC+2*i+1}')
e(f"""ds_write_b128 v{vBw}, {vr(16,4)}
ds_write_b128 v{a0}, {vr(20,4)}
ds_read_b128 {vr(24,4)}, v{vBr}
ds_read_b128 {vr(28,4)}, v{vBr} offset:1024
s_or_b32 s{sA}, s2, s{S_W}
s_waitcnt lgkmcnt(1)
buffer_store_dwordx4 {vr(24,4)}, v{vOut}, {sr(SRD_C)}, s{sOut} offen {OUTM2}
s_waitcnt lgkmcnt(0)
buffer_store_dwordx4 {vr(28,4)}, v{vOut}, {sr(SRD_C)}, s{sOut+1} offen {OUTM2}
s_cbranch_scc1 L_noepoch""")
publish(sA, 6)
e('L_noepoch:')
if OPT['prof']:
    e('s_waitcnt vmcnt(0)')
stamp(13)
prof_out()
e('L_end:\ns_endpgm')
if OM:
    for k in range(14):
        c = o_chk(k)
        e(f'''L_or{k}:
        s_call_b64 s[90:91], L_re{k}
        {c[0]}
        L_oc{k}:
        {c[1]}
        {c[2]}
        {c[3]}
        s_cbranch_vccz L_og{k}
        {'s_sleep %d' % OPT['rsleep'] if OPT['rsleep'] else ''}
        {o_load(k)}
        s_sub_u32 s{S_BOUND}, s{S_BOUND}, 1
        s_waitcnt vmcnt(0)
        s_cbranch_scc0 L_oc{k}
        s_mov_b32 s{S_BOUND}, 0
        s_branch L_og{k}''')
    for k in range(14): e(f'L_re{k}:\n{o_load(k)}')
    e('s_setpc_b64 s[90:91]')
sec('idle')
e('L_ssm_idle:')
if OPT['only'] == 2:
    arrive(1); e('s_endpgm')
hi()
e(f"""v_lshrrev_b32 v10, 3, v{V_LANE}
v_and_b32 v11, 7, v{V_LANE}
v_lshlrev_b32 v11, 4, v11
v_mul_u32_u24 v5, 896, v10
v_add_u32 v5, v5, v11
v_add_u32 v6, {7168-1024}, v5
s_lshl2_add_u32 s60, s{S_J}, s{S_W}
s_mul_i32 s61, s60, {16*896}
s_mul_i32 s62, s{S_W}, 14336
s_add_u32 s62, s62, {L_SSM}
s_mov_b32 s{SRD_A+2}, {2048*896}
s_mov_b32 s{SRD_A+3}, 0x20000
s_waitcnt lgkmcnt(0)
s_load_dword s{S_NONCE}, s[28:29], 0
s_mov_b64 s[{SRD_A}:{SRD_A+1}], s[4:5]""")
for c in range(7):
    e(f"""s_add_u32 m0, s62, {2048*c - 128*c}
    s_nop 0
    buffer_load_dwordx4 v5, {sr(SRD_A)}, s61 offen offset:{128*c} lds
    buffer_load_dwordx4 v6, {sr(SRD_A)}, s61 offen offset:{1024 + 128*c} lds""")
    if c == OPT['tb']: e('s_barrier')
    if c == 1:
        srd(SRD_WS, 28, WS_SIZE)
        e(f"""; transposing read: row = 8*(cc&1)+r', byte = 8*(2G+(cc>>1))
        v_mul_u32_u24 v7, {QS}, v10
        v_add_u32 v7, v7, v11
        v_bfe_u32 v8, v{V_LANE}, 2, 2
        v_and_b32 v9, 1, v{V_LANE}
        v_lshl_or_b32 v8, v9, 3, v8
        v_xor_b32 v8, 3, v8
        v_lshl_add_u32 v8, v8, 7, s62
        v_and_b32 v9, 0x30, v{V_LANE}
        v_add_u32 v8, v8, v9
        v_and_b32 v9, 2, v{V_LANE}
        v_lshl_add_u32 v8, v9, 2, v8
        s_lshl_b32 s63, s60, 7
        s_add_u32 s63, s63, {WS_U}
        s_lshl_b32 s65, s{S_J}, {FSH}
        s_add_u32 s65, s65, {F_U}""")
e(f's_waitcnt lgkmcnt(0)\ns_add_u32 s{S_NONCE}, s{S_NONCE}, 1')
arrive(1)
def t_rd(c):
    return [f'ds_read_b64_tr_b16 {vr(16 + 8*c + 4*z + 2*hf, 2)}, v8 offset:{2048*c + 64*z + 512*(1-hf)}' for z in range(2) for hf in range(2)]
e('s_waitcnt vmcnt(12)'); stamp(1); e('\n'.join(t_rd(0)))
for c in range(7):
    if c < 6:
        e('s_waitcnt vmcnt(10)'); e('\n'.join(t_rd(c + 1)))
    e(f"""s_add_u32 s64, s63, {8*QS}
    s_waitcnt lgkmcnt({4 if c < 6 else 0})
    buffer_store_dwordx4 {vr(16+8*c,4)}, v7, {sr(SRD_WS)}, s63 offen sc1
    buffer_store_dwordx4 {vr(20+8*c,4)}, v7, {sr(SRD_WS)}, s64 offen sc1
    s_add_u32 s63, s63, {16*QS}""")
    if c + 7 == OPT['tb']: e('s_barrier')
stamp(2)
e(f"""v_mov_b32 v5, 1
v_mov_b32 v6, 0
s_waitcnt vmcnt(0)
s_mov_b64 exec, 1
ds_add_rtn_u32 v5, v6, v5 offset:36
s_waitcnt lgkmcnt(0)
v_readfirstlane_b32 s60, v5
s_mov_b64 exec, -1
s_cmp_lg_u32 s60, 3
s_cbranch_scc1 L_idle_end""")
publish(65, 6)
e('L_idle_end:'); stamp(4)
if OPT['prof']: prof_out()
e('s_endpgm')
ORDER = [['pro', 'ssm0', 'mha0', 'idle', 'ssm', 'mha'], ['pro', 'ssm0', 'mha0', 'mha', 'ssm', 'idle'],
         ['pro', 'ssm0', 'mha0', 'ssm', 'mha', 'idle'], ['pro', 'ssm0', 'idle', 'mha0', 'mha', 'ssm']][OPT['ord']] + ['cold', 'gt', 'fb']
SEC.setdefault('cold', [])
BODY = sum((SEC[n] for n in ORDER), [])
def sizes(lines):
    import subprocess, re, os, tempfile
    d = tempfile.mkdtemp()
    open(d + '/a.s', 'w').write('.amdgcn_target "amdgcn-amd-amdhsa--gfx950"\n.text\n' + '\n'.join(lines) + '\n')
    subprocess.check_call(['clang', '-x', 'assembler', '-target', 'amdgcn-amd-amdhsa', '-mcpu=gfx950', '-c', d + '/a.s', '-o', d + '/a.o'])
    o = subprocess.check_output(['llvm-objdump', '-d', '--mcpu=gfx950', d + '/a.o']).decode()
    return [4 * len(m.group(1).split()) for m in re.finditer(r'// [0-9A-F]{12}: ((?:[0-9A-F]{8} ?)+)', o)]
def is_ins(l):
    t = l.split(';')[0].strip()
    return bool(t) and not t.endswith(':')
def widen(l):
    import re
    t = l.split(';')[0].strip(); op = t.split()[0]
    if op.startswith('v_') and not op.startswith(('v_readfirstlane', 'v_swap', 'v_permlane', 'v_nop')):
        return l.replace(op, op + '_e64', 1)
    return None
if OPT['al']:
    sz = iter(sizes(BODY))
    I = [[l, next(sz) if is_ins(l) else 0] for l in BODY]
    res = []; addr = 0; nw = nn = 0
    for i, (l, n) in enumerate(I):
        if n == 8 and addr % 8 == 4:
            run = 0
            for l2, n2 in I[i:]:
                if n2 == 4: break
                run += n2 == 8
            cross = sum(1 for k in range(run) if (addr + 8*k) % 32 == 28)
            if cross:
                j = len(res) - 1; done = False; aj = addr
                while j >= 0 and res[j][1] in (0, 4):
                    aj -= res[j][1]
                    t = res[j][0].strip()
                    if t.startswith(('s_branch', 's_endpgm', 's_setpc')):
                        res.insert(j + 1, ['    s_nop 0', 4]); done = True; break
                    w = widen(res[j][0]) if res[j][1] == 4 and aj % 32 != 28 else None
                    if w:
                        res[j] = [w, 8]; done = True; nw += 1; break
                    j -= 1
                if not done and run >= OPT['alr']:
                    k = len(res)
                    while res[k-1][1] == 0: k -= 1
                    res.insert(k, ['    s_nop 0', 4]); done = True; nn += 1
                if done: addr += 4
        res.append([l, n]); addr += n
    BODY = [l for l, n in res]
    print('aligned: widened', nw, 'nops', nn, 'bytes', addr, file=sys.stderr)
hdr = open('header.txt').read()
txt = hdr + f'''; @launch grid=(256,1,1) block=(512,1,1) lds={L_TOT}
.amdgcn_target "amdgcn-amd-amdhsa--gfx950"
.text
.globl {KN}
.p2align 8
.type {KN},@function
{KN}:
''' + '\n'.join(BODY) + f'''
.section .rodata,"a"
.p2align 6
.amdhsa_kernel {KN}
  .amdhsa_next_free_vgpr 256
  .amdhsa_next_free_sgpr 102
  .amdhsa_accum_offset 256
  .amdhsa_group_segment_fixed_size 0
  .amdhsa_kernarg_size 104
  .amdhsa_user_sgpr_count 2
  .amdhsa_user_sgpr_kernarg_segment_ptr 1
  .amdhsa_system_sgpr_workgroup_id_x 1
.end_amdhsa_kernel
'''
open(sys.argv[1], 'w').write(txt)
```

```python
import sys, struct
def fl(x): return hex(struct.unpack('<I', struct.pack('<f', x))[0])

KN = 'concat_heads__ssm_conv_s4d__softmax_full_mha__prompt_kernel'
OPT = dict(rdn=0, al=1, alr=6, fw=0, rsleep=0, hsleep=0, ord=3, nb=0, tb=13, tq=1, chkk=99, uw=-2, cw=0, s6=5, tskip=1, ones=1, pa=1, pr=2, pf=2, wgf=2, ax=0, bp=3, qa=7, n0=4, ilv=8, tlb=0, ulook=1, kgp=1, pad=0, ypad=0, omode=3, ksleep=0, usleep=4, obar=5, osleep=0, pubk=8, abl=0, touch=0, gs=0, kgw=0, xg=5, gx=0, pm=2, ps=0, rt=0, upub=1, kgx=0, outsc=0, ysleep=8, wodepth=4, wq_mid=0, pollk=99, rd=-1, rdrole=0, only=0, safe=0, rot=0, prof=0, fs=128, force_fb=0, wq_early=7, prio=1)
for a in sys.argv[2:]:
    k, v = a.split('=')
    assert k in OPT, k
    OPT[k] = int(v, 0)

FS = OPT['fs']
FSH = FS.bit_length() - 1
F_KV = 0x1000
F_O = F_KV + 1024 * FS
F_U = F_O + 1024 * FS
F_Y = F_U + 1024 * FS
F_H = F_Y + 1024 * FS
WS_K = 0x100000
WS_V = 0x300000
WS_O = 0x500000
WS_U = 0x700000
WS_Y = 0x900000
QS = 16384 + OPT['pad']; KS = 2 * QS; YS = 4096 + OPT['ypad']
S_KS = 57
WS_PROF = 0xb00000
WS_SIZE = 0xc00000
L_SSM = 1024
L_W = 57344
L_RB = 65536
L_X = 114688
L_TOT = 163840
TROW = 288
TABSZ = 38 * TROW
L_TAB = L_SSM
P_SZ = 2 * TABSZ
P_UC = 1536
UC_S = 2240
P_KD = TABSZ + 1536
P_X = TABSZ
PS = 1552
PD = 4 * PS
L_KP = L_TAB + 4 * TABSZ
assert P_UC + 4 * UC_S <= TABSZ and P_KD + 1600 <= P_SZ and P_X + 8192 <= P_SZ and L_KP % 16 == 0 and L_KP + 2 * PD <= L_W
L_WO = L_SSM

S_WV, S_W, S_HG, S_C, S_TILE, S_J, S_H, S_NONCE, S_O0, S_ROT = range(30, 40)
SRD_WS, SRD_A, SRD_B, SRD_C = 40, 44, 48, 52
S_BOUND = 56
S_T0 = 58

SEC = {}
out = None
def sec(n):
    global out
    out = SEC.setdefault(n, [])
sec('pro')
def e(s):
    for l in s.split('\n'):
        l = l.strip()
        if l:
            out.append(l if l.endswith(':') else '    ' + l)
_lab = [0]
def lab(p):
    _lab[0] += 1
    return f'L_{p}_{_lab[0]}'
def vr(a, n):
    return f'v[{a}:{a+n-1}]' if n > 1 else f'v{a}'
def srd(d, b, n):
    e(f's_mov_b64 s[{d}:{d+1}], s[{b}:{b+1}]\ns_mov_b32 s{d+2}, {n}\ns_mov_b32 s{d+3}, 0x20000')
def sr(d): return f's[{d}:{d+3}]'

V_LANE, V_T, V_OWN, V_GRP, V_PROF = 0, 1, 2, 3, 4

ROLE = [0]
def stamp(i):
    if OPT['rd'] == i and OPT['rdrole'] == ROLE[0]:
        e('s_memrealtime s[100:101]\ns_waitcnt lgkmcnt(0)')
    if OPT['prof'] > (i >= 14):
        e(f's_mem{"real" if OPT["rt"] else ""}time s[96:97]\ns_waitcnt lgkmcnt(0)\ns_sub_u32 s96, s96, s{98 if OPT["rt"] else S_T0}\nv_writelane_b32 v{V_PROF}, s96, {i}')
def prof_out():
    if OPT['rd'] >= 0 and OPT['rdrole'] == ROLE[0]:
        l = lab('pad')
        if ROLE[0] == 0 and not OPT['obar']: e('s_barrier')
        if ROLE[0] == 2: e('s_barrier')
        if ROLE[0] == 0 and OPT['rdn']: e(f's_cmp_eq_u32 s{S_C}, 7\ns_cbranch_scc{2 - OPT["rdn"]} L_end')
        if OPT['rd'] == 98:
            e(f'''s_not_b32 s100, s100
            v_mov_b32 v5, s100
            v_mov_b32 v6, 0
            s_mov_b64 exec, 1
            global_atomic_umax v6, v5, s[26:27]
            s_waitcnt vmcnt(0)
            s_sleep 127
            s_sleep 127
            s_sleep 127
            s_sleep 127
            s_sleep 127
            global_load_dword v5, v6, s[26:27] sc1
            s_waitcnt vmcnt(0)
            v_readfirstlane_b32 s100, v5
            s_not_b32 s100, s100''')
        e('s_sub_u32 s100, s100, s58\ns_lshl_b32 s100, s100, 3\ns_add_u32 s100, s100, s58')
        e(f'''s_add_u32 s100, s100, 6000
        {l}:
        s_sleep 1
        s_memrealtime s[96:97]
        s_waitcnt lgkmcnt(0)
        s_sub_u32 s96, s96, s100
        s_cmp_lt_i32 s96, 0
        s_cbranch_scc1 {l}''')
    if OPT['prof']:
        e(f'''s_memrealtime s[96:97]
        s_waitcnt lgkmcnt(0)
        v_writelane_b32 v{V_PROF}, s96, 31
        v_writelane_b32 v{V_PROF}, s98, 30
        s_lshl_b32 s96, s2, 3
        s_add_u32 s96, s96, s{S_WV}
        s_lshl_b32 s96, s96, 7
        s_add_u32 s96, s96, {WS_PROF}
        v_lshlrev_b32 v{V_T}, 2, v{V_LANE}
        s_mov_b32 exec_hi, 0
        buffer_store_dword v{V_PROF}, v{V_T}, {sr(SRD_WS)}, s96 offen
        s_mov_b64 exec, -1''')

def arrive(stage):
    e(f'v_mov_b32 v{V_T}, {stage}\nds_write_b32 v{V_OWN}, v{V_T}')
def lwait(stage, addr=V_GRP, sleep=0):
    l = lab('lw')
    e(f'{l}:')
    if sleep: e(f's_sleep {sleep}')
    e(f'''ds_read_b32 v{V_T}, v{addr}
    s_waitcnt lgkmcnt(0)
    v_cmp_gt_u32 vcc, {stage}, v{V_T}''')
    if OPT['safe']:
        d = lab('ld')
        e(f'''s_cbranch_vccz {d}
        s_sub_u32 s{S_BOUND}, s{S_BOUND}, 1
        s_cbranch_scc0 {l}
        s_mov_b32 s{S_BOUND}, 0
        {d}:''')
    else:
        e(f's_cbranch_vccnz {l}')
def sync(stage):
    arrive(stage); lwait(stage)
def poll(voff, first_issued=False, sleep=0, reg=V_T):
    l, d, m = lab('pl'), lab('pd'), lab('pm')
    if first_issued == 2:
        e(f's_waitcnt vmcnt(0)\nv_cmp_ne_u32 vcc, s{S_NONCE}, v{reg}\ns_cbranch_vccnz {l}\n{d}:')
        cur = [n for n in SEC if SEC[n] is out][0]
        sec('cold')
        e(f'''{l}:
        buffer_load_dword v{reg}, v{voff}, {sr(SRD_WS)}, 0 offen sc1
        s_waitcnt vmcnt(0)
        v_cmp_ne_u32 vcc, s{S_NONCE}, v{reg}
        s_cbranch_vccz {d}
        s_sub_u32 s{S_BOUND}, s{S_BOUND}, 1
        s_cbranch_scc0 {l}
        s_mov_b32 s{S_BOUND}, 0
        s_branch {d}''')
        sec(cur)
        return
    if first_issued: e(f's_branch {m}')
    e(f'{l}:')
    if sleep: e(f's_sleep {sleep}')
    e(f'''buffer_load_dword v{reg}, v{voff}, {sr(SRD_WS)}, 0 offen sc1
    {m}:
    s_waitcnt vmcnt(0)
    v_cmp_ne_u32 vcc, s{S_NONCE}, v{reg}
    s_cbranch_vccz {d}
    s_sub_u32 s{S_BOUND}, s{S_BOUND}, 1
    s_cbranch_scc0 {l}
    s_mov_b32 s{S_BOUND}, 0
    {d}:''')
def publish(soff, tmp):
    if OPT['fw']:
        e(f'''v_mov_b32 v{V_T}, s{S_NONCE}
        v_lshlrev_b32 v{tmp}, 2, v{V_LANE}
        s_mov_b64 exec, {hex((1 << OPT['fw']) - 1)}
        buffer_store_dword v{V_T}, v{tmp}, {sr(SRD_WS)}, s{soff} offen sc1
        s_mov_b64 exec, -1'''.replace('s_mov_b64 exec, 0xffffffff', 's_mov_b32 exec_hi, 0'))
        return
    e(f'''v_mov_b32 v{V_T}, s{S_NONCE}
    v_mov_b32 v{tmp}, 0
    s_mov_b64 exec, 1
    buffer_store_dword v{V_T}, v{tmp}, {sr(SRD_WS)}, s{soff} offen sc1
    s_mov_b64 exec, -1''')
def swap23(d, s, t):
    e(f'''v_lshrrev_b32 v{t}, 1, v{s}
    v_xor_b32 v{t}, v{t}, v{s}
    v_and_b32 v{t}, 4, v{t}
    v_mul_u32_u24 v{t}, 3, v{t}
    v_xor_b32 v{d}, v{t}, v{s}''')
def rot_next(s):
    e(f's_add_u32 s{s}, s{s}, 1\ns_cmp_eq_u32 s{s}, 7\ns_cselect_b32 s{s}, 0, s{s}')

e(f'''s_cmp_ge_u32 s2, 256
s_cbranch_scc1 L_end''')
if OPT['prof']:
    e(f's_memtime s[{S_T0}:{S_T0+1}]\ns_memrealtime s[98:99]\nv_mov_b32 v{V_PROF}, 0')
if OPT['rd'] >= 0: e('s_memrealtime s[100:101]\ns_memrealtime s[58:59]')
e(f'''s_load_dwordx16 s[4:19], s[0:1], 0
s_load_dwordx8 s[20:27], s[0:1], 64
s_load_dwordx2 s[28:29], s[0:1], 96
v_lshrrev_b32 v{V_OWN}, 6, v0
v_and_b32 v{V_LANE}, 63, v0
v_readfirstlane_b32 s{S_WV}, v{V_OWN}
v_lshlrev_b32 v{V_OWN}, 2, v{V_OWN}
v_mov_b32 v{V_T}, 0
ds_write2_b32 v{V_OWN}, v{V_T}, v{V_T} offset1:8
v_and_b32 v{V_GRP}, 3, v{V_LANE}
v_lshlrev_b32 v{V_GRP}, 2, v{V_GRP}
s_and_b32 s{S_HG}, s2, 1
s_bfe_u32 s60, s2, 0x20001
s_bfe_u32 s{S_C}, s2, 0x30003
s_lshr_b32 s61, s2, 6
s_lshl2_add_u32 s{S_TILE}, s60, s61
s_lshl1_add_u32 s{S_J}, s{S_TILE}, s{S_HG}
s_lshl3_add_u32 s{S_H}, s{S_HG}, s{S_C}
s_and_b32 s{S_W}, s{S_WV}, 3
s_mov_b32 s{S_BOUND}, 0x40000
s_mov_b32 s{S_KS}, {KS}
s_cmp_lt_u32 s{S_WV}, 4
s_cbranch_scc1 L_mha''')

VX = 144; VACC = 96; VWF = 32; VPK = 128
VV, VK, VS, VO, VQ = 32, 64, 96, 160, 224
vWd = [5, 6]; vXd = [7, 8, 9, 10]; vXr = [11, 12, 13, 14]; vWb, vW0, vW1 = 15, 16, 17
vRho, vG, vSt, vQd, vQr, vFl, vA, vB, vC = 18, 19, 20, 21, 22, 23, 24, 25, 26
vKo0, vKo1, vVo, vIdx = 27, 28, 29, 30
sXb, sWb, sCh, sCw, sLx, sTmp, sTmp2, sSt, sS1, sS2, sFl = range(60, 71)
sK, sV, sIt = 71, 72, 73
sFo, sO0, sO1 = 84, 85, 86
vOs, vQw = vRho, vG
vRb = [7, 8, 9]; vQx = [11, 12, 13]; vRr = 10
sMask = 74
sOdd = 76

sec('mha0')
e('L_mha:')
if OPT['prio']: e(f"s_setprio {OPT['pm']}")
e(f'''s_mul_i32 s{S_O0}, s{S_H}, 7
s_lshr_b32 s{S_O0}, s{S_O0}, 1''')
e(f'''v_lshrrev_b32 v{vA}, 3, v{V_LANE}          ; r
v_and_b32 v{vB}, 7, v{V_LANE}                    ; p
v_lshlrev_b32 v{vC}, 1, v{vA}
v_and_b32 v{vC}, 4, v{vC}
v_xor_b32 v{vC}, v{vC}, v{vB}
v_lshlrev_b32 v{vC}, 4, v{vC}
v_mul_u32_u24 v{vWd[0]}, 2688, v{vA}
v_add_u32 v{vWd[0]}, v{vWd[0]}, v{vC}
v_add_u32 v{vWd[1]}, {8*2688-1024}, v{vWd[0]}
v_lshrrev_b32 v{vC}, 1, v{vA}
v_xor_b32 v{vC}, v{vC}, v{vB}
v_lshlrev_b32 v{vC}, 4, v{vC}
v_mul_u32_u24 v{vA}, 896, v{vA}
v_add_u32 v{vXd[0]}, v{vA}, v{vC}
v_xor_b32 v{vC}, 64, v{vC}
v_add_u32 v{vXd[1]}, v{vA}, v{vC}
v_add_u32 v{vXd[1]}, {7168-1024}, v{vXd[1]}
v_add_u32 v{vXd[2]}, {2*(7168-1024)}, v{vXd[0]}
v_add_u32 v{vXd[3]}, {2*(7168-1024)}, v{vXd[1]}
s_lshl2_add_u32 s{sXb}, s{S_TILE}, s{S_W}
s_lshl_b32 s{sFl}, s{S_H}, 6
s_add_u32 s{sFl}, s{sFl}, s{S_TILE if OPT['wgf'] else sXb}
s_lshl_b32 s{sFl}, s{sFl}, {FSH}
s_add_u32 s{sFl}, s{sFl}, {F_KV}
s_mul_i32 s{sXb}, s{sXb}, {32*896}
s_mul_i32 s{sTmp2}, s{S_HG}, 3
s_lshr_b32 s{sTmp}, s2, 6
s_add_u32 s{sTmp2}, s{sTmp2}, s{sTmp}
s_mul_i32 s{sWb}, s{S_HG}, 7
s_add_u32 s{sWb}, s{sWb}, s{S_C}
s_add_u32 s{sWb}, s{sWb}, 7
s_cmp_eq_u32 s{S_C}, 7
s_cselect_b32 s{sWb}, {'s%d' % sTmp2 if OPT['tq'] else '0x100000'}, s{sWb}
s_cselect_b32 s{sS1}, 1, s{S_W}
s_lshl_b32 s{sWb}, s{sWb}, 7
s_mul_i32 s{sTmp}, s{S_W}, {16*2688}
s_add_u32 s{sWb}, s{sWb}, s{sTmp}
s_mul_i32 s{sLx}, s{S_W}, 12288
s_add_u32 s{sLx}, s{sLx}, {L_X}
s_lshl_b32 s{sS1}, s{sS1}, 11
s_add_u32 s{sS1}, s{sS1}, {L_W}
s_mov_b32 s{SRD_A+2}, {2048*896}
s_mov_b32 s{SRD_A+3}, 0x20000
s_mov_b32 s{SRD_B+2}, {448*1344*2}
s_mov_b32 s{SRD_B+3}, 0x20000
s_mov_b32 m0, s{sLx}
s_waitcnt lgkmcnt(0)
s_mov_b64 s[{SRD_A}:{SRD_A+1}], s[18:19]
s_mov_b64 s[{SRD_B}:{SRD_B+1}], s[20:21]
s_load_dword s{S_NONCE}, s[28:29], 0''')
stamp(22)
sWo = 88
def w_lines(st):
    return [f's_add_u32 m0, s{sS1}, {8192*st}', f's_add_u32 s{sWo+st}, s{sWb}, {64*2688*st}'] + \
           [f'buffer_load_dwordx4 v{vWd[i]}, {sr(SRD_B)}, s{sWo+st} offen offset:{1024*i} lds' for i in range(2)]
def x_chunk(st):
    return [f's_add_u32 m0, s{sLx}, {(st%3)*4096 - 128*st}', 's_nop 0'] + \
           [f'buffer_load_dwordx4 v{vXd[i]}, {sr(SRD_A)}, s{sXb} offen offset:{1024*i + 128*st} lds' for i in range(4)]
DM = []
for l in [x_chunk(0), w_lines(0)] + [w_lines(i) for i in range(1, 7)] + [x_chunk(1), x_chunk(2)]:
    DM += [l[:3]] + [[x] for x in l[3:]]
DM[0] = DM[0][2:]
for i, g in enumerate(DM[:OPT['n0']]):
    if i == OPT['nb']:
        e('s_barrier'); stamp(23)
        if OPT['only'] == 1: e('s_endpgm')
    e('\n'.join(g))
DM = DM[OPT['n0']:]
stamp(24)
if OPT['ord'] not in (1, 3): e('s_branch L_mha1')
sec('mha')
e('L_mha1:')
stamp(25)
sec('tmp')
srd(SRD_WS, 28, WS_SIZE)
ONES = f'''s_bitcmp1_b32 s{S_H}, 0
s_cselect_b32 s{sTmp}, 0, 7
v_cmp_eq_u32 vcc, s{sTmp}, v{vA}
s_lshl_b32 s{sTmp}, s{S_O0}, 1
s_sub_u32 s{sTmp}, s{S_HG}, s{sTmp}
s_add_u32 s{sTmp}, s{sTmp}, 112
v_mov_b32 v{vB}, s{sTmp}
v_cndmask_b32 v{vA}, v{vA}, v{vB}, vcc
''' if OPT['ones'] else ''
FIX = f'''v_cmp_lt_u32 vcc, 7, v{vB}
s_lshl3_add_u32 s{sTmp}, s{S_HG}, 7
v_mov_b32 v{vB}, s{sTmp}
v_cndmask_b32 v{vC}, v{vC}, v{vB}, vcc
''' if OPT['ones'] else ''
FOM = f'''s_lshl_b32 s{sFo}, s{sTmp2}, 4
s_add_u32 s{sFo}, s{sFo}, s{S_H}
s_lshl_b32 s{sFo}, s{sFo}, {FSH}
s_add_u32 s{sFo}, s{sFo}, {F_O}
''' if OPT['omode'] != 3 else ''
e(f'''v_and_b32 v{vA}, 31, v{V_LANE}
v_lshrrev_b32 v{vG}, 5, v{V_LANE}''')
swap23(vRho, vA, vB)
e(f'''v_bfe_u32 v{vB}, v{vRho}, 1, 3
v_xor_b32 v{vB}, v{vB}, v{vG}
v_lshlrev_b32 v{vB}, 4, v{vB}
v_lshl_add_u32 v{vB}, v{vRho}, 7, v{vB}
v_add_u32 v{vXr[0]}, s{sLx}, v{vB}
v_xor_b32 v{vXr[1]}, 32, v{vXr[0]}
v_xor_b32 v{vXr[2]}, 64, v{vXr[0]}
v_xor_b32 v{vXr[3]}, 0x60, v{vXr[0]}
v_and_b32 v{vB}, 3, v{V_LANE}                     ; cc
v_lshrrev_b32 v{vC}, 1, v{vB}
v_and_b32 v{vQd}, 1, v{vB}
v_lshl_or_b32 v{vC}, v{vQd}, 1, v{vC}
v_bfe_u32 v{vQd}, v{V_LANE}, 4, 1
v_lshl_or_b32 v{vB}, v{vQd}, 2, v{vB}
v_lshl_or_b32 v{vC}, v{vQd}, 2, v{vC}
v_bfe_u32 v{vQd}, v{V_LANE}, 2, 2                  ; r'
v_lshl_or_b32 v{vFl}, v{vG}, 3, v{vQd}             ; 8g + r'
v_lshlrev_b32 v{vQr}, 6, v{vFl}
v_lshl_add_u32 v{vQr}, v{vC}, 3, v{vQr}
v_add_u32 v{vQr}, {L_X + 4096}, v{vQr}
s_cmp_eq_u32 s{S_HG}, 0
s_cselect_b64 vcc, -1, 0
v_cndmask_b32 v{vB}, v{vB}, v{vC}, vcc             ; K slabs use the exchanged order, V slabs the natural one
v_lshlrev_b32 v{vWb}, 7, v{vFl}
v_lshl_add_u32 v{vWb}, v{vB}, 3, v{vWb}
v_lshrrev_b32 v{vQd}, 1, v{vQd}
v_lshl_add_u32 v{vWb}, v{vQd}, 6, v{vWb}
v_add_u32 v{vW0}, {L_W}, v{vWb}
v_lshlrev_b32 v{vB}, 4, v{vRho}
v_mad_u32_u24 v{vB}, v{vG}, s{S_KS}, v{vB}
v_lshrrev_b32 v{vC}, 2, v{vA}
v_mul_u32_u24 v{vC}, {QS}, v{vC}
v_lshl_add_u32 v{vC}, v{vG}, 6, v{vC}
v_and_b32 v{vQd}, 3, v{vA}
v_lshl_add_u32 v{vC}, v{vQd}, 4, v{vC}
v_cndmask_b32 v{vSt}, v{vC}, v{vB}, vcc
s_lshl2_add_u32 s{sTmp}, s{S_TILE}, s{S_W}
s_lshl_b32 s{sTmp2}, s{sTmp}, 9
s_add_u32 s{sTmp2}, s{sTmp2}, {WS_K}
s_lshl_b32 s{sTmp}, s{sTmp}, 8
s_add_u32 s{sTmp}, s{sTmp}, {WS_V}
s_movk_i32 s{sS2}, 128
s_cmp_eq_u32 s{S_HG}, 0
s_cselect_b32 s{sSt}, s{sTmp2}, s{sTmp}
s_cselect_b32 s{sS2}, {2*KS}, s{sS2}
s_mul_i32 s{sTmp}, s{S_C}, {8*KS}
s_add_u32 s{sSt}, s{sSt}, s{sTmp}
v_lshrrev_b32 v{vB}, 2, v{V_LANE}
v_mul_u32_u24 v{vB}, 2688, v{vB}
v_lshl_add_u32 v{vQd}, v{vQd}, 4, v{vB}
s_lshl_b32 s82, s{S_O0}, 4
s_mul_i32 s{sTmp}, s{S_W}, {16*2688}
s_add_u32 s82, s82, s{sTmp}
s_lshr_b32 s{sTmp}, s{S_O0}, 3
s_add_u32 s{sTmp2}, s{S_O0}, 3
s_lshr_b32 s{sTmp2}, s{sTmp2}, 3
s_sub_u32 s{sTmp2}, s{sTmp2}, s{sTmp}
v_bfe_u32 v{vC}, v{V_LANE}, 4, 1
v_mul_u32_u24 v{vC}, s{sTmp2}, v{vC}
v_lshl_add_u32 v{vC}, v{vG}, 3, v{vC}
v_add_u32 v{vC}, s{sTmp}, v{vC}
v_and_b32 v{vB}, 15, v{V_LANE}
{FIX}v_and_b32 v{vB}, {3 if OPT['wgf'] else 15}, v{V_LANE}
v_lshl_add_u32 v{vC}, v{vC}, 6, v{vB}
s_lshl_b32 s{sTmp}, s{S_W}, {2 if OPT['wgf'] else 4}
v_add_u32 v{vC}, s{sTmp}, v{vC}
v_lshlrev_b32 v{vC}, {FSH}, v{vC}
v_add_u32 v{vFl}, {F_KV}, v{vC}
v_lshlrev_b32 v{vKo0}, 4, v{vA}
v_mad_u32_u24 v{vKo0}, v{vG}, s{S_KS}, v{vKo0}
v_add_u32 v{vKo1}, {2*KS}, v{vKo0}
v_lshrrev_b32 v{vA}, 2, v{vRho}
{ONES}v_mul_u32_u24 v{vA}, {QS}, v{vA}
v_lshl_add_u32 v{vA}, v{vG}, 6, v{vA}
v_and_b32 v{vB}, 3, v{V_LANE}
v_lshl_add_u32 v{vVo}, v{vB}, 4, v{vA}
v_mov_b32 v{vIdx}, 0xdddddddd
s_mul_i32 s{sTmp}, s{S_O0}, {KS}
s_lshl_b32 s{sK}, s{S_W}, 13
s_add_u32 s{sK}, s{sK}, s{sTmp}
s_add_u32 s{sK}, s{sK}, {WS_K}
s_lshl_b32 s{sV}, s{S_W}, 12
s_add_u32 s{sV}, s{sV}, s{sTmp}
s_add_u32 s{sV}, s{sV}, {WS_V}
s_lshl2_add_u32 s{sTmp2}, s{S_TILE}, s{S_W}
{FOM}s_lshl_b32 s{sTmp2}, s{sTmp2}, 9
s_add_u32 s{sO0}, s{sTmp}, s{sTmp2}
s_add_u32 s{sO0}, s{sO0}, {WS_O}
s_add_u32 s{sO1}, s{sO0}, {2*KS}
s_bitcmp1_b32 s{S_H}, 0
s_cselect_b64 s[{sOdd}:{sOdd+1}], -1, 0
v_mov_b32 v{vC}, 0x3e8b97f6
v_cmp_gt_u32 vcc, 32, v{V_LANE}
s_and_b64 s[78:79], vcc, s[{sOdd}:{sOdd+1}]
s_nor_b64 s[80:81], vcc, s[{sOdd}:{sOdd+1}]
v_cndmask_b32 v{vA}, v{vC}, 0, s[78:79]
v_cndmask_b32 v{vB}, v{vC}, 0, s[80:81]
s_mov_b32 s78, 0x3f803f80
s_mov_b32 s79, s78
v_xor_b32 v{vW1}, 64, v{vW0}
v_lshlrev_b32 v{vOs}, 4, v{vRho}
v_mad_u32_u24 v{vOs}, v{vG}, s{S_KS}, v{vOs}
v_lshl_add_u32 v{vQw}, v{V_LANE}, 4, s{sLx}''')
srd(SRD_C, 28, WS_SIZE)
def o_stores(r0, r1, tag):
    e(f'''s_bitcmp1_b32 s{S_H}, 0
    s_cbranch_scc1 L_ost_odd{tag}
    buffer_store_dwordx4 {vr(r0,4)}, v{vOs}, {sr(SRD_WS)}, s{sO0} offen sc1
    s_mov_b32 exec_hi, 0
    buffer_store_dwordx4 {vr(r1,4)}, v{vOs}, {sr(SRD_WS)}, s{sO1} offen sc1
    s_not_b64 exec, exec
    buffer_store_dwordx2 {vr(r1,2)}, v{vOs}, {sr(SRD_WS)}, s{sO1} offen sc1
    s_branch L_ost_done{tag}
    L_ost_odd{tag}:
    buffer_store_dwordx4 {vr(r1,4)}, v{vOs}, {sr(SRD_WS)}, s{sO1} offen sc1
    s_mov_b32 exec_hi, 0
    buffer_store_dwordx2 {vr(r0+2,2)}, v{vOs}, {sr(SRD_WS)}, s{sO0} offen offset:8 sc1
    s_not_b64 exec, exec
    buffer_store_dwordx4 {vr(r0,4)}, v{vOs}, {sr(SRD_WS)}, s{sO0} offen sc1
    L_ost_done{tag}:
    s_mov_b64 exec, -1''')
GS = 0
AB = [l for l in SEC.pop('tmp') if not l.strip().startswith(';')]
sec('mha')
def scc_pending(i):
    return i < len(AB) and AB[i].strip().startswith(('s_cselect', 's_mov_b32 s75'))
pos = 0
for g in DM:
    n = pos + OPT['ilv']
    while scc_pending(n): n += 1
    e('\n'.join(AB[pos:n])); pos = n
    e('\n'.join(g))
e('\n'.join(AB[pos:]))
stamp(0)
def x_reads(s):
    return [f'ds_read_b128 {vr(VX + 16*s + 4*ks, 4)}, v{vXr[ks]} offset:{(s%3)*4096}' for ks in range(4)]
e('s_waitcnt vmcnt(22)')
e('\n'.join(x_reads(0)))
e('s_waitcnt vmcnt(8) lgkmcnt(0)')
arrive(1)
stamp(1)
e('\n'.join(x_chunk(3)))
e('s_waitcnt vmcnt(8)')
e('\n'.join(x_reads(1)))
lwait(1)
e(f's_add_u32 s{S_NONCE}, s{S_NONCE}, 1')
stamp(2)
def w_reads(s):
    r = []
    for ks in range(4):
        for ct in range(2):
            for hf in range(2):
                d = VWF + 32 * (s & 1) + 8 * ks + 4 * ct + 2 * hf
                r.append(f'ds_read_b64_tr_b16 {vr(d,2)}, v{(vW0, vW1)[ct]} offset:{s*8192 + ks*2048 + hf*512}')
    return r
if OPT['tskip']: e(f's_cmp_eq_u32 s{S_C}, 7\ns_cbranch_scc1 L_gemm_t')
e('\n'.join(w_reads(0)))
e(f'''s_waitcnt lgkmcnt(0)
s_cmp_lg_u32 s{S_HG}, 0
s_cbranch_scc1 L_gemm_v''')
sQb, sQc = 82, 83
NE = OPT['wq_early']
def wq_dma(st):
    return [f's_add_u32 m0, s{sLx}, {4096 + 1024*st}\ns_add_u32 s83, s82, {64*2688*st}', '', f'buffer_load_dwordx4 v{vQd}, {sr(SRD_B)}, s83 offen lds']
SPIN = []
def gemm1(vpart):
    for s in range(7):
        M = []
        for ks in range(4):
            for ct in range(2):
                wf = vr(VWF + 32 * (s & 1) + 8 * ks + 4 * ct, 4); xf = vr(VX + 16 * s + 4 * ks, 4)
                acc = vr(VACC + 16 * ct, 16)
                a, b = (xf, wf) if vpart else (wf, xf)
                M.append(f'v_mfma_f32_32x32x16_bf16 {acc}, {a}, {b}, {"0" if s == 0 and ks == 0 else acc}')
        gaps = [[] for _ in range(8)]
        tag = f'{"v" if vpart else "k"}{s}'
        pre = []
        dm = []
        def add(l): dm.extend([(l[0], l[2])] + [(None, x) for x in l[3:]])
        if s <= 2: add(x_chunk(s + 4))
        if s == 3:
            for i in range(min(NE, 4)): add(wq_dma(i))
        if s == 4:
            for i in range(4, NE): add(wq_dma(i))
        n = {0: 8, 1: 8, 2: 8, 3: 4 + min(NE, 4), 4: NE}.get(s)
        for i, (m, l) in enumerate(dm):
            if m: (pre if i == 0 else gaps[i - 1]).append(m)
            gaps[i].append(l)
        if s < 6:
            wr = w_reads(s + 1)
            for i, (p, q) in enumerate(((0, 3), (3, 6), (6, 9), (9, 12), (12, 16))): gaps[i] += wr[p:q]
            if s <= 4: gaps[OPT['xg']] += [f's_waitcnt vmcnt({n})'] + x_reads(s + 2)
            gaps[7] += [f's_waitcnt lgkmcnt({4 if s == 4 and OPT["s6"] != 4 else 0})']
        if s == OPT['s6'] and (OPT['uw'] == 6 or OPT['cw'] == 6): gaps[6] += [f'v_mov_b32 v{V_T}, 6', f'ds_write_b32 v{V_OWN}, v{V_T}']
        if s == 5:
            gaps[7] += [f'v_add_u32 v31, 16, v{V_GRP}', f'ds_read_b32 v31, v31']
        if s == 6 and NE == 7:
            gaps[OPT['qa']] += ['s_waitcnt vmcnt(0)', f'v_mov_b32 v{V_T}, 7', f'ds_write_b32 v{V_OWN}, v{V_T}']
        e('\n'.join(pre))
        if OPT['gx'] & 1 or vpart == 2: M = ['s_nop 0'] * 8
        if OPT['gx'] & 2 or vpart == 2: gaps = [[x for x in g if 'tr_b16' not in x] for g in gaps]
        for i in range(8):
            e(M[i]); e('\n'.join(gaps[i]))
        stamp(14 + s)
if OPT['tskip']:
    sec('gt'); e('L_gemm_t:'); gemm1(2); e('s_branch L_gemm_done'); sec('mha')
else: SEC['gt'] = []
gemm1(False)
e('s_branch L_gemm_done\nL_gemm_v:')
gemm1(True)
e('L_gemm_done:')
stamp(3)
e(f"""s_add_u32 s{sS1}, s{sSt}, s{sS2}
s_add_u32 s{sXb}, s{sSt}, {4*KS}
s_add_u32 s{sCw}, s{sS1}, {4*KS}
s_cmp_eq_u32 s{S_C}, 7
s_waitcnt lgkmcnt(0)
s_cbranch_scc1 L_nokv
s_nop 4""")
for q, so in enumerate((sSt, sS1, sXb, sCw)):
    for i in range(4*q, 4*q+4):
        e(f'v_cvt_pk_bf16_f32 v{VPK + i}, v{VACC + 2*i}, v{VACC + 2*i + 1}')
    e(f'buffer_store_dwordx4 {vr(VPK+4*q,4)}, v{vSt}, {sr(SRD_WS)}, s{so} offen sc1')
if OPT['ones']:
    e(f'''s_branch L_kvst
    L_nokv:
    v_mov_b64 v[128:129], s[78:79]
    v_mov_b64 v[130:131], s[78:79]
    v_lshlrev_b32 v132, 4, v{V_LANE}
    s_lshl2_add_u32 s{sTmp}, s{S_TILE}, s{S_W}
    s_lshl_b32 s{sTmp}, s{sTmp}, 8
    s_mul_i32 s{sTmp2}, s{S_HG}, {QS}
    s_add_u32 s{sTmp}, s{sTmp}, s{sTmp2}
    s_add_u32 s{sTmp}, s{sTmp}, {WS_V + 112*QS}
    s_mov_b64 exec, 0xffff
    buffer_store_dwordx4 v[128:131], v132, {sr(SRD_WS)}, s{sTmp} offen sc1
    s_mov_b64 exec, -1
    L_kvst:''')
else: e('L_nokv:')
assert OPT['wgf'] and OPT['ones'] and OPT['pf'] == 2
def kv_loads(buf, i, srdn=SRD_C):
    return [f'buffer_load_dwordx4 {vr(VK + 8*buf, 4)}, v{vKo0}, {sr(srdn)}, s{sK} offen offset:{512*i} sc1',
            f'buffer_load_dwordx4 {vr(VK + 8*buf + 4, 4)}, v{vKo1}, {sr(srdn)}, s{sK} offen offset:{512*i} sc1',
            f'buffer_load_dwordx4 {vr(VV + 8*buf, 4)}, v{vVo}, {sr(srdn)}, s{sV} offen offset:{256*i} sc1',
            f'buffer_load_dwordx4 {vr(VV + 8*buf + 4, 4)}, v{vVo}, {sr(srdn)}, s{sV} offen offset:{256*i + 128} sc1']
fill = [f'v_mov_b64 {vr(VV+2*i,2)}, s[78:79]' for i in range(12, 16)] + [f'v_subrev_u32 v{vRr}, {L_X - L_RB}, v{vQw}', 's_mov_b64 s[80:81], -1']
for s in range(3):
    fill += f"""s_add_u32 s{sTmp}, s{S_W}, {1+s}
    s_and_b32 s{sTmp}, s{sTmp}, 3
    s_sub_u32 s{sTmp}, s{sTmp}, s{S_W}
    s_mul_i32 s{sTmp}, s{sTmp}, 12288
    v_add_u32 v{vQx[s]}, s{sTmp}, v{vQw}
    v_subrev_u32 v{vRb[s]}, {L_X - L_RB - 4096*s}, v{vQx[s]}""".split('\n')
def count_in(n):
    e(f"""v_mov_b32 v{V_T}, 1
    v_mov_b32 v31, 0
    s_waitcnt vmcnt({n})
    s_mov_b64 exec, 1
    ds_add_rtn_u32 v{vSt}, v31, v{V_T} offset:32
    s_mov_b64 exec, -1""")
def count_out(n):
    e(f's_waitcnt lgkmcnt({n})\nv_readfirstlane_b32 s{sTmp2}, v{vSt}\ns_cmp_lg_u32 s{sTmp2}, 3\ns_cbranch_scc1 L_nopub')
    publish(sFl, 31)
    e('L_nopub:'); stamp(5)
NM = max(NE, OPT['wq_mid'])
for st in range(NE, NM): e('\n'.join(wq_dma(st)))
stamp(4)
e(f'v_cmp_gt_u32 vcc, 1, v31\ns_cbranch_vccz L_eok\nv_add_u32 v31, 16, v{V_GRP}')
lwait(1, addr=31)
e('L_eok:')
if NE < 7:
    e('\n'.join(fill)); fill = []
    count_in(NM - NE)
    if NM == 7:
        e('s_waitcnt vmcnt(0)'); arrive(7); count_out(1)
    else:
        count_out(0)
        for st in range(NM, 7): e('\n'.join(wq_dma(st)))
        e('s_waitcnt vmcnt(0)'); arrive(7)
lwait(7)
stamp(6)
QB = [80, 84, 88, 92, 112, 116, 120, 124]
def q_reads(k):
    s, ks = divmod(k, 4)
    return [f'ds_read_b64_tr_b16 {vr(QB[k%8] + 2*hf, 2)}, v{vQr} offset:{ks*12288 + s*1024 + hf*256}' for hf in range(2)]
for k in range(6): e('\n'.join(q_reads(k)))
e('\n'.join(fill[:12])); fill = fill[12:]
zi = 0
PK = OPT['pubk'] if NE == 7 else -99
for k in range(28):
    extra = 1 if PK < k <= PK + 5 else 0
    e(f's_waitcnt lgkmcnt({min(10, 2*(27-k)) + extra})')
    e(f'v_mfma_f32_32x32x16_bf16 {vr(VACC,16)}, {vr(QB[k%8], 4)}, {vr(VX + 4*k, 4)}, {"0" if k == 0 else vr(VACC,16)}')
    if k + 6 < 28: e('\n'.join(q_reads(k + 6)))
    while zi < 40 and VX + 2*zi + 1 < VX + 4*k - 4 and zi < 2*k:
        e(f'v_mov_b64 {vr(VX + 2*zi, 2)}, 0'); zi += 1
    if k >= 22 or k < 2:
        e('\n'.join(fill[:4])); fill = fill[4:]
    if k == PK: count_in(0)
    if k == PK + OPT['wgf']: count_out(2*OPT['wgf'])
    if k == OPT['pollk']: e(f'buffer_load_dword v31, v{vFl}, {sr(SRD_WS)}, 0 offen sc1')
    if k == OPT['chkk']:
        e(f's_waitcnt vmcnt(0)\nv_cmp_ne_u32 vcc, s{S_NONCE}, v31\ns_mov_b64 s[80:81], vcc\ns_cbranch_vccnz L_kv_late')
        for t in range(2): e('\n'.join(kv_loads(t, t)))
        e('L_kv_late:')
assert zi == 40 and VX == VS + 48 and not fill
stamp(7)
e('s_nop 11')
for r in range(16):
    m = vA if r < 4 else (vB if r >= 12 else vC)
    e(f'v_mul_f32 v{VACC + r}, v{m}, v{VACC + r}')
for i in range(8):
    e(f'v_cvt_pk_bf16_f32 v{VQ + 24 + i}, v{VACC + 2*i}, v{VACC + 2*i + 1}')
e(f"""ds_write_b128 v{vQw}, {vr(VQ+24,4)}
ds_write_b128 v{vQw}, {vr(VQ+28,4)} offset:1024""")
arrive(8)
lwait(8)
for s in range(3):
    e(f'ds_read_b128 {vr(VQ+8*s,4)}, v{vQx[s]}\nds_read_b128 {vr(VQ+8*s+4,4)}, v{vQx[s]} offset:1024')
PF = OPT['pf']
if OPT['chkk'] < 28: e('s_cmp_eq_u64 s[80:81], 0\ns_cbranch_scc1 L_kv_done')
poll(vFl, first_issued=OPT['pollk'] < 28 and OPT['chkk'] > 27, reg=31, sleep=OPT['ksleep'])
for t in range(PF): e('\n'.join(kv_loads(t, t)))
e('L_kv_done:')
stamp(8)
OM = OPT['omode']
if OM:
    e(f'''s_lshr_b32 s{sTmp}, s{S_O0}, 3
    s_add_u32 s{sTmp2}, s{S_O0}, 3
    s_lshr_b32 s{sTmp2}, s{sTmp2}, 3
    s_sub_u32 s{sTmp2}, s{sTmp2}, s{sTmp}
    s_lshl_b32 s{sTmp2}, s{sTmp2}, 6
    s_lshl_b32 s{sTmp}, s{sTmp}, 6
    s_lshl2_add_u32 s{sSt}, s{S_TILE}, s{S_W}
    s_add_u32 s{sTmp}, s{sTmp}, s{sSt}
    s_lshl_b32 s{sTmp}, s{sTmp}, {FSH}
    s_add_u32 s{sTmp}, s{sTmp}, {F_Y}
    v_and_b32 v{vFl}, 1, v{V_LANE}
    v_mul_u32_u24 v{vFl}, s{sTmp2}, v{vFl}
    v_and_b32 v31, 2, v{V_LANE}
    v_lshl_add_u32 v{vFl}, v31, 8, v{vFl}
    v_lshl_add_u32 v{vFl}, v{vFl}, {FSH}, s{sTmp}''')
def qk(buf, slot, js):
    d = vr(VS + 16*slot, 16)
    return f'v_mfma_f32_32x32x16_bf16 {d}, {vr(VK + 8*buf + 4*js, 4)}, {vr(VQ + 8*slot + 4*js, 4)}, {"0" if js == 0 else d}'
def pv(buf, slot, js):
    return f'v_smfmac_f32_32x32x32_bf16 {vr(VO + 16*slot, 16)}, {vr(VV + 8*buf + 4*js, 4)}, {vr(VS + 16*slot + 8*js, 8)}, v{vIdx}'
def exps(s): return [f'v_exp_f32 v{VS + 16*s + r}, v{VS + 16*s + r}' for r in range(16)]
SPREAD = []
def unit(t, s):
    ex = exps(s)
    if OPT['ax'] & 16 and s in (0, 1, 2):
        pass
    nb = t if s < 3 else (t + 1) & 3
    pb = t if s > 0 else (t - 1) & 3
    if s == 3: e(f's_waitcnt vmcnt({4*PF-4})')
    e(qk(nb, (s+1) & 3, 0)); e('\n'.join(ex[0:4]))
    e(qk(nb, (s+1) & 3, 1)); e('\n'.join(ex[4:8]))
    e(pv(pb, (s-1) & 3, 0))
    if s == 1:
        kl = kv_loads((t + PF) & 3, t + PF)
        if OPT['ax'] & 1: kl = [x for x in kl if 'exec' not in x]
        if OPT['ax'] & 2: kl = [x for x in kl if 'buffer' not in x]
        if OPT['ax'] & 4: kl = [x.replace(' sc1', '') for x in kl]
        if OPT['ax'] & 8: SPREAD.extend(kl); kl = []
        e('\n'.join(kl))
        if t == 3 - PF:
            e(f's_cmp_eq_u32 s{sIt}, 3\ns_cselect_b32 s{SRD_C+2}, 0, s{SRD_C+2}')
        if t == 3:
            e(f's_add_u32 s{sK}, s{sK}, 2048\ns_add_u32 s{sV}, s{sV}, 1024\ns_add_u32 s{sIt}, s{sIt}, 1\ns_cmp_lg_u32 s{sIt}, 4')
    e('\n'.join(ex[8:12]))
    e(pv(pb, (s-1) & 3, 1)); e('\n'.join(ex[12:16]))
e(f's_mov_b32 s{sIt}, 0\ns_waitcnt vmcnt({4*PF - 4}) lgkmcnt(0)')
stamp(9)
e(qk(0, 0, 0)); e(qk(0, 0, 1))
e(f"s_setprio {OPT['pa']}\ns_nop 8\ns_branch L_att_in" if OPT['prio'] else 's_nop 9\ns_branch L_att_in')
e('L_att:')
unit(3, 2); unit(3, 3)
e('L_att_in:')
for t in range(4):
    for s in range(4):
        if (t, s) < (3, 2): unit(t, s)
e('s_cbranch_scc1 L_att')
if OPT['prio']: e(f"s_setprio {OPT['pm']}")
if OM: e(f'buffer_load_dword v31, v{vFl}, {sr(SRD_WS)}, 0 offen sc1')
def rbw(s): return [f'ds_write_b128 v{vRb[s]}, {vr(VO + 16*s + 4*i, 4)} offset:{1024*i}' for i in range(4)]
ex = exps(2); w0 = rbw(0)
e(qk(3, 3, 0)); e('\n'.join(ex[0:4])); e(qk(3, 3, 1)); e('\n'.join(ex[4:7] + [w0[0]]))
e(pv(3, 1, 0)); e('\n'.join(ex[7:10] + [w0[1]])); e(pv(3, 1, 1)); e('\n'.join(ex[10:13] + [w0[2]] + ex[13:16] + [w0[3]]))
ex = exps(3); w1 = rbw(1); w2 = rbw(2)
e(pv(3, 2, 0)); e('\n'.join(ex[0:3])); e(pv(3, 2, 1))
e('\n'.join([w1[0]] + ex[3:5] + [w1[1]] + ex[5:7] + [w1[2]] + ex[7:9] + [w1[3]] + ex[9:10]))
e(pv(3, 3, 0))
e('\n'.join([w2[0]] + ex[10:12] + [w2[1]] + ex[12:14] + [w2[2]] + ex[14:16] + [w2[3]]))
arrive(9)
e(pv(3, 3, 1))
stamp(10)
lwait(9)
for i in range(12): e(f'ds_read_b128 {vr(VS + 4*i, 4)}, v{vRr} offset:{1024*i}')
OA = VO + 48
for s in range(3):
    e(f's_waitcnt lgkmcnt({8 - 4*s})')
    for i in range(8): e(f'v_pk_add_f32 {vr(OA+2*i,2)}, {vr(OA+2*i,2)}, {vr(VS+16*s+2*i,2)}')
e(f's_mov_b32 s{sIt}, {1 if OPT["force_fb"] else 0}')
e(f'''L_norm:
v_cndmask_b32 v{vA}, v{OA+12}, v{OA}, s[{sOdd}:{sOdd+1}]
v_max3_f32 v{vC}, abs(v{OA}), abs(v{OA+1}), abs(v{OA+2})
v_mov_b32 v{vB}, v{vA}
v_max3_f32 v{vC}, abs(v{OA+3}), abs(v{OA+4}), v{vC}
v_max3_f32 v{vC}, abs(v{OA+5}), abs(v{OA+6}), v{vC}
v_permlane32_swap_b32 v{vA}, v{vB}
v_max3_f32 v{vC}, abs(v{OA+7}), abs(v{OA+8}), v{vC}
v_cndmask_b32 v{vB}, v{vB}, v{vA}, s[{sOdd}:{sOdd+1}]
v_max3_f32 v{vC}, abs(v{OA+9}), abs(v{OA+10}), v{vC}
v_rcp_f32 v{vA}, v{vB}
v_max3_f32 v{vC}, abs(v{OA+11}), abs(v{OA+12}), v{vC}
v_max3_f32 v{vC}, abs(v{OA+13}), abs(v{OA+14}), v{vC}
v_max_f32 v{vC}, abs(v{OA+15}), v{vC}
v_cmp_nle_f32 vcc, 0x30800000, v{vB}
s_mov_b64 s[78:79], vcc
v_cmp_nge_f32 vcc, 0x4e800000, v{vB}
s_or_b64 s[78:79], s[78:79], vcc
v_cmp_ngt_f32 vcc, 0x7f000000, v{vC}
s_or_b64 vcc, s[78:79], vcc''')
if OPT['force_fb']:
    e(f's_cmp_eq_u32 s{sIt}, 1\ns_cbranch_scc1 L_fb')
e('s_cbranch_vccnz L_fb0\nL_norm2:')
for i in range(8): e(f'v_pk_mul_f32 {vr(OA+2*i,2)}, {vr(OA+2*i,2)}, {vr(vA,2)} op_sel_hi:[1,0]')
for i in range(8): e(f'v_cvt_pk_bf16_f32 v{VS+i}, v{OA+2*i}, v{OA+2*i+1}')
if OM: poll(vFl, first_issued=2, reg=31)
o_stores(VS, VS + 4, '')
stamp(11)
if OM == 4: publish(sFo, vA)
if OPT['obar'] == 1: e('s_barrier')
if OPT['obar'] >= 3: e(f"s_waitcnt vmcnt({5 - OPT['obar'] + (OM == 4)})\ns_barrier")
if OM == 0:
    e('s_waitcnt vmcnt(0)'); publish(sFo, vA)
if OPT['obar'] == 2: e('s_barrier')
stamp(12)
prof_out()
e('s_endpgm')

for tag, st in SPIN:
    e(f'L_ws_{tag}:'); lwait(st); e(f's_branch L_wb_{tag}')
sec('fb')
e(f'''L_fb0:
s_cmp_eq_u32 s{sIt}, 2
s_cbranch_scc1 L_norm2
L_fb:
s_waitcnt vmcnt(0)
s_mul_i32 s{sTmp}, s{S_O0}, {KS}
s_add_u32 s{sK}, s{sTmp}, {WS_K}
s_add_u32 s{sV}, s{sTmp}, {WS_V}
v_mov_b32 v{vC}, 0xff800000
s_mov_b32 s{sIt}, 0
L_fb1:''')
e('\n'.join(kv_loads(0, 0, SRD_WS)[:2]))
e('s_waitcnt vmcnt(0)')
e(qk(0, 3, 0)); e(qk(0, 3, 1)); e('s_nop 11')
for i in range(8): e(f'v_max3_f32 v{vC}, v{VS+48+2*i}, v{VS+49+2*i}, v{vC}')
e(f'''s_add_u32 s{sK}, s{sK}, 512
s_add_u32 s{sIt}, s{sIt}, 1
s_cmp_lg_u32 s{sIt}, 64
s_cbranch_scc1 L_fb1
v_mov_b32 v{vA}, v{vC}
s_sub_u32 s{sK}, s{sK}, 0x8000
s_mov_b32 s{sIt}, 0
v_permlane32_swap_b32 v{vA}, v{vC}
v_max_f32 v{vC}, v{vA}, v{vC}''')
for i in range(8): e(f'v_mov_b64 {vr(OA+2*i,2)}, 0')
e('L_fb2:')
e('\n'.join(kv_loads(0, 0, SRD_WS)))
e('s_waitcnt vmcnt(0)')
e(qk(0, 3, 0)); e(qk(0, 3, 1)); e('s_nop 11')
for i in range(16): e(f'v_sub_f32 v{VS+48+i}, v{VS+48+i}, v{vC}')
for i in range(16): e(f'v_exp_f32 v{VS+48+i}, v{VS+48+i}')
e('s_nop 1')
e(pv(0, 3, 0)); e(pv(0, 3, 1))
e(f'''s_add_u32 s{sK}, s{sK}, 512
s_add_u32 s{sV}, s{sV}, 256
s_add_u32 s{sIt}, s{sIt}, 1
s_cmp_lg_u32 s{sIt}, 64
s_cbranch_scc1 L_fb2
s_mov_b32 s{sIt}, 2
s_nop 11
s_branch L_norm''')

sD0, sD, sHw, sDs, sTab, sA, sB, sLd, sSk, sIt2, sFlU, sInv, sUns, sSel, sUl, sOl, sCh0 = range(60, 77)
sUs, sOut, sHm = 78, 80, 82
sE2, sP, sE3, sKd = 84, 85, 86, 87
OUTM = 'sc1' if OPT['outsc'] & 1 else ''
OUTM2 = 'sc1' if OPT['outsc'] & 2 else ''
a0, a1, a2, a3 = 5, 6, 7, 9
vPar = 10
vKc = 18
vRa, vRb_, vKd, vKd1, vKa, vKa0, vFu, vE1, vE1b, vFr, vKxo, vKxp, vPair, vRz, vBk, vA0, vA1, vKb, vSB, vSB0 = range(20, 40)
vSel = 180
vAc = 40
vOne, vScl, vAdd, vC0 = range(56, 60)
vOp = 64
vY = 128
vXt = 144
vAn = 166
vX1 = 172
T0, T1 = 160, 176
vZ = 192
U = 204
vZer = 220
vUa, vCd, vG_, vZp, vKp, vF_, vL16, vXo, vXp, vTr, vYl, vYs, vFy = range(224, 237)
vWoD = 238
vWoR = 240
vOl, vFo, vBw, vBr, vOut = range(242, 247)
def hi():
    if OPT['prio']: e('s_setprio 3')
KG = [True]
def lo():
    if OPT['prio']: e(f"s_setprio {OPT['kgp'] if KG[0] else OPT['ps']}")
ROLE[0] = 1
sec('ssm0')
e(f"""s_cmp_{'eq' if OPT['only'] != 2 else 'le'}_u32 s{S_C}, 7
s_cbranch_scc1 L_ssm_idle
s_lshr_b32 s{sDs}, s{S_W}, 1
s_lshl_b32 s{sD0}, s{S_C}, 6
s_lshl1_add_u32 s{sD0}, s{S_J}, s{sD0}
s_add_u32 s{sD}, s{sD0}, s{sDs}
s_mul_i32 s{sTab}, s{S_W}, {TABSZ}
s_add_u32 s{sTab}, s{sTab}, {L_TAB}
s_lshl1_add_u32 s{sA}, s{sD0}, s{S_W}
s_lshl_b32 s{sA}, s{sA}, 8
v_lshl_add_u32 v{a0}, v{V_LANE}, 2, s{sA}
s_mov_b32 m0, s{sTab}
s_lshl_b32 s{sB}, s{sD0}, 1
s_waitcnt lgkmcnt(0)
s_load_dword s{sLd}, s[14:15], s{sB}
s_load_dword s{S_NONCE}, s[28:29], 0
s_load_dword s{sSk}, s[16:17], s{sB}
global_load_dword v{vPar+0}, v{a0}, s[6:7]
global_load_dword v{vPar+1}, v{a0}, s[8:9]
global_load_dword v{vPar+2}, v{a0}, s[10:11]
global_load_dword v{vPar+3}, v{a0}, s[12:13]""")
if OPT['tlb'] != 2: e('s_barrier')
if OPT['tlb']:
    e(f'''v_and_b32 v{a0}, 7, v{V_LANE}
    v_min_u32 v{a0}, 5, v{a0}
    v_lshlrev_b32 v{a0}, 21, v{a0}
    v_add_u32 v{a0}, 0xf8000, v{a0}
    v_mov_b32 v{a1}, 0
    global_load_dword v8, v{a0}, s[28:29]
    global_load_dword v8, v{a1}, s[22:23]''')
if OPT['tlb'] == 2: e('s_barrier')
e('s_branch L_ssm')
sec('ssm')
e('L_ssm:')
if OPT['abl'] == 1:
    arrive(1); e('s_waitcnt vmcnt(0) lgkmcnt(0)\ns_endpgm')
lo()
srd(SRD_WS, 28, WS_SIZE)
e(f"""s_and_b32 s{sHw}, s{S_W}, 1
v_add_u32 v{V_GRP}, 16, v{V_GRP}
v_and_b32 v{a0}, 15, v{V_LANE}
v_lshrrev_b32 v{a1}, 4, v{V_LANE}
v_lshl_add_u32 v{vRb_}, v{a1}, 4, s{sTab}
v_mul_u32_u24 v{a2}, {TROW}, v{a0}
v_add_u32 v{vRa}, v{a2}, v{vRb_}
v_lshlrev_b32 v{vL16}, 4, v{V_LANE}
v_mov_b32 v{vOne}, 0x3c00
ds_write_addtid_b32 v{vOne}""")
for i in range(8): e(f'v_mov_b64 {vr(vAc+2*i,2)}, 0')
mid = f"""v_and_b32 v{a0}, 7, v{V_LANE}
s_lshl_b32 s{sB}, s{S_W}, {3 + FSH}
s_add_u32 s{sB}, s{sB}, {F_U}
v_lshl_add_u32 v{vFu}, v{a0}, {FSH}, s{sB}
s_mul_i32 s{sP}, s{sDs}, {P_SZ}
s_add_u32 s{sP}, s{sP}, {L_TAB}
s_add_u32 s{sKd}, s{sP}, {P_KD}
s_lshl_b32 s{sB}, s{sHw}, 8
s_add_u32 s{sInv}, s{sB}, s{sKd}
s_add_u32 s{sA}, s{sInv}, {1088 + 128}
v_lshl_add_u32 v{vRz}, v{a0}, 4, s{sA}
v_mov_b32 v{vKb}, s{sKd}
v_and_b32 v{a0}, 15, v{V_LANE}
v_lshrrev_b32 v{a1}, 4, v{V_LANE}
s_lshl_b32 s{sA}, s{sHw}, 4
v_add_u32 v{a0}, s{sA}, v{a0}
v_and_b32 v{a3}, 1, v{V_LANE}
v_mul_u32_u24 v{a2}, 255, v{a3}
v_sub_u32 v{a2}, v{a2}, v{a0}
s_add_u32 s{sA}, s{sKd}, {1088 + 32}
v_add_u32 v{vKa}, s{sA}, v{a2}
v_add_u32 v{vKa0}, 96, v{vKa}
s_lshl3_add_u32 s{sA}, s{sDs}, 16
v_lshl_add_u32 v{vPair}, v{a3}, 2, s{sA}
s_mul_i32 s{sA}, s{sHw}, {1088 + 112 - 1024}
s_add_u32 s{sA}, s{sA}, s{sKd}
s_add_u32 s{sA}, s{sA}, 1024
v_writelane_b32 v{vKa0}, s{sA}, 0
s_mul_i32 s{sA}, s{sHw}, 56
s_sub_u32 s{sA}, s{sKd}, s{sA}
s_add_u32 s{sA}, s{sA}, 1088
v_writelane_b32 v{vKa0}, s{sA}, 16
v_max_u32 v{a2}, 1, v{a1}
v_sub_u32 v{a2}, 5, v{a2}
v_lshlrev_b32 v{a0}, v{a2}, v{a0}
v_lshlrev_b32 v{a2}, 3, v{a1}
s_mov_b32 s{sA}, 0x60400100
v_bfe_u32 v{a1}, s{sA}, v{a2}, 8
v_lshl_add_u32 v{a0}, v{a1}, 3, v{a0}
v_add_u32 v{vKd}, s{sKd}, v{a0}
s_mov_b32 s{sA}, 0x80040404
v_bfe_u32 v{a1}, s{sA}, v{a2}, 8
v_add_u32 v{vKd1}, v{a1}, v{vKd}
v_lshrrev_b32 v{a1}, 1, v{V_LANE}
v_lshlrev_b32 v{vUa}, 6, v{a1}
v_lshl_add_u32 v{vUa}, v{a3}, 4, v{vUa}
s_lshr_b32 s{sA}, s{sD0}, 2
s_mul_i32 s{sA}, s{sA}, {QS}
s_and_b32 s{sB}, s{sD0}, 3
s_lshl4_add_u32 s{sA}, s{sB}, s{sA}
s_lshl_b32 s{sB}, s{S_W}, 12
s_add_u32 s{sA}, s{sA}, s{sB}
s_add_u32 s{sUl}, s{sA}, {WS_U}
v_and_b32 v{a1}, 3, v{a1}
v_lshl_add_u32 v{a1}, v{a3}, 2, v{a1}
v_mul_u32_u24 v{a1}, {PS}, v{a1}
v_lshrrev_b32 v{a2}, 3, v{V_LANE}
v_lshl_add_u32 v{a1}, v{a2}, 4, v{a1}
s_lshl_b32 s{sA}, s{S_W}, 8
s_add_u32 s{sA}, s{sA}, {L_KP + 512}
v_add_u32 v{vKp}, s{sA}, v{a1}
v_lshrrev_b32 v{a1}, 5, v{V_LANE}
s_lshl_b32 s{sA}, s{sHw}, 1
v_max_u32 v{a0}, s{sA}, v{a1}
v_min_u32 v{a2}, 1, v{a0}
v_mul_u32_u24 v{a2}, 0x0202, v{a2}
v_lshlrev_b32 v{a2}, 16, v{a2}
v_sub_u32 v{vSel}, 0x03020100, v{a2}
v_mul_u32_u24 v{a2}, 0x0202, v{a0}
v_lshl_or_b32 v{a2}, v{a2}, 16, v{a2}
v_sub_u32 v{vSel+1}, 0x07060504, v{a2}
s_mul_i32 s{sA}, s{sHw}, 0x02020202
v_add_u32 v{vSel+2}, s{sA}, v{vSel}
s_mul_i32 s{sA}, s{sHw}, 0x02020404
v_add_u32 v{vSel+3}, s{sA}, v{vSel+1}
v_lshrrev_b32 v{a2}, v{a0}, v{vL16}
s_movk_i32 s{sA}, 256
v_lshl_add_u32 v{a2}, s{sA}, v{a0}, v{a2}
s_sub_u32 s{sA}, s{sKd}, 256
v_add_u32 v{vE1}, s{sA}, v{a2}
v_lshlrev_b32 v{a2}, 2, v{a0}
v_sub_u32 v{vE1b}, v{vE1}, v{a2}
s_mov_b32 s{sA}, 0x0c0c0c0c
s_cmp_lg_u32 s{sHw}, 0
s_cselect_b32 s{sE2}, 0x01000100, s{sA}
s_cselect_b32 s{sE3}, 0x05040302, s{sA}
v_mov_b32 v{vSel+4}, s{sA}
v_mov_b32 v{vSel+5}, s{sA}
v_mov_b32 v{vSel+6}, s{sA}
v_mov_b32 v{vSel+7}, s{sA}
s_mov_b32 s{sA}, 0x05040504
s_mov_b64 exec, 15
v_mov_b32 v{vSel+4}, s{sA}
v_mov_b32 v{vSel+5}, s{sA}
v_mov_b32 v{vSel+6}, s{sA}
s_mov_b64 exec, -1
v_writelane_b32 v{vSel+7}, s{sA}, 3
s_mov_b32 s{sA}, 0x05040302
v_writelane_b32 v{vSel+4}, s{sA}, 3
s_mov_b32 s{sA}, 0x0c0c0504
v_writelane_b32 v{vSel+6}, s{sA}, 0
v_writelane_b32 v{vSel+7}, s{sA}, 2
s_mul_i32 s{sA}, s{S_W}, {2*PS}
s_add_u32 s{sA}, s{sA}, {L_KP}
v_mul_u32_u24 v{a2}, {PS - 512}, v{a1}
v_add3_u32 v{vG_}, v{a2}, v{vL16}, s{sA}
v_mov_b64 {vr(vZer,2)}, 0
v_mov_b64 {vr(vZer+2,2)}, 0
ds_write_b128 v{vG_}, {vr(vZer,4)}
s_lshl_b32 s{sA}, s{sHw}, 10
s_add_u32 s{sB}, s{sP}, {P_UC}
s_add_u32 s{sA}, s{sA}, s{sB}
s_add_u32 s{sA}, s{sA}, 64
v_add_u32 v{vCd}, s{sA}, v{vL16}
v_and_b32 v{a3}, 3, v{V_LANE}
v_and_b32 v{a0}, 0x1c, v{V_LANE}
v_lshlrev_b32 v{a2}, 2, v{a0}
v_and_b32 v{vZp}, 0x30, v{a2}
s_mov_b32 exec_hi, 0
v_add_u32 v{vZp}, 2112, v{a2}
s_mov_b64 exec, -1
v_mul_u32_u24 v{a2}, {UC_S}, v{a3}
v_add3_u32 v{vZp}, v{vZp}, v{a2}, s{sB}
v_lshlrev_b32 v{a0}, 1, v{a0}
v_sub_u32 v{a0}, v{a0}, v{a2}
v_lshlrev_b32 v{a1}, 4, v{a1}
v_sub_u32 v{a0}, v{a0}, v{a1}
s_lshl_b32 s{sA}, s{sHw}, 5
s_sub_u32 s{sB}, s{sB}, s{sA}
s_add_u32 s{sB}, s{sB}, {56 + 3*UC_S}
v_add_u32 v{vF_}, s{sB}, v{a0}
v_add_u32 v{vG_}, {512 - 80}, v{vG_}
v_add_u32 v{vKxo}, s{sTab}, v{vL16}
s_xor_b32 s{sA}, s{S_W}, 1
s_mul_i32 s{sA}, s{sA}, {TABSZ}
s_add_u32 s{sA}, s{sA}, {L_TAB}
v_add_u32 v{vKxp}, s{sA}, v{vL16}
v_and_b32 v{a0}, 31, v{V_LANE}
v_lshlrev_b32 v{a2}, 2, v{a0}
v_sub_u32 v{a2}, v{a1}, v{a2}
s_add_u32 s{sA}, s{sInv}, {1088 + 124}
v_add_u32 v{vBk}, s{sA}, v{a2}
"""
e(mid)
stamp(22)
e(f's_waitcnt lgkmcnt(0)\ns_add_u32 s{S_NONCE}, s{S_NONCE}, 1')
arrive(1)
e(f"""s_lshl_b32 s{sA}, s{sDs}, 4
s_lshr_b32 s{sLd}, s{sLd}, s{sA}
s_lshl_b32 s{sLd}, s{sLd}, 16
s_lshr_b32 s{sSk}, s{sSk}, s{sA}
s_lshl_b32 s{sSk}, s{sSk}, 16
v_mov_b32 v{a0}, s{sLd}
v_mul_f32 v{a0}, 0x3fb8aa3b, v{a0}
v_exp_f32 v{a0}, v{a0}
s_cmp_eq_u32 s{sHw}, 0
s_cselect_b32 s{sSk}, s{sSk}, 0
v_cvt_pk_bf16_f32 v{a0}, v{a0}, v{a0}
v_and_b32 v{vScl}, 0xffff0000, v{a0}
v_mul_f32 v{vKc}, 0xbfb8aa3b, v{vScl}
v_mul_f32 v{vKc+1}, 0.15915494, v{vScl}
v_mov_b32 v{vAdd}, 0
v_add_f32 v{vScl}, v{vScl}, v{vScl}
v_writelane_b32 v{vAdd}, s{sSk}, 0
s_mov_b32 s{sIt2}, 0
s_mov_b32 s{sSel}, 0x01000c0c""")
stamp(0)
e(f"""s_waitcnt vmcnt({2 if OPT['tlb'] else 0})
v_and_b32 v{a0}, 0x7f807f80, v{vPar+2}
v_and_b32 v{a1}, 0x7f807f80, v{vPar+3}
v_pk_max_u16 v{a0}, v{a0}, v{a1}
v_lshlrev_b32 v{a1}, 16, v{a0}
v_max_u32 v{a0}, v{a0}, v{a1}""")
for q, n in enumerate((1, 2, 4, 8)):
    e(f's_nop 1\nv_max_u32_dpp v{a0}, v{a0}, v{a0} row_ror:{n} row_mask:0xf bank_mask:0xf')
e(f"""s_nop 0
v_readlane_b32 s{sA}, v{a0}, 0
v_readlane_b32 s{sB}, v{a0}, 16
v_readlane_b32 s{sInv}, v{a0}, 32
v_readlane_b32 s{sUns}, v{a0}, 48
s_max_u32 s{sA}, s{sA}, s{sB}
s_max_u32 s{sUns}, s{sUns}, s{sInv}
s_max_u32 s{sUns}, s{sUns}, s{sA}
s_and_b32 s{sUns}, s{sUns}, 0x7f800000
s_min_u32 s{sUns}, s{sUns}, 0x7e800000
s_sub_u32 s{sInv}, 0x7f000000, s{sUns}
v_mul_f32 v{vScl}, s{sUns}, v{vScl}
v_mul_f32 v{vSB}, 0x43000000, v{vScl}
v_mov_b32 v{vSB0}, v{vSB}
s_mov_b64 exec, 1
v_mov_b32 v{vSB0}, v{vScl}
s_mov_b64 exec, -1""")
stamp(1)
if OPT['abl'] == 2: e('s_endpgm')
def cm(jobs, conj):
    ng = 'neg_hi:[1,0,0]' if conj else 'neg_lo:[1,0,0]'
    return [f'v_pk_mul_f16 v{d}, v{x}, v{w} op_sel_hi:[1,0]' for d, x, w in jobs] + \
           [f'v_pk_fma_f16 v{d}, v{x}, v{w}, v{d} op_sel:[1,1,0] op_sel_hi:[0,1,1] {ng}' for d, x, w in jobs]
def wr(reg): return f'ds_write_addtid_b32 v{reg} offset:{TROW*(reg - vY)}'
assert vXt == vY + 16
zA, zB, tA, tB, pA, pB = vZ, vZ+2, vZ+4, vZ+6, vZ+8, vZ+10
X = vXt; Y = vY
an = {1: vAn, 2: vAn+1, 4: vAn+2, 8: Y+1, 16: Y+2, 32: Y+4, 64: Y+8, 128: X+21, 256: vAn+3, 512: vAn+4, 1024: vAn+5}
e('L_kg:')
stamp(14)
seq = f"""v_perm_b32 v{pA}, v{vPar}, v{vPar}, s{sSel}
v_mul_f32 v{pA}, 0x3fb8aa3b, v{pA}
v_exp_f32 v{pA}, v{pA}
v_perm_b32 v{pA+1}, v{vPar+1}, v{vPar+1}, s{sSel}
v_perm_b32 v{tA}, v{vPar+2}, v{vPar+2}, s{sSel}
v_perm_b32 v{tA+1}, v{vPar+3}, v{vPar+3}, s{sSel}
v_cvt_pk_bf16_f32 v{pA}, v{pA}, v{pA}
v_mul_f32 v{tA}, s{sInv}, v{tA}
v_and_b32 v{pA}, 0xffff0000, v{pA}
v_mul_f32 v{tA+1}, s{sInv}, v{tA+1}
v_pk_mul_f32 {vr(pA,2)}, {vr(pA,2)}, {vr(vKc,2)}
v_cvt_pk_f16_f32 v{X}, v{tA}, -v{tA+1}
v_mul_f32 v{pB}, 0x42800000, v{pA}
v_mul_f32 v{pB+1}, 0x42800000, v{pA+1}
v_exp_f32 v{pA}, v{pA}
v_fract_f32 v{pA+1}, v{pA+1}
v_exp_f32 v{pB}, v{pB}
v_fract_f32 v{pB+1}, v{pB+1}
v_cos_f32 v{zA}, v{pA+1}
v_sin_f32 v{zA+1}, v{pA+1}
v_cos_f32 v{zB}, v{pB+1}
v_sin_f32 v{zB+1}, v{pB+1}
v_pk_mul_f32 {vr(zA,2)}, {vr(zA,2)}, {vr(pA,2)} op_sel_hi:[1,0]
v_pk_mul_f32 {vr(zB,2)}, {vr(zB,2)}, {vr(pB,2)} op_sel_hi:[1,0]""".split('\n')
for st in range(6):
    chains = [(zA, tA, an[1 << st], st < 5)] + ([(zB, tB, an[64 << st], st < 4)] if st < 5 else [])
    for z, t, d, sq in chains:
        if sq: seq.append(f'v_pk_mul_f32 {vr(t,2)}, {vr(z,2)}, {vr(z,2)} op_sel_hi:[0,1]')
    for z, t, d, sq in chains: seq.append(f'v_cvt_pk_f16_f32 v{d}, v{z}, v{z+1}')
    for z, t, d, sq in chains:
        if sq: seq.append(f'v_pk_fma_f32 {vr(z,2)}, {vr(z,2)}, {vr(z,2)}, {vr(t,2)} op_sel:[1,1,0] op_sel_hi:[0,1,1] neg_lo:[1,0,0]')
seq += cm([(X+1, X, an[1]), (X+2, X, an[2]), (X+4, X, an[4]), (X+8, X, an[256]), (X+12, X, an[512]), (X+16, X, an[1024])], True)
seq += cm([(Y+3, Y+1, Y+2), (Y+12, Y+4, Y+8), (Y+5, Y+4, Y+1), (Y+6, Y+4, Y+2), (Y+9, Y+8, Y+1), (Y+10, Y+8, Y+2)], False)
seq += cm([(X+3, X+1, an[2]), (X+5, X+1, an[4]), (X+6, X+2, an[4]), (X+9, X+2, an[256]), (X+10, X+4, an[256]), (X+13, X+4, an[512]),
           (X+14, X+8, an[512]), (X+17, X+8, an[1024]), (X+18, X+12, an[1024]), (X+20, X+16, an[1024])], True)
seq += cm([(Y+7, Y+4, Y+3), (Y+11, Y+8, Y+3), (Y+13, Y+12, Y+1), (Y+14, Y+12, Y+2), (Y+15, Y+12, Y+3)], False)
seq += cm([(X+7, X+3, an[4]), (X+11, X+6, an[256]), (X+15, X+10, an[512]), (X+19, X+14, an[1024])], True)
e('\n'.join(seq))
stamp(15)
if OPT['kgw']:
    e(f'v_subrev_u32 v{a0}, 16, v{V_GRP}'); lwait(OPT['kgw'], addr=a0)
hi()
if OPT['abl'] != 4: e('\n'.join(wr(r) for r in range(Y + 1, X + 22)))
for k in range(4):
    o = vOp + 16*k
    e(f"""ds_read_b128 {vr(o,4)}, v{vRa} offset:{64*k}
    ds_read_b128 {vr(o+4,4)}, v{vRb_} offset:{37*TROW + 64*k}
    ds_read_b128 {vr(o+8,4)}, v{vRa} offset:{16*TROW + 64*k}
    ds_read_b128 {vr(o+12,4)}, v{vRa} offset:{32*TROW + 64*k}""")
if not OPT['uw']: e(f's_cmp_eq_u32 s{sIt2}, 0\ns_cbranch_scc1 L_kg_n\nbuffer_load_dword v{vFr}, v{vFu}, {sr(SRD_WS)}, 0 offen sc1\nL_kg_n:')
stamp(16)
def mf(c, a, b): return f'v_mfma_f32_16x16x32_f16 {vr(c,4)}, {vr(a,4)}, {vr(b,4)}, {vr(c,4)}'
late_m = []
for k in range(4):
    o = vOp + 16*k; y1 = vX1 + 4*(k & 1)
    p = cm([(y1+r, o+r, o+4+r) for r in range(4)], False)
    e(f's_waitcnt lgkmcnt({12 - 4*k})')
    e('\n'.join([mf(vAc, o+8, o)] + p[0:2] + late_m[:1] + p[2:4] + [mf(vAc+4, o+12, o)] + p[4:6] + late_m[1:] + p[6:8]))
    late_m = [mf(vAc+8, o+8, y1), mf(vAc+12, o+12, y1)]
e(f"""s_add_u32 s{sSel}, s{sSel}, 0x02020000
s_add_u32 s{sIt2}, s{sIt2}, 1
s_cmp_lg_u32 s{sIt2}, 2""")
e('\n'.join(late_m))
lo()
e('s_cbranch_scc1 L_kg')
stamp(17)
if OPT['abl'] in (4, 8): e('s_endpgm')
def scl(i): return vSB0 if i == 4 else (vSB if i & 4 else vScl)
for i in range(8): e(f'v_mul_f32 v{vAc+i}, v{scl(i)}, v{vAc+i}')
e(f's_cmp_eq_u32 s{sHw}, 0')
for i in range(8, 16): e(f'v_mul_f32 v{vAc+i}, v{scl(i)}, v{vAc+i}')
e('s_cbranch_scc1 L_kx')
for i in range(8): e(f'v_swap_b32 v{vAc+i}, v{vAc+8+i}')
e(f"""L_kx:
ds_write_b128 v{vKxo}, {vr(vAc+8,4)}
s_mov_b32 exec_hi, 0
ds_write_b128 v{vKxo}, {vr(vAc+12,4)} offset:1024
s_mov_b64 exec, -1""")
arrive(2)
e(f'v_add_f32 v{vAc}, v{vAdd}, v{vAc}')
stamp(18)
def bprio():
    if OPT['prio']: e(f"s_setprio {OPT['bp']}")
def u_look():
    hi(); e(f'buffer_load_dword v{vFr}, v{vFu}, {sr(SRD_WS)}, 0 offen sc1'); bprio()
def u_fetch():
    hi()
    stamp(20)
    poll(vFu, first_issued=True, reg=vFr, sleep=OPT['usleep'])
    stamp(21)
    for k in range(2):
        e(f'buffer_load_dwordx4 {vr(U+4*k,4)}, v{vUa}, {sr(SRD_WS)}, s{sUl} offen offset:{2048*k} sc1')
    bprio()
if OPT['uw'] == -2: u_look()
else: bprio()
stamp(19)
lwait(2, addr=vPair)
e(f"""ds_read_b128 {vr(vAc+8,4)}, v{vKxp}
ds_read_b128 {vr(vAc+12,4)}, v{vKxp} offset:1024
ds_write_b128 v{vRz}, {vr(vZer,4)}
s_mov_b32 s{sIt2}, 4
s_waitcnt lgkmcnt(1)""")
for i in range(4): e(f'v_pk_add_f32 {vr(vAc+2*i,2)}, {vr(vAc+2*i,2)}, {vr(vAc+8+2*i,2)}')
for i in range(4): e(f'v_cvt_pk_bf16_f32 v{vAc+8+i}, v{vAc+2*i}, v{vAc+2*i+1}')
e(f"""ds_write_b32 v{vKd}, v{vAc+8}
ds_write_b32 v{vKd1}, v{vAc+9}
s_mov_b64 exec, 0x1ffff
ds_write_b16 v{vKa0}, v{vAc+10}
s_mov_b64 exec, 0xffff
ds_write_b16_d16_hi v{vKa}, v{vAc+10} offset:64
ds_write_b16 v{vKa}, v{vAc+11} offset:32
ds_write_b16_d16_hi v{vKa}, v{vAc+11}
s_mov_b64 exec, -1""")
arrive(3)
if OPT['uw'] == -1: u_look()
if OPT['uw'] == -2: u_fetch()
lwait(3, addr=vPair)
stamp(2)
E = 64; BF = 40
e(f"""ds_read2_b32 {vr(E,2)}, v{vE1} offset1:1
ds_read2_b32 {vr(E+2,2)}, v{vE1b} offset0:2 offset1:3
ds_read2_b32 {vr(E+4,2)}, v{vKb} offset0:191 offset1:192
ds_read_b32 v{E+6}, v{vKb} offset:1020
ds_read_b32 v{E+7}, v{vKb} offset:1024""")
for q in range(8): e(f'ds_read2_b32 {vr(BF+2*q,2)}, v{vBk} offset0:{8*(q>>1) + 2*(q&1)} offset1:{8*(q>>1) + 2*(q&1) + 1}')
b = E + 12; t = E + 16
e(f"""s_waitcnt lgkmcnt(10)
v_perm_b32 v{b+2}, v{E+2}, v{E+2}, v{vSel+2}
v_perm_b32 v{b+3}, v{E+3}, v{E+2}, v{vSel+3}
v_perm_b32 v{b-2}, v{E+5}, v{E+4}, s{sE2}
v_perm_b32 v{b-1}, v{E+5}, v{E+4}, s{sE3}
v_perm_b32 v{b}, v{E}, v{E}, v{vSel}
v_perm_b32 v{b+1}, v{E+1}, v{E}, v{vSel+1}
v_mov_b32_dpp v{b-2}, v{b+2} wave_shr:1 row_mask:0xf bank_mask:0xf
v_mov_b32_dpp v{b-1}, v{b+3} wave_shr:1 row_mask:0xf bank_mask:0xf
ds_write_b128 v{vCd}, {vr(b,4)}""")
for i in range(4): e(f'v_alignbit_b32 v{t+i}, v{b+i}, v{b+i-1}, 16')
e(f'ds_write_b128 v{vCd}, {vr(t,4)} offset:{UC_S}')
for i in range(4): e(f'v_mov_b32 v{t+4+i}, v{b+i-1}')
e(f'ds_write_b128 v{vCd}, {vr(t+4,4)} offset:{2*UC_S}')
for i in range(4): e(f'v_alignbit_b32 v{t+8+i}, v{b+i-1}, v{b+i-2}, 16')
e(f'ds_write_b128 v{vCd}, {vr(t+8,4)} offset:{3*UC_S}\ns_waitcnt lgkmcnt(12)')
for i in range(4): e(f'v_perm_b32 v{t+12+i}, v{E+7}, v{E+6}, v{vSel+4+i}')
e(f'ds_write_b128 v{vZp}, {vr(t+12,4)}')
if OPT['uw'] == -1: u_fetch()
stamp(3)
e(f'v_and_b32 v{a0}, 31, v{V_LANE}')
swap23(a1, a0, a2)
e(f"""v_lshrrev_b32 v{a2}, 5, v{V_LANE}
v_lshl_add_u32 v{a1}, v{a1}, 1, v{a2}
s_add_u32 s{sA}, s{sHw}, 123
v_add_u32 v{a1}, s{sA}, v{a1}
s_mul_i32 s{sA}, s{sDs}, {PD}
s_add_u32 s{sA}, s{sA}, {L_KP}
v_and_b32 v{a3}, 3, v{a1}
v_mul_u32_u24 v{a3}, {PS - 4}, v{a3}
v_lshl_add_u32 v{a3}, v{a1}, 2, v{a3}
v_add_u32 v{vA0}, s{sA}, v{a3}
v_add_u32 v{a1}, 2, v{a1}
v_and_b32 v{a3}, 3, v{a1}
v_mul_u32_u24 v{a3}, {PS - 4}, v{a3}
v_lshl_add_u32 v{a3}, v{a1}, 2, v{a3}
v_add_u32 v{vA1}, s{sA}, v{a3}
v_lshlrev_b32 v{a2}, 3, v{a2}
v_sub_u32 v{a2}, v{a2}, v{a0}
v_cvt_f32_i32 v{a2}, v{a2}
v_add_f32 v{a3}, -1.0, v{a2}
v_add_f32 v{a2}, -2.0, v{a2}
v_cvt_pk_f16_f32 v8, v{a3}, v{a2}
s_waitcnt vmcnt(1)
ds_write_b128 v{vKp}, {vr(U,4)}
s_waitcnt vmcnt(0)
ds_write_b128 v{vKp}, {vr(U+4,4)} offset:128""")
arrive(4)
AP, BD, DP = 112, 136, 192
band = [f's_mov_b32 s{sA}, 0x4a204a20', f's_cmp_eq_u32 s{sHw}, 0', f's_cselect_b32 s{sE2}, 0x4d104d10, s{sA}', f's_mov_b32 s{sE3}, 0x4d804d80']
for q in range(12):
    band.append(f'v_pk_fma_f16 v{BD+q}, v8, v8, s{sE2} neg_lo:[1,0,0] neg_hi:[1,0,0] clamp')
    if q < 11: band.append(f'v_pk_add_f16 v8, v8, s{sE3}' if q % 4 == 3 else 'v_pk_add_f16 v8, v8, -2.0 op_sel_hi:[1,0]')
e('\n'.join(band))
lwait(4)
KG[0] = False
lo()
stamp(4)
if OPT['abl'] == 16: e('s_endpgm')
CB = 64
def cv_reads(k):
    b = CB + 12 * (k & 3)
    return [f'ds_read_b64 {vr(b,2)}, v{vF_} offset:{64*k}', f'ds_read_b64 {vr(b+2,2)}, v{vF_} offset:{64*k + 8}',
            f'ds_read_b128 {vr(b+8,4)}, v{vG_} offset:{512 + 80 - 16*k}', f'ds_read_b128 {vr(b+4,4)}, v{vG_} offset:{80 - 16*k}']
for tau in range(2):
    for kp in range(3): e(f'ds_read_b128 {vr(AP + 12*tau + 4*kp, 4)}, v{(vA0, vA1)[kp & 1]} offset:{256*tau + 16*(kp >> 1)}')
e('\n'.join(cv_reads(0) + cv_reads(1)))
FOA = f'''s_lshr_b32 s{sA}, s{sOl}, 1
s_lshl_b32 s{sA}, s{sA}, {4 + FSH}
s_add_u32 s{sA}, s{sA}, {F_O}
v_lshl_add_u32 v{vFo}, v{a1}, {FSH}, s{sA}''' if not OM else f'''s_lshr_b32 s{sA}, s{sOl}, 1
s_lshl_b32 s{sB}, s{sHw}, 9
s_add_u32 s{sA}, s{sA}, s{sB}
s_lshl_b32 s{sA}, s{sA}, {FSH}
s_add_u32 s{sA}, s{sA}, {F_Y}
v_min_u32 v{vFo}, 6, v{a1}
v_lshl_add_u32 v{vFo}, v{vFo}, {6 + FSH}, s{sA}'''
late = f"""s_mov_b64 s[{SRD_B}:{SRD_B+1}], s[22:23]
s_mov_b32 s{SRD_B+2}, {448*896}
s_mov_b32 s{SRD_B+3}, 0x20000
s_mov_b64 s[{SRD_C}:{SRD_C+1}], s[24:25]
s_mov_b32 s{SRD_C+2}, {2048*1792}
s_mov_b32 s{SRD_C+3}, 0x20000
v_lshrrev_b32 v{a1}, 3, v{V_LANE}
v_and_b32 v{a2}, 7, v{V_LANE}
v_and_b32 v{a0}, 0x70, v{vL16}
v_mul_u32_u24 v{vYl}, {YS}, v{a1}
v_add_u32 v{vYl}, v{vYl}, v{a0}
v_lshlrev_b32 v{a3}, 2, v{V_LANE}
v_and_b32 v{a3}, 64, v{a3}
v_xor_b32 v{a0}, v{a0}, v{a3}
v_mul_u32_u24 v{vWoD}, 896, v{a1}
v_xor_b32 v{a3}, v{a1}, v{a2}
v_lshlrev_b32 v{a3}, 4, v{a3}
v_lshl_add_u32 v{vOut}, v{vWoD}, 1, v{a3}
v_add_u32 v{vWoD}, v{a0}, v{vWoD}
v_add_u32 v{vWoD+1}, {7168-1024}, v{vWoD}
v_lshrrev_b32 v{a0}, 4, v{V_LANE}
v_bfe_u32 v{a1}, v{V_LANE}, 2, 2
v_lshl_or_b32 v{a3}, v{a0}, 3, v{a1}
v_lshlrev_b32 v{a3}, 7, v{a3}
v_lshrrev_b32 v{a1}, 1, v{a1}
v_lshl_add_u32 v{a3}, v{a1}, 6, v{a3}
v_and_b32 v{a1}, 0x30, v{vL16}
s_movk_i32 s{sA}, {L_WO}
v_add3_u32 v{vWoR}, v{a1}, v{a3}, s{sA}
v_xor_b32 v{vWoR+1}, 64, v{vWoR}
v_and_b32 v{a1}, 15, v{V_LANE}
v_lshlrev_b32 v{vOl}, 4, v{a1}
v_mad_u32_u24 v{vOl}, v{a0}, s{S_KS}, v{vOl}
s_lshl2_add_u32 s{sOl}, s{S_J}, s{S_W}
{FOA}
s_lshl_b32 s{sA}, s{S_W}, 11
s_add_u32 s{sA}, s{sA}, {L_SSM}
v_xor_b32 v{a3}, v{a0}, v{a2}
v_lshl_add_u32 v{a3}, v{a3}, 4, s{sA}
v_lshl_add_u32 v{vBw}, v{a1}, 7, v{a3}
v_add_u32 v{vBr}, s{sA}, v{vL16}
s_mul_i32 s{sOut}, s{sOl}, {16*1792}
s_lshl_b32 s{sA}, s{S_C}, 7
s_add_u32 s{sOut}, s{sOut}, s{sA}
s_add_u32 s{sOut}, s{sOut}, 896
s_add_u32 s{sOut+1}, s{sOut}, {8*1792}
s_lshl_b32 s{sOl}, s{sOl}, 8
s_add_u32 s{sOl}, s{sOl}, {WS_O}
s_lshl2_add_u32 s{sCh0}, s{S_C}, s{S_W}
s_lshl_b32 s{sCh0}, s{sCh0}, 4
s_lshr_b32 s{sA}, s{S_J}, 4
s_lshl_b32 s{sA}, s{sA}, 9
s_add_u32 s{sA}, s{sA}, s{sCh0}
s_lshl_b32 s{sA}, s{sA}, {FSH}
s_add_u32 s{sA}, s{sA}, {F_Y}
v_lshl_add_u32 v{vFy}, v{a1}, {FSH}, s{sA}
v_and_b32 v{a1}, 11, v{V_LANE}
v_lshl_or_b32 v{a1}, v{a0}, 5, v{a1}
v_mul_u32_u24 v{a1}, 1792, v{a1}
v_and_b32 v{a3}, 4, v{V_LANE}
v_lshl_add_u32 v{vYs}, v{a3}, 2, v{a1}
s_lshl_b32 s{sA}, s{sHw}, 12
s_add_u32 s{sB}, s{sP}, {P_X + 4096}
s_sub_u32 s{sB}, s{sB}, s{sA}
v_add_u32 v{vXp}, s{sB}, v{vL16}
s_add_u32 s{sA}, s{sA}, s{sP}
s_add_u32 s{sA}, s{sA}, {P_X}
v_add_u32 v{vXo}, s{sA}, v{vL16}
v_lshl_add_u32 v{vRb_}, v{a0}, 4, s{sA}
v_bfe_u32 v{a0}, v{V_LANE}, 2, 2
v_and_b32 v{a3}, 1, v{V_LANE}
v_lshl_or_b32 v{a2}, v{a3}, 3, v{a0}
v_lshl_add_u32 v{vTr}, v{a2}, 7, v{vRb_}
v_and_b32 v{a2}, 2, v{V_LANE}
v_lshl_add_u32 v{vTr}, v{a2}, 2, v{vTr}""".split('\n')
def fill(n):
    e('\n'.join(late[:n])); del late[:n]
fill(16)
e('s_waitcnt lgkmcnt(8)')
for kp in range(3):
    for tau in range(2):
        d = vr(DP + 16*tau, 16)
        e(f'v_mfma_f32_32x32x16_bf16 {d}, {vr(AP + 12*tau + 4*kp, 4)}, {vr(BD + 4*kp, 4)}, {"0" if kp == 0 else d}')
        fill(6)
def cv_iter(first):
    for k in range(4):
        b = CB + 12 * k
        rd = cv_reads(k + 2)
        z = first and k == 0
        e('s_waitcnt lgkmcnt(4)')
        e(f'v_mfma_f32_32x32x16_bf16 {vr(T1,16)}, {vr(b,4)}, {vr(b+8,4)}, {"0" if z else vr(T1,16)}')
        e('\n'.join(rd))
        if k == 3:
            e(f'v_add_u32 v{vF_}, 256, v{vF_}\nv_subrev_u32 v{vG_}, 64, v{vG_}')
            if not first: e(f's_add_u32 s{sIt2}, s{sIt2}, 1\ns_cmp_lg_u32 s{sIt2}, 11')
        e(f'v_mfma_f32_32x32x16_bf16 {vr(T0,16)}, {vr(b,4)}, {vr(b+4,4)}, {"0" if z else vr(T0,16)}')
        if first: fill(6 if k < 3 else 99)
cv_iter(True)
e('L_cv:')
cv_iter(False)
e('s_cbranch_scc1 L_cv')
cv = [f'v_cvt_pk_bf16_f32 v{AP+i}, v{DP+2*i}, v{DP+2*i+1}' for i in range(16)]
for k in range(2):
    e('\n'.join(cv[4*k:4*k+4]))
    e(f's_waitcnt lgkmcnt({4 - 4*k})')
    e(f'v_mfma_f32_32x32x16_bf16 {vr(T1,16)}, {vr(CB+12*k,4)}, {vr(CB+12*k+8,4)}, {vr(T1,16)}')
for q in range(4):
    e('\n'.join(cv[8+4*q:12+4*q]))
    e(f'v_mfma_f32_32x32x16_bf16 {vr(T1,16)}, {vr(AP+4*q,4)}, {vr(BF+4*q,4)}, {vr(T1,16)}')
if OPT['prio']: e(f"s_setprio {OPT['pr']}")
stamp(5)
if OPT['abl'] == 32: e('s_endpgm')
e(f"""s_mul_i32 s{sA}, s{sD}, {YS}
s_lshl_b32 s{sB}, s{sHw}, 11
s_add_u32 s{sA}, s{sA}, s{sB}
s_add_u32 s{sA}, s{sA}, {WS_Y}
s_lshl_b32 s{sB}, s{sHw}, 9
s_add_u32 s{sB}, s{sB}, s{sD}
s_lshl_b32 s{sB}, s{sB}, {FSH}
s_add_u32 s{sB}, s{sB}, {F_Y}
s_nop 0""")
def xch(give, keep):
    for i in range(4): e(f'ds_write_b128 v{vXp}, {vr(give+4*i,4)} offset:{1024*i}')
    arrive(6); lwait(6, addr=vPair)
    for i in range(4): e(f'ds_read_b128 {vr(give+4*i,4)}, v{vXo} offset:{1024*i}')
    e('s_waitcnt lgkmcnt(0)')
e(f's_cmp_eq_u32 s{sHw}, 0\ns_cbranch_scc1 L_x0')
xch(T0, T1)
e('s_branch L_x1\nL_x0:')
xch(T1, T0)
e('L_x1:')
for i in range(8): e(f'v_pk_add_f32 {vr(T0+2*i,2)}, {vr(T0+2*i,2)}, {vr(T1+2*i,2)}')
for i in range(8): e(f'v_cvt_pk_bf16_f32 v{T1+i}, v{T0+2*i}, v{T0+2*i+1}')
e(f"""buffer_store_dwordx4 {vr(T1,4)}, v{vL16}, {sr(SRD_WS)}, s{sA} offen sc1
buffer_store_dwordx4 {vr(T1+4,4)}, v{vL16}, {sr(SRD_WS)}, s{sA} offen offset:1024 sc1
v_subrev_u32 v{a0}, 16, v{V_GRP}""")
if OM:
    e(f'''v_mov_b64 {vr(T0,2)}, -1
    v_mov_b64 {vr(T0+2,2)}, -1
    s_mul_i32 s{sA}, s{S_C}, {8*KS}
    s_add_u32 s{sA}, s{sA}, s{sOl}
    s_add_u32 s{sSk}, s{sA}, {4*KS}
    buffer_store_dwordx4 {vr(T0,4)}, v{vOl}, {sr(SRD_WS)}, s{sA} offen sc1
    buffer_store_dwordx4 {vr(T0,4)}, v{vOl}, {sr(SRD_WS)}, s{sSk} offen sc1''')
sync(7)
if OPT['only'] != 1: lwait(7, addr=a0)
e('s_waitcnt vmcnt(0)')
publish(sB, a0)
stamp(6)
if OPT['abl'] == 33: e('s_endpgm')
e(f"""s_mul_i32 s{sA}, s{S_W}, {16*896}
s_lshl_b32 s{sB}, s{S_C}, 7
s_add_u32 s{sA}, s{sA}, s{sB}
s_lshl_b32 s{sB}, s{S_W}, 11
s_add_u32 s{sB}, s{sB}, {L_WO}""")
for ch in range(7):
    e(f"""s_add_u32 m0, s{sB}, {8192*ch}
    s_add_u32 s{sSk}, s{sA}, {64*896*ch}
    buffer_load_dwordx4 v{vWoD}, {sr(SRD_B)}, s{sSk} offen lds
    buffer_load_dwordx4 v{vWoD+1}, {sr(SRD_B)}, s{sSk} offen offset:1024 lds
    s_waitcnt vmcnt({OPT['wodepth'] if ch < 6 else 0})""")
WF, OF, OC = 8, 168, 224
arrive(8)
e(f"""buffer_load_dword v{a0}, v{vFy}, {sr(SRD_WS)}, 0 offen sc1
s_mul_i32 s{sA}, s{sCh0}, {YS}
s_lshl_b32 s{sSk}, s{S_J}, 7
s_add_u32 s{sA}, s{sA}, s{sSk}
s_add_u32 s{sA}, s{sA}, {WS_Y}
s_add_u32 s{sSk}, s{sA}, {8*YS}""")
lwait(8)
stamp(7)
if OPT['abl'] == 34: e('s_endpgm')
def wo_reads(k):
    r = []
    for t in range(4):
        for hf in range(2):
            r.append(f'ds_read_b64_tr_b16 {vr(WF + 16*(k%10) + 4*t + 2*hf, 2)}, v{vWoR + (t>>1)} offset:{4096*k + 512*hf + 8*(t&1)}')
    return r
for k in range(10): e('\n'.join(wo_reads(k)))
arrive(9)
poll(vFy, first_issued=True, sleep=OPT['ysleep'], reg=a0)
stamp(8)
if OPT['abl'] == 35: e('s_endpgm')
e(f"""buffer_load_dwordx4 {vr(OF,4)}, v{vYl}, {sr(SRD_WS)}, s{sA} offen sc1
buffer_load_dwordx4 {vr(OF+4,4)}, v{vYl}, {sr(SRD_WS)}, s{sSk} offen sc1
s_lshr_b32 s{sA}, s{S_J}, 4
s_lshl_b32 s{sA}, s{sA}, 10
s_and_b32 s{sB}, s{S_J}, 3
s_lshl_b32 s{sB}, s{sB}, 8
s_add_u32 s{sA}, s{sA}, s{sB}
s_and_b32 s{sB}, s{S_J}, 8
s_lshl1_add_u32 s{sA}, s{sB}, s{sA}
s_and_b32 s{sB}, s{S_J}, 4
s_add_u32 s{sA}, s{sA}, s{sB}
s_mul_i32 s{sA}, s{sA}, 1792
s_lshl1_add_u32 s{sA}, s{sCh0}, s{sA}
s_add_u32 s{sB}, s{sA}, {128*1792}
v_xor_b32 v{a0}, 64, v{vBw}""")
lwait(9)
e(f"""s_waitcnt vmcnt(0)
ds_write_b128 v{vXo}, {vr(OF,4)}
ds_write_b128 v{vXo}, {vr(OF+4,4)} offset:1024""")
for z in range(2):
    for hf in range(2):
        e(f'ds_read_b64_tr_b16 {vr(OF + 8 + 4*z + 2*hf, 2)}, v{vTr} offset:{64*z + 512*hf}')
e(f"""s_waitcnt lgkmcnt(0)
buffer_store_dwordx4 {vr(OF+8,4)}, v{vYs}, {sr(SRD_C)}, s{sA} offen {OUTM}
buffer_store_dwordx4 {vr(OF+12,4)}, v{vYs}, {sr(SRD_C)}, s{sB} offen {OUTM}""")
if OPT['only'] == 1:
    stamp(9); stamp(13); prof_out(); e('s_endpgm')
if OM: poll(vFo, sleep=8)
if OM == 4:
    e(f'''s_lshl2_add_u32 s{sA}, s{S_J}, s{S_W}
    s_lshr_b32 s{sA}, s{sA}, 1
    s_lshl_b32 s{sA}, s{sA}, {4 + FSH}
    s_add_u32 s{sA}, s{sA}, {F_O}
    v_and_b32 v{vFo}, 15, v{V_LANE}
    v_lshl_add_u32 v{vFo}, v{vFo}, {FSH}, s{sA}''')
sOk, sLast = 4, 18
for k in range(14): e(f's_add_u32 s{sOk+k}, s{sOl}, {4*KS*k}')
stamp(9)
e('s_barrier')
stamp(10)
if OPT['osleep']: e(f"s_sleep {OPT['osleep']}")
if OM != 3: poll(vFo, sleep=OPT['hsleep'])
if OM: e(f's_min_u32 s{S_BOUND}, s{S_BOUND}, 0x4000')
stamp(11)
def o_load(k): return f'buffer_load_dwordx4 {vr(OF+4*k,4)}, v{vOl}, {sr(SRD_WS)}, s{sOk+k} offen sc1'
def o_chk(k):
    o = OF + 4*k
    return [f's_waitcnt vmcnt({13-k})', f'v_max3_u32 v6, v{o}, v{o+1}, v{o+2}', f'v_max_u32 v6, v6, v{o+3}', 'v_cmp_eq_u32 vcc, -1, v6']
for k in range(14): e(o_load(k))
if OM: e('\n'.join(o_chk(0)))
for k in range(14):
    o = OF + 4*k
    m = [f'v_mfma_f32_16x16x32_bf16 {vr(OC+4*t,4)}, {vr(WF + 16*(k%10) + 4*t, 4)}, {vr(o,4)}, {"0" if k == 0 else vr(OC+4*t,4)}' for t in range(4)]
    rd = wo_reads(k + 9) if 1 <= k <= 4 else []
    if k == 10: e('s_waitcnt lgkmcnt(0)')
    if OM:
        e(f's_cbranch_vccnz L_or{k}\nL_og{k}:')
        c = o_chk(k + 1) if k < 13 else ['', '', '', '']
        e('\n'.join([m[0]] + rd[:4] + [m[1]] + rd[4:] + [m[2], c[0], c[1], c[2], m[3], c[3]]))
    else:
        e(f's_waitcnt vmcnt({13-k})'); e('\n'.join(m + rd))
stamp(12)
e('s_nop 4')
for i in range(8): e(f'v_cvt_pk_bf16_f32 v{16+i}, v{OC+2*i}, v{OC+2*i+1}')
e(f"""ds_write_b128 v{vBw}, {vr(16,4)}
ds_write_b128 v{a0}, {vr(20,4)}
ds_read_b128 {vr(24,4)}, v{vBr}
ds_read_b128 {vr(28,4)}, v{vBr} offset:1024
s_or_b32 s{sA}, s2, s{S_W}
s_waitcnt lgkmcnt(1)
buffer_store_dwordx4 {vr(24,4)}, v{vOut}, {sr(SRD_C)}, s{sOut} offen {OUTM2}
s_waitcnt lgkmcnt(0)
buffer_store_dwordx4 {vr(28,4)}, v{vOut}, {sr(SRD_C)}, s{sOut+1} offen {OUTM2}
s_cbranch_scc1 L_noepoch""")
publish(sA, 6)
e('L_noepoch:')
if OPT['prof']:
    e('s_waitcnt vmcnt(0)')
stamp(13)
prof_out()
e('L_end:\ns_endpgm')
if OM:
    for k in range(14):
        c = o_chk(k)
        e(f'''L_or{k}:
        s_call_b64 s[90:91], L_re{k}
        {c[0]}
        L_oc{k}:
        {c[1]}
        {c[2]}
        {c[3]}
        s_cbranch_vccz L_og{k}
        {'s_sleep %d' % OPT['rsleep'] if OPT['rsleep'] else ''}
        {o_load(k)}
        s_sub_u32 s{S_BOUND}, s{S_BOUND}, 1
        s_waitcnt vmcnt(0)
        s_cbranch_scc0 L_oc{k}
        s_mov_b32 s{S_BOUND}, 0
        s_branch L_og{k}''')
    for k in range(14): e(f'L_re{k}:\n{o_load(k)}')
    e('s_setpc_b64 s[90:91]')
sec('idle')
ROLE[0] = 2
e('L_ssm_idle:')
if OPT['only'] == 2:
    arrive(1); e('s_endpgm')
hi()
e(f"""v_lshrrev_b32 v10, 3, v{V_LANE}
v_and_b32 v11, 7, v{V_LANE}
v_lshlrev_b32 v11, 4, v11
v_mul_u32_u24 v5, 896, v10
v_add_u32 v5, v5, v11
v_add_u32 v6, {7168-1024}, v5
s_lshl2_add_u32 s60, s{S_J}, s{S_W}
s_mul_i32 s61, s60, {16*896}
s_mul_i32 s62, s{S_W}, 14336
s_add_u32 s62, s62, {L_SSM}
s_mov_b32 s{SRD_A+2}, {2048*896}
s_mov_b32 s{SRD_A+3}, 0x20000
s_waitcnt lgkmcnt(0)
s_load_dword s{S_NONCE}, s[28:29], 0
s_mov_b64 s[{SRD_A}:{SRD_A+1}], s[4:5]""")
for c in range(7):
    e(f"""s_add_u32 m0, s62, {2048*c - 128*c}
    s_nop 0
    buffer_load_dwordx4 v5, {sr(SRD_A)}, s61 offen offset:{128*c} lds
    buffer_load_dwordx4 v6, {sr(SRD_A)}, s61 offen offset:{1024 + 128*c} lds""")
    if c == OPT['tb']: e('s_barrier')
    if c == 1:
        srd(SRD_WS, 28, WS_SIZE)
        e(f"""; transposing read: row = 8*(cc&1)+r', byte = 8*(2G+(cc>>1))
        v_mul_u32_u24 v7, {QS}, v10
        v_add_u32 v7, v7, v11
        v_bfe_u32 v8, v{V_LANE}, 2, 2
        v_and_b32 v9, 1, v{V_LANE}
        v_lshl_or_b32 v8, v9, 3, v8
        v_xor_b32 v8, 3, v8
        v_lshl_add_u32 v8, v8, 7, s62
        v_and_b32 v9, 0x30, v{V_LANE}
        v_add_u32 v8, v8, v9
        v_and_b32 v9, 2, v{V_LANE}
        v_lshl_add_u32 v8, v9, 2, v8
        s_lshl_b32 s63, s60, 7
        s_add_u32 s63, s63, {WS_U}
        s_lshl_b32 s65, s{S_J}, {FSH}
        s_add_u32 s65, s65, {F_U}""")
e(f's_waitcnt lgkmcnt(0)\ns_add_u32 s{S_NONCE}, s{S_NONCE}, 1')
arrive(1)
def t_rd(c):
    return [f'ds_read_b64_tr_b16 {vr(16 + 8*c + 4*z + 2*hf, 2)}, v8 offset:{2048*c + 64*z + 512*(1-hf)}' for z in range(2) for hf in range(2)]
e('s_waitcnt vmcnt(12)'); stamp(1); e('\n'.join(t_rd(0)))
for c in range(7):
    if c < 6:
        e('s_waitcnt vmcnt(10)'); e('\n'.join(t_rd(c + 1)))
    e(f"""s_add_u32 s64, s63, {8*QS}
    s_waitcnt lgkmcnt({4 if c < 6 else 0})
    buffer_store_dwordx4 {vr(16+8*c,4)}, v7, {sr(SRD_WS)}, s63 offen sc1
    buffer_store_dwordx4 {vr(20+8*c,4)}, v7, {sr(SRD_WS)}, s64 offen sc1
    s_add_u32 s63, s63, {16*QS}""")
    if c + 7 == OPT['tb']: e('s_barrier')
stamp(2)
e(f"""v_mov_b32 v5, 1
v_mov_b32 v6, 0
s_waitcnt vmcnt(0)
s_mov_b64 exec, 1
ds_add_rtn_u32 v5, v6, v5 offset:36
s_waitcnt lgkmcnt(0)
v_readfirstlane_b32 s60, v5
s_mov_b64 exec, -1
s_cmp_lg_u32 s60, 3
s_cbranch_scc1 L_idle_end""")
publish(65, 6)
e('L_idle_end:'); stamp(4)
prof_out()
e('s_endpgm')
ORDER = [['pro', 'ssm0', 'mha0', 'idle', 'ssm', 'mha'], ['pro', 'ssm0', 'mha0', 'mha', 'ssm', 'idle'],
         ['pro', 'ssm0', 'mha0', 'ssm', 'mha', 'idle'], ['pro', 'ssm0', 'idle', 'mha0', 'mha', 'ssm']][OPT['ord']] + ['cold', 'gt', 'fb']
SEC.setdefault('cold', [])
BODY = sum((SEC[n] for n in ORDER), [])
def sizes(lines):
    import subprocess, re, os, tempfile
    d = tempfile.mkdtemp()
    open(d + '/a.s', 'w').write('.amdgcn_target "amdgcn-amd-amdhsa--gfx950"\n.text\n' + '\n'.join(lines) + '\n')
    subprocess.check_call(['clang', '-x', 'assembler', '-target', 'amdgcn-amd-amdhsa', '-mcpu=gfx950', '-c', d + '/a.s', '-o', d + '/a.o'])
    o = subprocess.check_output(['llvm-objdump', '-d', '--mcpu=gfx950', d + '/a.o']).decode()
    return [4 * len(m.group(1).split()) for m in re.finditer(r'// [0-9A-F]{12}: ((?:[0-9A-F]{8} ?)+)', o)]
def is_ins(l):
    t = l.split(';')[0].strip()
    return bool(t) and not t.endswith(':')
def widen(l):
    import re
    t = l.split(';')[0].strip(); op = t.split()[0]
    if op.startswith('v_') and not op.startswith(('v_readfirstlane', 'v_swap', 'v_permlane', 'v_nop')):
        return l.replace(op, op + '_e64', 1)
    return None
if OPT['al']:
    sz = iter(sizes(BODY))
    I = [[l, next(sz) if is_ins(l) else 0] for l in BODY]
    res = []; addr = 0; nw = nn = 0
    for i, (l, n) in enumerate(I):
        if n == 8 and addr % 8 == 4:
            run = 0
            for l2, n2 in I[i:]:
                if n2 == 4: break
                run += n2 == 8
            cross = sum(1 for k in range(run) if (addr + 8*k) % 32 == 28)
            if cross:
                j = len(res) - 1; done = False; aj = addr
                while j >= 0 and res[j][1] in (0, 4):
                    aj -= res[j][1]
                    t = res[j][0].strip()
                    if t.startswith(('s_branch', 's_endpgm', 's_setpc')):
                        res.insert(j + 1, ['    s_nop 0', 4]); done = True; break
                    w = widen(res[j][0]) if res[j][1] == 4 and aj % 32 != 28 else None
                    if w:
                        res[j] = [w, 8]; done = True; nw += 1; break
                    j -= 1
                if not done and run >= OPT['alr']:
                    k = len(res)
                    while res[k-1][1] == 0: k -= 1
                    res.insert(k, ['    s_nop 0', 4]); done = True; nn += 1
                if done: addr += 4
        res.append([l, n]); addr += n
    BODY = [l for l, n in res]
    print('aligned: widened', nw, 'nops', nn, 'bytes', addr, file=sys.stderr)
hdr = open('header.txt').read()
txt = hdr + f'''; @launch grid=(256,1,1) block=(512,1,1) lds={L_TOT}
.amdgcn_target "amdgcn-amd-amdhsa--gfx950"
.text
.globl {KN}
.p2align 8
.type {KN},@function
{KN}:
''' + '\n'.join(BODY) + f'''
.section .rodata,"a"
.p2align 6
.amdhsa_kernel {KN}
  .amdhsa_next_free_vgpr 256
  .amdhsa_next_free_sgpr 102
  .amdhsa_accum_offset 256
  .amdhsa_group_segment_fixed_size 0
  .amdhsa_kernarg_size 104
  .amdhsa_user_sgpr_count 2
  .amdhsa_user_sgpr_kernarg_segment_ptr 1
  .amdhsa_system_sgpr_workgroup_id_x 1
.end_amdhsa_kernel
'''
open(sys.argv[1], 'w').write(txt)
```

```python
import sys, struct
def fl(x): return hex(struct.unpack('<I', struct.pack('<f', x))[0])

KN = 'concat_heads__ssm_conv_s4d__softmax_full_mha__prompt_kernel'
OPT = dict(nt=0, rdn=0, al=1, alr=6, fw=0, rsleep=0, hsleep=0, ord=3, nb=0, tb=13, tq=1, chkk=99, uw=-2, cw=0, s6=5, tskip=1, ones=1, pa=1, pr=2, pf=2, wgf=2, ax=0, bp=3, qa=7, n0=4, ilv=8, tlb=0, ulook=1, kgp=1, pad=0, ypad=0, omode=3, ksleep=0, usleep=4, obar=5, osleep=0, pubk=8, abl=0, touch=0, gs=0, kgw=0, xg=5, gx=0, pm=2, ps=0, rt=0, upub=1, kgx=0, outsc=0, ysleep=8, wodepth=4, wq_mid=0, pollk=99, rd=-1, rdrole=0, only=0, safe=0, rot=0, prof=0, fs=128, force_fb=0, wq_early=7, prio=1)
for a in sys.argv[2:]:
    k, v = a.split('=')
    assert k in OPT, k
    OPT[k] = int(v, 0)

FS = OPT['fs']
FSH = FS.bit_length() - 1
F_KV = 0x1000
F_O = F_KV + 1024 * FS
F_U = F_O + 1024 * FS
F_Y = F_U + 1024 * FS
F_H = F_Y + 1024 * FS
WS_K = 0x100000
WS_V = 0x300000
WS_O = 0x500000
WS_U = 0x700000
WS_Y = 0x900000
QS = 16384 + OPT['pad']; KS = 2 * QS; YS = 4096 + OPT['ypad']
S_KS = 57
WS_PROF = 0xb00000
WS_SIZE = 0xc00000
L_SSM = 1024
L_W = 57344
L_RB = 65536
L_X = 114688
L_TOT = 163840
TROW = 288
TABSZ = 38 * TROW
L_TAB = L_SSM
P_SZ = 2 * TABSZ
P_UC = 1536
UC_S = 2240
P_KD = TABSZ + 1536
P_X = TABSZ
PS = 1552
PD = 4 * PS
L_KP = L_TAB + 4 * TABSZ
assert P_UC + 4 * UC_S <= TABSZ and P_KD + 1600 <= P_SZ and P_X + 8192 <= P_SZ and L_KP % 16 == 0 and L_KP + 2 * PD <= L_W
L_WO = L_SSM

S_WV, S_W, S_HG, S_C, S_TILE, S_J, S_H, S_NONCE, S_O0, S_ROT = range(30, 40)
SRD_WS, SRD_A, SRD_B, SRD_C = 40, 44, 48, 52
S_BOUND = 56
S_T0 = 58

SEC = {}
out = None
def sec(n):
    global out
    out = SEC.setdefault(n, [])
sec('pro')
def e(s):
    for l in s.split('\n'):
        l = l.strip()
        if l:
            out.append(l if l.endswith(':') else '    ' + l)
_lab = [0]
def lab(p):
    _lab[0] += 1
    return f'L_{p}_{_lab[0]}'
def vr(a, n):
    return f'v[{a}:{a+n-1}]' if n > 1 else f'v{a}'
def srd(d, b, n):
    e(f's_mov_b64 s[{d}:{d+1}], s[{b}:{b+1}]\ns_mov_b32 s{d+2}, {n}\ns_mov_b32 s{d+3}, 0x20000')
def sr(d): return f's[{d}:{d+3}]'

V_LANE, V_T, V_OWN, V_GRP, V_PROF = 0, 1, 2, 3, 4

ROLE = [0]
def stamp(i):
    if OPT['rd'] == i and OPT['rdrole'] == ROLE[0]:
        e('s_memrealtime s[100:101]\ns_waitcnt lgkmcnt(0)')
    if OPT['prof'] > (i >= 14):
        e(f's_mem{"real" if OPT["rt"] else ""}time s[96:97]\ns_waitcnt lgkmcnt(0)\ns_sub_u32 s96, s96, s{98 if OPT["rt"] else S_T0}\nv_writelane_b32 v{V_PROF}, s96, {i}')
def prof_out():
    if OPT['rd'] >= 0 and OPT['rdrole'] == ROLE[0]:
        l = lab('pad')
        if ROLE[0] == 0 and not OPT['obar']: e('s_barrier')
        if ROLE[0] == 2: e('s_barrier')
        if ROLE[0] == 0 and OPT['rdn']: e(f's_cmp_eq_u32 s{S_C}, 7\ns_cbranch_scc{2 - OPT["rdn"]} L_end')
        if OPT['rd'] == 98:
            e(f'''s_not_b32 s100, s100
            v_mov_b32 v5, s100
            v_mov_b32 v6, 0
            s_mov_b64 exec, 1
            global_atomic_umax v6, v5, s[26:27]
            s_waitcnt vmcnt(0)
            s_sleep 127
            s_sleep 127
            s_sleep 127
            s_sleep 127
            s_sleep 127
            global_load_dword v5, v6, s[26:27] sc1
            s_waitcnt vmcnt(0)
            v_readfirstlane_b32 s100, v5
            s_not_b32 s100, s100''')
        e('s_sub_u32 s100, s100, s58\ns_lshl_b32 s100, s100, 3\ns_add_u32 s100, s100, s58')
        e(f'''s_add_u32 s100, s100, 6000
        {l}:
        s_sleep 1
        s_memrealtime s[96:97]
        s_waitcnt lgkmcnt(0)
        s_sub_u32 s96, s96, s100
        s_cmp_lt_i32 s96, 0
        s_cbranch_scc1 {l}''')
    if OPT['prof']:
        e(f'''s_memrealtime s[96:97]
        s_waitcnt lgkmcnt(0)
        v_writelane_b32 v{V_PROF}, s96, 31
        v_writelane_b32 v{V_PROF}, s98, 30
        s_lshl_b32 s96, s2, 3
        s_add_u32 s96, s96, s{S_WV}
        s_lshl_b32 s96, s96, 7
        s_add_u32 s96, s96, {WS_PROF}
        v_lshlrev_b32 v{V_T}, 2, v{V_LANE}
        s_mov_b32 exec_hi, 0
        buffer_store_dword v{V_PROF}, v{V_T}, {sr(SRD_WS)}, s96 offen
        s_mov_b64 exec, -1''')

def arrive(stage):
    e(f'v_mov_b32 v{V_T}, {stage}\nds_write_b32 v{V_OWN}, v{V_T}')
def lwait(stage, addr=V_GRP, sleep=0):
    l = lab('lw')
    e(f'{l}:')
    if sleep: e(f's_sleep {sleep}')
    e(f'''ds_read_b32 v{V_T}, v{addr}
    s_waitcnt lgkmcnt(0)
    v_cmp_gt_u32 vcc, {stage}, v{V_T}''')
    if OPT['safe']:
        d = lab('ld')
        e(f'''s_cbranch_vccz {d}
        s_sub_u32 s{S_BOUND}, s{S_BOUND}, 1
        s_cbranch_scc0 {l}
        s_mov_b32 s{S_BOUND}, 0
        {d}:''')
    else:
        e(f's_cbranch_vccnz {l}')
def sync(stage):
    arrive(stage); lwait(stage)
def poll(voff, first_issued=False, sleep=0, reg=V_T):
    l, d, m = lab('pl'), lab('pd'), lab('pm')
    if first_issued == 2:
        e(f's_waitcnt vmcnt(0)\nv_cmp_ne_u32 vcc, s{S_NONCE}, v{reg}\ns_cbranch_vccnz {l}\n{d}:')
        cur = [n for n in SEC if SEC[n] is out][0]
        sec('cold')
        e(f'''{l}:
        buffer_load_dword v{reg}, v{voff}, {sr(SRD_WS)}, 0 offen sc1
        s_waitcnt vmcnt(0)
        v_cmp_ne_u32 vcc, s{S_NONCE}, v{reg}
        s_cbranch_vccz {d}
        s_sub_u32 s{S_BOUND}, s{S_BOUND}, 1
        s_cbranch_scc0 {l}
        s_mov_b32 s{S_BOUND}, 0
        s_branch {d}''')
        sec(cur)
        return
    if first_issued: e(f's_branch {m}')
    e(f'{l}:')
    if sleep: e(f's_sleep {sleep}')
    e(f'''buffer_load_dword v{reg}, v{voff}, {sr(SRD_WS)}, 0 offen sc1
    {m}:
    s_waitcnt vmcnt(0)
    v_cmp_ne_u32 vcc, s{S_NONCE}, v{reg}
    s_cbranch_vccz {d}
    s_sub_u32 s{S_BOUND}, s{S_BOUND}, 1
    s_cbranch_scc0 {l}
    s_mov_b32 s{S_BOUND}, 0
    {d}:''')
def publish(soff, tmp):
    if OPT['fw']:
        e(f'''v_mov_b32 v{V_T}, s{S_NONCE}
        v_lshlrev_b32 v{tmp}, 2, v{V_LANE}
        s_mov_b64 exec, {hex((1 << OPT['fw']) - 1)}
        buffer_store_dword v{V_T}, v{tmp}, {sr(SRD_WS)}, s{soff} offen sc1
        s_mov_b64 exec, -1'''.replace('s_mov_b64 exec, 0xffffffff', 's_mov_b32 exec_hi, 0'))
        return
    e(f'''v_mov_b32 v{V_T}, s{S_NONCE}
    v_mov_b32 v{tmp}, 0
    s_mov_b64 exec, 1
    buffer_store_dword v{V_T}, v{tmp}, {sr(SRD_WS)}, s{soff} offen sc1
    s_mov_b64 exec, -1''')
def swap23(d, s, t):
    e(f'''v_lshrrev_b32 v{t}, 1, v{s}
    v_xor_b32 v{t}, v{t}, v{s}
    v_and_b32 v{t}, 4, v{t}
    v_mul_u32_u24 v{t}, 3, v{t}
    v_xor_b32 v{d}, v{t}, v{s}''')
def rot_next(s):
    e(f's_add_u32 s{s}, s{s}, 1\ns_cmp_eq_u32 s{s}, 7\ns_cselect_b32 s{s}, 0, s{s}')

e(f'''s_cmp_ge_u32 s2, 256
s_cbranch_scc1 L_end''')
if OPT['prof']:
    e(f's_memtime s[{S_T0}:{S_T0+1}]\ns_memrealtime s[98:99]\nv_mov_b32 v{V_PROF}, 0')
if OPT['rd'] >= 0: e('s_memrealtime s[100:101]\ns_memrealtime s[58:59]')
e(f'''s_load_dwordx16 s[4:19], s[0:1], 0
s_load_dwordx8 s[20:27], s[0:1], 64
s_load_dwordx2 s[28:29], s[0:1], 96
v_lshrrev_b32 v{V_OWN}, 6, v0
v_and_b32 v{V_LANE}, 63, v0
v_readfirstlane_b32 s{S_WV}, v{V_OWN}
v_lshlrev_b32 v{V_OWN}, 2, v{V_OWN}
v_mov_b32 v{V_T}, 0
ds_write2_b32 v{V_OWN}, v{V_T}, v{V_T} offset1:8
v_and_b32 v{V_GRP}, 3, v{V_LANE}
v_lshlrev_b32 v{V_GRP}, 2, v{V_GRP}
s_and_b32 s{S_HG}, s2, 1
s_bfe_u32 s60, s2, 0x20001
s_bfe_u32 s{S_C}, s2, 0x30003
s_lshr_b32 s61, s2, 6
s_lshl2_add_u32 s{S_TILE}, s60, s61
s_lshl1_add_u32 s{S_J}, s{S_TILE}, s{S_HG}
s_lshl3_add_u32 s{S_H}, s{S_HG}, s{S_C}
s_and_b32 s{S_W}, s{S_WV}, 3
s_mov_b32 s{S_BOUND}, 0x40000
s_mov_b32 s{S_KS}, {KS}
s_cmp_lt_u32 s{S_WV}, 4
s_cbranch_scc1 L_mha''')

VX = 144; VACC = 96; VWF = 32; VPK = 128
VV, VK, VS, VO, VQ = 32, 64, 96, 160, 224
vWd = [5, 6]; vXd = [7, 8, 9, 10]; vXr = [11, 12, 13, 14]; vWb, vW0, vW1 = 15, 16, 17
vRho, vG, vSt, vQd, vQr, vFl, vA, vB, vC = 18, 19, 20, 21, 22, 23, 24, 25, 26
vKo0, vKo1, vVo, vIdx = 27, 28, 29, 30
sXb, sWb, sCh, sCw, sLx, sTmp, sTmp2, sSt, sS1, sS2, sFl = range(60, 71)
sK, sV, sIt = 71, 72, 73
sFo, sO0, sO1 = 84, 85, 86
vOs, vQw = vRho, vG
vRb = [7, 8, 9]; vQx = [11, 12, 13]; vRr = 10
sMask = 74
sOdd = 76

sec('mha0')
e('L_mha:')
if OPT['prio']: e(f"s_setprio {OPT['pm']}")
e(f'''s_mul_i32 s{S_O0}, s{S_H}, 7
s_lshr_b32 s{S_O0}, s{S_O0}, 1''')
e(f'''v_lshrrev_b32 v{vA}, 3, v{V_LANE}          ; r
v_and_b32 v{vB}, 7, v{V_LANE}                    ; p
v_lshlrev_b32 v{vC}, 1, v{vA}
v_and_b32 v{vC}, 4, v{vC}
v_xor_b32 v{vC}, v{vC}, v{vB}
v_lshlrev_b32 v{vC}, 4, v{vC}
v_mul_u32_u24 v{vWd[0]}, 2688, v{vA}
v_add_u32 v{vWd[0]}, v{vWd[0]}, v{vC}
v_add_u32 v{vWd[1]}, {8*2688-1024}, v{vWd[0]}
v_lshrrev_b32 v{vC}, 1, v{vA}
v_xor_b32 v{vC}, v{vC}, v{vB}
v_lshlrev_b32 v{vC}, 4, v{vC}
v_mul_u32_u24 v{vA}, 896, v{vA}
v_add_u32 v{vXd[0]}, v{vA}, v{vC}
v_xor_b32 v{vC}, 64, v{vC}
v_add_u32 v{vXd[1]}, v{vA}, v{vC}
v_add_u32 v{vXd[1]}, {7168-1024}, v{vXd[1]}
v_add_u32 v{vXd[2]}, {2*(7168-1024)}, v{vXd[0]}
v_add_u32 v{vXd[3]}, {2*(7168-1024)}, v{vXd[1]}
s_lshl2_add_u32 s{sXb}, s{S_TILE}, s{S_W}
s_lshl_b32 s{sFl}, s{S_H}, 6
s_add_u32 s{sFl}, s{sFl}, s{S_TILE if OPT['wgf'] else sXb}
s_lshl_b32 s{sFl}, s{sFl}, {FSH}
s_add_u32 s{sFl}, s{sFl}, {F_KV}
s_mul_i32 s{sXb}, s{sXb}, {32*896}
s_mul_i32 s{sTmp2}, s{S_HG}, 3
s_lshr_b32 s{sTmp}, s2, 6
s_add_u32 s{sTmp2}, s{sTmp2}, s{sTmp}
s_mul_i32 s{sWb}, s{S_HG}, 7
s_add_u32 s{sWb}, s{sWb}, s{S_C}
s_add_u32 s{sWb}, s{sWb}, 7
s_cmp_eq_u32 s{S_C}, 7
s_cselect_b32 s{sWb}, {'s%d' % sTmp2 if OPT['tq'] else '0x100000'}, s{sWb}
s_cselect_b32 s{sS1}, 1, s{S_W}
s_lshl_b32 s{sWb}, s{sWb}, 7
s_mul_i32 s{sTmp}, s{S_W}, {16*2688}
s_add_u32 s{sWb}, s{sWb}, s{sTmp}
s_mul_i32 s{sLx}, s{S_W}, 12288
s_add_u32 s{sLx}, s{sLx}, {L_X}
s_lshl_b32 s{sS1}, s{sS1}, 11
s_add_u32 s{sS1}, s{sS1}, {L_W}
s_mov_b32 s{SRD_A+2}, {2048*896}
s_mov_b32 s{SRD_A+3}, 0x20000
s_mov_b32 s{SRD_B+2}, {448*1344*2}
s_mov_b32 s{SRD_B+3}, 0x20000
s_mov_b32 m0, s{sLx}
s_waitcnt lgkmcnt(0)
s_mov_b64 s[{SRD_A}:{SRD_A+1}], s[18:19]
s_mov_b64 s[{SRD_B}:{SRD_B+1}], s[20:21]
s_load_dword s{S_NONCE}, s[28:29], 0''')
stamp(22)
sWo = 88
def w_lines(st):
    return [f's_add_u32 m0, s{sS1}, {8192*st}', f's_add_u32 s{sWo+st}, s{sWb}, {64*2688*st}'] + \
           [f'buffer_load_dwordx4 v{vWd[i]}, {sr(SRD_B)}, s{sWo+st} offen offset:{1024*i} lds' for i in range(2)]
def x_chunk(st):
    return [f's_add_u32 m0, s{sLx}, {(st%3)*4096 - 128*st}', 's_nop 0'] + \
           [f'buffer_load_dwordx4 v{vXd[i]}, {sr(SRD_A)}, s{sXb} offen offset:{1024*i + 128*st} lds' for i in range(4)]
DM = []
for l in [x_chunk(0), w_lines(0)] + [w_lines(i) for i in range(1, 7)] + [x_chunk(1), x_chunk(2)]:
    DM += [l[:3]] + [[x] for x in l[3:]]
DM[0] = DM[0][2:]
for i, g in enumerate(DM[:OPT['n0']]):
    if i == OPT['nb']:
        e('s_barrier'); stamp(23)
        if OPT['only'] == 1: e('s_endpgm')
    e('\n'.join(g))
DM = DM[OPT['n0']:]
stamp(24)
if OPT['ord'] not in (1, 3): e('s_branch L_mha1')
sec('mha')
e('L_mha1:')
stamp(25)
sec('tmp')
srd(SRD_WS, 28, WS_SIZE)
ONES = f'''s_bitcmp1_b32 s{S_H}, 0
s_cselect_b32 s{sTmp}, 0, 7
v_cmp_eq_u32 vcc, s{sTmp}, v{vA}
s_lshl_b32 s{sTmp}, s{S_O0}, 1
s_sub_u32 s{sTmp}, s{S_HG}, s{sTmp}
s_add_u32 s{sTmp}, s{sTmp}, 112
v_mov_b32 v{vB}, s{sTmp}
v_cndmask_b32 v{vA}, v{vA}, v{vB}, vcc
''' if OPT['ones'] else ''
FIX = f'''v_cmp_lt_u32 vcc, 7, v{vB}
s_lshl3_add_u32 s{sTmp}, s{S_HG}, 7
v_mov_b32 v{vB}, s{sTmp}
v_cndmask_b32 v{vC}, v{vC}, v{vB}, vcc
''' if OPT['ones'] else ''
FOM = f'''s_lshl_b32 s{sFo}, s{sTmp2}, 4
s_add_u32 s{sFo}, s{sFo}, s{S_H}
s_lshl_b32 s{sFo}, s{sFo}, {FSH}
s_add_u32 s{sFo}, s{sFo}, {F_O}
''' if OPT['omode'] != 3 else ''
e(f'''v_and_b32 v{vA}, 31, v{V_LANE}
v_lshrrev_b32 v{vG}, 5, v{V_LANE}''')
swap23(vRho, vA, vB)
e(f'''v_bfe_u32 v{vB}, v{vRho}, 1, 3
v_xor_b32 v{vB}, v{vB}, v{vG}
v_lshlrev_b32 v{vB}, 4, v{vB}
v_lshl_add_u32 v{vB}, v{vRho}, 7, v{vB}
v_add_u32 v{vXr[0]}, s{sLx}, v{vB}
v_xor_b32 v{vXr[1]}, 32, v{vXr[0]}
v_xor_b32 v{vXr[2]}, 64, v{vXr[0]}
v_xor_b32 v{vXr[3]}, 0x60, v{vXr[0]}
v_and_b32 v{vB}, 3, v{V_LANE}                     ; cc
v_lshrrev_b32 v{vC}, 1, v{vB}
v_and_b32 v{vQd}, 1, v{vB}
v_lshl_or_b32 v{vC}, v{vQd}, 1, v{vC}
v_bfe_u32 v{vQd}, v{V_LANE}, 4, 1
v_lshl_or_b32 v{vB}, v{vQd}, 2, v{vB}
v_lshl_or_b32 v{vC}, v{vQd}, 2, v{vC}
v_bfe_u32 v{vQd}, v{V_LANE}, 2, 2                  ; r'
v_lshl_or_b32 v{vFl}, v{vG}, 3, v{vQd}             ; 8g + r'
v_lshlrev_b32 v{vQr}, 6, v{vFl}
v_lshl_add_u32 v{vQr}, v{vC}, 3, v{vQr}
v_add_u32 v{vQr}, {L_X + 4096}, v{vQr}
s_cmp_eq_u32 s{S_HG}, 0
s_cselect_b64 vcc, -1, 0
v_cndmask_b32 v{vB}, v{vB}, v{vC}, vcc             ; K slabs use the exchanged order, V slabs the natural one
v_lshlrev_b32 v{vWb}, 7, v{vFl}
v_lshl_add_u32 v{vWb}, v{vB}, 3, v{vWb}
v_lshrrev_b32 v{vQd}, 1, v{vQd}
v_lshl_add_u32 v{vWb}, v{vQd}, 6, v{vWb}
v_add_u32 v{vW0}, {L_W}, v{vWb}
v_lshlrev_b32 v{vB}, 4, v{vRho}
v_mad_u32_u24 v{vB}, v{vG}, s{S_KS}, v{vB}
v_lshrrev_b32 v{vC}, 2, v{vA}
v_mul_u32_u24 v{vC}, {QS}, v{vC}
v_lshl_add_u32 v{vC}, v{vG}, 6, v{vC}
v_and_b32 v{vQd}, 3, v{vA}
v_lshl_add_u32 v{vC}, v{vQd}, 4, v{vC}
v_cndmask_b32 v{vSt}, v{vC}, v{vB}, vcc
s_lshl2_add_u32 s{sTmp}, s{S_TILE}, s{S_W}
s_lshl_b32 s{sTmp2}, s{sTmp}, 9
s_add_u32 s{sTmp2}, s{sTmp2}, {WS_K}
s_lshl_b32 s{sTmp}, s{sTmp}, 8
s_add_u32 s{sTmp}, s{sTmp}, {WS_V}
s_movk_i32 s{sS2}, 128
s_cmp_eq_u32 s{S_HG}, 0
s_cselect_b32 s{sSt}, s{sTmp2}, s{sTmp}
s_cselect_b32 s{sS2}, {2*KS}, s{sS2}
s_mul_i32 s{sTmp}, s{S_C}, {8*KS}
s_add_u32 s{sSt}, s{sSt}, s{sTmp}
v_lshrrev_b32 v{vB}, 2, v{V_LANE}
v_mul_u32_u24 v{vB}, 2688, v{vB}
v_lshl_add_u32 v{vQd}, v{vQd}, 4, v{vB}
s_lshl_b32 s82, s{S_O0}, 4
s_mul_i32 s{sTmp}, s{S_W}, {16*2688}
s_add_u32 s82, s82, s{sTmp}
s_lshr_b32 s{sTmp}, s{S_O0}, 3
s_add_u32 s{sTmp2}, s{S_O0}, 3
s_lshr_b32 s{sTmp2}, s{sTmp2}, 3
s_sub_u32 s{sTmp2}, s{sTmp2}, s{sTmp}
v_bfe_u32 v{vC}, v{V_LANE}, 4, 1
v_mul_u32_u24 v{vC}, s{sTmp2}, v{vC}
v_lshl_add_u32 v{vC}, v{vG}, 3, v{vC}
v_add_u32 v{vC}, s{sTmp}, v{vC}
v_and_b32 v{vB}, 15, v{V_LANE}
{FIX}v_and_b32 v{vB}, {3 if OPT['wgf'] else 15}, v{V_LANE}
v_lshl_add_u32 v{vC}, v{vC}, 6, v{vB}
s_lshl_b32 s{sTmp}, s{S_W}, {2 if OPT['wgf'] else 4}
v_add_u32 v{vC}, s{sTmp}, v{vC}
v_lshlrev_b32 v{vC}, {FSH}, v{vC}
v_add_u32 v{vFl}, {F_KV}, v{vC}
v_lshlrev_b32 v{vKo0}, 4, v{vA}
v_mad_u32_u24 v{vKo0}, v{vG}, s{S_KS}, v{vKo0}
v_add_u32 v{vKo1}, {2*KS}, v{vKo0}
v_lshrrev_b32 v{vA}, 2, v{vRho}
{ONES}v_mul_u32_u24 v{vA}, {QS}, v{vA}
v_lshl_add_u32 v{vA}, v{vG}, 6, v{vA}
v_and_b32 v{vB}, 3, v{V_LANE}
v_lshl_add_u32 v{vVo}, v{vB}, 4, v{vA}
v_mov_b32 v{vIdx}, 0xdddddddd
s_mul_i32 s{sTmp}, s{S_O0}, {KS}
s_lshl_b32 s{sK}, s{S_W}, 13
s_add_u32 s{sK}, s{sK}, s{sTmp}
s_add_u32 s{sK}, s{sK}, {WS_K}
s_lshl_b32 s{sV}, s{S_W}, 12
s_add_u32 s{sV}, s{sV}, s{sTmp}
s_add_u32 s{sV}, s{sV}, {WS_V}
s_lshl2_add_u32 s{sTmp2}, s{S_TILE}, s{S_W}
{FOM}s_lshl_b32 s{sTmp2}, s{sTmp2}, 9
s_add_u32 s{sO0}, s{sTmp}, s{sTmp2}
s_add_u32 s{sO0}, s{sO0}, {WS_O}
s_add_u32 s{sO1}, s{sO0}, {2*KS}
s_bitcmp1_b32 s{S_H}, 0
s_cselect_b64 s[{sOdd}:{sOdd+1}], -1, 0
v_mov_b32 v{vC}, 0x3e8b97f6
v_cmp_gt_u32 vcc, 32, v{V_LANE}
s_and_b64 s[78:79], vcc, s[{sOdd}:{sOdd+1}]
s_nor_b64 s[80:81], vcc, s[{sOdd}:{sOdd+1}]
v_cndmask_b32 v{vA}, v{vC}, 0, s[78:79]
v_cndmask_b32 v{vB}, v{vC}, 0, s[80:81]
s_mov_b32 s78, 0x3f803f80
s_mov_b32 s79, s78
v_xor_b32 v{vW1}, 64, v{vW0}
v_lshlrev_b32 v{vOs}, 4, v{vRho}
v_mad_u32_u24 v{vOs}, v{vG}, s{S_KS}, v{vOs}
v_lshl_add_u32 v{vQw}, v{V_LANE}, 4, s{sLx}''')
srd(SRD_C, 28, WS_SIZE)
def o_stores(r0, r1, tag):
    e(f'''s_bitcmp1_b32 s{S_H}, 0
    s_cbranch_scc1 L_ost_odd{tag}
    buffer_store_dwordx4 {vr(r0,4)}, v{vOs}, {sr(SRD_WS)}, s{sO0} offen sc1
    s_mov_b32 exec_hi, 0
    buffer_store_dwordx4 {vr(r1,4)}, v{vOs}, {sr(SRD_WS)}, s{sO1} offen sc1
    s_not_b64 exec, exec
    buffer_store_dwordx2 {vr(r1,2)}, v{vOs}, {sr(SRD_WS)}, s{sO1} offen sc1
    s_branch L_ost_done{tag}
    L_ost_odd{tag}:
    buffer_store_dwordx4 {vr(r1,4)}, v{vOs}, {sr(SRD_WS)}, s{sO1} offen sc1
    s_mov_b32 exec_hi, 0
    buffer_store_dwordx2 {vr(r0+2,2)}, v{vOs}, {sr(SRD_WS)}, s{sO0} offen offset:8 sc1
    s_not_b64 exec, exec
    buffer_store_dwordx4 {vr(r0,4)}, v{vOs}, {sr(SRD_WS)}, s{sO0} offen sc1
    L_ost_done{tag}:
    s_mov_b64 exec, -1''')
GS = 0
AB = [l for l in SEC.pop('tmp') if not l.strip().startswith(';')]
sec('mha')
def scc_pending(i):
    return i < len(AB) and AB[i].strip().startswith(('s_cselect', 's_mov_b32 s75'))
pos = 0
for g in DM:
    n = pos + OPT['ilv']
    while scc_pending(n): n += 1
    e('\n'.join(AB[pos:n])); pos = n
    e('\n'.join(g))
e('\n'.join(AB[pos:]))
stamp(0)
def x_reads(s):
    return [f'ds_read_b128 {vr(VX + 16*s + 4*ks, 4)}, v{vXr[ks]} offset:{(s%3)*4096}' for ks in range(4)]
e('s_waitcnt vmcnt(22)')
e('\n'.join(x_reads(0)))
e('s_waitcnt vmcnt(8) lgkmcnt(0)')
arrive(1)
stamp(1)
e('\n'.join(x_chunk(3)))
e('s_waitcnt vmcnt(8)')
e('\n'.join(x_reads(1)))
lwait(1)
e(f's_add_u32 s{S_NONCE}, s{S_NONCE}, 1')
stamp(2)
def w_reads(s):
    r = []
    for ks in range(4):
        for ct in range(2):
            for hf in range(2):
                d = VWF + 32 * (s & 1) + 8 * ks + 4 * ct + 2 * hf
                r.append(f'ds_read_b64_tr_b16 {vr(d,2)}, v{(vW0, vW1)[ct]} offset:{s*8192 + ks*2048 + hf*512}')
    return r
if OPT['tskip']: e(f's_cmp_eq_u32 s{S_C}, 7\ns_cbranch_scc1 L_gemm_t')
e('\n'.join(w_reads(0)))
e(f'''s_waitcnt lgkmcnt(0)
s_cmp_lg_u32 s{S_HG}, 0
s_cbranch_scc1 L_gemm_v''')
sQb, sQc = 82, 83
NE = OPT['wq_early']
def wq_dma(st):
    return [f's_add_u32 m0, s{sLx}, {4096 + 1024*st}\ns_add_u32 s83, s82, {64*2688*st}', '', f'buffer_load_dwordx4 v{vQd}, {sr(SRD_B)}, s83 offen lds']
SPIN = []
def gemm1(vpart):
    for s in range(7):
        M = []
        for ks in range(4):
            for ct in range(2):
                wf = vr(VWF + 32 * (s & 1) + 8 * ks + 4 * ct, 4); xf = vr(VX + 16 * s + 4 * ks, 4)
                acc = vr(VACC + 16 * ct, 16)
                a, b = (xf, wf) if vpart else (wf, xf)
                M.append(f'v_mfma_f32_32x32x16_bf16 {acc}, {a}, {b}, {"0" if s == 0 and ks == 0 else acc}')
        gaps = [[] for _ in range(8)]
        tag = f'{"v" if vpart else "k"}{s}'
        pre = []
        dm = []
        def add(l): dm.extend([(l[0], l[2])] + [(None, x) for x in l[3:]])
        if s <= 2: add(x_chunk(s + 4))
        if s == 3:
            for i in range(min(NE, 4)): add(wq_dma(i))
        if s == 4:
            for i in range(4, NE): add(wq_dma(i))
        n = {0: 8, 1: 8, 2: 8, 3: 4 + min(NE, 4), 4: NE}.get(s)
        for i, (m, l) in enumerate(dm):
            if m: (pre if i == 0 else gaps[i - 1]).append(m)
            gaps[i].append(l)
        if s < 6:
            wr = w_reads(s + 1)
            for i, (p, q) in enumerate(((0, 3), (3, 6), (6, 9), (9, 12), (12, 16))): gaps[i] += wr[p:q]
            if s <= 4: gaps[OPT['xg']] += [f's_waitcnt vmcnt({n})'] + x_reads(s + 2)
            gaps[7] += [f's_waitcnt lgkmcnt({4 if s == 4 and OPT["s6"] != 4 else 0})']
        if s == OPT['s6'] and (OPT['uw'] == 6 or OPT['cw'] == 6): gaps[6] += [f'v_mov_b32 v{V_T}, 6', f'ds_write_b32 v{V_OWN}, v{V_T}']
        if s == 5:
            gaps[7] += [f'v_add_u32 v31, 16, v{V_GRP}', f'ds_read_b32 v31, v31']
        if s == 6 and NE == 7:
            gaps[OPT['qa']] += ['s_waitcnt vmcnt(0)', f'v_mov_b32 v{V_T}, 7', f'ds_write_b32 v{V_OWN}, v{V_T}']
        e('\n'.join(pre))
        if OPT['gx'] & 1 or vpart == 2: M = ['s_nop 0'] * 8
        if OPT['gx'] & 2 or vpart == 2: gaps = [[x for x in g if 'tr_b16' not in x] for g in gaps]
        for i in range(8):
            e(M[i]); e('\n'.join(gaps[i]))
        stamp(14 + s)
if OPT['tskip']:
    sec('gt'); e('L_gemm_t:'); gemm1(2); e('s_branch L_gemm_done'); sec('mha')
else: SEC['gt'] = []
gemm1(False)
e('s_branch L_gemm_done\nL_gemm_v:')
gemm1(True)
e('L_gemm_done:')
stamp(3)
e(f"""s_add_u32 s{sS1}, s{sSt}, s{sS2}
s_add_u32 s{sXb}, s{sSt}, {4*KS}
s_add_u32 s{sCw}, s{sS1}, {4*KS}
s_cmp_eq_u32 s{S_C}, 7
s_waitcnt lgkmcnt(0)
s_cbranch_scc1 L_nokv
s_nop 4""")
for q, so in enumerate((sSt, sS1, sXb, sCw)):
    for i in range(4*q, 4*q+4):
        e(f'v_cvt_pk_bf16_f32 v{VPK + i}, v{VACC + 2*i}, v{VACC + 2*i + 1}')
    e(f'buffer_store_dwordx4 {vr(VPK+4*q,4)}, v{vSt}, {sr(SRD_WS)}, s{so} offen sc1')
if OPT['ones']:
    e(f'''s_branch L_kvst
    L_nokv:
    v_mov_b64 v[128:129], s[78:79]
    v_mov_b64 v[130:131], s[78:79]
    v_lshlrev_b32 v132, 4, v{V_LANE}
    s_lshl2_add_u32 s{sTmp}, s{S_TILE}, s{S_W}
    s_lshl_b32 s{sTmp}, s{sTmp}, 8
    s_mul_i32 s{sTmp2}, s{S_HG}, {QS}
    s_add_u32 s{sTmp}, s{sTmp}, s{sTmp2}
    s_add_u32 s{sTmp}, s{sTmp}, {WS_V + 112*QS}
    s_mov_b64 exec, 0xffff
    buffer_store_dwordx4 v[128:131], v132, {sr(SRD_WS)}, s{sTmp} offen sc1
    s_mov_b64 exec, -1
    L_kvst:''')
else: e('L_nokv:')
assert OPT['wgf'] and OPT['ones'] and OPT['pf'] == 2
def kv_loads(buf, i, srdn=SRD_C):
    return [f'buffer_load_dwordx4 {vr(VK + 8*buf, 4)}, v{vKo0}, {sr(srdn)}, s{sK} offen offset:{512*i} sc1',
            f'buffer_load_dwordx4 {vr(VK + 8*buf + 4, 4)}, v{vKo1}, {sr(srdn)}, s{sK} offen offset:{512*i} sc1',
            f'buffer_load_dwordx4 {vr(VV + 8*buf, 4)}, v{vVo}, {sr(srdn)}, s{sV} offen offset:{256*i} sc1',
            f'buffer_load_dwordx4 {vr(VV + 8*buf + 4, 4)}, v{vVo}, {sr(srdn)}, s{sV} offen offset:{256*i + 128} sc1']
fill = [f'v_mov_b64 {vr(VV+2*i,2)}, s[78:79]' for i in range(12, 16)] + [f'v_subrev_u32 v{vRr}, {L_X - L_RB}, v{vQw}', 's_mov_b64 s[80:81], -1']
for s in range(3):
    fill += f"""s_add_u32 s{sTmp}, s{S_W}, {1+s}
    s_and_b32 s{sTmp}, s{sTmp}, 3
    s_sub_u32 s{sTmp}, s{sTmp}, s{S_W}
    s_mul_i32 s{sTmp}, s{sTmp}, 12288
    v_add_u32 v{vQx[s]}, s{sTmp}, v{vQw}
    v_subrev_u32 v{vRb[s]}, {L_X - L_RB - 4096*s}, v{vQx[s]}""".split('\n')
def count_in(n):
    e(f"""v_mov_b32 v{V_T}, 1
    v_mov_b32 v31, 0
    s_waitcnt vmcnt({n})
    s_mov_b64 exec, 1
    ds_add_rtn_u32 v{vSt}, v31, v{V_T} offset:32
    s_mov_b64 exec, -1""")
def count_out(n):
    e(f's_waitcnt lgkmcnt({n})\nv_readfirstlane_b32 s{sTmp2}, v{vSt}\ns_cmp_lg_u32 s{sTmp2}, 3\ns_cbranch_scc1 L_nopub')
    publish(sFl, 31)
    e('L_nopub:'); stamp(5)
NM = max(NE, OPT['wq_mid'])
for st in range(NE, NM): e('\n'.join(wq_dma(st)))
stamp(4)
e(f'v_cmp_gt_u32 vcc, 1, v31\ns_cbranch_vccz L_eok\nv_add_u32 v31, 16, v{V_GRP}')
lwait(1, addr=31)
e('L_eok:')
if NE < 7:
    e('\n'.join(fill)); fill = []
    count_in(NM - NE)
    if NM == 7:
        e('s_waitcnt vmcnt(0)'); arrive(7); count_out(1)
    else:
        count_out(0)
        for st in range(NM, 7): e('\n'.join(wq_dma(st)))
        e('s_waitcnt vmcnt(0)'); arrive(7)
lwait(7)
stamp(6)
QB = [80, 84, 88, 92, 112, 116, 120, 124]
def q_reads(k):
    s, ks = divmod(k, 4)
    return [f'ds_read_b64_tr_b16 {vr(QB[k%8] + 2*hf, 2)}, v{vQr} offset:{ks*12288 + s*1024 + hf*256}' for hf in range(2)]
for k in range(6): e('\n'.join(q_reads(k)))
e('\n'.join(fill[:12])); fill = fill[12:]
zi = 0
PK = OPT['pubk'] if NE == 7 else -99
for k in range(28):
    extra = 1 if PK < k <= PK + 5 else 0
    e(f's_waitcnt lgkmcnt({min(10, 2*(27-k)) + extra})')
    e(f'v_mfma_f32_32x32x16_bf16 {vr(VACC,16)}, {vr(QB[k%8], 4)}, {vr(VX + 4*k, 4)}, {"0" if k == 0 else vr(VACC,16)}')
    if k + 6 < 28: e('\n'.join(q_reads(k + 6)))
    while zi < 40 and VX + 2*zi + 1 < VX + 4*k - 4 and zi < 2*k:
        e(f'v_mov_b64 {vr(VX + 2*zi, 2)}, 0'); zi += 1
    if k >= 22 or k < 2:
        e('\n'.join(fill[:4])); fill = fill[4:]
    if k == PK: count_in(0)
    if k == PK + OPT['wgf']: count_out(2*OPT['wgf'])
    if k == OPT['pollk']: e(f'buffer_load_dword v31, v{vFl}, {sr(SRD_WS)}, 0 offen sc1')
    if k == OPT['chkk']:
        e(f's_waitcnt vmcnt(0)\nv_cmp_ne_u32 vcc, s{S_NONCE}, v31\ns_mov_b64 s[80:81], vcc\ns_cbranch_vccnz L_kv_late')
        for t in range(2): e('\n'.join(kv_loads(t, t)))
        e('L_kv_late:')
assert zi == 40 and VX == VS + 48 and not fill
stamp(7)
e('s_nop 11')
for r in range(16):
    m = vA if r < 4 else (vB if r >= 12 else vC)
    e(f'v_mul_f32 v{VACC + r}, v{m}, v{VACC + r}')
for i in range(8):
    e(f'v_cvt_pk_bf16_f32 v{VQ + 24 + i}, v{VACC + 2*i}, v{VACC + 2*i + 1}')
e(f"""ds_write_b128 v{vQw}, {vr(VQ+24,4)}
ds_write_b128 v{vQw}, {vr(VQ+28,4)} offset:1024""")
arrive(8)
lwait(8)
for s in range(3):
    e(f'ds_read_b128 {vr(VQ+8*s,4)}, v{vQx[s]}\nds_read_b128 {vr(VQ+8*s+4,4)}, v{vQx[s]} offset:1024')
PF = OPT['pf']
if OPT['chkk'] < 28: e('s_cmp_eq_u64 s[80:81], 0\ns_cbranch_scc1 L_kv_done')
poll(vFl, first_issued=OPT['pollk'] < 28 and OPT['chkk'] > 27, reg=31, sleep=OPT['ksleep'])
for t in range(PF): e('\n'.join(kv_loads(t, t)))
e('L_kv_done:')
stamp(8)
OM = OPT['omode']
if OM:
    e(f'''s_lshr_b32 s{sTmp}, s{S_O0}, 3
    s_add_u32 s{sTmp2}, s{S_O0}, 3
    s_lshr_b32 s{sTmp2}, s{sTmp2}, 3
    s_sub_u32 s{sTmp2}, s{sTmp2}, s{sTmp}
    s_lshl_b32 s{sTmp2}, s{sTmp2}, 6
    s_lshl_b32 s{sTmp}, s{sTmp}, 6
    s_lshl2_add_u32 s{sSt}, s{S_TILE}, s{S_W}
    s_add_u32 s{sTmp}, s{sTmp}, s{sSt}
    s_lshl_b32 s{sTmp}, s{sTmp}, {FSH}
    s_add_u32 s{sTmp}, s{sTmp}, {F_Y}
    v_and_b32 v{vFl}, 1, v{V_LANE}
    v_mul_u32_u24 v{vFl}, s{sTmp2}, v{vFl}
    v_and_b32 v31, 2, v{V_LANE}
    v_lshl_add_u32 v{vFl}, v31, 8, v{vFl}
    v_lshl_add_u32 v{vFl}, v{vFl}, {FSH}, s{sTmp}''')
def qk(buf, slot, js):
    d = vr(VS + 16*slot, 16)
    return f'v_mfma_f32_32x32x16_bf16 {d}, {vr(VK + 8*buf + 4*js, 4)}, {vr(VQ + 8*slot + 4*js, 4)}, {"0" if js == 0 else d}'
def pv(buf, slot, js):
    return f'v_smfmac_f32_32x32x32_bf16 {vr(VO + 16*slot, 16)}, {vr(VV + 8*buf + 4*js, 4)}, {vr(VS + 16*slot + 8*js, 8)}, v{vIdx}'
def exps(s): return [f'v_exp_f32 v{VS + 16*s + r}, v{VS + 16*s + r}' for r in range(16)]
SPREAD = []
def unit(t, s):
    ex = exps(s)
    if OPT['ax'] & 16 and s in (0, 1, 2):
        pass
    nb = t if s < 3 else (t + 1) & 3
    pb = t if s > 0 else (t - 1) & 3
    if s == 3: e(f's_waitcnt vmcnt({4*PF-4})')
    e(qk(nb, (s+1) & 3, 0)); e('\n'.join(ex[0:4]))
    e(qk(nb, (s+1) & 3, 1)); e('\n'.join(ex[4:8]))
    e(pv(pb, (s-1) & 3, 0))
    if s == 1:
        kl = kv_loads((t + PF) & 3, t + PF)
        if OPT['ax'] & 1: kl = [x for x in kl if 'exec' not in x]
        if OPT['ax'] & 2: kl = [x for x in kl if 'buffer' not in x]
        if OPT['ax'] & 4: kl = [x.replace(' sc1', '') for x in kl]
        if OPT['ax'] & 8: SPREAD.extend(kl); kl = []
        e('\n'.join(kl))
        if t == 3 - PF:
            e(f's_cmp_eq_u32 s{sIt}, 3\ns_cselect_b32 s{SRD_C+2}, 0, s{SRD_C+2}')
        if t == 3:
            e(f's_add_u32 s{sK}, s{sK}, 2048\ns_add_u32 s{sV}, s{sV}, 1024\ns_add_u32 s{sIt}, s{sIt}, 1\ns_cmp_lg_u32 s{sIt}, 4')
    e('\n'.join(ex[8:12]))
    e(pv(pb, (s-1) & 3, 1)); e('\n'.join(ex[12:16]))
e(f's_mov_b32 s{sIt}, 0\ns_waitcnt vmcnt({4*PF - 4}) lgkmcnt(0)')
stamp(9)
e(qk(0, 0, 0)); e(qk(0, 0, 1))
e(f"s_setprio {OPT['pa']}\ns_nop 8\ns_branch L_att_in" if OPT['prio'] else 's_nop 9\ns_branch L_att_in')
e('L_att:')
unit(3, 2); unit(3, 3)
e('L_att_in:')
for t in range(4):
    for s in range(4):
        if (t, s) < (3, 2): unit(t, s)
e('s_cbranch_scc1 L_att')
if OPT['prio']: e(f"s_setprio {OPT['pm']}")
if OM: e(f'buffer_load_dword v31, v{vFl}, {sr(SRD_WS)}, 0 offen sc1')
def rbw(s): return [f'ds_write_b128 v{vRb[s]}, {vr(VO + 16*s + 4*i, 4)} offset:{1024*i}' for i in range(4)]
ex = exps(2); w0 = rbw(0)
e(qk(3, 3, 0)); e('\n'.join(ex[0:4])); e(qk(3, 3, 1)); e('\n'.join(ex[4:7] + [w0[0]]))
e(pv(3, 1, 0)); e('\n'.join(ex[7:10] + [w0[1]])); e(pv(3, 1, 1)); e('\n'.join(ex[10:13] + [w0[2]] + ex[13:16] + [w0[3]]))
ex = exps(3); w1 = rbw(1); w2 = rbw(2)
e(pv(3, 2, 0)); e('\n'.join(ex[0:3])); e(pv(3, 2, 1))
e('\n'.join([w1[0]] + ex[3:5] + [w1[1]] + ex[5:7] + [w1[2]] + ex[7:9] + [w1[3]] + ex[9:10]))
e(pv(3, 3, 0))
e('\n'.join([w2[0]] + ex[10:12] + [w2[1]] + ex[12:14] + [w2[2]] + ex[14:16] + [w2[3]]))
arrive(9)
e(pv(3, 3, 1))
stamp(10)
lwait(9)
for i in range(12): e(f'ds_read_b128 {vr(VS + 4*i, 4)}, v{vRr} offset:{1024*i}')
OA = VO + 48
for s in range(3):
    e(f's_waitcnt lgkmcnt({8 - 4*s})')
    for i in range(8): e(f'v_pk_add_f32 {vr(OA+2*i,2)}, {vr(OA+2*i,2)}, {vr(VS+16*s+2*i,2)}')
e(f's_mov_b32 s{sIt}, {1 if OPT["force_fb"] else 0}')
e(f'''L_norm:
v_cndmask_b32 v{vA}, v{OA+12}, v{OA}, s[{sOdd}:{sOdd+1}]
v_max3_f32 v{vC}, abs(v{OA}), abs(v{OA+1}), abs(v{OA+2})
v_mov_b32 v{vB}, v{vA}
v_max3_f32 v{vC}, abs(v{OA+3}), abs(v{OA+4}), v{vC}
v_max3_f32 v{vC}, abs(v{OA+5}), abs(v{OA+6}), v{vC}
v_permlane32_swap_b32 v{vA}, v{vB}
v_max3_f32 v{vC}, abs(v{OA+7}), abs(v{OA+8}), v{vC}
v_cndmask_b32 v{vB}, v{vB}, v{vA}, s[{sOdd}:{sOdd+1}]
v_max3_f32 v{vC}, abs(v{OA+9}), abs(v{OA+10}), v{vC}
v_rcp_f32 v{vA}, v{vB}
v_max3_f32 v{vC}, abs(v{OA+11}), abs(v{OA+12}), v{vC}
v_max3_f32 v{vC}, abs(v{OA+13}), abs(v{OA+14}), v{vC}
v_max_f32 v{vC}, abs(v{OA+15}), v{vC}
v_cmp_nle_f32 vcc, 0x30800000, v{vB}
s_mov_b64 s[78:79], vcc
v_cmp_nge_f32 vcc, 0x4e800000, v{vB}
s_or_b64 s[78:79], s[78:79], vcc
v_cmp_ngt_f32 vcc, 0x7f000000, v{vC}
s_or_b64 vcc, s[78:79], vcc''')
if OPT['force_fb']:
    e(f's_cmp_eq_u32 s{sIt}, 1\ns_cbranch_scc1 L_fb')
e('s_cbranch_vccnz L_fb0\nL_norm2:')
for i in range(8): e(f'v_pk_mul_f32 {vr(OA+2*i,2)}, {vr(OA+2*i,2)}, {vr(vA,2)} op_sel_hi:[1,0]')
for i in range(8): e(f'v_cvt_pk_bf16_f32 v{VS+i}, v{OA+2*i}, v{OA+2*i+1}')
if OM: poll(vFl, first_issued=2, reg=31)
o_stores(VS, VS + 4, '')
stamp(11)
if OM == 4: publish(sFo, vA)
if OPT['obar'] == 1: e('s_barrier')
if OPT['obar'] >= 3: e(f"s_waitcnt vmcnt({5 - OPT['obar'] + (OM == 4)})\ns_barrier")
if OM == 0:
    e('s_waitcnt vmcnt(0)'); publish(sFo, vA)
if OPT['obar'] == 2: e('s_barrier')
stamp(12)
prof_out()
e('s_endpgm')

for tag, st in SPIN:
    e(f'L_ws_{tag}:'); lwait(st); e(f's_branch L_wb_{tag}')
sec('fb')
e(f'''L_fb0:
s_cmp_eq_u32 s{sIt}, 2
s_cbranch_scc1 L_norm2
L_fb:
s_waitcnt vmcnt(0)
s_mul_i32 s{sTmp}, s{S_O0}, {KS}
s_add_u32 s{sK}, s{sTmp}, {WS_K}
s_add_u32 s{sV}, s{sTmp}, {WS_V}
v_mov_b32 v{vC}, 0xff800000
s_mov_b32 s{sIt}, 0
L_fb1:''')
e('\n'.join(kv_loads(0, 0, SRD_WS)[:2]))
e('s_waitcnt vmcnt(0)')
e(qk(0, 3, 0)); e(qk(0, 3, 1)); e('s_nop 11')
for i in range(8): e(f'v_max3_f32 v{vC}, v{VS+48+2*i}, v{VS+49+2*i}, v{vC}')
e(f'''s_add_u32 s{sK}, s{sK}, 512
s_add_u32 s{sIt}, s{sIt}, 1
s_cmp_lg_u32 s{sIt}, 64
s_cbranch_scc1 L_fb1
v_mov_b32 v{vA}, v{vC}
s_sub_u32 s{sK}, s{sK}, 0x8000
s_mov_b32 s{sIt}, 0
v_permlane32_swap_b32 v{vA}, v{vC}
v_max_f32 v{vC}, v{vA}, v{vC}''')
for i in range(8): e(f'v_mov_b64 {vr(OA+2*i,2)}, 0')
e('L_fb2:')
e('\n'.join(kv_loads(0, 0, SRD_WS)))
e('s_waitcnt vmcnt(0)')
e(qk(0, 3, 0)); e(qk(0, 3, 1)); e('s_nop 11')
for i in range(16): e(f'v_sub_f32 v{VS+48+i}, v{VS+48+i}, v{vC}')
for i in range(16): e(f'v_exp_f32 v{VS+48+i}, v{VS+48+i}')
e('s_nop 1')
e(pv(0, 3, 0)); e(pv(0, 3, 1))
e(f'''s_add_u32 s{sK}, s{sK}, 512
s_add_u32 s{sV}, s{sV}, 256
s_add_u32 s{sIt}, s{sIt}, 1
s_cmp_lg_u32 s{sIt}, 64
s_cbranch_scc1 L_fb2
s_mov_b32 s{sIt}, 2
s_nop 11
s_branch L_norm''')

sD0, sD, sHw, sDs, sTab, sA, sB, sLd, sSk, sIt2, sFlU, sInv, sUns, sSel, sUl, sOl, sCh0 = range(60, 77)
sUs, sOut, sHm = 78, 80, 82
sE2, sP, sE3, sKd = 84, 85, 86, 87
OUTM = 'sc1' if OPT['outsc'] & 1 else ''
OUTM2 = 'sc1' if OPT['outsc'] & 2 else ''
a0, a1, a2, a3 = 5, 6, 7, 9
vPar = 10
vKc = 18
vRa, vRb_, vKd, vKd1, vKa, vKa0, vFu, vE1, vE1b, vFr, vKxo, vKxp, vPair, vRz, vBk, vA0, vA1, vKb, vSB, vSB0 = range(20, 40)
vSel = 180
vAc = 40
vOne, vScl, vAdd, vC0 = range(56, 60)
vOp = 64
vY = 128
vXt = 144
vAn = 166
vX1 = 172
T0, T1 = 160, 176
vZ = 192
U = 204
vZer = 220
vUa, vCd, vG_, vZp, vKp, vF_, vL16, vXo, vXp, vTr, vYl, vYs, vFy = range(224, 237)
vWoD = 238
vWoR = 240
vOl, vFo, vBw, vBr, vOut = range(242, 247)
def hi():
    if OPT['prio']: e('s_setprio 3')
KG = [True]
def lo():
    if OPT['prio']: e(f"s_setprio {OPT['kgp'] if KG[0] else OPT['ps']}")
ROLE[0] = 1
sec('ssm0')
e(f"""s_cmp_{'eq' if OPT['only'] != 2 else 'le'}_u32 s{S_C}, 7
s_cbranch_scc1 L_ssm_idle
s_lshr_b32 s{sDs}, s{S_W}, 1
s_lshl_b32 s{sD0}, s{S_C}, 6
s_lshl1_add_u32 s{sD0}, s{S_J}, s{sD0}
s_add_u32 s{sD}, s{sD0}, s{sDs}
s_mul_i32 s{sTab}, s{S_W}, {TABSZ}
s_add_u32 s{sTab}, s{sTab}, {L_TAB}
s_lshl1_add_u32 s{sA}, s{sD0}, s{S_W}
s_lshl_b32 s{sA}, s{sA}, 8
v_lshl_add_u32 v{a0}, v{V_LANE}, 2, s{sA}
s_mov_b32 m0, s{sTab}
s_lshl_b32 s{sB}, s{sD0}, 1
s_waitcnt lgkmcnt(0)
s_load_dword s{sLd}, s[14:15], s{sB}
s_load_dword s{S_NONCE}, s[28:29], 0
s_load_dword s{sSk}, s[16:17], s{sB}
global_load_dword v{vPar+0}, v{a0}, s[6:7]
global_load_dword v{vPar+1}, v{a0}, s[8:9]
global_load_dword v{vPar+2}, v{a0}, s[10:11]
global_load_dword v{vPar+3}, v{a0}, s[12:13]""")
if OPT['tlb'] != 2: e('s_barrier')
if OPT['tlb']:
    e(f'''v_and_b32 v{a0}, 7, v{V_LANE}
    v_min_u32 v{a0}, 5, v{a0}
    v_lshlrev_b32 v{a0}, 21, v{a0}
    v_add_u32 v{a0}, 0xf8000, v{a0}
    v_mov_b32 v{a1}, 0
    global_load_dword v8, v{a0}, s[28:29]
    global_load_dword v8, v{a1}, s[22:23]''')
if OPT['tlb'] == 2: e('s_barrier')
e('s_branch L_ssm')
sec('ssm')
e('L_ssm:')
if OPT['abl'] == 1:
    arrive(1); e('s_waitcnt vmcnt(0) lgkmcnt(0)\ns_endpgm')
lo()
srd(SRD_WS, 28, WS_SIZE)
e(f"""s_and_b32 s{sHw}, s{S_W}, 1
v_add_u32 v{V_GRP}, 16, v{V_GRP}
v_and_b32 v{a0}, 15, v{V_LANE}
v_lshrrev_b32 v{a1}, 4, v{V_LANE}
v_lshl_add_u32 v{vRb_}, v{a1}, 4, s{sTab}
v_mul_u32_u24 v{a2}, {TROW}, v{a0}
v_add_u32 v{vRa}, v{a2}, v{vRb_}
v_lshlrev_b32 v{vL16}, 4, v{V_LANE}
v_mov_b32 v{vOne}, 0x3c00
ds_write_addtid_b32 v{vOne}""")
for i in range(8): e(f'v_mov_b64 {vr(vAc+2*i,2)}, 0')
mid = f"""v_and_b32 v{a0}, 7, v{V_LANE}
s_lshl_b32 s{sB}, s{S_W}, {3 + FSH}
s_add_u32 s{sB}, s{sB}, {F_U}
v_lshl_add_u32 v{vFu}, v{a0}, {FSH}, s{sB}
s_mul_i32 s{sP}, s{sDs}, {P_SZ}
s_add_u32 s{sP}, s{sP}, {L_TAB}
s_add_u32 s{sKd}, s{sP}, {P_KD}
s_lshl_b32 s{sB}, s{sHw}, 8
s_add_u32 s{sInv}, s{sB}, s{sKd}
s_add_u32 s{sA}, s{sInv}, {1088 + 128}
v_lshl_add_u32 v{vRz}, v{a0}, 4, s{sA}
v_mov_b32 v{vKb}, s{sKd}
v_and_b32 v{a0}, 15, v{V_LANE}
v_lshrrev_b32 v{a1}, 4, v{V_LANE}
s_lshl_b32 s{sA}, s{sHw}, 4
v_add_u32 v{a0}, s{sA}, v{a0}
v_and_b32 v{a3}, 1, v{V_LANE}
v_mul_u32_u24 v{a2}, 255, v{a3}
v_sub_u32 v{a2}, v{a2}, v{a0}
s_add_u32 s{sA}, s{sKd}, {1088 + 32}
v_add_u32 v{vKa}, s{sA}, v{a2}
v_add_u32 v{vKa0}, 96, v{vKa}
s_lshl3_add_u32 s{sA}, s{sDs}, 16
v_lshl_add_u32 v{vPair}, v{a3}, 2, s{sA}
s_mul_i32 s{sA}, s{sHw}, {1088 + 112 - 1024}
s_add_u32 s{sA}, s{sA}, s{sKd}
s_add_u32 s{sA}, s{sA}, 1024
v_writelane_b32 v{vKa0}, s{sA}, 0
s_mul_i32 s{sA}, s{sHw}, 56
s_sub_u32 s{sA}, s{sKd}, s{sA}
s_add_u32 s{sA}, s{sA}, 1088
v_writelane_b32 v{vKa0}, s{sA}, 16
v_max_u32 v{a2}, 1, v{a1}
v_sub_u32 v{a2}, 5, v{a2}
v_lshlrev_b32 v{a0}, v{a2}, v{a0}
v_lshlrev_b32 v{a2}, 3, v{a1}
s_mov_b32 s{sA}, 0x60400100
v_bfe_u32 v{a1}, s{sA}, v{a2}, 8
v_lshl_add_u32 v{a0}, v{a1}, 3, v{a0}
v_add_u32 v{vKd}, s{sKd}, v{a0}
s_mov_b32 s{sA}, 0x80040404
v_bfe_u32 v{a1}, s{sA}, v{a2}, 8
v_add_u32 v{vKd1}, v{a1}, v{vKd}
v_lshrrev_b32 v{a1}, 1, v{V_LANE}
v_lshlrev_b32 v{vUa}, 6, v{a1}
v_lshl_add_u32 v{vUa}, v{a3}, 4, v{vUa}
s_lshr_b32 s{sA}, s{sD0}, 2
s_mul_i32 s{sA}, s{sA}, {QS}
s_and_b32 s{sB}, s{sD0}, 3
s_lshl4_add_u32 s{sA}, s{sB}, s{sA}
s_lshl_b32 s{sB}, s{S_W}, 12
s_add_u32 s{sA}, s{sA}, s{sB}
s_add_u32 s{sUl}, s{sA}, {WS_U}
v_and_b32 v{a1}, 3, v{a1}
v_lshl_add_u32 v{a1}, v{a3}, 2, v{a1}
v_mul_u32_u24 v{a1}, {PS}, v{a1}
v_lshrrev_b32 v{a2}, 3, v{V_LANE}
v_lshl_add_u32 v{a1}, v{a2}, 4, v{a1}
s_lshl_b32 s{sA}, s{S_W}, 8
s_add_u32 s{sA}, s{sA}, {L_KP + 512}
v_add_u32 v{vKp}, s{sA}, v{a1}
v_lshrrev_b32 v{a1}, 5, v{V_LANE}
s_lshl_b32 s{sA}, s{sHw}, 1
v_max_u32 v{a0}, s{sA}, v{a1}
v_min_u32 v{a2}, 1, v{a0}
v_mul_u32_u24 v{a2}, 0x0202, v{a2}
v_lshlrev_b32 v{a2}, 16, v{a2}
v_sub_u32 v{vSel}, 0x03020100, v{a2}
v_mul_u32_u24 v{a2}, 0x0202, v{a0}
v_lshl_or_b32 v{a2}, v{a2}, 16, v{a2}
v_sub_u32 v{vSel+1}, 0x07060504, v{a2}
s_mul_i32 s{sA}, s{sHw}, 0x02020202
v_add_u32 v{vSel+2}, s{sA}, v{vSel}
s_mul_i32 s{sA}, s{sHw}, 0x02020404
v_add_u32 v{vSel+3}, s{sA}, v{vSel+1}
v_lshrrev_b32 v{a2}, v{a0}, v{vL16}
s_movk_i32 s{sA}, 256
v_lshl_add_u32 v{a2}, s{sA}, v{a0}, v{a2}
s_sub_u32 s{sA}, s{sKd}, 256
v_add_u32 v{vE1}, s{sA}, v{a2}
v_lshlrev_b32 v{a2}, 2, v{a0}
v_sub_u32 v{vE1b}, v{vE1}, v{a2}
s_mov_b32 s{sA}, 0x0c0c0c0c
s_cmp_lg_u32 s{sHw}, 0
s_cselect_b32 s{sE2}, 0x01000100, s{sA}
s_cselect_b32 s{sE3}, 0x05040302, s{sA}
v_mov_b32 v{vSel+4}, s{sA}
v_mov_b32 v{vSel+5}, s{sA}
v_mov_b32 v{vSel+6}, s{sA}
v_mov_b32 v{vSel+7}, s{sA}
s_mov_b32 s{sA}, 0x05040504
s_mov_b64 exec, 15
v_mov_b32 v{vSel+4}, s{sA}
v_mov_b32 v{vSel+5}, s{sA}
v_mov_b32 v{vSel+6}, s{sA}
s_mov_b64 exec, -1
v_writelane_b32 v{vSel+7}, s{sA}, 3
s_mov_b32 s{sA}, 0x05040302
v_writelane_b32 v{vSel+4}, s{sA}, 3
s_mov_b32 s{sA}, 0x0c0c0504
v_writelane_b32 v{vSel+6}, s{sA}, 0
v_writelane_b32 v{vSel+7}, s{sA}, 2
s_mul_i32 s{sA}, s{S_W}, {2*PS}
s_add_u32 s{sA}, s{sA}, {L_KP}
v_mul_u32_u24 v{a2}, {PS - 512}, v{a1}
v_add3_u32 v{vG_}, v{a2}, v{vL16}, s{sA}
v_mov_b64 {vr(vZer,2)}, 0
v_mov_b64 {vr(vZer+2,2)}, 0
ds_write_b128 v{vG_}, {vr(vZer,4)}
s_lshl_b32 s{sA}, s{sHw}, 10
s_add_u32 s{sB}, s{sP}, {P_UC}
s_add_u32 s{sA}, s{sA}, s{sB}
s_add_u32 s{sA}, s{sA}, 64
v_add_u32 v{vCd}, s{sA}, v{vL16}
v_and_b32 v{a3}, 3, v{V_LANE}
v_and_b32 v{a0}, 0x1c, v{V_LANE}
v_lshlrev_b32 v{a2}, 2, v{a0}
v_and_b32 v{vZp}, 0x30, v{a2}
s_mov_b32 exec_hi, 0
v_add_u32 v{vZp}, 2112, v{a2}
s_mov_b64 exec, -1
v_mul_u32_u24 v{a2}, {UC_S}, v{a3}
v_add3_u32 v{vZp}, v{vZp}, v{a2}, s{sB}
v_lshlrev_b32 v{a0}, 1, v{a0}
v_sub_u32 v{a0}, v{a0}, v{a2}
v_lshlrev_b32 v{a1}, 4, v{a1}
v_sub_u32 v{a0}, v{a0}, v{a1}
s_lshl_b32 s{sA}, s{sHw}, 5
s_sub_u32 s{sB}, s{sB}, s{sA}
s_add_u32 s{sB}, s{sB}, {56 + 3*UC_S}
v_add_u32 v{vF_}, s{sB}, v{a0}
v_add_u32 v{vG_}, {512 - 80}, v{vG_}
v_add_u32 v{vKxo}, s{sTab}, v{vL16}
s_xor_b32 s{sA}, s{S_W}, 1
s_mul_i32 s{sA}, s{sA}, {TABSZ}
s_add_u32 s{sA}, s{sA}, {L_TAB}
v_add_u32 v{vKxp}, s{sA}, v{vL16}
v_and_b32 v{a0}, 31, v{V_LANE}
v_lshlrev_b32 v{a2}, 2, v{a0}
v_sub_u32 v{a2}, v{a1}, v{a2}
s_add_u32 s{sA}, s{sInv}, {1088 + 124}
v_add_u32 v{vBk}, s{sA}, v{a2}
"""
e(mid)
stamp(22)
e(f's_waitcnt lgkmcnt(0)\ns_add_u32 s{S_NONCE}, s{S_NONCE}, 1')
arrive(1)
e(f"""s_lshl_b32 s{sA}, s{sDs}, 4
s_lshr_b32 s{sLd}, s{sLd}, s{sA}
s_lshl_b32 s{sLd}, s{sLd}, 16
s_lshr_b32 s{sSk}, s{sSk}, s{sA}
s_lshl_b32 s{sSk}, s{sSk}, 16
v_mov_b32 v{a0}, s{sLd}
v_mul_f32 v{a0}, 0x3fb8aa3b, v{a0}
v_exp_f32 v{a0}, v{a0}
s_cmp_eq_u32 s{sHw}, 0
s_cselect_b32 s{sSk}, s{sSk}, 0
v_cvt_pk_bf16_f32 v{a0}, v{a0}, v{a0}
v_and_b32 v{vScl}, 0xffff0000, v{a0}
v_mul_f32 v{vKc}, 0xbfb8aa3b, v{vScl}
v_mul_f32 v{vKc+1}, 0.15915494, v{vScl}
v_mov_b32 v{vAdd}, 0
v_add_f32 v{vScl}, v{vScl}, v{vScl}
v_writelane_b32 v{vAdd}, s{sSk}, 0
s_mov_b32 s{sIt2}, 0
s_mov_b32 s{sSel}, 0x01000c0c""")
stamp(0)
e(f"""s_waitcnt vmcnt({2 if OPT['tlb'] else 0})
v_and_b32 v{a0}, 0x7f807f80, v{vPar+2}
v_and_b32 v{a1}, 0x7f807f80, v{vPar+3}
v_pk_max_u16 v{a0}, v{a0}, v{a1}
v_lshlrev_b32 v{a1}, 16, v{a0}
v_max_u32 v{a0}, v{a0}, v{a1}""")
for q, n in enumerate((1, 2, 4, 8)):
    e(f's_nop 1\nv_max_u32_dpp v{a0}, v{a0}, v{a0} row_ror:{n} row_mask:0xf bank_mask:0xf')
e(f"""s_nop 0
v_readlane_b32 s{sA}, v{a0}, 0
v_readlane_b32 s{sB}, v{a0}, 16
v_readlane_b32 s{sInv}, v{a0}, 32
v_readlane_b32 s{sUns}, v{a0}, 48
s_max_u32 s{sA}, s{sA}, s{sB}
s_max_u32 s{sUns}, s{sUns}, s{sInv}
s_max_u32 s{sUns}, s{sUns}, s{sA}
s_and_b32 s{sUns}, s{sUns}, 0x7f800000
s_min_u32 s{sUns}, s{sUns}, 0x7e800000
s_sub_u32 s{sInv}, 0x7f000000, s{sUns}
v_mul_f32 v{vScl}, s{sUns}, v{vScl}
v_mul_f32 v{vSB}, 0x43000000, v{vScl}
v_mov_b32 v{vSB0}, v{vSB}
s_mov_b64 exec, 1
v_mov_b32 v{vSB0}, v{vScl}
s_mov_b64 exec, -1""")
stamp(1)
if OPT['abl'] == 2: e('s_endpgm')
def cm(jobs, conj):
    ng = 'neg_hi:[1,0,0]' if conj else 'neg_lo:[1,0,0]'
    return [f'v_pk_mul_f16 v{d}, v{x}, v{w} op_sel_hi:[1,0]' for d, x, w in jobs] + \
           [f'v_pk_fma_f16 v{d}, v{x}, v{w}, v{d} op_sel:[1,1,0] op_sel_hi:[0,1,1] {ng}' for d, x, w in jobs]
def wr(reg): return f'ds_write_addtid_b32 v{reg} offset:{TROW*(reg - vY)}'
assert vXt == vY + 16
zA, zB, tA, tB, pA, pB = vZ, vZ+2, vZ+4, vZ+6, vZ+8, vZ+10
X = vXt; Y = vY
an = {1: vAn, 2: vAn+1, 4: vAn+2, 8: Y+1, 16: Y+2, 32: Y+4, 64: Y+8, 128: X+21, 256: vAn+3, 512: vAn+4, 1024: vAn+5}
e('L_kg:')
stamp(14)
seq = f"""v_perm_b32 v{pA}, v{vPar}, v{vPar}, s{sSel}
v_mul_f32 v{pA}, 0x3fb8aa3b, v{pA}
v_exp_f32 v{pA}, v{pA}
v_perm_b32 v{pA+1}, v{vPar+1}, v{vPar+1}, s{sSel}
v_perm_b32 v{tA}, v{vPar+2}, v{vPar+2}, s{sSel}
v_perm_b32 v{tA+1}, v{vPar+3}, v{vPar+3}, s{sSel}
v_cvt_pk_bf16_f32 v{pA}, v{pA}, v{pA}
v_mul_f32 v{tA}, s{sInv}, v{tA}
v_and_b32 v{pA}, 0xffff0000, v{pA}
v_mul_f32 v{tA+1}, s{sInv}, v{tA+1}
v_pk_mul_f32 {vr(pA,2)}, {vr(pA,2)}, {vr(vKc,2)}
v_cvt_pk_f16_f32 v{X}, v{tA}, -v{tA+1}
v_mul_f32 v{pB}, 0x42800000, v{pA}
v_mul_f32 v{pB+1}, 0x42800000, v{pA+1}
v_exp_f32 v{pA}, v{pA}
v_fract_f32 v{pA+1}, v{pA+1}
v_exp_f32 v{pB}, v{pB}
v_fract_f32 v{pB+1}, v{pB+1}
v_cos_f32 v{zA}, v{pA+1}
v_sin_f32 v{zA+1}, v{pA+1}
v_cos_f32 v{zB}, v{pB+1}
v_sin_f32 v{zB+1}, v{pB+1}
v_pk_mul_f32 {vr(zA,2)}, {vr(zA,2)}, {vr(pA,2)} op_sel_hi:[1,0]
v_pk_mul_f32 {vr(zB,2)}, {vr(zB,2)}, {vr(pB,2)} op_sel_hi:[1,0]""".split('\n')
for st in range(6):
    chains = [(zA, tA, an[1 << st], st < 5)] + ([(zB, tB, an[64 << st], st < 4)] if st < 5 else [])
    for z, t, d, sq in chains:
        if sq: seq.append(f'v_pk_mul_f32 {vr(t,2)}, {vr(z,2)}, {vr(z,2)} op_sel_hi:[0,1]')
    for z, t, d, sq in chains: seq.append(f'v_cvt_pk_f16_f32 v{d}, v{z}, v{z+1}')
    for z, t, d, sq in chains:
        if sq: seq.append(f'v_pk_fma_f32 {vr(z,2)}, {vr(z,2)}, {vr(z,2)}, {vr(t,2)} op_sel:[1,1,0] op_sel_hi:[0,1,1] neg_lo:[1,0,0]')
seq += cm([(X+1, X, an[1]), (X+2, X, an[2]), (X+4, X, an[4]), (X+8, X, an[256]), (X+12, X, an[512]), (X+16, X, an[1024])], True)
seq += cm([(Y+3, Y+1, Y+2), (Y+12, Y+4, Y+8), (Y+5, Y+4, Y+1), (Y+6, Y+4, Y+2), (Y+9, Y+8, Y+1), (Y+10, Y+8, Y+2)], False)
seq += cm([(X+3, X+1, an[2]), (X+5, X+1, an[4]), (X+6, X+2, an[4]), (X+9, X+2, an[256]), (X+10, X+4, an[256]), (X+13, X+4, an[512]),
           (X+14, X+8, an[512]), (X+17, X+8, an[1024]), (X+18, X+12, an[1024]), (X+20, X+16, an[1024])], True)
seq += cm([(Y+7, Y+4, Y+3), (Y+11, Y+8, Y+3), (Y+13, Y+12, Y+1), (Y+14, Y+12, Y+2), (Y+15, Y+12, Y+3)], False)
seq += cm([(X+7, X+3, an[4]), (X+11, X+6, an[256]), (X+15, X+10, an[512]), (X+19, X+14, an[1024])], True)
e('\n'.join(seq))
stamp(15)
if OPT['kgw']:
    e(f'v_subrev_u32 v{a0}, 16, v{V_GRP}'); lwait(OPT['kgw'], addr=a0)
hi()
if OPT['abl'] != 4: e('\n'.join(wr(r) for r in range(Y + 1, X + 22)))
for k in range(4):
    o = vOp + 16*k
    e(f"""ds_read_b128 {vr(o,4)}, v{vRa} offset:{64*k}
    ds_read_b128 {vr(o+4,4)}, v{vRb_} offset:{37*TROW + 64*k}
    ds_read_b128 {vr(o+8,4)}, v{vRa} offset:{16*TROW + 64*k}
    ds_read_b128 {vr(o+12,4)}, v{vRa} offset:{32*TROW + 64*k}""")
if not OPT['uw']: e(f's_cmp_eq_u32 s{sIt2}, 0\ns_cbranch_scc1 L_kg_n\nbuffer_load_dword v{vFr}, v{vFu}, {sr(SRD_WS)}, 0 offen sc1\nL_kg_n:')
stamp(16)
def mf(c, a, b): return f'v_mfma_f32_16x16x32_f16 {vr(c,4)}, {vr(a,4)}, {vr(b,4)}, {vr(c,4)}'
late_m = []
for k in range(4):
    o = vOp + 16*k; y1 = vX1 + 4*(k & 1)
    p = cm([(y1+r, o+r, o+4+r) for r in range(4)], False)
    e(f's_waitcnt lgkmcnt({12 - 4*k})')
    e('\n'.join([mf(vAc, o+8, o)] + p[0:2] + late_m[:1] + p[2:4] + [mf(vAc+4, o+12, o)] + p[4:6] + late_m[1:] + p[6:8]))
    late_m = [mf(vAc+8, o+8, y1), mf(vAc+12, o+12, y1)]
e(f"""s_add_u32 s{sSel}, s{sSel}, 0x02020000
s_add_u32 s{sIt2}, s{sIt2}, 1
s_cmp_lg_u32 s{sIt2}, 2""")
e('\n'.join(late_m))
lo()
e('s_cbranch_scc1 L_kg')
stamp(17)
if OPT['abl'] in (4, 8): e('s_endpgm')
def scl(i): return vSB0 if i == 4 else (vSB if i & 4 else vScl)
for i in range(8): e(f'v_mul_f32 v{vAc+i}, v{scl(i)}, v{vAc+i}')
e(f's_cmp_eq_u32 s{sHw}, 0')
for i in range(8, 16): e(f'v_mul_f32 v{vAc+i}, v{scl(i)}, v{vAc+i}')
e('s_cbranch_scc1 L_kx')
for i in range(8): e(f'v_swap_b32 v{vAc+i}, v{vAc+8+i}')
e(f"""L_kx:
ds_write_b128 v{vKxo}, {vr(vAc+8,4)}
s_mov_b32 exec_hi, 0
ds_write_b128 v{vKxo}, {vr(vAc+12,4)} offset:1024
s_mov_b64 exec, -1""")
arrive(2)
e(f'v_add_f32 v{vAc}, v{vAdd}, v{vAc}')
stamp(18)
def bprio():
    if OPT['prio']: e(f"s_setprio {OPT['bp']}")
def u_look():
    hi(); e(f'buffer_load_dword v{vFr}, v{vFu}, {sr(SRD_WS)}, 0 offen sc1'); bprio()
def u_fetch():
    hi()
    stamp(20)
    poll(vFu, first_issued=True, reg=vFr, sleep=OPT['usleep'])
    stamp(21)
    for k in range(2):
        e(f'buffer_load_dwordx4 {vr(U+4*k,4)}, v{vUa}, {sr(SRD_WS)}, s{sUl} offen offset:{2048*k} sc1')
    bprio()
if OPT['uw'] == -2: u_look()
else: bprio()
stamp(19)
lwait(2, addr=vPair)
e(f"""ds_read_b128 {vr(vAc+8,4)}, v{vKxp}
ds_read_b128 {vr(vAc+12,4)}, v{vKxp} offset:1024
ds_write_b128 v{vRz}, {vr(vZer,4)}
s_mov_b32 s{sIt2}, 4
s_waitcnt lgkmcnt(1)""")
for i in range(4): e(f'v_pk_add_f32 {vr(vAc+2*i,2)}, {vr(vAc+2*i,2)}, {vr(vAc+8+2*i,2)}')
for i in range(4): e(f'v_cvt_pk_bf16_f32 v{vAc+8+i}, v{vAc+2*i}, v{vAc+2*i+1}')
e(f"""ds_write_b32 v{vKd}, v{vAc+8}
ds_write_b32 v{vKd1}, v{vAc+9}
s_mov_b64 exec, 0x1ffff
ds_write_b16 v{vKa0}, v{vAc+10}
s_mov_b64 exec, 0xffff
ds_write_b16_d16_hi v{vKa}, v{vAc+10} offset:64
ds_write_b16 v{vKa}, v{vAc+11} offset:32
ds_write_b16_d16_hi v{vKa}, v{vAc+11}
s_mov_b64 exec, -1""")
arrive(3)
if OPT['uw'] == -1: u_look()
if OPT['uw'] == -2: u_fetch()
lwait(3, addr=vPair)
stamp(2)
E = 64; BF = 40
e(f"""ds_read2_b32 {vr(E,2)}, v{vE1} offset1:1
ds_read2_b32 {vr(E+2,2)}, v{vE1b} offset0:2 offset1:3
ds_read2_b32 {vr(E+4,2)}, v{vKb} offset0:191 offset1:192
ds_read_b32 v{E+6}, v{vKb} offset:1020
ds_read_b32 v{E+7}, v{vKb} offset:1024""")
for q in range(8): e(f'ds_read2_b32 {vr(BF+2*q,2)}, v{vBk} offset0:{8*(q>>1) + 2*(q&1)} offset1:{8*(q>>1) + 2*(q&1) + 1}')
b = E + 12; t = E + 16
e(f"""s_waitcnt lgkmcnt(10)
v_perm_b32 v{b+2}, v{E+2}, v{E+2}, v{vSel+2}
v_perm_b32 v{b+3}, v{E+3}, v{E+2}, v{vSel+3}
v_perm_b32 v{b-2}, v{E+5}, v{E+4}, s{sE2}
v_perm_b32 v{b-1}, v{E+5}, v{E+4}, s{sE3}
v_perm_b32 v{b}, v{E}, v{E}, v{vSel}
v_perm_b32 v{b+1}, v{E+1}, v{E}, v{vSel+1}
v_mov_b32_dpp v{b-2}, v{b+2} wave_shr:1 row_mask:0xf bank_mask:0xf
v_mov_b32_dpp v{b-1}, v{b+3} wave_shr:1 row_mask:0xf bank_mask:0xf
ds_write_b128 v{vCd}, {vr(b,4)}""")
for i in range(4): e(f'v_alignbit_b32 v{t+i}, v{b+i}, v{b+i-1}, 16')
e(f'ds_write_b128 v{vCd}, {vr(t,4)} offset:{UC_S}')
for i in range(4): e(f'v_mov_b32 v{t+4+i}, v{b+i-1}')
e(f'ds_write_b128 v{vCd}, {vr(t+4,4)} offset:{2*UC_S}')
for i in range(4): e(f'v_alignbit_b32 v{t+8+i}, v{b+i-1}, v{b+i-2}, 16')
e(f'ds_write_b128 v{vCd}, {vr(t+8,4)} offset:{3*UC_S}\ns_waitcnt lgkmcnt(12)')
for i in range(4): e(f'v_perm_b32 v{t+12+i}, v{E+7}, v{E+6}, v{vSel+4+i}')
e(f'ds_write_b128 v{vZp}, {vr(t+12,4)}')
if OPT['uw'] == -1: u_fetch()
stamp(3)
e(f'v_and_b32 v{a0}, 31, v{V_LANE}')
swap23(a1, a0, a2)
e(f"""v_lshrrev_b32 v{a2}, 5, v{V_LANE}
v_lshl_add_u32 v{a1}, v{a1}, 1, v{a2}
s_add_u32 s{sA}, s{sHw}, 123
v_add_u32 v{a1}, s{sA}, v{a1}
s_mul_i32 s{sA}, s{sDs}, {PD}
s_add_u32 s{sA}, s{sA}, {L_KP}
v_and_b32 v{a3}, 3, v{a1}
v_mul_u32_u24 v{a3}, {PS - 4}, v{a3}
v_lshl_add_u32 v{a3}, v{a1}, 2, v{a3}
v_add_u32 v{vA0}, s{sA}, v{a3}
v_add_u32 v{a1}, 2, v{a1}
v_and_b32 v{a3}, 3, v{a1}
v_mul_u32_u24 v{a3}, {PS - 4}, v{a3}
v_lshl_add_u32 v{a3}, v{a1}, 2, v{a3}
v_add_u32 v{vA1}, s{sA}, v{a3}
v_lshlrev_b32 v{a2}, 3, v{a2}
v_sub_u32 v{a2}, v{a2}, v{a0}
v_cvt_f32_i32 v{a2}, v{a2}
v_add_f32 v{a3}, -1.0, v{a2}
v_add_f32 v{a2}, -2.0, v{a2}
v_cvt_pk_f16_f32 v8, v{a3}, v{a2}
s_waitcnt vmcnt(1)
ds_write_b128 v{vKp}, {vr(U,4)}
s_waitcnt vmcnt(0)
ds_write_b128 v{vKp}, {vr(U+4,4)} offset:128""")
arrive(4)
AP, BD, DP = 112, 136, 192
band = [f's_mov_b32 s{sA}, 0x4a204a20', f's_cmp_eq_u32 s{sHw}, 0', f's_cselect_b32 s{sE2}, 0x4d104d10, s{sA}', f's_mov_b32 s{sE3}, 0x4d804d80']
for q in range(12):
    band.append(f'v_pk_fma_f16 v{BD+q}, v8, v8, s{sE2} neg_lo:[1,0,0] neg_hi:[1,0,0] clamp')
    if q < 11: band.append(f'v_pk_add_f16 v8, v8, s{sE3}' if q % 4 == 3 else 'v_pk_add_f16 v8, v8, -2.0 op_sel_hi:[1,0]')
e('\n'.join(band))
lwait(4)
KG[0] = False
lo()
stamp(4)
if OPT['abl'] == 16: e('s_endpgm')
CB = 64
def cv_reads(k):
    b = CB + 12 * (k & 3)
    return [f'ds_read_b64 {vr(b,2)}, v{vF_} offset:{64*k}', f'ds_read_b64 {vr(b+2,2)}, v{vF_} offset:{64*k + 8}',
            f'ds_read_b128 {vr(b+8,4)}, v{vG_} offset:{512 + 80 - 16*k}', f'ds_read_b128 {vr(b+4,4)}, v{vG_} offset:{80 - 16*k}']
for tau in range(2):
    for kp in range(3): e(f'ds_read_b128 {vr(AP + 12*tau + 4*kp, 4)}, v{(vA0, vA1)[kp & 1]} offset:{256*tau + 16*(kp >> 1)}')
e('\n'.join(cv_reads(0) + cv_reads(1)))
FOA = f'''s_lshr_b32 s{sA}, s{sOl}, 1
s_lshl_b32 s{sA}, s{sA}, {4 + FSH}
s_add_u32 s{sA}, s{sA}, {F_O}
v_lshl_add_u32 v{vFo}, v{a1}, {FSH}, s{sA}''' if not OM else f'''s_lshr_b32 s{sA}, s{sOl}, 1
s_lshl_b32 s{sB}, s{sHw}, 9
s_add_u32 s{sA}, s{sA}, s{sB}
s_lshl_b32 s{sA}, s{sA}, {FSH}
s_add_u32 s{sA}, s{sA}, {F_Y}
v_min_u32 v{vFo}, 6, v{a1}
v_lshl_add_u32 v{vFo}, v{vFo}, {6 + FSH}, s{sA}'''
late = f"""s_mov_b64 s[{SRD_B}:{SRD_B+1}], s[22:23]
s_mov_b32 s{SRD_B+2}, {448*896}
s_mov_b32 s{SRD_B+3}, 0x20000
s_mov_b64 s[{SRD_C}:{SRD_C+1}], s[24:25]
s_mov_b32 s{SRD_C+2}, {2048*1792}
s_mov_b32 s{SRD_C+3}, 0x20000
v_lshrrev_b32 v{a1}, 3, v{V_LANE}
v_and_b32 v{a2}, 7, v{V_LANE}
v_and_b32 v{a0}, 0x70, v{vL16}
v_mul_u32_u24 v{vYl}, {YS}, v{a1}
v_add_u32 v{vYl}, v{vYl}, v{a0}
v_lshlrev_b32 v{a3}, 2, v{V_LANE}
v_and_b32 v{a3}, 64, v{a3}
v_xor_b32 v{a0}, v{a0}, v{a3}
v_mul_u32_u24 v{vWoD}, 896, v{a1}
v_xor_b32 v{a3}, v{a1}, v{a2}
v_lshlrev_b32 v{a3}, 4, v{a3}
v_lshl_add_u32 v{vOut}, v{vWoD}, 1, v{a3}
v_add_u32 v{vWoD}, v{a0}, v{vWoD}
v_add_u32 v{vWoD+1}, {7168-1024}, v{vWoD}
v_lshrrev_b32 v{a0}, 4, v{V_LANE}
v_bfe_u32 v{a1}, v{V_LANE}, 2, 2
v_lshl_or_b32 v{a3}, v{a0}, 3, v{a1}
v_lshlrev_b32 v{a3}, 7, v{a3}
v_lshrrev_b32 v{a1}, 1, v{a1}
v_lshl_add_u32 v{a3}, v{a1}, 6, v{a3}
v_and_b32 v{a1}, 0x30, v{vL16}
s_movk_i32 s{sA}, {L_WO}
v_add3_u32 v{vWoR}, v{a1}, v{a3}, s{sA}
v_xor_b32 v{vWoR+1}, 64, v{vWoR}
v_and_b32 v{a1}, 15, v{V_LANE}
v_lshlrev_b32 v{vOl}, 4, v{a1}
v_mad_u32_u24 v{vOl}, v{a0}, s{S_KS}, v{vOl}
s_lshl2_add_u32 s{sOl}, s{S_J}, s{S_W}
{FOA}
s_lshl_b32 s{sA}, s{S_W}, 11
s_add_u32 s{sA}, s{sA}, {L_SSM}
v_xor_b32 v{a3}, v{a0}, v{a2}
v_lshl_add_u32 v{a3}, v{a3}, 4, s{sA}
v_lshl_add_u32 v{vBw}, v{a1}, 7, v{a3}
v_add_u32 v{vBr}, s{sA}, v{vL16}
s_mul_i32 s{sOut}, s{sOl}, {16*1792}
s_lshl_b32 s{sA}, s{S_C}, 7
s_add_u32 s{sOut}, s{sOut}, s{sA}
s_add_u32 s{sOut}, s{sOut}, 896
s_add_u32 s{sOut+1}, s{sOut}, {8*1792}
s_lshl_b32 s{sOl}, s{sOl}, 8
s_add_u32 s{sOl}, s{sOl}, {WS_O}
s_lshl2_add_u32 s{sCh0}, s{S_C}, s{S_W}
s_lshl_b32 s{sCh0}, s{sCh0}, 4
s_lshr_b32 s{sA}, s{S_J}, 4
s_lshl_b32 s{sA}, s{sA}, 9
s_add_u32 s{sA}, s{sA}, s{sCh0}
s_lshl_b32 s{sA}, s{sA}, {FSH}
s_add_u32 s{sA}, s{sA}, {F_Y}
v_lshl_add_u32 v{vFy}, v{a1}, {FSH}, s{sA}
v_and_b32 v{a1}, 11, v{V_LANE}
v_lshl_or_b32 v{a1}, v{a0}, 5, v{a1}
v_mul_u32_u24 v{a1}, 1792, v{a1}
v_and_b32 v{a3}, 4, v{V_LANE}
v_lshl_add_u32 v{vYs}, v{a3}, 2, v{a1}
s_lshl_b32 s{sA}, s{sHw}, 12
s_add_u32 s{sB}, s{sP}, {P_X + 4096}
s_sub_u32 s{sB}, s{sB}, s{sA}
v_add_u32 v{vXp}, s{sB}, v{vL16}
s_add_u32 s{sA}, s{sA}, s{sP}
s_add_u32 s{sA}, s{sA}, {P_X}
v_add_u32 v{vXo}, s{sA}, v{vL16}
v_lshl_add_u32 v{vRb_}, v{a0}, 4, s{sA}
v_bfe_u32 v{a0}, v{V_LANE}, 2, 2
v_and_b32 v{a3}, 1, v{V_LANE}
v_lshl_or_b32 v{a2}, v{a3}, 3, v{a0}
v_lshl_add_u32 v{vTr}, v{a2}, 7, v{vRb_}
v_and_b32 v{a2}, 2, v{V_LANE}
v_lshl_add_u32 v{vTr}, v{a2}, 2, v{vTr}""".split('\n')
def fill(n):
    e('\n'.join(late[:n])); del late[:n]
fill(16)
e('s_waitcnt lgkmcnt(8)')
for kp in range(3):
    for tau in range(2):
        d = vr(DP + 16*tau, 16)
        e(f'v_mfma_f32_32x32x16_bf16 {d}, {vr(AP + 12*tau + 4*kp, 4)}, {vr(BD + 4*kp, 4)}, {"0" if kp == 0 else d}')
        fill(6)
def cv_iter(first):
    for k in range(4):
        b = CB + 12 * k
        rd = cv_reads(k + 2)
        z = first and k == 0
        e('s_waitcnt lgkmcnt(4)')
        e(f'v_mfma_f32_32x32x16_bf16 {vr(T1,16)}, {vr(b,4)}, {vr(b+8,4)}, {"0" if z else vr(T1,16)}')
        e('\n'.join(rd))
        if k == 3:
            e(f'v_add_u32 v{vF_}, 256, v{vF_}\nv_subrev_u32 v{vG_}, 64, v{vG_}')
            if not first: e(f's_add_u32 s{sIt2}, s{sIt2}, 1\ns_cmp_lg_u32 s{sIt2}, 11')
        e(f'v_mfma_f32_32x32x16_bf16 {vr(T0,16)}, {vr(b,4)}, {vr(b+4,4)}, {"0" if z else vr(T0,16)}')
        if first: fill(6 if k < 3 else 99)
cv_iter(True)
e('L_cv:')
cv_iter(False)
e('s_cbranch_scc1 L_cv')
cv = [f'v_cvt_pk_bf16_f32 v{AP+i}, v{DP+2*i}, v{DP+2*i+1}' for i in range(16)]
for k in range(2):
    e('\n'.join(cv[4*k:4*k+4]))
    e(f's_waitcnt lgkmcnt({4 - 4*k})')
    e(f'v_mfma_f32_32x32x16_bf16 {vr(T1,16)}, {vr(CB+12*k,4)}, {vr(CB+12*k+8,4)}, {vr(T1,16)}')
for q in range(4):
    e('\n'.join(cv[8+4*q:12+4*q]))
    e(f'v_mfma_f32_32x32x16_bf16 {vr(T1,16)}, {vr(AP+4*q,4)}, {vr(BF+4*q,4)}, {vr(T1,16)}')
if OPT['prio']: e(f"s_setprio {OPT['pr']}")
stamp(5)
if OPT['abl'] == 32: e('s_endpgm')
e(f"""s_mul_i32 s{sA}, s{sD}, {YS}
s_lshl_b32 s{sB}, s{sHw}, 11
s_add_u32 s{sA}, s{sA}, s{sB}
s_add_u32 s{sA}, s{sA}, {WS_Y}
s_lshl_b32 s{sB}, s{sHw}, 9
s_add_u32 s{sB}, s{sB}, s{sD}
s_lshl_b32 s{sB}, s{sB}, {FSH}
s_add_u32 s{sB}, s{sB}, {F_Y}
s_nop 0""")
def xch(give, keep):
    for i in range(4): e(f'ds_write_b128 v{vXp}, {vr(give+4*i,4)} offset:{1024*i}')
    arrive(6); lwait(6, addr=vPair)
    for i in range(4): e(f'ds_read_b128 {vr(give+4*i,4)}, v{vXo} offset:{1024*i}')
    e('s_waitcnt lgkmcnt(0)')
e(f's_cmp_eq_u32 s{sHw}, 0\ns_cbranch_scc1 L_x0')
xch(T0, T1)
e('s_branch L_x1\nL_x0:')
xch(T1, T0)
e('L_x1:')
for i in range(8): e(f'v_pk_add_f32 {vr(T0+2*i,2)}, {vr(T0+2*i,2)}, {vr(T1+2*i,2)}')
for i in range(8): e(f'v_cvt_pk_bf16_f32 v{T1+i}, v{T0+2*i}, v{T0+2*i+1}')
e(f"""buffer_store_dwordx4 {vr(T1,4)}, v{vL16}, {sr(SRD_WS)}, s{sA} offen sc1
buffer_store_dwordx4 {vr(T1+4,4)}, v{vL16}, {sr(SRD_WS)}, s{sA} offen offset:1024 sc1
v_subrev_u32 v{a0}, 16, v{V_GRP}""")
if OM:
    e(f'''v_mov_b64 {vr(T0,2)}, -1
    v_mov_b64 {vr(T0+2,2)}, -1
    s_mul_i32 s{sA}, s{S_C}, {8*KS}
    s_add_u32 s{sA}, s{sA}, s{sOl}
    s_add_u32 s{sSk}, s{sA}, {4*KS}
    buffer_store_dwordx4 {vr(T0,4)}, v{vOl}, {sr(SRD_WS)}, s{sA} offen sc1
    buffer_store_dwordx4 {vr(T0,4)}, v{vOl}, {sr(SRD_WS)}, s{sSk} offen sc1''')
sync(7)
if OPT['only'] != 1: lwait(7, addr=a0)
e('s_waitcnt vmcnt(0)')
publish(sB, a0)
stamp(6)
if OPT['abl'] == 33: e('s_endpgm')
e(f"""s_mul_i32 s{sA}, s{S_W}, {16*896}
s_lshl_b32 s{sB}, s{S_C}, 7
s_add_u32 s{sA}, s{sA}, s{sB}
s_lshl_b32 s{sB}, s{S_W}, 11
s_add_u32 s{sB}, s{sB}, {L_WO}""")
for ch in range(7):
    e(f"""s_add_u32 m0, s{sB}, {8192*ch}
    s_add_u32 s{sSk}, s{sA}, {64*896*ch}
    buffer_load_dwordx4 v{vWoD}, {sr(SRD_B)}, s{sSk} offen lds
    buffer_load_dwordx4 v{vWoD+1}, {sr(SRD_B)}, s{sSk} offen offset:1024 lds
    s_waitcnt vmcnt({OPT['wodepth'] if ch < 6 else 0})""")
WF, OF, OC = 8, 168, 224
arrive(8)
e(f"""buffer_load_dword v{a0}, v{vFy}, {sr(SRD_WS)}, 0 offen sc1
s_mul_i32 s{sA}, s{sCh0}, {YS}
s_lshl_b32 s{sSk}, s{S_J}, 7
s_add_u32 s{sA}, s{sA}, s{sSk}
s_add_u32 s{sA}, s{sA}, {WS_Y}
s_add_u32 s{sSk}, s{sA}, {8*YS}""")
lwait(8)
stamp(7)
if OPT['abl'] == 34: e('s_endpgm')
def wo_reads(k):
    r = []
    for t in range(4):
        for hf in range(2):
            r.append(f'ds_read_b64_tr_b16 {vr(WF + 16*(k%10) + 4*t + 2*hf, 2)}, v{vWoR + (t>>1)} offset:{4096*k + 512*hf + 8*(t&1)}')
    return r
for k in range(10): e('\n'.join(wo_reads(k)))
arrive(9)
poll(vFy, first_issued=True, sleep=OPT['ysleep'], reg=a0)
stamp(8)
if OPT['abl'] == 35: e('s_endpgm')
e(f"""buffer_load_dwordx4 {vr(OF,4)}, v{vYl}, {sr(SRD_WS)}, s{sA} offen sc1
buffer_load_dwordx4 {vr(OF+4,4)}, v{vYl}, {sr(SRD_WS)}, s{sSk} offen sc1
s_lshr_b32 s{sA}, s{S_J}, 4
s_lshl_b32 s{sA}, s{sA}, 10
s_and_b32 s{sB}, s{S_J}, 3
s_lshl_b32 s{sB}, s{sB}, 8
s_add_u32 s{sA}, s{sA}, s{sB}
s_and_b32 s{sB}, s{S_J}, 8
s_lshl1_add_u32 s{sA}, s{sB}, s{sA}
s_and_b32 s{sB}, s{S_J}, 4
s_add_u32 s{sA}, s{sA}, s{sB}
s_mul_i32 s{sA}, s{sA}, 1792
s_lshl1_add_u32 s{sA}, s{sCh0}, s{sA}
s_add_u32 s{sB}, s{sA}, {128*1792}
v_xor_b32 v{a0}, 64, v{vBw}""")
lwait(9)
e(f"""s_waitcnt vmcnt(0)
ds_write_b128 v{vXo}, {vr(OF,4)}
ds_write_b128 v{vXo}, {vr(OF+4,4)} offset:1024""")
for z in range(2):
    for hf in range(2):
        e(f'ds_read_b64_tr_b16 {vr(OF + 8 + 4*z + 2*hf, 2)}, v{vTr} offset:{64*z + 512*hf}')
e(f"""s_waitcnt lgkmcnt(0)
buffer_store_dwordx4 {vr(OF+8,4)}, v{vYs}, {sr(SRD_C)}, s{sA} offen {OUTM}
buffer_store_dwordx4 {vr(OF+12,4)}, v{vYs}, {sr(SRD_C)}, s{sB} offen {OUTM}""")
if OPT['only'] == 1:
    stamp(9); stamp(13); prof_out(); e('s_endpgm')
if OM: poll(vFo, sleep=8)
if OM == 4:
    e(f'''s_lshl2_add_u32 s{sA}, s{S_J}, s{S_W}
    s_lshr_b32 s{sA}, s{sA}, 1
    s_lshl_b32 s{sA}, s{sA}, {4 + FSH}
    s_add_u32 s{sA}, s{sA}, {F_O}
    v_and_b32 v{vFo}, 15, v{V_LANE}
    v_lshl_add_u32 v{vFo}, v{vFo}, {FSH}, s{sA}''')
sOk, sLast = 4, 18
for k in range(14): e(f's_add_u32 s{sOk+k}, s{sOl}, {4*KS*k}')
stamp(9)
e('s_barrier')
stamp(10)
if OPT['osleep']: e(f"s_sleep {OPT['osleep']}")
if OM != 3: poll(vFo, sleep=OPT['hsleep'])
if OM: e(f's_min_u32 s{S_BOUND}, s{S_BOUND}, 0x4000')
stamp(11)
def o_load(k): return f'buffer_load_dwordx4 {vr(OF+4*k,4)}, v{vOl}, {sr(SRD_WS)}, s{sOk+k} offen sc1'
def o_chk(k):
    o = OF + 4*k
    return [f's_waitcnt vmcnt({13-k})', f'v_max3_u32 v6, v{o}, v{o+1}, v{o+2}', f'v_max_u32 v6, v6, v{o+3}', 'v_cmp_eq_u32 vcc, -1, v6']
for k in range(14): e(o_load(k))
if OM: e('\n'.join(o_chk(0)))
for k in range(14):
    o = OF + 4*k
    m = [f'v_mfma_f32_16x16x32_bf16 {vr(OC+4*t,4)}, {vr(WF + 16*(k%10) + 4*t, 4)}, {vr(o,4)}, {"0" if k == 0 else vr(OC+4*t,4)}' for t in range(4)]
    rd = wo_reads(k + 9) if 1 <= k <= 4 else []
    if k == 10: e('s_waitcnt lgkmcnt(0)')
    if OM:
        e(f's_cbranch_vccnz L_or{k}\nL_og{k}:')
        c = o_chk(k + 1) if k < 13 else ['', '', '', '']
        e('\n'.join([m[0]] + rd[:4] + [m[1]] + rd[4:] + [m[2], c[0], c[1], c[2], m[3], c[3]]))
    else:
        e(f's_waitcnt vmcnt({13-k})'); e('\n'.join(m + rd))
stamp(12)
e('s_nop 4')
for i in range(8): e(f'v_cvt_pk_bf16_f32 v{16+i}, v{OC+2*i}, v{OC+2*i+1}')
e(f"""ds_write_b128 v{vBw}, {vr(16,4)}
ds_write_b128 v{a0}, {vr(20,4)}
ds_read_b128 {vr(24,4)}, v{vBr}
ds_read_b128 {vr(28,4)}, v{vBr} offset:1024
s_or_b32 s{sA}, s2, s{S_W}
s_waitcnt lgkmcnt(1)
buffer_store_dwordx4 {vr(24,4)}, v{vOut}, {sr(SRD_C)}, s{sOut} offen {OUTM2}
s_waitcnt lgkmcnt(0)
buffer_store_dwordx4 {vr(28,4)}, v{vOut}, {sr(SRD_C)}, s{sOut+1} offen {OUTM2}
s_cbranch_scc1 L_noepoch""")
publish(sA, 6)
e('L_noepoch:')
if OPT['prof']:
    e('s_waitcnt vmcnt(0)')
stamp(13)
prof_out()
e('L_end:\ns_endpgm')
if OM:
    for k in range(14):
        c = o_chk(k)
        e(f'''L_or{k}:
        s_call_b64 s[90:91], L_re{k}
        {c[0]}
        L_oc{k}:
        {c[1]}
        {c[2]}
        {c[3]}
        s_cbranch_vccz L_og{k}
        {'s_sleep %d' % OPT['rsleep'] if OPT['rsleep'] else ''}
        {o_load(k)}
        s_sub_u32 s{S_BOUND}, s{S_BOUND}, 1
        s_waitcnt vmcnt(0)
        s_cbranch_scc0 L_oc{k}
        s_mov_b32 s{S_BOUND}, 0
        s_branch L_og{k}''')
    for k in range(14): e(f'L_re{k}:\n{o_load(k)}')
    e('s_setpc_b64 s[90:91]')
sec('idle')
ROLE[0] = 2
e('L_ssm_idle:')
if OPT['only'] == 2:
    arrive(1); e('s_endpgm')
hi()
e(f"""v_lshrrev_b32 v10, 3, v{V_LANE}
v_and_b32 v11, 7, v{V_LANE}
v_lshlrev_b32 v11, 4, v11
v_mul_u32_u24 v5, 896, v10
v_add_u32 v5, v5, v11
v_add_u32 v6, {7168-1024}, v5
s_lshl2_add_u32 s60, s{S_J}, s{S_W}
s_mul_i32 s61, s60, {16*896}
s_mul_i32 s62, s{S_W}, 14336
s_add_u32 s62, s62, {L_SSM}
s_mov_b32 s{SRD_A+2}, {2048*896}
s_mov_b32 s{SRD_A+3}, 0x20000
s_waitcnt lgkmcnt(0)
s_load_dword s{S_NONCE}, s[28:29], 0
s_mov_b64 s[{SRD_A}:{SRD_A+1}], s[4:5]""")
for c in range(7):
    e(f"""s_add_u32 m0, s62, {2048*c - 128*c}
    s_nop 0
    buffer_load_dwordx4 v5, {sr(SRD_A)}, s61 offen offset:{128*c} lds
    buffer_load_dwordx4 v6, {sr(SRD_A)}, s61 offen offset:{1024 + 128*c} lds""")
    if c == OPT['tb']: e('s_barrier')
    if c == 1:
        srd(SRD_WS, 28, WS_SIZE)
        e(f"""; transposing read: row = 8*(cc&1)+r', byte = 8*(2G+(cc>>1))
        v_mul_u32_u24 v7, {QS}, v10
        v_add_u32 v7, v7, v11
        v_bfe_u32 v8, v{V_LANE}, 2, 2
        v_and_b32 v9, 1, v{V_LANE}
        v_lshl_or_b32 v8, v9, 3, v8
        v_xor_b32 v8, 3, v8
        v_lshl_add_u32 v8, v8, 7, s62
        v_and_b32 v9, 0x30, v{V_LANE}
        v_add_u32 v8, v8, v9
        v_and_b32 v9, 2, v{V_LANE}
        v_lshl_add_u32 v8, v9, 2, v8
        s_lshl_b32 s63, s60, 7
        s_add_u32 s63, s63, {WS_U}
        s_lshl_b32 s65, s{S_J}, {FSH}
        s_add_u32 s65, s65, {F_U}""")
e(f's_waitcnt lgkmcnt(0)\ns_add_u32 s{S_NONCE}, s{S_NONCE}, 1')
arrive(1)
def t_rd(c):
    return [f'ds_read_b64_tr_b16 {vr(16 + 8*c + 4*z + 2*hf, 2)}, v8 offset:{2048*c + 64*z + 512*(1-hf)}' for z in range(2) for hf in range(2)]
e('s_waitcnt vmcnt(12)'); stamp(1); e('\n'.join(t_rd(0)))
for c in range(7):
    if c < 6:
        e('s_waitcnt vmcnt(10)'); e('\n'.join(t_rd(c + 1)))
    e(f"""s_add_u32 s64, s63, {8*QS}
    s_waitcnt lgkmcnt({4 if c < 6 else 0})
    buffer_store_dwordx4 {vr(16+8*c,4)}, v7, {sr(SRD_WS)}, s63 offen sc1
    buffer_store_dwordx4 {vr(20+8*c,4)}, v7, {sr(SRD_WS)}, s64 offen sc1
    s_add_u32 s63, s63, {16*QS}""")
    if c + 7 == OPT['tb']: e('s_barrier')
stamp(2)
e(f"""v_mov_b32 v5, 1
v_mov_b32 v6, 0
s_waitcnt vmcnt(0)
s_mov_b64 exec, 1
ds_add_rtn_u32 v5, v6, v5 offset:36
s_waitcnt lgkmcnt(0)
v_readfirstlane_b32 s60, v5
s_mov_b64 exec, -1
s_cmp_lg_u32 s60, 3
s_cbranch_scc1 L_idle_end""")
publish(65, 6)
e('L_idle_end:'); stamp(4)
prof_out()
e('s_endpgm')
ORDER = [['pro', 'ssm0', 'mha0', 'idle', 'ssm', 'mha'], ['pro', 'ssm0', 'mha0', 'mha', 'ssm', 'idle'],
         ['pro', 'ssm0', 'mha0', 'ssm', 'mha', 'idle'], ['pro', 'ssm0', 'idle', 'mha0', 'mha', 'ssm']][OPT['ord']] + ['cold', 'gt', 'fb']
SEC.setdefault('cold', [])
def add_nt(n, pred):
    SEC[n] = [(l.replace(' lds', ' nt lds') if l.endswith(' lds') else l + ' nt') if pred(l) else l for l in SEC[n]]
for n in ('mha0', 'mha', 'gt'):
    if OPT['nt'] & 1: add_nt(n, lambda l: l.endswith(' lds') and sr(SRD_A) in l)
    if OPT['nt'] & 2: add_nt(n, lambda l: l.endswith(' lds') and sr(SRD_B) in l)
if OPT['nt'] & 4: add_nt('idle', lambda l: l.endswith(' lds'))
if OPT['nt'] & 8: add_nt('ssm0', lambda l: 'global_load' in l)
if OPT['nt'] & 16: add_nt('ssm', lambda l: l.endswith(' lds'))
if OPT['nt'] & 32: add_nt('ssm', lambda l: 'buffer_store' in l and sr(SRD_C) in l)
BODY = sum((SEC[n] for n in ORDER), [])
def sizes(lines):
    import subprocess, re, os, tempfile
    d = tempfile.mkdtemp()
    open(d + '/a.s', 'w').write('.amdgcn_target "amdgcn-amd-amdhsa--gfx950"\n.text\n' + '\n'.join(lines) + '\n')
    subprocess.check_call(['clang', '-x', 'assembler', '-target', 'amdgcn-amd-amdhsa', '-mcpu=gfx950', '-c', d + '/a.s', '-o', d + '/a.o'])
    o = subprocess.check_output(['llvm-objdump', '-d', '--mcpu=gfx950', d + '/a.o']).decode()
    return [4 * len(m.group(1).split()) for m in re.finditer(r'// [0-9A-F]{12}: ((?:[0-9A-F]{8} ?)+)', o)]
def is_ins(l):
    t = l.split(';')[0].strip()
    return bool(t) and not t.endswith(':')
def widen(l):
    import re
    t = l.split(';')[0].strip(); op = t.split()[0]
    if op.startswith('v_') and not op.startswith(('v_readfirstlane', 'v_swap', 'v_permlane', 'v_nop')):
        return l.replace(op, op + '_e64', 1)
    return None
if OPT['al']:
    sz = iter(sizes(BODY))
    I = [[l, next(sz) if is_ins(l) else 0] for l in BODY]
    res = []; addr = 0; nw = nn = 0
    for i, (l, n) in enumerate(I):
        if n == 8 and addr % 8 == 4:
            run = 0
            for l2, n2 in I[i:]:
                if n2 == 4: break
                run += n2 == 8
            cross = sum(1 for k in range(run) if (addr + 8*k) % 32 == 28)
            if cross:
                j = len(res) - 1; done = False; aj = addr
                while j >= 0 and res[j][1] in (0, 4):
                    aj -= res[j][1]
                    t = res[j][0].strip()
                    if t.startswith(('s_branch', 's_endpgm', 's_setpc')):
                        res.insert(j + 1, ['    s_nop 0', 4]); done = True; break
                    w = widen(res[j][0]) if res[j][1] == 4 and aj % 32 != 28 else None
                    if w:
                        res[j] = [w, 8]; done = True; nw += 1; break
                    j -= 1
                if not done and run >= OPT['alr']:
                    k = len(res)
                    while res[k-1][1] == 0: k -= 1
                    res.insert(k, ['    s_nop 0', 4]); done = True; nn += 1
                if done: addr += 4
        res.append([l, n]); addr += n
    BODY = [l for l, n in res]
    print('aligned: widened', nw, 'nops', nn, 'bytes', addr, file=sys.stderr)
hdr = open('header.txt').read()
txt = hdr + f'''; @launch grid=(256,1,1) block=(512,1,1) lds={L_TOT}
.amdgcn_target "amdgcn-amd-amdhsa--gfx950"
.text
.globl {KN}
.p2align 8
.type {KN},@function
{KN}:
''' + '\n'.join(BODY) + f'''
.section .rodata,"a"
.p2align 6
.amdhsa_kernel {KN}
  .amdhsa_next_free_vgpr 256
  .amdhsa_next_free_sgpr 102
  .amdhsa_accum_offset 256
  .amdhsa_group_segment_fixed_size 0
  .amdhsa_kernarg_size 104
  .amdhsa_user_sgpr_count 2
  .amdhsa_user_sgpr_kernarg_segment_ptr 1
  .amdhsa_system_sgpr_workgroup_id_x 1
.end_amdhsa_kernel
'''
open(sys.argv[1], 'w').write(txt)
```

```python
import sys, struct
def fl(x): return hex(struct.unpack('<I', struct.pack('<f', x))[0])

KN = 'concat_heads__ssm_conv_s4d__softmax_full_mha__prompt_kernel'
OPT = dict(probe=0, poff=0xc00000, nt=0, rdn=0, al=1, alr=6, fw=0, rsleep=0, hsleep=0, ord=3, nb=0, tb=13, tq=1, chkk=99, uw=-2, cw=0, s6=5, tskip=1, ones=1, pa=1, pr=2, pf=2, wgf=2, ax=0, bp=3, qa=7, n0=4, ilv=8, tlb=0, ulook=1, kgp=1, pad=0, ypad=0, omode=3, ksleep=0, usleep=4, obar=5, osleep=0, pubk=8, abl=0, touch=0, gs=0, kgw=0, xg=5, gx=0, pm=2, ps=0, rt=0, upub=1, kgx=0, outsc=0, ysleep=8, wodepth=4, wq_mid=0, pollk=99, rd=-1, rdrole=0, only=0, safe=0, rot=0, prof=0, fs=128, force_fb=0, wq_early=7, prio=1)
for a in sys.argv[2:]:
    k, v = a.split('=')
    assert k in OPT, k
    OPT[k] = int(v, 0)

FS = OPT['fs']
FSH = FS.bit_length() - 1
F_KV = 0x1000
F_O = F_KV + 1024 * FS
F_U = F_O + 1024 * FS
F_Y = F_U + 1024 * FS
F_H = F_Y + 1024 * FS
WS_K = 0x100000
WS_V = 0x300000
WS_O = 0x500000
WS_U = 0x700000
WS_Y = 0x900000
QS = 16384 + OPT['pad']; KS = 2 * QS; YS = 4096 + OPT['ypad']
S_KS = 57
WS_PROF = 0xb00000
WS_SIZE = 0xc00000
L_SSM = 1024
L_W = 57344
L_RB = 65536
L_X = 114688
L_TOT = 163840
TROW = 288
TABSZ = 38 * TROW
L_TAB = L_SSM
P_SZ = 2 * TABSZ
P_UC = 1536
UC_S = 2240
P_KD = TABSZ + 1536
P_X = TABSZ
PS = 1552
PD = 4 * PS
L_KP = L_TAB + 4 * TABSZ
assert P_UC + 4 * UC_S <= TABSZ and P_KD + 1600 <= P_SZ and P_X + 8192 <= P_SZ and L_KP % 16 == 0 and L_KP + 2 * PD <= L_W
L_WO = L_SSM

S_WV, S_W, S_HG, S_C, S_TILE, S_J, S_H, S_NONCE, S_O0, S_ROT = range(30, 40)
SRD_WS, SRD_A, SRD_B, SRD_C = 40, 44, 48, 52
S_BOUND = 56
S_T0 = 58

SEC = {}
out = None
def sec(n):
    global out
    out = SEC.setdefault(n, [])
sec('pro')
def e(s):
    for l in s.split('\n'):
        l = l.strip()
        if l:
            out.append(l if l.endswith(':') else '    ' + l)
_lab = [0]
def lab(p):
    _lab[0] += 1
    return f'L_{p}_{_lab[0]}'
def vr(a, n):
    return f'v[{a}:{a+n-1}]' if n > 1 else f'v{a}'
def srd(d, b, n):
    e(f's_mov_b64 s[{d}:{d+1}], s[{b}:{b+1}]\ns_mov_b32 s{d+2}, {n}\ns_mov_b32 s{d+3}, 0x20000')
def sr(d): return f's[{d}:{d+3}]'

V_LANE, V_T, V_OWN, V_GRP, V_PROF = 0, 1, 2, 3, 4

ROLE = [0]
def stamp(i):
    if OPT['rd'] == i and OPT['rdrole'] == ROLE[0]:
        e('s_memrealtime s[100:101]\ns_waitcnt lgkmcnt(0)')
    if OPT['prof'] > (i >= 14):
        e(f's_mem{"real" if OPT["rt"] else ""}time s[96:97]\ns_waitcnt lgkmcnt(0)\ns_sub_u32 s96, s96, s{98 if OPT["rt"] else S_T0}\nv_writelane_b32 v{V_PROF}, s96, {i}')
def prof_out():
    if OPT['rd'] >= 0 and OPT['rdrole'] == ROLE[0]:
        l = lab('pad')
        if ROLE[0] == 0 and not OPT['obar']: e('s_barrier')
        if ROLE[0] == 2: e('s_barrier')
        if ROLE[0] == 0 and OPT['rdn']: e(f's_cmp_eq_u32 s{S_C}, 7\ns_cbranch_scc{2 - OPT["rdn"]} L_end')
        if OPT['rd'] == 98:
            e(f'''s_not_b32 s100, s100
            v_mov_b32 v5, s100
            v_mov_b32 v6, 0
            s_mov_b64 exec, 1
            global_atomic_umax v6, v5, s[26:27]
            s_waitcnt vmcnt(0)
            s_sleep 127
            s_sleep 127
            s_sleep 127
            s_sleep 127
            s_sleep 127
            global_load_dword v5, v6, s[26:27] sc1
            s_waitcnt vmcnt(0)
            v_readfirstlane_b32 s100, v5
            s_not_b32 s100, s100''')
        if OPT['probe']:
            op = {1: 'buffer_store_dwordx4 v[8:11], v5, s[52:55], s60 offen sc1', 2: 'buffer_load_dwordx4 v[8:11], v5, s[52:55], s60 offen sc1',
                  3: 'buffer_store_dwordx4 v[8:11], v5, s[52:55], s60 offen'}[OPT['probe'] & 3]
            pre = 'buffer_load_dword v12, v6, s[52:55], s61 offen sc1\ns_waitcnt vmcnt(0)' if OPT['probe'] & 4 else ''
            if OPT['probe'] & 8: pre += '\nbuffer_store_dwordx4 v[8:11], v5, s[52:55], s60 offen sc1\ns_waitcnt vmcnt(0)\ns_sleep 40'
            e(f'''s_mov_b64 s[52:53], s[28:29]
            s_mov_b32 s54, 0x10000000
            s_mov_b32 s55, 0x20000
            s_sleep 127
            s_sleep 127
            s_sleep 127
            v_lshlrev_b32 v5, 4, v0
            v_mov_b32 v6, 0
            s_lshl2_add_u32 s60, s2, s{S_W}
            s_lshl_b32 s60, s60, 10
            s_add_u32 s60, s60, {OPT['poff']}
            s_mov_b32 s61, {OPT['poff'] + 0x180000}
            {pre}
            s_memrealtime s[62:63]
            s_waitcnt lgkmcnt(0)
            {op}
            s_waitcnt vmcnt(0)
            s_memrealtime s[100:101]
            s_waitcnt lgkmcnt(0)
            s_sub_u32 s100, s100, s62
            v_mov_b32 v8, s100
            s_lshl2_add_u32 s60, s2, s{S_W}
            s_lshl_b32 s60, s60, 2
            s_add_u32 s60, s60, {WS_PROF}
            buffer_store_dword v8, v6, s[52:55], s60 offen
            s_mul_i32 s100, s100, 50
            s_add_u32 s100, s100, s58''')
        else: e('s_sub_u32 s100, s100, s58\ns_lshl_b32 s100, s100, 3\ns_add_u32 s100, s100, s58')
        e(f'''s_add_u32 s100, s100, 6000
        {l}:
        s_sleep 1
        s_memrealtime s[96:97]
        s_waitcnt lgkmcnt(0)
        s_sub_u32 s96, s96, s100
        s_cmp_lt_i32 s96, 0
        s_cbranch_scc1 {l}''')
    if OPT['prof']:
        e(f'''s_memrealtime s[96:97]
        s_waitcnt lgkmcnt(0)
        v_writelane_b32 v{V_PROF}, s96, 31
        v_writelane_b32 v{V_PROF}, s98, 30
        s_lshl_b32 s96, s2, 3
        s_add_u32 s96, s96, s{S_WV}
        s_lshl_b32 s96, s96, 7
        s_add_u32 s96, s96, {WS_PROF}
        v_lshlrev_b32 v{V_T}, 2, v{V_LANE}
        s_mov_b32 exec_hi, 0
        buffer_store_dword v{V_PROF}, v{V_T}, {sr(SRD_WS)}, s96 offen
        s_mov_b64 exec, -1''')

def arrive(stage):
    e(f'v_mov_b32 v{V_T}, {stage}\nds_write_b32 v{V_OWN}, v{V_T}')
def lwait(stage, addr=V_GRP, sleep=0):
    l = lab('lw')
    e(f'{l}:')
    if sleep: e(f's_sleep {sleep}')
    e(f'''ds_read_b32 v{V_T}, v{addr}
    s_waitcnt lgkmcnt(0)
    v_cmp_gt_u32 vcc, {stage}, v{V_T}''')
    if OPT['safe']:
        d = lab('ld')
        e(f'''s_cbranch_vccz {d}
        s_sub_u32 s{S_BOUND}, s{S_BOUND}, 1
        s_cbranch_scc0 {l}
        s_mov_b32 s{S_BOUND}, 0
        {d}:''')
    else:
        e(f's_cbranch_vccnz {l}')
def sync(stage):
    arrive(stage); lwait(stage)
def poll(voff, first_issued=False, sleep=0, reg=V_T):
    l, d, m = lab('pl'), lab('pd'), lab('pm')
    if first_issued == 2:
        e(f's_waitcnt vmcnt(0)\nv_cmp_ne_u32 vcc, s{S_NONCE}, v{reg}\ns_cbranch_vccnz {l}\n{d}:')
        cur = [n for n in SEC if SEC[n] is out][0]
        sec('cold')
        e(f'''{l}:
        buffer_load_dword v{reg}, v{voff}, {sr(SRD_WS)}, 0 offen sc1
        s_waitcnt vmcnt(0)
        v_cmp_ne_u32 vcc, s{S_NONCE}, v{reg}
        s_cbranch_vccz {d}
        s_sub_u32 s{S_BOUND}, s{S_BOUND}, 1
        s_cbranch_scc0 {l}
        s_mov_b32 s{S_BOUND}, 0
        s_branch {d}''')
        sec(cur)
        return
    if first_issued: e(f's_branch {m}')
    e(f'{l}:')
    if sleep: e(f's_sleep {sleep}')
    e(f'''buffer_load_dword v{reg}, v{voff}, {sr(SRD_WS)}, 0 offen sc1
    {m}:
    s_waitcnt vmcnt(0)
    v_cmp_ne_u32 vcc, s{S_NONCE}, v{reg}
    s_cbranch_vccz {d}
    s_sub_u32 s{S_BOUND}, s{S_BOUND}, 1
    s_cbranch_scc0 {l}
    s_mov_b32 s{S_BOUND}, 0
    {d}:''')
def publish(soff, tmp):
    if OPT['fw']:
        e(f'''v_mov_b32 v{V_T}, s{S_NONCE}
        v_lshlrev_b32 v{tmp}, 2, v{V_LANE}
        s_mov_b64 exec, {hex((1 << OPT['fw']) - 1)}
        buffer_store_dword v{V_T}, v{tmp}, {sr(SRD_WS)}, s{soff} offen sc1
        s_mov_b64 exec, -1'''.replace('s_mov_b64 exec, 0xffffffff', 's_mov_b32 exec_hi, 0'))
        return
    e(f'''v_mov_b32 v{V_T}, s{S_NONCE}
    v_mov_b32 v{tmp}, 0
    s_mov_b64 exec, 1
    buffer_store_dword v{V_T}, v{tmp}, {sr(SRD_WS)}, s{soff} offen sc1
    s_mov_b64 exec, -1''')
def swap23(d, s, t):
    e(f'''v_lshrrev_b32 v{t}, 1, v{s}
    v_xor_b32 v{t}, v{t}, v{s}
    v_and_b32 v{t}, 4, v{t}
    v_mul_u32_u24 v{t}, 3, v{t}
    v_xor_b32 v{d}, v{t}, v{s}''')
def rot_next(s):
    e(f's_add_u32 s{s}, s{s}, 1\ns_cmp_eq_u32 s{s}, 7\ns_cselect_b32 s{s}, 0, s{s}')

e(f'''s_cmp_ge_u32 s2, 256
s_cbranch_scc1 L_end''')
if OPT['prof']:
    e(f's_memtime s[{S_T0}:{S_T0+1}]\ns_memrealtime s[98:99]\nv_mov_b32 v{V_PROF}, 0')
if OPT['rd'] >= 0: e('s_memrealtime s[100:101]\ns_memrealtime s[58:59]')
e(f'''s_load_dwordx16 s[4:19], s[0:1], 0
s_load_dwordx8 s[20:27], s[0:1], 64
s_load_dwordx2 s[28:29], s[0:1], 96
v_lshrrev_b32 v{V_OWN}, 6, v0
v_and_b32 v{V_LANE}, 63, v0
v_readfirstlane_b32 s{S_WV}, v{V_OWN}
v_lshlrev_b32 v{V_OWN}, 2, v{V_OWN}
v_mov_b32 v{V_T}, 0
ds_write2_b32 v{V_OWN}, v{V_T}, v{V_T} offset1:8
v_and_b32 v{V_GRP}, 3, v{V_LANE}
v_lshlrev_b32 v{V_GRP}, 2, v{V_GRP}
s_and_b32 s{S_HG}, s2, 1
s_bfe_u32 s60, s2, 0x20001
s_bfe_u32 s{S_C}, s2, 0x30003
s_lshr_b32 s61, s2, 6
s_lshl2_add_u32 s{S_TILE}, s60, s61
s_lshl1_add_u32 s{S_J}, s{S_TILE}, s{S_HG}
s_lshl3_add_u32 s{S_H}, s{S_HG}, s{S_C}
s_and_b32 s{S_W}, s{S_WV}, 3
s_mov_b32 s{S_BOUND}, 0x40000
s_mov_b32 s{S_KS}, {KS}
s_cmp_lt_u32 s{S_WV}, 4
s_cbranch_scc1 L_mha''')

VX = 144; VACC = 96; VWF = 32; VPK = 128
VV, VK, VS, VO, VQ = 32, 64, 96, 160, 224
vWd = [5, 6]; vXd = [7, 8, 9, 10]; vXr = [11, 12, 13, 14]; vWb, vW0, vW1 = 15, 16, 17
vRho, vG, vSt, vQd, vQr, vFl, vA, vB, vC = 18, 19, 20, 21, 22, 23, 24, 25, 26
vKo0, vKo1, vVo, vIdx = 27, 28, 29, 30
sXb, sWb, sCh, sCw, sLx, sTmp, sTmp2, sSt, sS1, sS2, sFl = range(60, 71)
sK, sV, sIt = 71, 72, 73
sFo, sO0, sO1 = 84, 85, 86
vOs, vQw = vRho, vG
vRb = [7, 8, 9]; vQx = [11, 12, 13]; vRr = 10
sMask = 74
sOdd = 76

sec('mha0')
e('L_mha:')
if OPT['prio']: e(f"s_setprio {OPT['pm']}")
e(f'''s_mul_i32 s{S_O0}, s{S_H}, 7
s_lshr_b32 s{S_O0}, s{S_O0}, 1''')
e(f'''v_lshrrev_b32 v{vA}, 3, v{V_LANE}          ; r
v_and_b32 v{vB}, 7, v{V_LANE}                    ; p
v_lshlrev_b32 v{vC}, 1, v{vA}
v_and_b32 v{vC}, 4, v{vC}
v_xor_b32 v{vC}, v{vC}, v{vB}
v_lshlrev_b32 v{vC}, 4, v{vC}
v_mul_u32_u24 v{vWd[0]}, 2688, v{vA}
v_add_u32 v{vWd[0]}, v{vWd[0]}, v{vC}
v_add_u32 v{vWd[1]}, {8*2688-1024}, v{vWd[0]}
v_lshrrev_b32 v{vC}, 1, v{vA}
v_xor_b32 v{vC}, v{vC}, v{vB}
v_lshlrev_b32 v{vC}, 4, v{vC}
v_mul_u32_u24 v{vA}, 896, v{vA}
v_add_u32 v{vXd[0]}, v{vA}, v{vC}
v_xor_b32 v{vC}, 64, v{vC}
v_add_u32 v{vXd[1]}, v{vA}, v{vC}
v_add_u32 v{vXd[1]}, {7168-1024}, v{vXd[1]}
v_add_u32 v{vXd[2]}, {2*(7168-1024)}, v{vXd[0]}
v_add_u32 v{vXd[3]}, {2*(7168-1024)}, v{vXd[1]}
s_lshl2_add_u32 s{sXb}, s{S_TILE}, s{S_W}
s_lshl_b32 s{sFl}, s{S_H}, 6
s_add_u32 s{sFl}, s{sFl}, s{S_TILE if OPT['wgf'] else sXb}
s_lshl_b32 s{sFl}, s{sFl}, {FSH}
s_add_u32 s{sFl}, s{sFl}, {F_KV}
s_mul_i32 s{sXb}, s{sXb}, {32*896}
s_mul_i32 s{sTmp2}, s{S_HG}, 3
s_lshr_b32 s{sTmp}, s2, 6
s_add_u32 s{sTmp2}, s{sTmp2}, s{sTmp}
s_mul_i32 s{sWb}, s{S_HG}, 7
s_add_u32 s{sWb}, s{sWb}, s{S_C}
s_add_u32 s{sWb}, s{sWb}, 7
s_cmp_eq_u32 s{S_C}, 7
s_cselect_b32 s{sWb}, {'s%d' % sTmp2 if OPT['tq'] else '0x100000'}, s{sWb}
s_cselect_b32 s{sS1}, 1, s{S_W}
s_lshl_b32 s{sWb}, s{sWb}, 7
s_mul_i32 s{sTmp}, s{S_W}, {16*2688}
s_add_u32 s{sWb}, s{sWb}, s{sTmp}
s_mul_i32 s{sLx}, s{S_W}, 12288
s_add_u32 s{sLx}, s{sLx}, {L_X}
s_lshl_b32 s{sS1}, s{sS1}, 11
s_add_u32 s{sS1}, s{sS1}, {L_W}
s_mov_b32 s{SRD_A+2}, {2048*896}
s_mov_b32 s{SRD_A+3}, 0x20000
s_mov_b32 s{SRD_B+2}, {448*1344*2}
s_mov_b32 s{SRD_B+3}, 0x20000
s_mov_b32 m0, s{sLx}
s_waitcnt lgkmcnt(0)
s_mov_b64 s[{SRD_A}:{SRD_A+1}], s[18:19]
s_mov_b64 s[{SRD_B}:{SRD_B+1}], s[20:21]
s_load_dword s{S_NONCE}, s[28:29], 0''')
stamp(22)
sWo = 88
def w_lines(st):
    return [f's_add_u32 m0, s{sS1}, {8192*st}', f's_add_u32 s{sWo+st}, s{sWb}, {64*2688*st}'] + \
           [f'buffer_load_dwordx4 v{vWd[i]}, {sr(SRD_B)}, s{sWo+st} offen offset:{1024*i} lds' for i in range(2)]
def x_chunk(st):
    return [f's_add_u32 m0, s{sLx}, {(st%3)*4096 - 128*st}', 's_nop 0'] + \
           [f'buffer_load_dwordx4 v{vXd[i]}, {sr(SRD_A)}, s{sXb} offen offset:{1024*i + 128*st} lds' for i in range(4)]
DM = []
for l in [x_chunk(0), w_lines(0)] + [w_lines(i) for i in range(1, 7)] + [x_chunk(1), x_chunk(2)]:
    DM += [l[:3]] + [[x] for x in l[3:]]
DM[0] = DM[0][2:]
for i, g in enumerate(DM[:OPT['n0']]):
    if i == OPT['nb']:
        e('s_barrier'); stamp(23)
        if OPT['only'] == 1: e('s_endpgm')
    e('\n'.join(g))
DM = DM[OPT['n0']:]
stamp(24)
if OPT['ord'] not in (1, 3): e('s_branch L_mha1')
sec('mha')
e('L_mha1:')
stamp(25)
sec('tmp')
srd(SRD_WS, 28, WS_SIZE)
ONES = f'''s_bitcmp1_b32 s{S_H}, 0
s_cselect_b32 s{sTmp}, 0, 7
v_cmp_eq_u32 vcc, s{sTmp}, v{vA}
s_lshl_b32 s{sTmp}, s{S_O0}, 1
s_sub_u32 s{sTmp}, s{S_HG}, s{sTmp}
s_add_u32 s{sTmp}, s{sTmp}, 112
v_mov_b32 v{vB}, s{sTmp}
v_cndmask_b32 v{vA}, v{vA}, v{vB}, vcc
''' if OPT['ones'] else ''
FIX = f'''v_cmp_lt_u32 vcc, 7, v{vB}
s_lshl3_add_u32 s{sTmp}, s{S_HG}, 7
v_mov_b32 v{vB}, s{sTmp}
v_cndmask_b32 v{vC}, v{vC}, v{vB}, vcc
''' if OPT['ones'] else ''
FOM = f'''s_lshl_b32 s{sFo}, s{sTmp2}, 4
s_add_u32 s{sFo}, s{sFo}, s{S_H}
s_lshl_b32 s{sFo}, s{sFo}, {FSH}
s_add_u32 s{sFo}, s{sFo}, {F_O}
''' if OPT['omode'] != 3 else ''
e(f'''v_and_b32 v{vA}, 31, v{V_LANE}
v_lshrrev_b32 v{vG}, 5, v{V_LANE}''')
swap23(vRho, vA, vB)
e(f'''v_bfe_u32 v{vB}, v{vRho}, 1, 3
v_xor_b32 v{vB}, v{vB}, v{vG}
v_lshlrev_b32 v{vB}, 4, v{vB}
v_lshl_add_u32 v{vB}, v{vRho}, 7, v{vB}
v_add_u32 v{vXr[0]}, s{sLx}, v{vB}
v_xor_b32 v{vXr[1]}, 32, v{vXr[0]}
v_xor_b32 v{vXr[2]}, 64, v{vXr[0]}
v_xor_b32 v{vXr[3]}, 0x60, v{vXr[0]}
v_and_b32 v{vB}, 3, v{V_LANE}                     ; cc
v_lshrrev_b32 v{vC}, 1, v{vB}
v_and_b32 v{vQd}, 1, v{vB}
v_lshl_or_b32 v{vC}, v{vQd}, 1, v{vC}
v_bfe_u32 v{vQd}, v{V_LANE}, 4, 1
v_lshl_or_b32 v{vB}, v{vQd}, 2, v{vB}
v_lshl_or_b32 v{vC}, v{vQd}, 2, v{vC}
v_bfe_u32 v{vQd}, v{V_LANE}, 2, 2                  ; r'
v_lshl_or_b32 v{vFl}, v{vG}, 3, v{vQd}             ; 8g + r'
v_lshlrev_b32 v{vQr}, 6, v{vFl}
v_lshl_add_u32 v{vQr}, v{vC}, 3, v{vQr}
v_add_u32 v{vQr}, {L_X + 4096}, v{vQr}
s_cmp_eq_u32 s{S_HG}, 0
s_cselect_b64 vcc, -1, 0
v_cndmask_b32 v{vB}, v{vB}, v{vC}, vcc             ; K slabs use the exchanged order, V slabs the natural one
v_lshlrev_b32 v{vWb}, 7, v{vFl}
v_lshl_add_u32 v{vWb}, v{vB}, 3, v{vWb}
v_lshrrev_b32 v{vQd}, 1, v{vQd}
v_lshl_add_u32 v{vWb}, v{vQd}, 6, v{vWb}
v_add_u32 v{vW0}, {L_W}, v{vWb}
v_lshlrev_b32 v{vB}, 4, v{vRho}
v_mad_u32_u24 v{vB}, v{vG}, s{S_KS}, v{vB}
v_lshrrev_b32 v{vC}, 2, v{vA}
v_mul_u32_u24 v{vC}, {QS}, v{vC}
v_lshl_add_u32 v{vC}, v{vG}, 6, v{vC}
v_and_b32 v{vQd}, 3, v{vA}
v_lshl_add_u32 v{vC}, v{vQd}, 4, v{vC}
v_cndmask_b32 v{vSt}, v{vC}, v{vB}, vcc
s_lshl2_add_u32 s{sTmp}, s{S_TILE}, s{S_W}
s_lshl_b32 s{sTmp2}, s{sTmp}, 9
s_add_u32 s{sTmp2}, s{sTmp2}, {WS_K}
s_lshl_b32 s{sTmp}, s{sTmp}, 8
s_add_u32 s{sTmp}, s{sTmp}, {WS_V}
s_movk_i32 s{sS2}, 128
s_cmp_eq_u32 s{S_HG}, 0
s_cselect_b32 s{sSt}, s{sTmp2}, s{sTmp}
s_cselect_b32 s{sS2}, {2*KS}, s{sS2}
s_mul_i32 s{sTmp}, s{S_C}, {8*KS}
s_add_u32 s{sSt}, s{sSt}, s{sTmp}
v_lshrrev_b32 v{vB}, 2, v{V_LANE}
v_mul_u32_u24 v{vB}, 2688, v{vB}
v_lshl_add_u32 v{vQd}, v{vQd}, 4, v{vB}
s_lshl_b32 s82, s{S_O0}, 4
s_mul_i32 s{sTmp}, s{S_W}, {16*2688}
s_add_u32 s82, s82, s{sTmp}
s_lshr_b32 s{sTmp}, s{S_O0}, 3
s_add_u32 s{sTmp2}, s{S_O0}, 3
s_lshr_b32 s{sTmp2}, s{sTmp2}, 3
s_sub_u32 s{sTmp2}, s{sTmp2}, s{sTmp}
v_bfe_u32 v{vC}, v{V_LANE}, 4, 1
v_mul_u32_u24 v{vC}, s{sTmp2}, v{vC}
v_lshl_add_u32 v{vC}, v{vG}, 3, v{vC}
v_add_u32 v{vC}, s{sTmp}, v{vC}
v_and_b32 v{vB}, 15, v{V_LANE}
{FIX}v_and_b32 v{vB}, {3 if OPT['wgf'] else 15}, v{V_LANE}
v_lshl_add_u32 v{vC}, v{vC}, 6, v{vB}
s_lshl_b32 s{sTmp}, s{S_W}, {2 if OPT['wgf'] else 4}
v_add_u32 v{vC}, s{sTmp}, v{vC}
v_lshlrev_b32 v{vC}, {FSH}, v{vC}
v_add_u32 v{vFl}, {F_KV}, v{vC}
v_lshlrev_b32 v{vKo0}, 4, v{vA}
v_mad_u32_u24 v{vKo0}, v{vG}, s{S_KS}, v{vKo0}
v_add_u32 v{vKo1}, {2*KS}, v{vKo0}
v_lshrrev_b32 v{vA}, 2, v{vRho}
{ONES}v_mul_u32_u24 v{vA}, {QS}, v{vA}
v_lshl_add_u32 v{vA}, v{vG}, 6, v{vA}
v_and_b32 v{vB}, 3, v{V_LANE}
v_lshl_add_u32 v{vVo}, v{vB}, 4, v{vA}
v_mov_b32 v{vIdx}, 0xdddddddd
s_mul_i32 s{sTmp}, s{S_O0}, {KS}
s_lshl_b32 s{sK}, s{S_W}, 13
s_add_u32 s{sK}, s{sK}, s{sTmp}
s_add_u32 s{sK}, s{sK}, {WS_K}
s_lshl_b32 s{sV}, s{S_W}, 12
s_add_u32 s{sV}, s{sV}, s{sTmp}
s_add_u32 s{sV}, s{sV}, {WS_V}
s_lshl2_add_u32 s{sTmp2}, s{S_TILE}, s{S_W}
{FOM}s_lshl_b32 s{sTmp2}, s{sTmp2}, 9
s_add_u32 s{sO0}, s{sTmp}, s{sTmp2}
s_add_u32 s{sO0}, s{sO0}, {WS_O}
s_add_u32 s{sO1}, s{sO0}, {2*KS}
s_bitcmp1_b32 s{S_H}, 0
s_cselect_b64 s[{sOdd}:{sOdd+1}], -1, 0
v_mov_b32 v{vC}, 0x3e8b97f6
v_cmp_gt_u32 vcc, 32, v{V_LANE}
s_and_b64 s[78:79], vcc, s[{sOdd}:{sOdd+1}]
s_nor_b64 s[80:81], vcc, s[{sOdd}:{sOdd+1}]
v_cndmask_b32 v{vA}, v{vC}, 0, s[78:79]
v_cndmask_b32 v{vB}, v{vC}, 0, s[80:81]
s_mov_b32 s78, 0x3f803f80
s_mov_b32 s79, s78
v_xor_b32 v{vW1}, 64, v{vW0}
v_lshlrev_b32 v{vOs}, 4, v{vRho}
v_mad_u32_u24 v{vOs}, v{vG}, s{S_KS}, v{vOs}
v_lshl_add_u32 v{vQw}, v{V_LANE}, 4, s{sLx}''')
srd(SRD_C, 28, WS_SIZE)
def o_stores(r0, r1, tag):
    e(f'''s_bitcmp1_b32 s{S_H}, 0
    s_cbranch_scc1 L_ost_odd{tag}
    buffer_store_dwordx4 {vr(r0,4)}, v{vOs}, {sr(SRD_WS)}, s{sO0} offen sc1
    s_mov_b32 exec_hi, 0
    buffer_store_dwordx4 {vr(r1,4)}, v{vOs}, {sr(SRD_WS)}, s{sO1} offen sc1
    s_not_b64 exec, exec
    buffer_store_dwordx2 {vr(r1,2)}, v{vOs}, {sr(SRD_WS)}, s{sO1} offen sc1
    s_branch L_ost_done{tag}
    L_ost_odd{tag}:
    buffer_store_dwordx4 {vr(r1,4)}, v{vOs}, {sr(SRD_WS)}, s{sO1} offen sc1
    s_mov_b32 exec_hi, 0
    buffer_store_dwordx2 {vr(r0+2,2)}, v{vOs}, {sr(SRD_WS)}, s{sO0} offen offset:8 sc1
    s_not_b64 exec, exec
    buffer_store_dwordx4 {vr(r0,4)}, v{vOs}, {sr(SRD_WS)}, s{sO0} offen sc1
    L_ost_done{tag}:
    s_mov_b64 exec, -1''')
GS = 0
AB = [l for l in SEC.pop('tmp') if not l.strip().startswith(';')]
sec('mha')
def scc_pending(i):
    return i < len(AB) and AB[i].strip().startswith(('s_cselect', 's_mov_b32 s75'))
pos = 0
for g in DM:
    n = pos + OPT['ilv']
    while scc_pending(n): n += 1
    e('\n'.join(AB[pos:n])); pos = n
    e('\n'.join(g))
e('\n'.join(AB[pos:]))
stamp(0)
def x_reads(s):
    return [f'ds_read_b128 {vr(VX + 16*s + 4*ks, 4)}, v{vXr[ks]} offset:{(s%3)*4096}' for ks in range(4)]
e('s_waitcnt vmcnt(22)')
e('\n'.join(x_reads(0)))
e('s_waitcnt vmcnt(8) lgkmcnt(0)')
arrive(1)
stamp(1)
e('\n'.join(x_chunk(3)))
e('s_waitcnt vmcnt(8)')
e('\n'.join(x_reads(1)))
lwait(1)
e(f's_add_u32 s{S_NONCE}, s{S_NONCE}, 1')
stamp(2)
def w_reads(s):
    r = []
    for ks in range(4):
        for ct in range(2):
            for hf in range(2):
                d = VWF + 32 * (s & 1) + 8 * ks + 4 * ct + 2 * hf
                r.append(f'ds_read_b64_tr_b16 {vr(d,2)}, v{(vW0, vW1)[ct]} offset:{s*8192 + ks*2048 + hf*512}')
    return r
if OPT['tskip']: e(f's_cmp_eq_u32 s{S_C}, 7\ns_cbranch_scc1 L_gemm_t')
e('\n'.join(w_reads(0)))
e(f'''s_waitcnt lgkmcnt(0)
s_cmp_lg_u32 s{S_HG}, 0
s_cbranch_scc1 L_gemm_v''')
sQb, sQc = 82, 83
NE = OPT['wq_early']
def wq_dma(st):
    return [f's_add_u32 m0, s{sLx}, {4096 + 1024*st}\ns_add_u32 s83, s82, {64*2688*st}', '', f'buffer_load_dwordx4 v{vQd}, {sr(SRD_B)}, s83 offen lds']
SPIN = []
def gemm1(vpart):
    for s in range(7):
        M = []
        for ks in range(4):
            for ct in range(2):
                wf = vr(VWF + 32 * (s & 1) + 8 * ks + 4 * ct, 4); xf = vr(VX + 16 * s + 4 * ks, 4)
                acc = vr(VACC + 16 * ct, 16)
                a, b = (xf, wf) if vpart else (wf, xf)
                M.append(f'v_mfma_f32_32x32x16_bf16 {acc}, {a}, {b}, {"0" if s == 0 and ks == 0 else acc}')
        gaps = [[] for _ in range(8)]
        tag = f'{"v" if vpart else "k"}{s}'
        pre = []
        dm = []
        def add(l): dm.extend([(l[0], l[2])] + [(None, x) for x in l[3:]])
        if s <= 2: add(x_chunk(s + 4))
        if s == 3:
            for i in range(min(NE, 4)): add(wq_dma(i))
        if s == 4:
            for i in range(4, NE): add(wq_dma(i))
        n = {0: 8, 1: 8, 2: 8, 3: 4 + min(NE, 4), 4: NE}.get(s)
        for i, (m, l) in enumerate(dm):
            if m: (pre if i == 0 else gaps[i - 1]).append(m)
            gaps[i].append(l)
        if s < 6:
            wr = w_reads(s + 1)
            for i, (p, q) in enumerate(((0, 3), (3, 6), (6, 9), (9, 12), (12, 16))): gaps[i] += wr[p:q]
            if s <= 4: gaps[OPT['xg']] += [f's_waitcnt vmcnt({n})'] + x_reads(s + 2)
            gaps[7] += [f's_waitcnt lgkmcnt({4 if s == 4 and OPT["s6"] != 4 else 0})']
        if s == OPT['s6'] and (OPT['uw'] == 6 or OPT['cw'] == 6): gaps[6] += [f'v_mov_b32 v{V_T}, 6', f'ds_write_b32 v{V_OWN}, v{V_T}']
        if s == 5:
            gaps[7] += [f'v_add_u32 v31, 16, v{V_GRP}', f'ds_read_b32 v31, v31']
        if s == 6 and NE == 7:
            gaps[OPT['qa']] += ['s_waitcnt vmcnt(0)', f'v_mov_b32 v{V_T}, 7', f'ds_write_b32 v{V_OWN}, v{V_T}']
        e('\n'.join(pre))
        if OPT['gx'] & 1 or vpart == 2: M = ['s_nop 0'] * 8
        if OPT['gx'] & 2 or vpart == 2: gaps = [[x for x in g if 'tr_b16' not in x] for g in gaps]
        for i in range(8):
            e(M[i]); e('\n'.join(gaps[i]))
        stamp(14 + s)
if OPT['tskip']:
    sec('gt'); e('L_gemm_t:'); gemm1(2); e('s_branch L_gemm_done'); sec('mha')
else: SEC['gt'] = []
gemm1(False)
e('s_branch L_gemm_done\nL_gemm_v:')
gemm1(True)
e('L_gemm_done:')
stamp(3)
e(f"""s_add_u32 s{sS1}, s{sSt}, s{sS2}
s_add_u32 s{sXb}, s{sSt}, {4*KS}
s_add_u32 s{sCw}, s{sS1}, {4*KS}
s_cmp_eq_u32 s{S_C}, 7
s_waitcnt lgkmcnt(0)
s_cbranch_scc1 L_nokv
s_nop 4""")
for q, so in enumerate((sSt, sS1, sXb, sCw)):
    for i in range(4*q, 4*q+4):
        e(f'v_cvt_pk_bf16_f32 v{VPK + i}, v{VACC + 2*i}, v{VACC + 2*i + 1}')
    e(f'buffer_store_dwordx4 {vr(VPK+4*q,4)}, v{vSt}, {sr(SRD_WS)}, s{so} offen sc1')
if OPT['ones']:
    e(f'''s_branch L_kvst
    L_nokv:
    v_mov_b64 v[128:129], s[78:79]
    v_mov_b64 v[130:131], s[78:79]
    v_lshlrev_b32 v132, 4, v{V_LANE}
    s_lshl2_add_u32 s{sTmp}, s{S_TILE}, s{S_W}
    s_lshl_b32 s{sTmp}, s{sTmp}, 8
    s_mul_i32 s{sTmp2}, s{S_HG}, {QS}
    s_add_u32 s{sTmp}, s{sTmp}, s{sTmp2}
    s_add_u32 s{sTmp}, s{sTmp}, {WS_V + 112*QS}
    s_mov_b64 exec, 0xffff
    buffer_store_dwordx4 v[128:131], v132, {sr(SRD_WS)}, s{sTmp} offen sc1
    s_mov_b64 exec, -1
    L_kvst:''')
else: e('L_nokv:')
assert OPT['wgf'] and OPT['ones'] and OPT['pf'] == 2
def kv_loads(buf, i, srdn=SRD_C):
    return [f'buffer_load_dwordx4 {vr(VK + 8*buf, 4)}, v{vKo0}, {sr(srdn)}, s{sK} offen offset:{512*i} sc1',
            f'buffer_load_dwordx4 {vr(VK + 8*buf + 4, 4)}, v{vKo1}, {sr(srdn)}, s{sK} offen offset:{512*i} sc1',
            f'buffer_load_dwordx4 {vr(VV + 8*buf, 4)}, v{vVo}, {sr(srdn)}, s{sV} offen offset:{256*i} sc1',
            f'buffer_load_dwordx4 {vr(VV + 8*buf + 4, 4)}, v{vVo}, {sr(srdn)}, s{sV} offen offset:{256*i + 128} sc1']
fill = [f'v_mov_b64 {vr(VV+2*i,2)}, s[78:79]' for i in range(12, 16)] + [f'v_subrev_u32 v{vRr}, {L_X - L_RB}, v{vQw}', 's_mov_b64 s[80:81], -1']
for s in range(3):
    fill += f"""s_add_u32 s{sTmp}, s{S_W}, {1+s}
    s_and_b32 s{sTmp}, s{sTmp}, 3
    s_sub_u32 s{sTmp}, s{sTmp}, s{S_W}
    s_mul_i32 s{sTmp}, s{sTmp}, 12288
    v_add_u32 v{vQx[s]}, s{sTmp}, v{vQw}
    v_subrev_u32 v{vRb[s]}, {L_X - L_RB - 4096*s}, v{vQx[s]}""".split('\n')
def count_in(n):
    e(f"""v_mov_b32 v{V_T}, 1
    v_mov_b32 v31, 0
    s_waitcnt vmcnt({n})
    s_mov_b64 exec, 1
    ds_add_rtn_u32 v{vSt}, v31, v{V_T} offset:32
    s_mov_b64 exec, -1""")
def count_out(n):
    e(f's_waitcnt lgkmcnt({n})\nv_readfirstlane_b32 s{sTmp2}, v{vSt}\ns_cmp_lg_u32 s{sTmp2}, 3\ns_cbranch_scc1 L_nopub')
    publish(sFl, 31)
    e('L_nopub:'); stamp(5)
NM = max(NE, OPT['wq_mid'])
for st in range(NE, NM): e('\n'.join(wq_dma(st)))
stamp(4)
e(f'v_cmp_gt_u32 vcc, 1, v31\ns_cbranch_vccz L_eok\nv_add_u32 v31, 16, v{V_GRP}')
lwait(1, addr=31)
e('L_eok:')
if NE < 7:
    e('\n'.join(fill)); fill = []
    count_in(NM - NE)
    if NM == 7:
        e('s_waitcnt vmcnt(0)'); arrive(7); count_out(1)
    else:
        count_out(0)
        for st in range(NM, 7): e('\n'.join(wq_dma(st)))
        e('s_waitcnt vmcnt(0)'); arrive(7)
lwait(7)
stamp(6)
QB = [80, 84, 88, 92, 112, 116, 120, 124]
def q_reads(k):
    s, ks = divmod(k, 4)
    return [f'ds_read_b64_tr_b16 {vr(QB[k%8] + 2*hf, 2)}, v{vQr} offset:{ks*12288 + s*1024 + hf*256}' for hf in range(2)]
for k in range(6): e('\n'.join(q_reads(k)))
e('\n'.join(fill[:12])); fill = fill[12:]
zi = 0
PK = OPT['pubk'] if NE == 7 else -99
for k in range(28):
    extra = 1 if PK < k <= PK + 5 else 0
    e(f's_waitcnt lgkmcnt({min(10, 2*(27-k)) + extra})')
    e(f'v_mfma_f32_32x32x16_bf16 {vr(VACC,16)}, {vr(QB[k%8], 4)}, {vr(VX + 4*k, 4)}, {"0" if k == 0 else vr(VACC,16)}')
    if k + 6 < 28: e('\n'.join(q_reads(k + 6)))
    while zi < 40 and VX + 2*zi + 1 < VX + 4*k - 4 and zi < 2*k:
        e(f'v_mov_b64 {vr(VX + 2*zi, 2)}, 0'); zi += 1
    if k >= 22 or k < 2:
        e('\n'.join(fill[:4])); fill = fill[4:]
    if k == PK: count_in(0)
    if k == PK + OPT['wgf']: count_out(2*OPT['wgf'])
    if k == OPT['pollk']: e(f'buffer_load_dword v31, v{vFl}, {sr(SRD_WS)}, 0 offen sc1')
    if k == OPT['chkk']:
        e(f's_waitcnt vmcnt(0)\nv_cmp_ne_u32 vcc, s{S_NONCE}, v31\ns_mov_b64 s[80:81], vcc\ns_cbranch_vccnz L_kv_late')
        for t in range(2): e('\n'.join(kv_loads(t, t)))
        e('L_kv_late:')
assert zi == 40 and VX == VS + 48 and not fill
stamp(7)
e('s_nop 11')
for r in range(16):
    m = vA if r < 4 else (vB if r >= 12 else vC)
    e(f'v_mul_f32 v{VACC + r}, v{m}, v{VACC + r}')
for i in range(8):
    e(f'v_cvt_pk_bf16_f32 v{VQ + 24 + i}, v{VACC + 2*i}, v{VACC + 2*i + 1}')
e(f"""ds_write_b128 v{vQw}, {vr(VQ+24,4)}
ds_write_b128 v{vQw}, {vr(VQ+28,4)} offset:1024""")
arrive(8)
lwait(8)
for s in range(3):
    e(f'ds_read_b128 {vr(VQ+8*s,4)}, v{vQx[s]}\nds_read_b128 {vr(VQ+8*s+4,4)}, v{vQx[s]} offset:1024')
PF = OPT['pf']
if OPT['chkk'] < 28: e('s_cmp_eq_u64 s[80:81], 0\ns_cbranch_scc1 L_kv_done')
poll(vFl, first_issued=OPT['pollk'] < 28 and OPT['chkk'] > 27, reg=31, sleep=OPT['ksleep'])
for t in range(PF): e('\n'.join(kv_loads(t, t)))
e('L_kv_done:')
stamp(8)
OM = OPT['omode']
if OM:
    e(f'''s_lshr_b32 s{sTmp}, s{S_O0}, 3
    s_add_u32 s{sTmp2}, s{S_O0}, 3
    s_lshr_b32 s{sTmp2}, s{sTmp2}, 3
    s_sub_u32 s{sTmp2}, s{sTmp2}, s{sTmp}
    s_lshl_b32 s{sTmp2}, s{sTmp2}, 6
    s_lshl_b32 s{sTmp}, s{sTmp}, 6
    s_lshl2_add_u32 s{sSt}, s{S_TILE}, s{S_W}
    s_add_u32 s{sTmp}, s{sTmp}, s{sSt}
    s_lshl_b32 s{sTmp}, s{sTmp}, {FSH}
    s_add_u32 s{sTmp}, s{sTmp}, {F_Y}
    v_and_b32 v{vFl}, 1, v{V_LANE}
    v_mul_u32_u24 v{vFl}, s{sTmp2}, v{vFl}
    v_and_b32 v31, 2, v{V_LANE}
    v_lshl_add_u32 v{vFl}, v31, 8, v{vFl}
    v_lshl_add_u32 v{vFl}, v{vFl}, {FSH}, s{sTmp}''')
def qk(buf, slot, js):
    d = vr(VS + 16*slot, 16)
    return f'v_mfma_f32_32x32x16_bf16 {d}, {vr(VK + 8*buf + 4*js, 4)}, {vr(VQ + 8*slot + 4*js, 4)}, {"0" if js == 0 else d}'
def pv(buf, slot, js):
    return f'v_smfmac_f32_32x32x32_bf16 {vr(VO + 16*slot, 16)}, {vr(VV + 8*buf + 4*js, 4)}, {vr(VS + 16*slot + 8*js, 8)}, v{vIdx}'
def exps(s): return [f'v_exp_f32 v{VS + 16*s + r}, v{VS + 16*s + r}' for r in range(16)]
SPREAD = []
def unit(t, s):
    ex = exps(s)
    if OPT['ax'] & 16 and s in (0, 1, 2):
        pass
    nb = t if s < 3 else (t + 1) & 3
    pb = t if s > 0 else (t - 1) & 3
    if s == 3: e(f's_waitcnt vmcnt({4*PF-4})')
    e(qk(nb, (s+1) & 3, 0)); e('\n'.join(ex[0:4]))
    e(qk(nb, (s+1) & 3, 1)); e('\n'.join(ex[4:8]))
    e(pv(pb, (s-1) & 3, 0))
    if s == 1:
        kl = kv_loads((t + PF) & 3, t + PF)
        if OPT['ax'] & 1: kl = [x for x in kl if 'exec' not in x]
        if OPT['ax'] & 2: kl = [x for x in kl if 'buffer' not in x]
        if OPT['ax'] & 4: kl = [x.replace(' sc1', '') for x in kl]
        if OPT['ax'] & 8: SPREAD.extend(kl); kl = []
        e('\n'.join(kl))
        if t == 3 - PF:
            e(f's_cmp_eq_u32 s{sIt}, 3\ns_cselect_b32 s{SRD_C+2}, 0, s{SRD_C+2}')
        if t == 3:
            e(f's_add_u32 s{sK}, s{sK}, 2048\ns_add_u32 s{sV}, s{sV}, 1024\ns_add_u32 s{sIt}, s{sIt}, 1\ns_cmp_lg_u32 s{sIt}, 4')
    e('\n'.join(ex[8:12]))
    e(pv(pb, (s-1) & 3, 1)); e('\n'.join(ex[12:16]))
e(f's_mov_b32 s{sIt}, 0\ns_waitcnt vmcnt({4*PF - 4}) lgkmcnt(0)')
stamp(9)
e(qk(0, 0, 0)); e(qk(0, 0, 1))
e(f"s_setprio {OPT['pa']}\ns_nop 8\ns_branch L_att_in" if OPT['prio'] else 's_nop 9\ns_branch L_att_in')
e('L_att:')
unit(3, 2); unit(3, 3)
e('L_att_in:')
for t in range(4):
    for s in range(4):
        if (t, s) < (3, 2): unit(t, s)
e('s_cbranch_scc1 L_att')
if OPT['prio']: e(f"s_setprio {OPT['pm']}")
if OM: e(f'buffer_load_dword v31, v{vFl}, {sr(SRD_WS)}, 0 offen sc1')
def rbw(s): return [f'ds_write_b128 v{vRb[s]}, {vr(VO + 16*s + 4*i, 4)} offset:{1024*i}' for i in range(4)]
ex = exps(2); w0 = rbw(0)
e(qk(3, 3, 0)); e('\n'.join(ex[0:4])); e(qk(3, 3, 1)); e('\n'.join(ex[4:7] + [w0[0]]))
e(pv(3, 1, 0)); e('\n'.join(ex[7:10] + [w0[1]])); e(pv(3, 1, 1)); e('\n'.join(ex[10:13] + [w0[2]] + ex[13:16] + [w0[3]]))
ex = exps(3); w1 = rbw(1); w2 = rbw(2)
e(pv(3, 2, 0)); e('\n'.join(ex[0:3])); e(pv(3, 2, 1))
e('\n'.join([w1[0]] + ex[3:5] + [w1[1]] + ex[5:7] + [w1[2]] + ex[7:9] + [w1[3]] + ex[9:10]))
e(pv(3, 3, 0))
e('\n'.join([w2[0]] + ex[10:12] + [w2[1]] + ex[12:14] + [w2[2]] + ex[14:16] + [w2[3]]))
arrive(9)
e(pv(3, 3, 1))
stamp(10)
lwait(9)
for i in range(12): e(f'ds_read_b128 {vr(VS + 4*i, 4)}, v{vRr} offset:{1024*i}')
OA = VO + 48
for s in range(3):
    e(f's_waitcnt lgkmcnt({8 - 4*s})')
    for i in range(8): e(f'v_pk_add_f32 {vr(OA+2*i,2)}, {vr(OA+2*i,2)}, {vr(VS+16*s+2*i,2)}')
e(f's_mov_b32 s{sIt}, {1 if OPT["force_fb"] else 0}')
e(f'''L_norm:
v_cndmask_b32 v{vA}, v{OA+12}, v{OA}, s[{sOdd}:{sOdd+1}]
v_max3_f32 v{vC}, abs(v{OA}), abs(v{OA+1}), abs(v{OA+2})
v_mov_b32 v{vB}, v{vA}
v_max3_f32 v{vC}, abs(v{OA+3}), abs(v{OA+4}), v{vC}
v_max3_f32 v{vC}, abs(v{OA+5}), abs(v{OA+6}), v{vC}
v_permlane32_swap_b32 v{vA}, v{vB}
v_max3_f32 v{vC}, abs(v{OA+7}), abs(v{OA+8}), v{vC}
v_cndmask_b32 v{vB}, v{vB}, v{vA}, s[{sOdd}:{sOdd+1}]
v_max3_f32 v{vC}, abs(v{OA+9}), abs(v{OA+10}), v{vC}
v_rcp_f32 v{vA}, v{vB}
v_max3_f32 v{vC}, abs(v{OA+11}), abs(v{OA+12}), v{vC}
v_max3_f32 v{vC}, abs(v{OA+13}), abs(v{OA+14}), v{vC}
v_max_f32 v{vC}, abs(v{OA+15}), v{vC}
v_cmp_nle_f32 vcc, 0x30800000, v{vB}
s_mov_b64 s[78:79], vcc
v_cmp_nge_f32 vcc, 0x4e800000, v{vB}
s_or_b64 s[78:79], s[78:79], vcc
v_cmp_ngt_f32 vcc, 0x7f000000, v{vC}
s_or_b64 vcc, s[78:79], vcc''')
if OPT['force_fb']:
    e(f's_cmp_eq_u32 s{sIt}, 1\ns_cbranch_scc1 L_fb')
e('s_cbranch_vccnz L_fb0\nL_norm2:')
for i in range(8): e(f'v_pk_mul_f32 {vr(OA+2*i,2)}, {vr(OA+2*i,2)}, {vr(vA,2)} op_sel_hi:[1,0]')
for i in range(8): e(f'v_cvt_pk_bf16_f32 v{VS+i}, v{OA+2*i}, v{OA+2*i+1}')
if OM: poll(vFl, first_issued=2, reg=31)
o_stores(VS, VS + 4, '')
stamp(11)
if OM == 4: publish(sFo, vA)
if OPT['obar'] == 1: e('s_barrier')
if OPT['obar'] >= 3: e(f"s_waitcnt vmcnt({5 - OPT['obar'] + (OM == 4)})\ns_barrier")
if OM == 0:
    e('s_waitcnt vmcnt(0)'); publish(sFo, vA)
if OPT['obar'] == 2: e('s_barrier')
stamp(12)
prof_out()
e('s_endpgm')

for tag, st in SPIN:
    e(f'L_ws_{tag}:'); lwait(st); e(f's_branch L_wb_{tag}')
sec('fb')
e(f'''L_fb0:
s_cmp_eq_u32 s{sIt}, 2
s_cbranch_scc1 L_norm2
L_fb:
s_waitcnt vmcnt(0)
s_mul_i32 s{sTmp}, s{S_O0}, {KS}
s_add_u32 s{sK}, s{sTmp}, {WS_K}
s_add_u32 s{sV}, s{sTmp}, {WS_V}
v_mov_b32 v{vC}, 0xff800000
s_mov_b32 s{sIt}, 0
L_fb1:''')
e('\n'.join(kv_loads(0, 0, SRD_WS)[:2]))
e('s_waitcnt vmcnt(0)')
e(qk(0, 3, 0)); e(qk(0, 3, 1)); e('s_nop 11')
for i in range(8): e(f'v_max3_f32 v{vC}, v{VS+48+2*i}, v{VS+49+2*i}, v{vC}')
e(f'''s_add_u32 s{sK}, s{sK}, 512
s_add_u32 s{sIt}, s{sIt}, 1
s_cmp_lg_u32 s{sIt}, 64
s_cbranch_scc1 L_fb1
v_mov_b32 v{vA}, v{vC}
s_sub_u32 s{sK}, s{sK}, 0x8000
s_mov_b32 s{sIt}, 0
v_permlane32_swap_b32 v{vA}, v{vC}
v_max_f32 v{vC}, v{vA}, v{vC}''')
for i in range(8): e(f'v_mov_b64 {vr(OA+2*i,2)}, 0')
e('L_fb2:')
e('\n'.join(kv_loads(0, 0, SRD_WS)))
e('s_waitcnt vmcnt(0)')
e(qk(0, 3, 0)); e(qk(0, 3, 1)); e('s_nop 11')
for i in range(16): e(f'v_sub_f32 v{VS+48+i}, v{VS+48+i}, v{vC}')
for i in range(16): e(f'v_exp_f32 v{VS+48+i}, v{VS+48+i}')
e('s_nop 1')
e(pv(0, 3, 0)); e(pv(0, 3, 1))
e(f'''s_add_u32 s{sK}, s{sK}, 512
s_add_u32 s{sV}, s{sV}, 256
s_add_u32 s{sIt}, s{sIt}, 1
s_cmp_lg_u32 s{sIt}, 64
s_cbranch_scc1 L_fb2
s_mov_b32 s{sIt}, 2
s_nop 11
s_branch L_norm''')

sD0, sD, sHw, sDs, sTab, sA, sB, sLd, sSk, sIt2, sFlU, sInv, sUns, sSel, sUl, sOl, sCh0 = range(60, 77)
sUs, sOut, sHm = 78, 80, 82
sE2, sP, sE3, sKd = 84, 85, 86, 87
OUTM = 'sc1' if OPT['outsc'] & 1 else ''
OUTM2 = 'sc1' if OPT['outsc'] & 2 else ''
a0, a1, a2, a3 = 5, 6, 7, 9
vPar = 10
vKc = 18
vRa, vRb_, vKd, vKd1, vKa, vKa0, vFu, vE1, vE1b, vFr, vKxo, vKxp, vPair, vRz, vBk, vA0, vA1, vKb, vSB, vSB0 = range(20, 40)
vSel = 180
vAc = 40
vOne, vScl, vAdd, vC0 = range(56, 60)
vOp = 64
vY = 128
vXt = 144
vAn = 166
vX1 = 172
T0, T1 = 160, 176
vZ = 192
U = 204
vZer = 220
vUa, vCd, vG_, vZp, vKp, vF_, vL16, vXo, vXp, vTr, vYl, vYs, vFy = range(224, 237)
vWoD = 238
vWoR = 240
vOl, vFo, vBw, vBr, vOut = range(242, 247)
def hi():
    if OPT['prio']: e('s_setprio 3')
KG = [True]
def lo():
    if OPT['prio']: e(f"s_setprio {OPT['kgp'] if KG[0] else OPT['ps']}")
ROLE[0] = 1
sec('ssm0')
e(f"""s_cmp_{'eq' if OPT['only'] != 2 else 'le'}_u32 s{S_C}, 7
s_cbranch_scc1 L_ssm_idle
s_lshr_b32 s{sDs}, s{S_W}, 1
s_lshl_b32 s{sD0}, s{S_C}, 6
s_lshl1_add_u32 s{sD0}, s{S_J}, s{sD0}
s_add_u32 s{sD}, s{sD0}, s{sDs}
s_mul_i32 s{sTab}, s{S_W}, {TABSZ}
s_add_u32 s{sTab}, s{sTab}, {L_TAB}
s_lshl1_add_u32 s{sA}, s{sD0}, s{S_W}
s_lshl_b32 s{sA}, s{sA}, 8
v_lshl_add_u32 v{a0}, v{V_LANE}, 2, s{sA}
s_mov_b32 m0, s{sTab}
s_lshl_b32 s{sB}, s{sD0}, 1
s_waitcnt lgkmcnt(0)
s_load_dword s{sLd}, s[14:15], s{sB}
s_load_dword s{S_NONCE}, s[28:29], 0
s_load_dword s{sSk}, s[16:17], s{sB}
global_load_dword v{vPar+0}, v{a0}, s[6:7]
global_load_dword v{vPar+1}, v{a0}, s[8:9]
global_load_dword v{vPar+2}, v{a0}, s[10:11]
global_load_dword v{vPar+3}, v{a0}, s[12:13]""")
if OPT['tlb'] != 2: e('s_barrier')
if OPT['tlb']:
    e(f'''v_and_b32 v{a0}, 7, v{V_LANE}
    v_min_u32 v{a0}, 5, v{a0}
    v_lshlrev_b32 v{a0}, 21, v{a0}
    v_add_u32 v{a0}, 0xf8000, v{a0}
    v_mov_b32 v{a1}, 0
    global_load_dword v8, v{a0}, s[28:29]
    global_load_dword v8, v{a1}, s[22:23]''')
if OPT['tlb'] == 2: e('s_barrier')
e('s_branch L_ssm')
sec('ssm')
e('L_ssm:')
if OPT['abl'] == 1:
    arrive(1); e('s_waitcnt vmcnt(0) lgkmcnt(0)\ns_endpgm')
lo()
srd(SRD_WS, 28, WS_SIZE)
e(f"""s_and_b32 s{sHw}, s{S_W}, 1
v_add_u32 v{V_GRP}, 16, v{V_GRP}
v_and_b32 v{a0}, 15, v{V_LANE}
v_lshrrev_b32 v{a1}, 4, v{V_LANE}
v_lshl_add_u32 v{vRb_}, v{a1}, 4, s{sTab}
v_mul_u32_u24 v{a2}, {TROW}, v{a0}
v_add_u32 v{vRa}, v{a2}, v{vRb_}
v_lshlrev_b32 v{vL16}, 4, v{V_LANE}
v_mov_b32 v{vOne}, 0x3c00
ds_write_addtid_b32 v{vOne}""")
for i in range(8): e(f'v_mov_b64 {vr(vAc+2*i,2)}, 0')
mid = f"""v_and_b32 v{a0}, 7, v{V_LANE}
s_lshl_b32 s{sB}, s{S_W}, {3 + FSH}
s_add_u32 s{sB}, s{sB}, {F_U}
v_lshl_add_u32 v{vFu}, v{a0}, {FSH}, s{sB}
s_mul_i32 s{sP}, s{sDs}, {P_SZ}
s_add_u32 s{sP}, s{sP}, {L_TAB}
s_add_u32 s{sKd}, s{sP}, {P_KD}
s_lshl_b32 s{sB}, s{sHw}, 8
s_add_u32 s{sInv}, s{sB}, s{sKd}
s_add_u32 s{sA}, s{sInv}, {1088 + 128}
v_lshl_add_u32 v{vRz}, v{a0}, 4, s{sA}
v_mov_b32 v{vKb}, s{sKd}
v_and_b32 v{a0}, 15, v{V_LANE}
v_lshrrev_b32 v{a1}, 4, v{V_LANE}
s_lshl_b32 s{sA}, s{sHw}, 4
v_add_u32 v{a0}, s{sA}, v{a0}
v_and_b32 v{a3}, 1, v{V_LANE}
v_mul_u32_u24 v{a2}, 255, v{a3}
v_sub_u32 v{a2}, v{a2}, v{a0}
s_add_u32 s{sA}, s{sKd}, {1088 + 32}
v_add_u32 v{vKa}, s{sA}, v{a2}
v_add_u32 v{vKa0}, 96, v{vKa}
s_lshl3_add_u32 s{sA}, s{sDs}, 16
v_lshl_add_u32 v{vPair}, v{a3}, 2, s{sA}
s_mul_i32 s{sA}, s{sHw}, {1088 + 112 - 1024}
s_add_u32 s{sA}, s{sA}, s{sKd}
s_add_u32 s{sA}, s{sA}, 1024
v_writelane_b32 v{vKa0}, s{sA}, 0
s_mul_i32 s{sA}, s{sHw}, 56
s_sub_u32 s{sA}, s{sKd}, s{sA}
s_add_u32 s{sA}, s{sA}, 1088
v_writelane_b32 v{vKa0}, s{sA}, 16
v_max_u32 v{a2}, 1, v{a1}
v_sub_u32 v{a2}, 5, v{a2}
v_lshlrev_b32 v{a0}, v{a2}, v{a0}
v_lshlrev_b32 v{a2}, 3, v{a1}
s_mov_b32 s{sA}, 0x60400100
v_bfe_u32 v{a1}, s{sA}, v{a2}, 8
v_lshl_add_u32 v{a0}, v{a1}, 3, v{a0}
v_add_u32 v{vKd}, s{sKd}, v{a0}
s_mov_b32 s{sA}, 0x80040404
v_bfe_u32 v{a1}, s{sA}, v{a2}, 8
v_add_u32 v{vKd1}, v{a1}, v{vKd}
v_lshrrev_b32 v{a1}, 1, v{V_LANE}
v_lshlrev_b32 v{vUa}, 6, v{a1}
v_lshl_add_u32 v{vUa}, v{a3}, 4, v{vUa}
s_lshr_b32 s{sA}, s{sD0}, 2
s_mul_i32 s{sA}, s{sA}, {QS}
s_and_b32 s{sB}, s{sD0}, 3
s_lshl4_add_u32 s{sA}, s{sB}, s{sA}
s_lshl_b32 s{sB}, s{S_W}, 12
s_add_u32 s{sA}, s{sA}, s{sB}
s_add_u32 s{sUl}, s{sA}, {WS_U}
v_and_b32 v{a1}, 3, v{a1}
v_lshl_add_u32 v{a1}, v{a3}, 2, v{a1}
v_mul_u32_u24 v{a1}, {PS}, v{a1}
v_lshrrev_b32 v{a2}, 3, v{V_LANE}
v_lshl_add_u32 v{a1}, v{a2}, 4, v{a1}
s_lshl_b32 s{sA}, s{S_W}, 8
s_add_u32 s{sA}, s{sA}, {L_KP + 512}
v_add_u32 v{vKp}, s{sA}, v{a1}
v_lshrrev_b32 v{a1}, 5, v{V_LANE}
s_lshl_b32 s{sA}, s{sHw}, 1
v_max_u32 v{a0}, s{sA}, v{a1}
v_min_u32 v{a2}, 1, v{a0}
v_mul_u32_u24 v{a2}, 0x0202, v{a2}
v_lshlrev_b32 v{a2}, 16, v{a2}
v_sub_u32 v{vSel}, 0x03020100, v{a2}
v_mul_u32_u24 v{a2}, 0x0202, v{a0}
v_lshl_or_b32 v{a2}, v{a2}, 16, v{a2}
v_sub_u32 v{vSel+1}, 0x07060504, v{a2}
s_mul_i32 s{sA}, s{sHw}, 0x02020202
v_add_u32 v{vSel+2}, s{sA}, v{vSel}
s_mul_i32 s{sA}, s{sHw}, 0x02020404
v_add_u32 v{vSel+3}, s{sA}, v{vSel+1}
v_lshrrev_b32 v{a2}, v{a0}, v{vL16}
s_movk_i32 s{sA}, 256
v_lshl_add_u32 v{a2}, s{sA}, v{a0}, v{a2}
s_sub_u32 s{sA}, s{sKd}, 256
v_add_u32 v{vE1}, s{sA}, v{a2}
v_lshlrev_b32 v{a2}, 2, v{a0}
v_sub_u32 v{vE1b}, v{vE1}, v{a2}
s_mov_b32 s{sA}, 0x0c0c0c0c
s_cmp_lg_u32 s{sHw}, 0
s_cselect_b32 s{sE2}, 0x01000100, s{sA}
s_cselect_b32 s{sE3}, 0x05040302, s{sA}
v_mov_b32 v{vSel+4}, s{sA}
v_mov_b32 v{vSel+5}, s{sA}
v_mov_b32 v{vSel+6}, s{sA}
v_mov_b32 v{vSel+7}, s{sA}
s_mov_b32 s{sA}, 0x05040504
s_mov_b64 exec, 15
v_mov_b32 v{vSel+4}, s{sA}
v_mov_b32 v{vSel+5}, s{sA}
v_mov_b32 v{vSel+6}, s{sA}
s_mov_b64 exec, -1
v_writelane_b32 v{vSel+7}, s{sA}, 3
s_mov_b32 s{sA}, 0x05040302
v_writelane_b32 v{vSel+4}, s{sA}, 3
s_mov_b32 s{sA}, 0x0c0c0504
v_writelane_b32 v{vSel+6}, s{sA}, 0
v_writelane_b32 v{vSel+7}, s{sA}, 2
s_mul_i32 s{sA}, s{S_W}, {2*PS}
s_add_u32 s{sA}, s{sA}, {L_KP}
v_mul_u32_u24 v{a2}, {PS - 512}, v{a1}
v_add3_u32 v{vG_}, v{a2}, v{vL16}, s{sA}
v_mov_b64 {vr(vZer,2)}, 0
v_mov_b64 {vr(vZer+2,2)}, 0
ds_write_b128 v{vG_}, {vr(vZer,4)}
s_lshl_b32 s{sA}, s{sHw}, 10
s_add_u32 s{sB}, s{sP}, {P_UC}
s_add_u32 s{sA}, s{sA}, s{sB}
s_add_u32 s{sA}, s{sA}, 64
v_add_u32 v{vCd}, s{sA}, v{vL16}
v_and_b32 v{a3}, 3, v{V_LANE}
v_and_b32 v{a0}, 0x1c, v{V_LANE}
v_lshlrev_b32 v{a2}, 2, v{a0}
v_and_b32 v{vZp}, 0x30, v{a2}
s_mov_b32 exec_hi, 0
v_add_u32 v{vZp}, 2112, v{a2}
s_mov_b64 exec, -1
v_mul_u32_u24 v{a2}, {UC_S}, v{a3}
v_add3_u32 v{vZp}, v{vZp}, v{a2}, s{sB}
v_lshlrev_b32 v{a0}, 1, v{a0}
v_sub_u32 v{a0}, v{a0}, v{a2}
v_lshlrev_b32 v{a1}, 4, v{a1}
v_sub_u32 v{a0}, v{a0}, v{a1}
s_lshl_b32 s{sA}, s{sHw}, 5
s_sub_u32 s{sB}, s{sB}, s{sA}
s_add_u32 s{sB}, s{sB}, {56 + 3*UC_S}
v_add_u32 v{vF_}, s{sB}, v{a0}
v_add_u32 v{vG_}, {512 - 80}, v{vG_}
v_add_u32 v{vKxo}, s{sTab}, v{vL16}
s_xor_b32 s{sA}, s{S_W}, 1
s_mul_i32 s{sA}, s{sA}, {TABSZ}
s_add_u32 s{sA}, s{sA}, {L_TAB}
v_add_u32 v{vKxp}, s{sA}, v{vL16}
v_and_b32 v{a0}, 31, v{V_LANE}
v_lshlrev_b32 v{a2}, 2, v{a0}
v_sub_u32 v{a2}, v{a1}, v{a2}
s_add_u32 s{sA}, s{sInv}, {1088 + 124}
v_add_u32 v{vBk}, s{sA}, v{a2}
"""
e(mid)
stamp(22)
e(f's_waitcnt lgkmcnt(0)\ns_add_u32 s{S_NONCE}, s{S_NONCE}, 1')
arrive(1)
e(f"""s_lshl_b32 s{sA}, s{sDs}, 4
s_lshr_b32 s{sLd}, s{sLd}, s{sA}
s_lshl_b32 s{sLd}, s{sLd}, 16
s_lshr_b32 s{sSk}, s{sSk}, s{sA}
s_lshl_b32 s{sSk}, s{sSk}, 16
v_mov_b32 v{a0}, s{sLd}
v_mul_f32 v{a0}, 0x3fb8aa3b, v{a0}
v_exp_f32 v{a0}, v{a0}
s_cmp_eq_u32 s{sHw}, 0
s_cselect_b32 s{sSk}, s{sSk}, 0
v_cvt_pk_bf16_f32 v{a0}, v{a0}, v{a0}
v_and_b32 v{vScl}, 0xffff0000, v{a0}
v_mul_f32 v{vKc}, 0xbfb8aa3b, v{vScl}
v_mul_f32 v{vKc+1}, 0.15915494, v{vScl}
v_mov_b32 v{vAdd}, 0
v_add_f32 v{vScl}, v{vScl}, v{vScl}
v_writelane_b32 v{vAdd}, s{sSk}, 0
s_mov_b32 s{sIt2}, 0
s_mov_b32 s{sSel}, 0x01000c0c""")
stamp(0)
e(f"""s_waitcnt vmcnt({2 if OPT['tlb'] else 0})
v_and_b32 v{a0}, 0x7f807f80, v{vPar+2}
v_and_b32 v{a1}, 0x7f807f80, v{vPar+3}
v_pk_max_u16 v{a0}, v{a0}, v{a1}
v_lshlrev_b32 v{a1}, 16, v{a0}
v_max_u32 v{a0}, v{a0}, v{a1}""")
for q, n in enumerate((1, 2, 4, 8)):
    e(f's_nop 1\nv_max_u32_dpp v{a0}, v{a0}, v{a0} row_ror:{n} row_mask:0xf bank_mask:0xf')
e(f"""s_nop 0
v_readlane_b32 s{sA}, v{a0}, 0
v_readlane_b32 s{sB}, v{a0}, 16
v_readlane_b32 s{sInv}, v{a0}, 32
v_readlane_b32 s{sUns}, v{a0}, 48
s_max_u32 s{sA}, s{sA}, s{sB}
s_max_u32 s{sUns}, s{sUns}, s{sInv}
s_max_u32 s{sUns}, s{sUns}, s{sA}
s_and_b32 s{sUns}, s{sUns}, 0x7f800000
s_min_u32 s{sUns}, s{sUns}, 0x7e800000
s_sub_u32 s{sInv}, 0x7f000000, s{sUns}
v_mul_f32 v{vScl}, s{sUns}, v{vScl}
v_mul_f32 v{vSB}, 0x43000000, v{vScl}
v_mov_b32 v{vSB0}, v{vSB}
s_mov_b64 exec, 1
v_mov_b32 v{vSB0}, v{vScl}
s_mov_b64 exec, -1""")
stamp(1)
if OPT['abl'] == 2: e('s_endpgm')
def cm(jobs, conj):
    ng = 'neg_hi:[1,0,0]' if conj else 'neg_lo:[1,0,0]'
    return [f'v_pk_mul_f16 v{d}, v{x}, v{w} op_sel_hi:[1,0]' for d, x, w in jobs] + \
           [f'v_pk_fma_f16 v{d}, v{x}, v{w}, v{d} op_sel:[1,1,0] op_sel_hi:[0,1,1] {ng}' for d, x, w in jobs]
def wr(reg): return f'ds_write_addtid_b32 v{reg} offset:{TROW*(reg - vY)}'
assert vXt == vY + 16
zA, zB, tA, tB, pA, pB = vZ, vZ+2, vZ+4, vZ+6, vZ+8, vZ+10
X = vXt; Y = vY
an = {1: vAn, 2: vAn+1, 4: vAn+2, 8: Y+1, 16: Y+2, 32: Y+4, 64: Y+8, 128: X+21, 256: vAn+3, 512: vAn+4, 1024: vAn+5}
e('L_kg:')
stamp(14)
seq = f"""v_perm_b32 v{pA}, v{vPar}, v{vPar}, s{sSel}
v_mul_f32 v{pA}, 0x3fb8aa3b, v{pA}
v_exp_f32 v{pA}, v{pA}
v_perm_b32 v{pA+1}, v{vPar+1}, v{vPar+1}, s{sSel}
v_perm_b32 v{tA}, v{vPar+2}, v{vPar+2}, s{sSel}
v_perm_b32 v{tA+1}, v{vPar+3}, v{vPar+3}, s{sSel}
v_cvt_pk_bf16_f32 v{pA}, v{pA}, v{pA}
v_mul_f32 v{tA}, s{sInv}, v{tA}
v_and_b32 v{pA}, 0xffff0000, v{pA}
v_mul_f32 v{tA+1}, s{sInv}, v{tA+1}
v_pk_mul_f32 {vr(pA,2)}, {vr(pA,2)}, {vr(vKc,2)}
v_cvt_pk_f16_f32 v{X}, v{tA}, -v{tA+1}
v_mul_f32 v{pB}, 0x42800000, v{pA}
v_mul_f32 v{pB+1}, 0x42800000, v{pA+1}
v_exp_f32 v{pA}, v{pA}
v_fract_f32 v{pA+1}, v{pA+1}
v_exp_f32 v{pB}, v{pB}
v_fract_f32 v{pB+1}, v{pB+1}
v_cos_f32 v{zA}, v{pA+1}
v_sin_f32 v{zA+1}, v{pA+1}
v_cos_f32 v{zB}, v{pB+1}
v_sin_f32 v{zB+1}, v{pB+1}
v_pk_mul_f32 {vr(zA,2)}, {vr(zA,2)}, {vr(pA,2)} op_sel_hi:[1,0]
v_pk_mul_f32 {vr(zB,2)}, {vr(zB,2)}, {vr(pB,2)} op_sel_hi:[1,0]""".split('\n')
for st in range(6):
    chains = [(zA, tA, an[1 << st], st < 5)] + ([(zB, tB, an[64 << st], st < 4)] if st < 5 else [])
    for z, t, d, sq in chains:
        if sq: seq.append(f'v_pk_mul_f32 {vr(t,2)}, {vr(z,2)}, {vr(z,2)} op_sel_hi:[0,1]')
    for z, t, d, sq in chains: seq.append(f'v_cvt_pk_f16_f32 v{d}, v{z}, v{z+1}')
    for z, t, d, sq in chains:
        if sq: seq.append(f'v_pk_fma_f32 {vr(z,2)}, {vr(z,2)}, {vr(z,2)}, {vr(t,2)} op_sel:[1,1,0] op_sel_hi:[0,1,1] neg_lo:[1,0,0]')
seq += cm([(X+1, X, an[1]), (X+2, X, an[2]), (X+4, X, an[4]), (X+8, X, an[256]), (X+12, X, an[512]), (X+16, X, an[1024])], True)
seq += cm([(Y+3, Y+1, Y+2), (Y+12, Y+4, Y+8), (Y+5, Y+4, Y+1), (Y+6, Y+4, Y+2), (Y+9, Y+8, Y+1), (Y+10, Y+8, Y+2)], False)
seq += cm([(X+3, X+1, an[2]), (X+5, X+1, an[4]), (X+6, X+2, an[4]), (X+9, X+2, an[256]), (X+10, X+4, an[256]), (X+13, X+4, an[512]),
           (X+14, X+8, an[512]), (X+17, X+8, an[1024]), (X+18, X+12, an[1024]), (X+20, X+16, an[1024])], True)
seq += cm([(Y+7, Y+4, Y+3), (Y+11, Y+8, Y+3), (Y+13, Y+12, Y+1), (Y+14, Y+12, Y+2), (Y+15, Y+12, Y+3)], False)
seq += cm([(X+7, X+3, an[4]), (X+11, X+6, an[256]), (X+15, X+10, an[512]), (X+19, X+14, an[1024])], True)
e('\n'.join(seq))
stamp(15)
if OPT['kgw']:
    e(f'v_subrev_u32 v{a0}, 16, v{V_GRP}'); lwait(OPT['kgw'], addr=a0)
hi()
if OPT['abl'] != 4: e('\n'.join(wr(r) for r in range(Y + 1, X + 22)))
for k in range(4):
    o = vOp + 16*k
    e(f"""ds_read_b128 {vr(o,4)}, v{vRa} offset:{64*k}
    ds_read_b128 {vr(o+4,4)}, v{vRb_} offset:{37*TROW + 64*k}
    ds_read_b128 {vr(o+8,4)}, v{vRa} offset:{16*TROW + 64*k}
    ds_read_b128 {vr(o+12,4)}, v{vRa} offset:{32*TROW + 64*k}""")
if not OPT['uw']: e(f's_cmp_eq_u32 s{sIt2}, 0\ns_cbranch_scc1 L_kg_n\nbuffer_load_dword v{vFr}, v{vFu}, {sr(SRD_WS)}, 0 offen sc1\nL_kg_n:')
stamp(16)
def mf(c, a, b): return f'v_mfma_f32_16x16x32_f16 {vr(c,4)}, {vr(a,4)}, {vr(b,4)}, {vr(c,4)}'
late_m = []
for k in range(4):
    o = vOp + 16*k; y1 = vX1 + 4*(k & 1)
    p = cm([(y1+r, o+r, o+4+r) for r in range(4)], False)
    e(f's_waitcnt lgkmcnt({12 - 4*k})')
    e('\n'.join([mf(vAc, o+8, o)] + p[0:2] + late_m[:1] + p[2:4] + [mf(vAc+4, o+12, o)] + p[4:6] + late_m[1:] + p[6:8]))
    late_m = [mf(vAc+8, o+8, y1), mf(vAc+12, o+12, y1)]
e(f"""s_add_u32 s{sSel}, s{sSel}, 0x02020000
s_add_u32 s{sIt2}, s{sIt2}, 1
s_cmp_lg_u32 s{sIt2}, 2""")
e('\n'.join(late_m))
lo()
e('s_cbranch_scc1 L_kg')
stamp(17)
if OPT['abl'] in (4, 8): e('s_endpgm')
def scl(i): return vSB0 if i == 4 else (vSB if i & 4 else vScl)
for i in range(8): e(f'v_mul_f32 v{vAc+i}, v{scl(i)}, v{vAc+i}')
e(f's_cmp_eq_u32 s{sHw}, 0')
for i in range(8, 16): e(f'v_mul_f32 v{vAc+i}, v{scl(i)}, v{vAc+i}')
e('s_cbranch_scc1 L_kx')
for i in range(8): e(f'v_swap_b32 v{vAc+i}, v{vAc+8+i}')
e(f"""L_kx:
ds_write_b128 v{vKxo}, {vr(vAc+8,4)}
s_mov_b32 exec_hi, 0
ds_write_b128 v{vKxo}, {vr(vAc+12,4)} offset:1024
s_mov_b64 exec, -1""")
arrive(2)
e(f'v_add_f32 v{vAc}, v{vAdd}, v{vAc}')
stamp(18)
def bprio():
    if OPT['prio']: e(f"s_setprio {OPT['bp']}")
def u_look():
    hi(); e(f'buffer_load_dword v{vFr}, v{vFu}, {sr(SRD_WS)}, 0 offen sc1'); bprio()
def u_fetch():
    hi()
    stamp(20)
    poll(vFu, first_issued=True, reg=vFr, sleep=OPT['usleep'])
    stamp(21)
    for k in range(2):
        e(f'buffer_load_dwordx4 {vr(U+4*k,4)}, v{vUa}, {sr(SRD_WS)}, s{sUl} offen offset:{2048*k} sc1')
    bprio()
if OPT['uw'] == -2: u_look()
else: bprio()
stamp(19)
lwait(2, addr=vPair)
e(f"""ds_read_b128 {vr(vAc+8,4)}, v{vKxp}
ds_read_b128 {vr(vAc+12,4)}, v{vKxp} offset:1024
ds_write_b128 v{vRz}, {vr(vZer,4)}
s_mov_b32 s{sIt2}, 4
s_waitcnt lgkmcnt(1)""")
for i in range(4): e(f'v_pk_add_f32 {vr(vAc+2*i,2)}, {vr(vAc+2*i,2)}, {vr(vAc+8+2*i,2)}')
for i in range(4): e(f'v_cvt_pk_bf16_f32 v{vAc+8+i}, v{vAc+2*i}, v{vAc+2*i+1}')
e(f"""ds_write_b32 v{vKd}, v{vAc+8}
ds_write_b32 v{vKd1}, v{vAc+9}
s_mov_b64 exec, 0x1ffff
ds_write_b16 v{vKa0}, v{vAc+10}
s_mov_b64 exec, 0xffff
ds_write_b16_d16_hi v{vKa}, v{vAc+10} offset:64
ds_write_b16 v{vKa}, v{vAc+11} offset:32
ds_write_b16_d16_hi v{vKa}, v{vAc+11}
s_mov_b64 exec, -1""")
arrive(3)
if OPT['uw'] == -1: u_look()
if OPT['uw'] == -2: u_fetch()
lwait(3, addr=vPair)
stamp(2)
E = 64; BF = 40
e(f"""ds_read2_b32 {vr(E,2)}, v{vE1} offset1:1
ds_read2_b32 {vr(E+2,2)}, v{vE1b} offset0:2 offset1:3
ds_read2_b32 {vr(E+4,2)}, v{vKb} offset0:191 offset1:192
ds_read_b32 v{E+6}, v{vKb} offset:1020
ds_read_b32 v{E+7}, v{vKb} offset:1024""")
for q in range(8): e(f'ds_read2_b32 {vr(BF+2*q,2)}, v{vBk} offset0:{8*(q>>1) + 2*(q&1)} offset1:{8*(q>>1) + 2*(q&1) + 1}')
b = E + 12; t = E + 16
e(f"""s_waitcnt lgkmcnt(10)
v_perm_b32 v{b+2}, v{E+2}, v{E+2}, v{vSel+2}
v_perm_b32 v{b+3}, v{E+3}, v{E+2}, v{vSel+3}
v_perm_b32 v{b-2}, v{E+5}, v{E+4}, s{sE2}
v_perm_b32 v{b-1}, v{E+5}, v{E+4}, s{sE3}
v_perm_b32 v{b}, v{E}, v{E}, v{vSel}
v_perm_b32 v{b+1}, v{E+1}, v{E}, v{vSel+1}
v_mov_b32_dpp v{b-2}, v{b+2} wave_shr:1 row_mask:0xf bank_mask:0xf
v_mov_b32_dpp v{b-1}, v{b+3} wave_shr:1 row_mask:0xf bank_mask:0xf
ds_write_b128 v{vCd}, {vr(b,4)}""")
for i in range(4): e(f'v_alignbit_b32 v{t+i}, v{b+i}, v{b+i-1}, 16')
e(f'ds_write_b128 v{vCd}, {vr(t,4)} offset:{UC_S}')
for i in range(4): e(f'v_mov_b32 v{t+4+i}, v{b+i-1}')
e(f'ds_write_b128 v{vCd}, {vr(t+4,4)} offset:{2*UC_S}')
for i in range(4): e(f'v_alignbit_b32 v{t+8+i}, v{b+i-1}, v{b+i-2}, 16')
e(f'ds_write_b128 v{vCd}, {vr(t+8,4)} offset:{3*UC_S}\ns_waitcnt lgkmcnt(12)')
for i in range(4): e(f'v_perm_b32 v{t+12+i}, v{E+7}, v{E+6}, v{vSel+4+i}')
e(f'ds_write_b128 v{vZp}, {vr(t+12,4)}')
if OPT['uw'] == -1: u_fetch()
stamp(3)
e(f'v_and_b32 v{a0}, 31, v{V_LANE}')
swap23(a1, a0, a2)
e(f"""v_lshrrev_b32 v{a2}, 5, v{V_LANE}
v_lshl_add_u32 v{a1}, v{a1}, 1, v{a2}
s_add_u32 s{sA}, s{sHw}, 123
v_add_u32 v{a1}, s{sA}, v{a1}
s_mul_i32 s{sA}, s{sDs}, {PD}
s_add_u32 s{sA}, s{sA}, {L_KP}
v_and_b32 v{a3}, 3, v{a1}
v_mul_u32_u24 v{a3}, {PS - 4}, v{a3}
v_lshl_add_u32 v{a3}, v{a1}, 2, v{a3}
v_add_u32 v{vA0}, s{sA}, v{a3}
v_add_u32 v{a1}, 2, v{a1}
v_and_b32 v{a3}, 3, v{a1}
v_mul_u32_u24 v{a3}, {PS - 4}, v{a3}
v_lshl_add_u32 v{a3}, v{a1}, 2, v{a3}
v_add_u32 v{vA1}, s{sA}, v{a3}
v_lshlrev_b32 v{a2}, 3, v{a2}
v_sub_u32 v{a2}, v{a2}, v{a0}
v_cvt_f32_i32 v{a2}, v{a2}
v_add_f32 v{a3}, -1.0, v{a2}
v_add_f32 v{a2}, -2.0, v{a2}
v_cvt_pk_f16_f32 v8, v{a3}, v{a2}
s_waitcnt vmcnt(1)
ds_write_b128 v{vKp}, {vr(U,4)}
s_waitcnt vmcnt(0)
ds_write_b128 v{vKp}, {vr(U+4,4)} offset:128""")
arrive(4)
AP, BD, DP = 112, 136, 192
band = [f's_mov_b32 s{sA}, 0x4a204a20', f's_cmp_eq_u32 s{sHw}, 0', f's_cselect_b32 s{sE2}, 0x4d104d10, s{sA}', f's_mov_b32 s{sE3}, 0x4d804d80']
for q in range(12):
    band.append(f'v_pk_fma_f16 v{BD+q}, v8, v8, s{sE2} neg_lo:[1,0,0] neg_hi:[1,0,0] clamp')
    if q < 11: band.append(f'v_pk_add_f16 v8, v8, s{sE3}' if q % 4 == 3 else 'v_pk_add_f16 v8, v8, -2.0 op_sel_hi:[1,0]')
e('\n'.join(band))
lwait(4)
KG[0] = False
lo()
stamp(4)
if OPT['abl'] == 16: e('s_endpgm')
CB = 64
def cv_reads(k):
    b = CB + 12 * (k & 3)
    return [f'ds_read_b64 {vr(b,2)}, v{vF_} offset:{64*k}', f'ds_read_b64 {vr(b+2,2)}, v{vF_} offset:{64*k + 8}',
            f'ds_read_b128 {vr(b+8,4)}, v{vG_} offset:{512 + 80 - 16*k}', f'ds_read_b128 {vr(b+4,4)}, v{vG_} offset:{80 - 16*k}']
for tau in range(2):
    for kp in range(3): e(f'ds_read_b128 {vr(AP + 12*tau + 4*kp, 4)}, v{(vA0, vA1)[kp & 1]} offset:{256*tau + 16*(kp >> 1)}')
e('\n'.join(cv_reads(0) + cv_reads(1)))
FOA = f'''s_lshr_b32 s{sA}, s{sOl}, 1
s_lshl_b32 s{sA}, s{sA}, {4 + FSH}
s_add_u32 s{sA}, s{sA}, {F_O}
v_lshl_add_u32 v{vFo}, v{a1}, {FSH}, s{sA}''' if not OM else f'''s_lshr_b32 s{sA}, s{sOl}, 1
s_lshl_b32 s{sB}, s{sHw}, 9
s_add_u32 s{sA}, s{sA}, s{sB}
s_lshl_b32 s{sA}, s{sA}, {FSH}
s_add_u32 s{sA}, s{sA}, {F_Y}
v_min_u32 v{vFo}, 6, v{a1}
v_lshl_add_u32 v{vFo}, v{vFo}, {6 + FSH}, s{sA}'''
late = f"""s_mov_b64 s[{SRD_B}:{SRD_B+1}], s[22:23]
s_mov_b32 s{SRD_B+2}, {448*896}
s_mov_b32 s{SRD_B+3}, 0x20000
s_mov_b64 s[{SRD_C}:{SRD_C+1}], s[24:25]
s_mov_b32 s{SRD_C+2}, {2048*1792}
s_mov_b32 s{SRD_C+3}, 0x20000
v_lshrrev_b32 v{a1}, 3, v{V_LANE}
v_and_b32 v{a2}, 7, v{V_LANE}
v_and_b32 v{a0}, 0x70, v{vL16}
v_mul_u32_u24 v{vYl}, {YS}, v{a1}
v_add_u32 v{vYl}, v{vYl}, v{a0}
v_lshlrev_b32 v{a3}, 2, v{V_LANE}
v_and_b32 v{a3}, 64, v{a3}
v_xor_b32 v{a0}, v{a0}, v{a3}
v_mul_u32_u24 v{vWoD}, 896, v{a1}
v_xor_b32 v{a3}, v{a1}, v{a2}
v_lshlrev_b32 v{a3}, 4, v{a3}
v_lshl_add_u32 v{vOut}, v{vWoD}, 1, v{a3}
v_add_u32 v{vWoD}, v{a0}, v{vWoD}
v_add_u32 v{vWoD+1}, {7168-1024}, v{vWoD}
v_lshrrev_b32 v{a0}, 4, v{V_LANE}
v_bfe_u32 v{a1}, v{V_LANE}, 2, 2
v_lshl_or_b32 v{a3}, v{a0}, 3, v{a1}
v_lshlrev_b32 v{a3}, 7, v{a3}
v_lshrrev_b32 v{a1}, 1, v{a1}
v_lshl_add_u32 v{a3}, v{a1}, 6, v{a3}
v_and_b32 v{a1}, 0x30, v{vL16}
s_movk_i32 s{sA}, {L_WO}
v_add3_u32 v{vWoR}, v{a1}, v{a3}, s{sA}
v_xor_b32 v{vWoR+1}, 64, v{vWoR}
v_and_b32 v{a1}, 15, v{V_LANE}
v_lshlrev_b32 v{vOl}, 4, v{a1}
v_mad_u32_u24 v{vOl}, v{a0}, s{S_KS}, v{vOl}
s_lshl2_add_u32 s{sOl}, s{S_J}, s{S_W}
{FOA}
s_lshl_b32 s{sA}, s{S_W}, 11
s_add_u32 s{sA}, s{sA}, {L_SSM}
v_xor_b32 v{a3}, v{a0}, v{a2}
v_lshl_add_u32 v{a3}, v{a3}, 4, s{sA}
v_lshl_add_u32 v{vBw}, v{a1}, 7, v{a3}
v_add_u32 v{vBr}, s{sA}, v{vL16}
s_mul_i32 s{sOut}, s{sOl}, {16*1792}
s_lshl_b32 s{sA}, s{S_C}, 7
s_add_u32 s{sOut}, s{sOut}, s{sA}
s_add_u32 s{sOut}, s{sOut}, 896
s_add_u32 s{sOut+1}, s{sOut}, {8*1792}
s_lshl_b32 s{sOl}, s{sOl}, 8
s_add_u32 s{sOl}, s{sOl}, {WS_O}
s_lshl2_add_u32 s{sCh0}, s{S_C}, s{S_W}
s_lshl_b32 s{sCh0}, s{sCh0}, 4
s_lshr_b32 s{sA}, s{S_J}, 4
s_lshl_b32 s{sA}, s{sA}, 9
s_add_u32 s{sA}, s{sA}, s{sCh0}
s_lshl_b32 s{sA}, s{sA}, {FSH}
s_add_u32 s{sA}, s{sA}, {F_Y}
v_lshl_add_u32 v{vFy}, v{a1}, {FSH}, s{sA}
v_and_b32 v{a1}, 11, v{V_LANE}
v_lshl_or_b32 v{a1}, v{a0}, 5, v{a1}
v_mul_u32_u24 v{a1}, 1792, v{a1}
v_and_b32 v{a3}, 4, v{V_LANE}
v_lshl_add_u32 v{vYs}, v{a3}, 2, v{a1}
s_lshl_b32 s{sA}, s{sHw}, 12
s_add_u32 s{sB}, s{sP}, {P_X + 4096}
s_sub_u32 s{sB}, s{sB}, s{sA}
v_add_u32 v{vXp}, s{sB}, v{vL16}
s_add_u32 s{sA}, s{sA}, s{sP}
s_add_u32 s{sA}, s{sA}, {P_X}
v_add_u32 v{vXo}, s{sA}, v{vL16}
v_lshl_add_u32 v{vRb_}, v{a0}, 4, s{sA}
v_bfe_u32 v{a0}, v{V_LANE}, 2, 2
v_and_b32 v{a3}, 1, v{V_LANE}
v_lshl_or_b32 v{a2}, v{a3}, 3, v{a0}
v_lshl_add_u32 v{vTr}, v{a2}, 7, v{vRb_}
v_and_b32 v{a2}, 2, v{V_LANE}
v_lshl_add_u32 v{vTr}, v{a2}, 2, v{vTr}""".split('\n')
def fill(n):
    e('\n'.join(late[:n])); del late[:n]
fill(16)
e('s_waitcnt lgkmcnt(8)')
for kp in range(3):
    for tau in range(2):
        d = vr(DP + 16*tau, 16)
        e(f'v_mfma_f32_32x32x16_bf16 {d}, {vr(AP + 12*tau + 4*kp, 4)}, {vr(BD + 4*kp, 4)}, {"0" if kp == 0 else d}')
        fill(6)
def cv_iter(first):
    for k in range(4):
        b = CB + 12 * k
        rd = cv_reads(k + 2)
        z = first and k == 0
        e('s_waitcnt lgkmcnt(4)')
        e(f'v_mfma_f32_32x32x16_bf16 {vr(T1,16)}, {vr(b,4)}, {vr(b+8,4)}, {"0" if z else vr(T1,16)}')
        e('\n'.join(rd))
        if k == 3:
            e(f'v_add_u32 v{vF_}, 256, v{vF_}\nv_subrev_u32 v{vG_}, 64, v{vG_}')
            if not first: e(f's_add_u32 s{sIt2}, s{sIt2}, 1\ns_cmp_lg_u32 s{sIt2}, 11')
        e(f'v_mfma_f32_32x32x16_bf16 {vr(T0,16)}, {vr(b,4)}, {vr(b+4,4)}, {"0" if z else vr(T0,16)}')
        if first: fill(6 if k < 3 else 99)
cv_iter(True)
e('L_cv:')
cv_iter(False)
e('s_cbranch_scc1 L_cv')
cv = [f'v_cvt_pk_bf16_f32 v{AP+i}, v{DP+2*i}, v{DP+2*i+1}' for i in range(16)]
for k in range(2):
    e('\n'.join(cv[4*k:4*k+4]))
    e(f's_waitcnt lgkmcnt({4 - 4*k})')
    e(f'v_mfma_f32_32x32x16_bf16 {vr(T1,16)}, {vr(CB+12*k,4)}, {vr(CB+12*k+8,4)}, {vr(T1,16)}')
for q in range(4):
    e('\n'.join(cv[8+4*q:12+4*q]))
    e(f'v_mfma_f32_32x32x16_bf16 {vr(T1,16)}, {vr(AP+4*q,4)}, {vr(BF+4*q,4)}, {vr(T1,16)}')
if OPT['prio']: e(f"s_setprio {OPT['pr']}")
stamp(5)
if OPT['abl'] == 32: e('s_endpgm')
e(f"""s_mul_i32 s{sA}, s{sD}, {YS}
s_lshl_b32 s{sB}, s{sHw}, 11
s_add_u32 s{sA}, s{sA}, s{sB}
s_add_u32 s{sA}, s{sA}, {WS_Y}
s_lshl_b32 s{sB}, s{sHw}, 9
s_add_u32 s{sB}, s{sB}, s{sD}
s_lshl_b32 s{sB}, s{sB}, {FSH}
s_add_u32 s{sB}, s{sB}, {F_Y}
s_nop 0""")
def xch(give, keep):
    for i in range(4): e(f'ds_write_b128 v{vXp}, {vr(give+4*i,4)} offset:{1024*i}')
    arrive(6); lwait(6, addr=vPair)
    for i in range(4): e(f'ds_read_b128 {vr(give+4*i,4)}, v{vXo} offset:{1024*i}')
    e('s_waitcnt lgkmcnt(0)')
e(f's_cmp_eq_u32 s{sHw}, 0\ns_cbranch_scc1 L_x0')
xch(T0, T1)
e('s_branch L_x1\nL_x0:')
xch(T1, T0)
e('L_x1:')
for i in range(8): e(f'v_pk_add_f32 {vr(T0+2*i,2)}, {vr(T0+2*i,2)}, {vr(T1+2*i,2)}')
for i in range(8): e(f'v_cvt_pk_bf16_f32 v{T1+i}, v{T0+2*i}, v{T0+2*i+1}')
e(f"""buffer_store_dwordx4 {vr(T1,4)}, v{vL16}, {sr(SRD_WS)}, s{sA} offen sc1
buffer_store_dwordx4 {vr(T1+4,4)}, v{vL16}, {sr(SRD_WS)}, s{sA} offen offset:1024 sc1
v_subrev_u32 v{a0}, 16, v{V_GRP}""")
if OM:
    e(f'''v_mov_b64 {vr(T0,2)}, -1
    v_mov_b64 {vr(T0+2,2)}, -1
    s_mul_i32 s{sA}, s{S_C}, {8*KS}
    s_add_u32 s{sA}, s{sA}, s{sOl}
    s_add_u32 s{sSk}, s{sA}, {4*KS}
    buffer_store_dwordx4 {vr(T0,4)}, v{vOl}, {sr(SRD_WS)}, s{sA} offen sc1
    buffer_store_dwordx4 {vr(T0,4)}, v{vOl}, {sr(SRD_WS)}, s{sSk} offen sc1''')
sync(7)
if OPT['only'] != 1: lwait(7, addr=a0)
e('s_waitcnt vmcnt(0)')
publish(sB, a0)
stamp(6)
if OPT['abl'] == 33: e('s_endpgm')
e(f"""s_mul_i32 s{sA}, s{S_W}, {16*896}
s_lshl_b32 s{sB}, s{S_C}, 7
s_add_u32 s{sA}, s{sA}, s{sB}
s_lshl_b32 s{sB}, s{S_W}, 11
s_add_u32 s{sB}, s{sB}, {L_WO}""")
for ch in range(7):
    e(f"""s_add_u32 m0, s{sB}, {8192*ch}
    s_add_u32 s{sSk}, s{sA}, {64*896*ch}
    buffer_load_dwordx4 v{vWoD}, {sr(SRD_B)}, s{sSk} offen lds
    buffer_load_dwordx4 v{vWoD+1}, {sr(SRD_B)}, s{sSk} offen offset:1024 lds
    s_waitcnt vmcnt({OPT['wodepth'] if ch < 6 else 0})""")
WF, OF, OC = 8, 168, 224
arrive(8)
e(f"""buffer_load_dword v{a0}, v{vFy}, {sr(SRD_WS)}, 0 offen sc1
s_mul_i32 s{sA}, s{sCh0}, {YS}
s_lshl_b32 s{sSk}, s{S_J}, 7
s_add_u32 s{sA}, s{sA}, s{sSk}
s_add_u32 s{sA}, s{sA}, {WS_Y}
s_add_u32 s{sSk}, s{sA}, {8*YS}""")
lwait(8)
stamp(7)
if OPT['abl'] == 34: e('s_endpgm')
def wo_reads(k):
    r = []
    for t in range(4):
        for hf in range(2):
            r.append(f'ds_read_b64_tr_b16 {vr(WF + 16*(k%10) + 4*t + 2*hf, 2)}, v{vWoR + (t>>1)} offset:{4096*k + 512*hf + 8*(t&1)}')
    return r
for k in range(10): e('\n'.join(wo_reads(k)))
arrive(9)
poll(vFy, first_issued=True, sleep=OPT['ysleep'], reg=a0)
stamp(8)
if OPT['abl'] == 35: e('s_endpgm')
e(f"""buffer_load_dwordx4 {vr(OF,4)}, v{vYl}, {sr(SRD_WS)}, s{sA} offen sc1
buffer_load_dwordx4 {vr(OF+4,4)}, v{vYl}, {sr(SRD_WS)}, s{sSk} offen sc1
s_lshr_b32 s{sA}, s{S_J}, 4
s_lshl_b32 s{sA}, s{sA}, 10
s_and_b32 s{sB}, s{S_J}, 3
s_lshl_b32 s{sB}, s{sB}, 8
s_add_u32 s{sA}, s{sA}, s{sB}
s_and_b32 s{sB}, s{S_J}, 8
s_lshl1_add_u32 s{sA}, s{sB}, s{sA}
s_and_b32 s{sB}, s{S_J}, 4
s_add_u32 s{sA}, s{sA}, s{sB}
s_mul_i32 s{sA}, s{sA}, 1792
s_lshl1_add_u32 s{sA}, s{sCh0}, s{sA}
s_add_u32 s{sB}, s{sA}, {128*1792}
v_xor_b32 v{a0}, 64, v{vBw}""")
lwait(9)
e(f"""s_waitcnt vmcnt(0)
ds_write_b128 v{vXo}, {vr(OF,4)}
ds_write_b128 v{vXo}, {vr(OF+4,4)} offset:1024""")
for z in range(2):
    for hf in range(2):
        e(f'ds_read_b64_tr_b16 {vr(OF + 8 + 4*z + 2*hf, 2)}, v{vTr} offset:{64*z + 512*hf}')
e(f"""s_waitcnt lgkmcnt(0)
buffer_store_dwordx4 {vr(OF+8,4)}, v{vYs}, {sr(SRD_C)}, s{sA} offen {OUTM}
buffer_store_dwordx4 {vr(OF+12,4)}, v{vYs}, {sr(SRD_C)}, s{sB} offen {OUTM}""")
if OPT['only'] == 1:
    stamp(9); stamp(13); prof_out(); e('s_endpgm')
if OM: poll(vFo, sleep=8)
if OM == 4:
    e(f'''s_lshl2_add_u32 s{sA}, s{S_J}, s{S_W}
    s_lshr_b32 s{sA}, s{sA}, 1
    s_lshl_b32 s{sA}, s{sA}, {4 + FSH}
    s_add_u32 s{sA}, s{sA}, {F_O}
    v_and_b32 v{vFo}, 15, v{V_LANE}
    v_lshl_add_u32 v{vFo}, v{vFo}, {FSH}, s{sA}''')
sOk, sLast = 4, 18
for k in range(14): e(f's_add_u32 s{sOk+k}, s{sOl}, {4*KS*k}')
stamp(9)
e('s_barrier')
stamp(10)
if OPT['osleep']: e(f"s_sleep {OPT['osleep']}")
if OM != 3: poll(vFo, sleep=OPT['hsleep'])
if OM: e(f's_min_u32 s{S_BOUND}, s{S_BOUND}, 0x4000')
stamp(11)
def o_load(k): return f'buffer_load_dwordx4 {vr(OF+4*k,4)}, v{vOl}, {sr(SRD_WS)}, s{sOk+k} offen sc1'
def o_chk(k):
    o = OF + 4*k
    return [f's_waitcnt vmcnt({13-k})', f'v_max3_u32 v6, v{o}, v{o+1}, v{o+2}', f'v_max_u32 v6, v6, v{o+3}', 'v_cmp_eq_u32 vcc, -1, v6']
for k in range(14): e(o_load(k))
if OM: e('\n'.join(o_chk(0)))
for k in range(14):
    o = OF + 4*k
    m = [f'v_mfma_f32_16x16x32_bf16 {vr(OC+4*t,4)}, {vr(WF + 16*(k%10) + 4*t, 4)}, {vr(o,4)}, {"0" if k == 0 else vr(OC+4*t,4)}' for t in range(4)]
    rd = wo_reads(k + 9) if 1 <= k <= 4 else []
    if k == 10: e('s_waitcnt lgkmcnt(0)')
    if OM:
        e(f's_cbranch_vccnz L_or{k}\nL_og{k}:')
        c = o_chk(k + 1) if k < 13 else ['', '', '', '']
        e('\n'.join([m[0]] + rd[:4] + [m[1]] + rd[4:] + [m[2], c[0], c[1], c[2], m[3], c[3]]))
    else:
        e(f's_waitcnt vmcnt({13-k})'); e('\n'.join(m + rd))
stamp(12)
e('s_nop 4')
for i in range(8): e(f'v_cvt_pk_bf16_f32 v{16+i}, v{OC+2*i}, v{OC+2*i+1}')
e(f"""ds_write_b128 v{vBw}, {vr(16,4)}
ds_write_b128 v{a0}, {vr(20,4)}
ds_read_b128 {vr(24,4)}, v{vBr}
ds_read_b128 {vr(28,4)}, v{vBr} offset:1024
s_or_b32 s{sA}, s2, s{S_W}
s_waitcnt lgkmcnt(1)
buffer_store_dwordx4 {vr(24,4)}, v{vOut}, {sr(SRD_C)}, s{sOut} offen {OUTM2}
s_waitcnt lgkmcnt(0)
buffer_store_dwordx4 {vr(28,4)}, v{vOut}, {sr(SRD_C)}, s{sOut+1} offen {OUTM2}
s_cbranch_scc1 L_noepoch""")
publish(sA, 6)
e('L_noepoch:')
if OPT['prof']:
    e('s_waitcnt vmcnt(0)')
stamp(13)
prof_out()
e('L_end:\ns_endpgm')
if OM:
    for k in range(14):
        c = o_chk(k)
        e(f'''L_or{k}:
        s_call_b64 s[90:91], L_re{k}
        {c[0]}
        L_oc{k}:
        {c[1]}
        {c[2]}
        {c[3]}
        s_cbranch_vccz L_og{k}
        {'s_sleep %d' % OPT['rsleep'] if OPT['rsleep'] else ''}
        {o_load(k)}
        s_sub_u32 s{S_BOUND}, s{S_BOUND}, 1
        s_waitcnt vmcnt(0)
        s_cbranch_scc0 L_oc{k}
        s_mov_b32 s{S_BOUND}, 0
        s_branch L_og{k}''')
    for k in range(14): e(f'L_re{k}:\n{o_load(k)}')
    e('s_setpc_b64 s[90:91]')
sec('idle')
ROLE[0] = 2
e('L_ssm_idle:')
if OPT['only'] == 2:
    arrive(1); e('s_endpgm')
hi()
e(f"""v_lshrrev_b32 v10, 3, v{V_LANE}
v_and_b32 v11, 7, v{V_LANE}
v_lshlrev_b32 v11, 4, v11
v_mul_u32_u24 v5, 896, v10
v_add_u32 v5, v5, v11
v_add_u32 v6, {7168-1024}, v5
s_lshl2_add_u32 s60, s{S_J}, s{S_W}
s_mul_i32 s61, s60, {16*896}
s_mul_i32 s62, s{S_W}, 14336
s_add_u32 s62, s62, {L_SSM}
s_mov_b32 s{SRD_A+2}, {2048*896}
s_mov_b32 s{SRD_A+3}, 0x20000
s_waitcnt lgkmcnt(0)
s_load_dword s{S_NONCE}, s[28:29], 0
s_mov_b64 s[{SRD_A}:{SRD_A+1}], s[4:5]""")
for c in range(7):
    e(f"""s_add_u32 m0, s62, {2048*c - 128*c}
    s_nop 0
    buffer_load_dwordx4 v5, {sr(SRD_A)}, s61 offen offset:{128*c} lds
    buffer_load_dwordx4 v6, {sr(SRD_A)}, s61 offen offset:{1024 + 128*c} lds""")
    if c == OPT['tb']: e('s_barrier')
    if c == 1:
        srd(SRD_WS, 28, WS_SIZE)
        e(f"""; transposing read: row = 8*(cc&1)+r', byte = 8*(2G+(cc>>1))
        v_mul_u32_u24 v7, {QS}, v10
        v_add_u32 v7, v7, v11
        v_bfe_u32 v8, v{V_LANE}, 2, 2
        v_and_b32 v9, 1, v{V_LANE}
        v_lshl_or_b32 v8, v9, 3, v8
        v_xor_b32 v8, 3, v8
        v_lshl_add_u32 v8, v8, 7, s62
        v_and_b32 v9, 0x30, v{V_LANE}
        v_add_u32 v8, v8, v9
        v_and_b32 v9, 2, v{V_LANE}
        v_lshl_add_u32 v8, v9, 2, v8
        s_lshl_b32 s63, s60, 7
        s_add_u32 s63, s63, {WS_U}
        s_lshl_b32 s65, s{S_J}, {FSH}
        s_add_u32 s65, s65, {F_U}""")
e(f's_waitcnt lgkmcnt(0)\ns_add_u32 s{S_NONCE}, s{S_NONCE}, 1')
arrive(1)
def t_rd(c):
    return [f'ds_read_b64_tr_b16 {vr(16 + 8*c + 4*z + 2*hf, 2)}, v8 offset:{2048*c + 64*z + 512*(1-hf)}' for z in range(2) for hf in range(2)]
e('s_waitcnt vmcnt(12)'); stamp(1); e('\n'.join(t_rd(0)))
for c in range(7):
    if c < 6:
        e('s_waitcnt vmcnt(10)'); e('\n'.join(t_rd(c + 1)))
    e(f"""s_add_u32 s64, s63, {8*QS}
    s_waitcnt lgkmcnt({4 if c < 6 else 0})
    buffer_store_dwordx4 {vr(16+8*c,4)}, v7, {sr(SRD_WS)}, s63 offen sc1
    buffer_store_dwordx4 {vr(20+8*c,4)}, v7, {sr(SRD_WS)}, s64 offen sc1
    s_add_u32 s63, s63, {16*QS}""")
    if c + 7 == OPT['tb']: e('s_barrier')
stamp(2)
e(f"""v_mov_b32 v5, 1
v_mov_b32 v6, 0
s_waitcnt vmcnt(0)
s_mov_b64 exec, 1
ds_add_rtn_u32 v5, v6, v5 offset:36
s_waitcnt lgkmcnt(0)
v_readfirstlane_b32 s60, v5
s_mov_b64 exec, -1
s_cmp_lg_u32 s60, 3
s_cbranch_scc1 L_idle_end""")
publish(65, 6)
e('L_idle_end:'); stamp(4)
prof_out()
e('s_endpgm')
ORDER = [['pro', 'ssm0', 'mha0', 'idle', 'ssm', 'mha'], ['pro', 'ssm0', 'mha0', 'mha', 'ssm', 'idle'],
         ['pro', 'ssm0', 'mha0', 'ssm', 'mha', 'idle'], ['pro', 'ssm0', 'idle', 'mha0', 'mha', 'ssm']][OPT['ord']] + ['cold', 'gt', 'fb']
SEC.setdefault('cold', [])
def add_nt(n, pred):
    SEC[n] = [(l.replace(' lds', ' nt lds') if l.endswith(' lds') else l + ' nt') if pred(l) else l for l in SEC[n]]
for n in ('mha0', 'mha', 'gt'):
    if OPT['nt'] & 1: add_nt(n, lambda l: l.endswith(' lds') and sr(SRD_A) in l)
    if OPT['nt'] & 2: add_nt(n, lambda l: l.endswith(' lds') and sr(SRD_B) in l)
if OPT['nt'] & 4: add_nt('idle', lambda l: l.endswith(' lds'))
if OPT['nt'] & 8: add_nt('ssm0', lambda l: 'global_load' in l)
if OPT['nt'] & 16: add_nt('ssm', lambda l: l.endswith(' lds'))
if OPT['nt'] & 32: add_nt('ssm', lambda l: 'buffer_store' in l and sr(SRD_C) in l)
BODY = sum((SEC[n] for n in ORDER), [])
def sizes(lines):
    import subprocess, re, os, tempfile
    d = tempfile.mkdtemp()
    open(d + '/a.s', 'w').write('.amdgcn_target "amdgcn-amd-amdhsa--gfx950"\n.text\n' + '\n'.join(lines) + '\n')
    subprocess.check_call(['clang', '-x', 'assembler', '-target', 'amdgcn-amd-amdhsa', '-mcpu=gfx950', '-c', d + '/a.s', '-o', d + '/a.o'])
    o = subprocess.check_output(['llvm-objdump', '-d', '--mcpu=gfx950', d + '/a.o']).decode()
    return [4 * len(m.group(1).split()) for m in re.finditer(r'// [0-9A-F]{12}: ((?:[0-9A-F]{8} ?)+)', o)]
def is_ins(l):
    t = l.split(';')[0].strip()
    return bool(t) and not t.endswith(':')
def widen(l):
    import re
    t = l.split(';')[0].strip(); op = t.split()[0]
    if op.startswith('v_') and not op.startswith(('v_readfirstlane', 'v_swap', 'v_permlane', 'v_nop')):
        return l.replace(op, op + '_e64', 1)
    return None
if OPT['al']:
    sz = iter(sizes(BODY))
    I = [[l, next(sz) if is_ins(l) else 0] for l in BODY]
    res = []; addr = 0; nw = nn = 0
    for i, (l, n) in enumerate(I):
        if n == 8 and addr % 8 == 4:
            run = 0
            for l2, n2 in I[i:]:
                if n2 == 4: break
                run += n2 == 8
            cross = sum(1 for k in range(run) if (addr + 8*k) % 32 == 28)
            if cross:
                j = len(res) - 1; done = False; aj = addr
                while j >= 0 and res[j][1] in (0, 4):
                    aj -= res[j][1]
                    t = res[j][0].strip()
                    if t.startswith(('s_branch', 's_endpgm', 's_setpc')):
                        res.insert(j + 1, ['    s_nop 0', 4]); done = True; break
                    w = widen(res[j][0]) if res[j][1] == 4 and aj % 32 != 28 else None
                    if w:
                        res[j] = [w, 8]; done = True; nw += 1; break
                    j -= 1
                if not done and run >= OPT['alr']:
                    k = len(res)
                    while res[k-1][1] == 0: k -= 1
                    res.insert(k, ['    s_nop 0', 4]); done = True; nn += 1
                if done: addr += 4
        res.append([l, n]); addr += n
    BODY = [l for l, n in res]
    print('aligned: widened', nw, 'nops', nn, 'bytes', addr, file=sys.stderr)
hdr = open('header.txt').read()
txt = hdr + f'''; @launch grid=(256,1,1) block=(512,1,1) lds={L_TOT}
.amdgcn_target "amdgcn-amd-amdhsa--gfx950"
.text
.globl {KN}
.p2align 8
.type {KN},@function
{KN}:
''' + '\n'.join(BODY) + f'''
.section .rodata,"a"
.p2align 6
.amdhsa_kernel {KN}
  .amdhsa_next_free_vgpr 256
  .amdhsa_next_free_sgpr 102
  .amdhsa_accum_offset 256
  .amdhsa_group_segment_fixed_size 0
  .amdhsa_kernarg_size 104
  .amdhsa_user_sgpr_count 2
  .amdhsa_user_sgpr_kernarg_segment_ptr 1
  .amdhsa_system_sgpr_workgroup_id_x 1
.end_amdhsa_kernel
'''
open(sys.argv[1], 'w').write(txt)
```

```python
import sys, struct
def fl(x): return hex(struct.unpack('<I', struct.pack('<f', x))[0])

KN = 'concat_heads__ssm_conv_s4d__softmax_full_mha__prompt_kernel'
OPT = dict(rd0=-1, rdm=0, probe=0, poff=0xc00000, nt=0, rdn=0, al=1, alr=6, fw=0, rsleep=0, hsleep=0, ord=3, nb=0, tb=13, tq=1, chkk=99, uw=-2, cw=0, s6=5, tskip=1, ones=1, pa=1, pr=2, pf=2, wgf=2, ax=0, bp=3, qa=7, n0=4, ilv=8, tlb=0, ulook=1, kgp=1, pad=0, ypad=0, omode=3, ksleep=0, usleep=4, obar=5, osleep=0, pubk=8, abl=0, touch=0, gs=0, kgw=0, xg=5, gx=0, pm=2, ps=0, rt=0, upub=1, kgx=0, outsc=0, ysleep=8, wodepth=4, wq_mid=0, pollk=99, rd=-1, rdrole=0, only=0, safe=0, rot=0, prof=0, fs=128, force_fb=0, wq_early=7, prio=1)
for a in sys.argv[2:]:
    k, v = a.split('=')
    assert k in OPT, k
    OPT[k] = int(v, 0)

FS = OPT['fs']
FSH = FS.bit_length() - 1
F_KV = 0x1000
F_O = F_KV + 1024 * FS
F_U = F_O + 1024 * FS
F_Y = F_U + 1024 * FS
F_H = F_Y + 1024 * FS
WS_K = 0x100000
WS_V = 0x300000
WS_O = 0x500000
WS_U = 0x700000
WS_Y = 0x900000
QS = 16384 + OPT['pad']; KS = 2 * QS; YS = 4096 + OPT['ypad']
S_KS = 57
WS_PROF = 0xb00000
WS_SIZE = 0xc00000
L_SSM = 1024
L_W = 57344
L_RB = 65536
L_X = 114688
L_TOT = 163840
TROW = 288
TABSZ = 38 * TROW
L_TAB = L_SSM
P_SZ = 2 * TABSZ
P_UC = 1536
UC_S = 2240
P_KD = TABSZ + 1536
P_X = TABSZ
PS = 1552
PD = 4 * PS
L_KP = L_TAB + 4 * TABSZ
assert P_UC + 4 * UC_S <= TABSZ and P_KD + 1600 <= P_SZ and P_X + 8192 <= P_SZ and L_KP % 16 == 0 and L_KP + 2 * PD <= L_W
L_WO = L_SSM

S_WV, S_W, S_HG, S_C, S_TILE, S_J, S_H, S_NONCE, S_O0, S_ROT = range(30, 40)
SRD_WS, SRD_A, SRD_B, SRD_C = 40, 44, 48, 52
S_BOUND = 56
S_T0 = 58

SEC = {}
out = None
def sec(n):
    global out
    out = SEC.setdefault(n, [])
sec('pro')
def e(s):
    for l in s.split('\n'):
        l = l.strip()
        if l:
            out.append(l if l.endswith(':') else '    ' + l)
_lab = [0]
def lab(p):
    _lab[0] += 1
    return f'L_{p}_{_lab[0]}'
def vr(a, n):
    return f'v[{a}:{a+n-1}]' if n > 1 else f'v{a}'
def srd(d, b, n):
    e(f's_mov_b64 s[{d}:{d+1}], s[{b}:{b+1}]\ns_mov_b32 s{d+2}, {n}\ns_mov_b32 s{d+3}, 0x20000')
def sr(d): return f's[{d}:{d+3}]'

V_LANE, V_T, V_OWN, V_GRP, V_PROF = 0, 1, 2, 3, 4

ROLE = [0]
def stamp(i):
    if OPT['rd0'] == i and OPT['rdrole'] == ROLE[0]:
        e('s_memrealtime s[98:99]\ns_waitcnt lgkmcnt(0)')
    if OPT['rd'] == i and OPT['rdrole'] == ROLE[0]:
        e('s_memrealtime s[100:101]\ns_waitcnt lgkmcnt(0)')
    if OPT['prof'] > (i >= 14):
        e(f's_mem{"real" if OPT["rt"] else ""}time s[96:97]\ns_waitcnt lgkmcnt(0)\ns_sub_u32 s96, s96, s{98 if OPT["rt"] else S_T0}\nv_writelane_b32 v{V_PROF}, s96, {i}')
def prof_out():
    if OPT['rd'] >= 0 and OPT['rdrole'] == ROLE[0]:
        l = lab('pad')
        if ROLE[0] == 0 and not OPT['obar']: e('s_barrier')
        if ROLE[0] == 2: e('s_barrier')
        if ROLE[0] == 0 and OPT['rdn']: e(f's_cmp_eq_u32 s{S_C}, 7\ns_cbranch_scc{2 - OPT["rdn"]} L_end')
        if OPT['rd'] == 98:
            e(f'''s_not_b32 s100, s100
            v_mov_b32 v5, s100
            v_mov_b32 v6, 0
            s_mov_b64 exec, 1
            global_atomic_umax v6, v5, s[26:27]
            s_waitcnt vmcnt(0)
            s_sleep 127
            s_sleep 127
            s_sleep 127
            s_sleep 127
            s_sleep 127
            global_load_dword v5, v6, s[26:27] sc1
            s_waitcnt vmcnt(0)
            v_readfirstlane_b32 s100, v5
            s_not_b32 s100, s100''')
        if OPT['probe']:
            op = {1: 'buffer_store_dwordx4 v[8:11], v5, s[52:55], s60 offen sc1', 2: 'buffer_load_dwordx4 v[8:11], v5, s[52:55], s60 offen sc1',
                  3: 'buffer_store_dwordx4 v[8:11], v5, s[52:55], s60 offen'}[OPT['probe'] & 3]
            pre = 'buffer_load_dword v12, v6, s[52:55], s61 offen sc1\ns_waitcnt vmcnt(0)' if OPT['probe'] & 4 else ''
            if OPT['probe'] & 8: pre += '\nbuffer_store_dwordx4 v[8:11], v5, s[52:55], s60 offen sc1\ns_waitcnt vmcnt(0)\ns_sleep 40'
            e(f'''s_mov_b64 s[52:53], s[28:29]
            s_mov_b32 s54, 0x10000000
            s_mov_b32 s55, 0x20000
            s_sleep 127
            s_sleep 127
            s_sleep 127
            v_lshlrev_b32 v5, 4, v0
            v_mov_b32 v6, 0
            s_lshl2_add_u32 s60, s2, s{S_W}
            s_lshl_b32 s60, s60, 10
            s_add_u32 s60, s60, {OPT['poff']}
            s_mov_b32 s61, {OPT['poff'] + 0x180000}
            {pre}
            s_memrealtime s[62:63]
            s_waitcnt lgkmcnt(0)
            {op}
            s_waitcnt vmcnt(0)
            s_memrealtime s[100:101]
            s_waitcnt lgkmcnt(0)
            s_sub_u32 s100, s100, s62
            v_mov_b32 v8, s100
            s_lshl2_add_u32 s60, s2, s{S_W}
            s_lshl_b32 s60, s60, 2
            s_add_u32 s60, s60, {WS_PROF}
            buffer_store_dword v8, v6, s[52:55], s60 offen
            s_mul_i32 s100, s100, 50
            s_add_u32 s100, s100, s58''')
        elif OPT['rdm']:
            e('''s_sub_u32 s100, s100, s98
            v_mov_b32 v5, s100
            v_mov_b32 v6, 0
            s_mov_b64 exec, 1
            global_atomic_add v6, v5, s[26:27]
            s_waitcnt vmcnt(0)''' + '\ns_sleep 127' * 7 + '''
            global_load_dword v5, v6, s[26:27] sc1
            s_waitcnt vmcnt(0)
            v_readfirstlane_b32 s100, v5
            s_lshr_b32 s100, s100, 6
            s_add_u32 s100, s100, s58''')
        else: e('s_sub_u32 s100, s100, s98\ns_lshl_b32 s100, s100, 3\ns_add_u32 s100, s100, s58')
        e(f'''s_add_u32 s100, s100, 6000
        {l}:
        s_sleep 1
        s_memrealtime s[96:97]
        s_waitcnt lgkmcnt(0)
        s_sub_u32 s96, s96, s100
        s_cmp_lt_i32 s96, 0
        s_cbranch_scc1 {l}''')
    if OPT['prof']:
        e(f'''s_memrealtime s[96:97]
        s_waitcnt lgkmcnt(0)
        v_writelane_b32 v{V_PROF}, s96, 31
        v_writelane_b32 v{V_PROF}, s98, 30
        s_lshl_b32 s96, s2, 3
        s_add_u32 s96, s96, s{S_WV}
        s_lshl_b32 s96, s96, 7
        s_add_u32 s96, s96, {WS_PROF}
        v_lshlrev_b32 v{V_T}, 2, v{V_LANE}
        s_mov_b32 exec_hi, 0
        buffer_store_dword v{V_PROF}, v{V_T}, {sr(SRD_WS)}, s96 offen
        s_mov_b64 exec, -1''')

def arrive(stage):
    e(f'v_mov_b32 v{V_T}, {stage}\nds_write_b32 v{V_OWN}, v{V_T}')
def lwait(stage, addr=V_GRP, sleep=0):
    l = lab('lw')
    e(f'{l}:')
    if sleep: e(f's_sleep {sleep}')
    e(f'''ds_read_b32 v{V_T}, v{addr}
    s_waitcnt lgkmcnt(0)
    v_cmp_gt_u32 vcc, {stage}, v{V_T}''')
    if OPT['safe']:
        d = lab('ld')
        e(f'''s_cbranch_vccz {d}
        s_sub_u32 s{S_BOUND}, s{S_BOUND}, 1
        s_cbranch_scc0 {l}
        s_mov_b32 s{S_BOUND}, 0
        {d}:''')
    else:
        e(f's_cbranch_vccnz {l}')
def sync(stage):
    arrive(stage); lwait(stage)
def poll(voff, first_issued=False, sleep=0, reg=V_T):
    l, d, m = lab('pl'), lab('pd'), lab('pm')
    if first_issued == 2:
        e(f's_waitcnt vmcnt(0)\nv_cmp_ne_u32 vcc, s{S_NONCE}, v{reg}\ns_cbranch_vccnz {l}\n{d}:')
        cur = [n for n in SEC if SEC[n] is out][0]
        sec('cold')
        e(f'''{l}:
        buffer_load_dword v{reg}, v{voff}, {sr(SRD_WS)}, 0 offen sc1
        s_waitcnt vmcnt(0)
        v_cmp_ne_u32 vcc, s{S_NONCE}, v{reg}
        s_cbranch_vccz {d}
        s_sub_u32 s{S_BOUND}, s{S_BOUND}, 1
        s_cbranch_scc0 {l}
        s_mov_b32 s{S_BOUND}, 0
        s_branch {d}''')
        sec(cur)
        return
    if first_issued: e(f's_branch {m}')
    e(f'{l}:')
    if sleep: e(f's_sleep {sleep}')
    e(f'''buffer_load_dword v{reg}, v{voff}, {sr(SRD_WS)}, 0 offen sc1
    {m}:
    s_waitcnt vmcnt(0)
    v_cmp_ne_u32 vcc, s{S_NONCE}, v{reg}
    s_cbranch_vccz {d}
    s_sub_u32 s{S_BOUND}, s{S_BOUND}, 1
    s_cbranch_scc0 {l}
    s_mov_b32 s{S_BOUND}, 0
    {d}:''')
def publish(soff, tmp):
    if OPT['fw']:
        e(f'''v_mov_b32 v{V_T}, s{S_NONCE}
        v_lshlrev_b32 v{tmp}, 2, v{V_LANE}
        s_mov_b64 exec, {hex((1 << OPT['fw']) - 1)}
        buffer_store_dword v{V_T}, v{tmp}, {sr(SRD_WS)}, s{soff} offen sc1
        s_mov_b64 exec, -1'''.replace('s_mov_b64 exec, 0xffffffff', 's_mov_b32 exec_hi, 0'))
        return
    e(f'''v_mov_b32 v{V_T}, s{S_NONCE}
    v_mov_b32 v{tmp}, 0
    s_mov_b64 exec, 1
    buffer_store_dword v{V_T}, v{tmp}, {sr(SRD_WS)}, s{soff} offen sc1
    s_mov_b64 exec, -1''')
def swap23(d, s, t):
    e(f'''v_lshrrev_b32 v{t}, 1, v{s}
    v_xor_b32 v{t}, v{t}, v{s}
    v_and_b32 v{t}, 4, v{t}
    v_mul_u32_u24 v{t}, 3, v{t}
    v_xor_b32 v{d}, v{t}, v{s}''')
def rot_next(s):
    e(f's_add_u32 s{s}, s{s}, 1\ns_cmp_eq_u32 s{s}, 7\ns_cselect_b32 s{s}, 0, s{s}')

e(f'''s_cmp_ge_u32 s2, 256
s_cbranch_scc1 L_end''')
if OPT['prof']:
    e(f's_memtime s[{S_T0}:{S_T0+1}]\ns_memrealtime s[98:99]\nv_mov_b32 v{V_PROF}, 0')
if OPT['rd'] >= 0: e('s_memrealtime s[100:101]\ns_memrealtime s[58:59]\ns_memrealtime s[98:99]')
e(f'''s_load_dwordx16 s[4:19], s[0:1], 0
s_load_dwordx8 s[20:27], s[0:1], 64
s_load_dwordx2 s[28:29], s[0:1], 96
v_lshrrev_b32 v{V_OWN}, 6, v0
v_and_b32 v{V_LANE}, 63, v0
v_readfirstlane_b32 s{S_WV}, v{V_OWN}
v_lshlrev_b32 v{V_OWN}, 2, v{V_OWN}
v_mov_b32 v{V_T}, 0
ds_write2_b32 v{V_OWN}, v{V_T}, v{V_T} offset1:8
v_and_b32 v{V_GRP}, 3, v{V_LANE}
v_lshlrev_b32 v{V_GRP}, 2, v{V_GRP}
s_and_b32 s{S_HG}, s2, 1
s_bfe_u32 s60, s2, 0x20001
s_bfe_u32 s{S_C}, s2, 0x30003
s_lshr_b32 s61, s2, 6
s_lshl2_add_u32 s{S_TILE}, s60, s61
s_lshl1_add_u32 s{S_J}, s{S_TILE}, s{S_HG}
s_lshl3_add_u32 s{S_H}, s{S_HG}, s{S_C}
s_and_b32 s{S_W}, s{S_WV}, 3
s_mov_b32 s{S_BOUND}, 0x40000
s_mov_b32 s{S_KS}, {KS}
s_cmp_lt_u32 s{S_WV}, 4
s_cbranch_scc1 L_mha''')

VX = 144; VACC = 96; VWF = 32; VPK = 128
VV, VK, VS, VO, VQ = 32, 64, 96, 160, 224
vWd = [5, 6]; vXd = [7, 8, 9, 10]; vXr = [11, 12, 13, 14]; vWb, vW0, vW1 = 15, 16, 17
vRho, vG, vSt, vQd, vQr, vFl, vA, vB, vC = 18, 19, 20, 21, 22, 23, 24, 25, 26
vKo0, vKo1, vVo, vIdx = 27, 28, 29, 30
sXb, sWb, sCh, sCw, sLx, sTmp, sTmp2, sSt, sS1, sS2, sFl = range(60, 71)
sK, sV, sIt = 71, 72, 73
sFo, sO0, sO1 = 84, 85, 86
vOs, vQw = vRho, vG
vRb = [7, 8, 9]; vQx = [11, 12, 13]; vRr = 10
sMask = 74
sOdd = 76

sec('mha0')
e('L_mha:')
if OPT['prio']: e(f"s_setprio {OPT['pm']}")
e(f'''s_mul_i32 s{S_O0}, s{S_H}, 7
s_lshr_b32 s{S_O0}, s{S_O0}, 1''')
e(f'''v_lshrrev_b32 v{vA}, 3, v{V_LANE}          ; r
v_and_b32 v{vB}, 7, v{V_LANE}                    ; p
v_lshlrev_b32 v{vC}, 1, v{vA}
v_and_b32 v{vC}, 4, v{vC}
v_xor_b32 v{vC}, v{vC}, v{vB}
v_lshlrev_b32 v{vC}, 4, v{vC}
v_mul_u32_u24 v{vWd[0]}, 2688, v{vA}
v_add_u32 v{vWd[0]}, v{vWd[0]}, v{vC}
v_add_u32 v{vWd[1]}, {8*2688-1024}, v{vWd[0]}
v_lshrrev_b32 v{vC}, 1, v{vA}
v_xor_b32 v{vC}, v{vC}, v{vB}
v_lshlrev_b32 v{vC}, 4, v{vC}
v_mul_u32_u24 v{vA}, 896, v{vA}
v_add_u32 v{vXd[0]}, v{vA}, v{vC}
v_xor_b32 v{vC}, 64, v{vC}
v_add_u32 v{vXd[1]}, v{vA}, v{vC}
v_add_u32 v{vXd[1]}, {7168-1024}, v{vXd[1]}
v_add_u32 v{vXd[2]}, {2*(7168-1024)}, v{vXd[0]}
v_add_u32 v{vXd[3]}, {2*(7168-1024)}, v{vXd[1]}
s_lshl2_add_u32 s{sXb}, s{S_TILE}, s{S_W}
s_lshl_b32 s{sFl}, s{S_H}, 6
s_add_u32 s{sFl}, s{sFl}, s{S_TILE if OPT['wgf'] else sXb}
s_lshl_b32 s{sFl}, s{sFl}, {FSH}
s_add_u32 s{sFl}, s{sFl}, {F_KV}
s_mul_i32 s{sXb}, s{sXb}, {32*896}
s_mul_i32 s{sTmp2}, s{S_HG}, 3
s_lshr_b32 s{sTmp}, s2, 6
s_add_u32 s{sTmp2}, s{sTmp2}, s{sTmp}
s_mul_i32 s{sWb}, s{S_HG}, 7
s_add_u32 s{sWb}, s{sWb}, s{S_C}
s_add_u32 s{sWb}, s{sWb}, 7
s_cmp_eq_u32 s{S_C}, 7
s_cselect_b32 s{sWb}, {'s%d' % sTmp2 if OPT['tq'] else '0x100000'}, s{sWb}
s_cselect_b32 s{sS1}, 1, s{S_W}
s_lshl_b32 s{sWb}, s{sWb}, 7
s_mul_i32 s{sTmp}, s{S_W}, {16*2688}
s_add_u32 s{sWb}, s{sWb}, s{sTmp}
s_mul_i32 s{sLx}, s{S_W}, 12288
s_add_u32 s{sLx}, s{sLx}, {L_X}
s_lshl_b32 s{sS1}, s{sS1}, 11
s_add_u32 s{sS1}, s{sS1}, {L_W}
s_mov_b32 s{SRD_A+2}, {2048*896}
s_mov_b32 s{SRD_A+3}, 0x20000
s_mov_b32 s{SRD_B+2}, {448*1344*2}
s_mov_b32 s{SRD_B+3}, 0x20000
s_mov_b32 m0, s{sLx}
s_waitcnt lgkmcnt(0)
s_mov_b64 s[{SRD_A}:{SRD_A+1}], s[18:19]
s_mov_b64 s[{SRD_B}:{SRD_B+1}], s[20:21]
s_load_dword s{S_NONCE}, s[28:29], 0''')
stamp(22)
sWo = 88
def w_lines(st):
    return [f's_add_u32 m0, s{sS1}, {8192*st}', f's_add_u32 s{sWo+st}, s{sWb}, {64*2688*st}'] + \
           [f'buffer_load_dwordx4 v{vWd[i]}, {sr(SRD_B)}, s{sWo+st} offen offset:{1024*i} lds' for i in range(2)]
def x_chunk(st):
    return [f's_add_u32 m0, s{sLx}, {(st%3)*4096 - 128*st}', 's_nop 0'] + \
           [f'buffer_load_dwordx4 v{vXd[i]}, {sr(SRD_A)}, s{sXb} offen offset:{1024*i + 128*st} lds' for i in range(4)]
DM = []
for l in [x_chunk(0), w_lines(0)] + [w_lines(i) for i in range(1, 7)] + [x_chunk(1), x_chunk(2)]:
    DM += [l[:3]] + [[x] for x in l[3:]]
DM[0] = DM[0][2:]
for i, g in enumerate(DM[:OPT['n0']]):
    if i == OPT['nb']:
        e('s_barrier'); stamp(23)
        if OPT['only'] == 1: e('s_endpgm')
    e('\n'.join(g))
DM = DM[OPT['n0']:]
stamp(24)
if OPT['ord'] not in (1, 3): e('s_branch L_mha1')
sec('mha')
e('L_mha1:')
stamp(25)
sec('tmp')
srd(SRD_WS, 28, WS_SIZE)
ONES = f'''s_bitcmp1_b32 s{S_H}, 0
s_cselect_b32 s{sTmp}, 0, 7
v_cmp_eq_u32 vcc, s{sTmp}, v{vA}
s_lshl_b32 s{sTmp}, s{S_O0}, 1
s_sub_u32 s{sTmp}, s{S_HG}, s{sTmp}
s_add_u32 s{sTmp}, s{sTmp}, 112
v_mov_b32 v{vB}, s{sTmp}
v_cndmask_b32 v{vA}, v{vA}, v{vB}, vcc
''' if OPT['ones'] else ''
FIX = f'''v_cmp_lt_u32 vcc, 7, v{vB}
s_lshl3_add_u32 s{sTmp}, s{S_HG}, 7
v_mov_b32 v{vB}, s{sTmp}
v_cndmask_b32 v{vC}, v{vC}, v{vB}, vcc
''' if OPT['ones'] else ''
FOM = f'''s_lshl_b32 s{sFo}, s{sTmp2}, 4
s_add_u32 s{sFo}, s{sFo}, s{S_H}
s_lshl_b32 s{sFo}, s{sFo}, {FSH}
s_add_u32 s{sFo}, s{sFo}, {F_O}
''' if OPT['omode'] != 3 else ''
e(f'''v_and_b32 v{vA}, 31, v{V_LANE}
v_lshrrev_b32 v{vG}, 5, v{V_LANE}''')
swap23(vRho, vA, vB)
e(f'''v_bfe_u32 v{vB}, v{vRho}, 1, 3
v_xor_b32 v{vB}, v{vB}, v{vG}
v_lshlrev_b32 v{vB}, 4, v{vB}
v_lshl_add_u32 v{vB}, v{vRho}, 7, v{vB}
v_add_u32 v{vXr[0]}, s{sLx}, v{vB}
v_xor_b32 v{vXr[1]}, 32, v{vXr[0]}
v_xor_b32 v{vXr[2]}, 64, v{vXr[0]}
v_xor_b32 v{vXr[3]}, 0x60, v{vXr[0]}
v_and_b32 v{vB}, 3, v{V_LANE}                     ; cc
v_lshrrev_b32 v{vC}, 1, v{vB}
v_and_b32 v{vQd}, 1, v{vB}
v_lshl_or_b32 v{vC}, v{vQd}, 1, v{vC}
v_bfe_u32 v{vQd}, v{V_LANE}, 4, 1
v_lshl_or_b32 v{vB}, v{vQd}, 2, v{vB}
v_lshl_or_b32 v{vC}, v{vQd}, 2, v{vC}
v_bfe_u32 v{vQd}, v{V_LANE}, 2, 2                  ; r'
v_lshl_or_b32 v{vFl}, v{vG}, 3, v{vQd}             ; 8g + r'
v_lshlrev_b32 v{vQr}, 6, v{vFl}
v_lshl_add_u32 v{vQr}, v{vC}, 3, v{vQr}
v_add_u32 v{vQr}, {L_X + 4096}, v{vQr}
s_cmp_eq_u32 s{S_HG}, 0
s_cselect_b64 vcc, -1, 0
v_cndmask_b32 v{vB}, v{vB}, v{vC}, vcc             ; K slabs use the exchanged order, V slabs the natural one
v_lshlrev_b32 v{vWb}, 7, v{vFl}
v_lshl_add_u32 v{vWb}, v{vB}, 3, v{vWb}
v_lshrrev_b32 v{vQd}, 1, v{vQd}
v_lshl_add_u32 v{vWb}, v{vQd}, 6, v{vWb}
v_add_u32 v{vW0}, {L_W}, v{vWb}
v_lshlrev_b32 v{vB}, 4, v{vRho}
v_mad_u32_u24 v{vB}, v{vG}, s{S_KS}, v{vB}
v_lshrrev_b32 v{vC}, 2, v{vA}
v_mul_u32_u24 v{vC}, {QS}, v{vC}
v_lshl_add_u32 v{vC}, v{vG}, 6, v{vC}
v_and_b32 v{vQd}, 3, v{vA}
v_lshl_add_u32 v{vC}, v{vQd}, 4, v{vC}
v_cndmask_b32 v{vSt}, v{vC}, v{vB}, vcc
s_lshl2_add_u32 s{sTmp}, s{S_TILE}, s{S_W}
s_lshl_b32 s{sTmp2}, s{sTmp}, 9
s_add_u32 s{sTmp2}, s{sTmp2}, {WS_K}
s_lshl_b32 s{sTmp}, s{sTmp}, 8
s_add_u32 s{sTmp}, s{sTmp}, {WS_V}
s_movk_i32 s{sS2}, 128
s_cmp_eq_u32 s{S_HG}, 0
s_cselect_b32 s{sSt}, s{sTmp2}, s{sTmp}
s_cselect_b32 s{sS2}, {2*KS}, s{sS2}
s_mul_i32 s{sTmp}, s{S_C}, {8*KS}
s_add_u32 s{sSt}, s{sSt}, s{sTmp}
v_lshrrev_b32 v{vB}, 2, v{V_LANE}
v_mul_u32_u24 v{vB}, 2688, v{vB}
v_lshl_add_u32 v{vQd}, v{vQd}, 4, v{vB}
s_lshl_b32 s82, s{S_O0}, 4
s_mul_i32 s{sTmp}, s{S_W}, {16*2688}
s_add_u32 s82, s82, s{sTmp}
s_lshr_b32 s{sTmp}, s{S_O0}, 3
s_add_u32 s{sTmp2}, s{S_O0}, 3
s_lshr_b32 s{sTmp2}, s{sTmp2}, 3
s_sub_u32 s{sTmp2}, s{sTmp2}, s{sTmp}
v_bfe_u32 v{vC}, v{V_LANE}, 4, 1
v_mul_u32_u24 v{vC}, s{sTmp2}, v{vC}
v_lshl_add_u32 v{vC}, v{vG}, 3, v{vC}
v_add_u32 v{vC}, s{sTmp}, v{vC}
v_and_b32 v{vB}, 15, v{V_LANE}
{FIX}v_and_b32 v{vB}, {3 if OPT['wgf'] else 15}, v{V_LANE}
v_lshl_add_u32 v{vC}, v{vC}, 6, v{vB}
s_lshl_b32 s{sTmp}, s{S_W}, {2 if OPT['wgf'] else 4}
v_add_u32 v{vC}, s{sTmp}, v{vC}
v_lshlrev_b32 v{vC}, {FSH}, v{vC}
v_add_u32 v{vFl}, {F_KV}, v{vC}
v_lshlrev_b32 v{vKo0}, 4, v{vA}
v_mad_u32_u24 v{vKo0}, v{vG}, s{S_KS}, v{vKo0}
v_add_u32 v{vKo1}, {2*KS}, v{vKo0}
v_lshrrev_b32 v{vA}, 2, v{vRho}
{ONES}v_mul_u32_u24 v{vA}, {QS}, v{vA}
v_lshl_add_u32 v{vA}, v{vG}, 6, v{vA}
v_and_b32 v{vB}, 3, v{V_LANE}
v_lshl_add_u32 v{vVo}, v{vB}, 4, v{vA}
v_mov_b32 v{vIdx}, 0xdddddddd
s_mul_i32 s{sTmp}, s{S_O0}, {KS}
s_lshl_b32 s{sK}, s{S_W}, 13
s_add_u32 s{sK}, s{sK}, s{sTmp}
s_add_u32 s{sK}, s{sK}, {WS_K}
s_lshl_b32 s{sV}, s{S_W}, 12
s_add_u32 s{sV}, s{sV}, s{sTmp}
s_add_u32 s{sV}, s{sV}, {WS_V}
s_lshl2_add_u32 s{sTmp2}, s{S_TILE}, s{S_W}
{FOM}s_lshl_b32 s{sTmp2}, s{sTmp2}, 9
s_add_u32 s{sO0}, s{sTmp}, s{sTmp2}
s_add_u32 s{sO0}, s{sO0}, {WS_O}
s_add_u32 s{sO1}, s{sO0}, {2*KS}
s_bitcmp1_b32 s{S_H}, 0
s_cselect_b64 s[{sOdd}:{sOdd+1}], -1, 0
v_mov_b32 v{vC}, 0x3e8b97f6
v_cmp_gt_u32 vcc, 32, v{V_LANE}
s_and_b64 s[78:79], vcc, s[{sOdd}:{sOdd+1}]
s_nor_b64 s[80:81], vcc, s[{sOdd}:{sOdd+1}]
v_cndmask_b32 v{vA}, v{vC}, 0, s[78:79]
v_cndmask_b32 v{vB}, v{vC}, 0, s[80:81]
s_mov_b32 s78, 0x3f803f80
s_mov_b32 s79, s78
v_xor_b32 v{vW1}, 64, v{vW0}
v_lshlrev_b32 v{vOs}, 4, v{vRho}
v_mad_u32_u24 v{vOs}, v{vG}, s{S_KS}, v{vOs}
v_lshl_add_u32 v{vQw}, v{V_LANE}, 4, s{sLx}''')
srd(SRD_C, 28, WS_SIZE)
def o_stores(r0, r1, tag):
    e(f'''s_bitcmp1_b32 s{S_H}, 0
    s_cbranch_scc1 L_ost_odd{tag}
    buffer_store_dwordx4 {vr(r0,4)}, v{vOs}, {sr(SRD_WS)}, s{sO0} offen sc1
    s_mov_b32 exec_hi, 0
    buffer_store_dwordx4 {vr(r1,4)}, v{vOs}, {sr(SRD_WS)}, s{sO1} offen sc1
    s_not_b64 exec, exec
    buffer_store_dwordx2 {vr(r1,2)}, v{vOs}, {sr(SRD_WS)}, s{sO1} offen sc1
    s_branch L_ost_done{tag}
    L_ost_odd{tag}:
    buffer_store_dwordx4 {vr(r1,4)}, v{vOs}, {sr(SRD_WS)}, s{sO1} offen sc1
    s_mov_b32 exec_hi, 0
    buffer_store_dwordx2 {vr(r0+2,2)}, v{vOs}, {sr(SRD_WS)}, s{sO0} offen offset:8 sc1
    s_not_b64 exec, exec
    buffer_store_dwordx4 {vr(r0,4)}, v{vOs}, {sr(SRD_WS)}, s{sO0} offen sc1
    L_ost_done{tag}:
    s_mov_b64 exec, -1''')
GS = 0
AB = [l for l in SEC.pop('tmp') if not l.strip().startswith(';')]
sec('mha')
def scc_pending(i):
    return i < len(AB) and AB[i].strip().startswith(('s_cselect', 's_mov_b32 s75'))
pos = 0
for g in DM:
    n = pos + OPT['ilv']
    while scc_pending(n): n += 1
    e('\n'.join(AB[pos:n])); pos = n
    e('\n'.join(g))
e('\n'.join(AB[pos:]))
stamp(0)
def x_reads(s):
    return [f'ds_read_b128 {vr(VX + 16*s + 4*ks, 4)}, v{vXr[ks]} offset:{(s%3)*4096}' for ks in range(4)]
e('s_waitcnt vmcnt(22)')
e('\n'.join(x_reads(0)))
e('s_waitcnt vmcnt(8) lgkmcnt(0)')
arrive(1)
stamp(1)
e('\n'.join(x_chunk(3)))
e('s_waitcnt vmcnt(8)')
e('\n'.join(x_reads(1)))
lwait(1)
e(f's_add_u32 s{S_NONCE}, s{S_NONCE}, 1')
stamp(2)
def w_reads(s):
    r = []
    for ks in range(4):
        for ct in range(2):
            for hf in range(2):
                d = VWF + 32 * (s & 1) + 8 * ks + 4 * ct + 2 * hf
                r.append(f'ds_read_b64_tr_b16 {vr(d,2)}, v{(vW0, vW1)[ct]} offset:{s*8192 + ks*2048 + hf*512}')
    return r
if OPT['tskip']: e(f's_cmp_eq_u32 s{S_C}, 7\ns_cbranch_scc1 L_gemm_t')
e('\n'.join(w_reads(0)))
e(f'''s_waitcnt lgkmcnt(0)
s_cmp_lg_u32 s{S_HG}, 0
s_cbranch_scc1 L_gemm_v''')
sQb, sQc = 82, 83
NE = OPT['wq_early']
def wq_dma(st):
    return [f's_add_u32 m0, s{sLx}, {4096 + 1024*st}\ns_add_u32 s83, s82, {64*2688*st}', '', f'buffer_load_dwordx4 v{vQd}, {sr(SRD_B)}, s83 offen lds']
SPIN = []
def gemm1(vpart):
    for s in range(7):
        M = []
        for ks in range(4):
            for ct in range(2):
                wf = vr(VWF + 32 * (s & 1) + 8 * ks + 4 * ct, 4); xf = vr(VX + 16 * s + 4 * ks, 4)
                acc = vr(VACC + 16 * ct, 16)
                a, b = (xf, wf) if vpart else (wf, xf)
                M.append(f'v_mfma_f32_32x32x16_bf16 {acc}, {a}, {b}, {"0" if s == 0 and ks == 0 else acc}')
        gaps = [[] for _ in range(8)]
        tag = f'{"v" if vpart else "k"}{s}'
        pre = []
        dm = []
        def add(l): dm.extend([(l[0], l[2])] + [(None, x) for x in l[3:]])
        if s <= 2: add(x_chunk(s + 4))
        if s == 3:
            for i in range(min(NE, 4)): add(wq_dma(i))
        if s == 4:
            for i in range(4, NE): add(wq_dma(i))
        n = {0: 8, 1: 8, 2: 8, 3: 4 + min(NE, 4), 4: NE}.get(s)
        for i, (m, l) in enumerate(dm):
            if m: (pre if i == 0 else gaps[i - 1]).append(m)
            gaps[i].append(l)
        if s < 6:
            wr = w_reads(s + 1)
            for i, (p, q) in enumerate(((0, 3), (3, 6), (6, 9), (9, 12), (12, 16))): gaps[i] += wr[p:q]
            if s <= 4: gaps[OPT['xg']] += [f's_waitcnt vmcnt({n})'] + x_reads(s + 2)
            gaps[7] += [f's_waitcnt lgkmcnt({4 if s == 4 and OPT["s6"] != 4 else 0})']
        if s == OPT['s6'] and (OPT['uw'] == 6 or OPT['cw'] == 6): gaps[6] += [f'v_mov_b32 v{V_T}, 6', f'ds_write_b32 v{V_OWN}, v{V_T}']
        if s == 5:
            gaps[7] += [f'v_add_u32 v31, 16, v{V_GRP}', f'ds_read_b32 v31, v31']
        if s == 6 and NE == 7:
            gaps[OPT['qa']] += ['s_waitcnt vmcnt(0)', f'v_mov_b32 v{V_T}, 7', f'ds_write_b32 v{V_OWN}, v{V_T}']
        e('\n'.join(pre))
        if OPT['gx'] & 1 or vpart == 2: M = ['s_nop 0'] * 8
        if OPT['gx'] & 2 or vpart == 2: gaps = [[x for x in g if 'tr_b16' not in x] for g in gaps]
        for i in range(8):
            e(M[i]); e('\n'.join(gaps[i]))
        stamp(14 + s)
if OPT['tskip']:
    sec('gt'); e('L_gemm_t:'); gemm1(2); e('s_branch L_gemm_done'); sec('mha')
else: SEC['gt'] = []
gemm1(False)
e('s_branch L_gemm_done\nL_gemm_v:')
gemm1(True)
e('L_gemm_done:')
stamp(3)
e(f"""s_add_u32 s{sS1}, s{sSt}, s{sS2}
s_add_u32 s{sXb}, s{sSt}, {4*KS}
s_add_u32 s{sCw}, s{sS1}, {4*KS}
s_cmp_eq_u32 s{S_C}, 7
s_waitcnt lgkmcnt(0)
s_cbranch_scc1 L_nokv
s_nop 4""")
for q, so in enumerate((sSt, sS1, sXb, sCw)):
    for i in range(4*q, 4*q+4):
        e(f'v_cvt_pk_bf16_f32 v{VPK + i}, v{VACC + 2*i}, v{VACC + 2*i + 1}')
    e(f'buffer_store_dwordx4 {vr(VPK+4*q,4)}, v{vSt}, {sr(SRD_WS)}, s{so} offen sc1')
if OPT['ones']:
    e(f'''s_branch L_kvst
    L_nokv:
    v_mov_b64 v[128:129], s[78:79]
    v_mov_b64 v[130:131], s[78:79]
    v_lshlrev_b32 v132, 4, v{V_LANE}
    s_lshl2_add_u32 s{sTmp}, s{S_TILE}, s{S_W}
    s_lshl_b32 s{sTmp}, s{sTmp}, 8
    s_mul_i32 s{sTmp2}, s{S_HG}, {QS}
    s_add_u32 s{sTmp}, s{sTmp}, s{sTmp2}
    s_add_u32 s{sTmp}, s{sTmp}, {WS_V + 112*QS}
    s_mov_b64 exec, 0xffff
    buffer_store_dwordx4 v[128:131], v132, {sr(SRD_WS)}, s{sTmp} offen sc1
    s_mov_b64 exec, -1
    L_kvst:''')
else: e('L_nokv:')
assert OPT['wgf'] and OPT['ones'] and OPT['pf'] == 2
def kv_loads(buf, i, srdn=SRD_C):
    return [f'buffer_load_dwordx4 {vr(VK + 8*buf, 4)}, v{vKo0}, {sr(srdn)}, s{sK} offen offset:{512*i} sc1',
            f'buffer_load_dwordx4 {vr(VK + 8*buf + 4, 4)}, v{vKo1}, {sr(srdn)}, s{sK} offen offset:{512*i} sc1',
            f'buffer_load_dwordx4 {vr(VV + 8*buf, 4)}, v{vVo}, {sr(srdn)}, s{sV} offen offset:{256*i} sc1',
            f'buffer_load_dwordx4 {vr(VV + 8*buf + 4, 4)}, v{vVo}, {sr(srdn)}, s{sV} offen offset:{256*i + 128} sc1']
fill = [f'v_mov_b64 {vr(VV+2*i,2)}, s[78:79]' for i in range(12, 16)] + [f'v_subrev_u32 v{vRr}, {L_X - L_RB}, v{vQw}', 's_mov_b64 s[80:81], -1']
for s in range(3):
    fill += f"""s_add_u32 s{sTmp}, s{S_W}, {1+s}
    s_and_b32 s{sTmp}, s{sTmp}, 3
    s_sub_u32 s{sTmp}, s{sTmp}, s{S_W}
    s_mul_i32 s{sTmp}, s{sTmp}, 12288
    v_add_u32 v{vQx[s]}, s{sTmp}, v{vQw}
    v_subrev_u32 v{vRb[s]}, {L_X - L_RB - 4096*s}, v{vQx[s]}""".split('\n')
def count_in(n):
    e(f"""v_mov_b32 v{V_T}, 1
    v_mov_b32 v31, 0
    s_waitcnt vmcnt({n})
    s_mov_b64 exec, 1
    ds_add_rtn_u32 v{vSt}, v31, v{V_T} offset:32
    s_mov_b64 exec, -1""")
def count_out(n):
    e(f's_waitcnt lgkmcnt({n})\nv_readfirstlane_b32 s{sTmp2}, v{vSt}\ns_cmp_lg_u32 s{sTmp2}, 3\ns_cbranch_scc1 L_nopub')
    publish(sFl, 31)
    e('L_nopub:'); stamp(5)
NM = max(NE, OPT['wq_mid'])
for st in range(NE, NM): e('\n'.join(wq_dma(st)))
stamp(4)
e(f'v_cmp_gt_u32 vcc, 1, v31\ns_cbranch_vccz L_eok\nv_add_u32 v31, 16, v{V_GRP}')
lwait(1, addr=31)
e('L_eok:')
if NE < 7:
    e('\n'.join(fill)); fill = []
    count_in(NM - NE)
    if NM == 7:
        e('s_waitcnt vmcnt(0)'); arrive(7); count_out(1)
    else:
        count_out(0)
        for st in range(NM, 7): e('\n'.join(wq_dma(st)))
        e('s_waitcnt vmcnt(0)'); arrive(7)
lwait(7)
stamp(6)
QB = [80, 84, 88, 92, 112, 116, 120, 124]
def q_reads(k):
    s, ks = divmod(k, 4)
    return [f'ds_read_b64_tr_b16 {vr(QB[k%8] + 2*hf, 2)}, v{vQr} offset:{ks*12288 + s*1024 + hf*256}' for hf in range(2)]
for k in range(6): e('\n'.join(q_reads(k)))
e('\n'.join(fill[:12])); fill = fill[12:]
zi = 0
PK = OPT['pubk'] if NE == 7 else -99
for k in range(28):
    extra = 1 if PK < k <= PK + 5 else 0
    e(f's_waitcnt lgkmcnt({min(10, 2*(27-k)) + extra})')
    e(f'v_mfma_f32_32x32x16_bf16 {vr(VACC,16)}, {vr(QB[k%8], 4)}, {vr(VX + 4*k, 4)}, {"0" if k == 0 else vr(VACC,16)}')
    if k + 6 < 28: e('\n'.join(q_reads(k + 6)))
    while zi < 40 and VX + 2*zi + 1 < VX + 4*k - 4 and zi < 2*k:
        e(f'v_mov_b64 {vr(VX + 2*zi, 2)}, 0'); zi += 1
    if k >= 22 or k < 2:
        e('\n'.join(fill[:4])); fill = fill[4:]
    if k == PK: count_in(0)
    if k == PK + OPT['wgf']: count_out(2*OPT['wgf'])
    if k == OPT['pollk']: e(f'buffer_load_dword v31, v{vFl}, {sr(SRD_WS)}, 0 offen sc1')
    if k == OPT['chkk']:
        e(f's_waitcnt vmcnt(0)\nv_cmp_ne_u32 vcc, s{S_NONCE}, v31\ns_mov_b64 s[80:81], vcc\ns_cbranch_vccnz L_kv_late')
        for t in range(2): e('\n'.join(kv_loads(t, t)))
        e('L_kv_late:')
assert zi == 40 and VX == VS + 48 and not fill
stamp(7)
e('s_nop 11')
for r in range(16):
    m = vA if r < 4 else (vB if r >= 12 else vC)
    e(f'v_mul_f32 v{VACC + r}, v{m}, v{VACC + r}')
for i in range(8):
    e(f'v_cvt_pk_bf16_f32 v{VQ + 24 + i}, v{VACC + 2*i}, v{VACC + 2*i + 1}')
e(f"""ds_write_b128 v{vQw}, {vr(VQ+24,4)}
ds_write_b128 v{vQw}, {vr(VQ+28,4)} offset:1024""")
arrive(8)
lwait(8)
for s in range(3):
    e(f'ds_read_b128 {vr(VQ+8*s,4)}, v{vQx[s]}\nds_read_b128 {vr(VQ+8*s+4,4)}, v{vQx[s]} offset:1024')
PF = OPT['pf']
if OPT['chkk'] < 28: e('s_cmp_eq_u64 s[80:81], 0\ns_cbranch_scc1 L_kv_done')
poll(vFl, first_issued=OPT['pollk'] < 28 and OPT['chkk'] > 27, reg=31, sleep=OPT['ksleep'])
for t in range(PF): e('\n'.join(kv_loads(t, t)))
e('L_kv_done:')
stamp(8)
OM = OPT['omode']
if OM:
    e(f'''s_lshr_b32 s{sTmp}, s{S_O0}, 3
    s_add_u32 s{sTmp2}, s{S_O0}, 3
    s_lshr_b32 s{sTmp2}, s{sTmp2}, 3
    s_sub_u32 s{sTmp2}, s{sTmp2}, s{sTmp}
    s_lshl_b32 s{sTmp2}, s{sTmp2}, 6
    s_lshl_b32 s{sTmp}, s{sTmp}, 6
    s_lshl2_add_u32 s{sSt}, s{S_TILE}, s{S_W}
    s_add_u32 s{sTmp}, s{sTmp}, s{sSt}
    s_lshl_b32 s{sTmp}, s{sTmp}, {FSH}
    s_add_u32 s{sTmp}, s{sTmp}, {F_Y}
    v_and_b32 v{vFl}, 1, v{V_LANE}
    v_mul_u32_u24 v{vFl}, s{sTmp2}, v{vFl}
    v_and_b32 v31, 2, v{V_LANE}
    v_lshl_add_u32 v{vFl}, v31, 8, v{vFl}
    v_lshl_add_u32 v{vFl}, v{vFl}, {FSH}, s{sTmp}''')
def qk(buf, slot, js):
    d = vr(VS + 16*slot, 16)
    return f'v_mfma_f32_32x32x16_bf16 {d}, {vr(VK + 8*buf + 4*js, 4)}, {vr(VQ + 8*slot + 4*js, 4)}, {"0" if js == 0 else d}'
def pv(buf, slot, js):
    return f'v_smfmac_f32_32x32x32_bf16 {vr(VO + 16*slot, 16)}, {vr(VV + 8*buf + 4*js, 4)}, {vr(VS + 16*slot + 8*js, 8)}, v{vIdx}'
def exps(s): return [f'v_exp_f32 v{VS + 16*s + r}, v{VS + 16*s + r}' for r in range(16)]
SPREAD = []
def unit(t, s):
    ex = exps(s)
    if OPT['ax'] & 16 and s in (0, 1, 2):
        pass
    nb = t if s < 3 else (t + 1) & 3
    pb = t if s > 0 else (t - 1) & 3
    if s == 3: e(f's_waitcnt vmcnt({4*PF-4})')
    e(qk(nb, (s+1) & 3, 0)); e('\n'.join(ex[0:4]))
    e(qk(nb, (s+1) & 3, 1)); e('\n'.join(ex[4:8]))
    e(pv(pb, (s-1) & 3, 0))
    if s == 1:
        kl = kv_loads((t + PF) & 3, t + PF)
        if OPT['ax'] & 1: kl = [x for x in kl if 'exec' not in x]
        if OPT['ax'] & 2: kl = [x for x in kl if 'buffer' not in x]
        if OPT['ax'] & 4: kl = [x.replace(' sc1', '') for x in kl]
        if OPT['ax'] & 8: SPREAD.extend(kl); kl = []
        e('\n'.join(kl))
        if t == 3 - PF:
            e(f's_cmp_eq_u32 s{sIt}, 3\ns_cselect_b32 s{SRD_C+2}, 0, s{SRD_C+2}')
        if t == 3:
            e(f's_add_u32 s{sK}, s{sK}, 2048\ns_add_u32 s{sV}, s{sV}, 1024\ns_add_u32 s{sIt}, s{sIt}, 1\ns_cmp_lg_u32 s{sIt}, 4')
    e('\n'.join(ex[8:12]))
    e(pv(pb, (s-1) & 3, 1)); e('\n'.join(ex[12:16]))
e(f's_mov_b32 s{sIt}, 0\ns_waitcnt vmcnt({4*PF - 4}) lgkmcnt(0)')
stamp(9)
e(qk(0, 0, 0)); e(qk(0, 0, 1))
e(f"s_setprio {OPT['pa']}\ns_nop 8\ns_branch L_att_in" if OPT['prio'] else 's_nop 9\ns_branch L_att_in')
e('L_att:')
unit(3, 2); unit(3, 3)
e('L_att_in:')
for t in range(4):
    for s in range(4):
        if (t, s) < (3, 2): unit(t, s)
e('s_cbranch_scc1 L_att')
if OPT['prio']: e(f"s_setprio {OPT['pm']}")
if OM: e(f'buffer_load_dword v31, v{vFl}, {sr(SRD_WS)}, 0 offen sc1')
def rbw(s): return [f'ds_write_b128 v{vRb[s]}, {vr(VO + 16*s + 4*i, 4)} offset:{1024*i}' for i in range(4)]
ex = exps(2); w0 = rbw(0)
e(qk(3, 3, 0)); e('\n'.join(ex[0:4])); e(qk(3, 3, 1)); e('\n'.join(ex[4:7] + [w0[0]]))
e(pv(3, 1, 0)); e('\n'.join(ex[7:10] + [w0[1]])); e(pv(3, 1, 1)); e('\n'.join(ex[10:13] + [w0[2]] + ex[13:16] + [w0[3]]))
ex = exps(3); w1 = rbw(1); w2 = rbw(2)
e(pv(3, 2, 0)); e('\n'.join(ex[0:3])); e(pv(3, 2, 1))
e('\n'.join([w1[0]] + ex[3:5] + [w1[1]] + ex[5:7] + [w1[2]] + ex[7:9] + [w1[3]] + ex[9:10]))
e(pv(3, 3, 0))
e('\n'.join([w2[0]] + ex[10:12] + [w2[1]] + ex[12:14] + [w2[2]] + ex[14:16] + [w2[3]]))
arrive(9)
e(pv(3, 3, 1))
stamp(10)
lwait(9)
for i in range(12): e(f'ds_read_b128 {vr(VS + 4*i, 4)}, v{vRr} offset:{1024*i}')
OA = VO + 48
for s in range(3):
    e(f's_waitcnt lgkmcnt({8 - 4*s})')
    for i in range(8): e(f'v_pk_add_f32 {vr(OA+2*i,2)}, {vr(OA+2*i,2)}, {vr(VS+16*s+2*i,2)}')
e(f's_mov_b32 s{sIt}, {1 if OPT["force_fb"] else 0}')
e(f'''L_norm:
v_cndmask_b32 v{vA}, v{OA+12}, v{OA}, s[{sOdd}:{sOdd+1}]
v_max3_f32 v{vC}, abs(v{OA}), abs(v{OA+1}), abs(v{OA+2})
v_mov_b32 v{vB}, v{vA}
v_max3_f32 v{vC}, abs(v{OA+3}), abs(v{OA+4}), v{vC}
v_max3_f32 v{vC}, abs(v{OA+5}), abs(v{OA+6}), v{vC}
v_permlane32_swap_b32 v{vA}, v{vB}
v_max3_f32 v{vC}, abs(v{OA+7}), abs(v{OA+8}), v{vC}
v_cndmask_b32 v{vB}, v{vB}, v{vA}, s[{sOdd}:{sOdd+1}]
v_max3_f32 v{vC}, abs(v{OA+9}), abs(v{OA+10}), v{vC}
v_rcp_f32 v{vA}, v{vB}
v_max3_f32 v{vC}, abs(v{OA+11}), abs(v{OA+12}), v{vC}
v_max3_f32 v{vC}, abs(v{OA+13}), abs(v{OA+14}), v{vC}
v_max_f32 v{vC}, abs(v{OA+15}), v{vC}
v_cmp_nle_f32 vcc, 0x30800000, v{vB}
s_mov_b64 s[78:79], vcc
v_cmp_nge_f32 vcc, 0x4e800000, v{vB}
s_or_b64 s[78:79], s[78:79], vcc
v_cmp_ngt_f32 vcc, 0x7f000000, v{vC}
s_or_b64 vcc, s[78:79], vcc''')
if OPT['force_fb']:
    e(f's_cmp_eq_u32 s{sIt}, 1\ns_cbranch_scc1 L_fb')
e('s_cbranch_vccnz L_fb0\nL_norm2:')
for i in range(8): e(f'v_pk_mul_f32 {vr(OA+2*i,2)}, {vr(OA+2*i,2)}, {vr(vA,2)} op_sel_hi:[1,0]')
for i in range(8): e(f'v_cvt_pk_bf16_f32 v{VS+i}, v{OA+2*i}, v{OA+2*i+1}')
if OM: poll(vFl, first_issued=2, reg=31)
o_stores(VS, VS + 4, '')
stamp(11)
if OM == 4: publish(sFo, vA)
if OPT['obar'] == 1: e('s_barrier')
if OPT['obar'] >= 3: e(f"s_waitcnt vmcnt({5 - OPT['obar'] + (OM == 4)})\ns_barrier")
if OM == 0:
    e('s_waitcnt vmcnt(0)'); publish(sFo, vA)
if OPT['obar'] == 2: e('s_barrier')
stamp(12)
prof_out()
e('s_endpgm')

for tag, st in SPIN:
    e(f'L_ws_{tag}:'); lwait(st); e(f's_branch L_wb_{tag}')
sec('fb')
e(f'''L_fb0:
s_cmp_eq_u32 s{sIt}, 2
s_cbranch_scc1 L_norm2
L_fb:
s_waitcnt vmcnt(0)
s_mul_i32 s{sTmp}, s{S_O0}, {KS}
s_add_u32 s{sK}, s{sTmp}, {WS_K}
s_add_u32 s{sV}, s{sTmp}, {WS_V}
v_mov_b32 v{vC}, 0xff800000
s_mov_b32 s{sIt}, 0
L_fb1:''')
e('\n'.join(kv_loads(0, 0, SRD_WS)[:2]))
e('s_waitcnt vmcnt(0)')
e(qk(0, 3, 0)); e(qk(0, 3, 1)); e('s_nop 11')
for i in range(8): e(f'v_max3_f32 v{vC}, v{VS+48+2*i}, v{VS+49+2*i}, v{vC}')
e(f'''s_add_u32 s{sK}, s{sK}, 512
s_add_u32 s{sIt}, s{sIt}, 1
s_cmp_lg_u32 s{sIt}, 64
s_cbranch_scc1 L_fb1
v_mov_b32 v{vA}, v{vC}
s_sub_u32 s{sK}, s{sK}, 0x8000
s_mov_b32 s{sIt}, 0
v_permlane32_swap_b32 v{vA}, v{vC}
v_max_f32 v{vC}, v{vA}, v{vC}''')
for i in range(8): e(f'v_mov_b64 {vr(OA+2*i,2)}, 0')
e('L_fb2:')
e('\n'.join(kv_loads(0, 0, SRD_WS)))
e('s_waitcnt vmcnt(0)')
e(qk(0, 3, 0)); e(qk(0, 3, 1)); e('s_nop 11')
for i in range(16): e(f'v_sub_f32 v{VS+48+i}, v{VS+48+i}, v{vC}')
for i in range(16): e(f'v_exp_f32 v{VS+48+i}, v{VS+48+i}')
e('s_nop 1')
e(pv(0, 3, 0)); e(pv(0, 3, 1))
e(f'''s_add_u32 s{sK}, s{sK}, 512
s_add_u32 s{sV}, s{sV}, 256
s_add_u32 s{sIt}, s{sIt}, 1
s_cmp_lg_u32 s{sIt}, 64
s_cbranch_scc1 L_fb2
s_mov_b32 s{sIt}, 2
s_nop 11
s_branch L_norm''')

sD0, sD, sHw, sDs, sTab, sA, sB, sLd, sSk, sIt2, sFlU, sInv, sUns, sSel, sUl, sOl, sCh0 = range(60, 77)
sUs, sOut, sHm = 78, 80, 82
sE2, sP, sE3, sKd = 84, 85, 86, 87
OUTM = 'sc1' if OPT['outsc'] & 1 else ''
OUTM2 = 'sc1' if OPT['outsc'] & 2 else ''
a0, a1, a2, a3 = 5, 6, 7, 9
vPar = 10
vKc = 18
vRa, vRb_, vKd, vKd1, vKa, vKa0, vFu, vE1, vE1b, vFr, vKxo, vKxp, vPair, vRz, vBk, vA0, vA1, vKb, vSB, vSB0 = range(20, 40)
vSel = 180
vAc = 40
vOne, vScl, vAdd, vC0 = range(56, 60)
vOp = 64
vY = 128
vXt = 144
vAn = 166
vX1 = 172
T0, T1 = 160, 176
vZ = 192
U = 204
vZer = 220
vUa, vCd, vG_, vZp, vKp, vF_, vL16, vXo, vXp, vTr, vYl, vYs, vFy = range(224, 237)
vWoD = 238
vWoR = 240
vOl, vFo, vBw, vBr, vOut = range(242, 247)
def hi():
    if OPT['prio']: e('s_setprio 3')
KG = [True]
def lo():
    if OPT['prio']: e(f"s_setprio {OPT['kgp'] if KG[0] else OPT['ps']}")
ROLE[0] = 1
sec('ssm0')
e(f"""s_cmp_{'eq' if OPT['only'] != 2 else 'le'}_u32 s{S_C}, 7
s_cbranch_scc1 L_ssm_idle
s_lshr_b32 s{sDs}, s{S_W}, 1
s_lshl_b32 s{sD0}, s{S_C}, 6
s_lshl1_add_u32 s{sD0}, s{S_J}, s{sD0}
s_add_u32 s{sD}, s{sD0}, s{sDs}
s_mul_i32 s{sTab}, s{S_W}, {TABSZ}
s_add_u32 s{sTab}, s{sTab}, {L_TAB}
s_lshl1_add_u32 s{sA}, s{sD0}, s{S_W}
s_lshl_b32 s{sA}, s{sA}, 8
v_lshl_add_u32 v{a0}, v{V_LANE}, 2, s{sA}
s_mov_b32 m0, s{sTab}
s_lshl_b32 s{sB}, s{sD0}, 1
s_waitcnt lgkmcnt(0)
s_load_dword s{sLd}, s[14:15], s{sB}
s_load_dword s{S_NONCE}, s[28:29], 0
s_load_dword s{sSk}, s[16:17], s{sB}
global_load_dword v{vPar+0}, v{a0}, s[6:7]
global_load_dword v{vPar+1}, v{a0}, s[8:9]
global_load_dword v{vPar+2}, v{a0}, s[10:11]
global_load_dword v{vPar+3}, v{a0}, s[12:13]""")
if OPT['tlb'] != 2: e('s_barrier')
if OPT['tlb']:
    e(f'''v_and_b32 v{a0}, 7, v{V_LANE}
    v_min_u32 v{a0}, 5, v{a0}
    v_lshlrev_b32 v{a0}, 21, v{a0}
    v_add_u32 v{a0}, 0xf8000, v{a0}
    v_mov_b32 v{a1}, 0
    global_load_dword v8, v{a0}, s[28:29]
    global_load_dword v8, v{a1}, s[22:23]''')
if OPT['tlb'] == 2: e('s_barrier')
e('s_branch L_ssm')
sec('ssm')
e('L_ssm:')
if OPT['abl'] == 1:
    arrive(1); e('s_waitcnt vmcnt(0) lgkmcnt(0)\ns_endpgm')
lo()
srd(SRD_WS, 28, WS_SIZE)
e(f"""s_and_b32 s{sHw}, s{S_W}, 1
v_add_u32 v{V_GRP}, 16, v{V_GRP}
v_and_b32 v{a0}, 15, v{V_LANE}
v_lshrrev_b32 v{a1}, 4, v{V_LANE}
v_lshl_add_u32 v{vRb_}, v{a1}, 4, s{sTab}
v_mul_u32_u24 v{a2}, {TROW}, v{a0}
v_add_u32 v{vRa}, v{a2}, v{vRb_}
v_lshlrev_b32 v{vL16}, 4, v{V_LANE}
v_mov_b32 v{vOne}, 0x3c00
ds_write_addtid_b32 v{vOne}""")
for i in range(8): e(f'v_mov_b64 {vr(vAc+2*i,2)}, 0')
mid = f"""v_and_b32 v{a0}, 7, v{V_LANE}
s_lshl_b32 s{sB}, s{S_W}, {3 + FSH}
s_add_u32 s{sB}, s{sB}, {F_U}
v_lshl_add_u32 v{vFu}, v{a0}, {FSH}, s{sB}
s_mul_i32 s{sP}, s{sDs}, {P_SZ}
s_add_u32 s{sP}, s{sP}, {L_TAB}
s_add_u32 s{sKd}, s{sP}, {P_KD}
s_lshl_b32 s{sB}, s{sHw}, 8
s_add_u32 s{sInv}, s{sB}, s{sKd}
s_add_u32 s{sA}, s{sInv}, {1088 + 128}
v_lshl_add_u32 v{vRz}, v{a0}, 4, s{sA}
v_mov_b32 v{vKb}, s{sKd}
v_and_b32 v{a0}, 15, v{V_LANE}
v_lshrrev_b32 v{a1}, 4, v{V_LANE}
s_lshl_b32 s{sA}, s{sHw}, 4
v_add_u32 v{a0}, s{sA}, v{a0}
v_and_b32 v{a3}, 1, v{V_LANE}
v_mul_u32_u24 v{a2}, 255, v{a3}
v_sub_u32 v{a2}, v{a2}, v{a0}
s_add_u32 s{sA}, s{sKd}, {1088 + 32}
v_add_u32 v{vKa}, s{sA}, v{a2}
v_add_u32 v{vKa0}, 96, v{vKa}
s_lshl3_add_u32 s{sA}, s{sDs}, 16
v_lshl_add_u32 v{vPair}, v{a3}, 2, s{sA}
s_mul_i32 s{sA}, s{sHw}, {1088 + 112 - 1024}
s_add_u32 s{sA}, s{sA}, s{sKd}
s_add_u32 s{sA}, s{sA}, 1024
v_writelane_b32 v{vKa0}, s{sA}, 0
s_mul_i32 s{sA}, s{sHw}, 56
s_sub_u32 s{sA}, s{sKd}, s{sA}
s_add_u32 s{sA}, s{sA}, 1088
v_writelane_b32 v{vKa0}, s{sA}, 16
v_max_u32 v{a2}, 1, v{a1}
v_sub_u32 v{a2}, 5, v{a2}
v_lshlrev_b32 v{a0}, v{a2}, v{a0}
v_lshlrev_b32 v{a2}, 3, v{a1}
s_mov_b32 s{sA}, 0x60400100
v_bfe_u32 v{a1}, s{sA}, v{a2}, 8
v_lshl_add_u32 v{a0}, v{a1}, 3, v{a0}
v_add_u32 v{vKd}, s{sKd}, v{a0}
s_mov_b32 s{sA}, 0x80040404
v_bfe_u32 v{a1}, s{sA}, v{a2}, 8
v_add_u32 v{vKd1}, v{a1}, v{vKd}
v_lshrrev_b32 v{a1}, 1, v{V_LANE}
v_lshlrev_b32 v{vUa}, 6, v{a1}
v_lshl_add_u32 v{vUa}, v{a3}, 4, v{vUa}
s_lshr_b32 s{sA}, s{sD0}, 2
s_mul_i32 s{sA}, s{sA}, {QS}
s_and_b32 s{sB}, s{sD0}, 3
s_lshl4_add_u32 s{sA}, s{sB}, s{sA}
s_lshl_b32 s{sB}, s{S_W}, 12
s_add_u32 s{sA}, s{sA}, s{sB}
s_add_u32 s{sUl}, s{sA}, {WS_U}
v_and_b32 v{a1}, 3, v{a1}
v_lshl_add_u32 v{a1}, v{a3}, 2, v{a1}
v_mul_u32_u24 v{a1}, {PS}, v{a1}
v_lshrrev_b32 v{a2}, 3, v{V_LANE}
v_lshl_add_u32 v{a1}, v{a2}, 4, v{a1}
s_lshl_b32 s{sA}, s{S_W}, 8
s_add_u32 s{sA}, s{sA}, {L_KP + 512}
v_add_u32 v{vKp}, s{sA}, v{a1}
v_lshrrev_b32 v{a1}, 5, v{V_LANE}
s_lshl_b32 s{sA}, s{sHw}, 1
v_max_u32 v{a0}, s{sA}, v{a1}
v_min_u32 v{a2}, 1, v{a0}
v_mul_u32_u24 v{a2}, 0x0202, v{a2}
v_lshlrev_b32 v{a2}, 16, v{a2}
v_sub_u32 v{vSel}, 0x03020100, v{a2}
v_mul_u32_u24 v{a2}, 0x0202, v{a0}
v_lshl_or_b32 v{a2}, v{a2}, 16, v{a2}
v_sub_u32 v{vSel+1}, 0x07060504, v{a2}
s_mul_i32 s{sA}, s{sHw}, 0x02020202
v_add_u32 v{vSel+2}, s{sA}, v{vSel}
s_mul_i32 s{sA}, s{sHw}, 0x02020404
v_add_u32 v{vSel+3}, s{sA}, v{vSel+1}
v_lshrrev_b32 v{a2}, v{a0}, v{vL16}
s_movk_i32 s{sA}, 256
v_lshl_add_u32 v{a2}, s{sA}, v{a0}, v{a2}
s_sub_u32 s{sA}, s{sKd}, 256
v_add_u32 v{vE1}, s{sA}, v{a2}
v_lshlrev_b32 v{a2}, 2, v{a0}
v_sub_u32 v{vE1b}, v{vE1}, v{a2}
s_mov_b32 s{sA}, 0x0c0c0c0c
s_cmp_lg_u32 s{sHw}, 0
s_cselect_b32 s{sE2}, 0x01000100, s{sA}
s_cselect_b32 s{sE3}, 0x05040302, s{sA}
v_mov_b32 v{vSel+4}, s{sA}
v_mov_b32 v{vSel+5}, s{sA}
v_mov_b32 v{vSel+6}, s{sA}
v_mov_b32 v{vSel+7}, s{sA}
s_mov_b32 s{sA}, 0x05040504
s_mov_b64 exec, 15
v_mov_b32 v{vSel+4}, s{sA}
v_mov_b32 v{vSel+5}, s{sA}
v_mov_b32 v{vSel+6}, s{sA}
s_mov_b64 exec, -1
v_writelane_b32 v{vSel+7}, s{sA}, 3
s_mov_b32 s{sA}, 0x05040302
v_writelane_b32 v{vSel+4}, s{sA}, 3
s_mov_b32 s{sA}, 0x0c0c0504
v_writelane_b32 v{vSel+6}, s{sA}, 0
v_writelane_b32 v{vSel+7}, s{sA}, 2
s_mul_i32 s{sA}, s{S_W}, {2*PS}
s_add_u32 s{sA}, s{sA}, {L_KP}
v_mul_u32_u24 v{a2}, {PS - 512}, v{a1}
v_add3_u32 v{vG_}, v{a2}, v{vL16}, s{sA}
v_mov_b64 {vr(vZer,2)}, 0
v_mov_b64 {vr(vZer+2,2)}, 0
ds_write_b128 v{vG_}, {vr(vZer,4)}
s_lshl_b32 s{sA}, s{sHw}, 10
s_add_u32 s{sB}, s{sP}, {P_UC}
s_add_u32 s{sA}, s{sA}, s{sB}
s_add_u32 s{sA}, s{sA}, 64
v_add_u32 v{vCd}, s{sA}, v{vL16}
v_and_b32 v{a3}, 3, v{V_LANE}
v_and_b32 v{a0}, 0x1c, v{V_LANE}
v_lshlrev_b32 v{a2}, 2, v{a0}
v_and_b32 v{vZp}, 0x30, v{a2}
s_mov_b32 exec_hi, 0
v_add_u32 v{vZp}, 2112, v{a2}
s_mov_b64 exec, -1
v_mul_u32_u24 v{a2}, {UC_S}, v{a3}
v_add3_u32 v{vZp}, v{vZp}, v{a2}, s{sB}
v_lshlrev_b32 v{a0}, 1, v{a0}
v_sub_u32 v{a0}, v{a0}, v{a2}
v_lshlrev_b32 v{a1}, 4, v{a1}
v_sub_u32 v{a0}, v{a0}, v{a1}
s_lshl_b32 s{sA}, s{sHw}, 5
s_sub_u32 s{sB}, s{sB}, s{sA}
s_add_u32 s{sB}, s{sB}, {56 + 3*UC_S}
v_add_u32 v{vF_}, s{sB}, v{a0}
v_add_u32 v{vG_}, {512 - 80}, v{vG_}
v_add_u32 v{vKxo}, s{sTab}, v{vL16}
s_xor_b32 s{sA}, s{S_W}, 1
s_mul_i32 s{sA}, s{sA}, {TABSZ}
s_add_u32 s{sA}, s{sA}, {L_TAB}
v_add_u32 v{vKxp}, s{sA}, v{vL16}
v_and_b32 v{a0}, 31, v{V_LANE}
v_lshlrev_b32 v{a2}, 2, v{a0}
v_sub_u32 v{a2}, v{a1}, v{a2}
s_add_u32 s{sA}, s{sInv}, {1088 + 124}
v_add_u32 v{vBk}, s{sA}, v{a2}
"""
e(mid)
stamp(22)
e(f's_waitcnt lgkmcnt(0)\ns_add_u32 s{S_NONCE}, s{S_NONCE}, 1')
arrive(1)
e(f"""s_lshl_b32 s{sA}, s{sDs}, 4
s_lshr_b32 s{sLd}, s{sLd}, s{sA}
s_lshl_b32 s{sLd}, s{sLd}, 16
s_lshr_b32 s{sSk}, s{sSk}, s{sA}
s_lshl_b32 s{sSk}, s{sSk}, 16
v_mov_b32 v{a0}, s{sLd}
v_mul_f32 v{a0}, 0x3fb8aa3b, v{a0}
v_exp_f32 v{a0}, v{a0}
s_cmp_eq_u32 s{sHw}, 0
s_cselect_b32 s{sSk}, s{sSk}, 0
v_cvt_pk_bf16_f32 v{a0}, v{a0}, v{a0}
v_and_b32 v{vScl}, 0xffff0000, v{a0}
v_mul_f32 v{vKc}, 0xbfb8aa3b, v{vScl}
v_mul_f32 v{vKc+1}, 0.15915494, v{vScl}
v_mov_b32 v{vAdd}, 0
v_add_f32 v{vScl}, v{vScl}, v{vScl}
v_writelane_b32 v{vAdd}, s{sSk}, 0
s_mov_b32 s{sIt2}, 0
s_mov_b32 s{sSel}, 0x01000c0c""")
stamp(0)
e(f"""s_waitcnt vmcnt({2 if OPT['tlb'] else 0})
v_and_b32 v{a0}, 0x7f807f80, v{vPar+2}
v_and_b32 v{a1}, 0x7f807f80, v{vPar+3}
v_pk_max_u16 v{a0}, v{a0}, v{a1}
v_lshlrev_b32 v{a1}, 16, v{a0}
v_max_u32 v{a0}, v{a0}, v{a1}""")
for q, n in enumerate((1, 2, 4, 8)):
    e(f's_nop 1\nv_max_u32_dpp v{a0}, v{a0}, v{a0} row_ror:{n} row_mask:0xf bank_mask:0xf')
e(f"""s_nop 0
v_readlane_b32 s{sA}, v{a0}, 0
v_readlane_b32 s{sB}, v{a0}, 16
v_readlane_b32 s{sInv}, v{a0}, 32
v_readlane_b32 s{sUns}, v{a0}, 48
s_max_u32 s{sA}, s{sA}, s{sB}
s_max_u32 s{sUns}, s{sUns}, s{sInv}
s_max_u32 s{sUns}, s{sUns}, s{sA}
s_and_b32 s{sUns}, s{sUns}, 0x7f800000
s_min_u32 s{sUns}, s{sUns}, 0x7e800000
s_sub_u32 s{sInv}, 0x7f000000, s{sUns}
v_mul_f32 v{vScl}, s{sUns}, v{vScl}
v_mul_f32 v{vSB}, 0x43000000, v{vScl}
v_mov_b32 v{vSB0}, v{vSB}
s_mov_b64 exec, 1
v_mov_b32 v{vSB0}, v{vScl}
s_mov_b64 exec, -1""")
stamp(1)
if OPT['abl'] == 2: e('s_endpgm')
def cm(jobs, conj):
    ng = 'neg_hi:[1,0,0]' if conj else 'neg_lo:[1,0,0]'
    return [f'v_pk_mul_f16 v{d}, v{x}, v{w} op_sel_hi:[1,0]' for d, x, w in jobs] + \
           [f'v_pk_fma_f16 v{d}, v{x}, v{w}, v{d} op_sel:[1,1,0] op_sel_hi:[0,1,1] {ng}' for d, x, w in jobs]
def wr(reg): return f'ds_write_addtid_b32 v{reg} offset:{TROW*(reg - vY)}'
assert vXt == vY + 16
zA, zB, tA, tB, pA, pB = vZ, vZ+2, vZ+4, vZ+6, vZ+8, vZ+10
X = vXt; Y = vY
an = {1: vAn, 2: vAn+1, 4: vAn+2, 8: Y+1, 16: Y+2, 32: Y+4, 64: Y+8, 128: X+21, 256: vAn+3, 512: vAn+4, 1024: vAn+5}
e('L_kg:')
stamp(14)
seq = f"""v_perm_b32 v{pA}, v{vPar}, v{vPar}, s{sSel}
v_mul_f32 v{pA}, 0x3fb8aa3b, v{pA}
v_exp_f32 v{pA}, v{pA}
v_perm_b32 v{pA+1}, v{vPar+1}, v{vPar+1}, s{sSel}
v_perm_b32 v{tA}, v{vPar+2}, v{vPar+2}, s{sSel}
v_perm_b32 v{tA+1}, v{vPar+3}, v{vPar+3}, s{sSel}
v_cvt_pk_bf16_f32 v{pA}, v{pA}, v{pA}
v_mul_f32 v{tA}, s{sInv}, v{tA}
v_and_b32 v{pA}, 0xffff0000, v{pA}
v_mul_f32 v{tA+1}, s{sInv}, v{tA+1}
v_pk_mul_f32 {vr(pA,2)}, {vr(pA,2)}, {vr(vKc,2)}
v_cvt_pk_f16_f32 v{X}, v{tA}, -v{tA+1}
v_mul_f32 v{pB}, 0x42800000, v{pA}
v_mul_f32 v{pB+1}, 0x42800000, v{pA+1}
v_exp_f32 v{pA}, v{pA}
v_fract_f32 v{pA+1}, v{pA+1}
v_exp_f32 v{pB}, v{pB}
v_fract_f32 v{pB+1}, v{pB+1}
v_cos_f32 v{zA}, v{pA+1}
v_sin_f32 v{zA+1}, v{pA+1}
v_cos_f32 v{zB}, v{pB+1}
v_sin_f32 v{zB+1}, v{pB+1}
v_pk_mul_f32 {vr(zA,2)}, {vr(zA,2)}, {vr(pA,2)} op_sel_hi:[1,0]
v_pk_mul_f32 {vr(zB,2)}, {vr(zB,2)}, {vr(pB,2)} op_sel_hi:[1,0]""".split('\n')
for st in range(6):
    chains = [(zA, tA, an[1 << st], st < 5)] + ([(zB, tB, an[64 << st], st < 4)] if st < 5 else [])
    for z, t, d, sq in chains:
        if sq: seq.append(f'v_pk_mul_f32 {vr(t,2)}, {vr(z,2)}, {vr(z,2)} op_sel_hi:[0,1]')
    for z, t, d, sq in chains: seq.append(f'v_cvt_pk_f16_f32 v{d}, v{z}, v{z+1}')
    for z, t, d, sq in chains:
        if sq: seq.append(f'v_pk_fma_f32 {vr(z,2)}, {vr(z,2)}, {vr(z,2)}, {vr(t,2)} op_sel:[1,1,0] op_sel_hi:[0,1,1] neg_lo:[1,0,0]')
seq += cm([(X+1, X, an[1]), (X+2, X, an[2]), (X+4, X, an[4]), (X+8, X, an[256]), (X+12, X, an[512]), (X+16, X, an[1024])], True)
seq += cm([(Y+3, Y+1, Y+2), (Y+12, Y+4, Y+8), (Y+5, Y+4, Y+1), (Y+6, Y+4, Y+2), (Y+9, Y+8, Y+1), (Y+10, Y+8, Y+2)], False)
seq += cm([(X+3, X+1, an[2]), (X+5, X+1, an[4]), (X+6, X+2, an[4]), (X+9, X+2, an[256]), (X+10, X+4, an[256]), (X+13, X+4, an[512]),
           (X+14, X+8, an[512]), (X+17, X+8, an[1024]), (X+18, X+12, an[1024]), (X+20, X+16, an[1024])], True)
seq += cm([(Y+7, Y+4, Y+3), (Y+11, Y+8, Y+3), (Y+13, Y+12, Y+1), (Y+14, Y+12, Y+2), (Y+15, Y+12, Y+3)], False)
seq += cm([(X+7, X+3, an[4]), (X+11, X+6, an[256]), (X+15, X+10, an[512]), (X+19, X+14, an[1024])], True)
e('\n'.join(seq))
stamp(15)
if OPT['kgw']:
    e(f'v_subrev_u32 v{a0}, 16, v{V_GRP}'); lwait(OPT['kgw'], addr=a0)
hi()
if OPT['abl'] != 4: e('\n'.join(wr(r) for r in range(Y + 1, X + 22)))
for k in range(4):
    o = vOp + 16*k
    e(f"""ds_read_b128 {vr(o,4)}, v{vRa} offset:{64*k}
    ds_read_b128 {vr(o+4,4)}, v{vRb_} offset:{37*TROW + 64*k}
    ds_read_b128 {vr(o+8,4)}, v{vRa} offset:{16*TROW + 64*k}
    ds_read_b128 {vr(o+12,4)}, v{vRa} offset:{32*TROW + 64*k}""")
if not OPT['uw']: e(f's_cmp_eq_u32 s{sIt2}, 0\ns_cbranch_scc1 L_kg_n\nbuffer_load_dword v{vFr}, v{vFu}, {sr(SRD_WS)}, 0 offen sc1\nL_kg_n:')
stamp(16)
def mf(c, a, b): return f'v_mfma_f32_16x16x32_f16 {vr(c,4)}, {vr(a,4)}, {vr(b,4)}, {vr(c,4)}'
late_m = []
for k in range(4):
    o = vOp + 16*k; y1 = vX1 + 4*(k & 1)
    p = cm([(y1+r, o+r, o+4+r) for r in range(4)], False)
    e(f's_waitcnt lgkmcnt({12 - 4*k})')
    e('\n'.join([mf(vAc, o+8, o)] + p[0:2] + late_m[:1] + p[2:4] + [mf(vAc+4, o+12, o)] + p[4:6] + late_m[1:] + p[6:8]))
    late_m = [mf(vAc+8, o+8, y1), mf(vAc+12, o+12, y1)]
e(f"""s_add_u32 s{sSel}, s{sSel}, 0x02020000
s_add_u32 s{sIt2}, s{sIt2}, 1
s_cmp_lg_u32 s{sIt2}, 2""")
e('\n'.join(late_m))
lo()
e('s_cbranch_scc1 L_kg')
stamp(17)
if OPT['abl'] in (4, 8): e('s_endpgm')
def scl(i): return vSB0 if i == 4 else (vSB if i & 4 else vScl)
for i in range(8): e(f'v_mul_f32 v{vAc+i}, v{scl(i)}, v{vAc+i}')
e(f's_cmp_eq_u32 s{sHw}, 0')
for i in range(8, 16): e(f'v_mul_f32 v{vAc+i}, v{scl(i)}, v{vAc+i}')
e('s_cbranch_scc1 L_kx')
for i in range(8): e(f'v_swap_b32 v{vAc+i}, v{vAc+8+i}')
e(f"""L_kx:
ds_write_b128 v{vKxo}, {vr(vAc+8,4)}
s_mov_b32 exec_hi, 0
ds_write_b128 v{vKxo}, {vr(vAc+12,4)} offset:1024
s_mov_b64 exec, -1""")
arrive(2)
e(f'v_add_f32 v{vAc}, v{vAdd}, v{vAc}')
stamp(18)
def bprio():
    if OPT['prio']: e(f"s_setprio {OPT['bp']}")
def u_look():
    hi(); e(f'buffer_load_dword v{vFr}, v{vFu}, {sr(SRD_WS)}, 0 offen sc1'); bprio()
def u_fetch():
    hi()
    stamp(20)
    poll(vFu, first_issued=True, reg=vFr, sleep=OPT['usleep'])
    stamp(21)
    for k in range(2):
        e(f'buffer_load_dwordx4 {vr(U+4*k,4)}, v{vUa}, {sr(SRD_WS)}, s{sUl} offen offset:{2048*k} sc1')
    bprio()
if OPT['uw'] == -2: u_look()
else: bprio()
stamp(19)
lwait(2, addr=vPair)
e(f"""ds_read_b128 {vr(vAc+8,4)}, v{vKxp}
ds_read_b128 {vr(vAc+12,4)}, v{vKxp} offset:1024
ds_write_b128 v{vRz}, {vr(vZer,4)}
s_mov_b32 s{sIt2}, 4
s_waitcnt lgkmcnt(1)""")
for i in range(4): e(f'v_pk_add_f32 {vr(vAc+2*i,2)}, {vr(vAc+2*i,2)}, {vr(vAc+8+2*i,2)}')
for i in range(4): e(f'v_cvt_pk_bf16_f32 v{vAc+8+i}, v{vAc+2*i}, v{vAc+2*i+1}')
e(f"""ds_write_b32 v{vKd}, v{vAc+8}
ds_write_b32 v{vKd1}, v{vAc+9}
s_mov_b64 exec, 0x1ffff
ds_write_b16 v{vKa0}, v{vAc+10}
s_mov_b64 exec, 0xffff
ds_write_b16_d16_hi v{vKa}, v{vAc+10} offset:64
ds_write_b16 v{vKa}, v{vAc+11} offset:32
ds_write_b16_d16_hi v{vKa}, v{vAc+11}
s_mov_b64 exec, -1""")
arrive(3)
if OPT['uw'] == -1: u_look()
if OPT['uw'] == -2: u_fetch()
lwait(3, addr=vPair)
stamp(2)
E = 64; BF = 40
e(f"""ds_read2_b32 {vr(E,2)}, v{vE1} offset1:1
ds_read2_b32 {vr(E+2,2)}, v{vE1b} offset0:2 offset1:3
ds_read2_b32 {vr(E+4,2)}, v{vKb} offset0:191 offset1:192
ds_read_b32 v{E+6}, v{vKb} offset:1020
ds_read_b32 v{E+7}, v{vKb} offset:1024""")
for q in range(8): e(f'ds_read2_b32 {vr(BF+2*q,2)}, v{vBk} offset0:{8*(q>>1) + 2*(q&1)} offset1:{8*(q>>1) + 2*(q&1) + 1}')
b = E + 12; t = E + 16
e(f"""s_waitcnt lgkmcnt(10)
v_perm_b32 v{b+2}, v{E+2}, v{E+2}, v{vSel+2}
v_perm_b32 v{b+3}, v{E+3}, v{E+2}, v{vSel+3}
v_perm_b32 v{b-2}, v{E+5}, v{E+4}, s{sE2}
v_perm_b32 v{b-1}, v{E+5}, v{E+4}, s{sE3}
v_perm_b32 v{b}, v{E}, v{E}, v{vSel}
v_perm_b32 v{b+1}, v{E+1}, v{E}, v{vSel+1}
v_mov_b32_dpp v{b-2}, v{b+2} wave_shr:1 row_mask:0xf bank_mask:0xf
v_mov_b32_dpp v{b-1}, v{b+3} wave_shr:1 row_mask:0xf bank_mask:0xf
ds_write_b128 v{vCd}, {vr(b,4)}""")
for i in range(4): e(f'v_alignbit_b32 v{t+i}, v{b+i}, v{b+i-1}, 16')
e(f'ds_write_b128 v{vCd}, {vr(t,4)} offset:{UC_S}')
for i in range(4): e(f'v_mov_b32 v{t+4+i}, v{b+i-1}')
e(f'ds_write_b128 v{vCd}, {vr(t+4,4)} offset:{2*UC_S}')
for i in range(4): e(f'v_alignbit_b32 v{t+8+i}, v{b+i-1}, v{b+i-2}, 16')
e(f'ds_write_b128 v{vCd}, {vr(t+8,4)} offset:{3*UC_S}\ns_waitcnt lgkmcnt(12)')
for i in range(4): e(f'v_perm_b32 v{t+12+i}, v{E+7}, v{E+6}, v{vSel+4+i}')
e(f'ds_write_b128 v{vZp}, {vr(t+12,4)}')
if OPT['uw'] == -1: u_fetch()
stamp(3)
e(f'v_and_b32 v{a0}, 31, v{V_LANE}')
swap23(a1, a0, a2)
e(f"""v_lshrrev_b32 v{a2}, 5, v{V_LANE}
v_lshl_add_u32 v{a1}, v{a1}, 1, v{a2}
s_add_u32 s{sA}, s{sHw}, 123
v_add_u32 v{a1}, s{sA}, v{a1}
s_mul_i32 s{sA}, s{sDs}, {PD}
s_add_u32 s{sA}, s{sA}, {L_KP}
v_and_b32 v{a3}, 3, v{a1}
v_mul_u32_u24 v{a3}, {PS - 4}, v{a3}
v_lshl_add_u32 v{a3}, v{a1}, 2, v{a3}
v_add_u32 v{vA0}, s{sA}, v{a3}
v_add_u32 v{a1}, 2, v{a1}
v_and_b32 v{a3}, 3, v{a1}
v_mul_u32_u24 v{a3}, {PS - 4}, v{a3}
v_lshl_add_u32 v{a3}, v{a1}, 2, v{a3}
v_add_u32 v{vA1}, s{sA}, v{a3}
v_lshlrev_b32 v{a2}, 3, v{a2}
v_sub_u32 v{a2}, v{a2}, v{a0}
v_cvt_f32_i32 v{a2}, v{a2}
v_add_f32 v{a3}, -1.0, v{a2}
v_add_f32 v{a2}, -2.0, v{a2}
v_cvt_pk_f16_f32 v8, v{a3}, v{a2}
s_waitcnt vmcnt(1)
ds_write_b128 v{vKp}, {vr(U,4)}
s_waitcnt vmcnt(0)
ds_write_b128 v{vKp}, {vr(U+4,4)} offset:128""")
arrive(4)
AP, BD, DP = 112, 136, 192
band = [f's_mov_b32 s{sA}, 0x4a204a20', f's_cmp_eq_u32 s{sHw}, 0', f's_cselect_b32 s{sE2}, 0x4d104d10, s{sA}', f's_mov_b32 s{sE3}, 0x4d804d80']
for q in range(12):
    band.append(f'v_pk_fma_f16 v{BD+q}, v8, v8, s{sE2} neg_lo:[1,0,0] neg_hi:[1,0,0] clamp')
    if q < 11: band.append(f'v_pk_add_f16 v8, v8, s{sE3}' if q % 4 == 3 else 'v_pk_add_f16 v8, v8, -2.0 op_sel_hi:[1,0]')
e('\n'.join(band))
lwait(4)
KG[0] = False
lo()
stamp(4)
if OPT['abl'] == 16: e('s_endpgm')
CB = 64
def cv_reads(k):
    b = CB + 12 * (k & 3)
    return [f'ds_read_b64 {vr(b,2)}, v{vF_} offset:{64*k}', f'ds_read_b64 {vr(b+2,2)}, v{vF_} offset:{64*k + 8}',
            f'ds_read_b128 {vr(b+8,4)}, v{vG_} offset:{512 + 80 - 16*k}', f'ds_read_b128 {vr(b+4,4)}, v{vG_} offset:{80 - 16*k}']
for tau in range(2):
    for kp in range(3): e(f'ds_read_b128 {vr(AP + 12*tau + 4*kp, 4)}, v{(vA0, vA1)[kp & 1]} offset:{256*tau + 16*(kp >> 1)}')
e('\n'.join(cv_reads(0) + cv_reads(1)))
FOA = f'''s_lshr_b32 s{sA}, s{sOl}, 1
s_lshl_b32 s{sA}, s{sA}, {4 + FSH}
s_add_u32 s{sA}, s{sA}, {F_O}
v_lshl_add_u32 v{vFo}, v{a1}, {FSH}, s{sA}''' if not OM else f'''s_lshr_b32 s{sA}, s{sOl}, 1
s_lshl_b32 s{sB}, s{sHw}, 9
s_add_u32 s{sA}, s{sA}, s{sB}
s_lshl_b32 s{sA}, s{sA}, {FSH}
s_add_u32 s{sA}, s{sA}, {F_Y}
v_min_u32 v{vFo}, 6, v{a1}
v_lshl_add_u32 v{vFo}, v{vFo}, {6 + FSH}, s{sA}'''
late = f"""s_mov_b64 s[{SRD_B}:{SRD_B+1}], s[22:23]
s_mov_b32 s{SRD_B+2}, {448*896}
s_mov_b32 s{SRD_B+3}, 0x20000
s_mov_b64 s[{SRD_C}:{SRD_C+1}], s[24:25]
s_mov_b32 s{SRD_C+2}, {2048*1792}
s_mov_b32 s{SRD_C+3}, 0x20000
v_lshrrev_b32 v{a1}, 3, v{V_LANE}
v_and_b32 v{a2}, 7, v{V_LANE}
v_and_b32 v{a0}, 0x70, v{vL16}
v_mul_u32_u24 v{vYl}, {YS}, v{a1}
v_add_u32 v{vYl}, v{vYl}, v{a0}
v_lshlrev_b32 v{a3}, 2, v{V_LANE}
v_and_b32 v{a3}, 64, v{a3}
v_xor_b32 v{a0}, v{a0}, v{a3}
v_mul_u32_u24 v{vWoD}, 896, v{a1}
v_xor_b32 v{a3}, v{a1}, v{a2}
v_lshlrev_b32 v{a3}, 4, v{a3}
v_lshl_add_u32 v{vOut}, v{vWoD}, 1, v{a3}
v_add_u32 v{vWoD}, v{a0}, v{vWoD}
v_add_u32 v{vWoD+1}, {7168-1024}, v{vWoD}
v_lshrrev_b32 v{a0}, 4, v{V_LANE}
v_bfe_u32 v{a1}, v{V_LANE}, 2, 2
v_lshl_or_b32 v{a3}, v{a0}, 3, v{a1}
v_lshlrev_b32 v{a3}, 7, v{a3}
v_lshrrev_b32 v{a1}, 1, v{a1}
v_lshl_add_u32 v{a3}, v{a1}, 6, v{a3}
v_and_b32 v{a1}, 0x30, v{vL16}
s_movk_i32 s{sA}, {L_WO}
v_add3_u32 v{vWoR}, v{a1}, v{a3}, s{sA}
v_xor_b32 v{vWoR+1}, 64, v{vWoR}
v_and_b32 v{a1}, 15, v{V_LANE}
v_lshlrev_b32 v{vOl}, 4, v{a1}
v_mad_u32_u24 v{vOl}, v{a0}, s{S_KS}, v{vOl}
s_lshl2_add_u32 s{sOl}, s{S_J}, s{S_W}
{FOA}
s_lshl_b32 s{sA}, s{S_W}, 11
s_add_u32 s{sA}, s{sA}, {L_SSM}
v_xor_b32 v{a3}, v{a0}, v{a2}
v_lshl_add_u32 v{a3}, v{a3}, 4, s{sA}
v_lshl_add_u32 v{vBw}, v{a1}, 7, v{a3}
v_add_u32 v{vBr}, s{sA}, v{vL16}
s_mul_i32 s{sOut}, s{sOl}, {16*1792}
s_lshl_b32 s{sA}, s{S_C}, 7
s_add_u32 s{sOut}, s{sOut}, s{sA}
s_add_u32 s{sOut}, s{sOut}, 896
s_add_u32 s{sOut+1}, s{sOut}, {8*1792}
s_lshl_b32 s{sOl}, s{sOl}, 8
s_add_u32 s{sOl}, s{sOl}, {WS_O}
s_lshl2_add_u32 s{sCh0}, s{S_C}, s{S_W}
s_lshl_b32 s{sCh0}, s{sCh0}, 4
s_lshr_b32 s{sA}, s{S_J}, 4
s_lshl_b32 s{sA}, s{sA}, 9
s_add_u32 s{sA}, s{sA}, s{sCh0}
s_lshl_b32 s{sA}, s{sA}, {FSH}
s_add_u32 s{sA}, s{sA}, {F_Y}
v_lshl_add_u32 v{vFy}, v{a1}, {FSH}, s{sA}
v_and_b32 v{a1}, 11, v{V_LANE}
v_lshl_or_b32 v{a1}, v{a0}, 5, v{a1}
v_mul_u32_u24 v{a1}, 1792, v{a1}
v_and_b32 v{a3}, 4, v{V_LANE}
v_lshl_add_u32 v{vYs}, v{a3}, 2, v{a1}
s_lshl_b32 s{sA}, s{sHw}, 12
s_add_u32 s{sB}, s{sP}, {P_X + 4096}
s_sub_u32 s{sB}, s{sB}, s{sA}
v_add_u32 v{vXp}, s{sB}, v{vL16}
s_add_u32 s{sA}, s{sA}, s{sP}
s_add_u32 s{sA}, s{sA}, {P_X}
v_add_u32 v{vXo}, s{sA}, v{vL16}
v_lshl_add_u32 v{vRb_}, v{a0}, 4, s{sA}
v_bfe_u32 v{a0}, v{V_LANE}, 2, 2
v_and_b32 v{a3}, 1, v{V_LANE}
v_lshl_or_b32 v{a2}, v{a3}, 3, v{a0}
v_lshl_add_u32 v{vTr}, v{a2}, 7, v{vRb_}
v_and_b32 v{a2}, 2, v{V_LANE}
v_lshl_add_u32 v{vTr}, v{a2}, 2, v{vTr}""".split('\n')
def fill(n):
    e('\n'.join(late[:n])); del late[:n]
fill(16)
e('s_waitcnt lgkmcnt(8)')
for kp in range(3):
    for tau in range(2):
        d = vr(DP + 16*tau, 16)
        e(f'v_mfma_f32_32x32x16_bf16 {d}, {vr(AP + 12*tau + 4*kp, 4)}, {vr(BD + 4*kp, 4)}, {"0" if kp == 0 else d}')
        fill(6)
def cv_iter(first):
    for k in range(4):
        b = CB + 12 * k
        rd = cv_reads(k + 2)
        z = first and k == 0
        e('s_waitcnt lgkmcnt(4)')
        e(f'v_mfma_f32_32x32x16_bf16 {vr(T1,16)}, {vr(b,4)}, {vr(b+8,4)}, {"0" if z else vr(T1,16)}')
        e('\n'.join(rd))
        if k == 3:
            e(f'v_add_u32 v{vF_}, 256, v{vF_}\nv_subrev_u32 v{vG_}, 64, v{vG_}')
            if not first: e(f's_add_u32 s{sIt2}, s{sIt2}, 1\ns_cmp_lg_u32 s{sIt2}, 11')
        e(f'v_mfma_f32_32x32x16_bf16 {vr(T0,16)}, {vr(b,4)}, {vr(b+4,4)}, {"0" if z else vr(T0,16)}')
        if first: fill(6 if k < 3 else 99)
cv_iter(True)
e('L_cv:')
cv_iter(False)
e('s_cbranch_scc1 L_cv')
cv = [f'v_cvt_pk_bf16_f32 v{AP+i}, v{DP+2*i}, v{DP+2*i+1}' for i in range(16)]
for k in range(2):
    e('\n'.join(cv[4*k:4*k+4]))
    e(f's_waitcnt lgkmcnt({4 - 4*k})')
    e(f'v_mfma_f32_32x32x16_bf16 {vr(T1,16)}, {vr(CB+12*k,4)}, {vr(CB+12*k+8,4)}, {vr(T1,16)}')
for q in range(4):
    e('\n'.join(cv[8+4*q:12+4*q]))
    e(f'v_mfma_f32_32x32x16_bf16 {vr(T1,16)}, {vr(AP+4*q,4)}, {vr(BF+4*q,4)}, {vr(T1,16)}')
if OPT['prio']: e(f"s_setprio {OPT['pr']}")
stamp(5)
if OPT['abl'] == 32: e('s_endpgm')
e(f"""s_mul_i32 s{sA}, s{sD}, {YS}
s_lshl_b32 s{sB}, s{sHw}, 11
s_add_u32 s{sA}, s{sA}, s{sB}
s_add_u32 s{sA}, s{sA}, {WS_Y}
s_lshl_b32 s{sB}, s{sHw}, 9
s_add_u32 s{sB}, s{sB}, s{sD}
s_lshl_b32 s{sB}, s{sB}, {FSH}
s_add_u32 s{sB}, s{sB}, {F_Y}
s_nop 0""")
def xch(give, keep):
    for i in range(4): e(f'ds_write_b128 v{vXp}, {vr(give+4*i,4)} offset:{1024*i}')
    arrive(6); lwait(6, addr=vPair)
    for i in range(4): e(f'ds_read_b128 {vr(give+4*i,4)}, v{vXo} offset:{1024*i}')
    e('s_waitcnt lgkmcnt(0)')
e(f's_cmp_eq_u32 s{sHw}, 0\ns_cbranch_scc1 L_x0')
xch(T0, T1)
e('s_branch L_x1\nL_x0:')
xch(T1, T0)
e('L_x1:')
for i in range(8): e(f'v_pk_add_f32 {vr(T0+2*i,2)}, {vr(T0+2*i,2)}, {vr(T1+2*i,2)}')
for i in range(8): e(f'v_cvt_pk_bf16_f32 v{T1+i}, v{T0+2*i}, v{T0+2*i+1}')
e(f"""buffer_store_dwordx4 {vr(T1,4)}, v{vL16}, {sr(SRD_WS)}, s{sA} offen sc1
buffer_store_dwordx4 {vr(T1+4,4)}, v{vL16}, {sr(SRD_WS)}, s{sA} offen offset:1024 sc1
v_subrev_u32 v{a0}, 16, v{V_GRP}""")
if OM:
    e(f'''v_mov_b64 {vr(T0,2)}, -1
    v_mov_b64 {vr(T0+2,2)}, -1
    s_mul_i32 s{sA}, s{S_C}, {8*KS}
    s_add_u32 s{sA}, s{sA}, s{sOl}
    s_add_u32 s{sSk}, s{sA}, {4*KS}
    buffer_store_dwordx4 {vr(T0,4)}, v{vOl}, {sr(SRD_WS)}, s{sA} offen sc1
    buffer_store_dwordx4 {vr(T0,4)}, v{vOl}, {sr(SRD_WS)}, s{sSk} offen sc1''')
sync(7)
if OPT['only'] != 1: lwait(7, addr=a0)
e('s_waitcnt vmcnt(0)')
publish(sB, a0)
stamp(6)
if OPT['abl'] == 33: e('s_endpgm')
e(f"""s_mul_i32 s{sA}, s{S_W}, {16*896}
s_lshl_b32 s{sB}, s{S_C}, 7
s_add_u32 s{sA}, s{sA}, s{sB}
s_lshl_b32 s{sB}, s{S_W}, 11
s_add_u32 s{sB}, s{sB}, {L_WO}""")
for ch in range(7):
    e(f"""s_add_u32 m0, s{sB}, {8192*ch}
    s_add_u32 s{sSk}, s{sA}, {64*896*ch}
    buffer_load_dwordx4 v{vWoD}, {sr(SRD_B)}, s{sSk} offen lds
    buffer_load_dwordx4 v{vWoD+1}, {sr(SRD_B)}, s{sSk} offen offset:1024 lds
    s_waitcnt vmcnt({OPT['wodepth'] if ch < 6 else 0})""")
WF, OF, OC = 8, 168, 224
arrive(8)
e(f"""buffer_load_dword v{a0}, v{vFy}, {sr(SRD_WS)}, 0 offen sc1
s_mul_i32 s{sA}, s{sCh0}, {YS}
s_lshl_b32 s{sSk}, s{S_J}, 7
s_add_u32 s{sA}, s{sA}, s{sSk}
s_add_u32 s{sA}, s{sA}, {WS_Y}
s_add_u32 s{sSk}, s{sA}, {8*YS}""")
lwait(8)
stamp(7)
if OPT['abl'] == 34: e('s_endpgm')
def wo_reads(k):
    r = []
    for t in range(4):
        for hf in range(2):
            r.append(f'ds_read_b64_tr_b16 {vr(WF + 16*(k%10) + 4*t + 2*hf, 2)}, v{vWoR + (t>>1)} offset:{4096*k + 512*hf + 8*(t&1)}')
    return r
for k in range(10): e('\n'.join(wo_reads(k)))
arrive(9)
poll(vFy, first_issued=True, sleep=OPT['ysleep'], reg=a0)
stamp(8)
if OPT['abl'] == 35: e('s_endpgm')
e(f"""buffer_load_dwordx4 {vr(OF,4)}, v{vYl}, {sr(SRD_WS)}, s{sA} offen sc1
buffer_load_dwordx4 {vr(OF+4,4)}, v{vYl}, {sr(SRD_WS)}, s{sSk} offen sc1
s_lshr_b32 s{sA}, s{S_J}, 4
s_lshl_b32 s{sA}, s{sA}, 10
s_and_b32 s{sB}, s{S_J}, 3
s_lshl_b32 s{sB}, s{sB}, 8
s_add_u32 s{sA}, s{sA}, s{sB}
s_and_b32 s{sB}, s{S_J}, 8
s_lshl1_add_u32 s{sA}, s{sB}, s{sA}
s_and_b32 s{sB}, s{S_J}, 4
s_add_u32 s{sA}, s{sA}, s{sB}
s_mul_i32 s{sA}, s{sA}, 1792
s_lshl1_add_u32 s{sA}, s{sCh0}, s{sA}
s_add_u32 s{sB}, s{sA}, {128*1792}
v_xor_b32 v{a0}, 64, v{vBw}""")
lwait(9)
e(f"""s_waitcnt vmcnt(0)
ds_write_b128 v{vXo}, {vr(OF,4)}
ds_write_b128 v{vXo}, {vr(OF+4,4)} offset:1024""")
for z in range(2):
    for hf in range(2):
        e(f'ds_read_b64_tr_b16 {vr(OF + 8 + 4*z + 2*hf, 2)}, v{vTr} offset:{64*z + 512*hf}')
e(f"""s_waitcnt lgkmcnt(0)
buffer_store_dwordx4 {vr(OF+8,4)}, v{vYs}, {sr(SRD_C)}, s{sA} offen {OUTM}
buffer_store_dwordx4 {vr(OF+12,4)}, v{vYs}, {sr(SRD_C)}, s{sB} offen {OUTM}""")
if OPT['only'] == 1:
    stamp(9); stamp(13); prof_out(); e('s_endpgm')
if OM: poll(vFo, sleep=8)
if OM == 4:
    e(f'''s_lshl2_add_u32 s{sA}, s{S_J}, s{S_W}
    s_lshr_b32 s{sA}, s{sA}, 1
    s_lshl_b32 s{sA}, s{sA}, {4 + FSH}
    s_add_u32 s{sA}, s{sA}, {F_O}
    v_and_b32 v{vFo}, 15, v{V_LANE}
    v_lshl_add_u32 v{vFo}, v{vFo}, {FSH}, s{sA}''')
sOk, sLast = 4, 18
for k in range(14): e(f's_add_u32 s{sOk+k}, s{sOl}, {4*KS*k}')
stamp(9)
e('s_barrier')
stamp(10)
if OPT['osleep']: e(f"s_sleep {OPT['osleep']}")
if OM != 3: poll(vFo, sleep=OPT['hsleep'])
if OM: e(f's_min_u32 s{S_BOUND}, s{S_BOUND}, 0x4000')
stamp(11)
def o_load(k): return f'buffer_load_dwordx4 {vr(OF+4*k,4)}, v{vOl}, {sr(SRD_WS)}, s{sOk+k} offen sc1'
def o_chk(k):
    o = OF + 4*k
    return [f's_waitcnt vmcnt({13-k})', f'v_max3_u32 v6, v{o}, v{o+1}, v{o+2}', f'v_max_u32 v6, v6, v{o+3}', 'v_cmp_eq_u32 vcc, -1, v6']
for k in range(14): e(o_load(k))
if OM: e('\n'.join(o_chk(0)))
for k in range(14):
    o = OF + 4*k
    m = [f'v_mfma_f32_16x16x32_bf16 {vr(OC+4*t,4)}, {vr(WF + 16*(k%10) + 4*t, 4)}, {vr(o,4)}, {"0" if k == 0 else vr(OC+4*t,4)}' for t in range(4)]
    rd = wo_reads(k + 9) if 1 <= k <= 4 else []
    if k == 10: e('s_waitcnt lgkmcnt(0)')
    if OM:
        e(f's_cbranch_vccnz L_or{k}\nL_og{k}:')
        c = o_chk(k + 1) if k < 13 else ['', '', '', '']
        e('\n'.join([m[0]] + rd[:4] + [m[1]] + rd[4:] + [m[2], c[0], c[1], c[2], m[3], c[3]]))
    else:
        e(f's_waitcnt vmcnt({13-k})'); e('\n'.join(m + rd))
stamp(12)
e('s_nop 4')
for i in range(8): e(f'v_cvt_pk_bf16_f32 v{16+i}, v{OC+2*i}, v{OC+2*i+1}')
e(f"""ds_write_b128 v{vBw}, {vr(16,4)}
ds_write_b128 v{a0}, {vr(20,4)}
ds_read_b128 {vr(24,4)}, v{vBr}
ds_read_b128 {vr(28,4)}, v{vBr} offset:1024
s_or_b32 s{sA}, s2, s{S_W}
s_waitcnt lgkmcnt(1)
buffer_store_dwordx4 {vr(24,4)}, v{vOut}, {sr(SRD_C)}, s{sOut} offen {OUTM2}
s_waitcnt lgkmcnt(0)
buffer_store_dwordx4 {vr(28,4)}, v{vOut}, {sr(SRD_C)}, s{sOut+1} offen {OUTM2}
s_cbranch_scc1 L_noepoch""")
publish(sA, 6)
e('L_noepoch:')
if OPT['prof']:
    e('s_waitcnt vmcnt(0)')
stamp(13)
prof_out()
e('L_end:\ns_endpgm')
if OM:
    for k in range(14):
        c = o_chk(k)
        e(f'''L_or{k}:
        s_call_b64 s[90:91], L_re{k}
        {c[0]}
        L_oc{k}:
        {c[1]}
        {c[2]}
        {c[3]}
        s_cbranch_vccz L_og{k}
        {'s_sleep %d' % OPT['rsleep'] if OPT['rsleep'] else ''}
        {o_load(k)}
        s_sub_u32 s{S_BOUND}, s{S_BOUND}, 1
        s_waitcnt vmcnt(0)
        s_cbranch_scc0 L_oc{k}
        s_mov_b32 s{S_BOUND}, 0
        s_branch L_og{k}''')
    for k in range(14): e(f'L_re{k}:\n{o_load(k)}')
    e('s_setpc_b64 s[90:91]')
sec('idle')
ROLE[0] = 2
e('L_ssm_idle:')
if OPT['only'] == 2:
    arrive(1); e('s_endpgm')
hi()
e(f"""v_lshrrev_b32 v10, 3, v{V_LANE}
v_and_b32 v11, 7, v{V_LANE}
v_lshlrev_b32 v11, 4, v11
v_mul_u32_u24 v5, 896, v10
v_add_u32 v5, v5, v11
v_add_u32 v6, {7168-1024}, v5
s_lshl2_add_u32 s60, s{S_J}, s{S_W}
s_mul_i32 s61, s60, {16*896}
s_mul_i32 s62, s{S_W}, 14336
s_add_u32 s62, s62, {L_SSM}
s_mov_b32 s{SRD_A+2}, {2048*896}
s_mov_b32 s{SRD_A+3}, 0x20000
s_waitcnt lgkmcnt(0)
s_load_dword s{S_NONCE}, s[28:29], 0
s_mov_b64 s[{SRD_A}:{SRD_A+1}], s[4:5]""")
for c in range(7):
    e(f"""s_add_u32 m0, s62, {2048*c - 128*c}
    s_nop 0
    buffer_load_dwordx4 v5, {sr(SRD_A)}, s61 offen offset:{128*c} lds
    buffer_load_dwordx4 v6, {sr(SRD_A)}, s61 offen offset:{1024 + 128*c} lds""")
    if c == OPT['tb']: e('s_barrier')
    if c == 1:
        srd(SRD_WS, 28, WS_SIZE)
        e(f"""; transposing read: row = 8*(cc&1)+r', byte = 8*(2G+(cc>>1))
        v_mul_u32_u24 v7, {QS}, v10
        v_add_u32 v7, v7, v11
        v_bfe_u32 v8, v{V_LANE}, 2, 2
        v_and_b32 v9, 1, v{V_LANE}
        v_lshl_or_b32 v8, v9, 3, v8
        v_xor_b32 v8, 3, v8
        v_lshl_add_u32 v8, v8, 7, s62
        v_and_b32 v9, 0x30, v{V_LANE}
        v_add_u32 v8, v8, v9
        v_and_b32 v9, 2, v{V_LANE}
        v_lshl_add_u32 v8, v9, 2, v8
        s_lshl_b32 s63, s60, 7
        s_add_u32 s63, s63, {WS_U}
        s_lshl_b32 s65, s{S_J}, {FSH}
        s_add_u32 s65, s65, {F_U}""")
e(f's_waitcnt lgkmcnt(0)\ns_add_u32 s{S_NONCE}, s{S_NONCE}, 1')
arrive(1)
def t_rd(c):
    return [f'ds_read_b64_tr_b16 {vr(16 + 8*c + 4*z + 2*hf, 2)}, v8 offset:{2048*c + 64*z + 512*(1-hf)}' for z in range(2) for hf in range(2)]
e('s_waitcnt vmcnt(12)'); stamp(1); e('\n'.join(t_rd(0)))
for c in range(7):
    if c < 6:
        e('s_waitcnt vmcnt(10)'); e('\n'.join(t_rd(c + 1)))
    e(f"""s_add_u32 s64, s63, {8*QS}
    s_waitcnt lgkmcnt({4 if c < 6 else 0})
    buffer_store_dwordx4 {vr(16+8*c,4)}, v7, {sr(SRD_WS)}, s63 offen sc1
    buffer_store_dwordx4 {vr(20+8*c,4)}, v7, {sr(SRD_WS)}, s64 offen sc1
    s_add_u32 s63, s63, {16*QS}""")
    if c + 7 == OPT['tb']: e('s_barrier')
stamp(2)
e(f"""v_mov_b32 v5, 1
v_mov_b32 v6, 0
s_waitcnt vmcnt(0)
s_mov_b64 exec, 1
ds_add_rtn_u32 v5, v6, v5 offset:36
s_waitcnt lgkmcnt(0)
v_readfirstlane_b32 s60, v5
s_mov_b64 exec, -1
s_cmp_lg_u32 s60, 3
s_cbranch_scc1 L_idle_end""")
publish(65, 6)
e('L_idle_end:'); stamp(4)
prof_out()
e('s_endpgm')
ORDER = [['pro', 'ssm0', 'mha0', 'idle', 'ssm', 'mha'], ['pro', 'ssm0', 'mha0', 'mha', 'ssm', 'idle'],
         ['pro', 'ssm0', 'mha0', 'ssm', 'mha', 'idle'], ['pro', 'ssm0', 'idle', 'mha0', 'mha', 'ssm']][OPT['ord']] + ['cold', 'gt', 'fb']
SEC.setdefault('cold', [])
def add_nt(n, pred):
    SEC[n] = [(l.replace(' lds', ' nt lds') if l.endswith(' lds') else l + ' nt') if pred(l) else l for l in SEC[n]]
for n in ('mha0', 'mha', 'gt'):
    if OPT['nt'] & 1: add_nt(n, lambda l: l.endswith(' lds') and sr(SRD_A) in l)
    if OPT['nt'] & 2: add_nt(n, lambda l: l.endswith(' lds') and sr(SRD_B) in l)
if OPT['nt'] & 4: add_nt('idle', lambda l: l.endswith(' lds'))
if OPT['nt'] & 8: add_nt('ssm0', lambda l: 'global_load' in l)
if OPT['nt'] & 16: add_nt('ssm', lambda l: l.endswith(' lds'))
if OPT['nt'] & 32: add_nt('ssm', lambda l: 'buffer_store' in l and sr(SRD_C) in l)
BODY = sum((SEC[n] for n in ORDER), [])
def sizes(lines):
    import subprocess, re, os, tempfile
    d = tempfile.mkdtemp()
    open(d + '/a.s', 'w').write('.amdgcn_target "amdgcn-amd-amdhsa--gfx950"\n.text\n' + '\n'.join(lines) + '\n')
    subprocess.check_call(['clang', '-x', 'assembler', '-target', 'amdgcn-amd-amdhsa', '-mcpu=gfx950', '-c', d + '/a.s', '-o', d + '/a.o'])
    o = subprocess.check_output(['llvm-objdump', '-d', '--mcpu=gfx950', d + '/a.o']).decode()
    return [4 * len(m.group(1).split()) for m in re.finditer(r'// [0-9A-F]{12}: ((?:[0-9A-F]{8} ?)+)', o)]
def is_ins(l):
    t = l.split(';')[0].strip()
    return bool(t) and not t.endswith(':')
def widen(l):
    import re
    t = l.split(';')[0].strip(); op = t.split()[0]
    if op.startswith('v_') and not op.startswith(('v_readfirstlane', 'v_swap', 'v_permlane', 'v_nop')):
        return l.replace(op, op + '_e64', 1)
    return None
if OPT['al']:
    sz = iter(sizes(BODY))
    I = [[l, next(sz) if is_ins(l) else 0] for l in BODY]
    res = []; addr = 0; nw = nn = 0
    for i, (l, n) in enumerate(I):
        if n == 8 and addr % 8 == 4:
            run = 0
            for l2, n2 in I[i:]:
                if n2 == 4: break
                run += n2 == 8
            cross = sum(1 for k in range(run) if (addr + 8*k) % 32 == 28)
            if cross:
                j = len(res) - 1; done = False; aj = addr
                while j >= 0 and res[j][1] in (0, 4):
                    aj -= res[j][1]
                    t = res[j][0].strip()
                    if t.startswith(('s_branch', 's_endpgm', 's_setpc')):
                        res.insert(j + 1, ['    s_nop 0', 4]); done = True; break
                    w = widen(res[j][0]) if res[j][1] == 4 and aj % 32 != 28 else None
                    if w:
                        res[j] = [w, 8]; done = True; nw += 1; break
                    j -= 1
                if not done and run >= OPT['alr']:
                    k = len(res)
                    while res[k-1][1] == 0: k -= 1
                    res.insert(k, ['    s_nop 0', 4]); done = True; nn += 1
                if done: addr += 4
        res.append([l, n]); addr += n
    BODY = [l for l, n in res]
    print('aligned: widened', nw, 'nops', nn, 'bytes', addr, file=sys.stderr)
hdr = open('header.txt').read()
txt = hdr + f'''; @launch grid=(256,1,1) block=(512,1,1) lds={L_TOT}
.amdgcn_target "amdgcn-amd-amdhsa--gfx950"
.text
.globl {KN}
.p2align 8
.type {KN},@function
{KN}:
''' + '\n'.join(BODY) + f'''
.section .rodata,"a"
.p2align 6
.amdhsa_kernel {KN}
  .amdhsa_next_free_vgpr 256
  .amdhsa_next_free_sgpr 102
  .amdhsa_accum_offset 256
  .amdhsa_group_segment_fixed_size 0
  .amdhsa_kernarg_size 104
  .amdhsa_user_sgpr_count 2
  .amdhsa_user_sgpr_kernarg_segment_ptr 1
  .amdhsa_system_sgpr_workgroup_id_x 1
.end_amdhsa_kernel
'''
open(sys.argv[1], 'w').write(txt)
```

```python
import sys, struct
def fl(x): return hex(struct.unpack('<I', struct.pack('<f', x))[0])

KN = 'concat_heads__ssm_conv_s4d__softmax_full_mha__prompt_kernel'
OPT = dict(rd0=-1, rdm=0, probe=0, poff=0xc00000, nt=0, rdn=0, al=1, alr=6, fw=0, rsleep=0, hsleep=0, ord=3, nb=0, tb=13, tq=1, chkk=99, uw=-2, cw=0, s6=5, tskip=1, ones=1, pa=1, pr=2, pf=2, wgf=2, ax=0, bp=3, qa=7, n0=4, ilv=8, tlb=0, ulook=1, kgp=1, pad=0, ypad=0, omode=3, ksleep=0, usleep=4, obar=5, osleep=0, pubk=8, abl=0, touch=0, gs=0, kgw=0, xg=5, gx=0, pm=2, ps=0, rt=0, upub=1, kgx=0, outsc=0, ysleep=8, wodepth=4, wq_mid=0, pollk=99, rd=-1, rdrole=0, only=0, safe=0, rot=0, prof=0, fs=128, force_fb=0, wq_early=7, prio=1)
for a in sys.argv[2:]:
    k, v = a.split('=')
    assert k in OPT, k
    OPT[k] = int(v, 0)

FS = OPT['fs']
FSH = FS.bit_length() - 1
F_KV = 0x1000
F_O = F_KV + 1024 * FS
F_U = F_O + 1024 * FS
F_Y = F_U + 1024 * FS
F_H = F_Y + 1024 * FS
WS_K = 0x100000
WS_V = 0x300000
WS_O = 0x500000
WS_U = 0x700000
WS_Y = 0x900000
QS = 16384 + OPT['pad']; KS = 2 * QS; YS = 4096 + OPT['ypad']
S_KS = 57
WS_PROF = 0xb00000
WS_SIZE = 0xc00000
L_SSM = 1024
L_W = 57344
L_RB = 65536
L_X = 114688
L_TOT = 163840
TROW = 288
TABSZ = 38 * TROW
L_TAB = L_SSM
P_SZ = 2 * TABSZ
P_UC = 1536
UC_S = 2240
P_KD = TABSZ + 1536
P_X = TABSZ
PS = 1552
PD = 4 * PS
L_KP = L_TAB + 4 * TABSZ
assert P_UC + 4 * UC_S <= TABSZ and P_KD + 1600 <= P_SZ and P_X + 8192 <= P_SZ and L_KP % 16 == 0 and L_KP + 2 * PD <= L_W
L_WO = L_SSM

S_WV, S_W, S_HG, S_C, S_TILE, S_J, S_H, S_NONCE, S_O0, S_ROT = range(30, 40)
SRD_WS, SRD_A, SRD_B, SRD_C = 40, 44, 48, 52
S_BOUND = 56
S_T0 = 58

SEC = {}
out = None
def sec(n):
    global out
    out = SEC.setdefault(n, [])
sec('pro')
def e(s):
    for l in s.split('\n'):
        l = l.strip()
        if l:
            out.append(l if l.endswith(':') else '    ' + l)
_lab = [0]
def lab(p):
    _lab[0] += 1
    return f'L_{p}_{_lab[0]}'
def vr(a, n):
    return f'v[{a}:{a+n-1}]' if n > 1 else f'v{a}'
def srd(d, b, n):
    e(f's_mov_b64 s[{d}:{d+1}], s[{b}:{b+1}]\ns_mov_b32 s{d+2}, {n}\ns_mov_b32 s{d+3}, 0x20000')
def sr(d): return f's[{d}:{d+3}]'

V_LANE, V_T, V_OWN, V_GRP, V_PROF = 0, 1, 2, 3, 4

ROLE = [0]
def stamp(i):
    if OPT['rd0'] == i and OPT['rdrole'] == ROLE[0]:
        e('s_memrealtime s[98:99]\ns_waitcnt lgkmcnt(0)')
    if OPT['rd'] == i and OPT['rdrole'] == ROLE[0]:
        e('s_memrealtime s[100:101]\ns_waitcnt lgkmcnt(0)')
    if OPT['prof'] > (i >= 14):
        e(f's_mem{"real" if OPT["rt"] else ""}time s[96:97]\ns_waitcnt lgkmcnt(0)\ns_sub_u32 s96, s96, s{98 if OPT["rt"] else S_T0}\nv_writelane_b32 v{V_PROF}, s96, {i}')
def prof_out():
    if OPT['rd'] >= 0 and OPT['rdrole'] == ROLE[0]:
        l = lab('pad')
        if ROLE[0] == 0 and not OPT['obar']: e('s_barrier')
        if ROLE[0] == 2: e('s_barrier')
        if ROLE[0] == 0 and OPT['rdn']: e(f's_cmp_eq_u32 s{S_C}, 7\ns_cbranch_scc{2 - OPT["rdn"]} L_end')
        if OPT['rd'] == 98:
            e(f'''s_not_b32 s100, s100
            v_mov_b32 v5, s100
            v_mov_b32 v6, 0
            s_mov_b64 exec, 1
            global_atomic_umax v6, v5, s[26:27]
            s_waitcnt vmcnt(0)
            s_sleep 127
            s_sleep 127
            s_sleep 127
            s_sleep 127
            s_sleep 127
            global_load_dword v5, v6, s[26:27] sc1
            s_waitcnt vmcnt(0)
            v_readfirstlane_b32 s100, v5
            s_not_b32 s100, s100''')
        if OPT['probe']:
            op = {1: 'buffer_store_dwordx4 v[8:11], v5, s[52:55], s60 offen sc1', 2: 'buffer_load_dwordx4 v[8:11], v5, s[52:55], s60 offen sc1',
                  3: 'buffer_store_dwordx4 v[8:11], v5, s[52:55], s60 offen'}[OPT['probe'] & 3]
            pre = 'buffer_load_dword v12, v6, s[52:55], s61 offen sc1\ns_waitcnt vmcnt(0)' if OPT['probe'] & 4 else ''
            if OPT['probe'] & 8: pre += '\nbuffer_store_dwordx4 v[8:11], v5, s[52:55], s60 offen sc1\ns_waitcnt vmcnt(0)\ns_sleep 40'
            e(f'''s_mov_b64 s[52:53], s[28:29]
            s_mov_b32 s54, 0x10000000
            s_mov_b32 s55, 0x20000
            s_sleep 127
            s_sleep 127
            s_sleep 127
            v_lshlrev_b32 v5, 4, v0
            v_mov_b32 v6, 0
            s_lshl2_add_u32 s60, s2, s{S_W}
            s_lshl_b32 s60, s60, 10
            s_add_u32 s60, s60, {OPT['poff']}
            s_mov_b32 s61, {OPT['poff'] + 0x180000}
            {pre}
            s_memrealtime s[62:63]
            s_waitcnt lgkmcnt(0)
            {op}
            s_waitcnt vmcnt(0)
            s_memrealtime s[100:101]
            s_waitcnt lgkmcnt(0)
            s_sub_u32 s100, s100, s62
            v_mov_b32 v8, s100
            s_lshl2_add_u32 s60, s2, s{S_W}
            s_lshl_b32 s60, s60, 2
            s_add_u32 s60, s60, {WS_PROF}
            buffer_store_dword v8, v6, s[52:55], s60 offen
            s_mul_i32 s100, s100, 50
            s_add_u32 s100, s100, s58''')
        elif OPT['rdm'] == 2:
            e('''s_not_b32 s96, s58
            v_mov_b32 v5, s96
            v_mov_b32 v6, 0
            s_mov_b64 exec, 1
            global_atomic_umax v6, v5, s[26:27]
            s_waitcnt vmcnt(0)''' + '\ns_sleep 127' * 7 + '''
            global_load_dword v5, v6, s[26:27] sc1
            s_waitcnt vmcnt(0)
            v_readfirstlane_b32 s96, v5
            s_not_b32 s96, s96
            s_sub_u32 s100, s100, s96
            s_lshl_b32 s100, s100, 3
            s_add_u32 s100, s100, s96''')
        elif OPT['rdm']:
            e('''s_sub_u32 s100, s100, s98
            v_mov_b32 v5, s100
            v_mov_b32 v6, 0
            s_mov_b64 exec, 1
            global_atomic_add v6, v5, s[26:27]
            s_waitcnt vmcnt(0)''' + '\ns_sleep 127' * 7 + '''
            global_load_dword v5, v6, s[26:27] sc1
            s_waitcnt vmcnt(0)
            v_readfirstlane_b32 s100, v5
            s_lshr_b32 s100, s100, 6
            s_add_u32 s100, s100, s58''')
        else: e('s_sub_u32 s100, s100, s98\ns_lshl_b32 s100, s100, 3\ns_add_u32 s100, s100, s58')
        e(f'''s_add_u32 s100, s100, 6000
        {l}:
        s_sleep 1
        s_memrealtime s[96:97]
        s_waitcnt lgkmcnt(0)
        s_sub_u32 s96, s96, s100
        s_cmp_lt_i32 s96, 0
        s_cbranch_scc1 {l}''')
    if OPT['prof']:
        e(f'''s_memrealtime s[96:97]
        s_waitcnt lgkmcnt(0)
        v_writelane_b32 v{V_PROF}, s96, 31
        v_writelane_b32 v{V_PROF}, s98, 30
        s_lshl_b32 s96, s2, 3
        s_add_u32 s96, s96, s{S_WV}
        s_lshl_b32 s96, s96, 7
        s_add_u32 s96, s96, {WS_PROF}
        v_lshlrev_b32 v{V_T}, 2, v{V_LANE}
        s_mov_b32 exec_hi, 0
        buffer_store_dword v{V_PROF}, v{V_T}, {sr(SRD_WS)}, s96 offen
        s_mov_b64 exec, -1''')

def arrive(stage):
    e(f'v_mov_b32 v{V_T}, {stage}\nds_write_b32 v{V_OWN}, v{V_T}')
def lwait(stage, addr=V_GRP, sleep=0):
    l = lab('lw')
    e(f'{l}:')
    if sleep: e(f's_sleep {sleep}')
    e(f'''ds_read_b32 v{V_T}, v{addr}
    s_waitcnt lgkmcnt(0)
    v_cmp_gt_u32 vcc, {stage}, v{V_T}''')
    if OPT['safe']:
        d = lab('ld')
        e(f'''s_cbranch_vccz {d}
        s_sub_u32 s{S_BOUND}, s{S_BOUND}, 1
        s_cbranch_scc0 {l}
        s_mov_b32 s{S_BOUND}, 0
        {d}:''')
    else:
        e(f's_cbranch_vccnz {l}')
def sync(stage):
    arrive(stage); lwait(stage)
def poll(voff, first_issued=False, sleep=0, reg=V_T):
    l, d, m = lab('pl'), lab('pd'), lab('pm')
    if first_issued == 2:
        e(f's_waitcnt vmcnt(0)\nv_cmp_ne_u32 vcc, s{S_NONCE}, v{reg}\ns_cbranch_vccnz {l}\n{d}:')
        cur = [n for n in SEC if SEC[n] is out][0]
        sec('cold')
        e(f'''{l}:
        buffer_load_dword v{reg}, v{voff}, {sr(SRD_WS)}, 0 offen sc1
        s_waitcnt vmcnt(0)
        v_cmp_ne_u32 vcc, s{S_NONCE}, v{reg}
        s_cbranch_vccz {d}
        s_sub_u32 s{S_BOUND}, s{S_BOUND}, 1
        s_cbranch_scc0 {l}
        s_mov_b32 s{S_BOUND}, 0
        s_branch {d}''')
        sec(cur)
        return
    if first_issued: e(f's_branch {m}')
    e(f'{l}:')
    if sleep: e(f's_sleep {sleep}')
    e(f'''buffer_load_dword v{reg}, v{voff}, {sr(SRD_WS)}, 0 offen sc1
    {m}:
    s_waitcnt vmcnt(0)
    v_cmp_ne_u32 vcc, s{S_NONCE}, v{reg}
    s_cbranch_vccz {d}
    s_sub_u32 s{S_BOUND}, s{S_BOUND}, 1
    s_cbranch_scc0 {l}
    s_mov_b32 s{S_BOUND}, 0
    {d}:''')
def publish(soff, tmp):
    if OPT['fw']:
        e(f'''v_mov_b32 v{V_T}, s{S_NONCE}
        v_lshlrev_b32 v{tmp}, 2, v{V_LANE}
        s_mov_b64 exec, {hex((1 << OPT['fw']) - 1)}
        buffer_store_dword v{V_T}, v{tmp}, {sr(SRD_WS)}, s{soff} offen sc1
        s_mov_b64 exec, -1'''.replace('s_mov_b64 exec, 0xffffffff', 's_mov_b32 exec_hi, 0'))
        return
    e(f'''v_mov_b32 v{V_T}, s{S_NONCE}
    v_mov_b32 v{tmp}, 0
    s_mov_b64 exec, 1
    buffer_store_dword v{V_T}, v{tmp}, {sr(SRD_WS)}, s{soff} offen sc1
    s_mov_b64 exec, -1''')
def swap23(d, s, t):
    e(f'''v_lshrrev_b32 v{t}, 1, v{s}
    v_xor_b32 v{t}, v{t}, v{s}
    v_and_b32 v{t}, 4, v{t}
    v_mul_u32_u24 v{t}, 3, v{t}
    v_xor_b32 v{d}, v{t}, v{s}''')
def rot_next(s):
    e(f's_add_u32 s{s}, s{s}, 1\ns_cmp_eq_u32 s{s}, 7\ns_cselect_b32 s{s}, 0, s{s}')

e(f'''s_cmp_ge_u32 s2, 256
s_cbranch_scc1 L_end''')
if OPT['prof']:
    e(f's_memtime s[{S_T0}:{S_T0+1}]\ns_memrealtime s[98:99]\nv_mov_b32 v{V_PROF}, 0')
if OPT['rd'] >= 0: e('s_memrealtime s[100:101]\ns_memrealtime s[58:59]\ns_memrealtime s[98:99]')
e(f'''s_load_dwordx16 s[4:19], s[0:1], 0
s_load_dwordx8 s[20:27], s[0:1], 64
s_load_dwordx2 s[28:29], s[0:1], 96
v_lshrrev_b32 v{V_OWN}, 6, v0
v_and_b32 v{V_LANE}, 63, v0
v_readfirstlane_b32 s{S_WV}, v{V_OWN}
v_lshlrev_b32 v{V_OWN}, 2, v{V_OWN}
v_mov_b32 v{V_T}, 0
ds_write2_b32 v{V_OWN}, v{V_T}, v{V_T} offset1:8
v_and_b32 v{V_GRP}, 3, v{V_LANE}
v_lshlrev_b32 v{V_GRP}, 2, v{V_GRP}
s_and_b32 s{S_HG}, s2, 1
s_bfe_u32 s60, s2, 0x20001
s_bfe_u32 s{S_C}, s2, 0x30003
s_lshr_b32 s61, s2, 6
s_lshl2_add_u32 s{S_TILE}, s60, s61
s_lshl1_add_u32 s{S_J}, s{S_TILE}, s{S_HG}
s_lshl3_add_u32 s{S_H}, s{S_HG}, s{S_C}
s_and_b32 s{S_W}, s{S_WV}, 3
s_mov_b32 s{S_BOUND}, 0x40000
s_mov_b32 s{S_KS}, {KS}
s_cmp_lt_u32 s{S_WV}, 4
s_cbranch_scc1 L_mha''')

VX = 144; VACC = 96; VWF = 32; VPK = 128
VV, VK, VS, VO, VQ = 32, 64, 96, 160, 224
vWd = [5, 6]; vXd = [7, 8, 9, 10]; vXr = [11, 12, 13, 14]; vWb, vW0, vW1 = 15, 16, 17
vRho, vG, vSt, vQd, vQr, vFl, vA, vB, vC = 18, 19, 20, 21, 22, 23, 24, 25, 26
vKo0, vKo1, vVo, vIdx = 27, 28, 29, 30
sXb, sWb, sCh, sCw, sLx, sTmp, sTmp2, sSt, sS1, sS2, sFl = range(60, 71)
sK, sV, sIt = 71, 72, 73
sFo, sO0, sO1 = 84, 85, 86
vOs, vQw = vRho, vG
vRb = [7, 8, 9]; vQx = [11, 12, 13]; vRr = 10
sMask = 74
sOdd = 76

sec('mha0')
e('L_mha:')
if OPT['prio']: e(f"s_setprio {OPT['pm']}")
e(f'''s_mul_i32 s{S_O0}, s{S_H}, 7
s_lshr_b32 s{S_O0}, s{S_O0}, 1''')
e(f'''v_lshrrev_b32 v{vA}, 3, v{V_LANE}          ; r
v_and_b32 v{vB}, 7, v{V_LANE}                    ; p
v_lshlrev_b32 v{vC}, 1, v{vA}
v_and_b32 v{vC}, 4, v{vC}
v_xor_b32 v{vC}, v{vC}, v{vB}
v_lshlrev_b32 v{vC}, 4, v{vC}
v_mul_u32_u24 v{vWd[0]}, 2688, v{vA}
v_add_u32 v{vWd[0]}, v{vWd[0]}, v{vC}
v_add_u32 v{vWd[1]}, {8*2688-1024}, v{vWd[0]}
v_lshrrev_b32 v{vC}, 1, v{vA}
v_xor_b32 v{vC}, v{vC}, v{vB}
v_lshlrev_b32 v{vC}, 4, v{vC}
v_mul_u32_u24 v{vA}, 896, v{vA}
v_add_u32 v{vXd[0]}, v{vA}, v{vC}
v_xor_b32 v{vC}, 64, v{vC}
v_add_u32 v{vXd[1]}, v{vA}, v{vC}
v_add_u32 v{vXd[1]}, {7168-1024}, v{vXd[1]}
v_add_u32 v{vXd[2]}, {2*(7168-1024)}, v{vXd[0]}
v_add_u32 v{vXd[3]}, {2*(7168-1024)}, v{vXd[1]}
s_lshl2_add_u32 s{sXb}, s{S_TILE}, s{S_W}
s_lshl_b32 s{sFl}, s{S_H}, 6
s_add_u32 s{sFl}, s{sFl}, s{S_TILE if OPT['wgf'] else sXb}
s_lshl_b32 s{sFl}, s{sFl}, {FSH}
s_add_u32 s{sFl}, s{sFl}, {F_KV}
s_mul_i32 s{sXb}, s{sXb}, {32*896}
s_mul_i32 s{sTmp2}, s{S_HG}, 3
s_lshr_b32 s{sTmp}, s2, 6
s_add_u32 s{sTmp2}, s{sTmp2}, s{sTmp}
s_mul_i32 s{sWb}, s{S_HG}, 7
s_add_u32 s{sWb}, s{sWb}, s{S_C}
s_add_u32 s{sWb}, s{sWb}, 7
s_cmp_eq_u32 s{S_C}, 7
s_cselect_b32 s{sWb}, {'s%d' % sTmp2 if OPT['tq'] else '0x100000'}, s{sWb}
s_cselect_b32 s{sS1}, 1, s{S_W}
s_lshl_b32 s{sWb}, s{sWb}, 7
s_mul_i32 s{sTmp}, s{S_W}, {16*2688}
s_add_u32 s{sWb}, s{sWb}, s{sTmp}
s_mul_i32 s{sLx}, s{S_W}, 12288
s_add_u32 s{sLx}, s{sLx}, {L_X}
s_lshl_b32 s{sS1}, s{sS1}, 11
s_add_u32 s{sS1}, s{sS1}, {L_W}
s_mov_b32 s{SRD_A+2}, {2048*896}
s_mov_b32 s{SRD_A+3}, 0x20000
s_mov_b32 s{SRD_B+2}, {448*1344*2}
s_mov_b32 s{SRD_B+3}, 0x20000
s_mov_b32 m0, s{sLx}
s_waitcnt lgkmcnt(0)
s_mov_b64 s[{SRD_A}:{SRD_A+1}], s[18:19]
s_mov_b64 s[{SRD_B}:{SRD_B+1}], s[20:21]
s_load_dword s{S_NONCE}, s[28:29], 0''')
stamp(22)
sWo = 88
def w_lines(st):
    return [f's_add_u32 m0, s{sS1}, {8192*st}', f's_add_u32 s{sWo+st}, s{sWb}, {64*2688*st}'] + \
           [f'buffer_load_dwordx4 v{vWd[i]}, {sr(SRD_B)}, s{sWo+st} offen offset:{1024*i} lds' for i in range(2)]
def x_chunk(st):
    return [f's_add_u32 m0, s{sLx}, {(st%3)*4096 - 128*st}', 's_nop 0'] + \
           [f'buffer_load_dwordx4 v{vXd[i]}, {sr(SRD_A)}, s{sXb} offen offset:{1024*i + 128*st} lds' for i in range(4)]
DM = []
for l in [x_chunk(0), w_lines(0)] + [w_lines(i) for i in range(1, 7)] + [x_chunk(1), x_chunk(2)]:
    DM += [l[:3]] + [[x] for x in l[3:]]
DM[0] = DM[0][2:]
for i, g in enumerate(DM[:OPT['n0']]):
    if i == OPT['nb']:
        e('s_barrier'); stamp(23)
        if OPT['only'] == 1: e('s_endpgm')
    e('\n'.join(g))
DM = DM[OPT['n0']:]
stamp(24)
if OPT['ord'] not in (1, 3): e('s_branch L_mha1')
sec('mha')
e('L_mha1:')
stamp(25)
sec('tmp')
srd(SRD_WS, 28, WS_SIZE)
ONES = f'''s_bitcmp1_b32 s{S_H}, 0
s_cselect_b32 s{sTmp}, 0, 7
v_cmp_eq_u32 vcc, s{sTmp}, v{vA}
s_lshl_b32 s{sTmp}, s{S_O0}, 1
s_sub_u32 s{sTmp}, s{S_HG}, s{sTmp}
s_add_u32 s{sTmp}, s{sTmp}, 112
v_mov_b32 v{vB}, s{sTmp}
v_cndmask_b32 v{vA}, v{vA}, v{vB}, vcc
''' if OPT['ones'] else ''
FIX = f'''v_cmp_lt_u32 vcc, 7, v{vB}
s_lshl3_add_u32 s{sTmp}, s{S_HG}, 7
v_mov_b32 v{vB}, s{sTmp}
v_cndmask_b32 v{vC}, v{vC}, v{vB}, vcc
''' if OPT['ones'] else ''
FOM = f'''s_lshl_b32 s{sFo}, s{sTmp2}, 4
s_add_u32 s{sFo}, s{sFo}, s{S_H}
s_lshl_b32 s{sFo}, s{sFo}, {FSH}
s_add_u32 s{sFo}, s{sFo}, {F_O}
''' if OPT['omode'] != 3 else ''
e(f'''v_and_b32 v{vA}, 31, v{V_LANE}
v_lshrrev_b32 v{vG}, 5, v{V_LANE}''')
swap23(vRho, vA, vB)
e(f'''v_bfe_u32 v{vB}, v{vRho}, 1, 3
v_xor_b32 v{vB}, v{vB}, v{vG}
v_lshlrev_b32 v{vB}, 4, v{vB}
v_lshl_add_u32 v{vB}, v{vRho}, 7, v{vB}
v_add_u32 v{vXr[0]}, s{sLx}, v{vB}
v_xor_b32 v{vXr[1]}, 32, v{vXr[0]}
v_xor_b32 v{vXr[2]}, 64, v{vXr[0]}
v_xor_b32 v{vXr[3]}, 0x60, v{vXr[0]}
v_and_b32 v{vB}, 3, v{V_LANE}                     ; cc
v_lshrrev_b32 v{vC}, 1, v{vB}
v_and_b32 v{vQd}, 1, v{vB}
v_lshl_or_b32 v{vC}, v{vQd}, 1, v{vC}
v_bfe_u32 v{vQd}, v{V_LANE}, 4, 1
v_lshl_or_b32 v{vB}, v{vQd}, 2, v{vB}
v_lshl_or_b32 v{vC}, v{vQd}, 2, v{vC}
v_bfe_u32 v{vQd}, v{V_LANE}, 2, 2                  ; r'
v_lshl_or_b32 v{vFl}, v{vG}, 3, v{vQd}             ; 8g + r'
v_lshlrev_b32 v{vQr}, 6, v{vFl}
v_lshl_add_u32 v{vQr}, v{vC}, 3, v{vQr}
v_add_u32 v{vQr}, {L_X + 4096}, v{vQr}
s_cmp_eq_u32 s{S_HG}, 0
s_cselect_b64 vcc, -1, 0
v_cndmask_b32 v{vB}, v{vB}, v{vC}, vcc             ; K slabs use the exchanged order, V slabs the natural one
v_lshlrev_b32 v{vWb}, 7, v{vFl}
v_lshl_add_u32 v{vWb}, v{vB}, 3, v{vWb}
v_lshrrev_b32 v{vQd}, 1, v{vQd}
v_lshl_add_u32 v{vWb}, v{vQd}, 6, v{vWb}
v_add_u32 v{vW0}, {L_W}, v{vWb}
v_lshlrev_b32 v{vB}, 4, v{vRho}
v_mad_u32_u24 v{vB}, v{vG}, s{S_KS}, v{vB}
v_lshrrev_b32 v{vC}, 2, v{vA}
v_mul_u32_u24 v{vC}, {QS}, v{vC}
v_lshl_add_u32 v{vC}, v{vG}, 6, v{vC}
v_and_b32 v{vQd}, 3, v{vA}
v_lshl_add_u32 v{vC}, v{vQd}, 4, v{vC}
v_cndmask_b32 v{vSt}, v{vC}, v{vB}, vcc
s_lshl2_add_u32 s{sTmp}, s{S_TILE}, s{S_W}
s_lshl_b32 s{sTmp2}, s{sTmp}, 9
s_add_u32 s{sTmp2}, s{sTmp2}, {WS_K}
s_lshl_b32 s{sTmp}, s{sTmp}, 8
s_add_u32 s{sTmp}, s{sTmp}, {WS_V}
s_movk_i32 s{sS2}, 128
s_cmp_eq_u32 s{S_HG}, 0
s_cselect_b32 s{sSt}, s{sTmp2}, s{sTmp}
s_cselect_b32 s{sS2}, {2*KS}, s{sS2}
s_mul_i32 s{sTmp}, s{S_C}, {8*KS}
s_add_u32 s{sSt}, s{sSt}, s{sTmp}
v_lshrrev_b32 v{vB}, 2, v{V_LANE}
v_mul_u32_u24 v{vB}, 2688, v{vB}
v_lshl_add_u32 v{vQd}, v{vQd}, 4, v{vB}
s_lshl_b32 s82, s{S_O0}, 4
s_mul_i32 s{sTmp}, s{S_W}, {16*2688}
s_add_u32 s82, s82, s{sTmp}
s_lshr_b32 s{sTmp}, s{S_O0}, 3
s_add_u32 s{sTmp2}, s{S_O0}, 3
s_lshr_b32 s{sTmp2}, s{sTmp2}, 3
s_sub_u32 s{sTmp2}, s{sTmp2}, s{sTmp}
v_bfe_u32 v{vC}, v{V_LANE}, 4, 1
v_mul_u32_u24 v{vC}, s{sTmp2}, v{vC}
v_lshl_add_u32 v{vC}, v{vG}, 3, v{vC}
v_add_u32 v{vC}, s{sTmp}, v{vC}
v_and_b32 v{vB}, 15, v{V_LANE}
{FIX}v_and_b32 v{vB}, {3 if OPT['wgf'] else 15}, v{V_LANE}
v_lshl_add_u32 v{vC}, v{vC}, 6, v{vB}
s_lshl_b32 s{sTmp}, s{S_W}, {2 if OPT['wgf'] else 4}
v_add_u32 v{vC}, s{sTmp}, v{vC}
v_lshlrev_b32 v{vC}, {FSH}, v{vC}
v_add_u32 v{vFl}, {F_KV}, v{vC}
v_lshlrev_b32 v{vKo0}, 4, v{vA}
v_mad_u32_u24 v{vKo0}, v{vG}, s{S_KS}, v{vKo0}
v_add_u32 v{vKo1}, {2*KS}, v{vKo0}
v_lshrrev_b32 v{vA}, 2, v{vRho}
{ONES}v_mul_u32_u24 v{vA}, {QS}, v{vA}
v_lshl_add_u32 v{vA}, v{vG}, 6, v{vA}
v_and_b32 v{vB}, 3, v{V_LANE}
v_lshl_add_u32 v{vVo}, v{vB}, 4, v{vA}
v_mov_b32 v{vIdx}, 0xdddddddd
s_mul_i32 s{sTmp}, s{S_O0}, {KS}
s_lshl_b32 s{sK}, s{S_W}, 13
s_add_u32 s{sK}, s{sK}, s{sTmp}
s_add_u32 s{sK}, s{sK}, {WS_K}
s_lshl_b32 s{sV}, s{S_W}, 12
s_add_u32 s{sV}, s{sV}, s{sTmp}
s_add_u32 s{sV}, s{sV}, {WS_V}
s_lshl2_add_u32 s{sTmp2}, s{S_TILE}, s{S_W}
{FOM}s_lshl_b32 s{sTmp2}, s{sTmp2}, 9
s_add_u32 s{sO0}, s{sTmp}, s{sTmp2}
s_add_u32 s{sO0}, s{sO0}, {WS_O}
s_add_u32 s{sO1}, s{sO0}, {2*KS}
s_bitcmp1_b32 s{S_H}, 0
s_cselect_b64 s[{sOdd}:{sOdd+1}], -1, 0
v_mov_b32 v{vC}, 0x3e8b97f6
v_cmp_gt_u32 vcc, 32, v{V_LANE}
s_and_b64 s[78:79], vcc, s[{sOdd}:{sOdd+1}]
s_nor_b64 s[80:81], vcc, s[{sOdd}:{sOdd+1}]
v_cndmask_b32 v{vA}, v{vC}, 0, s[78:79]
v_cndmask_b32 v{vB}, v{vC}, 0, s[80:81]
s_mov_b32 s78, 0x3f803f80
s_mov_b32 s79, s78
v_xor_b32 v{vW1}, 64, v{vW0}
v_lshlrev_b32 v{vOs}, 4, v{vRho}
v_mad_u32_u24 v{vOs}, v{vG}, s{S_KS}, v{vOs}
v_lshl_add_u32 v{vQw}, v{V_LANE}, 4, s{sLx}''')
srd(SRD_C, 28, WS_SIZE)
def o_stores(r0, r1, tag):
    e(f'''s_bitcmp1_b32 s{S_H}, 0
    s_cbranch_scc1 L_ost_odd{tag}
    buffer_store_dwordx4 {vr(r0,4)}, v{vOs}, {sr(SRD_WS)}, s{sO0} offen sc1
    s_mov_b32 exec_hi, 0
    buffer_store_dwordx4 {vr(r1,4)}, v{vOs}, {sr(SRD_WS)}, s{sO1} offen sc1
    s_not_b64 exec, exec
    buffer_store_dwordx2 {vr(r1,2)}, v{vOs}, {sr(SRD_WS)}, s{sO1} offen sc1
    s_branch L_ost_done{tag}
    L_ost_odd{tag}:
    buffer_store_dwordx4 {vr(r1,4)}, v{vOs}, {sr(SRD_WS)}, s{sO1} offen sc1
    s_mov_b32 exec_hi, 0
    buffer_store_dwordx2 {vr(r0+2,2)}, v{vOs}, {sr(SRD_WS)}, s{sO0} offen offset:8 sc1
    s_not_b64 exec, exec
    buffer_store_dwordx4 {vr(r0,4)}, v{vOs}, {sr(SRD_WS)}, s{sO0} offen sc1
    L_ost_done{tag}:
    s_mov_b64 exec, -1''')
GS = 0
AB = [l for l in SEC.pop('tmp') if not l.strip().startswith(';')]
sec('mha')
def scc_pending(i):
    return i < len(AB) and AB[i].strip().startswith(('s_cselect', 's_mov_b32 s75'))
pos = 0
for g in DM:
    n = pos + OPT['ilv']
    while scc_pending(n): n += 1
    e('\n'.join(AB[pos:n])); pos = n
    e('\n'.join(g))
e('\n'.join(AB[pos:]))
stamp(0)
def x_reads(s):
    return [f'ds_read_b128 {vr(VX + 16*s + 4*ks, 4)}, v{vXr[ks]} offset:{(s%3)*4096}' for ks in range(4)]
e('s_waitcnt vmcnt(22)')
e('\n'.join(x_reads(0)))
e('s_waitcnt vmcnt(8) lgkmcnt(0)')
arrive(1)
stamp(1)
e('\n'.join(x_chunk(3)))
e('s_waitcnt vmcnt(8)')
e('\n'.join(x_reads(1)))
lwait(1)
e(f's_add_u32 s{S_NONCE}, s{S_NONCE}, 1')
stamp(2)
def w_reads(s):
    r = []
    for ks in range(4):
        for ct in range(2):
            for hf in range(2):
                d = VWF + 32 * (s & 1) + 8 * ks + 4 * ct + 2 * hf
                r.append(f'ds_read_b64_tr_b16 {vr(d,2)}, v{(vW0, vW1)[ct]} offset:{s*8192 + ks*2048 + hf*512}')
    return r
if OPT['tskip']: e(f's_cmp_eq_u32 s{S_C}, 7\ns_cbranch_scc1 L_gemm_t')
e('\n'.join(w_reads(0)))
e(f'''s_waitcnt lgkmcnt(0)
s_cmp_lg_u32 s{S_HG}, 0
s_cbranch_scc1 L_gemm_v''')
sQb, sQc = 82, 83
NE = OPT['wq_early']
def wq_dma(st):
    return [f's_add_u32 m0, s{sLx}, {4096 + 1024*st}\ns_add_u32 s83, s82, {64*2688*st}', '', f'buffer_load_dwordx4 v{vQd}, {sr(SRD_B)}, s83 offen lds']
SPIN = []
def gemm1(vpart):
    for s in range(7):
        M = []
        for ks in range(4):
            for ct in range(2):
                wf = vr(VWF + 32 * (s & 1) + 8 * ks + 4 * ct, 4); xf = vr(VX + 16 * s + 4 * ks, 4)
                acc = vr(VACC + 16 * ct, 16)
                a, b = (xf, wf) if vpart else (wf, xf)
                M.append(f'v_mfma_f32_32x32x16_bf16 {acc}, {a}, {b}, {"0" if s == 0 and ks == 0 else acc}')
        gaps = [[] for _ in range(8)]
        tag = f'{"v" if vpart else "k"}{s}'
        pre = []
        dm = []
        def add(l): dm.extend([(l[0], l[2])] + [(None, x) for x in l[3:]])
        if s <= 2: add(x_chunk(s + 4))
        if s == 3:
            for i in range(min(NE, 4)): add(wq_dma(i))
        if s == 4:
            for i in range(4, NE): add(wq_dma(i))
        n = {0: 8, 1: 8, 2: 8, 3: 4 + min(NE, 4), 4: NE}.get(s)
        for i, (m, l) in enumerate(dm):
            if m: (pre if i == 0 else gaps[i - 1]).append(m)
            gaps[i].append(l)
        if s < 6:
            wr = w_reads(s + 1)
            for i, (p, q) in enumerate(((0, 3), (3, 6), (6, 9), (9, 12), (12, 16))): gaps[i] += wr[p:q]
            if s <= 4: gaps[OPT['xg']] += [f's_waitcnt vmcnt({n})'] + x_reads(s + 2)
            gaps[7] += [f's_waitcnt lgkmcnt({4 if s == 4 and OPT["s6"] != 4 else 0})']
        if s == OPT['s6'] and (OPT['uw'] == 6 or OPT['cw'] == 6): gaps[6] += [f'v_mov_b32 v{V_T}, 6', f'ds_write_b32 v{V_OWN}, v{V_T}']
        if s == 5:
            gaps[7] += [f'v_add_u32 v31, 16, v{V_GRP}', f'ds_read_b32 v31, v31']
        if s == 6 and NE == 7:
            gaps[OPT['qa']] += ['s_waitcnt vmcnt(0)', f'v_mov_b32 v{V_T}, 7', f'ds_write_b32 v{V_OWN}, v{V_T}']
        e('\n'.join(pre))
        if OPT['gx'] & 1 or vpart == 2: M = ['s_nop 0'] * 8
        if OPT['gx'] & 2 or vpart == 2: gaps = [[x for x in g if 'tr_b16' not in x] for g in gaps]
        for i in range(8):
            e(M[i]); e('\n'.join(gaps[i]))
        stamp(14 + s)
if OPT['tskip']:
    sec('gt'); e('L_gemm_t:'); gemm1(2); e('s_branch L_gemm_done'); sec('mha')
else: SEC['gt'] = []
gemm1(False)
e('s_branch L_gemm_done\nL_gemm_v:')
gemm1(True)
e('L_gemm_done:')
stamp(3)
e(f"""s_add_u32 s{sS1}, s{sSt}, s{sS2}
s_add_u32 s{sXb}, s{sSt}, {4*KS}
s_add_u32 s{sCw}, s{sS1}, {4*KS}
s_cmp_eq_u32 s{S_C}, 7
s_waitcnt lgkmcnt(0)
s_cbranch_scc1 L_nokv
s_nop 4""")
for q, so in enumerate((sSt, sS1, sXb, sCw)):
    for i in range(4*q, 4*q+4):
        e(f'v_cvt_pk_bf16_f32 v{VPK + i}, v{VACC + 2*i}, v{VACC + 2*i + 1}')
    e(f'buffer_store_dwordx4 {vr(VPK+4*q,4)}, v{vSt}, {sr(SRD_WS)}, s{so} offen sc1')
if OPT['ones']:
    e(f'''s_branch L_kvst
    L_nokv:
    v_mov_b64 v[128:129], s[78:79]
    v_mov_b64 v[130:131], s[78:79]
    v_lshlrev_b32 v132, 4, v{V_LANE}
    s_lshl2_add_u32 s{sTmp}, s{S_TILE}, s{S_W}
    s_lshl_b32 s{sTmp}, s{sTmp}, 8
    s_mul_i32 s{sTmp2}, s{S_HG}, {QS}
    s_add_u32 s{sTmp}, s{sTmp}, s{sTmp2}
    s_add_u32 s{sTmp}, s{sTmp}, {WS_V + 112*QS}
    s_mov_b64 exec, 0xffff
    buffer_store_dwordx4 v[128:131], v132, {sr(SRD_WS)}, s{sTmp} offen sc1
    s_mov_b64 exec, -1
    L_kvst:''')
else: e('L_nokv:')
assert OPT['wgf'] and OPT['ones'] and OPT['pf'] == 2
def kv_loads(buf, i, srdn=SRD_C):
    return [f'buffer_load_dwordx4 {vr(VK + 8*buf, 4)}, v{vKo0}, {sr(srdn)}, s{sK} offen offset:{512*i} sc1',
            f'buffer_load_dwordx4 {vr(VK + 8*buf + 4, 4)}, v{vKo1}, {sr(srdn)}, s{sK} offen offset:{512*i} sc1',
            f'buffer_load_dwordx4 {vr(VV + 8*buf, 4)}, v{vVo}, {sr(srdn)}, s{sV} offen offset:{256*i} sc1',
            f'buffer_load_dwordx4 {vr(VV + 8*buf + 4, 4)}, v{vVo}, {sr(srdn)}, s{sV} offen offset:{256*i + 128} sc1']
fill = [f'v_mov_b64 {vr(VV+2*i,2)}, s[78:79]' for i in range(12, 16)] + [f'v_subrev_u32 v{vRr}, {L_X - L_RB}, v{vQw}', 's_mov_b64 s[80:81], -1']
for s in range(3):
    fill += f"""s_add_u32 s{sTmp}, s{S_W}, {1+s}
    s_and_b32 s{sTmp}, s{sTmp}, 3
    s_sub_u32 s{sTmp}, s{sTmp}, s{S_W}
    s_mul_i32 s{sTmp}, s{sTmp}, 12288
    v_add_u32 v{vQx[s]}, s{sTmp}, v{vQw}
    v_subrev_u32 v{vRb[s]}, {L_X - L_RB - 4096*s}, v{vQx[s]}""".split('\n')
def count_in(n):
    e(f"""v_mov_b32 v{V_T}, 1
    v_mov_b32 v31, 0
    s_waitcnt vmcnt({n})
    s_mov_b64 exec, 1
    ds_add_rtn_u32 v{vSt}, v31, v{V_T} offset:32
    s_mov_b64 exec, -1""")
def count_out(n):
    e(f's_waitcnt lgkmcnt({n})\nv_readfirstlane_b32 s{sTmp2}, v{vSt}\ns_cmp_lg_u32 s{sTmp2}, 3\ns_cbranch_scc1 L_nopub')
    publish(sFl, 31)
    e('L_nopub:'); stamp(5)
NM = max(NE, OPT['wq_mid'])
for st in range(NE, NM): e('\n'.join(wq_dma(st)))
stamp(4)
e(f'v_cmp_gt_u32 vcc, 1, v31\ns_cbranch_vccz L_eok\nv_add_u32 v31, 16, v{V_GRP}')
lwait(1, addr=31)
e('L_eok:')
if NE < 7:
    e('\n'.join(fill)); fill = []
    count_in(NM - NE)
    if NM == 7:
        e('s_waitcnt vmcnt(0)'); arrive(7); count_out(1)
    else:
        count_out(0)
        for st in range(NM, 7): e('\n'.join(wq_dma(st)))
        e('s_waitcnt vmcnt(0)'); arrive(7)
lwait(7)
stamp(6)
QB = [80, 84, 88, 92, 112, 116, 120, 124]
def q_reads(k):
    s, ks = divmod(k, 4)
    return [f'ds_read_b64_tr_b16 {vr(QB[k%8] + 2*hf, 2)}, v{vQr} offset:{ks*12288 + s*1024 + hf*256}' for hf in range(2)]
for k in range(6): e('\n'.join(q_reads(k)))
e('\n'.join(fill[:12])); fill = fill[12:]
zi = 0
PK = OPT['pubk'] if NE == 7 else -99
for k in range(28):
    extra = 1 if PK < k <= PK + 5 else 0
    e(f's_waitcnt lgkmcnt({min(10, 2*(27-k)) + extra})')
    e(f'v_mfma_f32_32x32x16_bf16 {vr(VACC,16)}, {vr(QB[k%8], 4)}, {vr(VX + 4*k, 4)}, {"0" if k == 0 else vr(VACC,16)}')
    if k + 6 < 28: e('\n'.join(q_reads(k + 6)))
    while zi < 40 and VX + 2*zi + 1 < VX + 4*k - 4 and zi < 2*k:
        e(f'v_mov_b64 {vr(VX + 2*zi, 2)}, 0'); zi += 1
    if k >= 22 or k < 2:
        e('\n'.join(fill[:4])); fill = fill[4:]
    if k == PK: count_in(0)
    if k == PK + OPT['wgf']: count_out(2*OPT['wgf'])
    if k == OPT['pollk']: e(f'buffer_load_dword v31, v{vFl}, {sr(SRD_WS)}, 0 offen sc1')
    if k == OPT['chkk']:
        e(f's_waitcnt vmcnt(0)\nv_cmp_ne_u32 vcc, s{S_NONCE}, v31\ns_mov_b64 s[80:81], vcc\ns_cbranch_vccnz L_kv_late')
        for t in range(2): e('\n'.join(kv_loads(t, t)))
        e('L_kv_late:')
assert zi == 40 and VX == VS + 48 and not fill
stamp(7)
e('s_nop 11')
for r in range(16):
    m = vA if r < 4 else (vB if r >= 12 else vC)
    e(f'v_mul_f32 v{VACC + r}, v{m}, v{VACC + r}')
for i in range(8):
    e(f'v_cvt_pk_bf16_f32 v{VQ + 24 + i}, v{VACC + 2*i}, v{VACC + 2*i + 1}')
e(f"""ds_write_b128 v{vQw}, {vr(VQ+24,4)}
ds_write_b128 v{vQw}, {vr(VQ+28,4)} offset:1024""")
arrive(8)
lwait(8)
for s in range(3):
    e(f'ds_read_b128 {vr(VQ+8*s,4)}, v{vQx[s]}\nds_read_b128 {vr(VQ+8*s+4,4)}, v{vQx[s]} offset:1024')
PF = OPT['pf']
if OPT['chkk'] < 28: e('s_cmp_eq_u64 s[80:81], 0\ns_cbranch_scc1 L_kv_done')
poll(vFl, first_issued=OPT['pollk'] < 28 and OPT['chkk'] > 27, reg=31, sleep=OPT['ksleep'])
for t in range(PF): e('\n'.join(kv_loads(t, t)))
e('L_kv_done:')
stamp(8)
OM = OPT['omode']
if OM:
    e(f'''s_lshr_b32 s{sTmp}, s{S_O0}, 3
    s_add_u32 s{sTmp2}, s{S_O0}, 3
    s_lshr_b32 s{sTmp2}, s{sTmp2}, 3
    s_sub_u32 s{sTmp2}, s{sTmp2}, s{sTmp}
    s_lshl_b32 s{sTmp2}, s{sTmp2}, 6
    s_lshl_b32 s{sTmp}, s{sTmp}, 6
    s_lshl2_add_u32 s{sSt}, s{S_TILE}, s{S_W}
    s_add_u32 s{sTmp}, s{sTmp}, s{sSt}
    s_lshl_b32 s{sTmp}, s{sTmp}, {FSH}
    s_add_u32 s{sTmp}, s{sTmp}, {F_Y}
    v_and_b32 v{vFl}, 1, v{V_LANE}
    v_mul_u32_u24 v{vFl}, s{sTmp2}, v{vFl}
    v_and_b32 v31, 2, v{V_LANE}
    v_lshl_add_u32 v{vFl}, v31, 8, v{vFl}
    v_lshl_add_u32 v{vFl}, v{vFl}, {FSH}, s{sTmp}''')
def qk(buf, slot, js):
    d = vr(VS + 16*slot, 16)
    return f'v_mfma_f32_32x32x16_bf16 {d}, {vr(VK + 8*buf + 4*js, 4)}, {vr(VQ + 8*slot + 4*js, 4)}, {"0" if js == 0 else d}'
def pv(buf, slot, js):
    return f'v_smfmac_f32_32x32x32_bf16 {vr(VO + 16*slot, 16)}, {vr(VV + 8*buf + 4*js, 4)}, {vr(VS + 16*slot + 8*js, 8)}, v{vIdx}'
def exps(s): return [f'v_exp_f32 v{VS + 16*s + r}, v{VS + 16*s + r}' for r in range(16)]
SPREAD = []
def unit(t, s):
    ex = exps(s)
    if OPT['ax'] & 16 and s in (0, 1, 2):
        pass
    nb = t if s < 3 else (t + 1) & 3
    pb = t if s > 0 else (t - 1) & 3
    if s == 3: e(f's_waitcnt vmcnt({4*PF-4})')
    e(qk(nb, (s+1) & 3, 0)); e('\n'.join(ex[0:4]))
    e(qk(nb, (s+1) & 3, 1)); e('\n'.join(ex[4:8]))
    e(pv(pb, (s-1) & 3, 0))
    if s == 1:
        kl = kv_loads((t + PF) & 3, t + PF)
        if OPT['ax'] & 1: kl = [x for x in kl if 'exec' not in x]
        if OPT['ax'] & 2: kl = [x for x in kl if 'buffer' not in x]
        if OPT['ax'] & 4: kl = [x.replace(' sc1', '') for x in kl]
        if OPT['ax'] & 8: SPREAD.extend(kl); kl = []
        e('\n'.join(kl))
        if t == 3 - PF:
            e(f's_cmp_eq_u32 s{sIt}, 3\ns_cselect_b32 s{SRD_C+2}, 0, s{SRD_C+2}')
        if t == 3:
            e(f's_add_u32 s{sK}, s{sK}, 2048\ns_add_u32 s{sV}, s{sV}, 1024\ns_add_u32 s{sIt}, s{sIt}, 1\ns_cmp_lg_u32 s{sIt}, 4')
    e('\n'.join(ex[8:12]))
    e(pv(pb, (s-1) & 3, 1)); e('\n'.join(ex[12:16]))
e(f's_mov_b32 s{sIt}, 0\ns_waitcnt vmcnt({4*PF - 4}) lgkmcnt(0)')
stamp(9)
e(qk(0, 0, 0)); e(qk(0, 0, 1))
e(f"s_setprio {OPT['pa']}\ns_nop 8\ns_branch L_att_in" if OPT['prio'] else 's_nop 9\ns_branch L_att_in')
e('L_att:')
unit(3, 2); unit(3, 3)
e('L_att_in:')
for t in range(4):
    for s in range(4):
        if (t, s) < (3, 2): unit(t, s)
e('s_cbranch_scc1 L_att')
if OPT['prio']: e(f"s_setprio {OPT['pm']}")
if OM: e(f'buffer_load_dword v31, v{vFl}, {sr(SRD_WS)}, 0 offen sc1')
def rbw(s): return [f'ds_write_b128 v{vRb[s]}, {vr(VO + 16*s + 4*i, 4)} offset:{1024*i}' for i in range(4)]
ex = exps(2); w0 = rbw(0)
e(qk(3, 3, 0)); e('\n'.join(ex[0:4])); e(qk(3, 3, 1)); e('\n'.join(ex[4:7] + [w0[0]]))
e(pv(3, 1, 0)); e('\n'.join(ex[7:10] + [w0[1]])); e(pv(3, 1, 1)); e('\n'.join(ex[10:13] + [w0[2]] + ex[13:16] + [w0[3]]))
ex = exps(3); w1 = rbw(1); w2 = rbw(2)
e(pv(3, 2, 0)); e('\n'.join(ex[0:3])); e(pv(3, 2, 1))
e('\n'.join([w1[0]] + ex[3:5] + [w1[1]] + ex[5:7] + [w1[2]] + ex[7:9] + [w1[3]] + ex[9:10]))
e(pv(3, 3, 0))
e('\n'.join([w2[0]] + ex[10:12] + [w2[1]] + ex[12:14] + [w2[2]] + ex[14:16] + [w2[3]]))
arrive(9)
e(pv(3, 3, 1))
stamp(10)
lwait(9)
for i in range(12): e(f'ds_read_b128 {vr(VS + 4*i, 4)}, v{vRr} offset:{1024*i}')
OA = VO + 48
for s in range(3):
    e(f's_waitcnt lgkmcnt({8 - 4*s})')
    for i in range(8): e(f'v_pk_add_f32 {vr(OA+2*i,2)}, {vr(OA+2*i,2)}, {vr(VS+16*s+2*i,2)}')
e(f's_mov_b32 s{sIt}, {1 if OPT["force_fb"] else 0}')
e(f'''L_norm:
v_cndmask_b32 v{vA}, v{OA+12}, v{OA}, s[{sOdd}:{sOdd+1}]
v_max3_f32 v{vC}, abs(v{OA}), abs(v{OA+1}), abs(v{OA+2})
v_mov_b32 v{vB}, v{vA}
v_max3_f32 v{vC}, abs(v{OA+3}), abs(v{OA+4}), v{vC}
v_max3_f32 v{vC}, abs(v{OA+5}), abs(v{OA+6}), v{vC}
v_permlane32_swap_b32 v{vA}, v{vB}
v_max3_f32 v{vC}, abs(v{OA+7}), abs(v{OA+8}), v{vC}
v_cndmask_b32 v{vB}, v{vB}, v{vA}, s[{sOdd}:{sOdd+1}]
v_max3_f32 v{vC}, abs(v{OA+9}), abs(v{OA+10}), v{vC}
v_rcp_f32 v{vA}, v{vB}
v_max3_f32 v{vC}, abs(v{OA+11}), abs(v{OA+12}), v{vC}
v_max3_f32 v{vC}, abs(v{OA+13}), abs(v{OA+14}), v{vC}
v_max_f32 v{vC}, abs(v{OA+15}), v{vC}
v_cmp_nle_f32 vcc, 0x30800000, v{vB}
s_mov_b64 s[78:79], vcc
v_cmp_nge_f32 vcc, 0x4e800000, v{vB}
s_or_b64 s[78:79], s[78:79], vcc
v_cmp_ngt_f32 vcc, 0x7f000000, v{vC}
s_or_b64 vcc, s[78:79], vcc''')
if OPT['force_fb']:
    e(f's_cmp_eq_u32 s{sIt}, 1\ns_cbranch_scc1 L_fb')
e('s_cbranch_vccnz L_fb0\nL_norm2:')
for i in range(8): e(f'v_pk_mul_f32 {vr(OA+2*i,2)}, {vr(OA+2*i,2)}, {vr(vA,2)} op_sel_hi:[1,0]')
for i in range(8): e(f'v_cvt_pk_bf16_f32 v{VS+i}, v{OA+2*i}, v{OA+2*i+1}')
if OM: poll(vFl, first_issued=2, reg=31)
o_stores(VS, VS + 4, '')
stamp(11)
if OM == 4: publish(sFo, vA)
if OPT['obar'] == 1: e('s_barrier')
if OPT['obar'] >= 3: e(f"s_waitcnt vmcnt({5 - OPT['obar'] + (OM == 4)})\ns_barrier")
if OM == 0:
    e('s_waitcnt vmcnt(0)'); publish(sFo, vA)
if OPT['obar'] == 2: e('s_barrier')
stamp(12)
prof_out()
e('s_endpgm')

for tag, st in SPIN:
    e(f'L_ws_{tag}:'); lwait(st); e(f's_branch L_wb_{tag}')
sec('fb')
e(f'''L_fb0:
s_cmp_eq_u32 s{sIt}, 2
s_cbranch_scc1 L_norm2
L_fb:
s_waitcnt vmcnt(0)
s_mul_i32 s{sTmp}, s{S_O0}, {KS}
s_add_u32 s{sK}, s{sTmp}, {WS_K}
s_add_u32 s{sV}, s{sTmp}, {WS_V}
v_mov_b32 v{vC}, 0xff800000
s_mov_b32 s{sIt}, 0
L_fb1:''')
e('\n'.join(kv_loads(0, 0, SRD_WS)[:2]))
e('s_waitcnt vmcnt(0)')
e(qk(0, 3, 0)); e(qk(0, 3, 1)); e('s_nop 11')
for i in range(8): e(f'v_max3_f32 v{vC}, v{VS+48+2*i}, v{VS+49+2*i}, v{vC}')
e(f'''s_add_u32 s{sK}, s{sK}, 512
s_add_u32 s{sIt}, s{sIt}, 1
s_cmp_lg_u32 s{sIt}, 64
s_cbranch_scc1 L_fb1
v_mov_b32 v{vA}, v{vC}
s_sub_u32 s{sK}, s{sK}, 0x8000
s_mov_b32 s{sIt}, 0
v_permlane32_swap_b32 v{vA}, v{vC}
v_max_f32 v{vC}, v{vA}, v{vC}''')
for i in range(8): e(f'v_mov_b64 {vr(OA+2*i,2)}, 0')
e('L_fb2:')
e('\n'.join(kv_loads(0, 0, SRD_WS)))
e('s_waitcnt vmcnt(0)')
e(qk(0, 3, 0)); e(qk(0, 3, 1)); e('s_nop 11')
for i in range(16): e(f'v_sub_f32 v{VS+48+i}, v{VS+48+i}, v{vC}')
for i in range(16): e(f'v_exp_f32 v{VS+48+i}, v{VS+48+i}')
e('s_nop 1')
e(pv(0, 3, 0)); e(pv(0, 3, 1))
e(f'''s_add_u32 s{sK}, s{sK}, 512
s_add_u32 s{sV}, s{sV}, 256
s_add_u32 s{sIt}, s{sIt}, 1
s_cmp_lg_u32 s{sIt}, 64
s_cbranch_scc1 L_fb2
s_mov_b32 s{sIt}, 2
s_nop 11
s_branch L_norm''')

sD0, sD, sHw, sDs, sTab, sA, sB, sLd, sSk, sIt2, sFlU, sInv, sUns, sSel, sUl, sOl, sCh0 = range(60, 77)
sUs, sOut, sHm = 78, 80, 82
sE2, sP, sE3, sKd = 84, 85, 86, 87
OUTM = 'sc1' if OPT['outsc'] & 1 else ''
OUTM2 = 'sc1' if OPT['outsc'] & 2 else ''
a0, a1, a2, a3 = 5, 6, 7, 9
vPar = 10
vKc = 18
vRa, vRb_, vKd, vKd1, vKa, vKa0, vFu, vE1, vE1b, vFr, vKxo, vKxp, vPair, vRz, vBk, vA0, vA1, vKb, vSB, vSB0 = range(20, 40)
vSel = 180
vAc = 40
vOne, vScl, vAdd, vC0 = range(56, 60)
vOp = 64
vY = 128
vXt = 144
vAn = 166
vX1 = 172
T0, T1 = 160, 176
vZ = 192
U = 204
vZer = 220
vUa, vCd, vG_, vZp, vKp, vF_, vL16, vXo, vXp, vTr, vYl, vYs, vFy = range(224, 237)
vWoD = 238
vWoR = 240
vOl, vFo, vBw, vBr, vOut = range(242, 247)
def hi():
    if OPT['prio']: e('s_setprio 3')
KG = [True]
def lo():
    if OPT['prio']: e(f"s_setprio {OPT['kgp'] if KG[0] else OPT['ps']}")
ROLE[0] = 1
sec('ssm0')
e(f"""s_cmp_{'eq' if OPT['only'] != 2 else 'le'}_u32 s{S_C}, 7
s_cbranch_scc1 L_ssm_idle
s_lshr_b32 s{sDs}, s{S_W}, 1
s_lshl_b32 s{sD0}, s{S_C}, 6
s_lshl1_add_u32 s{sD0}, s{S_J}, s{sD0}
s_add_u32 s{sD}, s{sD0}, s{sDs}
s_mul_i32 s{sTab}, s{S_W}, {TABSZ}
s_add_u32 s{sTab}, s{sTab}, {L_TAB}
s_lshl1_add_u32 s{sA}, s{sD0}, s{S_W}
s_lshl_b32 s{sA}, s{sA}, 8
v_lshl_add_u32 v{a0}, v{V_LANE}, 2, s{sA}
s_mov_b32 m0, s{sTab}
s_lshl_b32 s{sB}, s{sD0}, 1
s_waitcnt lgkmcnt(0)
s_load_dword s{sLd}, s[14:15], s{sB}
s_load_dword s{S_NONCE}, s[28:29], 0
s_load_dword s{sSk}, s[16:17], s{sB}
global_load_dword v{vPar+0}, v{a0}, s[6:7]
global_load_dword v{vPar+1}, v{a0}, s[8:9]
global_load_dword v{vPar+2}, v{a0}, s[10:11]
global_load_dword v{vPar+3}, v{a0}, s[12:13]""")
if OPT['tlb'] != 2: e('s_barrier')
if OPT['tlb']:
    e(f'''v_and_b32 v{a0}, 7, v{V_LANE}
    v_min_u32 v{a0}, 5, v{a0}
    v_lshlrev_b32 v{a0}, 21, v{a0}
    v_add_u32 v{a0}, 0xf8000, v{a0}
    v_mov_b32 v{a1}, 0
    global_load_dword v8, v{a0}, s[28:29]
    global_load_dword v8, v{a1}, s[22:23]''')
if OPT['tlb'] == 2: e('s_barrier')
e('s_branch L_ssm')
sec('ssm')
e('L_ssm:')
if OPT['abl'] == 1:
    arrive(1); e('s_waitcnt vmcnt(0) lgkmcnt(0)\ns_endpgm')
lo()
srd(SRD_WS, 28, WS_SIZE)
e(f"""s_and_b32 s{sHw}, s{S_W}, 1
v_add_u32 v{V_GRP}, 16, v{V_GRP}
v_and_b32 v{a0}, 15, v{V_LANE}
v_lshrrev_b32 v{a1}, 4, v{V_LANE}
v_lshl_add_u32 v{vRb_}, v{a1}, 4, s{sTab}
v_mul_u32_u24 v{a2}, {TROW}, v{a0}
v_add_u32 v{vRa}, v{a2}, v{vRb_}
v_lshlrev_b32 v{vL16}, 4, v{V_LANE}
v_mov_b32 v{vOne}, 0x3c00
ds_write_addtid_b32 v{vOne}""")
for i in range(8): e(f'v_mov_b64 {vr(vAc+2*i,2)}, 0')
mid = f"""v_and_b32 v{a0}, 7, v{V_LANE}
s_lshl_b32 s{sB}, s{S_W}, {3 + FSH}
s_add_u32 s{sB}, s{sB}, {F_U}
v_lshl_add_u32 v{vFu}, v{a0}, {FSH}, s{sB}
s_mul_i32 s{sP}, s{sDs}, {P_SZ}
s_add_u32 s{sP}, s{sP}, {L_TAB}
s_add_u32 s{sKd}, s{sP}, {P_KD}
s_lshl_b32 s{sB}, s{sHw}, 8
s_add_u32 s{sInv}, s{sB}, s{sKd}
s_add_u32 s{sA}, s{sInv}, {1088 + 128}
v_lshl_add_u32 v{vRz}, v{a0}, 4, s{sA}
v_mov_b32 v{vKb}, s{sKd}
v_and_b32 v{a0}, 15, v{V_LANE}
v_lshrrev_b32 v{a1}, 4, v{V_LANE}
s_lshl_b32 s{sA}, s{sHw}, 4
v_add_u32 v{a0}, s{sA}, v{a0}
v_and_b32 v{a3}, 1, v{V_LANE}
v_mul_u32_u24 v{a2}, 255, v{a3}
v_sub_u32 v{a2}, v{a2}, v{a0}
s_add_u32 s{sA}, s{sKd}, {1088 + 32}
v_add_u32 v{vKa}, s{sA}, v{a2}
v_add_u32 v{vKa0}, 96, v{vKa}
s_lshl3_add_u32 s{sA}, s{sDs}, 16
v_lshl_add_u32 v{vPair}, v{a3}, 2, s{sA}
s_mul_i32 s{sA}, s{sHw}, {1088 + 112 - 1024}
s_add_u32 s{sA}, s{sA}, s{sKd}
s_add_u32 s{sA}, s{sA}, 1024
v_writelane_b32 v{vKa0}, s{sA}, 0
s_mul_i32 s{sA}, s{sHw}, 56
s_sub_u32 s{sA}, s{sKd}, s{sA}
s_add_u32 s{sA}, s{sA}, 1088
v_writelane_b32 v{vKa0}, s{sA}, 16
v_max_u32 v{a2}, 1, v{a1}
v_sub_u32 v{a2}, 5, v{a2}
v_lshlrev_b32 v{a0}, v{a2}, v{a0}
v_lshlrev_b32 v{a2}, 3, v{a1}
s_mov_b32 s{sA}, 0x60400100
v_bfe_u32 v{a1}, s{sA}, v{a2}, 8
v_lshl_add_u32 v{a0}, v{a1}, 3, v{a0}
v_add_u32 v{vKd}, s{sKd}, v{a0}
s_mov_b32 s{sA}, 0x80040404
v_bfe_u32 v{a1}, s{sA}, v{a2}, 8
v_add_u32 v{vKd1}, v{a1}, v{vKd}
v_lshrrev_b32 v{a1}, 1, v{V_LANE}
v_lshlrev_b32 v{vUa}, 6, v{a1}
v_lshl_add_u32 v{vUa}, v{a3}, 4, v{vUa}
s_lshr_b32 s{sA}, s{sD0}, 2
s_mul_i32 s{sA}, s{sA}, {QS}
s_and_b32 s{sB}, s{sD0}, 3
s_lshl4_add_u32 s{sA}, s{sB}, s{sA}
s_lshl_b32 s{sB}, s{S_W}, 12
s_add_u32 s{sA}, s{sA}, s{sB}
s_add_u32 s{sUl}, s{sA}, {WS_U}
v_and_b32 v{a1}, 3, v{a1}
v_lshl_add_u32 v{a1}, v{a3}, 2, v{a1}
v_mul_u32_u24 v{a1}, {PS}, v{a1}
v_lshrrev_b32 v{a2}, 3, v{V_LANE}
v_lshl_add_u32 v{a1}, v{a2}, 4, v{a1}
s_lshl_b32 s{sA}, s{S_W}, 8
s_add_u32 s{sA}, s{sA}, {L_KP + 512}
v_add_u32 v{vKp}, s{sA}, v{a1}
v_lshrrev_b32 v{a1}, 5, v{V_LANE}
s_lshl_b32 s{sA}, s{sHw}, 1
v_max_u32 v{a0}, s{sA}, v{a1}
v_min_u32 v{a2}, 1, v{a0}
v_mul_u32_u24 v{a2}, 0x0202, v{a2}
v_lshlrev_b32 v{a2}, 16, v{a2}
v_sub_u32 v{vSel}, 0x03020100, v{a2}
v_mul_u32_u24 v{a2}, 0x0202, v{a0}
v_lshl_or_b32 v{a2}, v{a2}, 16, v{a2}
v_sub_u32 v{vSel+1}, 0x07060504, v{a2}
s_mul_i32 s{sA}, s{sHw}, 0x02020202
v_add_u32 v{vSel+2}, s{sA}, v{vSel}
s_mul_i32 s{sA}, s{sHw}, 0x02020404
v_add_u32 v{vSel+3}, s{sA}, v{vSel+1}
v_lshrrev_b32 v{a2}, v{a0}, v{vL16}
s_movk_i32 s{sA}, 256
v_lshl_add_u32 v{a2}, s{sA}, v{a0}, v{a2}
s_sub_u32 s{sA}, s{sKd}, 256
v_add_u32 v{vE1}, s{sA}, v{a2}
v_lshlrev_b32 v{a2}, 2, v{a0}
v_sub_u32 v{vE1b}, v{vE1}, v{a2}
s_mov_b32 s{sA}, 0x0c0c0c0c
s_cmp_lg_u32 s{sHw}, 0
s_cselect_b32 s{sE2}, 0x01000100, s{sA}
s_cselect_b32 s{sE3}, 0x05040302, s{sA}
v_mov_b32 v{vSel+4}, s{sA}
v_mov_b32 v{vSel+5}, s{sA}
v_mov_b32 v{vSel+6}, s{sA}
v_mov_b32 v{vSel+7}, s{sA}
s_mov_b32 s{sA}, 0x05040504
s_mov_b64 exec, 15
v_mov_b32 v{vSel+4}, s{sA}
v_mov_b32 v{vSel+5}, s{sA}
v_mov_b32 v{vSel+6}, s{sA}
s_mov_b64 exec, -1
v_writelane_b32 v{vSel+7}, s{sA}, 3
s_mov_b32 s{sA}, 0x05040302
v_writelane_b32 v{vSel+4}, s{sA}, 3
s_mov_b32 s{sA}, 0x0c0c0504
v_writelane_b32 v{vSel+6}, s{sA}, 0
v_writelane_b32 v{vSel+7}, s{sA}, 2
s_mul_i32 s{sA}, s{S_W}, {2*PS}
s_add_u32 s{sA}, s{sA}, {L_KP}
v_mul_u32_u24 v{a2}, {PS - 512}, v{a1}
v_add3_u32 v{vG_}, v{a2}, v{vL16}, s{sA}
v_mov_b64 {vr(vZer,2)}, 0
v_mov_b64 {vr(vZer+2,2)}, 0
ds_write_b128 v{vG_}, {vr(vZer,4)}
s_lshl_b32 s{sA}, s{sHw}, 10
s_add_u32 s{sB}, s{sP}, {P_UC}
s_add_u32 s{sA}, s{sA}, s{sB}
s_add_u32 s{sA}, s{sA}, 64
v_add_u32 v{vCd}, s{sA}, v{vL16}
v_and_b32 v{a3}, 3, v{V_LANE}
v_and_b32 v{a0}, 0x1c, v{V_LANE}
v_lshlrev_b32 v{a2}, 2, v{a0}
v_and_b32 v{vZp}, 0x30, v{a2}
s_mov_b32 exec_hi, 0
v_add_u32 v{vZp}, 2112, v{a2}
s_mov_b64 exec, -1
v_mul_u32_u24 v{a2}, {UC_S}, v{a3}
v_add3_u32 v{vZp}, v{vZp}, v{a2}, s{sB}
v_lshlrev_b32 v{a0}, 1, v{a0}
v_sub_u32 v{a0}, v{a0}, v{a2}
v_lshlrev_b32 v{a1}, 4, v{a1}
v_sub_u32 v{a0}, v{a0}, v{a1}
s_lshl_b32 s{sA}, s{sHw}, 5
s_sub_u32 s{sB}, s{sB}, s{sA}
s_add_u32 s{sB}, s{sB}, {56 + 3*UC_S}
v_add_u32 v{vF_}, s{sB}, v{a0}
v_add_u32 v{vG_}, {512 - 80}, v{vG_}
v_add_u32 v{vKxo}, s{sTab}, v{vL16}
s_xor_b32 s{sA}, s{S_W}, 1
s_mul_i32 s{sA}, s{sA}, {TABSZ}
s_add_u32 s{sA}, s{sA}, {L_TAB}
v_add_u32 v{vKxp}, s{sA}, v{vL16}
v_and_b32 v{a0}, 31, v{V_LANE}
v_lshlrev_b32 v{a2}, 2, v{a0}
v_sub_u32 v{a2}, v{a1}, v{a2}
s_add_u32 s{sA}, s{sInv}, {1088 + 124}
v_add_u32 v{vBk}, s{sA}, v{a2}
"""
e(mid)
stamp(22)
e(f's_waitcnt lgkmcnt(0)\ns_add_u32 s{S_NONCE}, s{S_NONCE}, 1')
arrive(1)
e(f"""s_lshl_b32 s{sA}, s{sDs}, 4
s_lshr_b32 s{sLd}, s{sLd}, s{sA}
s_lshl_b32 s{sLd}, s{sLd}, 16
s_lshr_b32 s{sSk}, s{sSk}, s{sA}
s_lshl_b32 s{sSk}, s{sSk}, 16
v_mov_b32 v{a0}, s{sLd}
v_mul_f32 v{a0}, 0x3fb8aa3b, v{a0}
v_exp_f32 v{a0}, v{a0}
s_cmp_eq_u32 s{sHw}, 0
s_cselect_b32 s{sSk}, s{sSk}, 0
v_cvt_pk_bf16_f32 v{a0}, v{a0}, v{a0}
v_and_b32 v{vScl}, 0xffff0000, v{a0}
v_mul_f32 v{vKc}, 0xbfb8aa3b, v{vScl}
v_mul_f32 v{vKc+1}, 0.15915494, v{vScl}
v_mov_b32 v{vAdd}, 0
v_add_f32 v{vScl}, v{vScl}, v{vScl}
v_writelane_b32 v{vAdd}, s{sSk}, 0
s_mov_b32 s{sIt2}, 0
s_mov_b32 s{sSel}, 0x01000c0c""")
stamp(0)
e(f"""s_waitcnt vmcnt({2 if OPT['tlb'] else 0})
v_and_b32 v{a0}, 0x7f807f80, v{vPar+2}
v_and_b32 v{a1}, 0x7f807f80, v{vPar+3}
v_pk_max_u16 v{a0}, v{a0}, v{a1}
v_lshlrev_b32 v{a1}, 16, v{a0}
v_max_u32 v{a0}, v{a0}, v{a1}""")
for q, n in enumerate((1, 2, 4, 8)):
    e(f's_nop 1\nv_max_u32_dpp v{a0}, v{a0}, v{a0} row_ror:{n} row_mask:0xf bank_mask:0xf')
e(f"""s_nop 0
v_readlane_b32 s{sA}, v{a0}, 0
v_readlane_b32 s{sB}, v{a0}, 16
v_readlane_b32 s{sInv}, v{a0}, 32
v_readlane_b32 s{sUns}, v{a0}, 48
s_max_u32 s{sA}, s{sA}, s{sB}
s_max_u32 s{sUns}, s{sUns}, s{sInv}
s_max_u32 s{sUns}, s{sUns}, s{sA}
s_and_b32 s{sUns}, s{sUns}, 0x7f800000
s_min_u32 s{sUns}, s{sUns}, 0x7e800000
s_sub_u32 s{sInv}, 0x7f000000, s{sUns}
v_mul_f32 v{vScl}, s{sUns}, v{vScl}
v_mul_f32 v{vSB}, 0x43000000, v{vScl}
v_mov_b32 v{vSB0}, v{vSB}
s_mov_b64 exec, 1
v_mov_b32 v{vSB0}, v{vScl}
s_mov_b64 exec, -1""")
stamp(1)
if OPT['abl'] == 2: e('s_endpgm')
def cm(jobs, conj):
    ng = 'neg_hi:[1,0,0]' if conj else 'neg_lo:[1,0,0]'
    return [f'v_pk_mul_f16 v{d}, v{x}, v{w} op_sel_hi:[1,0]' for d, x, w in jobs] + \
           [f'v_pk_fma_f16 v{d}, v{x}, v{w}, v{d} op_sel:[1,1,0] op_sel_hi:[0,1,1] {ng}' for d, x, w in jobs]
def wr(reg): return f'ds_write_addtid_b32 v{reg} offset:{TROW*(reg - vY)}'
assert vXt == vY + 16
zA, zB, tA, tB, pA, pB = vZ, vZ+2, vZ+4, vZ+6, vZ+8, vZ+10
X = vXt; Y = vY
an = {1: vAn, 2: vAn+1, 4: vAn+2, 8: Y+1, 16: Y+2, 32: Y+4, 64: Y+8, 128: X+21, 256: vAn+3, 512: vAn+4, 1024: vAn+5}
e('L_kg:')
stamp(14)
seq = f"""v_perm_b32 v{pA}, v{vPar}, v{vPar}, s{sSel}
v_mul_f32 v{pA}, 0x3fb8aa3b, v{pA}
v_exp_f32 v{pA}, v{pA}
v_perm_b32 v{pA+1}, v{vPar+1}, v{vPar+1}, s{sSel}
v_perm_b32 v{tA}, v{vPar+2}, v{vPar+2}, s{sSel}
v_perm_b32 v{tA+1}, v{vPar+3}, v{vPar+3}, s{sSel}
v_cvt_pk_bf16_f32 v{pA}, v{pA}, v{pA}
v_mul_f32 v{tA}, s{sInv}, v{tA}
v_and_b32 v{pA}, 0xffff0000, v{pA}
v_mul_f32 v{tA+1}, s{sInv}, v{tA+1}
v_pk_mul_f32 {vr(pA,2)}, {vr(pA,2)}, {vr(vKc,2)}
v_cvt_pk_f16_f32 v{X}, v{tA}, -v{tA+1}
v_mul_f32 v{pB}, 0x42800000, v{pA}
v_mul_f32 v{pB+1}, 0x42800000, v{pA+1}
v_exp_f32 v{pA}, v{pA}
v_fract_f32 v{pA+1}, v{pA+1}
v_exp_f32 v{pB}, v{pB}
v_fract_f32 v{pB+1}, v{pB+1}
v_cos_f32 v{zA}, v{pA+1}
v_sin_f32 v{zA+1}, v{pA+1}
v_cos_f32 v{zB}, v{pB+1}
v_sin_f32 v{zB+1}, v{pB+1}
v_pk_mul_f32 {vr(zA,2)}, {vr(zA,2)}, {vr(pA,2)} op_sel_hi:[1,0]
v_pk_mul_f32 {vr(zB,2)}, {vr(zB,2)}, {vr(pB,2)} op_sel_hi:[1,0]""".split('\n')
for st in range(6):
    chains = [(zA, tA, an[1 << st], st < 5)] + ([(zB, tB, an[64 << st], st < 4)] if st < 5 else [])
    for z, t, d, sq in chains:
        if sq: seq.append(f'v_pk_mul_f32 {vr(t,2)}, {vr(z,2)}, {vr(z,2)} op_sel_hi:[0,1]')
    for z, t, d, sq in chains: seq.append(f'v_cvt_pk_f16_f32 v{d}, v{z}, v{z+1}')
    for z, t, d, sq in chains:
        if sq: seq.append(f'v_pk_fma_f32 {vr(z,2)}, {vr(z,2)}, {vr(z,2)}, {vr(t,2)} op_sel:[1,1,0] op_sel_hi:[0,1,1] neg_lo:[1,0,0]')
seq += cm([(X+1, X, an[1]), (X+2, X, an[2]), (X+4, X, an[4]), (X+8, X, an[256]), (X+12, X, an[512]), (X+16, X, an[1024])], True)
seq += cm([(Y+3, Y+1, Y+2), (Y+12, Y+4, Y+8), (Y+5, Y+4, Y+1), (Y+6, Y+4, Y+2), (Y+9, Y+8, Y+1), (Y+10, Y+8, Y+2)], False)
seq += cm([(X+3, X+1, an[2]), (X+5, X+1, an[4]), (X+6, X+2, an[4]), (X+9, X+2, an[256]), (X+10, X+4, an[256]), (X+13, X+4, an[512]),
           (X+14, X+8, an[512]), (X+17, X+8, an[1024]), (X+18, X+12, an[1024]), (X+20, X+16, an[1024])], True)
seq += cm([(Y+7, Y+4, Y+3), (Y+11, Y+8, Y+3), (Y+13, Y+12, Y+1), (Y+14, Y+12, Y+2), (Y+15, Y+12, Y+3)], False)
seq += cm([(X+7, X+3, an[4]), (X+11, X+6, an[256]), (X+15, X+10, an[512]), (X+19, X+14, an[1024])], True)
e('\n'.join(seq))
stamp(15)
if OPT['kgw']:
    e(f'v_subrev_u32 v{a0}, 16, v{V_GRP}'); lwait(OPT['kgw'], addr=a0)
hi()
if OPT['abl'] != 4: e('\n'.join(wr(r) for r in range(Y + 1, X + 22)))
for k in range(4):
    o = vOp + 16*k
    e(f"""ds_read_b128 {vr(o,4)}, v{vRa} offset:{64*k}
    ds_read_b128 {vr(o+4,4)}, v{vRb_} offset:{37*TROW + 64*k}
    ds_read_b128 {vr(o+8,4)}, v{vRa} offset:{16*TROW + 64*k}
    ds_read_b128 {vr(o+12,4)}, v{vRa} offset:{32*TROW + 64*k}""")
if not OPT['uw']: e(f's_cmp_eq_u32 s{sIt2}, 0\ns_cbranch_scc1 L_kg_n\nbuffer_load_dword v{vFr}, v{vFu}, {sr(SRD_WS)}, 0 offen sc1\nL_kg_n:')
stamp(16)
def mf(c, a, b): return f'v_mfma_f32_16x16x32_f16 {vr(c,4)}, {vr(a,4)}, {vr(b,4)}, {vr(c,4)}'
late_m = []
for k in range(4):
    o = vOp + 16*k; y1 = vX1 + 4*(k & 1)
    p = cm([(y1+r, o+r, o+4+r) for r in range(4)], False)
    e(f's_waitcnt lgkmcnt({12 - 4*k})')
    e('\n'.join([mf(vAc, o+8, o)] + p[0:2] + late_m[:1] + p[2:4] + [mf(vAc+4, o+12, o)] + p[4:6] + late_m[1:] + p[6:8]))
    late_m = [mf(vAc+8, o+8, y1), mf(vAc+12, o+12, y1)]
e(f"""s_add_u32 s{sSel}, s{sSel}, 0x02020000
s_add_u32 s{sIt2}, s{sIt2}, 1
s_cmp_lg_u32 s{sIt2}, 2""")
e('\n'.join(late_m))
lo()
e('s_cbranch_scc1 L_kg')
stamp(17)
if OPT['abl'] in (4, 8): e('s_endpgm')
def scl(i): return vSB0 if i == 4 else (vSB if i & 4 else vScl)
for i in range(8): e(f'v_mul_f32 v{vAc+i}, v{scl(i)}, v{vAc+i}')
e(f's_cmp_eq_u32 s{sHw}, 0')
for i in range(8, 16): e(f'v_mul_f32 v{vAc+i}, v{scl(i)}, v{vAc+i}')
e('s_cbranch_scc1 L_kx')
for i in range(8): e(f'v_swap_b32 v{vAc+i}, v{vAc+8+i}')
e(f"""L_kx:
ds_write_b128 v{vKxo}, {vr(vAc+8,4)}
s_mov_b32 exec_hi, 0
ds_write_b128 v{vKxo}, {vr(vAc+12,4)} offset:1024
s_mov_b64 exec, -1""")
arrive(2)
e(f'v_add_f32 v{vAc}, v{vAdd}, v{vAc}')
stamp(18)
def bprio():
    if OPT['prio']: e(f"s_setprio {OPT['bp']}")
def u_look():
    hi(); e(f'buffer_load_dword v{vFr}, v{vFu}, {sr(SRD_WS)}, 0 offen sc1'); bprio()
def u_fetch():
    hi()
    stamp(20)
    poll(vFu, first_issued=True, reg=vFr, sleep=OPT['usleep'])
    stamp(21)
    for k in range(2):
        e(f'buffer_load_dwordx4 {vr(U+4*k,4)}, v{vUa}, {sr(SRD_WS)}, s{sUl} offen offset:{2048*k} sc1')
    bprio()
if OPT['uw'] == -2: u_look()
else: bprio()
stamp(19)
lwait(2, addr=vPair)
e(f"""ds_read_b128 {vr(vAc+8,4)}, v{vKxp}
ds_read_b128 {vr(vAc+12,4)}, v{vKxp} offset:1024
ds_write_b128 v{vRz}, {vr(vZer,4)}
s_mov_b32 s{sIt2}, 4
s_waitcnt lgkmcnt(1)""")
for i in range(4): e(f'v_pk_add_f32 {vr(vAc+2*i,2)}, {vr(vAc+2*i,2)}, {vr(vAc+8+2*i,2)}')
for i in range(4): e(f'v_cvt_pk_bf16_f32 v{vAc+8+i}, v{vAc+2*i}, v{vAc+2*i+1}')
e(f"""ds_write_b32 v{vKd}, v{vAc+8}
ds_write_b32 v{vKd1}, v{vAc+9}
s_mov_b64 exec, 0x1ffff
ds_write_b16 v{vKa0}, v{vAc+10}
s_mov_b64 exec, 0xffff
ds_write_b16_d16_hi v{vKa}, v{vAc+10} offset:64
ds_write_b16 v{vKa}, v{vAc+11} offset:32
ds_write_b16_d16_hi v{vKa}, v{vAc+11}
s_mov_b64 exec, -1""")
arrive(3)
if OPT['uw'] == -1: u_look()
if OPT['uw'] == -2: u_fetch()
lwait(3, addr=vPair)
stamp(2)
E = 64; BF = 40
e(f"""ds_read2_b32 {vr(E,2)}, v{vE1} offset1:1
ds_read2_b32 {vr(E+2,2)}, v{vE1b} offset0:2 offset1:3
ds_read2_b32 {vr(E+4,2)}, v{vKb} offset0:191 offset1:192
ds_read_b32 v{E+6}, v{vKb} offset:1020
ds_read_b32 v{E+7}, v{vKb} offset:1024""")
for q in range(8): e(f'ds_read2_b32 {vr(BF+2*q,2)}, v{vBk} offset0:{8*(q>>1) + 2*(q&1)} offset1:{8*(q>>1) + 2*(q&1) + 1}')
b = E + 12; t = E + 16
e(f"""s_waitcnt lgkmcnt(10)
v_perm_b32 v{b+2}, v{E+2}, v{E+2}, v{vSel+2}
v_perm_b32 v{b+3}, v{E+3}, v{E+2}, v{vSel+3}
v_perm_b32 v{b-2}, v{E+5}, v{E+4}, s{sE2}
v_perm_b32 v{b-1}, v{E+5}, v{E+4}, s{sE3}
v_perm_b32 v{b}, v{E}, v{E}, v{vSel}
v_perm_b32 v{b+1}, v{E+1}, v{E}, v{vSel+1}
v_mov_b32_dpp v{b-2}, v{b+2} wave_shr:1 row_mask:0xf bank_mask:0xf
v_mov_b32_dpp v{b-1}, v{b+3} wave_shr:1 row_mask:0xf bank_mask:0xf
ds_write_b128 v{vCd}, {vr(b,4)}""")
for i in range(4): e(f'v_alignbit_b32 v{t+i}, v{b+i}, v{b+i-1}, 16')
e(f'ds_write_b128 v{vCd}, {vr(t,4)} offset:{UC_S}')
for i in range(4): e(f'v_mov_b32 v{t+4+i}, v{b+i-1}')
e(f'ds_write_b128 v{vCd}, {vr(t+4,4)} offset:{2*UC_S}')
for i in range(4): e(f'v_alignbit_b32 v{t+8+i}, v{b+i-1}, v{b+i-2}, 16')
e(f'ds_write_b128 v{vCd}, {vr(t+8,4)} offset:{3*UC_S}\ns_waitcnt lgkmcnt(12)')
for i in range(4): e(f'v_perm_b32 v{t+12+i}, v{E+7}, v{E+6}, v{vSel+4+i}')
e(f'ds_write_b128 v{vZp}, {vr(t+12,4)}')
if OPT['uw'] == -1: u_fetch()
stamp(3)
e(f'v_and_b32 v{a0}, 31, v{V_LANE}')
swap23(a1, a0, a2)
e(f"""v_lshrrev_b32 v{a2}, 5, v{V_LANE}
v_lshl_add_u32 v{a1}, v{a1}, 1, v{a2}
s_add_u32 s{sA}, s{sHw}, 123
v_add_u32 v{a1}, s{sA}, v{a1}
s_mul_i32 s{sA}, s{sDs}, {PD}
s_add_u32 s{sA}, s{sA}, {L_KP}
v_and_b32 v{a3}, 3, v{a1}
v_mul_u32_u24 v{a3}, {PS - 4}, v{a3}
v_lshl_add_u32 v{a3}, v{a1}, 2, v{a3}
v_add_u32 v{vA0}, s{sA}, v{a3}
v_add_u32 v{a1}, 2, v{a1}
v_and_b32 v{a3}, 3, v{a1}
v_mul_u32_u24 v{a3}, {PS - 4}, v{a3}
v_lshl_add_u32 v{a3}, v{a1}, 2, v{a3}
v_add_u32 v{vA1}, s{sA}, v{a3}
v_lshlrev_b32 v{a2}, 3, v{a2}
v_sub_u32 v{a2}, v{a2}, v{a0}
v_cvt_f32_i32 v{a2}, v{a2}
v_add_f32 v{a3}, -1.0, v{a2}
v_add_f32 v{a2}, -2.0, v{a2}
v_cvt_pk_f16_f32 v8, v{a3}, v{a2}
s_waitcnt vmcnt(1)
ds_write_b128 v{vKp}, {vr(U,4)}
s_waitcnt vmcnt(0)
ds_write_b128 v{vKp}, {vr(U+4,4)} offset:128""")
arrive(4)
AP, BD, DP = 112, 136, 192
band = [f's_mov_b32 s{sA}, 0x4a204a20', f's_cmp_eq_u32 s{sHw}, 0', f's_cselect_b32 s{sE2}, 0x4d104d10, s{sA}', f's_mov_b32 s{sE3}, 0x4d804d80']
for q in range(12):
    band.append(f'v_pk_fma_f16 v{BD+q}, v8, v8, s{sE2} neg_lo:[1,0,0] neg_hi:[1,0,0] clamp')
    if q < 11: band.append(f'v_pk_add_f16 v8, v8, s{sE3}' if q % 4 == 3 else 'v_pk_add_f16 v8, v8, -2.0 op_sel_hi:[1,0]')
e('\n'.join(band))
lwait(4)
KG[0] = False
lo()
stamp(4)
if OPT['abl'] == 16: e('s_endpgm')
CB = 64
def cv_reads(k):
    b = CB + 12 * (k & 3)
    return [f'ds_read_b64 {vr(b,2)}, v{vF_} offset:{64*k}', f'ds_read_b64 {vr(b+2,2)}, v{vF_} offset:{64*k + 8}',
            f'ds_read_b128 {vr(b+8,4)}, v{vG_} offset:{512 + 80 - 16*k}', f'ds_read_b128 {vr(b+4,4)}, v{vG_} offset:{80 - 16*k}']
for tau in range(2):
    for kp in range(3): e(f'ds_read_b128 {vr(AP + 12*tau + 4*kp, 4)}, v{(vA0, vA1)[kp & 1]} offset:{256*tau + 16*(kp >> 1)}')
e('\n'.join(cv_reads(0) + cv_reads(1)))
FOA = f'''s_lshr_b32 s{sA}, s{sOl}, 1
s_lshl_b32 s{sA}, s{sA}, {4 + FSH}
s_add_u32 s{sA}, s{sA}, {F_O}
v_lshl_add_u32 v{vFo}, v{a1}, {FSH}, s{sA}''' if not OM else f'''s_lshr_b32 s{sA}, s{sOl}, 1
s_lshl_b32 s{sB}, s{sHw}, 9
s_add_u32 s{sA}, s{sA}, s{sB}
s_lshl_b32 s{sA}, s{sA}, {FSH}
s_add_u32 s{sA}, s{sA}, {F_Y}
v_min_u32 v{vFo}, 6, v{a1}
v_lshl_add_u32 v{vFo}, v{vFo}, {6 + FSH}, s{sA}'''
late = f"""s_mov_b64 s[{SRD_B}:{SRD_B+1}], s[22:23]
s_mov_b32 s{SRD_B+2}, {448*896}
s_mov_b32 s{SRD_B+3}, 0x20000
s_mov_b64 s[{SRD_C}:{SRD_C+1}], s[24:25]
s_mov_b32 s{SRD_C+2}, {2048*1792}
s_mov_b32 s{SRD_C+3}, 0x20000
v_lshrrev_b32 v{a1}, 3, v{V_LANE}
v_and_b32 v{a2}, 7, v{V_LANE}
v_and_b32 v{a0}, 0x70, v{vL16}
v_mul_u32_u24 v{vYl}, {YS}, v{a1}
v_add_u32 v{vYl}, v{vYl}, v{a0}
v_lshlrev_b32 v{a3}, 2, v{V_LANE}
v_and_b32 v{a3}, 64, v{a3}
v_xor_b32 v{a0}, v{a0}, v{a3}
v_mul_u32_u24 v{vWoD}, 896, v{a1}
v_xor_b32 v{a3}, v{a1}, v{a2}
v_lshlrev_b32 v{a3}, 4, v{a3}
v_lshl_add_u32 v{vOut}, v{vWoD}, 1, v{a3}
v_add_u32 v{vWoD}, v{a0}, v{vWoD}
v_add_u32 v{vWoD+1}, {7168-1024}, v{vWoD}
v_lshrrev_b32 v{a0}, 4, v{V_LANE}
v_bfe_u32 v{a1}, v{V_LANE}, 2, 2
v_lshl_or_b32 v{a3}, v{a0}, 3, v{a1}
v_lshlrev_b32 v{a3}, 7, v{a3}
v_lshrrev_b32 v{a1}, 1, v{a1}
v_lshl_add_u32 v{a3}, v{a1}, 6, v{a3}
v_and_b32 v{a1}, 0x30, v{vL16}
s_movk_i32 s{sA}, {L_WO}
v_add3_u32 v{vWoR}, v{a1}, v{a3}, s{sA}
v_xor_b32 v{vWoR+1}, 64, v{vWoR}
v_and_b32 v{a1}, 15, v{V_LANE}
v_lshlrev_b32 v{vOl}, 4, v{a1}
v_mad_u32_u24 v{vOl}, v{a0}, s{S_KS}, v{vOl}
s_lshl2_add_u32 s{sOl}, s{S_J}, s{S_W}
{FOA}
s_lshl_b32 s{sA}, s{S_W}, 11
s_add_u32 s{sA}, s{sA}, {L_SSM}
v_xor_b32 v{a3}, v{a0}, v{a2}
v_lshl_add_u32 v{a3}, v{a3}, 4, s{sA}
v_lshl_add_u32 v{vBw}, v{a1}, 7, v{a3}
v_add_u32 v{vBr}, s{sA}, v{vL16}
s_mul_i32 s{sOut}, s{sOl}, {16*1792}
s_lshl_b32 s{sA}, s{S_C}, 7
s_add_u32 s{sOut}, s{sOut}, s{sA}
s_add_u32 s{sOut}, s{sOut}, 896
s_add_u32 s{sOut+1}, s{sOut}, {8*1792}
s_lshl_b32 s{sOl}, s{sOl}, 8
s_add_u32 s{sOl}, s{sOl}, {WS_O}
s_lshl2_add_u32 s{sCh0}, s{S_C}, s{S_W}
s_lshl_b32 s{sCh0}, s{sCh0}, 4
s_lshr_b32 s{sA}, s{S_J}, 4
s_lshl_b32 s{sA}, s{sA}, 9
s_add_u32 s{sA}, s{sA}, s{sCh0}
s_lshl_b32 s{sA}, s{sA}, {FSH}
s_add_u32 s{sA}, s{sA}, {F_Y}
v_lshl_add_u32 v{vFy}, v{a1}, {FSH}, s{sA}
v_and_b32 v{a1}, 11, v{V_LANE}
v_lshl_or_b32 v{a1}, v{a0}, 5, v{a1}
v_mul_u32_u24 v{a1}, 1792, v{a1}
v_and_b32 v{a3}, 4, v{V_LANE}
v_lshl_add_u32 v{vYs}, v{a3}, 2, v{a1}
s_lshl_b32 s{sA}, s{sHw}, 12
s_add_u32 s{sB}, s{sP}, {P_X + 4096}
s_sub_u32 s{sB}, s{sB}, s{sA}
v_add_u32 v{vXp}, s{sB}, v{vL16}
s_add_u32 s{sA}, s{sA}, s{sP}
s_add_u32 s{sA}, s{sA}, {P_X}
v_add_u32 v{vXo}, s{sA}, v{vL16}
v_lshl_add_u32 v{vRb_}, v{a0}, 4, s{sA}
v_bfe_u32 v{a0}, v{V_LANE}, 2, 2
v_and_b32 v{a3}, 1, v{V_LANE}
v_lshl_or_b32 v{a2}, v{a3}, 3, v{a0}
v_lshl_add_u32 v{vTr}, v{a2}, 7, v{vRb_}
v_and_b32 v{a2}, 2, v{V_LANE}
v_lshl_add_u32 v{vTr}, v{a2}, 2, v{vTr}""".split('\n')
def fill(n):
    e('\n'.join(late[:n])); del late[:n]
fill(16)
e('s_waitcnt lgkmcnt(8)')
for kp in range(3):
    for tau in range(2):
        d = vr(DP + 16*tau, 16)
        e(f'v_mfma_f32_32x32x16_bf16 {d}, {vr(AP + 12*tau + 4*kp, 4)}, {vr(BD + 4*kp, 4)}, {"0" if kp == 0 else d}')
        fill(6)
def cv_iter(first):
    for k in range(4):
        b = CB + 12 * k
        rd = cv_reads(k + 2)
        z = first and k == 0
        e('s_waitcnt lgkmcnt(4)')
        e(f'v_mfma_f32_32x32x16_bf16 {vr(T1,16)}, {vr(b,4)}, {vr(b+8,4)}, {"0" if z else vr(T1,16)}')
        e('\n'.join(rd))
        if k == 3:
            e(f'v_add_u32 v{vF_}, 256, v{vF_}\nv_subrev_u32 v{vG_}, 64, v{vG_}')
            if not first: e(f's_add_u32 s{sIt2}, s{sIt2}, 1\ns_cmp_lg_u32 s{sIt2}, 11')
        e(f'v_mfma_f32_32x32x16_bf16 {vr(T0,16)}, {vr(b,4)}, {vr(b+4,4)}, {"0" if z else vr(T0,16)}')
        if first: fill(6 if k < 3 else 99)
cv_iter(True)
e('L_cv:')
cv_iter(False)
e('s_cbranch_scc1 L_cv')
cv = [f'v_cvt_pk_bf16_f32 v{AP+i}, v{DP+2*i}, v{DP+2*i+1}' for i in range(16)]
for k in range(2):
    e('\n'.join(cv[4*k:4*k+4]))
    e(f's_waitcnt lgkmcnt({4 - 4*k})')
    e(f'v_mfma_f32_32x32x16_bf16 {vr(T1,16)}, {vr(CB+12*k,4)}, {vr(CB+12*k+8,4)}, {vr(T1,16)}')
for q in range(4):
    e('\n'.join(cv[8+4*q:12+4*q]))
    e(f'v_mfma_f32_32x32x16_bf16 {vr(T1,16)}, {vr(AP+4*q,4)}, {vr(BF+4*q,4)}, {vr(T1,16)}')
if OPT['prio']: e(f"s_setprio {OPT['pr']}")
stamp(5)
if OPT['abl'] == 32: e('s_endpgm')
e(f"""s_mul_i32 s{sA}, s{sD}, {YS}
s_lshl_b32 s{sB}, s{sHw}, 11
s_add_u32 s{sA}, s{sA}, s{sB}
s_add_u32 s{sA}, s{sA}, {WS_Y}
s_lshl_b32 s{sB}, s{sHw}, 9
s_add_u32 s{sB}, s{sB}, s{sD}
s_lshl_b32 s{sB}, s{sB}, {FSH}
s_add_u32 s{sB}, s{sB}, {F_Y}
s_nop 0""")
def xch(give, keep):
    for i in range(4): e(f'ds_write_b128 v{vXp}, {vr(give+4*i,4)} offset:{1024*i}')
    arrive(6); lwait(6, addr=vPair)
    for i in range(4): e(f'ds_read_b128 {vr(give+4*i,4)}, v{vXo} offset:{1024*i}')
    e('s_waitcnt lgkmcnt(0)')
e(f's_cmp_eq_u32 s{sHw}, 0\ns_cbranch_scc1 L_x0')
xch(T0, T1)
e('s_branch L_x1\nL_x0:')
xch(T1, T0)
e('L_x1:')
for i in range(8): e(f'v_pk_add_f32 {vr(T0+2*i,2)}, {vr(T0+2*i,2)}, {vr(T1+2*i,2)}')
for i in range(8): e(f'v_cvt_pk_bf16_f32 v{T1+i}, v{T0+2*i}, v{T0+2*i+1}')
e(f"""buffer_store_dwordx4 {vr(T1,4)}, v{vL16}, {sr(SRD_WS)}, s{sA} offen sc1
buffer_store_dwordx4 {vr(T1+4,4)}, v{vL16}, {sr(SRD_WS)}, s{sA} offen offset:1024 sc1
v_subrev_u32 v{a0}, 16, v{V_GRP}""")
if OM:
    e(f'''v_mov_b64 {vr(T0,2)}, -1
    v_mov_b64 {vr(T0+2,2)}, -1
    s_mul_i32 s{sA}, s{S_C}, {8*KS}
    s_add_u32 s{sA}, s{sA}, s{sOl}
    s_add_u32 s{sSk}, s{sA}, {4*KS}
    buffer_store_dwordx4 {vr(T0,4)}, v{vOl}, {sr(SRD_WS)}, s{sA} offen sc1
    buffer_store_dwordx4 {vr(T0,4)}, v{vOl}, {sr(SRD_WS)}, s{sSk} offen sc1''')
sync(7)
if OPT['only'] != 1: lwait(7, addr=a0)
e('s_waitcnt vmcnt(0)')
publish(sB, a0)
stamp(6)
if OPT['abl'] == 33: e('s_endpgm')
e(f"""s_mul_i32 s{sA}, s{S_W}, {16*896}
s_lshl_b32 s{sB}, s{S_C}, 7
s_add_u32 s{sA}, s{sA}, s{sB}
s_lshl_b32 s{sB}, s{S_W}, 11
s_add_u32 s{sB}, s{sB}, {L_WO}""")
for ch in range(7):
    e(f"""s_add_u32 m0, s{sB}, {8192*ch}
    s_add_u32 s{sSk}, s{sA}, {64*896*ch}
    buffer_load_dwordx4 v{vWoD}, {sr(SRD_B)}, s{sSk} offen lds
    buffer_load_dwordx4 v{vWoD+1}, {sr(SRD_B)}, s{sSk} offen offset:1024 lds
    s_waitcnt vmcnt({OPT['wodepth'] if ch < 6 else 0})""")
WF, OF, OC = 8, 168, 224
arrive(8)
e(f"""buffer_load_dword v{a0}, v{vFy}, {sr(SRD_WS)}, 0 offen sc1
s_mul_i32 s{sA}, s{sCh0}, {YS}
s_lshl_b32 s{sSk}, s{S_J}, 7
s_add_u32 s{sA}, s{sA}, s{sSk}
s_add_u32 s{sA}, s{sA}, {WS_Y}
s_add_u32 s{sSk}, s{sA}, {8*YS}""")
lwait(8)
stamp(7)
if OPT['abl'] == 34: e('s_endpgm')
def wo_reads(k):
    r = []
    for t in range(4):
        for hf in range(2):
            r.append(f'ds_read_b64_tr_b16 {vr(WF + 16*(k%10) + 4*t + 2*hf, 2)}, v{vWoR + (t>>1)} offset:{4096*k + 512*hf + 8*(t&1)}')
    return r
for k in range(10): e('\n'.join(wo_reads(k)))
arrive(9)
poll(vFy, first_issued=True, sleep=OPT['ysleep'], reg=a0)
stamp(8)
if OPT['abl'] == 35: e('s_endpgm')
e(f"""buffer_load_dwordx4 {vr(OF,4)}, v{vYl}, {sr(SRD_WS)}, s{sA} offen sc1
buffer_load_dwordx4 {vr(OF+4,4)}, v{vYl}, {sr(SRD_WS)}, s{sSk} offen sc1
s_lshr_b32 s{sA}, s{S_J}, 4
s_lshl_b32 s{sA}, s{sA}, 10
s_and_b32 s{sB}, s{S_J}, 3
s_lshl_b32 s{sB}, s{sB}, 8
s_add_u32 s{sA}, s{sA}, s{sB}
s_and_b32 s{sB}, s{S_J}, 8
s_lshl1_add_u32 s{sA}, s{sB}, s{sA}
s_and_b32 s{sB}, s{S_J}, 4
s_add_u32 s{sA}, s{sA}, s{sB}
s_mul_i32 s{sA}, s{sA}, 1792
s_lshl1_add_u32 s{sA}, s{sCh0}, s{sA}
s_add_u32 s{sB}, s{sA}, {128*1792}
v_xor_b32 v{a0}, 64, v{vBw}""")
lwait(9)
e(f"""s_waitcnt vmcnt(0)
ds_write_b128 v{vXo}, {vr(OF,4)}
ds_write_b128 v{vXo}, {vr(OF+4,4)} offset:1024""")
for z in range(2):
    for hf in range(2):
        e(f'ds_read_b64_tr_b16 {vr(OF + 8 + 4*z + 2*hf, 2)}, v{vTr} offset:{64*z + 512*hf}')
e(f"""s_waitcnt lgkmcnt(0)
buffer_store_dwordx4 {vr(OF+8,4)}, v{vYs}, {sr(SRD_C)}, s{sA} offen {OUTM}
buffer_store_dwordx4 {vr(OF+12,4)}, v{vYs}, {sr(SRD_C)}, s{sB} offen {OUTM}""")
if OPT['only'] == 1:
    stamp(9); stamp(13); prof_out(); e('s_endpgm')
if OM: poll(vFo, sleep=8)
if OM == 4:
    e(f'''s_lshl2_add_u32 s{sA}, s{S_J}, s{S_W}
    s_lshr_b32 s{sA}, s{sA}, 1
    s_lshl_b32 s{sA}, s{sA}, {4 + FSH}
    s_add_u32 s{sA}, s{sA}, {F_O}
    v_and_b32 v{vFo}, 15, v{V_LANE}
    v_lshl_add_u32 v{vFo}, v{vFo}, {FSH}, s{sA}''')
sOk, sLast = 4, 18
for k in range(14): e(f's_add_u32 s{sOk+k}, s{sOl}, {4*KS*k}')
stamp(9)
e('s_barrier')
stamp(10)
if OPT['osleep']: e(f"s_sleep {OPT['osleep']}")
if OM != 3: poll(vFo, sleep=OPT['hsleep'])
if OM: e(f's_min_u32 s{S_BOUND}, s{S_BOUND}, 0x4000')
stamp(11)
def o_load(k): return f'buffer_load_dwordx4 {vr(OF+4*k,4)}, v{vOl}, {sr(SRD_WS)}, s{sOk+k} offen sc1'
def o_chk(k):
    o = OF + 4*k
    return [f's_waitcnt vmcnt({13-k})', f'v_max3_u32 v6, v{o}, v{o+1}, v{o+2}', f'v_max_u32 v6, v6, v{o+3}', 'v_cmp_eq_u32 vcc, -1, v6']
for k in range(14): e(o_load(k))
if OM: e('\n'.join(o_chk(0)))
for k in range(14):
    o = OF + 4*k
    m = [f'v_mfma_f32_16x16x32_bf16 {vr(OC+4*t,4)}, {vr(WF + 16*(k%10) + 4*t, 4)}, {vr(o,4)}, {"0" if k == 0 else vr(OC+4*t,4)}' for t in range(4)]
    rd = wo_reads(k + 9) if 1 <= k <= 4 else []
    if k == 10: e('s_waitcnt lgkmcnt(0)')
    if OM:
        e(f's_cbranch_vccnz L_or{k}\nL_og{k}:')
        c = o_chk(k + 1) if k < 13 else ['', '', '', '']
        e('\n'.join([m[0]] + rd[:4] + [m[1]] + rd[4:] + [m[2], c[0], c[1], c[2], m[3], c[3]]))
    else:
        e(f's_waitcnt vmcnt({13-k})'); e('\n'.join(m + rd))
stamp(12)
e('s_nop 4')
for i in range(8): e(f'v_cvt_pk_bf16_f32 v{16+i}, v{OC+2*i}, v{OC+2*i+1}')
e(f"""ds_write_b128 v{vBw}, {vr(16,4)}
ds_write_b128 v{a0}, {vr(20,4)}
ds_read_b128 {vr(24,4)}, v{vBr}
ds_read_b128 {vr(28,4)}, v{vBr} offset:1024
s_or_b32 s{sA}, s2, s{S_W}
s_waitcnt lgkmcnt(1)
buffer_store_dwordx4 {vr(24,4)}, v{vOut}, {sr(SRD_C)}, s{sOut} offen {OUTM2}
s_waitcnt lgkmcnt(0)
buffer_store_dwordx4 {vr(28,4)}, v{vOut}, {sr(SRD_C)}, s{sOut+1} offen {OUTM2}
s_cbranch_scc1 L_noepoch""")
publish(sA, 6)
e('L_noepoch:')
if OPT['prof']:
    e('s_waitcnt vmcnt(0)')
stamp(13)
prof_out()
e('L_end:\ns_endpgm')
if OM:
    for k in range(14):
        c = o_chk(k)
        e(f'''L_or{k}:
        s_call_b64 s[90:91], L_re{k}
        {c[0]}
        L_oc{k}:
        {c[1]}
        {c[2]}
        {c[3]}
        s_cbranch_vccz L_og{k}
        {'s_sleep %d' % OPT['rsleep'] if OPT['rsleep'] else ''}
        {o_load(k)}
        s_sub_u32 s{S_BOUND}, s{S_BOUND}, 1
        s_waitcnt vmcnt(0)
        s_cbranch_scc0 L_oc{k}
        s_mov_b32 s{S_BOUND}, 0
        s_branch L_og{k}''')
    for k in range(14): e(f'L_re{k}:\n{o_load(k)}')
    e('s_setpc_b64 s[90:91]')
sec('idle')
ROLE[0] = 2
e('L_ssm_idle:')
if OPT['only'] == 2:
    arrive(1); e('s_endpgm')
hi()
e(f"""v_lshrrev_b32 v10, 3, v{V_LANE}
v_and_b32 v11, 7, v{V_LANE}
v_lshlrev_b32 v11, 4, v11
v_mul_u32_u24 v5, 896, v10
v_add_u32 v5, v5, v11
v_add_u32 v6, {7168-1024}, v5
s_lshl2_add_u32 s60, s{S_J}, s{S_W}
s_mul_i32 s61, s60, {16*896}
s_mul_i32 s62, s{S_W}, 14336
s_add_u32 s62, s62, {L_SSM}
s_mov_b32 s{SRD_A+2}, {2048*896}
s_mov_b32 s{SRD_A+3}, 0x20000
s_waitcnt lgkmcnt(0)
s_load_dword s{S_NONCE}, s[28:29], 0
s_mov_b64 s[{SRD_A}:{SRD_A+1}], s[4:5]""")
for c in range(7):
    e(f"""s_add_u32 m0, s62, {2048*c - 128*c}
    s_nop 0
    buffer_load_dwordx4 v5, {sr(SRD_A)}, s61 offen offset:{128*c} lds
    buffer_load_dwordx4 v6, {sr(SRD_A)}, s61 offen offset:{1024 + 128*c} lds""")
    if c == OPT['tb']: e('s_barrier')
    if c == 1:
        srd(SRD_WS, 28, WS_SIZE)
        e(f"""; transposing read: row = 8*(cc&1)+r', byte = 8*(2G+(cc>>1))
        v_mul_u32_u24 v7, {QS}, v10
        v_add_u32 v7, v7, v11
        v_bfe_u32 v8, v{V_LANE}, 2, 2
        v_and_b32 v9, 1, v{V_LANE}
        v_lshl_or_b32 v8, v9, 3, v8
        v_xor_b32 v8, 3, v8
        v_lshl_add_u32 v8, v8, 7, s62
        v_and_b32 v9, 0x30, v{V_LANE}
        v_add_u32 v8, v8, v9
        v_and_b32 v9, 2, v{V_LANE}
        v_lshl_add_u32 v8, v9, 2, v8
        s_lshl_b32 s63, s60, 7
        s_add_u32 s63, s63, {WS_U}
        s_lshl_b32 s65, s{S_J}, {FSH}
        s_add_u32 s65, s65, {F_U}""")
e(f's_waitcnt lgkmcnt(0)\ns_add_u32 s{S_NONCE}, s{S_NONCE}, 1')
arrive(1)
def t_rd(c):
    return [f'ds_read_b64_tr_b16 {vr(16 + 8*c + 4*z + 2*hf, 2)}, v8 offset:{2048*c + 64*z + 512*(1-hf)}' for z in range(2) for hf in range(2)]
e('s_waitcnt vmcnt(12)'); stamp(1); e('\n'.join(t_rd(0)))
for c in range(7):
    if c < 6:
        e('s_waitcnt vmcnt(10)'); e('\n'.join(t_rd(c + 1)))
    e(f"""s_add_u32 s64, s63, {8*QS}
    s_waitcnt lgkmcnt({4 if c < 6 else 0})
    buffer_store_dwordx4 {vr(16+8*c,4)}, v7, {sr(SRD_WS)}, s63 offen sc1
    buffer_store_dwordx4 {vr(20+8*c,4)}, v7, {sr(SRD_WS)}, s64 offen sc1
    s_add_u32 s63, s63, {16*QS}""")
    if c + 7 == OPT['tb']: e('s_barrier')
stamp(2)
e(f"""v_mov_b32 v5, 1
v_mov_b32 v6, 0
s_waitcnt vmcnt(0)
s_mov_b64 exec, 1
ds_add_rtn_u32 v5, v6, v5 offset:36
s_waitcnt lgkmcnt(0)
v_readfirstlane_b32 s60, v5
s_mov_b64 exec, -1
s_cmp_lg_u32 s60, 3
s_cbranch_scc1 L_idle_end""")
publish(65, 6)
e('L_idle_end:'); stamp(4)
prof_out()
e('s_endpgm')
ORDER = [['pro', 'ssm0', 'mha0', 'idle', 'ssm', 'mha'], ['pro', 'ssm0', 'mha0', 'mha', 'ssm', 'idle'],
         ['pro', 'ssm0', 'mha0', 'ssm', 'mha', 'idle'], ['pro', 'ssm0', 'idle', 'mha0', 'mha', 'ssm']][OPT['ord']] + ['cold', 'gt', 'fb']
SEC.setdefault('cold', [])
def add_nt(n, pred):
    SEC[n] = [(l.replace(' lds', ' nt lds') if l.endswith(' lds') else l + ' nt') if pred(l) else l for l in SEC[n]]
for n in ('mha0', 'mha', 'gt'):
    if OPT['nt'] & 1: add_nt(n, lambda l: l.endswith(' lds') and sr(SRD_A) in l)
    if OPT['nt'] & 2: add_nt(n, lambda l: l.endswith(' lds') and sr(SRD_B) in l)
if OPT['nt'] & 4: add_nt('idle', lambda l: l.endswith(' lds'))
if OPT['nt'] & 8: add_nt('ssm0', lambda l: 'global_load' in l)
if OPT['nt'] & 16: add_nt('ssm', lambda l: l.endswith(' lds'))
if OPT['nt'] & 32: add_nt('ssm', lambda l: 'buffer_store' in l and sr(SRD_C) in l)
BODY = sum((SEC[n] for n in ORDER), [])
def sizes(lines):
    import subprocess, re, os, tempfile
    d = tempfile.mkdtemp()
    open(d + '/a.s', 'w').write('.amdgcn_target "amdgcn-amd-amdhsa--gfx950"\n.text\n' + '\n'.join(lines) + '\n')
    subprocess.check_call(['clang', '-x', 'assembler', '-target', 'amdgcn-amd-amdhsa', '-mcpu=gfx950', '-c', d + '/a.s', '-o', d + '/a.o'])
    o = subprocess.check_output(['llvm-objdump', '-d', '--mcpu=gfx950', d + '/a.o']).decode()
    return [4 * len(m.group(1).split()) for m in re.finditer(r'// [0-9A-F]{12}: ((?:[0-9A-F]{8} ?)+)', o)]
def is_ins(l):
    t = l.split(';')[0].strip()
    return bool(t) and not t.endswith(':')
def widen(l):
    import re
    t = l.split(';')[0].strip(); op = t.split()[0]
    if op.startswith('v_') and not op.startswith(('v_readfirstlane', 'v_swap', 'v_permlane', 'v_nop')):
        return l.replace(op, op + '_e64', 1)
    return None
if OPT['al']:
    sz = iter(sizes(BODY))
    I = [[l, next(sz) if is_ins(l) else 0] for l in BODY]
    res = []; addr = 0; nw = nn = 0
    for i, (l, n) in enumerate(I):
        if n == 8 and addr % 8 == 4:
            run = 0
            for l2, n2 in I[i:]:
                if n2 == 4: break
                run += n2 == 8
            cross = sum(1 for k in range(run) if (addr + 8*k) % 32 == 28)
            if cross:
                j = len(res) - 1; done = False; aj = addr
                while j >= 0 and res[j][1] in (0, 4):
                    aj -= res[j][1]
                    t = res[j][0].strip()
                    if t.startswith(('s_branch', 's_endpgm', 's_setpc')):
                        res.insert(j + 1, ['    s_nop 0', 4]); done = True; break
                    w = widen(res[j][0]) if res[j][1] == 4 and aj % 32 != 28 else None
                    if w:
                        res[j] = [w, 8]; done = True; nw += 1; break
                    j -= 1
                if not done and run >= OPT['alr']:
                    k = len(res)
                    while res[k-1][1] == 0: k -= 1
                    res.insert(k, ['    s_nop 0', 4]); done = True; nn += 1
                if done: addr += 4
        res.append([l, n]); addr += n
    BODY = [l for l, n in res]
    print('aligned: widened', nw, 'nops', nn, 'bytes', addr, file=sys.stderr)
hdr = open('header.txt').read()
txt = hdr + f'''; @launch grid=(256,1,1) block=(512,1,1) lds={L_TOT}
.amdgcn_target "amdgcn-amd-amdhsa--gfx950"
.text
.globl {KN}
.p2align 8
.type {KN},@function
{KN}:
''' + '\n'.join(BODY) + f'''
.section .rodata,"a"
.p2align 6
.amdhsa_kernel {KN}
  .amdhsa_next_free_vgpr 256
  .amdhsa_next_free_sgpr 102
  .amdhsa_accum_offset 256
  .amdhsa_group_segment_fixed_size 0
  .amdhsa_kernarg_size 104
  .amdhsa_user_sgpr_count 2
  .amdhsa_user_sgpr_kernarg_segment_ptr 1
  .amdhsa_system_sgpr_workgroup_id_x 1
.end_amdhsa_kernel
'''
open(sys.argv[1], 'w').write(txt)
```

```python
import sys, struct
def fl(x): return hex(struct.unpack('<I', struct.pack('<f', x))[0])

KN = 'concat_heads__ssm_conv_s4d__softmax_full_mha__prompt_kernel'
OPT = dict(ur=1, us=128, rd0=-1, rdm=0, probe=0, poff=0xc00000, nt=0, rdn=0, al=1, alr=6, fw=0, rsleep=0, hsleep=0, ord=3, nb=0, tb=13, tq=1, chkk=99, uw=-2, cw=0, s6=5, tskip=1, ones=1, pa=1, pr=2, pf=2, wgf=2, ax=0, bp=3, qa=7, n0=4, ilv=8, tlb=0, ulook=1, kgp=1, pad=0, ypad=0, omode=3, ksleep=0, usleep=4, obar=5, osleep=0, pubk=8, abl=0, touch=0, gs=0, kgw=0, xg=5, gx=0, pm=2, ps=0, rt=0, upub=1, kgx=0, outsc=0, ysleep=8, wodepth=4, wq_mid=0, pollk=99, rd=-1, rdrole=0, only=0, safe=0, rot=0, prof=0, fs=128, force_fb=0, wq_early=7, prio=1)
for a in sys.argv[2:]:
    k, v = a.split('=')
    assert k in OPT, k
    OPT[k] = int(v, 0)

FS = OPT['fs']
FSH = FS.bit_length() - 1
F_KV = 0x1000
F_O = F_KV + 1024 * FS
F_U = F_O + 1024 * FS
F_Y = F_U + 1024 * FS
F_H = F_Y + 1024 * FS
WS_K = 0x100000
WS_V = 0x300000
WS_O = 0x500000
WS_U = 0x700000
WS_Y = 0x900000
QS = 16384 + OPT['pad']; KS = 2 * QS; YS = 4096 + OPT['ypad']
S_KS = 57
WS_PROF = 0xb00000
F_U = 0xb80000 if OPT['us'] * OPT['ur'] > 4096 else F_U
US = OPT['us']
WS_SIZE = 0x1000000
L_SSM = 1024
L_W = 57344
L_RB = 65536
L_X = 114688
L_TOT = 163840
TROW = 288
TABSZ = 38 * TROW
L_TAB = L_SSM
P_SZ = 2 * TABSZ
P_UC = 1536
UC_S = 2240
P_KD = TABSZ + 1536
P_X = TABSZ
PS = 1552
PD = 4 * PS
L_KP = L_TAB + 4 * TABSZ
assert P_UC + 4 * UC_S <= TABSZ and P_KD + 1600 <= P_SZ and P_X + 8192 <= P_SZ and L_KP % 16 == 0 and L_KP + 2 * PD <= L_W
L_WO = L_SSM

S_WV, S_W, S_HG, S_C, S_TILE, S_J, S_H, S_NONCE, S_O0, S_ROT = range(30, 40)
SRD_WS, SRD_A, SRD_B, SRD_C = 40, 44, 48, 52
S_BOUND = 56
S_T0 = 58

SEC = {}
out = None
def sec(n):
    global out
    out = SEC.setdefault(n, [])
sec('pro')
def e(s):
    for l in s.split('\n'):
        l = l.strip()
        if l:
            out.append(l if l.endswith(':') else '    ' + l)
_lab = [0]
def lab(p):
    _lab[0] += 1
    return f'L_{p}_{_lab[0]}'
def vr(a, n):
    return f'v[{a}:{a+n-1}]' if n > 1 else f'v{a}'
def srd(d, b, n):
    e(f's_mov_b64 s[{d}:{d+1}], s[{b}:{b+1}]\ns_mov_b32 s{d+2}, {n}\ns_mov_b32 s{d+3}, 0x20000')
def sr(d): return f's[{d}:{d+3}]'

V_LANE, V_T, V_OWN, V_GRP, V_PROF = 0, 1, 2, 3, 4

ROLE = [0]
def stamp(i):
    if OPT['rd0'] == i and OPT['rdrole'] == ROLE[0]:
        e('s_memrealtime s[98:99]\ns_waitcnt lgkmcnt(0)')
    if OPT['rd'] == i and OPT['rdrole'] == ROLE[0]:
        e('s_memrealtime s[100:101]\ns_waitcnt lgkmcnt(0)')
    if OPT['prof'] > (i >= 14):
        e(f's_mem{"real" if OPT["rt"] else ""}time s[96:97]\ns_waitcnt lgkmcnt(0)\ns_sub_u32 s96, s96, s{98 if OPT["rt"] else S_T0}\nv_writelane_b32 v{V_PROF}, s96, {i}')
def prof_out():
    if OPT['rd'] >= 0 and OPT['rdrole'] == ROLE[0]:
        l = lab('pad')
        if ROLE[0] == 0 and not OPT['obar']: e('s_barrier')
        if ROLE[0] == 2: e('s_barrier')
        if ROLE[0] == 0 and OPT['rdn']: e(f's_cmp_eq_u32 s{S_C}, 7\ns_cbranch_scc{2 - OPT["rdn"]} L_end')
        if OPT['rd'] == 98:
            e(f'''s_not_b32 s100, s100
            v_mov_b32 v5, s100
            v_mov_b32 v6, 0
            s_mov_b64 exec, 1
            global_atomic_umax v6, v5, s[26:27]
            s_waitcnt vmcnt(0)
            s_sleep 127
            s_sleep 127
            s_sleep 127
            s_sleep 127
            s_sleep 127
            global_load_dword v5, v6, s[26:27] sc1
            s_waitcnt vmcnt(0)
            v_readfirstlane_b32 s100, v5
            s_not_b32 s100, s100''')
        if OPT['probe']:
            op = {1: 'buffer_store_dwordx4 v[8:11], v5, s[52:55], s60 offen sc1', 2: 'buffer_load_dwordx4 v[8:11], v5, s[52:55], s60 offen sc1',
                  3: 'buffer_store_dwordx4 v[8:11], v5, s[52:55], s60 offen'}[OPT['probe'] & 3]
            pre = 'buffer_load_dword v12, v6, s[52:55], s61 offen sc1\ns_waitcnt vmcnt(0)' if OPT['probe'] & 4 else ''
            if OPT['probe'] & 8: pre += '\nbuffer_store_dwordx4 v[8:11], v5, s[52:55], s60 offen sc1\ns_waitcnt vmcnt(0)\ns_sleep 40'
            e(f'''s_mov_b64 s[52:53], s[28:29]
            s_mov_b32 s54, 0x10000000
            s_mov_b32 s55, 0x20000
            s_sleep 127
            s_sleep 127
            s_sleep 127
            v_lshlrev_b32 v5, 4, v0
            v_mov_b32 v6, 0
            s_lshl2_add_u32 s60, s2, s{S_W}
            s_lshl_b32 s60, s60, 10
            s_add_u32 s60, s60, {OPT['poff']}
            s_mov_b32 s61, {OPT['poff'] + 0x180000}
            {pre}
            s_memrealtime s[62:63]
            s_waitcnt lgkmcnt(0)
            {op}
            s_waitcnt vmcnt(0)
            s_memrealtime s[100:101]
            s_waitcnt lgkmcnt(0)
            s_sub_u32 s100, s100, s62
            v_mov_b32 v8, s100
            s_lshl2_add_u32 s60, s2, s{S_W}
            s_lshl_b32 s60, s60, 2
            s_add_u32 s60, s60, {WS_PROF}
            buffer_store_dword v8, v6, s[52:55], s60 offen
            s_mul_i32 s100, s100, 50
            s_add_u32 s100, s100, s58''')
        elif OPT['rdm'] == 2:
            e('''s_not_b32 s96, s58
            v_mov_b32 v5, s96
            v_mov_b32 v6, 0
            s_mov_b64 exec, 1
            global_atomic_umax v6, v5, s[26:27]
            s_waitcnt vmcnt(0)''' + '\ns_sleep 127' * 7 + '''
            global_load_dword v5, v6, s[26:27] sc1
            s_waitcnt vmcnt(0)
            v_readfirstlane_b32 s96, v5
            s_not_b32 s96, s96
            s_sub_u32 s100, s100, s96
            s_lshl_b32 s100, s100, 3
            s_add_u32 s100, s100, s96''')
        elif OPT['rdm']:
            e('''s_sub_u32 s100, s100, s98
            v_mov_b32 v5, s100
            v_mov_b32 v6, 0
            s_mov_b64 exec, 1
            global_atomic_add v6, v5, s[26:27]
            s_waitcnt vmcnt(0)''' + '\ns_sleep 127' * 7 + '''
            global_load_dword v5, v6, s[26:27] sc1
            s_waitcnt vmcnt(0)
            v_readfirstlane_b32 s100, v5
            s_lshr_b32 s100, s100, 6
            s_add_u32 s100, s100, s58''')
        else: e('s_sub_u32 s100, s100, s98\ns_lshl_b32 s100, s100, 3\ns_add_u32 s100, s100, s58')
        e(f'''s_add_u32 s100, s100, 6000
        {l}:
        s_sleep 1
        s_memrealtime s[96:97]
        s_waitcnt lgkmcnt(0)
        s_sub_u32 s96, s96, s100
        s_cmp_lt_i32 s96, 0
        s_cbranch_scc1 {l}''')
    if OPT['prof']:
        e(f'''s_memrealtime s[96:97]
        s_waitcnt lgkmcnt(0)
        v_writelane_b32 v{V_PROF}, s96, 31
        v_writelane_b32 v{V_PROF}, s98, 30
        s_lshl_b32 s96, s2, 3
        s_add_u32 s96, s96, s{S_WV}
        s_lshl_b32 s96, s96, 7
        s_add_u32 s96, s96, {WS_PROF}
        v_lshlrev_b32 v{V_T}, 2, v{V_LANE}
        s_mov_b32 exec_hi, 0
        buffer_store_dword v{V_PROF}, v{V_T}, {sr(SRD_WS)}, s96 offen
        s_mov_b64 exec, -1''')

def arrive(stage):
    e(f'v_mov_b32 v{V_T}, {stage}\nds_write_b32 v{V_OWN}, v{V_T}')
def lwait(stage, addr=V_GRP, sleep=0):
    l = lab('lw')
    e(f'{l}:')
    if sleep: e(f's_sleep {sleep}')
    e(f'''ds_read_b32 v{V_T}, v{addr}
    s_waitcnt lgkmcnt(0)
    v_cmp_gt_u32 vcc, {stage}, v{V_T}''')
    if OPT['safe']:
        d = lab('ld')
        e(f'''s_cbranch_vccz {d}
        s_sub_u32 s{S_BOUND}, s{S_BOUND}, 1
        s_cbranch_scc0 {l}
        s_mov_b32 s{S_BOUND}, 0
        {d}:''')
    else:
        e(f's_cbranch_vccnz {l}')
def sync(stage):
    arrive(stage); lwait(stage)
def poll(voff, first_issued=False, sleep=0, reg=V_T):
    l, d, m = lab('pl'), lab('pd'), lab('pm')
    if first_issued == 2:
        e(f's_waitcnt vmcnt(0)\nv_cmp_ne_u32 vcc, s{S_NONCE}, v{reg}\ns_cbranch_vccnz {l}\n{d}:')
        cur = [n for n in SEC if SEC[n] is out][0]
        sec('cold')
        e(f'''{l}:
        buffer_load_dword v{reg}, v{voff}, {sr(SRD_WS)}, 0 offen sc1
        s_waitcnt vmcnt(0)
        v_cmp_ne_u32 vcc, s{S_NONCE}, v{reg}
        s_cbranch_vccz {d}
        s_sub_u32 s{S_BOUND}, s{S_BOUND}, 1
        s_cbranch_scc0 {l}
        s_mov_b32 s{S_BOUND}, 0
        s_branch {d}''')
        sec(cur)
        return
    if first_issued: e(f's_branch {m}')
    e(f'{l}:')
    if sleep: e(f's_sleep {sleep}')
    e(f'''buffer_load_dword v{reg}, v{voff}, {sr(SRD_WS)}, 0 offen sc1
    {m}:
    s_waitcnt vmcnt(0)
    v_cmp_ne_u32 vcc, s{S_NONCE}, v{reg}
    s_cbranch_vccz {d}
    s_sub_u32 s{S_BOUND}, s{S_BOUND}, 1
    s_cbranch_scc0 {l}
    s_mov_b32 s{S_BOUND}, 0
    {d}:''')
def publish(soff, tmp):
    if OPT['fw']:
        e(f'''v_mov_b32 v{V_T}, s{S_NONCE}
        v_lshlrev_b32 v{tmp}, 2, v{V_LANE}
        s_mov_b64 exec, {hex((1 << OPT['fw']) - 1)}
        buffer_store_dword v{V_T}, v{tmp}, {sr(SRD_WS)}, s{soff} offen sc1
        s_mov_b64 exec, -1'''.replace('s_mov_b64 exec, 0xffffffff', 's_mov_b32 exec_hi, 0'))
        return
    e(f'''v_mov_b32 v{V_T}, s{S_NONCE}
    v_mov_b32 v{tmp}, 0
    s_mov_b64 exec, 1
    buffer_store_dword v{V_T}, v{tmp}, {sr(SRD_WS)}, s{soff} offen sc1
    s_mov_b64 exec, -1''')
def swap23(d, s, t):
    e(f'''v_lshrrev_b32 v{t}, 1, v{s}
    v_xor_b32 v{t}, v{t}, v{s}
    v_and_b32 v{t}, 4, v{t}
    v_mul_u32_u24 v{t}, 3, v{t}
    v_xor_b32 v{d}, v{t}, v{s}''')
def rot_next(s):
    e(f's_add_u32 s{s}, s{s}, 1\ns_cmp_eq_u32 s{s}, 7\ns_cselect_b32 s{s}, 0, s{s}')

e(f'''s_cmp_ge_u32 s2, 256
s_cbranch_scc1 L_end''')
if OPT['prof']:
    e(f's_memtime s[{S_T0}:{S_T0+1}]\ns_memrealtime s[98:99]\nv_mov_b32 v{V_PROF}, 0')
if OPT['rd'] >= 0: e('s_memrealtime s[100:101]\ns_memrealtime s[58:59]\ns_memrealtime s[98:99]')
e(f'''s_load_dwordx16 s[4:19], s[0:1], 0
s_load_dwordx8 s[20:27], s[0:1], 64
s_load_dwordx2 s[28:29], s[0:1], 96
v_lshrrev_b32 v{V_OWN}, 6, v0
v_and_b32 v{V_LANE}, 63, v0
v_readfirstlane_b32 s{S_WV}, v{V_OWN}
v_lshlrev_b32 v{V_OWN}, 2, v{V_OWN}
v_mov_b32 v{V_T}, 0
ds_write2_b32 v{V_OWN}, v{V_T}, v{V_T} offset1:8
v_and_b32 v{V_GRP}, 3, v{V_LANE}
v_lshlrev_b32 v{V_GRP}, 2, v{V_GRP}
s_and_b32 s{S_HG}, s2, 1
s_bfe_u32 s60, s2, 0x20001
s_bfe_u32 s{S_C}, s2, 0x30003
s_lshr_b32 s61, s2, 6
s_lshl2_add_u32 s{S_TILE}, s60, s61
s_lshl1_add_u32 s{S_J}, s{S_TILE}, s{S_HG}
s_lshl3_add_u32 s{S_H}, s{S_HG}, s{S_C}
s_and_b32 s{S_W}, s{S_WV}, 3
s_mov_b32 s{S_BOUND}, 0x40000
s_mov_b32 s{S_KS}, {KS}
s_cmp_lt_u32 s{S_WV}, 4
s_cbranch_scc1 L_mha''')

VX = 144; VACC = 96; VWF = 32; VPK = 128
VV, VK, VS, VO, VQ = 32, 64, 96, 160, 224
vWd = [5, 6]; vXd = [7, 8, 9, 10]; vXr = [11, 12, 13, 14]; vWb, vW0, vW1 = 15, 16, 17
vRho, vG, vSt, vQd, vQr, vFl, vA, vB, vC = 18, 19, 20, 21, 22, 23, 24, 25, 26
vKo0, vKo1, vVo, vIdx = 27, 28, 29, 30
sXb, sWb, sCh, sCw, sLx, sTmp, sTmp2, sSt, sS1, sS2, sFl = range(60, 71)
sK, sV, sIt = 71, 72, 73
sFo, sO0, sO1 = 84, 85, 86
vOs, vQw = vRho, vG
vRb = [7, 8, 9]; vQx = [11, 12, 13]; vRr = 10
sMask = 74
sOdd = 76

sec('mha0')
e('L_mha:')
if OPT['prio']: e(f"s_setprio {OPT['pm']}")
e(f'''s_mul_i32 s{S_O0}, s{S_H}, 7
s_lshr_b32 s{S_O0}, s{S_O0}, 1''')
e(f'''v_lshrrev_b32 v{vA}, 3, v{V_LANE}          ; r
v_and_b32 v{vB}, 7, v{V_LANE}                    ; p
v_lshlrev_b32 v{vC}, 1, v{vA}
v_and_b32 v{vC}, 4, v{vC}
v_xor_b32 v{vC}, v{vC}, v{vB}
v_lshlrev_b32 v{vC}, 4, v{vC}
v_mul_u32_u24 v{vWd[0]}, 2688, v{vA}
v_add_u32 v{vWd[0]}, v{vWd[0]}, v{vC}
v_add_u32 v{vWd[1]}, {8*2688-1024}, v{vWd[0]}
v_lshrrev_b32 v{vC}, 1, v{vA}
v_xor_b32 v{vC}, v{vC}, v{vB}
v_lshlrev_b32 v{vC}, 4, v{vC}
v_mul_u32_u24 v{vA}, 896, v{vA}
v_add_u32 v{vXd[0]}, v{vA}, v{vC}
v_xor_b32 v{vC}, 64, v{vC}
v_add_u32 v{vXd[1]}, v{vA}, v{vC}
v_add_u32 v{vXd[1]}, {7168-1024}, v{vXd[1]}
v_add_u32 v{vXd[2]}, {2*(7168-1024)}, v{vXd[0]}
v_add_u32 v{vXd[3]}, {2*(7168-1024)}, v{vXd[1]}
s_lshl2_add_u32 s{sXb}, s{S_TILE}, s{S_W}
s_lshl_b32 s{sFl}, s{S_H}, 6
s_add_u32 s{sFl}, s{sFl}, s{S_TILE if OPT['wgf'] else sXb}
s_lshl_b32 s{sFl}, s{sFl}, {FSH}
s_add_u32 s{sFl}, s{sFl}, {F_KV}
s_mul_i32 s{sXb}, s{sXb}, {32*896}
s_mul_i32 s{sTmp2}, s{S_HG}, 3
s_lshr_b32 s{sTmp}, s2, 6
s_add_u32 s{sTmp2}, s{sTmp2}, s{sTmp}
s_mul_i32 s{sWb}, s{S_HG}, 7
s_add_u32 s{sWb}, s{sWb}, s{S_C}
s_add_u32 s{sWb}, s{sWb}, 7
s_cmp_eq_u32 s{S_C}, 7
s_cselect_b32 s{sWb}, {'s%d' % sTmp2 if OPT['tq'] else '0x100000'}, s{sWb}
s_cselect_b32 s{sS1}, 1, s{S_W}
s_lshl_b32 s{sWb}, s{sWb}, 7
s_mul_i32 s{sTmp}, s{S_W}, {16*2688}
s_add_u32 s{sWb}, s{sWb}, s{sTmp}
s_mul_i32 s{sLx}, s{S_W}, 12288
s_add_u32 s{sLx}, s{sLx}, {L_X}
s_lshl_b32 s{sS1}, s{sS1}, 11
s_add_u32 s{sS1}, s{sS1}, {L_W}
s_mov_b32 s{SRD_A+2}, {2048*896}
s_mov_b32 s{SRD_A+3}, 0x20000
s_mov_b32 s{SRD_B+2}, {448*1344*2}
s_mov_b32 s{SRD_B+3}, 0x20000
s_mov_b32 m0, s{sLx}
s_waitcnt lgkmcnt(0)
s_mov_b64 s[{SRD_A}:{SRD_A+1}], s[18:19]
s_mov_b64 s[{SRD_B}:{SRD_B+1}], s[20:21]
s_load_dword s{S_NONCE}, s[28:29], 0''')
stamp(22)
sWo = 88
def w_lines(st):
    return [f's_add_u32 m0, s{sS1}, {8192*st}', f's_add_u32 s{sWo+st}, s{sWb}, {64*2688*st}'] + \
           [f'buffer_load_dwordx4 v{vWd[i]}, {sr(SRD_B)}, s{sWo+st} offen offset:{1024*i} lds' for i in range(2)]
def x_chunk(st):
    return [f's_add_u32 m0, s{sLx}, {(st%3)*4096 - 128*st}', 's_nop 0'] + \
           [f'buffer_load_dwordx4 v{vXd[i]}, {sr(SRD_A)}, s{sXb} offen offset:{1024*i + 128*st} lds' for i in range(4)]
DM = []
for l in [x_chunk(0), w_lines(0)] + [w_lines(i) for i in range(1, 7)] + [x_chunk(1), x_chunk(2)]:
    DM += [l[:3]] + [[x] for x in l[3:]]
DM[0] = DM[0][2:]
for i, g in enumerate(DM[:OPT['n0']]):
    if i == OPT['nb']:
        e('s_barrier'); stamp(23)
        if OPT['only'] == 1: e('s_endpgm')
    e('\n'.join(g))
DM = DM[OPT['n0']:]
stamp(24)
if OPT['ord'] not in (1, 3): e('s_branch L_mha1')
sec('mha')
e('L_mha1:')
stamp(25)
sec('tmp')
srd(SRD_WS, 28, WS_SIZE)
ONES = f'''s_bitcmp1_b32 s{S_H}, 0
s_cselect_b32 s{sTmp}, 0, 7
v_cmp_eq_u32 vcc, s{sTmp}, v{vA}
s_lshl_b32 s{sTmp}, s{S_O0}, 1
s_sub_u32 s{sTmp}, s{S_HG}, s{sTmp}
s_add_u32 s{sTmp}, s{sTmp}, 112
v_mov_b32 v{vB}, s{sTmp}
v_cndmask_b32 v{vA}, v{vA}, v{vB}, vcc
''' if OPT['ones'] else ''
FIX = f'''v_cmp_lt_u32 vcc, 7, v{vB}
s_lshl3_add_u32 s{sTmp}, s{S_HG}, 7
v_mov_b32 v{vB}, s{sTmp}
v_cndmask_b32 v{vC}, v{vC}, v{vB}, vcc
''' if OPT['ones'] else ''
FOM = f'''s_lshl_b32 s{sFo}, s{sTmp2}, 4
s_add_u32 s{sFo}, s{sFo}, s{S_H}
s_lshl_b32 s{sFo}, s{sFo}, {FSH}
s_add_u32 s{sFo}, s{sFo}, {F_O}
''' if OPT['omode'] != 3 else ''
e(f'''v_and_b32 v{vA}, 31, v{V_LANE}
v_lshrrev_b32 v{vG}, 5, v{V_LANE}''')
swap23(vRho, vA, vB)
e(f'''v_bfe_u32 v{vB}, v{vRho}, 1, 3
v_xor_b32 v{vB}, v{vB}, v{vG}
v_lshlrev_b32 v{vB}, 4, v{vB}
v_lshl_add_u32 v{vB}, v{vRho}, 7, v{vB}
v_add_u32 v{vXr[0]}, s{sLx}, v{vB}
v_xor_b32 v{vXr[1]}, 32, v{vXr[0]}
v_xor_b32 v{vXr[2]}, 64, v{vXr[0]}
v_xor_b32 v{vXr[3]}, 0x60, v{vXr[0]}
v_and_b32 v{vB}, 3, v{V_LANE}                     ; cc
v_lshrrev_b32 v{vC}, 1, v{vB}
v_and_b32 v{vQd}, 1, v{vB}
v_lshl_or_b32 v{vC}, v{vQd}, 1, v{vC}
v_bfe_u32 v{vQd}, v{V_LANE}, 4, 1
v_lshl_or_b32 v{vB}, v{vQd}, 2, v{vB}              ; mq natural
v_lshl_or_b32 v{vC}, v{vQd}, 2, v{vC}
v_bfe_u32 v{vQd}, v{V_LANE}, 2, 2                  ; r'
v_lshl_or_b32 v{vFl}, v{vG}, 3, v{vQd}             ; 8g + r'
v_lshlrev_b32 v{vQr}, 6, v{vFl}
v_lshl_add_u32 v{vQr}, v{vC}, 3, v{vQr}
v_add_u32 v{vQr}, {L_X + 4096}, v{vQr}
s_cmp_eq_u32 s{S_HG}, 0
s_cselect_b64 vcc, -1, 0
v_cndmask_b32 v{vB}, v{vB}, v{vC}, vcc             ; K slabs use the exchanged order, V slabs the natural one
v_lshlrev_b32 v{vWb}, 7, v{vFl}
v_lshl_add_u32 v{vWb}, v{vB}, 3, v{vWb}
v_lshrrev_b32 v{vQd}, 1, v{vQd}
v_lshl_add_u32 v{vWb}, v{vQd}, 6, v{vWb}
v_add_u32 v{vW0}, {L_W}, v{vWb}
v_lshlrev_b32 v{vB}, 4, v{vRho}
v_mad_u32_u24 v{vB}, v{vG}, s{S_KS}, v{vB}
v_lshrrev_b32 v{vC}, 2, v{vA}
v_mul_u32_u24 v{vC}, {QS}, v{vC}
v_lshl_add_u32 v{vC}, v{vG}, 6, v{vC}
v_and_b32 v{vQd}, 3, v{vA}
v_lshl_add_u32 v{vC}, v{vQd}, 4, v{vC}
v_cndmask_b32 v{vSt}, v{vC}, v{vB}, vcc
s_lshl2_add_u32 s{sTmp}, s{S_TILE}, s{S_W}
s_lshl_b32 s{sTmp2}, s{sTmp}, 9
s_add_u32 s{sTmp2}, s{sTmp2}, {WS_K}
s_lshl_b32 s{sTmp}, s{sTmp}, 8
s_add_u32 s{sTmp}, s{sTmp}, {WS_V}
s_movk_i32 s{sS2}, 128
s_cmp_eq_u32 s{S_HG}, 0
s_cselect_b32 s{sSt}, s{sTmp2}, s{sTmp}
s_cselect_b32 s{sS2}, {2*KS}, s{sS2}
s_mul_i32 s{sTmp}, s{S_C}, {8*KS}
s_add_u32 s{sSt}, s{sSt}, s{sTmp}
v_lshrrev_b32 v{vB}, 2, v{V_LANE}
v_mul_u32_u24 v{vB}, 2688, v{vB}
v_lshl_add_u32 v{vQd}, v{vQd}, 4, v{vB}
s_lshl_b32 s82, s{S_O0}, 4
s_mul_i32 s{sTmp}, s{S_W}, {16*2688}
s_add_u32 s82, s82, s{sTmp}
s_lshr_b32 s{sTmp}, s{S_O0}, 3
s_add_u32 s{sTmp2}, s{S_O0}, 3
s_lshr_b32 s{sTmp2}, s{sTmp2}, 3
s_sub_u32 s{sTmp2}, s{sTmp2}, s{sTmp}
v_bfe_u32 v{vC}, v{V_LANE}, 4, 1
v_mul_u32_u24 v{vC}, s{sTmp2}, v{vC}
v_lshl_add_u32 v{vC}, v{vG}, 3, v{vC}
v_add_u32 v{vC}, s{sTmp}, v{vC}
v_and_b32 v{vB}, 15, v{V_LANE}
{FIX}v_and_b32 v{vB}, {3 if OPT['wgf'] else 15}, v{V_LANE}
v_lshl_add_u32 v{vC}, v{vC}, 6, v{vB}
s_lshl_b32 s{sTmp}, s{S_W}, {2 if OPT['wgf'] else 4}
v_add_u32 v{vC}, s{sTmp}, v{vC}
v_lshlrev_b32 v{vC}, {FSH}, v{vC}
v_add_u32 v{vFl}, {F_KV}, v{vC}
v_lshlrev_b32 v{vKo0}, 4, v{vA}
v_mad_u32_u24 v{vKo0}, v{vG}, s{S_KS}, v{vKo0}
v_add_u32 v{vKo1}, {2*KS}, v{vKo0}
v_lshrrev_b32 v{vA}, 2, v{vRho}
{ONES}v_mul_u32_u24 v{vA}, {QS}, v{vA}
v_lshl_add_u32 v{vA}, v{vG}, 6, v{vA}
v_and_b32 v{vB}, 3, v{V_LANE}
v_lshl_add_u32 v{vVo}, v{vB}, 4, v{vA}
v_mov_b32 v{vIdx}, 0xdddddddd
s_mul_i32 s{sTmp}, s{S_O0}, {KS}
s_lshl_b32 s{sK}, s{S_W}, 13
s_add_u32 s{sK}, s{sK}, s{sTmp}
s_add_u32 s{sK}, s{sK}, {WS_K}
s_lshl_b32 s{sV}, s{S_W}, 12
s_add_u32 s{sV}, s{sV}, s{sTmp}
s_add_u32 s{sV}, s{sV}, {WS_V}
s_lshl2_add_u32 s{sTmp2}, s{S_TILE}, s{S_W}
{FOM}s_lshl_b32 s{sTmp2}, s{sTmp2}, 9
s_add_u32 s{sO0}, s{sTmp}, s{sTmp2}
s_add_u32 s{sO0}, s{sO0}, {WS_O}
s_add_u32 s{sO1}, s{sO0}, {2*KS}
s_bitcmp1_b32 s{S_H}, 0
s_cselect_b64 s[{sOdd}:{sOdd+1}], -1, 0
; per-lane multipliers for Q: scale*log2(e), zero on the four slots that belong to the neighbour head
v_mov_b32 v{vC}, 0x3e8b97f6
v_cmp_gt_u32 vcc, 32, v{V_LANE}
s_and_b64 s[78:79], vcc, s[{sOdd}:{sOdd+1}]
s_nor_b64 s[80:81], vcc, s[{sOdd}:{sOdd+1}]
v_cndmask_b32 v{vA}, v{vC}, 0, s[78:79]
v_cndmask_b32 v{vB}, v{vC}, 0, s[80:81]
s_mov_b32 s78, 0x3f803f80
s_mov_b32 s79, s78
v_xor_b32 v{vW1}, 64, v{vW0}
v_lshlrev_b32 v{vOs}, 4, v{vRho}
v_mad_u32_u24 v{vOs}, v{vG}, s{S_KS}, v{vOs}
v_lshl_add_u32 v{vQw}, v{V_LANE}, 4, s{sLx}''')
srd(SRD_C, 28, WS_SIZE)
def o_stores(r0, r1, tag):
    e(f'''s_bitcmp1_b32 s{S_H}, 0
    s_cbranch_scc1 L_ost_odd{tag}
    buffer_store_dwordx4 {vr(r0,4)}, v{vOs}, {sr(SRD_WS)}, s{sO0} offen sc1
    s_mov_b32 exec_hi, 0
    buffer_store_dwordx4 {vr(r1,4)}, v{vOs}, {sr(SRD_WS)}, s{sO1} offen sc1
    s_not_b64 exec, exec
    buffer_store_dwordx2 {vr(r1,2)}, v{vOs}, {sr(SRD_WS)}, s{sO1} offen sc1
    s_branch L_ost_done{tag}
    L_ost_odd{tag}:
    buffer_store_dwordx4 {vr(r1,4)}, v{vOs}, {sr(SRD_WS)}, s{sO1} offen sc1
    s_mov_b32 exec_hi, 0
    buffer_store_dwordx2 {vr(r0+2,2)}, v{vOs}, {sr(SRD_WS)}, s{sO0} offen offset:8 sc1
    s_not_b64 exec, exec
    buffer_store_dwordx4 {vr(r0,4)}, v{vOs}, {sr(SRD_WS)}, s{sO0} offen sc1
    L_ost_done{tag}:
    s_mov_b64 exec, -1''')
GS = 0
AB = [l for l in SEC.pop('tmp') if not l.strip().startswith(';')]
sec('mha')
def scc_pending(i):
    return i < len(AB) and AB[i].strip().startswith(('s_cselect', 's_mov_b32 s75'))
pos = 0
for g in DM:
    n = pos + OPT['ilv']
    while scc_pending(n): n += 1
    e('\n'.join(AB[pos:n])); pos = n
    e('\n'.join(g))
e('\n'.join(AB[pos:]))
stamp(0)
def x_reads(s):
    return [f'ds_read_b128 {vr(VX + 16*s + 4*ks, 4)}, v{vXr[ks]} offset:{(s%3)*4096}' for ks in range(4)]
e('s_waitcnt vmcnt(22)')
e('\n'.join(x_reads(0)))
e('s_waitcnt vmcnt(8) lgkmcnt(0)')
arrive(1)
stamp(1)
e('\n'.join(x_chunk(3)))
e('s_waitcnt vmcnt(8)')
e('\n'.join(x_reads(1)))
lwait(1)
e(f's_add_u32 s{S_NONCE}, s{S_NONCE}, 1')
stamp(2)
def w_reads(s):
    r = []
    for ks in range(4):
        for ct in range(2):
            for hf in range(2):
                d = VWF + 32 * (s & 1) + 8 * ks + 4 * ct + 2 * hf
                r.append(f'ds_read_b64_tr_b16 {vr(d,2)}, v{(vW0, vW1)[ct]} offset:{s*8192 + ks*2048 + hf*512}')
    return r
if OPT['tskip']: e(f's_cmp_eq_u32 s{S_C}, 7\ns_cbranch_scc1 L_gemm_t')
e('\n'.join(w_reads(0)))
e(f'''s_waitcnt lgkmcnt(0)
s_cmp_lg_u32 s{S_HG}, 0
s_cbranch_scc1 L_gemm_v''')
sQb, sQc = 82, 83
NE = OPT['wq_early']
def wq_dma(st):
    return [f's_add_u32 m0, s{sLx}, {4096 + 1024*st}\ns_add_u32 s83, s82, {64*2688*st}', '', f'buffer_load_dwordx4 v{vQd}, {sr(SRD_B)}, s83 offen lds']
SPIN = []
def gemm1(vpart):
    for s in range(7):
        M = []
        for ks in range(4):
            for ct in range(2):
                wf = vr(VWF + 32 * (s & 1) + 8 * ks + 4 * ct, 4); xf = vr(VX + 16 * s + 4 * ks, 4)
                acc = vr(VACC + 16 * ct, 16)
                a, b = (xf, wf) if vpart else (wf, xf)
                M.append(f'v_mfma_f32_32x32x16_bf16 {acc}, {a}, {b}, {"0" if s == 0 and ks == 0 else acc}')
        gaps = [[] for _ in range(8)]
        tag = f'{"v" if vpart else "k"}{s}'
        pre = []
        dm = []
        def add(l): dm.extend([(l[0], l[2])] + [(None, x) for x in l[3:]])
        if s <= 2: add(x_chunk(s + 4))
        if s == 3:
            for i in range(min(NE, 4)): add(wq_dma(i))
        if s == 4:
            for i in range(4, NE): add(wq_dma(i))
        n = {0: 8, 1: 8, 2: 8, 3: 4 + min(NE, 4), 4: NE}.get(s)
        for i, (m, l) in enumerate(dm):
            if m: (pre if i == 0 else gaps[i - 1]).append(m)
            gaps[i].append(l)
        if s < 6:
            wr = w_reads(s + 1)
            for i, (p, q) in enumerate(((0, 3), (3, 6), (6, 9), (9, 12), (12, 16))): gaps[i] += wr[p:q]
            if s <= 4: gaps[OPT['xg']] += [f's_waitcnt vmcnt({n})'] + x_reads(s + 2)
            gaps[7] += [f's_waitcnt lgkmcnt({4 if s == 4 and OPT["s6"] != 4 else 0})']
        if s == OPT['s6'] and (OPT['uw'] == 6 or OPT['cw'] == 6): gaps[6] += [f'v_mov_b32 v{V_T}, 6', f'ds_write_b32 v{V_OWN}, v{V_T}']
        if s == 5:
            gaps[7] += [f'v_add_u32 v31, 16, v{V_GRP}', f'ds_read_b32 v31, v31']
        if s == 6 and NE == 7:
            gaps[OPT['qa']] += ['s_waitcnt vmcnt(0)', f'v_mov_b32 v{V_T}, 7', f'ds_write_b32 v{V_OWN}, v{V_T}']
        e('\n'.join(pre))
        if OPT['gx'] & 1 or vpart == 2: M = ['s_nop 0'] * 8
        if OPT['gx'] & 2 or vpart == 2: gaps = [[x for x in g if 'tr_b16' not in x] for g in gaps]
        for i in range(8):
            e(M[i]); e('\n'.join(gaps[i]))
        stamp(14 + s)
if OPT['tskip']:
    sec('gt'); e('L_gemm_t:'); gemm1(2); e('s_branch L_gemm_done'); sec('mha')
else: SEC['gt'] = []
gemm1(False)
e('s_branch L_gemm_done\nL_gemm_v:')
gemm1(True)
e('L_gemm_done:')
stamp(3)
e(f"""s_add_u32 s{sS1}, s{sSt}, s{sS2}
s_add_u32 s{sXb}, s{sSt}, {4*KS}
s_add_u32 s{sCw}, s{sS1}, {4*KS}
s_cmp_eq_u32 s{S_C}, 7
s_waitcnt lgkmcnt(0)
s_cbranch_scc1 L_nokv
s_nop 4""")
for q, so in enumerate((sSt, sS1, sXb, sCw)):
    for i in range(4*q, 4*q+4):
        e(f'v_cvt_pk_bf16_f32 v{VPK + i}, v{VACC + 2*i}, v{VACC + 2*i + 1}')
    e(f'buffer_store_dwordx4 {vr(VPK+4*q,4)}, v{vSt}, {sr(SRD_WS)}, s{so} offen sc1')
if OPT['ones']:
    e(f'''s_branch L_kvst
    L_nokv:
    v_mov_b64 v[128:129], s[78:79]
    v_mov_b64 v[130:131], s[78:79]
    v_lshlrev_b32 v132, 4, v{V_LANE}
    s_lshl2_add_u32 s{sTmp}, s{S_TILE}, s{S_W}
    s_lshl_b32 s{sTmp}, s{sTmp}, 8
    s_mul_i32 s{sTmp2}, s{S_HG}, {QS}
    s_add_u32 s{sTmp}, s{sTmp}, s{sTmp2}
    s_add_u32 s{sTmp}, s{sTmp}, {WS_V + 112*QS}
    s_mov_b64 exec, 0xffff
    buffer_store_dwordx4 v[128:131], v132, {sr(SRD_WS)}, s{sTmp} offen sc1
    s_mov_b64 exec, -1
    L_kvst:''')
else: e('L_nokv:')
assert OPT['wgf'] and OPT['ones'] and OPT['pf'] == 2
def kv_loads(buf, i, srdn=SRD_C):
    return [f'buffer_load_dwordx4 {vr(VK + 8*buf, 4)}, v{vKo0}, {sr(srdn)}, s{sK} offen offset:{512*i} sc1',
            f'buffer_load_dwordx4 {vr(VK + 8*buf + 4, 4)}, v{vKo1}, {sr(srdn)}, s{sK} offen offset:{512*i} sc1',
            f'buffer_load_dwordx4 {vr(VV + 8*buf, 4)}, v{vVo}, {sr(srdn)}, s{sV} offen offset:{256*i} sc1',
            f'buffer_load_dwordx4 {vr(VV + 8*buf + 4, 4)}, v{vVo}, {sr(srdn)}, s{sV} offen offset:{256*i + 128} sc1']
fill = [f'v_mov_b64 {vr(VV+2*i,2)}, s[78:79]' for i in range(12, 16)] + [f'v_subrev_u32 v{vRr}, {L_X - L_RB}, v{vQw}', 's_mov_b64 s[80:81], -1']
for s in range(3):
    fill += f"""s_add_u32 s{sTmp}, s{S_W}, {1+s}
    s_and_b32 s{sTmp}, s{sTmp}, 3
    s_sub_u32 s{sTmp}, s{sTmp}, s{S_W}
    s_mul_i32 s{sTmp}, s{sTmp}, 12288
    v_add_u32 v{vQx[s]}, s{sTmp}, v{vQw}
    v_subrev_u32 v{vRb[s]}, {L_X - L_RB - 4096*s}, v{vQx[s]}""".split('\n')
def count_in(n):
    e(f"""v_mov_b32 v{V_T}, 1
    v_mov_b32 v31, 0
    s_waitcnt vmcnt({n})
    s_mov_b64 exec, 1
    ds_add_rtn_u32 v{vSt}, v31, v{V_T} offset:32
    s_mov_b64 exec, -1""")
def count_out(n):
    e(f's_waitcnt lgkmcnt({n})\nv_readfirstlane_b32 s{sTmp2}, v{vSt}\ns_cmp_lg_u32 s{sTmp2}, 3\ns_cbranch_scc1 L_nopub')
    publish(sFl, 31)
    e('L_nopub:'); stamp(5)
NM = max(NE, OPT['wq_mid'])
for st in range(NE, NM): e('\n'.join(wq_dma(st)))
stamp(4)
e(f'v_cmp_gt_u32 vcc, 1, v31\ns_cbranch_vccz L_eok\nv_add_u32 v31, 16, v{V_GRP}')
lwait(1, addr=31)
e('L_eok:')
if NE < 7:
    e('\n'.join(fill)); fill = []
    count_in(NM - NE)
    if NM == 7:
        e('s_waitcnt vmcnt(0)'); arrive(7); count_out(1)
    else:
        count_out(0)
        for st in range(NM, 7): e('\n'.join(wq_dma(st)))
        e('s_waitcnt vmcnt(0)'); arrive(7)
lwait(7)
stamp(6)
QB = [80, 84, 88, 92, 112, 116, 120, 124]
def q_reads(k):
    s, ks = divmod(k, 4)
    return [f'ds_read_b64_tr_b16 {vr(QB[k%8] + 2*hf, 2)}, v{vQr} offset:{ks*12288 + s*1024 + hf*256}' for hf in range(2)]
for k in range(6): e('\n'.join(q_reads(k)))
e('\n'.join(fill[:12])); fill = fill[12:]
zi = 0
PK = OPT['pubk'] if NE == 7 else -99
for k in range(28):
    extra = 1 if PK < k <= PK + 5 else 0
    e(f's_waitcnt lgkmcnt({min(10, 2*(27-k)) + extra})')
    e(f'v_mfma_f32_32x32x16_bf16 {vr(VACC,16)}, {vr(QB[k%8], 4)}, {vr(VX + 4*k, 4)}, {"0" if k == 0 else vr(VACC,16)}')
    if k + 6 < 28: e('\n'.join(q_reads(k + 6)))
    while zi < 40 and VX + 2*zi + 1 < VX + 4*k - 4 and zi < 2*k:
        e(f'v_mov_b64 {vr(VX + 2*zi, 2)}, 0'); zi += 1
    if k >= 22 or k < 2:
        e('\n'.join(fill[:4])); fill = fill[4:]
    if k == PK: count_in(0)
    if k == PK + OPT['wgf']: count_out(2*OPT['wgf'])
    if k == OPT['pollk']: e(f'buffer_load_dword v31, v{vFl}, {sr(SRD_WS)}, 0 offen sc1')
    if k == OPT['chkk']:
        e(f's_waitcnt vmcnt(0)\nv_cmp_ne_u32 vcc, s{S_NONCE}, v31\ns_mov_b64 s[80:81], vcc\ns_cbranch_vccnz L_kv_late')
        for t in range(2): e('\n'.join(kv_loads(t, t)))
        e('L_kv_late:')
assert zi == 40 and VX == VS + 48 and not fill
stamp(7)
e('s_nop 11')
for r in range(16):
    m = vA if r < 4 else (vB if r >= 12 else vC)
    e(f'v_mul_f32 v{VACC + r}, v{m}, v{VACC + r}')
for i in range(8):
    e(f'v_cvt_pk_bf16_f32 v{VQ + 24 + i}, v{VACC + 2*i}, v{VACC + 2*i + 1}')
e(f"""ds_write_b128 v{vQw}, {vr(VQ+24,4)}
ds_write_b128 v{vQw}, {vr(VQ+28,4)} offset:1024""")
arrive(8)
lwait(8)
for s in range(3):
    e(f'ds_read_b128 {vr(VQ+8*s,4)}, v{vQx[s]}\nds_read_b128 {vr(VQ+8*s+4,4)}, v{vQx[s]} offset:1024')
PF = OPT['pf']
if OPT['chkk'] < 28: e('s_cmp_eq_u64 s[80:81], 0\ns_cbranch_scc1 L_kv_done')
poll(vFl, first_issued=OPT['pollk'] < 28 and OPT['chkk'] > 27, reg=31, sleep=OPT['ksleep'])
for t in range(PF): e('\n'.join(kv_loads(t, t)))
e('L_kv_done:')
stamp(8)
OM = OPT['omode']
if OM:
    e(f'''s_lshr_b32 s{sTmp}, s{S_O0}, 3
    s_add_u32 s{sTmp2}, s{S_O0}, 3
    s_lshr_b32 s{sTmp2}, s{sTmp2}, 3
    s_sub_u32 s{sTmp2}, s{sTmp2}, s{sTmp}
    s_lshl_b32 s{sTmp2}, s{sTmp2}, 6
    s_lshl_b32 s{sTmp}, s{sTmp}, 6
    s_lshl2_add_u32 s{sSt}, s{S_TILE}, s{S_W}
    s_add_u32 s{sTmp}, s{sTmp}, s{sSt}
    s_lshl_b32 s{sTmp}, s{sTmp}, {FSH}
    s_add_u32 s{sTmp}, s{sTmp}, {F_Y}
    v_and_b32 v{vFl}, 1, v{V_LANE}
    v_mul_u32_u24 v{vFl}, s{sTmp2}, v{vFl}
    v_and_b32 v31, 2, v{V_LANE}
    v_lshl_add_u32 v{vFl}, v31, 8, v{vFl}
    v_lshl_add_u32 v{vFl}, v{vFl}, {FSH}, s{sTmp}''')
def qk(buf, slot, js):
    d = vr(VS + 16*slot, 16)
    return f'v_mfma_f32_32x32x16_bf16 {d}, {vr(VK + 8*buf + 4*js, 4)}, {vr(VQ + 8*slot + 4*js, 4)}, {"0" if js == 0 else d}'
def pv(buf, slot, js):
    return f'v_smfmac_f32_32x32x32_bf16 {vr(VO + 16*slot, 16)}, {vr(VV + 8*buf + 4*js, 4)}, {vr(VS + 16*slot + 8*js, 8)}, v{vIdx}'
def exps(s): return [f'v_exp_f32 v{VS + 16*s + r}, v{VS + 16*s + r}' for r in range(16)]
SPREAD = []
def unit(t, s):
    ex = exps(s)
    if OPT['ax'] & 16 and s in (0, 1, 2):
        pass
    nb = t if s < 3 else (t + 1) & 3
    pb = t if s > 0 else (t - 1) & 3
    if s == 3: e(f's_waitcnt vmcnt({4*PF-4})')
    e(qk(nb, (s+1) & 3, 0)); e('\n'.join(ex[0:4]))
    e(qk(nb, (s+1) & 3, 1)); e('\n'.join(ex[4:8]))
    e(pv(pb, (s-1) & 3, 0))
    if s == 1:
        kl = kv_loads((t + PF) & 3, t + PF)
        if OPT['ax'] & 1: kl = [x for x in kl if 'exec' not in x]
        if OPT['ax'] & 2: kl = [x for x in kl if 'buffer' not in x]
        if OPT['ax'] & 4: kl = [x.replace(' sc1', '') for x in kl]
        if OPT['ax'] & 8: SPREAD.extend(kl); kl = []
        e('\n'.join(kl))
        if t == 3 - PF:
            e(f's_cmp_eq_u32 s{sIt}, 3\ns_cselect_b32 s{SRD_C+2}, 0, s{SRD_C+2}')
        if t == 3:
            e(f's_add_u32 s{sK}, s{sK}, 2048\ns_add_u32 s{sV}, s{sV}, 1024\ns_add_u32 s{sIt}, s{sIt}, 1\ns_cmp_lg_u32 s{sIt}, 4')
    e('\n'.join(ex[8:12]))
    e(pv(pb, (s-1) & 3, 1)); e('\n'.join(ex[12:16]))
e(f's_mov_b32 s{sIt}, 0\ns_waitcnt vmcnt({4*PF - 4}) lgkmcnt(0)')
stamp(9)
e(qk(0, 0, 0)); e(qk(0, 0, 1))
e(f"s_setprio {OPT['pa']}\ns_nop 8\ns_branch L_att_in" if OPT['prio'] else 's_nop 9\ns_branch L_att_in')
e('L_att:')
unit(3, 2); unit(3, 3)
e('L_att_in:')
for t in range(4):
    for s in range(4):
        if (t, s) < (3, 2): unit(t, s)
e('s_cbranch_scc1 L_att')
if OPT['prio']: e(f"s_setprio {OPT['pm']}")
if OM: e(f'buffer_load_dword v31, v{vFl}, {sr(SRD_WS)}, 0 offen sc1')
def rbw(s): return [f'ds_write_b128 v{vRb[s]}, {vr(VO + 16*s + 4*i, 4)} offset:{1024*i}' for i in range(4)]
ex = exps(2); w0 = rbw(0)
e(qk(3, 3, 0)); e('\n'.join(ex[0:4])); e(qk(3, 3, 1)); e('\n'.join(ex[4:7] + [w0[0]]))
e(pv(3, 1, 0)); e('\n'.join(ex[7:10] + [w0[1]])); e(pv(3, 1, 1)); e('\n'.join(ex[10:13] + [w0[2]] + ex[13:16] + [w0[3]]))
ex = exps(3); w1 = rbw(1); w2 = rbw(2)
e(pv(3, 2, 0)); e('\n'.join(ex[0:3])); e(pv(3, 2, 1))
e('\n'.join([w1[0]] + ex[3:5] + [w1[1]] + ex[5:7] + [w1[2]] + ex[7:9] + [w1[3]] + ex[9:10]))
e(pv(3, 3, 0))
e('\n'.join([w2[0]] + ex[10:12] + [w2[1]] + ex[12:14] + [w2[2]] + ex[14:16] + [w2[3]]))
arrive(9)
e(pv(3, 3, 1))
stamp(10)
lwait(9)
for i in range(12): e(f'ds_read_b128 {vr(VS + 4*i, 4)}, v{vRr} offset:{1024*i}')
OA = VO + 48
for s in range(3):
    e(f's_waitcnt lgkmcnt({8 - 4*s})')
    for i in range(8): e(f'v_pk_add_f32 {vr(OA+2*i,2)}, {vr(OA+2*i,2)}, {vr(VS+16*s+2*i,2)}')
e(f's_mov_b32 s{sIt}, {1 if OPT["force_fb"] else 0}')
e(f'''L_norm:
v_cndmask_b32 v{vA}, v{OA+12}, v{OA}, s[{sOdd}:{sOdd+1}]
v_max3_f32 v{vC}, abs(v{OA}), abs(v{OA+1}), abs(v{OA+2})
v_mov_b32 v{vB}, v{vA}
v_max3_f32 v{vC}, abs(v{OA+3}), abs(v{OA+4}), v{vC}
v_max3_f32 v{vC}, abs(v{OA+5}), abs(v{OA+6}), v{vC}
v_permlane32_swap_b32 v{vA}, v{vB}
v_max3_f32 v{vC}, abs(v{OA+7}), abs(v{OA+8}), v{vC}
v_cndmask_b32 v{vB}, v{vB}, v{vA}, s[{sOdd}:{sOdd+1}]
v_max3_f32 v{vC}, abs(v{OA+9}), abs(v{OA+10}), v{vC}
v_rcp_f32 v{vA}, v{vB}
v_max3_f32 v{vC}, abs(v{OA+11}), abs(v{OA+12}), v{vC}
v_max3_f32 v{vC}, abs(v{OA+13}), abs(v{OA+14}), v{vC}
v_max_f32 v{vC}, abs(v{OA+15}), v{vC}
v_cmp_nle_f32 vcc, 0x30800000, v{vB}
s_mov_b64 s[78:79], vcc
v_cmp_nge_f32 vcc, 0x4e800000, v{vB}
s_or_b64 s[78:79], s[78:79], vcc
v_cmp_ngt_f32 vcc, 0x7f000000, v{vC}
s_or_b64 vcc, s[78:79], vcc''')
if OPT['force_fb']:
    e(f's_cmp_eq_u32 s{sIt}, 1\ns_cbranch_scc1 L_fb')
e('s_cbranch_vccnz L_fb0\nL_norm2:')
for i in range(8): e(f'v_pk_mul_f32 {vr(OA+2*i,2)}, {vr(OA+2*i,2)}, {vr(vA,2)} op_sel_hi:[1,0]')
for i in range(8): e(f'v_cvt_pk_bf16_f32 v{VS+i}, v{OA+2*i}, v{OA+2*i+1}')
if OM: poll(vFl, first_issued=2, reg=31)
o_stores(VS, VS + 4, '')
stamp(11)
if OM == 4: publish(sFo, vA)
if OPT['obar'] == 1: e('s_barrier')
if OPT['obar'] >= 3: e(f"s_waitcnt vmcnt({5 - OPT['obar'] + (OM == 4)})\ns_barrier")
if OM == 0:
    e('s_waitcnt vmcnt(0)'); publish(sFo, vA)
if OPT['obar'] == 2: e('s_barrier')
stamp(12)
prof_out()
e('s_endpgm')

for tag, st in SPIN:
    e(f'L_ws_{tag}:'); lwait(st); e(f's_branch L_wb_{tag}')
sec('fb')
e(f'''L_fb0:
s_cmp_eq_u32 s{sIt}, 2
s_cbranch_scc1 L_norm2
L_fb:
s_waitcnt vmcnt(0)
s_mul_i32 s{sTmp}, s{S_O0}, {KS}
s_add_u32 s{sK}, s{sTmp}, {WS_K}
s_add_u32 s{sV}, s{sTmp}, {WS_V}
v_mov_b32 v{vC}, 0xff800000
s_mov_b32 s{sIt}, 0
L_fb1:''')
e('\n'.join(kv_loads(0, 0, SRD_WS)[:2]))
e('s_waitcnt vmcnt(0)')
e(qk(0, 3, 0)); e(qk(0, 3, 1)); e('s_nop 11')
for i in range(8): e(f'v_max3_f32 v{vC}, v{VS+48+2*i}, v{VS+49+2*i}, v{vC}')
e(f'''s_add_u32 s{sK}, s{sK}, 512
s_add_u32 s{sIt}, s{sIt}, 1
s_cmp_lg_u32 s{sIt}, 64
s_cbranch_scc1 L_fb1
v_mov_b32 v{vA}, v{vC}
s_sub_u32 s{sK}, s{sK}, 0x8000
s_mov_b32 s{sIt}, 0
v_permlane32_swap_b32 v{vA}, v{vC}
v_max_f32 v{vC}, v{vA}, v{vC}''')
for i in range(8): e(f'v_mov_b64 {vr(OA+2*i,2)}, 0')
e('L_fb2:')
e('\n'.join(kv_loads(0, 0, SRD_WS)))
e('s_waitcnt vmcnt(0)')
e(qk(0, 3, 0)); e(qk(0, 3, 1)); e('s_nop 11')
for i in range(16): e(f'v_sub_f32 v{VS+48+i}, v{VS+48+i}, v{vC}')
for i in range(16): e(f'v_exp_f32 v{VS+48+i}, v{VS+48+i}')
e('s_nop 1')
e(pv(0, 3, 0)); e(pv(0, 3, 1))
e(f'''s_add_u32 s{sK}, s{sK}, 512
s_add_u32 s{sV}, s{sV}, 256
s_add_u32 s{sIt}, s{sIt}, 1
s_cmp_lg_u32 s{sIt}, 64
s_cbranch_scc1 L_fb2
s_mov_b32 s{sIt}, 2
s_nop 11
s_branch L_norm''')

sD0, sD, sHw, sDs, sTab, sA, sB, sLd, sSk, sIt2, sFlU, sInv, sUns, sSel, sUl, sOl, sCh0 = range(60, 77)
sUs, sOut, sHm = 78, 80, 82
sE2, sP, sE3, sKd = 84, 85, 86, 87
OUTM = 'sc1' if OPT['outsc'] & 1 else ''
OUTM2 = 'sc1' if OPT['outsc'] & 2 else ''
a0, a1, a2, a3 = 5, 6, 7, 9
vPar = 10
vKc = 18
vRa, vRb_, vKd, vKd1, vKa, vKa0, vFu, vE1, vE1b, vFr, vKxo, vKxp, vPair, vRz, vBk, vA0, vA1, vKb, vSB, vSB0 = range(20, 40)
vSel = 180
vAc = 40
vOne, vScl, vAdd, vC0 = range(56, 60)
vOp = 64
vY = 128
vXt = 144
vAn = 166
vX1 = 172
T0, T1 = 160, 176
vZ = 192
U = 204
vZer = 220
vUa, vCd, vG_, vZp, vKp, vF_, vL16, vXo, vXp, vTr, vYl, vYs, vFy = range(224, 237)
vWoD = 238
vWoR = 240
vOl, vFo, vBw, vBr, vOut = range(242, 247)
def hi():
    if OPT['prio']: e('s_setprio 3')
KG = [True]
def lo():
    if OPT['prio']: e(f"s_setprio {OPT['kgp'] if KG[0] else OPT['ps']}")
ROLE[0] = 1
sec('ssm0')
e(f"""s_cmp_{'eq' if OPT['only'] != 2 else 'le'}_u32 s{S_C}, 7
s_cbranch_scc1 L_ssm_idle
s_lshr_b32 s{sDs}, s{S_W}, 1
s_lshl_b32 s{sD0}, s{S_C}, 6
s_lshl1_add_u32 s{sD0}, s{S_J}, s{sD0}
s_add_u32 s{sD}, s{sD0}, s{sDs}
s_mul_i32 s{sTab}, s{S_W}, {TABSZ}
s_add_u32 s{sTab}, s{sTab}, {L_TAB}
s_lshl1_add_u32 s{sA}, s{sD0}, s{S_W}
s_lshl_b32 s{sA}, s{sA}, 8
v_lshl_add_u32 v{a0}, v{V_LANE}, 2, s{sA}
s_mov_b32 m0, s{sTab}
s_lshl_b32 s{sB}, s{sD0}, 1
s_waitcnt lgkmcnt(0)
s_load_dword s{sLd}, s[14:15], s{sB}
s_load_dword s{sSk}, s[16:17], s{sB}
global_load_dword v{vPar+0}, v{a0}, s[6:7]
global_load_dword v{vPar+1}, v{a0}, s[8:9]
global_load_dword v{vPar+2}, v{a0}, s[10:11]
global_load_dword v{vPar+3}, v{a0}, s[12:13]
global_load_dword v{vPar+4}, v{V_T}, s[28:29]""")
if OPT['tlb'] != 2: e('s_barrier')
if OPT['tlb']:
    e(f'''v_and_b32 v{a0}, 7, v{V_LANE}
    v_min_u32 v{a0}, 5, v{a0}
    v_lshlrev_b32 v{a0}, 21, v{a0}
    v_add_u32 v{a0}, 0xf8000, v{a0}
    v_mov_b32 v{a1}, 0
    global_load_dword v8, v{a0}, s[28:29]
    global_load_dword v8, v{a1}, s[22:23]''')
if OPT['tlb'] == 2: e('s_barrier')
e('s_branch L_ssm')
sec('ssm')
e('L_ssm:')
if OPT['abl'] == 1:
    arrive(1); e('s_waitcnt vmcnt(0) lgkmcnt(0)\ns_endpgm')
lo()
srd(SRD_WS, 28, WS_SIZE)
e(f"""s_and_b32 s{sHw}, s{S_W}, 1
v_add_u32 v{V_GRP}, 16, v{V_GRP}
v_and_b32 v{a0}, 15, v{V_LANE}
v_lshrrev_b32 v{a1}, 4, v{V_LANE}
v_lshl_add_u32 v{vRb_}, v{a1}, 4, s{sTab}
v_mul_u32_u24 v{a2}, {TROW}, v{a0}
v_add_u32 v{vRa}, v{a2}, v{vRb_}
v_lshlrev_b32 v{vL16}, 4, v{V_LANE}
v_mov_b32 v{vOne}, 0x3c00
ds_write_addtid_b32 v{vOne}""")
for i in range(8): e(f'v_mov_b64 {vr(vAc+2*i,2)}, 0')
mid = f"""v_and_b32 v{a0}, 7, v{V_LANE}
s_and_b32 s{sB}, s2, {OPT['ur'] - 1}
s_lshl2_add_u32 s{sB}, s{sB}, s{S_W}
s_mul_i32 s{sB}, s{sB}, {8*US}
s_add_u32 s{sB}, s{sB}, {F_U}
v_mul_u32_u24 v{vFu}, {US}, v{a0}
v_add_u32 v{vFu}, s{sB}, v{vFu}
s_mul_i32 s{sP}, s{sDs}, {P_SZ}
s_add_u32 s{sP}, s{sP}, {L_TAB}
s_add_u32 s{sKd}, s{sP}, {P_KD}
s_lshl_b32 s{sB}, s{sHw}, 8
s_add_u32 s{sInv}, s{sB}, s{sKd}
s_add_u32 s{sA}, s{sInv}, {1088 + 128}
v_lshl_add_u32 v{vRz}, v{a0}, 4, s{sA}
v_mov_b32 v{vKb}, s{sKd}
v_and_b32 v{a0}, 15, v{V_LANE}
v_lshrrev_b32 v{a1}, 4, v{V_LANE}
s_lshl_b32 s{sA}, s{sHw}, 4
v_add_u32 v{a0}, s{sA}, v{a0}
v_and_b32 v{a3}, 1, v{V_LANE}
v_mul_u32_u24 v{a2}, 255, v{a3}
v_sub_u32 v{a2}, v{a2}, v{a0}
s_add_u32 s{sA}, s{sKd}, {1088 + 32}
v_add_u32 v{vKa}, s{sA}, v{a2}
v_add_u32 v{vKa0}, 96, v{vKa}
s_lshl3_add_u32 s{sA}, s{sDs}, 16
v_lshl_add_u32 v{vPair}, v{a3}, 2, s{sA}
s_mul_i32 s{sA}, s{sHw}, {1088 + 112 - 1024}
s_add_u32 s{sA}, s{sA}, s{sKd}
s_add_u32 s{sA}, s{sA}, 1024
v_writelane_b32 v{vKa0}, s{sA}, 0
s_mul_i32 s{sA}, s{sHw}, 56
s_sub_u32 s{sA}, s{sKd}, s{sA}
s_add_u32 s{sA}, s{sA}, 1088
v_writelane_b32 v{vKa0}, s{sA}, 16
v_max_u32 v{a2}, 1, v{a1}
v_sub_u32 v{a2}, 5, v{a2}
v_lshlrev_b32 v{a0}, v{a2}, v{a0}
v_lshlrev_b32 v{a2}, 3, v{a1}
s_mov_b32 s{sA}, 0x60400100
v_bfe_u32 v{a1}, s{sA}, v{a2}, 8
v_lshl_add_u32 v{a0}, v{a1}, 3, v{a0}
v_add_u32 v{vKd}, s{sKd}, v{a0}
s_mov_b32 s{sA}, 0x80040404
v_bfe_u32 v{a1}, s{sA}, v{a2}, 8
v_add_u32 v{vKd1}, v{a1}, v{vKd}
v_lshrrev_b32 v{a1}, 1, v{V_LANE}
v_lshlrev_b32 v{vUa}, 6, v{a1}
v_lshl_add_u32 v{vUa}, v{a3}, 4, v{vUa}
s_lshr_b32 s{sA}, s{sD0}, 2
s_mul_i32 s{sA}, s{sA}, {QS}
s_and_b32 s{sB}, s{sD0}, 3
s_lshl4_add_u32 s{sA}, s{sB}, s{sA}
s_lshl_b32 s{sB}, s{S_W}, 12
s_add_u32 s{sA}, s{sA}, s{sB}
s_add_u32 s{sUl}, s{sA}, {WS_U}
v_and_b32 v{a1}, 3, v{a1}
v_lshl_add_u32 v{a1}, v{a3}, 2, v{a1}
v_mul_u32_u24 v{a1}, {PS}, v{a1}
v_lshrrev_b32 v{a2}, 3, v{V_LANE}
v_lshl_add_u32 v{a1}, v{a2}, 4, v{a1}
s_lshl_b32 s{sA}, s{S_W}, 8
s_add_u32 s{sA}, s{sA}, {L_KP + 512}
v_add_u32 v{vKp}, s{sA}, v{a1}
; byte selectors that expand the distinct taps to the lags (lag l uses the tap at bf16(l), as in the reference)
v_lshrrev_b32 v{a1}, 5, v{V_LANE}
s_lshl_b32 s{sA}, s{sHw}, 1
v_max_u32 v{a0}, s{sA}, v{a1}
v_min_u32 v{a2}, 1, v{a0}
v_mul_u32_u24 v{a2}, 0x0202, v{a2}
v_lshlrev_b32 v{a2}, 16, v{a2}
v_sub_u32 v{vSel}, 0x03020100, v{a2}
v_mul_u32_u24 v{a2}, 0x0202, v{a0}
v_lshl_or_b32 v{a2}, v{a2}, 16, v{a2}
v_sub_u32 v{vSel+1}, 0x07060504, v{a2}
s_mul_i32 s{sA}, s{sHw}, 0x02020202
v_add_u32 v{vSel+2}, s{sA}, v{vSel}
s_mul_i32 s{sA}, s{sHw}, 0x02020404
v_add_u32 v{vSel+3}, s{sA}, v{vSel+1}
v_lshrrev_b32 v{a2}, v{a0}, v{vL16}
s_movk_i32 s{sA}, 256
v_lshl_add_u32 v{a2}, s{sA}, v{a0}, v{a2}
s_sub_u32 s{sA}, s{sKd}, 256
v_add_u32 v{vE1}, s{sA}, v{a2}
v_lshlrev_b32 v{a2}, 2, v{a0}
v_sub_u32 v{vE1b}, v{vE1}, v{a2}
s_mov_b32 s{sA}, 0x0c0c0c0c
s_cmp_lg_u32 s{sHw}, 0
s_cselect_b32 s{sE2}, 0x01000100, s{sA}
s_cselect_b32 s{sE3}, 0x05040302, s{sA}
v_mov_b32 v{vSel+4}, s{sA}
v_mov_b32 v{vSel+5}, s{sA}
v_mov_b32 v{vSel+6}, s{sA}
v_mov_b32 v{vSel+7}, s{sA}
s_mov_b32 s{sA}, 0x05040504
s_mov_b64 exec, 15
v_mov_b32 v{vSel+4}, s{sA}
v_mov_b32 v{vSel+5}, s{sA}
v_mov_b32 v{vSel+6}, s{sA}
s_mov_b64 exec, -1
v_writelane_b32 v{vSel+7}, s{sA}, 3
s_mov_b32 s{sA}, 0x05040302
v_writelane_b32 v{vSel+4}, s{sA}, 3
s_mov_b32 s{sA}, 0x0c0c0504
v_writelane_b32 v{vSel+6}, s{sA}, 0
v_writelane_b32 v{vSel+7}, s{sA}, 2
s_mul_i32 s{sA}, s{S_W}, {2*PS}
s_add_u32 s{sA}, s{sA}, {L_KP}
v_mul_u32_u24 v{a2}, {PS - 512}, v{a1}
v_add3_u32 v{vG_}, v{a2}, v{vL16}, s{sA}
v_mov_b64 {vr(vZer,2)}, 0
v_mov_b64 {vr(vZer+2,2)}, 0
ds_write_b128 v{vG_}, {vr(vZer,4)}
s_lshl_b32 s{sA}, s{sHw}, 10
s_add_u32 s{sB}, s{sP}, {P_UC}
s_add_u32 s{sA}, s{sA}, s{sB}
s_add_u32 s{sA}, s{sA}, 64
v_add_u32 v{vCd}, s{sA}, v{vL16}
v_and_b32 v{a3}, 3, v{V_LANE}
v_and_b32 v{a0}, 0x1c, v{V_LANE}
v_lshlrev_b32 v{a2}, 2, v{a0}
v_and_b32 v{vZp}, 0x30, v{a2}
s_mov_b32 exec_hi, 0
v_add_u32 v{vZp}, 2112, v{a2}
s_mov_b64 exec, -1
v_mul_u32_u24 v{a2}, {UC_S}, v{a3}
v_add3_u32 v{vZp}, v{vZp}, v{a2}, s{sB}
v_lshlrev_b32 v{a0}, 1, v{a0}
v_sub_u32 v{a0}, v{a0}, v{a2}
v_lshlrev_b32 v{a1}, 4, v{a1}
v_sub_u32 v{a0}, v{a0}, v{a1}
s_lshl_b32 s{sA}, s{sHw}, 5
s_sub_u32 s{sB}, s{sB}, s{sA}
s_add_u32 s{sB}, s{sB}, {56 + 3*UC_S}
v_add_u32 v{vF_}, s{sB}, v{a0}
v_add_u32 v{vG_}, {512 - 80}, v{vG_}
v_add_u32 v{vKxo}, s{sTab}, v{vL16}
s_xor_b32 s{sA}, s{S_W}, 1
s_mul_i32 s{sA}, s{sA}, {TABSZ}
s_add_u32 s{sA}, s{sA}, {L_TAB}
v_add_u32 v{vKxp}, s{sA}, v{vL16}
v_and_b32 v{a0}, 31, v{V_LANE}
v_lshlrev_b32 v{a2}, 2, v{a0}
v_sub_u32 v{a2}, v{a1}, v{a2}
s_add_u32 s{sA}, s{sInv}, {1088 + 124}
v_add_u32 v{vBk}, s{sA}, v{a2}
"""
e(mid)
stamp(22)
e(f"""s_waitcnt lgkmcnt(0)
s_lshl_b32 s{sA}, s{sDs}, 4
s_lshr_b32 s{sLd}, s{sLd}, s{sA}
s_lshl_b32 s{sLd}, s{sLd}, 16
s_lshr_b32 s{sSk}, s{sSk}, s{sA}
s_lshl_b32 s{sSk}, s{sSk}, 16
v_mov_b32 v{a0}, s{sLd}
v_mul_f32 v{a0}, 0x3fb8aa3b, v{a0}
v_exp_f32 v{a0}, v{a0}
s_cmp_eq_u32 s{sHw}, 0
s_cselect_b32 s{sSk}, s{sSk}, 0
v_cvt_pk_bf16_f32 v{a0}, v{a0}, v{a0}
v_and_b32 v{vScl}, 0xffff0000, v{a0}
v_mul_f32 v{vKc}, 0xbfb8aa3b, v{vScl}
v_mul_f32 v{vKc+1}, 0.15915494, v{vScl}
v_mov_b32 v{vAdd}, 0
v_add_f32 v{vScl}, v{vScl}, v{vScl}
v_writelane_b32 v{vAdd}, s{sSk}, 0
s_mov_b32 s{sIt2}, 0
s_mov_b32 s{sSel}, 0x01000c0c""")
stamp(0)
e(f"""s_waitcnt vmcnt({3 if OPT['tlb'] else 1})
v_and_b32 v{a0}, 0x7f807f80, v{vPar+2}
v_and_b32 v{a1}, 0x7f807f80, v{vPar+3}
v_pk_max_u16 v{a0}, v{a0}, v{a1}
v_lshlrev_b32 v{a1}, 16, v{a0}
v_max_u32 v{a0}, v{a0}, v{a1}""")
for q, n in enumerate((1, 2, 4, 8)):
    e(f's_nop 1\nv_max_u32_dpp v{a0}, v{a0}, v{a0} row_ror:{n} row_mask:0xf bank_mask:0xf')
e(f"""s_nop 0
v_readlane_b32 s{sA}, v{a0}, 0
v_readlane_b32 s{sB}, v{a0}, 16
v_readlane_b32 s{sInv}, v{a0}, 32
v_readlane_b32 s{sUns}, v{a0}, 48
s_max_u32 s{sA}, s{sA}, s{sB}
s_max_u32 s{sUns}, s{sUns}, s{sInv}
s_max_u32 s{sUns}, s{sUns}, s{sA}
s_and_b32 s{sUns}, s{sUns}, 0x7f800000
s_min_u32 s{sUns}, s{sUns}, 0x7e800000
s_sub_u32 s{sInv}, 0x7f000000, s{sUns}
v_mul_f32 v{vScl}, s{sUns}, v{vScl}
v_mul_f32 v{vSB}, 0x43000000, v{vScl}
v_mov_b32 v{vSB0}, v{vSB}
s_mov_b64 exec, 1
v_mov_b32 v{vSB0}, v{vScl}
s_mov_b64 exec, -1""")
stamp(1)
if OPT['abl'] == 2: e('s_endpgm')
def cm(jobs, conj):
    ng = 'neg_hi:[1,0,0]' if conj else 'neg_lo:[1,0,0]'
    return [f'v_pk_mul_f16 v{d}, v{x}, v{w} op_sel_hi:[1,0]' for d, x, w in jobs] + \
           [f'v_pk_fma_f16 v{d}, v{x}, v{w}, v{d} op_sel:[1,1,0] op_sel_hi:[0,1,1] {ng}' for d, x, w in jobs]
def wr(reg): return f'ds_write_addtid_b32 v{reg} offset:{TROW*(reg - vY)}'
assert vXt == vY + 16
zA, zB, tA, tB, pA, pB = vZ, vZ+2, vZ+4, vZ+6, vZ+8, vZ+10
X = vXt; Y = vY
an = {1: vAn, 2: vAn+1, 4: vAn+2, 8: Y+1, 16: Y+2, 32: Y+4, 64: Y+8, 128: X+21, 256: vAn+3, 512: vAn+4, 1024: vAn+5}
e('L_kg:')
stamp(14)
seq = f"""v_perm_b32 v{pA}, v{vPar}, v{vPar}, s{sSel}
v_mul_f32 v{pA}, 0x3fb8aa3b, v{pA}
v_exp_f32 v{pA}, v{pA}
v_perm_b32 v{pA+1}, v{vPar+1}, v{vPar+1}, s{sSel}
v_perm_b32 v{tA}, v{vPar+2}, v{vPar+2}, s{sSel}
v_perm_b32 v{tA+1}, v{vPar+3}, v{vPar+3}, s{sSel}
v_cvt_pk_bf16_f32 v{pA}, v{pA}, v{pA}
v_mul_f32 v{tA}, s{sInv}, v{tA}
v_and_b32 v{pA}, 0xffff0000, v{pA}
v_mul_f32 v{tA+1}, s{sInv}, v{tA+1}
v_pk_mul_f32 {vr(pA,2)}, {vr(pA,2)}, {vr(vKc,2)}
v_cvt_pk_f16_f32 v{X}, v{tA}, -v{tA+1}
v_mul_f32 v{pB}, 0x42800000, v{pA}
v_mul_f32 v{pB+1}, 0x42800000, v{pA+1}
v_exp_f32 v{pA}, v{pA}
v_fract_f32 v{pA+1}, v{pA+1}
v_exp_f32 v{pB}, v{pB}
v_fract_f32 v{pB+1}, v{pB+1}
v_cos_f32 v{zA}, v{pA+1}
v_sin_f32 v{zA+1}, v{pA+1}
v_cos_f32 v{zB}, v{pB+1}
v_sin_f32 v{zB+1}, v{pB+1}
v_pk_mul_f32 {vr(zA,2)}, {vr(zA,2)}, {vr(pA,2)} op_sel_hi:[1,0]
v_pk_mul_f32 {vr(zB,2)}, {vr(zB,2)}, {vr(pB,2)} op_sel_hi:[1,0]""".split('\n')
for st in range(6):
    chains = [(zA, tA, an[1 << st], st < 5)] + ([(zB, tB, an[64 << st], st < 4)] if st < 5 else [])
    for z, t, d, sq in chains:
        if sq: seq.append(f'v_pk_mul_f32 {vr(t,2)}, {vr(z,2)}, {vr(z,2)} op_sel_hi:[0,1]')
    for z, t, d, sq in chains: seq.append(f'v_cvt_pk_f16_f32 v{d}, v{z}, v{z+1}')
    for z, t, d, sq in chains:
        if sq: seq.append(f'v_pk_fma_f32 {vr(z,2)}, {vr(z,2)}, {vr(z,2)}, {vr(t,2)} op_sel:[1,1,0] op_sel_hi:[0,1,1] neg_lo:[1,0,0]')
seq += cm([(X+1, X, an[1]), (X+2, X, an[2]), (X+4, X, an[4]), (X+8, X, an[256]), (X+12, X, an[512]), (X+16, X, an[1024])], True)
seq += cm([(Y+3, Y+1, Y+2), (Y+12, Y+4, Y+8), (Y+5, Y+4, Y+1), (Y+6, Y+4, Y+2), (Y+9, Y+8, Y+1), (Y+10, Y+8, Y+2)], False)
seq += cm([(X+3, X+1, an[2]), (X+5, X+1, an[4]), (X+6, X+2, an[4]), (X+9, X+2, an[256]), (X+10, X+4, an[256]), (X+13, X+4, an[512]),
           (X+14, X+8, an[512]), (X+17, X+8, an[1024]), (X+18, X+12, an[1024]), (X+20, X+16, an[1024])], True)
seq += cm([(Y+7, Y+4, Y+3), (Y+11, Y+8, Y+3), (Y+13, Y+12, Y+1), (Y+14, Y+12, Y+2), (Y+15, Y+12, Y+3)], False)
seq += cm([(X+7, X+3, an[4]), (X+11, X+6, an[256]), (X+15, X+10, an[512]), (X+19, X+14, an[1024])], True)
e('\n'.join(seq))
stamp(15)
if OPT['kgw']:
    e(f'v_subrev_u32 v{a0}, 16, v{V_GRP}'); lwait(OPT['kgw'], addr=a0)
hi()
if OPT['abl'] != 4: e('\n'.join(wr(r) for r in range(Y + 1, X + 22)))
for k in range(4):
    o = vOp + 16*k
    e(f"""ds_read_b128 {vr(o,4)}, v{vRa} offset:{64*k}
    ds_read_b128 {vr(o+4,4)}, v{vRb_} offset:{37*TROW + 64*k}
    ds_read_b128 {vr(o+8,4)}, v{vRa} offset:{16*TROW + 64*k}
    ds_read_b128 {vr(o+12,4)}, v{vRa} offset:{32*TROW + 64*k}""")
if not OPT['uw']: e(f's_cmp_eq_u32 s{sIt2}, 0\ns_cbranch_scc1 L_kg_n\nbuffer_load_dword v{vFr}, v{vFu}, {sr(SRD_WS)}, 0 offen sc1\nL_kg_n:')
stamp(16)
def mf(c, a, b): return f'v_mfma_f32_16x16x32_f16 {vr(c,4)}, {vr(a,4)}, {vr(b,4)}, {vr(c,4)}'
late_m = []
for k in range(4):
    o = vOp + 16*k; y1 = vX1 + 4*(k & 1)
    p = cm([(y1+r, o+r, o+4+r) for r in range(4)], False)
    e(f's_waitcnt lgkmcnt({12 - 4*k})')
    e('\n'.join([mf(vAc, o+8, o)] + p[0:2] + late_m[:1] + p[2:4] + [mf(vAc+4, o+12, o)] + p[4:6] + late_m[1:] + p[6:8]))
    late_m = [mf(vAc+8, o+8, y1), mf(vAc+12, o+12, y1)]
e(f"""s_add_u32 s{sSel}, s{sSel}, 0x02020000
s_add_u32 s{sIt2}, s{sIt2}, 1
s_cmp_lg_u32 s{sIt2}, 2""")
e('\n'.join(late_m))
lo()
e('s_cbranch_scc1 L_kg')
stamp(17)
if OPT['abl'] in (4, 8): e('s_endpgm')
def scl(i): return vSB0 if i == 4 else (vSB if i & 4 else vScl)
for i in range(8): e(f'v_mul_f32 v{vAc+i}, v{scl(i)}, v{vAc+i}')
e(f's_cmp_eq_u32 s{sHw}, 0')
for i in range(8, 16): e(f'v_mul_f32 v{vAc+i}, v{scl(i)}, v{vAc+i}')
e('s_cbranch_scc1 L_kx')
for i in range(8): e(f'v_swap_b32 v{vAc+i}, v{vAc+8+i}')
e(f"""L_kx:
ds_write_b128 v{vKxo}, {vr(vAc+8,4)}
s_mov_b32 exec_hi, 0
ds_write_b128 v{vKxo}, {vr(vAc+12,4)} offset:1024
s_mov_b64 exec, -1
s_waitcnt vmcnt(0)
v_readfirstlane_b32 s{S_NONCE}, v{vPar+4}""")
arrive(2)
e(f's_add_u32 s{S_NONCE}, s{S_NONCE}, 1')
e(f'v_add_f32 v{vAc}, v{vAdd}, v{vAc}')
stamp(18)
def bprio():
    if OPT['prio']: e(f"s_setprio {OPT['bp']}")
def u_look():
    hi(); e(f'buffer_load_dword v{vFr}, v{vFu}, {sr(SRD_WS)}, 0 offen sc1'); bprio()
def u_fetch():
    hi()
    stamp(20)
    poll(vFu, first_issued=True, reg=vFr, sleep=OPT['usleep'])
    stamp(21)
    for k in range(2):
        e(f'buffer_load_dwordx4 {vr(U+4*k,4)}, v{vUa}, {sr(SRD_WS)}, s{sUl} offen offset:{2048*k} sc1')
    bprio()
if OPT['uw'] == -2: u_look()
else: bprio()
stamp(19)
lwait(2, addr=vPair)
e(f"""ds_read_b128 {vr(vAc+8,4)}, v{vKxp}
ds_read_b128 {vr(vAc+12,4)}, v{vKxp} offset:1024
ds_write_b128 v{vRz}, {vr(vZer,4)}
s_mov_b32 s{sIt2}, 4
s_waitcnt lgkmcnt(1)""")
for i in range(4): e(f'v_pk_add_f32 {vr(vAc+2*i,2)}, {vr(vAc+2*i,2)}, {vr(vAc+8+2*i,2)}')
for i in range(4): e(f'v_cvt_pk_bf16_f32 v{vAc+8+i}, v{vAc+2*i}, v{vAc+2*i+1}')
e(f"""ds_write_b32 v{vKd}, v{vAc+8}
ds_write_b32 v{vKd1}, v{vAc+9}
s_mov_b64 exec, 0x1ffff
ds_write_b16 v{vKa0}, v{vAc+10}
s_mov_b64 exec, 0xffff
ds_write_b16_d16_hi v{vKa}, v{vAc+10} offset:64
ds_write_b16 v{vKa}, v{vAc+11} offset:32
ds_write_b16_d16_hi v{vKa}, v{vAc+11}
s_mov_b64 exec, -1""")
arrive(3)
if OPT['uw'] == -1: u_look()
if OPT['uw'] == -2: u_fetch()
lwait(3, addr=vPair)
stamp(2)
E = 64; BF = 40
e(f"""ds_read2_b32 {vr(E,2)}, v{vE1} offset1:1
ds_read2_b32 {vr(E+2,2)}, v{vE1b} offset0:2 offset1:3
ds_read2_b32 {vr(E+4,2)}, v{vKb} offset0:191 offset1:192
ds_read_b32 v{E+6}, v{vKb} offset:1020
ds_read_b32 v{E+7}, v{vKb} offset:1024""")
for q in range(8): e(f'ds_read2_b32 {vr(BF+2*q,2)}, v{vBk} offset0:{8*(q>>1) + 2*(q&1)} offset1:{8*(q>>1) + 2*(q&1) + 1}')
b = E + 12; t = E + 16
e(f"""s_waitcnt lgkmcnt(10)
v_perm_b32 v{b+2}, v{E+2}, v{E+2}, v{vSel+2}
v_perm_b32 v{b+3}, v{E+3}, v{E+2}, v{vSel+3}
v_perm_b32 v{b-2}, v{E+5}, v{E+4}, s{sE2}
v_perm_b32 v{b-1}, v{E+5}, v{E+4}, s{sE3}
v_perm_b32 v{b}, v{E}, v{E}, v{vSel}
v_perm_b32 v{b+1}, v{E+1}, v{E}, v{vSel+1}
v_mov_b32_dpp v{b-2}, v{b+2} wave_shr:1 row_mask:0xf bank_mask:0xf
v_mov_b32_dpp v{b-1}, v{b+3} wave_shr:1 row_mask:0xf bank_mask:0xf
ds_write_b128 v{vCd}, {vr(b,4)}""")
for i in range(4): e(f'v_alignbit_b32 v{t+i}, v{b+i}, v{b+i-1}, 16')
e(f'ds_write_b128 v{vCd}, {vr(t,4)} offset:{UC_S}')
for i in range(4): e(f'v_mov_b32 v{t+4+i}, v{b+i-1}')
e(f'ds_write_b128 v{vCd}, {vr(t+4,4)} offset:{2*UC_S}')
for i in range(4): e(f'v_alignbit_b32 v{t+8+i}, v{b+i-1}, v{b+i-2}, 16')
e(f'ds_write_b128 v{vCd}, {vr(t+8,4)} offset:{3*UC_S}\ns_waitcnt lgkmcnt(12)')
for i in range(4): e(f'v_perm_b32 v{t+12+i}, v{E+7}, v{E+6}, v{vSel+4+i}')
e(f'ds_write_b128 v{vZp}, {vr(t+12,4)}')
if OPT['uw'] == -1: u_fetch()
stamp(3)
e(f'v_and_b32 v{a0}, 31, v{V_LANE}')
swap23(a1, a0, a2)
e(f"""v_lshrrev_b32 v{a2}, 5, v{V_LANE}
v_lshl_add_u32 v{a1}, v{a1}, 1, v{a2}
s_add_u32 s{sA}, s{sHw}, 123
v_add_u32 v{a1}, s{sA}, v{a1}
s_mul_i32 s{sA}, s{sDs}, {PD}
s_add_u32 s{sA}, s{sA}, {L_KP}
v_and_b32 v{a3}, 3, v{a1}
v_mul_u32_u24 v{a3}, {PS - 4}, v{a3}
v_lshl_add_u32 v{a3}, v{a1}, 2, v{a3}
v_add_u32 v{vA0}, s{sA}, v{a3}
v_add_u32 v{a1}, 2, v{a1}
v_and_b32 v{a3}, 3, v{a1}
v_mul_u32_u24 v{a3}, {PS - 4}, v{a3}
v_lshl_add_u32 v{a3}, v{a1}, 2, v{a3}
v_add_u32 v{vA1}, s{sA}, v{a3}
v_lshlrev_b32 v{a2}, 3, v{a2}
v_sub_u32 v{a2}, v{a2}, v{a0}
v_cvt_f32_i32 v{a2}, v{a2}
v_add_f32 v{a3}, -1.0, v{a2}
v_add_f32 v{a2}, -2.0, v{a2}
v_cvt_pk_f16_f32 v8, v{a3}, v{a2}
s_waitcnt vmcnt(1)
ds_write_b128 v{vKp}, {vr(U,4)}
s_waitcnt vmcnt(0)
ds_write_b128 v{vKp}, {vr(U+4,4)} offset:128""")
arrive(4)
AP, BD, DP = 112, 136, 192
band = [f's_mov_b32 s{sA}, 0x4a204a20', f's_cmp_eq_u32 s{sHw}, 0', f's_cselect_b32 s{sE2}, 0x4d104d10, s{sA}', f's_mov_b32 s{sE3}, 0x4d804d80']
for q in range(12):
    band.append(f'v_pk_fma_f16 v{BD+q}, v8, v8, s{sE2} neg_lo:[1,0,0] neg_hi:[1,0,0] clamp')
    if q < 11: band.append(f'v_pk_add_f16 v8, v8, s{sE3}' if q % 4 == 3 else 'v_pk_add_f16 v8, v8, -2.0 op_sel_hi:[1,0]')
e('\n'.join(band))
lwait(4)
KG[0] = False
lo()
stamp(4)
if OPT['abl'] == 16: e('s_endpgm')
CB = 64
def cv_reads(k):
    b = CB + 12 * (k & 3)
    return [f'ds_read_b64 {vr(b,2)}, v{vF_} offset:{64*k}', f'ds_read_b64 {vr(b+2,2)}, v{vF_} offset:{64*k + 8}',
            f'ds_read_b128 {vr(b+8,4)}, v{vG_} offset:{512 + 80 - 16*k}', f'ds_read_b128 {vr(b+4,4)}, v{vG_} offset:{80 - 16*k}']
for tau in range(2):
    for kp in range(3): e(f'ds_read_b128 {vr(AP + 12*tau + 4*kp, 4)}, v{(vA0, vA1)[kp & 1]} offset:{256*tau + 16*(kp >> 1)}')
e('\n'.join(cv_reads(0) + cv_reads(1)))
FOA = f'''s_lshr_b32 s{sA}, s{sOl}, 1
s_lshl_b32 s{sA}, s{sA}, {4 + FSH}
s_add_u32 s{sA}, s{sA}, {F_O}
v_lshl_add_u32 v{vFo}, v{a1}, {FSH}, s{sA}''' if not OM else f'''s_lshr_b32 s{sA}, s{sOl}, 1
s_lshl_b32 s{sB}, s{sHw}, 9
s_add_u32 s{sA}, s{sA}, s{sB}
s_lshl_b32 s{sA}, s{sA}, {FSH}
s_add_u32 s{sA}, s{sA}, {F_Y}
v_min_u32 v{vFo}, 6, v{a1}
v_lshl_add_u32 v{vFo}, v{vFo}, {6 + FSH}, s{sA}'''
late = f"""s_mov_b64 s[{SRD_B}:{SRD_B+1}], s[22:23]
s_mov_b32 s{SRD_B+2}, {448*896}
s_mov_b32 s{SRD_B+3}, 0x20000
s_mov_b64 s[{SRD_C}:{SRD_C+1}], s[24:25]
s_mov_b32 s{SRD_C+2}, {2048*1792}
s_mov_b32 s{SRD_C+3}, 0x20000
v_lshrrev_b32 v{a1}, 3, v{V_LANE}
v_and_b32 v{a2}, 7, v{V_LANE}
v_and_b32 v{a0}, 0x70, v{vL16}
v_mul_u32_u24 v{vYl}, {YS}, v{a1}
v_add_u32 v{vYl}, v{vYl}, v{a0}
v_lshlrev_b32 v{a3}, 2, v{V_LANE}
v_and_b32 v{a3}, 64, v{a3}
v_xor_b32 v{a0}, v{a0}, v{a3}
v_mul_u32_u24 v{vWoD}, 896, v{a1}
v_xor_b32 v{a3}, v{a1}, v{a2}
v_lshlrev_b32 v{a3}, 4, v{a3}
v_lshl_add_u32 v{vOut}, v{vWoD}, 1, v{a3}
v_add_u32 v{vWoD}, v{a0}, v{vWoD}
v_add_u32 v{vWoD+1}, {7168-1024}, v{vWoD}
v_lshrrev_b32 v{a0}, 4, v{V_LANE}
v_bfe_u32 v{a1}, v{V_LANE}, 2, 2
v_lshl_or_b32 v{a3}, v{a0}, 3, v{a1}
v_lshlrev_b32 v{a3}, 7, v{a3}
v_lshrrev_b32 v{a1}, 1, v{a1}
v_lshl_add_u32 v{a3}, v{a1}, 6, v{a3}
v_and_b32 v{a1}, 0x30, v{vL16}
s_movk_i32 s{sA}, {L_WO}
v_add3_u32 v{vWoR}, v{a1}, v{a3}, s{sA}
v_xor_b32 v{vWoR+1}, 64, v{vWoR}
v_and_b32 v{a1}, 15, v{V_LANE}
v_lshlrev_b32 v{vOl}, 4, v{a1}
v_mad_u32_u24 v{vOl}, v{a0}, s{S_KS}, v{vOl}
s_lshl2_add_u32 s{sOl}, s{S_J}, s{S_W}
{FOA}
s_lshl_b32 s{sA}, s{S_W}, 11
s_add_u32 s{sA}, s{sA}, {L_SSM}
v_xor_b32 v{a3}, v{a0}, v{a2}
v_lshl_add_u32 v{a3}, v{a3}, 4, s{sA}
v_lshl_add_u32 v{vBw}, v{a1}, 7, v{a3}
v_add_u32 v{vBr}, s{sA}, v{vL16}
s_mul_i32 s{sOut}, s{sOl}, {16*1792}
s_lshl_b32 s{sA}, s{S_C}, 7
s_add_u32 s{sOut}, s{sOut}, s{sA}
s_add_u32 s{sOut}, s{sOut}, 896
s_add_u32 s{sOut+1}, s{sOut}, {8*1792}
s_lshl_b32 s{sOl}, s{sOl}, 8
s_add_u32 s{sOl}, s{sOl}, {WS_O}
s_lshl2_add_u32 s{sCh0}, s{S_C}, s{S_W}
s_lshl_b32 s{sCh0}, s{sCh0}, 4
s_lshr_b32 s{sA}, s{S_J}, 4
s_lshl_b32 s{sA}, s{sA}, 9
s_add_u32 s{sA}, s{sA}, s{sCh0}
s_lshl_b32 s{sA}, s{sA}, {FSH}
s_add_u32 s{sA}, s{sA}, {F_Y}
v_lshl_add_u32 v{vFy}, v{a1}, {FSH}, s{sA}
v_and_b32 v{a1}, 11, v{V_LANE}
v_lshl_or_b32 v{a1}, v{a0}, 5, v{a1}
v_mul_u32_u24 v{a1}, 1792, v{a1}
v_and_b32 v{a3}, 4, v{V_LANE}
v_lshl_add_u32 v{vYs}, v{a3}, 2, v{a1}
s_lshl_b32 s{sA}, s{sHw}, 12
s_add_u32 s{sB}, s{sP}, {P_X + 4096}
s_sub_u32 s{sB}, s{sB}, s{sA}
v_add_u32 v{vXp}, s{sB}, v{vL16}
s_add_u32 s{sA}, s{sA}, s{sP}
s_add_u32 s{sA}, s{sA}, {P_X}
v_add_u32 v{vXo}, s{sA}, v{vL16}
v_lshl_add_u32 v{vRb_}, v{a0}, 4, s{sA}
v_bfe_u32 v{a0}, v{V_LANE}, 2, 2
v_and_b32 v{a3}, 1, v{V_LANE}
v_lshl_or_b32 v{a2}, v{a3}, 3, v{a0}
v_lshl_add_u32 v{vTr}, v{a2}, 7, v{vRb_}
v_and_b32 v{a2}, 2, v{V_LANE}
v_lshl_add_u32 v{vTr}, v{a2}, 2, v{vTr}""".split('\n')
def fill(n):
    e('\n'.join(late[:n])); del late[:n]
fill(16)
e('s_waitcnt lgkmcnt(8)')
for kp in range(3):
    for tau in range(2):
        d = vr(DP + 16*tau, 16)
        e(f'v_mfma_f32_32x32x16_bf16 {d}, {vr(AP + 12*tau + 4*kp, 4)}, {vr(BD + 4*kp, 4)}, {"0" if kp == 0 else d}')
        fill(6)
def cv_iter(first):
    for k in range(4):
        b = CB + 12 * k
        rd = cv_reads(k + 2)
        z = first and k == 0
        e('s_waitcnt lgkmcnt(4)')
        e(f'v_mfma_f32_32x32x16_bf16 {vr(T1,16)}, {vr(b,4)}, {vr(b+8,4)}, {"0" if z else vr(T1,16)}')
        e('\n'.join(rd))
        if k == 3:
            e(f'v_add_u32 v{vF_}, 256, v{vF_}\nv_subrev_u32 v{vG_}, 64, v{vG_}')
            if not first: e(f's_add_u32 s{sIt2}, s{sIt2}, 1\ns_cmp_lg_u32 s{sIt2}, 11')
        e(f'v_mfma_f32_32x32x16_bf16 {vr(T0,16)}, {vr(b,4)}, {vr(b+4,4)}, {"0" if z else vr(T0,16)}')
        if first: fill(6 if k < 3 else 99)
cv_iter(True)
e('L_cv:')
cv_iter(False)
e('s_cbranch_scc1 L_cv')
cv = [f'v_cvt_pk_bf16_f32 v{AP+i}, v{DP+2*i}, v{DP+2*i+1}' for i in range(16)]
for k in range(2):
    e('\n'.join(cv[4*k:4*k+4]))
    e(f's_waitcnt lgkmcnt({4 - 4*k})')
    e(f'v_mfma_f32_32x32x16_bf16 {vr(T1,16)}, {vr(CB+12*k,4)}, {vr(CB+12*k+8,4)}, {vr(T1,16)}')
for q in range(4):
    e('\n'.join(cv[8+4*q:12+4*q]))
    e(f'v_mfma_f32_32x32x16_bf16 {vr(T1,16)}, {vr(AP+4*q,4)}, {vr(BF+4*q,4)}, {vr(T1,16)}')
if OPT['prio']: e(f"s_setprio {OPT['pr']}")
stamp(5)
if OPT['abl'] == 32: e('s_endpgm')
e(f"""s_mul_i32 s{sA}, s{sD}, {YS}
s_lshl_b32 s{sB}, s{sHw}, 11
s_add_u32 s{sA}, s{sA}, s{sB}
s_add_u32 s{sA}, s{sA}, {WS_Y}
s_lshl_b32 s{sB}, s{sHw}, 9
s_add_u32 s{sB}, s{sB}, s{sD}
s_lshl_b32 s{sB}, s{sB}, {FSH}
s_add_u32 s{sB}, s{sB}, {F_Y}
s_nop 0""")
def xch(give, keep):
    for i in range(4): e(f'ds_write_b128 v{vXp}, {vr(give+4*i,4)} offset:{1024*i}')
    arrive(6); lwait(6, addr=vPair)
    for i in range(4): e(f'ds_read_b128 {vr(give+4*i,4)}, v{vXo} offset:{1024*i}')
    e('s_waitcnt lgkmcnt(0)')
e(f's_cmp_eq_u32 s{sHw}, 0\ns_cbranch_scc1 L_x0')
xch(T0, T1)
e('s_branch L_x1\nL_x0:')
xch(T1, T0)
e('L_x1:')
for i in range(8): e(f'v_pk_add_f32 {vr(T0+2*i,2)}, {vr(T0+2*i,2)}, {vr(T1+2*i,2)}')
for i in range(8): e(f'v_cvt_pk_bf16_f32 v{T1+i}, v{T0+2*i}, v{T0+2*i+1}')
e(f"""buffer_store_dwordx4 {vr(T1,4)}, v{vL16}, {sr(SRD_WS)}, s{sA} offen sc1
buffer_store_dwordx4 {vr(T1+4,4)}, v{vL16}, {sr(SRD_WS)}, s{sA} offen offset:1024 sc1
v_subrev_u32 v{a0}, 16, v{V_GRP}""")
if OM:
    e(f'''v_mov_b64 {vr(T0,2)}, -1
    v_mov_b64 {vr(T0+2,2)}, -1
    s_mul_i32 s{sA}, s{S_C}, {8*KS}
    s_add_u32 s{sA}, s{sA}, s{sOl}
    s_add_u32 s{sSk}, s{sA}, {4*KS}
    buffer_store_dwordx4 {vr(T0,4)}, v{vOl}, {sr(SRD_WS)}, s{sA} offen sc1
    buffer_store_dwordx4 {vr(T0,4)}, v{vOl}, {sr(SRD_WS)}, s{sSk} offen sc1''')
sync(7)
if OPT['only'] != 1: lwait(7, addr=a0)
e('s_waitcnt vmcnt(0)')
publish(sB, a0)
stamp(6)
if OPT['abl'] == 33: e('s_endpgm')
e(f"""s_mul_i32 s{sA}, s{S_W}, {16*896}
s_lshl_b32 s{sB}, s{S_C}, 7
s_add_u32 s{sA}, s{sA}, s{sB}
s_lshl_b32 s{sB}, s{S_W}, 11
s_add_u32 s{sB}, s{sB}, {L_WO}""")
for ch in range(7):
    e(f"""s_add_u32 m0, s{sB}, {8192*ch}
    s_add_u32 s{sSk}, s{sA}, {64*896*ch}
    buffer_load_dwordx4 v{vWoD}, {sr(SRD_B)}, s{sSk} offen lds
    buffer_load_dwordx4 v{vWoD+1}, {sr(SRD_B)}, s{sSk} offen offset:1024 lds
    s_waitcnt vmcnt({OPT['wodepth'] if ch < 6 else 0})""")
WF, OF, OC = 8, 168, 224
arrive(8)
e(f"""buffer_load_dword v{a0}, v{vFy}, {sr(SRD_WS)}, 0 offen sc1
s_mul_i32 s{sA}, s{sCh0}, {YS}
s_lshl_b32 s{sSk}, s{S_J}, 7
s_add_u32 s{sA}, s{sA}, s{sSk}
s_add_u32 s{sA}, s{sA}, {WS_Y}
s_add_u32 s{sSk}, s{sA}, {8*YS}""")
lwait(8)
stamp(7)
if OPT['abl'] == 34: e('s_endpgm')
def wo_reads(k):
    r = []
    for t in range(4):
        for hf in range(2):
            r.append(f'ds_read_b64_tr_b16 {vr(WF + 16*(k%10) + 4*t + 2*hf, 2)}, v{vWoR + (t>>1)} offset:{4096*k + 512*hf + 8*(t&1)}')
    return r
for k in range(10): e('\n'.join(wo_reads(k)))
arrive(9)
poll(vFy, first_issued=True, sleep=OPT['ysleep'], reg=a0)
stamp(8)
if OPT['abl'] == 35: e('s_endpgm')
e(f"""buffer_load_dwordx4 {vr(OF,4)}, v{vYl}, {sr(SRD_WS)}, s{sA} offen sc1
buffer_load_dwordx4 {vr(OF+4,4)}, v{vYl}, {sr(SRD_WS)}, s{sSk} offen sc1
s_lshr_b32 s{sA}, s{S_J}, 4
s_lshl_b32 s{sA}, s{sA}, 10
s_and_b32 s{sB}, s{S_J}, 3
s_lshl_b32 s{sB}, s{sB}, 8
s_add_u32 s{sA}, s{sA}, s{sB}
s_and_b32 s{sB}, s{S_J}, 8
s_lshl1_add_u32 s{sA}, s{sB}, s{sA}
s_and_b32 s{sB}, s{S_J}, 4
s_add_u32 s{sA}, s{sA}, s{sB}
s_mul_i32 s{sA}, s{sA}, 1792
s_lshl1_add_u32 s{sA}, s{sCh0}, s{sA}
s_add_u32 s{sB}, s{sA}, {128*1792}
v_xor_b32 v{a0}, 64, v{vBw}""")
lwait(9)
e(f"""s_waitcnt vmcnt(0)
ds_write_b128 v{vXo}, {vr(OF,4)}
ds_write_b128 v{vXo}, {vr(OF+4,4)} offset:1024""")
for z in range(2):
    for hf in range(2):
        e(f'ds_read_b64_tr_b16 {vr(OF + 8 + 4*z + 2*hf, 2)}, v{vTr} offset:{64*z + 512*hf}')
e(f"""s_waitcnt lgkmcnt(0)
buffer_store_dwordx4 {vr(OF+8,4)}, v{vYs}, {sr(SRD_C)}, s{sA} offen {OUTM}
buffer_store_dwordx4 {vr(OF+12,4)}, v{vYs}, {sr(SRD_C)}, s{sB} offen {OUTM}""")
if OPT['only'] == 1:
    stamp(9); stamp(13); prof_out(); e('s_endpgm')
if OM: poll(vFo, sleep=8)
if OM == 4:
    e(f'''s_lshl2_add_u32 s{sA}, s{S_J}, s{S_W}
    s_lshr_b32 s{sA}, s{sA}, 1
    s_lshl_b32 s{sA}, s{sA}, {4 + FSH}
    s_add_u32 s{sA}, s{sA}, {F_O}
    v_and_b32 v{vFo}, 15, v{V_LANE}
    v_lshl_add_u32 v{vFo}, v{vFo}, {FSH}, s{sA}''')
sOk, sLast = 4, 18
for k in range(14): e(f's_add_u32 s{sOk+k}, s{sOl}, {4*KS*k}')
stamp(9)
e('s_barrier        ; released once the four attention waves have stored their rows')
stamp(10)
if OPT['osleep']: e(f"s_sleep {OPT['osleep']}")
if OM != 3: poll(vFo, sleep=OPT['hsleep'])
if OM: e(f's_min_u32 s{S_BOUND}, s{S_BOUND}, 0x4000')
stamp(11)
def o_load(k): return f'buffer_load_dwordx4 {vr(OF+4*k,4)}, v{vOl}, {sr(SRD_WS)}, s{sOk+k} offen sc1'
def o_chk(k):
    o = OF + 4*k
    return [f's_waitcnt vmcnt({13-k})', f'v_max3_u32 v6, v{o}, v{o+1}, v{o+2}', f'v_max_u32 v6, v6, v{o+3}', 'v_cmp_eq_u32 vcc, -1, v6']
for k in range(14): e(o_load(k))
if OM: e('\n'.join(o_chk(0)))
for k in range(14):
    o = OF + 4*k
    m = [f'v_mfma_f32_16x16x32_bf16 {vr(OC+4*t,4)}, {vr(WF + 16*(k%10) + 4*t, 4)}, {vr(o,4)}, {"0" if k == 0 else vr(OC+4*t,4)}' for t in range(4)]
    rd = wo_reads(k + 9) if 1 <= k <= 4 else []
    if k == 10: e('s_waitcnt lgkmcnt(0)')
    if OM:
        e(f's_cbranch_vccnz L_or{k}\nL_og{k}:')
        c = o_chk(k + 1) if k < 13 else ['', '', '', '']
        e('\n'.join([m[0]] + rd[:4] + [m[1]] + rd[4:] + [m[2], c[0], c[1], c[2], m[3], c[3]]))
    else:
        e(f's_waitcnt vmcnt({13-k})'); e('\n'.join(m + rd))
stamp(12)
e('s_nop 4')
for i in range(8): e(f'v_cvt_pk_bf16_f32 v{16+i}, v{OC+2*i}, v{OC+2*i+1}')
e(f"""ds_write_b128 v{vBw}, {vr(16,4)}
ds_write_b128 v{a0}, {vr(20,4)}
ds_read_b128 {vr(24,4)}, v{vBr}
ds_read_b128 {vr(28,4)}, v{vBr} offset:1024
s_or_b32 s{sA}, s2, s{S_W}
s_waitcnt lgkmcnt(1)
buffer_store_dwordx4 {vr(24,4)}, v{vOut}, {sr(SRD_C)}, s{sOut} offen {OUTM2}
s_waitcnt lgkmcnt(0)
buffer_store_dwordx4 {vr(28,4)}, v{vOut}, {sr(SRD_C)}, s{sOut+1} offen {OUTM2}
s_cbranch_scc1 L_noepoch""")
publish(sA, 6)
e('L_noepoch:')
if OPT['prof']:
    e('s_waitcnt vmcnt(0)')
stamp(13)
prof_out()
e('L_end:\ns_endpgm')
if OM:
    for k in range(14):
        c = o_chk(k)
        e(f'''L_or{k}:
        s_call_b64 s[90:91], L_re{k}
        {c[0]}
        L_oc{k}:
        {c[1]}
        {c[2]}
        {c[3]}
        s_cbranch_vccz L_og{k}
        {'s_sleep %d' % OPT['rsleep'] if OPT['rsleep'] else ''}
        {o_load(k)}
        s_sub_u32 s{S_BOUND}, s{S_BOUND}, 1
        s_waitcnt vmcnt(0)
        s_cbranch_scc0 L_oc{k}
        s_mov_b32 s{S_BOUND}, 0
        s_branch L_og{k}''')
    for k in range(14): e(f'L_re{k}:\n{o_load(k)}')
    e('s_setpc_b64 s[90:91]')
sec('idle')
ROLE[0] = 2
e('L_ssm_idle:')
if OPT['only'] == 2:
    arrive(1); e('s_endpgm')
hi()
e(f"""v_lshrrev_b32 v10, 3, v{V_LANE}
v_and_b32 v11, 7, v{V_LANE}
v_lshlrev_b32 v11, 4, v11
v_mul_u32_u24 v5, 896, v10
v_add_u32 v5, v5, v11
v_add_u32 v6, {7168-1024}, v5
s_lshl2_add_u32 s60, s{S_J}, s{S_W}
s_mul_i32 s61, s60, {16*896}
s_mul_i32 s62, s{S_W}, 14336
s_add_u32 s62, s62, {L_SSM}
s_mov_b32 s{SRD_A+2}, {2048*896}
s_mov_b32 s{SRD_A+3}, 0x20000
s_waitcnt lgkmcnt(0)
s_load_dword s{S_NONCE}, s[28:29], 0
s_mov_b64 s[{SRD_A}:{SRD_A+1}], s[4:5]""")
for c in range(7):
    e(f"""s_add_u32 m0, s62, {2048*c - 128*c}
    s_nop 0
    buffer_load_dwordx4 v5, {sr(SRD_A)}, s61 offen offset:{128*c} lds
    buffer_load_dwordx4 v6, {sr(SRD_A)}, s61 offen offset:{1024 + 128*c} lds""")
    if c == OPT['tb']: e('s_barrier')
    if c == 1:
        srd(SRD_WS, 28, WS_SIZE)
        e(f"""; transposing read: row = 8*(cc&1)+r', byte = 8*(2G+(cc>>1))
        v_mul_u32_u24 v7, {QS}, v10
        v_add_u32 v7, v7, v11
        v_bfe_u32 v8, v{V_LANE}, 2, 2
        v_and_b32 v9, 1, v{V_LANE}
        v_lshl_or_b32 v8, v9, 3, v8
        v_xor_b32 v8, 3, v8
        v_lshl_add_u32 v8, v8, 7, s62
        v_and_b32 v9, 0x30, v{V_LANE}
        v_add_u32 v8, v8, v9
        v_and_b32 v9, 2, v{V_LANE}
        v_lshl_add_u32 v8, v9, 2, v8
        s_lshl_b32 s63, s60, 7
        s_add_u32 s63, s63, {WS_U}
        s_mul_i32 s65, s{S_J}, {US}
        s_add_u32 s65, s65, {F_U}""")
e(f's_waitcnt lgkmcnt(0)\ns_add_u32 s{S_NONCE}, s{S_NONCE}, 1')
arrive(1)
def t_rd(c):
    return [f'ds_read_b64_tr_b16 {vr(16 + 8*c + 4*z + 2*hf, 2)}, v8 offset:{2048*c + 64*z + 512*(1-hf)}' for z in range(2) for hf in range(2)]
e('s_waitcnt vmcnt(12)'); stamp(1); e('\n'.join(t_rd(0)))
for c in range(7):
    if c < 6:
        e('s_waitcnt vmcnt(10)'); e('\n'.join(t_rd(c + 1)))
    e(f"""s_add_u32 s64, s63, {8*QS}
    s_waitcnt lgkmcnt({4 if c < 6 else 0})
    buffer_store_dwordx4 {vr(16+8*c,4)}, v7, {sr(SRD_WS)}, s63 offen sc1
    buffer_store_dwordx4 {vr(20+8*c,4)}, v7, {sr(SRD_WS)}, s64 offen sc1
    s_add_u32 s63, s63, {16*QS}""")
    if c + 7 == OPT['tb']: e('s_barrier')
stamp(2)
e(f"""v_mov_b32 v5, 1
v_mov_b32 v6, 0
s_waitcnt vmcnt(0)
s_mov_b64 exec, 1
ds_add_rtn_u32 v5, v6, v5 offset:36
s_waitcnt lgkmcnt(0)
v_readfirstlane_b32 s60, v5
s_mov_b64 exec, -1
s_cmp_lg_u32 s60, 3
s_cbranch_scc1 L_idle_end""")
if OPT['ur'] == 1: publish(65, 6)
else:
    e(f'''v_mov_b32 v5, s{S_NONCE}
    v_mul_u32_u24 v6, {32*US}, v{V_LANE}
    s_mov_b64 exec, {hex((1 << OPT['ur']) - 1)}
    buffer_store_dword v5, v6, {sr(SRD_WS)}, s65 offen sc1
    s_mov_b64 exec, -1'''.replace('s_mov_b64 exec, 0xffffffff\n', 's_mov_b32 exec_hi, 0\n'))
e('L_idle_end:'); stamp(4)
prof_out()
e('s_endpgm')
ORDER = [['pro', 'ssm0', 'mha0', 'idle', 'ssm', 'mha'], ['pro', 'ssm0', 'mha0', 'mha', 'ssm', 'idle'],
         ['pro', 'ssm0', 'mha0', 'ssm', 'mha', 'idle'], ['pro', 'ssm0', 'idle', 'mha0', 'mha', 'ssm']][OPT['ord']] + ['cold', 'gt', 'fb']
SEC.setdefault('cold', [])
def add_nt(n, pred):
    SEC[n] = [(l.replace(' lds', ' nt lds') if l.endswith(' lds') else l + ' nt') if pred(l) else l for l in SEC[n]]
for n in ('mha0', 'mha', 'gt'):
    if OPT['nt'] & 1: add_nt(n, lambda l: l.endswith(' lds') and sr(SRD_A) in l)
    if OPT['nt'] & 2: add_nt(n, lambda l: l.endswith(' lds') and sr(SRD_B) in l)
if OPT['nt'] & 4: add_nt('idle', lambda l: l.endswith(' lds'))
if OPT['nt'] & 8: add_nt('ssm0', lambda l: 'global_load' in l)
if OPT['nt'] & 16: add_nt('ssm', lambda l: l.endswith(' lds'))
if OPT['nt'] & 32: add_nt('ssm', lambda l: 'buffer_store' in l and sr(SRD_C) in l)
BODY = sum((SEC[n] for n in ORDER), [])
def sizes(lines):
    import subprocess, re, os, tempfile
    d = tempfile.mkdtemp()
    open(d + '/a.s', 'w').write('.amdgcn_target "amdgcn-amd-amdhsa--gfx950"\n.text\n' + '\n'.join(lines) + '\n')
    subprocess.check_call(['clang', '-x', 'assembler', '-target', 'amdgcn-amd-amdhsa', '-mcpu=gfx950', '-c', d + '/a.s', '-o', d + '/a.o'])
    o = subprocess.check_output(['llvm-objdump', '-d', '--mcpu=gfx950', d + '/a.o']).decode()
    return [4 * len(m.group(1).split()) for m in re.finditer(r'// [0-9A-F]{12}: ((?:[0-9A-F]{8} ?)+)', o)]
def is_ins(l):
    t = l.split(';')[0].strip()
    return bool(t) and not t.endswith(':')
def widen(l):
    import re
    t = l.split(';')[0].strip(); op = t.split()[0]
    if op.startswith('v_') and not op.startswith(('v_readfirstlane', 'v_swap', 'v_permlane', 'v_nop')):
        return l.replace(op, op + '_e64', 1)
    return None
if OPT['al']:
    sz = iter(sizes(BODY))
    I = [[l, next(sz) if is_ins(l) else 0] for l in BODY]
    res = []; addr = 0; nw = nn = 0
    for i, (l, n) in enumerate(I):
        if n == 8 and addr % 8 == 4:
            run = 0
            for l2, n2 in I[i:]:
                if n2 == 4: break
                run += n2 == 8
            cross = sum(1 for k in range(run) if (addr + 8*k) % 32 == 28)
            if cross:
                j = len(res) - 1; done = False; aj = addr
                while j >= 0 and res[j][1] in (0, 4):
                    aj -= res[j][1]
                    t = res[j][0].strip()
                    if t.startswith(('s_branch', 's_endpgm', 's_setpc')):
                        res.insert(j + 1, ['    s_nop 0', 4]); done = True; break
                    w = widen(res[j][0]) if res[j][1] == 4 and aj % 32 != 28 else None
                    if w:
                        res[j] = [w, 8]; done = True; nw += 1; break
                    j -= 1
                if not done and run >= OPT['alr']:
                    k = len(res)
                    while res[k-1][1] == 0: k -= 1
                    res.insert(k, ['    s_nop 0', 4]); done = True; nn += 1
                if done: addr += 4
        res.append([l, n]); addr += n
    BODY = [l for l, n in res]
    print('aligned: widened', nw, 'nops', nn, 'bytes', addr, file=sys.stderr)
hdr = open('header.txt').read()
txt = hdr + f'''; @launch grid=(256,1,1) block=(512,1,1) lds={L_TOT}
.amdgcn_target "amdgcn-amd-amdhsa--gfx950"
.text
.globl {KN}
.p2align 8
.type {KN},@function
{KN}:
''' + '\n'.join(BODY) + f'''
.section .rodata,"a"
.p2align 6
.amdhsa_kernel {KN}
  .amdhsa_next_free_vgpr 256
  .amdhsa_next_free_sgpr 102
  .amdhsa_accum_offset 256
  .amdhsa_group_segment_fixed_size 0
  .amdhsa_kernarg_size 104
  .amdhsa_user_sgpr_count 2
  .amdhsa_user_sgpr_kernarg_segment_ptr 1
  .amdhsa_system_sgpr_workgroup_id_x 1
.end_amdhsa_kernel
'''
open(sys.argv[1], 'w').write(txt)
```

```python
import sys, struct
def fl(x): return hex(struct.unpack('<I', struct.pack('<f', x))[0])

KN = 'concat_heads__ssm_conv_s4d__softmax_full_mha__prompt_kernel'
OPT = dict(only_st=0, ur=1, us=128, rd0=-1, rdm=0, probe=0, poff=0xc00000, nt=0, rdn=0, al=1, alr=6, fw=0, rsleep=0, hsleep=0, ord=3, nb=0, tb=13, tq=1, chkk=99, uw=-2, cw=0, s6=5, tskip=1, ones=1, pa=1, pr=2, pf=2, wgf=2, ax=0, bp=3, qa=7, n0=4, ilv=8, tlb=0, ulook=1, kgp=1, pad=0, ypad=0, omode=3, ksleep=0, usleep=4, obar=5, osleep=0, pubk=8, abl=0, touch=0, gs=0, kgw=0, xg=5, gx=0, pm=2, ps=0, rt=0, upub=1, kgx=0, outsc=0, ysleep=8, wodepth=4, wq_mid=0, pollk=99, rd=-1, rdrole=0, only=0, safe=0, rot=0, prof=0, fs=128, force_fb=0, wq_early=7, prio=1)
for a in sys.argv[2:]:
    k, v = a.split('=')
    assert k in OPT, k
    OPT[k] = int(v, 0)

FS = OPT['fs']
FSH = FS.bit_length() - 1
F_KV = 0x1000
F_O = F_KV + 1024 * FS
F_U = F_O + 1024 * FS
F_Y = F_U + 1024 * FS
F_H = F_Y + 1024 * FS
WS_K = 0x100000
WS_V = 0x300000
WS_O = 0x500000
WS_U = 0x700000
WS_Y = 0x900000
QS = 16384 + OPT['pad']; KS = 2 * QS; YS = 4096 + OPT['ypad']
S_KS = 57
WS_PROF = 0xb00000
F_U = 0xb80000 if OPT['us'] * OPT['ur'] > 4096 else F_U
US = OPT['us']
WS_SIZE = 0x1000000
L_SSM = 1024
L_W = 57344
L_RB = 65536
L_X = 114688
L_TOT = 163840
TROW = 288
TABSZ = 38 * TROW
L_TAB = L_SSM
P_SZ = 2 * TABSZ
P_UC = 1536
UC_S = 2240
P_KD = TABSZ + 1536
P_X = TABSZ
PS = 1552
PD = 4 * PS
L_KP = L_TAB + 4 * TABSZ
assert P_UC + 4 * UC_S <= TABSZ and P_KD + 1600 <= P_SZ and P_X + 8192 <= P_SZ and L_KP % 16 == 0 and L_KP + 2 * PD <= L_W
L_WO = L_SSM

S_WV, S_W, S_HG, S_C, S_TILE, S_J, S_H, S_NONCE, S_O0, S_ROT = range(30, 40)
SRD_WS, SRD_A, SRD_B, SRD_C = 40, 44, 48, 52
S_BOUND = 56
S_T0 = 58

SEC = {}
out = None
def sec(n):
    global out
    out = SEC.setdefault(n, [])
sec('pro')
def e(s):
    for l in s.split('\n'):
        l = l.strip()
        if l:
            out.append(l if l.endswith(':') else '    ' + l)
_lab = [0]
def lab(p):
    _lab[0] += 1
    return f'L_{p}_{_lab[0]}'
def vr(a, n):
    return f'v[{a}:{a+n-1}]' if n > 1 else f'v{a}'
def srd(d, b, n):
    e(f's_mov_b64 s[{d}:{d+1}], s[{b}:{b+1}]\ns_mov_b32 s{d+2}, {n}\ns_mov_b32 s{d+3}, 0x20000')
def sr(d): return f's[{d}:{d+3}]'

V_LANE, V_T, V_OWN, V_GRP, V_PROF = 0, 1, 2, 3, 4

ROLE = [0]
def stamp(i):
    if OPT['rd0'] == i and OPT['rdrole'] == ROLE[0]:
        e('s_memrealtime s[98:99]\ns_waitcnt lgkmcnt(0)')
    if OPT['rd'] == i and OPT['rdrole'] == ROLE[0]:
        e('s_memrealtime s[100:101]\ns_waitcnt lgkmcnt(0)')
    if (OPT['only_st'] >> (i + 32*min(ROLE[0], 1))) & 1 if OPT['only_st'] else OPT['prof'] > (i >= 14):
        e(f's_mem{"real" if OPT["rt"] else ""}time s[96:97]\ns_waitcnt lgkmcnt(0)\ns_sub_u32 s96, s96, s{98 if OPT["rt"] else S_T0}\nv_writelane_b32 v{V_PROF}, s96, {i}')
def prof_out():
    if OPT['rd'] >= 0 and OPT['rdrole'] == ROLE[0]:
        l = lab('pad')
        if ROLE[0] == 0 and not OPT['obar']: e('s_barrier')
        if ROLE[0] == 2: e('s_barrier')
        if ROLE[0] == 0 and OPT['rdn']: e(f's_cmp_eq_u32 s{S_C}, 7\ns_cbranch_scc{2 - OPT["rdn"]} L_end')
        if OPT['rd'] == 98:
            e(f'''s_not_b32 s100, s100
            v_mov_b32 v5, s100
            v_mov_b32 v6, 0
            s_mov_b64 exec, 1
            global_atomic_umax v6, v5, s[26:27]
            s_waitcnt vmcnt(0)
            s_sleep 127
            s_sleep 127
            s_sleep 127
            s_sleep 127
            s_sleep 127
            global_load_dword v5, v6, s[26:27] sc1
            s_waitcnt vmcnt(0)
            v_readfirstlane_b32 s100, v5
            s_not_b32 s100, s100''')
        if OPT['probe']:
            op = {1: 'buffer_store_dwordx4 v[8:11], v5, s[52:55], s60 offen sc1', 2: 'buffer_load_dwordx4 v[8:11], v5, s[52:55], s60 offen sc1',
                  3: 'buffer_store_dwordx4 v[8:11], v5, s[52:55], s60 offen'}[OPT['probe'] & 3]
            pre = 'buffer_load_dword v12, v6, s[52:55], s61 offen sc1\ns_waitcnt vmcnt(0)' if OPT['probe'] & 4 else ''
            if OPT['probe'] & 8: pre += '\nbuffer_store_dwordx4 v[8:11], v5, s[52:55], s60 offen sc1\ns_waitcnt vmcnt(0)\ns_sleep 40'
            e(f'''s_mov_b64 s[52:53], s[28:29]
            s_mov_b32 s54, 0x10000000
            s_mov_b32 s55, 0x20000
            s_sleep 127
            s_sleep 127
            s_sleep 127
            v_lshlrev_b32 v5, 4, v0
            v_mov_b32 v6, 0
            s_lshl2_add_u32 s60, s2, s{S_W}
            s_lshl_b32 s60, s60, 10
            s_add_u32 s60, s60, {OPT['poff']}
            s_mov_b32 s61, {OPT['poff'] + 0x180000}
            {pre}
            s_memrealtime s[62:63]
            s_waitcnt lgkmcnt(0)
            {op}
            s_waitcnt vmcnt(0)
            s_memrealtime s[100:101]
            s_waitcnt lgkmcnt(0)
            s_sub_u32 s100, s100, s62
            v_mov_b32 v8, s100
            s_lshl2_add_u32 s60, s2, s{S_W}
            s_lshl_b32 s60, s60, 2
            s_add_u32 s60, s60, {WS_PROF}
            buffer_store_dword v8, v6, s[52:55], s60 offen
            s_mul_i32 s100, s100, 50
            s_add_u32 s100, s100, s58''')
        elif OPT['rdm'] >= 3:
            key = {3: 's_and_b32 s96, s2, 7', 4: f's_mov_b32 s96, s{S_H}', 5: f's_mov_b32 s96, s{S_TILE}'}[OPT['rdm']]
            e(f'''s_sub_u32 s100, s100, s98
            s_sub_u32 s97, s98, s58
            s_mul_i32 s100, s100, 1000000
            s_mul_i32 s97, s97, 1000
            s_add_u32 s100, s100, s97
            s_add_u32 s100, s100, s2
            {key}
            s_lshl_b32 s96, s96, 2
            v_mov_b32 v5, s100
            v_mov_b32 v6, s96
            s_mov_b64 exec, 1
            global_atomic_umax v6, v5, s[26:27]
            s_waitcnt vmcnt(0)
            s_endpgm''')
        elif OPT['rdm'] == 2:
            e('''s_not_b32 s96, s58
            v_mov_b32 v5, s96
            v_mov_b32 v6, 0
            s_mov_b64 exec, 1
            global_atomic_umax v6, v5, s[26:27]
            s_waitcnt vmcnt(0)''' + '\ns_sleep 127' * 7 + '''
            global_load_dword v5, v6, s[26:27] sc1
            s_waitcnt vmcnt(0)
            v_readfirstlane_b32 s96, v5
            s_not_b32 s96, s96
            s_sub_u32 s100, s100, s96
            s_lshl_b32 s100, s100, 3
            s_add_u32 s100, s100, s96''')
        elif OPT['rdm']:
            e('''s_sub_u32 s100, s100, s98
            v_mov_b32 v5, s100
            v_mov_b32 v6, 0
            s_mov_b64 exec, 1
            global_atomic_add v6, v5, s[26:27]
            s_waitcnt vmcnt(0)''' + '\ns_sleep 127' * 7 + '''
            global_load_dword v5, v6, s[26:27] sc1
            s_waitcnt vmcnt(0)
            v_readfirstlane_b32 s100, v5
            s_lshr_b32 s100, s100, 6
            s_add_u32 s100, s100, s58''')
        else: e('s_sub_u32 s100, s100, s98\ns_lshl_b32 s100, s100, 3\ns_add_u32 s100, s100, s58')
        e(f'''s_add_u32 s100, s100, 6000
        {l}:
        s_sleep 1
        s_memrealtime s[96:97]
        s_waitcnt lgkmcnt(0)
        s_sub_u32 s96, s96, s100
        s_cmp_lt_i32 s96, 0
        s_cbranch_scc1 {l}''')
    if OPT['prof']:
        e(f'''s_memrealtime s[96:97]
        s_waitcnt lgkmcnt(0)
        v_writelane_b32 v{V_PROF}, s96, 31
        v_writelane_b32 v{V_PROF}, s98, 30
        s_lshl_b32 s96, s2, 3
        s_add_u32 s96, s96, s{S_WV}
        s_lshl_b32 s96, s96, 7
        s_add_u32 s96, s96, {WS_PROF}
        v_lshlrev_b32 v{V_T}, 2, v{V_LANE}
        s_mov_b32 exec_hi, 0
        buffer_store_dword v{V_PROF}, v{V_T}, {sr(SRD_WS)}, s96 offen
        s_mov_b64 exec, -1''')

def arrive(stage):
    e(f'v_mov_b32 v{V_T}, {stage}\nds_write_b32 v{V_OWN}, v{V_T}')
def lwait(stage, addr=V_GRP, sleep=0):
    l = lab('lw')
    e(f'{l}:')
    if sleep: e(f's_sleep {sleep}')
    e(f'''ds_read_b32 v{V_T}, v{addr}
    s_waitcnt lgkmcnt(0)
    v_cmp_gt_u32 vcc, {stage}, v{V_T}''')
    if OPT['safe']:
        d = lab('ld')
        e(f'''s_cbranch_vccz {d}
        s_sub_u32 s{S_BOUND}, s{S_BOUND}, 1
        s_cbranch_scc0 {l}
        s_mov_b32 s{S_BOUND}, 0
        {d}:''')
    else:
        e(f's_cbranch_vccnz {l}')
def sync(stage):
    arrive(stage); lwait(stage)
def poll(voff, first_issued=False, sleep=0, reg=V_T):
    l, d, m = lab('pl'), lab('pd'), lab('pm')
    if first_issued == 2:
        e(f's_waitcnt vmcnt(0)\nv_cmp_ne_u32 vcc, s{S_NONCE}, v{reg}\ns_cbranch_vccnz {l}\n{d}:')
        cur = [n for n in SEC if SEC[n] is out][0]
        sec('cold')
        e(f'''{l}:
        buffer_load_dword v{reg}, v{voff}, {sr(SRD_WS)}, 0 offen sc1
        s_waitcnt vmcnt(0)
        v_cmp_ne_u32 vcc, s{S_NONCE}, v{reg}
        s_cbranch_vccz {d}
        s_sub_u32 s{S_BOUND}, s{S_BOUND}, 1
        s_cbranch_scc0 {l}
        s_mov_b32 s{S_BOUND}, 0
        s_branch {d}''')
        sec(cur)
        return
    if first_issued: e(f's_branch {m}')
    e(f'{l}:')
    if sleep: e(f's_sleep {sleep}')
    e(f'''buffer_load_dword v{reg}, v{voff}, {sr(SRD_WS)}, 0 offen sc1
    {m}:
    s_waitcnt vmcnt(0)
    v_cmp_ne_u32 vcc, s{S_NONCE}, v{reg}
    s_cbranch_vccz {d}
    s_sub_u32 s{S_BOUND}, s{S_BOUND}, 1
    s_cbranch_scc0 {l}
    s_mov_b32 s{S_BOUND}, 0
    {d}:''')
def publish(soff, tmp):
    if OPT['fw']:
        e(f'''v_mov_b32 v{V_T}, s{S_NONCE}
        v_lshlrev_b32 v{tmp}, 2, v{V_LANE}
        s_mov_b64 exec, {hex((1 << OPT['fw']) - 1)}
        buffer_store_dword v{V_T}, v{tmp}, {sr(SRD_WS)}, s{soff} offen sc1
        s_mov_b64 exec, -1'''.replace('s_mov_b64 exec, 0xffffffff', 's_mov_b32 exec_hi, 0'))
        return
    e(f'''v_mov_b32 v{V_T}, s{S_NONCE}
    v_mov_b32 v{tmp}, 0
    s_mov_b64 exec, 1
    buffer_store_dword v{V_T}, v{tmp}, {sr(SRD_WS)}, s{soff} offen sc1
    s_mov_b64 exec, -1''')
def swap23(d, s, t):
    e(f'''v_lshrrev_b32 v{t}, 1, v{s}
    v_xor_b32 v{t}, v{t}, v{s}
    v_and_b32 v{t}, 4, v{t}
    v_mul_u32_u24 v{t}, 3, v{t}
    v_xor_b32 v{d}, v{t}, v{s}''')
def rot_next(s):
    e(f's_add_u32 s{s}, s{s}, 1\ns_cmp_eq_u32 s{s}, 7\ns_cselect_b32 s{s}, 0, s{s}')

e(f'''s_cmp_ge_u32 s2, 256
s_cbranch_scc1 L_end''')
if OPT['prof']:
    e(f's_memtime s[{S_T0}:{S_T0+1}]\ns_memrealtime s[98:99]\nv_mov_b32 v{V_PROF}, 0')
if OPT['rd'] >= 0: e('s_memrealtime s[100:101]\ns_memrealtime s[58:59]\ns_memrealtime s[98:99]')
e(f'''s_load_dwordx16 s[4:19], s[0:1], 0
s_load_dwordx8 s[20:27], s[0:1], 64
s_load_dwordx2 s[28:29], s[0:1], 96
v_lshrrev_b32 v{V_OWN}, 6, v0
v_and_b32 v{V_LANE}, 63, v0
v_readfirstlane_b32 s{S_WV}, v{V_OWN}
v_lshlrev_b32 v{V_OWN}, 2, v{V_OWN}
v_mov_b32 v{V_T}, 0
ds_write2_b32 v{V_OWN}, v{V_T}, v{V_T} offset1:8
v_and_b32 v{V_GRP}, 3, v{V_LANE}
v_lshlrev_b32 v{V_GRP}, 2, v{V_GRP}
s_and_b32 s{S_HG}, s2, 1
s_bfe_u32 s60, s2, 0x20001
s_bfe_u32 s{S_C}, s2, 0x30003
s_lshr_b32 s61, s2, 6
s_lshl2_add_u32 s{S_TILE}, s60, s61
s_lshl1_add_u32 s{S_J}, s{S_TILE}, s{S_HG}
s_lshl3_add_u32 s{S_H}, s{S_HG}, s{S_C}
s_and_b32 s{S_W}, s{S_WV}, 3
s_mov_b32 s{S_BOUND}, 0x40000
s_mov_b32 s{S_KS}, {KS}
s_cmp_lt_u32 s{S_WV}, 4
s_cbranch_scc1 L_mha''')

VX = 144; VACC = 96; VWF = 32; VPK = 128
VV, VK, VS, VO, VQ = 32, 64, 96, 160, 224
vWd = [5, 6]; vXd = [7, 8, 9, 10]; vXr = [11, 12, 13, 14]; vWb, vW0, vW1 = 15, 16, 17
vRho, vG, vSt, vQd, vQr, vFl, vA, vB, vC = 18, 19, 20, 21, 22, 23, 24, 25, 26
vKo0, vKo1, vVo, vIdx = 27, 28, 29, 30
sXb, sWb, sCh, sCw, sLx, sTmp, sTmp2, sSt, sS1, sS2, sFl = range(60, 71)
sK, sV, sIt = 71, 72, 73
sFo, sO0, sO1 = 84, 85, 86
vOs, vQw = vRho, vG
vRb = [7, 8, 9]; vQx = [11, 12, 13]; vRr = 10
sMask = 74
sOdd = 76

sec('mha0')
e('L_mha:')
if OPT['prio']: e(f"s_setprio {OPT['pm']}")
e(f'''s_mul_i32 s{S_O0}, s{S_H}, 7
s_lshr_b32 s{S_O0}, s{S_O0}, 1''')
e(f'''v_lshrrev_b32 v{vA}, 3, v{V_LANE}          ; r
v_and_b32 v{vB}, 7, v{V_LANE}                    ; p
v_lshlrev_b32 v{vC}, 1, v{vA}
v_and_b32 v{vC}, 4, v{vC}
v_xor_b32 v{vC}, v{vC}, v{vB}
v_lshlrev_b32 v{vC}, 4, v{vC}
v_mul_u32_u24 v{vWd[0]}, 2688, v{vA}
v_add_u32 v{vWd[0]}, v{vWd[0]}, v{vC}
v_add_u32 v{vWd[1]}, {8*2688-1024}, v{vWd[0]}
v_lshrrev_b32 v{vC}, 1, v{vA}
v_xor_b32 v{vC}, v{vC}, v{vB}
v_lshlrev_b32 v{vC}, 4, v{vC}
v_mul_u32_u24 v{vA}, 896, v{vA}
v_add_u32 v{vXd[0]}, v{vA}, v{vC}
v_xor_b32 v{vC}, 64, v{vC}
v_add_u32 v{vXd[1]}, v{vA}, v{vC}
v_add_u32 v{vXd[1]}, {7168-1024}, v{vXd[1]}
v_add_u32 v{vXd[2]}, {2*(7168-1024)}, v{vXd[0]}
v_add_u32 v{vXd[3]}, {2*(7168-1024)}, v{vXd[1]}
s_lshl2_add_u32 s{sXb}, s{S_TILE}, s{S_W}
s_lshl_b32 s{sFl}, s{S_H}, 6
s_add_u32 s{sFl}, s{sFl}, s{S_TILE if OPT['wgf'] else sXb}
s_lshl_b32 s{sFl}, s{sFl}, {FSH}
s_add_u32 s{sFl}, s{sFl}, {F_KV}
s_mul_i32 s{sXb}, s{sXb}, {32*896}
s_mul_i32 s{sTmp2}, s{S_HG}, 3
s_lshr_b32 s{sTmp}, s2, 6
s_add_u32 s{sTmp2}, s{sTmp2}, s{sTmp}
s_mul_i32 s{sWb}, s{S_HG}, 7
s_add_u32 s{sWb}, s{sWb}, s{S_C}
s_add_u32 s{sWb}, s{sWb}, 7
s_cmp_eq_u32 s{S_C}, 7
s_cselect_b32 s{sWb}, {'s%d' % sTmp2 if OPT['tq'] else '0x100000'}, s{sWb}
s_cselect_b32 s{sS1}, 1, s{S_W}
s_lshl_b32 s{sWb}, s{sWb}, 7
s_mul_i32 s{sTmp}, s{S_W}, {16*2688}
s_add_u32 s{sWb}, s{sWb}, s{sTmp}
s_mul_i32 s{sLx}, s{S_W}, 12288
s_add_u32 s{sLx}, s{sLx}, {L_X}
s_lshl_b32 s{sS1}, s{sS1}, 11
s_add_u32 s{sS1}, s{sS1}, {L_W}
s_mov_b32 s{SRD_A+2}, {2048*896}
s_mov_b32 s{SRD_A+3}, 0x20000
s_mov_b32 s{SRD_B+2}, {448*1344*2}
s_mov_b32 s{SRD_B+3}, 0x20000
s_mov_b32 m0, s{sLx}
s_waitcnt lgkmcnt(0)
s_mov_b64 s[{SRD_A}:{SRD_A+1}], s[18:19]
s_mov_b64 s[{SRD_B}:{SRD_B+1}], s[20:21]
s_load_dword s{S_NONCE}, s[28:29], 0''')
stamp(22)
sWo = 88
def w_lines(st):
    return [f's_add_u32 m0, s{sS1}, {8192*st}', f's_add_u32 s{sWo+st}, s{sWb}, {64*2688*st}'] + \
           [f'buffer_load_dwordx4 v{vWd[i]}, {sr(SRD_B)}, s{sWo+st} offen offset:{1024*i} lds' for i in range(2)]
def x_chunk(st):
    return [f's_add_u32 m0, s{sLx}, {(st%3)*4096 - 128*st}', 's_nop 0'] + \
           [f'buffer_load_dwordx4 v{vXd[i]}, {sr(SRD_A)}, s{sXb} offen offset:{1024*i + 128*st} lds' for i in range(4)]
DM = []
for l in [x_chunk(0), w_lines(0)] + [w_lines(i) for i in range(1, 7)] + [x_chunk(1), x_chunk(2)]:
    DM += [l[:3]] + [[x] for x in l[3:]]
DM[0] = DM[0][2:]
for i, g in enumerate(DM[:OPT['n0']]):
    if i == OPT['nb']:
        e('s_barrier'); stamp(23)
        if OPT['only'] == 1: e('s_endpgm')
    e('\n'.join(g))
DM = DM[OPT['n0']:]
stamp(24)
if OPT['ord'] not in (1, 3): e('s_branch L_mha1')
sec('mha')
e('L_mha1:')
stamp(25)
sec('tmp')
srd(SRD_WS, 28, WS_SIZE)
ONES = f'''s_bitcmp1_b32 s{S_H}, 0
s_cselect_b32 s{sTmp}, 0, 7
v_cmp_eq_u32 vcc, s{sTmp}, v{vA}
s_lshl_b32 s{sTmp}, s{S_O0}, 1
s_sub_u32 s{sTmp}, s{S_HG}, s{sTmp}
s_add_u32 s{sTmp}, s{sTmp}, 112
v_mov_b32 v{vB}, s{sTmp}
v_cndmask_b32 v{vA}, v{vA}, v{vB}, vcc
''' if OPT['ones'] else ''
FIX = f'''v_cmp_lt_u32 vcc, 7, v{vB}
s_lshl3_add_u32 s{sTmp}, s{S_HG}, 7
v_mov_b32 v{vB}, s{sTmp}
v_cndmask_b32 v{vC}, v{vC}, v{vB}, vcc
''' if OPT['ones'] else ''
FOM = f'''s_lshl_b32 s{sFo}, s{sTmp2}, 4
s_add_u32 s{sFo}, s{sFo}, s{S_H}
s_lshl_b32 s{sFo}, s{sFo}, {FSH}
s_add_u32 s{sFo}, s{sFo}, {F_O}
''' if OPT['omode'] != 3 else ''
e(f'''v_and_b32 v{vA}, 31, v{V_LANE}
v_lshrrev_b32 v{vG}, 5, v{V_LANE}''')
swap23(vRho, vA, vB)
e(f'''v_bfe_u32 v{vB}, v{vRho}, 1, 3
v_xor_b32 v{vB}, v{vB}, v{vG}
v_lshlrev_b32 v{vB}, 4, v{vB}
v_lshl_add_u32 v{vB}, v{vRho}, 7, v{vB}
v_add_u32 v{vXr[0]}, s{sLx}, v{vB}
v_xor_b32 v{vXr[1]}, 32, v{vXr[0]}
v_xor_b32 v{vXr[2]}, 64, v{vXr[0]}
v_xor_b32 v{vXr[3]}, 0x60, v{vXr[0]}
v_and_b32 v{vB}, 3, v{V_LANE}                     ; cc
v_lshrrev_b32 v{vC}, 1, v{vB}
v_and_b32 v{vQd}, 1, v{vB}
v_lshl_or_b32 v{vC}, v{vQd}, 1, v{vC}
v_bfe_u32 v{vQd}, v{V_LANE}, 4, 1
v_lshl_or_b32 v{vB}, v{vQd}, 2, v{vB}              ; mq natural
v_lshl_or_b32 v{vC}, v{vQd}, 2, v{vC}
v_bfe_u32 v{vQd}, v{V_LANE}, 2, 2                  ; r'
v_lshl_or_b32 v{vFl}, v{vG}, 3, v{vQd}             ; 8g + r'
v_lshlrev_b32 v{vQr}, 6, v{vFl}
v_lshl_add_u32 v{vQr}, v{vC}, 3, v{vQr}
v_add_u32 v{vQr}, {L_X + 4096}, v{vQr}
s_cmp_eq_u32 s{S_HG}, 0
s_cselect_b64 vcc, -1, 0
v_cndmask_b32 v{vB}, v{vB}, v{vC}, vcc             ; K slabs use the exchanged order, V slabs the natural one
v_lshlrev_b32 v{vWb}, 7, v{vFl}
v_lshl_add_u32 v{vWb}, v{vB}, 3, v{vWb}
v_lshrrev_b32 v{vQd}, 1, v{vQd}
v_lshl_add_u32 v{vWb}, v{vQd}, 6, v{vWb}
v_add_u32 v{vW0}, {L_W}, v{vWb}
v_lshlrev_b32 v{vB}, 4, v{vRho}
v_mad_u32_u24 v{vB}, v{vG}, s{S_KS}, v{vB}
v_lshrrev_b32 v{vC}, 2, v{vA}
v_mul_u32_u24 v{vC}, {QS}, v{vC}
v_lshl_add_u32 v{vC}, v{vG}, 6, v{vC}
v_and_b32 v{vQd}, 3, v{vA}
v_lshl_add_u32 v{vC}, v{vQd}, 4, v{vC}
v_cndmask_b32 v{vSt}, v{vC}, v{vB}, vcc
s_lshl2_add_u32 s{sTmp}, s{S_TILE}, s{S_W}
s_lshl_b32 s{sTmp2}, s{sTmp}, 9
s_add_u32 s{sTmp2}, s{sTmp2}, {WS_K}
s_lshl_b32 s{sTmp}, s{sTmp}, 8
s_add_u32 s{sTmp}, s{sTmp}, {WS_V}
s_movk_i32 s{sS2}, 128
s_cmp_eq_u32 s{S_HG}, 0
s_cselect_b32 s{sSt}, s{sTmp2}, s{sTmp}
s_cselect_b32 s{sS2}, {2*KS}, s{sS2}
s_mul_i32 s{sTmp}, s{S_C}, {8*KS}
s_add_u32 s{sSt}, s{sSt}, s{sTmp}
v_lshrrev_b32 v{vB}, 2, v{V_LANE}
v_mul_u32_u24 v{vB}, 2688, v{vB}
v_lshl_add_u32 v{vQd}, v{vQd}, 4, v{vB}
s_lshl_b32 s82, s{S_O0}, 4
s_mul_i32 s{sTmp}, s{S_W}, {16*2688}
s_add_u32 s82, s82, s{sTmp}
s_lshr_b32 s{sTmp}, s{S_O0}, 3
s_add_u32 s{sTmp2}, s{S_O0}, 3
s_lshr_b32 s{sTmp2}, s{sTmp2}, 3
s_sub_u32 s{sTmp2}, s{sTmp2}, s{sTmp}
v_bfe_u32 v{vC}, v{V_LANE}, 4, 1
v_mul_u32_u24 v{vC}, s{sTmp2}, v{vC}
v_lshl_add_u32 v{vC}, v{vG}, 3, v{vC}
v_add_u32 v{vC}, s{sTmp}, v{vC}
v_and_b32 v{vB}, 15, v{V_LANE}
{FIX}v_and_b32 v{vB}, {3 if OPT['wgf'] else 15}, v{V_LANE}
v_lshl_add_u32 v{vC}, v{vC}, 6, v{vB}
s_lshl_b32 s{sTmp}, s{S_W}, {2 if OPT['wgf'] else 4}
v_add_u32 v{vC}, s{sTmp}, v{vC}
v_lshlrev_b32 v{vC}, {FSH}, v{vC}
v_add_u32 v{vFl}, {F_KV}, v{vC}
v_lshlrev_b32 v{vKo0}, 4, v{vA}
v_mad_u32_u24 v{vKo0}, v{vG}, s{S_KS}, v{vKo0}
v_add_u32 v{vKo1}, {2*KS}, v{vKo0}
v_lshrrev_b32 v{vA}, 2, v{vRho}
{ONES}v_mul_u32_u24 v{vA}, {QS}, v{vA}
v_lshl_add_u32 v{vA}, v{vG}, 6, v{vA}
v_and_b32 v{vB}, 3, v{V_LANE}
v_lshl_add_u32 v{vVo}, v{vB}, 4, v{vA}
v_mov_b32 v{vIdx}, 0xdddddddd
s_mul_i32 s{sTmp}, s{S_O0}, {KS}
s_lshl_b32 s{sK}, s{S_W}, 13
s_add_u32 s{sK}, s{sK}, s{sTmp}
s_add_u32 s{sK}, s{sK}, {WS_K}
s_lshl_b32 s{sV}, s{S_W}, 12
s_add_u32 s{sV}, s{sV}, s{sTmp}
s_add_u32 s{sV}, s{sV}, {WS_V}
s_lshl2_add_u32 s{sTmp2}, s{S_TILE}, s{S_W}
{FOM}s_lshl_b32 s{sTmp2}, s{sTmp2}, 9
s_add_u32 s{sO0}, s{sTmp}, s{sTmp2}
s_add_u32 s{sO0}, s{sO0}, {WS_O}
s_add_u32 s{sO1}, s{sO0}, {2*KS}
s_bitcmp1_b32 s{S_H}, 0
s_cselect_b64 s[{sOdd}:{sOdd+1}], -1, 0
; per-lane multipliers for Q: scale*log2(e), zero on the four slots that belong to the neighbour head
v_mov_b32 v{vC}, 0x3e8b97f6
v_cmp_gt_u32 vcc, 32, v{V_LANE}
s_and_b64 s[78:79], vcc, s[{sOdd}:{sOdd+1}]
s_nor_b64 s[80:81], vcc, s[{sOdd}:{sOdd+1}]
v_cndmask_b32 v{vA}, v{vC}, 0, s[78:79]
v_cndmask_b32 v{vB}, v{vC}, 0, s[80:81]
s_mov_b32 s78, 0x3f803f80
s_mov_b32 s79, s78
v_xor_b32 v{vW1}, 64, v{vW0}
v_lshlrev_b32 v{vOs}, 4, v{vRho}
v_mad_u32_u24 v{vOs}, v{vG}, s{S_KS}, v{vOs}
v_lshl_add_u32 v{vQw}, v{V_LANE}, 4, s{sLx}''')
srd(SRD_C, 28, WS_SIZE)
def o_stores(r0, r1, tag):
    e(f'''s_bitcmp1_b32 s{S_H}, 0
    s_cbranch_scc1 L_ost_odd{tag}
    buffer_store_dwordx4 {vr(r0,4)}, v{vOs}, {sr(SRD_WS)}, s{sO0} offen sc1
    s_mov_b32 exec_hi, 0
    buffer_store_dwordx4 {vr(r1,4)}, v{vOs}, {sr(SRD_WS)}, s{sO1} offen sc1
    s_not_b64 exec, exec
    buffer_store_dwordx2 {vr(r1,2)}, v{vOs}, {sr(SRD_WS)}, s{sO1} offen sc1
    s_branch L_ost_done{tag}
    L_ost_odd{tag}:
    buffer_store_dwordx4 {vr(r1,4)}, v{vOs}, {sr(SRD_WS)}, s{sO1} offen sc1
    s_mov_b32 exec_hi, 0
    buffer_store_dwordx2 {vr(r0+2,2)}, v{vOs}, {sr(SRD_WS)}, s{sO0} offen offset:8 sc1
    s_not_b64 exec, exec
    buffer_store_dwordx4 {vr(r0,4)}, v{vOs}, {sr(SRD_WS)}, s{sO0} offen sc1
    L_ost_done{tag}:
    s_mov_b64 exec, -1''')
GS = 0
AB = [l for l in SEC.pop('tmp') if not l.strip().startswith(';')]
sec('mha')
def scc_pending(i):
    return i < len(AB) and AB[i].strip().startswith(('s_cselect', 's_mov_b32 s75'))
pos = 0
for g in DM:
    n = pos + OPT['ilv']
    while scc_pending(n): n += 1
    e('\n'.join(AB[pos:n])); pos = n
    e('\n'.join(g))
e('\n'.join(AB[pos:]))
stamp(0)
def x_reads(s):
    return [f'ds_read_b128 {vr(VX + 16*s + 4*ks, 4)}, v{vXr[ks]} offset:{(s%3)*4096}' for ks in range(4)]
e('s_waitcnt vmcnt(22)')
e('\n'.join(x_reads(0)))
e('s_waitcnt vmcnt(8) lgkmcnt(0)')
arrive(1)
stamp(1)
e('\n'.join(x_chunk(3)))
e('s_waitcnt vmcnt(8)')
e('\n'.join(x_reads(1)))
lwait(1)
e(f's_add_u32 s{S_NONCE}, s{S_NONCE}, 1')
stamp(2)
def w_reads(s):
    r = []
    for ks in range(4):
        for ct in range(2):
            for hf in range(2):
                d = VWF + 32 * (s & 1) + 8 * ks + 4 * ct + 2 * hf
                r.append(f'ds_read_b64_tr_b16 {vr(d,2)}, v{(vW0, vW1)[ct]} offset:{s*8192 + ks*2048 + hf*512}')
    return r
if OPT['tskip']: e(f's_cmp_eq_u32 s{S_C}, 7\ns_cbranch_scc1 L_gemm_t')
e('\n'.join(w_reads(0)))
e(f'''s_waitcnt lgkmcnt(0)
s_cmp_lg_u32 s{S_HG}, 0
s_cbranch_scc1 L_gemm_v''')
sQb, sQc = 82, 83
NE = OPT['wq_early']
def wq_dma(st):
    return [f's_add_u32 m0, s{sLx}, {4096 + 1024*st}\ns_add_u32 s83, s82, {64*2688*st}', '', f'buffer_load_dwordx4 v{vQd}, {sr(SRD_B)}, s83 offen lds']
SPIN = []
def gemm1(vpart):
    for s in range(7):
        M = []
        for ks in range(4):
            for ct in range(2):
                wf = vr(VWF + 32 * (s & 1) + 8 * ks + 4 * ct, 4); xf = vr(VX + 16 * s + 4 * ks, 4)
                acc = vr(VACC + 16 * ct, 16)
                a, b = (xf, wf) if vpart else (wf, xf)
                M.append(f'v_mfma_f32_32x32x16_bf16 {acc}, {a}, {b}, {"0" if s == 0 and ks == 0 else acc}')
        gaps = [[] for _ in range(8)]
        tag = f'{"v" if vpart else "k"}{s}'
        pre = []
        dm = []
        def add(l): dm.extend([(l[0], l[2])] + [(None, x) for x in l[3:]])
        if s <= 2: add(x_chunk(s + 4))
        if s == 3:
            for i in range(min(NE, 4)): add(wq_dma(i))
        if s == 4:
            for i in range(4, NE): add(wq_dma(i))
        n = {0: 8, 1: 8, 2: 8, 3: 4 + min(NE, 4), 4: NE}.get(s)
        for i, (m, l) in enumerate(dm):
            if m: (pre if i == 0 else gaps[i - 1]).append(m)
            gaps[i].append(l)
        if s < 6:
            wr = w_reads(s + 1)
            for i, (p, q) in enumerate(((0, 3), (3, 6), (6, 9), (9, 12), (12, 16))): gaps[i] += wr[p:q]
            if s <= 4: gaps[OPT['xg']] += [f's_waitcnt vmcnt({n})'] + x_reads(s + 2)
            gaps[7] += [f's_waitcnt lgkmcnt({4 if s == 4 and OPT["s6"] != 4 else 0})']
        if s == OPT['s6'] and (OPT['uw'] == 6 or OPT['cw'] == 6): gaps[6] += [f'v_mov_b32 v{V_T}, 6', f'ds_write_b32 v{V_OWN}, v{V_T}']
        if s == 5:
            gaps[7] += [f'v_add_u32 v31, 16, v{V_GRP}', f'ds_read_b32 v31, v31']
        if s == 6 and NE == 7:
            gaps[OPT['qa']] += ['s_waitcnt vmcnt(0)', f'v_mov_b32 v{V_T}, 7', f'ds_write_b32 v{V_OWN}, v{V_T}']
        e('\n'.join(pre))
        if OPT['gx'] & 1 or vpart == 2: M = ['s_nop 0'] * 8
        if OPT['gx'] & 2 or vpart == 2: gaps = [[x for x in g if 'tr_b16' not in x] for g in gaps]
        for i in range(8):
            e(M[i]); e('\n'.join(gaps[i]))
        stamp(14 + s)
if OPT['tskip']:
    sec('gt'); e('L_gemm_t:'); gemm1(2); e('s_branch L_gemm_done'); sec('mha')
else: SEC['gt'] = []
gemm1(False)
e('s_branch L_gemm_done\nL_gemm_v:')
gemm1(True)
e('L_gemm_done:')
stamp(3)
e(f"""s_add_u32 s{sS1}, s{sSt}, s{sS2}
s_add_u32 s{sXb}, s{sSt}, {4*KS}
s_add_u32 s{sCw}, s{sS1}, {4*KS}
s_cmp_eq_u32 s{S_C}, 7
s_waitcnt lgkmcnt(0)
s_cbranch_scc1 L_nokv
s_nop 4""")
for q, so in enumerate((sSt, sS1, sXb, sCw)):
    for i in range(4*q, 4*q+4):
        e(f'v_cvt_pk_bf16_f32 v{VPK + i}, v{VACC + 2*i}, v{VACC + 2*i + 1}')
    e(f'buffer_store_dwordx4 {vr(VPK+4*q,4)}, v{vSt}, {sr(SRD_WS)}, s{so} offen sc1')
if OPT['ones']:
    e(f'''s_branch L_kvst
    L_nokv:
    v_mov_b64 v[128:129], s[78:79]
    v_mov_b64 v[130:131], s[78:79]
    v_lshlrev_b32 v132, 4, v{V_LANE}
    s_lshl2_add_u32 s{sTmp}, s{S_TILE}, s{S_W}
    s_lshl_b32 s{sTmp}, s{sTmp}, 8
    s_mul_i32 s{sTmp2}, s{S_HG}, {QS}
    s_add_u32 s{sTmp}, s{sTmp}, s{sTmp2}
    s_add_u32 s{sTmp}, s{sTmp}, {WS_V + 112*QS}
    s_mov_b64 exec, 0xffff
    buffer_store_dwordx4 v[128:131], v132, {sr(SRD_WS)}, s{sTmp} offen sc1
    s_mov_b64 exec, -1
    L_kvst:''')
else: e('L_nokv:')
assert OPT['wgf'] and OPT['ones'] and OPT['pf'] == 2
def kv_loads(buf, i, srdn=SRD_C):
    return [f'buffer_load_dwordx4 {vr(VK + 8*buf, 4)}, v{vKo0}, {sr(srdn)}, s{sK} offen offset:{512*i} sc1',
            f'buffer_load_dwordx4 {vr(VK + 8*buf + 4, 4)}, v{vKo1}, {sr(srdn)}, s{sK} offen offset:{512*i} sc1',
            f'buffer_load_dwordx4 {vr(VV + 8*buf, 4)}, v{vVo}, {sr(srdn)}, s{sV} offen offset:{256*i} sc1',
            f'buffer_load_dwordx4 {vr(VV + 8*buf + 4, 4)}, v{vVo}, {sr(srdn)}, s{sV} offen offset:{256*i + 128} sc1']
fill = [f'v_mov_b64 {vr(VV+2*i,2)}, s[78:79]' for i in range(12, 16)] + [f'v_subrev_u32 v{vRr}, {L_X - L_RB}, v{vQw}', 's_mov_b64 s[80:81], -1']
for s in range(3):
    fill += f"""s_add_u32 s{sTmp}, s{S_W}, {1+s}
    s_and_b32 s{sTmp}, s{sTmp}, 3
    s_sub_u32 s{sTmp}, s{sTmp}, s{S_W}
    s_mul_i32 s{sTmp}, s{sTmp}, 12288
    v_add_u32 v{vQx[s]}, s{sTmp}, v{vQw}
    v_subrev_u32 v{vRb[s]}, {L_X - L_RB - 4096*s}, v{vQx[s]}""".split('\n')
def count_in(n):
    e(f"""v_mov_b32 v{V_T}, 1
    v_mov_b32 v31, 0
    s_waitcnt vmcnt({n})
    s_mov_b64 exec, 1
    ds_add_rtn_u32 v{vSt}, v31, v{V_T} offset:32
    s_mov_b64 exec, -1""")
def count_out(n):
    e(f's_waitcnt lgkmcnt({n})\nv_readfirstlane_b32 s{sTmp2}, v{vSt}\ns_cmp_lg_u32 s{sTmp2}, 3\ns_cbranch_scc1 L_nopub')
    publish(sFl, 31)
    e('L_nopub:'); stamp(5)
NM = max(NE, OPT['wq_mid'])
for st in range(NE, NM): e('\n'.join(wq_dma(st)))
stamp(4)
e(f'v_cmp_gt_u32 vcc, 1, v31\ns_cbranch_vccz L_eok\nv_add_u32 v31, 16, v{V_GRP}')
lwait(1, addr=31)
e('L_eok:')
if NE < 7:
    e('\n'.join(fill)); fill = []
    count_in(NM - NE)
    if NM == 7:
        e('s_waitcnt vmcnt(0)'); arrive(7); count_out(1)
    else:
        count_out(0)
        for st in range(NM, 7): e('\n'.join(wq_dma(st)))
        e('s_waitcnt vmcnt(0)'); arrive(7)
lwait(7)
stamp(6)
QB = [80, 84, 88, 92, 112, 116, 120, 124]
def q_reads(k):
    s, ks = divmod(k, 4)
    return [f'ds_read_b64_tr_b16 {vr(QB[k%8] + 2*hf, 2)}, v{vQr} offset:{ks*12288 + s*1024 + hf*256}' for hf in range(2)]
for k in range(6): e('\n'.join(q_reads(k)))
e('\n'.join(fill[:12])); fill = fill[12:]
zi = 0
PK = OPT['pubk'] if NE == 7 else -99
for k in range(28):
    extra = 1 if PK < k <= PK + 5 else 0
    e(f's_waitcnt lgkmcnt({min(10, 2*(27-k)) + extra})')
    e(f'v_mfma_f32_32x32x16_bf16 {vr(VACC,16)}, {vr(QB[k%8], 4)}, {vr(VX + 4*k, 4)}, {"0" if k == 0 else vr(VACC,16)}')
    if k + 6 < 28: e('\n'.join(q_reads(k + 6)))
    while zi < 40 and VX + 2*zi + 1 < VX + 4*k - 4 and zi < 2*k:
        e(f'v_mov_b64 {vr(VX + 2*zi, 2)}, 0'); zi += 1
    if k >= 22 or k < 2:
        e('\n'.join(fill[:4])); fill = fill[4:]
    if k == PK: count_in(0)
    if k == PK + OPT['wgf']: count_out(2*OPT['wgf'])
    if k == OPT['pollk']: e(f'buffer_load_dword v31, v{vFl}, {sr(SRD_WS)}, 0 offen sc1')
    if k == OPT['chkk']:
        e(f's_waitcnt vmcnt(0)\nv_cmp_ne_u32 vcc, s{S_NONCE}, v31\ns_mov_b64 s[80:81], vcc\ns_cbranch_vccnz L_kv_late')
        for t in range(2): e('\n'.join(kv_loads(t, t)))
        e('L_kv_late:')
assert zi == 40 and VX == VS + 48 and not fill
stamp(7)
e('s_nop 11')
for r in range(16):
    m = vA if r < 4 else (vB if r >= 12 else vC)
    e(f'v_mul_f32 v{VACC + r}, v{m}, v{VACC + r}')
for i in range(8):
    e(f'v_cvt_pk_bf16_f32 v{VQ + 24 + i}, v{VACC + 2*i}, v{VACC + 2*i + 1}')
e(f"""ds_write_b128 v{vQw}, {vr(VQ+24,4)}
ds_write_b128 v{vQw}, {vr(VQ+28,4)} offset:1024""")
arrive(8)
lwait(8)
for s in range(3):
    e(f'ds_read_b128 {vr(VQ+8*s,4)}, v{vQx[s]}\nds_read_b128 {vr(VQ+8*s+4,4)}, v{vQx[s]} offset:1024')
PF = OPT['pf']
if OPT['chkk'] < 28: e('s_cmp_eq_u64 s[80:81], 0\ns_cbranch_scc1 L_kv_done')
poll(vFl, first_issued=OPT['pollk'] < 28 and OPT['chkk'] > 27, reg=31, sleep=OPT['ksleep'])
for t in range(PF): e('\n'.join(kv_loads(t, t)))
e('L_kv_done:')
stamp(8)
OM = OPT['omode']
if OM:
    e(f'''s_lshr_b32 s{sTmp}, s{S_O0}, 3
    s_add_u32 s{sTmp2}, s{S_O0}, 3
    s_lshr_b32 s{sTmp2}, s{sTmp2}, 3
    s_sub_u32 s{sTmp2}, s{sTmp2}, s{sTmp}
    s_lshl_b32 s{sTmp2}, s{sTmp2}, 6
    s_lshl_b32 s{sTmp}, s{sTmp}, 6
    s_lshl2_add_u32 s{sSt}, s{S_TILE}, s{S_W}
    s_add_u32 s{sTmp}, s{sTmp}, s{sSt}
    s_lshl_b32 s{sTmp}, s{sTmp}, {FSH}
    s_add_u32 s{sTmp}, s{sTmp}, {F_Y}
    v_and_b32 v{vFl}, 1, v{V_LANE}
    v_mul_u32_u24 v{vFl}, s{sTmp2}, v{vFl}
    v_and_b32 v31, 2, v{V_LANE}
    v_lshl_add_u32 v{vFl}, v31, 8, v{vFl}
    v_lshl_add_u32 v{vFl}, v{vFl}, {FSH}, s{sTmp}''')
def qk(buf, slot, js):
    d = vr(VS + 16*slot, 16)
    return f'v_mfma_f32_32x32x16_bf16 {d}, {vr(VK + 8*buf + 4*js, 4)}, {vr(VQ + 8*slot + 4*js, 4)}, {"0" if js == 0 else d}'
def pv(buf, slot, js):
    return f'v_smfmac_f32_32x32x32_bf16 {vr(VO + 16*slot, 16)}, {vr(VV + 8*buf + 4*js, 4)}, {vr(VS + 16*slot + 8*js, 8)}, v{vIdx}'
def exps(s): return [f'v_exp_f32 v{VS + 16*s + r}, v{VS + 16*s + r}' for r in range(16)]
SPREAD = []
def unit(t, s):
    ex = exps(s)
    if OPT['ax'] & 16 and s in (0, 1, 2):
        pass
    nb = t if s < 3 else (t + 1) & 3
    pb = t if s > 0 else (t - 1) & 3
    if s == 3: e(f's_waitcnt vmcnt({4*PF-4})')
    e(qk(nb, (s+1) & 3, 0)); e('\n'.join(ex[0:4]))
    e(qk(nb, (s+1) & 3, 1)); e('\n'.join(ex[4:8]))
    e(pv(pb, (s-1) & 3, 0))
    if s == 1:
        kl = kv_loads((t + PF) & 3, t + PF)
        if OPT['ax'] & 1: kl = [x for x in kl if 'exec' not in x]
        if OPT['ax'] & 2: kl = [x for x in kl if 'buffer' not in x]
        if OPT['ax'] & 4: kl = [x.replace(' sc1', '') for x in kl]
        if OPT['ax'] & 8: SPREAD.extend(kl); kl = []
        e('\n'.join(kl))
        if t == 3 - PF:
            e(f's_cmp_eq_u32 s{sIt}, 3\ns_cselect_b32 s{SRD_C+2}, 0, s{SRD_C+2}')
        if t == 3:
            e(f's_add_u32 s{sK}, s{sK}, 2048\ns_add_u32 s{sV}, s{sV}, 1024\ns_add_u32 s{sIt}, s{sIt}, 1\ns_cmp_lg_u32 s{sIt}, 4')
    e('\n'.join(ex[8:12]))
    e(pv(pb, (s-1) & 3, 1)); e('\n'.join(ex[12:16]))
e(f's_mov_b32 s{sIt}, 0\ns_waitcnt vmcnt({4*PF - 4}) lgkmcnt(0)')
stamp(9)
e(qk(0, 0, 0)); e(qk(0, 0, 1))
e(f"s_setprio {OPT['pa']}\ns_nop 8\ns_branch L_att_in" if OPT['prio'] else 's_nop 9\ns_branch L_att_in')
e('L_att:')
unit(3, 2); unit(3, 3)
e('L_att_in:')
for t in range(4):
    for s in range(4):
        if (t, s) < (3, 2): unit(t, s)
e('s_cbranch_scc1 L_att')
if OPT['prio']: e(f"s_setprio {OPT['pm']}")
if OM: e(f'buffer_load_dword v31, v{vFl}, {sr(SRD_WS)}, 0 offen sc1')
def rbw(s): return [f'ds_write_b128 v{vRb[s]}, {vr(VO + 16*s + 4*i, 4)} offset:{1024*i}' for i in range(4)]
ex = exps(2); w0 = rbw(0)
e(qk(3, 3, 0)); e('\n'.join(ex[0:4])); e(qk(3, 3, 1)); e('\n'.join(ex[4:7] + [w0[0]]))
e(pv(3, 1, 0)); e('\n'.join(ex[7:10] + [w0[1]])); e(pv(3, 1, 1)); e('\n'.join(ex[10:13] + [w0[2]] + ex[13:16] + [w0[3]]))
ex = exps(3); w1 = rbw(1); w2 = rbw(2)
e(pv(3, 2, 0)); e('\n'.join(ex[0:3])); e(pv(3, 2, 1))
e('\n'.join([w1[0]] + ex[3:5] + [w1[1]] + ex[5:7] + [w1[2]] + ex[7:9] + [w1[3]] + ex[9:10]))
e(pv(3, 3, 0))
e('\n'.join([w2[0]] + ex[10:12] + [w2[1]] + ex[12:14] + [w2[2]] + ex[14:16] + [w2[3]]))
arrive(9)
e(pv(3, 3, 1))
stamp(10)
lwait(9)
for i in range(12): e(f'ds_read_b128 {vr(VS + 4*i, 4)}, v{vRr} offset:{1024*i}')
OA = VO + 48
for s in range(3):
    e(f's_waitcnt lgkmcnt({8 - 4*s})')
    for i in range(8): e(f'v_pk_add_f32 {vr(OA+2*i,2)}, {vr(OA+2*i,2)}, {vr(VS+16*s+2*i,2)}')
e(f's_mov_b32 s{sIt}, {1 if OPT["force_fb"] else 0}')
e(f'''L_norm:
v_cndmask_b32 v{vA}, v{OA+12}, v{OA}, s[{sOdd}:{sOdd+1}]
v_max3_f32 v{vC}, abs(v{OA}), abs(v{OA+1}), abs(v{OA+2})
v_mov_b32 v{vB}, v{vA}
v_max3_f32 v{vC}, abs(v{OA+3}), abs(v{OA+4}), v{vC}
v_max3_f32 v{vC}, abs(v{OA+5}), abs(v{OA+6}), v{vC}
v_permlane32_swap_b32 v{vA}, v{vB}
v_max3_f32 v{vC}, abs(v{OA+7}), abs(v{OA+8}), v{vC}
v_cndmask_b32 v{vB}, v{vB}, v{vA}, s[{sOdd}:{sOdd+1}]
v_max3_f32 v{vC}, abs(v{OA+9}), abs(v{OA+10}), v{vC}
v_rcp_f32 v{vA}, v{vB}
v_max3_f32 v{vC}, abs(v{OA+11}), abs(v{OA+12}), v{vC}
v_max3_f32 v{vC}, abs(v{OA+13}), abs(v{OA+14}), v{vC}
v_max_f32 v{vC}, abs(v{OA+15}), v{vC}
v_cmp_nle_f32 vcc, 0x30800000, v{vB}
s_mov_b64 s[78:79], vcc
v_cmp_nge_f32 vcc, 0x4e800000, v{vB}
s_or_b64 s[78:79], s[78:79], vcc
v_cmp_ngt_f32 vcc, 0x7f000000, v{vC}
s_or_b64 vcc, s[78:79], vcc''')
if OPT['force_fb']:
    e(f's_cmp_eq_u32 s{sIt}, 1\ns_cbranch_scc1 L_fb')
e('s_cbranch_vccnz L_fb0\nL_norm2:')
for i in range(8): e(f'v_pk_mul_f32 {vr(OA+2*i,2)}, {vr(OA+2*i,2)}, {vr(vA,2)} op_sel_hi:[1,0]')
for i in range(8): e(f'v_cvt_pk_bf16_f32 v{VS+i}, v{OA+2*i}, v{OA+2*i+1}')
if OM: poll(vFl, first_issued=2, reg=31)
o_stores(VS, VS + 4, '')
stamp(11)
if OM == 4: publish(sFo, vA)
if OPT['obar'] == 1: e('s_barrier')
if OPT['obar'] >= 3: e(f"s_waitcnt vmcnt({5 - OPT['obar'] + (OM == 4)})\ns_barrier")
if OM == 0:
    e('s_waitcnt vmcnt(0)'); publish(sFo, vA)
if OPT['obar'] == 2: e('s_barrier')
stamp(12)
prof_out()
e('s_endpgm')

for tag, st in SPIN:
    e(f'L_ws_{tag}:'); lwait(st); e(f's_branch L_wb_{tag}')
sec('fb')
e(f'''L_fb0:
s_cmp_eq_u32 s{sIt}, 2
s_cbranch_scc1 L_norm2
L_fb:
s_waitcnt vmcnt(0)
s_mul_i32 s{sTmp}, s{S_O0}, {KS}
s_add_u32 s{sK}, s{sTmp}, {WS_K}
s_add_u32 s{sV}, s{sTmp}, {WS_V}
v_mov_b32 v{vC}, 0xff800000
s_mov_b32 s{sIt}, 0
L_fb1:''')
e('\n'.join(kv_loads(0, 0, SRD_WS)[:2]))
e('s_waitcnt vmcnt(0)')
e(qk(0, 3, 0)); e(qk(0, 3, 1)); e('s_nop 11')
for i in range(8): e(f'v_max3_f32 v{vC}, v{VS+48+2*i}, v{VS+49+2*i}, v{vC}')
e(f'''s_add_u32 s{sK}, s{sK}, 512
s_add_u32 s{sIt}, s{sIt}, 1
s_cmp_lg_u32 s{sIt}, 64
s_cbranch_scc1 L_fb1
v_mov_b32 v{vA}, v{vC}
s_sub_u32 s{sK}, s{sK}, 0x8000
s_mov_b32 s{sIt}, 0
v_permlane32_swap_b32 v{vA}, v{vC}
v_max_f32 v{vC}, v{vA}, v{vC}''')
for i in range(8): e(f'v_mov_b64 {vr(OA+2*i,2)}, 0')
e('L_fb2:')
e('\n'.join(kv_loads(0, 0, SRD_WS)))
e('s_waitcnt vmcnt(0)')
e(qk(0, 3, 0)); e(qk(0, 3, 1)); e('s_nop 11')
for i in range(16): e(f'v_sub_f32 v{VS+48+i}, v{VS+48+i}, v{vC}')
for i in range(16): e(f'v_exp_f32 v{VS+48+i}, v{VS+48+i}')
e('s_nop 1')
e(pv(0, 3, 0)); e(pv(0, 3, 1))
e(f'''s_add_u32 s{sK}, s{sK}, 512
s_add_u32 s{sV}, s{sV}, 256
s_add_u32 s{sIt}, s{sIt}, 1
s_cmp_lg_u32 s{sIt}, 64
s_cbranch_scc1 L_fb2
s_mov_b32 s{sIt}, 2
s_nop 11
s_branch L_norm''')

sD0, sD, sHw, sDs, sTab, sA, sB, sLd, sSk, sIt2, sFlU, sInv, sUns, sSel, sUl, sOl, sCh0 = range(60, 77)
sUs, sOut, sHm = 78, 80, 82
sE2, sP, sE3, sKd = 84, 85, 86, 87
OUTM = 'sc1' if OPT['outsc'] & 1 else ''
OUTM2 = 'sc1' if OPT['outsc'] & 2 else ''
a0, a1, a2, a3 = 5, 6, 7, 9
vPar = 10
vKc = 18
vRa, vRb_, vKd, vKd1, vKa, vKa0, vFu, vE1, vE1b, vFr, vKxo, vKxp, vPair, vRz, vBk, vA0, vA1, vKb, vSB, vSB0 = range(20, 40)
vSel = 180
vAc = 40
vOne, vScl, vAdd, vC0 = range(56, 60)
vOp = 64
vY = 128
vXt = 144
vAn = 166
vX1 = 172
T0, T1 = 160, 176
vZ = 192
U = 204
vZer = 220
vUa, vCd, vG_, vZp, vKp, vF_, vL16, vXo, vXp, vTr, vYl, vYs, vFy = range(224, 237)
vWoD = 238
vWoR = 240
vOl, vFo, vBw, vBr, vOut = range(242, 247)
def hi():
    if OPT['prio']: e('s_setprio 3')
KG = [True]
def lo():
    if OPT['prio']: e(f"s_setprio {OPT['kgp'] if KG[0] else OPT['ps']}")
ROLE[0] = 1
sec('ssm0')
e(f"""s_cmp_{'eq' if OPT['only'] != 2 else 'le'}_u32 s{S_C}, 7
s_cbranch_scc1 L_ssm_idle
s_lshr_b32 s{sDs}, s{S_W}, 1
s_lshl_b32 s{sD0}, s{S_C}, 6
s_lshl1_add_u32 s{sD0}, s{S_J}, s{sD0}
s_add_u32 s{sD}, s{sD0}, s{sDs}
s_mul_i32 s{sTab}, s{S_W}, {TABSZ}
s_add_u32 s{sTab}, s{sTab}, {L_TAB}
s_lshl1_add_u32 s{sA}, s{sD0}, s{S_W}
s_lshl_b32 s{sA}, s{sA}, 8
v_lshl_add_u32 v{a0}, v{V_LANE}, 2, s{sA}
s_mov_b32 m0, s{sTab}
s_lshl_b32 s{sB}, s{sD0}, 1
s_waitcnt lgkmcnt(0)
s_load_dword s{sLd}, s[14:15], s{sB}
s_load_dword s{sSk}, s[16:17], s{sB}
global_load_dword v{vPar+0}, v{a0}, s[6:7]
global_load_dword v{vPar+1}, v{a0}, s[8:9]
global_load_dword v{vPar+2}, v{a0}, s[10:11]
global_load_dword v{vPar+3}, v{a0}, s[12:13]
global_load_dword v{vPar+4}, v{V_T}, s[28:29]""")
if OPT['tlb'] != 2: e('s_barrier')
if OPT['tlb']:
    e(f'''v_and_b32 v{a0}, 7, v{V_LANE}
    v_min_u32 v{a0}, 5, v{a0}
    v_lshlrev_b32 v{a0}, 21, v{a0}
    v_add_u32 v{a0}, 0xf8000, v{a0}
    v_mov_b32 v{a1}, 0
    global_load_dword v8, v{a0}, s[28:29]
    global_load_dword v8, v{a1}, s[22:23]''')
if OPT['tlb'] == 2: e('s_barrier')
e('s_branch L_ssm')
sec('ssm')
e('L_ssm:')
if OPT['abl'] == 1:
    arrive(1); e('s_waitcnt vmcnt(0) lgkmcnt(0)\ns_endpgm')
lo()
srd(SRD_WS, 28, WS_SIZE)
e(f"""s_and_b32 s{sHw}, s{S_W}, 1
v_add_u32 v{V_GRP}, 16, v{V_GRP}
v_and_b32 v{a0}, 15, v{V_LANE}
v_lshrrev_b32 v{a1}, 4, v{V_LANE}
v_lshl_add_u32 v{vRb_}, v{a1}, 4, s{sTab}
v_mul_u32_u24 v{a2}, {TROW}, v{a0}
v_add_u32 v{vRa}, v{a2}, v{vRb_}
v_lshlrev_b32 v{vL16}, 4, v{V_LANE}
v_mov_b32 v{vOne}, 0x3c00
ds_write_addtid_b32 v{vOne}""")
for i in range(8): e(f'v_mov_b64 {vr(vAc+2*i,2)}, 0')
mid = f"""v_and_b32 v{a0}, 7, v{V_LANE}
s_and_b32 s{sB}, s2, {OPT['ur'] - 1}
s_lshl2_add_u32 s{sB}, s{sB}, s{S_W}
s_mul_i32 s{sB}, s{sB}, {8*US}
s_add_u32 s{sB}, s{sB}, {F_U}
v_mul_u32_u24 v{vFu}, {US}, v{a0}
v_add_u32 v{vFu}, s{sB}, v{vFu}
s_mul_i32 s{sP}, s{sDs}, {P_SZ}
s_add_u32 s{sP}, s{sP}, {L_TAB}
s_add_u32 s{sKd}, s{sP}, {P_KD}
s_lshl_b32 s{sB}, s{sHw}, 8
s_add_u32 s{sInv}, s{sB}, s{sKd}
s_add_u32 s{sA}, s{sInv}, {1088 + 128}
v_lshl_add_u32 v{vRz}, v{a0}, 4, s{sA}
v_mov_b32 v{vKb}, s{sKd}
v_and_b32 v{a0}, 15, v{V_LANE}
v_lshrrev_b32 v{a1}, 4, v{V_LANE}
s_lshl_b32 s{sA}, s{sHw}, 4
v_add_u32 v{a0}, s{sA}, v{a0}
v_and_b32 v{a3}, 1, v{V_LANE}
v_mul_u32_u24 v{a2}, 255, v{a3}
v_sub_u32 v{a2}, v{a2}, v{a0}
s_add_u32 s{sA}, s{sKd}, {1088 + 32}
v_add_u32 v{vKa}, s{sA}, v{a2}
v_add_u32 v{vKa0}, 96, v{vKa}
s_lshl3_add_u32 s{sA}, s{sDs}, 16
v_lshl_add_u32 v{vPair}, v{a3}, 2, s{sA}
s_mul_i32 s{sA}, s{sHw}, {1088 + 112 - 1024}
s_add_u32 s{sA}, s{sA}, s{sKd}
s_add_u32 s{sA}, s{sA}, 1024
v_writelane_b32 v{vKa0}, s{sA}, 0
s_mul_i32 s{sA}, s{sHw}, 56
s_sub_u32 s{sA}, s{sKd}, s{sA}
s_add_u32 s{sA}, s{sA}, 1088
v_writelane_b32 v{vKa0}, s{sA}, 16
v_max_u32 v{a2}, 1, v{a1}
v_sub_u32 v{a2}, 5, v{a2}
v_lshlrev_b32 v{a0}, v{a2}, v{a0}
v_lshlrev_b32 v{a2}, 3, v{a1}
s_mov_b32 s{sA}, 0x60400100
v_bfe_u32 v{a1}, s{sA}, v{a2}, 8
v_lshl_add_u32 v{a0}, v{a1}, 3, v{a0}
v_add_u32 v{vKd}, s{sKd}, v{a0}
s_mov_b32 s{sA}, 0x80040404
v_bfe_u32 v{a1}, s{sA}, v{a2}, 8
v_add_u32 v{vKd1}, v{a1}, v{vKd}
v_lshrrev_b32 v{a1}, 1, v{V_LANE}
v_lshlrev_b32 v{vUa}, 6, v{a1}
v_lshl_add_u32 v{vUa}, v{a3}, 4, v{vUa}
s_lshr_b32 s{sA}, s{sD0}, 2
s_mul_i32 s{sA}, s{sA}, {QS}
s_and_b32 s{sB}, s{sD0}, 3
s_lshl4_add_u32 s{sA}, s{sB}, s{sA}
s_lshl_b32 s{sB}, s{S_W}, 12
s_add_u32 s{sA}, s{sA}, s{sB}
s_add_u32 s{sUl}, s{sA}, {WS_U}
v_and_b32 v{a1}, 3, v{a1}
v_lshl_add_u32 v{a1}, v{a3}, 2, v{a1}
v_mul_u32_u24 v{a1}, {PS}, v{a1}
v_lshrrev_b32 v{a2}, 3, v{V_LANE}
v_lshl_add_u32 v{a1}, v{a2}, 4, v{a1}
s_lshl_b32 s{sA}, s{S_W}, 8
s_add_u32 s{sA}, s{sA}, {L_KP + 512}
v_add_u32 v{vKp}, s{sA}, v{a1}
; byte selectors that expand the distinct taps to the lags (lag l uses the tap at bf16(l), as in the reference)
v_lshrrev_b32 v{a1}, 5, v{V_LANE}
s_lshl_b32 s{sA}, s{sHw}, 1
v_max_u32 v{a0}, s{sA}, v{a1}
v_min_u32 v{a2}, 1, v{a0}
v_mul_u32_u24 v{a2}, 0x0202, v{a2}
v_lshlrev_b32 v{a2}, 16, v{a2}
v_sub_u32 v{vSel}, 0x03020100, v{a2}
v_mul_u32_u24 v{a2}, 0x0202, v{a0}
v_lshl_or_b32 v{a2}, v{a2}, 16, v{a2}
v_sub_u32 v{vSel+1}, 0x07060504, v{a2}
s_mul_i32 s{sA}, s{sHw}, 0x02020202
v_add_u32 v{vSel+2}, s{sA}, v{vSel}
s_mul_i32 s{sA}, s{sHw}, 0x02020404
v_add_u32 v{vSel+3}, s{sA}, v{vSel+1}
v_lshrrev_b32 v{a2}, v{a0}, v{vL16}
s_movk_i32 s{sA}, 256
v_lshl_add_u32 v{a2}, s{sA}, v{a0}, v{a2}
s_sub_u32 s{sA}, s{sKd}, 256
v_add_u32 v{vE1}, s{sA}, v{a2}
v_lshlrev_b32 v{a2}, 2, v{a0}
v_sub_u32 v{vE1b}, v{vE1}, v{a2}
s_mov_b32 s{sA}, 0x0c0c0c0c
s_cmp_lg_u32 s{sHw}, 0
s_cselect_b32 s{sE2}, 0x01000100, s{sA}
s_cselect_b32 s{sE3}, 0x05040302, s{sA}
v_mov_b32 v{vSel+4}, s{sA}
v_mov_b32 v{vSel+5}, s{sA}
v_mov_b32 v{vSel+6}, s{sA}
v_mov_b32 v{vSel+7}, s{sA}
s_mov_b32 s{sA}, 0x05040504
s_mov_b64 exec, 15
v_mov_b32 v{vSel+4}, s{sA}
v_mov_b32 v{vSel+5}, s{sA}
v_mov_b32 v{vSel+6}, s{sA}
s_mov_b64 exec, -1
v_writelane_b32 v{vSel+7}, s{sA}, 3
s_mov_b32 s{sA}, 0x05040302
v_writelane_b32 v{vSel+4}, s{sA}, 3
s_mov_b32 s{sA}, 0x0c0c0504
v_writelane_b32 v{vSel+6}, s{sA}, 0
v_writelane_b32 v{vSel+7}, s{sA}, 2
s_mul_i32 s{sA}, s{S_W}, {2*PS}
s_add_u32 s{sA}, s{sA}, {L_KP}
v_mul_u32_u24 v{a2}, {PS - 512}, v{a1}
v_add3_u32 v{vG_}, v{a2}, v{vL16}, s{sA}
v_mov_b64 {vr(vZer,2)}, 0
v_mov_b64 {vr(vZer+2,2)}, 0
ds_write_b128 v{vG_}, {vr(vZer,4)}
s_lshl_b32 s{sA}, s{sHw}, 10
s_add_u32 s{sB}, s{sP}, {P_UC}
s_add_u32 s{sA}, s{sA}, s{sB}
s_add_u32 s{sA}, s{sA}, 64
v_add_u32 v{vCd}, s{sA}, v{vL16}
v_and_b32 v{a3}, 3, v{V_LANE}
v_and_b32 v{a0}, 0x1c, v{V_LANE}
v_lshlrev_b32 v{a2}, 2, v{a0}
v_and_b32 v{vZp}, 0x30, v{a2}
s_mov_b32 exec_hi, 0
v_add_u32 v{vZp}, 2112, v{a2}
s_mov_b64 exec, -1
v_mul_u32_u24 v{a2}, {UC_S}, v{a3}
v_add3_u32 v{vZp}, v{vZp}, v{a2}, s{sB}
v_lshlrev_b32 v{a0}, 1, v{a0}
v_sub_u32 v{a0}, v{a0}, v{a2}
v_lshlrev_b32 v{a1}, 4, v{a1}
v_sub_u32 v{a0}, v{a0}, v{a1}
s_lshl_b32 s{sA}, s{sHw}, 5
s_sub_u32 s{sB}, s{sB}, s{sA}
s_add_u32 s{sB}, s{sB}, {56 + 3*UC_S}
v_add_u32 v{vF_}, s{sB}, v{a0}
v_add_u32 v{vG_}, {512 - 80}, v{vG_}
v_add_u32 v{vKxo}, s{sTab}, v{vL16}
s_xor_b32 s{sA}, s{S_W}, 1
s_mul_i32 s{sA}, s{sA}, {TABSZ}
s_add_u32 s{sA}, s{sA}, {L_TAB}
v_add_u32 v{vKxp}, s{sA}, v{vL16}
v_and_b32 v{a0}, 31, v{V_LANE}
v_lshlrev_b32 v{a2}, 2, v{a0}
v_sub_u32 v{a2}, v{a1}, v{a2}
s_add_u32 s{sA}, s{sInv}, {1088 + 124}
v_add_u32 v{vBk}, s{sA}, v{a2}
"""
e(mid)
stamp(22)
e(f"""s_waitcnt lgkmcnt(0)
s_lshl_b32 s{sA}, s{sDs}, 4
s_lshr_b32 s{sLd}, s{sLd}, s{sA}
s_lshl_b32 s{sLd}, s{sLd}, 16
s_lshr_b32 s{sSk}, s{sSk}, s{sA}
s_lshl_b32 s{sSk}, s{sSk}, 16
v_mov_b32 v{a0}, s{sLd}
v_mul_f32 v{a0}, 0x3fb8aa3b, v{a0}
v_exp_f32 v{a0}, v{a0}
s_cmp_eq_u32 s{sHw}, 0
s_cselect_b32 s{sSk}, s{sSk}, 0
v_cvt_pk_bf16_f32 v{a0}, v{a0}, v{a0}
v_and_b32 v{vScl}, 0xffff0000, v{a0}
v_mul_f32 v{vKc}, 0xbfb8aa3b, v{vScl}
v_mul_f32 v{vKc+1}, 0.15915494, v{vScl}
v_mov_b32 v{vAdd}, 0
v_add_f32 v{vScl}, v{vScl}, v{vScl}
v_writelane_b32 v{vAdd}, s{sSk}, 0
s_mov_b32 s{sIt2}, 0
s_mov_b32 s{sSel}, 0x01000c0c""")
stamp(0)
e(f"""s_waitcnt vmcnt({3 if OPT['tlb'] else 1})
v_and_b32 v{a0}, 0x7f807f80, v{vPar+2}
v_and_b32 v{a1}, 0x7f807f80, v{vPar+3}
v_pk_max_u16 v{a0}, v{a0}, v{a1}
v_lshlrev_b32 v{a1}, 16, v{a0}
v_max_u32 v{a0}, v{a0}, v{a1}""")
for q, n in enumerate((1, 2, 4, 8)):
    e(f's_nop 1\nv_max_u32_dpp v{a0}, v{a0}, v{a0} row_ror:{n} row_mask:0xf bank_mask:0xf')
e(f"""s_nop 0
v_readlane_b32 s{sA}, v{a0}, 0
v_readlane_b32 s{sB}, v{a0}, 16
v_readlane_b32 s{sInv}, v{a0}, 32
v_readlane_b32 s{sUns}, v{a0}, 48
s_max_u32 s{sA}, s{sA}, s{sB}
s_max_u32 s{sUns}, s{sUns}, s{sInv}
s_max_u32 s{sUns}, s{sUns}, s{sA}
s_and_b32 s{sUns}, s{sUns}, 0x7f800000
s_min_u32 s{sUns}, s{sUns}, 0x7e800000
s_sub_u32 s{sInv}, 0x7f000000, s{sUns}
v_mul_f32 v{vScl}, s{sUns}, v{vScl}
v_mul_f32 v{vSB}, 0x43000000, v{vScl}
v_mov_b32 v{vSB0}, v{vSB}
s_mov_b64 exec, 1
v_mov_b32 v{vSB0}, v{vScl}
s_mov_b64 exec, -1""")
stamp(1)
if OPT['abl'] == 2: e('s_endpgm')
def cm(jobs, conj):
    ng = 'neg_hi:[1,0,0]' if conj else 'neg_lo:[1,0,0]'
    return [f'v_pk_mul_f16 v{d}, v{x}, v{w} op_sel_hi:[1,0]' for d, x, w in jobs] + \
           [f'v_pk_fma_f16 v{d}, v{x}, v{w}, v{d} op_sel:[1,1,0] op_sel_hi:[0,1,1] {ng}' for d, x, w in jobs]
def wr(reg): return f'ds_write_addtid_b32 v{reg} offset:{TROW*(reg - vY)}'
assert vXt == vY + 16
zA, zB, tA, tB, pA, pB = vZ, vZ+2, vZ+4, vZ+6, vZ+8, vZ+10
X = vXt; Y = vY
an = {1: vAn, 2: vAn+1, 4: vAn+2, 8: Y+1, 16: Y+2, 32: Y+4, 64: Y+8, 128: X+21, 256: vAn+3, 512: vAn+4, 1024: vAn+5}
e('L_kg:')
stamp(14)
seq = f"""v_perm_b32 v{pA}, v{vPar}, v{vPar}, s{sSel}
v_mul_f32 v{pA}, 0x3fb8aa3b, v{pA}
v_exp_f32 v{pA}, v{pA}
v_perm_b32 v{pA+1}, v{vPar+1}, v{vPar+1}, s{sSel}
v_perm_b32 v{tA}, v{vPar+2}, v{vPar+2}, s{sSel}
v_perm_b32 v{tA+1}, v{vPar+3}, v{vPar+3}, s{sSel}
v_cvt_pk_bf16_f32 v{pA}, v{pA}, v{pA}
v_mul_f32 v{tA}, s{sInv}, v{tA}
v_and_b32 v{pA}, 0xffff0000, v{pA}
v_mul_f32 v{tA+1}, s{sInv}, v{tA+1}
v_pk_mul_f32 {vr(pA,2)}, {vr(pA,2)}, {vr(vKc,2)}
v_cvt_pk_f16_f32 v{X}, v{tA}, -v{tA+1}
v_mul_f32 v{pB}, 0x42800000, v{pA}
v_mul_f32 v{pB+1}, 0x42800000, v{pA+1}
v_exp_f32 v{pA}, v{pA}
v_fract_f32 v{pA+1}, v{pA+1}
v_exp_f32 v{pB}, v{pB}
v_fract_f32 v{pB+1}, v{pB+1}
v_cos_f32 v{zA}, v{pA+1}
v_sin_f32 v{zA+1}, v{pA+1}
v_cos_f32 v{zB}, v{pB+1}
v_sin_f32 v{zB+1}, v{pB+1}
v_pk_mul_f32 {vr(zA,2)}, {vr(zA,2)}, {vr(pA,2)} op_sel_hi:[1,0]
v_pk_mul_f32 {vr(zB,2)}, {vr(zB,2)}, {vr(pB,2)} op_sel_hi:[1,0]""".split('\n')
for st in range(6):
    chains = [(zA, tA, an[1 << st], st < 5)] + ([(zB, tB, an[64 << st], st < 4)] if st < 5 else [])
    for z, t, d, sq in chains:
        if sq: seq.append(f'v_pk_mul_f32 {vr(t,2)}, {vr(z,2)}, {vr(z,2)} op_sel_hi:[0,1]')
    for z, t, d, sq in chains: seq.append(f'v_cvt_pk_f16_f32 v{d}, v{z}, v{z+1}')
    for z, t, d, sq in chains:
        if sq: seq.append(f'v_pk_fma_f32 {vr(z,2)}, {vr(z,2)}, {vr(z,2)}, {vr(t,2)} op_sel:[1,1,0] op_sel_hi:[0,1,1] neg_lo:[1,0,0]')
seq += cm([(X+1, X, an[1]), (X+2, X, an[2]), (X+4, X, an[4]), (X+8, X, an[256]), (X+12, X, an[512]), (X+16, X, an[1024])], True)
seq += cm([(Y+3, Y+1, Y+2), (Y+12, Y+4, Y+8), (Y+5, Y+4, Y+1), (Y+6, Y+4, Y+2), (Y+9, Y+8, Y+1), (Y+10, Y+8, Y+2)], False)
seq += cm([(X+3, X+1, an[2]), (X+5, X+1, an[4]), (X+6, X+2, an[4]), (X+9, X+2, an[256]), (X+10, X+4, an[256]), (X+13, X+4, an[512]),
           (X+14, X+8, an[512]), (X+17, X+8, an[1024]), (X+18, X+12, an[1024]), (X+20, X+16, an[1024])], True)
seq += cm([(Y+7, Y+4, Y+3), (Y+11, Y+8, Y+3), (Y+13, Y+12, Y+1), (Y+14, Y+12, Y+2), (Y+15, Y+12, Y+3)], False)
seq += cm([(X+7, X+3, an[4]), (X+11, X+6, an[256]), (X+15, X+10, an[512]), (X+19, X+14, an[1024])], True)
e('\n'.join(seq))
stamp(15)
if OPT['kgw']:
    e(f'v_subrev_u32 v{a0}, 16, v{V_GRP}'); lwait(OPT['kgw'], addr=a0)
hi()
if OPT['abl'] != 4: e('\n'.join(wr(r) for r in range(Y + 1, X + 22)))
for k in range(4):
    o = vOp + 16*k
    e(f"""ds_read_b128 {vr(o,4)}, v{vRa} offset:{64*k}
    ds_read_b128 {vr(o+4,4)}, v{vRb_} offset:{37*TROW + 64*k}
    ds_read_b128 {vr(o+8,4)}, v{vRa} offset:{16*TROW + 64*k}
    ds_read_b128 {vr(o+12,4)}, v{vRa} offset:{32*TROW + 64*k}""")
if not OPT['uw']: e(f's_cmp_eq_u32 s{sIt2}, 0\ns_cbranch_scc1 L_kg_n\nbuffer_load_dword v{vFr}, v{vFu}, {sr(SRD_WS)}, 0 offen sc1\nL_kg_n:')
stamp(16)
def mf(c, a, b): return f'v_mfma_f32_16x16x32_f16 {vr(c,4)}, {vr(a,4)}, {vr(b,4)}, {vr(c,4)}'
late_m = []
for k in range(4):
    o = vOp + 16*k; y1 = vX1 + 4*(k & 1)
    p = cm([(y1+r, o+r, o+4+r) for r in range(4)], False)
    e(f's_waitcnt lgkmcnt({12 - 4*k})')
    e('\n'.join([mf(vAc, o+8, o)] + p[0:2] + late_m[:1] + p[2:4] + [mf(vAc+4, o+12, o)] + p[4:6] + late_m[1:] + p[6:8]))
    late_m = [mf(vAc+8, o+8, y1), mf(vAc+12, o+12, y1)]
e(f"""s_add_u32 s{sSel}, s{sSel}, 0x02020000
s_add_u32 s{sIt2}, s{sIt2}, 1
s_cmp_lg_u32 s{sIt2}, 2""")
e('\n'.join(late_m))
lo()
e('s_cbranch_scc1 L_kg')
stamp(17)
if OPT['abl'] in (4, 8): e('s_endpgm')
def scl(i): return vSB0 if i == 4 else (vSB if i & 4 else vScl)
for i in range(8): e(f'v_mul_f32 v{vAc+i}, v{scl(i)}, v{vAc+i}')
e(f's_cmp_eq_u32 s{sHw}, 0')
for i in range(8, 16): e(f'v_mul_f32 v{vAc+i}, v{scl(i)}, v{vAc+i}')
e('s_cbranch_scc1 L_kx')
for i in range(8): e(f'v_swap_b32 v{vAc+i}, v{vAc+8+i}')
e(f"""L_kx:
ds_write_b128 v{vKxo}, {vr(vAc+8,4)}
s_mov_b32 exec_hi, 0
ds_write_b128 v{vKxo}, {vr(vAc+12,4)} offset:1024
s_mov_b64 exec, -1
s_waitcnt vmcnt(0)
v_readfirstlane_b32 s{S_NONCE}, v{vPar+4}""")
arrive(2)
e(f's_add_u32 s{S_NONCE}, s{S_NONCE}, 1')
e(f'v_add_f32 v{vAc}, v{vAdd}, v{vAc}')
stamp(18)
def bprio():
    if OPT['prio']: e(f"s_setprio {OPT['bp']}")
def u_look():
    hi(); e(f'buffer_load_dword v{vFr}, v{vFu}, {sr(SRD_WS)}, 0 offen sc1'); bprio()
def u_fetch():
    hi()
    stamp(20)
    poll(vFu, first_issued=True, reg=vFr, sleep=OPT['usleep'])
    stamp(21)
    for k in range(2):
        e(f'buffer_load_dwordx4 {vr(U+4*k,4)}, v{vUa}, {sr(SRD_WS)}, s{sUl} offen offset:{2048*k} sc1')
    bprio()
if OPT['uw'] == -2: u_look()
else: bprio()
stamp(19)
lwait(2, addr=vPair)
e(f"""ds_read_b128 {vr(vAc+8,4)}, v{vKxp}
ds_read_b128 {vr(vAc+12,4)}, v{vKxp} offset:1024
ds_write_b128 v{vRz}, {vr(vZer,4)}
s_mov_b32 s{sIt2}, 4
s_waitcnt lgkmcnt(1)""")
for i in range(4): e(f'v_pk_add_f32 {vr(vAc+2*i,2)}, {vr(vAc+2*i,2)}, {vr(vAc+8+2*i,2)}')
for i in range(4): e(f'v_cvt_pk_bf16_f32 v{vAc+8+i}, v{vAc+2*i}, v{vAc+2*i+1}')
e(f"""ds_write_b32 v{vKd}, v{vAc+8}
ds_write_b32 v{vKd1}, v{vAc+9}
s_mov_b64 exec, 0x1ffff
ds_write_b16 v{vKa0}, v{vAc+10}
s_mov_b64 exec, 0xffff
ds_write_b16_d16_hi v{vKa}, v{vAc+10} offset:64
ds_write_b16 v{vKa}, v{vAc+11} offset:32
ds_write_b16_d16_hi v{vKa}, v{vAc+11}
s_mov_b64 exec, -1""")
arrive(3)
if OPT['uw'] == -1: u_look()
if OPT['uw'] == -2: u_fetch()
lwait(3, addr=vPair)
stamp(2)
E = 64; BF = 40
e(f"""ds_read2_b32 {vr(E,2)}, v{vE1} offset1:1
ds_read2_b32 {vr(E+2,2)}, v{vE1b} offset0:2 offset1:3
ds_read2_b32 {vr(E+4,2)}, v{vKb} offset0:191 offset1:192
ds_read_b32 v{E+6}, v{vKb} offset:1020
ds_read_b32 v{E+7}, v{vKb} offset:1024""")
for q in range(8): e(f'ds_read2_b32 {vr(BF+2*q,2)}, v{vBk} offset0:{8*(q>>1) + 2*(q&1)} offset1:{8*(q>>1) + 2*(q&1) + 1}')
b = E + 12; t = E + 16
e(f"""s_waitcnt lgkmcnt(10)
v_perm_b32 v{b+2}, v{E+2}, v{E+2}, v{vSel+2}
v_perm_b32 v{b+3}, v{E+3}, v{E+2}, v{vSel+3}
v_perm_b32 v{b-2}, v{E+5}, v{E+4}, s{sE2}
v_perm_b32 v{b-1}, v{E+5}, v{E+4}, s{sE3}
v_perm_b32 v{b}, v{E}, v{E}, v{vSel}
v_perm_b32 v{b+1}, v{E+1}, v{E}, v{vSel+1}
v_mov_b32_dpp v{b-2}, v{b+2} wave_shr:1 row_mask:0xf bank_mask:0xf
v_mov_b32_dpp v{b-1}, v{b+3} wave_shr:1 row_mask:0xf bank_mask:0xf
ds_write_b128 v{vCd}, {vr(b,4)}""")
for i in range(4): e(f'v_alignbit_b32 v{t+i}, v{b+i}, v{b+i-1}, 16')
e(f'ds_write_b128 v{vCd}, {vr(t,4)} offset:{UC_S}')
for i in range(4): e(f'v_mov_b32 v{t+4+i}, v{b+i-1}')
e(f'ds_write_b128 v{vCd}, {vr(t+4,4)} offset:{2*UC_S}')
for i in range(4): e(f'v_alignbit_b32 v{t+8+i}, v{b+i-1}, v{b+i-2}, 16')
e(f'ds_write_b128 v{vCd}, {vr(t+8,4)} offset:{3*UC_S}\ns_waitcnt lgkmcnt(12)')
for i in range(4): e(f'v_perm_b32 v{t+12+i}, v{E+7}, v{E+6}, v{vSel+4+i}')
e(f'ds_write_b128 v{vZp}, {vr(t+12,4)}')
if OPT['uw'] == -1: u_fetch()
stamp(3)
e(f'v_and_b32 v{a0}, 31, v{V_LANE}')
swap23(a1, a0, a2)
e(f"""v_lshrrev_b32 v{a2}, 5, v{V_LANE}
v_lshl_add_u32 v{a1}, v{a1}, 1, v{a2}
s_add_u32 s{sA}, s{sHw}, 123
v_add_u32 v{a1}, s{sA}, v{a1}
s_mul_i32 s{sA}, s{sDs}, {PD}
s_add_u32 s{sA}, s{sA}, {L_KP}
v_and_b32 v{a3}, 3, v{a1}
v_mul_u32_u24 v{a3}, {PS - 4}, v{a3}
v_lshl_add_u32 v{a3}, v{a1}, 2, v{a3}
v_add_u32 v{vA0}, s{sA}, v{a3}
v_add_u32 v{a1}, 2, v{a1}
v_and_b32 v{a3}, 3, v{a1}
v_mul_u32_u24 v{a3}, {PS - 4}, v{a3}
v_lshl_add_u32 v{a3}, v{a1}, 2, v{a3}
v_add_u32 v{vA1}, s{sA}, v{a3}
v_lshlrev_b32 v{a2}, 3, v{a2}
v_sub_u32 v{a2}, v{a2}, v{a0}
v_cvt_f32_i32 v{a2}, v{a2}
v_add_f32 v{a3}, -1.0, v{a2}
v_add_f32 v{a2}, -2.0, v{a2}
v_cvt_pk_f16_f32 v8, v{a3}, v{a2}
s_waitcnt vmcnt(1)
ds_write_b128 v{vKp}, {vr(U,4)}
s_waitcnt vmcnt(0)
ds_write_b128 v{vKp}, {vr(U+4,4)} offset:128""")
arrive(4)
AP, BD, DP = 112, 136, 192
band = [f's_mov_b32 s{sA}, 0x4a204a20', f's_cmp_eq_u32 s{sHw}, 0', f's_cselect_b32 s{sE2}, 0x4d104d10, s{sA}', f's_mov_b32 s{sE3}, 0x4d804d80']
for q in range(12):
    band.append(f'v_pk_fma_f16 v{BD+q}, v8, v8, s{sE2} neg_lo:[1,0,0] neg_hi:[1,0,0] clamp')
    if q < 11: band.append(f'v_pk_add_f16 v8, v8, s{sE3}' if q % 4 == 3 else 'v_pk_add_f16 v8, v8, -2.0 op_sel_hi:[1,0]')
e('\n'.join(band))
lwait(4)
KG[0] = False
lo()
stamp(4)
if OPT['abl'] == 16: e('s_endpgm')
CB = 64
def cv_reads(k):
    b = CB + 12 * (k & 3)
    return [f'ds_read_b64 {vr(b,2)}, v{vF_} offset:{64*k}', f'ds_read_b64 {vr(b+2,2)}, v{vF_} offset:{64*k + 8}',
            f'ds_read_b128 {vr(b+8,4)}, v{vG_} offset:{512 + 80 - 16*k}', f'ds_read_b128 {vr(b+4,4)}, v{vG_} offset:{80 - 16*k}']
for tau in range(2):
    for kp in range(3): e(f'ds_read_b128 {vr(AP + 12*tau + 4*kp, 4)}, v{(vA0, vA1)[kp & 1]} offset:{256*tau + 16*(kp >> 1)}')
e('\n'.join(cv_reads(0) + cv_reads(1)))
FOA = f'''s_lshr_b32 s{sA}, s{sOl}, 1
s_lshl_b32 s{sA}, s{sA}, {4 + FSH}
s_add_u32 s{sA}, s{sA}, {F_O}
v_lshl_add_u32 v{vFo}, v{a1}, {FSH}, s{sA}''' if not OM else f'''s_lshr_b32 s{sA}, s{sOl}, 1
s_lshl_b32 s{sB}, s{sHw}, 9
s_add_u32 s{sA}, s{sA}, s{sB}
s_lshl_b32 s{sA}, s{sA}, {FSH}
s_add_u32 s{sA}, s{sA}, {F_Y}
v_min_u32 v{vFo}, 6, v{a1}
v_lshl_add_u32 v{vFo}, v{vFo}, {6 + FSH}, s{sA}'''
late = f"""s_mov_b64 s[{SRD_B}:{SRD_B+1}], s[22:23]
s_mov_b32 s{SRD_B+2}, {448*896}
s_mov_b32 s{SRD_B+3}, 0x20000
s_mov_b64 s[{SRD_C}:{SRD_C+1}], s[24:25]
s_mov_b32 s{SRD_C+2}, {2048*1792}
s_mov_b32 s{SRD_C+3}, 0x20000
v_lshrrev_b32 v{a1}, 3, v{V_LANE}
v_and_b32 v{a2}, 7, v{V_LANE}
v_and_b32 v{a0}, 0x70, v{vL16}
v_mul_u32_u24 v{vYl}, {YS}, v{a1}
v_add_u32 v{vYl}, v{vYl}, v{a0}
v_lshlrev_b32 v{a3}, 2, v{V_LANE}
v_and_b32 v{a3}, 64, v{a3}
v_xor_b32 v{a0}, v{a0}, v{a3}
v_mul_u32_u24 v{vWoD}, 896, v{a1}
v_xor_b32 v{a3}, v{a1}, v{a2}
v_lshlrev_b32 v{a3}, 4, v{a3}
v_lshl_add_u32 v{vOut}, v{vWoD}, 1, v{a3}
v_add_u32 v{vWoD}, v{a0}, v{vWoD}
v_add_u32 v{vWoD+1}, {7168-1024}, v{vWoD}
v_lshrrev_b32 v{a0}, 4, v{V_LANE}
v_bfe_u32 v{a1}, v{V_LANE}, 2, 2
v_lshl_or_b32 v{a3}, v{a0}, 3, v{a1}
v_lshlrev_b32 v{a3}, 7, v{a3}
v_lshrrev_b32 v{a1}, 1, v{a1}
v_lshl_add_u32 v{a3}, v{a1}, 6, v{a3}
v_and_b32 v{a1}, 0x30, v{vL16}
s_movk_i32 s{sA}, {L_WO}
v_add3_u32 v{vWoR}, v{a1}, v{a3}, s{sA}
v_xor_b32 v{vWoR+1}, 64, v{vWoR}
v_and_b32 v{a1}, 15, v{V_LANE}
v_lshlrev_b32 v{vOl}, 4, v{a1}
v_mad_u32_u24 v{vOl}, v{a0}, s{S_KS}, v{vOl}
s_lshl2_add_u32 s{sOl}, s{S_J}, s{S_W}
{FOA}
s_lshl_b32 s{sA}, s{S_W}, 11
s_add_u32 s{sA}, s{sA}, {L_SSM}
v_xor_b32 v{a3}, v{a0}, v{a2}
v_lshl_add_u32 v{a3}, v{a3}, 4, s{sA}
v_lshl_add_u32 v{vBw}, v{a1}, 7, v{a3}
v_add_u32 v{vBr}, s{sA}, v{vL16}
s_mul_i32 s{sOut}, s{sOl}, {16*1792}
s_lshl_b32 s{sA}, s{S_C}, 7
s_add_u32 s{sOut}, s{sOut}, s{sA}
s_add_u32 s{sOut}, s{sOut}, 896
s_add_u32 s{sOut+1}, s{sOut}, {8*1792}
s_lshl_b32 s{sOl}, s{sOl}, 8
s_add_u32 s{sOl}, s{sOl}, {WS_O}
s_lshl2_add_u32 s{sCh0}, s{S_C}, s{S_W}
s_lshl_b32 s{sCh0}, s{sCh0}, 4
s_lshr_b32 s{sA}, s{S_J}, 4
s_lshl_b32 s{sA}, s{sA}, 9
s_add_u32 s{sA}, s{sA}, s{sCh0}
s_lshl_b32 s{sA}, s{sA}, {FSH}
s_add_u32 s{sA}, s{sA}, {F_Y}
v_lshl_add_u32 v{vFy}, v{a1}, {FSH}, s{sA}
v_and_b32 v{a1}, 11, v{V_LANE}
v_lshl_or_b32 v{a1}, v{a0}, 5, v{a1}
v_mul_u32_u24 v{a1}, 1792, v{a1}
v_and_b32 v{a3}, 4, v{V_LANE}
v_lshl_add_u32 v{vYs}, v{a3}, 2, v{a1}
s_lshl_b32 s{sA}, s{sHw}, 12
s_add_u32 s{sB}, s{sP}, {P_X + 4096}
s_sub_u32 s{sB}, s{sB}, s{sA}
v_add_u32 v{vXp}, s{sB}, v{vL16}
s_add_u32 s{sA}, s{sA}, s{sP}
s_add_u32 s{sA}, s{sA}, {P_X}
v_add_u32 v{vXo}, s{sA}, v{vL16}
v_lshl_add_u32 v{vRb_}, v{a0}, 4, s{sA}
v_bfe_u32 v{a0}, v{V_LANE}, 2, 2
v_and_b32 v{a3}, 1, v{V_LANE}
v_lshl_or_b32 v{a2}, v{a3}, 3, v{a0}
v_lshl_add_u32 v{vTr}, v{a2}, 7, v{vRb_}
v_and_b32 v{a2}, 2, v{V_LANE}
v_lshl_add_u32 v{vTr}, v{a2}, 2, v{vTr}""".split('\n')
def fill(n):
    e('\n'.join(late[:n])); del late[:n]
fill(16)
e('s_waitcnt lgkmcnt(8)')
for kp in range(3):
    for tau in range(2):
        d = vr(DP + 16*tau, 16)
        e(f'v_mfma_f32_32x32x16_bf16 {d}, {vr(AP + 12*tau + 4*kp, 4)}, {vr(BD + 4*kp, 4)}, {"0" if kp == 0 else d}')
        fill(6)
def cv_iter(first):
    for k in range(4):
        b = CB + 12 * k
        rd = cv_reads(k + 2)
        z = first and k == 0
        e('s_waitcnt lgkmcnt(4)')
        e(f'v_mfma_f32_32x32x16_bf16 {vr(T1,16)}, {vr(b,4)}, {vr(b+8,4)}, {"0" if z else vr(T1,16)}')
        e('\n'.join(rd))
        if k == 3:
            e(f'v_add_u32 v{vF_}, 256, v{vF_}\nv_subrev_u32 v{vG_}, 64, v{vG_}')
            if not first: e(f's_add_u32 s{sIt2}, s{sIt2}, 1\ns_cmp_lg_u32 s{sIt2}, 11')
        e(f'v_mfma_f32_32x32x16_bf16 {vr(T0,16)}, {vr(b,4)}, {vr(b+4,4)}, {"0" if z else vr(T0,16)}')
        if first: fill(6 if k < 3 else 99)
cv_iter(True)
e('L_cv:')
cv_iter(False)
e('s_cbranch_scc1 L_cv')
cv = [f'v_cvt_pk_bf16_f32 v{AP+i}, v{DP+2*i}, v{DP+2*i+1}' for i in range(16)]
for k in range(2):
    e('\n'.join(cv[4*k:4*k+4]))
    e(f's_waitcnt lgkmcnt({4 - 4*k})')
    e(f'v_mfma_f32_32x32x16_bf16 {vr(T1,16)}, {vr(CB+12*k,4)}, {vr(CB+12*k+8,4)}, {vr(T1,16)}')
for q in range(4):
    e('\n'.join(cv[8+4*q:12+4*q]))
    e(f'v_mfma_f32_32x32x16_bf16 {vr(T1,16)}, {vr(AP+4*q,4)}, {vr(BF+4*q,4)}, {vr(T1,16)}')
if OPT['prio']: e(f"s_setprio {OPT['pr']}")
stamp(5)
if OPT['abl'] == 32: e('s_endpgm')
e(f"""s_mul_i32 s{sA}, s{sD}, {YS}
s_lshl_b32 s{sB}, s{sHw}, 11
s_add_u32 s{sA}, s{sA}, s{sB}
s_add_u32 s{sA}, s{sA}, {WS_Y}
s_lshl_b32 s{sB}, s{sHw}, 9
s_add_u32 s{sB}, s{sB}, s{sD}
s_lshl_b32 s{sB}, s{sB}, {FSH}
s_add_u32 s{sB}, s{sB}, {F_Y}
s_nop 0""")
def xch(give, keep):
    for i in range(4): e(f'ds_write_b128 v{vXp}, {vr(give+4*i,4)} offset:{1024*i}')
    arrive(6); lwait(6, addr=vPair)
    for i in range(4): e(f'ds_read_b128 {vr(give+4*i,4)}, v{vXo} offset:{1024*i}')
    e('s_waitcnt lgkmcnt(0)')
e(f's_cmp_eq_u32 s{sHw}, 0\ns_cbranch_scc1 L_x0')
xch(T0, T1)
e('s_branch L_x1\nL_x0:')
xch(T1, T0)
e('L_x1:')
for i in range(8): e(f'v_pk_add_f32 {vr(T0+2*i,2)}, {vr(T0+2*i,2)}, {vr(T1+2*i,2)}')
for i in range(8): e(f'v_cvt_pk_bf16_f32 v{T1+i}, v{T0+2*i}, v{T0+2*i+1}')
e(f"""buffer_store_dwordx4 {vr(T1,4)}, v{vL16}, {sr(SRD_WS)}, s{sA} offen sc1
buffer_store_dwordx4 {vr(T1+4,4)}, v{vL16}, {sr(SRD_WS)}, s{sA} offen offset:1024 sc1
v_subrev_u32 v{a0}, 16, v{V_GRP}""")
if OM:
    e(f'''v_mov_b64 {vr(T0,2)}, -1
    v_mov_b64 {vr(T0+2,2)}, -1
    s_mul_i32 s{sA}, s{S_C}, {8*KS}
    s_add_u32 s{sA}, s{sA}, s{sOl}
    s_add_u32 s{sSk}, s{sA}, {4*KS}
    buffer_store_dwordx4 {vr(T0,4)}, v{vOl}, {sr(SRD_WS)}, s{sA} offen sc1
    buffer_store_dwordx4 {vr(T0,4)}, v{vOl}, {sr(SRD_WS)}, s{sSk} offen sc1''')
sync(7)
if OPT['only'] != 1: lwait(7, addr=a0)
e('s_waitcnt vmcnt(0)')
publish(sB, a0)
stamp(6)
if OPT['abl'] == 33: e('s_endpgm')
e(f"""s_mul_i32 s{sA}, s{S_W}, {16*896}
s_lshl_b32 s{sB}, s{S_C}, 7
s_add_u32 s{sA}, s{sA}, s{sB}
s_lshl_b32 s{sB}, s{S_W}, 11
s_add_u32 s{sB}, s{sB}, {L_WO}""")
for ch in range(7):
    e(f"""s_add_u32 m0, s{sB}, {8192*ch}
    s_add_u32 s{sSk}, s{sA}, {64*896*ch}
    buffer_load_dwordx4 v{vWoD}, {sr(SRD_B)}, s{sSk} offen lds
    buffer_load_dwordx4 v{vWoD+1}, {sr(SRD_B)}, s{sSk} offen offset:1024 lds
    s_waitcnt vmcnt({OPT['wodepth'] if ch < 6 else 0})""")
WF, OF, OC = 8, 168, 224
arrive(8)
e(f"""buffer_load_dword v{a0}, v{vFy}, {sr(SRD_WS)}, 0 offen sc1
s_mul_i32 s{sA}, s{sCh0}, {YS}
s_lshl_b32 s{sSk}, s{S_J}, 7
s_add_u32 s{sA}, s{sA}, s{sSk}
s_add_u32 s{sA}, s{sA}, {WS_Y}
s_add_u32 s{sSk}, s{sA}, {8*YS}""")
lwait(8)
stamp(7)
if OPT['abl'] == 34: e('s_endpgm')
def wo_reads(k):
    r = []
    for t in range(4):
        for hf in range(2):
            r.append(f'ds_read_b64_tr_b16 {vr(WF + 16*(k%10) + 4*t + 2*hf, 2)}, v{vWoR + (t>>1)} offset:{4096*k + 512*hf + 8*(t&1)}')
    return r
for k in range(10): e('\n'.join(wo_reads(k)))
arrive(9)
poll(vFy, first_issued=True, sleep=OPT['ysleep'], reg=a0)
stamp(8)
if OPT['abl'] == 35: e('s_endpgm')
e(f"""buffer_load_dwordx4 {vr(OF,4)}, v{vYl}, {sr(SRD_WS)}, s{sA} offen sc1
buffer_load_dwordx4 {vr(OF+4,4)}, v{vYl}, {sr(SRD_WS)}, s{sSk} offen sc1
s_lshr_b32 s{sA}, s{S_J}, 4
s_lshl_b32 s{sA}, s{sA}, 10
s_and_b32 s{sB}, s{S_J}, 3
s_lshl_b32 s{sB}, s{sB}, 8
s_add_u32 s{sA}, s{sA}, s{sB}
s_and_b32 s{sB}, s{S_J}, 8
s_lshl1_add_u32 s{sA}, s{sB}, s{sA}
s_and_b32 s{sB}, s{S_J}, 4
s_add_u32 s{sA}, s{sA}, s{sB}
s_mul_i32 s{sA}, s{sA}, 1792
s_lshl1_add_u32 s{sA}, s{sCh0}, s{sA}
s_add_u32 s{sB}, s{sA}, {128*1792}
v_xor_b32 v{a0}, 64, v{vBw}""")
lwait(9)
e(f"""s_waitcnt vmcnt(0)
ds_write_b128 v{vXo}, {vr(OF,4)}
ds_write_b128 v{vXo}, {vr(OF+4,4)} offset:1024""")
for z in range(2):
    for hf in range(2):
        e(f'ds_read_b64_tr_b16 {vr(OF + 8 + 4*z + 2*hf, 2)}, v{vTr} offset:{64*z + 512*hf}')
e(f"""s_waitcnt lgkmcnt(0)
buffer_store_dwordx4 {vr(OF+8,4)}, v{vYs}, {sr(SRD_C)}, s{sA} offen {OUTM}
buffer_store_dwordx4 {vr(OF+12,4)}, v{vYs}, {sr(SRD_C)}, s{sB} offen {OUTM}""")
if OPT['only'] == 1:
    stamp(9); stamp(13); prof_out(); e('s_endpgm')
if OM: poll(vFo, sleep=8)
if OM == 4:
    e(f'''s_lshl2_add_u32 s{sA}, s{S_J}, s{S_W}
    s_lshr_b32 s{sA}, s{sA}, 1
    s_lshl_b32 s{sA}, s{sA}, {4 + FSH}
    s_add_u32 s{sA}, s{sA}, {F_O}
    v_and_b32 v{vFo}, 15, v{V_LANE}
    v_lshl_add_u32 v{vFo}, v{vFo}, {FSH}, s{sA}''')
sOk, sLast = 4, 18
for k in range(14): e(f's_add_u32 s{sOk+k}, s{sOl}, {4*KS*k}')
stamp(9)
e('s_barrier        ; released once the four attention waves have stored their rows')
stamp(10)
if OPT['osleep']: e(f"s_sleep {OPT['osleep']}")
if OM != 3: poll(vFo, sleep=OPT['hsleep'])
if OM: e(f's_min_u32 s{S_BOUND}, s{S_BOUND}, 0x4000')
stamp(11)
def o_load(k): return f'buffer_load_dwordx4 {vr(OF+4*k,4)}, v{vOl}, {sr(SRD_WS)}, s{sOk+k} offen sc1'
def o_chk(k):
    o = OF + 4*k
    return [f's_waitcnt vmcnt({13-k})', f'v_max3_u32 v6, v{o}, v{o+1}, v{o+2}', f'v_max_u32 v6, v6, v{o+3}', 'v_cmp_eq_u32 vcc, -1, v6']
for k in range(14): e(o_load(k))
if OM: e('\n'.join(o_chk(0)))
for k in range(14):
    o = OF + 4*k
    m = [f'v_mfma_f32_16x16x32_bf16 {vr(OC+4*t,4)}, {vr(WF + 16*(k%10) + 4*t, 4)}, {vr(o,4)}, {"0" if k == 0 else vr(OC+4*t,4)}' for t in range(4)]
    rd = wo_reads(k + 9) if 1 <= k <= 4 else []
    if k == 10: e('s_waitcnt lgkmcnt(0)')
    if OM:
        e(f's_cbranch_vccnz L_or{k}\nL_og{k}:')
        c = o_chk(k + 1) if k < 13 else ['', '', '', '']
        e('\n'.join([m[0]] + rd[:4] + [m[1]] + rd[4:] + [m[2], c[0], c[1], c[2], m[3], c[3]]))
    else:
        e(f's_waitcnt vmcnt({13-k})'); e('\n'.join(m + rd))
stamp(12)
e('s_nop 4')
for i in range(8): e(f'v_cvt_pk_bf16_f32 v{16+i}, v{OC+2*i}, v{OC+2*i+1}')
e(f"""ds_write_b128 v{vBw}, {vr(16,4)}
ds_write_b128 v{a0}, {vr(20,4)}
ds_read_b128 {vr(24,4)}, v{vBr}
ds_read_b128 {vr(28,4)}, v{vBr} offset:1024
s_or_b32 s{sA}, s2, s{S_W}
s_waitcnt lgkmcnt(1)
buffer_store_dwordx4 {vr(24,4)}, v{vOut}, {sr(SRD_C)}, s{sOut} offen {OUTM2}
s_waitcnt lgkmcnt(0)
buffer_store_dwordx4 {vr(28,4)}, v{vOut}, {sr(SRD_C)}, s{sOut+1} offen {OUTM2}
s_cbranch_scc1 L_noepoch""")
publish(sA, 6)
e('L_noepoch:')
if OPT['prof']:
    e('s_waitcnt vmcnt(0)')
stamp(13)
prof_out()
e('L_end:\ns_endpgm')
if OM:
    for k in range(14):
        c = o_chk(k)
        e(f'''L_or{k}:
        s_call_b64 s[90:91], L_re{k}
        {c[0]}
        L_oc{k}:
        {c[1]}
        {c[2]}
        {c[3]}
        s_cbranch_vccz L_og{k}
        {'s_sleep %d' % OPT['rsleep'] if OPT['rsleep'] else ''}
        {o_load(k)}
        s_sub_u32 s{S_BOUND}, s{S_BOUND}, 1
        s_waitcnt vmcnt(0)
        s_cbranch_scc0 L_oc{k}
        s_mov_b32 s{S_BOUND}, 0
        s_branch L_og{k}''')
    for k in range(14): e(f'L_re{k}:\n{o_load(k)}')
    e('s_setpc_b64 s[90:91]')
sec('idle')
ROLE[0] = 2
e('L_ssm_idle:')
if OPT['only'] == 2:
    arrive(1); e('s_endpgm')
hi()
e(f"""v_lshrrev_b32 v10, 3, v{V_LANE}
v_and_b32 v11, 7, v{V_LANE}
v_lshlrev_b32 v11, 4, v11
v_mul_u32_u24 v5, 896, v10
v_add_u32 v5, v5, v11
v_add_u32 v6, {7168-1024}, v5
s_lshl2_add_u32 s60, s{S_J}, s{S_W}
s_mul_i32 s61, s60, {16*896}
s_mul_i32 s62, s{S_W}, 14336
s_add_u32 s62, s62, {L_SSM}
s_mov_b32 s{SRD_A+2}, {2048*896}
s_mov_b32 s{SRD_A+3}, 0x20000
s_waitcnt lgkmcnt(0)
s_load_dword s{S_NONCE}, s[28:29], 0
s_mov_b64 s[{SRD_A}:{SRD_A+1}], s[4:5]""")
for c in range(7):
    e(f"""s_add_u32 m0, s62, {2048*c - 128*c}
    s_nop 0
    buffer_load_dwordx4 v5, {sr(SRD_A)}, s61 offen offset:{128*c} lds
    buffer_load_dwordx4 v6, {sr(SRD_A)}, s61 offen offset:{1024 + 128*c} lds""")
    if c == OPT['tb']: e('s_barrier')
    if c == 1:
        srd(SRD_WS, 28, WS_SIZE)
        e(f"""; transposing read: row = 8*(cc&1)+r', byte = 8*(2G+(cc>>1))
        v_mul_u32_u24 v7, {QS}, v10
        v_add_u32 v7, v7, v11
        v_bfe_u32 v8, v{V_LANE}, 2, 2
        v_and_b32 v9, 1, v{V_LANE}
        v_lshl_or_b32 v8, v9, 3, v8
        v_xor_b32 v8, 3, v8
        v_lshl_add_u32 v8, v8, 7, s62
        v_and_b32 v9, 0x30, v{V_LANE}
        v_add_u32 v8, v8, v9
        v_and_b32 v9, 2, v{V_LANE}
        v_lshl_add_u32 v8, v9, 2, v8
        s_lshl_b32 s63, s60, 7
        s_add_u32 s63, s63, {WS_U}
        s_mul_i32 s65, s{S_J}, {US}
        s_add_u32 s65, s65, {F_U}""")
e(f's_waitcnt lgkmcnt(0)\ns_add_u32 s{S_NONCE}, s{S_NONCE}, 1')
arrive(1)
def t_rd(c):
    return [f'ds_read_b64_tr_b16 {vr(16 + 8*c + 4*z + 2*hf, 2)}, v8 offset:{2048*c + 64*z + 512*(1-hf)}' for z in range(2) for hf in range(2)]
e('s_waitcnt vmcnt(12)'); stamp(1); e('\n'.join(t_rd(0)))
for c in range(7):
    if c < 6:
        e('s_waitcnt vmcnt(10)'); e('\n'.join(t_rd(c + 1)))
    e(f"""s_add_u32 s64, s63, {8*QS}
    s_waitcnt lgkmcnt({4 if c < 6 else 0})
    buffer_store_dwordx4 {vr(16+8*c,4)}, v7, {sr(SRD_WS)}, s63 offen sc1
    buffer_store_dwordx4 {vr(20+8*c,4)}, v7, {sr(SRD_WS)}, s64 offen sc1
    s_add_u32 s63, s63, {16*QS}""")
    if c + 7 == OPT['tb']: e('s_barrier')
stamp(2)
e(f"""v_mov_b32 v5, 1
v_mov_b32 v6, 0
s_waitcnt vmcnt(0)
s_mov_b64 exec, 1
ds_add_rtn_u32 v5, v6, v5 offset:36
s_waitcnt lgkmcnt(0)
v_readfirstlane_b32 s60, v5
s_mov_b64 exec, -1
s_cmp_lg_u32 s60, 3
s_cbranch_scc1 L_idle_end""")
if OPT['ur'] == 1: publish(65, 6)
else:
    e(f'''v_mov_b32 v5, s{S_NONCE}
    v_mul_u32_u24 v6, {32*US}, v{V_LANE}
    s_mov_b64 exec, {hex((1 << OPT['ur']) - 1)}
    buffer_store_dword v5, v6, {sr(SRD_WS)}, s65 offen sc1
    s_mov_b64 exec, -1'''.replace('s_mov_b64 exec, 0xffffffff\n', 's_mov_b32 exec_hi, 0\n'))
e('L_idle_end:'); stamp(4)
prof_out()
e('s_endpgm')
ORDER = [['pro', 'ssm0', 'mha0', 'idle', 'ssm', 'mha'], ['pro', 'ssm0', 'mha0', 'mha', 'ssm', 'idle'],
         ['pro', 'ssm0', 'mha0', 'ssm', 'mha', 'idle'], ['pro', 'ssm0', 'idle', 'mha0', 'mha', 'ssm']][OPT['ord']] + ['cold', 'gt', 'fb']
SEC.setdefault('cold', [])
def add_nt(n, pred):
    SEC[n] = [(l.replace(' lds', ' nt lds') if l.endswith(' lds') else l + ' nt') if pred(l) else l for l in SEC[n]]
for n in ('mha0', 'mha', 'gt'):
    if OPT['nt'] & 1: add_nt(n, lambda l: l.endswith(' lds') and sr(SRD_A) in l)
    if OPT['nt'] & 2: add_nt(n, lambda l: l.endswith(' lds') and sr(SRD_B) in l)
if OPT['nt'] & 4: add_nt('idle', lambda l: l.endswith(' lds'))
if OPT['nt'] & 8: add_nt('ssm0', lambda l: 'global_load' in l)
if OPT['nt'] & 16: add_nt('ssm', lambda l: l.endswith(' lds'))
if OPT['nt'] & 32: add_nt('ssm', lambda l: 'buffer_store' in l and sr(SRD_C) in l)
BODY = sum((SEC[n] for n in ORDER), [])
def sizes(lines):
    import subprocess, re, os, tempfile
    d = tempfile.mkdtemp()
    open(d + '/a.s', 'w').write('.amdgcn_target "amdgcn-amd-amdhsa--gfx950"\n.text\n' + '\n'.join(lines) + '\n')
    subprocess.check_call(['clang', '-x', 'assembler', '-target', 'amdgcn-amd-amdhsa', '-mcpu=gfx950', '-c', d + '/a.s', '-o', d + '/a.o'])
    o = subprocess.check_output(['llvm-objdump', '-d', '--mcpu=gfx950', d + '/a.o']).decode()
    return [4 * len(m.group(1).split()) for m in re.finditer(r'// [0-9A-F]{12}: ((?:[0-9A-F]{8} ?)+)', o)]
def is_ins(l):
    t = l.split(';')[0].strip()
    return bool(t) and not t.endswith(':')
def widen(l):
    import re
    t = l.split(';')[0].strip(); op = t.split()[0]
    if op.startswith('v_') and not op.startswith(('v_readfirstlane', 'v_swap', 'v_permlane', 'v_nop')):
        return l.replace(op, op + '_e64', 1)
    return None
if OPT['al']:
    sz = iter(sizes(BODY))
    I = [[l, next(sz) if is_ins(l) else 0] for l in BODY]
    res = []; addr = 0; nw = nn = 0
    for i, (l, n) in enumerate(I):
        if n == 8 and addr % 8 == 4:
            run = 0
            for l2, n2 in I[i:]:
                if n2 == 4: break
                run += n2 == 8
            cross = sum(1 for k in range(run) if (addr + 8*k) % 32 == 28)
            if cross:
                j = len(res) - 1; done = False; aj = addr
                while j >= 0 and res[j][1] in (0, 4):
                    aj -= res[j][1]
                    t = res[j][0].strip()
                    if t.startswith(('s_branch', 's_endpgm', 's_setpc')):
                        res.insert(j + 1, ['    s_nop 0', 4]); done = True; break
                    w = widen(res[j][0]) if res[j][1] == 4 and aj % 32 != 28 else None
                    if w:
                        res[j] = [w, 8]; done = True; nw += 1; break
                    j -= 1
                if not done and run >= OPT['alr']:
                    k = len(res)
                    while res[k-1][1] == 0: k -= 1
                    res.insert(k, ['    s_nop 0', 4]); done = True; nn += 1
                if done: addr += 4
        res.append([l, n]); addr += n
    BODY = [l for l, n in res]
    print('aligned: widened', nw, 'nops', nn, 'bytes', addr, file=sys.stderr)
hdr = open('header.txt').read()
txt = hdr + f'''; @launch grid=(256,1,1) block=(512,1,1) lds={L_TOT}
.amdgcn_target "amdgcn-amd-amdhsa--gfx950"
.text
.globl {KN}
.p2align 8
.type {KN},@function
{KN}:
''' + '\n'.join(BODY) + f'''
.section .rodata,"a"
.p2align 6
.amdhsa_kernel {KN}
  .amdhsa_next_free_vgpr 256
  .amdhsa_next_free_sgpr 102
  .amdhsa_accum_offset 256
  .amdhsa_group_segment_fixed_size 0
  .amdhsa_kernarg_size 104
  .amdhsa_user_sgpr_count 2
  .amdhsa_user_sgpr_kernarg_segment_ptr 1
  .amdhsa_system_sgpr_workgroup_id_x 1
.end_amdhsa_kernel
'''
open(sys.argv[1], 'w').write(txt)
```

```python
import sys, struct
def fl(x): return hex(struct.unpack('<I', struct.pack('<f', x))[0])

KN = 'concat_heads__ssm_conv_s4d__softmax_full_mha__prompt_kernel'
OPT = dict(only_st=0, ur=1, us=128, rd0=-1, rdm=0, probe=0, poff=0xc00000, nt=0, rdn=0, al=1, alr=6, fw=0, rsleep=0, hsleep=0, ord=3, nb=0, tb=13, tq=0, chkk=99, uw=-2, cw=0, s6=5, tskip=1, ones=1, pa=1, pr=2, pf=2, wgf=2, ax=0, bp=3, qa=7, n0=4, ilv=8, tlb=0, ulook=1, kgp=1, pad=0, ypad=0, omode=3, ksleep=0, usleep=4, obar=5, osleep=0, pubk=8, abl=0, touch=0, gs=0, kgw=0, xg=5, gx=0, pm=2, ps=0, rt=0, upub=1, kgx=0, outsc=0, ysleep=8, wodepth=4, wq_mid=0, pollk=99, rd=-1, rdrole=0, only=0, safe=0, rot=0, prof=0, fs=128, force_fb=0, wq_early=7, prio=1)
for a in sys.argv[2:]:
    k, v = a.split('=')
    assert k in OPT, k
    OPT[k] = int(v, 0)

FS = OPT['fs']
FSH = FS.bit_length() - 1
F_KV = 0x1000
F_O = F_KV + 1024 * FS
F_U = F_O + 1024 * FS
F_Y = F_U + 1024 * FS
F_H = F_Y + 1024 * FS
WS_K = 0x100000
WS_V = 0x300000
WS_O = 0x500000
WS_U = 0x700000
WS_Y = 0x900000
QS = 16384 + OPT['pad']; KS = 2 * QS; YS = 4096 + OPT['ypad']
S_KS = 57
WS_PROF = 0xb00000
F_U = 0xb80000 if OPT['us'] * OPT['ur'] > 4096 else F_U
US = OPT['us']
WS_SIZE = 0x1000000
L_SSM = 1024
L_W = 57344
L_RB = 65536
L_X = 114688
L_TOT = 163840
TROW = 288
TABSZ = 38 * TROW
L_TAB = L_SSM
P_SZ = 2 * TABSZ
P_UC = 1536
UC_S = 2240
P_KD = TABSZ + 1536
P_X = TABSZ
PS = 1552
PD = 4 * PS
L_KP = L_TAB + 4 * TABSZ
assert P_UC + 4 * UC_S <= TABSZ and P_KD + 1600 <= P_SZ and P_X + 8192 <= P_SZ and L_KP % 16 == 0 and L_KP + 2 * PD <= L_W
L_WO = L_SSM

S_WV, S_W, S_HG, S_C, S_TILE, S_J, S_H, S_NONCE, S_O0, S_ROT = range(30, 40)
SRD_WS, SRD_A, SRD_B, SRD_C = 40, 44, 48, 52
S_BOUND = 56
S_T0 = 58

SEC = {}
out = None
def sec(n):
    global out
    out = SEC.setdefault(n, [])
sec('pro')
def e(s):
    for l in s.split('\n'):
        l = l.strip()
        if l:
            out.append(l if l.endswith(':') else '    ' + l)
_lab = [0]
def lab(p):
    _lab[0] += 1
    return f'L_{p}_{_lab[0]}'
def vr(a, n):
    return f'v[{a}:{a+n-1}]' if n > 1 else f'v{a}'
def srd(d, b, n):
    e(f's_mov_b64 s[{d}:{d+1}], s[{b}:{b+1}]\ns_mov_b32 s{d+2}, {n}\ns_mov_b32 s{d+3}, 0x20000')
def sr(d): return f's[{d}:{d+3}]'

V_LANE, V_T, V_OWN, V_GRP, V_PROF = 0, 1, 2, 3, 4

ROLE = [0]
def stamp(i):
    if OPT['rd0'] == i and OPT['rdrole'] == ROLE[0]:
        e('s_memrealtime s[98:99]\ns_waitcnt lgkmcnt(0)')
    if OPT['rd'] == i and OPT['rdrole'] == ROLE[0]:
        e('s_memrealtime s[100:101]\ns_waitcnt lgkmcnt(0)')
    if (OPT['only_st'] >> (i + 32*min(ROLE[0], 1))) & 1 if OPT['only_st'] else OPT['prof'] > (i >= 14):
        e(f's_mem{"real" if OPT["rt"] else ""}time s[96:97]\ns_waitcnt lgkmcnt(0)\ns_sub_u32 s96, s96, s{98 if OPT["rt"] else S_T0}\nv_writelane_b32 v{V_PROF}, s96, {i}')
def prof_out():
    if OPT['rd'] >= 0 and OPT['rdrole'] == ROLE[0]:
        l = lab('pad')
        if ROLE[0] == 0 and not OPT['obar']: e('s_barrier')
        if ROLE[0] == 2: e('s_barrier')
        if ROLE[0] == 0 and OPT['rdn']: e(f's_cmp_eq_u32 s{S_C}, 7\ns_cbranch_scc{2 - OPT["rdn"]} L_end')
        if OPT['rd'] == 98:
            e(f'''s_not_b32 s100, s100
            v_mov_b32 v5, s100
            v_mov_b32 v6, 0
            s_mov_b64 exec, 1
            global_atomic_umax v6, v5, s[26:27]
            s_waitcnt vmcnt(0)
            s_sleep 127
            s_sleep 127
            s_sleep 127
            s_sleep 127
            s_sleep 127
            global_load_dword v5, v6, s[26:27] sc1
            s_waitcnt vmcnt(0)
            v_readfirstlane_b32 s100, v5
            s_not_b32 s100, s100''')
        if OPT['probe']:
            op = {1: 'buffer_store_dwordx4 v[8:11], v5, s[52:55], s60 offen sc1', 2: 'buffer_load_dwordx4 v[8:11], v5, s[52:55], s60 offen sc1',
                  3: 'buffer_store_dwordx4 v[8:11], v5, s[52:55], s60 offen'}[OPT['probe'] & 3]
            pre = 'buffer_load_dword v12, v6, s[52:55], s61 offen sc1\ns_waitcnt vmcnt(0)' if OPT['probe'] & 4 else ''
            if OPT['probe'] & 8: pre += '\nbuffer_store_dwordx4 v[8:11], v5, s[52:55], s60 offen sc1\ns_waitcnt vmcnt(0)\ns_sleep 40'
            e(f'''s_mov_b64 s[52:53], s[28:29]
            s_mov_b32 s54, 0x10000000
            s_mov_b32 s55, 0x20000
            s_sleep 127
            s_sleep 127
            s_sleep 127
            v_lshlrev_b32 v5, 4, v0
            v_mov_b32 v6, 0
            s_lshl2_add_u32 s60, s2, s{S_W}
            s_lshl_b32 s60, s60, 10
            s_add_u32 s60, s60, {OPT['poff']}
            s_mov_b32 s61, {OPT['poff'] + 0x180000}
            {pre}
            s_memrealtime s[62:63]
            s_waitcnt lgkmcnt(0)
            {op}
            s_waitcnt vmcnt(0)
            s_memrealtime s[100:101]
            s_waitcnt lgkmcnt(0)
            s_sub_u32 s100, s100, s62
            v_mov_b32 v8, s100
            s_lshl2_add_u32 s60, s2, s{S_W}
            s_lshl_b32 s60, s60, 2
            s_add_u32 s60, s60, {WS_PROF}
            buffer_store_dword v8, v6, s[52:55], s60 offen
            s_mul_i32 s100, s100, 50
            s_add_u32 s100, s100, s58''')
        elif OPT['rdm'] >= 3:
            key = {3: 's_and_b32 s96, s2, 7', 4: f's_mov_b32 s96, s{S_H}', 5: f's_mov_b32 s96, s{S_TILE}'}[OPT['rdm']]
            e(f'''s_sub_u32 s100, s100, s98
            s_sub_u32 s97, s98, s58
            s_mul_i32 s100, s100, 1000000
            s_mul_i32 s97, s97, 1000
            s_add_u32 s100, s100, s97
            s_add_u32 s100, s100, s2
            {key}
            s_lshl_b32 s96, s96, 2
            v_mov_b32 v5, s100
            v_mov_b32 v6, s96
            s_mov_b64 exec, 1
            global_atomic_umax v6, v5, s[26:27]
            s_waitcnt vmcnt(0)
            s_endpgm''')
        elif OPT['rdm'] == 2:
            e('''s_not_b32 s96, s58
            v_mov_b32 v5, s96
            v_mov_b32 v6, 0
            s_mov_b64 exec, 1
            global_atomic_umax v6, v5, s[26:27]
            s_waitcnt vmcnt(0)''' + '\ns_sleep 127' * 7 + '''
            global_load_dword v5, v6, s[26:27] sc1
            s_waitcnt vmcnt(0)
            v_readfirstlane_b32 s96, v5
            s_not_b32 s96, s96
            s_sub_u32 s100, s100, s96
            s_lshl_b32 s100, s100, 3
            s_add_u32 s100, s100, s96''')
        elif OPT['rdm']:
            e('''s_sub_u32 s100, s100, s98
            v_mov_b32 v5, s100
            v_mov_b32 v6, 0
            s_mov_b64 exec, 1
            global_atomic_add v6, v5, s[26:27]
            s_waitcnt vmcnt(0)''' + '\ns_sleep 127' * 7 + '''
            global_load_dword v5, v6, s[26:27] sc1
            s_waitcnt vmcnt(0)
            v_readfirstlane_b32 s100, v5
            s_lshr_b32 s100, s100, 6
            s_add_u32 s100, s100, s58''')
        else: e('s_sub_u32 s100, s100, s98\ns_lshl_b32 s100, s100, 3\ns_add_u32 s100, s100, s58')
        e(f'''s_add_u32 s100, s100, 6000
        {l}:
        s_sleep 1
        s_memrealtime s[96:97]
        s_waitcnt lgkmcnt(0)
        s_sub_u32 s96, s96, s100
        s_cmp_lt_i32 s96, 0
        s_cbranch_scc1 {l}''')
    if OPT['prof']:
        e(f'''s_memrealtime s[96:97]
        s_waitcnt lgkmcnt(0)
        v_writelane_b32 v{V_PROF}, s96, 31
        v_writelane_b32 v{V_PROF}, s98, 30
        s_lshl_b32 s96, s2, 3
        s_add_u32 s96, s96, s{S_WV}
        s_lshl_b32 s96, s96, 7
        s_add_u32 s96, s96, {WS_PROF}
        v_lshlrev_b32 v{V_T}, 2, v{V_LANE}
        s_mov_b32 exec_hi, 0
        buffer_store_dword v{V_PROF}, v{V_T}, {sr(SRD_WS)}, s96 offen
        s_mov_b64 exec, -1''')

def arrive(stage):
    e(f'v_mov_b32 v{V_T}, {stage}\nds_write_b32 v{V_OWN}, v{V_T}')
def lwait(stage, addr=V_GRP, sleep=0):
    l = lab('lw')
    e(f'{l}:')
    if sleep: e(f's_sleep {sleep}')
    e(f'''ds_read_b32 v{V_T}, v{addr}
    s_waitcnt lgkmcnt(0)
    v_cmp_gt_u32 vcc, {stage}, v{V_T}''')
    if OPT['safe']:
        d = lab('ld')
        e(f'''s_cbranch_vccz {d}
        s_sub_u32 s{S_BOUND}, s{S_BOUND}, 1
        s_cbranch_scc0 {l}
        s_mov_b32 s{S_BOUND}, 0
        {d}:''')
    else:
        e(f's_cbranch_vccnz {l}')
def sync(stage):
    arrive(stage); lwait(stage)
def poll(voff, first_issued=False, sleep=0, reg=V_T):
    l, d, m = lab('pl'), lab('pd'), lab('pm')
    if first_issued == 2:
        e(f's_waitcnt vmcnt(0)\nv_cmp_ne_u32 vcc, s{S_NONCE}, v{reg}\ns_cbranch_vccnz {l}\n{d}:')
        cur = [n for n in SEC if SEC[n] is out][0]
        sec('cold')
        e(f'''{l}:
        buffer_load_dword v{reg}, v{voff}, {sr(SRD_WS)}, 0 offen sc1
        s_waitcnt vmcnt(0)
        v_cmp_ne_u32 vcc, s{S_NONCE}, v{reg}
        s_cbranch_vccz {d}
        s_sub_u32 s{S_BOUND}, s{S_BOUND}, 1
        s_cbranch_scc0 {l}
        s_mov_b32 s{S_BOUND}, 0
        s_branch {d}''')
        sec(cur)
        return
    if first_issued: e(f's_branch {m}')
    e(f'{l}:')
    if sleep: e(f's_sleep {sleep}')
    e(f'''buffer_load_dword v{reg}, v{voff}, {sr(SRD_WS)}, 0 offen sc1
    {m}:
    s_waitcnt vmcnt(0)
    v_cmp_ne_u32 vcc, s{S_NONCE}, v{reg}
    s_cbranch_vccz {d}
    s_sub_u32 s{S_BOUND}, s{S_BOUND}, 1
    s_cbranch_scc0 {l}
    s_mov_b32 s{S_BOUND}, 0
    {d}:''')
def publish(soff, tmp):
    if OPT['fw']:
        e(f'''v_mov_b32 v{V_T}, s{S_NONCE}
        v_lshlrev_b32 v{tmp}, 2, v{V_LANE}
        s_mov_b64 exec, {hex((1 << OPT['fw']) - 1)}
        buffer_store_dword v{V_T}, v{tmp}, {sr(SRD_WS)}, s{soff} offen sc1
        s_mov_b64 exec, -1'''.replace('s_mov_b64 exec, 0xffffffff', 's_mov_b32 exec_hi, 0'))
        return
    e(f'''v_mov_b32 v{V_T}, s{S_NONCE}
    v_mov_b32 v{tmp}, 0
    s_mov_b64 exec, 1
    buffer_store_dword v{V_T}, v{tmp}, {sr(SRD_WS)}, s{soff} offen sc1
    s_mov_b64 exec, -1''')
def swap23(d, s, t):
    e(f'''v_lshrrev_b32 v{t}, 1, v{s}
    v_xor_b32 v{t}, v{t}, v{s}
    v_and_b32 v{t}, 4, v{t}
    v_mul_u32_u24 v{t}, 3, v{t}
    v_xor_b32 v{d}, v{t}, v{s}''')
def rot_next(s):
    e(f's_add_u32 s{s}, s{s}, 1\ns_cmp_eq_u32 s{s}, 7\ns_cselect_b32 s{s}, 0, s{s}')

e(f'''s_cmp_ge_u32 s2, 256
s_cbranch_scc1 L_end''')
if OPT['prof']:
    e(f's_memtime s[{S_T0}:{S_T0+1}]\ns_memrealtime s[98:99]\nv_mov_b32 v{V_PROF}, 0')
if OPT['rd'] >= 0: e('s_memrealtime s[100:101]\ns_memrealtime s[58:59]\ns_memrealtime s[98:99]')
e(f'''s_load_dwordx16 s[4:19], s[0:1], 0
s_load_dwordx8 s[20:27], s[0:1], 64
s_load_dwordx2 s[28:29], s[0:1], 96
v_lshrrev_b32 v{V_OWN}, 6, v0
v_and_b32 v{V_LANE}, 63, v0
v_readfirstlane_b32 s{S_WV}, v{V_OWN}
v_lshlrev_b32 v{V_OWN}, 2, v{V_OWN}
v_mov_b32 v{V_T}, 0
ds_write2_b32 v{V_OWN}, v{V_T}, v{V_T} offset1:8
v_and_b32 v{V_GRP}, 3, v{V_LANE}
v_lshlrev_b32 v{V_GRP}, 2, v{V_GRP}
s_and_b32 s{S_HG}, s2, 1
s_bfe_u32 s60, s2, 0x20001
s_bfe_u32 s{S_C}, s2, 0x30003
s_lshr_b32 s61, s2, 6
s_lshl2_add_u32 s{S_TILE}, s60, s61
s_lshl1_add_u32 s{S_J}, s{S_TILE}, s{S_HG}
s_lshl3_add_u32 s{S_H}, s{S_HG}, s{S_C}
s_and_b32 s{S_W}, s{S_WV}, 3
s_mov_b32 s{S_BOUND}, 0x40000
s_mov_b32 s{S_KS}, {KS}
s_cmp_lt_u32 s{S_WV}, 4
s_cbranch_scc1 L_mha''')

VX = 144; VACC = 96; VWF = 32; VPK = 128
VV, VK, VS, VO, VQ = 32, 64, 96, 160, 224
vWd = [5, 6]; vXd = [7, 8, 9, 10]; vXr = [11, 12, 13, 14]; vWb, vW0, vW1 = 15, 16, 17
vRho, vG, vSt, vQd, vQr, vFl, vA, vB, vC = 18, 19, 20, 21, 22, 23, 24, 25, 26
vKo0, vKo1, vVo, vIdx = 27, 28, 29, 30
sXb, sWb, sCh, sCw, sLx, sTmp, sTmp2, sSt, sS1, sS2, sFl = range(60, 71)
sK, sV, sIt = 71, 72, 73
sFo, sO0, sO1 = 84, 85, 86
vOs, vQw = vRho, vG
vRb = [7, 8, 9]; vQx = [11, 12, 13]; vRr = 10
sMask = 74
sOdd = 76

sec('mha0')
e('L_mha:')
if OPT['prio']: e(f"s_setprio {OPT['pm']}")
e(f'''s_mul_i32 s{S_O0}, s{S_H}, 7
s_lshr_b32 s{S_O0}, s{S_O0}, 1''')
e(f'''v_lshrrev_b32 v{vA}, 3, v{V_LANE}          ; r
v_and_b32 v{vB}, 7, v{V_LANE}                    ; p
v_lshlrev_b32 v{vC}, 1, v{vA}
v_and_b32 v{vC}, 4, v{vC}
v_xor_b32 v{vC}, v{vC}, v{vB}
v_lshlrev_b32 v{vC}, 4, v{vC}
v_mul_u32_u24 v{vWd[0]}, 2688, v{vA}
v_add_u32 v{vWd[0]}, v{vWd[0]}, v{vC}
v_add_u32 v{vWd[1]}, {8*2688-1024}, v{vWd[0]}
v_lshrrev_b32 v{vC}, 1, v{vA}
v_xor_b32 v{vC}, v{vC}, v{vB}
v_lshlrev_b32 v{vC}, 4, v{vC}
v_mul_u32_u24 v{vA}, 896, v{vA}
v_add_u32 v{vXd[0]}, v{vA}, v{vC}
v_xor_b32 v{vC}, 64, v{vC}
v_add_u32 v{vXd[1]}, v{vA}, v{vC}
v_add_u32 v{vXd[1]}, {7168-1024}, v{vXd[1]}
v_add_u32 v{vXd[2]}, {2*(7168-1024)}, v{vXd[0]}
v_add_u32 v{vXd[3]}, {2*(7168-1024)}, v{vXd[1]}
s_lshl2_add_u32 s{sXb}, s{S_TILE}, s{S_W}
s_lshl_b32 s{sFl}, s{S_H}, 6
s_add_u32 s{sFl}, s{sFl}, s{S_TILE if OPT['wgf'] else sXb}
s_lshl_b32 s{sFl}, s{sFl}, {FSH}
s_add_u32 s{sFl}, s{sFl}, {F_KV}
s_mul_i32 s{sXb}, s{sXb}, {32*896}
s_mul_i32 s{sTmp2}, s{S_HG}, 3
s_lshr_b32 s{sTmp}, s2, 6
s_add_u32 s{sTmp2}, s{sTmp2}, s{sTmp}
s_mul_i32 s{sWb}, s{S_HG}, 7
s_add_u32 s{sWb}, s{sWb}, s{S_C}
s_add_u32 s{sWb}, s{sWb}, 7
s_cmp_eq_u32 s{S_C}, 7
s_cselect_b32 s{sWb}, {'s%d' % sTmp2 if OPT['tq'] else '0x100000'}, s{sWb}
s_cselect_b32 s{sS1}, 1, s{S_W}
s_lshl_b32 s{sWb}, s{sWb}, 7
s_mul_i32 s{sTmp}, s{S_W}, {16*2688}
s_add_u32 s{sWb}, s{sWb}, s{sTmp}
s_mul_i32 s{sLx}, s{S_W}, 12288
s_add_u32 s{sLx}, s{sLx}, {L_X}
s_lshl_b32 s{sS1}, s{sS1}, 11
s_add_u32 s{sS1}, s{sS1}, {L_W}
s_mov_b32 s{SRD_A+2}, {2048*896}
s_mov_b32 s{SRD_A+3}, 0x20000
s_mov_b32 s{SRD_B+2}, {448*1344*2}
s_mov_b32 s{SRD_B+3}, 0x20000
s_mov_b32 m0, s{sLx}
s_waitcnt lgkmcnt(0)
s_mov_b64 s[{SRD_A}:{SRD_A+1}], s[18:19]
s_mov_b64 s[{SRD_B}:{SRD_B+1}], s[20:21]
s_load_dword s{S_NONCE}, s[28:29], 0''')
stamp(22)
sWo = 88
def w_lines(st):
    return [f's_add_u32 m0, s{sS1}, {8192*st}', f's_add_u32 s{sWo+st}, s{sWb}, {64*2688*st}'] + \
           [f'buffer_load_dwordx4 v{vWd[i]}, {sr(SRD_B)}, s{sWo+st} offen offset:{1024*i} lds' for i in range(2)]
def x_chunk(st):
    return [f's_add_u32 m0, s{sLx}, {(st%3)*4096 - 128*st}', 's_nop 0'] + \
           [f'buffer_load_dwordx4 v{vXd[i]}, {sr(SRD_A)}, s{sXb} offen offset:{1024*i + 128*st} lds' for i in range(4)]
DM = []
for l in [x_chunk(0), w_lines(0)] + [w_lines(i) for i in range(1, 7)] + [x_chunk(1), x_chunk(2)]:
    DM += [l[:3]] + [[x] for x in l[3:]]
DM[0] = DM[0][2:]
for i, g in enumerate(DM[:OPT['n0']]):
    if i == OPT['nb']:
        e(f's_cmp_lg_u32 s{S_C}, 7\ns_cbranch_scc1 L_bar0\ns_waitcnt lgkmcnt(0)\nL_bar0:\ns_barrier'); stamp(23)
        if OPT['only'] == 1: e('s_endpgm')
    e('\n'.join(g))
DM = DM[OPT['n0']:]
stamp(24)
if OPT['ord'] not in (1, 3): e('s_branch L_mha1')
sec('mha')
e('L_mha1:')
stamp(25)
sec('tmp')
srd(SRD_WS, 28, WS_SIZE)
ONES = f'''s_bitcmp1_b32 s{S_H}, 0
s_cselect_b32 s{sTmp}, 0, 7
v_cmp_eq_u32 vcc, s{sTmp}, v{vA}
s_lshl_b32 s{sTmp}, s{S_O0}, 1
s_sub_u32 s{sTmp}, s{S_HG}, s{sTmp}
s_add_u32 s{sTmp}, s{sTmp}, 112
v_mov_b32 v{vB}, s{sTmp}
v_cndmask_b32 v{vA}, v{vA}, v{vB}, vcc
''' if OPT['ones'] else ''
FIX = f'v_cmp_lt_u32 vcc, 7, v{vB}\n'
FOM = f'''s_lshl_b32 s{sFo}, s{sTmp2}, 4
s_add_u32 s{sFo}, s{sFo}, s{S_H}
s_lshl_b32 s{sFo}, s{sFo}, {FSH}
s_add_u32 s{sFo}, s{sFo}, {F_O}
''' if OPT['omode'] != 3 else ''
e(f'''v_and_b32 v{vA}, 31, v{V_LANE}
v_lshrrev_b32 v{vG}, 5, v{V_LANE}''')
swap23(vRho, vA, vB)
e(f'''v_bfe_u32 v{vB}, v{vRho}, 1, 3
v_xor_b32 v{vB}, v{vB}, v{vG}
v_lshlrev_b32 v{vB}, 4, v{vB}
v_lshl_add_u32 v{vB}, v{vRho}, 7, v{vB}
v_add_u32 v{vXr[0]}, s{sLx}, v{vB}
v_xor_b32 v{vXr[1]}, 32, v{vXr[0]}
v_xor_b32 v{vXr[2]}, 64, v{vXr[0]}
v_xor_b32 v{vXr[3]}, 0x60, v{vXr[0]}
v_and_b32 v{vB}, 3, v{V_LANE}                     ; cc
v_lshrrev_b32 v{vC}, 1, v{vB}
v_and_b32 v{vQd}, 1, v{vB}
v_lshl_or_b32 v{vC}, v{vQd}, 1, v{vC}
v_bfe_u32 v{vQd}, v{V_LANE}, 4, 1
v_lshl_or_b32 v{vB}, v{vQd}, 2, v{vB}              ; mq natural
v_lshl_or_b32 v{vC}, v{vQd}, 2, v{vC}
v_bfe_u32 v{vQd}, v{V_LANE}, 2, 2                  ; r'
v_lshl_or_b32 v{vFl}, v{vG}, 3, v{vQd}             ; 8g + r'
v_lshlrev_b32 v{vQr}, 6, v{vFl}
v_lshl_add_u32 v{vQr}, v{vC}, 3, v{vQr}
v_add_u32 v{vQr}, {L_X + 4096}, v{vQr}
s_cmp_eq_u32 s{S_HG}, 0
s_cselect_b64 vcc, -1, 0
v_cndmask_b32 v{vB}, v{vB}, v{vC}, vcc             ; K slabs use the exchanged order, V slabs the natural one
v_lshlrev_b32 v{vWb}, 7, v{vFl}
v_lshl_add_u32 v{vWb}, v{vB}, 3, v{vWb}
v_lshrrev_b32 v{vQd}, 1, v{vQd}
v_lshl_add_u32 v{vWb}, v{vQd}, 6, v{vWb}
v_add_u32 v{vW0}, {L_W}, v{vWb}
v_lshlrev_b32 v{vB}, 4, v{vRho}
v_mad_u32_u24 v{vB}, v{vG}, s{S_KS}, v{vB}
v_lshrrev_b32 v{vC}, 2, v{vA}
v_mul_u32_u24 v{vC}, {QS}, v{vC}
v_lshl_add_u32 v{vC}, v{vG}, 6, v{vC}
v_and_b32 v{vQd}, 3, v{vA}
v_lshl_add_u32 v{vC}, v{vQd}, 4, v{vC}
v_cndmask_b32 v{vSt}, v{vC}, v{vB}, vcc
s_lshl2_add_u32 s{sTmp}, s{S_TILE}, s{S_W}
s_lshl_b32 s{sTmp2}, s{sTmp}, 9
s_add_u32 s{sTmp2}, s{sTmp2}, {WS_K}
s_lshl_b32 s{sTmp}, s{sTmp}, 8
s_add_u32 s{sTmp}, s{sTmp}, {WS_V}
s_movk_i32 s{sS2}, 128
s_cmp_eq_u32 s{S_HG}, 0
s_cselect_b32 s{sSt}, s{sTmp2}, s{sTmp}
s_cselect_b32 s{sS2}, {2*KS}, s{sS2}
s_mul_i32 s{sTmp}, s{S_C}, {8*KS}
s_add_u32 s{sSt}, s{sSt}, s{sTmp}
v_lshrrev_b32 v{vB}, 2, v{V_LANE}
v_mul_u32_u24 v{vB}, 2688, v{vB}
v_lshl_add_u32 v{vQd}, v{vQd}, 4, v{vB}
s_lshl_b32 s82, s{S_O0}, 4
s_mul_i32 s{sTmp}, s{S_W}, {16*2688}
s_add_u32 s82, s82, s{sTmp}
s_lshr_b32 s{sTmp}, s{S_O0}, 3
s_add_u32 s{sTmp2}, s{S_O0}, 3
s_lshr_b32 s{sTmp2}, s{sTmp2}, 3
s_sub_u32 s{sTmp2}, s{sTmp2}, s{sTmp}
v_bfe_u32 v{vC}, v{V_LANE}, 4, 1
v_mul_u32_u24 v{vC}, s{sTmp2}, v{vC}
v_lshl_add_u32 v{vC}, v{vG}, 3, v{vC}
v_add_u32 v{vC}, s{sTmp}, v{vC}
v_and_b32 v{vB}, 15, v{V_LANE}
{FIX}v_and_b32 v{vB}, {3 if OPT['wgf'] else 15}, v{V_LANE}
v_lshl_add_u32 v{vC}, v{vC}, 6, v{vB}
s_lshl_b32 s{sTmp}, s{S_W}, {2 if OPT['wgf'] else 4}
v_add_u32 v{vC}, s{sTmp}, v{vC}
v_lshlrev_b32 v{vC}, {FSH}, v{vC}
v_add_u32 v{vFl}, {F_KV}, v{vC}
s_lshl3_add_u32 s{sTmp}, s{S_W}, s{S_HG}
s_mul_i32 s{sTmp}, s{sTmp}, {US}
s_add_u32 s{sTmp}, s{sTmp}, {F_U}
v_mul_u32_u24 v{vB}, {2*US}, v{vB}
v_add_u32 v{vB}, s{sTmp}, v{vB}
v_cndmask_b32 v{vFl}, v{vFl}, v{vB}, vcc
v_lshlrev_b32 v{vKo0}, 4, v{vA}
v_mad_u32_u24 v{vKo0}, v{vG}, s{S_KS}, v{vKo0}
v_add_u32 v{vKo1}, {2*KS}, v{vKo0}
v_lshrrev_b32 v{vA}, 2, v{vRho}
{ONES}v_mul_u32_u24 v{vA}, {QS}, v{vA}
v_lshl_add_u32 v{vA}, v{vG}, 6, v{vA}
v_and_b32 v{vB}, 3, v{V_LANE}
v_lshl_add_u32 v{vVo}, v{vB}, 4, v{vA}
v_mov_b32 v{vIdx}, 0xdddddddd
s_mul_i32 s{sTmp}, s{S_O0}, {KS}
s_lshl_b32 s{sK}, s{S_W}, 13
s_add_u32 s{sK}, s{sK}, s{sTmp}
s_add_u32 s{sK}, s{sK}, {WS_K}
s_lshl_b32 s{sV}, s{S_W}, 12
s_add_u32 s{sV}, s{sV}, s{sTmp}
s_add_u32 s{sV}, s{sV}, {WS_V}
s_lshl2_add_u32 s{sTmp2}, s{S_TILE}, s{S_W}
{FOM}s_lshl_b32 s{sTmp2}, s{sTmp2}, 9
s_add_u32 s{sO0}, s{sTmp}, s{sTmp2}
s_add_u32 s{sO0}, s{sO0}, {WS_O}
s_add_u32 s{sO1}, s{sO0}, {2*KS}
s_bitcmp1_b32 s{S_H}, 0
s_cselect_b64 s[{sOdd}:{sOdd+1}], -1, 0
; per-lane multipliers for Q: scale*log2(e), zero on the four slots that belong to the neighbour head
v_mov_b32 v{vC}, 0x3e8b97f6
v_cmp_gt_u32 vcc, 32, v{V_LANE}
s_and_b64 s[78:79], vcc, s[{sOdd}:{sOdd+1}]
s_nor_b64 s[80:81], vcc, s[{sOdd}:{sOdd+1}]
v_cndmask_b32 v{vA}, v{vC}, 0, s[78:79]
v_cndmask_b32 v{vB}, v{vC}, 0, s[80:81]
s_mov_b32 s78, 0x3f803f80
s_mov_b32 s79, s78
v_xor_b32 v{vW1}, 64, v{vW0}
v_lshlrev_b32 v{vOs}, 4, v{vRho}
v_mad_u32_u24 v{vOs}, v{vG}, s{S_KS}, v{vOs}
v_lshl_add_u32 v{vQw}, v{V_LANE}, 4, s{sLx}''')
srd(SRD_C, 28, WS_SIZE)
def o_stores(r0, r1, tag):
    e(f'''s_bitcmp1_b32 s{S_H}, 0
    s_cbranch_scc1 L_ost_odd{tag}
    buffer_store_dwordx4 {vr(r0,4)}, v{vOs}, {sr(SRD_WS)}, s{sO0} offen sc1
    s_mov_b32 exec_hi, 0
    buffer_store_dwordx4 {vr(r1,4)}, v{vOs}, {sr(SRD_WS)}, s{sO1} offen sc1
    s_not_b64 exec, exec
    buffer_store_dwordx2 {vr(r1,2)}, v{vOs}, {sr(SRD_WS)}, s{sO1} offen sc1
    s_branch L_ost_done{tag}
    L_ost_odd{tag}:
    buffer_store_dwordx4 {vr(r1,4)}, v{vOs}, {sr(SRD_WS)}, s{sO1} offen sc1
    s_mov_b32 exec_hi, 0
    buffer_store_dwordx2 {vr(r0+2,2)}, v{vOs}, {sr(SRD_WS)}, s{sO0} offen offset:8 sc1
    s_not_b64 exec, exec
    buffer_store_dwordx4 {vr(r0,4)}, v{vOs}, {sr(SRD_WS)}, s{sO0} offen sc1
    L_ost_done{tag}:
    s_mov_b64 exec, -1''')
GS = 0
AB = [l for l in SEC.pop('tmp') if not l.strip().startswith(';')]
sec('mha')
def scc_pending(i):
    return i < len(AB) and AB[i].strip().startswith(('s_cselect', 's_mov_b32 s75'))
pos = 0
for g in DM:
    n = pos + OPT['ilv']
    while scc_pending(n): n += 1
    e('\n'.join(AB[pos:n])); pos = n
    e('\n'.join(g))
e('\n'.join(AB[pos:]))
stamp(0)
def x_reads(s):
    return [f'ds_read_b128 {vr(VX + 16*s + 4*ks, 4)}, v{vXr[ks]} offset:{(s%3)*4096}' for ks in range(4)]
e('s_waitcnt vmcnt(22)')
e('\n'.join(x_reads(0)))
e('s_waitcnt vmcnt(8) lgkmcnt(0)')
arrive(1)
stamp(1)
e('\n'.join(x_chunk(3)))
e('s_waitcnt vmcnt(8)')
e('\n'.join(x_reads(1)))
lwait(1)
e(f's_add_u32 s{S_NONCE}, s{S_NONCE}, 1')
stamp(2)
def w_reads(s):
    r = []
    for ks in range(4):
        for ct in range(2):
            for hf in range(2):
                d = VWF + 32 * (s & 1) + 8 * ks + 4 * ct + 2 * hf
                r.append(f'ds_read_b64_tr_b16 {vr(d,2)}, v{(vW0, vW1)[ct]} offset:{s*8192 + ks*2048 + hf*512}')
    return r
if OPT['tskip']: e(f's_cmp_eq_u32 s{S_C}, 7\ns_cbranch_scc1 L_gemm_t')
e('\n'.join(w_reads(0)))
e(f'''s_waitcnt lgkmcnt(0)
s_cmp_lg_u32 s{S_HG}, 0
s_cbranch_scc1 L_gemm_v''')
sQb, sQc = 82, 83
NE = OPT['wq_early']
def wq_dma(st):
    return [f's_add_u32 m0, s{sLx}, {4096 + 1024*st}\ns_add_u32 s83, s82, {64*2688*st}', '', f'buffer_load_dwordx4 v{vQd}, {sr(SRD_B)}, s83 offen lds']
SPIN = []
def gemm1(vpart):
    for s in range(7):
        M = []
        for ks in range(4):
            for ct in range(2):
                wf = vr(VWF + 32 * (s & 1) + 8 * ks + 4 * ct, 4); xf = vr(VX + 16 * s + 4 * ks, 4)
                acc = vr(VACC + 16 * ct, 16)
                a, b = (xf, wf) if vpart else (wf, xf)
                M.append(f'v_mfma_f32_32x32x16_bf16 {acc}, {a}, {b}, {"0" if s == 0 and ks == 0 else acc}')
        gaps = [[] for _ in range(8)]
        tag = f'{"v" if vpart else "k"}{s}'
        pre = []
        dm = []
        def add(l): dm.extend([(l[0], l[2])] + [(None, x) for x in l[3:]])
        if s <= 2: add(x_chunk(s + 4))
        if s == 3:
            for i in range(min(NE, 4)): add(wq_dma(i))
        if s == 4:
            for i in range(4, NE): add(wq_dma(i))
        n = {0: 8, 1: 8, 2: 8, 3: 4 + min(NE, 4), 4: NE}.get(s)
        for i, (m, l) in enumerate(dm):
            if m: (pre if i == 0 else gaps[i - 1]).append(m)
            gaps[i].append(l)
        if s < 6:
            wr = w_reads(s + 1)
            for i, (p, q) in enumerate(((0, 3), (3, 6), (6, 9), (9, 12), (12, 16))): gaps[i] += wr[p:q]
            if s <= 4: gaps[OPT['xg']] += [f's_waitcnt vmcnt({n})'] + x_reads(s + 2)
            gaps[7] += [f's_waitcnt lgkmcnt({4 if s == 4 and OPT["s6"] != 4 else 0})']
        if s == OPT['s6'] and (OPT['uw'] == 6 or OPT['cw'] == 6): gaps[6] += [f'v_mov_b32 v{V_T}, 6', f'ds_write_b32 v{V_OWN}, v{V_T}']
        if s == 5:
            gaps[7] += [f'v_add_u32 v31, 16, v{V_GRP}', f'ds_read_b32 v31, v31']
        if s == 6 and NE == 7:
            gaps[OPT['qa']] += ['s_waitcnt vmcnt(0)', f'v_mov_b32 v{V_T}, 7', f'ds_write_b32 v{V_OWN}, v{V_T}']
        e('\n'.join(pre))
        if OPT['gx'] & 1 or vpart == 2: M = ['s_nop 0'] * 8
        if OPT['gx'] & 2 or vpart == 2: gaps = [[x for x in g if 'tr_b16' not in x] for g in gaps]
        for i in range(8):
            e(M[i]); e('\n'.join(gaps[i]))
        stamp(14 + s)
if OPT['tskip']:
    sec('gt'); e('L_gemm_t:'); gemm1(2); e('s_branch L_gemm_done'); sec('mha')
else: SEC['gt'] = []
gemm1(False)
e('s_branch L_gemm_done\nL_gemm_v:')
gemm1(True)
e('L_gemm_done:')
stamp(3)
e(f"""s_add_u32 s{sS1}, s{sSt}, s{sS2}
s_add_u32 s{sXb}, s{sSt}, {4*KS}
s_add_u32 s{sCw}, s{sS1}, {4*KS}
s_cmp_eq_u32 s{S_C}, 7
s_waitcnt lgkmcnt(0)
s_cbranch_scc1 L_nokv
s_nop 4""")
for q, so in enumerate((sSt, sS1, sXb, sCw)):
    for i in range(4*q, 4*q+4):
        e(f'v_cvt_pk_bf16_f32 v{VPK + i}, v{VACC + 2*i}, v{VACC + 2*i + 1}')
    e(f'buffer_store_dwordx4 {vr(VPK+4*q,4)}, v{vSt}, {sr(SRD_WS)}, s{so} offen sc1')
e('L_nokv:')
assert OPT['wgf'] and OPT['ones'] and OPT['pf'] == 2
def kv_loads(buf, i, srdn=SRD_C):
    return [f'buffer_load_dwordx4 {vr(VK + 8*buf, 4)}, v{vKo0}, {sr(srdn)}, s{sK} offen offset:{512*i} sc1',
            f'buffer_load_dwordx4 {vr(VK + 8*buf + 4, 4)}, v{vKo1}, {sr(srdn)}, s{sK} offen offset:{512*i} sc1',
            f'buffer_load_dwordx4 {vr(VV + 8*buf, 4)}, v{vVo}, {sr(srdn)}, s{sV} offen offset:{256*i} sc1',
            f'buffer_load_dwordx4 {vr(VV + 8*buf + 4, 4)}, v{vVo}, {sr(srdn)}, s{sV} offen offset:{256*i + 128} sc1']
fill = [f'v_mov_b64 {vr(VV+2*i,2)}, s[78:79]' for i in range(12, 16)] + [f'v_subrev_u32 v{vRr}, {L_X - L_RB}, v{vQw}', 's_mov_b64 s[80:81], -1']
for s in range(3):
    fill += f"""s_add_u32 s{sTmp}, s{S_W}, {1+s}
    s_and_b32 s{sTmp}, s{sTmp}, 3
    s_sub_u32 s{sTmp}, s{sTmp}, s{S_W}
    s_mul_i32 s{sTmp}, s{sTmp}, 12288
    v_add_u32 v{vQx[s]}, s{sTmp}, v{vQw}
    v_subrev_u32 v{vRb[s]}, {L_X - L_RB - 4096*s}, v{vQx[s]}""".split('\n')
def count_in(n):
    e(f"""v_mov_b32 v{V_T}, 1
    v_mov_b32 v31, 0
    s_waitcnt vmcnt({n})
    s_mov_b64 exec, 1
    ds_add_rtn_u32 v{vSt}, v31, v{V_T} offset:32
    s_mov_b64 exec, -1""")
def count_out(n):
    e(f's_waitcnt lgkmcnt({n})\nv_readfirstlane_b32 s{sTmp2}, v{vSt}\ns_cmp_lg_u32 s{sTmp2}, 3\ns_cbranch_scc1 L_nopub')
    publish(sFl, 31)
    e('L_nopub:'); stamp(5)
NM = max(NE, OPT['wq_mid'])
for st in range(NE, NM): e('\n'.join(wq_dma(st)))
stamp(4)
e(f'v_cmp_gt_u32 vcc, 1, v31\ns_cbranch_vccz L_eok\nv_add_u32 v31, 16, v{V_GRP}')
lwait(1, addr=31)
e('L_eok:')
if NE < 7:
    e('\n'.join(fill)); fill = []
    count_in(NM - NE)
    if NM == 7:
        e('s_waitcnt vmcnt(0)'); arrive(7); count_out(1)
    else:
        count_out(0)
        for st in range(NM, 7): e('\n'.join(wq_dma(st)))
        e('s_waitcnt vmcnt(0)'); arrive(7)
lwait(7)
stamp(6)
QB = [80, 84, 88, 92, 112, 116, 120, 124]
def q_reads(k):
    s, ks = divmod(k, 4)
    return [f'ds_read_b64_tr_b16 {vr(QB[k%8] + 2*hf, 2)}, v{vQr} offset:{ks*12288 + s*1024 + hf*256}' for hf in range(2)]
for k in range(6): e('\n'.join(q_reads(k)))
e('\n'.join(fill[:12])); fill = fill[12:]
zi = 0
PK = OPT['pubk'] if NE == 7 else -99
for k in range(28):
    extra = 1 if PK < k <= PK + 5 else 0
    e(f's_waitcnt lgkmcnt({min(10, 2*(27-k)) + extra})')
    e(f'v_mfma_f32_32x32x16_bf16 {vr(VACC,16)}, {vr(QB[k%8], 4)}, {vr(VX + 4*k, 4)}, {"0" if k == 0 else vr(VACC,16)}')
    if k + 6 < 28: e('\n'.join(q_reads(k + 6)))
    while zi < 40 and VX + 2*zi + 1 < VX + 4*k - 4 and zi < 2*k:
        e(f'v_mov_b64 {vr(VX + 2*zi, 2)}, 0'); zi += 1
    if k >= 22 or k < 2:
        e('\n'.join(fill[:4])); fill = fill[4:]
    if k == PK: count_in(0)
    if k == PK + OPT['wgf']: count_out(2*OPT['wgf'])
    if k == OPT['pollk']: e(f'buffer_load_dword v31, v{vFl}, {sr(SRD_WS)}, 0 offen sc1')
    if k == OPT['chkk']:
        e(f's_waitcnt vmcnt(0)\nv_cmp_ne_u32 vcc, s{S_NONCE}, v31\ns_mov_b64 s[80:81], vcc\ns_cbranch_vccnz L_kv_late')
        for t in range(2): e('\n'.join(kv_loads(t, t)))
        e('L_kv_late:')
assert zi == 40 and VX == VS + 48 and not fill
stamp(7)
e('s_nop 11')
for r in range(16):
    m = vA if r < 4 else (vB if r >= 12 else vC)
    e(f'v_mul_f32 v{VACC + r}, v{m}, v{VACC + r}')
for i in range(8):
    e(f'v_cvt_pk_bf16_f32 v{VQ + 24 + i}, v{VACC + 2*i}, v{VACC + 2*i + 1}')
e(f"""ds_write_b128 v{vQw}, {vr(VQ+24,4)}
ds_write_b128 v{vQw}, {vr(VQ+28,4)} offset:1024""")
arrive(8)
lwait(8)
for s in range(3):
    e(f'ds_read_b128 {vr(VQ+8*s,4)}, v{vQx[s]}\nds_read_b128 {vr(VQ+8*s+4,4)}, v{vQx[s]} offset:1024')
PF = OPT['pf']
if OPT['chkk'] < 28: e('s_cmp_eq_u64 s[80:81], 0\ns_cbranch_scc1 L_kv_done')
poll(vFl, first_issued=OPT['pollk'] < 28 and OPT['chkk'] > 27, reg=31, sleep=OPT['ksleep'])
for t in range(PF): e('\n'.join(kv_loads(t, t)))
e('L_kv_done:')
stamp(8)
OM = OPT['omode']
if OM:
    e(f'''s_lshr_b32 s{sTmp}, s{S_O0}, 3
    s_add_u32 s{sTmp2}, s{S_O0}, 3
    s_lshr_b32 s{sTmp2}, s{sTmp2}, 3
    s_sub_u32 s{sTmp2}, s{sTmp2}, s{sTmp}
    s_lshl_b32 s{sTmp2}, s{sTmp2}, 6
    s_lshl_b32 s{sTmp}, s{sTmp}, 6
    s_lshl2_add_u32 s{sSt}, s{S_TILE}, s{S_W}
    s_add_u32 s{sTmp}, s{sTmp}, s{sSt}
    s_lshl_b32 s{sTmp}, s{sTmp}, {FSH}
    s_add_u32 s{sTmp}, s{sTmp}, {F_Y}
    v_and_b32 v{vFl}, 1, v{V_LANE}
    v_mul_u32_u24 v{vFl}, s{sTmp2}, v{vFl}
    v_and_b32 v31, 2, v{V_LANE}
    v_lshl_add_u32 v{vFl}, v31, 8, v{vFl}
    v_lshl_add_u32 v{vFl}, v{vFl}, {FSH}, s{sTmp}''')
def qk(buf, slot, js):
    d = vr(VS + 16*slot, 16)
    return f'v_mfma_f32_32x32x16_bf16 {d}, {vr(VK + 8*buf + 4*js, 4)}, {vr(VQ + 8*slot + 4*js, 4)}, {"0" if js == 0 else d}'
def pv(buf, slot, js):
    return f'v_smfmac_f32_32x32x32_bf16 {vr(VO + 16*slot, 16)}, {vr(VV + 8*buf + 4*js, 4)}, {vr(VS + 16*slot + 8*js, 8)}, v{vIdx}'
def exps(s): return [f'v_exp_f32 v{VS + 16*s + r}, v{VS + 16*s + r}' for r in range(16)]
SPREAD = []
def unit(t, s):
    ex = exps(s)
    if OPT['ax'] & 16 and s in (0, 1, 2):
        pass
    nb = t if s < 3 else (t + 1) & 3
    pb = t if s > 0 else (t - 1) & 3
    if s == 3: e(f's_waitcnt vmcnt({4*PF-4})')
    e(qk(nb, (s+1) & 3, 0)); e('\n'.join(ex[0:4]))
    e(qk(nb, (s+1) & 3, 1)); e('\n'.join(ex[4:8]))
    e(pv(pb, (s-1) & 3, 0))
    if s == 1:
        kl = kv_loads((t + PF) & 3, t + PF)
        if OPT['ax'] & 1: kl = [x for x in kl if 'exec' not in x]
        if OPT['ax'] & 2: kl = [x for x in kl if 'buffer' not in x]
        if OPT['ax'] & 4: kl = [x.replace(' sc1', '') for x in kl]
        if OPT['ax'] & 8: SPREAD.extend(kl); kl = []
        e('\n'.join(kl))
        if t == 3 - PF:
            e(f's_cmp_eq_u32 s{sIt}, 3\ns_cselect_b32 s{SRD_C+2}, 0, s{SRD_C+2}')
        if t == 3:
            e(f's_add_u32 s{sK}, s{sK}, 2048\ns_add_u32 s{sV}, s{sV}, 1024\ns_add_u32 s{sIt}, s{sIt}, 1\ns_cmp_lg_u32 s{sIt}, 4')
    e('\n'.join(ex[8:12]))
    e(pv(pb, (s-1) & 3, 1)); e('\n'.join(ex[12:16]))
e(f's_mov_b32 s{sIt}, 0\ns_waitcnt vmcnt({4*PF - 4}) lgkmcnt(0)')
stamp(9)
e(qk(0, 0, 0)); e(qk(0, 0, 1))
e(f"s_setprio {OPT['pa']}\ns_nop 8\ns_branch L_att_in" if OPT['prio'] else 's_nop 9\ns_branch L_att_in')
e('L_att:')
unit(3, 2); unit(3, 3)
e('L_att_in:')
for t in range(4):
    for s in range(4):
        if (t, s) < (3, 2): unit(t, s)
e('s_cbranch_scc1 L_att')
if OPT['prio']: e(f"s_setprio {OPT['pm']}")
if OM: e(f'buffer_load_dword v31, v{vFl}, {sr(SRD_WS)}, 0 offen sc1')
def rbw(s): return [f'ds_write_b128 v{vRb[s]}, {vr(VO + 16*s + 4*i, 4)} offset:{1024*i}' for i in range(4)]
ex = exps(2); w0 = rbw(0)
e(qk(3, 3, 0)); e('\n'.join(ex[0:4])); e(qk(3, 3, 1)); e('\n'.join(ex[4:7] + [w0[0]]))
e(pv(3, 1, 0)); e('\n'.join(ex[7:10] + [w0[1]])); e(pv(3, 1, 1)); e('\n'.join(ex[10:13] + [w0[2]] + ex[13:16] + [w0[3]]))
ex = exps(3); w1 = rbw(1); w2 = rbw(2)
e(pv(3, 2, 0)); e('\n'.join(ex[0:3])); e(pv(3, 2, 1))
e('\n'.join([w1[0]] + ex[3:5] + [w1[1]] + ex[5:7] + [w1[2]] + ex[7:9] + [w1[3]] + ex[9:10]))
e(pv(3, 3, 0))
e('\n'.join([w2[0]] + ex[10:12] + [w2[1]] + ex[12:14] + [w2[2]] + ex[14:16] + [w2[3]]))
arrive(9)
e(pv(3, 3, 1))
stamp(10)
lwait(9)
for i in range(12): e(f'ds_read_b128 {vr(VS + 4*i, 4)}, v{vRr} offset:{1024*i}')
OA = VO + 48
for s in range(3):
    e(f's_waitcnt lgkmcnt({8 - 4*s})')
    for i in range(8): e(f'v_pk_add_f32 {vr(OA+2*i,2)}, {vr(OA+2*i,2)}, {vr(VS+16*s+2*i,2)}')
e(f's_mov_b32 s{sIt}, {1 if OPT["force_fb"] else 0}')
e(f'''L_norm:
v_cndmask_b32 v{vA}, v{OA+12}, v{OA}, s[{sOdd}:{sOdd+1}]
v_max3_f32 v{vC}, abs(v{OA}), abs(v{OA+1}), abs(v{OA+2})
v_mov_b32 v{vB}, v{vA}
v_max3_f32 v{vC}, abs(v{OA+3}), abs(v{OA+4}), v{vC}
v_max3_f32 v{vC}, abs(v{OA+5}), abs(v{OA+6}), v{vC}
v_permlane32_swap_b32 v{vA}, v{vB}
v_max3_f32 v{vC}, abs(v{OA+7}), abs(v{OA+8}), v{vC}
v_cndmask_b32 v{vB}, v{vB}, v{vA}, s[{sOdd}:{sOdd+1}]
v_max3_f32 v{vC}, abs(v{OA+9}), abs(v{OA+10}), v{vC}
v_rcp_f32 v{vA}, v{vB}
v_max3_f32 v{vC}, abs(v{OA+11}), abs(v{OA+12}), v{vC}
v_max3_f32 v{vC}, abs(v{OA+13}), abs(v{OA+14}), v{vC}
v_max_f32 v{vC}, abs(v{OA+15}), v{vC}
v_cmp_nle_f32 vcc, 0x30800000, v{vB}
s_mov_b64 s[78:79], vcc
v_cmp_nge_f32 vcc, 0x4e800000, v{vB}
s_or_b64 s[78:79], s[78:79], vcc
v_cmp_ngt_f32 vcc, 0x7f000000, v{vC}
s_or_b64 vcc, s[78:79], vcc''')
if OPT['force_fb']:
    e(f's_cmp_eq_u32 s{sIt}, 1\ns_cbranch_scc1 L_fb')
e('s_cbranch_vccnz L_fb0\nL_norm2:')
for i in range(8): e(f'v_pk_mul_f32 {vr(OA+2*i,2)}, {vr(OA+2*i,2)}, {vr(vA,2)} op_sel_hi:[1,0]')
for i in range(8): e(f'v_cvt_pk_bf16_f32 v{VS+i}, v{OA+2*i}, v{OA+2*i+1}')
if OM: poll(vFl, first_issued=2, reg=31)
o_stores(VS, VS + 4, '')
stamp(11)
if OM == 4: publish(sFo, vA)
if OPT['obar'] == 1: e('s_barrier')
if OPT['obar'] >= 3: e(f"s_waitcnt vmcnt({5 - OPT['obar'] + (OM == 4)})\ns_barrier")
if OM == 0:
    e('s_waitcnt vmcnt(0)'); publish(sFo, vA)
if OPT['obar'] == 2: e('s_barrier')
stamp(12)
prof_out()
e('s_endpgm')

for tag, st in SPIN:
    e(f'L_ws_{tag}:'); lwait(st); e(f's_branch L_wb_{tag}')
sec('fb')
e(f'''L_fb0:
s_cmp_eq_u32 s{sIt}, 2
s_cbranch_scc1 L_norm2
L_fb:
s_waitcnt vmcnt(0)
s_mul_i32 s{sTmp}, s{S_O0}, {KS}
s_add_u32 s{sK}, s{sTmp}, {WS_K}
s_add_u32 s{sV}, s{sTmp}, {WS_V}
v_mov_b32 v{vC}, 0xff800000
s_mov_b32 s{sIt}, 0
L_fb1:''')
e('\n'.join(kv_loads(0, 0, SRD_WS)[:2]))
e('s_waitcnt vmcnt(0)')
e(qk(0, 3, 0)); e(qk(0, 3, 1)); e('s_nop 11')
for i in range(8): e(f'v_max3_f32 v{vC}, v{VS+48+2*i}, v{VS+49+2*i}, v{vC}')
e(f'''s_add_u32 s{sK}, s{sK}, 512
s_add_u32 s{sIt}, s{sIt}, 1
s_cmp_lg_u32 s{sIt}, 64
s_cbranch_scc1 L_fb1
v_mov_b32 v{vA}, v{vC}
s_sub_u32 s{sK}, s{sK}, 0x8000
s_mov_b32 s{sIt}, 0
v_permlane32_swap_b32 v{vA}, v{vC}
v_max_f32 v{vC}, v{vA}, v{vC}''')
for i in range(8): e(f'v_mov_b64 {vr(OA+2*i,2)}, 0')
e('L_fb2:')
e('\n'.join(kv_loads(0, 0, SRD_WS)))
e('s_waitcnt vmcnt(0)')
e(qk(0, 3, 0)); e(qk(0, 3, 1)); e('s_nop 11')
for i in range(16): e(f'v_sub_f32 v{VS+48+i}, v{VS+48+i}, v{vC}')
for i in range(16): e(f'v_exp_f32 v{VS+48+i}, v{VS+48+i}')
e('s_nop 1')
e(pv(0, 3, 0)); e(pv(0, 3, 1))
e(f'''s_add_u32 s{sK}, s{sK}, 512
s_add_u32 s{sV}, s{sV}, 256
s_add_u32 s{sIt}, s{sIt}, 1
s_cmp_lg_u32 s{sIt}, 64
s_cbranch_scc1 L_fb2
s_mov_b32 s{sIt}, 2
s_nop 11
s_branch L_norm''')

sD0, sD, sHw, sDs, sTab, sA, sB, sLd, sSk, sIt2, sFlU, sInv, sUns, sSel, sUl, sOl, sCh0 = range(60, 77)
sUs, sOut, sHm = 78, 80, 82
sE2, sP, sE3, sKd = 84, 85, 86, 87
OUTM = 'sc1' if OPT['outsc'] & 1 else ''
OUTM2 = 'sc1' if OPT['outsc'] & 2 else ''
a0, a1, a2, a3 = 5, 6, 7, 9
vPar = 10
vKc = 18
vRa, vRb_, vKd, vKd1, vKa, vKa0, vFu, vE1, vE1b, vFr, vKxo, vKxp, vPair, vRz, vBk, vA0, vA1, vKb, vSB, vSB0 = range(20, 40)
vSel = 180
vAc = 40
vOne, vScl, vAdd, vC0 = range(56, 60)
vOp = 64
vY = 128
vXt = 144
vAn = 166
vX1 = 172
T0, T1 = 160, 176
vZ = 192
U = 204
vZer = 220
vUa, vCd, vG_, vZp, vKp, vF_, vL16, vXo, vXp, vTr, vYl, vYs, vFy = range(224, 237)
vWoD = 238
vWoR = 240
vOl, vFo, vBw, vBr, vOut = range(242, 247)
def hi():
    if OPT['prio']: e('s_setprio 3')
KG = [True]
def lo():
    if OPT['prio']: e(f"s_setprio {OPT['kgp'] if KG[0] else OPT['ps']}")
ROLE[0] = 1
sec('ssm0')
e(f"""s_cmp_{'eq' if OPT['only'] != 2 else 'le'}_u32 s{S_C}, 7
s_cbranch_scc1 L_ssm_idle
s_lshr_b32 s{sDs}, s{S_W}, 1
s_lshl_b32 s{sD0}, s{S_C}, 6
s_lshl1_add_u32 s{sD0}, s{S_J}, s{sD0}
s_add_u32 s{sD}, s{sD0}, s{sDs}
s_mul_i32 s{sTab}, s{S_W}, {TABSZ}
s_add_u32 s{sTab}, s{sTab}, {L_TAB}
s_lshl1_add_u32 s{sA}, s{sD0}, s{S_W}
s_lshl_b32 s{sA}, s{sA}, 8
v_lshl_add_u32 v{a0}, v{V_LANE}, 2, s{sA}
s_mov_b32 m0, s{sTab}
s_lshl_b32 s{sB}, s{sD0}, 1
s_waitcnt lgkmcnt(0)
s_load_dword s{sLd}, s[14:15], s{sB}
s_load_dword s{sSk}, s[16:17], s{sB}
global_load_dword v{vPar+0}, v{a0}, s[6:7]
global_load_dword v{vPar+1}, v{a0}, s[8:9]
global_load_dword v{vPar+2}, v{a0}, s[10:11]
global_load_dword v{vPar+3}, v{a0}, s[12:13]
global_load_dword v{vPar+4}, v{V_T}, s[28:29]""")
if OPT['tlb'] != 2: e('s_barrier')
if OPT['tlb']:
    e(f'''v_and_b32 v{a0}, 7, v{V_LANE}
    v_min_u32 v{a0}, 5, v{a0}
    v_lshlrev_b32 v{a0}, 21, v{a0}
    v_add_u32 v{a0}, 0xf8000, v{a0}
    v_mov_b32 v{a1}, 0
    global_load_dword v8, v{a0}, s[28:29]
    global_load_dword v8, v{a1}, s[22:23]''')
if OPT['tlb'] == 2: e('s_barrier')
e('s_branch L_ssm')
sec('ssm')
e('L_ssm:')
if OPT['abl'] == 1:
    arrive(1); e('s_waitcnt vmcnt(0) lgkmcnt(0)\ns_endpgm')
lo()
srd(SRD_WS, 28, WS_SIZE)
e(f"""s_and_b32 s{sHw}, s{S_W}, 1
v_add_u32 v{V_GRP}, 16, v{V_GRP}
v_and_b32 v{a0}, 15, v{V_LANE}
v_lshrrev_b32 v{a1}, 4, v{V_LANE}
v_lshl_add_u32 v{vRb_}, v{a1}, 4, s{sTab}
v_mul_u32_u24 v{a2}, {TROW}, v{a0}
v_add_u32 v{vRa}, v{a2}, v{vRb_}
v_lshlrev_b32 v{vL16}, 4, v{V_LANE}
v_mov_b32 v{vOne}, 0x3c00
ds_write_addtid_b32 v{vOne}""")
for i in range(8): e(f'v_mov_b64 {vr(vAc+2*i,2)}, 0')
mid = f"""v_and_b32 v{a0}, 7, v{V_LANE}
s_and_b32 s{sB}, s2, {OPT['ur'] - 1}
s_lshl2_add_u32 s{sB}, s{sB}, s{S_W}
s_mul_i32 s{sB}, s{sB}, {8*US}
s_add_u32 s{sB}, s{sB}, {F_U}
v_mul_u32_u24 v{vFu}, {US}, v{a0}
v_add_u32 v{vFu}, s{sB}, v{vFu}
s_mul_i32 s{sP}, s{sDs}, {P_SZ}
s_add_u32 s{sP}, s{sP}, {L_TAB}
s_add_u32 s{sKd}, s{sP}, {P_KD}
s_lshl_b32 s{sB}, s{sHw}, 8
s_add_u32 s{sInv}, s{sB}, s{sKd}
s_add_u32 s{sA}, s{sInv}, {1088 + 128}
v_lshl_add_u32 v{vRz}, v{a0}, 4, s{sA}
v_mov_b32 v{vKb}, s{sKd}
v_and_b32 v{a0}, 15, v{V_LANE}
v_lshrrev_b32 v{a1}, 4, v{V_LANE}
s_lshl_b32 s{sA}, s{sHw}, 4
v_add_u32 v{a0}, s{sA}, v{a0}
v_and_b32 v{a3}, 1, v{V_LANE}
v_mul_u32_u24 v{a2}, 255, v{a3}
v_sub_u32 v{a2}, v{a2}, v{a0}
s_add_u32 s{sA}, s{sKd}, {1088 + 32}
v_add_u32 v{vKa}, s{sA}, v{a2}
v_add_u32 v{vKa0}, 96, v{vKa}
s_lshl3_add_u32 s{sA}, s{sDs}, 16
v_lshl_add_u32 v{vPair}, v{a3}, 2, s{sA}
s_mul_i32 s{sA}, s{sHw}, {1088 + 112 - 1024}
s_add_u32 s{sA}, s{sA}, s{sKd}
s_add_u32 s{sA}, s{sA}, 1024
v_writelane_b32 v{vKa0}, s{sA}, 0
s_mul_i32 s{sA}, s{sHw}, 56
s_sub_u32 s{sA}, s{sKd}, s{sA}
s_add_u32 s{sA}, s{sA}, 1088
v_writelane_b32 v{vKa0}, s{sA}, 16
v_max_u32 v{a2}, 1, v{a1}
v_sub_u32 v{a2}, 5, v{a2}
v_lshlrev_b32 v{a0}, v{a2}, v{a0}
v_lshlrev_b32 v{a2}, 3, v{a1}
s_mov_b32 s{sA}, 0x60400100
v_bfe_u32 v{a1}, s{sA}, v{a2}, 8
v_lshl_add_u32 v{a0}, v{a1}, 3, v{a0}
v_add_u32 v{vKd}, s{sKd}, v{a0}
s_mov_b32 s{sA}, 0x80040404
v_bfe_u32 v{a1}, s{sA}, v{a2}, 8
v_add_u32 v{vKd1}, v{a1}, v{vKd}
v_lshrrev_b32 v{a1}, 1, v{V_LANE}
v_lshlrev_b32 v{vUa}, 6, v{a1}
v_lshl_add_u32 v{vUa}, v{a3}, 4, v{vUa}
s_lshr_b32 s{sA}, s{sD0}, 2
s_mul_i32 s{sA}, s{sA}, {QS}
s_and_b32 s{sB}, s{sD0}, 3
s_lshl4_add_u32 s{sA}, s{sB}, s{sA}
s_lshl_b32 s{sB}, s{S_W}, 12
s_add_u32 s{sA}, s{sA}, s{sB}
s_add_u32 s{sUl}, s{sA}, {WS_U}
v_and_b32 v{a1}, 3, v{a1}
v_lshl_add_u32 v{a1}, v{a3}, 2, v{a1}
v_mul_u32_u24 v{a1}, {PS}, v{a1}
v_lshrrev_b32 v{a2}, 3, v{V_LANE}
v_lshl_add_u32 v{a1}, v{a2}, 4, v{a1}
s_lshl_b32 s{sA}, s{S_W}, 8
s_add_u32 s{sA}, s{sA}, {L_KP + 512}
v_add_u32 v{vKp}, s{sA}, v{a1}
; byte selectors that expand the distinct taps to the lags (lag l uses the tap at bf16(l), as in the reference)
v_lshrrev_b32 v{a1}, 5, v{V_LANE}
s_lshl_b32 s{sA}, s{sHw}, 1
v_max_u32 v{a0}, s{sA}, v{a1}
v_min_u32 v{a2}, 1, v{a0}
v_mul_u32_u24 v{a2}, 0x0202, v{a2}
v_lshlrev_b32 v{a2}, 16, v{a2}
v_sub_u32 v{vSel}, 0x03020100, v{a2}
v_mul_u32_u24 v{a2}, 0x0202, v{a0}
v_lshl_or_b32 v{a2}, v{a2}, 16, v{a2}
v_sub_u32 v{vSel+1}, 0x07060504, v{a2}
s_mul_i32 s{sA}, s{sHw}, 0x02020202
v_add_u32 v{vSel+2}, s{sA}, v{vSel}
s_mul_i32 s{sA}, s{sHw}, 0x02020404
v_add_u32 v{vSel+3}, s{sA}, v{vSel+1}
v_lshrrev_b32 v{a2}, v{a0}, v{vL16}
s_movk_i32 s{sA}, 256
v_lshl_add_u32 v{a2}, s{sA}, v{a0}, v{a2}
s_sub_u32 s{sA}, s{sKd}, 256
v_add_u32 v{vE1}, s{sA}, v{a2}
v_lshlrev_b32 v{a2}, 2, v{a0}
v_sub_u32 v{vE1b}, v{vE1}, v{a2}
s_mov_b32 s{sA}, 0x0c0c0c0c
s_cmp_lg_u32 s{sHw}, 0
s_cselect_b32 s{sE2}, 0x01000100, s{sA}
s_cselect_b32 s{sE3}, 0x05040302, s{sA}
v_mov_b32 v{vSel+4}, s{sA}
v_mov_b32 v{vSel+5}, s{sA}
v_mov_b32 v{vSel+6}, s{sA}
v_mov_b32 v{vSel+7}, s{sA}
s_mov_b32 s{sA}, 0x05040504
s_mov_b64 exec, 15
v_mov_b32 v{vSel+4}, s{sA}
v_mov_b32 v{vSel+5}, s{sA}
v_mov_b32 v{vSel+6}, s{sA}
s_mov_b64 exec, -1
v_writelane_b32 v{vSel+7}, s{sA}, 3
s_mov_b32 s{sA}, 0x05040302
v_writelane_b32 v{vSel+4}, s{sA}, 3
s_mov_b32 s{sA}, 0x0c0c0504
v_writelane_b32 v{vSel+6}, s{sA}, 0
v_writelane_b32 v{vSel+7}, s{sA}, 2
s_mul_i32 s{sA}, s{S_W}, {2*PS}
s_add_u32 s{sA}, s{sA}, {L_KP}
v_mul_u32_u24 v{a2}, {PS - 512}, v{a1}
v_add3_u32 v{vG_}, v{a2}, v{vL16}, s{sA}
v_mov_b64 {vr(vZer,2)}, 0
v_mov_b64 {vr(vZer+2,2)}, 0
ds_write_b128 v{vG_}, {vr(vZer,4)}
s_lshl_b32 s{sA}, s{sHw}, 10
s_add_u32 s{sB}, s{sP}, {P_UC}
s_add_u32 s{sA}, s{sA}, s{sB}
s_add_u32 s{sA}, s{sA}, 64
v_add_u32 v{vCd}, s{sA}, v{vL16}
v_and_b32 v{a3}, 3, v{V_LANE}
v_and_b32 v{a0}, 0x1c, v{V_LANE}
v_lshlrev_b32 v{a2}, 2, v{a0}
v_and_b32 v{vZp}, 0x30, v{a2}
s_mov_b32 exec_hi, 0
v_add_u32 v{vZp}, 2112, v{a2}
s_mov_b64 exec, -1
v_mul_u32_u24 v{a2}, {UC_S}, v{a3}
v_add3_u32 v{vZp}, v{vZp}, v{a2}, s{sB}
v_lshlrev_b32 v{a0}, 1, v{a0}
v_sub_u32 v{a0}, v{a0}, v{a2}
v_lshlrev_b32 v{a1}, 4, v{a1}
v_sub_u32 v{a0}, v{a0}, v{a1}
s_lshl_b32 s{sA}, s{sHw}, 5
s_sub_u32 s{sB}, s{sB}, s{sA}
s_add_u32 s{sB}, s{sB}, {56 + 3*UC_S}
v_add_u32 v{vF_}, s{sB}, v{a0}
v_add_u32 v{vG_}, {512 - 80}, v{vG_}
v_add_u32 v{vKxo}, s{sTab}, v{vL16}
s_xor_b32 s{sA}, s{S_W}, 1
s_mul_i32 s{sA}, s{sA}, {TABSZ}
s_add_u32 s{sA}, s{sA}, {L_TAB}
v_add_u32 v{vKxp}, s{sA}, v{vL16}
v_and_b32 v{a0}, 31, v{V_LANE}
v_lshlrev_b32 v{a2}, 2, v{a0}
v_sub_u32 v{a2}, v{a1}, v{a2}
s_add_u32 s{sA}, s{sInv}, {1088 + 124}
v_add_u32 v{vBk}, s{sA}, v{a2}
"""
e(mid)
stamp(22)
e(f"""s_waitcnt lgkmcnt(0)
s_lshl_b32 s{sA}, s{sDs}, 4
s_lshr_b32 s{sLd}, s{sLd}, s{sA}
s_lshl_b32 s{sLd}, s{sLd}, 16
s_lshr_b32 s{sSk}, s{sSk}, s{sA}
s_lshl_b32 s{sSk}, s{sSk}, 16
v_mov_b32 v{a0}, s{sLd}
v_mul_f32 v{a0}, 0x3fb8aa3b, v{a0}
v_exp_f32 v{a0}, v{a0}
s_cmp_eq_u32 s{sHw}, 0
s_cselect_b32 s{sSk}, s{sSk}, 0
v_cvt_pk_bf16_f32 v{a0}, v{a0}, v{a0}
v_and_b32 v{vScl}, 0xffff0000, v{a0}
v_mul_f32 v{vKc}, 0xbfb8aa3b, v{vScl}
v_mul_f32 v{vKc+1}, 0.15915494, v{vScl}
v_mov_b32 v{vAdd}, 0
v_add_f32 v{vScl}, v{vScl}, v{vScl}
v_writelane_b32 v{vAdd}, s{sSk}, 0
s_mov_b32 s{sIt2}, 0
s_mov_b32 s{sSel}, 0x01000c0c""")
stamp(0)
e(f"""s_waitcnt vmcnt({3 if OPT['tlb'] else 1})
v_and_b32 v{a0}, 0x7f807f80, v{vPar+2}
v_and_b32 v{a1}, 0x7f807f80, v{vPar+3}
v_pk_max_u16 v{a0}, v{a0}, v{a1}
v_lshlrev_b32 v{a1}, 16, v{a0}
v_max_u32 v{a0}, v{a0}, v{a1}""")
for q, n in enumerate((1, 2, 4, 8)):
    e(f's_nop 1\nv_max_u32_dpp v{a0}, v{a0}, v{a0} row_ror:{n} row_mask:0xf bank_mask:0xf')
e(f"""s_nop 0
v_readlane_b32 s{sA}, v{a0}, 0
v_readlane_b32 s{sB}, v{a0}, 16
v_readlane_b32 s{sInv}, v{a0}, 32
v_readlane_b32 s{sUns}, v{a0}, 48
s_max_u32 s{sA}, s{sA}, s{sB}
s_max_u32 s{sUns}, s{sUns}, s{sInv}
s_max_u32 s{sUns}, s{sUns}, s{sA}
s_and_b32 s{sUns}, s{sUns}, 0x7f800000
s_min_u32 s{sUns}, s{sUns}, 0x7e800000
s_sub_u32 s{sInv}, 0x7f000000, s{sUns}
v_mul_f32 v{vScl}, s{sUns}, v{vScl}
v_mul_f32 v{vSB}, 0x43000000, v{vScl}
v_mov_b32 v{vSB0}, v{vSB}
s_mov_b64 exec, 1
v_mov_b32 v{vSB0}, v{vScl}
s_mov_b64 exec, -1""")
stamp(1)
if OPT['abl'] == 2: e('s_endpgm')
def cm(jobs, conj):
    ng = 'neg_hi:[1,0,0]' if conj else 'neg_lo:[1,0,0]'
    return [f'v_pk_mul_f16 v{d}, v{x}, v{w} op_sel_hi:[1,0]' for d, x, w in jobs] + \
           [f'v_pk_fma_f16 v{d}, v{x}, v{w}, v{d} op_sel:[1,1,0] op_sel_hi:[0,1,1] {ng}' for d, x, w in jobs]
def wr(reg): return f'ds_write_addtid_b32 v{reg} offset:{TROW*(reg - vY)}'
assert vXt == vY + 16
zA, zB, tA, tB, pA, pB = vZ, vZ+2, vZ+4, vZ+6, vZ+8, vZ+10
X = vXt; Y = vY
an = {1: vAn, 2: vAn+1, 4: vAn+2, 8: Y+1, 16: Y+2, 32: Y+4, 64: Y+8, 128: X+21, 256: vAn+3, 512: vAn+4, 1024: vAn+5}
e('L_kg:')
stamp(14)
seq = f"""v_perm_b32 v{pA}, v{vPar}, v{vPar}, s{sSel}
v_mul_f32 v{pA}, 0x3fb8aa3b, v{pA}
v_exp_f32 v{pA}, v{pA}
v_perm_b32 v{pA+1}, v{vPar+1}, v{vPar+1}, s{sSel}
v_perm_b32 v{tA}, v{vPar+2}, v{vPar+2}, s{sSel}
v_perm_b32 v{tA+1}, v{vPar+3}, v{vPar+3}, s{sSel}
v_cvt_pk_bf16_f32 v{pA}, v{pA}, v{pA}
v_mul_f32 v{tA}, s{sInv}, v{tA}
v_and_b32 v{pA}, 0xffff0000, v{pA}
v_mul_f32 v{tA+1}, s{sInv}, v{tA+1}
v_pk_mul_f32 {vr(pA,2)}, {vr(pA,2)}, {vr(vKc,2)}
v_cvt_pk_f16_f32 v{X}, v{tA}, -v{tA+1}
v_mul_f32 v{pB}, 0x42800000, v{pA}
v_mul_f32 v{pB+1}, 0x42800000, v{pA+1}
v_exp_f32 v{pA}, v{pA}
v_fract_f32 v{pA+1}, v{pA+1}
v_exp_f32 v{pB}, v{pB}
v_fract_f32 v{pB+1}, v{pB+1}
v_cos_f32 v{zA}, v{pA+1}
v_sin_f32 v{zA+1}, v{pA+1}
v_cos_f32 v{zB}, v{pB+1}
v_sin_f32 v{zB+1}, v{pB+1}
v_pk_mul_f32 {vr(zA,2)}, {vr(zA,2)}, {vr(pA,2)} op_sel_hi:[1,0]
v_pk_mul_f32 {vr(zB,2)}, {vr(zB,2)}, {vr(pB,2)} op_sel_hi:[1,0]""".split('\n')
for st in range(6):
    chains = [(zA, tA, an[1 << st], st < 5)] + ([(zB, tB, an[64 << st], st < 4)] if st < 5 else [])
    for z, t, d, sq in chains:
        if sq: seq.append(f'v_pk_mul_f32 {vr(t,2)}, {vr(z,2)}, {vr(z,2)} op_sel_hi:[0,1]')
    for z, t, d, sq in chains: seq.append(f'v_cvt_pk_f16_f32 v{d}, v{z}, v{z+1}')
    for z, t, d, sq in chains:
        if sq: seq.append(f'v_pk_fma_f32 {vr(z,2)}, {vr(z,2)}, {vr(z,2)}, {vr(t,2)} op_sel:[1,1,0] op_sel_hi:[0,1,1] neg_lo:[1,0,0]')
seq += cm([(X+1, X, an[1]), (X+2, X, an[2]), (X+4, X, an[4]), (X+8, X, an[256]), (X+12, X, an[512]), (X+16, X, an[1024])], True)
seq += cm([(Y+3, Y+1, Y+2), (Y+12, Y+4, Y+8), (Y+5, Y+4, Y+1), (Y+6, Y+4, Y+2), (Y+9, Y+8, Y+1), (Y+10, Y+8, Y+2)], False)
seq += cm([(X+3, X+1, an[2]), (X+5, X+1, an[4]), (X+6, X+2, an[4]), (X+9, X+2, an[256]), (X+10, X+4, an[256]), (X+13, X+4, an[512]),
           (X+14, X+8, an[512]), (X+17, X+8, an[1024]), (X+18, X+12, an[1024]), (X+20, X+16, an[1024])], True)
seq += cm([(Y+7, Y+4, Y+3), (Y+11, Y+8, Y+3), (Y+13, Y+12, Y+1), (Y+14, Y+12, Y+2), (Y+15, Y+12, Y+3)], False)
seq += cm([(X+7, X+3, an[4]), (X+11, X+6, an[256]), (X+15, X+10, an[512]), (X+19, X+14, an[1024])], True)
e('\n'.join(seq))
stamp(15)
if OPT['kgw']:
    e(f'v_subrev_u32 v{a0}, 16, v{V_GRP}'); lwait(OPT['kgw'], addr=a0)
hi()
if OPT['abl'] != 4: e('\n'.join(wr(r) for r in range(Y + 1, X + 22)))
for k in range(4):
    o = vOp + 16*k
    e(f"""ds_read_b128 {vr(o,4)}, v{vRa} offset:{64*k}
    ds_read_b128 {vr(o+4,4)}, v{vRb_} offset:{37*TROW + 64*k}
    ds_read_b128 {vr(o+8,4)}, v{vRa} offset:{16*TROW + 64*k}
    ds_read_b128 {vr(o+12,4)}, v{vRa} offset:{32*TROW + 64*k}""")
if not OPT['uw']: e(f's_cmp_eq_u32 s{sIt2}, 0\ns_cbranch_scc1 L_kg_n\nbuffer_load_dword v{vFr}, v{vFu}, {sr(SRD_WS)}, 0 offen sc1\nL_kg_n:')
stamp(16)
def mf(c, a, b): return f'v_mfma_f32_16x16x32_f16 {vr(c,4)}, {vr(a,4)}, {vr(b,4)}, {vr(c,4)}'
late_m = []
for k in range(4):
    o = vOp + 16*k; y1 = vX1 + 4*(k & 1)
    p = cm([(y1+r, o+r, o+4+r) for r in range(4)], False)
    e(f's_waitcnt lgkmcnt({12 - 4*k})')
    e('\n'.join([mf(vAc, o+8, o)] + p[0:2] + late_m[:1] + p[2:4] + [mf(vAc+4, o+12, o)] + p[4:6] + late_m[1:] + p[6:8]))
    late_m = [mf(vAc+8, o+8, y1), mf(vAc+12, o+12, y1)]
e(f"""s_add_u32 s{sSel}, s{sSel}, 0x02020000
s_add_u32 s{sIt2}, s{sIt2}, 1
s_cmp_lg_u32 s{sIt2}, 2""")
e('\n'.join(late_m))
lo()
e('s_cbranch_scc1 L_kg')
stamp(17)
if OPT['abl'] in (4, 8): e('s_endpgm')
def scl(i): return vSB0 if i == 4 else (vSB if i & 4 else vScl)
for i in range(8): e(f'v_mul_f32 v{vAc+i}, v{scl(i)}, v{vAc+i}')
e(f's_cmp_eq_u32 s{sHw}, 0')
for i in range(8, 16): e(f'v_mul_f32 v{vAc+i}, v{scl(i)}, v{vAc+i}')
e('s_cbranch_scc1 L_kx')
for i in range(8): e(f'v_swap_b32 v{vAc+i}, v{vAc+8+i}')
e(f"""L_kx:
ds_write_b128 v{vKxo}, {vr(vAc+8,4)}
s_mov_b32 exec_hi, 0
ds_write_b128 v{vKxo}, {vr(vAc+12,4)} offset:1024
s_mov_b64 exec, -1
s_waitcnt vmcnt(0)
v_readfirstlane_b32 s{S_NONCE}, v{vPar+4}""")
arrive(2)
e(f's_add_u32 s{S_NONCE}, s{S_NONCE}, 1')
e(f'v_add_f32 v{vAc}, v{vAdd}, v{vAc}')
stamp(18)
def bprio():
    if OPT['prio']: e(f"s_setprio {OPT['bp']}")
def u_look():
    hi(); e(f'buffer_load_dword v{vFr}, v{vFu}, {sr(SRD_WS)}, 0 offen sc1'); bprio()
def u_fetch():
    hi()
    stamp(20)
    poll(vFu, first_issued=True, reg=vFr, sleep=OPT['usleep'])
    stamp(21)
    for k in range(2):
        e(f'buffer_load_dwordx4 {vr(U+4*k,4)}, v{vUa}, {sr(SRD_WS)}, s{sUl} offen offset:{2048*k} sc1')
    bprio()
if OPT['uw'] == -2: u_look()
else: bprio()
stamp(19)
lwait(2, addr=vPair)
e(f"""ds_read_b128 {vr(vAc+8,4)}, v{vKxp}
ds_read_b128 {vr(vAc+12,4)}, v{vKxp} offset:1024
ds_write_b128 v{vRz}, {vr(vZer,4)}
s_mov_b32 s{sIt2}, 4
s_waitcnt lgkmcnt(1)""")
for i in range(4): e(f'v_pk_add_f32 {vr(vAc+2*i,2)}, {vr(vAc+2*i,2)}, {vr(vAc+8+2*i,2)}')
for i in range(4): e(f'v_cvt_pk_bf16_f32 v{vAc+8+i}, v{vAc+2*i}, v{vAc+2*i+1}')
e(f"""ds_write_b32 v{vKd}, v{vAc+8}
ds_write_b32 v{vKd1}, v{vAc+9}
s_mov_b64 exec, 0x1ffff
ds_write_b16 v{vKa0}, v{vAc+10}
s_mov_b64 exec, 0xffff
ds_write_b16_d16_hi v{vKa}, v{vAc+10} offset:64
ds_write_b16 v{vKa}, v{vAc+11} offset:32
ds_write_b16_d16_hi v{vKa}, v{vAc+11}
s_mov_b64 exec, -1""")
arrive(3)
if OPT['uw'] == -1: u_look()
if OPT['uw'] == -2: u_fetch()
lwait(3, addr=vPair)
stamp(2)
E = 64; BF = 40
e(f"""ds_read2_b32 {vr(E,2)}, v{vE1} offset1:1
ds_read2_b32 {vr(E+2,2)}, v{vE1b} offset0:2 offset1:3
ds_read2_b32 {vr(E+4,2)}, v{vKb} offset0:191 offset1:192
ds_read_b32 v{E+6}, v{vKb} offset:1020
ds_read_b32 v{E+7}, v{vKb} offset:1024""")
for q in range(8): e(f'ds_read2_b32 {vr(BF+2*q,2)}, v{vBk} offset0:{8*(q>>1) + 2*(q&1)} offset1:{8*(q>>1) + 2*(q&1) + 1}')
b = E + 12; t = E + 16
e(f"""s_waitcnt lgkmcnt(10)
v_perm_b32 v{b+2}, v{E+2}, v{E+2}, v{vSel+2}
v_perm_b32 v{b+3}, v{E+3}, v{E+2}, v{vSel+3}
v_perm_b32 v{b-2}, v{E+5}, v{E+4}, s{sE2}
v_perm_b32 v{b-1}, v{E+5}, v{E+4}, s{sE3}
v_perm_b32 v{b}, v{E}, v{E}, v{vSel}
v_perm_b32 v{b+1}, v{E+1}, v{E}, v{vSel+1}
v_mov_b32_dpp v{b-2}, v{b+2} wave_shr:1 row_mask:0xf bank_mask:0xf
v_mov_b32_dpp v{b-1}, v{b+3} wave_shr:1 row_mask:0xf bank_mask:0xf
ds_write_b128 v{vCd}, {vr(b,4)}""")
for i in range(4): e(f'v_alignbit_b32 v{t+i}, v{b+i}, v{b+i-1}, 16')
e(f'ds_write_b128 v{vCd}, {vr(t,4)} offset:{UC_S}')
for i in range(4): e(f'v_mov_b32 v{t+4+i}, v{b+i-1}')
e(f'ds_write_b128 v{vCd}, {vr(t+4,4)} offset:{2*UC_S}')
for i in range(4): e(f'v_alignbit_b32 v{t+8+i}, v{b+i-1}, v{b+i-2}, 16')
e(f'ds_write_b128 v{vCd}, {vr(t+8,4)} offset:{3*UC_S}\ns_waitcnt lgkmcnt(12)')
for i in range(4): e(f'v_perm_b32 v{t+12+i}, v{E+7}, v{E+6}, v{vSel+4+i}')
e(f'ds_write_b128 v{vZp}, {vr(t+12,4)}')
if OPT['uw'] == -1: u_fetch()
stamp(3)
e(f'v_and_b32 v{a0}, 31, v{V_LANE}')
swap23(a1, a0, a2)
e(f"""v_lshrrev_b32 v{a2}, 5, v{V_LANE}
v_lshl_add_u32 v{a1}, v{a1}, 1, v{a2}
s_add_u32 s{sA}, s{sHw}, 123
v_add_u32 v{a1}, s{sA}, v{a1}
s_mul_i32 s{sA}, s{sDs}, {PD}
s_add_u32 s{sA}, s{sA}, {L_KP}
v_and_b32 v{a3}, 3, v{a1}
v_mul_u32_u24 v{a3}, {PS - 4}, v{a3}
v_lshl_add_u32 v{a3}, v{a1}, 2, v{a3}
v_add_u32 v{vA0}, s{sA}, v{a3}
v_add_u32 v{a1}, 2, v{a1}
v_and_b32 v{a3}, 3, v{a1}
v_mul_u32_u24 v{a3}, {PS - 4}, v{a3}
v_lshl_add_u32 v{a3}, v{a1}, 2, v{a3}
v_add_u32 v{vA1}, s{sA}, v{a3}
v_lshlrev_b32 v{a2}, 3, v{a2}
v_sub_u32 v{a2}, v{a2}, v{a0}
v_cvt_f32_i32 v{a2}, v{a2}
v_add_f32 v{a3}, -1.0, v{a2}
v_add_f32 v{a2}, -2.0, v{a2}
v_cvt_pk_f16_f32 v8, v{a3}, v{a2}
s_waitcnt vmcnt(1)
ds_write_b128 v{vKp}, {vr(U,4)}
s_waitcnt vmcnt(0)
ds_write_b128 v{vKp}, {vr(U+4,4)} offset:128""")
arrive(4)
AP, BD, DP = 112, 136, 192
band = [f's_mov_b32 s{sA}, 0x4a204a20', f's_cmp_eq_u32 s{sHw}, 0', f's_cselect_b32 s{sE2}, 0x4d104d10, s{sA}', f's_mov_b32 s{sE3}, 0x4d804d80']
for q in range(12):
    band.append(f'v_pk_fma_f16 v{BD+q}, v8, v8, s{sE2} neg_lo:[1,0,0] neg_hi:[1,0,0] clamp')
    if q < 11: band.append(f'v_pk_add_f16 v8, v8, s{sE3}' if q % 4 == 3 else 'v_pk_add_f16 v8, v8, -2.0 op_sel_hi:[1,0]')
e('\n'.join(band))
lwait(4)
KG[0] = False
lo()
stamp(4)
if OPT['abl'] == 16: e('s_endpgm')
CB = 64
def cv_reads(k):
    b = CB + 12 * (k & 3)
    return [f'ds_read_b64 {vr(b,2)}, v{vF_} offset:{64*k}', f'ds_read_b64 {vr(b+2,2)}, v{vF_} offset:{64*k + 8}',
            f'ds_read_b128 {vr(b+8,4)}, v{vG_} offset:{512 + 80 - 16*k}', f'ds_read_b128 {vr(b+4,4)}, v{vG_} offset:{80 - 16*k}']
for tau in range(2):
    for kp in range(3): e(f'ds_read_b128 {vr(AP + 12*tau + 4*kp, 4)}, v{(vA0, vA1)[kp & 1]} offset:{256*tau + 16*(kp >> 1)}')
e('\n'.join(cv_reads(0) + cv_reads(1)))
FOA = f'''s_lshr_b32 s{sA}, s{sOl}, 1
s_lshl_b32 s{sA}, s{sA}, {4 + FSH}
s_add_u32 s{sA}, s{sA}, {F_O}
v_lshl_add_u32 v{vFo}, v{a1}, {FSH}, s{sA}''' if not OM else f'''s_lshr_b32 s{sA}, s{sOl}, 1
s_lshl_b32 s{sB}, s{sHw}, 9
s_add_u32 s{sA}, s{sA}, s{sB}
s_lshl_b32 s{sA}, s{sA}, {FSH}
s_add_u32 s{sA}, s{sA}, {F_Y}
v_min_u32 v{vFo}, 6, v{a1}
v_lshl_add_u32 v{vFo}, v{vFo}, {6 + FSH}, s{sA}'''
late = f"""s_mov_b64 s[{SRD_B}:{SRD_B+1}], s[22:23]
s_mov_b32 s{SRD_B+2}, {448*896}
s_mov_b32 s{SRD_B+3}, 0x20000
s_mov_b64 s[{SRD_C}:{SRD_C+1}], s[24:25]
s_mov_b32 s{SRD_C+2}, {2048*1792}
s_mov_b32 s{SRD_C+3}, 0x20000
v_lshrrev_b32 v{a1}, 3, v{V_LANE}
v_and_b32 v{a2}, 7, v{V_LANE}
v_and_b32 v{a0}, 0x70, v{vL16}
v_mul_u32_u24 v{vYl}, {YS}, v{a1}
v_add_u32 v{vYl}, v{vYl}, v{a0}
v_lshlrev_b32 v{a3}, 2, v{V_LANE}
v_and_b32 v{a3}, 64, v{a3}
v_xor_b32 v{a0}, v{a0}, v{a3}
v_mul_u32_u24 v{vWoD}, 896, v{a1}
v_xor_b32 v{a3}, v{a1}, v{a2}
v_lshlrev_b32 v{a3}, 4, v{a3}
v_lshl_add_u32 v{vOut}, v{vWoD}, 1, v{a3}
v_add_u32 v{vWoD}, v{a0}, v{vWoD}
v_add_u32 v{vWoD+1}, {7168-1024}, v{vWoD}
v_lshrrev_b32 v{a0}, 4, v{V_LANE}
v_bfe_u32 v{a1}, v{V_LANE}, 2, 2
v_lshl_or_b32 v{a3}, v{a0}, 3, v{a1}
v_lshlrev_b32 v{a3}, 7, v{a3}
v_lshrrev_b32 v{a1}, 1, v{a1}
v_lshl_add_u32 v{a3}, v{a1}, 6, v{a3}
v_and_b32 v{a1}, 0x30, v{vL16}
s_movk_i32 s{sA}, {L_WO}
v_add3_u32 v{vWoR}, v{a1}, v{a3}, s{sA}
v_xor_b32 v{vWoR+1}, 64, v{vWoR}
v_and_b32 v{a1}, 15, v{V_LANE}
v_lshlrev_b32 v{vOl}, 4, v{a1}
v_mad_u32_u24 v{vOl}, v{a0}, s{S_KS}, v{vOl}
s_lshl2_add_u32 s{sOl}, s{S_J}, s{S_W}
{FOA}
s_lshl_b32 s{sA}, s{S_W}, 11
s_add_u32 s{sA}, s{sA}, {L_SSM}
v_xor_b32 v{a3}, v{a0}, v{a2}
v_lshl_add_u32 v{a3}, v{a3}, 4, s{sA}
v_lshl_add_u32 v{vBw}, v{a1}, 7, v{a3}
v_add_u32 v{vBr}, s{sA}, v{vL16}
s_mul_i32 s{sOut}, s{sOl}, {16*1792}
s_lshl_b32 s{sA}, s{S_C}, 7
s_add_u32 s{sOut}, s{sOut}, s{sA}
s_add_u32 s{sOut}, s{sOut}, 896
s_add_u32 s{sOut+1}, s{sOut}, {8*1792}
s_lshl_b32 s{sOl}, s{sOl}, 8
s_add_u32 s{sOl}, s{sOl}, {WS_O}
s_lshl2_add_u32 s{sCh0}, s{S_C}, s{S_W}
s_lshl_b32 s{sCh0}, s{sCh0}, 4
s_lshr_b32 s{sA}, s{S_J}, 4
s_lshl_b32 s{sA}, s{sA}, 9
s_add_u32 s{sA}, s{sA}, s{sCh0}
s_lshl_b32 s{sA}, s{sA}, {FSH}
s_add_u32 s{sA}, s{sA}, {F_Y}
v_lshl_add_u32 v{vFy}, v{a1}, {FSH}, s{sA}
v_and_b32 v{a1}, 11, v{V_LANE}
v_lshl_or_b32 v{a1}, v{a0}, 5, v{a1}
v_mul_u32_u24 v{a1}, 1792, v{a1}
v_and_b32 v{a3}, 4, v{V_LANE}
v_lshl_add_u32 v{vYs}, v{a3}, 2, v{a1}
s_lshl_b32 s{sA}, s{sHw}, 12
s_add_u32 s{sB}, s{sP}, {P_X + 4096}
s_sub_u32 s{sB}, s{sB}, s{sA}
v_add_u32 v{vXp}, s{sB}, v{vL16}
s_add_u32 s{sA}, s{sA}, s{sP}
s_add_u32 s{sA}, s{sA}, {P_X}
v_add_u32 v{vXo}, s{sA}, v{vL16}
v_lshl_add_u32 v{vRb_}, v{a0}, 4, s{sA}
v_bfe_u32 v{a0}, v{V_LANE}, 2, 2
v_and_b32 v{a3}, 1, v{V_LANE}
v_lshl_or_b32 v{a2}, v{a3}, 3, v{a0}
v_lshl_add_u32 v{vTr}, v{a2}, 7, v{vRb_}
v_and_b32 v{a2}, 2, v{V_LANE}
v_lshl_add_u32 v{vTr}, v{a2}, 2, v{vTr}""".split('\n')
def fill(n):
    e('\n'.join(late[:n])); del late[:n]
fill(16)
e('s_waitcnt lgkmcnt(8)')
for kp in range(3):
    for tau in range(2):
        d = vr(DP + 16*tau, 16)
        e(f'v_mfma_f32_32x32x16_bf16 {d}, {vr(AP + 12*tau + 4*kp, 4)}, {vr(BD + 4*kp, 4)}, {"0" if kp == 0 else d}')
        fill(6)
def cv_iter(first):
    for k in range(4):
        b = CB + 12 * k
        rd = cv_reads(k + 2)
        z = first and k == 0
        e('s_waitcnt lgkmcnt(4)')
        e(f'v_mfma_f32_32x32x16_bf16 {vr(T1,16)}, {vr(b,4)}, {vr(b+8,4)}, {"0" if z else vr(T1,16)}')
        e('\n'.join(rd))
        if k == 3:
            e(f'v_add_u32 v{vF_}, 256, v{vF_}\nv_subrev_u32 v{vG_}, 64, v{vG_}')
            if not first: e(f's_add_u32 s{sIt2}, s{sIt2}, 1\ns_cmp_lg_u32 s{sIt2}, 11')
        e(f'v_mfma_f32_32x32x16_bf16 {vr(T0,16)}, {vr(b,4)}, {vr(b+4,4)}, {"0" if z else vr(T0,16)}')
        if first: fill(6 if k < 3 else 99)
cv_iter(True)
e('L_cv:')
cv_iter(False)
e('s_cbranch_scc1 L_cv')
cv = [f'v_cvt_pk_bf16_f32 v{AP+i}, v{DP+2*i}, v{DP+2*i+1}' for i in range(16)]
for k in range(2):
    e('\n'.join(cv[4*k:4*k+4]))
    e(f's_waitcnt lgkmcnt({4 - 4*k})')
    e(f'v_mfma_f32_32x32x16_bf16 {vr(T1,16)}, {vr(CB+12*k,4)}, {vr(CB+12*k+8,4)}, {vr(T1,16)}')
for q in range(4):
    e('\n'.join(cv[8+4*q:12+4*q]))
    e(f'v_mfma_f32_32x32x16_bf16 {vr(T1,16)}, {vr(AP+4*q,4)}, {vr(BF+4*q,4)}, {vr(T1,16)}')
if OPT['prio']: e(f"s_setprio {OPT['pr']}")
stamp(5)
if OPT['abl'] == 32: e('s_endpgm')
e(f"""s_mul_i32 s{sA}, s{sD}, {YS}
s_lshl_b32 s{sB}, s{sHw}, 11
s_add_u32 s{sA}, s{sA}, s{sB}
s_add_u32 s{sA}, s{sA}, {WS_Y}
s_lshl_b32 s{sB}, s{sHw}, 9
s_add_u32 s{sB}, s{sB}, s{sD}
s_lshl_b32 s{sB}, s{sB}, {FSH}
s_add_u32 s{sB}, s{sB}, {F_Y}
s_nop 0""")
def xch(give, keep):
    for i in range(4): e(f'ds_write_b128 v{vXp}, {vr(give+4*i,4)} offset:{1024*i}')
    arrive(6); lwait(6, addr=vPair)
    for i in range(4): e(f'ds_read_b128 {vr(give+4*i,4)}, v{vXo} offset:{1024*i}')
    e('s_waitcnt lgkmcnt(0)')
e(f's_cmp_eq_u32 s{sHw}, 0\ns_cbranch_scc1 L_x0')
xch(T0, T1)
e('s_branch L_x1\nL_x0:')
xch(T1, T0)
e('L_x1:')
for i in range(8): e(f'v_pk_add_f32 {vr(T0+2*i,2)}, {vr(T0+2*i,2)}, {vr(T1+2*i,2)}')
for i in range(8): e(f'v_cvt_pk_bf16_f32 v{T1+i}, v{T0+2*i}, v{T0+2*i+1}')
e(f"""buffer_store_dwordx4 {vr(T1,4)}, v{vL16}, {sr(SRD_WS)}, s{sA} offen sc1
buffer_store_dwordx4 {vr(T1+4,4)}, v{vL16}, {sr(SRD_WS)}, s{sA} offen offset:1024 sc1
v_subrev_u32 v{a0}, 16, v{V_GRP}""")
if OM:
    e(f'''v_mov_b64 {vr(T0,2)}, -1
    v_mov_b64 {vr(T0+2,2)}, -1
    s_mul_i32 s{sA}, s{S_C}, {8*KS}
    s_add_u32 s{sA}, s{sA}, s{sOl}
    s_add_u32 s{sSk}, s{sA}, {4*KS}
    buffer_store_dwordx4 {vr(T0,4)}, v{vOl}, {sr(SRD_WS)}, s{sA} offen sc1
    buffer_store_dwordx4 {vr(T0,4)}, v{vOl}, {sr(SRD_WS)}, s{sSk} offen sc1''')
sync(7)
if OPT['only'] != 1: lwait(7, addr=a0)
e('s_waitcnt vmcnt(0)')
publish(sB, a0)
stamp(6)
if OPT['abl'] == 33: e('s_endpgm')
e(f"""s_mul_i32 s{sA}, s{S_W}, {16*896}
s_lshl_b32 s{sB}, s{S_C}, 7
s_add_u32 s{sA}, s{sA}, s{sB}
s_lshl_b32 s{sB}, s{S_W}, 11
s_add_u32 s{sB}, s{sB}, {L_WO}""")
for ch in range(7):
    e(f"""s_add_u32 m0, s{sB}, {8192*ch}
    s_add_u32 s{sSk}, s{sA}, {64*896*ch}
    buffer_load_dwordx4 v{vWoD}, {sr(SRD_B)}, s{sSk} offen lds
    buffer_load_dwordx4 v{vWoD+1}, {sr(SRD_B)}, s{sSk} offen offset:1024 lds
    s_waitcnt vmcnt({OPT['wodepth'] if ch < 6 else 0})""")
WF, OF, OC = 8, 168, 224
arrive(8)
e(f"""buffer_load_dword v{a0}, v{vFy}, {sr(SRD_WS)}, 0 offen sc1
s_mul_i32 s{sA}, s{sCh0}, {YS}
s_lshl_b32 s{sSk}, s{S_J}, 7
s_add_u32 s{sA}, s{sA}, s{sSk}
s_add_u32 s{sA}, s{sA}, {WS_Y}
s_add_u32 s{sSk}, s{sA}, {8*YS}""")
lwait(8)
stamp(7)
if OPT['abl'] == 34: e('s_endpgm')
def wo_reads(k):
    r = []
    for t in range(4):
        for hf in range(2):
            r.append(f'ds_read_b64_tr_b16 {vr(WF + 16*(k%10) + 4*t + 2*hf, 2)}, v{vWoR + (t>>1)} offset:{4096*k + 512*hf + 8*(t&1)}')
    return r
for k in range(10): e('\n'.join(wo_reads(k)))
arrive(9)
poll(vFy, first_issued=True, sleep=OPT['ysleep'], reg=a0)
stamp(8)
if OPT['abl'] == 35: e('s_endpgm')
e(f"""buffer_load_dwordx4 {vr(OF,4)}, v{vYl}, {sr(SRD_WS)}, s{sA} offen sc1
buffer_load_dwordx4 {vr(OF+4,4)}, v{vYl}, {sr(SRD_WS)}, s{sSk} offen sc1
s_lshr_b32 s{sA}, s{S_J}, 4
s_lshl_b32 s{sA}, s{sA}, 10
s_and_b32 s{sB}, s{S_J}, 3
s_lshl_b32 s{sB}, s{sB}, 8
s_add_u32 s{sA}, s{sA}, s{sB}
s_and_b32 s{sB}, s{S_J}, 8
s_lshl1_add_u32 s{sA}, s{sB}, s{sA}
s_and_b32 s{sB}, s{S_J}, 4
s_add_u32 s{sA}, s{sA}, s{sB}
s_mul_i32 s{sA}, s{sA}, 1792
s_lshl1_add_u32 s{sA}, s{sCh0}, s{sA}
s_add_u32 s{sB}, s{sA}, {128*1792}
v_xor_b32 v{a0}, 64, v{vBw}""")
lwait(9)
e(f"""s_waitcnt vmcnt(0)
ds_write_b128 v{vXo}, {vr(OF,4)}
ds_write_b128 v{vXo}, {vr(OF+4,4)} offset:1024""")
for z in range(2):
    for hf in range(2):
        e(f'ds_read_b64_tr_b16 {vr(OF + 8 + 4*z + 2*hf, 2)}, v{vTr} offset:{64*z + 512*hf}')
e(f"""s_waitcnt lgkmcnt(0)
buffer_store_dwordx4 {vr(OF+8,4)}, v{vYs}, {sr(SRD_C)}, s{sA} offen {OUTM}
buffer_store_dwordx4 {vr(OF+12,4)}, v{vYs}, {sr(SRD_C)}, s{sB} offen {OUTM}""")
if OPT['only'] == 1:
    stamp(9); stamp(13); prof_out(); e('s_endpgm')
if OM: poll(vFo, sleep=8)
if OM == 4:
    e(f'''s_lshl2_add_u32 s{sA}, s{S_J}, s{S_W}
    s_lshr_b32 s{sA}, s{sA}, 1
    s_lshl_b32 s{sA}, s{sA}, {4 + FSH}
    s_add_u32 s{sA}, s{sA}, {F_O}
    v_and_b32 v{vFo}, 15, v{V_LANE}
    v_lshl_add_u32 v{vFo}, v{vFo}, {FSH}, s{sA}''')
sOk, sLast = 4, 18
for k in range(14): e(f's_add_u32 s{sOk+k}, s{sOl}, {4*KS*k}')
stamp(9)
e('s_barrier        ; released once the four attention waves have stored their rows')
stamp(10)
if OPT['osleep']: e(f"s_sleep {OPT['osleep']}")
if OM != 3: poll(vFo, sleep=OPT['hsleep'])
if OM: e(f's_min_u32 s{S_BOUND}, s{S_BOUND}, 0x4000')
stamp(11)
def o_load(k): return f'buffer_load_dwordx4 {vr(OF+4*k,4)}, v{vOl}, {sr(SRD_WS)}, s{sOk+k} offen sc1'
def o_chk(k):
    o = OF + 4*k
    return [f's_waitcnt vmcnt({13-k})', f'v_max3_u32 v6, v{o}, v{o+1}, v{o+2}', f'v_max_u32 v6, v6, v{o+3}', 'v_cmp_eq_u32 vcc, -1, v6']
for k in range(14): e(o_load(k))
if OM: e('\n'.join(o_chk(0)))
for k in range(14):
    o = OF + 4*k
    m = [f'v_mfma_f32_16x16x32_bf16 {vr(OC+4*t,4)}, {vr(WF + 16*(k%10) + 4*t, 4)}, {vr(o,4)}, {"0" if k == 0 else vr(OC+4*t,4)}' for t in range(4)]
    rd = wo_reads(k + 9) if 1 <= k <= 4 else []
    if k == 10: e('s_waitcnt lgkmcnt(0)')
    if OM:
        e(f's_cbranch_vccnz L_or{k}\nL_og{k}:')
        c = o_chk(k + 1) if k < 13 else ['', '', '', '']
        e('\n'.join([m[0]] + rd[:4] + [m[1]] + rd[4:] + [m[2], c[0], c[1], c[2], m[3], c[3]]))
    else:
        e(f's_waitcnt vmcnt({13-k})'); e('\n'.join(m + rd))
stamp(12)
e('s_nop 4')
for i in range(8): e(f'v_cvt_pk_bf16_f32 v{16+i}, v{OC+2*i}, v{OC+2*i+1}')
e(f"""ds_write_b128 v{vBw}, {vr(16,4)}
ds_write_b128 v{a0}, {vr(20,4)}
ds_read_b128 {vr(24,4)}, v{vBr}
ds_read_b128 {vr(28,4)}, v{vBr} offset:1024
s_or_b32 s{sA}, s2, s{S_W}
s_waitcnt lgkmcnt(1)
buffer_store_dwordx4 {vr(24,4)}, v{vOut}, {sr(SRD_C)}, s{sOut} offen {OUTM2}
s_waitcnt lgkmcnt(0)
buffer_store_dwordx4 {vr(28,4)}, v{vOut}, {sr(SRD_C)}, s{sOut+1} offen {OUTM2}
s_cbranch_scc1 L_noepoch""")
publish(sA, 6)
e('L_noepoch:')
if OPT['prof']:
    e('s_waitcnt vmcnt(0)')
stamp(13)
prof_out()
e('L_end:\ns_endpgm')
if OM:
    for k in range(14):
        c = o_chk(k)
        e(f'''L_or{k}:
        s_call_b64 s[90:91], L_re{k}
        {c[0]}
        L_oc{k}:
        {c[1]}
        {c[2]}
        {c[3]}
        s_cbranch_vccz L_og{k}
        {'s_sleep %d' % OPT['rsleep'] if OPT['rsleep'] else ''}
        {o_load(k)}
        s_sub_u32 s{S_BOUND}, s{S_BOUND}, 1
        s_waitcnt vmcnt(0)
        s_cbranch_scc0 L_oc{k}
        s_mov_b32 s{S_BOUND}, 0
        s_branch L_og{k}''')
    for k in range(14): e(f'L_re{k}:\n{o_load(k)}')
    e('s_setpc_b64 s[90:91]')
sec('idle')
ROLE[0] = 2
e('L_ssm_idle:')
if OPT['only'] == 2:
    arrive(1); e('s_endpgm')
hi()
e(f"""v_lshrrev_b32 v10, 3, v{V_LANE}
v_and_b32 v11, 7, v{V_LANE}
v_lshlrev_b32 v11, 4, v11
v_mul_u32_u24 v5, 896, v10
v_add_u32 v5, v5, v11
v_add_u32 v6, {7168-1024}, v5
s_lshl2_add_u32 s60, s{S_J}, s{S_W}
s_mul_i32 s61, s60, {16*896}
s_mul_i32 s62, s{S_W}, 14336
s_add_u32 s62, s62, {L_SSM}
s_mov_b32 s{SRD_A+2}, {2048*896}
s_mov_b32 s{SRD_A+3}, 0x20000
s_waitcnt lgkmcnt(0)
s_load_dword s{S_NONCE}, s[28:29], 0
s_mov_b64 s[{SRD_A}:{SRD_A+1}], s[4:5]""")
for c in range(7):
    e(f"""s_add_u32 m0, s62, {2048*c - 128*c}
    s_nop 0
    buffer_load_dwordx4 v5, {sr(SRD_A)}, s61 offen offset:{128*c} lds
    buffer_load_dwordx4 v6, {sr(SRD_A)}, s61 offen offset:{1024 + 128*c} lds""")
    if c == 1:
        srd(SRD_WS, 28, WS_SIZE)
        e(f"""; transposing read: row = 8*(cc&1)+r', byte = 8*(2G+(cc>>1))
        v_mul_u32_u24 v7, {QS}, v10
        v_add_u32 v7, v7, v11
        v_bfe_u32 v8, v{V_LANE}, 2, 2
        v_and_b32 v9, 1, v{V_LANE}
        v_lshl_or_b32 v8, v9, 3, v8
        v_xor_b32 v8, 3, v8
        v_lshl_add_u32 v8, v8, 7, s62
        v_and_b32 v9, 0x30, v{V_LANE}
        v_add_u32 v8, v8, v9
        v_and_b32 v9, 2, v{V_LANE}
        v_lshl_add_u32 v8, v9, 2, v8
        s_lshl_b32 s63, s60, 7
        s_add_u32 s63, s63, {WS_U}
        s_mul_i32 s65, s{S_J}, {US}
        v_mov_b32 v12, 0x3f803f80
        v_mov_b32 v13, v12
        v_mov_b64 v[14:15], v[12:13]
        v_lshlrev_b32 v9, 4, v{V_LANE}
        s_lshl2_add_u32 s66, s{S_TILE}, s{S_W}
        s_lshl_b32 s66, s66, 8
        s_mul_i32 s67, s{S_HG}, {QS}
        s_add_u32 s66, s66, s67
        s_add_u32 s66, s66, {WS_V + 112*QS}
        s_add_u32 s65, s65, {F_U}""")
e(f's_waitcnt lgkmcnt(0)\ns_add_u32 s{S_NONCE}, s{S_NONCE}, 1')
arrive(1)
def t_rd(c):
    return [f'ds_read_b64_tr_b16 {vr(16 + 8*c + 4*z + 2*hf, 2)}, v8 offset:{2048*c + 64*z + 512*(1-hf)}' for z in range(2) for hf in range(2)]
e('s_waitcnt vmcnt(12)'); stamp(1); e('\n'.join(t_rd(0)))
for c in range(7):
    if c < 6:
        e('s_waitcnt vmcnt(10)'); e('\n'.join(t_rd(c + 1)))
    e(f"""s_add_u32 s64, s63, {8*QS}
    s_waitcnt lgkmcnt({4 if c < 6 else 0})
    buffer_store_dwordx4 {vr(16+8*c,4)}, v7, {sr(SRD_WS)}, s63 offen sc1
    buffer_store_dwordx4 {vr(20+8*c,4)}, v7, {sr(SRD_WS)}, s64 offen sc1
    s_add_u32 s63, s63, {16*QS}""")
assert OPT['ur'] == 1
e(f'''; the column quad of ones that gives the softmax row sums
s_mov_b64 exec, 0xffff
buffer_store_dwordx4 v[12:15], v9, {sr(SRD_WS)}, s66 offen sc1''')
stamp(2)
e(f'''s_mov_b64 exec, 1
v_mov_b32 v5, s{S_NONCE}
s_cmp_lg_u32 s{S_W}, 0
s_waitcnt vmcnt(0)
s_barrier
s_cbranch_scc1 L_idle_end
buffer_store_dword v5, v9, {sr(SRD_WS)}, s65 offen sc1''')
e('L_idle_end:\ns_mov_b64 exec, -1'); stamp(4)
prof_out()
e('s_endpgm')
ORDER = [['pro', 'ssm0', 'mha0', 'idle', 'ssm', 'mha'], ['pro', 'ssm0', 'mha0', 'mha', 'ssm', 'idle'],
         ['pro', 'ssm0', 'mha0', 'ssm', 'mha', 'idle'], ['pro', 'ssm0', 'idle', 'mha0', 'mha', 'ssm']][OPT['ord']] + ['cold', 'gt', 'fb']
SEC.setdefault('cold', [])
def add_nt(n, pred):
    SEC[n] = [(l.replace(' lds', ' nt lds') if l.endswith(' lds') else l + ' nt') if pred(l) else l for l in SEC[n]]
for n in ('mha0', 'mha', 'gt'):
    if OPT['nt'] & 1: add_nt(n, lambda l: l.endswith(' lds') and sr(SRD_A) in l)
    if OPT['nt'] & 2: add_nt(n, lambda l: l.endswith(' lds') and sr(SRD_B) in l)
if OPT['nt'] & 4: add_nt('idle', lambda l: l.endswith(' lds'))
if OPT['nt'] & 8: add_nt('ssm0', lambda l: 'global_load' in l)
if OPT['nt'] & 16: add_nt('ssm', lambda l: l.endswith(' lds'))
if OPT['nt'] & 32: add_nt('ssm', lambda l: 'buffer_store' in l and sr(SRD_C) in l)
BODY = sum((SEC[n] for n in ORDER), [])
def sizes(lines):
    import subprocess, re, os, tempfile
    d = tempfile.mkdtemp()
    open(d + '/a.s', 'w').write('.amdgcn_target "amdgcn-amd-amdhsa--gfx950"\n.text\n' + '\n'.join(lines) + '\n')
    subprocess.check_call(['clang', '-x', 'assembler', '-target', 'amdgcn-amd-amdhsa', '-mcpu=gfx950', '-c', d + '/a.s', '-o', d + '/a.o'])
    o = subprocess.check_output(['llvm-objdump', '-d', '--mcpu=gfx950', d + '/a.o']).decode()
    return [4 * len(m.group(1).split()) for m in re.finditer(r'// [0-9A-F]{12}: ((?:[0-9A-F]{8} ?)+)', o)]
def is_ins(l):
    t = l.split(';')[0].strip()
    return bool(t) and not t.endswith(':')
def widen(l):
    import re
    t = l.split(';')[0].strip(); op = t.split()[0]
    if op.startswith('v_') and not op.startswith(('v_readfirstlane', 'v_swap', 'v_permlane', 'v_nop')):
        return l.replace(op, op + '_e64', 1)
    return None
if OPT['al']:
    sz = iter(sizes(BODY))
    I = [[l, next(sz) if is_ins(l) else 0] for l in BODY]
    res = []; addr = 0; nw = nn = 0
    for i, (l, n) in enumerate(I):
        if n == 8 and addr % 8 == 4:
            run = 0
            for l2, n2 in I[i:]:
                if n2 == 4: break
                run += n2 == 8
            cross = sum(1 for k in range(run) if (addr + 8*k) % 32 == 28)
            if cross:
                j = len(res) - 1; done = False; aj = addr
                while j >= 0 and res[j][1] in (0, 4):
                    aj -= res[j][1]
                    t = res[j][0].strip()
                    if t.startswith(('s_branch', 's_endpgm', 's_setpc')):
                        res.insert(j + 1, ['    s_nop 0', 4]); done = True; break
                    w = widen(res[j][0]) if res[j][1] == 4 and aj % 32 != 28 else None
                    if w:
                        res[j] = [w, 8]; done = True; nw += 1; break
                    j -= 1
                if not done and run >= OPT['alr']:
                    k = len(res)
                    while res[k-1][1] == 0: k -= 1
                    res.insert(k, ['    s_nop 0', 4]); done = True; nn += 1
                if done: addr += 4
        res.append([l, n]); addr += n
    BODY = [l for l, n in res]
    print('aligned: widened', nw, 'nops', nn, 'bytes', addr, file=sys.stderr)
hdr = open('header.txt').read()
txt = hdr + f'''; @launch grid=(256,1,1) block=(512,1,1) lds={L_TOT}
.amdgcn_target "amdgcn-amd-amdhsa--gfx950"
.text
.globl {KN}
.p2align 8
.type {KN},@function
{KN}:
''' + '\n'.join(BODY) + f'''
.section .rodata,"a"
.p2align 6
.amdhsa_kernel {KN}
  .amdhsa_next_free_vgpr 256
  .amdhsa_next_free_sgpr 102
  .amdhsa_accum_offset 256
  .amdhsa_group_segment_fixed_size 0
  .amdhsa_kernarg_size 104
  .amdhsa_user_sgpr_count 2
  .amdhsa_user_sgpr_kernarg_segment_ptr 1
  .amdhsa_system_sgpr_workgroup_id_x 1
.end_amdhsa_kernel
'''
open(sys.argv[1], 'w').write(txt)
```

```python
import sys, struct
def fl(x): return hex(struct.unpack('<I', struct.pack('<f', x))[0])

KN = 'concat_heads__ssm_conv_s4d__softmax_full_mha__prompt_kernel'
OPT = dict(rdf=0, rdv=0, rdt=0, only_st=0, ur=1, us=128, rd0=-1, rdm=0, probe=0, poff=0xc00000, nt=0, rdn=0, al=1, alr=6, fw=0, rsleep=0, hsleep=0, ord=3, nb=0, tb=13, tq=0, chkk=99, uw=-1, cw=0, s6=5, tskip=1, ones=1, pa=1, pr=2, pf=2, wgf=2, ax=0, bp=1, qa=7, n0=4, ilv=8, tlb=0, ulook=1, kgp=1, pad=0, ypad=0, omode=3, ksleep=0, usleep=4, obar=5, osleep=0, pubk=8, abl=0, touch=0, gs=0, kgw=0, xg=5, gx=0, pm=2, ps=0, rt=0, upub=1, kgx=0, outsc=0, ysleep=8, wodepth=4, wq_mid=0, pollk=99, rd=-1, rdrole=0, only=0, safe=0, rot=0, prof=0, fs=128, force_fb=0, wq_early=7, prio=1)
for a in sys.argv[2:]:
    k, v = a.split('=')
    assert k in OPT, k
    OPT[k] = int(v, 0)

FS = OPT['fs']
FSH = FS.bit_length() - 1
F_KV = 0x1000
F_O = F_KV + 1024 * FS
F_U = F_O + 1024 * FS
F_Y = F_U + 1024 * FS
F_H = F_Y + 1024 * FS
WS_K = 0x100000
WS_V = 0x300000
WS_O = 0x500000
WS_U = 0x700000
WS_Y = 0x900000
QS = 16384 + OPT['pad']; KS = 2 * QS; YS = 4096 + OPT['ypad']
S_KS = 57
WS_PROF = 0xb00000
F_U = 0xb80000 if OPT['us'] * OPT['ur'] > 4096 else F_U
US = OPT['us']
WS_SIZE = 0x1000000
L_SSM = 1024
L_W = 57344
L_RB = 65536
L_X = 114688
L_TOT = 163840
TROW = 288
TABSZ = 38 * TROW
L_TAB = L_SSM
P_SZ = 2 * TABSZ
P_UC = 1536
UC_S = 2240
P_KD = TABSZ + 1536
P_X = TABSZ
PS = 1552
PD = 4 * PS
L_KP = L_TAB + 4 * TABSZ
assert P_UC + 4 * UC_S <= TABSZ and P_KD + 1600 <= P_SZ and P_X + 8192 <= P_SZ and L_KP % 16 == 0 and L_KP + 2 * PD <= L_W
L_WO = L_SSM

S_WV, S_W, S_HG, S_C, S_TILE, S_J, S_H, S_NONCE, S_O0, S_ROT = range(30, 40)
SRD_WS, SRD_A, SRD_B, SRD_C = 40, 44, 48, 52
S_BOUND = 56
S_T0 = 58

SEC = {}
out = None
def sec(n):
    global out
    out = SEC.setdefault(n, [])
sec('pro')
def e(s):
    for l in s.split('\n'):
        l = l.strip()
        if l:
            out.append(l if l.endswith(':') else '    ' + l)
_lab = [0]
def lab(p):
    _lab[0] += 1
    return f'L_{p}_{_lab[0]}'
def vr(a, n):
    return f'v[{a}:{a+n-1}]' if n > 1 else f'v{a}'
def srd(d, b, n):
    e(f's_mov_b64 s[{d}:{d+1}], s[{b}:{b+1}]\ns_mov_b32 s{d+2}, {n}\ns_mov_b32 s{d+3}, 0x20000')
def sr(d): return f's[{d}:{d+3}]'

V_LANE, V_T, V_OWN, V_GRP, V_PROF = 0, 1, 2, 3, 4

ROLE = [0]
def stamp(i):
    if OPT['rd0'] == i and OPT['rdrole'] == ROLE[0]:
        e('s_memrealtime s[98:99]\ns_waitcnt lgkmcnt(0)')
    if OPT['rd'] == i and OPT['rdrole'] == ROLE[0]:
        e('s_memrealtime s[100:101]\ns_waitcnt lgkmcnt(0)')
    if (OPT['only_st'] >> (i + 32*min(ROLE[0], 1))) & 1 if OPT['only_st'] else OPT['prof'] > (i >= 14):
        e(f's_mem{"real" if OPT["rt"] else ""}time s[96:97]\ns_waitcnt lgkmcnt(0)\ns_sub_u32 s96, s96, s{98 if OPT["rt"] else S_T0}\nv_writelane_b32 v{V_PROF}, s96, {i}')
def prof_out():
    if OPT['rd'] >= 0 and OPT['rdrole'] == ROLE[0]:
        l = lab('pad')
        if ROLE[0] == 0 and not OPT['obar']: e('s_barrier')
        if ROLE[0] == 2: e('s_barrier')
        if OPT['rdf']: e(f"s_and_b32 s96, s2, {OPT['rdf']}\ns_cmp_lg_u32 s96, {OPT['rdv']}\ns_cbranch_scc1 L_end")
        if ROLE[0] == 0 and OPT['rdn']: e(f's_cmp_eq_u32 s{S_C}, 7\ns_cbranch_scc{2 - OPT["rdn"]} L_end')
        if OPT['rd'] == 98:
            e(f'''s_not_b32 s100, s100
            v_mov_b32 v5, s100
            v_mov_b32 v6, 0
            s_mov_b64 exec, 1
            global_atomic_umax v6, v5, s[26:27]
            s_waitcnt vmcnt(0)
            s_sleep 127
            s_sleep 127
            s_sleep 127
            s_sleep 127
            s_sleep 127
            global_load_dword v5, v6, s[26:27] sc1
            s_waitcnt vmcnt(0)
            v_readfirstlane_b32 s100, v5
            s_not_b32 s100, s100''')
        if OPT['probe']:
            op = {1: 'buffer_store_dwordx4 v[8:11], v5, s[52:55], s60 offen sc1', 2: 'buffer_load_dwordx4 v[8:11], v5, s[52:55], s60 offen sc1',
                  3: 'buffer_store_dwordx4 v[8:11], v5, s[52:55], s60 offen'}[OPT['probe'] & 3]
            pre = 'buffer_load_dword v12, v6, s[52:55], s61 offen sc1\ns_waitcnt vmcnt(0)' if OPT['probe'] & 4 else ''
            if OPT['probe'] & 8: pre += '\nbuffer_store_dwordx4 v[8:11], v5, s[52:55], s60 offen sc1\ns_waitcnt vmcnt(0)\ns_sleep 40'
            e(f'''s_mov_b64 s[52:53], s[28:29]
            s_mov_b32 s54, 0x10000000
            s_mov_b32 s55, 0x20000
            s_sleep 127
            s_sleep 127
            s_sleep 127
            v_lshlrev_b32 v5, 4, v0
            v_mov_b32 v6, 0
            s_lshl2_add_u32 s60, s2, s{S_W}
            s_lshl_b32 s60, s60, 10
            s_add_u32 s60, s60, {OPT['poff']}
            s_mov_b32 s61, {OPT['poff'] + 0x180000}
            {pre}
            s_memrealtime s[62:63]
            s_waitcnt lgkmcnt(0)
            {op}
            s_waitcnt vmcnt(0)
            s_memrealtime s[100:101]
            s_waitcnt lgkmcnt(0)
            s_sub_u32 s100, s100, s62
            v_mov_b32 v8, s100
            s_lshl2_add_u32 s60, s2, s{S_W}
            s_lshl_b32 s60, s60, 2
            s_add_u32 s60, s60, {WS_PROF}
            buffer_store_dword v8, v6, s[52:55], s60 offen
            s_mul_i32 s100, s100, 50
            s_add_u32 s100, s100, s58''')
        elif OPT['rdm'] >= 3:
            key = {3: 's_and_b32 s96, s2, 7', 4: f's_mov_b32 s96, s{S_H}', 5: f's_mov_b32 s96, s{S_TILE}'}[OPT['rdm']]
            e(f'''s_sub_u32 s100, s100, s98
            s_sub_u32 s97, s98, s58
            s_mul_i32 s100, s100, 1000000
            s_mul_i32 s97, s97, 1000
            s_add_u32 s100, s100, s97
            s_add_u32 s100, s100, s2
            {key}
            s_lshl_b32 s96, s96, 2
            v_mov_b32 v5, s100
            v_mov_b32 v6, s96
            s_mov_b64 exec, 1
            global_atomic_umax v6, v5, s[26:27]
            s_waitcnt vmcnt(0)
            s_endpgm''')
        elif OPT['rdm'] == 2:
            e('''s_not_b32 s96, s58
            v_mov_b32 v5, s96
            v_mov_b32 v6, 0
            s_mov_b64 exec, 1
            global_atomic_umax v6, v5, s[26:27]
            s_waitcnt vmcnt(0)''' + '\ns_sleep 127' * 7 + '''
            global_load_dword v5, v6, s[26:27] sc1
            s_waitcnt vmcnt(0)
            v_readfirstlane_b32 s96, v5
            s_not_b32 s96, s96
            s_sub_u32 s100, s100, s96
            s_lshl_b32 s100, s100, 3
            s_add_u32 s100, s100, s96''')
        elif OPT['rdm']:
            e('s_sub_u32 s100, s100, s98')
            if OPT['rdt']: e(f"s_cmp_gt_u32 s100, {OPT['rdt']}\ns_cselect_b32 s100, 1280, 0")
            e('''v_mov_b32 v5, s100
            v_mov_b32 v6, 0
            s_mov_b64 exec, 1
            global_atomic_add v6, v5, s[26:27]
            s_waitcnt vmcnt(0)''' + '\ns_sleep 127' * 7 + '''
            global_load_dword v5, v6, s[26:27] sc1
            s_waitcnt vmcnt(0)
            v_readfirstlane_b32 s100, v5
            s_lshr_b32 s100, s100, 6
            s_add_u32 s100, s100, s58''')
        else: e('s_sub_u32 s100, s100, s98\ns_lshl_b32 s100, s100, 3\ns_add_u32 s100, s100, s58')
        e(f'''s_add_u32 s100, s100, 6000
        {l}:
        s_sleep 1
        s_memrealtime s[96:97]
        s_waitcnt lgkmcnt(0)
        s_sub_u32 s96, s96, s100
        s_cmp_lt_i32 s96, 0
        s_cbranch_scc1 {l}''')
    if OPT['prof']:
        e(f'''s_memrealtime s[96:97]
        s_waitcnt lgkmcnt(0)
        v_writelane_b32 v{V_PROF}, s96, 31
        v_writelane_b32 v{V_PROF}, s98, 30
        s_lshl_b32 s96, s2, 3
        s_add_u32 s96, s96, s{S_WV}
        s_lshl_b32 s96, s96, 7
        s_add_u32 s96, s96, {WS_PROF}
        v_lshlrev_b32 v{V_T}, 2, v{V_LANE}
        s_mov_b32 exec_hi, 0
        buffer_store_dword v{V_PROF}, v{V_T}, {sr(SRD_WS)}, s96 offen
        s_mov_b64 exec, -1''')

def arrive(stage):
    e(f'v_mov_b32 v{V_T}, {stage}\nds_write_b32 v{V_OWN}, v{V_T}')
def lwait(stage, addr=V_GRP, sleep=0):
    l = lab('lw')
    e(f'{l}:')
    if sleep: e(f's_sleep {sleep}')
    e(f'''ds_read_b32 v{V_T}, v{addr}
    s_waitcnt lgkmcnt(0)
    v_cmp_gt_u32 vcc, {stage}, v{V_T}''')
    if OPT['safe']:
        d = lab('ld')
        e(f'''s_cbranch_vccz {d}
        s_sub_u32 s{S_BOUND}, s{S_BOUND}, 1
        s_cbranch_scc0 {l}
        s_mov_b32 s{S_BOUND}, 0
        {d}:''')
    else:
        e(f's_cbranch_vccnz {l}')
def sync(stage):
    arrive(stage); lwait(stage)
def poll(voff, first_issued=False, sleep=0, reg=V_T):
    l, d, m = lab('pl'), lab('pd'), lab('pm')
    if first_issued == 2:
        e(f's_waitcnt vmcnt(0)\nv_cmp_ne_u32 vcc, s{S_NONCE}, v{reg}\ns_cbranch_vccnz {l}\n{d}:')
        cur = [n for n in SEC if SEC[n] is out][0]
        sec('cold')
        e(f'''{l}:
        buffer_load_dword v{reg}, v{voff}, {sr(SRD_WS)}, 0 offen sc1
        s_waitcnt vmcnt(0)
        v_cmp_ne_u32 vcc, s{S_NONCE}, v{reg}
        s_cbranch_vccz {d}
        s_sub_u32 s{S_BOUND}, s{S_BOUND}, 1
        s_cbranch_scc0 {l}
        s_mov_b32 s{S_BOUND}, 0
        s_branch {d}''')
        sec(cur)
        return
    if first_issued: e(f's_branch {m}')
    e(f'{l}:')
    if sleep: e(f's_sleep {sleep}')
    e(f'''buffer_load_dword v{reg}, v{voff}, {sr(SRD_WS)}, 0 offen sc1
    {m}:
    s_waitcnt vmcnt(0)
    v_cmp_ne_u32 vcc, s{S_NONCE}, v{reg}
    s_cbranch_vccz {d}
    s_sub_u32 s{S_BOUND}, s{S_BOUND}, 1
    s_cbranch_scc0 {l}
    s_mov_b32 s{S_BOUND}, 0
    {d}:''')
def publish(soff, tmp):
    if OPT['fw']:
        e(f'''v_mov_b32 v{V_T}, s{S_NONCE}
        v_lshlrev_b32 v{tmp}, 2, v{V_LANE}
        s_mov_b64 exec, {hex((1 << OPT['fw']) - 1)}
        buffer_store_dword v{V_T}, v{tmp}, {sr(SRD_WS)}, s{soff} offen sc1
        s_mov_b64 exec, -1'''.replace('s_mov_b64 exec, 0xffffffff', 's_mov_b32 exec_hi, 0'))
        return
    e(f'''v_mov_b32 v{V_T}, s{S_NONCE}
    v_mov_b32 v{tmp}, 0
    s_mov_b64 exec, 1
    buffer_store_dword v{V_T}, v{tmp}, {sr(SRD_WS)}, s{soff} offen sc1
    s_mov_b64 exec, -1''')
def swap23(d, s, t):
    e(f'''v_lshrrev_b32 v{t}, 1, v{s}
    v_xor_b32 v{t}, v{t}, v{s}
    v_and_b32 v{t}, 4, v{t}
    v_mul_u32_u24 v{t}, 3, v{t}
    v_xor_b32 v{d}, v{t}, v{s}''')
def rot_next(s):
    e(f's_add_u32 s{s}, s{s}, 1\ns_cmp_eq_u32 s{s}, 7\ns_cselect_b32 s{s}, 0, s{s}')

e(f'''s_cmp_ge_u32 s2, 256
s_cbranch_scc1 L_end''')
if OPT['prof']:
    e(f's_memtime s[{S_T0}:{S_T0+1}]\ns_memrealtime s[98:99]\nv_mov_b32 v{V_PROF}, 0')
if OPT['rd'] >= 0: e('s_memrealtime s[100:101]\ns_memrealtime s[58:59]\ns_memrealtime s[98:99]')
e(f'''s_load_dwordx16 s[4:19], s[0:1], 0
s_load_dwordx8 s[20:27], s[0:1], 64
s_load_dwordx2 s[28:29], s[0:1], 96
v_lshrrev_b32 v{V_OWN}, 6, v0
v_and_b32 v{V_LANE}, 63, v0
v_readfirstlane_b32 s{S_WV}, v{V_OWN}
v_lshlrev_b32 v{V_OWN}, 2, v{V_OWN}
v_mov_b32 v{V_T}, 0
ds_write2_b32 v{V_OWN}, v{V_T}, v{V_T} offset1:8
v_and_b32 v{V_GRP}, 3, v{V_LANE}
v_lshlrev_b32 v{V_GRP}, 2, v{V_GRP}
s_and_b32 s{S_HG}, s2, 1
s_bfe_u32 s60, s2, 0x20001
s_bfe_u32 s{S_C}, s2, 0x30003
s_lshr_b32 s61, s2, 6
s_lshl2_add_u32 s{S_TILE}, s60, s61
s_lshl1_add_u32 s{S_J}, s{S_TILE}, s{S_HG}
s_lshl3_add_u32 s{S_H}, s{S_HG}, s{S_C}
s_and_b32 s{S_W}, s{S_WV}, 3
s_mov_b32 s{S_BOUND}, 0x40000
s_mov_b32 s{S_KS}, {KS}
s_cmp_lt_u32 s{S_WV}, 4
s_cbranch_scc1 L_mha''')

VX = 144; VACC = 96; VWF = 32; VPK = 128
VV, VK, VS, VO, VQ = 32, 64, 96, 160, 224
vWd = [5, 6]; vXd = [7, 8, 9, 10]; vXr = [11, 12, 13, 14]; vWb, vW0, vW1 = 15, 16, 17
vRho, vG, vSt, vQd, vQr, vFl, vA, vB, vC = 18, 19, 20, 21, 22, 23, 24, 25, 26
vKo0, vKo1, vVo, vIdx = 27, 28, 29, 30
sXb, sWb, sCh, sCw, sLx, sTmp, sTmp2, sSt, sS1, sS2, sFl = range(60, 71)
sK, sV, sIt = 71, 72, 73
sFo, sO0, sO1 = 84, 85, 86
vOs, vQw = vRho, vG
vRb = [7, 8, 9]; vQx = [11, 12, 13]; vRr = 10
sMask = 74
sOdd = 76

sec('mha0')
e('L_mha:')
if OPT['prio']: e(f"s_setprio {OPT['pm']}")
e(f'''s_mul_i32 s{S_O0}, s{S_H}, 7
s_lshr_b32 s{S_O0}, s{S_O0}, 1''')
e(f'''v_lshrrev_b32 v{vA}, 3, v{V_LANE}          ; r
v_and_b32 v{vB}, 7, v{V_LANE}                    ; p
v_lshlrev_b32 v{vC}, 1, v{vA}
v_and_b32 v{vC}, 4, v{vC}
v_xor_b32 v{vC}, v{vC}, v{vB}
v_lshlrev_b32 v{vC}, 4, v{vC}
v_mul_u32_u24 v{vWd[0]}, 2688, v{vA}
v_add_u32 v{vWd[0]}, v{vWd[0]}, v{vC}
v_add_u32 v{vWd[1]}, {8*2688-1024}, v{vWd[0]}
v_lshrrev_b32 v{vC}, 1, v{vA}
v_xor_b32 v{vC}, v{vC}, v{vB}
v_lshlrev_b32 v{vC}, 4, v{vC}
v_mul_u32_u24 v{vA}, 896, v{vA}
v_add_u32 v{vXd[0]}, v{vA}, v{vC}
v_xor_b32 v{vC}, 64, v{vC}
v_add_u32 v{vXd[1]}, v{vA}, v{vC}
v_add_u32 v{vXd[1]}, {7168-1024}, v{vXd[1]}
v_add_u32 v{vXd[2]}, {2*(7168-1024)}, v{vXd[0]}
v_add_u32 v{vXd[3]}, {2*(7168-1024)}, v{vXd[1]}
s_lshl2_add_u32 s{sXb}, s{S_TILE}, s{S_W}
s_lshl_b32 s{sFl}, s{S_H}, 6
s_add_u32 s{sFl}, s{sFl}, s{S_TILE if OPT['wgf'] else sXb}
s_lshl_b32 s{sFl}, s{sFl}, {FSH}
s_add_u32 s{sFl}, s{sFl}, {F_KV}
s_mul_i32 s{sXb}, s{sXb}, {32*896}
s_mul_i32 s{sTmp2}, s{S_HG}, 3
s_lshr_b32 s{sTmp}, s2, 6
s_add_u32 s{sTmp2}, s{sTmp2}, s{sTmp}
s_mul_i32 s{sWb}, s{S_HG}, 7
s_add_u32 s{sWb}, s{sWb}, s{S_C}
s_add_u32 s{sWb}, s{sWb}, 7
s_cmp_eq_u32 s{S_C}, 7
s_cselect_b32 s{sWb}, {'s%d' % sTmp2 if OPT['tq'] else '0x100000'}, s{sWb}
s_cselect_b32 s{sS1}, 1, s{S_W}
s_lshl_b32 s{sWb}, s{sWb}, 7
s_mul_i32 s{sTmp}, s{S_W}, {16*2688}
s_add_u32 s{sWb}, s{sWb}, s{sTmp}
s_mul_i32 s{sLx}, s{S_W}, 12288
s_add_u32 s{sLx}, s{sLx}, {L_X}
s_lshl_b32 s{sS1}, s{sS1}, 11
s_add_u32 s{sS1}, s{sS1}, {L_W}
s_mov_b32 s{SRD_A+2}, {2048*896}
s_mov_b32 s{SRD_A+3}, 0x20000
s_mov_b32 s{SRD_B+2}, {448*1344*2}
s_mov_b32 s{SRD_B+3}, 0x20000
s_mov_b32 m0, s{sLx}
s_waitcnt lgkmcnt(0)
s_mov_b64 s[{SRD_A}:{SRD_A+1}], s[18:19]
s_mov_b64 s[{SRD_B}:{SRD_B+1}], s[20:21]
s_load_dword s{S_NONCE}, s[28:29], 0''')
stamp(22)
sWo = 88
def w_lines(st):
    return [f's_add_u32 m0, s{sS1}, {8192*st}', f's_add_u32 s{sWo+st}, s{sWb}, {64*2688*st}'] + \
           [f'buffer_load_dwordx4 v{vWd[i]}, {sr(SRD_B)}, s{sWo+st} offen offset:{1024*i} lds' for i in range(2)]
def x_chunk(st):
    return [f's_add_u32 m0, s{sLx}, {(st%3)*4096 - 128*st}', 's_nop 0'] + \
           [f'buffer_load_dwordx4 v{vXd[i]}, {sr(SRD_A)}, s{sXb} offen offset:{1024*i + 128*st} lds' for i in range(4)]
DM = []
for l in [x_chunk(0), w_lines(0)] + [w_lines(i) for i in range(1, 7)] + [x_chunk(1), x_chunk(2)]:
    DM += [l[:3]] + [[x] for x in l[3:]]
DM[0] = DM[0][2:]
for i, g in enumerate(DM[:OPT['n0']]):
    if i == OPT['nb']:
        e(f's_cmp_lg_u32 s{S_C}, 7\ns_cbranch_scc1 L_bar0\ns_waitcnt lgkmcnt(0)\nL_bar0:\ns_barrier'); stamp(23)
        if OPT['only'] == 1: e('s_endpgm')
    e('\n'.join(g))
DM = DM[OPT['n0']:]
stamp(24)
if OPT['ord'] not in (1, 3): e('s_branch L_mha1')
sec('mha')
e('L_mha1:')
stamp(25)
sec('tmp')
srd(SRD_WS, 28, WS_SIZE)
ONES = f'''s_bitcmp1_b32 s{S_H}, 0
s_cselect_b32 s{sTmp}, 0, 7
v_cmp_eq_u32 vcc, s{sTmp}, v{vA}
s_lshl_b32 s{sTmp}, s{S_O0}, 1
s_sub_u32 s{sTmp}, s{S_HG}, s{sTmp}
s_add_u32 s{sTmp}, s{sTmp}, 112
v_mov_b32 v{vB}, s{sTmp}
v_cndmask_b32 v{vA}, v{vA}, v{vB}, vcc
''' if OPT['ones'] else ''
FIX = f'v_cmp_lt_u32 vcc, 7, v{vB}\n'
FOM = f'''s_lshl_b32 s{sFo}, s{sTmp2}, 4
s_add_u32 s{sFo}, s{sFo}, s{S_H}
s_lshl_b32 s{sFo}, s{sFo}, {FSH}
s_add_u32 s{sFo}, s{sFo}, {F_O}
''' if OPT['omode'] != 3 else ''
e(f'''v_and_b32 v{vA}, 31, v{V_LANE}
v_lshrrev_b32 v{vG}, 5, v{V_LANE}''')
swap23(vRho, vA, vB)
e(f'''v_bfe_u32 v{vB}, v{vRho}, 1, 3
v_xor_b32 v{vB}, v{vB}, v{vG}
v_lshlrev_b32 v{vB}, 4, v{vB}
v_lshl_add_u32 v{vB}, v{vRho}, 7, v{vB}
v_add_u32 v{vXr[0]}, s{sLx}, v{vB}
v_xor_b32 v{vXr[1]}, 32, v{vXr[0]}
v_xor_b32 v{vXr[2]}, 64, v{vXr[0]}
v_xor_b32 v{vXr[3]}, 0x60, v{vXr[0]}
v_and_b32 v{vB}, 3, v{V_LANE}                     ; cc
v_lshrrev_b32 v{vC}, 1, v{vB}
v_and_b32 v{vQd}, 1, v{vB}
v_lshl_or_b32 v{vC}, v{vQd}, 1, v{vC}
v_bfe_u32 v{vQd}, v{V_LANE}, 4, 1
v_lshl_or_b32 v{vB}, v{vQd}, 2, v{vB}              ; mq natural
v_lshl_or_b32 v{vC}, v{vQd}, 2, v{vC}
v_bfe_u32 v{vQd}, v{V_LANE}, 2, 2                  ; r'
v_lshl_or_b32 v{vFl}, v{vG}, 3, v{vQd}             ; 8g + r'
v_lshlrev_b32 v{vQr}, 6, v{vFl}
v_lshl_add_u32 v{vQr}, v{vC}, 3, v{vQr}
v_add_u32 v{vQr}, {L_X + 4096}, v{vQr}
s_cmp_eq_u32 s{S_HG}, 0
s_cselect_b64 vcc, -1, 0
v_cndmask_b32 v{vB}, v{vB}, v{vC}, vcc             ; K slabs use the exchanged order, V slabs the natural one
v_lshlrev_b32 v{vWb}, 7, v{vFl}
v_lshl_add_u32 v{vWb}, v{vB}, 3, v{vWb}
v_lshrrev_b32 v{vQd}, 1, v{vQd}
v_lshl_add_u32 v{vWb}, v{vQd}, 6, v{vWb}
v_add_u32 v{vW0}, {L_W}, v{vWb}
v_lshlrev_b32 v{vB}, 4, v{vRho}
v_mad_u32_u24 v{vB}, v{vG}, s{S_KS}, v{vB}
v_lshrrev_b32 v{vC}, 2, v{vA}
v_mul_u32_u24 v{vC}, {QS}, v{vC}
v_lshl_add_u32 v{vC}, v{vG}, 6, v{vC}
v_and_b32 v{vQd}, 3, v{vA}
v_lshl_add_u32 v{vC}, v{vQd}, 4, v{vC}
v_cndmask_b32 v{vSt}, v{vC}, v{vB}, vcc
s_lshl2_add_u32 s{sTmp}, s{S_TILE}, s{S_W}
s_lshl_b32 s{sTmp2}, s{sTmp}, 9
s_add_u32 s{sTmp2}, s{sTmp2}, {WS_K}
s_lshl_b32 s{sTmp}, s{sTmp}, 8
s_add_u32 s{sTmp}, s{sTmp}, {WS_V}
s_movk_i32 s{sS2}, 128
s_cmp_eq_u32 s{S_HG}, 0
s_cselect_b32 s{sSt}, s{sTmp2}, s{sTmp}
s_cselect_b32 s{sS2}, {2*KS}, s{sS2}
s_mul_i32 s{sTmp}, s{S_C}, {8*KS}
s_add_u32 s{sSt}, s{sSt}, s{sTmp}
v_lshrrev_b32 v{vB}, 2, v{V_LANE}
v_mul_u32_u24 v{vB}, 2688, v{vB}
v_lshl_add_u32 v{vQd}, v{vQd}, 4, v{vB}
s_lshl_b32 s82, s{S_O0}, 4
s_mul_i32 s{sTmp}, s{S_W}, {16*2688}
s_add_u32 s82, s82, s{sTmp}
s_lshr_b32 s{sTmp}, s{S_O0}, 3
s_add_u32 s{sTmp2}, s{S_O0}, 3
s_lshr_b32 s{sTmp2}, s{sTmp2}, 3
s_sub_u32 s{sTmp2}, s{sTmp2}, s{sTmp}
v_bfe_u32 v{vC}, v{V_LANE}, 4, 1
v_mul_u32_u24 v{vC}, s{sTmp2}, v{vC}
v_lshl_add_u32 v{vC}, v{vG}, 3, v{vC}
v_add_u32 v{vC}, s{sTmp}, v{vC}
v_and_b32 v{vB}, 15, v{V_LANE}
{FIX}v_and_b32 v{vB}, {3 if OPT['wgf'] else 15}, v{V_LANE}
v_lshl_add_u32 v{vC}, v{vC}, 6, v{vB}
s_lshl_b32 s{sTmp}, s{S_W}, {2 if OPT['wgf'] else 4}
v_add_u32 v{vC}, s{sTmp}, v{vC}
v_lshlrev_b32 v{vC}, {FSH}, v{vC}
v_add_u32 v{vFl}, {F_KV}, v{vC}
s_lshl3_add_u32 s{sTmp}, s{S_W}, s{S_HG}
s_mul_i32 s{sTmp}, s{sTmp}, {US}
s_add_u32 s{sTmp}, s{sTmp}, {F_U}
v_mul_u32_u24 v{vB}, {2*US}, v{vB}
v_add_u32 v{vB}, s{sTmp}, v{vB}
v_cndmask_b32 v{vFl}, v{vFl}, v{vB}, vcc
v_lshlrev_b32 v{vKo0}, 4, v{vA}
v_mad_u32_u24 v{vKo0}, v{vG}, s{S_KS}, v{vKo0}
v_add_u32 v{vKo1}, {2*KS}, v{vKo0}
v_lshrrev_b32 v{vA}, 2, v{vRho}
{ONES}v_mul_u32_u24 v{vA}, {QS}, v{vA}
v_lshl_add_u32 v{vA}, v{vG}, 6, v{vA}
v_and_b32 v{vB}, 3, v{V_LANE}
v_lshl_add_u32 v{vVo}, v{vB}, 4, v{vA}
v_mov_b32 v{vIdx}, 0xdddddddd
s_mul_i32 s{sTmp}, s{S_O0}, {KS}
s_lshl_b32 s{sK}, s{S_W}, 13
s_add_u32 s{sK}, s{sK}, s{sTmp}
s_add_u32 s{sK}, s{sK}, {WS_K}
s_lshl_b32 s{sV}, s{S_W}, 12
s_add_u32 s{sV}, s{sV}, s{sTmp}
s_add_u32 s{sV}, s{sV}, {WS_V}
s_lshl2_add_u32 s{sTmp2}, s{S_TILE}, s{S_W}
{FOM}s_lshl_b32 s{sTmp2}, s{sTmp2}, 9
s_add_u32 s{sO0}, s{sTmp}, s{sTmp2}
s_add_u32 s{sO0}, s{sO0}, {WS_O}
s_add_u32 s{sO1}, s{sO0}, {2*KS}
s_bitcmp1_b32 s{S_H}, 0
s_cselect_b64 s[{sOdd}:{sOdd+1}], -1, 0
; per-lane multipliers for Q: scale*log2(e), zero on the four slots that belong to the neighbour head
v_mov_b32 v{vC}, 0x3e8b97f6
v_cmp_gt_u32 vcc, 32, v{V_LANE}
s_and_b64 s[78:79], vcc, s[{sOdd}:{sOdd+1}]
s_nor_b64 s[80:81], vcc, s[{sOdd}:{sOdd+1}]
v_cndmask_b32 v{vA}, v{vC}, 0, s[78:79]
v_cndmask_b32 v{vB}, v{vC}, 0, s[80:81]
s_mov_b32 s78, 0x3f803f80
s_mov_b32 s79, s78
v_xor_b32 v{vW1}, 64, v{vW0}
v_lshlrev_b32 v{vOs}, 4, v{vRho}
v_mad_u32_u24 v{vOs}, v{vG}, s{S_KS}, v{vOs}
v_lshl_add_u32 v{vQw}, v{V_LANE}, 4, s{sLx}''')
srd(SRD_C, 28, WS_SIZE)
def o_stores(r0, r1, tag):
    e(f'''s_bitcmp1_b32 s{S_H}, 0
    s_cbranch_scc1 L_ost_odd{tag}
    buffer_store_dwordx4 {vr(r0,4)}, v{vOs}, {sr(SRD_WS)}, s{sO0} offen sc1
    s_mov_b32 exec_hi, 0
    buffer_store_dwordx4 {vr(r1,4)}, v{vOs}, {sr(SRD_WS)}, s{sO1} offen sc1
    s_not_b64 exec, exec
    buffer_store_dwordx2 {vr(r1,2)}, v{vOs}, {sr(SRD_WS)}, s{sO1} offen sc1
    s_branch L_ost_done{tag}
    L_ost_odd{tag}:
    buffer_store_dwordx4 {vr(r1,4)}, v{vOs}, {sr(SRD_WS)}, s{sO1} offen sc1
    s_mov_b32 exec_hi, 0
    buffer_store_dwordx2 {vr(r0+2,2)}, v{vOs}, {sr(SRD_WS)}, s{sO0} offen offset:8 sc1
    s_not_b64 exec, exec
    buffer_store_dwordx4 {vr(r0,4)}, v{vOs}, {sr(SRD_WS)}, s{sO0} offen sc1
    L_ost_done{tag}:
    s_mov_b64 exec, -1''')
GS = 0
AB = [l for l in SEC.pop('tmp') if not l.strip().startswith(';')]
sec('mha')
def scc_pending(i):
    return i < len(AB) and AB[i].strip().startswith(('s_cselect', 's_mov_b32 s75'))
pos = 0
for g in DM:
    n = pos + OPT['ilv']
    while scc_pending(n): n += 1
    e('\n'.join(AB[pos:n])); pos = n
    e('\n'.join(g))
e('\n'.join(AB[pos:]))
stamp(0)
def x_reads(s):
    return [f'ds_read_b128 {vr(VX + 16*s + 4*ks, 4)}, v{vXr[ks]} offset:{(s%3)*4096}' for ks in range(4)]
e('s_waitcnt vmcnt(22)')
e('\n'.join(x_reads(0)))
e('s_waitcnt vmcnt(8) lgkmcnt(0)')
arrive(1)
stamp(1)
e('\n'.join(x_chunk(3)))
e('s_waitcnt vmcnt(8)')
e('\n'.join(x_reads(1)))
lwait(1)
e(f's_add_u32 s{S_NONCE}, s{S_NONCE}, 1')
stamp(2)
def w_reads(s):
    r = []
    for ks in range(4):
        for ct in range(2):
            for hf in range(2):
                d = VWF + 32 * (s & 1) + 8 * ks + 4 * ct + 2 * hf
                r.append(f'ds_read_b64_tr_b16 {vr(d,2)}, v{(vW0, vW1)[ct]} offset:{s*8192 + ks*2048 + hf*512}')
    return r
if OPT['tskip']: e(f's_cmp_eq_u32 s{S_C}, 7\ns_cbranch_scc1 L_gemm_t')
e('\n'.join(w_reads(0)))
e(f'''s_waitcnt lgkmcnt(0)
s_cmp_lg_u32 s{S_HG}, 0
s_cbranch_scc1 L_gemm_v''')
sQb, sQc = 82, 83
NE = OPT['wq_early']
def wq_dma(st):
    return [f's_add_u32 m0, s{sLx}, {4096 + 1024*st}\ns_add_u32 s83, s82, {64*2688*st}', '', f'buffer_load_dwordx4 v{vQd}, {sr(SRD_B)}, s83 offen lds']
SPIN = []
def gemm1(vpart):
    for s in range(7):
        M = []
        for ks in range(4):
            for ct in range(2):
                wf = vr(VWF + 32 * (s & 1) + 8 * ks + 4 * ct, 4); xf = vr(VX + 16 * s + 4 * ks, 4)
                acc = vr(VACC + 16 * ct, 16)
                a, b = (xf, wf) if vpart else (wf, xf)
                M.append(f'v_mfma_f32_32x32x16_bf16 {acc}, {a}, {b}, {"0" if s == 0 and ks == 0 else acc}')
        gaps = [[] for _ in range(8)]
        tag = f'{"v" if vpart else "k"}{s}'
        pre = []
        dm = []
        def add(l): dm.extend([(l[0], l[2])] + [(None, x) for x in l[3:]])
        if s <= 2: add(x_chunk(s + 4))
        if s == 3:
            for i in range(min(NE, 4)): add(wq_dma(i))
        if s == 4:
            for i in range(4, NE): add(wq_dma(i))
        n = {0: 8, 1: 8, 2: 8, 3: 4 + min(NE, 4), 4: NE}.get(s)
        for i, (m, l) in enumerate(dm):
            if m: (pre if i == 0 else gaps[i - 1]).append(m)
            gaps[i].append(l)
        if s < 6:
            wr = w_reads(s + 1)
            for i, (p, q) in enumerate(((0, 3), (3, 6), (6, 9), (9, 12), (12, 16))): gaps[i] += wr[p:q]
            if s <= 4: gaps[OPT['xg']] += [f's_waitcnt vmcnt({n})'] + x_reads(s + 2)
            gaps[7] += [f's_waitcnt lgkmcnt({4 if s == 4 and OPT["s6"] != 4 else 0})']
        if s == OPT['s6'] and (OPT['uw'] == 6 or OPT['cw'] == 6): gaps[6] += [f'v_mov_b32 v{V_T}, 6', f'ds_write_b32 v{V_OWN}, v{V_T}']
        if s == 5:
            gaps[7] += [f'v_add_u32 v31, 16, v{V_GRP}', f'ds_read_b32 v31, v31']
        if s == 6 and NE == 7:
            gaps[OPT['qa']] += ['s_waitcnt vmcnt(0)', f'v_mov_b32 v{V_T}, 7', f'ds_write_b32 v{V_OWN}, v{V_T}']
        e('\n'.join(pre))
        if OPT['gx'] & 1 or vpart == 2: M = ['s_nop 0'] * 8
        if OPT['gx'] & 2 or vpart == 2: gaps = [[x for x in g if 'tr_b16' not in x] for g in gaps]
        for i in range(8):
            e(M[i]); e('\n'.join(gaps[i]))
        stamp(14 + s)
if OPT['tskip']:
    sec('gt'); e('L_gemm_t:'); gemm1(2); e('s_branch L_gemm_done'); sec('mha')
else: SEC['gt'] = []
gemm1(False)
e('s_branch L_gemm_done\nL_gemm_v:')
gemm1(True)
e('L_gemm_done:')
stamp(3)
e(f"""s_add_u32 s{sS1}, s{sSt}, s{sS2}
s_add_u32 s{sXb}, s{sSt}, {4*KS}
s_add_u32 s{sCw}, s{sS1}, {4*KS}
s_cmp_eq_u32 s{S_C}, 7
s_waitcnt lgkmcnt(0)
s_cbranch_scc1 L_nokv
s_nop 4""")
for q, so in enumerate((sSt, sS1, sXb, sCw)):
    for i in range(4*q, 4*q+4):
        e(f'v_cvt_pk_bf16_f32 v{VPK + i}, v{VACC + 2*i}, v{VACC + 2*i + 1}')
    e(f'buffer_store_dwordx4 {vr(VPK+4*q,4)}, v{vSt}, {sr(SRD_WS)}, s{so} offen sc1')
e('L_nokv:')
assert OPT['wgf'] and OPT['ones'] and OPT['pf'] == 2
def kv_loads(buf, i, srdn=SRD_C):
    return [f'buffer_load_dwordx4 {vr(VK + 8*buf, 4)}, v{vKo0}, {sr(srdn)}, s{sK} offen offset:{512*i} sc1',
            f'buffer_load_dwordx4 {vr(VK + 8*buf + 4, 4)}, v{vKo1}, {sr(srdn)}, s{sK} offen offset:{512*i} sc1',
            f'buffer_load_dwordx4 {vr(VV + 8*buf, 4)}, v{vVo}, {sr(srdn)}, s{sV} offen offset:{256*i} sc1',
            f'buffer_load_dwordx4 {vr(VV + 8*buf + 4, 4)}, v{vVo}, {sr(srdn)}, s{sV} offen offset:{256*i + 128} sc1']
fill = [f'v_mov_b64 {vr(VV+2*i,2)}, s[78:79]' for i in range(12, 16)] + [f'v_subrev_u32 v{vRr}, {L_X - L_RB}, v{vQw}', 's_mov_b64 s[80:81], -1']
for s in range(3):
    fill += f"""s_add_u32 s{sTmp}, s{S_W}, {1+s}
    s_and_b32 s{sTmp}, s{sTmp}, 3
    s_sub_u32 s{sTmp}, s{sTmp}, s{S_W}
    s_mul_i32 s{sTmp}, s{sTmp}, 12288
    v_add_u32 v{vQx[s]}, s{sTmp}, v{vQw}
    v_subrev_u32 v{vRb[s]}, {L_X - L_RB - 4096*s}, v{vQx[s]}""".split('\n')
def count_in(n):
    e(f"""v_mov_b32 v{V_T}, 1
    v_mov_b32 v31, 0
    s_waitcnt vmcnt({n})
    s_mov_b64 exec, 1
    ds_add_rtn_u32 v{vSt}, v31, v{V_T} offset:32
    s_mov_b64 exec, -1""")
def count_out(n):
    e(f's_waitcnt lgkmcnt({n})\nv_readfirstlane_b32 s{sTmp2}, v{vSt}\ns_cmp_lg_u32 s{sTmp2}, 3\ns_cbranch_scc1 L_nopub')
    publish(sFl, 31)
    e('L_nopub:'); stamp(5)
NM = max(NE, OPT['wq_mid'])
for st in range(NE, NM): e('\n'.join(wq_dma(st)))
stamp(4)
e(f'v_cmp_gt_u32 vcc, 1, v31\ns_cbranch_vccz L_eok\nv_add_u32 v31, 16, v{V_GRP}')
lwait(1, addr=31)
e('L_eok:')
if NE < 7:
    e('\n'.join(fill)); fill = []
    count_in(NM - NE)
    if NM == 7:
        e('s_waitcnt vmcnt(0)'); arrive(7); count_out(1)
    else:
        count_out(0)
        for st in range(NM, 7): e('\n'.join(wq_dma(st)))
        e('s_waitcnt vmcnt(0)'); arrive(7)
lwait(7)
stamp(6)
QB = [80, 84, 88, 92, 112, 116, 120, 124]
def q_reads(k):
    s, ks = divmod(k, 4)
    return [f'ds_read_b64_tr_b16 {vr(QB[k%8] + 2*hf, 2)}, v{vQr} offset:{ks*12288 + s*1024 + hf*256}' for hf in range(2)]
for k in range(6): e('\n'.join(q_reads(k)))
e('\n'.join(fill[:12])); fill = fill[12:]
zi = 0
PK = OPT['pubk'] if NE == 7 else -99
for k in range(28):
    extra = 1 if PK < k <= PK + 5 else 0
    e(f's_waitcnt lgkmcnt({min(10, 2*(27-k)) + extra})')
    e(f'v_mfma_f32_32x32x16_bf16 {vr(VACC,16)}, {vr(QB[k%8], 4)}, {vr(VX + 4*k, 4)}, {"0" if k == 0 else vr(VACC,16)}')
    if k + 6 < 28: e('\n'.join(q_reads(k + 6)))
    while zi < 40 and VX + 2*zi + 1 < VX + 4*k - 4 and zi < 2*k:
        e(f'v_mov_b64 {vr(VX + 2*zi, 2)}, 0'); zi += 1
    if k >= 22 or k < 2:
        e('\n'.join(fill[:4])); fill = fill[4:]
    if k == PK: count_in(0)
    if k == PK + OPT['wgf']: count_out(2*OPT['wgf'])
    if k == OPT['pollk']: e(f'buffer_load_dword v31, v{vFl}, {sr(SRD_WS)}, 0 offen sc1')
    if k == OPT['chkk']:
        e(f's_waitcnt vmcnt(0)\nv_cmp_ne_u32 vcc, s{S_NONCE}, v31\ns_mov_b64 s[80:81], vcc\ns_cbranch_vccnz L_kv_late')
        for t in range(2): e('\n'.join(kv_loads(t, t)))
        e('L_kv_late:')
assert zi == 40 and VX == VS + 48 and not fill
stamp(7)
e('s_nop 11')
for r in range(16):
    m = vA if r < 4 else (vB if r >= 12 else vC)
    e(f'v_mul_f32 v{VACC + r}, v{m}, v{VACC + r}')
for i in range(8):
    e(f'v_cvt_pk_bf16_f32 v{VQ + 24 + i}, v{VACC + 2*i}, v{VACC + 2*i + 1}')
e(f"""ds_write_b128 v{vQw}, {vr(VQ+24,4)}
ds_write_b128 v{vQw}, {vr(VQ+28,4)} offset:1024""")
arrive(8)
lwait(8)
for s in range(3):
    e(f'ds_read_b128 {vr(VQ+8*s,4)}, v{vQx[s]}\nds_read_b128 {vr(VQ+8*s+4,4)}, v{vQx[s]} offset:1024')
PF = OPT['pf']
if OPT['chkk'] < 28: e('s_cmp_eq_u64 s[80:81], 0\ns_cbranch_scc1 L_kv_done')
poll(vFl, first_issued=OPT['pollk'] < 28 and OPT['chkk'] > 27, reg=31, sleep=OPT['ksleep'])
for t in range(PF): e('\n'.join(kv_loads(t, t)))
e('L_kv_done:')
stamp(8)
OM = OPT['omode']
if OM:
    e(f'''s_lshr_b32 s{sTmp}, s{S_O0}, 3
    s_add_u32 s{sTmp2}, s{S_O0}, 3
    s_lshr_b32 s{sTmp2}, s{sTmp2}, 3
    s_sub_u32 s{sTmp2}, s{sTmp2}, s{sTmp}
    s_lshl_b32 s{sTmp2}, s{sTmp2}, 6
    s_lshl_b32 s{sTmp}, s{sTmp}, 6
    s_lshl2_add_u32 s{sSt}, s{S_TILE}, s{S_W}
    s_add_u32 s{sTmp}, s{sTmp}, s{sSt}
    s_lshl_b32 s{sTmp}, s{sTmp}, {FSH}
    s_add_u32 s{sTmp}, s{sTmp}, {F_Y}
    v_and_b32 v{vFl}, 1, v{V_LANE}
    v_mul_u32_u24 v{vFl}, s{sTmp2}, v{vFl}
    v_and_b32 v31, 2, v{V_LANE}
    v_lshl_add_u32 v{vFl}, v31, 8, v{vFl}
    v_lshl_add_u32 v{vFl}, v{vFl}, {FSH}, s{sTmp}''')
def qk(buf, slot, js):
    d = vr(VS + 16*slot, 16)
    return f'v_mfma_f32_32x32x16_bf16 {d}, {vr(VK + 8*buf + 4*js, 4)}, {vr(VQ + 8*slot + 4*js, 4)}, {"0" if js == 0 else d}'
def pv(buf, slot, js):
    return f'v_smfmac_f32_32x32x32_bf16 {vr(VO + 16*slot, 16)}, {vr(VV + 8*buf + 4*js, 4)}, {vr(VS + 16*slot + 8*js, 8)}, v{vIdx}'
def exps(s): return [f'v_exp_f32 v{VS + 16*s + r}, v{VS + 16*s + r}' for r in range(16)]
SPREAD = []
def unit(t, s):
    ex = exps(s)
    if OPT['ax'] & 16 and s in (0, 1, 2):
        pass
    nb = t if s < 3 else (t + 1) & 3
    pb = t if s > 0 else (t - 1) & 3
    if s == 3: e(f's_waitcnt vmcnt({4*PF-4})')
    e(qk(nb, (s+1) & 3, 0)); e('\n'.join(ex[0:4]))
    e(qk(nb, (s+1) & 3, 1)); e('\n'.join(ex[4:8]))
    e(pv(pb, (s-1) & 3, 0))
    if s == 1:
        kl = kv_loads((t + PF) & 3, t + PF)
        if OPT['ax'] & 1: kl = [x for x in kl if 'exec' not in x]
        if OPT['ax'] & 2: kl = [x for x in kl if 'buffer' not in x]
        if OPT['ax'] & 4: kl = [x.replace(' sc1', '') for x in kl]
        if OPT['ax'] & 8: SPREAD.extend(kl); kl = []
        e('\n'.join(kl))
        if t == 3 - PF:
            e(f's_cmp_eq_u32 s{sIt}, 3\ns_cselect_b32 s{SRD_C+2}, 0, s{SRD_C+2}')
        if t == 3:
            e(f's_add_u32 s{sK}, s{sK}, 2048\ns_add_u32 s{sV}, s{sV}, 1024\ns_add_u32 s{sIt}, s{sIt}, 1\ns_cmp_lg_u32 s{sIt}, 4')
    e('\n'.join(ex[8:12]))
    e(pv(pb, (s-1) & 3, 1)); e('\n'.join(ex[12:16]))
e(f's_mov_b32 s{sIt}, 0\ns_waitcnt vmcnt({4*PF - 4}) lgkmcnt(0)')
stamp(9)
e(qk(0, 0, 0)); e(qk(0, 0, 1))
e(f"s_setprio {OPT['pa']}\ns_nop 8\ns_branch L_att_in" if OPT['prio'] else 's_nop 9\ns_branch L_att_in')
e('L_att:')
unit(3, 2); unit(3, 3)
e('L_att_in:')
for t in range(4):
    for s in range(4):
        if (t, s) < (3, 2): unit(t, s)
e('s_cbranch_scc1 L_att')
if OPT['prio']: e(f"s_setprio {OPT['pm']}")
if OM: e(f'buffer_load_dword v31, v{vFl}, {sr(SRD_WS)}, 0 offen sc1')
def rbw(s): return [f'ds_write_b128 v{vRb[s]}, {vr(VO + 16*s + 4*i, 4)} offset:{1024*i}' for i in range(4)]
ex = exps(2); w0 = rbw(0)
e(qk(3, 3, 0)); e('\n'.join(ex[0:4])); e(qk(3, 3, 1)); e('\n'.join(ex[4:7] + [w0[0]]))
e(pv(3, 1, 0)); e('\n'.join(ex[7:10] + [w0[1]])); e(pv(3, 1, 1)); e('\n'.join(ex[10:13] + [w0[2]] + ex[13:16] + [w0[3]]))
ex = exps(3); w1 = rbw(1); w2 = rbw(2)
e(pv(3, 2, 0)); e('\n'.join(ex[0:3])); e(pv(3, 2, 1))
e('\n'.join([w1[0]] + ex[3:5] + [w1[1]] + ex[5:7] + [w1[2]] + ex[7:9] + [w1[3]] + ex[9:10]))
e(pv(3, 3, 0))
e('\n'.join([w2[0]] + ex[10:12] + [w2[1]] + ex[12:14] + [w2[2]] + ex[14:16] + [w2[3]]))
arrive(9)
e(pv(3, 3, 1))
stamp(10)
lwait(9)
for i in range(12): e(f'ds_read_b128 {vr(VS + 4*i, 4)}, v{vRr} offset:{1024*i}')
OA = VO + 48
for s in range(3):
    e(f's_waitcnt lgkmcnt({8 - 4*s})')
    for i in range(8): e(f'v_pk_add_f32 {vr(OA+2*i,2)}, {vr(OA+2*i,2)}, {vr(VS+16*s+2*i,2)}')
e(f's_mov_b32 s{sIt}, {1 if OPT["force_fb"] else 0}')
e(f'''L_norm:
v_cndmask_b32 v{vA}, v{OA+12}, v{OA}, s[{sOdd}:{sOdd+1}]
v_max3_f32 v{vC}, abs(v{OA}), abs(v{OA+1}), abs(v{OA+2})
v_mov_b32 v{vB}, v{vA}
v_max3_f32 v{vC}, abs(v{OA+3}), abs(v{OA+4}), v{vC}
v_max3_f32 v{vC}, abs(v{OA+5}), abs(v{OA+6}), v{vC}
v_permlane32_swap_b32 v{vA}, v{vB}
v_max3_f32 v{vC}, abs(v{OA+7}), abs(v{OA+8}), v{vC}
v_cndmask_b32 v{vB}, v{vB}, v{vA}, s[{sOdd}:{sOdd+1}]
v_max3_f32 v{vC}, abs(v{OA+9}), abs(v{OA+10}), v{vC}
v_rcp_f32 v{vA}, v{vB}
v_max3_f32 v{vC}, abs(v{OA+11}), abs(v{OA+12}), v{vC}
v_max3_f32 v{vC}, abs(v{OA+13}), abs(v{OA+14}), v{vC}
v_max_f32 v{vC}, abs(v{OA+15}), v{vC}
v_cmp_nle_f32 vcc, 0x30800000, v{vB}
s_mov_b64 s[78:79], vcc
v_cmp_nge_f32 vcc, 0x4e800000, v{vB}
s_or_b64 s[78:79], s[78:79], vcc
v_cmp_ngt_f32 vcc, 0x7f000000, v{vC}
s_or_b64 vcc, s[78:79], vcc''')
if OPT['force_fb']:
    e(f's_cmp_eq_u32 s{sIt}, 1\ns_cbranch_scc1 L_fb')
e('s_cbranch_vccnz L_fb0\nL_norm2:')
for i in range(8): e(f'v_pk_mul_f32 {vr(OA+2*i,2)}, {vr(OA+2*i,2)}, {vr(vA,2)} op_sel_hi:[1,0]')
for i in range(8): e(f'v_cvt_pk_bf16_f32 v{VS+i}, v{OA+2*i}, v{OA+2*i+1}')
if OM: poll(vFl, first_issued=2, reg=31)
o_stores(VS, VS + 4, '')
stamp(11)
if OM == 4: publish(sFo, vA)
if OPT['obar'] == 1: e('s_barrier')
if OPT['obar'] >= 3: e(f"s_waitcnt vmcnt({5 - OPT['obar'] + (OM == 4)})\ns_barrier")
if OM == 0:
    e('s_waitcnt vmcnt(0)'); publish(sFo, vA)
if OPT['obar'] == 2: e('s_barrier')
stamp(12)
prof_out()
e('s_endpgm')

for tag, st in SPIN:
    e(f'L_ws_{tag}:'); lwait(st); e(f's_branch L_wb_{tag}')
sec('fb')
e(f'''L_fb0:
s_cmp_eq_u32 s{sIt}, 2
s_cbranch_scc1 L_norm2
L_fb:
s_waitcnt vmcnt(0)
s_mul_i32 s{sTmp}, s{S_O0}, {KS}
s_add_u32 s{sK}, s{sTmp}, {WS_K}
s_add_u32 s{sV}, s{sTmp}, {WS_V}
v_mov_b32 v{vC}, 0xff800000
s_mov_b32 s{sIt}, 0
L_fb1:''')
e('\n'.join(kv_loads(0, 0, SRD_WS)[:2]))
e('s_waitcnt vmcnt(0)')
e(qk(0, 3, 0)); e(qk(0, 3, 1)); e('s_nop 11')
for i in range(8): e(f'v_max3_f32 v{vC}, v{VS+48+2*i}, v{VS+49+2*i}, v{vC}')
e(f'''s_add_u32 s{sK}, s{sK}, 512
s_add_u32 s{sIt}, s{sIt}, 1
s_cmp_lg_u32 s{sIt}, 64
s_cbranch_scc1 L_fb1
v_mov_b32 v{vA}, v{vC}
s_sub_u32 s{sK}, s{sK}, 0x8000
s_mov_b32 s{sIt}, 0
v_permlane32_swap_b32 v{vA}, v{vC}
v_max_f32 v{vC}, v{vA}, v{vC}''')
for i in range(8): e(f'v_mov_b64 {vr(OA+2*i,2)}, 0')
e('L_fb2:')
e('\n'.join(kv_loads(0, 0, SRD_WS)))
e('s_waitcnt vmcnt(0)')
e(qk(0, 3, 0)); e(qk(0, 3, 1)); e('s_nop 11')
for i in range(16): e(f'v_sub_f32 v{VS+48+i}, v{VS+48+i}, v{vC}')
for i in range(16): e(f'v_exp_f32 v{VS+48+i}, v{VS+48+i}')
e('s_nop 1')
e(pv(0, 3, 0)); e(pv(0, 3, 1))
e(f'''s_add_u32 s{sK}, s{sK}, 512
s_add_u32 s{sV}, s{sV}, 256
s_add_u32 s{sIt}, s{sIt}, 1
s_cmp_lg_u32 s{sIt}, 64
s_cbranch_scc1 L_fb2
s_mov_b32 s{sIt}, 2
s_nop 11
s_branch L_norm''')

sD0, sD, sHw, sDs, sTab, sA, sB, sLd, sSk, sIt2, sFlU, sInv, sUns, sSel, sUl, sOl, sCh0 = range(60, 77)
sUs, sOut, sHm = 78, 80, 82
sE2, sP, sE3, sKd = 84, 85, 86, 87
OUTM = 'sc1' if OPT['outsc'] & 1 else ''
OUTM2 = 'sc1' if OPT['outsc'] & 2 else ''
a0, a1, a2, a3 = 5, 6, 7, 9
vPar = 10
vKc = 18
vRa, vRb_, vKd, vKd1, vKa, vKa0, vFu, vE1, vE1b, vFr, vKxo, vKxp, vPair, vRz, vBk, vA0, vA1, vKb, vSB, vSB0 = range(20, 40)
vSel = 180
vAc = 40
vOne, vScl, vAdd, vC0 = range(56, 60)
vOp = 64
vY = 128
vXt = 144
vAn = 166
vX1 = 172
T0, T1 = 160, 176
vZ = 192
U = 204
vZer = 220
vUa, vCd, vG_, vZp, vKp, vF_, vL16, vXo, vXp, vTr, vYl, vYs, vFy = range(224, 237)
vWoD = 238
vWoR = 240
vOl, vFo, vBw, vBr, vOut = range(242, 247)
def hi():
    if OPT['prio']: e('s_setprio 3')
KG = [True]
def lo():
    if OPT['prio']: e(f"s_setprio {OPT['kgp'] if KG[0] else OPT['ps']}")
ROLE[0] = 1
sec('ssm0')
e(f"""s_cmp_{'eq' if OPT['only'] != 2 else 'le'}_u32 s{S_C}, 7
s_cbranch_scc1 L_ssm_idle
s_lshr_b32 s{sDs}, s{S_W}, 1
s_lshl_b32 s{sD0}, s{S_C}, 6
s_lshl1_add_u32 s{sD0}, s{S_J}, s{sD0}
s_add_u32 s{sD}, s{sD0}, s{sDs}
s_mul_i32 s{sTab}, s{S_W}, {TABSZ}
s_add_u32 s{sTab}, s{sTab}, {L_TAB}
s_lshl1_add_u32 s{sA}, s{sD0}, s{S_W}
s_lshl_b32 s{sA}, s{sA}, 8
v_lshl_add_u32 v{a0}, v{V_LANE}, 2, s{sA}
s_mov_b32 m0, s{sTab}
s_lshl_b32 s{sB}, s{sD0}, 1
s_waitcnt lgkmcnt(0)
s_load_dword s{sLd}, s[14:15], s{sB}
s_load_dword s{sSk}, s[16:17], s{sB}
global_load_dword v{vPar+0}, v{a0}, s[6:7]
global_load_dword v{vPar+1}, v{a0}, s[8:9]
global_load_dword v{vPar+2}, v{a0}, s[10:11]
global_load_dword v{vPar+3}, v{a0}, s[12:13]
global_load_dword v{vPar+4}, v{V_T}, s[28:29]""")
if OPT['tlb'] != 2: e('s_barrier')
if OPT['tlb']:
    e(f'''v_and_b32 v{a0}, 7, v{V_LANE}
    v_min_u32 v{a0}, 5, v{a0}
    v_lshlrev_b32 v{a0}, 21, v{a0}
    v_add_u32 v{a0}, 0xf8000, v{a0}
    v_mov_b32 v{a1}, 0
    global_load_dword v8, v{a0}, s[28:29]
    global_load_dword v8, v{a1}, s[22:23]''')
if OPT['tlb'] == 2: e('s_barrier')
e('s_branch L_ssm')
sec('ssm')
e('L_ssm:')
if OPT['abl'] == 1:
    arrive(1); e('s_waitcnt vmcnt(0) lgkmcnt(0)\ns_endpgm')
lo()
srd(SRD_WS, 28, WS_SIZE)
e(f"""s_and_b32 s{sHw}, s{S_W}, 1
v_add_u32 v{V_GRP}, 16, v{V_GRP}
v_and_b32 v{a0}, 15, v{V_LANE}
v_lshrrev_b32 v{a1}, 4, v{V_LANE}
v_lshl_add_u32 v{vRb_}, v{a1}, 4, s{sTab}
v_mul_u32_u24 v{a2}, {TROW}, v{a0}
v_add_u32 v{vRa}, v{a2}, v{vRb_}
v_lshlrev_b32 v{vL16}, 4, v{V_LANE}
v_mov_b32 v{vOne}, 0x3c00
ds_write_addtid_b32 v{vOne}""")
for i in range(8): e(f'v_mov_b64 {vr(vAc+2*i,2)}, 0')
mid = f"""v_and_b32 v{a0}, 7, v{V_LANE}
s_and_b32 s{sB}, s2, {OPT['ur'] - 1}
s_lshl2_add_u32 s{sB}, s{sB}, s{S_W}
s_mul_i32 s{sB}, s{sB}, {8*US}
s_add_u32 s{sB}, s{sB}, {F_U}
v_mul_u32_u24 v{vFu}, {US}, v{a0}
v_add_u32 v{vFu}, s{sB}, v{vFu}
s_mul_i32 s{sP}, s{sDs}, {P_SZ}
s_add_u32 s{sP}, s{sP}, {L_TAB}
s_add_u32 s{sKd}, s{sP}, {P_KD}
s_lshl_b32 s{sB}, s{sHw}, 8
s_add_u32 s{sInv}, s{sB}, s{sKd}
s_add_u32 s{sA}, s{sInv}, {1088 + 128}
v_lshl_add_u32 v{vRz}, v{a0}, 4, s{sA}
v_mov_b32 v{vKb}, s{sKd}
v_and_b32 v{a0}, 15, v{V_LANE}
v_lshrrev_b32 v{a1}, 4, v{V_LANE}
s_lshl_b32 s{sA}, s{sHw}, 4
v_add_u32 v{a0}, s{sA}, v{a0}
v_and_b32 v{a3}, 1, v{V_LANE}
v_mul_u32_u24 v{a2}, 255, v{a3}
v_sub_u32 v{a2}, v{a2}, v{a0}
s_add_u32 s{sA}, s{sKd}, {1088 + 32}
v_add_u32 v{vKa}, s{sA}, v{a2}
v_add_u32 v{vKa0}, 96, v{vKa}
s_lshl3_add_u32 s{sA}, s{sDs}, 16
v_lshl_add_u32 v{vPair}, v{a3}, 2, s{sA}
s_mul_i32 s{sA}, s{sHw}, {1088 + 112 - 1024}
s_add_u32 s{sA}, s{sA}, s{sKd}
s_add_u32 s{sA}, s{sA}, 1024
v_writelane_b32 v{vKa0}, s{sA}, 0
s_mul_i32 s{sA}, s{sHw}, 56
s_sub_u32 s{sA}, s{sKd}, s{sA}
s_add_u32 s{sA}, s{sA}, 1088
v_writelane_b32 v{vKa0}, s{sA}, 16
v_max_u32 v{a2}, 1, v{a1}
v_sub_u32 v{a2}, 5, v{a2}
v_lshlrev_b32 v{a0}, v{a2}, v{a0}
v_lshlrev_b32 v{a2}, 3, v{a1}
s_mov_b32 s{sA}, 0x60400100
v_bfe_u32 v{a1}, s{sA}, v{a2}, 8
v_lshl_add_u32 v{a0}, v{a1}, 3, v{a0}
v_add_u32 v{vKd}, s{sKd}, v{a0}
s_mov_b32 s{sA}, 0x80040404
v_bfe_u32 v{a1}, s{sA}, v{a2}, 8
v_add_u32 v{vKd1}, v{a1}, v{vKd}
v_lshrrev_b32 v{a1}, 1, v{V_LANE}
v_lshlrev_b32 v{vUa}, 6, v{a1}
v_lshl_add_u32 v{vUa}, v{a3}, 4, v{vUa}
s_lshr_b32 s{sA}, s{sD0}, 2
s_mul_i32 s{sA}, s{sA}, {QS}
s_and_b32 s{sB}, s{sD0}, 3
s_lshl4_add_u32 s{sA}, s{sB}, s{sA}
s_lshl_b32 s{sB}, s{S_W}, 12
s_add_u32 s{sA}, s{sA}, s{sB}
s_add_u32 s{sUl}, s{sA}, {WS_U}
v_and_b32 v{a1}, 3, v{a1}
v_lshl_add_u32 v{a1}, v{a3}, 2, v{a1}
v_mul_u32_u24 v{a1}, {PS}, v{a1}
v_lshrrev_b32 v{a2}, 3, v{V_LANE}
v_lshl_add_u32 v{a1}, v{a2}, 4, v{a1}
s_lshl_b32 s{sA}, s{S_W}, 8
s_add_u32 s{sA}, s{sA}, {L_KP + 512}
v_add_u32 v{vKp}, s{sA}, v{a1}
; byte selectors that expand the distinct taps to the lags (lag l uses the tap at bf16(l), as in the reference)
v_lshrrev_b32 v{a1}, 5, v{V_LANE}
s_lshl_b32 s{sA}, s{sHw}, 1
v_max_u32 v{a0}, s{sA}, v{a1}
v_min_u32 v{a2}, 1, v{a0}
v_mul_u32_u24 v{a2}, 0x0202, v{a2}
v_lshlrev_b32 v{a2}, 16, v{a2}
v_sub_u32 v{vSel}, 0x03020100, v{a2}
v_mul_u32_u24 v{a2}, 0x0202, v{a0}
v_lshl_or_b32 v{a2}, v{a2}, 16, v{a2}
v_sub_u32 v{vSel+1}, 0x07060504, v{a2}
s_mul_i32 s{sA}, s{sHw}, 0x02020202
v_add_u32 v{vSel+2}, s{sA}, v{vSel}
s_mul_i32 s{sA}, s{sHw}, 0x02020404
v_add_u32 v{vSel+3}, s{sA}, v{vSel+1}
v_lshrrev_b32 v{a2}, v{a0}, v{vL16}
s_movk_i32 s{sA}, 256
v_lshl_add_u32 v{a2}, s{sA}, v{a0}, v{a2}
s_sub_u32 s{sA}, s{sKd}, 256
v_add_u32 v{vE1}, s{sA}, v{a2}
v_lshlrev_b32 v{a2}, 2, v{a0}
v_sub_u32 v{vE1b}, v{vE1}, v{a2}
s_mov_b32 s{sA}, 0x0c0c0c0c
s_cmp_lg_u32 s{sHw}, 0
s_cselect_b32 s{sE2}, 0x01000100, s{sA}
s_cselect_b32 s{sE3}, 0x05040302, s{sA}
v_mov_b32 v{vSel+4}, s{sA}
v_mov_b32 v{vSel+5}, s{sA}
v_mov_b32 v{vSel+6}, s{sA}
v_mov_b32 v{vSel+7}, s{sA}
s_mov_b32 s{sA}, 0x05040504
s_mov_b64 exec, 15
v_mov_b32 v{vSel+4}, s{sA}
v_mov_b32 v{vSel+5}, s{sA}
v_mov_b32 v{vSel+6}, s{sA}
s_mov_b64 exec, -1
v_writelane_b32 v{vSel+7}, s{sA}, 3
s_mov_b32 s{sA}, 0x05040302
v_writelane_b32 v{vSel+4}, s{sA}, 3
s_mov_b32 s{sA}, 0x0c0c0504
v_writelane_b32 v{vSel+6}, s{sA}, 0
v_writelane_b32 v{vSel+7}, s{sA}, 2
s_mul_i32 s{sA}, s{S_W}, {2*PS}
s_add_u32 s{sA}, s{sA}, {L_KP}
v_mul_u32_u24 v{a2}, {PS - 512}, v{a1}
v_add3_u32 v{vG_}, v{a2}, v{vL16}, s{sA}
v_mov_b64 {vr(vZer,2)}, 0
v_mov_b64 {vr(vZer+2,2)}, 0
ds_write_b128 v{vG_}, {vr(vZer,4)}
s_lshl_b32 s{sA}, s{sHw}, 10
s_add_u32 s{sB}, s{sP}, {P_UC}
s_add_u32 s{sA}, s{sA}, s{sB}
s_add_u32 s{sA}, s{sA}, 64
v_add_u32 v{vCd}, s{sA}, v{vL16}
v_and_b32 v{a3}, 3, v{V_LANE}
v_and_b32 v{a0}, 0x1c, v{V_LANE}
v_lshlrev_b32 v{a2}, 2, v{a0}
v_and_b32 v{vZp}, 0x30, v{a2}
s_mov_b32 exec_hi, 0
v_add_u32 v{vZp}, 2112, v{a2}
s_mov_b64 exec, -1
v_mul_u32_u24 v{a2}, {UC_S}, v{a3}
v_add3_u32 v{vZp}, v{vZp}, v{a2}, s{sB}
v_lshlrev_b32 v{a0}, 1, v{a0}
v_sub_u32 v{a0}, v{a0}, v{a2}
v_lshlrev_b32 v{a1}, 4, v{a1}
v_sub_u32 v{a0}, v{a0}, v{a1}
s_lshl_b32 s{sA}, s{sHw}, 5
s_sub_u32 s{sB}, s{sB}, s{sA}
s_add_u32 s{sB}, s{sB}, {56 + 3*UC_S}
v_add_u32 v{vF_}, s{sB}, v{a0}
v_add_u32 v{vG_}, {512 - 80}, v{vG_}
v_add_u32 v{vKxo}, s{sTab}, v{vL16}
s_xor_b32 s{sA}, s{S_W}, 1
s_mul_i32 s{sA}, s{sA}, {TABSZ}
s_add_u32 s{sA}, s{sA}, {L_TAB}
v_add_u32 v{vKxp}, s{sA}, v{vL16}
v_and_b32 v{a0}, 31, v{V_LANE}
v_lshlrev_b32 v{a2}, 2, v{a0}
v_sub_u32 v{a2}, v{a1}, v{a2}
s_add_u32 s{sA}, s{sInv}, {1088 + 124}
v_add_u32 v{vBk}, s{sA}, v{a2}
"""
e(mid)
stamp(22)
e(f"""s_waitcnt lgkmcnt(0)
s_lshl_b32 s{sA}, s{sDs}, 4
s_lshr_b32 s{sLd}, s{sLd}, s{sA}
s_lshl_b32 s{sLd}, s{sLd}, 16
s_lshr_b32 s{sSk}, s{sSk}, s{sA}
s_lshl_b32 s{sSk}, s{sSk}, 16
v_mov_b32 v{a0}, s{sLd}
v_mul_f32 v{a0}, 0x3fb8aa3b, v{a0}
v_exp_f32 v{a0}, v{a0}
s_cmp_eq_u32 s{sHw}, 0
s_cselect_b32 s{sSk}, s{sSk}, 0
v_cvt_pk_bf16_f32 v{a0}, v{a0}, v{a0}
v_and_b32 v{vScl}, 0xffff0000, v{a0}
v_mul_f32 v{vKc}, 0xbfb8aa3b, v{vScl}
v_mul_f32 v{vKc+1}, 0.15915494, v{vScl}
v_mov_b32 v{vAdd}, 0
v_add_f32 v{vScl}, v{vScl}, v{vScl}
v_writelane_b32 v{vAdd}, s{sSk}, 0
s_mov_b32 s{sIt2}, 0
s_mov_b32 s{sSel}, 0x01000c0c""")
stamp(0)
e(f"""s_waitcnt vmcnt({3 if OPT['tlb'] else 1})
v_and_b32 v{a0}, 0x7f807f80, v{vPar+2}
v_and_b32 v{a1}, 0x7f807f80, v{vPar+3}
v_pk_max_u16 v{a0}, v{a0}, v{a1}
v_lshlrev_b32 v{a1}, 16, v{a0}
v_max_u32 v{a0}, v{a0}, v{a1}""")
for q, n in enumerate((1, 2, 4, 8)):
    e(f's_nop 1\nv_max_u32_dpp v{a0}, v{a0}, v{a0} row_ror:{n} row_mask:0xf bank_mask:0xf')
e(f"""s_nop 0
v_readlane_b32 s{sA}, v{a0}, 0
v_readlane_b32 s{sB}, v{a0}, 16
v_readlane_b32 s{sInv}, v{a0}, 32
v_readlane_b32 s{sUns}, v{a0}, 48
s_max_u32 s{sA}, s{sA}, s{sB}
s_max_u32 s{sUns}, s{sUns}, s{sInv}
s_max_u32 s{sUns}, s{sUns}, s{sA}
s_and_b32 s{sUns}, s{sUns}, 0x7f800000
s_min_u32 s{sUns}, s{sUns}, 0x7e800000
s_sub_u32 s{sInv}, 0x7f000000, s{sUns}
v_mul_f32 v{vScl}, s{sUns}, v{vScl}
v_mul_f32 v{vSB}, 0x43000000, v{vScl}
v_mov_b32 v{vSB0}, v{vSB}
s_mov_b64 exec, 1
v_mov_b32 v{vSB0}, v{vScl}
s_mov_b64 exec, -1""")
stamp(1)
if OPT['abl'] == 2: e('s_endpgm')
def cm(jobs, conj):
    ng = 'neg_hi:[1,0,0]' if conj else 'neg_lo:[1,0,0]'
    return [f'v_pk_mul_f16 v{d}, v{x}, v{w} op_sel_hi:[1,0]' for d, x, w in jobs] + \
           [f'v_pk_fma_f16 v{d}, v{x}, v{w}, v{d} op_sel:[1,1,0] op_sel_hi:[0,1,1] {ng}' for d, x, w in jobs]
def wr(reg): return f'ds_write_addtid_b32 v{reg} offset:{TROW*(reg - vY)}'
assert vXt == vY + 16
zA, zB, tA, tB, pA, pB = vZ, vZ+2, vZ+4, vZ+6, vZ+8, vZ+10
X = vXt; Y = vY
an = {1: vAn, 2: vAn+1, 4: vAn+2, 8: Y+1, 16: Y+2, 32: Y+4, 64: Y+8, 128: X+21, 256: vAn+3, 512: vAn+4, 1024: vAn+5}
e('L_kg:')
stamp(14)
seq = f"""v_perm_b32 v{pA}, v{vPar}, v{vPar}, s{sSel}
v_mul_f32 v{pA}, 0x3fb8aa3b, v{pA}
v_exp_f32 v{pA}, v{pA}
v_perm_b32 v{pA+1}, v{vPar+1}, v{vPar+1}, s{sSel}
v_perm_b32 v{tA}, v{vPar+2}, v{vPar+2}, s{sSel}
v_perm_b32 v{tA+1}, v{vPar+3}, v{vPar+3}, s{sSel}
v_cvt_pk_bf16_f32 v{pA}, v{pA}, v{pA}
v_mul_f32 v{tA}, s{sInv}, v{tA}
v_and_b32 v{pA}, 0xffff0000, v{pA}
v_mul_f32 v{tA+1}, s{sInv}, v{tA+1}
v_pk_mul_f32 {vr(pA,2)}, {vr(pA,2)}, {vr(vKc,2)}
v_cvt_pk_f16_f32 v{X}, v{tA}, -v{tA+1}
v_mul_f32 v{pB}, 0x42800000, v{pA}
v_mul_f32 v{pB+1}, 0x42800000, v{pA+1}
v_exp_f32 v{pA}, v{pA}
v_fract_f32 v{pA+1}, v{pA+1}
v_exp_f32 v{pB}, v{pB}
v_fract_f32 v{pB+1}, v{pB+1}
v_cos_f32 v{zA}, v{pA+1}
v_sin_f32 v{zA+1}, v{pA+1}
v_cos_f32 v{zB}, v{pB+1}
v_sin_f32 v{zB+1}, v{pB+1}
v_pk_mul_f32 {vr(zA,2)}, {vr(zA,2)}, {vr(pA,2)} op_sel_hi:[1,0]
v_pk_mul_f32 {vr(zB,2)}, {vr(zB,2)}, {vr(pB,2)} op_sel_hi:[1,0]""".split('\n')
for st in range(6):
    chains = [(zA, tA, an[1 << st], st < 5)] + ([(zB, tB, an[64 << st], st < 4)] if st < 5 else [])
    for z, t, d, sq in chains:
        if sq: seq.append(f'v_pk_mul_f32 {vr(t,2)}, {vr(z,2)}, {vr(z,2)} op_sel_hi:[0,1]')
    for z, t, d, sq in chains: seq.append(f'v_cvt_pk_f16_f32 v{d}, v{z}, v{z+1}')
    for z, t, d, sq in chains:
        if sq: seq.append(f'v_pk_fma_f32 {vr(z,2)}, {vr(z,2)}, {vr(z,2)}, {vr(t,2)} op_sel:[1,1,0] op_sel_hi:[0,1,1] neg_lo:[1,0,0]')
seq += cm([(X+1, X, an[1]), (X+2, X, an[2]), (X+4, X, an[4]), (X+8, X, an[256]), (X+12, X, an[512]), (X+16, X, an[1024])], True)
seq += cm([(Y+3, Y+1, Y+2), (Y+12, Y+4, Y+8), (Y+5, Y+4, Y+1), (Y+6, Y+4, Y+2), (Y+9, Y+8, Y+1), (Y+10, Y+8, Y+2)], False)
seq += cm([(X+3, X+1, an[2]), (X+5, X+1, an[4]), (X+6, X+2, an[4]), (X+9, X+2, an[256]), (X+10, X+4, an[256]), (X+13, X+4, an[512]),
           (X+14, X+8, an[512]), (X+17, X+8, an[1024]), (X+18, X+12, an[1024]), (X+20, X+16, an[1024])], True)
seq += cm([(Y+7, Y+4, Y+3), (Y+11, Y+8, Y+3), (Y+13, Y+12, Y+1), (Y+14, Y+12, Y+2), (Y+15, Y+12, Y+3)], False)
seq += cm([(X+7, X+3, an[4]), (X+11, X+6, an[256]), (X+15, X+10, an[512]), (X+19, X+14, an[1024])], True)
e('\n'.join(seq))
stamp(15)
if OPT['kgw']:
    e(f'v_subrev_u32 v{a0}, 16, v{V_GRP}'); lwait(OPT['kgw'], addr=a0)
hi()
if OPT['abl'] != 4: e('\n'.join(wr(r) for r in range(Y + 1, X + 22)))
for k in range(4):
    o = vOp + 16*k
    e(f"""ds_read_b128 {vr(o,4)}, v{vRa} offset:{64*k}
    ds_read_b128 {vr(o+4,4)}, v{vRb_} offset:{37*TROW + 64*k}
    ds_read_b128 {vr(o+8,4)}, v{vRa} offset:{16*TROW + 64*k}
    ds_read_b128 {vr(o+12,4)}, v{vRa} offset:{32*TROW + 64*k}""")
if not OPT['uw']: e(f's_cmp_eq_u32 s{sIt2}, 0\ns_cbranch_scc1 L_kg_n\nbuffer_load_dword v{vFr}, v{vFu}, {sr(SRD_WS)}, 0 offen sc1\nL_kg_n:')
stamp(16)
def mf(c, a, b): return f'v_mfma_f32_16x16x32_f16 {vr(c,4)}, {vr(a,4)}, {vr(b,4)}, {vr(c,4)}'
late_m = []
for k in range(4):
    o = vOp + 16*k; y1 = vX1 + 4*(k & 1)
    p = cm([(y1+r, o+r, o+4+r) for r in range(4)], False)
    e(f's_waitcnt lgkmcnt({12 - 4*k})')
    e('\n'.join([mf(vAc, o+8, o)] + p[0:2] + late_m[:1] + p[2:4] + [mf(vAc+4, o+12, o)] + p[4:6] + late_m[1:] + p[6:8]))
    late_m = [mf(vAc+8, o+8, y1), mf(vAc+12, o+12, y1)]
e(f"""s_add_u32 s{sSel}, s{sSel}, 0x02020000
s_add_u32 s{sIt2}, s{sIt2}, 1
s_cmp_lg_u32 s{sIt2}, 2""")
e('\n'.join(late_m))
lo()
e('s_cbranch_scc1 L_kg')
stamp(17)
if OPT['abl'] in (4, 8): e('s_endpgm')
def scl(i): return vSB0 if i == 4 else (vSB if i & 4 else vScl)
for i in range(8): e(f'v_mul_f32 v{vAc+i}, v{scl(i)}, v{vAc+i}')
e(f's_cmp_eq_u32 s{sHw}, 0')
for i in range(8, 16): e(f'v_mul_f32 v{vAc+i}, v{scl(i)}, v{vAc+i}')
e('s_cbranch_scc1 L_kx')
for i in range(8): e(f'v_swap_b32 v{vAc+i}, v{vAc+8+i}')
e(f"""L_kx:
ds_write_b128 v{vKxo}, {vr(vAc+8,4)}
s_mov_b32 exec_hi, 0
ds_write_b128 v{vKxo}, {vr(vAc+12,4)} offset:1024
s_mov_b64 exec, -1
s_waitcnt vmcnt(0)
v_readfirstlane_b32 s{S_NONCE}, v{vPar+4}""")
arrive(2)
e(f's_add_u32 s{S_NONCE}, s{S_NONCE}, 1')
e(f'v_add_f32 v{vAc}, v{vAdd}, v{vAc}')
stamp(18)
def bprio():
    if OPT['prio']: e(f"s_setprio {OPT['bp']}")
def u_look():
    hi(); e(f'buffer_load_dword v{vFr}, v{vFu}, {sr(SRD_WS)}, 0 offen sc1'); bprio()
def u_fetch():
    hi()
    stamp(20)
    poll(vFu, first_issued=True, reg=vFr, sleep=OPT['usleep'])
    stamp(21)
    for k in range(2):
        e(f'buffer_load_dwordx4 {vr(U+4*k,4)}, v{vUa}, {sr(SRD_WS)}, s{sUl} offen offset:{2048*k} sc1')
    bprio()
if OPT['uw'] == -2: u_look()
else: bprio()
stamp(19)
lwait(2, addr=vPair)
e(f"""ds_read_b128 {vr(vAc+8,4)}, v{vKxp}
ds_read_b128 {vr(vAc+12,4)}, v{vKxp} offset:1024
ds_write_b128 v{vRz}, {vr(vZer,4)}
s_mov_b32 s{sIt2}, 4
s_waitcnt lgkmcnt(1)""")
for i in range(4): e(f'v_pk_add_f32 {vr(vAc+2*i,2)}, {vr(vAc+2*i,2)}, {vr(vAc+8+2*i,2)}')
for i in range(4): e(f'v_cvt_pk_bf16_f32 v{vAc+8+i}, v{vAc+2*i}, v{vAc+2*i+1}')
e(f"""ds_write_b32 v{vKd}, v{vAc+8}
ds_write_b32 v{vKd1}, v{vAc+9}
s_mov_b64 exec, 0x1ffff
ds_write_b16 v{vKa0}, v{vAc+10}
s_mov_b64 exec, 0xffff
ds_write_b16_d16_hi v{vKa}, v{vAc+10} offset:64
ds_write_b16 v{vKa}, v{vAc+11} offset:32
ds_write_b16_d16_hi v{vKa}, v{vAc+11}
s_mov_b64 exec, -1""")
arrive(3)
if OPT['uw'] == -1: u_look()
if OPT['uw'] == -2: u_fetch()
lwait(3, addr=vPair)
stamp(2)
E = 64; BF = 40
e(f"""ds_read2_b32 {vr(E,2)}, v{vE1} offset1:1
ds_read2_b32 {vr(E+2,2)}, v{vE1b} offset0:2 offset1:3
ds_read2_b32 {vr(E+4,2)}, v{vKb} offset0:191 offset1:192
ds_read_b32 v{E+6}, v{vKb} offset:1020
ds_read_b32 v{E+7}, v{vKb} offset:1024""")
for q in range(8): e(f'ds_read2_b32 {vr(BF+2*q,2)}, v{vBk} offset0:{8*(q>>1) + 2*(q&1)} offset1:{8*(q>>1) + 2*(q&1) + 1}')
b = E + 12; t = E + 16
e(f"""s_waitcnt lgkmcnt(10)
v_perm_b32 v{b+2}, v{E+2}, v{E+2}, v{vSel+2}
v_perm_b32 v{b+3}, v{E+3}, v{E+2}, v{vSel+3}
v_perm_b32 v{b-2}, v{E+5}, v{E+4}, s{sE2}
v_perm_b32 v{b-1}, v{E+5}, v{E+4}, s{sE3}
v_perm_b32 v{b}, v{E}, v{E}, v{vSel}
v_perm_b32 v{b+1}, v{E+1}, v{E}, v{vSel+1}
v_mov_b32_dpp v{b-2}, v{b+2} wave_shr:1 row_mask:0xf bank_mask:0xf
v_mov_b32_dpp v{b-1}, v{b+3} wave_shr:1 row_mask:0xf bank_mask:0xf
ds_write_b128 v{vCd}, {vr(b,4)}""")
for i in range(4): e(f'v_alignbit_b32 v{t+i}, v{b+i}, v{b+i-1}, 16')
e(f'ds_write_b128 v{vCd}, {vr(t,4)} offset:{UC_S}')
for i in range(4): e(f'v_mov_b32 v{t+4+i}, v{b+i-1}')
e(f'ds_write_b128 v{vCd}, {vr(t+4,4)} offset:{2*UC_S}')
for i in range(4): e(f'v_alignbit_b32 v{t+8+i}, v{b+i-1}, v{b+i-2}, 16')
e(f'ds_write_b128 v{vCd}, {vr(t+8,4)} offset:{3*UC_S}\ns_waitcnt lgkmcnt(12)')
for i in range(4): e(f'v_perm_b32 v{t+12+i}, v{E+7}, v{E+6}, v{vSel+4+i}')
e(f'ds_write_b128 v{vZp}, {vr(t+12,4)}')
if OPT['uw'] == -1: u_fetch()
stamp(3)
e(f'v_and_b32 v{a0}, 31, v{V_LANE}')
swap23(a1, a0, a2)
e(f"""v_lshrrev_b32 v{a2}, 5, v{V_LANE}
v_lshl_add_u32 v{a1}, v{a1}, 1, v{a2}
s_add_u32 s{sA}, s{sHw}, 123
v_add_u32 v{a1}, s{sA}, v{a1}
s_mul_i32 s{sA}, s{sDs}, {PD}
s_add_u32 s{sA}, s{sA}, {L_KP}
v_and_b32 v{a3}, 3, v{a1}
v_mul_u32_u24 v{a3}, {PS - 4}, v{a3}
v_lshl_add_u32 v{a3}, v{a1}, 2, v{a3}
v_add_u32 v{vA0}, s{sA}, v{a3}
v_add_u32 v{a1}, 2, v{a1}
v_and_b32 v{a3}, 3, v{a1}
v_mul_u32_u24 v{a3}, {PS - 4}, v{a3}
v_lshl_add_u32 v{a3}, v{a1}, 2, v{a3}
v_add_u32 v{vA1}, s{sA}, v{a3}
v_lshlrev_b32 v{a2}, 3, v{a2}
v_sub_u32 v{a2}, v{a2}, v{a0}
v_cvt_f32_i32 v{a2}, v{a2}
v_add_f32 v{a3}, -1.0, v{a2}
v_add_f32 v{a2}, -2.0, v{a2}
v_cvt_pk_f16_f32 v8, v{a3}, v{a2}
s_waitcnt vmcnt(1)
ds_write_b128 v{vKp}, {vr(U,4)}
s_waitcnt vmcnt(0)
ds_write_b128 v{vKp}, {vr(U+4,4)} offset:128""")
arrive(4)
AP, BD, DP = 112, 136, 192
band = [f's_mov_b32 s{sA}, 0x4a204a20', f's_cmp_eq_u32 s{sHw}, 0', f's_cselect_b32 s{sE2}, 0x4d104d10, s{sA}', f's_mov_b32 s{sE3}, 0x4d804d80']
for q in range(12):
    band.append(f'v_pk_fma_f16 v{BD+q}, v8, v8, s{sE2} neg_lo:[1,0,0] neg_hi:[1,0,0] clamp')
    if q < 11: band.append(f'v_pk_add_f16 v8, v8, s{sE3}' if q % 4 == 3 else 'v_pk_add_f16 v8, v8, -2.0 op_sel_hi:[1,0]')
e('\n'.join(band))
lwait(4)
KG[0] = False
lo()
stamp(4)
if OPT['abl'] == 16: e('s_endpgm')
CB = 64
def cv_reads(k):
    b = CB + 12 * (k & 3)
    return [f'ds_read_b64 {vr(b,2)}, v{vF_} offset:{64*k}', f'ds_read_b64 {vr(b+2,2)}, v{vF_} offset:{64*k + 8}',
            f'ds_read_b128 {vr(b+8,4)}, v{vG_} offset:{512 + 80 - 16*k}', f'ds_read_b128 {vr(b+4,4)}, v{vG_} offset:{80 - 16*k}']
for tau in range(2):
    for kp in range(3): e(f'ds_read_b128 {vr(AP + 12*tau + 4*kp, 4)}, v{(vA0, vA1)[kp & 1]} offset:{256*tau + 16*(kp >> 1)}')
e('\n'.join(cv_reads(0) + cv_reads(1)))
FOA = f'''s_lshr_b32 s{sA}, s{sOl}, 1
s_lshl_b32 s{sA}, s{sA}, {4 + FSH}
s_add_u32 s{sA}, s{sA}, {F_O}
v_lshl_add_u32 v{vFo}, v{a1}, {FSH}, s{sA}''' if not OM else f'''s_lshr_b32 s{sA}, s{sOl}, 1
s_lshl_b32 s{sB}, s{sHw}, 9
s_add_u32 s{sA}, s{sA}, s{sB}
s_lshl_b32 s{sA}, s{sA}, {FSH}
s_add_u32 s{sA}, s{sA}, {F_Y}
v_min_u32 v{vFo}, 6, v{a1}
v_lshl_add_u32 v{vFo}, v{vFo}, {6 + FSH}, s{sA}'''
late = f"""s_mov_b64 s[{SRD_B}:{SRD_B+1}], s[22:23]
s_mov_b32 s{SRD_B+2}, {448*896}
s_mov_b32 s{SRD_B+3}, 0x20000
s_mov_b64 s[{SRD_C}:{SRD_C+1}], s[24:25]
s_mov_b32 s{SRD_C+2}, {2048*1792}
s_mov_b32 s{SRD_C+3}, 0x20000
v_lshrrev_b32 v{a1}, 3, v{V_LANE}
v_and_b32 v{a2}, 7, v{V_LANE}
v_and_b32 v{a0}, 0x70, v{vL16}
v_mul_u32_u24 v{vYl}, {YS}, v{a1}
v_add_u32 v{vYl}, v{vYl}, v{a0}
v_lshlrev_b32 v{a3}, 2, v{V_LANE}
v_and_b32 v{a3}, 64, v{a3}
v_xor_b32 v{a0}, v{a0}, v{a3}
v_mul_u32_u24 v{vWoD}, 896, v{a1}
v_xor_b32 v{a3}, v{a1}, v{a2}
v_lshlrev_b32 v{a3}, 4, v{a3}
v_lshl_add_u32 v{vOut}, v{vWoD}, 1, v{a3}
v_add_u32 v{vWoD}, v{a0}, v{vWoD}
v_add_u32 v{vWoD+1}, {7168-1024}, v{vWoD}
v_lshrrev_b32 v{a0}, 4, v{V_LANE}
v_bfe_u32 v{a1}, v{V_LANE}, 2, 2
v_lshl_or_b32 v{a3}, v{a0}, 3, v{a1}
v_lshlrev_b32 v{a3}, 7, v{a3}
v_lshrrev_b32 v{a1}, 1, v{a1}
v_lshl_add_u32 v{a3}, v{a1}, 6, v{a3}
v_and_b32 v{a1}, 0x30, v{vL16}
s_movk_i32 s{sA}, {L_WO}
v_add3_u32 v{vWoR}, v{a1}, v{a3}, s{sA}
v_xor_b32 v{vWoR+1}, 64, v{vWoR}
v_and_b32 v{a1}, 15, v{V_LANE}
v_lshlrev_b32 v{vOl}, 4, v{a1}
v_mad_u32_u24 v{vOl}, v{a0}, s{S_KS}, v{vOl}
s_lshl2_add_u32 s{sOl}, s{S_J}, s{S_W}
{FOA}
s_lshl_b32 s{sA}, s{S_W}, 11
s_add_u32 s{sA}, s{sA}, {L_SSM}
v_xor_b32 v{a3}, v{a0}, v{a2}
v_lshl_add_u32 v{a3}, v{a3}, 4, s{sA}
v_lshl_add_u32 v{vBw}, v{a1}, 7, v{a3}
v_add_u32 v{vBr}, s{sA}, v{vL16}
s_mul_i32 s{sOut}, s{sOl}, {16*1792}
s_lshl_b32 s{sA}, s{S_C}, 7
s_add_u32 s{sOut}, s{sOut}, s{sA}
s_add_u32 s{sOut}, s{sOut}, 896
s_add_u32 s{sOut+1}, s{sOut}, {8*1792}
s_lshl_b32 s{sOl}, s{sOl}, 8
s_add_u32 s{sOl}, s{sOl}, {WS_O}
s_lshl2_add_u32 s{sCh0}, s{S_C}, s{S_W}
s_lshl_b32 s{sCh0}, s{sCh0}, 4
s_lshr_b32 s{sA}, s{S_J}, 4
s_lshl_b32 s{sA}, s{sA}, 9
s_add_u32 s{sA}, s{sA}, s{sCh0}
s_lshl_b32 s{sA}, s{sA}, {FSH}
s_add_u32 s{sA}, s{sA}, {F_Y}
v_lshl_add_u32 v{vFy}, v{a1}, {FSH}, s{sA}
v_and_b32 v{a1}, 11, v{V_LANE}
v_lshl_or_b32 v{a1}, v{a0}, 5, v{a1}
v_mul_u32_u24 v{a1}, 1792, v{a1}
v_and_b32 v{a3}, 4, v{V_LANE}
v_lshl_add_u32 v{vYs}, v{a3}, 2, v{a1}
s_lshl_b32 s{sA}, s{sHw}, 12
s_add_u32 s{sB}, s{sP}, {P_X + 4096}
s_sub_u32 s{sB}, s{sB}, s{sA}
v_add_u32 v{vXp}, s{sB}, v{vL16}
s_add_u32 s{sA}, s{sA}, s{sP}
s_add_u32 s{sA}, s{sA}, {P_X}
v_add_u32 v{vXo}, s{sA}, v{vL16}
v_lshl_add_u32 v{vRb_}, v{a0}, 4, s{sA}
v_bfe_u32 v{a0}, v{V_LANE}, 2, 2
v_and_b32 v{a3}, 1, v{V_LANE}
v_lshl_or_b32 v{a2}, v{a3}, 3, v{a0}
v_lshl_add_u32 v{vTr}, v{a2}, 7, v{vRb_}
v_and_b32 v{a2}, 2, v{V_LANE}
v_lshl_add_u32 v{vTr}, v{a2}, 2, v{vTr}""".split('\n')
def fill(n):
    e('\n'.join(late[:n])); del late[:n]
fill(16)
e('s_waitcnt lgkmcnt(8)')
for kp in range(3):
    for tau in range(2):
        d = vr(DP + 16*tau, 16)
        e(f'v_mfma_f32_32x32x16_bf16 {d}, {vr(AP + 12*tau + 4*kp, 4)}, {vr(BD + 4*kp, 4)}, {"0" if kp == 0 else d}')
        fill(6)
def cv_iter(first):
    for k in range(4):
        b = CB + 12 * k
        rd = cv_reads(k + 2)
        z = first and k == 0
        e('s_waitcnt lgkmcnt(4)')
        e(f'v_mfma_f32_32x32x16_bf16 {vr(T1,16)}, {vr(b,4)}, {vr(b+8,4)}, {"0" if z else vr(T1,16)}')
        e('\n'.join(rd))
        if k == 3:
            e(f'v_add_u32 v{vF_}, 256, v{vF_}\nv_subrev_u32 v{vG_}, 64, v{vG_}')
            if not first: e(f's_add_u32 s{sIt2}, s{sIt2}, 1\ns_cmp_lg_u32 s{sIt2}, 11')
        e(f'v_mfma_f32_32x32x16_bf16 {vr(T0,16)}, {vr(b,4)}, {vr(b+4,4)}, {"0" if z else vr(T0,16)}')
        if first: fill(6 if k < 3 else 99)
cv_iter(True)
e('L_cv:')
cv_iter(False)
e('s_cbranch_scc1 L_cv')
cv = [f'v_cvt_pk_bf16_f32 v{AP+i}, v{DP+2*i}, v{DP+2*i+1}' for i in range(16)]
for k in range(2):
    e('\n'.join(cv[4*k:4*k+4]))
    e(f's_waitcnt lgkmcnt({4 - 4*k})')
    e(f'v_mfma_f32_32x32x16_bf16 {vr(T1,16)}, {vr(CB+12*k,4)}, {vr(CB+12*k+8,4)}, {vr(T1,16)}')
for q in range(4):
    e('\n'.join(cv[8+4*q:12+4*q]))
    e(f'v_mfma_f32_32x32x16_bf16 {vr(T1,16)}, {vr(AP+4*q,4)}, {vr(BF+4*q,4)}, {vr(T1,16)}')
if OPT['prio']: e(f"s_setprio {OPT['pr']}")
stamp(5)
if OPT['abl'] == 32: e('s_endpgm')
e(f"""s_mul_i32 s{sA}, s{sD}, {YS}
s_lshl_b32 s{sB}, s{sHw}, 11
s_add_u32 s{sA}, s{sA}, s{sB}
s_add_u32 s{sA}, s{sA}, {WS_Y}
s_lshl_b32 s{sB}, s{sHw}, 9
s_add_u32 s{sB}, s{sB}, s{sD}
s_lshl_b32 s{sB}, s{sB}, {FSH}
s_add_u32 s{sB}, s{sB}, {F_Y}
s_nop 0""")
def xch(give, keep):
    for i in range(4): e(f'ds_write_b128 v{vXp}, {vr(give+4*i,4)} offset:{1024*i}')
    arrive(6); lwait(6, addr=vPair)
    for i in range(4): e(f'ds_read_b128 {vr(give+4*i,4)}, v{vXo} offset:{1024*i}')
    e('s_waitcnt lgkmcnt(0)')
e(f's_cmp_eq_u32 s{sHw}, 0\ns_cbranch_scc1 L_x0')
xch(T0, T1)
e('s_branch L_x1\nL_x0:')
xch(T1, T0)
e('L_x1:')
for i in range(8): e(f'v_pk_add_f32 {vr(T0+2*i,2)}, {vr(T0+2*i,2)}, {vr(T1+2*i,2)}')
for i in range(8): e(f'v_cvt_pk_bf16_f32 v{T1+i}, v{T0+2*i}, v{T0+2*i+1}')
e(f"""buffer_store_dwordx4 {vr(T1,4)}, v{vL16}, {sr(SRD_WS)}, s{sA} offen sc1
buffer_store_dwordx4 {vr(T1+4,4)}, v{vL16}, {sr(SRD_WS)}, s{sA} offen offset:1024 sc1
v_subrev_u32 v{a0}, 16, v{V_GRP}""")
if OM:
    e(f'''v_mov_b64 {vr(T0,2)}, -1
    v_mov_b64 {vr(T0+2,2)}, -1
    s_mul_i32 s{sA}, s{S_C}, {8*KS}
    s_add_u32 s{sA}, s{sA}, s{sOl}
    s_add_u32 s{sSk}, s{sA}, {4*KS}
    buffer_store_dwordx4 {vr(T0,4)}, v{vOl}, {sr(SRD_WS)}, s{sA} offen sc1
    buffer_store_dwordx4 {vr(T0,4)}, v{vOl}, {sr(SRD_WS)}, s{sSk} offen sc1''')
sync(7)
if OPT['only'] != 1: lwait(7, addr=a0)
e('s_waitcnt vmcnt(0)')
publish(sB, a0)
stamp(6)
if OPT['abl'] == 33: e('s_endpgm')
e(f"""s_mul_i32 s{sA}, s{S_W}, {16*896}
s_lshl_b32 s{sB}, s{S_C}, 7
s_add_u32 s{sA}, s{sA}, s{sB}
s_lshl_b32 s{sB}, s{S_W}, 11
s_add_u32 s{sB}, s{sB}, {L_WO}""")
for ch in range(7):
    e(f"""s_add_u32 m0, s{sB}, {8192*ch}
    s_add_u32 s{sSk}, s{sA}, {64*896*ch}
    buffer_load_dwordx4 v{vWoD}, {sr(SRD_B)}, s{sSk} offen lds
    buffer_load_dwordx4 v{vWoD+1}, {sr(SRD_B)}, s{sSk} offen offset:1024 lds
    s_waitcnt vmcnt({OPT['wodepth'] if ch < 6 else 0})""")
WF, OF, OC = 8, 168, 224
arrive(8)
e(f"""buffer_load_dword v{a0}, v{vFy}, {sr(SRD_WS)}, 0 offen sc1
s_mul_i32 s{sA}, s{sCh0}, {YS}
s_lshl_b32 s{sSk}, s{S_J}, 7
s_add_u32 s{sA}, s{sA}, s{sSk}
s_add_u32 s{sA}, s{sA}, {WS_Y}
s_add_u32 s{sSk}, s{sA}, {8*YS}""")
lwait(8)
stamp(7)
if OPT['abl'] == 34: e('s_endpgm')
def wo_reads(k):
    r = []
    for t in range(4):
        for hf in range(2):
            r.append(f'ds_read_b64_tr_b16 {vr(WF + 16*(k%10) + 4*t + 2*hf, 2)}, v{vWoR + (t>>1)} offset:{4096*k + 512*hf + 8*(t&1)}')
    return r
for k in range(10): e('\n'.join(wo_reads(k)))
arrive(9)
poll(vFy, first_issued=True, sleep=OPT['ysleep'], reg=a0)
stamp(8)
if OPT['abl'] == 35: e('s_endpgm')
e(f"""buffer_load_dwordx4 {vr(OF,4)}, v{vYl}, {sr(SRD_WS)}, s{sA} offen sc1
buffer_load_dwordx4 {vr(OF+4,4)}, v{vYl}, {sr(SRD_WS)}, s{sSk} offen sc1
s_lshr_b32 s{sA}, s{S_J}, 4
s_lshl_b32 s{sA}, s{sA}, 10
s_and_b32 s{sB}, s{S_J}, 3
s_lshl_b32 s{sB}, s{sB}, 8
s_add_u32 s{sA}, s{sA}, s{sB}
s_and_b32 s{sB}, s{S_J}, 8
s_lshl1_add_u32 s{sA}, s{sB}, s{sA}
s_and_b32 s{sB}, s{S_J}, 4
s_add_u32 s{sA}, s{sA}, s{sB}
s_mul_i32 s{sA}, s{sA}, 1792
s_lshl1_add_u32 s{sA}, s{sCh0}, s{sA}
s_add_u32 s{sB}, s{sA}, {128*1792}
v_xor_b32 v{a0}, 64, v{vBw}""")
lwait(9)
e(f"""s_waitcnt vmcnt(0)
ds_write_b128 v{vXo}, {vr(OF,4)}
ds_write_b128 v{vXo}, {vr(OF+4,4)} offset:1024""")
for z in range(2):
    for hf in range(2):
        e(f'ds_read_b64_tr_b16 {vr(OF + 8 + 4*z + 2*hf, 2)}, v{vTr} offset:{64*z + 512*hf}')
e(f"""s_waitcnt lgkmcnt(0)
buffer_store_dwordx4 {vr(OF+8,4)}, v{vYs}, {sr(SRD_C)}, s{sA} offen {OUTM}
buffer_store_dwordx4 {vr(OF+12,4)}, v{vYs}, {sr(SRD_C)}, s{sB} offen {OUTM}""")
if OPT['only'] == 1:
    stamp(9); stamp(13); prof_out(); e('s_endpgm')
if OM: poll(vFo, sleep=8)
if OM == 4:
    e(f'''s_lshl2_add_u32 s{sA}, s{S_J}, s{S_W}
    s_lshr_b32 s{sA}, s{sA}, 1
    s_lshl_b32 s{sA}, s{sA}, {4 + FSH}
    s_add_u32 s{sA}, s{sA}, {F_O}
    v_and_b32 v{vFo}, 15, v{V_LANE}
    v_lshl_add_u32 v{vFo}, v{vFo}, {FSH}, s{sA}''')
sOk, sLast = 4, 18
for k in range(14): e(f's_add_u32 s{sOk+k}, s{sOl}, {4*KS*k}')
stamp(9)
e('s_barrier        ; released once the four attention waves have stored their rows')
stamp(10)
if OPT['osleep']: e(f"s_sleep {OPT['osleep']}")
if OM != 3: poll(vFo, sleep=OPT['hsleep'])
if OM: e(f's_min_u32 s{S_BOUND}, s{S_BOUND}, 0x4000')
stamp(11)
def o_load(k): return f'buffer_load_dwordx4 {vr(OF+4*k,4)}, v{vOl}, {sr(SRD_WS)}, s{sOk+k} offen sc1'
def o_chk(k):
    o = OF + 4*k
    return [f's_waitcnt vmcnt({13-k})', f'v_max3_u32 v6, v{o}, v{o+1}, v{o+2}', f'v_max_u32 v6, v6, v{o+3}', 'v_cmp_eq_u32 vcc, -1, v6']
for k in range(14): e(o_load(k))
if OM: e('\n'.join(o_chk(0)))
for k in range(14):
    o = OF + 4*k
    m = [f'v_mfma_f32_16x16x32_bf16 {vr(OC+4*t,4)}, {vr(WF + 16*(k%10) + 4*t, 4)}, {vr(o,4)}, {"0" if k == 0 else vr(OC+4*t,4)}' for t in range(4)]
    rd = wo_reads(k + 9) if 1 <= k <= 4 else []
    if k == 10: e('s_waitcnt lgkmcnt(0)')
    if OM:
        e(f's_cbranch_vccnz L_or{k}\nL_og{k}:')
        c = o_chk(k + 1) if k < 13 else ['', '', '', '']
        e('\n'.join([m[0]] + rd[:4] + [m[1]] + rd[4:] + [m[2], c[0], c[1], c[2], m[3], c[3]]))
    else:
        e(f's_waitcnt vmcnt({13-k})'); e('\n'.join(m + rd))
stamp(12)
e('s_nop 4')
for i in range(8): e(f'v_cvt_pk_bf16_f32 v{16+i}, v{OC+2*i}, v{OC+2*i+1}')
e(f"""ds_write_b128 v{vBw}, {vr(16,4)}
ds_write_b128 v{a0}, {vr(20,4)}
ds_read_b128 {vr(24,4)}, v{vBr}
ds_read_b128 {vr(28,4)}, v{vBr} offset:1024
s_or_b32 s{sA}, s2, s{S_W}
s_waitcnt lgkmcnt(1)
buffer_store_dwordx4 {vr(24,4)}, v{vOut}, {sr(SRD_C)}, s{sOut} offen {OUTM2}
s_waitcnt lgkmcnt(0)
buffer_store_dwordx4 {vr(28,4)}, v{vOut}, {sr(SRD_C)}, s{sOut+1} offen {OUTM2}
s_cbranch_scc1 L_noepoch""")
publish(sA, 6)
e('L_noepoch:')
if OPT['prof']:
    e('s_waitcnt vmcnt(0)')
stamp(13)
prof_out()
e('L_end:\ns_endpgm')
if OM:
    for k in range(14):
        c = o_chk(k)
        e(f'''L_or{k}:
        s_call_b64 s[90:91], L_re{k}
        {c[0]}
        L_oc{k}:
        {c[1]}
        {c[2]}
        {c[3]}
        s_cbranch_vccz L_og{k}
        {'s_sleep %d' % OPT['rsleep'] if OPT['rsleep'] else ''}
        {o_load(k)}
        s_sub_u32 s{S_BOUND}, s{S_BOUND}, 1
        s_waitcnt vmcnt(0)
        s_cbranch_scc0 L_oc{k}
        s_mov_b32 s{S_BOUND}, 0
        s_branch L_og{k}''')
    for k in range(14): e(f'L_re{k}:\n{o_load(k)}')
    e('s_setpc_b64 s[90:91]')
sec('idle')
ROLE[0] = 2
e('L_ssm_idle:')
if OPT['only'] == 2:
    arrive(1); e('s_endpgm')
hi()
e(f"""v_lshrrev_b32 v10, 3, v{V_LANE}
v_and_b32 v11, 7, v{V_LANE}
v_lshlrev_b32 v11, 4, v11
v_mul_u32_u24 v5, 896, v10
v_add_u32 v5, v5, v11
v_add_u32 v6, {7168-1024}, v5
s_lshl2_add_u32 s60, s{S_J}, s{S_W}
s_mul_i32 s61, s60, {16*896}
s_mul_i32 s62, s{S_W}, 14336
s_add_u32 s62, s62, {L_SSM}
s_mov_b32 s{SRD_A+2}, {2048*896}
s_mov_b32 s{SRD_A+3}, 0x20000
s_waitcnt lgkmcnt(0)
s_load_dword s{S_NONCE}, s[28:29], 0
s_mov_b64 s[{SRD_A}:{SRD_A+1}], s[4:5]""")
for c in range(7):
    e(f"""s_add_u32 m0, s62, {2048*c - 128*c}
    s_nop 0
    buffer_load_dwordx4 v5, {sr(SRD_A)}, s61 offen offset:{128*c} lds
    buffer_load_dwordx4 v6, {sr(SRD_A)}, s61 offen offset:{1024 + 128*c} lds""")
    if c == 1:
        srd(SRD_WS, 28, WS_SIZE)
        e(f"""; transposing read: row = 8*(cc&1)+r', byte = 8*(2G+(cc>>1))
        v_mul_u32_u24 v7, {QS}, v10
        v_add_u32 v7, v7, v11
        v_bfe_u32 v8, v{V_LANE}, 2, 2
        v_and_b32 v9, 1, v{V_LANE}
        v_lshl_or_b32 v8, v9, 3, v8
        v_xor_b32 v8, 3, v8
        v_lshl_add_u32 v8, v8, 7, s62
        v_and_b32 v9, 0x30, v{V_LANE}
        v_add_u32 v8, v8, v9
        v_and_b32 v9, 2, v{V_LANE}
        v_lshl_add_u32 v8, v9, 2, v8
        s_lshl_b32 s63, s60, 7
        s_add_u32 s63, s63, {WS_U}
        s_mul_i32 s65, s{S_J}, {US}
        v_mov_b32 v12, 0x3f803f80
        v_mov_b32 v13, v12
        v_mov_b64 v[14:15], v[12:13]
        v_lshlrev_b32 v9, 4, v{V_LANE}
        s_lshl2_add_u32 s66, s{S_TILE}, s{S_W}
        s_lshl_b32 s66, s66, 8
        s_mul_i32 s67, s{S_HG}, {QS}
        s_add_u32 s66, s66, s67
        s_add_u32 s66, s66, {WS_V + 112*QS}
        s_add_u32 s65, s65, {F_U}""")
e(f's_waitcnt lgkmcnt(0)\ns_add_u32 s{S_NONCE}, s{S_NONCE}, 1')
arrive(1)
def t_rd(c):
    return [f'ds_read_b64_tr_b16 {vr(16 + 8*c + 4*z + 2*hf, 2)}, v8 offset:{2048*c + 64*z + 512*(1-hf)}' for z in range(2) for hf in range(2)]
e('s_waitcnt vmcnt(12)'); stamp(1); e('\n'.join(t_rd(0)))
for c in range(7):
    if c < 6:
        e('s_waitcnt vmcnt(10)'); e('\n'.join(t_rd(c + 1)))
    e(f"""s_add_u32 s64, s63, {8*QS}
    s_waitcnt lgkmcnt({4 if c < 6 else 0})
    buffer_store_dwordx4 {vr(16+8*c,4)}, v7, {sr(SRD_WS)}, s63 offen sc1
    buffer_store_dwordx4 {vr(20+8*c,4)}, v7, {sr(SRD_WS)}, s64 offen sc1
    s_add_u32 s63, s63, {16*QS}""")
assert OPT['ur'] == 1
e(f'''; the column quad of ones that gives the softmax row sums
s_mov_b64 exec, 0xffff
buffer_store_dwordx4 v[12:15], v9, {sr(SRD_WS)}, s66 offen sc1''')
stamp(2)
e(f'''s_mov_b64 exec, 1
v_mov_b32 v5, s{S_NONCE}
s_cmp_lg_u32 s{S_W}, 0
s_waitcnt vmcnt(0)
s_barrier
s_cbranch_scc1 L_idle_end
buffer_store_dword v5, v9, {sr(SRD_WS)}, s65 offen sc1''')
e('L_idle_end:\ns_mov_b64 exec, -1'); stamp(4)
prof_out()
e('s_endpgm')
ORDER = [['pro', 'ssm0', 'mha0', 'idle', 'ssm', 'mha'], ['pro', 'ssm0', 'mha0', 'mha', 'ssm', 'idle'],
         ['pro', 'ssm0', 'mha0', 'ssm', 'mha', 'idle'], ['pro', 'ssm0', 'idle', 'mha0', 'mha', 'ssm']][OPT['ord']] + ['cold', 'gt', 'fb']
SEC.setdefault('cold', [])
def add_nt(n, pred):
    SEC[n] = [(l.replace(' lds', ' nt lds') if l.endswith(' lds') else l + ' nt') if pred(l) else l for l in SEC[n]]
for n in ('mha0', 'mha', 'gt'):
    if OPT['nt'] & 1: add_nt(n, lambda l: l.endswith(' lds') and sr(SRD_A) in l)
    if OPT['nt'] & 2: add_nt(n, lambda l: l.endswith(' lds') and sr(SRD_B) in l)
if OPT['nt'] & 4: add_nt('idle', lambda l: l.endswith(' lds'))
if OPT['nt'] & 8: add_nt('ssm0', lambda l: 'global_load' in l)
if OPT['nt'] & 16: add_nt('ssm', lambda l: l.endswith(' lds'))
if OPT['nt'] & 32: add_nt('ssm', lambda l: 'buffer_store' in l and sr(SRD_C) in l)
BODY = sum((SEC[n] for n in ORDER), [])
def sizes(lines):
    import subprocess, re, os, tempfile
    d = tempfile.mkdtemp()
    open(d + '/a.s', 'w').write('.amdgcn_target "amdgcn-amd-amdhsa--gfx950"\n.text\n' + '\n'.join(lines) + '\n')
    subprocess.check_call(['clang', '-x', 'assembler', '-target', 'amdgcn-amd-amdhsa', '-mcpu=gfx950', '-c', d + '/a.s', '-o', d + '/a.o'])
    o = subprocess.check_output(['llvm-objdump', '-d', '--mcpu=gfx950', d + '/a.o']).decode()
    return [4 * len(m.group(1).split()) for m in re.finditer(r'// [0-9A-F]{12}: ((?:[0-9A-F]{8} ?)+)', o)]
def is_ins(l):
    t = l.split(';')[0].strip()
    return bool(t) and not t.endswith(':')
def widen(l):
    import re
    t = l.split(';')[0].strip(); op = t.split()[0]
    if op.startswith('v_') and not op.startswith(('v_readfirstlane', 'v_swap', 'v_permlane', 'v_nop')):
        return l.replace(op, op + '_e64', 1)
    return None
if OPT['al']:
    sz = iter(sizes(BODY))
    I = [[l, next(sz) if is_ins(l) else 0] for l in BODY]
    res = []; addr = 0; nw = nn = 0
    for i, (l, n) in enumerate(I):
        if n == 8 and addr % 8 == 4:
            run = 0
            for l2, n2 in I[i:]:
                if n2 == 4: break
                run += n2 == 8
            cross = sum(1 for k in range(run) if (addr + 8*k) % 32 == 28)
            if cross:
                j = len(res) - 1; done = False; aj = addr
                while j >= 0 and res[j][1] in (0, 4):
                    aj -= res[j][1]
                    t = res[j][0].strip()
                    if t.startswith(('s_branch', 's_endpgm', 's_setpc')):
                        res.insert(j + 1, ['    s_nop 0', 4]); done = True; break
                    w = widen(res[j][0]) if res[j][1] == 4 and aj % 32 != 28 else None
                    if w:
                        res[j] = [w, 8]; done = True; nw += 1; break
                    j -= 1
                if not done and run >= OPT['alr']:
                    k = len(res)
                    while res[k-1][1] == 0: k -= 1
                    res.insert(k, ['    s_nop 0', 4]); done = True; nn += 1
                if done: addr += 4
        res.append([l, n]); addr += n
    BODY = [l for l, n in res]
    print('aligned: widened', nw, 'nops', nn, 'bytes', addr, file=sys.stderr)
hdr = open('header.txt').read()
txt = hdr + f'''; @launch grid=(256,1,1) block=(512,1,1) lds={L_TOT}
.amdgcn_target "amdgcn-amd-amdhsa--gfx950"
.text
.globl {KN}
.p2align 8
.type {KN},@function
{KN}:
''' + '\n'.join(BODY) + f'''
.section .rodata,"a"
.p2align 6
.amdhsa_kernel {KN}
  .amdhsa_next_free_vgpr 256
  .amdhsa_next_free_sgpr 102
  .amdhsa_accum_offset 256
  .amdhsa_group_segment_fixed_size 0
  .amdhsa_kernarg_size 104
  .amdhsa_user_sgpr_count 2
  .amdhsa_user_sgpr_kernarg_segment_ptr 1
  .amdhsa_system_sgpr_workgroup_id_x 1
.end_amdhsa_kernel
'''
open(sys.argv[1], 'w').write(txt)
```

```python
import sys, struct
def fl(x): return hex(struct.unpack('<I', struct.pack('<f', x))[0])

KN = 'concat_heads__ssm_conv_s4d__softmax_full_mha__prompt_kernel'
OPT = dict(rdf=0, rdv=0, rdt=0, only_st=0, ur=1, us=128, rd0=-1, rdm=0, probe=0, poff=0xc00000, nt=0, rdn=0, al=1, alr=6, fw=0, rsleep=0, hsleep=0, ord=3, nb=0, tb=13, tq=0, chkk=99, uw=-1, cw=0, s6=5, tskip=1, ones=1, pa=1, pr=2, pf=2, wgf=2, ax=0, bp=1, qa=7, n0=4, ilv=8, tlb=0, ulook=1, kgp=1, pad=0, ypad=0, omode=3, ksleep=0, usleep=4, obar=5, osleep=0, pubk=8, abl=0, touch=0, gs=0, kgw=0, xg=5, gx=0, pm=2, ps=0, rt=0, upub=1, kgx=0, outsc=0, ysleep=8, wodepth=4, wq_mid=0, pollk=99, rd=-1, rdrole=0, only=0, safe=0, rot=0, prof=0, fs=128, force_fb=0, wq_early=7, prio=1)
for a in sys.argv[2:]:
    k, v = a.split('=')
    assert k in OPT, k
    OPT[k] = int(v, 0)

FS = OPT['fs']
FSH = FS.bit_length() - 1
F_KV = 0x1000
F_O = F_KV + 1024 * FS
F_U = F_O + 1024 * FS
F_Y = F_U + 1024 * FS
F_H = F_Y + 1024 * FS
WS_K = 0x100000
WS_V = 0x300000
WS_O = 0x500000
WS_U = 0x700000
WS_Y = 0x900000
QS = 16384 + OPT['pad']; KS = 2 * QS; YS = 4096 + OPT['ypad']
S_KS = 57
WS_PROF = 0xb00000
F_U = 0xb80000 if OPT['us'] * OPT['ur'] > 4096 else F_U
US = OPT['us']
WS_SIZE = 0x1000000
L_SSM = 1024
L_W = 57344
L_RB = 65536
L_X = 114688
L_TOT = 163840
TROW = 288
TABSZ = 38 * TROW
L_TAB = L_SSM
P_SZ = 2 * TABSZ
P_UC = 1536
UC_S = 2240
P_KD = TABSZ + 1536
P_X = TABSZ
PS = 1552
PD = 4 * PS
L_KP = L_TAB + 4 * TABSZ
assert P_UC + 4 * UC_S <= TABSZ and P_KD + 1600 <= P_SZ and P_X + 8192 <= P_SZ and L_KP % 16 == 0 and L_KP + 2 * PD <= L_W
L_WO = L_SSM

S_WV, S_W, S_HG, S_C, S_TILE, S_J, S_H, S_NONCE, S_O0, S_ROT = range(30, 40)
SRD_WS, SRD_A, SRD_B, SRD_C = 40, 44, 48, 52
S_BOUND = 56
S_T0 = 58

SEC = {}
out = None
def sec(n):
    global out
    out = SEC.setdefault(n, [])
sec('pro')
def e(s):
    for l in s.split('\n'):
        l = l.strip()
        if l:
            out.append(l if l.endswith(':') else '    ' + l)
_lab = [0]
def lab(p):
    _lab[0] += 1
    return f'L_{p}_{_lab[0]}'
def vr(a, n):
    return f'v[{a}:{a+n-1}]' if n > 1 else f'v{a}'
def srd(d, b, n):
    e(f's_mov_b64 s[{d}:{d+1}], s[{b}:{b+1}]\ns_mov_b32 s{d+2}, {n}\ns_mov_b32 s{d+3}, 0x20000')
def sr(d): return f's[{d}:{d+3}]'

V_LANE, V_T, V_OWN, V_GRP, V_PROF = 0, 1, 2, 3, 4

ROLE = [0]
def stamp(i):
    if OPT['rd0'] == i and OPT['rdrole'] == ROLE[0]:
        e('s_memrealtime s[98:99]\ns_waitcnt lgkmcnt(0)')
    if OPT['rd'] == i and OPT['rdrole'] == ROLE[0]:
        e('s_memrealtime s[100:101]\ns_waitcnt lgkmcnt(0)')
    if (OPT['only_st'] >> (i + 32*min(ROLE[0], 1))) & 1 if OPT['only_st'] else OPT['prof'] > (i >= 14):
        e(f's_mem{"real" if OPT["rt"] else ""}time s[96:97]\ns_waitcnt lgkmcnt(0)\ns_sub_u32 s96, s96, s{98 if OPT["rt"] else S_T0}\nv_writelane_b32 v{V_PROF}, s96, {i}')
def prof_out():
    if OPT['rd'] >= 0 and OPT['rdrole'] == ROLE[0]:
        l = lab('pad')
        if ROLE[0] == 0 and not OPT['obar']: e('s_barrier')
        if ROLE[0] == 2: e('s_barrier')
        if OPT['rdf']: e(f"s_and_b32 s96, s2, {OPT['rdf']}\ns_cmp_lg_u32 s96, {OPT['rdv']}\ns_cbranch_scc1 L_end")
        if ROLE[0] == 0 and OPT['rdn']: e(f's_cmp_eq_u32 s{S_C}, 7\ns_cbranch_scc{2 - OPT["rdn"]} L_end')
        if OPT['rd'] == 98:
            e(f'''s_not_b32 s100, s100
            v_mov_b32 v5, s100
            v_mov_b32 v6, 0
            s_mov_b64 exec, 1
            global_atomic_umax v6, v5, s[26:27]
            s_waitcnt vmcnt(0)
            s_sleep 127
            s_sleep 127
            s_sleep 127
            s_sleep 127
            s_sleep 127
            global_load_dword v5, v6, s[26:27] sc1
            s_waitcnt vmcnt(0)
            v_readfirstlane_b32 s100, v5
            s_not_b32 s100, s100''')
        if OPT['probe']:
            op = {1: 'buffer_store_dwordx4 v[8:11], v5, s[52:55], s60 offen sc1', 2: 'buffer_load_dwordx4 v[8:11], v5, s[52:55], s60 offen sc1',
                  3: 'buffer_store_dwordx4 v[8:11], v5, s[52:55], s60 offen'}[OPT['probe'] & 3]
            if OPT['probe'] & 16: op = '\n'.join(op.replace('offen', f'offen offset:{1024*i}') for i in range(4))
            pre = 'buffer_load_dword v12, v6, s[52:55], s61 offen sc1\ns_waitcnt vmcnt(0)' if OPT['probe'] & 4 else ''
            if OPT['probe'] & 8: pre += '\nbuffer_store_dwordx4 v[8:11], v5, s[52:55], s60 offen sc1\ns_waitcnt vmcnt(0)\ns_sleep 40'
            e(f'''s_mov_b64 s[52:53], s[28:29]
            s_mov_b32 s54, 0x10000000
            s_mov_b32 s55, 0x20000
            L_prb:
            s_sleep 1
            s_memrealtime s[62:63]
            s_waitcnt lgkmcnt(0)
            s_sub_u32 s62, s62, s58
            s_cmp_lt_u32 s62, 3000
            s_cbranch_scc1 L_prb
            v_lshlrev_b32 v5, 4, v0
            v_mov_b32 v6, 0
            s_lshl2_add_u32 s60, s2, s{S_W}
            s_lshl_b32 s60, s60, {12 if OPT['probe'] & 16 else 10}
            s_add_u32 s60, s60, {OPT['poff']}
            s_mov_b32 s61, {OPT['poff'] + 0x180000}
            {pre}
            s_memrealtime s[62:63]
            s_waitcnt lgkmcnt(0)
            {op}
            s_waitcnt vmcnt(0)
            s_memrealtime s[100:101]
            s_waitcnt lgkmcnt(0)
            s_sub_u32 s100, s100, s62
            v_mov_b32 v8, s100
            s_lshl2_add_u32 s60, s2, s{S_W}
            s_lshl_b32 s60, s60, 2
            s_add_u32 s60, s60, {WS_PROF}
            buffer_store_dword v8, v6, s[52:55], s60 offen
            s_mul_i32 s100, s100, 20
            s_add_u32 s100, s100, s58''')
        elif OPT['rdm'] >= 3:
            key = {3: 's_and_b32 s96, s2, 7', 4: f's_mov_b32 s96, s{S_H}', 5: f's_mov_b32 s96, s{S_TILE}'}[OPT['rdm']]
            e(f'''s_sub_u32 s100, s100, s98
            s_sub_u32 s97, s98, s58
            s_mul_i32 s100, s100, 1000000
            s_mul_i32 s97, s97, 1000
            s_add_u32 s100, s100, s97
            s_add_u32 s100, s100, s2
            {key}
            s_lshl_b32 s96, s96, 2
            v_mov_b32 v5, s100
            v_mov_b32 v6, s96
            s_mov_b64 exec, 1
            global_atomic_umax v6, v5, s[26:27]
            s_waitcnt vmcnt(0)
            s_endpgm''')
        elif OPT['rdm'] == 2:
            e('''s_not_b32 s96, s58
            v_mov_b32 v5, s96
            v_mov_b32 v6, 0
            s_mov_b64 exec, 1
            global_atomic_umax v6, v5, s[26:27]
            s_waitcnt vmcnt(0)''' + '\ns_sleep 127' * 7 + '''
            global_load_dword v5, v6, s[26:27] sc1
            s_waitcnt vmcnt(0)
            v_readfirstlane_b32 s96, v5
            s_not_b32 s96, s96
            s_sub_u32 s100, s100, s96
            s_lshl_b32 s100, s100, 3
            s_add_u32 s100, s100, s96''')
        elif OPT['rdm']:
            e('s_sub_u32 s100, s100, s98')
            if OPT['rdt']: e(f"s_cmp_gt_u32 s100, {OPT['rdt']}\ns_cselect_b32 s100, 1280, 0")
            e('''v_mov_b32 v5, s100
            v_mov_b32 v6, 0
            s_mov_b64 exec, 1
            global_atomic_add v6, v5, s[26:27]
            s_waitcnt vmcnt(0)''' + '\ns_sleep 127' * 7 + '''
            global_load_dword v5, v6, s[26:27] sc1
            s_waitcnt vmcnt(0)
            v_readfirstlane_b32 s100, v5
            s_lshr_b32 s100, s100, 6
            s_add_u32 s100, s100, s58''')
        else: e('s_sub_u32 s100, s100, s98\ns_lshl_b32 s100, s100, 3\ns_add_u32 s100, s100, s58')
        e(f'''s_add_u32 s100, s100, 6000
        {l}:
        s_sleep 1
        s_memrealtime s[96:97]
        s_waitcnt lgkmcnt(0)
        s_sub_u32 s96, s96, s100
        s_cmp_lt_i32 s96, 0
        s_cbranch_scc1 {l}''')
    if OPT['prof']:
        e(f'''s_memrealtime s[96:97]
        s_waitcnt lgkmcnt(0)
        v_writelane_b32 v{V_PROF}, s96, 31
        v_writelane_b32 v{V_PROF}, s98, 30
        s_lshl_b32 s96, s2, 3
        s_add_u32 s96, s96, s{S_WV}
        s_lshl_b32 s96, s96, 7
        s_add_u32 s96, s96, {WS_PROF}
        v_lshlrev_b32 v{V_T}, 2, v{V_LANE}
        s_mov_b32 exec_hi, 0
        buffer_store_dword v{V_PROF}, v{V_T}, {sr(SRD_WS)}, s96 offen
        s_mov_b64 exec, -1''')

def arrive(stage):
    e(f'v_mov_b32 v{V_T}, {stage}\nds_write_b32 v{V_OWN}, v{V_T}')
def lwait(stage, addr=V_GRP, sleep=0):
    l = lab('lw')
    e(f'{l}:')
    if sleep: e(f's_sleep {sleep}')
    e(f'''ds_read_b32 v{V_T}, v{addr}
    s_waitcnt lgkmcnt(0)
    v_cmp_gt_u32 vcc, {stage}, v{V_T}''')
    if OPT['safe']:
        d = lab('ld')
        e(f'''s_cbranch_vccz {d}
        s_sub_u32 s{S_BOUND}, s{S_BOUND}, 1
        s_cbranch_scc0 {l}
        s_mov_b32 s{S_BOUND}, 0
        {d}:''')
    else:
        e(f's_cbranch_vccnz {l}')
def sync(stage):
    arrive(stage); lwait(stage)
def poll(voff, first_issued=False, sleep=0, reg=V_T):
    l, d, m = lab('pl'), lab('pd'), lab('pm')
    if first_issued == 2:
        e(f's_waitcnt vmcnt(0)\nv_cmp_ne_u32 vcc, s{S_NONCE}, v{reg}\ns_cbranch_vccnz {l}\n{d}:')
        cur = [n for n in SEC if SEC[n] is out][0]
        sec('cold')
        e(f'''{l}:
        buffer_load_dword v{reg}, v{voff}, {sr(SRD_WS)}, 0 offen sc1
        s_waitcnt vmcnt(0)
        v_cmp_ne_u32 vcc, s{S_NONCE}, v{reg}
        s_cbranch_vccz {d}
        s_sub_u32 s{S_BOUND}, s{S_BOUND}, 1
        s_cbranch_scc0 {l}
        s_mov_b32 s{S_BOUND}, 0
        s_branch {d}''')
        sec(cur)
        return
    if first_issued: e(f's_branch {m}')
    e(f'{l}:')
    if sleep: e(f's_sleep {sleep}')
    e(f'''buffer_load_dword v{reg}, v{voff}, {sr(SRD_WS)}, 0 offen sc1
    {m}:
    s_waitcnt vmcnt(0)
    v_cmp_ne_u32 vcc, s{S_NONCE}, v{reg}
    s_cbranch_vccz {d}
    s_sub_u32 s{S_BOUND}, s{S_BOUND}, 1
    s_cbranch_scc0 {l}
    s_mov_b32 s{S_BOUND}, 0
    {d}:''')
def publish(soff, tmp):
    if OPT['fw']:
        e(f'''v_mov_b32 v{V_T}, s{S_NONCE}
        v_lshlrev_b32 v{tmp}, 2, v{V_LANE}
        s_mov_b64 exec, {hex((1 << OPT['fw']) - 1)}
        buffer_store_dword v{V_T}, v{tmp}, {sr(SRD_WS)}, s{soff} offen sc1
        s_mov_b64 exec, -1'''.replace('s_mov_b64 exec, 0xffffffff', 's_mov_b32 exec_hi, 0'))
        return
    e(f'''v_mov_b32 v{V_T}, s{S_NONCE}
    v_mov_b32 v{tmp}, 0
    s_mov_b64 exec, 1
    buffer_store_dword v{V_T}, v{tmp}, {sr(SRD_WS)}, s{soff} offen sc1
    s_mov_b64 exec, -1''')
def swap23(d, s, t):
    e(f'''v_lshrrev_b32 v{t}, 1, v{s}
    v_xor_b32 v{t}, v{t}, v{s}
    v_and_b32 v{t}, 4, v{t}
    v_mul_u32_u24 v{t}, 3, v{t}
    v_xor_b32 v{d}, v{t}, v{s}''')
def rot_next(s):
    e(f's_add_u32 s{s}, s{s}, 1\ns_cmp_eq_u32 s{s}, 7\ns_cselect_b32 s{s}, 0, s{s}')

e(f'''s_cmp_ge_u32 s2, 256
s_cbranch_scc1 L_end''')
if OPT['prof']:
    e(f's_memtime s[{S_T0}:{S_T0+1}]\ns_memrealtime s[98:99]\nv_mov_b32 v{V_PROF}, 0')
if OPT['rd'] >= 0: e('s_memrealtime s[100:101]\ns_memrealtime s[58:59]\ns_memrealtime s[98:99]')
e(f'''s_load_dwordx16 s[4:19], s[0:1], 0
s_load_dwordx8 s[20:27], s[0:1], 64
s_load_dwordx2 s[28:29], s[0:1], 96
v_lshrrev_b32 v{V_OWN}, 6, v0
v_and_b32 v{V_LANE}, 63, v0
v_readfirstlane_b32 s{S_WV}, v{V_OWN}
v_lshlrev_b32 v{V_OWN}, 2, v{V_OWN}
v_mov_b32 v{V_T}, 0
ds_write2_b32 v{V_OWN}, v{V_T}, v{V_T} offset1:8
v_and_b32 v{V_GRP}, 3, v{V_LANE}
v_lshlrev_b32 v{V_GRP}, 2, v{V_GRP}
s_and_b32 s{S_HG}, s2, 1
s_bfe_u32 s60, s2, 0x20001
s_bfe_u32 s{S_C}, s2, 0x30003
s_lshr_b32 s61, s2, 6
s_lshl2_add_u32 s{S_TILE}, s60, s61
s_lshl1_add_u32 s{S_J}, s{S_TILE}, s{S_HG}
s_lshl3_add_u32 s{S_H}, s{S_HG}, s{S_C}
s_and_b32 s{S_W}, s{S_WV}, 3
s_mov_b32 s{S_BOUND}, 0x40000
s_mov_b32 s{S_KS}, {KS}
s_cmp_lt_u32 s{S_WV}, 4
s_cbranch_scc1 L_mha''')

VX = 144; VACC = 96; VWF = 32; VPK = 128
VV, VK, VS, VO, VQ = 32, 64, 96, 160, 224
vWd = [5, 6]; vXd = [7, 8, 9, 10]; vXr = [11, 12, 13, 14]; vWb, vW0, vW1 = 15, 16, 17
vRho, vG, vSt, vQd, vQr, vFl, vA, vB, vC = 18, 19, 20, 21, 22, 23, 24, 25, 26
vKo0, vKo1, vVo, vIdx = 27, 28, 29, 30
sXb, sWb, sCh, sCw, sLx, sTmp, sTmp2, sSt, sS1, sS2, sFl = range(60, 71)
sK, sV, sIt = 71, 72, 73
sFo, sO0, sO1 = 84, 85, 86
vOs, vQw = vRho, vG
vRb = [7, 8, 9]; vQx = [11, 12, 13]; vRr = 10
sMask = 74
sOdd = 76

sec('mha0')
e('L_mha:')
if OPT['prio']: e(f"s_setprio {OPT['pm']}")
e(f'''s_mul_i32 s{S_O0}, s{S_H}, 7
s_lshr_b32 s{S_O0}, s{S_O0}, 1''')
e(f'''v_lshrrev_b32 v{vA}, 3, v{V_LANE}          ; r
v_and_b32 v{vB}, 7, v{V_LANE}                    ; p
v_lshlrev_b32 v{vC}, 1, v{vA}
v_and_b32 v{vC}, 4, v{vC}
v_xor_b32 v{vC}, v{vC}, v{vB}
v_lshlrev_b32 v{vC}, 4, v{vC}
v_mul_u32_u24 v{vWd[0]}, 2688, v{vA}
v_add_u32 v{vWd[0]}, v{vWd[0]}, v{vC}
v_add_u32 v{vWd[1]}, {8*2688-1024}, v{vWd[0]}
v_lshrrev_b32 v{vC}, 1, v{vA}
v_xor_b32 v{vC}, v{vC}, v{vB}
v_lshlrev_b32 v{vC}, 4, v{vC}
v_mul_u32_u24 v{vA}, 896, v{vA}
v_add_u32 v{vXd[0]}, v{vA}, v{vC}
v_xor_b32 v{vC}, 64, v{vC}
v_add_u32 v{vXd[1]}, v{vA}, v{vC}
v_add_u32 v{vXd[1]}, {7168-1024}, v{vXd[1]}
v_add_u32 v{vXd[2]}, {2*(7168-1024)}, v{vXd[0]}
v_add_u32 v{vXd[3]}, {2*(7168-1024)}, v{vXd[1]}
s_lshl2_add_u32 s{sXb}, s{S_TILE}, s{S_W}
s_lshl_b32 s{sFl}, s{S_H}, 6
s_add_u32 s{sFl}, s{sFl}, s{S_TILE if OPT['wgf'] else sXb}
s_lshl_b32 s{sFl}, s{sFl}, {FSH}
s_add_u32 s{sFl}, s{sFl}, {F_KV}
s_mul_i32 s{sXb}, s{sXb}, {32*896}
s_mul_i32 s{sTmp2}, s{S_HG}, 3
s_lshr_b32 s{sTmp}, s2, 6
s_add_u32 s{sTmp2}, s{sTmp2}, s{sTmp}
s_mul_i32 s{sWb}, s{S_HG}, 7
s_add_u32 s{sWb}, s{sWb}, s{S_C}
s_add_u32 s{sWb}, s{sWb}, 7
s_cmp_eq_u32 s{S_C}, 7
s_cselect_b32 s{sWb}, {'s%d' % sTmp2 if OPT['tq'] else '0x100000'}, s{sWb}
s_cselect_b32 s{sS1}, 1, s{S_W}
s_lshl_b32 s{sWb}, s{sWb}, 7
s_mul_i32 s{sTmp}, s{S_W}, {16*2688}
s_add_u32 s{sWb}, s{sWb}, s{sTmp}
s_mul_i32 s{sLx}, s{S_W}, 12288
s_add_u32 s{sLx}, s{sLx}, {L_X}
s_lshl_b32 s{sS1}, s{sS1}, 11
s_add_u32 s{sS1}, s{sS1}, {L_W}
s_mov_b32 s{SRD_A+2}, {2048*896}
s_mov_b32 s{SRD_A+3}, 0x20000
s_mov_b32 s{SRD_B+2}, {448*1344*2}
s_mov_b32 s{SRD_B+3}, 0x20000
s_mov_b32 m0, s{sLx}
s_waitcnt lgkmcnt(0)
s_mov_b64 s[{SRD_A}:{SRD_A+1}], s[18:19]
s_mov_b64 s[{SRD_B}:{SRD_B+1}], s[20:21]
s_load_dword s{S_NONCE}, s[28:29], 0''')
stamp(22)
sWo = 88
def w_lines(st):
    return [f's_add_u32 m0, s{sS1}, {8192*st}', f's_add_u32 s{sWo+st}, s{sWb}, {64*2688*st}'] + \
           [f'buffer_load_dwordx4 v{vWd[i]}, {sr(SRD_B)}, s{sWo+st} offen offset:{1024*i} lds' for i in range(2)]
def x_chunk(st):
    return [f's_add_u32 m0, s{sLx}, {(st%3)*4096 - 128*st}', 's_nop 0'] + \
           [f'buffer_load_dwordx4 v{vXd[i]}, {sr(SRD_A)}, s{sXb} offen offset:{1024*i + 128*st} lds' for i in range(4)]
DM = []
for l in [x_chunk(0), w_lines(0)] + [w_lines(i) for i in range(1, 7)] + [x_chunk(1), x_chunk(2)]:
    DM += [l[:3]] + [[x] for x in l[3:]]
DM[0] = DM[0][2:]
for i, g in enumerate(DM[:OPT['n0']]):
    if i == OPT['nb']:
        e(f's_cmp_lg_u32 s{S_C}, 7\ns_cbranch_scc1 L_bar0\ns_waitcnt lgkmcnt(0)\nL_bar0:\ns_barrier'); stamp(23)
        if OPT['only'] == 1: e('s_endpgm')
    e('\n'.join(g))
DM = DM[OPT['n0']:]
stamp(24)
if OPT['ord'] not in (1, 3): e('s_branch L_mha1')
sec('mha')
e('L_mha1:')
stamp(25)
sec('tmp')
srd(SRD_WS, 28, WS_SIZE)
ONES = f'''s_bitcmp1_b32 s{S_H}, 0
s_cselect_b32 s{sTmp}, 0, 7
v_cmp_eq_u32 vcc, s{sTmp}, v{vA}
s_lshl_b32 s{sTmp}, s{S_O0}, 1
s_sub_u32 s{sTmp}, s{S_HG}, s{sTmp}
s_add_u32 s{sTmp}, s{sTmp}, 112
v_mov_b32 v{vB}, s{sTmp}
v_cndmask_b32 v{vA}, v{vA}, v{vB}, vcc
''' if OPT['ones'] else ''
FIX = f'v_cmp_lt_u32 vcc, 7, v{vB}\n'
FOM = f'''s_lshl_b32 s{sFo}, s{sTmp2}, 4
s_add_u32 s{sFo}, s{sFo}, s{S_H}
s_lshl_b32 s{sFo}, s{sFo}, {FSH}
s_add_u32 s{sFo}, s{sFo}, {F_O}
''' if OPT['omode'] != 3 else ''
e(f'''v_and_b32 v{vA}, 31, v{V_LANE}
v_lshrrev_b32 v{vG}, 5, v{V_LANE}''')
swap23(vRho, vA, vB)
e(f'''v_bfe_u32 v{vB}, v{vRho}, 1, 3
v_xor_b32 v{vB}, v{vB}, v{vG}
v_lshlrev_b32 v{vB}, 4, v{vB}
v_lshl_add_u32 v{vB}, v{vRho}, 7, v{vB}
v_add_u32 v{vXr[0]}, s{sLx}, v{vB}
v_xor_b32 v{vXr[1]}, 32, v{vXr[0]}
v_xor_b32 v{vXr[2]}, 64, v{vXr[0]}
v_xor_b32 v{vXr[3]}, 0x60, v{vXr[0]}
v_and_b32 v{vB}, 3, v{V_LANE}                     ; cc
v_lshrrev_b32 v{vC}, 1, v{vB}
v_and_b32 v{vQd}, 1, v{vB}
v_lshl_or_b32 v{vC}, v{vQd}, 1, v{vC}
v_bfe_u32 v{vQd}, v{V_LANE}, 4, 1
v_lshl_or_b32 v{vB}, v{vQd}, 2, v{vB}              ; mq natural
v_lshl_or_b32 v{vC}, v{vQd}, 2, v{vC}
v_bfe_u32 v{vQd}, v{V_LANE}, 2, 2                  ; r'
v_lshl_or_b32 v{vFl}, v{vG}, 3, v{vQd}             ; 8g + r'
v_lshlrev_b32 v{vQr}, 6, v{vFl}
v_lshl_add_u32 v{vQr}, v{vC}, 3, v{vQr}
v_add_u32 v{vQr}, {L_X + 4096}, v{vQr}
s_cmp_eq_u32 s{S_HG}, 0
s_cselect_b64 vcc, -1, 0
v_cndmask_b32 v{vB}, v{vB}, v{vC}, vcc             ; K slabs use the exchanged order, V slabs the natural one
v_lshlrev_b32 v{vWb}, 7, v{vFl}
v_lshl_add_u32 v{vWb}, v{vB}, 3, v{vWb}
v_lshrrev_b32 v{vQd}, 1, v{vQd}
v_lshl_add_u32 v{vWb}, v{vQd}, 6, v{vWb}
v_add_u32 v{vW0}, {L_W}, v{vWb}
v_lshlrev_b32 v{vB}, 4, v{vRho}
v_mad_u32_u24 v{vB}, v{vG}, s{S_KS}, v{vB}
v_lshrrev_b32 v{vC}, 2, v{vA}
v_mul_u32_u24 v{vC}, {QS}, v{vC}
v_lshl_add_u32 v{vC}, v{vG}, 6, v{vC}
v_and_b32 v{vQd}, 3, v{vA}
v_lshl_add_u32 v{vC}, v{vQd}, 4, v{vC}
v_cndmask_b32 v{vSt}, v{vC}, v{vB}, vcc
s_lshl2_add_u32 s{sTmp}, s{S_TILE}, s{S_W}
s_lshl_b32 s{sTmp2}, s{sTmp}, 9
s_add_u32 s{sTmp2}, s{sTmp2}, {WS_K}
s_lshl_b32 s{sTmp}, s{sTmp}, 8
s_add_u32 s{sTmp}, s{sTmp}, {WS_V}
s_movk_i32 s{sS2}, 128
s_cmp_eq_u32 s{S_HG}, 0
s_cselect_b32 s{sSt}, s{sTmp2}, s{sTmp}
s_cselect_b32 s{sS2}, {2*KS}, s{sS2}
s_mul_i32 s{sTmp}, s{S_C}, {8*KS}
s_add_u32 s{sSt}, s{sSt}, s{sTmp}
v_lshrrev_b32 v{vB}, 2, v{V_LANE}
v_mul_u32_u24 v{vB}, 2688, v{vB}
v_lshl_add_u32 v{vQd}, v{vQd}, 4, v{vB}
s_lshl_b32 s82, s{S_O0}, 4
s_mul_i32 s{sTmp}, s{S_W}, {16*2688}
s_add_u32 s82, s82, s{sTmp}
s_lshr_b32 s{sTmp}, s{S_O0}, 3
s_add_u32 s{sTmp2}, s{S_O0}, 3
s_lshr_b32 s{sTmp2}, s{sTmp2}, 3
s_sub_u32 s{sTmp2}, s{sTmp2}, s{sTmp}
v_bfe_u32 v{vC}, v{V_LANE}, 4, 1
v_mul_u32_u24 v{vC}, s{sTmp2}, v{vC}
v_lshl_add_u32 v{vC}, v{vG}, 3, v{vC}
v_add_u32 v{vC}, s{sTmp}, v{vC}
v_and_b32 v{vB}, 15, v{V_LANE}
{FIX}v_and_b32 v{vB}, {3 if OPT['wgf'] else 15}, v{V_LANE}
v_lshl_add_u32 v{vC}, v{vC}, 6, v{vB}
s_lshl_b32 s{sTmp}, s{S_W}, {2 if OPT['wgf'] else 4}
v_add_u32 v{vC}, s{sTmp}, v{vC}
v_lshlrev_b32 v{vC}, {FSH}, v{vC}
v_add_u32 v{vFl}, {F_KV}, v{vC}
s_lshl3_add_u32 s{sTmp}, s{S_W}, s{S_HG}
s_mul_i32 s{sTmp}, s{sTmp}, {US}
s_add_u32 s{sTmp}, s{sTmp}, {F_U}
v_mul_u32_u24 v{vB}, {2*US}, v{vB}
v_add_u32 v{vB}, s{sTmp}, v{vB}
v_cndmask_b32 v{vFl}, v{vFl}, v{vB}, vcc
v_lshlrev_b32 v{vKo0}, 4, v{vA}
v_mad_u32_u24 v{vKo0}, v{vG}, s{S_KS}, v{vKo0}
v_add_u32 v{vKo1}, {2*KS}, v{vKo0}
v_lshrrev_b32 v{vA}, 2, v{vRho}
{ONES}v_mul_u32_u24 v{vA}, {QS}, v{vA}
v_lshl_add_u32 v{vA}, v{vG}, 6, v{vA}
v_and_b32 v{vB}, 3, v{V_LANE}
v_lshl_add_u32 v{vVo}, v{vB}, 4, v{vA}
v_mov_b32 v{vIdx}, 0xdddddddd
s_mul_i32 s{sTmp}, s{S_O0}, {KS}
s_lshl_b32 s{sK}, s{S_W}, 13
s_add_u32 s{sK}, s{sK}, s{sTmp}
s_add_u32 s{sK}, s{sK}, {WS_K}
s_lshl_b32 s{sV}, s{S_W}, 12
s_add_u32 s{sV}, s{sV}, s{sTmp}
s_add_u32 s{sV}, s{sV}, {WS_V}
s_lshl2_add_u32 s{sTmp2}, s{S_TILE}, s{S_W}
{FOM}s_lshl_b32 s{sTmp2}, s{sTmp2}, 9
s_add_u32 s{sO0}, s{sTmp}, s{sTmp2}
s_add_u32 s{sO0}, s{sO0}, {WS_O}
s_add_u32 s{sO1}, s{sO0}, {2*KS}
s_bitcmp1_b32 s{S_H}, 0
s_cselect_b64 s[{sOdd}:{sOdd+1}], -1, 0
; per-lane multipliers for Q: scale*log2(e), zero on the four slots that belong to the neighbour head
v_mov_b32 v{vC}, 0x3e8b97f6
v_cmp_gt_u32 vcc, 32, v{V_LANE}
s_and_b64 s[78:79], vcc, s[{sOdd}:{sOdd+1}]
s_nor_b64 s[80:81], vcc, s[{sOdd}:{sOdd+1}]
v_cndmask_b32 v{vA}, v{vC}, 0, s[78:79]
v_cndmask_b32 v{vB}, v{vC}, 0, s[80:81]
s_mov_b32 s78, 0x3f803f80
s_mov_b32 s79, s78
v_xor_b32 v{vW1}, 64, v{vW0}
v_lshlrev_b32 v{vOs}, 4, v{vRho}
v_mad_u32_u24 v{vOs}, v{vG}, s{S_KS}, v{vOs}
v_lshl_add_u32 v{vQw}, v{V_LANE}, 4, s{sLx}''')
srd(SRD_C, 28, WS_SIZE)
def o_stores(r0, r1, tag):
    e(f'''s_bitcmp1_b32 s{S_H}, 0
    s_cbranch_scc1 L_ost_odd{tag}
    buffer_store_dwordx4 {vr(r0,4)}, v{vOs}, {sr(SRD_WS)}, s{sO0} offen sc1
    s_mov_b32 exec_hi, 0
    buffer_store_dwordx4 {vr(r1,4)}, v{vOs}, {sr(SRD_WS)}, s{sO1} offen sc1
    s_not_b64 exec, exec
    buffer_store_dwordx2 {vr(r1,2)}, v{vOs}, {sr(SRD_WS)}, s{sO1} offen sc1
    s_branch L_ost_done{tag}
    L_ost_odd{tag}:
    buffer_store_dwordx4 {vr(r1,4)}, v{vOs}, {sr(SRD_WS)}, s{sO1} offen sc1
    s_mov_b32 exec_hi, 0
    buffer_store_dwordx2 {vr(r0+2,2)}, v{vOs}, {sr(SRD_WS)}, s{sO0} offen offset:8 sc1
    s_not_b64 exec, exec
    buffer_store_dwordx4 {vr(r0,4)}, v{vOs}, {sr(SRD_WS)}, s{sO0} offen sc1
    L_ost_done{tag}:
    s_mov_b64 exec, -1''')
GS = 0
AB = [l for l in SEC.pop('tmp') if not l.strip().startswith(';')]
sec('mha')
def scc_pending(i):
    return i < len(AB) and AB[i].strip().startswith(('s_cselect', 's_mov_b32 s75'))
pos = 0
for g in DM:
    n = pos + OPT['ilv']
    while scc_pending(n): n += 1
    e('\n'.join(AB[pos:n])); pos = n
    e('\n'.join(g))
e('\n'.join(AB[pos:]))
stamp(0)
def x_reads(s):
    return [f'ds_read_b128 {vr(VX + 16*s + 4*ks, 4)}, v{vXr[ks]} offset:{(s%3)*4096}' for ks in range(4)]
e('s_waitcnt vmcnt(22)')
e('\n'.join(x_reads(0)))
e('s_waitcnt vmcnt(8) lgkmcnt(0)')
arrive(1)
stamp(1)
e('\n'.join(x_chunk(3)))
e('s_waitcnt vmcnt(8)')
e('\n'.join(x_reads(1)))
lwait(1)
e(f's_add_u32 s{S_NONCE}, s{S_NONCE}, 1')
stamp(2)
def w_reads(s):
    r = []
    for ks in range(4):
        for ct in range(2):
            for hf in range(2):
                d = VWF + 32 * (s & 1) + 8 * ks + 4 * ct + 2 * hf
                r.append(f'ds_read_b64_tr_b16 {vr(d,2)}, v{(vW0, vW1)[ct]} offset:{s*8192 + ks*2048 + hf*512}')
    return r
if OPT['tskip']: e(f's_cmp_eq_u32 s{S_C}, 7\ns_cbranch_scc1 L_gemm_t')
e('\n'.join(w_reads(0)))
e(f'''s_waitcnt lgkmcnt(0)
s_cmp_lg_u32 s{S_HG}, 0
s_cbranch_scc1 L_gemm_v''')
sQb, sQc = 82, 83
NE = OPT['wq_early']
def wq_dma(st):
    return [f's_add_u32 m0, s{sLx}, {4096 + 1024*st}\ns_add_u32 s83, s82, {64*2688*st}', '', f'buffer_load_dwordx4 v{vQd}, {sr(SRD_B)}, s83 offen lds']
SPIN = []
def gemm1(vpart):
    for s in range(7):
        M = []
        for ks in range(4):
            for ct in range(2):
                wf = vr(VWF + 32 * (s & 1) + 8 * ks + 4 * ct, 4); xf = vr(VX + 16 * s + 4 * ks, 4)
                acc = vr(VACC + 16 * ct, 16)
                a, b = (xf, wf) if vpart else (wf, xf)
                M.append(f'v_mfma_f32_32x32x16_bf16 {acc}, {a}, {b}, {"0" if s == 0 and ks == 0 else acc}')
        gaps = [[] for _ in range(8)]
        tag = f'{"v" if vpart else "k"}{s}'
        pre = []
        dm = []
        def add(l): dm.extend([(l[0], l[2])] + [(None, x) for x in l[3:]])
        if s <= 2: add(x_chunk(s + 4))
        if s == 3:
            for i in range(min(NE, 4)): add(wq_dma(i))
        if s == 4:
            for i in range(4, NE): add(wq_dma(i))
        n = {0: 8, 1: 8, 2: 8, 3: 4 + min(NE, 4), 4: NE}.get(s)
        for i, (m, l) in enumerate(dm):
            if m: (pre if i == 0 else gaps[i - 1]).append(m)
            gaps[i].append(l)
        if s < 6:
            wr = w_reads(s + 1)
            for i, (p, q) in enumerate(((0, 3), (3, 6), (6, 9), (9, 12), (12, 16))): gaps[i] += wr[p:q]
            if s <= 4: gaps[OPT['xg']] += [f's_waitcnt vmcnt({n})'] + x_reads(s + 2)
            gaps[7] += [f's_waitcnt lgkmcnt({4 if s == 4 and OPT["s6"] != 4 else 0})']
        if s == OPT['s6'] and (OPT['uw'] == 6 or OPT['cw'] == 6): gaps[6] += [f'v_mov_b32 v{V_T}, 6', f'ds_write_b32 v{V_OWN}, v{V_T}']
        if s == 5:
            gaps[7] += [f'v_add_u32 v31, 16, v{V_GRP}', f'ds_read_b32 v31, v31']
        if s == 6 and NE == 7:
            gaps[OPT['qa']] += ['s_waitcnt vmcnt(0)', f'v_mov_b32 v{V_T}, 7', f'ds_write_b32 v{V_OWN}, v{V_T}']
        e('\n'.join(pre))
        if OPT['gx'] & 1 or vpart == 2: M = ['s_nop 0'] * 8
        if OPT['gx'] & 2 or vpart == 2: gaps = [[x for x in g if 'tr_b16' not in x] for g in gaps]
        for i in range(8):
            e(M[i]); e('\n'.join(gaps[i]))
        stamp(14 + s)
if OPT['tskip']:
    sec('gt'); e('L_gemm_t:'); gemm1(2); e('s_branch L_gemm_done'); sec('mha')
else: SEC['gt'] = []
gemm1(False)
e('s_branch L_gemm_done\nL_gemm_v:')
gemm1(True)
e('L_gemm_done:')
stamp(3)
e(f"""s_add_u32 s{sS1}, s{sSt}, s{sS2}
s_add_u32 s{sXb}, s{sSt}, {4*KS}
s_add_u32 s{sCw}, s{sS1}, {4*KS}
s_cmp_eq_u32 s{S_C}, 7
s_waitcnt lgkmcnt(0)
s_cbranch_scc1 L_nokv
s_nop 4""")
for q, so in enumerate((sSt, sS1, sXb, sCw)):
    for i in range(4*q, 4*q+4):
        e(f'v_cvt_pk_bf16_f32 v{VPK + i}, v{VACC + 2*i}, v{VACC + 2*i + 1}')
    e(f'buffer_store_dwordx4 {vr(VPK+4*q,4)}, v{vSt}, {sr(SRD_WS)}, s{so} offen sc1')
e('L_nokv:')
assert OPT['wgf'] and OPT['ones'] and OPT['pf'] == 2
def kv_loads(buf, i, srdn=SRD_C):
    return [f'buffer_load_dwordx4 {vr(VK + 8*buf, 4)}, v{vKo0}, {sr(srdn)}, s{sK} offen offset:{512*i} sc1',
            f'buffer_load_dwordx4 {vr(VK + 8*buf + 4, 4)}, v{vKo1}, {sr(srdn)}, s{sK} offen offset:{512*i} sc1',
            f'buffer_load_dwordx4 {vr(VV + 8*buf, 4)}, v{vVo}, {sr(srdn)}, s{sV} offen offset:{256*i} sc1',
            f'buffer_load_dwordx4 {vr(VV + 8*buf + 4, 4)}, v{vVo}, {sr(srdn)}, s{sV} offen offset:{256*i + 128} sc1']
fill = [f'v_mov_b64 {vr(VV+2*i,2)}, s[78:79]' for i in range(12, 16)] + [f'v_subrev_u32 v{vRr}, {L_X - L_RB}, v{vQw}', 's_mov_b64 s[80:81], -1']
for s in range(3):
    fill += f"""s_add_u32 s{sTmp}, s{S_W}, {1+s}
    s_and_b32 s{sTmp}, s{sTmp}, 3
    s_sub_u32 s{sTmp}, s{sTmp}, s{S_W}
    s_mul_i32 s{sTmp}, s{sTmp}, 12288
    v_add_u32 v{vQx[s]}, s{sTmp}, v{vQw}
    v_subrev_u32 v{vRb[s]}, {L_X - L_RB - 4096*s}, v{vQx[s]}""".split('\n')
def count_in(n):
    e(f"""v_mov_b32 v{V_T}, 1
    v_mov_b32 v31, 0
    s_waitcnt vmcnt({n})
    s_mov_b64 exec, 1
    ds_add_rtn_u32 v{vSt}, v31, v{V_T} offset:32
    s_mov_b64 exec, -1""")
def count_out(n):
    e(f's_waitcnt lgkmcnt({n})\nv_readfirstlane_b32 s{sTmp2}, v{vSt}\ns_cmp_lg_u32 s{sTmp2}, 3\ns_cbranch_scc1 L_nopub')
    publish(sFl, 31)
    e('L_nopub:'); stamp(5)
NM = max(NE, OPT['wq_mid'])
for st in range(NE, NM): e('\n'.join(wq_dma(st)))
stamp(4)
e(f'v_cmp_gt_u32 vcc, 1, v31\ns_cbranch_vccz L_eok\nv_add_u32 v31, 16, v{V_GRP}')
lwait(1, addr=31)
e('L_eok:')
if NE < 7:
    e('\n'.join(fill)); fill = []
    count_in(NM - NE)
    if NM == 7:
        e('s_waitcnt vmcnt(0)'); arrive(7); count_out(1)
    else:
        count_out(0)
        for st in range(NM, 7): e('\n'.join(wq_dma(st)))
        e('s_waitcnt vmcnt(0)'); arrive(7)
lwait(7)
stamp(6)
QB = [80, 84, 88, 92, 112, 116, 120, 124]
def q_reads(k):
    s, ks = divmod(k, 4)
    return [f'ds_read_b64_tr_b16 {vr(QB[k%8] + 2*hf, 2)}, v{vQr} offset:{ks*12288 + s*1024 + hf*256}' for hf in range(2)]
for k in range(6): e('\n'.join(q_reads(k)))
e('\n'.join(fill[:12])); fill = fill[12:]
zi = 0
PK = OPT['pubk'] if NE == 7 else -99
for k in range(28):
    extra = 1 if PK < k <= PK + 5 else 0
    e(f's_waitcnt lgkmcnt({min(10, 2*(27-k)) + extra})')
    e(f'v_mfma_f32_32x32x16_bf16 {vr(VACC,16)}, {vr(QB[k%8], 4)}, {vr(VX + 4*k, 4)}, {"0" if k == 0 else vr(VACC,16)}')
    if k + 6 < 28: e('\n'.join(q_reads(k + 6)))
    while zi < 40 and VX + 2*zi + 1 < VX + 4*k - 4 and zi < 2*k:
        e(f'v_mov_b64 {vr(VX + 2*zi, 2)}, 0'); zi += 1
    if k >= 22 or k < 2:
        e('\n'.join(fill[:4])); fill = fill[4:]
    if k == PK: count_in(0)
    if k == PK + OPT['wgf']: count_out(2*OPT['wgf'])
    if k == OPT['pollk']: e(f'buffer_load_dword v31, v{vFl}, {sr(SRD_WS)}, 0 offen sc1')
    if k == OPT['chkk']:
        e(f's_waitcnt vmcnt(0)\nv_cmp_ne_u32 vcc, s{S_NONCE}, v31\ns_mov_b64 s[80:81], vcc\ns_cbranch_vccnz L_kv_late')
        for t in range(2): e('\n'.join(kv_loads(t, t)))
        e('L_kv_late:')
assert zi == 40 and VX == VS + 48 and not fill
stamp(7)
e('s_nop 11')
for r in range(16):
    m = vA if r < 4 else (vB if r >= 12 else vC)
    e(f'v_mul_f32 v{VACC + r}, v{m}, v{VACC + r}')
for i in range(8):
    e(f'v_cvt_pk_bf16_f32 v{VQ + 24 + i}, v{VACC + 2*i}, v{VACC + 2*i + 1}')
e(f"""ds_write_b128 v{vQw}, {vr(VQ+24,4)}
ds_write_b128 v{vQw}, {vr(VQ+28,4)} offset:1024""")
arrive(8)
lwait(8)
for s in range(3):
    e(f'ds_read_b128 {vr(VQ+8*s,4)}, v{vQx[s]}\nds_read_b128 {vr(VQ+8*s+4,4)}, v{vQx[s]} offset:1024')
PF = OPT['pf']
if OPT['chkk'] < 28: e('s_cmp_eq_u64 s[80:81], 0\ns_cbranch_scc1 L_kv_done')
poll(vFl, first_issued=OPT['pollk'] < 28 and OPT['chkk'] > 27, reg=31, sleep=OPT['ksleep'])
for t in range(PF): e('\n'.join(kv_loads(t, t)))
e('L_kv_done:')
stamp(8)
OM = OPT['omode']
if OM:
    e(f'''s_lshr_b32 s{sTmp}, s{S_O0}, 3
    s_add_u32 s{sTmp2}, s{S_O0}, 3
    s_lshr_b32 s{sTmp2}, s{sTmp2}, 3
    s_sub_u32 s{sTmp2}, s{sTmp2}, s{sTmp}
    s_lshl_b32 s{sTmp2}, s{sTmp2}, 6
    s_lshl_b32 s{sTmp}, s{sTmp}, 6
    s_lshl2_add_u32 s{sSt}, s{S_TILE}, s{S_W}
    s_add_u32 s{sTmp}, s{sTmp}, s{sSt}
    s_lshl_b32 s{sTmp}, s{sTmp}, {FSH}
    s_add_u32 s{sTmp}, s{sTmp}, {F_Y}
    v_and_b32 v{vFl}, 1, v{V_LANE}
    v_mul_u32_u24 v{vFl}, s{sTmp2}, v{vFl}
    v_and_b32 v31, 2, v{V_LANE}
    v_lshl_add_u32 v{vFl}, v31, 8, v{vFl}
    v_lshl_add_u32 v{vFl}, v{vFl}, {FSH}, s{sTmp}''')
def qk(buf, slot, js):
    d = vr(VS + 16*slot, 16)
    return f'v_mfma_f32_32x32x16_bf16 {d}, {vr(VK + 8*buf + 4*js, 4)}, {vr(VQ + 8*slot + 4*js, 4)}, {"0" if js == 0 else d}'
def pv(buf, slot, js):
    return f'v_smfmac_f32_32x32x32_bf16 {vr(VO + 16*slot, 16)}, {vr(VV + 8*buf + 4*js, 4)}, {vr(VS + 16*slot + 8*js, 8)}, v{vIdx}'
def exps(s): return [f'v_exp_f32 v{VS + 16*s + r}, v{VS + 16*s + r}' for r in range(16)]
SPREAD = []
def unit(t, s):
    ex = exps(s)
    if OPT['ax'] & 16 and s in (0, 1, 2):
        pass
    nb = t if s < 3 else (t + 1) & 3
    pb = t if s > 0 else (t - 1) & 3
    if s == 3: e(f's_waitcnt vmcnt({4*PF-4})')
    e(qk(nb, (s+1) & 3, 0)); e('\n'.join(ex[0:4]))
    e(qk(nb, (s+1) & 3, 1)); e('\n'.join(ex[4:8]))
    e(pv(pb, (s-1) & 3, 0))
    if s == 1:
        kl = kv_loads((t + PF) & 3, t + PF)
        if OPT['ax'] & 1: kl = [x for x in kl if 'exec' not in x]
        if OPT['ax'] & 2: kl = [x for x in kl if 'buffer' not in x]
        if OPT['ax'] & 4: kl = [x.replace(' sc1', '') for x in kl]
        if OPT['ax'] & 8: SPREAD.extend(kl); kl = []
        e('\n'.join(kl))
        if t == 3 - PF:
            e(f's_cmp_eq_u32 s{sIt}, 3\ns_cselect_b32 s{SRD_C+2}, 0, s{SRD_C+2}')
        if t == 3:
            e(f's_add_u32 s{sK}, s{sK}, 2048\ns_add_u32 s{sV}, s{sV}, 1024\ns_add_u32 s{sIt}, s{sIt}, 1\ns_cmp_lg_u32 s{sIt}, 4')
    e('\n'.join(ex[8:12]))
    e(pv(pb, (s-1) & 3, 1)); e('\n'.join(ex[12:16]))
e(f's_mov_b32 s{sIt}, 0\ns_waitcnt vmcnt({4*PF - 4}) lgkmcnt(0)')
stamp(9)
e(qk(0, 0, 0)); e(qk(0, 0, 1))
e(f"s_setprio {OPT['pa']}\ns_nop 8\ns_branch L_att_in" if OPT['prio'] else 's_nop 9\ns_branch L_att_in')
e('L_att:')
unit(3, 2); unit(3, 3)
e('L_att_in:')
for t in range(4):
    for s in range(4):
        if (t, s) < (3, 2): unit(t, s)
e('s_cbranch_scc1 L_att')
if OPT['prio']: e(f"s_setprio {OPT['pm']}")
if OM: e(f'buffer_load_dword v31, v{vFl}, {sr(SRD_WS)}, 0 offen sc1')
def rbw(s): return [f'ds_write_b128 v{vRb[s]}, {vr(VO + 16*s + 4*i, 4)} offset:{1024*i}' for i in range(4)]
ex = exps(2); w0 = rbw(0)
e(qk(3, 3, 0)); e('\n'.join(ex[0:4])); e(qk(3, 3, 1)); e('\n'.join(ex[4:7] + [w0[0]]))
e(pv(3, 1, 0)); e('\n'.join(ex[7:10] + [w0[1]])); e(pv(3, 1, 1)); e('\n'.join(ex[10:13] + [w0[2]] + ex[13:16] + [w0[3]]))
ex = exps(3); w1 = rbw(1); w2 = rbw(2)
e(pv(3, 2, 0)); e('\n'.join(ex[0:3])); e(pv(3, 2, 1))
e('\n'.join([w1[0]] + ex[3:5] + [w1[1]] + ex[5:7] + [w1[2]] + ex[7:9] + [w1[3]] + ex[9:10]))
e(pv(3, 3, 0))
e('\n'.join([w2[0]] + ex[10:12] + [w2[1]] + ex[12:14] + [w2[2]] + ex[14:16] + [w2[3]]))
arrive(9)
e(pv(3, 3, 1))
stamp(10)
lwait(9)
for i in range(12): e(f'ds_read_b128 {vr(VS + 4*i, 4)}, v{vRr} offset:{1024*i}')
OA = VO + 48
for s in range(3):
    e(f's_waitcnt lgkmcnt({8 - 4*s})')
    for i in range(8): e(f'v_pk_add_f32 {vr(OA+2*i,2)}, {vr(OA+2*i,2)}, {vr(VS+16*s+2*i,2)}')
e(f's_mov_b32 s{sIt}, {1 if OPT["force_fb"] else 0}')
e(f'''L_norm:
v_cndmask_b32 v{vA}, v{OA+12}, v{OA}, s[{sOdd}:{sOdd+1}]
v_max3_f32 v{vC}, abs(v{OA}), abs(v{OA+1}), abs(v{OA+2})
v_mov_b32 v{vB}, v{vA}
v_max3_f32 v{vC}, abs(v{OA+3}), abs(v{OA+4}), v{vC}
v_max3_f32 v{vC}, abs(v{OA+5}), abs(v{OA+6}), v{vC}
v_permlane32_swap_b32 v{vA}, v{vB}
v_max3_f32 v{vC}, abs(v{OA+7}), abs(v{OA+8}), v{vC}
v_cndmask_b32 v{vB}, v{vB}, v{vA}, s[{sOdd}:{sOdd+1}]
v_max3_f32 v{vC}, abs(v{OA+9}), abs(v{OA+10}), v{vC}
v_rcp_f32 v{vA}, v{vB}
v_max3_f32 v{vC}, abs(v{OA+11}), abs(v{OA+12}), v{vC}
v_max3_f32 v{vC}, abs(v{OA+13}), abs(v{OA+14}), v{vC}
v_max_f32 v{vC}, abs(v{OA+15}), v{vC}
v_cmp_nle_f32 vcc, 0x30800000, v{vB}
s_mov_b64 s[78:79], vcc
v_cmp_nge_f32 vcc, 0x4e800000, v{vB}
s_or_b64 s[78:79], s[78:79], vcc
v_cmp_ngt_f32 vcc, 0x7f000000, v{vC}
s_or_b64 vcc, s[78:79], vcc''')
if OPT['force_fb']:
    e(f's_cmp_eq_u32 s{sIt}, 1\ns_cbranch_scc1 L_fb')
e('s_cbranch_vccnz L_fb0\nL_norm2:')
for i in range(8): e(f'v_pk_mul_f32 {vr(OA+2*i,2)}, {vr(OA+2*i,2)}, {vr(vA,2)} op_sel_hi:[1,0]')
for i in range(8): e(f'v_cvt_pk_bf16_f32 v{VS+i}, v{OA+2*i}, v{OA+2*i+1}')
if OM: poll(vFl, first_issued=2, reg=31)
o_stores(VS, VS + 4, '')
stamp(11)
if OM == 4: publish(sFo, vA)
if OPT['obar'] == 1: e('s_barrier')
if OPT['obar'] >= 3: e(f"s_waitcnt vmcnt({5 - OPT['obar'] + (OM == 4)})\ns_barrier")
if OM == 0:
    e('s_waitcnt vmcnt(0)'); publish(sFo, vA)
if OPT['obar'] == 2: e('s_barrier')
stamp(12)
prof_out()
e('s_endpgm')

for tag, st in SPIN:
    e(f'L_ws_{tag}:'); lwait(st); e(f's_branch L_wb_{tag}')
sec('fb')
e(f'''L_fb0:
s_cmp_eq_u32 s{sIt}, 2
s_cbranch_scc1 L_norm2
L_fb:
s_waitcnt vmcnt(0)
s_mul_i32 s{sTmp}, s{S_O0}, {KS}
s_add_u32 s{sK}, s{sTmp}, {WS_K}
s_add_u32 s{sV}, s{sTmp}, {WS_V}
v_mov_b32 v{vC}, 0xff800000
s_mov_b32 s{sIt}, 0
L_fb1:''')
e('\n'.join(kv_loads(0, 0, SRD_WS)[:2]))
e('s_waitcnt vmcnt(0)')
e(qk(0, 3, 0)); e(qk(0, 3, 1)); e('s_nop 11')
for i in range(8): e(f'v_max3_f32 v{vC}, v{VS+48+2*i}, v{VS+49+2*i}, v{vC}')
e(f'''s_add_u32 s{sK}, s{sK}, 512
s_add_u32 s{sIt}, s{sIt}, 1
s_cmp_lg_u32 s{sIt}, 64
s_cbranch_scc1 L_fb1
v_mov_b32 v{vA}, v{vC}
s_sub_u32 s{sK}, s{sK}, 0x8000
s_mov_b32 s{sIt}, 0
v_permlane32_swap_b32 v{vA}, v{vC}
v_max_f32 v{vC}, v{vA}, v{vC}''')
for i in range(8): e(f'v_mov_b64 {vr(OA+2*i,2)}, 0')
e('L_fb2:')
e('\n'.join(kv_loads(0, 0, SRD_WS)))
e('s_waitcnt vmcnt(0)')
e(qk(0, 3, 0)); e(qk(0, 3, 1)); e('s_nop 11')
for i in range(16): e(f'v_sub_f32 v{VS+48+i}, v{VS+48+i}, v{vC}')
for i in range(16): e(f'v_exp_f32 v{VS+48+i}, v{VS+48+i}')
e('s_nop 1')
e(pv(0, 3, 0)); e(pv(0, 3, 1))
e(f'''s_add_u32 s{sK}, s{sK}, 512
s_add_u32 s{sV}, s{sV}, 256
s_add_u32 s{sIt}, s{sIt}, 1
s_cmp_lg_u32 s{sIt}, 64
s_cbranch_scc1 L_fb2
s_mov_b32 s{sIt}, 2
s_nop 11
s_branch L_norm''')

sD0, sD, sHw, sDs, sTab, sA, sB, sLd, sSk, sIt2, sFlU, sInv, sUns, sSel, sUl, sOl, sCh0 = range(60, 77)
sUs, sOut, sHm = 78, 80, 82
sE2, sP, sE3, sKd = 84, 85, 86, 87
OUTM = 'sc1' if OPT['outsc'] & 1 else ''
OUTM2 = 'sc1' if OPT['outsc'] & 2 else ''
a0, a1, a2, a3 = 5, 6, 7, 9
vPar = 10
vKc = 18
vRa, vRb_, vKd, vKd1, vKa, vKa0, vFu, vE1, vE1b, vFr, vKxo, vKxp, vPair, vRz, vBk, vA0, vA1, vKb, vSB, vSB0 = range(20, 40)
vSel = 180
vAc = 40
vOne, vScl, vAdd, vC0 = range(56, 60)
vOp = 64
vY = 128
vXt = 144
vAn = 166
vX1 = 172
T0, T1 = 160, 176
vZ = 192
U = 204
vZer = 220
vUa, vCd, vG_, vZp, vKp, vF_, vL16, vXo, vXp, vTr, vYl, vYs, vFy = range(224, 237)
vWoD = 238
vWoR = 240
vOl, vFo, vBw, vBr, vOut = range(242, 247)
def hi():
    if OPT['prio']: e('s_setprio 3')
KG = [True]
def lo():
    if OPT['prio']: e(f"s_setprio {OPT['kgp'] if KG[0] else OPT['ps']}")
ROLE[0] = 1
sec('ssm0')
e(f"""s_cmp_{'eq' if OPT['only'] != 2 else 'le'}_u32 s{S_C}, 7
s_cbranch_scc1 L_ssm_idle
s_lshr_b32 s{sDs}, s{S_W}, 1
s_lshl_b32 s{sD0}, s{S_C}, 6
s_lshl1_add_u32 s{sD0}, s{S_J}, s{sD0}
s_add_u32 s{sD}, s{sD0}, s{sDs}
s_mul_i32 s{sTab}, s{S_W}, {TABSZ}
s_add_u32 s{sTab}, s{sTab}, {L_TAB}
s_lshl1_add_u32 s{sA}, s{sD0}, s{S_W}
s_lshl_b32 s{sA}, s{sA}, 8
v_lshl_add_u32 v{a0}, v{V_LANE}, 2, s{sA}
s_mov_b32 m0, s{sTab}
s_lshl_b32 s{sB}, s{sD0}, 1
s_waitcnt lgkmcnt(0)
s_load_dword s{sLd}, s[14:15], s{sB}
s_load_dword s{sSk}, s[16:17], s{sB}
global_load_dword v{vPar+0}, v{a0}, s[6:7]
global_load_dword v{vPar+1}, v{a0}, s[8:9]
global_load_dword v{vPar+2}, v{a0}, s[10:11]
global_load_dword v{vPar+3}, v{a0}, s[12:13]
global_load_dword v{vPar+4}, v{V_T}, s[28:29]""")
if OPT['tlb'] != 2: e('s_barrier')
if OPT['tlb']:
    e(f'''v_and_b32 v{a0}, 7, v{V_LANE}
    v_min_u32 v{a0}, 5, v{a0}
    v_lshlrev_b32 v{a0}, 21, v{a0}
    v_add_u32 v{a0}, 0xf8000, v{a0}
    v_mov_b32 v{a1}, 0
    global_load_dword v8, v{a0}, s[28:29]
    global_load_dword v8, v{a1}, s[22:23]''')
if OPT['tlb'] == 2: e('s_barrier')
e('s_branch L_ssm')
sec('ssm')
e('L_ssm:')
if OPT['abl'] == 1:
    arrive(1); e('s_waitcnt vmcnt(0) lgkmcnt(0)\ns_endpgm')
lo()
srd(SRD_WS, 28, WS_SIZE)
e(f"""s_and_b32 s{sHw}, s{S_W}, 1
v_add_u32 v{V_GRP}, 16, v{V_GRP}
v_and_b32 v{a0}, 15, v{V_LANE}
v_lshrrev_b32 v{a1}, 4, v{V_LANE}
v_lshl_add_u32 v{vRb_}, v{a1}, 4, s{sTab}
v_mul_u32_u24 v{a2}, {TROW}, v{a0}
v_add_u32 v{vRa}, v{a2}, v{vRb_}
v_lshlrev_b32 v{vL16}, 4, v{V_LANE}
v_mov_b32 v{vOne}, 0x3c00
ds_write_addtid_b32 v{vOne}""")
for i in range(8): e(f'v_mov_b64 {vr(vAc+2*i,2)}, 0')
mid = f"""v_and_b32 v{a0}, 7, v{V_LANE}
s_and_b32 s{sB}, s2, {OPT['ur'] - 1}
s_lshl2_add_u32 s{sB}, s{sB}, s{S_W}
s_mul_i32 s{sB}, s{sB}, {8*US}
s_add_u32 s{sB}, s{sB}, {F_U}
v_mul_u32_u24 v{vFu}, {US}, v{a0}
v_add_u32 v{vFu}, s{sB}, v{vFu}
s_mul_i32 s{sP}, s{sDs}, {P_SZ}
s_add_u32 s{sP}, s{sP}, {L_TAB}
s_add_u32 s{sKd}, s{sP}, {P_KD}
s_lshl_b32 s{sB}, s{sHw}, 8
s_add_u32 s{sInv}, s{sB}, s{sKd}
s_add_u32 s{sA}, s{sInv}, {1088 + 128}
v_lshl_add_u32 v{vRz}, v{a0}, 4, s{sA}
v_mov_b32 v{vKb}, s{sKd}
v_and_b32 v{a0}, 15, v{V_LANE}
v_lshrrev_b32 v{a1}, 4, v{V_LANE}
s_lshl_b32 s{sA}, s{sHw}, 4
v_add_u32 v{a0}, s{sA}, v{a0}
v_and_b32 v{a3}, 1, v{V_LANE}
v_mul_u32_u24 v{a2}, 255, v{a3}
v_sub_u32 v{a2}, v{a2}, v{a0}
s_add_u32 s{sA}, s{sKd}, {1088 + 32}
v_add_u32 v{vKa}, s{sA}, v{a2}
v_add_u32 v{vKa0}, 96, v{vKa}
s_lshl3_add_u32 s{sA}, s{sDs}, 16
v_lshl_add_u32 v{vPair}, v{a3}, 2, s{sA}
s_mul_i32 s{sA}, s{sHw}, {1088 + 112 - 1024}
s_add_u32 s{sA}, s{sA}, s{sKd}
s_add_u32 s{sA}, s{sA}, 1024
v_writelane_b32 v{vKa0}, s{sA}, 0
s_mul_i32 s{sA}, s{sHw}, 56
s_sub_u32 s{sA}, s{sKd}, s{sA}
s_add_u32 s{sA}, s{sA}, 1088
v_writelane_b32 v{vKa0}, s{sA}, 16
v_max_u32 v{a2}, 1, v{a1}
v_sub_u32 v{a2}, 5, v{a2}
v_lshlrev_b32 v{a0}, v{a2}, v{a0}
v_lshlrev_b32 v{a2}, 3, v{a1}
s_mov_b32 s{sA}, 0x60400100
v_bfe_u32 v{a1}, s{sA}, v{a2}, 8
v_lshl_add_u32 v{a0}, v{a1}, 3, v{a0}
v_add_u32 v{vKd}, s{sKd}, v{a0}
s_mov_b32 s{sA}, 0x80040404
v_bfe_u32 v{a1}, s{sA}, v{a2}, 8
v_add_u32 v{vKd1}, v{a1}, v{vKd}
v_lshrrev_b32 v{a1}, 1, v{V_LANE}
v_lshlrev_b32 v{vUa}, 6, v{a1}
v_lshl_add_u32 v{vUa}, v{a3}, 4, v{vUa}
s_lshr_b32 s{sA}, s{sD0}, 2
s_mul_i32 s{sA}, s{sA}, {QS}
s_and_b32 s{sB}, s{sD0}, 3
s_lshl4_add_u32 s{sA}, s{sB}, s{sA}
s_lshl_b32 s{sB}, s{S_W}, 12
s_add_u32 s{sA}, s{sA}, s{sB}
s_add_u32 s{sUl}, s{sA}, {WS_U}
v_and_b32 v{a1}, 3, v{a1}
v_lshl_add_u32 v{a1}, v{a3}, 2, v{a1}
v_mul_u32_u24 v{a1}, {PS}, v{a1}
v_lshrrev_b32 v{a2}, 3, v{V_LANE}
v_lshl_add_u32 v{a1}, v{a2}, 4, v{a1}
s_lshl_b32 s{sA}, s{S_W}, 8
s_add_u32 s{sA}, s{sA}, {L_KP + 512}
v_add_u32 v{vKp}, s{sA}, v{a1}
; byte selectors that expand the distinct taps to the lags (lag l uses the tap at bf16(l), as in the reference)
v_lshrrev_b32 v{a1}, 5, v{V_LANE}
s_lshl_b32 s{sA}, s{sHw}, 1
v_max_u32 v{a0}, s{sA}, v{a1}
v_min_u32 v{a2}, 1, v{a0}
v_mul_u32_u24 v{a2}, 0x0202, v{a2}
v_lshlrev_b32 v{a2}, 16, v{a2}
v_sub_u32 v{vSel}, 0x03020100, v{a2}
v_mul_u32_u24 v{a2}, 0x0202, v{a0}
v_lshl_or_b32 v{a2}, v{a2}, 16, v{a2}
v_sub_u32 v{vSel+1}, 0x07060504, v{a2}
s_mul_i32 s{sA}, s{sHw}, 0x02020202
v_add_u32 v{vSel+2}, s{sA}, v{vSel}
s_mul_i32 s{sA}, s{sHw}, 0x02020404
v_add_u32 v{vSel+3}, s{sA}, v{vSel+1}
v_lshrrev_b32 v{a2}, v{a0}, v{vL16}
s_movk_i32 s{sA}, 256
v_lshl_add_u32 v{a2}, s{sA}, v{a0}, v{a2}
s_sub_u32 s{sA}, s{sKd}, 256
v_add_u32 v{vE1}, s{sA}, v{a2}
v_lshlrev_b32 v{a2}, 2, v{a0}
v_sub_u32 v{vE1b}, v{vE1}, v{a2}
s_mov_b32 s{sA}, 0x0c0c0c0c
s_cmp_lg_u32 s{sHw}, 0
s_cselect_b32 s{sE2}, 0x01000100, s{sA}
s_cselect_b32 s{sE3}, 0x05040302, s{sA}
v_mov_b32 v{vSel+4}, s{sA}
v_mov_b32 v{vSel+5}, s{sA}
v_mov_b32 v{vSel+6}, s{sA}
v_mov_b32 v{vSel+7}, s{sA}
s_mov_b32 s{sA}, 0x05040504
s_mov_b64 exec, 15
v_mov_b32 v{vSel+4}, s{sA}
v_mov_b32 v{vSel+5}, s{sA}
v_mov_b32 v{vSel+6}, s{sA}
s_mov_b64 exec, -1
v_writelane_b32 v{vSel+7}, s{sA}, 3
s_mov_b32 s{sA}, 0x05040302
v_writelane_b32 v{vSel+4}, s{sA}, 3
s_mov_b32 s{sA}, 0x0c0c0504
v_writelane_b32 v{vSel+6}, s{sA}, 0
v_writelane_b32 v{vSel+7}, s{sA}, 2
s_mul_i32 s{sA}, s{S_W}, {2*PS}
s_add_u32 s{sA}, s{sA}, {L_KP}
v_mul_u32_u24 v{a2}, {PS - 512}, v{a1}
v_add3_u32 v{vG_}, v{a2}, v{vL16}, s{sA}
v_mov_b64 {vr(vZer,2)}, 0
v_mov_b64 {vr(vZer+2,2)}, 0
ds_write_b128 v{vG_}, {vr(vZer,4)}
s_lshl_b32 s{sA}, s{sHw}, 10
s_add_u32 s{sB}, s{sP}, {P_UC}
s_add_u32 s{sA}, s{sA}, s{sB}
s_add_u32 s{sA}, s{sA}, 64
v_add_u32 v{vCd}, s{sA}, v{vL16}
v_and_b32 v{a3}, 3, v{V_LANE}
v_and_b32 v{a0}, 0x1c, v{V_LANE}
v_lshlrev_b32 v{a2}, 2, v{a0}
v_and_b32 v{vZp}, 0x30, v{a2}
s_mov_b32 exec_hi, 0
v_add_u32 v{vZp}, 2112, v{a2}
s_mov_b64 exec, -1
v_mul_u32_u24 v{a2}, {UC_S}, v{a3}
v_add3_u32 v{vZp}, v{vZp}, v{a2}, s{sB}
v_lshlrev_b32 v{a0}, 1, v{a0}
v_sub_u32 v{a0}, v{a0}, v{a2}
v_lshlrev_b32 v{a1}, 4, v{a1}
v_sub_u32 v{a0}, v{a0}, v{a1}
s_lshl_b32 s{sA}, s{sHw}, 5
s_sub_u32 s{sB}, s{sB}, s{sA}
s_add_u32 s{sB}, s{sB}, {56 + 3*UC_S}
v_add_u32 v{vF_}, s{sB}, v{a0}
v_add_u32 v{vG_}, {512 - 80}, v{vG_}
v_add_u32 v{vKxo}, s{sTab}, v{vL16}
s_xor_b32 s{sA}, s{S_W}, 1
s_mul_i32 s{sA}, s{sA}, {TABSZ}
s_add_u32 s{sA}, s{sA}, {L_TAB}
v_add_u32 v{vKxp}, s{sA}, v{vL16}
v_and_b32 v{a0}, 31, v{V_LANE}
v_lshlrev_b32 v{a2}, 2, v{a0}
v_sub_u32 v{a2}, v{a1}, v{a2}
s_add_u32 s{sA}, s{sInv}, {1088 + 124}
v_add_u32 v{vBk}, s{sA}, v{a2}
"""
e(mid)
stamp(22)
e(f"""s_waitcnt lgkmcnt(0)
s_lshl_b32 s{sA}, s{sDs}, 4
s_lshr_b32 s{sLd}, s{sLd}, s{sA}
s_lshl_b32 s{sLd}, s{sLd}, 16
s_lshr_b32 s{sSk}, s{sSk}, s{sA}
s_lshl_b32 s{sSk}, s{sSk}, 16
v_mov_b32 v{a0}, s{sLd}
v_mul_f32 v{a0}, 0x3fb8aa3b, v{a0}
v_exp_f32 v{a0}, v{a0}
s_cmp_eq_u32 s{sHw}, 0
s_cselect_b32 s{sSk}, s{sSk}, 0
v_cvt_pk_bf16_f32 v{a0}, v{a0}, v{a0}
v_and_b32 v{vScl}, 0xffff0000, v{a0}
v_mul_f32 v{vKc}, 0xbfb8aa3b, v{vScl}
v_mul_f32 v{vKc+1}, 0.15915494, v{vScl}
v_mov_b32 v{vAdd}, 0
v_add_f32 v{vScl}, v{vScl}, v{vScl}
v_writelane_b32 v{vAdd}, s{sSk}, 0
s_mov_b32 s{sIt2}, 0
s_mov_b32 s{sSel}, 0x01000c0c""")
stamp(0)
e(f"""s_waitcnt vmcnt({3 if OPT['tlb'] else 1})
v_and_b32 v{a0}, 0x7f807f80, v{vPar+2}
v_and_b32 v{a1}, 0x7f807f80, v{vPar+3}
v_pk_max_u16 v{a0}, v{a0}, v{a1}
v_lshlrev_b32 v{a1}, 16, v{a0}
v_max_u32 v{a0}, v{a0}, v{a1}""")
for q, n in enumerate((1, 2, 4, 8)):
    e(f's_nop 1\nv_max_u32_dpp v{a0}, v{a0}, v{a0} row_ror:{n} row_mask:0xf bank_mask:0xf')
e(f"""s_nop 0
v_readlane_b32 s{sA}, v{a0}, 0
v_readlane_b32 s{sB}, v{a0}, 16
v_readlane_b32 s{sInv}, v{a0}, 32
v_readlane_b32 s{sUns}, v{a0}, 48
s_max_u32 s{sA}, s{sA}, s{sB}
s_max_u32 s{sUns}, s{sUns}, s{sInv}
s_max_u32 s{sUns}, s{sUns}, s{sA}
s_and_b32 s{sUns}, s{sUns}, 0x7f800000
s_min_u32 s{sUns}, s{sUns}, 0x7e800000
s_sub_u32 s{sInv}, 0x7f000000, s{sUns}
v_mul_f32 v{vScl}, s{sUns}, v{vScl}
v_mul_f32 v{vSB}, 0x43000000, v{vScl}
v_mov_b32 v{vSB0}, v{vSB}
s_mov_b64 exec, 1
v_mov_b32 v{vSB0}, v{vScl}
s_mov_b64 exec, -1""")
stamp(1)
if OPT['abl'] == 2: e('s_endpgm')
def cm(jobs, conj):
    ng = 'neg_hi:[1,0,0]' if conj else 'neg_lo:[1,0,0]'
    return [f'v_pk_mul_f16 v{d}, v{x}, v{w} op_sel_hi:[1,0]' for d, x, w in jobs] + \
           [f'v_pk_fma_f16 v{d}, v{x}, v{w}, v{d} op_sel:[1,1,0] op_sel_hi:[0,1,1] {ng}' for d, x, w in jobs]
def wr(reg): return f'ds_write_addtid_b32 v{reg} offset:{TROW*(reg - vY)}'
assert vXt == vY + 16
zA, zB, tA, tB, pA, pB = vZ, vZ+2, vZ+4, vZ+6, vZ+8, vZ+10
X = vXt; Y = vY
an = {1: vAn, 2: vAn+1, 4: vAn+2, 8: Y+1, 16: Y+2, 32: Y+4, 64: Y+8, 128: X+21, 256: vAn+3, 512: vAn+4, 1024: vAn+5}
e('L_kg:')
stamp(14)
seq = f"""v_perm_b32 v{pA}, v{vPar}, v{vPar}, s{sSel}
v_mul_f32 v{pA}, 0x3fb8aa3b, v{pA}
v_exp_f32 v{pA}, v{pA}
v_perm_b32 v{pA+1}, v{vPar+1}, v{vPar+1}, s{sSel}
v_perm_b32 v{tA}, v{vPar+2}, v{vPar+2}, s{sSel}
v_perm_b32 v{tA+1}, v{vPar+3}, v{vPar+3}, s{sSel}
v_cvt_pk_bf16_f32 v{pA}, v{pA}, v{pA}
v_mul_f32 v{tA}, s{sInv}, v{tA}
v_and_b32 v{pA}, 0xffff0000, v{pA}
v_mul_f32 v{tA+1}, s{sInv}, v{tA+1}
v_pk_mul_f32 {vr(pA,2)}, {vr(pA,2)}, {vr(vKc,2)}
v_cvt_pk_f16_f32 v{X}, v{tA}, -v{tA+1}
v_mul_f32 v{pB}, 0x42800000, v{pA}
v_mul_f32 v{pB+1}, 0x42800000, v{pA+1}
v_exp_f32 v{pA}, v{pA}
v_fract_f32 v{pA+1}, v{pA+1}
v_exp_f32 v{pB}, v{pB}
v_fract_f32 v{pB+1}, v{pB+1}
v_cos_f32 v{zA}, v{pA+1}
v_sin_f32 v{zA+1}, v{pA+1}
v_cos_f32 v{zB}, v{pB+1}
v_sin_f32 v{zB+1}, v{pB+1}
v_pk_mul_f32 {vr(zA,2)}, {vr(zA,2)}, {vr(pA,2)} op_sel_hi:[1,0]
v_pk_mul_f32 {vr(zB,2)}, {vr(zB,2)}, {vr(pB,2)} op_sel_hi:[1,0]""".split('\n')
for st in range(6):
    chains = [(zA, tA, an[1 << st], st < 5)] + ([(zB, tB, an[64 << st], st < 4)] if st < 5 else [])
    for z, t, d, sq in chains:
        if sq: seq.append(f'v_pk_mul_f32 {vr(t,2)}, {vr(z,2)}, {vr(z,2)} op_sel_hi:[0,1]')
    for z, t, d, sq in chains: seq.append(f'v_cvt_pk_f16_f32 v{d}, v{z}, v{z+1}')
    for z, t, d, sq in chains:
        if sq: seq.append(f'v_pk_fma_f32 {vr(z,2)}, {vr(z,2)}, {vr(z,2)}, {vr(t,2)} op_sel:[1,1,0] op_sel_hi:[0,1,1] neg_lo:[1,0,0]')
seq += cm([(X+1, X, an[1]), (X+2, X, an[2]), (X+4, X, an[4]), (X+8, X, an[256]), (X+12, X, an[512]), (X+16, X, an[1024])], True)
seq += cm([(Y+3, Y+1, Y+2), (Y+12, Y+4, Y+8), (Y+5, Y+4, Y+1), (Y+6, Y+4, Y+2), (Y+9, Y+8, Y+1), (Y+10, Y+8, Y+2)], False)
seq += cm([(X+3, X+1, an[2]), (X+5, X+1, an[4]), (X+6, X+2, an[4]), (X+9, X+2, an[256]), (X+10, X+4, an[256]), (X+13, X+4, an[512]),
           (X+14, X+8, an[512]), (X+17, X+8, an[1024]), (X+18, X+12, an[1024]), (X+20, X+16, an[1024])], True)
seq += cm([(Y+7, Y+4, Y+3), (Y+11, Y+8, Y+3), (Y+13, Y+12, Y+1), (Y+14, Y+12, Y+2), (Y+15, Y+12, Y+3)], False)
seq += cm([(X+7, X+3, an[4]), (X+11, X+6, an[256]), (X+15, X+10, an[512]), (X+19, X+14, an[1024])], True)
e('\n'.join(seq))
stamp(15)
if OPT['kgw']:
    e(f'v_subrev_u32 v{a0}, 16, v{V_GRP}'); lwait(OPT['kgw'], addr=a0)
hi()
if OPT['abl'] != 4: e('\n'.join(wr(r) for r in range(Y + 1, X + 22)))
for k in range(4):
    o = vOp + 16*k
    e(f"""ds_read_b128 {vr(o,4)}, v{vRa} offset:{64*k}
    ds_read_b128 {vr(o+4,4)}, v{vRb_} offset:{37*TROW + 64*k}
    ds_read_b128 {vr(o+8,4)}, v{vRa} offset:{16*TROW + 64*k}
    ds_read_b128 {vr(o+12,4)}, v{vRa} offset:{32*TROW + 64*k}""")
if not OPT['uw']: e(f's_cmp_eq_u32 s{sIt2}, 0\ns_cbranch_scc1 L_kg_n\nbuffer_load_dword v{vFr}, v{vFu}, {sr(SRD_WS)}, 0 offen sc1\nL_kg_n:')
stamp(16)
def mf(c, a, b): return f'v_mfma_f32_16x16x32_f16 {vr(c,4)}, {vr(a,4)}, {vr(b,4)}, {vr(c,4)}'
late_m = []
for k in range(4):
    o = vOp + 16*k; y1 = vX1 + 4*(k & 1)
    p = cm([(y1+r, o+r, o+4+r) for r in range(4)], False)
    e(f's_waitcnt lgkmcnt({12 - 4*k})')
    e('\n'.join([mf(vAc, o+8, o)] + p[0:2] + late_m[:1] + p[2:4] + [mf(vAc+4, o+12, o)] + p[4:6] + late_m[1:] + p[6:8]))
    late_m = [mf(vAc+8, o+8, y1), mf(vAc+12, o+12, y1)]
e(f"""s_add_u32 s{sSel}, s{sSel}, 0x02020000
s_add_u32 s{sIt2}, s{sIt2}, 1
s_cmp_lg_u32 s{sIt2}, 2""")
e('\n'.join(late_m))
lo()
e('s_cbranch_scc1 L_kg')
stamp(17)
if OPT['abl'] in (4, 8): e('s_endpgm')
def scl(i): return vSB0 if i == 4 else (vSB if i & 4 else vScl)
for i in range(8): e(f'v_mul_f32 v{vAc+i}, v{scl(i)}, v{vAc+i}')
e(f's_cmp_eq_u32 s{sHw}, 0')
for i in range(8, 16): e(f'v_mul_f32 v{vAc+i}, v{scl(i)}, v{vAc+i}')
e('s_cbranch_scc1 L_kx')
for i in range(8): e(f'v_swap_b32 v{vAc+i}, v{vAc+8+i}')
e(f"""L_kx:
ds_write_b128 v{vKxo}, {vr(vAc+8,4)}
s_mov_b32 exec_hi, 0
ds_write_b128 v{vKxo}, {vr(vAc+12,4)} offset:1024
s_mov_b64 exec, -1
s_waitcnt vmcnt(0)
v_readfirstlane_b32 s{S_NONCE}, v{vPar+4}""")
arrive(2)
e(f's_add_u32 s{S_NONCE}, s{S_NONCE}, 1')
e(f'v_add_f32 v{vAc}, v{vAdd}, v{vAc}')
stamp(18)
def bprio():
    if OPT['prio']: e(f"s_setprio {OPT['bp']}")
def u_look():
    hi(); e(f'buffer_load_dword v{vFr}, v{vFu}, {sr(SRD_WS)}, 0 offen sc1'); bprio()
def u_fetch():
    hi()
    stamp(20)
    poll(vFu, first_issued=True, reg=vFr, sleep=OPT['usleep'])
    stamp(21)
    for k in range(2):
        e(f'buffer_load_dwordx4 {vr(U+4*k,4)}, v{vUa}, {sr(SRD_WS)}, s{sUl} offen offset:{2048*k} sc1')
    bprio()
if OPT['uw'] == -2: u_look()
else: bprio()
stamp(19)
lwait(2, addr=vPair)
e(f"""ds_read_b128 {vr(vAc+8,4)}, v{vKxp}
ds_read_b128 {vr(vAc+12,4)}, v{vKxp} offset:1024
ds_write_b128 v{vRz}, {vr(vZer,4)}
s_mov_b32 s{sIt2}, 4
s_waitcnt lgkmcnt(1)""")
for i in range(4): e(f'v_pk_add_f32 {vr(vAc+2*i,2)}, {vr(vAc+2*i,2)}, {vr(vAc+8+2*i,2)}')
for i in range(4): e(f'v_cvt_pk_bf16_f32 v{vAc+8+i}, v{vAc+2*i}, v{vAc+2*i+1}')
e(f"""ds_write_b32 v{vKd}, v{vAc+8}
ds_write_b32 v{vKd1}, v{vAc+9}
s_mov_b64 exec, 0x1ffff
ds_write_b16 v{vKa0}, v{vAc+10}
s_mov_b64 exec, 0xffff
ds_write_b16_d16_hi v{vKa}, v{vAc+10} offset:64
ds_write_b16 v{vKa}, v{vAc+11} offset:32
ds_write_b16_d16_hi v{vKa}, v{vAc+11}
s_mov_b64 exec, -1""")
arrive(3)
if OPT['uw'] == -1: u_look()
if OPT['uw'] == -2: u_fetch()
lwait(3, addr=vPair)
stamp(2)
E = 64; BF = 40
e(f"""ds_read2_b32 {vr(E,2)}, v{vE1} offset1:1
ds_read2_b32 {vr(E+2,2)}, v{vE1b} offset0:2 offset1:3
ds_read2_b32 {vr(E+4,2)}, v{vKb} offset0:191 offset1:192
ds_read_b32 v{E+6}, v{vKb} offset:1020
ds_read_b32 v{E+7}, v{vKb} offset:1024""")
for q in range(8): e(f'ds_read2_b32 {vr(BF+2*q,2)}, v{vBk} offset0:{8*(q>>1) + 2*(q&1)} offset1:{8*(q>>1) + 2*(q&1) + 1}')
b = E + 12; t = E + 16
e(f"""s_waitcnt lgkmcnt(10)
v_perm_b32 v{b+2}, v{E+2}, v{E+2}, v{vSel+2}
v_perm_b32 v{b+3}, v{E+3}, v{E+2}, v{vSel+3}
v_perm_b32 v{b-2}, v{E+5}, v{E+4}, s{sE2}
v_perm_b32 v{b-1}, v{E+5}, v{E+4}, s{sE3}
v_perm_b32 v{b}, v{E}, v{E}, v{vSel}
v_perm_b32 v{b+1}, v{E+1}, v{E}, v{vSel+1}
v_mov_b32_dpp v{b-2}, v{b+2} wave_shr:1 row_mask:0xf bank_mask:0xf
v_mov_b32_dpp v{b-1}, v{b+3} wave_shr:1 row_mask:0xf bank_mask:0xf
ds_write_b128 v{vCd}, {vr(b,4)}""")
for i in range(4): e(f'v_alignbit_b32 v{t+i}, v{b+i}, v{b+i-1}, 16')
e(f'ds_write_b128 v{vCd}, {vr(t,4)} offset:{UC_S}')
for i in range(4): e(f'v_mov_b32 v{t+4+i}, v{b+i-1}')
e(f'ds_write_b128 v{vCd}, {vr(t+4,4)} offset:{2*UC_S}')
for i in range(4): e(f'v_alignbit_b32 v{t+8+i}, v{b+i-1}, v{b+i-2}, 16')
e(f'ds_write_b128 v{vCd}, {vr(t+8,4)} offset:{3*UC_S}\ns_waitcnt lgkmcnt(12)')
for i in range(4): e(f'v_perm_b32 v{t+12+i}, v{E+7}, v{E+6}, v{vSel+4+i}')
e(f'ds_write_b128 v{vZp}, {vr(t+12,4)}')
if OPT['uw'] == -1: u_fetch()
stamp(3)
e(f'v_and_b32 v{a0}, 31, v{V_LANE}')
swap23(a1, a0, a2)
e(f"""v_lshrrev_b32 v{a2}, 5, v{V_LANE}
v_lshl_add_u32 v{a1}, v{a1}, 1, v{a2}
s_add_u32 s{sA}, s{sHw}, 123
v_add_u32 v{a1}, s{sA}, v{a1}
s_mul_i32 s{sA}, s{sDs}, {PD}
s_add_u32 s{sA}, s{sA}, {L_KP}
v_and_b32 v{a3}, 3, v{a1}
v_mul_u32_u24 v{a3}, {PS - 4}, v{a3}
v_lshl_add_u32 v{a3}, v{a1}, 2, v{a3}
v_add_u32 v{vA0}, s{sA}, v{a3}
v_add_u32 v{a1}, 2, v{a1}
v_and_b32 v{a3}, 3, v{a1}
v_mul_u32_u24 v{a3}, {PS - 4}, v{a3}
v_lshl_add_u32 v{a3}, v{a1}, 2, v{a3}
v_add_u32 v{vA1}, s{sA}, v{a3}
v_lshlrev_b32 v{a2}, 3, v{a2}
v_sub_u32 v{a2}, v{a2}, v{a0}
v_cvt_f32_i32 v{a2}, v{a2}
v_add_f32 v{a3}, -1.0, v{a2}
v_add_f32 v{a2}, -2.0, v{a2}
v_cvt_pk_f16_f32 v8, v{a3}, v{a2}
s_waitcnt vmcnt(1)
ds_write_b128 v{vKp}, {vr(U,4)}
s_waitcnt vmcnt(0)
ds_write_b128 v{vKp}, {vr(U+4,4)} offset:128""")
arrive(4)
AP, BD, DP = 112, 136, 192
band = [f's_mov_b32 s{sA}, 0x4a204a20', f's_cmp_eq_u32 s{sHw}, 0', f's_cselect_b32 s{sE2}, 0x4d104d10, s{sA}', f's_mov_b32 s{sE3}, 0x4d804d80']
for q in range(12):
    band.append(f'v_pk_fma_f16 v{BD+q}, v8, v8, s{sE2} neg_lo:[1,0,0] neg_hi:[1,0,0] clamp')
    if q < 11: band.append(f'v_pk_add_f16 v8, v8, s{sE3}' if q % 4 == 3 else 'v_pk_add_f16 v8, v8, -2.0 op_sel_hi:[1,0]')
e('\n'.join(band))
lwait(4)
KG[0] = False
lo()
stamp(4)
if OPT['abl'] == 16: e('s_endpgm')
CB = 64
def cv_reads(k):
    b = CB + 12 * (k & 3)
    return [f'ds_read_b64 {vr(b,2)}, v{vF_} offset:{64*k}', f'ds_read_b64 {vr(b+2,2)}, v{vF_} offset:{64*k + 8}',
            f'ds_read_b128 {vr(b+8,4)}, v{vG_} offset:{512 + 80 - 16*k}', f'ds_read_b128 {vr(b+4,4)}, v{vG_} offset:{80 - 16*k}']
for tau in range(2):
    for kp in range(3): e(f'ds_read_b128 {vr(AP + 12*tau + 4*kp, 4)}, v{(vA0, vA1)[kp & 1]} offset:{256*tau + 16*(kp >> 1)}')
e('\n'.join(cv_reads(0) + cv_reads(1)))
FOA = f'''s_lshr_b32 s{sA}, s{sOl}, 1
s_lshl_b32 s{sA}, s{sA}, {4 + FSH}
s_add_u32 s{sA}, s{sA}, {F_O}
v_lshl_add_u32 v{vFo}, v{a1}, {FSH}, s{sA}''' if not OM else f'''s_lshr_b32 s{sA}, s{sOl}, 1
s_lshl_b32 s{sB}, s{sHw}, 9
s_add_u32 s{sA}, s{sA}, s{sB}
s_lshl_b32 s{sA}, s{sA}, {FSH}
s_add_u32 s{sA}, s{sA}, {F_Y}
v_min_u32 v{vFo}, 6, v{a1}
v_lshl_add_u32 v{vFo}, v{vFo}, {6 + FSH}, s{sA}'''
late = f"""s_mov_b64 s[{SRD_B}:{SRD_B+1}], s[22:23]
s_mov_b32 s{SRD_B+2}, {448*896}
s_mov_b32 s{SRD_B+3}, 0x20000
s_mov_b64 s[{SRD_C}:{SRD_C+1}], s[24:25]
s_mov_b32 s{SRD_C+2}, {2048*1792}
s_mov_b32 s{SRD_C+3}, 0x20000
v_lshrrev_b32 v{a1}, 3, v{V_LANE}
v_and_b32 v{a2}, 7, v{V_LANE}
v_and_b32 v{a0}, 0x70, v{vL16}
v_mul_u32_u24 v{vYl}, {YS}, v{a1}
v_add_u32 v{vYl}, v{vYl}, v{a0}
v_lshlrev_b32 v{a3}, 2, v{V_LANE}
v_and_b32 v{a3}, 64, v{a3}
v_xor_b32 v{a0}, v{a0}, v{a3}
v_mul_u32_u24 v{vWoD}, 896, v{a1}
v_xor_b32 v{a3}, v{a1}, v{a2}
v_lshlrev_b32 v{a3}, 4, v{a3}
v_lshl_add_u32 v{vOut}, v{vWoD}, 1, v{a3}
v_add_u32 v{vWoD}, v{a0}, v{vWoD}
v_add_u32 v{vWoD+1}, {7168-1024}, v{vWoD}
v_lshrrev_b32 v{a0}, 4, v{V_LANE}
v_bfe_u32 v{a1}, v{V_LANE}, 2, 2
v_lshl_or_b32 v{a3}, v{a0}, 3, v{a1}
v_lshlrev_b32 v{a3}, 7, v{a3}
v_lshrrev_b32 v{a1}, 1, v{a1}
v_lshl_add_u32 v{a3}, v{a1}, 6, v{a3}
v_and_b32 v{a1}, 0x30, v{vL16}
s_movk_i32 s{sA}, {L_WO}
v_add3_u32 v{vWoR}, v{a1}, v{a3}, s{sA}
v_xor_b32 v{vWoR+1}, 64, v{vWoR}
v_and_b32 v{a1}, 15, v{V_LANE}
v_lshlrev_b32 v{vOl}, 4, v{a1}
v_mad_u32_u24 v{vOl}, v{a0}, s{S_KS}, v{vOl}
s_lshl2_add_u32 s{sOl}, s{S_J}, s{S_W}
{FOA}
s_lshl_b32 s{sA}, s{S_W}, 11
s_add_u32 s{sA}, s{sA}, {L_SSM}
v_xor_b32 v{a3}, v{a0}, v{a2}
v_lshl_add_u32 v{a3}, v{a3}, 4, s{sA}
v_lshl_add_u32 v{vBw}, v{a1}, 7, v{a3}
v_add_u32 v{vBr}, s{sA}, v{vL16}
s_mul_i32 s{sOut}, s{sOl}, {16*1792}
s_lshl_b32 s{sA}, s{S_C}, 7
s_add_u32 s{sOut}, s{sOut}, s{sA}
s_add_u32 s{sOut}, s{sOut}, 896
s_add_u32 s{sOut+1}, s{sOut}, {8*1792}
s_lshl_b32 s{sOl}, s{sOl}, 8
s_add_u32 s{sOl}, s{sOl}, {WS_O}
s_lshl2_add_u32 s{sCh0}, s{S_C}, s{S_W}
s_lshl_b32 s{sCh0}, s{sCh0}, 4
s_lshr_b32 s{sA}, s{S_J}, 4
s_lshl_b32 s{sA}, s{sA}, 9
s_add_u32 s{sA}, s{sA}, s{sCh0}
s_lshl_b32 s{sA}, s{sA}, {FSH}
s_add_u32 s{sA}, s{sA}, {F_Y}
v_lshl_add_u32 v{vFy}, v{a1}, {FSH}, s{sA}
v_and_b32 v{a1}, 11, v{V_LANE}
v_lshl_or_b32 v{a1}, v{a0}, 5, v{a1}
v_mul_u32_u24 v{a1}, 1792, v{a1}
v_and_b32 v{a3}, 4, v{V_LANE}
v_lshl_add_u32 v{vYs}, v{a3}, 2, v{a1}
s_lshl_b32 s{sA}, s{sHw}, 12
s_add_u32 s{sB}, s{sP}, {P_X + 4096}
s_sub_u32 s{sB}, s{sB}, s{sA}
v_add_u32 v{vXp}, s{sB}, v{vL16}
s_add_u32 s{sA}, s{sA}, s{sP}
s_add_u32 s{sA}, s{sA}, {P_X}
v_add_u32 v{vXo}, s{sA}, v{vL16}
v_lshl_add_u32 v{vRb_}, v{a0}, 4, s{sA}
v_bfe_u32 v{a0}, v{V_LANE}, 2, 2
v_and_b32 v{a3}, 1, v{V_LANE}
v_lshl_or_b32 v{a2}, v{a3}, 3, v{a0}
v_lshl_add_u32 v{vTr}, v{a2}, 7, v{vRb_}
v_and_b32 v{a2}, 2, v{V_LANE}
v_lshl_add_u32 v{vTr}, v{a2}, 2, v{vTr}""".split('\n')
def fill(n):
    e('\n'.join(late[:n])); del late[:n]
fill(16)
e('s_waitcnt lgkmcnt(8)')
for kp in range(3):
    for tau in range(2):
        d = vr(DP + 16*tau, 16)
        e(f'v_mfma_f32_32x32x16_bf16 {d}, {vr(AP + 12*tau + 4*kp, 4)}, {vr(BD + 4*kp, 4)}, {"0" if kp == 0 else d}')
        fill(6)
def cv_iter(first):
    for k in range(4):
        b = CB + 12 * k
        rd = cv_reads(k + 2)
        z = first and k == 0
        e('s_waitcnt lgkmcnt(4)')
        e(f'v_mfma_f32_32x32x16_bf16 {vr(T1,16)}, {vr(b,4)}, {vr(b+8,4)}, {"0" if z else vr(T1,16)}')
        e('\n'.join(rd))
        if k == 3:
            e(f'v_add_u32 v{vF_}, 256, v{vF_}\nv_subrev_u32 v{vG_}, 64, v{vG_}')
            if not first: e(f's_add_u32 s{sIt2}, s{sIt2}, 1\ns_cmp_lg_u32 s{sIt2}, 11')
        e(f'v_mfma_f32_32x32x16_bf16 {vr(T0,16)}, {vr(b,4)}, {vr(b+4,4)}, {"0" if z else vr(T0,16)}')
        if first: fill(6 if k < 3 else 99)
cv_iter(True)
e('L_cv:')
cv_iter(False)
e('s_cbranch_scc1 L_cv')
cv = [f'v_cvt_pk_bf16_f32 v{AP+i}, v{DP+2*i}, v{DP+2*i+1}' for i in range(16)]
for k in range(2):
    e('\n'.join(cv[4*k:4*k+4]))
    e(f's_waitcnt lgkmcnt({4 - 4*k})')
    e(f'v_mfma_f32_32x32x16_bf16 {vr(T1,16)}, {vr(CB+12*k,4)}, {vr(CB+12*k+8,4)}, {vr(T1,16)}')
for q in range(4):
    e('\n'.join(cv[8+4*q:12+4*q]))
    e(f'v_mfma_f32_32x32x16_bf16 {vr(T1,16)}, {vr(AP+4*q,4)}, {vr(BF+4*q,4)}, {vr(T1,16)}')
if OPT['prio']: e(f"s_setprio {OPT['pr']}")
stamp(5)
if OPT['abl'] == 32: e('s_endpgm')
e(f"""s_mul_i32 s{sA}, s{sD}, {YS}
s_lshl_b32 s{sB}, s{sHw}, 11
s_add_u32 s{sA}, s{sA}, s{sB}
s_add_u32 s{sA}, s{sA}, {WS_Y}
s_lshl_b32 s{sB}, s{sHw}, 9
s_add_u32 s{sB}, s{sB}, s{sD}
s_lshl_b32 s{sB}, s{sB}, {FSH}
s_add_u32 s{sB}, s{sB}, {F_Y}
s_nop 0""")
def xch(give, keep):
    for i in range(4): e(f'ds_write_b128 v{vXp}, {vr(give+4*i,4)} offset:{1024*i}')
    arrive(6); lwait(6, addr=vPair)
    for i in range(4): e(f'ds_read_b128 {vr(give+4*i,4)}, v{vXo} offset:{1024*i}')
    e('s_waitcnt lgkmcnt(0)')
e(f's_cmp_eq_u32 s{sHw}, 0\ns_cbranch_scc1 L_x0')
xch(T0, T1)
e('s_branch L_x1\nL_x0:')
xch(T1, T0)
e('L_x1:')
for i in range(8): e(f'v_pk_add_f32 {vr(T0+2*i,2)}, {vr(T0+2*i,2)}, {vr(T1+2*i,2)}')
for i in range(8): e(f'v_cvt_pk_bf16_f32 v{T1+i}, v{T0+2*i}, v{T0+2*i+1}')
e(f"""buffer_store_dwordx4 {vr(T1,4)}, v{vL16}, {sr(SRD_WS)}, s{sA} offen sc1
buffer_store_dwordx4 {vr(T1+4,4)}, v{vL16}, {sr(SRD_WS)}, s{sA} offen offset:1024 sc1
v_subrev_u32 v{a0}, 16, v{V_GRP}""")
if OM:
    e(f'''v_mov_b64 {vr(T0,2)}, -1
    v_mov_b64 {vr(T0+2,2)}, -1
    s_mul_i32 s{sA}, s{S_C}, {8*KS}
    s_add_u32 s{sA}, s{sA}, s{sOl}
    s_add_u32 s{sSk}, s{sA}, {4*KS}
    buffer_store_dwordx4 {vr(T0,4)}, v{vOl}, {sr(SRD_WS)}, s{sA} offen sc1
    buffer_store_dwordx4 {vr(T0,4)}, v{vOl}, {sr(SRD_WS)}, s{sSk} offen sc1''')
sync(7)
if OPT['only'] != 1: lwait(7, addr=a0)
e('s_waitcnt vmcnt(0)')
publish(sB, a0)
stamp(6)
if OPT['abl'] == 33: e('s_endpgm')
e(f"""s_mul_i32 s{sA}, s{S_W}, {16*896}
s_lshl_b32 s{sB}, s{S_C}, 7
s_add_u32 s{sA}, s{sA}, s{sB}
s_lshl_b32 s{sB}, s{S_W}, 11
s_add_u32 s{sB}, s{sB}, {L_WO}""")
for ch in range(7):
    e(f"""s_add_u32 m0, s{sB}, {8192*ch}
    s_add_u32 s{sSk}, s{sA}, {64*896*ch}
    buffer_load_dwordx4 v{vWoD}, {sr(SRD_B)}, s{sSk} offen lds
    buffer_load_dwordx4 v{vWoD+1}, {sr(SRD_B)}, s{sSk} offen offset:1024 lds
    s_waitcnt vmcnt({OPT['wodepth'] if ch < 6 else 0})""")
WF, OF, OC = 8, 168, 224
arrive(8)
e(f"""buffer_load_dword v{a0}, v{vFy}, {sr(SRD_WS)}, 0 offen sc1
s_mul_i32 s{sA}, s{sCh0}, {YS}
s_lshl_b32 s{sSk}, s{S_J}, 7
s_add_u32 s{sA}, s{sA}, s{sSk}
s_add_u32 s{sA}, s{sA}, {WS_Y}
s_add_u32 s{sSk}, s{sA}, {8*YS}""")
lwait(8)
stamp(7)
if OPT['abl'] == 34: e('s_endpgm')
def wo_reads(k):
    r = []
    for t in range(4):
        for hf in range(2):
            r.append(f'ds_read_b64_tr_b16 {vr(WF + 16*(k%10) + 4*t + 2*hf, 2)}, v{vWoR + (t>>1)} offset:{4096*k + 512*hf + 8*(t&1)}')
    return r
for k in range(10): e('\n'.join(wo_reads(k)))
arrive(9)
poll(vFy, first_issued=True, sleep=OPT['ysleep'], reg=a0)
stamp(8)
if OPT['abl'] == 35: e('s_endpgm')
e(f"""buffer_load_dwordx4 {vr(OF,4)}, v{vYl}, {sr(SRD_WS)}, s{sA} offen sc1
buffer_load_dwordx4 {vr(OF+4,4)}, v{vYl}, {sr(SRD_WS)}, s{sSk} offen sc1
s_lshr_b32 s{sA}, s{S_J}, 4
s_lshl_b32 s{sA}, s{sA}, 10
s_and_b32 s{sB}, s{S_J}, 3
s_lshl_b32 s{sB}, s{sB}, 8
s_add_u32 s{sA}, s{sA}, s{sB}
s_and_b32 s{sB}, s{S_J}, 8
s_lshl1_add_u32 s{sA}, s{sB}, s{sA}
s_and_b32 s{sB}, s{S_J}, 4
s_add_u32 s{sA}, s{sA}, s{sB}
s_mul_i32 s{sA}, s{sA}, 1792
s_lshl1_add_u32 s{sA}, s{sCh0}, s{sA}
s_add_u32 s{sB}, s{sA}, {128*1792}
v_xor_b32 v{a0}, 64, v{vBw}""")
lwait(9)
e(f"""s_waitcnt vmcnt(0)
ds_write_b128 v{vXo}, {vr(OF,4)}
ds_write_b128 v{vXo}, {vr(OF+4,4)} offset:1024""")
for z in range(2):
    for hf in range(2):
        e(f'ds_read_b64_tr_b16 {vr(OF + 8 + 4*z + 2*hf, 2)}, v{vTr} offset:{64*z + 512*hf}')
e(f"""s_waitcnt lgkmcnt(0)
buffer_store_dwordx4 {vr(OF+8,4)}, v{vYs}, {sr(SRD_C)}, s{sA} offen {OUTM}
buffer_store_dwordx4 {vr(OF+12,4)}, v{vYs}, {sr(SRD_C)}, s{sB} offen {OUTM}""")
if OPT['only'] == 1:
    stamp(9); stamp(13); prof_out(); e('s_endpgm')
if OM: poll(vFo, sleep=8)
if OM == 4:
    e(f'''s_lshl2_add_u32 s{sA}, s{S_J}, s{S_W}
    s_lshr_b32 s{sA}, s{sA}, 1
    s_lshl_b32 s{sA}, s{sA}, {4 + FSH}
    s_add_u32 s{sA}, s{sA}, {F_O}
    v_and_b32 v{vFo}, 15, v{V_LANE}
    v_lshl_add_u32 v{vFo}, v{vFo}, {FSH}, s{sA}''')
sOk, sLast = 4, 18
for k in range(14): e(f's_add_u32 s{sOk+k}, s{sOl}, {4*KS*k}')
stamp(9)
e('s_barrier        ; released once the four attention waves have stored their rows')
stamp(10)
if OPT['osleep']: e(f"s_sleep {OPT['osleep']}")
if OM != 3: poll(vFo, sleep=OPT['hsleep'])
if OM: e(f's_min_u32 s{S_BOUND}, s{S_BOUND}, 0x4000')
stamp(11)
def o_load(k): return f'buffer_load_dwordx4 {vr(OF+4*k,4)}, v{vOl}, {sr(SRD_WS)}, s{sOk+k} offen sc1'
def o_chk(k):
    o = OF + 4*k
    return [f's_waitcnt vmcnt({13-k})', f'v_max3_u32 v6, v{o}, v{o+1}, v{o+2}', f'v_max_u32 v6, v6, v{o+3}', 'v_cmp_eq_u32 vcc, -1, v6']
for k in range(14): e(o_load(k))
if OM: e('\n'.join(o_chk(0)))
for k in range(14):
    o = OF + 4*k
    m = [f'v_mfma_f32_16x16x32_bf16 {vr(OC+4*t,4)}, {vr(WF + 16*(k%10) + 4*t, 4)}, {vr(o,4)}, {"0" if k == 0 else vr(OC+4*t,4)}' for t in range(4)]
    rd = wo_reads(k + 9) if 1 <= k <= 4 else []
    if k == 10: e('s_waitcnt lgkmcnt(0)')
    if OM:
        e(f's_cbranch_vccnz L_or{k}\nL_og{k}:')
        c = o_chk(k + 1) if k < 13 else ['', '', '', '']
        e('\n'.join([m[0]] + rd[:4] + [m[1]] + rd[4:] + [m[2], c[0], c[1], c[2], m[3], c[3]]))
    else:
        e(f's_waitcnt vmcnt({13-k})'); e('\n'.join(m + rd))
stamp(12)
e('s_nop 4')
for i in range(8): e(f'v_cvt_pk_bf16_f32 v{16+i}, v{OC+2*i}, v{OC+2*i+1}')
e(f"""ds_write_b128 v{vBw}, {vr(16,4)}
ds_write_b128 v{a0}, {vr(20,4)}
ds_read_b128 {vr(24,4)}, v{vBr}
ds_read_b128 {vr(28,4)}, v{vBr} offset:1024
s_or_b32 s{sA}, s2, s{S_W}
s_waitcnt lgkmcnt(1)
buffer_store_dwordx4 {vr(24,4)}, v{vOut}, {sr(SRD_C)}, s{sOut} offen {OUTM2}
s_waitcnt lgkmcnt(0)
buffer_store_dwordx4 {vr(28,4)}, v{vOut}, {sr(SRD_C)}, s{sOut+1} offen {OUTM2}
s_cbranch_scc1 L_noepoch""")
publish(sA, 6)
e('L_noepoch:')
if OPT['prof']:
    e('s_waitcnt vmcnt(0)')
stamp(13)
prof_out()
e('L_end:\ns_endpgm')
if OM:
    for k in range(14):
        c = o_chk(k)
        e(f'''L_or{k}:
        s_call_b64 s[90:91], L_re{k}
        {c[0]}
        L_oc{k}:
        {c[1]}
        {c[2]}
        {c[3]}
        s_cbranch_vccz L_og{k}
        {'s_sleep %d' % OPT['rsleep'] if OPT['rsleep'] else ''}
        {o_load(k)}
        s_sub_u32 s{S_BOUND}, s{S_BOUND}, 1
        s_waitcnt vmcnt(0)
        s_cbranch_scc0 L_oc{k}
        s_mov_b32 s{S_BOUND}, 0
        s_branch L_og{k}''')
    for k in range(14): e(f'L_re{k}:\n{o_load(k)}')
    e('s_setpc_b64 s[90:91]')
sec('idle')
ROLE[0] = 2
e('L_ssm_idle:')
if OPT['only'] == 2:
    arrive(1); e('s_endpgm')
hi()
e(f"""v_lshrrev_b32 v10, 3, v{V_LANE}
v_and_b32 v11, 7, v{V_LANE}
v_lshlrev_b32 v11, 4, v11
v_mul_u32_u24 v5, 896, v10
v_add_u32 v5, v5, v11
v_add_u32 v6, {7168-1024}, v5
s_lshl2_add_u32 s60, s{S_J}, s{S_W}
s_mul_i32 s61, s60, {16*896}
s_mul_i32 s62, s{S_W}, 14336
s_add_u32 s62, s62, {L_SSM}
s_mov_b32 s{SRD_A+2}, {2048*896}
s_mov_b32 s{SRD_A+3}, 0x20000
s_waitcnt lgkmcnt(0)
s_load_dword s{S_NONCE}, s[28:29], 0
s_mov_b64 s[{SRD_A}:{SRD_A+1}], s[4:5]""")
for c in range(7):
    e(f"""s_add_u32 m0, s62, {2048*c - 128*c}
    s_nop 0
    buffer_load_dwordx4 v5, {sr(SRD_A)}, s61 offen offset:{128*c} lds
    buffer_load_dwordx4 v6, {sr(SRD_A)}, s61 offen offset:{1024 + 128*c} lds""")
    if c == 1:
        srd(SRD_WS, 28, WS_SIZE)
        e(f"""; transposing read: row = 8*(cc&1)+r', byte = 8*(2G+(cc>>1))
        v_mul_u32_u24 v7, {QS}, v10
        v_add_u32 v7, v7, v11
        v_bfe_u32 v8, v{V_LANE}, 2, 2
        v_and_b32 v9, 1, v{V_LANE}
        v_lshl_or_b32 v8, v9, 3, v8
        v_xor_b32 v8, 3, v8
        v_lshl_add_u32 v8, v8, 7, s62
        v_and_b32 v9, 0x30, v{V_LANE}
        v_add_u32 v8, v8, v9
        v_and_b32 v9, 2, v{V_LANE}
        v_lshl_add_u32 v8, v9, 2, v8
        s_lshl_b32 s63, s60, 7
        s_add_u32 s63, s63, {WS_U}
        s_mul_i32 s65, s{S_J}, {US}
        v_mov_b32 v12, 0x3f803f80
        v_mov_b32 v13, v12
        v_mov_b64 v[14:15], v[12:13]
        v_lshlrev_b32 v9, 4, v{V_LANE}
        s_lshl2_add_u32 s66, s{S_TILE}, s{S_W}
        s_lshl_b32 s66, s66, 8
        s_mul_i32 s67, s{S_HG}, {QS}
        s_add_u32 s66, s66, s67
        s_add_u32 s66, s66, {WS_V + 112*QS}
        s_add_u32 s65, s65, {F_U}""")
e(f's_waitcnt lgkmcnt(0)\ns_add_u32 s{S_NONCE}, s{S_NONCE}, 1')
arrive(1)
def t_rd(c):
    return [f'ds_read_b64_tr_b16 {vr(16 + 8*c + 4*z + 2*hf, 2)}, v8 offset:{2048*c + 64*z + 512*(1-hf)}' for z in range(2) for hf in range(2)]
e('s_waitcnt vmcnt(12)'); stamp(1); e('\n'.join(t_rd(0)))
for c in range(7):
    if c < 6:
        e('s_waitcnt vmcnt(10)'); e('\n'.join(t_rd(c + 1)))
    e(f"""s_add_u32 s64, s63, {8*QS}
    s_waitcnt lgkmcnt({4 if c < 6 else 0})
    buffer_store_dwordx4 {vr(16+8*c,4)}, v7, {sr(SRD_WS)}, s63 offen sc1
    buffer_store_dwordx4 {vr(20+8*c,4)}, v7, {sr(SRD_WS)}, s64 offen sc1
    s_add_u32 s63, s63, {16*QS}""")
assert OPT['ur'] == 1
e(f'''; the column quad of ones that gives the softmax row sums
s_mov_b64 exec, 0xffff
buffer_store_dwordx4 v[12:15], v9, {sr(SRD_WS)}, s66 offen sc1''')
stamp(2)
e(f'''s_mov_b64 exec, 1
v_mov_b32 v5, s{S_NONCE}
s_cmp_lg_u32 s{S_W}, 0
s_waitcnt vmcnt(0)
s_barrier
s_cbranch_scc1 L_idle_end
buffer_store_dword v5, v9, {sr(SRD_WS)}, s65 offen sc1''')
e('L_idle_end:\ns_mov_b64 exec, -1'); stamp(4)
prof_out()
e('s_endpgm')
ORDER = [['pro', 'ssm0', 'mha0', 'idle', 'ssm', 'mha'], ['pro', 'ssm0', 'mha0', 'mha', 'ssm', 'idle'],
         ['pro', 'ssm0', 'mha0', 'ssm', 'mha', 'idle'], ['pro', 'ssm0', 'idle', 'mha0', 'mha', 'ssm']][OPT['ord']] + ['cold', 'gt', 'fb']
SEC.setdefault('cold', [])
def add_nt(n, pred):
    SEC[n] = [(l.replace(' lds', ' nt lds') if l.endswith(' lds') else l + ' nt') if pred(l) else l for l in SEC[n]]
for n in ('mha0', 'mha', 'gt'):
    if OPT['nt'] & 1: add_nt(n, lambda l: l.endswith(' lds') and sr(SRD_A) in l)
    if OPT['nt'] & 2: add_nt(n, lambda l: l.endswith(' lds') and sr(SRD_B) in l)
if OPT['nt'] & 4: add_nt('idle', lambda l: l.endswith(' lds'))
if OPT['nt'] & 8: add_nt('ssm0', lambda l: 'global_load' in l)
if OPT['nt'] & 16: add_nt('ssm', lambda l: l.endswith(' lds'))
if OPT['nt'] & 32: add_nt('ssm', lambda l: 'buffer_store' in l and sr(SRD_C) in l)
BODY = sum((SEC[n] for n in ORDER), [])
def sizes(lines):
    import subprocess, re, os, tempfile
    d = tempfile.mkdtemp()
    open(d + '/a.s', 'w').write('.amdgcn_target "amdgcn-amd-amdhsa--gfx950"\n.text\n' + '\n'.join(lines) + '\n')
    subprocess.check_call(['clang', '-x', 'assembler', '-target', 'amdgcn-amd-amdhsa', '-mcpu=gfx950', '-c', d + '/a.s', '-o', d + '/a.o'])
    o = subprocess.check_output(['llvm-objdump', '-d', '--mcpu=gfx950', d + '/a.o']).decode()
    return [4 * len(m.group(1).split()) for m in re.finditer(r'// [0-9A-F]{12}: ((?:[0-9A-F]{8} ?)+)', o)]
def is_ins(l):
    t = l.split(';')[0].strip()
    return bool(t) and not t.endswith(':')
def widen(l):
    import re
    t = l.split(';')[0].strip(); op = t.split()[0]
    if op.startswith('v_') and not op.startswith(('v_readfirstlane', 'v_swap', 'v_permlane', 'v_nop')):
        return l.replace(op, op + '_e64', 1)
    return None
if OPT['al']:
    sz = iter(sizes(BODY))
    I = [[l, next(sz) if is_ins(l) else 0] for l in BODY]
    res = []; addr = 0; nw = nn = 0
    for i, (l, n) in enumerate(I):
        if n == 8 and addr % 8 == 4:
            run = 0
            for l2, n2 in I[i:]:
                if n2 == 4: break
                run += n2 == 8
            cross = sum(1 for k in range(run) if (addr + 8*k) % 32 == 28)
            if cross:
                j = len(res) - 1; done = False; aj = addr
                while j >= 0 and res[j][1] in (0, 4):
                    aj -= res[j][1]
                    t = res[j][0].strip()
                    if t.startswith(('s_branch', 's_endpgm', 's_setpc')):
                        res.insert(j + 1, ['    s_nop 0', 4]); done = True; break
                    w = widen(res[j][0]) if res[j][1] == 4 and aj % 32 != 28 else None
                    if w:
                        res[j] = [w, 8]; done = True; nw += 1; break
                    j -= 1
                if not done and run >= OPT['alr']:
                    k = len(res)
                    while res[k-1][1] == 0: k -= 1
                    res.insert(k, ['    s_nop 0', 4]); done = True; nn += 1
                if done: addr += 4
        res.append([l, n]); addr += n
    BODY = [l for l, n in res]
    print('aligned: widened', nw, 'nops', nn, 'bytes', addr, file=sys.stderr)
hdr = open('header.txt').read()
txt = hdr + f'''; @launch grid=(256,1,1) block=(512,1,1) lds={L_TOT}
.amdgcn_target "amdgcn-amd-amdhsa--gfx950"
.text
.globl {KN}
.p2align 8
.type {KN},@function
{KN}:
''' + '\n'.join(BODY) + f'''
.section .rodata,"a"
.p2align 6
.amdhsa_kernel {KN}
  .amdhsa_next_free_vgpr 256
  .amdhsa_next_free_sgpr 102
  .amdhsa_accum_offset 256
  .amdhsa_group_segment_fixed_size 0
  .amdhsa_kernarg_size 104
  .amdhsa_user_sgpr_count 2
  .amdhsa_user_sgpr_kernarg_segment_ptr 1
  .amdhsa_system_sgpr_workgroup_id_x 1
.end_amdhsa_kernel
'''
open(sys.argv[1], 'w').write(txt)
```

```python
import sys, struct
def fl(x): return hex(struct.unpack('<I', struct.pack('<f', x))[0])

KN = 'concat_heads__ssm_conv_s4d__softmax_full_mha__prompt_kernel'
OPT = dict(rdx=-1, pw=0, dm=0, rdf=0, rdv=0, rdt=0, only_st=0, ur=1, us=128, rd0=-1, rdm=0, probe=0, poff=0xc00000, nt=0, rdn=0, al=1, alr=6, fw=0, rsleep=0, hsleep=0, ord=2, nb=0, tb=13, tq=0, chkk=99, uw=-2, cw=0, s6=5, tskip=1, ones=1, pa=1, pr=2, pf=2, wgf=2, ax=0, bp=1, qa=7, n0=4, ilv=8, tlb=0, ulook=1, kgp=1, pad=0, ypad=0, omode=3, ksleep=0, usleep=4, obar=5, osleep=0, pubk=8, abl=0, touch=0, gs=0, kgw=0, xg=5, gx=0, pm=2, ps=0, rt=0, upub=1, kgx=0, outsc=0, ysleep=8, wodepth=4, wq_mid=0, pollk=99, rd=-1, rdrole=0, only=0, safe=0, rot=0, prof=0, fs=128, force_fb=0, wq_early=7, prio=1)
for a in sys.argv[2:]:
    k, v = a.split('=')
    assert k in OPT, k
    OPT[k] = int(v, 0)

FS = OPT['fs']
FSH = FS.bit_length() - 1
F_KV = 0x1000
F_O = F_KV + 1024 * FS
F_U = F_O + 1024 * FS
F_Y = F_U + 1024 * FS
F_H = F_Y + 1024 * FS
WS_K = 0x100000
WS_V = 0x300000
WS_O = 0x500000
WS_U = 0x700000
WS_Y = 0x900000
QS = 16384 + OPT['pad']; KS = 2 * QS; YS = 4096 + OPT['ypad']
S_KS = 57
WS_PROF = 0xb00000
F_U = 0xb80000 if OPT['us'] * OPT['ur'] > 4096 else F_U
US = OPT['us']
WS_SIZE = 0x1000000
L_SSM = 1024
L_W = 57344
L_RB = 65536
L_X = 114688
L_TOT = 163840
TROW = 288
TABSZ = 38 * TROW
L_TAB = L_SSM
P_SZ = 2 * TABSZ
P_UC = 1536
UC_S = 2240
P_KD = TABSZ + 1536
P_X = TABSZ
PS = 1552
PD = 4 * PS
L_KP = L_TAB + 4 * TABSZ
assert P_UC + 4 * UC_S <= TABSZ and P_KD + 1600 <= P_SZ and P_X + 8192 <= P_SZ and L_KP % 16 == 0 and L_KP + 2 * PD <= L_W
L_WO = L_SSM

S_WV, S_W, S_HG, S_C, S_TILE, S_J, S_H, S_NONCE, S_O0, S_ROT = range(30, 40)
SRD_WS, SRD_A, SRD_B, SRD_C = 40, 44, 48, 52
S_BOUND = 56
S_T0 = 58

SEC = {}
out = None
def sec(n):
    global out
    out = SEC.setdefault(n, [])
sec('pro')
def e(s):
    for l in s.split('\n'):
        l = l.strip()
        if l:
            out.append(l if l.endswith(':') else '    ' + l)
_lab = [0]
def lab(p):
    _lab[0] += 1
    return f'L_{p}_{_lab[0]}'
def vr(a, n):
    return f'v[{a}:{a+n-1}]' if n > 1 else f'v{a}'
def srd(d, b, n):
    e(f's_mov_b64 s[{d}:{d+1}], s[{b}:{b+1}]\ns_mov_b32 s{d+2}, {n}\ns_mov_b32 s{d+3}, 0x20000')
def sr(d): return f's[{d}:{d+3}]'

V_LANE, V_T, V_OWN, V_GRP, V_PROF = 0, 1, 2, 3, 4

ROLE = [0]
def stamp(i):
    if OPT['rd0'] == i and OPT['rdrole'] == ROLE[0]:
        e('s_memrealtime s[98:99]\ns_waitcnt lgkmcnt(0)')
    if OPT['rd'] == i and OPT['rdrole'] == ROLE[0]:
        e('s_memrealtime s[100:101]\ns_waitcnt lgkmcnt(0)')
    if (OPT['only_st'] >> (i + 32*min(ROLE[0], 1))) & 1 if OPT['only_st'] else OPT['prof'] > (i >= 14):
        e(f's_mem{"real" if OPT["rt"] else ""}time s[96:97]\ns_waitcnt lgkmcnt(0)\ns_sub_u32 s96, s96, s{98 if OPT["rt"] else S_T0}\nv_writelane_b32 v{V_PROF}, s96, {i}')
def prof_out():
    if OPT['rd'] >= 0 and OPT['rdrole'] == ROLE[0]:
        l = lab('pad')
        if ROLE[0] == 0 and not OPT['obar']: e('s_barrier')
        if ROLE[0] == 2: e('s_barrier')
        if OPT['rdf']: e(f"s_and_b32 s96, s2, {OPT['rdf']}\ns_cmp_lg_u32 s96, {OPT['rdv']}\ns_cbranch_scc1 L_end")
        if ROLE[0] == 0 and OPT['rdn']: e(f's_cmp_eq_u32 s{S_C}, 7\ns_cbranch_scc{2 - OPT["rdn"]} L_end')
        if OPT['rd'] == 98:
            e(f'''s_not_b32 s100, s100
            v_mov_b32 v5, s100
            v_mov_b32 v6, 0
            s_mov_b64 exec, 1
            global_atomic_umax v6, v5, s[26:27]
            s_waitcnt vmcnt(0)
            s_sleep 127
            s_sleep 127
            s_sleep 127
            s_sleep 127
            s_sleep 127
            global_load_dword v5, v6, s[26:27] sc1
            s_waitcnt vmcnt(0)
            v_readfirstlane_b32 s100, v5
            s_not_b32 s100, s100''')
        if OPT['probe']:
            op = {1: 'buffer_store_dwordx4 v[8:11], v5, s[52:55], s60 offen sc1', 2: 'buffer_load_dwordx4 v[8:11], v5, s[52:55], s60 offen sc1',
                  3: 'buffer_store_dwordx4 v[8:11], v5, s[52:55], s60 offen'}[OPT['probe'] & 3]
            if OPT['probe'] & 16: op = '\n'.join(op.replace('offen', f'offen offset:{1024*i}') for i in range(4))
            pre = 'buffer_load_dword v12, v6, s[52:55], s61 offen sc1\ns_waitcnt vmcnt(0)' if OPT['probe'] & 4 else ''
            if OPT['probe'] & 8: pre += '\nbuffer_store_dwordx4 v[8:11], v5, s[52:55], s60 offen sc1\ns_waitcnt vmcnt(0)\ns_sleep 40'
            e(f'''s_mov_b64 s[52:53], s[28:29]
            s_mov_b32 s54, 0x10000000
            s_mov_b32 s55, 0x20000
            L_prb:
            s_sleep 1
            s_memrealtime s[62:63]
            s_waitcnt lgkmcnt(0)
            s_sub_u32 s62, s62, s58
            s_cmp_lt_u32 s62, 3000
            s_cbranch_scc1 L_prb
            v_lshlrev_b32 v5, 4, v0
            v_mov_b32 v6, 0
            s_lshl2_add_u32 s60, s2, s{S_W}
            s_lshl_b32 s60, s60, {12 if OPT['probe'] & 16 else 10}
            s_add_u32 s60, s60, {OPT['poff']}
            s_mov_b32 s61, {OPT['poff'] + 0x180000}
            {pre}
            s_memrealtime s[62:63]
            s_waitcnt lgkmcnt(0)
            {op}
            s_waitcnt vmcnt(0)
            s_memrealtime s[100:101]
            s_waitcnt lgkmcnt(0)
            s_sub_u32 s100, s100, s62
            v_mov_b32 v8, s100
            s_lshl2_add_u32 s60, s2, s{S_W}
            s_lshl_b32 s60, s60, 2
            s_add_u32 s60, s60, {WS_PROF}
            buffer_store_dword v8, v6, s[52:55], s60 offen
            s_mul_i32 s100, s100, 20
            s_add_u32 s100, s100, s58''')
        elif OPT['rdm'] >= 3:
            key = {3: 's_and_b32 s96, s2, 7', 4: f's_mov_b32 s96, s{S_H}', 5: f's_mov_b32 s96, s{S_TILE}'}[OPT['rdm']]
            e(f'''s_sub_u32 s100, s100, s98
            s_sub_u32 s97, s98, s58
            s_mul_i32 s100, s100, 1000000
            s_mul_i32 s97, s97, 1000
            s_add_u32 s100, s100, s97
            s_add_u32 s100, s100, s2
            {key}
            s_lshl_b32 s96, s96, 2
            v_mov_b32 v5, s100
            v_mov_b32 v6, s96
            s_mov_b64 exec, 1
            global_atomic_umax v6, v5, s[26:27]
            s_waitcnt vmcnt(0)
            s_endpgm''')
        elif OPT['rdm'] == 2:
            e('''s_not_b32 s96, s58
            v_mov_b32 v5, s96
            v_mov_b32 v6, 0
            s_mov_b64 exec, 1
            global_atomic_umax v6, v5, s[26:27]
            s_waitcnt vmcnt(0)''' + '\ns_sleep 127' * 7 + '''
            global_load_dword v5, v6, s[26:27] sc1
            s_waitcnt vmcnt(0)
            v_readfirstlane_b32 s96, v5
            s_not_b32 s96, s96
            s_sub_u32 s100, s100, s96
            s_lshl_b32 s100, s100, 3
            s_add_u32 s100, s100, s96''')
        elif OPT['rdm']:
            e('s_sub_u32 s100, s100, s98')
            if OPT['rdx'] >= 0: e(f"s_getreg_b32 s96, hwreg(HW_REG_XCC_ID)\ns_sub_u32 s96, s96, s2\ns_and_b32 s96, s96, 7\ns_cmp_eq_u32 s96, {OPT['rdx']}\ns_cselect_b32 s100, 320, 0")
            if OPT['rdt']: e(f"s_cmp_gt_u32 s100, {OPT['rdt']}\ns_cselect_b32 s100, 1280, 0")
            e('''v_mov_b32 v5, s100
            v_mov_b32 v6, 0
            s_mov_b64 exec, 1
            global_atomic_add v6, v5, s[26:27]
            s_waitcnt vmcnt(0)''' + '\ns_sleep 127' * 7 + '''
            global_load_dword v5, v6, s[26:27] sc1
            s_waitcnt vmcnt(0)
            v_readfirstlane_b32 s100, v5
            s_lshr_b32 s100, s100, 6
            s_add_u32 s100, s100, s58''')
        else: e('s_sub_u32 s100, s100, s98\ns_lshl_b32 s100, s100, 3\ns_add_u32 s100, s100, s58')
        e(f'''s_add_u32 s100, s100, 6000
        {l}:
        s_sleep 1
        s_memrealtime s[96:97]
        s_waitcnt lgkmcnt(0)
        s_sub_u32 s96, s96, s100
        s_cmp_lt_i32 s96, 0
        s_cbranch_scc1 {l}''')
    if OPT['prof']:
        e(f'''s_memrealtime s[96:97]
        s_waitcnt lgkmcnt(0)
        v_writelane_b32 v{V_PROF}, s96, 31
        v_writelane_b32 v{V_PROF}, s98, 30
        s_lshl_b32 s96, s2, 3
        s_add_u32 s96, s96, s{S_WV}
        s_lshl_b32 s96, s96, 7
        s_add_u32 s96, s96, {WS_PROF}
        v_lshlrev_b32 v{V_T}, 2, v{V_LANE}
        s_mov_b32 exec_hi, 0
        buffer_store_dword v{V_PROF}, v{V_T}, {sr(SRD_WS)}, s96 offen
        s_mov_b64 exec, -1''')

def arrive(stage):
    e(f'v_mov_b32 v{V_T}, {stage}\nds_write_b32 v{V_OWN}, v{V_T}')
def lwait(stage, addr=V_GRP, sleep=0):
    l = lab('lw')
    e(f'{l}:')
    if sleep: e(f's_sleep {sleep}')
    e(f'''ds_read_b32 v{V_T}, v{addr}
    s_waitcnt lgkmcnt(0)
    v_cmp_gt_u32 vcc, {stage}, v{V_T}''')
    if OPT['safe']:
        d = lab('ld')
        e(f'''s_cbranch_vccz {d}
        s_sub_u32 s{S_BOUND}, s{S_BOUND}, 1
        s_cbranch_scc0 {l}
        s_mov_b32 s{S_BOUND}, 0
        {d}:''')
    else:
        e(f's_cbranch_vccnz {l}')
def sync(stage):
    arrive(stage); lwait(stage)
def poll(voff, first_issued=False, sleep=0, reg=V_T):
    l, d, m = lab('pl'), lab('pd'), lab('pm')
    if first_issued == 2:
        e(f's_waitcnt vmcnt(0)\nv_cmp_ne_u32 vcc, s{S_NONCE}, v{reg}\ns_cbranch_vccnz {l}\n{d}:')
        cur = [n for n in SEC if SEC[n] is out][0]
        sec('cold')
        e(f'''{l}:
        buffer_load_dword v{reg}, v{voff}, {sr(SRD_WS)}, 0 offen sc1
        s_waitcnt vmcnt(0)
        v_cmp_ne_u32 vcc, s{S_NONCE}, v{reg}
        s_cbranch_vccz {d}
        s_sub_u32 s{S_BOUND}, s{S_BOUND}, 1
        s_cbranch_scc0 {l}
        s_mov_b32 s{S_BOUND}, 0
        s_branch {d}''')
        sec(cur)
        return
    if first_issued: e(f's_branch {m}')
    e(f'{l}:')
    if sleep: e(f's_sleep {sleep}')
    e(f'''buffer_load_dword v{reg}, v{voff}, {sr(SRD_WS)}, 0 offen sc1
    {m}:
    s_waitcnt vmcnt(0)
    v_cmp_ne_u32 vcc, s{S_NONCE}, v{reg}
    s_cbranch_vccz {d}
    s_sub_u32 s{S_BOUND}, s{S_BOUND}, 1
    s_cbranch_scc0 {l}
    s_mov_b32 s{S_BOUND}, 0
    {d}:''')
def publish(soff, tmp):
    if OPT['fw']:
        e(f'''v_mov_b32 v{V_T}, s{S_NONCE}
        v_lshlrev_b32 v{tmp}, 2, v{V_LANE}
        s_mov_b64 exec, {hex((1 << OPT['fw']) - 1)}
        buffer_store_dword v{V_T}, v{tmp}, {sr(SRD_WS)}, s{soff} offen sc1
        s_mov_b64 exec, -1'''.replace('s_mov_b64 exec, 0xffffffff', 's_mov_b32 exec_hi, 0'))
        return
    e(f'''v_mov_b32 v{V_T}, s{S_NONCE}
    v_mov_b32 v{tmp}, 0
    s_mov_b64 exec, 1
    buffer_store_dword v{V_T}, v{tmp}, {sr(SRD_WS)}, s{soff} offen sc1
    s_mov_b64 exec, -1''')
def swap23(d, s, t):
    e(f'''v_lshrrev_b32 v{t}, 1, v{s}
    v_xor_b32 v{t}, v{t}, v{s}
    v_and_b32 v{t}, 4, v{t}
    v_mul_u32_u24 v{t}, 3, v{t}
    v_xor_b32 v{d}, v{t}, v{s}''')
def rot_next(s):
    e(f's_add_u32 s{s}, s{s}, 1\ns_cmp_eq_u32 s{s}, 7\ns_cselect_b32 s{s}, 0, s{s}')

e(f'''s_cmp_ge_u32 s2, 256
s_cbranch_scc1 L_end''')
if OPT['prof']:
    e(f's_memtime s[{S_T0}:{S_T0+1}]\ns_memrealtime s[98:99]\nv_mov_b32 v{V_PROF}, 0')
if OPT['rd'] >= 0: e('s_memrealtime s[100:101]\ns_memrealtime s[58:59]\ns_memrealtime s[98:99]')
e(f'''s_load_dwordx16 s[4:19], s[0:1], 0
s_load_dwordx8 s[20:27], s[0:1], 64
s_load_dwordx2 s[28:29], s[0:1], 96
v_lshrrev_b32 v{V_OWN}, 6, v0
v_and_b32 v{V_LANE}, 63, v0
v_readfirstlane_b32 s{S_WV}, v{V_OWN}
v_lshlrev_b32 v{V_OWN}, 2, v{V_OWN}
v_mov_b32 v{V_T}, 0
ds_write2_b32 v{V_OWN}, v{V_T}, v{V_T} offset1:8
v_and_b32 v{V_GRP}, 3, v{V_LANE}
v_lshlrev_b32 v{V_GRP}, 2, v{V_GRP}
s_and_b32 s{S_C}, s2, 7
s_lshr_b32 s{S_J}, s2, 3
s_and_b32 s{S_W}, s{S_WV}, 3
s_mov_b32 s{S_BOUND}, 0x40000
s_mov_b32 s{S_KS}, {KS}
s_cmp_lt_u32 s{S_WV}, 4
s_cbranch_scc1 L_mha''')

VX = 144; VACC = 96; VWF = 32; VPK = 128
VV, VK, VS, VO, VQ = 32, 64, 96, 160, 224
vWd = [5, 6]; vXd = [7, 8, 9, 10]; vXr = [11, 12, 13, 14]; vWb, vW0, vW1 = 15, 16, 17
vRho, vG, vSt, vQd, vQr, vFl, vA, vB, vC = 18, 19, 20, 21, 22, 23, 24, 25, 26
vKo0, vKo1, vVo, vIdx = 27, 28, 29, 30
sXb, sWb, sCh, sCw, sLx, sTmp, sTmp2, sSt, sS1, sS2, sFl = range(60, 71)
sK, sV, sIt = 71, 72, 73
sFo, sO0, sO1 = 84, 85, 86
vOs, vQw = vRho, vG
vRb = [7, 8, 9]; vQx = [11, 12, 13]; vRr = 10
sMask = 74
sOdd = 76

sec('mha0')
e('L_mha:')
if OPT['prio']: e(f"s_setprio {OPT['pm']}")
e(f'''s_and_b32 s{S_HG}, s{S_J}, 1
s_lshr_b32 s{S_TILE}, s2, 4
s_lshl_b32 s{sTmp}, s{S_C}, 2
s_lshr_b32 s{S_H}, 0x47653210, s{sTmp}
s_and_b32 s{S_H}, s{S_H}, 7
s_lshl1_add_u32 s{S_H}, s{S_H}, s{S_HG}
s_mul_i32 s{S_O0}, s{S_H}, 7
s_lshr_b32 s{S_O0}, s{S_O0}, 1''')
e(f'''v_lshrrev_b32 v{vA}, 3, v{V_LANE}          ; r
v_and_b32 v{vB}, 7, v{V_LANE}                    ; p
v_lshlrev_b32 v{vC}, 1, v{vA}
v_and_b32 v{vC}, 4, v{vC}
v_xor_b32 v{vC}, v{vC}, v{vB}
v_lshlrev_b32 v{vC}, 4, v{vC}
v_mul_u32_u24 v{vWd[0]}, 2688, v{vA}
v_add_u32 v{vWd[0]}, v{vWd[0]}, v{vC}
v_add_u32 v{vWd[1]}, {8*2688-1024}, v{vWd[0]}
v_lshrrev_b32 v{vC}, 1, v{vA}
v_xor_b32 v{vC}, v{vC}, v{vB}
v_lshlrev_b32 v{vC}, 4, v{vC}
v_mul_u32_u24 v{vA}, 896, v{vA}
v_add_u32 v{vXd[0]}, v{vA}, v{vC}
v_xor_b32 v{vC}, 64, v{vC}
v_add_u32 v{vXd[1]}, v{vA}, v{vC}
v_add_u32 v{vXd[1]}, {7168-1024}, v{vXd[1]}
v_add_u32 v{vXd[2]}, {2*(7168-1024)}, v{vXd[0]}
v_add_u32 v{vXd[3]}, {2*(7168-1024)}, v{vXd[1]}
s_lshl2_add_u32 s{sXb}, s{S_TILE}, s{S_W}
s_lshl3_add_u32 s{sFl}, s{S_HG}, s{S_C}
s_lshl_b32 s{sFl}, s{sFl}, 6
s_add_u32 s{sFl}, s{sFl}, s{S_TILE if OPT['wgf'] else sXb}
s_lshl_b32 s{sFl}, s{sFl}, {FSH}
s_add_u32 s{sFl}, s{sFl}, {F_KV}
s_mul_i32 s{sXb}, s{sXb}, {32*896}
s_mul_i32 s{sWb}, s{S_HG}, 7
s_add_u32 s{sWb}, s{sWb}, s{S_C}
s_add_u32 s{sWb}, s{sWb}, 7
s_cmp_eq_u32 s{S_C}, 7
s_cselect_b32 s{sWb}, 0x100000, s{sWb}             ; no slab: these loads fall outside the buffer
s_lshl_b32 s{sWb}, s{sWb}, 7
s_mul_i32 s{sTmp}, s{S_W}, {16*2688}
s_add_u32 s{sWb}, s{sWb}, s{sTmp}
s_mul_i32 s{sLx}, s{S_W}, 12288
s_add_u32 s{sLx}, s{sLx}, {L_X}
s_lshl_b32 s{sS1}, s{S_W}, 11
s_add_u32 s{sS1}, s{sS1}, {L_W}
s_mov_b32 s{SRD_A+2}, {2048*896}
s_mov_b32 s{SRD_A+3}, 0x20000
s_mov_b32 s{SRD_B+2}, {448*1344*2}
s_mov_b32 s{SRD_B+3}, 0x20000
s_mov_b32 m0, s{sLx}
s_waitcnt lgkmcnt(0)
s_mov_b64 s[{SRD_A}:{SRD_A+1}], s[18:19]
s_mov_b64 s[{SRD_B}:{SRD_B+1}], s[20:21]
s_load_dword s{S_NONCE}, s[28:29], 0''')
stamp(22)
sWo = 88
def w_lines(st):
    return [f's_add_u32 m0, s{sS1}, {8192*st}', f's_add_u32 s{sWo+st}, s{sWb}, {64*2688*st}'] + \
           [f'buffer_load_dwordx4 v{vWd[i]}, {sr(SRD_B)}, s{sWo+st} offen offset:{1024*i} lds' for i in range(2)]
def x_chunk(st):
    return [f's_add_u32 m0, s{sLx}, {(st%3)*4096 - 128*st}', 's_nop 0'] + \
           [f'buffer_load_dwordx4 v{vXd[i]}, {sr(SRD_A)}, s{sXb} offen offset:{1024*i + 128*st} lds' for i in range(4)]
DM = []
for l in [x_chunk(0), w_lines(0)] + [w_lines(i) for i in range(1, 7)] + [x_chunk(1), x_chunk(2)]:
    DM += [l[:3]] + [[x] for x in l[3:]]
DM[0] = DM[0][2:]
for i, g in enumerate(DM[:OPT['n0']]):
    if i == OPT['nb']:
        e('s_barrier'); stamp(23)
        if OPT['only'] == 1: e('s_endpgm')
    e('\n'.join(g))
DM = DM[OPT['n0']:]
stamp(24)
if OPT['ord'] not in (1, 3): e('s_branch L_mha1')
sec('mha')
e('L_mha1:')
stamp(25)
sec('tmp')
srd(SRD_WS, 28, WS_SIZE)
ONES = f'''s_bitcmp1_b32 s{S_H}, 0
s_cselect_b32 s{sTmp}, 0, 7
v_cmp_eq_u32 vcc, s{sTmp}, v{vA}
s_lshl_b32 s{sTmp}, s{S_O0}, 1
s_sub_u32 s{sTmp}, s{S_HG}, s{sTmp}
s_add_u32 s{sTmp}, s{sTmp}, 112
v_mov_b32 v{vB}, s{sTmp}
v_cndmask_b32 v{vA}, v{vA}, v{vB}, vcc
''' if OPT['ones'] else ''
FIX = f'''v_cmp_lt_u32 vcc, 7, v{vB}
s_lshl3_add_u32 s{sTmp}, s{S_HG}, 7
v_mov_b32 v{vB}, s{sTmp}
v_cndmask_b32 v{vC}, v{vC}, v{vB}, vcc
''' if OPT['ones'] else ''
FOM = f'''s_lshl_b32 s{sFo}, s{sTmp2}, 4
s_add_u32 s{sFo}, s{sFo}, s{S_H}
s_lshl_b32 s{sFo}, s{sFo}, {FSH}
s_add_u32 s{sFo}, s{sFo}, {F_O}
''' if OPT['omode'] != 3 else ''
e(f'''v_and_b32 v{vA}, 31, v{V_LANE}
v_lshrrev_b32 v{vG}, 5, v{V_LANE}''')
swap23(vRho, vA, vB)
e(f'''v_bfe_u32 v{vB}, v{vRho}, 1, 3
v_xor_b32 v{vB}, v{vB}, v{vG}
v_lshlrev_b32 v{vB}, 4, v{vB}
v_lshl_add_u32 v{vB}, v{vRho}, 7, v{vB}
v_add_u32 v{vXr[0]}, s{sLx}, v{vB}
v_xor_b32 v{vXr[1]}, 32, v{vXr[0]}
v_xor_b32 v{vXr[2]}, 64, v{vXr[0]}
v_xor_b32 v{vXr[3]}, 0x60, v{vXr[0]}
v_and_b32 v{vB}, 3, v{V_LANE}                     ; cc
v_lshrrev_b32 v{vC}, 1, v{vB}
v_and_b32 v{vQd}, 1, v{vB}
v_lshl_or_b32 v{vC}, v{vQd}, 1, v{vC}
v_bfe_u32 v{vQd}, v{V_LANE}, 4, 1
v_lshl_or_b32 v{vB}, v{vQd}, 2, v{vB}              ; mq natural
v_lshl_or_b32 v{vC}, v{vQd}, 2, v{vC}
v_bfe_u32 v{vQd}, v{V_LANE}, 2, 2                  ; r'
v_lshl_or_b32 v{vFl}, v{vG}, 3, v{vQd}             ; 8g + r'
v_lshlrev_b32 v{vQr}, 6, v{vFl}
v_lshl_add_u32 v{vQr}, v{vC}, 3, v{vQr}
v_add_u32 v{vQr}, {L_X + 4096}, v{vQr}
s_cmp_eq_u32 s{S_HG}, 0
s_cselect_b64 vcc, -1, 0
v_cndmask_b32 v{vB}, v{vB}, v{vC}, vcc             ; K slabs use the exchanged order, V slabs the natural one
v_lshlrev_b32 v{vWb}, 7, v{vFl}
v_lshl_add_u32 v{vWb}, v{vB}, 3, v{vWb}
v_lshrrev_b32 v{vQd}, 1, v{vQd}
v_lshl_add_u32 v{vWb}, v{vQd}, 6, v{vWb}
v_add_u32 v{vW0}, {L_W}, v{vWb}
v_lshlrev_b32 v{vB}, 4, v{vRho}
v_mad_u32_u24 v{vB}, v{vG}, s{S_KS}, v{vB}
v_lshrrev_b32 v{vC}, 2, v{vA}
v_mul_u32_u24 v{vC}, {QS}, v{vC}
v_lshl_add_u32 v{vC}, v{vG}, 6, v{vC}
v_and_b32 v{vQd}, 3, v{vA}
v_lshl_add_u32 v{vC}, v{vQd}, 4, v{vC}
v_cndmask_b32 v{vSt}, v{vC}, v{vB}, vcc
s_lshl2_add_u32 s{sTmp}, s{S_TILE}, s{S_W}
s_lshl_b32 s{sTmp2}, s{sTmp}, 9
s_add_u32 s{sTmp2}, s{sTmp2}, {WS_K}
s_lshl_b32 s{sTmp}, s{sTmp}, 8
s_add_u32 s{sTmp}, s{sTmp}, {WS_V}
s_movk_i32 s{sS2}, 128
s_cmp_eq_u32 s{S_HG}, 0
s_cselect_b32 s{sSt}, s{sTmp2}, s{sTmp}
s_cselect_b32 s{sS2}, {2*KS}, s{sS2}
s_mul_i32 s{sTmp}, s{S_C}, {8*KS}
s_add_u32 s{sSt}, s{sSt}, s{sTmp}
v_lshrrev_b32 v{vB}, 2, v{V_LANE}
v_mul_u32_u24 v{vB}, 2688, v{vB}
v_lshl_add_u32 v{vQd}, v{vQd}, 4, v{vB}
s_lshl_b32 s82, s{S_O0}, 4
s_mul_i32 s{sTmp}, s{S_W}, {16*2688}
s_add_u32 s82, s82, s{sTmp}
s_lshr_b32 s{sTmp}, s{S_O0}, 3
s_add_u32 s{sTmp2}, s{S_O0}, 3
s_lshr_b32 s{sTmp2}, s{sTmp2}, 3
s_sub_u32 s{sTmp2}, s{sTmp2}, s{sTmp}
v_bfe_u32 v{vC}, v{V_LANE}, 4, 1
v_mul_u32_u24 v{vC}, s{sTmp2}, v{vC}
v_lshl_add_u32 v{vC}, v{vG}, 3, v{vC}
v_add_u32 v{vC}, s{sTmp}, v{vC}
v_and_b32 v{vB}, 15, v{V_LANE}
{FIX}v_and_b32 v{vB}, {3 if OPT['wgf'] else 15}, v{V_LANE}
v_lshl_add_u32 v{vC}, v{vC}, 6, v{vB}
s_lshl_b32 s{sTmp}, s{S_W}, {2 if OPT['wgf'] else 4}
v_add_u32 v{vC}, s{sTmp}, v{vC}
v_lshlrev_b32 v{vC}, {FSH}, v{vC}
v_add_u32 v{vFl}, {F_KV}, v{vC}
v_lshlrev_b32 v{vKo0}, 4, v{vA}
v_mad_u32_u24 v{vKo0}, v{vG}, s{S_KS}, v{vKo0}
v_add_u32 v{vKo1}, {2*KS}, v{vKo0}
v_lshrrev_b32 v{vA}, 2, v{vRho}
{ONES}v_mul_u32_u24 v{vA}, {QS}, v{vA}
v_lshl_add_u32 v{vA}, v{vG}, 6, v{vA}
v_and_b32 v{vB}, 3, v{V_LANE}
v_lshl_add_u32 v{vVo}, v{vB}, 4, v{vA}
v_mov_b32 v{vIdx}, 0xdddddddd
s_mul_i32 s{sTmp}, s{S_O0}, {KS}
s_lshl_b32 s{sK}, s{S_W}, 13
s_add_u32 s{sK}, s{sK}, s{sTmp}
s_add_u32 s{sK}, s{sK}, {WS_K}
s_lshl_b32 s{sV}, s{S_W}, 12
s_add_u32 s{sV}, s{sV}, s{sTmp}
s_add_u32 s{sV}, s{sV}, {WS_V}
s_lshl2_add_u32 s{sTmp2}, s{S_TILE}, s{S_W}
{FOM}s_lshl_b32 s{sTmp2}, s{sTmp2}, 9
s_add_u32 s{sO0}, s{sTmp}, s{sTmp2}
s_add_u32 s{sO0}, s{sO0}, {WS_O}
s_add_u32 s{sO1}, s{sO0}, {2*KS}
s_bitcmp1_b32 s{S_H}, 0
s_cselect_b64 s[{sOdd}:{sOdd+1}], -1, 0
; per-lane multipliers for Q: scale*log2(e), zero on the four slots that belong to the neighbour head
v_mov_b32 v{vC}, 0x3e8b97f6
v_cmp_gt_u32 vcc, 32, v{V_LANE}
s_and_b64 s[78:79], vcc, s[{sOdd}:{sOdd+1}]
s_nor_b64 s[80:81], vcc, s[{sOdd}:{sOdd+1}]
v_cndmask_b32 v{vA}, v{vC}, 0, s[78:79]
v_cndmask_b32 v{vB}, v{vC}, 0, s[80:81]
s_mov_b32 s78, 0x3f803f80
s_mov_b32 s79, s78
v_xor_b32 v{vW1}, 64, v{vW0}
v_lshlrev_b32 v{vOs}, 4, v{vRho}
v_mad_u32_u24 v{vOs}, v{vG}, s{S_KS}, v{vOs}
v_lshl_add_u32 v{vQw}, v{V_LANE}, 4, s{sLx}''')
srd(SRD_C, 28, WS_SIZE)
def o_stores(r0, r1, tag):
    e(f'''s_bitcmp1_b32 s{S_H}, 0
    s_cbranch_scc1 L_ost_odd{tag}
    buffer_store_dwordx4 {vr(r0,4)}, v{vOs}, {sr(SRD_WS)}, s{sO0} offen sc1
    s_mov_b32 exec_hi, 0
    buffer_store_dwordx4 {vr(r1,4)}, v{vOs}, {sr(SRD_WS)}, s{sO1} offen sc1
    s_not_b64 exec, exec
    buffer_store_dwordx2 {vr(r1,2)}, v{vOs}, {sr(SRD_WS)}, s{sO1} offen sc1
    s_branch L_ost_done{tag}
    L_ost_odd{tag}:
    buffer_store_dwordx4 {vr(r1,4)}, v{vOs}, {sr(SRD_WS)}, s{sO1} offen sc1
    s_mov_b32 exec_hi, 0
    buffer_store_dwordx2 {vr(r0+2,2)}, v{vOs}, {sr(SRD_WS)}, s{sO0} offen offset:8 sc1
    s_not_b64 exec, exec
    buffer_store_dwordx4 {vr(r0,4)}, v{vOs}, {sr(SRD_WS)}, s{sO0} offen sc1
    L_ost_done{tag}:
    s_mov_b64 exec, -1''')
GS = 0
AB = [l for l in SEC.pop('tmp') if not l.strip().startswith(';')]
sec('mha')
def scc_pending(i):
    return i < len(AB) and AB[i].strip().startswith(('s_cselect', 's_mov_b32 s75'))
pos = 0
for g in DM:
    n = pos + OPT['ilv']
    while scc_pending(n): n += 1
    e('\n'.join(AB[pos:n])); pos = n
    e('\n'.join(g))
e('\n'.join(AB[pos:]))
stamp(0)
def x_reads(s):
    return [f'ds_read_b128 {vr(VX + 16*s + 4*ks, 4)}, v{vXr[ks]} offset:{(s%3)*4096}' for ks in range(4)]
e('s_waitcnt vmcnt(22)')
e('\n'.join(x_reads(0)))
e('s_waitcnt vmcnt(8) lgkmcnt(0)')
arrive(1)
stamp(1)
e('\n'.join(x_chunk(3)))
e('s_waitcnt vmcnt(8)')
e('\n'.join(x_reads(1)))
lwait(1)
e(f's_add_u32 s{S_NONCE}, s{S_NONCE}, 1')
stamp(2)
def w_reads(s):
    r = []
    for ks in range(4):
        for ct in range(2):
            for hf in range(2):
                d = VWF + 32 * (s & 1) + 8 * ks + 4 * ct + 2 * hf
                r.append(f'ds_read_b64_tr_b16 {vr(d,2)}, v{(vW0, vW1)[ct]} offset:{s*8192 + ks*2048 + hf*512}')
    return r
if OPT['tskip']: e(f's_cmp_eq_u32 s{S_C}, 7\ns_cbranch_scc1 L_gemm_t')
e('\n'.join(w_reads(0)))
e(f'''s_waitcnt lgkmcnt(0)
s_cmp_lg_u32 s{S_HG}, 0
s_cbranch_scc1 L_gemm_v''')
sQb, sQc = 82, 83
NE = OPT['wq_early']
def wq_dma(st):
    return [f's_add_u32 m0, s{sLx}, {4096 + 1024*st}\ns_add_u32 s83, s82, {64*2688*st}', '', f'buffer_load_dwordx4 v{vQd}, {sr(SRD_B)}, s83 offen lds']
SPIN = []
def gemm1(vpart):
    for s in range(7):
        M = []
        for ks in range(4):
            for ct in range(2):
                wf = vr(VWF + 32 * (s & 1) + 8 * ks + 4 * ct, 4); xf = vr(VX + 16 * s + 4 * ks, 4)
                acc = vr(VACC + 16 * ct, 16)
                a, b = (xf, wf) if vpart else (wf, xf)
                M.append(f'v_mfma_f32_32x32x16_bf16 {acc}, {a}, {b}, {"0" if s == 0 and ks == 0 else acc}')
        gaps = [[] for _ in range(8)]
        tag = f'{"v" if vpart else "k"}{s}'
        pre = []
        dm = []
        def add(l): dm.extend([(l[0], l[2])] + [(None, x) for x in l[3:]])
        if s <= 2: add(x_chunk(s + 4))
        if s == 3:
            for i in range(min(NE, 4)): add(wq_dma(i))
        if s == 4:
            for i in range(4, NE): add(wq_dma(i))
        n = {0: 8, 1: 8, 2: 8, 3: 4 + min(NE, 4), 4: NE}.get(s)
        for i, (m, l) in enumerate(dm):
            if m: (pre if i == 0 else gaps[i - 1]).append(m)
            gaps[i].append(l)
        if s < 6:
            wr = w_reads(s + 1)
            for i, (p, q) in enumerate(((0, 3), (3, 6), (6, 9), (9, 12), (12, 16))): gaps[i] += wr[p:q]
            if s <= 4: gaps[OPT['xg']] += [f's_waitcnt vmcnt({n})'] + x_reads(s + 2)
            gaps[7] += [f's_waitcnt lgkmcnt({4 if s == 4 and OPT["s6"] != 4 else 0})']
        if s == OPT['s6'] and (OPT['uw'] == 6 or OPT['cw'] == 6): gaps[6] += [f'v_mov_b32 v{V_T}, 6', f'ds_write_b32 v{V_OWN}, v{V_T}']
        if s == 5:
            gaps[7] += [f'v_add_u32 v31, 16, v{V_GRP}', f'ds_read_b32 v31, v31']
        if s == 6 and NE == 7:
            gaps[OPT['qa']] += ['s_waitcnt vmcnt(0)', f'v_mov_b32 v{V_T}, 7', f'ds_write_b32 v{V_OWN}, v{V_T}']
        e('\n'.join(pre))
        if OPT['gx'] & 1 or vpart == 2: M = ['s_nop 0'] * 8
        if OPT['gx'] & 2 or vpart == 2: gaps = [[x for x in g if 'tr_b16' not in x] for g in gaps]
        for i in range(8):
            e(M[i]); e('\n'.join(gaps[i]))
        stamp(14 + s)
if OPT['tskip']:
    sec('gt'); e('L_gemm_t:'); gemm1(2); e('s_branch L_gemm_done'); sec('mha')
else: SEC['gt'] = []
gemm1(False)
e('s_branch L_gemm_done\nL_gemm_v:')
gemm1(True)
e('L_gemm_done:')
stamp(3)
e(f"""s_add_u32 s{sS1}, s{sSt}, s{sS2}
s_add_u32 s{sXb}, s{sSt}, {4*KS}
s_add_u32 s{sCw}, s{sS1}, {4*KS}
s_waitcnt lgkmcnt(0)""")
PWS = 3 if OPT['pw'] else 1
e(f'v_cmp_gt_u32 vcc, {PWS}, v31\ns_cbranch_vccz L_eok\nv_add_u32 v31, 16, v{V_GRP}')
lwait(PWS, addr=31)
e(f'L_eok:\ns_cmp_eq_u32 s{S_C}, 7\ns_cbranch_scc1 L_nokv\ns_nop 2')
for q, so in enumerate((sSt, sS1, sXb, sCw)):
    for i in range(4*q, 4*q+4):
        e(f'v_cvt_pk_bf16_f32 v{VPK + i}, v{VACC + 2*i}, v{VACC + 2*i + 1}')
    e(f'buffer_store_dwordx4 {vr(VPK+4*q,4)}, v{vSt}, {sr(SRD_WS)}, s{so} offen sc1')
if OPT['ones']:
    e(f'''s_branch L_kvst
    L_nokv:
    v_mov_b64 v[128:129], s[78:79]
    v_mov_b64 v[130:131], s[78:79]
    v_lshlrev_b32 v132, 4, v{V_LANE}
    s_lshl2_add_u32 s{sTmp}, s{S_TILE}, s{S_W}
    s_lshl_b32 s{sTmp}, s{sTmp}, 8
    s_mul_i32 s{sTmp2}, s{S_HG}, {QS}
    s_add_u32 s{sTmp}, s{sTmp}, s{sTmp2}
    s_add_u32 s{sTmp}, s{sTmp}, {WS_V + 112*QS}
    s_mov_b64 exec, 0xffff
    buffer_store_dwordx4 v[128:131], v132, {sr(SRD_WS)}, s{sTmp} offen sc1
    s_mov_b64 exec, -1
    L_kvst:''')
else: e('L_nokv:')
assert OPT['wgf'] and OPT['ones'] and OPT['pf'] == 2
def kv_loads(buf, i, srdn=SRD_C):
    return [f'buffer_load_dwordx4 {vr(VK + 8*buf, 4)}, v{vKo0}, {sr(srdn)}, s{sK} offen offset:{512*i} sc1',
            f'buffer_load_dwordx4 {vr(VK + 8*buf + 4, 4)}, v{vKo1}, {sr(srdn)}, s{sK} offen offset:{512*i} sc1',
            f'buffer_load_dwordx4 {vr(VV + 8*buf, 4)}, v{vVo}, {sr(srdn)}, s{sV} offen offset:{256*i} sc1',
            f'buffer_load_dwordx4 {vr(VV + 8*buf + 4, 4)}, v{vVo}, {sr(srdn)}, s{sV} offen offset:{256*i + 128} sc1']
fill = [f'v_mov_b64 {vr(VV+2*i,2)}, s[78:79]' for i in range(12, 16)] + [f'v_subrev_u32 v{vRr}, {L_X - L_RB}, v{vQw}', 's_mov_b64 s[80:81], -1']
for s in range(3):
    fill += f"""s_add_u32 s{sTmp}, s{S_W}, {1+s}
    s_and_b32 s{sTmp}, s{sTmp}, 3
    s_sub_u32 s{sTmp}, s{sTmp}, s{S_W}
    s_mul_i32 s{sTmp}, s{sTmp}, 12288
    v_add_u32 v{vQx[s]}, s{sTmp}, v{vQw}
    v_subrev_u32 v{vRb[s]}, {L_X - L_RB - 4096*s}, v{vQx[s]}""".split('\n')
def count_in(n):
    e(f"""v_mov_b32 v{V_T}, 1
    v_mov_b32 v31, 0
    s_waitcnt vmcnt({n})
    s_mov_b64 exec, 1
    ds_add_rtn_u32 v{vSt}, v31, v{V_T} offset:32
    s_mov_b64 exec, -1""")
def count_out(n):
    e(f's_waitcnt lgkmcnt({n})\nv_readfirstlane_b32 s{sTmp2}, v{vSt}\ns_cmp_lg_u32 s{sTmp2}, 3\ns_cbranch_scc1 L_nopub')
    publish(sFl, 31)
    e('L_nopub:'); stamp(5)
NM = max(NE, OPT['wq_mid'])
for st in range(NE, NM): e('\n'.join(wq_dma(st)))
stamp(4)
if NE < 7:
    e('\n'.join(fill)); fill = []
    count_in(NM - NE)
    if NM == 7:
        e('s_waitcnt vmcnt(0)'); arrive(7); count_out(1)
    else:
        count_out(0)
        for st in range(NM, 7): e('\n'.join(wq_dma(st)))
        e('s_waitcnt vmcnt(0)'); arrive(7)
lwait(7)
stamp(6)
QB = [80, 84, 88, 92, 112, 116, 120, 124]
def q_reads(k):
    s, ks = divmod(k, 4)
    return [f'ds_read_b64_tr_b16 {vr(QB[k%8] + 2*hf, 2)}, v{vQr} offset:{ks*12288 + s*1024 + hf*256}' for hf in range(2)]
for k in range(6): e('\n'.join(q_reads(k)))
e('\n'.join(fill[:12])); fill = fill[12:]
zi = 0
PK = OPT['pubk'] if NE == 7 else -99
for k in range(28):
    extra = 1 if PK < k <= PK + 5 else 0
    e(f's_waitcnt lgkmcnt({min(10, 2*(27-k)) + extra})')
    e(f'v_mfma_f32_32x32x16_bf16 {vr(VACC,16)}, {vr(QB[k%8], 4)}, {vr(VX + 4*k, 4)}, {"0" if k == 0 else vr(VACC,16)}')
    if k + 6 < 28: e('\n'.join(q_reads(k + 6)))
    while zi < 40 and VX + 2*zi + 1 < VX + 4*k - 4 and zi < 2*k:
        e(f'v_mov_b64 {vr(VX + 2*zi, 2)}, 0'); zi += 1
    if k >= 22 or k < 2:
        e('\n'.join(fill[:4])); fill = fill[4:]
    if k == PK: count_in(0)
    if k == PK + OPT['wgf']: count_out(2*OPT['wgf'])
    if k == OPT['pollk']: e(f'buffer_load_dword v31, v{vFl}, {sr(SRD_WS)}, 0 offen sc1')
    if k == OPT['chkk']:
        e(f's_waitcnt vmcnt(0)\nv_cmp_ne_u32 vcc, s{S_NONCE}, v31\ns_mov_b64 s[80:81], vcc\ns_cbranch_vccnz L_kv_late')
        for t in range(2): e('\n'.join(kv_loads(t, t)))
        e('L_kv_late:')
assert zi == 40 and VX == VS + 48 and not fill
stamp(7)
e('s_nop 11')
for r in range(16):
    m = vA if r < 4 else (vB if r >= 12 else vC)
    e(f'v_mul_f32 v{VACC + r}, v{m}, v{VACC + r}')
for i in range(8):
    e(f'v_cvt_pk_bf16_f32 v{VQ + 24 + i}, v{VACC + 2*i}, v{VACC + 2*i + 1}')
e(f"""ds_write_b128 v{vQw}, {vr(VQ+24,4)}
ds_write_b128 v{vQw}, {vr(VQ+28,4)} offset:1024""")
arrive(8)
lwait(8)
for s in range(3):
    e(f'ds_read_b128 {vr(VQ+8*s,4)}, v{vQx[s]}\nds_read_b128 {vr(VQ+8*s+4,4)}, v{vQx[s]} offset:1024')
PF = OPT['pf']
if OPT['chkk'] < 28: e('s_cmp_eq_u64 s[80:81], 0\ns_cbranch_scc1 L_kv_done')
poll(vFl, first_issued=OPT['pollk'] < 28 and OPT['chkk'] > 27, reg=31, sleep=OPT['ksleep'])
for t in range(PF): e('\n'.join(kv_loads(t, t)))
e('L_kv_done:')
stamp(8)
OM = OPT['omode']
if OM:
    e(f'''s_lshr_b32 s{sTmp}, s{S_O0}, 3
    s_add_u32 s{sTmp2}, s{S_O0}, 3
    s_lshr_b32 s{sTmp2}, s{sTmp2}, 3
    s_sub_u32 s{sTmp2}, s{sTmp2}, s{sTmp}
    s_lshl_b32 s{sTmp2}, s{sTmp2}, 1
    s_lshl_b32 s{sTmp}, s{sTmp}, 1
    s_lshr_b32 s{sSt}, s{S_TILE}, 1
    s_lshl_b32 s{sSt}, s{sSt}, 6
    s_add_u32 s{sTmp}, s{sTmp}, s{sSt}
    s_lshl2_add_u32 s{sSt}, s{S_TILE}, s{S_W}
    s_bfe_u32 s{sS1}, s{sSt}, 0x20001
    s_mul_i32 s{sS1}, s{sS1}, 14
    s_add_u32 s{sTmp}, s{sTmp}, s{sS1}
    s_and_b32 s{sSt}, s{sSt}, 1
    s_add_u32 s{sTmp}, s{sTmp}, s{sSt}
    s_lshl_b32 s{sTmp}, s{sTmp}, {FSH}
    s_add_u32 s{sTmp}, s{sTmp}, {F_Y}
    v_and_b32 v{vFl}, 1, v{V_LANE}
    v_mul_u32_u24 v{vFl}, s{sTmp2}, v{vFl}
    v_and_b32 v31, 2, v{V_LANE}
    v_lshl_add_u32 v{vFl}, v31, 8, v{vFl}
    v_lshl_add_u32 v{vFl}, v{vFl}, {FSH}, s{sTmp}''')
def qk(buf, slot, js):
    d = vr(VS + 16*slot, 16)
    return f'v_mfma_f32_32x32x16_bf16 {d}, {vr(VK + 8*buf + 4*js, 4)}, {vr(VQ + 8*slot + 4*js, 4)}, {"0" if js == 0 else d}'
def pv(buf, slot, js):
    return f'v_smfmac_f32_32x32x32_bf16 {vr(VO + 16*slot, 16)}, {vr(VV + 8*buf + 4*js, 4)}, {vr(VS + 16*slot + 8*js, 8)}, v{vIdx}'
def exps(s): return [f'v_exp_f32 v{VS + 16*s + r}, v{VS + 16*s + r}' for r in range(16)]
SPREAD = []
def unit(t, s):
    ex = exps(s)
    if OPT['ax'] & 16 and s in (0, 1, 2):
        pass
    nb = t if s < 3 else (t + 1) & 3
    pb = t if s > 0 else (t - 1) & 3
    if s == 3: e(f's_waitcnt vmcnt({4*PF-4})')
    e(qk(nb, (s+1) & 3, 0)); e('\n'.join(ex[0:4]))
    e(qk(nb, (s+1) & 3, 1)); e('\n'.join(ex[4:8]))
    e(pv(pb, (s-1) & 3, 0))
    if s == 1:
        kl = kv_loads((t + PF) & 3, t + PF)
        if OPT['ax'] & 1: kl = [x for x in kl if 'exec' not in x]
        if OPT['ax'] & 2: kl = [x for x in kl if 'buffer' not in x]
        if OPT['ax'] & 4: kl = [x.replace(' sc1', '') for x in kl]
        if OPT['ax'] & 8: SPREAD.extend(kl); kl = []
        e('\n'.join(kl))
        if t == 3 - PF:
            e(f's_cmp_eq_u32 s{sIt}, 3\ns_cselect_b32 s{SRD_C+2}, 0, s{SRD_C+2}')
        if t == 3:
            e(f's_add_u32 s{sK}, s{sK}, 2048\ns_add_u32 s{sV}, s{sV}, 1024\ns_add_u32 s{sIt}, s{sIt}, 1\ns_cmp_lg_u32 s{sIt}, 4')
    e('\n'.join(ex[8:12]))
    e(pv(pb, (s-1) & 3, 1)); e('\n'.join(ex[12:16]))
e(f's_mov_b32 s{sIt}, 0\ns_waitcnt vmcnt({4*PF - 4}) lgkmcnt(0)')
stamp(9)
e(qk(0, 0, 0)); e(qk(0, 0, 1))
e(f"s_setprio {OPT['pa']}\ns_nop 8\ns_branch L_att_in" if OPT['prio'] else 's_nop 9\ns_branch L_att_in')
e('L_att:')
unit(3, 2); unit(3, 3)
e('L_att_in:')
for t in range(4):
    for s in range(4):
        if (t, s) < (3, 2): unit(t, s)
e('s_cbranch_scc1 L_att')
if OPT['prio']: e(f"s_setprio {OPT['pm']}")
if OM: e(f'buffer_load_dword v31, v{vFl}, {sr(SRD_WS)}, 0 offen sc1')
def rbw(s): return [f'ds_write_b128 v{vRb[s]}, {vr(VO + 16*s + 4*i, 4)} offset:{1024*i}' for i in range(4)]
ex = exps(2); w0 = rbw(0)
e(qk(3, 3, 0)); e('\n'.join(ex[0:4])); e(qk(3, 3, 1)); e('\n'.join(ex[4:7] + [w0[0]]))
e(pv(3, 1, 0)); e('\n'.join(ex[7:10] + [w0[1]])); e(pv(3, 1, 1)); e('\n'.join(ex[10:13] + [w0[2]] + ex[13:16] + [w0[3]]))
ex = exps(3); w1 = rbw(1); w2 = rbw(2)
e(pv(3, 2, 0)); e('\n'.join(ex[0:3])); e(pv(3, 2, 1))
e('\n'.join([w1[0]] + ex[3:5] + [w1[1]] + ex[5:7] + [w1[2]] + ex[7:9] + [w1[3]] + ex[9:10]))
e(pv(3, 3, 0))
e('\n'.join([w2[0]] + ex[10:12] + [w2[1]] + ex[12:14] + [w2[2]] + ex[14:16] + [w2[3]]))
arrive(9)
e(pv(3, 3, 1))
stamp(10)
lwait(9)
for i in range(12): e(f'ds_read_b128 {vr(VS + 4*i, 4)}, v{vRr} offset:{1024*i}')
OA = VO + 48
for s in range(3):
    e(f's_waitcnt lgkmcnt({8 - 4*s})')
    for i in range(8): e(f'v_pk_add_f32 {vr(OA+2*i,2)}, {vr(OA+2*i,2)}, {vr(VS+16*s+2*i,2)}')
e(f's_mov_b32 s{sIt}, {1 if OPT["force_fb"] else 0}')
e(f'''L_norm:
v_cndmask_b32 v{vA}, v{OA+12}, v{OA}, s[{sOdd}:{sOdd+1}]
v_max3_f32 v{vC}, abs(v{OA}), abs(v{OA+1}), abs(v{OA+2})
v_mov_b32 v{vB}, v{vA}
v_max3_f32 v{vC}, abs(v{OA+3}), abs(v{OA+4}), v{vC}
v_max3_f32 v{vC}, abs(v{OA+5}), abs(v{OA+6}), v{vC}
v_permlane32_swap_b32 v{vA}, v{vB}
v_max3_f32 v{vC}, abs(v{OA+7}), abs(v{OA+8}), v{vC}
v_cndmask_b32 v{vB}, v{vB}, v{vA}, s[{sOdd}:{sOdd+1}]
v_max3_f32 v{vC}, abs(v{OA+9}), abs(v{OA+10}), v{vC}
v_rcp_f32 v{vA}, v{vB}
v_max3_f32 v{vC}, abs(v{OA+11}), abs(v{OA+12}), v{vC}
v_max3_f32 v{vC}, abs(v{OA+13}), abs(v{OA+14}), v{vC}
v_max_f32 v{vC}, abs(v{OA+15}), v{vC}
v_cmp_nle_f32 vcc, 0x30800000, v{vB}
s_mov_b64 s[78:79], vcc
v_cmp_nge_f32 vcc, 0x4e800000, v{vB}
s_or_b64 s[78:79], s[78:79], vcc
v_cmp_ngt_f32 vcc, 0x7f000000, v{vC}
s_or_b64 vcc, s[78:79], vcc''')
if OPT['force_fb']:
    e(f's_cmp_eq_u32 s{sIt}, 1\ns_cbranch_scc1 L_fb')
e('s_cbranch_vccnz L_fb0\nL_norm2:')
for i in range(8): e(f'v_pk_mul_f32 {vr(OA+2*i,2)}, {vr(OA+2*i,2)}, {vr(vA,2)} op_sel_hi:[1,0]')
for i in range(8): e(f'v_cvt_pk_bf16_f32 v{VS+i}, v{OA+2*i}, v{OA+2*i+1}')
if OM: poll(vFl, first_issued=2, reg=31)
o_stores(VS, VS + 4, '')
stamp(11)
if OM == 4: publish(sFo, vA)
if OPT['obar'] == 1: e('s_barrier')
if OPT['obar'] >= 3: e(f"s_waitcnt vmcnt({5 - OPT['obar'] + (OM == 4)})\ns_barrier")
if OM == 0:
    e('s_waitcnt vmcnt(0)'); publish(sFo, vA)
if OPT['obar'] == 2: e('s_barrier')
stamp(12)
prof_out()
e('s_endpgm')

for tag, st in SPIN:
    e(f'L_ws_{tag}:'); lwait(st); e(f's_branch L_wb_{tag}')
sec('fb')
e(f'''L_fb0:
s_cmp_eq_u32 s{sIt}, 2
s_cbranch_scc1 L_norm2
L_fb:
s_waitcnt vmcnt(0)
s_mul_i32 s{sTmp}, s{S_O0}, {KS}
s_add_u32 s{sK}, s{sTmp}, {WS_K}
s_add_u32 s{sV}, s{sTmp}, {WS_V}
v_mov_b32 v{vC}, 0xff800000
s_mov_b32 s{sIt}, 0
L_fb1:''')
e('\n'.join(kv_loads(0, 0, SRD_WS)[:2]))
e('s_waitcnt vmcnt(0)')
e(qk(0, 3, 0)); e(qk(0, 3, 1)); e('s_nop 11')
for i in range(8): e(f'v_max3_f32 v{vC}, v{VS+48+2*i}, v{VS+49+2*i}, v{vC}')
e(f'''s_add_u32 s{sK}, s{sK}, 512
s_add_u32 s{sIt}, s{sIt}, 1
s_cmp_lg_u32 s{sIt}, 64
s_cbranch_scc1 L_fb1
v_mov_b32 v{vA}, v{vC}
s_sub_u32 s{sK}, s{sK}, 0x8000
s_mov_b32 s{sIt}, 0
v_permlane32_swap_b32 v{vA}, v{vC}
v_max_f32 v{vC}, v{vA}, v{vC}''')
for i in range(8): e(f'v_mov_b64 {vr(OA+2*i,2)}, 0')
e('L_fb2:')
e('\n'.join(kv_loads(0, 0, SRD_WS)))
e('s_waitcnt vmcnt(0)')
e(qk(0, 3, 0)); e(qk(0, 3, 1)); e('s_nop 11')
for i in range(16): e(f'v_sub_f32 v{VS+48+i}, v{VS+48+i}, v{vC}')
for i in range(16): e(f'v_exp_f32 v{VS+48+i}, v{VS+48+i}')
e('s_nop 1')
e(pv(0, 3, 0)); e(pv(0, 3, 1))
e(f'''s_add_u32 s{sK}, s{sK}, 512
s_add_u32 s{sV}, s{sV}, 256
s_add_u32 s{sIt}, s{sIt}, 1
s_cmp_lg_u32 s{sIt}, 64
s_cbranch_scc1 L_fb2
s_mov_b32 s{sIt}, 2
s_nop 11
s_branch L_norm''')

sD0, sD, sHw, sDs, sTab, sA, sB, sLd, sSk, sIt2, sFlU, sInv, sUns, sSel, sUl, sOl, sCh0 = range(60, 77)
sUs, sOut, sHm = 78, 80, 82
sE2, sP, sE3, sKd, sCo = 84, 85, 86, 87, 77
OUTM = 'sc1' if OPT['outsc'] & 1 else ''
OUTM2 = 'sc1' if OPT['outsc'] & 2 else ''
a0, a1, a2, a3 = 5, 6, 7, 9
vPar = 10
vKc = 18
vRa, vRb_, vKd, vKd1, vKa, vKa0, vFu, vE1, vE1b, vFr, vKxo, vKxp, vPair, vRz, vBk, vA0, vA1, vKb, vSB, vSB0 = range(20, 40)
vSel = 180
vAc = 40
vOne, vScl, vAdd, vC0 = range(56, 60)
vOp = 64
vY = 128
vXt = 144
vAn = 166
vX1 = 172
T0, T1 = 160, 176
vZ = 192
U = 204
vZer = 220
vUa, vCd, vG_, vZp, vKp, vF_, vL16, vXo, vXp, vTr, vYl, vYs, vFy = range(224, 237)
vWoD = 238
vWoR = 240
vOl, vFo, vBw, vBr, vOut = range(242, 247)
def hi():
    if OPT['prio']: e('s_setprio 3')
KG = [True]
def lo():
    if OPT['prio']: e(f"s_setprio {OPT['kgp'] if KG[0] else OPT['ps']}")
ROLE[0] = 1
sec('ssm0')
e(f"""s_lshr_b32 s{sDs}, s{S_W}, 1
s_lshl_b32 s{sD0}, s{S_C}, 6
s_lshl1_add_u32 s{sD0}, s{S_J}, s{sD0}
s_add_u32 s{sD}, s{sD0}, s{sDs}
s_cmp_{'eq' if OPT['only'] != 2 else 'le'}_u32 s{S_C}, 7
s_cbranch_scc1 L_ssm_idle
s_mul_i32 s{sTab}, s{S_W}, {TABSZ}
s_add_u32 s{sTab}, s{sTab}, {L_TAB}
s_lshl1_add_u32 s{sA}, s{sD0}, s{S_W}
s_lshl_b32 s{sA}, s{sA}, 8
v_lshl_add_u32 v{a0}, v{V_LANE}, 2, s{sA}
v_lshrrev_b32 v{a1}, 3, v{V_LANE}
v_mul_u32_u24 v{a1}, 896, v{a1}
v_and_b32 v{a2}, 7, v{V_LANE}
v_lshl_add_u32 v{a1}, v{a2}, 4, v{a1}
v_add_u32 v{a2}, {7168-1024}, v{a1}
s_lshl2_add_u32 s{sFlU}, s{S_J}, s{S_W}
s_mul_i32 s{sA}, s{sFlU}, {16*896}
s_lshl_b32 s{sB}, s{S_C}, 7
s_add_u32 s{sA}, s{sA}, s{sB}
s_mov_b32 m0, s{sTab}
s_lshl_b32 s{sB}, s{sD0}, 1
s_mov_b32 s{SRD_A+2}, {2048*896}
s_mov_b32 s{SRD_A+3}, 0x20000
s_waitcnt lgkmcnt(0)
s_load_dword s{sLd}, s[14:15], s{sB}
s_load_dword s{sSk}, s[16:17], s{sB}
s_mov_b64 s[{SRD_A}:{SRD_A+1}], s[4:5]
global_load_dword v{vPar+0}, v{a0}, s[6:7]
global_load_dword v{vPar+1}, v{a0}, s[8:9]
global_load_dword v{vPar+2}, v{a0}, s[10:11]
global_load_dword v{vPar+3}, v{a0}, s[12:13]
buffer_load_dwordx4 v{a1}, {sr(SRD_A)}, s{sA} offen lds
buffer_load_dwordx4 v{a2}, {sr(SRD_A)}, s{sA} offen offset:1024 lds
global_load_dword v{vPar+4}, v{V_T}, s[28:29]""")
if OPT['tlb'] != 2: e('s_barrier')
if OPT['tlb']:
    e(f'''v_and_b32 v{a0}, 7, v{V_LANE}
    v_min_u32 v{a0}, 5, v{a0}
    v_lshlrev_b32 v{a0}, 21, v{a0}
    v_add_u32 v{a0}, 0xf8000, v{a0}
    v_mov_b32 v{a1}, 0
    global_load_dword v8, v{a0}, s[28:29]
    global_load_dword v8, v{a1}, s[22:23]''')
if OPT['tlb'] == 2: e('s_barrier')
e('s_branch L_ssm')
sec('ssm')
e('L_ssm:')
if OPT['abl'] == 1:
    arrive(1); e('s_waitcnt vmcnt(0) lgkmcnt(0)\ns_endpgm')
lo()
srd(SRD_WS, 28, WS_SIZE)
e(f"""s_lshl_b32 s{sUs}, s{sFlU}, 7
s_mul_i32 s{sA}, s{S_C}, {16*QS}
s_add_u32 s{sUs}, s{sUs}, s{sA}
s_add_u32 s{sUs}, s{sUs}, {WS_U}
s_add_u32 s{sUs+1}, s{sUs}, {8*QS}
s_lshl_b32 s{sA}, s{S_C}, 7
s_add_u32 s{sFlU}, s{sFlU}, s{sA}
s_mul_i32 s{sFlU}, s{sFlU}, {US}
s_add_u32 s{sFlU}, s{sFlU}, {F_U}
s_and_b32 s{sHw}, s{S_W}, 1
v_add_u32 v{V_GRP}, 16, v{V_GRP}
v_and_b32 v{a0}, 15, v{V_LANE}
v_lshrrev_b32 v{a1}, 4, v{V_LANE}
v_lshl_add_u32 v{vRb_}, v{a1}, 4, s{sTab}
v_mul_u32_u24 v{a2}, {TROW}, v{a0}
v_add_u32 v{vRa}, v{a2}, v{vRb_}
v_lshlrev_b32 v{vL16}, 4, v{V_LANE}
v_bfe_u32 v{a0}, v{V_LANE}, 2, 2
v_and_b32 v{a3}, 1, v{V_LANE}
v_lshl_or_b32 v{a2}, v{a3}, 3, v{a0}
v_xor_b32 v{a2}, 3, v{a2}
v_lshl_add_u32 v{vTr}, v{a2}, 7, v{vRb_}
v_and_b32 v{a2}, 2, v{V_LANE}
v_lshl_add_u32 v{vTr}, v{a2}, 2, v{vTr}
v_lshrrev_b32 v{a1}, 3, v{V_LANE}
v_and_b32 v{a2}, 0x70, v{vL16}
v_mul_u32_u24 v{a1}, {QS}, v{a1}
v_add_u32 v{vYl}, v{a1}, v{a2}
v_mov_b32 v{vOne}, 0x3c00""")
for i in range(8): e(f'v_mov_b64 {vr(vAc+2*i,2)}, 0')
mid = f"""v_and_b32 v{a0}, 31, v{V_LANE}
s_lshl2_add_u32 s{sB}, s{S_C}, s{S_W}
s_mul_i32 s{sB}, s{sB}, {32*US}
s_add_u32 s{sB}, s{sB}, {F_U}
v_mul_u32_u24 v{vFu}, {US}, v{a0}
v_add_u32 v{vFu}, s{sB}, v{vFu}
v_and_b32 v{a0}, 7, v{V_LANE}
s_mul_i32 s{sP}, s{sDs}, {P_SZ}
s_add_u32 s{sP}, s{sP}, {L_TAB}
s_add_u32 s{sKd}, s{sP}, {P_KD}
s_lshl_b32 s{sB}, s{sHw}, 8
s_add_u32 s{sInv}, s{sB}, s{sKd}
s_add_u32 s{sA}, s{sInv}, {1088 + 128}
v_lshl_add_u32 v{vRz}, v{a0}, 4, s{sA}
v_mov_b32 v{vKb}, s{sKd}
v_and_b32 v{a0}, 15, v{V_LANE}
v_lshrrev_b32 v{a1}, 4, v{V_LANE}
s_lshl_b32 s{sA}, s{sHw}, 4
v_add_u32 v{a0}, s{sA}, v{a0}
v_and_b32 v{a3}, 1, v{V_LANE}
v_mul_u32_u24 v{a2}, 255, v{a3}
v_sub_u32 v{a2}, v{a2}, v{a0}
s_add_u32 s{sA}, s{sKd}, {1088 + 32}
v_add_u32 v{vKa}, s{sA}, v{a2}
v_add_u32 v{vKa0}, 96, v{vKa}
s_lshl3_add_u32 s{sA}, s{sDs}, 16
v_lshl_add_u32 v{vPair}, v{a3}, 2, s{sA}
s_mul_i32 s{sA}, s{sHw}, {1088 + 112 - 1024}
s_add_u32 s{sA}, s{sA}, s{sKd}
s_add_u32 s{sA}, s{sA}, 1024
v_writelane_b32 v{vKa0}, s{sA}, 0
s_mul_i32 s{sA}, s{sHw}, 56
s_sub_u32 s{sA}, s{sKd}, s{sA}
s_add_u32 s{sA}, s{sA}, 1088
v_writelane_b32 v{vKa0}, s{sA}, 16
v_max_u32 v{a2}, 1, v{a1}
v_sub_u32 v{a2}, 5, v{a2}
v_lshlrev_b32 v{a0}, v{a2}, v{a0}
v_lshlrev_b32 v{a2}, 3, v{a1}
s_mov_b32 s{sA}, 0x60400100
v_bfe_u32 v{a1}, s{sA}, v{a2}, 8
v_lshl_add_u32 v{a0}, v{a1}, 3, v{a0}
v_add_u32 v{vKd}, s{sKd}, v{a0}
s_mov_b32 s{sA}, 0x80040404
v_bfe_u32 v{a1}, s{sA}, v{a2}, 8
v_add_u32 v{vKd1}, v{a1}, v{vKd}
v_lshrrev_b32 v{a1}, 1, v{V_LANE}
v_lshlrev_b32 v{vUa}, 6, v{a1}
v_lshl_add_u32 v{vUa}, v{a3}, 4, v{vUa}
s_lshr_b32 s{sA}, s{sD0}, 2
s_mul_i32 s{sA}, s{sA}, {QS}
s_and_b32 s{sB}, s{sD0}, 3
s_lshl4_add_u32 s{sA}, s{sB}, s{sA}
s_lshl_b32 s{sB}, s{S_W}, 12
s_add_u32 s{sA}, s{sA}, s{sB}
s_add_u32 s{sUl}, s{sA}, {WS_U}
v_and_b32 v{a1}, 3, v{a1}
v_lshl_add_u32 v{a1}, v{a3}, 2, v{a1}
v_mul_u32_u24 v{a1}, {PS}, v{a1}
v_lshrrev_b32 v{a2}, 3, v{V_LANE}
v_lshl_add_u32 v{a1}, v{a2}, 4, v{a1}
s_lshl_b32 s{sA}, s{S_W}, 8
s_add_u32 s{sA}, s{sA}, {L_KP + 512}
v_add_u32 v{vKp}, s{sA}, v{a1}
; byte selectors that expand the distinct taps to the lags (lag l uses the tap at bf16(l), as in the reference)
v_lshrrev_b32 v{a1}, 5, v{V_LANE}
s_lshl_b32 s{sA}, s{sHw}, 1
v_max_u32 v{a0}, s{sA}, v{a1}
v_min_u32 v{a2}, 1, v{a0}
v_mul_u32_u24 v{a2}, 0x0202, v{a2}
v_lshlrev_b32 v{a2}, 16, v{a2}
v_sub_u32 v{vSel}, 0x03020100, v{a2}
v_mul_u32_u24 v{a2}, 0x0202, v{a0}
v_lshl_or_b32 v{a2}, v{a2}, 16, v{a2}
v_sub_u32 v{vSel+1}, 0x07060504, v{a2}
s_mul_i32 s{sA}, s{sHw}, 0x02020202
v_add_u32 v{vSel+2}, s{sA}, v{vSel}
s_mul_i32 s{sA}, s{sHw}, 0x02020404
v_add_u32 v{vSel+3}, s{sA}, v{vSel+1}
v_lshrrev_b32 v{a2}, v{a0}, v{vL16}
s_movk_i32 s{sA}, 256
v_lshl_add_u32 v{a2}, s{sA}, v{a0}, v{a2}
s_sub_u32 s{sA}, s{sKd}, 256
v_add_u32 v{vE1}, s{sA}, v{a2}
v_lshlrev_b32 v{a2}, 2, v{a0}
v_sub_u32 v{vE1b}, v{vE1}, v{a2}
s_mov_b32 s{sA}, 0x0c0c0c0c
s_cmp_lg_u32 s{sHw}, 0
s_cselect_b32 s{sE2}, 0x01000100, s{sA}
s_cselect_b32 s{sE3}, 0x05040302, s{sA}
v_mov_b32 v{vSel+4}, s{sA}
v_mov_b32 v{vSel+5}, s{sA}
v_mov_b32 v{vSel+6}, s{sA}
v_mov_b32 v{vSel+7}, s{sA}
s_mov_b32 s{sA}, 0x05040504
s_mov_b64 exec, 15
v_mov_b32 v{vSel+4}, s{sA}
v_mov_b32 v{vSel+5}, s{sA}
v_mov_b32 v{vSel+6}, s{sA}
s_mov_b64 exec, -1
v_writelane_b32 v{vSel+7}, s{sA}, 3
s_mov_b32 s{sA}, 0x05040302
v_writelane_b32 v{vSel+4}, s{sA}, 3
s_mov_b32 s{sA}, 0x0c0c0504
v_writelane_b32 v{vSel+6}, s{sA}, 0
v_writelane_b32 v{vSel+7}, s{sA}, 2
; plane reads, shifted copies
s_mul_i32 s{sA}, s{S_W}, {2*PS}
s_add_u32 s{sA}, s{sA}, {L_KP}
v_mul_u32_u24 v{a2}, {PS - 512}, v{a1}
v_add3_u32 v{vG_}, v{a2}, v{vL16}, s{sA}
v_mov_b64 {vr(vZer,2)}, 0
v_mov_b64 {vr(vZer+2,2)}, 0
ds_write_b128 v{vG_}, {vr(vZer,4)}
s_lshl_b32 s{sA}, s{sHw}, 10
s_add_u32 s{sB}, s{sP}, {P_UC}
s_add_u32 s{sA}, s{sA}, s{sB}
s_add_u32 s{sA}, s{sA}, 64
v_add_u32 v{vCd}, s{sA}, v{vL16}
v_and_b32 v{a3}, 3, v{V_LANE}
v_and_b32 v{a0}, 0x1c, v{V_LANE}
v_lshlrev_b32 v{a2}, 2, v{a0}
v_and_b32 v{vZp}, 0x30, v{a2}
s_mov_b32 exec_hi, 0
v_add_u32 v{vZp}, 2112, v{a2}
s_mov_b64 exec, -1
v_mul_u32_u24 v{a2}, {UC_S}, v{a3}
v_add3_u32 v{vZp}, v{vZp}, v{a2}, s{sB}
v_lshlrev_b32 v{a0}, 1, v{a0}
v_sub_u32 v{a0}, v{a0}, v{a2}
v_lshlrev_b32 v{a1}, 4, v{a1}
v_sub_u32 v{a0}, v{a0}, v{a1}
s_lshl_b32 s{sA}, s{sHw}, 5
s_sub_u32 s{sB}, s{sB}, s{sA}
s_add_u32 s{sB}, s{sB}, {56 + 3*UC_S}
v_add_u32 v{vF_}, s{sB}, v{a0}
v_add_u32 v{vG_}, {512 - 80}, v{vG_}
v_add_u32 v{vKxo}, s{sTab}, v{vL16}
s_xor_b32 s{sA}, s{S_W}, 1
s_mul_i32 s{sA}, s{sA}, {TABSZ}
s_add_u32 s{sA}, s{sA}, {L_TAB}
v_add_u32 v{vKxp}, s{sA}, v{vL16}
v_and_b32 v{a0}, 31, v{V_LANE}
v_lshlrev_b32 v{a2}, 2, v{a0}
v_sub_u32 v{a2}, v{a1}, v{a2}
s_add_u32 s{sA}, s{sInv}, {1088 + 124}
v_add_u32 v{vBk}, s{sA}, v{a2}
"""
def prewrite():
    e(f'''s_sub_u32 s{sA}, 3, s{S_HG}
    v_lshrrev_b32 v{a0}, s{sA}, v{V_LANE}
    v_lshlrev_b32 v{a1}, s{sA}, v{a0}
    v_sub_u32 v{a1}, v{V_LANE}, v{a1}
    s_lshr_b32 s{sA}, s{S_KS}, s{S_HG}
    v_mul_u32_u24 v{a0}, s{sA}, v{a0}
    v_lshl_add_u32 v{a0}, v{a1}, 6, v{a0}
    s_lshl2_add_u32 s{sA}, s{S_TILE}, s{S_W}
    s_lshl_b32 s{sA}, s{sA}, 9
    s_lshr_b32 s{sA}, s{sA}, s{S_HG}
    s_mul_i32 s{sB}, s{S_HG}, {WS_V - WS_K}
    s_add_u32 s{sA}, s{sA}, s{sB}
    s_mul_i32 s{sB}, s{S_C}, {8*KS}
    s_add_u32 s{sA}, s{sA}, s{sB}
    s_add_u32 s{sA}, s{sA}, {WS_K}''')
    hi(); e(f'buffer_store_dword v{a0}, v{a0}, {sr(SRD_WS)}, s{sA} offen sc1'); lo()
if OPT['pw'] == 1: prewrite()
e(mid)
if OPT['pw'] == 2: prewrite()
stamp(22)
e(f"""s_waitcnt lgkmcnt(0)
s_lshl_b32 s{sA}, s{sDs}, 4
s_lshr_b32 s{sLd}, s{sLd}, s{sA}
s_lshl_b32 s{sLd}, s{sLd}, 16
s_lshr_b32 s{sSk}, s{sSk}, s{sA}
s_lshl_b32 s{sSk}, s{sSk}, 16
v_mov_b32 v{a0}, s{sLd}
v_mul_f32 v{a0}, 0x3fb8aa3b, v{a0}
v_exp_f32 v{a0}, v{a0}
s_cmp_eq_u32 s{sHw}, 0
s_cselect_b32 s{sSk}, s{sSk}, 0
v_cvt_pk_bf16_f32 v{a0}, v{a0}, v{a0}
v_and_b32 v{vScl}, 0xffff0000, v{a0}
v_mul_f32 v{vKc}, 0xbfb8aa3b, v{vScl}
v_mul_f32 v{vKc+1}, 0.15915494, v{vScl}
v_mov_b32 v{vAdd}, 0
v_add_f32 v{vScl}, v{vScl}, v{vScl}
v_writelane_b32 v{vAdd}, s{sSk}, 0
s_mov_b32 s{sIt2}, 0
s_mov_b32 s{sSel}, 0x01000c0c""")
stamp(0)
e(f"""s_waitcnt vmcnt(3)
v_and_b32 v{a0}, 0x7f807f80, v{vPar+2}
v_and_b32 v{a1}, 0x7f807f80, v{vPar+3}
v_pk_max_u16 v{a0}, v{a0}, v{a1}
v_lshlrev_b32 v{a1}, 16, v{a0}
v_max_u32 v{a0}, v{a0}, v{a1}
s_waitcnt vmcnt(1)""")
for q, n in enumerate((1, 2, 4, 8)):
    z, hf = divmod(q, 2)
    e(f'ds_read_b64_tr_b16 {vr(U + 4*z + 2*hf, 2)}, v{vTr} offset:{64*z + 512*(1-hf)}')
    e(f's_nop 0\nv_max_u32_dpp v{a0}, v{a0}, v{a0} row_ror:{n} row_mask:0xf bank_mask:0xf')
e(f"""s_nop 0
v_readlane_b32 s{sA}, v{a0}, 0
v_readlane_b32 s{sB}, v{a0}, 16
v_readlane_b32 s{sInv}, v{a0}, 32
v_readlane_b32 s{sUns}, v{a0}, 48
s_max_u32 s{sA}, s{sA}, s{sB}
s_max_u32 s{sUns}, s{sUns}, s{sInv}
s_max_u32 s{sUns}, s{sUns}, s{sA}
s_and_b32 s{sUns}, s{sUns}, 0x7f800000
s_min_u32 s{sUns}, s{sUns}, 0x7e800000
s_sub_u32 s{sInv}, 0x7f000000, s{sUns}
v_mul_f32 v{vScl}, s{sUns}, v{vScl}
v_mul_f32 v{vSB}, 0x43000000, v{vScl}
v_mov_b32 v{vSB0}, v{vSB}
s_mov_b64 exec, 1
v_mov_b32 v{vSB0}, v{vScl}
s_mov_b64 exec, -1""")
hi()
e(f"""s_waitcnt lgkmcnt(0)
buffer_store_dwordx4 {vr(U,4)}, v{vYl}, {sr(SRD_WS)}, s{sUs} offen sc1
buffer_store_dwordx4 {vr(U+4,4)}, v{vYl}, {sr(SRD_WS)}, s{sUs+1} offen sc1""")
lo()
e(f'ds_write_addtid_b32 v{vOne}')
stamp(1)
if OPT['abl'] == 2: e('s_endpgm')
def cm(jobs, conj):
    ng = 'neg_hi:[1,0,0]' if conj else 'neg_lo:[1,0,0]'
    return [f'v_pk_mul_f16 v{d}, v{x}, v{w} op_sel_hi:[1,0]' for d, x, w in jobs] + \
           [f'v_pk_fma_f16 v{d}, v{x}, v{w}, v{d} op_sel:[1,1,0] op_sel_hi:[0,1,1] {ng}' for d, x, w in jobs]
def wr(reg): return f'ds_write_addtid_b32 v{reg} offset:{TROW*(reg - vY)}'
assert vXt == vY + 16
zA, zB, tA, tB, pA, pB = vZ, vZ+2, vZ+4, vZ+6, vZ+8, vZ+10
X = vXt; Y = vY
an = {1: vAn, 2: vAn+1, 4: vAn+2, 8: Y+1, 16: Y+2, 32: Y+4, 64: Y+8, 128: X+21, 256: vAn+3, 512: vAn+4, 1024: vAn+5}
e('L_kg:')
stamp(14)
seq = f"""v_perm_b32 v{pA}, v{vPar}, v{vPar}, s{sSel}
v_mul_f32 v{pA}, 0x3fb8aa3b, v{pA}
v_exp_f32 v{pA}, v{pA}
v_perm_b32 v{pA+1}, v{vPar+1}, v{vPar+1}, s{sSel}
v_perm_b32 v{tA}, v{vPar+2}, v{vPar+2}, s{sSel}
v_perm_b32 v{tA+1}, v{vPar+3}, v{vPar+3}, s{sSel}
v_cvt_pk_bf16_f32 v{pA}, v{pA}, v{pA}
v_mul_f32 v{tA}, s{sInv}, v{tA}
v_and_b32 v{pA}, 0xffff0000, v{pA}
v_mul_f32 v{tA+1}, s{sInv}, v{tA+1}
v_pk_mul_f32 {vr(pA,2)}, {vr(pA,2)}, {vr(vKc,2)}
v_cvt_pk_f16_f32 v{X}, v{tA}, -v{tA+1}
v_mul_f32 v{pB}, 0x42800000, v{pA}
v_mul_f32 v{pB+1}, 0x42800000, v{pA+1}
v_exp_f32 v{pA}, v{pA}
v_fract_f32 v{pA+1}, v{pA+1}
v_exp_f32 v{pB}, v{pB}
v_fract_f32 v{pB+1}, v{pB+1}
v_cos_f32 v{zA}, v{pA+1}
v_sin_f32 v{zA+1}, v{pA+1}
v_cos_f32 v{zB}, v{pB+1}
v_sin_f32 v{zB+1}, v{pB+1}
v_pk_mul_f32 {vr(zA,2)}, {vr(zA,2)}, {vr(pA,2)} op_sel_hi:[1,0]
v_pk_mul_f32 {vr(zB,2)}, {vr(zB,2)}, {vr(pB,2)} op_sel_hi:[1,0]""".split('\n')
for st in range(6):
    chains = [(zA, tA, an[1 << st], st < 5)] + ([(zB, tB, an[64 << st], st < 4)] if st < 5 else [])
    for z, t, d, sq in chains:
        if sq: seq.append(f'v_pk_mul_f32 {vr(t,2)}, {vr(z,2)}, {vr(z,2)} op_sel_hi:[0,1]')
    for z, t, d, sq in chains: seq.append(f'v_cvt_pk_f16_f32 v{d}, v{z}, v{z+1}')
    for z, t, d, sq in chains:
        if sq: seq.append(f'v_pk_fma_f32 {vr(z,2)}, {vr(z,2)}, {vr(z,2)}, {vr(t,2)} op_sel:[1,1,0] op_sel_hi:[0,1,1] neg_lo:[1,0,0]')
seq += cm([(X+1, X, an[1]), (X+2, X, an[2]), (X+4, X, an[4]), (X+8, X, an[256]), (X+12, X, an[512]), (X+16, X, an[1024])], True)
seq += cm([(Y+3, Y+1, Y+2), (Y+12, Y+4, Y+8), (Y+5, Y+4, Y+1), (Y+6, Y+4, Y+2), (Y+9, Y+8, Y+1), (Y+10, Y+8, Y+2)], False)
seq += cm([(X+3, X+1, an[2]), (X+5, X+1, an[4]), (X+6, X+2, an[4]), (X+9, X+2, an[256]), (X+10, X+4, an[256]), (X+13, X+4, an[512]),
           (X+14, X+8, an[512]), (X+17, X+8, an[1024]), (X+18, X+12, an[1024]), (X+20, X+16, an[1024])], True)
seq += cm([(Y+7, Y+4, Y+3), (Y+11, Y+8, Y+3), (Y+13, Y+12, Y+1), (Y+14, Y+12, Y+2), (Y+15, Y+12, Y+3)], False)
seq += cm([(X+7, X+3, an[4]), (X+11, X+6, an[256]), (X+15, X+10, an[512]), (X+19, X+14, an[1024])], True)
e('\n'.join(seq))
stamp(15)
if OPT['kgw']:
    e(f'v_subrev_u32 v{a0}, 16, v{V_GRP}'); lwait(OPT['kgw'], addr=a0)
hi()
if OPT['abl'] != 4: e('\n'.join(wr(r) for r in range(Y + 1, X + 22)))
for k in range(4):
    o = vOp + 16*k
    e(f"""ds_read_b128 {vr(o,4)}, v{vRa} offset:{64*k}
    ds_read_b128 {vr(o+4,4)}, v{vRb_} offset:{37*TROW + 64*k}
    ds_read_b128 {vr(o+8,4)}, v{vRa} offset:{16*TROW + 64*k}
    ds_read_b128 {vr(o+12,4)}, v{vRa} offset:{32*TROW + 64*k}""")
if not OPT['uw']: e(f's_cmp_eq_u32 s{sIt2}, 0\ns_cbranch_scc1 L_kg_n\nbuffer_load_dword v{vFr}, v{vFu}, {sr(SRD_WS)}, 0 offen sc1\nL_kg_n:')
stamp(16)
def mf(c, a, b): return f'v_mfma_f32_16x16x32_f16 {vr(c,4)}, {vr(a,4)}, {vr(b,4)}, {vr(c,4)}'
late_m = []
for k in range(4):
    o = vOp + 16*k; y1 = vX1 + 4*(k & 1)
    p = cm([(y1+r, o+r, o+4+r) for r in range(4)], False)
    e(f's_waitcnt lgkmcnt({12 - 4*k})')
    e('\n'.join([mf(vAc, o+8, o)] + p[0:2] + late_m[:1] + p[2:4] + [mf(vAc+4, o+12, o)] + p[4:6] + late_m[1:] + p[6:8]))
    late_m = [mf(vAc+8, o+8, y1), mf(vAc+12, o+12, y1)]
e(f"""s_add_u32 s{sSel}, s{sSel}, 0x02020000
s_add_u32 s{sIt2}, s{sIt2}, 1
s_cmp_lg_u32 s{sIt2}, 2""")
e('\n'.join(late_m))
def u_pub():
    e(f's_waitcnt vmcnt(0)\nv_readfirstlane_b32 s{sA}, v{vPar+4}\ns_add_u32 s{S_NONCE}, s{sA}, 1'); publish(sFlU, a0)
if OPT['upub'] == 1:
    e('s_cbranch_scc0 L_kg_e'); u_pub(); lo(); e('s_branch L_kg\nL_kg_e:')
else:
    lo(); e('s_cbranch_scc1 L_kg'); hi(); u_pub()
lo()
stamp(17)
if OPT['abl'] in (4, 8): e('s_endpgm')
def scl(i): return vSB0 if i == 4 else (vSB if i & 4 else vScl)
for i in range(8): e(f'v_mul_f32 v{vAc+i}, v{scl(i)}, v{vAc+i}')
e(f's_cmp_eq_u32 s{sHw}, 0')
for i in range(8, 16): e(f'v_mul_f32 v{vAc+i}, v{scl(i)}, v{vAc+i}')
e('s_cbranch_scc1 L_kx')
for i in range(8): e(f'v_swap_b32 v{vAc+i}, v{vAc+8+i}')
e(f"""L_kx:
ds_write_b128 v{vKxo}, {vr(vAc+8,4)}
s_mov_b32 exec_hi, 0
ds_write_b128 v{vKxo}, {vr(vAc+12,4)} offset:1024
s_mov_b64 exec, -1""")
arrive(2)
e(f'v_add_f32 v{vAc}, v{vAdd}, v{vAc}')
stamp(18)
def bprio():
    if OPT['prio']: e(f"s_setprio {OPT['bp']}")
def u_look():
    hi(); e(f'buffer_load_dword v{vFr}, v{vFu}, {sr(SRD_WS)}, 0 offen sc1'); bprio()
def u_fetch():
    hi()
    stamp(20)
    poll(vFu, first_issued=True, reg=vFr, sleep=OPT['usleep'])
    stamp(21)
    for k in range(2):
        e(f'buffer_load_dwordx4 {vr(U+4*k,4)}, v{vUa}, {sr(SRD_WS)}, s{sUl} offen offset:{2048*k} sc1')
    bprio()
if OPT['uw'] == -2: u_look()
else: bprio()
stamp(19)
lwait(2, addr=vPair)
e(f"""ds_read_b128 {vr(vAc+8,4)}, v{vKxp}
ds_read_b128 {vr(vAc+12,4)}, v{vKxp} offset:1024
ds_write_b128 v{vRz}, {vr(vZer,4)}
s_mov_b32 s{sIt2}, 4
s_waitcnt lgkmcnt(1)""")
for i in range(4): e(f'v_pk_add_f32 {vr(vAc+2*i,2)}, {vr(vAc+2*i,2)}, {vr(vAc+8+2*i,2)}')
for i in range(4): e(f'v_cvt_pk_bf16_f32 v{vAc+8+i}, v{vAc+2*i}, v{vAc+2*i+1}')
e(f"""ds_write_b32 v{vKd}, v{vAc+8}
ds_write_b32 v{vKd1}, v{vAc+9}
s_mov_b64 exec, 0x1ffff
ds_write_b16 v{vKa0}, v{vAc+10}
s_mov_b64 exec, 0xffff
ds_write_b16_d16_hi v{vKa}, v{vAc+10} offset:64
ds_write_b16 v{vKa}, v{vAc+11} offset:32
ds_write_b16_d16_hi v{vKa}, v{vAc+11}
s_mov_b64 exec, -1""")
if OPT['pw']: e('s_waitcnt vmcnt(0)')
arrive(3)
if OPT['uw'] == -1: u_look()
if OPT['uw'] == -2: u_fetch()
lwait(3, addr=vPair)
stamp(2)
E = 64; BF = 40
e(f"""ds_read2_b32 {vr(E,2)}, v{vE1} offset1:1
ds_read2_b32 {vr(E+2,2)}, v{vE1b} offset0:2 offset1:3
ds_read2_b32 {vr(E+4,2)}, v{vKb} offset0:191 offset1:192
ds_read_b32 v{E+6}, v{vKb} offset:1020
ds_read_b32 v{E+7}, v{vKb} offset:1024""")
for q in range(8): e(f'ds_read2_b32 {vr(BF+2*q,2)}, v{vBk} offset0:{8*(q>>1) + 2*(q&1)} offset1:{8*(q>>1) + 2*(q&1) + 1}')
b = E + 12; t = E + 16
e(f"""s_waitcnt lgkmcnt(10)
v_perm_b32 v{b+2}, v{E+2}, v{E+2}, v{vSel+2}
v_perm_b32 v{b+3}, v{E+3}, v{E+2}, v{vSel+3}
v_perm_b32 v{b-2}, v{E+5}, v{E+4}, s{sE2}
v_perm_b32 v{b-1}, v{E+5}, v{E+4}, s{sE3}
v_perm_b32 v{b}, v{E}, v{E}, v{vSel}
v_perm_b32 v{b+1}, v{E+1}, v{E}, v{vSel+1}
v_mov_b32_dpp v{b-2}, v{b+2} wave_shr:1 row_mask:0xf bank_mask:0xf
v_mov_b32_dpp v{b-1}, v{b+3} wave_shr:1 row_mask:0xf bank_mask:0xf
ds_write_b128 v{vCd}, {vr(b,4)}""")
for i in range(4): e(f'v_alignbit_b32 v{t+i}, v{b+i}, v{b+i-1}, 16')
e(f'ds_write_b128 v{vCd}, {vr(t,4)} offset:{UC_S}')
for i in range(4): e(f'v_mov_b32 v{t+4+i}, v{b+i-1}')
e(f'ds_write_b128 v{vCd}, {vr(t+4,4)} offset:{2*UC_S}')
for i in range(4): e(f'v_alignbit_b32 v{t+8+i}, v{b+i-1}, v{b+i-2}, 16')
e(f'ds_write_b128 v{vCd}, {vr(t+8,4)} offset:{3*UC_S}\ns_waitcnt lgkmcnt(12)')
for i in range(4): e(f'v_perm_b32 v{t+12+i}, v{E+7}, v{E+6}, v{vSel+4+i}')
e(f'ds_write_b128 v{vZp}, {vr(t+12,4)}')
if OPT['uw'] == -1: u_fetch()
stamp(3)
e(f'v_and_b32 v{a0}, 31, v{V_LANE}')
swap23(a1, a0, a2)
e(f"""v_lshrrev_b32 v{a2}, 5, v{V_LANE}
v_lshl_add_u32 v{a1}, v{a1}, 1, v{a2}
s_add_u32 s{sA}, s{sHw}, 123
v_add_u32 v{a1}, s{sA}, v{a1}
s_mul_i32 s{sA}, s{sDs}, {PD}
s_add_u32 s{sA}, s{sA}, {L_KP}
v_and_b32 v{a3}, 3, v{a1}
v_mul_u32_u24 v{a3}, {PS - 4}, v{a3}
v_lshl_add_u32 v{a3}, v{a1}, 2, v{a3}
v_add_u32 v{vA0}, s{sA}, v{a3}
v_add_u32 v{a1}, 2, v{a1}
v_and_b32 v{a3}, 3, v{a1}
v_mul_u32_u24 v{a3}, {PS - 4}, v{a3}
v_lshl_add_u32 v{a3}, v{a1}, 2, v{a3}
v_add_u32 v{vA1}, s{sA}, v{a3}
v_lshlrev_b32 v{a2}, 3, v{a2}
v_sub_u32 v{a2}, v{a2}, v{a0}
v_cvt_f32_i32 v{a2}, v{a2}
v_add_f32 v{a3}, -1.0, v{a2}
v_add_f32 v{a2}, -2.0, v{a2}
v_cvt_pk_f16_f32 v8, v{a3}, v{a2}
s_waitcnt vmcnt(1)
ds_write_b128 v{vKp}, {vr(U,4)}
s_waitcnt vmcnt(0)
ds_write_b128 v{vKp}, {vr(U+4,4)} offset:128""")
arrive(4)
AP, BD, DP = 112, 136, 192
band = [f's_mov_b32 s{sA}, 0x4a204a20', f's_cmp_eq_u32 s{sHw}, 0', f's_cselect_b32 s{sE2}, 0x4d104d10, s{sA}', f's_mov_b32 s{sE3}, 0x4d804d80']
for q in range(12):
    band.append(f'v_pk_fma_f16 v{BD+q}, v8, v8, s{sE2} neg_lo:[1,0,0] neg_hi:[1,0,0] clamp')
    if q < 11: band.append(f'v_pk_add_f16 v8, v8, s{sE3}' if q % 4 == 3 else 'v_pk_add_f16 v8, v8, -2.0 op_sel_hi:[1,0]')
e('\n'.join(band))
lwait(4)
KG[0] = False
lo()
stamp(4)
if OPT['abl'] == 16: e('s_endpgm')
CB = 64
def cv_reads(k):
    b = CB + 12 * (k & 3)
    return [f'ds_read_b64 {vr(b,2)}, v{vF_} offset:{64*k}', f'ds_read_b64 {vr(b+2,2)}, v{vF_} offset:{64*k + 8}',
            f'ds_read_b128 {vr(b+8,4)}, v{vG_} offset:{512 + 80 - 16*k}', f'ds_read_b128 {vr(b+4,4)}, v{vG_} offset:{80 - 16*k}']
for tau in range(2):
    for kp in range(3): e(f'ds_read_b128 {vr(AP + 12*tau + 4*kp, 4)}, v{(vA0, vA1)[kp & 1]} offset:{256*tau + 16*(kp >> 1)}')
e('\n'.join(cv_reads(0) + cv_reads(1)))
assert OM == 3
late = f"""s_mov_b64 s[{SRD_B}:{SRD_B+1}], s[22:23]
s_mov_b32 s{SRD_B+2}, {448*896}
s_mov_b32 s{SRD_B+3}, 0x20000
s_mov_b64 s[{SRD_C}:{SRD_C+1}], s[24:25]
s_mov_b32 s{SRD_C+2}, {2048*1792}
s_mov_b32 s{SRD_C+3}, 0x20000
v_lshrrev_b32 v{a1}, 3, v{V_LANE}
v_and_b32 v{a2}, 7, v{V_LANE}
v_and_b32 v{a0}, 0x70, v{vL16}
v_mul_u32_u24 v{vYl}, {YS}, v{a1}
v_add_u32 v{vYl}, v{vYl}, v{a0}
v_lshlrev_b32 v{a3}, 2, v{V_LANE}
v_and_b32 v{a3}, 64, v{a3}
v_xor_b32 v{a0}, v{a0}, v{a3}
v_mul_u32_u24 v{vWoD}, 896, v{a1}
v_xor_b32 v{a3}, v{a1}, v{a2}
v_lshlrev_b32 v{a3}, 4, v{a3}
v_lshl_add_u32 v{vOut}, v{vWoD}, 1, v{a3}
v_add_u32 v{vWoD}, v{a0}, v{vWoD}
v_add_u32 v{vWoD+1}, {7168-1024}, v{vWoD}
v_lshrrev_b32 v{a0}, 4, v{V_LANE}
v_bfe_u32 v{a1}, v{V_LANE}, 2, 2
v_lshl_or_b32 v{a3}, v{a0}, 3, v{a1}
v_lshlrev_b32 v{a3}, 7, v{a3}
v_lshrrev_b32 v{a1}, 1, v{a1}
v_lshl_add_u32 v{a3}, v{a1}, 6, v{a3}
v_and_b32 v{a1}, 0x30, v{vL16}
s_movk_i32 s{sA}, {L_WO}
v_add3_u32 v{vWoR}, v{a1}, v{a3}, s{sA}
v_xor_b32 v{vWoR+1}, 64, v{vWoR}
v_and_b32 v{a1}, 15, v{V_LANE}
v_lshlrev_b32 v{vOl}, 4, v{a1}
v_mad_u32_u24 v{vOl}, v{a0}, s{S_KS}, v{vOl}
s_mul_i32 s{sOl}, s{S_J}, 37
s_lshr_b32 s{sOl}, s{sOl}, 8
s_mul_i32 s{sA}, s{sOl}, 7
s_sub_u32 s{sCo}, s{S_J}, s{sA}
s_lshl2_add_u32 s{sOl}, s{S_C}, s{sOl}
s_lshl2_add_u32 s{sOl}, s{sOl}, s{S_W}
s_lshl_b32 s{sFlU}, s{sHw}, 9
s_add_u32 s{sFlU}, s{sFlU}, s{sD}
s_lshl_b32 s{sFlU}, s{sFlU}, {FSH}
s_add_u32 s{sFlU}, s{sFlU}, {F_Y}
s_lshl_b32 s{sA}, s{sCo}, {1 + FSH}
s_sub_u32 s{sA}, s{sFlU}, s{sA}
v_min_u32 v{vFo}, 6, v{a1}
v_lshl_add_u32 v{vFo}, v{vFo}, {1 + FSH}, s{sA}
s_lshl_b32 s{sA}, s{S_W}, 11
s_add_u32 s{sA}, s{sA}, {L_SSM}
v_xor_b32 v{a3}, v{a0}, v{a2}
v_lshl_add_u32 v{a3}, v{a3}, 4, s{sA}
v_lshl_add_u32 v{vBw}, v{a1}, 7, v{a3}
v_add_u32 v{vBr}, s{sA}, v{vL16}
s_mul_i32 s{sOut}, s{sOl}, {16*1792}
s_lshl_b32 s{sA}, s{sCo}, 7
s_add_u32 s{sOut}, s{sOut}, s{sA}
s_add_u32 s{sOut}, s{sOut}, 896
s_add_u32 s{sOut+1}, s{sOut}, {8*1792}
s_lshl_b32 s{sOl}, s{sOl}, 8
s_add_u32 s{sOl}, s{sOl}, {WS_O}
s_lshl2_add_u32 s{sCh0}, s{S_C}, s{S_W}
s_lshl_b32 s{sCh0}, s{sCh0}, 4
s_lshr_b32 s{sA}, s{S_J}, 4
s_lshl_b32 s{sA}, s{sA}, 9
s_add_u32 s{sA}, s{sA}, s{sCh0}
s_lshl_b32 s{sA}, s{sA}, {FSH}
s_add_u32 s{sA}, s{sA}, {F_Y}
v_lshl_add_u32 v{vFy}, v{a1}, {FSH}, s{sA}
v_and_b32 v{a1}, 11, v{V_LANE}
v_lshl_or_b32 v{a1}, v{a0}, 5, v{a1}
v_mul_u32_u24 v{a1}, 1792, v{a1}
v_and_b32 v{a3}, 4, v{V_LANE}
v_lshl_add_u32 v{vYs}, v{a3}, 2, v{a1}
s_lshl_b32 s{sA}, s{sHw}, 12
s_add_u32 s{sB}, s{sP}, {P_X + 4096}
s_sub_u32 s{sB}, s{sB}, s{sA}
v_add_u32 v{vXp}, s{sB}, v{vL16}
s_add_u32 s{sA}, s{sA}, s{sP}
s_add_u32 s{sA}, s{sA}, {P_X}
v_add_u32 v{vXo}, s{sA}, v{vL16}
v_lshl_add_u32 v{vRb_}, v{a0}, 4, s{sA}
v_bfe_u32 v{a0}, v{V_LANE}, 2, 2
v_and_b32 v{a3}, 1, v{V_LANE}
v_lshl_or_b32 v{a2}, v{a3}, 3, v{a0}
v_lshl_add_u32 v{vTr}, v{a2}, 7, v{vRb_}
v_and_b32 v{a2}, 2, v{V_LANE}
v_lshl_add_u32 v{vTr}, v{a2}, 2, v{vTr}""".split('\n')
LATE_T = late[:late.index(f's_lshl_b32 s{sA}, s{sHw}, 12')]
def fill(n):
    e('\n'.join(late[:n])); del late[:n]
fill(16)
e('s_waitcnt lgkmcnt(8)')
for kp in range(3):
    for tau in range(2):
        d = vr(DP + 16*tau, 16)
        e(f'v_mfma_f32_32x32x16_bf16 {d}, {vr(AP + 12*tau + 4*kp, 4)}, {vr(BD + 4*kp, 4)}, {"0" if kp == 0 else d}')
        fill(6)
def cv_iter(first):
    for k in range(4):
        b = CB + 12 * k
        rd = cv_reads(k + 2)
        z = first and k == 0
        e('s_waitcnt lgkmcnt(4)')
        e(f'v_mfma_f32_32x32x16_bf16 {vr(T1,16)}, {vr(b,4)}, {vr(b+8,4)}, {"0" if z else vr(T1,16)}')
        e('\n'.join(rd))
        if k == 3:
            e(f'v_add_u32 v{vF_}, 256, v{vF_}\nv_subrev_u32 v{vG_}, 64, v{vG_}')
            if not first: e(f's_add_u32 s{sIt2}, s{sIt2}, 1\ns_cmp_lg_u32 s{sIt2}, 11')
        e(f'v_mfma_f32_32x32x16_bf16 {vr(T0,16)}, {vr(b,4)}, {vr(b+4,4)}, {"0" if z else vr(T0,16)}')
        if first: fill(6 if k < 3 else 99)
cv_iter(True)
e('L_cv:')
cv_iter(False)
e('s_cbranch_scc1 L_cv')
cv = [f'v_cvt_pk_bf16_f32 v{AP+i}, v{DP+2*i}, v{DP+2*i+1}' for i in range(16)]
for k in range(2):
    e('\n'.join(cv[4*k:4*k+4]))
    e(f's_waitcnt lgkmcnt({4 - 4*k})')
    e(f'v_mfma_f32_32x32x16_bf16 {vr(T1,16)}, {vr(CB+12*k,4)}, {vr(CB+12*k+8,4)}, {vr(T1,16)}')
for q in range(4):
    e('\n'.join(cv[8+4*q:12+4*q]))
    e(f'v_mfma_f32_32x32x16_bf16 {vr(T1,16)}, {vr(AP+4*q,4)}, {vr(BF+4*q,4)}, {vr(T1,16)}')
if OPT['prio']: e(f"s_setprio {OPT['pr']}")
stamp(5)
if OPT['abl'] == 32: e('s_endpgm')
e(f"""s_mul_i32 s{sA}, s{sD}, {YS}
s_lshl_b32 s{sB}, s{sHw}, 11
s_add_u32 s{sA}, s{sA}, s{sB}
s_add_u32 s{sA}, s{sA}, {WS_Y}
s_nop 4""")
def xch(give, keep):
    for i in range(4): e(f'ds_write_b128 v{vXp}, {vr(give+4*i,4)} offset:{1024*i}')
    arrive(6); lwait(6, addr=vPair)
    for i in range(4): e(f'ds_read_b128 {vr(give+4*i,4)}, v{vXo} offset:{1024*i}')
    e('s_waitcnt lgkmcnt(0)')
e(f's_cmp_eq_u32 s{sHw}, 0\ns_cbranch_scc1 L_x0')
xch(T0, T1)
e('s_branch L_x1\nL_x0:')
xch(T1, T0)
e('L_x1:')
for i in range(8): e(f'v_pk_add_f32 {vr(T0+2*i,2)}, {vr(T0+2*i,2)}, {vr(T1+2*i,2)}')
for i in range(8): e(f'v_cvt_pk_bf16_f32 v{T1+i}, v{T0+2*i}, v{T0+2*i+1}')
e(f"""buffer_store_dwordx4 {vr(T1,4)}, v{vL16}, {sr(SRD_WS)}, s{sA} offen sc1
buffer_store_dwordx4 {vr(T1+4,4)}, v{vL16}, {sr(SRD_WS)}, s{sA} offen offset:1024 sc1
s_cmp_ge_u32 s{S_J}, 28
s_cbranch_scc1 L_nomark
L_tjoin:
v_mov_b64 {vr(T0,2)}, -1
v_mov_b64 {vr(T0+2,2)}, -1
s_mul_i32 s{sA}, s{sCo}, {8*KS}
s_add_u32 s{sA}, s{sA}, s{sOl}
s_add_u32 s{sSk}, s{sA}, {4*KS}
buffer_store_dwordx4 {vr(T0,4)}, v{vOl}, {sr(SRD_WS)}, s{sA} offen sc1
buffer_store_dwordx4 {vr(T0,4)}, v{vOl}, {sr(SRD_WS)}, s{sSk} offen sc1
L_nomark:
v_subrev_u32 v{a0}, 16, v{V_GRP}""")
sync(7)
if OPT['only'] != 1: lwait(7, addr=a0, sleep=1)
e('s_waitcnt vmcnt(0)')
publish(sFlU, a0)
stamp(6)
if OPT['abl'] == 33: e('s_endpgm')
e(f"""s_cmp_ge_u32 s{S_J}, 28
s_cbranch_scc1 L_nowo
s_mul_i32 s{sA}, s{S_W}, {16*896}
s_lshl_b32 s{sB}, s{sCo}, 7
s_add_u32 s{sA}, s{sA}, s{sB}
s_lshl_b32 s{sB}, s{S_W}, 11
s_add_u32 s{sB}, s{sB}, {L_WO}""")
for ch in range(7):
    e(f"""s_add_u32 m0, s{sB}, {8192*ch}
    s_add_u32 s{sSk}, s{sA}, {64*896*ch}
    buffer_load_dwordx4 v{vWoD}, {sr(SRD_B)}, s{sSk} offen lds
    buffer_load_dwordx4 v{vWoD+1}, {sr(SRD_B)}, s{sSk} offen offset:1024 lds
    s_waitcnt vmcnt({OPT['wodepth'] if ch < 6 else 0})""")
WF, OF, OC = 8, 168, 224
sync(8)
stamp(7)
if OPT['abl'] == 34: e('s_endpgm')
def wo_reads(k):
    r = []
    for t in range(4):
        for hf in range(2):
            r.append(f'ds_read_b64_tr_b16 {vr(WF + 16*(k%10) + 4*t + 2*hf, 2)}, v{vWoR + (t>>1)} offset:{4096*k + 512*hf + 8*(t&1)}')
    return r
for k in range(10): e('\n'.join(wo_reads(k)))
e(f's_cmp_eq_u32 s{S_C}, 7\ns_cbranch_scc1 L_noy\nL_nowo:')
arrive(9)
e(f"""; transposition back: 16 channels x line j
s_mul_i32 s{sA}, s{sCh0}, {YS}
s_lshl_b32 s{sSk}, s{S_J}, 7
s_add_u32 s{sA}, s{sA}, s{sSk}
s_add_u32 s{sA}, s{sA}, {WS_Y}
s_add_u32 s{sSk}, s{sA}, {8*YS}""")
poll(vFy, sleep=OPT['ysleep'], reg=a0)
stamp(8)
if OPT['abl'] == 35: e('s_endpgm')
e(f"""buffer_load_dwordx4 {vr(OF,4)}, v{vYl}, {sr(SRD_WS)}, s{sA} offen sc1
buffer_load_dwordx4 {vr(OF+4,4)}, v{vYl}, {sr(SRD_WS)}, s{sSk} offen sc1
s_lshr_b32 s{sA}, s{S_J}, 4
s_lshl_b32 s{sA}, s{sA}, 10
s_and_b32 s{sB}, s{S_J}, 3
s_lshl_b32 s{sB}, s{sB}, 8
s_add_u32 s{sA}, s{sA}, s{sB}
s_and_b32 s{sB}, s{S_J}, 8
s_lshl1_add_u32 s{sA}, s{sB}, s{sA}
s_and_b32 s{sB}, s{S_J}, 4
s_add_u32 s{sA}, s{sA}, s{sB}
s_mul_i32 s{sA}, s{sA}, 1792
s_lshl1_add_u32 s{sA}, s{sCh0}, s{sA}
s_add_u32 s{sB}, s{sA}, {128*1792}""")
lwait(9)
e(f"""s_waitcnt vmcnt(0)
ds_write_b128 v{vXo}, {vr(OF,4)}
ds_write_b128 v{vXo}, {vr(OF+4,4)} offset:1024""")
for z in range(2):
    for hf in range(2):
        e(f'ds_read_b64_tr_b16 {vr(OF + 8 + 4*z + 2*hf, 2)}, v{vTr} offset:{64*z + 512*hf}')
e(f"""s_cmp_ge_u32 s{S_J}, 28
s_waitcnt lgkmcnt(0)
buffer_store_dwordx4 {vr(OF+8,4)}, v{vYs}, {sr(SRD_C)}, s{sA} offen {OUTM}
buffer_store_dwordx4 {vr(OF+12,4)}, v{vYs}, {sr(SRD_C)}, s{sB} offen {OUTM}
s_cbranch_scc1 L_end""")
if OPT['only'] == 1:
    stamp(9); stamp(13); prof_out(); e('s_endpgm')
e(f'L_noy:\nv_xor_b32 v{a0}, 64, v{vBw}\ns_waitcnt lgkmcnt(0)')
poll(vFo, sleep=8)
sOk, sLast = 4, 18
for k in range(14): e(f's_add_u32 s{sOk+k}, s{sOl}, {4*KS*k}')
stamp(9)
e('s_barrier        ; released once the four attention waves have stored their rows')
stamp(10)
if OPT['osleep']: e(f"s_sleep {OPT['osleep']}")
if OM != 3: poll(vFo, sleep=OPT['hsleep'])
if OM: e(f's_min_u32 s{S_BOUND}, s{S_BOUND}, 0x4000')
stamp(11)
def o_load(k): return f'buffer_load_dwordx4 {vr(OF+4*k,4)}, v{vOl}, {sr(SRD_WS)}, s{sOk+k} offen sc1'
def o_chk(k):
    o = OF + 4*k
    return [f's_waitcnt vmcnt({13-k})', f'v_max3_u32 v6, v{o}, v{o+1}, v{o+2}', f'v_max_u32 v6, v6, v{o+3}', 'v_cmp_eq_u32 vcc, -1, v6']
for k in range(14): e(o_load(k))
if OM: e('\n'.join(o_chk(0)))
for k in range(14):
    o = OF + 4*k
    m = [f'v_mfma_f32_16x16x32_bf16 {vr(OC+4*t,4)}, {vr(WF + 16*(k%10) + 4*t, 4)}, {vr(o,4)}, {"0" if k == 0 else vr(OC+4*t,4)}' for t in range(4)]
    rd = wo_reads(k + 9) if 1 <= k <= 4 else []
    if k == 10: e('s_waitcnt lgkmcnt(0)')
    if OM:
        e(f's_cbranch_vccnz L_or{k}\nL_og{k}:')
        c = o_chk(k + 1) if k < 13 else ['', '', '', '']
        e('\n'.join([m[0]] + rd[:4] + [m[1]] + rd[4:] + [m[2], c[0], c[1], c[2], m[3], c[3]]))
    else:
        e(f's_waitcnt vmcnt({13-k})'); e('\n'.join(m + rd))
stamp(12)
e('s_nop 4')
for i in range(8): e(f'v_cvt_pk_bf16_f32 v{16+i}, v{OC+2*i}, v{OC+2*i+1}')
e(f"""ds_write_b128 v{vBw}, {vr(16,4)}
ds_write_b128 v{a0}, {vr(20,4)}
ds_read_b128 {vr(24,4)}, v{vBr}
ds_read_b128 {vr(28,4)}, v{vBr} offset:1024
s_or_b32 s{sA}, s2, s{S_W}
s_waitcnt lgkmcnt(1)
buffer_store_dwordx4 {vr(24,4)}, v{vOut}, {sr(SRD_C)}, s{sOut} offen {OUTM2}
s_waitcnt lgkmcnt(0)
buffer_store_dwordx4 {vr(28,4)}, v{vOut}, {sr(SRD_C)}, s{sOut+1} offen {OUTM2}
s_cbranch_scc1 L_noepoch""")
publish(sA, 6)
e('L_noepoch:')
if OPT['prof']:
    e('s_waitcnt vmcnt(0)')
stamp(13)
prof_out()
e('L_end:\ns_endpgm')
if OM:
    for k in range(14):
        c = o_chk(k)
        e(f'''L_or{k}:
        s_call_b64 s[90:91], L_re{k}
        {c[0]}
        L_oc{k}:
        {c[1]}
        {c[2]}
        {c[3]}
        s_cbranch_vccz L_og{k}
        {'s_sleep %d' % OPT['rsleep'] if OPT['rsleep'] else ''}
        {o_load(k)}
        s_sub_u32 s{S_BOUND}, s{S_BOUND}, 1
        s_waitcnt vmcnt(0)
        s_cbranch_scc0 L_oc{k}
        s_mov_b32 s{S_BOUND}, 0
        s_branch L_og{k}''')
    for k in range(14): e(f'L_re{k}:\n{o_load(k)}')
    e('s_setpc_b64 s[90:91]')
sec('idle')
e(f"""L_ssm_idle:
s_cmp_{'ge' if OPT['only'] != 2 else 'le'}_u32 s{S_J}, {28 if OPT['only'] != 2 else 99}
s_waitcnt lgkmcnt(0)
s_barrier
s_cbranch_scc1 L_idle_end
s_load_dword s{S_NONCE}, s[28:29], 0""")
srd(SRD_WS, 28, WS_SIZE)
e(f"""s_and_b32 s{sHw}, s{S_W}, 1
v_add_u32 v{V_GRP}, 16, v{V_GRP}
v_lshlrev_b32 v{vL16}, 4, v{V_LANE}""")
e('\n'.join(LATE_T))
e(f's_waitcnt lgkmcnt(0)\ns_add_u32 s{S_NONCE}, s{S_NONCE}, 1')
if OPT['prio']: e(f"s_setprio {OPT['pr']}")
e('s_branch L_tjoin\nL_idle_end:')
arrive(1)
e('s_endpgm')
ORDER = [['pro', 'ssm0', 'mha0', 'idle', 'ssm', 'mha'], ['pro', 'ssm0', 'mha0', 'mha', 'ssm', 'idle'],
         ['pro', 'ssm0', 'mha0', 'ssm', 'mha', 'idle'], ['pro', 'ssm0', 'idle', 'mha0', 'mha', 'ssm']][OPT['ord']] + ['cold', 'gt', 'fb']
SEC.setdefault('cold', [])
def add_nt(n, pred):
    SEC[n] = [(l.replace(' lds', ' nt lds') if l.endswith(' lds') else l + ' nt') if pred(l) else l for l in SEC[n]]
for n in ('mha0', 'mha', 'gt'):
    if OPT['nt'] & 1: add_nt(n, lambda l: l.endswith(' lds') and sr(SRD_A) in l)
    if OPT['nt'] & 2: add_nt(n, lambda l: l.endswith(' lds') and sr(SRD_B) in l)
if OPT['nt'] & 4: add_nt('idle', lambda l: l.endswith(' lds'))
if OPT['nt'] & 8: add_nt('ssm0', lambda l: 'global_load' in l)
if OPT['nt'] & 16: add_nt('ssm', lambda l: l.endswith(' lds'))
if OPT['nt'] & 32: add_nt('ssm', lambda l: 'buffer_store' in l and sr(SRD_C) in l)
BODY = sum((SEC[n] for n in ORDER), [])
def sizes(lines):
    import subprocess, re, os, tempfile
    d = tempfile.mkdtemp()
    open(d + '/a.s', 'w').write('.amdgcn_target "amdgcn-amd-amdhsa--gfx950"\n.text\n' + '\n'.join(lines) + '\n')
    subprocess.check_call(['clang', '-x', 'assembler', '-target', 'amdgcn-amd-amdhsa', '-mcpu=gfx950', '-c', d + '/a.s', '-o', d + '/a.o'])
    o = subprocess.check_output(['llvm-objdump', '-d', '--mcpu=gfx950', d + '/a.o']).decode()
    return [4 * len(m.group(1).split()) for m in re.finditer(r'// [0-9A-F]{12}: ((?:[0-9A-F]{8} ?)+)', o)]
def is_ins(l):
    t = l.split(';')[0].strip()
    return bool(t) and not t.endswith(':')
def widen(l):
    import re
    t = l.split(';')[0].strip(); op = t.split()[0]
    if op.startswith('v_') and not op.startswith(('v_readfirstlane', 'v_swap', 'v_permlane', 'v_nop')):
        return l.replace(op, op + '_e64', 1)
    return None
if OPT['al']:
    sz = iter(sizes(BODY))
    I = [[l, next(sz) if is_ins(l) else 0] for l in BODY]
    res = []; addr = 0; nw = nn = 0
    for i, (l, n) in enumerate(I):
        if n == 8 and addr % 8 == 4:
            run = 0
            for l2, n2 in I[i:]:
                if n2 == 4: break
                run += n2 == 8
            cross = sum(1 for k in range(run) if (addr + 8*k) % 32 == 28)
            if cross:
                j = len(res) - 1; done = False; aj = addr
                while j >= 0 and res[j][1] in (0, 4):
                    aj -= res[j][1]
                    t = res[j][0].strip()
                    if t.startswith(('s_branch', 's_endpgm', 's_setpc')):
                        res.insert(j + 1, ['    s_nop 0', 4]); done = True; break
                    w = widen(res[j][0]) if res[j][1] == 4 and aj % 32 != 28 else None
                    if w:
                        res[j] = [w, 8]; done = True; nw += 1; break
                    j -= 1
                if not done and run >= OPT['alr']:
                    k = len(res)
                    while res[k-1][1] == 0: k -= 1
                    res.insert(k, ['    s_nop 0', 4]); done = True; nn += 1
                if done: addr += 4
        res.append([l, n]); addr += n
    BODY = [l for l, n in res]
    print('aligned: widened', nw, 'nops', nn, 'bytes', addr, file=sys.stderr)
hdr = open('header.txt').read()
txt = hdr + f'''; @launch grid=(256,1,1) block=(512,1,1) lds={L_TOT}
.amdgcn_target "amdgcn-amd-amdhsa--gfx950"
.text
.globl {KN}
.p2align 8
.type {KN},@function
{KN}:
''' + '\n'.join(BODY) + f'''
.section .rodata,"a"
.p2align 6
.amdhsa_kernel {KN}
  .amdhsa_next_free_vgpr 256
  .amdhsa_next_free_sgpr 102
  .amdhsa_accum_offset 256
  .amdhsa_group_segment_fixed_size 0
  .amdhsa_kernarg_size 104
  .amdhsa_user_sgpr_count 2
  .amdhsa_user_sgpr_kernarg_segment_ptr 1
  .amdhsa_system_sgpr_workgroup_id_x 1
.end_amdhsa_kernel
'''
open(sys.argv[1], 'w').write(txt)
```

```python
import sys, struct
def fl(x): return hex(struct.unpack('<I', struct.pack('<f', x))[0])

KN = 'concat_heads__ssm_conv_s4d__softmax_full_mha__prompt_kernel'
OPT = dict(pw=0, dm=0, rdf=0, rdv=0, rdt=0, only_st=0, ur=1, us=128, rd0=-1, rdm=0, probe=0, poff=0xc00000, nt=0, rdn=0, al=1, alr=6, fw=0, rsleep=0, hsleep=0, ord=3, nb=0, tb=13, tq=0, chkk=99, uw=-1, cw=0, s6=5, tskip=1, ones=1, pa=1, pr=2, pf=2, wgf=2, ax=0, bp=1, qa=7, n0=4, ilv=8, tlb=0, ulook=1, kgp=1, pad=0, ypad=0, omode=3, ksleep=0, usleep=4, obar=5, osleep=0, pubk=8, abl=0, touch=0, gs=0, kgw=0, xg=5, gx=0, pm=2, ps=0, rt=0, upub=1, kgx=0, outsc=0, ysleep=8, wodepth=4, wq_mid=0, pollk=99, rd=-1, rdrole=0, only=0, safe=0, rot=0, prof=0, fs=128, force_fb=0, wq_early=7, prio=1)
for a in sys.argv[2:]:
    k, v = a.split('=')
    assert k in OPT, k
    OPT[k] = int(v, 0)

FS = OPT['fs']
FSH = FS.bit_length() - 1
F_KV = 0x1000
F_O = F_KV + 1024 * FS
F_U = F_O + 1024 * FS
F_Y = F_U + 1024 * FS
F_H = F_Y + 1024 * FS
WS_K = 0x100000
WS_V = 0x300000
WS_O = 0x500000
WS_U = 0x700000
WS_Y = 0x900000
QS = 16384 + OPT['pad']; KS = 2 * QS; YS = 4096 + OPT['ypad']
S_KS = 57
WS_PROF = 0xb00000
F_U = 0xb80000 if OPT['us'] * OPT['ur'] > 4096 else F_U
US = OPT['us']
WS_SIZE = 0x1000000
L_SSM = 1024
L_W = 57344
L_RB = 65536
L_X = 114688
L_TOT = 163840
TROW = 288
TABSZ = 38 * TROW
L_TAB = L_SSM
P_SZ = 2 * TABSZ
P_UC = 1536
UC_S = 2240
P_KD = TABSZ + 1536
P_X = TABSZ
PS = 1552
PD = 4 * PS
L_KP = L_TAB + 4 * TABSZ
assert P_UC + 4 * UC_S <= TABSZ and P_KD + 1600 <= P_SZ and P_X + 8192 <= P_SZ and L_KP % 16 == 0 and L_KP + 2 * PD <= L_W
L_WO = L_SSM

S_WV, S_W, S_HG, S_C, S_TILE, S_J, S_H, S_NONCE, S_O0, S_ROT = range(30, 40)
SRD_WS, SRD_A, SRD_B, SRD_C = 40, 44, 48, 52
S_BOUND = 56
S_T0 = 58

SEC = {}
out = None
def sec(n):
    global out
    out = SEC.setdefault(n, [])
sec('pro')
def e(s):
    for l in s.split('\n'):
        l = l.strip()
        if l:
            out.append(l if l.endswith(':') else '    ' + l)
_lab = [0]
def lab(p):
    _lab[0] += 1
    return f'L_{p}_{_lab[0]}'
def vr(a, n):
    return f'v[{a}:{a+n-1}]' if n > 1 else f'v{a}'
def srd(d, b, n):
    e(f's_mov_b64 s[{d}:{d+1}], s[{b}:{b+1}]\ns_mov_b32 s{d+2}, {n}\ns_mov_b32 s{d+3}, 0x20000')
def sr(d): return f's[{d}:{d+3}]'

V_LANE, V_T, V_OWN, V_GRP, V_PROF = 0, 1, 2, 3, 4

ROLE = [0]
def stamp(i):
    if OPT['rd0'] == i and OPT['rdrole'] == ROLE[0]:
        e('s_memrealtime s[98:99]\ns_waitcnt lgkmcnt(0)')
    if OPT['rd'] == i and OPT['rdrole'] == ROLE[0]:
        e('s_memrealtime s[100:101]\ns_waitcnt lgkmcnt(0)')
    if (OPT['only_st'] >> (i + 32*min(ROLE[0], 1))) & 1 if OPT['only_st'] else OPT['prof'] > (i >= 14):
        e(f's_mem{"real" if OPT["rt"] else ""}time s[96:97]\ns_waitcnt lgkmcnt(0)\ns_sub_u32 s96, s96, s{98 if OPT["rt"] else S_T0}\nv_writelane_b32 v{V_PROF}, s96, {i}')
def prof_out():
    if OPT['rd'] >= 0 and OPT['rdrole'] == ROLE[0]:
        l = lab('pad')
        if ROLE[0] == 0 and not OPT['obar']: e('s_barrier')
        if ROLE[0] == 2: e('s_barrier')
        if OPT['rdf']: e(f"s_and_b32 s96, s2, {OPT['rdf']}\ns_cmp_lg_u32 s96, {OPT['rdv']}\ns_cbranch_scc1 L_end")
        if ROLE[0] == 0 and OPT['rdn']: e(f's_cmp_eq_u32 s{S_C}, 7\ns_cbranch_scc{2 - OPT["rdn"]} L_end')
        if OPT['rd'] == 98:
            e(f'''s_not_b32 s100, s100
            v_mov_b32 v5, s100
            v_mov_b32 v6, 0
            s_mov_b64 exec, 1
            global_atomic_umax v6, v5, s[26:27]
            s_waitcnt vmcnt(0)
            s_sleep 127
            s_sleep 127
            s_sleep 127
            s_sleep 127
            s_sleep 127
            global_load_dword v5, v6, s[26:27] sc1
            s_waitcnt vmcnt(0)
            v_readfirstlane_b32 s100, v5
            s_not_b32 s100, s100''')
        if OPT['probe']:
            op = {1: 'buffer_store_dwordx4 v[8:11], v5, s[52:55], s60 offen sc1', 2: 'buffer_load_dwordx4 v[8:11], v5, s[52:55], s60 offen sc1',
                  3: 'buffer_store_dwordx4 v[8:11], v5, s[52:55], s60 offen'}[OPT['probe'] & 3]
            if OPT['probe'] & 16: op = '\n'.join(op.replace('offen', f'offen offset:{1024*i}') for i in range(4))
            pre = 'buffer_load_dword v12, v6, s[52:55], s61 offen sc1\ns_waitcnt vmcnt(0)' if OPT['probe'] & 4 else ''
            if OPT['probe'] & 8: pre += '\nbuffer_store_dwordx4 v[8:11], v5, s[52:55], s60 offen sc1\ns_waitcnt vmcnt(0)\ns_sleep 40'
            e(f'''s_mov_b64 s[52:53], s[28:29]
            s_mov_b32 s54, 0x10000000
            s_mov_b32 s55, 0x20000
            L_prb:
            s_sleep 1
            s_memrealtime s[62:63]
            s_waitcnt lgkmcnt(0)
            s_sub_u32 s62, s62, s58
            s_cmp_lt_u32 s62, 3000
            s_cbranch_scc1 L_prb
            v_lshlrev_b32 v5, 4, v0
            v_mov_b32 v6, 0
            s_lshl2_add_u32 s60, s2, s{S_W}
            s_lshl_b32 s60, s60, {12 if OPT['probe'] & 16 else 10}
            s_add_u32 s60, s60, {OPT['poff']}
            s_mov_b32 s61, {OPT['poff'] + 0x180000}
            {pre}
            s_memrealtime s[62:63]
            s_waitcnt lgkmcnt(0)
            {op}
            s_waitcnt vmcnt(0)
            s_memrealtime s[100:101]
            s_waitcnt lgkmcnt(0)
            s_sub_u32 s100, s100, s62
            v_mov_b32 v8, s100
            s_lshl2_add_u32 s60, s2, s{S_W}
            s_lshl_b32 s60, s60, 2
            s_add_u32 s60, s60, {WS_PROF}
            buffer_store_dword v8, v6, s[52:55], s60 offen
            s_mul_i32 s100, s100, 20
            s_add_u32 s100, s100, s58''')
        elif OPT['rdm'] >= 3:
            key = {3: 's_and_b32 s96, s2, 7', 4: f's_mov_b32 s96, s{S_H}', 5: f's_mov_b32 s96, s{S_TILE}'}[OPT['rdm']]
            e(f'''s_sub_u32 s100, s100, s98
            s_sub_u32 s97, s98, s58
            s_mul_i32 s100, s100, 1000000
            s_mul_i32 s97, s97, 1000
            s_add_u32 s100, s100, s97
            s_add_u32 s100, s100, s2
            {key}
            s_lshl_b32 s96, s96, 2
            v_mov_b32 v5, s100
            v_mov_b32 v6, s96
            s_mov_b64 exec, 1
            global_atomic_umax v6, v5, s[26:27]
            s_waitcnt vmcnt(0)
            s_endpgm''')
        elif OPT['rdm'] == 2:
            e('''s_not_b32 s96, s58
            v_mov_b32 v5, s96
            v_mov_b32 v6, 0
            s_mov_b64 exec, 1
            global_atomic_umax v6, v5, s[26:27]
            s_waitcnt vmcnt(0)''' + '\ns_sleep 127' * 7 + '''
            global_load_dword v5, v6, s[26:27] sc1
            s_waitcnt vmcnt(0)
            v_readfirstlane_b32 s96, v5
            s_not_b32 s96, s96
            s_sub_u32 s100, s100, s96
            s_lshl_b32 s100, s100, 3
            s_add_u32 s100, s100, s96''')
        elif OPT['rdm']:
            e('s_sub_u32 s100, s100, s98')
            if OPT['rdt']: e(f"s_cmp_gt_u32 s100, {OPT['rdt']}\ns_cselect_b32 s100, 1280, 0")
            e('''v_mov_b32 v5, s100
            v_mov_b32 v6, 0
            s_mov_b64 exec, 1
            global_atomic_add v6, v5, s[26:27]
            s_waitcnt vmcnt(0)''' + '\ns_sleep 127' * 7 + '''
            global_load_dword v5, v6, s[26:27] sc1
            s_waitcnt vmcnt(0)
            v_readfirstlane_b32 s100, v5
            s_lshr_b32 s100, s100, 6
            s_add_u32 s100, s100, s58''')
        else: e('s_sub_u32 s100, s100, s98\ns_lshl_b32 s100, s100, 3\ns_add_u32 s100, s100, s58')
        e(f'''s_add_u32 s100, s100, 6000
        {l}:
        s_sleep 1
        s_memrealtime s[96:97]
        s_waitcnt lgkmcnt(0)
        s_sub_u32 s96, s96, s100
        s_cmp_lt_i32 s96, 0
        s_cbranch_scc1 {l}''')
    if OPT['prof']:
        e(f'''s_memrealtime s[96:97]
        s_waitcnt lgkmcnt(0)
        v_writelane_b32 v{V_PROF}, s96, 31
        v_writelane_b32 v{V_PROF}, s98, 30
        s_lshl_b32 s96, s2, 3
        s_add_u32 s96, s96, s{S_WV}
        s_lshl_b32 s96, s96, 7
        s_add_u32 s96, s96, {WS_PROF}
        v_lshlrev_b32 v{V_T}, 2, v{V_LANE}
        s_mov_b32 exec_hi, 0
        buffer_store_dword v{V_PROF}, v{V_T}, {sr(SRD_WS)}, s96 offen
        s_mov_b64 exec, -1''')

def arrive(stage):
    e(f'v_mov_b32 v{V_T}, {stage}\nds_write_b32 v{V_OWN}, v{V_T}')
def lwait(stage, addr=V_GRP, sleep=0):
    l = lab('lw')
    e(f'{l}:')
    if sleep: e(f's_sleep {sleep}')
    e(f'''ds_read_b32 v{V_T}, v{addr}
    s_waitcnt lgkmcnt(0)
    v_cmp_gt_u32 vcc, {stage}, v{V_T}''')
    if OPT['safe']:
        d = lab('ld')
        e(f'''s_cbranch_vccz {d}
        s_sub_u32 s{S_BOUND}, s{S_BOUND}, 1
        s_cbranch_scc0 {l}
        s_mov_b32 s{S_BOUND}, 0
        {d}:''')
    else:
        e(f's_cbranch_vccnz {l}')
def sync(stage):
    arrive(stage); lwait(stage)
def poll(voff, first_issued=False, sleep=0, reg=V_T):
    l, d, m = lab('pl'), lab('pd'), lab('pm')
    if first_issued == 2:
        e(f's_waitcnt vmcnt(0)\nv_cmp_ne_u32 vcc, s{S_NONCE}, v{reg}\ns_cbranch_vccnz {l}\n{d}:')
        cur = [n for n in SEC if SEC[n] is out][0]
        sec('cold')
        e(f'''{l}:
        buffer_load_dword v{reg}, v{voff}, {sr(SRD_WS)}, 0 offen sc1
        s_waitcnt vmcnt(0)
        v_cmp_ne_u32 vcc, s{S_NONCE}, v{reg}
        s_cbranch_vccz {d}
        s_sub_u32 s{S_BOUND}, s{S_BOUND}, 1
        s_cbranch_scc0 {l}
        s_mov_b32 s{S_BOUND}, 0
        s_branch {d}''')
        sec(cur)
        return
    if first_issued: e(f's_branch {m}')
    e(f'{l}:')
    if sleep: e(f's_sleep {sleep}')
    e(f'''buffer_load_dword v{reg}, v{voff}, {sr(SRD_WS)}, 0 offen sc1
    {m}:
    s_waitcnt vmcnt(0)
    v_cmp_ne_u32 vcc, s{S_NONCE}, v{reg}
    s_cbranch_vccz {d}
    s_sub_u32 s{S_BOUND}, s{S_BOUND}, 1
    s_cbranch_scc0 {l}
    s_mov_b32 s{S_BOUND}, 0
    {d}:''')
def publish(soff, tmp):
    if OPT['fw']:
        e(f'''v_mov_b32 v{V_T}, s{S_NONCE}
        v_lshlrev_b32 v{tmp}, 2, v{V_LANE}
        s_mov_b64 exec, {hex((1 << OPT['fw']) - 1)}
        buffer_store_dword v{V_T}, v{tmp}, {sr(SRD_WS)}, s{soff} offen sc1
        s_mov_b64 exec, -1'''.replace('s_mov_b64 exec, 0xffffffff', 's_mov_b32 exec_hi, 0'))
        return
    e(f'''v_mov_b32 v{V_T}, s{S_NONCE}
    v_mov_b32 v{tmp}, 0
    s_mov_b64 exec, 1
    buffer_store_dword v{V_T}, v{tmp}, {sr(SRD_WS)}, s{soff} offen sc1
    s_mov_b64 exec, -1''')
def swap23(d, s, t):
    e(f'''v_lshrrev_b32 v{t}, 1, v{s}
    v_xor_b32 v{t}, v{t}, v{s}
    v_and_b32 v{t}, 4, v{t}
    v_mul_u32_u24 v{t}, 3, v{t}
    v_xor_b32 v{d}, v{t}, v{s}''')
def rot_next(s):
    e(f's_add_u32 s{s}, s{s}, 1\ns_cmp_eq_u32 s{s}, 7\ns_cselect_b32 s{s}, 0, s{s}')

e(f'''s_cmp_ge_u32 s2, 256
s_cbranch_scc1 L_end''')
if OPT['prof']:
    e(f's_memtime s[{S_T0}:{S_T0+1}]\ns_memrealtime s[98:99]\nv_mov_b32 v{V_PROF}, 0')
if OPT['rd'] >= 0: e('s_memrealtime s[100:101]\ns_memrealtime s[58:59]\ns_memrealtime s[98:99]')
e(f'''s_load_dwordx16 s[4:19], s[0:1], 0
s_load_dwordx8 s[20:27], s[0:1], 64
s_load_dwordx2 s[28:29], s[0:1], 96
v_lshrrev_b32 v{V_OWN}, 6, v0
v_and_b32 v{V_LANE}, 63, v0
v_readfirstlane_b32 s{S_WV}, v{V_OWN}
v_lshlrev_b32 v{V_OWN}, 2, v{V_OWN}
v_mov_b32 v{V_T}, 0
ds_write2_b32 v{V_OWN}, v{V_T}, v{V_T} offset1:8
v_and_b32 v{V_GRP}, 3, v{V_LANE}
v_lshlrev_b32 v{V_GRP}, 2, v{V_GRP}
s_and_b32 s{S_HG}, s2, 1
s_bfe_u32 s60, s2, 0x20001
s_bfe_u32 s{S_C}, s2, 0x30003
s_lshr_b32 s61, s2, 6
s_lshl2_add_u32 s{S_TILE}, s60, s61
s_lshl1_add_u32 s{S_J}, s{S_TILE}, s{S_HG}
s_lshl3_add_u32 s{S_H}, s{S_HG}, s{S_C}
s_and_b32 s{S_W}, s{S_WV}, 3
s_mov_b32 s{S_BOUND}, 0x40000
s_mov_b32 s{S_KS}, {KS}
s_cmp_lt_u32 s{S_WV}, 4
s_cbranch_scc1 L_mha''')

VX = 144; VACC = 96; VWF = 32; VPK = 128
VV, VK, VS, VO, VQ = 32, 64, 96, 160, 224
vWd = [5, 6]; vXd = [7, 8, 9, 10]; vXr = [11, 12, 13, 14]; vWb, vW0, vW1 = 15, 16, 17
vRho, vG, vSt, vQd, vQr, vFl, vA, vB, vC = 18, 19, 20, 21, 22, 23, 24, 25, 26
vKo0, vKo1, vVo, vIdx = 27, 28, 29, 30
sXb, sWb, sCh, sCw, sLx, sTmp, sTmp2, sSt, sS1, sS2, sFl = range(60, 71)
sK, sV, sIt = 71, 72, 73
sFo, sO0, sO1 = 84, 85, 86
vOs, vQw = vRho, vG
vRb = [7, 8, 9]; vQx = [11, 12, 13]; vRr = 10
sMask = 74
sOdd = 76

sec('mha0')
e('L_mha:')
if OPT['prio']: e(f"s_setprio {OPT['pm']}")
e(f'''s_mul_i32 s{S_O0}, s{S_H}, 7
s_lshr_b32 s{S_O0}, s{S_O0}, 1''')
e(f'''v_lshrrev_b32 v{vA}, 3, v{V_LANE}          ; r
v_and_b32 v{vB}, 7, v{V_LANE}                    ; p
v_lshlrev_b32 v{vC}, 1, v{vA}
v_and_b32 v{vC}, 4, v{vC}
v_xor_b32 v{vC}, v{vC}, v{vB}
v_lshlrev_b32 v{vC}, 4, v{vC}
v_mul_u32_u24 v{vWd[0]}, 2688, v{vA}
v_add_u32 v{vWd[0]}, v{vWd[0]}, v{vC}
v_add_u32 v{vWd[1]}, {8*2688-1024}, v{vWd[0]}
v_lshrrev_b32 v{vC}, 1, v{vA}
v_xor_b32 v{vC}, v{vC}, v{vB}
v_lshlrev_b32 v{vC}, 4, v{vC}
v_mul_u32_u24 v{vA}, 896, v{vA}
v_add_u32 v{vXd[0]}, v{vA}, v{vC}
v_xor_b32 v{vC}, 64, v{vC}
v_add_u32 v{vXd[1]}, v{vA}, v{vC}
v_add_u32 v{vXd[1]}, {7168-1024}, v{vXd[1]}
v_add_u32 v{vXd[2]}, {2*(7168-1024)}, v{vXd[0]}
v_add_u32 v{vXd[3]}, {2*(7168-1024)}, v{vXd[1]}
s_lshl2_add_u32 s{sXb}, s{S_TILE}, s{S_W}
s_lshl_b32 s{sFl}, s{S_H}, 6
s_add_u32 s{sFl}, s{sFl}, s{S_TILE if OPT['wgf'] else sXb}
s_lshl_b32 s{sFl}, s{sFl}, {FSH}
s_add_u32 s{sFl}, s{sFl}, {F_KV}
s_mul_i32 s{sXb}, s{sXb}, {32*896}
s_mul_i32 s{sTmp2}, s{S_HG}, 3
s_lshr_b32 s{sTmp}, s2, 6
s_add_u32 s{sTmp2}, s{sTmp2}, s{sTmp}
s_mul_i32 s{sWb}, s{S_HG}, 7
s_add_u32 s{sWb}, s{sWb}, s{S_C}
s_add_u32 s{sWb}, s{sWb}, 7
s_cmp_eq_u32 s{S_C}, 7
s_cselect_b32 s{sWb}, {'s%d' % sTmp2 if OPT['tq'] else '0x100000'}, s{sWb}
s_cselect_b32 s{sS1}, 1, s{S_W}
s_lshl_b32 s{sWb}, s{sWb}, 7
s_mul_i32 s{sTmp}, s{S_W}, {16*2688}
s_add_u32 s{sWb}, s{sWb}, s{sTmp}
s_mul_i32 s{sLx}, s{S_W}, 12288
s_add_u32 s{sLx}, s{sLx}, {L_X}
s_lshl_b32 s{sS1}, s{sS1}, 11
s_add_u32 s{sS1}, s{sS1}, {L_W}
s_mov_b32 s{SRD_A+2}, {2048*896}
s_mov_b32 s{SRD_A+3}, 0x20000
s_mov_b32 s{SRD_B+2}, {448*1344*2}
s_mov_b32 s{SRD_B+3}, 0x20000
s_mov_b32 m0, s{sLx}
s_waitcnt lgkmcnt(0)
s_mov_b64 s[{SRD_A}:{SRD_A+1}], s[18:19]
s_mov_b64 s[{SRD_B}:{SRD_B+1}], s[20:21]
s_load_dword s{S_NONCE}, s[28:29], 0''')
stamp(22)
sWo = 88
def w_lines(st):
    return [f's_add_u32 m0, s{sS1}, {8192*st}', f's_add_u32 s{sWo+st}, s{sWb}, {64*2688*st}'] + \
           [f'buffer_load_dwordx4 v{vWd[i]}, {sr(SRD_B)}, s{sWo+st} offen offset:{1024*i} lds' for i in range(2)]
def x_chunk(st):
    return [f's_add_u32 m0, s{sLx}, {(st%3)*4096 - 128*st}', 's_nop 0'] + \
           [f'buffer_load_dwordx4 v{vXd[i]}, {sr(SRD_A)}, s{sXb} offen offset:{1024*i + 128*st} lds' for i in range(4)]
DM = []
for l in [x_chunk(0), w_lines(0)] + [w_lines(i) for i in range(1, 7)] + [x_chunk(1), x_chunk(2)]:
    DM += [l[:3]] + [[x] for x in l[3:]]
DM[0] = DM[0][2:]
for i, g in enumerate(DM[:OPT['n0']]):
    if i == OPT['nb']:
        e(f's_cmp_lg_u32 s{S_C}, 7\ns_cbranch_scc1 L_bar0\ns_waitcnt lgkmcnt(0)\nL_bar0:\ns_barrier'); stamp(23)
        if OPT['only'] == 1: e('s_endpgm')
    e('\n'.join(g))
DM = DM[OPT['n0']:]
stamp(24)
if OPT['ord'] not in (1, 3): e('s_branch L_mha1')
sec('mha')
e('L_mha1:')
stamp(25)
sec('tmp')
srd(SRD_WS, 28, WS_SIZE)
ONES = f'''s_bitcmp1_b32 s{S_H}, 0
s_cselect_b32 s{sTmp}, 0, 7
v_cmp_eq_u32 vcc, s{sTmp}, v{vA}
s_lshl_b32 s{sTmp}, s{S_O0}, 1
s_sub_u32 s{sTmp}, s{S_HG}, s{sTmp}
s_add_u32 s{sTmp}, s{sTmp}, 112
v_mov_b32 v{vB}, s{sTmp}
v_cndmask_b32 v{vA}, v{vA}, v{vB}, vcc
''' if OPT['ones'] else ''
FIX = f'v_cmp_lt_u32 vcc, 7, v{vB}\n'
FOM = f'''s_lshl_b32 s{sFo}, s{sTmp2}, 4
s_add_u32 s{sFo}, s{sFo}, s{S_H}
s_lshl_b32 s{sFo}, s{sFo}, {FSH}
s_add_u32 s{sFo}, s{sFo}, {F_O}
''' if OPT['omode'] != 3 else ''
e(f'''v_and_b32 v{vA}, 31, v{V_LANE}
v_lshrrev_b32 v{vG}, 5, v{V_LANE}''')
swap23(vRho, vA, vB)
e(f'''v_bfe_u32 v{vB}, v{vRho}, 1, 3
v_xor_b32 v{vB}, v{vB}, v{vG}
v_lshlrev_b32 v{vB}, 4, v{vB}
v_lshl_add_u32 v{vB}, v{vRho}, 7, v{vB}
v_add_u32 v{vXr[0]}, s{sLx}, v{vB}
v_xor_b32 v{vXr[1]}, 32, v{vXr[0]}
v_xor_b32 v{vXr[2]}, 64, v{vXr[0]}
v_xor_b32 v{vXr[3]}, 0x60, v{vXr[0]}
v_and_b32 v{vB}, 3, v{V_LANE}                     ; cc
v_lshrrev_b32 v{vC}, 1, v{vB}
v_and_b32 v{vQd}, 1, v{vB}
v_lshl_or_b32 v{vC}, v{vQd}, 1, v{vC}
v_bfe_u32 v{vQd}, v{V_LANE}, 4, 1
v_lshl_or_b32 v{vB}, v{vQd}, 2, v{vB}              ; mq natural
v_lshl_or_b32 v{vC}, v{vQd}, 2, v{vC}
v_bfe_u32 v{vQd}, v{V_LANE}, 2, 2                  ; r'
v_lshl_or_b32 v{vFl}, v{vG}, 3, v{vQd}             ; 8g + r'
v_lshlrev_b32 v{vQr}, 6, v{vFl}
v_lshl_add_u32 v{vQr}, v{vC}, 3, v{vQr}
v_add_u32 v{vQr}, {L_X + 4096}, v{vQr}
s_cmp_eq_u32 s{S_HG}, 0
s_cselect_b64 vcc, -1, 0
v_cndmask_b32 v{vB}, v{vB}, v{vC}, vcc             ; K slabs use the exchanged order, V slabs the natural one
v_lshlrev_b32 v{vWb}, 7, v{vFl}
v_lshl_add_u32 v{vWb}, v{vB}, 3, v{vWb}
v_lshrrev_b32 v{vQd}, 1, v{vQd}
v_lshl_add_u32 v{vWb}, v{vQd}, 6, v{vWb}
v_add_u32 v{vW0}, {L_W}, v{vWb}
v_lshlrev_b32 v{vB}, 4, v{vRho}
v_mad_u32_u24 v{vB}, v{vG}, s{S_KS}, v{vB}
v_lshrrev_b32 v{vC}, 2, v{vA}
v_mul_u32_u24 v{vC}, {QS}, v{vC}
v_lshl_add_u32 v{vC}, v{vG}, 6, v{vC}
v_and_b32 v{vQd}, 3, v{vA}
v_lshl_add_u32 v{vC}, v{vQd}, 4, v{vC}
v_cndmask_b32 v{vSt}, v{vC}, v{vB}, vcc
s_lshl2_add_u32 s{sTmp}, s{S_TILE}, s{S_W}
s_lshl_b32 s{sTmp2}, s{sTmp}, 9
s_add_u32 s{sTmp2}, s{sTmp2}, {WS_K}
s_lshl_b32 s{sTmp}, s{sTmp}, 8
s_add_u32 s{sTmp}, s{sTmp}, {WS_V}
s_movk_i32 s{sS2}, 128
s_cmp_eq_u32 s{S_HG}, 0
s_cselect_b32 s{sSt}, s{sTmp2}, s{sTmp}
s_cselect_b32 s{sS2}, {2*KS}, s{sS2}
s_mul_i32 s{sTmp}, s{S_C}, {8*KS}
s_add_u32 s{sSt}, s{sSt}, s{sTmp}
v_lshrrev_b32 v{vB}, 2, v{V_LANE}
v_mul_u32_u24 v{vB}, 2688, v{vB}
v_lshl_add_u32 v{vQd}, v{vQd}, 4, v{vB}
s_lshl_b32 s82, s{S_O0}, 4
s_mul_i32 s{sTmp}, s{S_W}, {16*2688}
s_add_u32 s82, s82, s{sTmp}
s_lshr_b32 s{sTmp}, s{S_O0}, 3
s_add_u32 s{sTmp2}, s{S_O0}, 3
s_lshr_b32 s{sTmp2}, s{sTmp2}, 3
s_sub_u32 s{sTmp2}, s{sTmp2}, s{sTmp}
v_bfe_u32 v{vC}, v{V_LANE}, 4, 1
v_mul_u32_u24 v{vC}, s{sTmp2}, v{vC}
v_lshl_add_u32 v{vC}, v{vG}, 3, v{vC}
v_add_u32 v{vC}, s{sTmp}, v{vC}
v_and_b32 v{vB}, 15, v{V_LANE}
{FIX}v_and_b32 v{vB}, {3 if OPT['wgf'] else 15}, v{V_LANE}
v_lshl_add_u32 v{vC}, v{vC}, 6, v{vB}
s_lshl_b32 s{sTmp}, s{S_W}, {2 if OPT['wgf'] else 4}
v_add_u32 v{vC}, s{sTmp}, v{vC}
v_lshlrev_b32 v{vC}, {FSH}, v{vC}
v_add_u32 v{vFl}, {F_KV}, v{vC}
s_lshl3_add_u32 s{sTmp}, s{S_W}, s{S_HG}
s_mul_i32 s{sTmp}, s{sTmp}, {US}
s_add_u32 s{sTmp}, s{sTmp}, {F_U}
v_mul_u32_u24 v{vB}, {2*US}, v{vB}
v_add_u32 v{vB}, s{sTmp}, v{vB}
v_cndmask_b32 v{vFl}, v{vFl}, v{vB}, vcc
v_lshlrev_b32 v{vKo0}, 4, v{vA}
v_mad_u32_u24 v{vKo0}, v{vG}, s{S_KS}, v{vKo0}
v_add_u32 v{vKo1}, {2*KS}, v{vKo0}
v_lshrrev_b32 v{vA}, 2, v{vRho}
{ONES}v_mul_u32_u24 v{vA}, {QS}, v{vA}
v_lshl_add_u32 v{vA}, v{vG}, 6, v{vA}
v_and_b32 v{vB}, 3, v{V_LANE}
v_lshl_add_u32 v{vVo}, v{vB}, 4, v{vA}
v_mov_b32 v{vIdx}, 0xdddddddd
s_mul_i32 s{sTmp}, s{S_O0}, {KS}
s_lshl_b32 s{sK}, s{S_W}, 13
s_add_u32 s{sK}, s{sK}, s{sTmp}
s_add_u32 s{sK}, s{sK}, {WS_K}
s_lshl_b32 s{sV}, s{S_W}, 12
s_add_u32 s{sV}, s{sV}, s{sTmp}
s_add_u32 s{sV}, s{sV}, {WS_V}
s_lshl2_add_u32 s{sTmp2}, s{S_TILE}, s{S_W}
{FOM}s_lshl_b32 s{sTmp2}, s{sTmp2}, 9
s_add_u32 s{sO0}, s{sTmp}, s{sTmp2}
s_add_u32 s{sO0}, s{sO0}, {WS_O}
s_add_u32 s{sO1}, s{sO0}, {2*KS}
s_bitcmp1_b32 s{S_H}, 0
s_cselect_b64 s[{sOdd}:{sOdd+1}], -1, 0
; per-lane multipliers for Q: scale*log2(e), zero on the four slots that belong to the neighbour head
v_mov_b32 v{vC}, 0x3e8b97f6
v_cmp_gt_u32 vcc, 32, v{V_LANE}
s_and_b64 s[78:79], vcc, s[{sOdd}:{sOdd+1}]
s_nor_b64 s[80:81], vcc, s[{sOdd}:{sOdd+1}]
v_cndmask_b32 v{vA}, v{vC}, 0, s[78:79]
v_cndmask_b32 v{vB}, v{vC}, 0, s[80:81]
s_mov_b32 s78, 0x3f803f80
s_mov_b32 s79, s78
v_xor_b32 v{vW1}, 64, v{vW0}
v_lshlrev_b32 v{vOs}, 4, v{vRho}
v_mad_u32_u24 v{vOs}, v{vG}, s{S_KS}, v{vOs}
v_lshl_add_u32 v{vQw}, v{V_LANE}, 4, s{sLx}''')
srd(SRD_C, 28, WS_SIZE)
def o_stores(r0, r1, tag):
    e(f'''s_bitcmp1_b32 s{S_H}, 0
    s_cbranch_scc1 L_ost_odd{tag}
    buffer_store_dwordx4 {vr(r0,4)}, v{vOs}, {sr(SRD_WS)}, s{sO0} offen sc1
    s_mov_b32 exec_hi, 0
    buffer_store_dwordx4 {vr(r1,4)}, v{vOs}, {sr(SRD_WS)}, s{sO1} offen sc1
    s_not_b64 exec, exec
    buffer_store_dwordx2 {vr(r1,2)}, v{vOs}, {sr(SRD_WS)}, s{sO1} offen sc1
    s_branch L_ost_done{tag}
    L_ost_odd{tag}:
    buffer_store_dwordx4 {vr(r1,4)}, v{vOs}, {sr(SRD_WS)}, s{sO1} offen sc1
    s_mov_b32 exec_hi, 0
    buffer_store_dwordx2 {vr(r0+2,2)}, v{vOs}, {sr(SRD_WS)}, s{sO0} offen offset:8 sc1
    s_not_b64 exec, exec
    buffer_store_dwordx4 {vr(r0,4)}, v{vOs}, {sr(SRD_WS)}, s{sO0} offen sc1
    L_ost_done{tag}:
    s_mov_b64 exec, -1''')
GS = 0
AB = [l for l in SEC.pop('tmp') if not l.strip().startswith(';')]
sec('mha')
def scc_pending(i):
    return i < len(AB) and AB[i].strip().startswith(('s_cselect', 's_mov_b32 s75'))
pos = 0
for g in DM:
    n = pos + OPT['ilv']
    while scc_pending(n): n += 1
    e('\n'.join(AB[pos:n])); pos = n
    e('\n'.join(g))
e('\n'.join(AB[pos:]))
stamp(0)
def x_reads(s):
    return [f'ds_read_b128 {vr(VX + 16*s + 4*ks, 4)}, v{vXr[ks]} offset:{(s%3)*4096}' for ks in range(4)]
e('s_waitcnt vmcnt(22)')
e('\n'.join(x_reads(0)))
e('s_waitcnt vmcnt(8) lgkmcnt(0)')
arrive(1)
stamp(1)
e('\n'.join(x_chunk(3)))
e('s_waitcnt vmcnt(8)')
e('\n'.join(x_reads(1)))
lwait(1)
e(f's_add_u32 s{S_NONCE}, s{S_NONCE}, 1')
stamp(2)
def w_reads(s):
    r = []
    for ks in range(4):
        for ct in range(2):
            for hf in range(2):
                d = VWF + 32 * (s & 1) + 8 * ks + 4 * ct + 2 * hf
                r.append(f'ds_read_b64_tr_b16 {vr(d,2)}, v{(vW0, vW1)[ct]} offset:{s*8192 + ks*2048 + hf*512}')
    return r
if OPT['tskip']: e(f's_cmp_eq_u32 s{S_C}, 7\ns_cbranch_scc1 L_gemm_t')
e('\n'.join(w_reads(0)))
e(f'''s_waitcnt lgkmcnt(0)
s_cmp_lg_u32 s{S_HG}, 0
s_cbranch_scc1 L_gemm_v''')
sQb, sQc = 82, 83
NE = OPT['wq_early']
def wq_dma(st):
    return [f's_add_u32 m0, s{sLx}, {4096 + 1024*st}\ns_add_u32 s83, s82, {64*2688*st}', '', f'buffer_load_dwordx4 v{vQd}, {sr(SRD_B)}, s83 offen lds']
SPIN = []
def gemm1(vpart):
    for s in range(7):
        M = []
        for ks in range(4):
            for ct in range(2):
                wf = vr(VWF + 32 * (s & 1) + 8 * ks + 4 * ct, 4); xf = vr(VX + 16 * s + 4 * ks, 4)
                acc = vr(VACC + 16 * ct, 16)
                a, b = (xf, wf) if vpart else (wf, xf)
                M.append(f'v_mfma_f32_32x32x16_bf16 {acc}, {a}, {b}, {"0" if s == 0 and ks == 0 else acc}')
        gaps = [[] for _ in range(8)]
        tag = f'{"v" if vpart else "k"}{s}'
        pre = []
        dm = []
        def add(l): dm.extend([(l[0], l[2])] + [(None, x) for x in l[3:]])
        if s <= 2: add(x_chunk(s + 4))
        if s == 3:
            for i in range(min(NE, 4)): add(wq_dma(i))
        if s == 4:
            for i in range(4, NE): add(wq_dma(i))
        n = {0: 8, 1: 8, 2: 8, 3: 4 + min(NE, 4), 4: NE}.get(s)
        for i, (m, l) in enumerate(dm):
            if m: (pre if i == 0 else gaps[i - 1]).append(m)
            gaps[i].append(l)
        if s < 6:
            wr = w_reads(s + 1)
            for i, (p, q) in enumerate(((0, 3), (3, 6), (6, 9), (9, 12), (12, 16))): gaps[i] += wr[p:q]
            if s <= 4: gaps[OPT['xg']] += [f's_waitcnt vmcnt({n})'] + x_reads(s + 2)
            gaps[7] += [f's_waitcnt lgkmcnt({4 if s == 4 and OPT["s6"] != 4 else 0})']
        if s == OPT['s6'] and (OPT['uw'] == 6 or OPT['cw'] == 6): gaps[6] += [f'v_mov_b32 v{V_T}, 6', f'ds_write_b32 v{V_OWN}, v{V_T}']
        if s == 5:
            gaps[7] += [f'v_add_u32 v31, 16, v{V_GRP}', f'ds_read_b32 v31, v31']
        if s == 6 and NE == 7:
            gaps[OPT['qa']] += ['s_waitcnt vmcnt(0)', f'v_mov_b32 v{V_T}, 7', f'ds_write_b32 v{V_OWN}, v{V_T}']
        e('\n'.join(pre))
        if OPT['gx'] & 1 or vpart == 2: M = ['s_nop 0'] * 8
        if OPT['gx'] & 2 or vpart == 2: gaps = [[x for x in g if 'tr_b16' not in x] for g in gaps]
        for i in range(8):
            e(M[i]); e('\n'.join(gaps[i]))
        stamp(14 + s)
if OPT['tskip']:
    sec('gt'); e('L_gemm_t:'); gemm1(2); e('s_branch L_gemm_done'); sec('mha')
else: SEC['gt'] = []
gemm1(False)
e('s_branch L_gemm_done\nL_gemm_v:')
gemm1(True)
e('L_gemm_done:')
stamp(3)
e(f"""s_add_u32 s{sS1}, s{sSt}, s{sS2}
s_add_u32 s{sXb}, s{sSt}, {4*KS}
s_add_u32 s{sCw}, s{sS1}, {4*KS}
s_cmp_eq_u32 s{S_C}, 7
s_waitcnt lgkmcnt(0)
s_cbranch_scc1 L_nokv""")
PWS = 3 if OPT['pw'] else 1
e(f'v_cmp_gt_u32 vcc, {PWS}, v31\ns_cbranch_vccz L_eok\nv_add_u32 v31, 16, v{V_GRP}')
lwait(PWS, addr=31)
e('L_eok:\ns_nop 2')
for q, so in enumerate((sSt, sS1, sXb, sCw)):
    for i in range(4*q, 4*q+4):
        e(f'v_cvt_pk_bf16_f32 v{VPK + i}, v{VACC + 2*i}, v{VACC + 2*i + 1}')
    e(f'buffer_store_dwordx4 {vr(VPK+4*q,4)}, v{vSt}, {sr(SRD_WS)}, s{so} offen sc1')
e('L_nokv:')
assert OPT['wgf'] and OPT['ones'] and OPT['pf'] == 2
def kv_loads(buf, i, srdn=SRD_C):
    return [f'buffer_load_dwordx4 {vr(VK + 8*buf, 4)}, v{vKo0}, {sr(srdn)}, s{sK} offen offset:{512*i} sc1',
            f'buffer_load_dwordx4 {vr(VK + 8*buf + 4, 4)}, v{vKo1}, {sr(srdn)}, s{sK} offen offset:{512*i} sc1',
            f'buffer_load_dwordx4 {vr(VV + 8*buf, 4)}, v{vVo}, {sr(srdn)}, s{sV} offen offset:{256*i} sc1',
            f'buffer_load_dwordx4 {vr(VV + 8*buf + 4, 4)}, v{vVo}, {sr(srdn)}, s{sV} offen offset:{256*i + 128} sc1']
fill = [f'v_mov_b64 {vr(VV+2*i,2)}, s[78:79]' for i in range(12, 16)] + [f'v_subrev_u32 v{vRr}, {L_X - L_RB}, v{vQw}', 's_mov_b64 s[80:81], -1']
for s in range(3):
    fill += f"""s_add_u32 s{sTmp}, s{S_W}, {1+s}
    s_and_b32 s{sTmp}, s{sTmp}, 3
    s_sub_u32 s{sTmp}, s{sTmp}, s{S_W}
    s_mul_i32 s{sTmp}, s{sTmp}, 12288
    v_add_u32 v{vQx[s]}, s{sTmp}, v{vQw}
    v_subrev_u32 v{vRb[s]}, {L_X - L_RB - 4096*s}, v{vQx[s]}""".split('\n')
def count_in(n):
    e(f"""v_mov_b32 v{V_T}, 1
    v_mov_b32 v31, 0
    s_waitcnt vmcnt({n})
    s_mov_b64 exec, 1
    ds_add_rtn_u32 v{vSt}, v31, v{V_T} offset:32
    s_mov_b64 exec, -1""")
def count_out(n):
    e(f's_waitcnt lgkmcnt({n})\nv_readfirstlane_b32 s{sTmp2}, v{vSt}\ns_cmp_lg_u32 s{sTmp2}, 3\ns_cbranch_scc1 L_nopub')
    publish(sFl, 31)
    e('L_nopub:'); stamp(5)
NM = max(NE, OPT['wq_mid'])
for st in range(NE, NM): e('\n'.join(wq_dma(st)))
stamp(4)
if NE < 7:
    e('\n'.join(fill)); fill = []
    count_in(NM - NE)
    if NM == 7:
        e('s_waitcnt vmcnt(0)'); arrive(7); count_out(1)
    else:
        count_out(0)
        for st in range(NM, 7): e('\n'.join(wq_dma(st)))
        e('s_waitcnt vmcnt(0)'); arrive(7)
lwait(7)
stamp(6)
QB = [80, 84, 88, 92, 112, 116, 120, 124]
def q_reads(k):
    s, ks = divmod(k, 4)
    return [f'ds_read_b64_tr_b16 {vr(QB[k%8] + 2*hf, 2)}, v{vQr} offset:{ks*12288 + s*1024 + hf*256}' for hf in range(2)]
for k in range(6): e('\n'.join(q_reads(k)))
e('\n'.join(fill[:12])); fill = fill[12:]
zi = 0
PK = OPT['pubk'] if NE == 7 else -99
for k in range(28):
    extra = 1 if PK < k <= PK + 5 else 0
    e(f's_waitcnt lgkmcnt({min(10, 2*(27-k)) + extra})')
    e(f'v_mfma_f32_32x32x16_bf16 {vr(VACC,16)}, {vr(QB[k%8], 4)}, {vr(VX + 4*k, 4)}, {"0" if k == 0 else vr(VACC,16)}')
    if k + 6 < 28: e('\n'.join(q_reads(k + 6)))
    while zi < 40 and VX + 2*zi + 1 < VX + 4*k - 4 and zi < 2*k:
        e(f'v_mov_b64 {vr(VX + 2*zi, 2)}, 0'); zi += 1
    if k >= 22 or k < 2:
        e('\n'.join(fill[:4])); fill = fill[4:]
    if k == PK: count_in(0)
    if k == PK + OPT['wgf']: count_out(2*OPT['wgf'])
    if k == OPT['pollk']: e(f'buffer_load_dword v31, v{vFl}, {sr(SRD_WS)}, 0 offen sc1')
    if k == OPT['chkk']:
        e(f's_waitcnt vmcnt(0)\nv_cmp_ne_u32 vcc, s{S_NONCE}, v31\ns_mov_b64 s[80:81], vcc\ns_cbranch_vccnz L_kv_late')
        for t in range(2): e('\n'.join(kv_loads(t, t)))
        e('L_kv_late:')
assert zi == 40 and VX == VS + 48 and not fill
stamp(7)
e('s_nop 11')
for r in range(16):
    m = vA if r < 4 else (vB if r >= 12 else vC)
    e(f'v_mul_f32 v{VACC + r}, v{m}, v{VACC + r}')
for i in range(8):
    e(f'v_cvt_pk_bf16_f32 v{VQ + 24 + i}, v{VACC + 2*i}, v{VACC + 2*i + 1}')
e(f"""ds_write_b128 v{vQw}, {vr(VQ+24,4)}
ds_write_b128 v{vQw}, {vr(VQ+28,4)} offset:1024""")
arrive(8)
lwait(8)
for s in range(3):
    e(f'ds_read_b128 {vr(VQ+8*s,4)}, v{vQx[s]}\nds_read_b128 {vr(VQ+8*s+4,4)}, v{vQx[s]} offset:1024')
PF = OPT['pf']
if OPT['chkk'] < 28: e('s_cmp_eq_u64 s[80:81], 0\ns_cbranch_scc1 L_kv_done')
poll(vFl, first_issued=OPT['pollk'] < 28 and OPT['chkk'] > 27, reg=31, sleep=OPT['ksleep'])
for t in range(PF): e('\n'.join(kv_loads(t, t)))
e('L_kv_done:')
stamp(8)
OM = OPT['omode']
if OM:
    e(f'''s_lshr_b32 s{sTmp}, s{S_O0}, 3
    s_add_u32 s{sTmp2}, s{S_O0}, 3
    s_lshr_b32 s{sTmp2}, s{sTmp2}, 3
    s_sub_u32 s{sTmp2}, s{sTmp2}, s{sTmp}
    s_lshl_b32 s{sTmp2}, s{sTmp2}, 6
    s_lshl_b32 s{sTmp}, s{sTmp}, 6
    s_lshl2_add_u32 s{sSt}, s{S_TILE}, s{S_W}
    s_add_u32 s{sTmp}, s{sTmp}, s{sSt}
    s_lshl_b32 s{sTmp}, s{sTmp}, {FSH}
    s_add_u32 s{sTmp}, s{sTmp}, {F_Y}
    v_and_b32 v{vFl}, 1, v{V_LANE}
    v_mul_u32_u24 v{vFl}, s{sTmp2}, v{vFl}
    v_and_b32 v31, 2, v{V_LANE}
    v_lshl_add_u32 v{vFl}, v31, 8, v{vFl}
    v_lshl_add_u32 v{vFl}, v{vFl}, {FSH}, s{sTmp}''')
def qk(buf, slot, js):
    d = vr(VS + 16*slot, 16)
    return f'v_mfma_f32_32x32x16_bf16 {d}, {vr(VK + 8*buf + 4*js, 4)}, {vr(VQ + 8*slot + 4*js, 4)}, {"0" if js == 0 else d}'
def pv(buf, slot, js):
    return f'v_smfmac_f32_32x32x32_bf16 {vr(VO + 16*slot, 16)}, {vr(VV + 8*buf + 4*js, 4)}, {vr(VS + 16*slot + 8*js, 8)}, v{vIdx}'
def exps(s): return [f'v_exp_f32 v{VS + 16*s + r}, v{VS + 16*s + r}' for r in range(16)]
SPREAD = []
def unit(t, s):
    ex = exps(s)
    if OPT['ax'] & 16 and s in (0, 1, 2):
        pass
    nb = t if s < 3 else (t + 1) & 3
    pb = t if s > 0 else (t - 1) & 3
    if s == 3: e(f's_waitcnt vmcnt({4*PF-4})')
    e(qk(nb, (s+1) & 3, 0)); e('\n'.join(ex[0:4]))
    e(qk(nb, (s+1) & 3, 1)); e('\n'.join(ex[4:8]))
    e(pv(pb, (s-1) & 3, 0))
    if s == 1:
        kl = kv_loads((t + PF) & 3, t + PF)
        if OPT['ax'] & 1: kl = [x for x in kl if 'exec' not in x]
        if OPT['ax'] & 2: kl = [x for x in kl if 'buffer' not in x]
        if OPT['ax'] & 4: kl = [x.replace(' sc1', '') for x in kl]
        if OPT['ax'] & 8: SPREAD.extend(kl); kl = []
        e('\n'.join(kl))
        if t == 3 - PF:
            e(f's_cmp_eq_u32 s{sIt}, 3\ns_cselect_b32 s{SRD_C+2}, 0, s{SRD_C+2}')
        if t == 3:
            e(f's_add_u32 s{sK}, s{sK}, 2048\ns_add_u32 s{sV}, s{sV}, 1024\ns_add_u32 s{sIt}, s{sIt}, 1\ns_cmp_lg_u32 s{sIt}, 4')
    e('\n'.join(ex[8:12]))
    e(pv(pb, (s-1) & 3, 1)); e('\n'.join(ex[12:16]))
e(f's_mov_b32 s{sIt}, 0\ns_waitcnt vmcnt({4*PF - 4}) lgkmcnt(0)')
stamp(9)
e(qk(0, 0, 0)); e(qk(0, 0, 1))
e(f"s_setprio {OPT['pa']}\ns_nop 8\ns_branch L_att_in" if OPT['prio'] else 's_nop 9\ns_branch L_att_in')
e('L_att:')
unit(3, 2); unit(3, 3)
e('L_att_in:')
for t in range(4):
    for s in range(4):
        if (t, s) < (3, 2): unit(t, s)
e('s_cbranch_scc1 L_att')
if OPT['prio']: e(f"s_setprio {OPT['pm']}")
if OM: e(f'buffer_load_dword v31, v{vFl}, {sr(SRD_WS)}, 0 offen sc1')
def rbw(s): return [f'ds_write_b128 v{vRb[s]}, {vr(VO + 16*s + 4*i, 4)} offset:{1024*i}' for i in range(4)]
ex = exps(2); w0 = rbw(0)
e(qk(3, 3, 0)); e('\n'.join(ex[0:4])); e(qk(3, 3, 1)); e('\n'.join(ex[4:7] + [w0[0]]))
e(pv(3, 1, 0)); e('\n'.join(ex[7:10] + [w0[1]])); e(pv(3, 1, 1)); e('\n'.join(ex[10:13] + [w0[2]] + ex[13:16] + [w0[3]]))
ex = exps(3); w1 = rbw(1); w2 = rbw(2)
e(pv(3, 2, 0)); e('\n'.join(ex[0:3])); e(pv(3, 2, 1))
e('\n'.join([w1[0]] + ex[3:5] + [w1[1]] + ex[5:7] + [w1[2]] + ex[7:9] + [w1[3]] + ex[9:10]))
e(pv(3, 3, 0))
e('\n'.join([w2[0]] + ex[10:12] + [w2[1]] + ex[12:14] + [w2[2]] + ex[14:16] + [w2[3]]))
arrive(9)
e(pv(3, 3, 1))
stamp(10)
lwait(9)
for i in range(12): e(f'ds_read_b128 {vr(VS + 4*i, 4)}, v{vRr} offset:{1024*i}')
OA = VO + 48
for s in range(3):
    e(f's_waitcnt lgkmcnt({8 - 4*s})')
    for i in range(8): e(f'v_pk_add_f32 {vr(OA+2*i,2)}, {vr(OA+2*i,2)}, {vr(VS+16*s+2*i,2)}')
e(f's_mov_b32 s{sIt}, {1 if OPT["force_fb"] else 0}')
e(f'''L_norm:
v_cndmask_b32 v{vA}, v{OA+12}, v{OA}, s[{sOdd}:{sOdd+1}]
v_max3_f32 v{vC}, abs(v{OA}), abs(v{OA+1}), abs(v{OA+2})
v_mov_b32 v{vB}, v{vA}
v_max3_f32 v{vC}, abs(v{OA+3}), abs(v{OA+4}), v{vC}
v_max3_f32 v{vC}, abs(v{OA+5}), abs(v{OA+6}), v{vC}
v_permlane32_swap_b32 v{vA}, v{vB}
v_max3_f32 v{vC}, abs(v{OA+7}), abs(v{OA+8}), v{vC}
v_cndmask_b32 v{vB}, v{vB}, v{vA}, s[{sOdd}:{sOdd+1}]
v_max3_f32 v{vC}, abs(v{OA+9}), abs(v{OA+10}), v{vC}
v_rcp_f32 v{vA}, v{vB}
v_max3_f32 v{vC}, abs(v{OA+11}), abs(v{OA+12}), v{vC}
v_max3_f32 v{vC}, abs(v{OA+13}), abs(v{OA+14}), v{vC}
v_max_f32 v{vC}, abs(v{OA+15}), v{vC}
v_cmp_nle_f32 vcc, 0x30800000, v{vB}
s_mov_b64 s[78:79], vcc
v_cmp_nge_f32 vcc, 0x4e800000, v{vB}
s_or_b64 s[78:79], s[78:79], vcc
v_cmp_ngt_f32 vcc, 0x7f000000, v{vC}
s_or_b64 vcc, s[78:79], vcc''')
if OPT['force_fb']:
    e(f's_cmp_eq_u32 s{sIt}, 1\ns_cbranch_scc1 L_fb')
e('s_cbranch_vccnz L_fb0\nL_norm2:')
for i in range(8): e(f'v_pk_mul_f32 {vr(OA+2*i,2)}, {vr(OA+2*i,2)}, {vr(vA,2)} op_sel_hi:[1,0]')
for i in range(8): e(f'v_cvt_pk_bf16_f32 v{VS+i}, v{OA+2*i}, v{OA+2*i+1}')
if OM: poll(vFl, first_issued=2, reg=31)
o_stores(VS, VS + 4, '')
stamp(11)
if OM == 4: publish(sFo, vA)
if OPT['obar'] == 1: e('s_barrier')
if OPT['obar'] >= 3: e(f"s_waitcnt vmcnt({5 - OPT['obar'] + (OM == 4)})\ns_barrier")
if OM == 0:
    e('s_waitcnt vmcnt(0)'); publish(sFo, vA)
if OPT['obar'] == 2: e('s_barrier')
stamp(12)
prof_out()
e('s_endpgm')

for tag, st in SPIN:
    e(f'L_ws_{tag}:'); lwait(st); e(f's_branch L_wb_{tag}')
sec('fb')
e(f'''L_fb0:
s_cmp_eq_u32 s{sIt}, 2
s_cbranch_scc1 L_norm2
L_fb:
s_waitcnt vmcnt(0)
s_mul_i32 s{sTmp}, s{S_O0}, {KS}
s_add_u32 s{sK}, s{sTmp}, {WS_K}
s_add_u32 s{sV}, s{sTmp}, {WS_V}
v_mov_b32 v{vC}, 0xff800000
s_mov_b32 s{sIt}, 0
L_fb1:''')
e('\n'.join(kv_loads(0, 0, SRD_WS)[:2]))
e('s_waitcnt vmcnt(0)')
e(qk(0, 3, 0)); e(qk(0, 3, 1)); e('s_nop 11')
for i in range(8): e(f'v_max3_f32 v{vC}, v{VS+48+2*i}, v{VS+49+2*i}, v{vC}')
e(f'''s_add_u32 s{sK}, s{sK}, 512
s_add_u32 s{sIt}, s{sIt}, 1
s_cmp_lg_u32 s{sIt}, 64
s_cbranch_scc1 L_fb1
v_mov_b32 v{vA}, v{vC}
s_sub_u32 s{sK}, s{sK}, 0x8000
s_mov_b32 s{sIt}, 0
v_permlane32_swap_b32 v{vA}, v{vC}
v_max_f32 v{vC}, v{vA}, v{vC}''')
for i in range(8): e(f'v_mov_b64 {vr(OA+2*i,2)}, 0')
e('L_fb2:')
e('\n'.join(kv_loads(0, 0, SRD_WS)))
e('s_waitcnt vmcnt(0)')
e(qk(0, 3, 0)); e(qk(0, 3, 1)); e('s_nop 11')
for i in range(16): e(f'v_sub_f32 v{VS+48+i}, v{VS+48+i}, v{vC}')
for i in range(16): e(f'v_exp_f32 v{VS+48+i}, v{VS+48+i}')
e('s_nop 1')
e(pv(0, 3, 0)); e(pv(0, 3, 1))
e(f'''s_add_u32 s{sK}, s{sK}, 512
s_add_u32 s{sV}, s{sV}, 256
s_add_u32 s{sIt}, s{sIt}, 1
s_cmp_lg_u32 s{sIt}, 64
s_cbranch_scc1 L_fb2
s_mov_b32 s{sIt}, 2
s_nop 11
s_branch L_norm''')

sD0, sD, sHw, sDs, sTab, sA, sB, sLd, sSk, sIt2, sFlU, sInv, sUns, sSel, sUl, sOl, sCh0 = range(60, 77)
sUs, sOut, sHm = 78, 80, 82
sE2, sP, sE3, sKd = 84, 85, 86, 87
OUTM = 'sc1' if OPT['outsc'] & 1 else ''
OUTM2 = 'sc1' if OPT['outsc'] & 2 else ''
a0, a1, a2, a3 = 5, 6, 7, 9
vPar = 10
vKc = 18
vRa, vRb_, vKd, vKd1, vKa, vKa0, vFu, vE1, vE1b, vFr, vKxo, vKxp, vPair, vRz, vBk, vA0, vA1, vKb, vSB, vSB0 = range(20, 40)
vSel = 180
vAc = 40
vOne, vScl, vAdd, vC0 = range(56, 60)
vOp = 64
vY = 128
vXt = 144
vAn = 166
vX1 = 172
T0, T1 = 160, 176
vZ = 192
U = 204
vZer = 220
vUa, vCd, vG_, vZp, vKp, vF_, vL16, vXo, vXp, vTr, vYl, vYs, vFy = range(224, 237)
vWoD = 238
vWoR = 240
vOl, vFo, vBw, vBr, vOut = range(242, 247)
def hi():
    if OPT['prio']: e('s_setprio 3')
KG = [True]
def lo():
    if OPT['prio']: e(f"s_setprio {OPT['kgp'] if KG[0] else OPT['ps']}")
ROLE[0] = 1
sec('ssm0')
e(f"""s_cmp_{'eq' if OPT['only'] != 2 else 'le'}_u32 s{S_C}, 7
s_cbranch_scc1 L_ssm_idle
s_lshr_b32 s{sDs}, s{S_W}, 1
s_lshl_b32 s{sD0}, s{S_C}, 6
s_lshl1_add_u32 s{sD0}, s{S_J}, s{sD0}
s_add_u32 s{sD}, s{sD0}, s{sDs}
s_mul_i32 s{sTab}, s{S_W}, {TABSZ}
s_add_u32 s{sTab}, s{sTab}, {L_TAB}
s_lshl1_add_u32 s{sA}, s{sD0}, s{S_W}
s_lshl_b32 s{sA}, s{sA}, 8
v_lshl_add_u32 v{a0}, v{V_LANE}, 2, s{sA}
s_mov_b32 m0, s{sTab}
s_lshl_b32 s{sB}, s{sD0}, 1
s_waitcnt lgkmcnt(0)
s_load_dword s{sLd}, s[14:15], s{sB}
s_load_dword s{sSk}, s[16:17], s{sB}
global_load_dword v{vPar+0}, v{a0}, s[6:7]
global_load_dword v{vPar+1}, v{a0}, s[8:9]
global_load_dword v{vPar+2}, v{a0}, s[10:11]
global_load_dword v{vPar+3}, v{a0}, s[12:13]
global_load_dword v{vPar+4}, v{V_T}, s[28:29]""")
if OPT['tlb'] != 2: e('s_barrier')
if OPT['tlb']:
    e(f'''v_and_b32 v{a0}, 7, v{V_LANE}
    v_min_u32 v{a0}, 5, v{a0}
    v_lshlrev_b32 v{a0}, 21, v{a0}
    v_add_u32 v{a0}, 0xf8000, v{a0}
    v_mov_b32 v{a1}, 0
    global_load_dword v8, v{a0}, s[28:29]
    global_load_dword v8, v{a1}, s[22:23]''')
if OPT['tlb'] == 2: e('s_barrier')
e('s_branch L_ssm')
sec('ssm')
e('L_ssm:')
if OPT['abl'] == 1:
    arrive(1); e('s_waitcnt vmcnt(0) lgkmcnt(0)\ns_endpgm')
lo()
srd(SRD_WS, 28, WS_SIZE)
e(f"""s_and_b32 s{sHw}, s{S_W}, 1
v_add_u32 v{V_GRP}, 16, v{V_GRP}
v_and_b32 v{a0}, 15, v{V_LANE}
v_lshrrev_b32 v{a1}, 4, v{V_LANE}
v_lshl_add_u32 v{vRb_}, v{a1}, 4, s{sTab}
v_mul_u32_u24 v{a2}, {TROW}, v{a0}
v_add_u32 v{vRa}, v{a2}, v{vRb_}
v_lshlrev_b32 v{vL16}, 4, v{V_LANE}
v_mov_b32 v{vOne}, 0x3c00
ds_write_addtid_b32 v{vOne}""")
for i in range(8): e(f'v_mov_b64 {vr(vAc+2*i,2)}, 0')
mid = f"""v_and_b32 v{a0}, 7, v{V_LANE}
s_and_b32 s{sB}, s2, {OPT['ur'] - 1}
s_lshl2_add_u32 s{sB}, s{sB}, s{S_W}
s_mul_i32 s{sB}, s{sB}, {8*US}
s_add_u32 s{sB}, s{sB}, {F_U}
v_mul_u32_u24 v{vFu}, {US}, v{a0}
v_add_u32 v{vFu}, s{sB}, v{vFu}
s_mul_i32 s{sP}, s{sDs}, {P_SZ}
s_add_u32 s{sP}, s{sP}, {L_TAB}
s_add_u32 s{sKd}, s{sP}, {P_KD}
s_lshl_b32 s{sB}, s{sHw}, 8
s_add_u32 s{sInv}, s{sB}, s{sKd}
s_add_u32 s{sA}, s{sInv}, {1088 + 128}
v_lshl_add_u32 v{vRz}, v{a0}, 4, s{sA}
v_mov_b32 v{vKb}, s{sKd}
v_and_b32 v{a0}, 15, v{V_LANE}
v_lshrrev_b32 v{a1}, 4, v{V_LANE}
s_lshl_b32 s{sA}, s{sHw}, 4
v_add_u32 v{a0}, s{sA}, v{a0}
v_and_b32 v{a3}, 1, v{V_LANE}
v_mul_u32_u24 v{a2}, 255, v{a3}
v_sub_u32 v{a2}, v{a2}, v{a0}
s_add_u32 s{sA}, s{sKd}, {1088 + 32}
v_add_u32 v{vKa}, s{sA}, v{a2}
v_add_u32 v{vKa0}, 96, v{vKa}
s_lshl3_add_u32 s{sA}, s{sDs}, 16
v_lshl_add_u32 v{vPair}, v{a3}, 2, s{sA}
s_mul_i32 s{sA}, s{sHw}, {1088 + 112 - 1024}
s_add_u32 s{sA}, s{sA}, s{sKd}
s_add_u32 s{sA}, s{sA}, 1024
v_writelane_b32 v{vKa0}, s{sA}, 0
s_mul_i32 s{sA}, s{sHw}, 56
s_sub_u32 s{sA}, s{sKd}, s{sA}
s_add_u32 s{sA}, s{sA}, 1088
v_writelane_b32 v{vKa0}, s{sA}, 16
v_max_u32 v{a2}, 1, v{a1}
v_sub_u32 v{a2}, 5, v{a2}
v_lshlrev_b32 v{a0}, v{a2}, v{a0}
v_lshlrev_b32 v{a2}, 3, v{a1}
s_mov_b32 s{sA}, 0x60400100
v_bfe_u32 v{a1}, s{sA}, v{a2}, 8
v_lshl_add_u32 v{a0}, v{a1}, 3, v{a0}
v_add_u32 v{vKd}, s{sKd}, v{a0}
s_mov_b32 s{sA}, 0x80040404
v_bfe_u32 v{a1}, s{sA}, v{a2}, 8
v_add_u32 v{vKd1}, v{a1}, v{vKd}
v_lshrrev_b32 v{a1}, 1, v{V_LANE}
v_lshlrev_b32 v{vUa}, 6, v{a1}
v_lshl_add_u32 v{vUa}, v{a3}, 4, v{vUa}
s_lshr_b32 s{sA}, s{sD0}, 2
s_mul_i32 s{sA}, s{sA}, {QS}
s_and_b32 s{sB}, s{sD0}, 3
s_lshl4_add_u32 s{sA}, s{sB}, s{sA}
s_lshl_b32 s{sB}, s{S_W}, 12
s_add_u32 s{sA}, s{sA}, s{sB}
s_add_u32 s{sUl}, s{sA}, {WS_U}
v_and_b32 v{a1}, 3, v{a1}
v_lshl_add_u32 v{a1}, v{a3}, 2, v{a1}
v_mul_u32_u24 v{a1}, {PS}, v{a1}
v_lshrrev_b32 v{a2}, 3, v{V_LANE}
v_lshl_add_u32 v{a1}, v{a2}, 4, v{a1}
s_lshl_b32 s{sA}, s{S_W}, 8
s_add_u32 s{sA}, s{sA}, {L_KP + 512}
v_add_u32 v{vKp}, s{sA}, v{a1}
; byte selectors that expand the distinct taps to the lags (lag l uses the tap at bf16(l), as in the reference)
v_lshrrev_b32 v{a1}, 5, v{V_LANE}
s_lshl_b32 s{sA}, s{sHw}, 1
v_max_u32 v{a0}, s{sA}, v{a1}
v_min_u32 v{a2}, 1, v{a0}
v_mul_u32_u24 v{a2}, 0x0202, v{a2}
v_lshlrev_b32 v{a2}, 16, v{a2}
v_sub_u32 v{vSel}, 0x03020100, v{a2}
v_mul_u32_u24 v{a2}, 0x0202, v{a0}
v_lshl_or_b32 v{a2}, v{a2}, 16, v{a2}
v_sub_u32 v{vSel+1}, 0x07060504, v{a2}
s_mul_i32 s{sA}, s{sHw}, 0x02020202
v_add_u32 v{vSel+2}, s{sA}, v{vSel}
s_mul_i32 s{sA}, s{sHw}, 0x02020404
v_add_u32 v{vSel+3}, s{sA}, v{vSel+1}
v_lshrrev_b32 v{a2}, v{a0}, v{vL16}
s_movk_i32 s{sA}, 256
v_lshl_add_u32 v{a2}, s{sA}, v{a0}, v{a2}
s_sub_u32 s{sA}, s{sKd}, 256
v_add_u32 v{vE1}, s{sA}, v{a2}
v_lshlrev_b32 v{a2}, 2, v{a0}
v_sub_u32 v{vE1b}, v{vE1}, v{a2}
s_mov_b32 s{sA}, 0x0c0c0c0c
s_cmp_lg_u32 s{sHw}, 0
s_cselect_b32 s{sE2}, 0x01000100, s{sA}
s_cselect_b32 s{sE3}, 0x05040302, s{sA}
v_mov_b32 v{vSel+4}, s{sA}
v_mov_b32 v{vSel+5}, s{sA}
v_mov_b32 v{vSel+6}, s{sA}
v_mov_b32 v{vSel+7}, s{sA}
s_mov_b32 s{sA}, 0x05040504
s_mov_b64 exec, 15
v_mov_b32 v{vSel+4}, s{sA}
v_mov_b32 v{vSel+5}, s{sA}
v_mov_b32 v{vSel+6}, s{sA}
s_mov_b64 exec, -1
v_writelane_b32 v{vSel+7}, s{sA}, 3
s_mov_b32 s{sA}, 0x05040302
v_writelane_b32 v{vSel+4}, s{sA}, 3
s_mov_b32 s{sA}, 0x0c0c0504
v_writelane_b32 v{vSel+6}, s{sA}, 0
v_writelane_b32 v{vSel+7}, s{sA}, 2
s_mul_i32 s{sA}, s{S_W}, {2*PS}
s_add_u32 s{sA}, s{sA}, {L_KP}
v_mul_u32_u24 v{a2}, {PS - 512}, v{a1}
v_add3_u32 v{vG_}, v{a2}, v{vL16}, s{sA}
v_mov_b64 {vr(vZer,2)}, 0
v_mov_b64 {vr(vZer+2,2)}, 0
ds_write_b128 v{vG_}, {vr(vZer,4)}
s_lshl_b32 s{sA}, s{sHw}, 10
s_add_u32 s{sB}, s{sP}, {P_UC}
s_add_u32 s{sA}, s{sA}, s{sB}
s_add_u32 s{sA}, s{sA}, 64
v_add_u32 v{vCd}, s{sA}, v{vL16}
v_and_b32 v{a3}, 3, v{V_LANE}
v_and_b32 v{a0}, 0x1c, v{V_LANE}
v_lshlrev_b32 v{a2}, 2, v{a0}
v_and_b32 v{vZp}, 0x30, v{a2}
s_mov_b32 exec_hi, 0
v_add_u32 v{vZp}, 2112, v{a2}
s_mov_b64 exec, -1
v_mul_u32_u24 v{a2}, {UC_S}, v{a3}
v_add3_u32 v{vZp}, v{vZp}, v{a2}, s{sB}
v_lshlrev_b32 v{a0}, 1, v{a0}
v_sub_u32 v{a0}, v{a0}, v{a2}
v_lshlrev_b32 v{a1}, 4, v{a1}
v_sub_u32 v{a0}, v{a0}, v{a1}
s_lshl_b32 s{sA}, s{sHw}, 5
s_sub_u32 s{sB}, s{sB}, s{sA}
s_add_u32 s{sB}, s{sB}, {56 + 3*UC_S}
v_add_u32 v{vF_}, s{sB}, v{a0}
v_add_u32 v{vG_}, {512 - 80}, v{vG_}
v_add_u32 v{vKxo}, s{sTab}, v{vL16}
s_xor_b32 s{sA}, s{S_W}, 1
s_mul_i32 s{sA}, s{sA}, {TABSZ}
s_add_u32 s{sA}, s{sA}, {L_TAB}
v_add_u32 v{vKxp}, s{sA}, v{vL16}
v_and_b32 v{a0}, 31, v{V_LANE}
v_lshlrev_b32 v{a2}, 2, v{a0}
v_sub_u32 v{a2}, v{a1}, v{a2}
s_add_u32 s{sA}, s{sInv}, {1088 + 124}
v_add_u32 v{vBk}, s{sA}, v{a2}
"""
def prewrite():
    e(f'''s_sub_u32 s{sA}, 3, s{S_HG}
    v_lshrrev_b32 v{a0}, s{sA}, v{V_LANE}
    v_lshlrev_b32 v{a1}, s{sA}, v{a0}
    v_sub_u32 v{a1}, v{V_LANE}, v{a1}
    s_lshr_b32 s{sA}, s{S_KS}, s{S_HG}
    v_mul_u32_u24 v{a0}, s{sA}, v{a0}
    v_lshl_add_u32 v{a0}, v{a1}, 6, v{a0}
    s_lshl2_add_u32 s{sA}, s{S_TILE}, s{S_W}
    s_lshl_b32 s{sA}, s{sA}, 9
    s_lshr_b32 s{sA}, s{sA}, s{S_HG}
    s_mul_i32 s{sB}, s{S_HG}, {WS_V - WS_K}
    s_add_u32 s{sA}, s{sA}, s{sB}
    s_mul_i32 s{sB}, s{S_C}, {8*KS}
    s_add_u32 s{sA}, s{sA}, s{sB}
    s_add_u32 s{sA}, s{sA}, {WS_K}''')
    hi(); e(f'buffer_store_dword v{a0}, v{a0}, {sr(SRD_WS)}, s{sA} offen sc1'); lo()
if OPT['pw'] == 1: prewrite()
e(mid)
if OPT['pw'] == 2: prewrite()
stamp(22)
e(f"""s_waitcnt lgkmcnt(0)
s_lshl_b32 s{sA}, s{sDs}, 4
s_lshr_b32 s{sLd}, s{sLd}, s{sA}
s_lshl_b32 s{sLd}, s{sLd}, 16
s_lshr_b32 s{sSk}, s{sSk}, s{sA}
s_lshl_b32 s{sSk}, s{sSk}, 16
v_mov_b32 v{a0}, s{sLd}
v_mul_f32 v{a0}, 0x3fb8aa3b, v{a0}
v_exp_f32 v{a0}, v{a0}
s_cmp_eq_u32 s{sHw}, 0
s_cselect_b32 s{sSk}, s{sSk}, 0
v_cvt_pk_bf16_f32 v{a0}, v{a0}, v{a0}
v_and_b32 v{vScl}, 0xffff0000, v{a0}
v_mul_f32 v{vKc}, 0xbfb8aa3b, v{vScl}
v_mul_f32 v{vKc+1}, 0.15915494, v{vScl}
v_mov_b32 v{vAdd}, 0
v_add_f32 v{vScl}, v{vScl}, v{vScl}
v_writelane_b32 v{vAdd}, s{sSk}, 0
s_mov_b32 s{sIt2}, 0
s_mov_b32 s{sSel}, 0x01000c0c""")
stamp(0)
e(f"""s_waitcnt vmcnt({(3 if OPT['tlb'] else 1) + (OPT['pw'] in (1, 2))})
v_and_b32 v{a0}, 0x7f807f80, v{vPar+2}
v_and_b32 v{a1}, 0x7f807f80, v{vPar+3}
v_pk_max_u16 v{a0}, v{a0}, v{a1}
v_lshlrev_b32 v{a1}, 16, v{a0}
v_max_u32 v{a0}, v{a0}, v{a1}""")
for q, n in enumerate((1, 2, 4, 8)):
    e(f's_nop 1\nv_max_u32_dpp v{a0}, v{a0}, v{a0} row_ror:{n} row_mask:0xf bank_mask:0xf')
e(f"""s_nop 0
v_readlane_b32 s{sA}, v{a0}, 0
v_readlane_b32 s{sB}, v{a0}, 16
v_readlane_b32 s{sInv}, v{a0}, 32
v_readlane_b32 s{sUns}, v{a0}, 48
s_max_u32 s{sA}, s{sA}, s{sB}
s_max_u32 s{sUns}, s{sUns}, s{sInv}
s_max_u32 s{sUns}, s{sUns}, s{sA}
s_and_b32 s{sUns}, s{sUns}, 0x7f800000
s_min_u32 s{sUns}, s{sUns}, 0x7e800000
s_sub_u32 s{sInv}, 0x7f000000, s{sUns}
v_mul_f32 v{vScl}, s{sUns}, v{vScl}
v_mul_f32 v{vSB}, 0x43000000, v{vScl}
v_mov_b32 v{vSB0}, v{vSB}
s_mov_b64 exec, 1
v_mov_b32 v{vSB0}, v{vScl}
s_mov_b64 exec, -1""")
stamp(1)
if OPT['abl'] == 2: e('s_endpgm')
def cm(jobs, conj):
    ng = 'neg_hi:[1,0,0]' if conj else 'neg_lo:[1,0,0]'
    return [f'v_pk_mul_f16 v{d}, v{x}, v{w} op_sel_hi:[1,0]' for d, x, w in jobs] + \
           [f'v_pk_fma_f16 v{d}, v{x}, v{w}, v{d} op_sel:[1,1,0] op_sel_hi:[0,1,1] {ng}' for d, x, w in jobs]
def wr(reg): return f'ds_write_addtid_b32 v{reg} offset:{TROW*(reg - vY)}'
assert vXt == vY + 16
zA, zB, tA, tB, pA, pB = vZ, vZ+2, vZ+4, vZ+6, vZ+8, vZ+10
X = vXt; Y = vY
an = {1: vAn, 2: vAn+1, 4: vAn+2, 8: Y+1, 16: Y+2, 32: Y+4, 64: Y+8, 128: X+21, 256: vAn+3, 512: vAn+4, 1024: vAn+5}
e('L_kg:')
stamp(14)
seq = f"""v_perm_b32 v{pA}, v{vPar}, v{vPar}, s{sSel}
v_mul_f32 v{pA}, 0x3fb8aa3b, v{pA}
v_exp_f32 v{pA}, v{pA}
v_perm_b32 v{pA+1}, v{vPar+1}, v{vPar+1}, s{sSel}
v_perm_b32 v{tA}, v{vPar+2}, v{vPar+2}, s{sSel}
v_perm_b32 v{tA+1}, v{vPar+3}, v{vPar+3}, s{sSel}
v_cvt_pk_bf16_f32 v{pA}, v{pA}, v{pA}
v_mul_f32 v{tA}, s{sInv}, v{tA}
v_and_b32 v{pA}, 0xffff0000, v{pA}
v_mul_f32 v{tA+1}, s{sInv}, v{tA+1}
v_pk_mul_f32 {vr(pA,2)}, {vr(pA,2)}, {vr(vKc,2)}
v_cvt_pk_f16_f32 v{X}, v{tA}, -v{tA+1}
v_mul_f32 v{pB}, 0x42800000, v{pA}
v_mul_f32 v{pB+1}, 0x42800000, v{pA+1}
v_exp_f32 v{pA}, v{pA}
v_fract_f32 v{pA+1}, v{pA+1}
v_exp_f32 v{pB}, v{pB}
v_fract_f32 v{pB+1}, v{pB+1}
v_cos_f32 v{zA}, v{pA+1}
v_sin_f32 v{zA+1}, v{pA+1}
v_cos_f32 v{zB}, v{pB+1}
v_sin_f32 v{zB+1}, v{pB+1}
v_pk_mul_f32 {vr(zA,2)}, {vr(zA,2)}, {vr(pA,2)} op_sel_hi:[1,0]
v_pk_mul_f32 {vr(zB,2)}, {vr(zB,2)}, {vr(pB,2)} op_sel_hi:[1,0]""".split('\n')
for st in range(6):
    chains = [(zA, tA, an[1 << st], st < 5)] + ([(zB, tB, an[64 << st], st < 4)] if st < 5 else [])
    for z, t, d, sq in chains:
        if sq: seq.append(f'v_pk_mul_f32 {vr(t,2)}, {vr(z,2)}, {vr(z,2)} op_sel_hi:[0,1]')
    for z, t, d, sq in chains: seq.append(f'v_cvt_pk_f16_f32 v{d}, v{z}, v{z+1}')
    for z, t, d, sq in chains:
        if sq: seq.append(f'v_pk_fma_f32 {vr(z,2)}, {vr(z,2)}, {vr(z,2)}, {vr(t,2)} op_sel:[1,1,0] op_sel_hi:[0,1,1] neg_lo:[1,0,0]')
seq += cm([(X+1, X, an[1]), (X+2, X, an[2]), (X+4, X, an[4]), (X+8, X, an[256]), (X+12, X, an[512]), (X+16, X, an[1024])], True)
seq += cm([(Y+3, Y+1, Y+2), (Y+12, Y+4, Y+8), (Y+5, Y+4, Y+1), (Y+6, Y+4, Y+2), (Y+9, Y+8, Y+1), (Y+10, Y+8, Y+2)], False)
seq += cm([(X+3, X+1, an[2]), (X+5, X+1, an[4]), (X+6, X+2, an[4]), (X+9, X+2, an[256]), (X+10, X+4, an[256]), (X+13, X+4, an[512]),
           (X+14, X+8, an[512]), (X+17, X+8, an[1024]), (X+18, X+12, an[1024]), (X+20, X+16, an[1024])], True)
seq += cm([(Y+7, Y+4, Y+3), (Y+11, Y+8, Y+3), (Y+13, Y+12, Y+1), (Y+14, Y+12, Y+2), (Y+15, Y+12, Y+3)], False)
seq += cm([(X+7, X+3, an[4]), (X+11, X+6, an[256]), (X+15, X+10, an[512]), (X+19, X+14, an[1024])], True)
e('\n'.join(seq))
stamp(15)
if OPT['kgw']:
    e(f'v_subrev_u32 v{a0}, 16, v{V_GRP}'); lwait(OPT['kgw'], addr=a0)
hi()
if OPT['abl'] != 4: e('\n'.join(wr(r) for r in range(Y + 1, X + 22)))
for k in range(4):
    o = vOp + 16*k
    e(f"""ds_read_b128 {vr(o,4)}, v{vRa} offset:{64*k}
    ds_read_b128 {vr(o+4,4)}, v{vRb_} offset:{37*TROW + 64*k}
    ds_read_b128 {vr(o+8,4)}, v{vRa} offset:{16*TROW + 64*k}
    ds_read_b128 {vr(o+12,4)}, v{vRa} offset:{32*TROW + 64*k}""")
if not OPT['uw']: e(f's_cmp_eq_u32 s{sIt2}, 0\ns_cbranch_scc1 L_kg_n\nbuffer_load_dword v{vFr}, v{vFu}, {sr(SRD_WS)}, 0 offen sc1\nL_kg_n:')
stamp(16)
def mf(c, a, b): return f'v_mfma_f32_16x16x32_f16 {vr(c,4)}, {vr(a,4)}, {vr(b,4)}, {vr(c,4)}'
late_m = []
for k in range(4):
    o = vOp + 16*k; y1 = vX1 + 4*(k & 1)
    p = cm([(y1+r, o+r, o+4+r) for r in range(4)], False)
    e(f's_waitcnt lgkmcnt({12 - 4*k})')
    e('\n'.join([mf(vAc, o+8, o)] + p[0:2] + late_m[:1] + p[2:4] + [mf(vAc+4, o+12, o)] + p[4:6] + late_m[1:] + p[6:8]))
    late_m = [mf(vAc+8, o+8, y1), mf(vAc+12, o+12, y1)]
e(f"""s_add_u32 s{sSel}, s{sSel}, 0x02020000
s_add_u32 s{sIt2}, s{sIt2}, 1
s_cmp_lg_u32 s{sIt2}, 2""")
e('\n'.join(late_m))
lo()
if OPT['pw'] == 3:
    e('s_cbranch_scc0 L_kg_e'); prewrite(); e('s_branch L_kg\nL_kg_e:')
else: e('s_cbranch_scc1 L_kg')
stamp(17)
if OPT['abl'] in (4, 8): e('s_endpgm')
def scl(i): return vSB0 if i == 4 else (vSB if i & 4 else vScl)
for i in range(8): e(f'v_mul_f32 v{vAc+i}, v{scl(i)}, v{vAc+i}')
e(f's_cmp_eq_u32 s{sHw}, 0')
for i in range(8, 16): e(f'v_mul_f32 v{vAc+i}, v{scl(i)}, v{vAc+i}')
e('s_cbranch_scc1 L_kx')
for i in range(8): e(f'v_swap_b32 v{vAc+i}, v{vAc+8+i}')
e(f"""L_kx:
ds_write_b128 v{vKxo}, {vr(vAc+8,4)}
s_mov_b32 exec_hi, 0
ds_write_b128 v{vKxo}, {vr(vAc+12,4)} offset:1024
s_mov_b64 exec, -1
s_waitcnt vmcnt({1 if OPT['pw'] else 0})
v_readfirstlane_b32 s{S_NONCE}, v{vPar+4}""")
arrive(2)
e(f's_add_u32 s{S_NONCE}, s{S_NONCE}, 1')
e(f'v_add_f32 v{vAc}, v{vAdd}, v{vAc}')
stamp(18)
def bprio():
    if OPT['prio']: e(f"s_setprio {OPT['bp']}")
def u_look():
    hi(); e(f'buffer_load_dword v{vFr}, v{vFu}, {sr(SRD_WS)}, 0 offen sc1'); bprio()
def u_fetch():
    hi()
    stamp(20)
    poll(vFu, first_issued=True, reg=vFr, sleep=OPT['usleep'])
    stamp(21)
    for k in range(2):
        e(f'buffer_load_dwordx4 {vr(U+4*k,4)}, v{vUa}, {sr(SRD_WS)}, s{sUl} offen offset:{2048*k} sc1')
    bprio()
if OPT['uw'] == -2: u_look()
else: bprio()
stamp(19)
lwait(2, addr=vPair)
e(f"""ds_read_b128 {vr(vAc+8,4)}, v{vKxp}
ds_read_b128 {vr(vAc+12,4)}, v{vKxp} offset:1024
ds_write_b128 v{vRz}, {vr(vZer,4)}
s_mov_b32 s{sIt2}, 4
s_waitcnt lgkmcnt(1)""")
for i in range(4): e(f'v_pk_add_f32 {vr(vAc+2*i,2)}, {vr(vAc+2*i,2)}, {vr(vAc+8+2*i,2)}')
for i in range(4): e(f'v_cvt_pk_bf16_f32 v{vAc+8+i}, v{vAc+2*i}, v{vAc+2*i+1}')
e(f"""ds_write_b32 v{vKd}, v{vAc+8}
ds_write_b32 v{vKd1}, v{vAc+9}
s_mov_b64 exec, 0x1ffff
ds_write_b16 v{vKa0}, v{vAc+10}
s_mov_b64 exec, 0xffff
ds_write_b16_d16_hi v{vKa}, v{vAc+10} offset:64
ds_write_b16 v{vKa}, v{vAc+11} offset:32
ds_write_b16_d16_hi v{vKa}, v{vAc+11}
s_mov_b64 exec, -1""")
if OPT['pw']: e('s_waitcnt vmcnt(0)')
arrive(3)
if OPT['uw'] == -1: u_look()
if OPT['uw'] == -2: u_fetch()
lwait(3, addr=vPair)
stamp(2)
E = 64; BF = 40
e(f"""ds_read2_b32 {vr(E,2)}, v{vE1} offset1:1
ds_read2_b32 {vr(E+2,2)}, v{vE1b} offset0:2 offset1:3
ds_read2_b32 {vr(E+4,2)}, v{vKb} offset0:191 offset1:192
ds_read_b32 v{E+6}, v{vKb} offset:1020
ds_read_b32 v{E+7}, v{vKb} offset:1024""")
for q in range(8): e(f'ds_read2_b32 {vr(BF+2*q,2)}, v{vBk} offset0:{8*(q>>1) + 2*(q&1)} offset1:{8*(q>>1) + 2*(q&1) + 1}')
b = E + 12; t = E + 16
e(f"""s_waitcnt lgkmcnt(10)
v_perm_b32 v{b+2}, v{E+2}, v{E+2}, v{vSel+2}
v_perm_b32 v{b+3}, v{E+3}, v{E+2}, v{vSel+3}
v_perm_b32 v{b-2}, v{E+5}, v{E+4}, s{sE2}
v_perm_b32 v{b-1}, v{E+5}, v{E+4}, s{sE3}
v_perm_b32 v{b}, v{E}, v{E}, v{vSel}
v_perm_b32 v{b+1}, v{E+1}, v{E}, v{vSel+1}
v_mov_b32_dpp v{b-2}, v{b+2} wave_shr:1 row_mask:0xf bank_mask:0xf
v_mov_b32_dpp v{b-1}, v{b+3} wave_shr:1 row_mask:0xf bank_mask:0xf
ds_write_b128 v{vCd}, {vr(b,4)}""")
for i in range(4): e(f'v_alignbit_b32 v{t+i}, v{b+i}, v{b+i-1}, 16')
e(f'ds_write_b128 v{vCd}, {vr(t,4)} offset:{UC_S}')
for i in range(4): e(f'v_mov_b32 v{t+4+i}, v{b+i-1}')
e(f'ds_write_b128 v{vCd}, {vr(t+4,4)} offset:{2*UC_S}')
for i in range(4): e(f'v_alignbit_b32 v{t+8+i}, v{b+i-1}, v{b+i-2}, 16')
e(f'ds_write_b128 v{vCd}, {vr(t+8,4)} offset:{3*UC_S}\ns_waitcnt lgkmcnt(12)')
for i in range(4): e(f'v_perm_b32 v{t+12+i}, v{E+7}, v{E+6}, v{vSel+4+i}')
e(f'ds_write_b128 v{vZp}, {vr(t+12,4)}')
if OPT['uw'] == -1: u_fetch()
stamp(3)
e(f'v_and_b32 v{a0}, 31, v{V_LANE}')
swap23(a1, a0, a2)
e(f"""v_lshrrev_b32 v{a2}, 5, v{V_LANE}
v_lshl_add_u32 v{a1}, v{a1}, 1, v{a2}
s_add_u32 s{sA}, s{sHw}, 123
v_add_u32 v{a1}, s{sA}, v{a1}
s_mul_i32 s{sA}, s{sDs}, {PD}
s_add_u32 s{sA}, s{sA}, {L_KP}
v_and_b32 v{a3}, 3, v{a1}
v_mul_u32_u24 v{a3}, {PS - 4}, v{a3}
v_lshl_add_u32 v{a3}, v{a1}, 2, v{a3}
v_add_u32 v{vA0}, s{sA}, v{a3}
v_add_u32 v{a1}, 2, v{a1}
v_and_b32 v{a3}, 3, v{a1}
v_mul_u32_u24 v{a3}, {PS - 4}, v{a3}
v_lshl_add_u32 v{a3}, v{a1}, 2, v{a3}
v_add_u32 v{vA1}, s{sA}, v{a3}
v_lshlrev_b32 v{a2}, 3, v{a2}
v_sub_u32 v{a2}, v{a2}, v{a0}
v_cvt_f32_i32 v{a2}, v{a2}
v_add_f32 v{a3}, -1.0, v{a2}
v_add_f32 v{a2}, -2.0, v{a2}
v_cvt_pk_f16_f32 v8, v{a3}, v{a2}
s_waitcnt vmcnt(1)
ds_write_b128 v{vKp}, {vr(U,4)}
s_waitcnt vmcnt(0)
ds_write_b128 v{vKp}, {vr(U+4,4)} offset:128""")
arrive(4)
AP, BD, DP = 112, 136, 192
band = [f's_mov_b32 s{sA}, 0x4a204a20', f's_cmp_eq_u32 s{sHw}, 0', f's_cselect_b32 s{sE2}, 0x4d104d10, s{sA}', f's_mov_b32 s{sE3}, 0x4d804d80']
for q in range(12):
    band.append(f'v_pk_fma_f16 v{BD+q}, v8, v8, s{sE2} neg_lo:[1,0,0] neg_hi:[1,0,0] clamp')
    if q < 11: band.append(f'v_pk_add_f16 v8, v8, s{sE3}' if q % 4 == 3 else 'v_pk_add_f16 v8, v8, -2.0 op_sel_hi:[1,0]')
e('\n'.join(band))
lwait(4)
KG[0] = False
lo()
stamp(4)
if OPT['abl'] == 16: e('s_endpgm')
CB = 64
def cv_reads(k):
    b = CB + 12 * (k & 3)
    return [f'ds_read_b64 {vr(b,2)}, v{vF_} offset:{64*k}', f'ds_read_b64 {vr(b+2,2)}, v{vF_} offset:{64*k + 8}',
            f'ds_read_b128 {vr(b+8,4)}, v{vG_} offset:{512 + 80 - 16*k}', f'ds_read_b128 {vr(b+4,4)}, v{vG_} offset:{80 - 16*k}']
for tau in range(2):
    for kp in range(3): e(f'ds_read_b128 {vr(AP + 12*tau + 4*kp, 4)}, v{(vA0, vA1)[kp & 1]} offset:{256*tau + 16*(kp >> 1)}')
e('\n'.join(cv_reads(0) + cv_reads(1)))
FOA = f'''s_lshr_b32 s{sA}, s{sOl}, 1
s_lshl_b32 s{sA}, s{sA}, {4 + FSH}
s_add_u32 s{sA}, s{sA}, {F_O}
v_lshl_add_u32 v{vFo}, v{a1}, {FSH}, s{sA}''' if not OM else f'''s_lshr_b32 s{sA}, s{sOl}, 1
s_lshl_b32 s{sB}, s{sHw}, 9
s_add_u32 s{sA}, s{sA}, s{sB}
s_lshl_b32 s{sA}, s{sA}, {FSH}
s_add_u32 s{sA}, s{sA}, {F_Y}
v_min_u32 v{vFo}, 6, v{a1}
v_lshl_add_u32 v{vFo}, v{vFo}, {6 + FSH}, s{sA}'''
late = f"""s_mov_b64 s[{SRD_B}:{SRD_B+1}], s[22:23]
s_mov_b32 s{SRD_B+2}, {448*896}
s_mov_b32 s{SRD_B+3}, 0x20000
s_mov_b64 s[{SRD_C}:{SRD_C+1}], s[24:25]
s_mov_b32 s{SRD_C+2}, {2048*1792}
s_mov_b32 s{SRD_C+3}, 0x20000
v_lshrrev_b32 v{a1}, 3, v{V_LANE}
v_and_b32 v{a2}, 7, v{V_LANE}
v_and_b32 v{a0}, 0x70, v{vL16}
v_mul_u32_u24 v{vYl}, {YS}, v{a1}
v_add_u32 v{vYl}, v{vYl}, v{a0}
v_lshlrev_b32 v{a3}, 2, v{V_LANE}
v_and_b32 v{a3}, 64, v{a3}
v_xor_b32 v{a0}, v{a0}, v{a3}
v_mul_u32_u24 v{vWoD}, 896, v{a1}
v_xor_b32 v{a3}, v{a1}, v{a2}
v_lshlrev_b32 v{a3}, 4, v{a3}
v_lshl_add_u32 v{vOut}, v{vWoD}, 1, v{a3}
v_add_u32 v{vWoD}, v{a0}, v{vWoD}
v_add_u32 v{vWoD+1}, {7168-1024}, v{vWoD}
v_lshrrev_b32 v{a0}, 4, v{V_LANE}
v_bfe_u32 v{a1}, v{V_LANE}, 2, 2
v_lshl_or_b32 v{a3}, v{a0}, 3, v{a1}
v_lshlrev_b32 v{a3}, 7, v{a3}
v_lshrrev_b32 v{a1}, 1, v{a1}
v_lshl_add_u32 v{a3}, v{a1}, 6, v{a3}
v_and_b32 v{a1}, 0x30, v{vL16}
s_movk_i32 s{sA}, {L_WO}
v_add3_u32 v{vWoR}, v{a1}, v{a3}, s{sA}
v_xor_b32 v{vWoR+1}, 64, v{vWoR}
v_and_b32 v{a1}, 15, v{V_LANE}
v_lshlrev_b32 v{vOl}, 4, v{a1}
v_mad_u32_u24 v{vOl}, v{a0}, s{S_KS}, v{vOl}
s_lshl2_add_u32 s{sOl}, s{S_J}, s{S_W}
{FOA}
s_lshl_b32 s{sA}, s{S_W}, 11
s_add_u32 s{sA}, s{sA}, {L_SSM}
v_xor_b32 v{a3}, v{a0}, v{a2}
v_lshl_add_u32 v{a3}, v{a3}, 4, s{sA}
v_lshl_add_u32 v{vBw}, v{a1}, 7, v{a3}
v_add_u32 v{vBr}, s{sA}, v{vL16}
s_mul_i32 s{sOut}, s{sOl}, {16*1792}
s_lshl_b32 s{sA}, s{S_C}, 7
s_add_u32 s{sOut}, s{sOut}, s{sA}
s_add_u32 s{sOut}, s{sOut}, 896
s_add_u32 s{sOut+1}, s{sOut}, {8*1792}
s_lshl_b32 s{sOl}, s{sOl}, 8
s_add_u32 s{sOl}, s{sOl}, {WS_O}
s_lshl2_add_u32 s{sCh0}, s{S_C}, s{S_W}
s_lshl_b32 s{sCh0}, s{sCh0}, 4
s_lshr_b32 s{sA}, s{S_J}, 4
s_lshl_b32 s{sA}, s{sA}, 9
s_add_u32 s{sA}, s{sA}, s{sCh0}
s_lshl_b32 s{sA}, s{sA}, {FSH}
s_add_u32 s{sA}, s{sA}, {F_Y}
v_lshl_add_u32 v{vFy}, v{a1}, {FSH}, s{sA}
v_and_b32 v{a1}, 11, v{V_LANE}
v_lshl_or_b32 v{a1}, v{a0}, 5, v{a1}
v_mul_u32_u24 v{a1}, 1792, v{a1}
v_and_b32 v{a3}, 4, v{V_LANE}
v_lshl_add_u32 v{vYs}, v{a3}, 2, v{a1}
s_lshl_b32 s{sA}, s{sHw}, 12
s_add_u32 s{sB}, s{sP}, {P_X + 4096}
s_sub_u32 s{sB}, s{sB}, s{sA}
v_add_u32 v{vXp}, s{sB}, v{vL16}
s_add_u32 s{sA}, s{sA}, s{sP}
s_add_u32 s{sA}, s{sA}, {P_X}
v_add_u32 v{vXo}, s{sA}, v{vL16}
v_lshl_add_u32 v{vRb_}, v{a0}, 4, s{sA}
v_bfe_u32 v{a0}, v{V_LANE}, 2, 2
v_and_b32 v{a3}, 1, v{V_LANE}
v_lshl_or_b32 v{a2}, v{a3}, 3, v{a0}
v_lshl_add_u32 v{vTr}, v{a2}, 7, v{vRb_}
v_and_b32 v{a2}, 2, v{V_LANE}
v_lshl_add_u32 v{vTr}, v{a2}, 2, v{vTr}""".split('\n')
def fill(n):
    e('\n'.join(late[:n])); del late[:n]
fill(16)
e('s_waitcnt lgkmcnt(8)')
for kp in range(3):
    for tau in range(2):
        d = vr(DP + 16*tau, 16)
        e(f'v_mfma_f32_32x32x16_bf16 {d}, {vr(AP + 12*tau + 4*kp, 4)}, {vr(BD + 4*kp, 4)}, {"0" if kp == 0 else d}')
        fill(6)
def cv_iter(first):
    for k in range(4):
        b = CB + 12 * k
        rd = cv_reads(k + 2)
        z = first and k == 0
        e('s_waitcnt lgkmcnt(4)')
        e(f'v_mfma_f32_32x32x16_bf16 {vr(T1,16)}, {vr(b,4)}, {vr(b+8,4)}, {"0" if z else vr(T1,16)}')
        e('\n'.join(rd))
        if k == 3:
            e(f'v_add_u32 v{vF_}, 256, v{vF_}\nv_subrev_u32 v{vG_}, 64, v{vG_}')
            if not first: e(f's_add_u32 s{sIt2}, s{sIt2}, 1\ns_cmp_lg_u32 s{sIt2}, 11')
        e(f'v_mfma_f32_32x32x16_bf16 {vr(T0,16)}, {vr(b,4)}, {vr(b+4,4)}, {"0" if z else vr(T0,16)}')
        if first: fill(6 if k < 3 else 99)
cv_iter(True)
e('L_cv:')
cv_iter(False)
e('s_cbranch_scc1 L_cv')
cv = [f'v_cvt_pk_bf16_f32 v{AP+i}, v{DP+2*i}, v{DP+2*i+1}' for i in range(16)]
for k in range(2):
    e('\n'.join(cv[4*k:4*k+4]))
    e(f's_waitcnt lgkmcnt({4 - 4*k})')
    e(f'v_mfma_f32_32x32x16_bf16 {vr(T1,16)}, {vr(CB+12*k,4)}, {vr(CB+12*k+8,4)}, {vr(T1,16)}')
for q in range(4):
    e('\n'.join(cv[8+4*q:12+4*q]))
    e(f'v_mfma_f32_32x32x16_bf16 {vr(T1,16)}, {vr(AP+4*q,4)}, {vr(BF+4*q,4)}, {vr(T1,16)}')
if OPT['prio']: e(f"s_setprio {OPT['pr']}")
stamp(5)
if OPT['abl'] == 32: e('s_endpgm')
e(f"""s_mul_i32 s{sA}, s{sD}, {YS}
s_lshl_b32 s{sB}, s{sHw}, 11
s_add_u32 s{sA}, s{sA}, s{sB}
s_add_u32 s{sA}, s{sA}, {WS_Y}
s_lshl_b32 s{sB}, s{sHw}, 9
s_add_u32 s{sB}, s{sB}, s{sD}
s_lshl_b32 s{sB}, s{sB}, {FSH}
s_add_u32 s{sB}, s{sB}, {F_Y}
s_nop 0""")
def xch(give, keep):
    for i in range(4): e(f'ds_write_b128 v{vXp}, {vr(give+4*i,4)} offset:{1024*i}')
    arrive(6); lwait(6, addr=vPair)
    for i in range(4): e(f'ds_read_b128 {vr(give+4*i,4)}, v{vXo} offset:{1024*i}')
    e('s_waitcnt lgkmcnt(0)')
e(f's_cmp_eq_u32 s{sHw}, 0\ns_cbranch_scc1 L_x0')
xch(T0, T1)
e('s_branch L_x1\nL_x0:')
xch(T1, T0)
e('L_x1:')
for i in range(8): e(f'v_pk_add_f32 {vr(T0+2*i,2)}, {vr(T0+2*i,2)}, {vr(T1+2*i,2)}')
for i in range(8): e(f'v_cvt_pk_bf16_f32 v{T1+i}, v{T0+2*i}, v{T0+2*i+1}')
e(f"""buffer_store_dwordx4 {vr(T1,4)}, v{vL16}, {sr(SRD_WS)}, s{sA} offen sc1
buffer_store_dwordx4 {vr(T1+4,4)}, v{vL16}, {sr(SRD_WS)}, s{sA} offen offset:1024 sc1
v_subrev_u32 v{a0}, 16, v{V_GRP}""")
if OM:
    e(f'''v_mov_b64 {vr(T0,2)}, -1
    v_mov_b64 {vr(T0+2,2)}, -1
    s_mul_i32 s{sA}, s{S_C}, {8*KS}
    s_add_u32 s{sA}, s{sA}, s{sOl}
    s_add_u32 s{sSk}, s{sA}, {4*KS}
    buffer_store_dwordx4 {vr(T0,4)}, v{vOl}, {sr(SRD_WS)}, s{sA} offen sc1
    buffer_store_dwordx4 {vr(T0,4)}, v{vOl}, {sr(SRD_WS)}, s{sSk} offen sc1''')
sync(7)
if OPT['only'] != 1: lwait(7, addr=a0)
e('s_waitcnt vmcnt(0)')
publish(sB, a0)
stamp(6)
if OPT['abl'] == 33: e('s_endpgm')
e(f"""s_mul_i32 s{sA}, s{S_W}, {16*896}
s_lshl_b32 s{sB}, s{S_C}, 7
s_add_u32 s{sA}, s{sA}, s{sB}
s_lshl_b32 s{sB}, s{S_W}, 11
s_add_u32 s{sB}, s{sB}, {L_WO}""")
for ch in range(7):
    e(f"""s_add_u32 m0, s{sB}, {8192*ch}
    s_add_u32 s{sSk}, s{sA}, {64*896*ch}
    buffer_load_dwordx4 v{vWoD}, {sr(SRD_B)}, s{sSk} offen lds
    buffer_load_dwordx4 v{vWoD+1}, {sr(SRD_B)}, s{sSk} offen offset:1024 lds
    s_waitcnt vmcnt({OPT['wodepth'] if ch < 6 else 0})""")
WF, OF, OC = 8, 168, 224
arrive(8)
e(f"""buffer_load_dword v{a0}, v{vFy}, {sr(SRD_WS)}, 0 offen sc1
s_mul_i32 s{sA}, s{sCh0}, {YS}
s_lshl_b32 s{sSk}, s{S_J}, 7
s_add_u32 s{sA}, s{sA}, s{sSk}
s_add_u32 s{sA}, s{sA}, {WS_Y}
s_add_u32 s{sSk}, s{sA}, {8*YS}""")
lwait(8)
stamp(7)
if OPT['abl'] == 34: e('s_endpgm')
def wo_reads(k):
    r = []
    for t in range(4):
        for hf in range(2):
            r.append(f'ds_read_b64_tr_b16 {vr(WF + 16*(k%10) + 4*t + 2*hf, 2)}, v{vWoR + (t>>1)} offset:{4096*k + 512*hf + 8*(t&1)}')
    return r
for k in range(10): e('\n'.join(wo_reads(k)))
arrive(9)
poll(vFy, first_issued=True, sleep=OPT['ysleep'], reg=a0)
stamp(8)
if OPT['abl'] == 35: e('s_endpgm')
e(f"""buffer_load_dwordx4 {vr(OF,4)}, v{vYl}, {sr(SRD_WS)}, s{sA} offen sc1
buffer_load_dwordx4 {vr(OF+4,4)}, v{vYl}, {sr(SRD_WS)}, s{sSk} offen sc1
s_lshr_b32 s{sA}, s{S_J}, 4
s_lshl_b32 s{sA}, s{sA}, 10
s_and_b32 s{sB}, s{S_J}, 3
s_lshl_b32 s{sB}, s{sB}, 8
s_add_u32 s{sA}, s{sA}, s{sB}
s_and_b32 s{sB}, s{S_J}, 8
s_lshl1_add_u32 s{sA}, s{sB}, s{sA}
s_and_b32 s{sB}, s{S_J}, 4
s_add_u32 s{sA}, s{sA}, s{sB}
s_mul_i32 s{sA}, s{sA}, 1792
s_lshl1_add_u32 s{sA}, s{sCh0}, s{sA}
s_add_u32 s{sB}, s{sA}, {128*1792}
v_xor_b32 v{a0}, 64, v{vBw}""")
lwait(9)
e(f"""s_waitcnt vmcnt(0)
ds_write_b128 v{vXo}, {vr(OF,4)}
ds_write_b128 v{vXo}, {vr(OF+4,4)} offset:1024""")
for z in range(2):
    for hf in range(2):
        e(f'ds_read_b64_tr_b16 {vr(OF + 8 + 4*z + 2*hf, 2)}, v{vTr} offset:{64*z + 512*hf}')
e(f"""s_waitcnt lgkmcnt(0)
buffer_store_dwordx4 {vr(OF+8,4)}, v{vYs}, {sr(SRD_C)}, s{sA} offen {OUTM}
buffer_store_dwordx4 {vr(OF+12,4)}, v{vYs}, {sr(SRD_C)}, s{sB} offen {OUTM}""")
if OPT['only'] == 1:
    stamp(9); stamp(13); prof_out(); e('s_endpgm')
if OM: poll(vFo, sleep=8)
if OM == 4:
    e(f'''s_lshl2_add_u32 s{sA}, s{S_J}, s{S_W}
    s_lshr_b32 s{sA}, s{sA}, 1
    s_lshl_b32 s{sA}, s{sA}, {4 + FSH}
    s_add_u32 s{sA}, s{sA}, {F_O}
    v_and_b32 v{vFo}, 15, v{V_LANE}
    v_lshl_add_u32 v{vFo}, v{vFo}, {FSH}, s{sA}''')
sOk, sLast = 4, 18
for k in range(14): e(f's_add_u32 s{sOk+k}, s{sOl}, {4*KS*k}')
stamp(9)
e('s_barrier        ; released once the four attention waves have stored their rows')
stamp(10)
if OPT['osleep']: e(f"s_sleep {OPT['osleep']}")
if OM != 3: poll(vFo, sleep=OPT['hsleep'])
if OM: e(f's_min_u32 s{S_BOUND}, s{S_BOUND}, 0x4000')
stamp(11)
def o_load(k): return f'buffer_load_dwordx4 {vr(OF+4*k,4)}, v{vOl}, {sr(SRD_WS)}, s{sOk+k} offen sc1'
def o_chk(k):
    o = OF + 4*k
    return [f's_waitcnt vmcnt({13-k})', f'v_max3_u32 v6, v{o}, v{o+1}, v{o+2}', f'v_max_u32 v6, v6, v{o+3}', 'v_cmp_eq_u32 vcc, -1, v6']
for k in range(14): e(o_load(k))
if OM: e('\n'.join(o_chk(0)))
for k in range(14):
    o = OF + 4*k
    m = [f'v_mfma_f32_16x16x32_bf16 {vr(OC+4*t,4)}, {vr(WF + 16*(k%10) + 4*t, 4)}, {vr(o,4)}, {"0" if k == 0 else vr(OC+4*t,4)}' for t in range(4)]
    rd = wo_reads(k + 9) if 1 <= k <= 4 else []
    if k == 10: e('s_waitcnt lgkmcnt(0)')
    if OM:
        e(f's_cbranch_vccnz L_or{k}\nL_og{k}:')
        c = o_chk(k + 1) if k < 13 else ['', '', '', '']
        e('\n'.join([m[0]] + rd[:4] + [m[1]] + rd[4:] + [m[2], c[0], c[1], c[2], m[3], c[3]]))
    else:
        e(f's_waitcnt vmcnt({13-k})'); e('\n'.join(m + rd))
stamp(12)
e('s_nop 4')
for i in range(8): e(f'v_cvt_pk_bf16_f32 v{16+i}, v{OC+2*i}, v{OC+2*i+1}')
e(f"""ds_write_b128 v{vBw}, {vr(16,4)}
ds_write_b128 v{a0}, {vr(20,4)}
ds_read_b128 {vr(24,4)}, v{vBr}
ds_read_b128 {vr(28,4)}, v{vBr} offset:1024
s_or_b32 s{sA}, s2, s{S_W}
s_waitcnt lgkmcnt(1)
buffer_store_dwordx4 {vr(24,4)}, v{vOut}, {sr(SRD_C)}, s{sOut} offen {OUTM2}
s_waitcnt lgkmcnt(0)
buffer_store_dwordx4 {vr(28,4)}, v{vOut}, {sr(SRD_C)}, s{sOut+1} offen {OUTM2}
s_cbranch_scc1 L_noepoch""")
publish(sA, 6)
e('L_noepoch:')
if OPT['prof']:
    e('s_waitcnt vmcnt(0)')
stamp(13)
prof_out()
e('L_end:\ns_endpgm')
if OM:
    for k in range(14):
        c = o_chk(k)
        e(f'''L_or{k}:
        s_call_b64 s[90:91], L_re{k}
        {c[0]}
        L_oc{k}:
        {c[1]}
        {c[2]}
        {c[3]}
        s_cbranch_vccz L_og{k}
        {'s_sleep %d' % OPT['rsleep'] if OPT['rsleep'] else ''}
        {o_load(k)}
        s_sub_u32 s{S_BOUND}, s{S_BOUND}, 1
        s_waitcnt vmcnt(0)
        s_cbranch_scc0 L_oc{k}
        s_mov_b32 s{S_BOUND}, 0
        s_branch L_og{k}''')
    for k in range(14): e(f'L_re{k}:\n{o_load(k)}')
    e('s_setpc_b64 s[90:91]')
sec('idle')
ROLE[0] = 2
e('L_ssm_idle:')
if OPT['only'] == 2:
    arrive(1); e('s_endpgm')
hi()
e(f"""v_lshrrev_b32 v10, 3, v{V_LANE}
v_and_b32 v11, 7, v{V_LANE}
v_lshlrev_b32 v11, 4, v11
v_mul_u32_u24 v5, 896, v10
v_add_u32 v5, v5, v11
v_add_u32 v6, {7168-1024}, v5
s_lshl2_add_u32 s60, s{S_J}, s{S_W}
s_mul_i32 s61, s60, {16*896}
s_mul_i32 s62, s{S_W}, 14336
s_add_u32 s62, s62, {L_SSM}
s_mov_b32 s{SRD_A+2}, {2048*896}
s_mov_b32 s{SRD_A+3}, 0x20000
s_waitcnt lgkmcnt(0)
s_load_dword s{S_NONCE}, s[28:29], 0
s_mov_b64 s[{SRD_A}:{SRD_A+1}], s[4:5]""")
for c in range(7):
    e(f"""s_add_u32 m0, s62, {2048*c - 128*c}
    s_nop 0
    buffer_load_dwordx4 v5, {sr(SRD_A)}, s61 offen offset:{128*c} lds
    buffer_load_dwordx4 v6, {sr(SRD_A)}, s61 offen offset:{1024 + 128*c} lds""")
    if c == 1:
        srd(SRD_WS, 28, WS_SIZE)
        e(f"""; transposing read: row = 8*(cc&1)+r', byte = 8*(2G+(cc>>1))
        v_mul_u32_u24 v7, {QS}, v10
        v_add_u32 v7, v7, v11
        v_bfe_u32 v8, v{V_LANE}, 2, 2
        v_and_b32 v9, 1, v{V_LANE}
        v_lshl_or_b32 v8, v9, 3, v8
        v_xor_b32 v8, 3, v8
        v_lshl_add_u32 v8, v8, 7, s62
        v_and_b32 v9, 0x30, v{V_LANE}
        v_add_u32 v8, v8, v9
        v_and_b32 v9, 2, v{V_LANE}
        v_lshl_add_u32 v8, v9, 2, v8
        s_lshl_b32 s63, s60, 7
        s_add_u32 s63, s63, {WS_U}
        s_mul_i32 s65, s{S_J}, {US}
        v_mov_b32 v12, 0x3f803f80
        v_mov_b32 v13, v12
        v_mov_b64 v[14:15], v[12:13]
        v_lshlrev_b32 v9, 4, v{V_LANE}
        s_lshl2_add_u32 s66, s{S_TILE}, s{S_W}
        s_lshl_b32 s66, s66, 8
        s_mul_i32 s67, s{S_HG}, {QS}
        s_add_u32 s66, s66, s67
        s_add_u32 s66, s66, {WS_V + 112*QS}
        s_add_u32 s65, s65, {F_U}""")
e(f's_waitcnt lgkmcnt(0)\ns_add_u32 s{S_NONCE}, s{S_NONCE}, 1')
arrive(1)
def t_rd(c):
    return [f'ds_read_b64_tr_b16 {vr(16 + 8*c + 4*z + 2*hf, 2)}, v8 offset:{2048*c + 64*z + 512*(1-hf)}' for z in range(2) for hf in range(2)]
e('s_waitcnt vmcnt(12)'); stamp(1); e('\n'.join(t_rd(0)))
for c in range(7):
    if c < 6:
        e('s_waitcnt vmcnt(10)'); e('\n'.join(t_rd(c + 1)))
    e(f"""s_add_u32 s64, s63, {8*QS}
    s_waitcnt lgkmcnt({4 if c < 6 else 0})
    buffer_store_dwordx4 {vr(16+8*c,4)}, v7, {sr(SRD_WS)}, s63 offen sc1
    buffer_store_dwordx4 {vr(20+8*c,4)}, v7, {sr(SRD_WS)}, s64 offen sc1
    s_add_u32 s63, s63, {16*QS}""")
assert OPT['ur'] == 1
e(f'''; the column quad of ones that gives the softmax row sums
s_mov_b64 exec, 0xffff
buffer_store_dwordx4 v[12:15], v9, {sr(SRD_WS)}, s66 offen sc1''')
stamp(2)
e(f'''s_mov_b64 exec, 1
v_mov_b32 v5, s{S_NONCE}
s_cmp_lg_u32 s{S_W}, 0
s_waitcnt vmcnt(0)
s_barrier
s_cbranch_scc1 L_idle_end
buffer_store_dword v5, v9, {sr(SRD_WS)}, s65 offen sc1''')
e('L_idle_end:\ns_mov_b64 exec, -1'); stamp(4)
prof_out()
e('s_endpgm')
ORDER = [['pro', 'ssm0', 'mha0', 'idle', 'ssm', 'mha'], ['pro', 'ssm0', 'mha0', 'mha', 'ssm', 'idle'],
         ['pro', 'ssm0', 'mha0', 'ssm', 'mha', 'idle'], ['pro', 'ssm0', 'idle', 'mha0', 'mha', 'ssm']][OPT['ord']] + ['cold', 'gt', 'fb']
SEC.setdefault('cold', [])
def add_nt(n, pred):
    SEC[n] = [(l.replace(' lds', ' nt lds') if l.endswith(' lds') else l + ' nt') if pred(l) else l for l in SEC[n]]
for n in ('mha0', 'mha', 'gt'):
    if OPT['nt'] & 1: add_nt(n, lambda l: l.endswith(' lds') and sr(SRD_A) in l)
    if OPT['nt'] & 2: add_nt(n, lambda l: l.endswith(' lds') and sr(SRD_B) in l)
if OPT['nt'] & 4: add_nt('idle', lambda l: l.endswith(' lds'))
if OPT['nt'] & 8: add_nt('ssm0', lambda l: 'global_load' in l)
if OPT['nt'] & 16: add_nt('ssm', lambda l: l.endswith(' lds'))
if OPT['nt'] & 32: add_nt('ssm', lambda l: 'buffer_store' in l and sr(SRD_C) in l)
BODY = sum((SEC[n] for n in ORDER), [])
def sizes(lines):
    import subprocess, re, os, tempfile
    d = tempfile.mkdtemp()
    open(d + '/a.s', 'w').write('.amdgcn_target "amdgcn-amd-amdhsa--gfx950"\n.text\n' + '\n'.join(lines) + '\n')
    subprocess.check_call(['clang', '-x', 'assembler', '-target', 'amdgcn-amd-amdhsa', '-mcpu=gfx950', '-c', d + '/a.s', '-o', d + '/a.o'])
    o = subprocess.check_output(['llvm-objdump', '-d', '--mcpu=gfx950', d + '/a.o']).decode()
    return [4 * len(m.group(1).split()) for m in re.finditer(r'// [0-9A-F]{12}: ((?:[0-9A-F]{8} ?)+)', o)]
def is_ins(l):
    t = l.split(';')[0].strip()
    return bool(t) and not t.endswith(':')
def widen(l):
    import re
    t = l.split(';')[0].strip(); op = t.split()[0]
    if op.startswith('v_') and not op.startswith(('v_readfirstlane', 'v_swap', 'v_permlane', 'v_nop')):
        return l.replace(op, op + '_e64', 1)
    return None
if OPT['al']:
    sz = iter(sizes(BODY))
    I = [[l, next(sz) if is_ins(l) else 0] for l in BODY]
    res = []; addr = 0; nw = nn = 0
    for i, (l, n) in enumerate(I):
        if n == 8 and addr % 8 == 4:
            run = 0
            for l2, n2 in I[i:]:
                if n2 == 4: break
                run += n2 == 8
            cross = sum(1 for k in range(run) if (addr + 8*k) % 32 == 28)
            if cross:
                j = len(res) - 1; done = False; aj = addr
                while j >= 0 and res[j][1] in (0, 4):
                    aj -= res[j][1]
                    t = res[j][0].strip()
                    if t.startswith(('s_branch', 's_endpgm', 's_setpc')):
                        res.insert(j + 1, ['    s_nop 0', 4]); done = True; break
                    w = widen(res[j][0]) if res[j][1] == 4 and aj % 32 != 28 else None
                    if w:
                        res[j] = [w, 8]; done = True; nw += 1; break
                    j -= 1
                if not done and run >= OPT['alr']:
                    k = len(res)
                    while res[k-1][1] == 0: k -= 1
                    res.insert(k, ['    s_nop 0', 4]); done = True; nn += 1
                if done: addr += 4
        res.append([l, n]); addr += n
    BODY = [l for l, n in res]
    print('aligned: widened', nw, 'nops', nn, 'bytes', addr, file=sys.stderr)
hdr = open('header.txt').read()
txt = hdr + f'''; @launch grid=(256,1,1) block=(512,1,1) lds={L_TOT}
.amdgcn_target "amdgcn-amd-amdhsa--gfx950"
.text
.globl {KN}
.p2align 8
.type {KN},@function
{KN}:
''' + '\n'.join(BODY) + f'''
.section .rodata,"a"
.p2align 6
.amdhsa_kernel {KN}
  .amdhsa_next_free_vgpr 256
  .amdhsa_next_free_sgpr 102
  .amdhsa_accum_offset 256
  .amdhsa_group_segment_fixed_size 0
  .amdhsa_kernarg_size 104
  .amdhsa_user_sgpr_count 2
  .amdhsa_user_sgpr_kernarg_segment_ptr 1
  .amdhsa_system_sgpr_workgroup_id_x 1
.end_amdhsa_kernel
'''
open(sys.argv[1], 'w').write(txt)
```

```python
import sys, struct
def fl(x): return hex(struct.unpack('<I', struct.pack('<f', x))[0])

KN = 'concat_heads__ssm_conv_s4d__softmax_full_mha__prompt_kernel'
OPT = dict(rdr=0, pw=0, dm=0, rdf=0, rdv=0, rdt=0, only_st=0, ur=1, us=128, rd0=-1, rdm=0, probe=0, poff=0xc00000, nt=0, rdn=0, al=1, alr=6, fw=0, rsleep=0, hsleep=0, ord=3, nb=0, tb=13, tq=0, chkk=99, uw=-1, cw=0, s6=5, tskip=1, ones=1, pa=1, pr=2, pf=2, wgf=2, ax=0, bp=1, qa=7, n0=4, ilv=8, tlb=0, ulook=1, kgp=1, pad=0, ypad=0, omode=3, ksleep=0, usleep=4, obar=5, osleep=0, pubk=8, abl=0, touch=0, gs=0, kgw=0, xg=5, gx=0, pm=2, ps=0, rt=0, upub=1, kgx=0, outsc=0, ysleep=8, wodepth=4, wq_mid=0, pollk=99, rd=-1, rdrole=0, only=0, safe=0, rot=0, prof=0, fs=128, force_fb=0, wq_early=7, prio=1)
for a in sys.argv[2:]:
    k, v = a.split('=')
    assert k in OPT, k
    OPT[k] = int(v, 0)

FS = OPT['fs']
FSH = FS.bit_length() - 1
F_KV = 0x1000
F_O = F_KV + 1024 * FS
F_U = F_O + 1024 * FS
F_Y = F_U + 1024 * FS
F_H = F_Y + 1024 * FS
WS_K = 0x100000
WS_V = 0x300000
WS_O = 0x500000
WS_U = 0x700000
WS_Y = 0x900000
QS = 16384 + OPT['pad']; KS = 2 * QS; YS = 4096 + OPT['ypad']
S_KS = 57
WS_PROF = 0xb00000
F_U = 0xb80000 if OPT['us'] * OPT['ur'] > 4096 else F_U
US = OPT['us']
WS_SIZE = 0x1000000
L_SSM = 1024
L_W = 57344
L_RB = 65536
L_X = 114688
L_TOT = 163840
TROW = 288
TABSZ = 38 * TROW
L_TAB = L_SSM
P_SZ = 2 * TABSZ
P_UC = 1536
UC_S = 2240
P_KD = TABSZ + 1536
P_X = TABSZ
PS = 1552
PD = 4 * PS
L_KP = L_TAB + 4 * TABSZ
assert P_UC + 4 * UC_S <= TABSZ and P_KD + 1600 <= P_SZ and P_X + 8192 <= P_SZ and L_KP % 16 == 0 and L_KP + 2 * PD <= L_W
L_WO = L_SSM

S_WV, S_W, S_HG, S_C, S_TILE, S_J, S_H, S_NONCE, S_O0, S_ROT = range(30, 40)
SRD_WS, SRD_A, SRD_B, SRD_C = 40, 44, 48, 52
S_BOUND = 56
S_T0 = 58

SEC = {}
out = None
def sec(n):
    global out
    out = SEC.setdefault(n, [])
sec('pro')
def e(s):
    for l in s.split('\n'):
        l = l.strip()
        if l:
            out.append(l if l.endswith(':') else '    ' + l)
_lab = [0]
def lab(p):
    _lab[0] += 1
    return f'L_{p}_{_lab[0]}'
def vr(a, n):
    return f'v[{a}:{a+n-1}]' if n > 1 else f'v{a}'
def srd(d, b, n):
    e(f's_mov_b64 s[{d}:{d+1}], s[{b}:{b+1}]\ns_mov_b32 s{d+2}, {n}\ns_mov_b32 s{d+3}, 0x20000')
def sr(d): return f's[{d}:{d+3}]'

V_LANE, V_T, V_OWN, V_GRP, V_PROF = 0, 1, 2, 3, 4

ROLE = [0]
def stamp(i):
    if OPT['rd0'] == i and OPT['rdrole'] == ROLE[0]:
        e('s_memrealtime s[98:99]\ns_waitcnt lgkmcnt(0)')
    if OPT['rd'] == i and OPT['rdrole'] == ROLE[0]:
        e('s_memrealtime s[100:101]\ns_waitcnt lgkmcnt(0)')
    if (OPT['only_st'] >> (i + 32*min(ROLE[0], 1))) & 1 if OPT['only_st'] else OPT['prof'] > (i >= 14):
        e(f's_mem{"real" if OPT["rt"] else ""}time s[96:97]\ns_waitcnt lgkmcnt(0)\ns_sub_u32 s96, s96, s{98 if OPT["rt"] else S_T0}\nv_writelane_b32 v{V_PROF}, s96, {i}')
def prof_out():
    if OPT['rd'] >= 0 and OPT['rdrole'] == ROLE[0]:
        l = lab('pad')
        if ROLE[0] == 0 and not OPT['obar']: e('s_barrier')
        if ROLE[0] == 2: e('s_barrier')
        if OPT['rdr']:
            e(f'''s_lshl3_add_u32 s96, s2, s{S_WV}
            s_lshl_b32 s96, s96, 2
            s_add_u32 s96, s96, 0xb40000
            v_mov_b32 v6, 0
            buffer_load_dword v5, v6, {sr(SRD_WS)}, s96 offen sc1
            s_xor_b32 s97, s{S_NONCE}, 0x5a3c1e77
            v_mov_b32 v7, s97
            s_waitcnt vmcnt(0)
            buffer_store_dword v7, v6, {sr(SRD_WS)}, s96 offen sc1
            v_readfirstlane_b32 s96, v5
            s_xor_b32 s96, s96, 0x5a3c1e77
            s_add_u32 s96, s96, 1
            s_cmp_eq_u32 s96, s{S_NONCE}
            s_cbranch_scc{OPT['rdr'] - 1} L_end''')
        if OPT['rdf']: e(f"s_and_b32 s96, s2, {OPT['rdf']}\ns_cmp_lg_u32 s96, {OPT['rdv']}\ns_cbranch_scc1 L_end")
        if ROLE[0] == 0 and OPT['rdn']: e(f's_cmp_eq_u32 s{S_C}, 7\ns_cbranch_scc{2 - OPT["rdn"]} L_end')
        if OPT['rd'] == 98:
            e(f'''s_not_b32 s100, s100
            v_mov_b32 v5, s100
            v_mov_b32 v6, 0
            s_mov_b64 exec, 1
            global_atomic_umax v6, v5, s[26:27]
            s_waitcnt vmcnt(0)
            s_sleep 127
            s_sleep 127
            s_sleep 127
            s_sleep 127
            s_sleep 127
            global_load_dword v5, v6, s[26:27] sc1
            s_waitcnt vmcnt(0)
            v_readfirstlane_b32 s100, v5
            s_not_b32 s100, s100''')
        if OPT['probe']:
            op = {1: 'buffer_store_dwordx4 v[8:11], v5, s[52:55], s60 offen sc1', 2: 'buffer_load_dwordx4 v[8:11], v5, s[52:55], s60 offen sc1',
                  3: 'buffer_store_dwordx4 v[8:11], v5, s[52:55], s60 offen'}[OPT['probe'] & 3]
            if OPT['probe'] & 16: op = '\n'.join(op.replace('offen', f'offen offset:{1024*i}') for i in range(4))
            pre = 'buffer_load_dword v12, v6, s[52:55], s61 offen sc1\ns_waitcnt vmcnt(0)' if OPT['probe'] & 4 else ''
            if OPT['probe'] & 8: pre += '\nbuffer_store_dwordx4 v[8:11], v5, s[52:55], s60 offen sc1\ns_waitcnt vmcnt(0)\ns_sleep 40'
            e(f'''s_mov_b64 s[52:53], s[28:29]
            s_mov_b32 s54, 0x10000000
            s_mov_b32 s55, 0x20000
            L_prb:
            s_sleep 1
            s_memrealtime s[62:63]
            s_waitcnt lgkmcnt(0)
            s_sub_u32 s62, s62, s58
            s_cmp_lt_u32 s62, 3000
            s_cbranch_scc1 L_prb
            v_lshlrev_b32 v5, 4, v0
            v_mov_b32 v6, 0
            s_lshl2_add_u32 s60, s2, s{S_W}
            s_lshl_b32 s60, s60, {12 if OPT['probe'] & 16 else 10}
            s_add_u32 s60, s60, {OPT['poff']}
            s_mov_b32 s61, {OPT['poff'] + 0x180000}
            {pre}
            s_memrealtime s[62:63]
            s_waitcnt lgkmcnt(0)
            {op}
            s_waitcnt vmcnt(0)
            s_memrealtime s[100:101]
            s_waitcnt lgkmcnt(0)
            s_sub_u32 s100, s100, s62
            v_mov_b32 v8, s100
            s_lshl2_add_u32 s60, s2, s{S_W}
            s_lshl_b32 s60, s60, 2
            s_add_u32 s60, s60, {WS_PROF}
            buffer_store_dword v8, v6, s[52:55], s60 offen
            s_mul_i32 s100, s100, 20
            s_add_u32 s100, s100, s58''')
        elif OPT['rdm'] >= 3:
            key = {3: 's_and_b32 s96, s2, 7', 4: f's_mov_b32 s96, s{S_H}', 5: f's_mov_b32 s96, s{S_TILE}'}[OPT['rdm']]
            e(f'''s_sub_u32 s100, s100, s98
            s_sub_u32 s97, s98, s58
            s_mul_i32 s100, s100, 1000000
            s_mul_i32 s97, s97, 1000
            s_add_u32 s100, s100, s97
            s_add_u32 s100, s100, s2
            {key}
            s_lshl_b32 s96, s96, 2
            v_mov_b32 v5, s100
            v_mov_b32 v6, s96
            s_mov_b64 exec, 1
            global_atomic_umax v6, v5, s[26:27]
            s_waitcnt vmcnt(0)
            s_endpgm''')
        elif OPT['rdm'] == 2:
            e('''s_not_b32 s96, s58
            v_mov_b32 v5, s96
            v_mov_b32 v6, 0
            s_mov_b64 exec, 1
            global_atomic_umax v6, v5, s[26:27]
            s_waitcnt vmcnt(0)''' + '\ns_sleep 127' * 7 + '''
            global_load_dword v5, v6, s[26:27] sc1
            s_waitcnt vmcnt(0)
            v_readfirstlane_b32 s96, v5
            s_not_b32 s96, s96
            s_sub_u32 s100, s100, s96
            s_lshl_b32 s100, s100, 3
            s_add_u32 s100, s100, s96''')
        elif OPT['rdm']:
            e('s_sub_u32 s100, s100, s98')
            if OPT['rdt']: e(f"s_cmp_gt_u32 s100, {OPT['rdt']}\ns_cselect_b32 s100, 1280, 0")
            e('''v_mov_b32 v5, s100
            v_mov_b32 v6, 0
            s_mov_b64 exec, 1
            global_atomic_add v6, v5, s[26:27]
            s_waitcnt vmcnt(0)''' + '\ns_sleep 127' * 7 + '''
            global_load_dword v5, v6, s[26:27] sc1
            s_waitcnt vmcnt(0)
            v_readfirstlane_b32 s100, v5
            s_lshr_b32 s100, s100, 6
            s_add_u32 s100, s100, s58''')
        else: e('s_sub_u32 s100, s100, s98\ns_lshl_b32 s100, s100, 3\ns_add_u32 s100, s100, s58')
        e(f'''s_add_u32 s100, s100, 6000
        {l}:
        s_sleep 1
        s_memrealtime s[96:97]
        s_waitcnt lgkmcnt(0)
        s_sub_u32 s96, s96, s100
        s_cmp_lt_i32 s96, 0
        s_cbranch_scc1 {l}''')
    if OPT['prof']:
        e(f'''s_memrealtime s[96:97]
        s_waitcnt lgkmcnt(0)
        v_writelane_b32 v{V_PROF}, s96, 31
        v_writelane_b32 v{V_PROF}, s98, 30
        s_lshl_b32 s96, s2, 3
        s_add_u32 s96, s96, s{S_WV}
        s_lshl_b32 s96, s96, 7
        s_add_u32 s96, s96, {WS_PROF}
        v_lshlrev_b32 v{V_T}, 2, v{V_LANE}
        s_mov_b32 exec_hi, 0
        buffer_store_dword v{V_PROF}, v{V_T}, {sr(SRD_WS)}, s96 offen
        s_mov_b64 exec, -1''')

def arrive(stage):
    e(f'v_mov_b32 v{V_T}, {stage}\nds_write_b32 v{V_OWN}, v{V_T}')
def lwait(stage, addr=V_GRP, sleep=0):
    l = lab('lw')
    e(f'{l}:')
    if sleep: e(f's_sleep {sleep}')
    e(f'''ds_read_b32 v{V_T}, v{addr}
    s_waitcnt lgkmcnt(0)
    v_cmp_gt_u32 vcc, {stage}, v{V_T}''')
    if OPT['safe']:
        d = lab('ld')
        e(f'''s_cbranch_vccz {d}
        s_sub_u32 s{S_BOUND}, s{S_BOUND}, 1
        s_cbranch_scc0 {l}
        s_mov_b32 s{S_BOUND}, 0
        {d}:''')
    else:
        e(f's_cbranch_vccnz {l}')
def sync(stage):
    arrive(stage); lwait(stage)
def poll(voff, first_issued=False, sleep=0, reg=V_T):
    l, d, m = lab('pl'), lab('pd'), lab('pm')
    if first_issued == 2:
        e(f's_waitcnt vmcnt(0)\nv_cmp_ne_u32 vcc, s{S_NONCE}, v{reg}\ns_cbranch_vccnz {l}\n{d}:')
        cur = [n for n in SEC if SEC[n] is out][0]
        sec('cold')
        e(f'''{l}:
        buffer_load_dword v{reg}, v{voff}, {sr(SRD_WS)}, 0 offen sc1
        s_waitcnt vmcnt(0)
        v_cmp_ne_u32 vcc, s{S_NONCE}, v{reg}
        s_cbranch_vccz {d}
        s_sub_u32 s{S_BOUND}, s{S_BOUND}, 1
        s_cbranch_scc0 {l}
        s_mov_b32 s{S_BOUND}, 0
        s_branch {d}''')
        sec(cur)
        return
    if first_issued: e(f's_branch {m}')
    e(f'{l}:')
    if sleep: e(f's_sleep {sleep}')
    e(f'''buffer_load_dword v{reg}, v{voff}, {sr(SRD_WS)}, 0 offen sc1
    {m}:
    s_waitcnt vmcnt(0)
    v_cmp_ne_u32 vcc, s{S_NONCE}, v{reg}
    s_cbranch_vccz {d}
    s_sub_u32 s{S_BOUND}, s{S_BOUND}, 1
    s_cbranch_scc0 {l}
    s_mov_b32 s{S_BOUND}, 0
    {d}:''')
def publish(soff, tmp):
    if OPT['fw']:
        e(f'''v_mov_b32 v{V_T}, s{S_NONCE}
        v_lshlrev_b32 v{tmp}, 2, v{V_LANE}
        s_mov_b64 exec, {hex((1 << OPT['fw']) - 1)}
        buffer_store_dword v{V_T}, v{tmp}, {sr(SRD_WS)}, s{soff} offen sc1
        s_mov_b64 exec, -1'''.replace('s_mov_b64 exec, 0xffffffff', 's_mov_b32 exec_hi, 0'))
        return
    e(f'''v_mov_b32 v{V_T}, s{S_NONCE}
    v_mov_b32 v{tmp}, 0
    s_mov_b64 exec, 1
    buffer_store_dword v{V_T}, v{tmp}, {sr(SRD_WS)}, s{soff} offen sc1
    s_mov_b64 exec, -1''')
def swap23(d, s, t):
    e(f'''v_lshrrev_b32 v{t}, 1, v{s}
    v_xor_b32 v{t}, v{t}, v{s}
    v_and_b32 v{t}, 4, v{t}
    v_mul_u32_u24 v{t}, 3, v{t}
    v_xor_b32 v{d}, v{t}, v{s}''')
def rot_next(s):
    e(f's_add_u32 s{s}, s{s}, 1\ns_cmp_eq_u32 s{s}, 7\ns_cselect_b32 s{s}, 0, s{s}')

e(f'''s_cmp_ge_u32 s2, 256
s_cbranch_scc1 L_end''')
if OPT['prof']:
    e(f's_memtime s[{S_T0}:{S_T0+1}]\ns_memrealtime s[98:99]\nv_mov_b32 v{V_PROF}, 0')
if OPT['rd'] >= 0: e('s_memrealtime s[100:101]\ns_memrealtime s[58:59]\ns_memrealtime s[98:99]')
e(f'''s_load_dwordx16 s[4:19], s[0:1], 0
s_load_dwordx8 s[20:27], s[0:1], 64
s_load_dwordx2 s[28:29], s[0:1], 96
v_lshrrev_b32 v{V_OWN}, 6, v0
v_and_b32 v{V_LANE}, 63, v0
v_readfirstlane_b32 s{S_WV}, v{V_OWN}
v_lshlrev_b32 v{V_OWN}, 2, v{V_OWN}
v_mov_b32 v{V_T}, 0
ds_write2_b32 v{V_OWN}, v{V_T}, v{V_T} offset1:8
v_and_b32 v{V_GRP}, 3, v{V_LANE}
v_lshlrev_b32 v{V_GRP}, 2, v{V_GRP}
s_and_b32 s{S_HG}, s2, 1
s_bfe_u32 s60, s2, 0x20001
s_bfe_u32 s{S_C}, s2, 0x30003
s_lshr_b32 s61, s2, 6
s_lshl2_add_u32 s{S_TILE}, s60, s61
s_lshl1_add_u32 s{S_J}, s{S_TILE}, s{S_HG}
s_lshl3_add_u32 s{S_H}, s{S_HG}, s{S_C}
s_and_b32 s{S_W}, s{S_WV}, 3
s_mov_b32 s{S_BOUND}, 0x40000
s_mov_b32 s{S_KS}, {KS}
s_cmp_lt_u32 s{S_WV}, 4
s_cbranch_scc1 L_mha''')

VX = 144; VACC = 96; VWF = 32; VPK = 128
VV, VK, VS, VO, VQ = 32, 64, 96, 160, 224
vWd = [5, 6]; vXd = [7, 8, 9, 10]; vXr = [11, 12, 13, 14]; vWb, vW0, vW1 = 15, 16, 17
vRho, vG, vSt, vQd, vQr, vFl, vA, vB, vC = 18, 19, 20, 21, 22, 23, 24, 25, 26
vKo0, vKo1, vVo, vIdx = 27, 28, 29, 30
sXb, sWb, sCh, sCw, sLx, sTmp, sTmp2, sSt, sS1, sS2, sFl = range(60, 71)
sK, sV, sIt = 71, 72, 73
sFo, sO0, sO1 = 84, 85, 86
vOs, vQw = vRho, vG
vRb = [7, 8, 9]; vQx = [11, 12, 13]; vRr = 10
sMask = 74
sOdd = 76

sec('mha0')
e('L_mha:')
if OPT['prio']: e(f"s_setprio {OPT['pm']}")
e(f'''s_mul_i32 s{S_O0}, s{S_H}, 7
s_lshr_b32 s{S_O0}, s{S_O0}, 1''')
e(f'''v_lshrrev_b32 v{vA}, 3, v{V_LANE}          ; r
v_and_b32 v{vB}, 7, v{V_LANE}                    ; p
v_lshlrev_b32 v{vC}, 1, v{vA}
v_and_b32 v{vC}, 4, v{vC}
v_xor_b32 v{vC}, v{vC}, v{vB}
v_lshlrev_b32 v{vC}, 4, v{vC}
v_mul_u32_u24 v{vWd[0]}, 2688, v{vA}
v_add_u32 v{vWd[0]}, v{vWd[0]}, v{vC}
v_add_u32 v{vWd[1]}, {8*2688-1024}, v{vWd[0]}
v_lshrrev_b32 v{vC}, 1, v{vA}
v_xor_b32 v{vC}, v{vC}, v{vB}
v_lshlrev_b32 v{vC}, 4, v{vC}
v_mul_u32_u24 v{vA}, 896, v{vA}
v_add_u32 v{vXd[0]}, v{vA}, v{vC}
v_xor_b32 v{vC}, 64, v{vC}
v_add_u32 v{vXd[1]}, v{vA}, v{vC}
v_add_u32 v{vXd[1]}, {7168-1024}, v{vXd[1]}
v_add_u32 v{vXd[2]}, {2*(7168-1024)}, v{vXd[0]}
v_add_u32 v{vXd[3]}, {2*(7168-1024)}, v{vXd[1]}
s_lshl2_add_u32 s{sXb}, s{S_TILE}, s{S_W}
s_lshl_b32 s{sFl}, s{S_H}, 6
s_add_u32 s{sFl}, s{sFl}, s{S_TILE if OPT['wgf'] else sXb}
s_lshl_b32 s{sFl}, s{sFl}, {FSH}
s_add_u32 s{sFl}, s{sFl}, {F_KV}
s_mul_i32 s{sXb}, s{sXb}, {32*896}
s_mul_i32 s{sTmp2}, s{S_HG}, 3
s_lshr_b32 s{sTmp}, s2, 6
s_add_u32 s{sTmp2}, s{sTmp2}, s{sTmp}
s_mul_i32 s{sWb}, s{S_HG}, 7
s_add_u32 s{sWb}, s{sWb}, s{S_C}
s_add_u32 s{sWb}, s{sWb}, 7
s_cmp_eq_u32 s{S_C}, 7
s_cselect_b32 s{sWb}, {'s%d' % sTmp2 if OPT['tq'] else '0x100000'}, s{sWb}
s_cselect_b32 s{sS1}, 1, s{S_W}
s_lshl_b32 s{sWb}, s{sWb}, 7
s_mul_i32 s{sTmp}, s{S_W}, {16*2688}
s_add_u32 s{sWb}, s{sWb}, s{sTmp}
s_mul_i32 s{sLx}, s{S_W}, 12288
s_add_u32 s{sLx}, s{sLx}, {L_X}
s_lshl_b32 s{sS1}, s{sS1}, 11
s_add_u32 s{sS1}, s{sS1}, {L_W}
s_mov_b32 s{SRD_A+2}, {2048*896}
s_mov_b32 s{SRD_A+3}, 0x20000
s_mov_b32 s{SRD_B+2}, {448*1344*2}
s_mov_b32 s{SRD_B+3}, 0x20000
s_mov_b32 m0, s{sLx}
s_waitcnt lgkmcnt(0)
s_mov_b64 s[{SRD_A}:{SRD_A+1}], s[18:19]
s_mov_b64 s[{SRD_B}:{SRD_B+1}], s[20:21]
s_load_dword s{S_NONCE}, s[28:29], 0''')
stamp(22)
sWo = 88
def w_lines(st):
    return [f's_add_u32 m0, s{sS1}, {8192*st}', f's_add_u32 s{sWo+st}, s{sWb}, {64*2688*st}'] + \
           [f'buffer_load_dwordx4 v{vWd[i]}, {sr(SRD_B)}, s{sWo+st} offen offset:{1024*i} lds' for i in range(2)]
def x_chunk(st):
    return [f's_add_u32 m0, s{sLx}, {(st%3)*4096 - 128*st}', 's_nop 0'] + \
           [f'buffer_load_dwordx4 v{vXd[i]}, {sr(SRD_A)}, s{sXb} offen offset:{1024*i + 128*st} lds' for i in range(4)]
DM = []
for l in [x_chunk(0), w_lines(0)] + [w_lines(i) for i in range(1, 7)] + [x_chunk(1), x_chunk(2)]:
    DM += [l[:3]] + [[x] for x in l[3:]]
DM[0] = DM[0][2:]
for i, g in enumerate(DM[:OPT['n0']]):
    if i == OPT['nb']:
        e(f's_cmp_lg_u32 s{S_C}, 7\ns_cbranch_scc1 L_bar0\ns_waitcnt lgkmcnt(0)\nL_bar0:\ns_barrier'); stamp(23)
        if OPT['only'] == 1: e('s_endpgm')
    e('\n'.join(g))
DM = DM[OPT['n0']:]
stamp(24)
if OPT['ord'] not in (1, 3): e('s_branch L_mha1')
sec('mha')
e('L_mha1:')
stamp(25)
sec('tmp')
srd(SRD_WS, 28, WS_SIZE)
ONES = f'''s_bitcmp1_b32 s{S_H}, 0
s_cselect_b32 s{sTmp}, 0, 7
v_cmp_eq_u32 vcc, s{sTmp}, v{vA}
s_lshl_b32 s{sTmp}, s{S_O0}, 1
s_sub_u32 s{sTmp}, s{S_HG}, s{sTmp}
s_add_u32 s{sTmp}, s{sTmp}, 112
v_mov_b32 v{vB}, s{sTmp}
v_cndmask_b32 v{vA}, v{vA}, v{vB}, vcc
''' if OPT['ones'] else ''
FIX = f'v_cmp_lt_u32 vcc, 7, v{vB}\n'
FOM = f'''s_lshl_b32 s{sFo}, s{sTmp2}, 4
s_add_u32 s{sFo}, s{sFo}, s{S_H}
s_lshl_b32 s{sFo}, s{sFo}, {FSH}
s_add_u32 s{sFo}, s{sFo}, {F_O}
''' if OPT['omode'] != 3 else ''
e(f'''v_and_b32 v{vA}, 31, v{V_LANE}
v_lshrrev_b32 v{vG}, 5, v{V_LANE}''')
swap23(vRho, vA, vB)
e(f'''v_bfe_u32 v{vB}, v{vRho}, 1, 3
v_xor_b32 v{vB}, v{vB}, v{vG}
v_lshlrev_b32 v{vB}, 4, v{vB}
v_lshl_add_u32 v{vB}, v{vRho}, 7, v{vB}
v_add_u32 v{vXr[0]}, s{sLx}, v{vB}
v_xor_b32 v{vXr[1]}, 32, v{vXr[0]}
v_xor_b32 v{vXr[2]}, 64, v{vXr[0]}
v_xor_b32 v{vXr[3]}, 0x60, v{vXr[0]}
v_and_b32 v{vB}, 3, v{V_LANE}                     ; cc
v_lshrrev_b32 v{vC}, 1, v{vB}
v_and_b32 v{vQd}, 1, v{vB}
v_lshl_or_b32 v{vC}, v{vQd}, 1, v{vC}
v_bfe_u32 v{vQd}, v{V_LANE}, 4, 1
v_lshl_or_b32 v{vB}, v{vQd}, 2, v{vB}              ; mq natural
v_lshl_or_b32 v{vC}, v{vQd}, 2, v{vC}
v_bfe_u32 v{vQd}, v{V_LANE}, 2, 2                  ; r'
v_lshl_or_b32 v{vFl}, v{vG}, 3, v{vQd}             ; 8g + r'
v_lshlrev_b32 v{vQr}, 6, v{vFl}
v_lshl_add_u32 v{vQr}, v{vC}, 3, v{vQr}
v_add_u32 v{vQr}, {L_X + 4096}, v{vQr}
s_cmp_eq_u32 s{S_HG}, 0
s_cselect_b64 vcc, -1, 0
v_cndmask_b32 v{vB}, v{vB}, v{vC}, vcc             ; K slabs use the exchanged order, V slabs the natural one
v_lshlrev_b32 v{vWb}, 7, v{vFl}
v_lshl_add_u32 v{vWb}, v{vB}, 3, v{vWb}
v_lshrrev_b32 v{vQd}, 1, v{vQd}
v_lshl_add_u32 v{vWb}, v{vQd}, 6, v{vWb}
v_add_u32 v{vW0}, {L_W}, v{vWb}
v_lshlrev_b32 v{vB}, 4, v{vRho}
v_mad_u32_u24 v{vB}, v{vG}, s{S_KS}, v{vB}
v_lshrrev_b32 v{vC}, 2, v{vA}
v_mul_u32_u24 v{vC}, {QS}, v{vC}
v_lshl_add_u32 v{vC}, v{vG}, 6, v{vC}
v_and_b32 v{vQd}, 3, v{vA}
v_lshl_add_u32 v{vC}, v{vQd}, 4, v{vC}
v_cndmask_b32 v{vSt}, v{vC}, v{vB}, vcc
s_lshl2_add_u32 s{sTmp}, s{S_TILE}, s{S_W}
s_lshl_b32 s{sTmp2}, s{sTmp}, 9
s_add_u32 s{sTmp2}, s{sTmp2}, {WS_K}
s_lshl_b32 s{sTmp}, s{sTmp}, 8
s_add_u32 s{sTmp}, s{sTmp}, {WS_V}
s_movk_i32 s{sS2}, 128
s_cmp_eq_u32 s{S_HG}, 0
s_cselect_b32 s{sSt}, s{sTmp2}, s{sTmp}
s_cselect_b32 s{sS2}, {2*KS}, s{sS2}
s_mul_i32 s{sTmp}, s{S_C}, {8*KS}
s_add_u32 s{sSt}, s{sSt}, s{sTmp}
v_lshrrev_b32 v{vB}, 2, v{V_LANE}
v_mul_u32_u24 v{vB}, 2688, v{vB}
v_lshl_add_u32 v{vQd}, v{vQd}, 4, v{vB}
s_lshl_b32 s82, s{S_O0}, 4
s_mul_i32 s{sTmp}, s{S_W}, {16*2688}
s_add_u32 s82, s82, s{sTmp}
s_lshr_b32 s{sTmp}, s{S_O0}, 3
s_add_u32 s{sTmp2}, s{S_O0}, 3
s_lshr_b32 s{sTmp2}, s{sTmp2}, 3
s_sub_u32 s{sTmp2}, s{sTmp2}, s{sTmp}
v_bfe_u32 v{vC}, v{V_LANE}, 4, 1
v_mul_u32_u24 v{vC}, s{sTmp2}, v{vC}
v_lshl_add_u32 v{vC}, v{vG}, 3, v{vC}
v_add_u32 v{vC}, s{sTmp}, v{vC}
v_and_b32 v{vB}, 15, v{V_LANE}
{FIX}v_and_b32 v{vB}, {3 if OPT['wgf'] else 15}, v{V_LANE}
v_lshl_add_u32 v{vC}, v{vC}, 6, v{vB}
s_lshl_b32 s{sTmp}, s{S_W}, {2 if OPT['wgf'] else 4}
v_add_u32 v{vC}, s{sTmp}, v{vC}
v_lshlrev_b32 v{vC}, {FSH}, v{vC}
v_add_u32 v{vFl}, {F_KV}, v{vC}
s_lshl3_add_u32 s{sTmp}, s{S_W}, s{S_HG}
s_mul_i32 s{sTmp}, s{sTmp}, {US}
s_add_u32 s{sTmp}, s{sTmp}, {F_U}
v_mul_u32_u24 v{vB}, {2*US}, v{vB}
v_add_u32 v{vB}, s{sTmp}, v{vB}
v_cndmask_b32 v{vFl}, v{vFl}, v{vB}, vcc
v_lshlrev_b32 v{vKo0}, 4, v{vA}
v_mad_u32_u24 v{vKo0}, v{vG}, s{S_KS}, v{vKo0}
v_add_u32 v{vKo1}, {2*KS}, v{vKo0}
v_lshrrev_b32 v{vA}, 2, v{vRho}
{ONES}v_mul_u32_u24 v{vA}, {QS}, v{vA}
v_lshl_add_u32 v{vA}, v{vG}, 6, v{vA}
v_and_b32 v{vB}, 3, v{V_LANE}
v_lshl_add_u32 v{vVo}, v{vB}, 4, v{vA}
v_mov_b32 v{vIdx}, 0xdddddddd
s_mul_i32 s{sTmp}, s{S_O0}, {KS}
s_lshl_b32 s{sK}, s{S_W}, 13
s_add_u32 s{sK}, s{sK}, s{sTmp}
s_add_u32 s{sK}, s{sK}, {WS_K}
s_lshl_b32 s{sV}, s{S_W}, 12
s_add_u32 s{sV}, s{sV}, s{sTmp}
s_add_u32 s{sV}, s{sV}, {WS_V}
s_lshl2_add_u32 s{sTmp2}, s{S_TILE}, s{S_W}
{FOM}s_lshl_b32 s{sTmp2}, s{sTmp2}, 9
s_add_u32 s{sO0}, s{sTmp}, s{sTmp2}
s_add_u32 s{sO0}, s{sO0}, {WS_O}
s_add_u32 s{sO1}, s{sO0}, {2*KS}
s_bitcmp1_b32 s{S_H}, 0
s_cselect_b64 s[{sOdd}:{sOdd+1}], -1, 0
; per-lane multipliers for Q: scale*log2(e), zero on the four slots that belong to the neighbour head
v_mov_b32 v{vC}, 0x3e8b97f6
v_cmp_gt_u32 vcc, 32, v{V_LANE}
s_and_b64 s[78:79], vcc, s[{sOdd}:{sOdd+1}]
s_nor_b64 s[80:81], vcc, s[{sOdd}:{sOdd+1}]
v_cndmask_b32 v{vA}, v{vC}, 0, s[78:79]
v_cndmask_b32 v{vB}, v{vC}, 0, s[80:81]
s_mov_b32 s78, 0x3f803f80
s_mov_b32 s79, s78
v_xor_b32 v{vW1}, 64, v{vW0}
v_lshlrev_b32 v{vOs}, 4, v{vRho}
v_mad_u32_u24 v{vOs}, v{vG}, s{S_KS}, v{vOs}
v_lshl_add_u32 v{vQw}, v{V_LANE}, 4, s{sLx}''')
srd(SRD_C, 28, WS_SIZE)
def o_stores(r0, r1, tag):
    e(f'''s_bitcmp1_b32 s{S_H}, 0
    s_cbranch_scc1 L_ost_odd{tag}
    buffer_store_dwordx4 {vr(r0,4)}, v{vOs}, {sr(SRD_WS)}, s{sO0} offen sc1
    s_mov_b32 exec_hi, 0
    buffer_store_dwordx4 {vr(r1,4)}, v{vOs}, {sr(SRD_WS)}, s{sO1} offen sc1
    s_not_b64 exec, exec
    buffer_store_dwordx2 {vr(r1,2)}, v{vOs}, {sr(SRD_WS)}, s{sO1} offen sc1
    s_branch L_ost_done{tag}
    L_ost_odd{tag}:
    buffer_store_dwordx4 {vr(r1,4)}, v{vOs}, {sr(SRD_WS)}, s{sO1} offen sc1
    s_mov_b32 exec_hi, 0
    buffer_store_dwordx2 {vr(r0+2,2)}, v{vOs}, {sr(SRD_WS)}, s{sO0} offen offset:8 sc1
    s_not_b64 exec, exec
    buffer_store_dwordx4 {vr(r0,4)}, v{vOs}, {sr(SRD_WS)}, s{sO0} offen sc1
    L_ost_done{tag}:
    s_mov_b64 exec, -1''')
GS = 0
AB = [l for l in SEC.pop('tmp') if not l.strip().startswith(';')]
sec('mha')
def scc_pending(i):
    return i < len(AB) and AB[i].strip().startswith(('s_cselect', 's_mov_b32 s75'))
pos = 0
for g in DM:
    n = pos + OPT['ilv']
    while scc_pending(n): n += 1
    e('\n'.join(AB[pos:n])); pos = n
    e('\n'.join(g))
e('\n'.join(AB[pos:]))
stamp(0)
def x_reads(s):
    return [f'ds_read_b128 {vr(VX + 16*s + 4*ks, 4)}, v{vXr[ks]} offset:{(s%3)*4096}' for ks in range(4)]
e('s_waitcnt vmcnt(22)')
e('\n'.join(x_reads(0)))
e('s_waitcnt vmcnt(8) lgkmcnt(0)')
arrive(1)
stamp(1)
e('\n'.join(x_chunk(3)))
e('s_waitcnt vmcnt(8)')
e('\n'.join(x_reads(1)))
lwait(1)
e(f's_add_u32 s{S_NONCE}, s{S_NONCE}, 1')
stamp(2)
def w_reads(s):
    r = []
    for ks in range(4):
        for ct in range(2):
            for hf in range(2):
                d = VWF + 32 * (s & 1) + 8 * ks + 4 * ct + 2 * hf
                r.append(f'ds_read_b64_tr_b16 {vr(d,2)}, v{(vW0, vW1)[ct]} offset:{s*8192 + ks*2048 + hf*512}')
    return r
if OPT['tskip']: e(f's_cmp_eq_u32 s{S_C}, 7\ns_cbranch_scc1 L_gemm_t')
e('\n'.join(w_reads(0)))
e(f'''s_waitcnt lgkmcnt(0)
s_cmp_lg_u32 s{S_HG}, 0
s_cbranch_scc1 L_gemm_v''')
sQb, sQc = 82, 83
NE = OPT['wq_early']
def wq_dma(st):
    return [f's_add_u32 m0, s{sLx}, {4096 + 1024*st}\ns_add_u32 s83, s82, {64*2688*st}', '', f'buffer_load_dwordx4 v{vQd}, {sr(SRD_B)}, s83 offen lds']
SPIN = []
def gemm1(vpart):
    for s in range(7):
        M = []
        for ks in range(4):
            for ct in range(2):
                wf = vr(VWF + 32 * (s & 1) + 8 * ks + 4 * ct, 4); xf = vr(VX + 16 * s + 4 * ks, 4)
                acc = vr(VACC + 16 * ct, 16)
                a, b = (xf, wf) if vpart else (wf, xf)
                M.append(f'v_mfma_f32_32x32x16_bf16 {acc}, {a}, {b}, {"0" if s == 0 and ks == 0 else acc}')
        gaps = [[] for _ in range(8)]
        tag = f'{"v" if vpart else "k"}{s}'
        pre = []
        dm = []
        def add(l): dm.extend([(l[0], l[2])] + [(None, x) for x in l[3:]])
        if s <= 2: add(x_chunk(s + 4))
        if s == 3:
            for i in range(min(NE, 4)): add(wq_dma(i))
        if s == 4:
            for i in range(4, NE): add(wq_dma(i))
        n = {0: 8, 1: 8, 2: 8, 3: 4 + min(NE, 4), 4: NE}.get(s)
        for i, (m, l) in enumerate(dm):
            if m: (pre if i == 0 else gaps[i - 1]).append(m)
            gaps[i].append(l)
        if s < 6:
            wr = w_reads(s + 1)
            for i, (p, q) in enumerate(((0, 3), (3, 6), (6, 9), (9, 12), (12, 16))): gaps[i] += wr[p:q]
            if s <= 4: gaps[OPT['xg']] += [f's_waitcnt vmcnt({n})'] + x_reads(s + 2)
            gaps[7] += [f's_waitcnt lgkmcnt({4 if s == 4 and OPT["s6"] != 4 else 0})']
        if s == OPT['s6'] and (OPT['uw'] == 6 or OPT['cw'] == 6): gaps[6] += [f'v_mov_b32 v{V_T}, 6', f'ds_write_b32 v{V_OWN}, v{V_T}']
        if s == 5:
            gaps[7] += [f'v_add_u32 v31, 16, v{V_GRP}', f'ds_read_b32 v31, v31']
        if s == 6 and NE == 7:
            gaps[OPT['qa']] += ['s_waitcnt vmcnt(0)', f'v_mov_b32 v{V_T}, 7', f'ds_write_b32 v{V_OWN}, v{V_T}']
        e('\n'.join(pre))
        if OPT['gx'] & 1 or vpart == 2: M = ['s_nop 0'] * 8
        if OPT['gx'] & 2 or vpart == 2: gaps = [[x for x in g if 'tr_b16' not in x] for g in gaps]
        for i in range(8):
            e(M[i]); e('\n'.join(gaps[i]))
        stamp(14 + s)
if OPT['tskip']:
    sec('gt'); e('L_gemm_t:'); gemm1(2); e('s_branch L_gemm_done'); sec('mha')
else: SEC['gt'] = []
gemm1(False)
e('s_branch L_gemm_done\nL_gemm_v:')
gemm1(True)
e('L_gemm_done:')
stamp(3)
e(f"""s_add_u32 s{sS1}, s{sSt}, s{sS2}
s_add_u32 s{sXb}, s{sSt}, {4*KS}
s_add_u32 s{sCw}, s{sS1}, {4*KS}
s_cmp_eq_u32 s{S_C}, 7
s_waitcnt lgkmcnt(0)
s_cbranch_scc1 L_nokv""")
PWS = 3 if OPT['pw'] else 1
e(f'v_cmp_gt_u32 vcc, {PWS}, v31\ns_cbranch_vccz L_eok\nv_add_u32 v31, 16, v{V_GRP}')
lwait(PWS, addr=31)
e('L_eok:\ns_nop 2')
for q, so in enumerate((sSt, sS1, sXb, sCw)):
    for i in range(4*q, 4*q+4):
        e(f'v_cvt_pk_bf16_f32 v{VPK + i}, v{VACC + 2*i}, v{VACC + 2*i + 1}')
    e(f'buffer_store_dwordx4 {vr(VPK+4*q,4)}, v{vSt}, {sr(SRD_WS)}, s{so} offen sc1')
e('L_nokv:')
assert OPT['wgf'] and OPT['ones'] and OPT['pf'] == 2
def kv_loads(buf, i, srdn=SRD_C):
    return [f'buffer_load_dwordx4 {vr(VK + 8*buf, 4)}, v{vKo0}, {sr(srdn)}, s{sK} offen offset:{512*i} sc1',
            f'buffer_load_dwordx4 {vr(VK + 8*buf + 4, 4)}, v{vKo1}, {sr(srdn)}, s{sK} offen offset:{512*i} sc1',
            f'buffer_load_dwordx4 {vr(VV + 8*buf, 4)}, v{vVo}, {sr(srdn)}, s{sV} offen offset:{256*i} sc1',
            f'buffer_load_dwordx4 {vr(VV + 8*buf + 4, 4)}, v{vVo}, {sr(srdn)}, s{sV} offen offset:{256*i + 128} sc1']
fill = [f'v_mov_b64 {vr(VV+2*i,2)}, s[78:79]' for i in range(12, 16)] + [f'v_subrev_u32 v{vRr}, {L_X - L_RB}, v{vQw}', 's_mov_b64 s[80:81], -1']
for s in range(3):
    fill += f"""s_add_u32 s{sTmp}, s{S_W}, {1+s}
    s_and_b32 s{sTmp}, s{sTmp}, 3
    s_sub_u32 s{sTmp}, s{sTmp}, s{S_W}
    s_mul_i32 s{sTmp}, s{sTmp}, 12288
    v_add_u32 v{vQx[s]}, s{sTmp}, v{vQw}
    v_subrev_u32 v{vRb[s]}, {L_X - L_RB - 4096*s}, v{vQx[s]}""".split('\n')
def count_in(n):
    e(f"""v_mov_b32 v{V_T}, 1
    v_mov_b32 v31, 0
    s_waitcnt vmcnt({n})
    s_mov_b64 exec, 1
    ds_add_rtn_u32 v{vSt}, v31, v{V_T} offset:32
    s_mov_b64 exec, -1""")
def count_out(n):
    e(f's_waitcnt lgkmcnt({n})\nv_readfirstlane_b32 s{sTmp2}, v{vSt}\ns_cmp_lg_u32 s{sTmp2}, 3\ns_cbranch_scc1 L_nopub')
    publish(sFl, 31)
    e('L_nopub:'); stamp(5)
NM = max(NE, OPT['wq_mid'])
for st in range(NE, NM): e('\n'.join(wq_dma(st)))
stamp(4)
if NE < 7:
    e('\n'.join(fill)); fill = []
    count_in(NM - NE)
    if NM == 7:
        e('s_waitcnt vmcnt(0)'); arrive(7); count_out(1)
    else:
        count_out(0)
        for st in range(NM, 7): e('\n'.join(wq_dma(st)))
        e('s_waitcnt vmcnt(0)'); arrive(7)
lwait(7)
stamp(6)
QB = [80, 84, 88, 92, 112, 116, 120, 124]
def q_reads(k):
    s, ks = divmod(k, 4)
    return [f'ds_read_b64_tr_b16 {vr(QB[k%8] + 2*hf, 2)}, v{vQr} offset:{ks*12288 + s*1024 + hf*256}' for hf in range(2)]
for k in range(6): e('\n'.join(q_reads(k)))
e('\n'.join(fill[:12])); fill = fill[12:]
zi = 0
PK = OPT['pubk'] if NE == 7 else -99
for k in range(28):
    extra = 1 if PK < k <= PK + 5 else 0
    e(f's_waitcnt lgkmcnt({min(10, 2*(27-k)) + extra})')
    e(f'v_mfma_f32_32x32x16_bf16 {vr(VACC,16)}, {vr(QB[k%8], 4)}, {vr(VX + 4*k, 4)}, {"0" if k == 0 else vr(VACC,16)}')
    if k + 6 < 28: e('\n'.join(q_reads(k + 6)))
    while zi < 40 and VX + 2*zi + 1 < VX + 4*k - 4 and zi < 2*k:
        e(f'v_mov_b64 {vr(VX + 2*zi, 2)}, 0'); zi += 1
    if k >= 22 or k < 2:
        e('\n'.join(fill[:4])); fill = fill[4:]
    if k == PK: count_in(0)
    if k == PK + OPT['wgf']: count_out(2*OPT['wgf'])
    if k == OPT['pollk']: e(f'buffer_load_dword v31, v{vFl}, {sr(SRD_WS)}, 0 offen sc1')
    if k == OPT['chkk']:
        e(f's_waitcnt vmcnt(0)\nv_cmp_ne_u32 vcc, s{S_NONCE}, v31\ns_mov_b64 s[80:81], vcc\ns_cbranch_vccnz L_kv_late')
        for t in range(2): e('\n'.join(kv_loads(t, t)))
        e('L_kv_late:')
assert zi == 40 and VX == VS + 48 and not fill
stamp(7)
e('s_nop 11')
for r in range(16):
    m = vA if r < 4 else (vB if r >= 12 else vC)
    e(f'v_mul_f32 v{VACC + r}, v{m}, v{VACC + r}')
for i in range(8):
    e(f'v_cvt_pk_bf16_f32 v{VQ + 24 + i}, v{VACC + 2*i}, v{VACC + 2*i + 1}')
e(f"""ds_write_b128 v{vQw}, {vr(VQ+24,4)}
ds_write_b128 v{vQw}, {vr(VQ+28,4)} offset:1024""")
arrive(8)
lwait(8)
for s in range(3):
    e(f'ds_read_b128 {vr(VQ+8*s,4)}, v{vQx[s]}\nds_read_b128 {vr(VQ+8*s+4,4)}, v{vQx[s]} offset:1024')
PF = OPT['pf']
if OPT['chkk'] < 28: e('s_cmp_eq_u64 s[80:81], 0\ns_cbranch_scc1 L_kv_done')
poll(vFl, first_issued=OPT['pollk'] < 28 and OPT['chkk'] > 27, reg=31, sleep=OPT['ksleep'])
for t in range(PF): e('\n'.join(kv_loads(t, t)))
e('L_kv_done:')
stamp(8)
OM = OPT['omode']
if OM:
    e(f'''s_lshr_b32 s{sTmp}, s{S_O0}, 3
    s_add_u32 s{sTmp2}, s{S_O0}, 3
    s_lshr_b32 s{sTmp2}, s{sTmp2}, 3
    s_sub_u32 s{sTmp2}, s{sTmp2}, s{sTmp}
    s_lshl_b32 s{sTmp2}, s{sTmp2}, 6
    s_lshl_b32 s{sTmp}, s{sTmp}, 6
    s_lshl2_add_u32 s{sSt}, s{S_TILE}, s{S_W}
    s_add_u32 s{sTmp}, s{sTmp}, s{sSt}
    s_lshl_b32 s{sTmp}, s{sTmp}, {FSH}
    s_add_u32 s{sTmp}, s{sTmp}, {F_Y}
    v_and_b32 v{vFl}, 1, v{V_LANE}
    v_mul_u32_u24 v{vFl}, s{sTmp2}, v{vFl}
    v_and_b32 v31, 2, v{V_LANE}
    v_lshl_add_u32 v{vFl}, v31, 8, v{vFl}
    v_lshl_add_u32 v{vFl}, v{vFl}, {FSH}, s{sTmp}''')
def qk(buf, slot, js):
    d = vr(VS + 16*slot, 16)
    return f'v_mfma_f32_32x32x16_bf16 {d}, {vr(VK + 8*buf + 4*js, 4)}, {vr(VQ + 8*slot + 4*js, 4)}, {"0" if js == 0 else d}'
def pv(buf, slot, js):
    return f'v_smfmac_f32_32x32x32_bf16 {vr(VO + 16*slot, 16)}, {vr(VV + 8*buf + 4*js, 4)}, {vr(VS + 16*slot + 8*js, 8)}, v{vIdx}'
def exps(s): return [f'v_exp_f32 v{VS + 16*s + r}, v{VS + 16*s + r}' for r in range(16)]
SPREAD = []
def unit(t, s):
    ex = exps(s)
    if OPT['ax'] & 16 and s in (0, 1, 2):
        pass
    nb = t if s < 3 else (t + 1) & 3
    pb = t if s > 0 else (t - 1) & 3
    if s == 3: e(f's_waitcnt vmcnt({4*PF-4})')
    e(qk(nb, (s+1) & 3, 0)); e('\n'.join(ex[0:4]))
    e(qk(nb, (s+1) & 3, 1)); e('\n'.join(ex[4:8]))
    e(pv(pb, (s-1) & 3, 0))
    if s == 1:
        kl = kv_loads((t + PF) & 3, t + PF)
        if OPT['ax'] & 1: kl = [x for x in kl if 'exec' not in x]
        if OPT['ax'] & 2: kl = [x for x in kl if 'buffer' not in x]
        if OPT['ax'] & 4: kl = [x.replace(' sc1', '') for x in kl]
        if OPT['ax'] & 8: SPREAD.extend(kl); kl = []
        e('\n'.join(kl))
        if t == 3 - PF:
            e(f's_cmp_eq_u32 s{sIt}, 3\ns_cselect_b32 s{SRD_C+2}, 0, s{SRD_C+2}')
        if t == 3:
            e(f's_add_u32 s{sK}, s{sK}, 2048\ns_add_u32 s{sV}, s{sV}, 1024\ns_add_u32 s{sIt}, s{sIt}, 1\ns_cmp_lg_u32 s{sIt}, 4')
    e('\n'.join(ex[8:12]))
    e(pv(pb, (s-1) & 3, 1)); e('\n'.join(ex[12:16]))
e(f's_mov_b32 s{sIt}, 0\ns_waitcnt vmcnt({4*PF - 4}) lgkmcnt(0)')
stamp(9)
e(qk(0, 0, 0)); e(qk(0, 0, 1))
e(f"s_setprio {OPT['pa']}\ns_nop 8\ns_branch L_att_in" if OPT['prio'] else 's_nop 9\ns_branch L_att_in')
e('L_att:')
unit(3, 2); unit(3, 3)
e('L_att_in:')
for t in range(4):
    for s in range(4):
        if (t, s) < (3, 2): unit(t, s)
e('s_cbranch_scc1 L_att')
if OPT['prio']: e(f"s_setprio {OPT['pm']}")
if OM: e(f'buffer_load_dword v31, v{vFl}, {sr(SRD_WS)}, 0 offen sc1')
def rbw(s): return [f'ds_write_b128 v{vRb[s]}, {vr(VO + 16*s + 4*i, 4)} offset:{1024*i}' for i in range(4)]
ex = exps(2); w0 = rbw(0)
e(qk(3, 3, 0)); e('\n'.join(ex[0:4])); e(qk(3, 3, 1)); e('\n'.join(ex[4:7] + [w0[0]]))
e(pv(3, 1, 0)); e('\n'.join(ex[7:10] + [w0[1]])); e(pv(3, 1, 1)); e('\n'.join(ex[10:13] + [w0[2]] + ex[13:16] + [w0[3]]))
ex = exps(3); w1 = rbw(1); w2 = rbw(2)
e(pv(3, 2, 0)); e('\n'.join(ex[0:3])); e(pv(3, 2, 1))
e('\n'.join([w1[0]] + ex[3:5] + [w1[1]] + ex[5:7] + [w1[2]] + ex[7:9] + [w1[3]] + ex[9:10]))
e(pv(3, 3, 0))
e('\n'.join([w2[0]] + ex[10:12] + [w2[1]] + ex[12:14] + [w2[2]] + ex[14:16] + [w2[3]]))
arrive(9)
e(pv(3, 3, 1))
stamp(10)
lwait(9)
for i in range(12): e(f'ds_read_b128 {vr(VS + 4*i, 4)}, v{vRr} offset:{1024*i}')
OA = VO + 48
for s in range(3):
    e(f's_waitcnt lgkmcnt({8 - 4*s})')
    for i in range(8): e(f'v_pk_add_f32 {vr(OA+2*i,2)}, {vr(OA+2*i,2)}, {vr(VS+16*s+2*i,2)}')
e(f's_mov_b32 s{sIt}, {1 if OPT["force_fb"] else 0}')
e(f'''L_norm:
v_cndmask_b32 v{vA}, v{OA+12}, v{OA}, s[{sOdd}:{sOdd+1}]
v_max3_f32 v{vC}, abs(v{OA}), abs(v{OA+1}), abs(v{OA+2})
v_mov_b32 v{vB}, v{vA}
v_max3_f32 v{vC}, abs(v{OA+3}), abs(v{OA+4}), v{vC}
v_max3_f32 v{vC}, abs(v{OA+5}), abs(v{OA+6}), v{vC}
v_permlane32_swap_b32 v{vA}, v{vB}
v_max3_f32 v{vC}, abs(v{OA+7}), abs(v{OA+8}), v{vC}
v_cndmask_b32 v{vB}, v{vB}, v{vA}, s[{sOdd}:{sOdd+1}]
v_max3_f32 v{vC}, abs(v{OA+9}), abs(v{OA+10}), v{vC}
v_rcp_f32 v{vA}, v{vB}
v_max3_f32 v{vC}, abs(v{OA+11}), abs(v{OA+12}), v{vC}
v_max3_f32 v{vC}, abs(v{OA+13}), abs(v{OA+14}), v{vC}
v_max_f32 v{vC}, abs(v{OA+15}), v{vC}
v_cmp_nle_f32 vcc, 0x30800000, v{vB}
s_mov_b64 s[78:79], vcc
v_cmp_nge_f32 vcc, 0x4e800000, v{vB}
s_or_b64 s[78:79], s[78:79], vcc
v_cmp_ngt_f32 vcc, 0x7f000000, v{vC}
s_or_b64 vcc, s[78:79], vcc''')
if OPT['force_fb']:
    e(f's_cmp_eq_u32 s{sIt}, 1\ns_cbranch_scc1 L_fb')
e('s_cbranch_vccnz L_fb0\nL_norm2:')
for i in range(8): e(f'v_pk_mul_f32 {vr(OA+2*i,2)}, {vr(OA+2*i,2)}, {vr(vA,2)} op_sel_hi:[1,0]')
for i in range(8): e(f'v_cvt_pk_bf16_f32 v{VS+i}, v{OA+2*i}, v{OA+2*i+1}')
if OM: poll(vFl, first_issued=2, reg=31)
o_stores(VS, VS + 4, '')
stamp(11)
if OM == 4: publish(sFo, vA)
if OPT['obar'] == 1: e('s_barrier')
if OPT['obar'] >= 3: e(f"s_waitcnt vmcnt({5 - OPT['obar'] + (OM == 4)})\ns_barrier")
if OM == 0:
    e('s_waitcnt vmcnt(0)'); publish(sFo, vA)
if OPT['obar'] == 2: e('s_barrier')
stamp(12)
prof_out()
e('s_endpgm')

for tag, st in SPIN:
    e(f'L_ws_{tag}:'); lwait(st); e(f's_branch L_wb_{tag}')
sec('fb')
e(f'''L_fb0:
s_cmp_eq_u32 s{sIt}, 2
s_cbranch_scc1 L_norm2
L_fb:
s_waitcnt vmcnt(0)
s_mul_i32 s{sTmp}, s{S_O0}, {KS}
s_add_u32 s{sK}, s{sTmp}, {WS_K}
s_add_u32 s{sV}, s{sTmp}, {WS_V}
v_mov_b32 v{vC}, 0xff800000
s_mov_b32 s{sIt}, 0
L_fb1:''')
e('\n'.join(kv_loads(0, 0, SRD_WS)[:2]))
e('s_waitcnt vmcnt(0)')
e(qk(0, 3, 0)); e(qk(0, 3, 1)); e('s_nop 11')
for i in range(8): e(f'v_max3_f32 v{vC}, v{VS+48+2*i}, v{VS+49+2*i}, v{vC}')
e(f'''s_add_u32 s{sK}, s{sK}, 512
s_add_u32 s{sIt}, s{sIt}, 1
s_cmp_lg_u32 s{sIt}, 64
s_cbranch_scc1 L_fb1
v_mov_b32 v{vA}, v{vC}
s_sub_u32 s{sK}, s{sK}, 0x8000
s_mov_b32 s{sIt}, 0
v_permlane32_swap_b32 v{vA}, v{vC}
v_max_f32 v{vC}, v{vA}, v{vC}''')
for i in range(8): e(f'v_mov_b64 {vr(OA+2*i,2)}, 0')
e('L_fb2:')
e('\n'.join(kv_loads(0, 0, SRD_WS)))
e('s_waitcnt vmcnt(0)')
e(qk(0, 3, 0)); e(qk(0, 3, 1)); e('s_nop 11')
for i in range(16): e(f'v_sub_f32 v{VS+48+i}, v{VS+48+i}, v{vC}')
for i in range(16): e(f'v_exp_f32 v{VS+48+i}, v{VS+48+i}')
e('s_nop 1')
e(pv(0, 3, 0)); e(pv(0, 3, 1))
e(f'''s_add_u32 s{sK}, s{sK}, 512
s_add_u32 s{sV}, s{sV}, 256
s_add_u32 s{sIt}, s{sIt}, 1
s_cmp_lg_u32 s{sIt}, 64
s_cbranch_scc1 L_fb2
s_mov_b32 s{sIt}, 2
s_nop 11
s_branch L_norm''')

sD0, sD, sHw, sDs, sTab, sA, sB, sLd, sSk, sIt2, sFlU, sInv, sUns, sSel, sUl, sOl, sCh0 = range(60, 77)
sUs, sOut, sHm = 78, 80, 82
sE2, sP, sE3, sKd = 84, 85, 86, 87
OUTM = 'sc1' if OPT['outsc'] & 1 else ''
OUTM2 = 'sc1' if OPT['outsc'] & 2 else ''
a0, a1, a2, a3 = 5, 6, 7, 9
vPar = 10
vKc = 18
vRa, vRb_, vKd, vKd1, vKa, vKa0, vFu, vE1, vE1b, vFr, vKxo, vKxp, vPair, vRz, vBk, vA0, vA1, vKb, vSB, vSB0 = range(20, 40)
vSel = 180
vAc = 40
vOne, vScl, vAdd, vC0 = range(56, 60)
vOp = 64
vY = 128
vXt = 144
vAn = 166
vX1 = 172
T0, T1 = 160, 176
vZ = 192
U = 204
vZer = 220
vUa, vCd, vG_, vZp, vKp, vF_, vL16, vXo, vXp, vTr, vYl, vYs, vFy = range(224, 237)
vWoD = 238
vWoR = 240
vOl, vFo, vBw, vBr, vOut = range(242, 247)
def hi():
    if OPT['prio']: e('s_setprio 3')
KG = [True]
def lo():
    if OPT['prio']: e(f"s_setprio {OPT['kgp'] if KG[0] else OPT['ps']}")
ROLE[0] = 1
sec('ssm0')
e(f"""s_cmp_{'eq' if OPT['only'] != 2 else 'le'}_u32 s{S_C}, 7
s_cbranch_scc1 L_ssm_idle
s_lshr_b32 s{sDs}, s{S_W}, 1
s_lshl_b32 s{sD0}, s{S_C}, 6
s_lshl1_add_u32 s{sD0}, s{S_J}, s{sD0}
s_add_u32 s{sD}, s{sD0}, s{sDs}
s_mul_i32 s{sTab}, s{S_W}, {TABSZ}
s_add_u32 s{sTab}, s{sTab}, {L_TAB}
s_lshl1_add_u32 s{sA}, s{sD0}, s{S_W}
s_lshl_b32 s{sA}, s{sA}, 8
v_lshl_add_u32 v{a0}, v{V_LANE}, 2, s{sA}
s_mov_b32 m0, s{sTab}
s_lshl_b32 s{sB}, s{sD0}, 1
s_waitcnt lgkmcnt(0)
s_load_dword s{sLd}, s[14:15], s{sB}
s_load_dword s{sSk}, s[16:17], s{sB}
global_load_dword v{vPar+0}, v{a0}, s[6:7]
global_load_dword v{vPar+1}, v{a0}, s[8:9]
global_load_dword v{vPar+2}, v{a0}, s[10:11]
global_load_dword v{vPar+3}, v{a0}, s[12:13]
global_load_dword v{vPar+4}, v{V_T}, s[28:29]""")
if OPT['tlb'] != 2: e('s_barrier')
if OPT['tlb']:
    e(f'''v_and_b32 v{a0}, 7, v{V_LANE}
    v_min_u32 v{a0}, 5, v{a0}
    v_lshlrev_b32 v{a0}, 21, v{a0}
    v_add_u32 v{a0}, 0xf8000, v{a0}
    v_mov_b32 v{a1}, 0
    global_load_dword v8, v{a0}, s[28:29]
    global_load_dword v8, v{a1}, s[22:23]''')
if OPT['tlb'] == 2: e('s_barrier')
e('s_branch L_ssm')
sec('ssm')
e('L_ssm:')
if OPT['abl'] == 1:
    arrive(1); e('s_waitcnt vmcnt(0) lgkmcnt(0)\ns_endpgm')
lo()
srd(SRD_WS, 28, WS_SIZE)
e(f"""s_and_b32 s{sHw}, s{S_W}, 1
v_add_u32 v{V_GRP}, 16, v{V_GRP}
v_and_b32 v{a0}, 15, v{V_LANE}
v_lshrrev_b32 v{a1}, 4, v{V_LANE}
v_lshl_add_u32 v{vRb_}, v{a1}, 4, s{sTab}
v_mul_u32_u24 v{a2}, {TROW}, v{a0}
v_add_u32 v{vRa}, v{a2}, v{vRb_}
v_lshlrev_b32 v{vL16}, 4, v{V_LANE}
v_mov_b32 v{vOne}, 0x3c00
ds_write_addtid_b32 v{vOne}""")
for i in range(8): e(f'v_mov_b64 {vr(vAc+2*i,2)}, 0')
mid = f"""v_and_b32 v{a0}, 7, v{V_LANE}
s_and_b32 s{sB}, s2, {OPT['ur'] - 1}
s_lshl2_add_u32 s{sB}, s{sB}, s{S_W}
s_mul_i32 s{sB}, s{sB}, {8*US}
s_add_u32 s{sB}, s{sB}, {F_U}
v_mul_u32_u24 v{vFu}, {US}, v{a0}
v_add_u32 v{vFu}, s{sB}, v{vFu}
s_mul_i32 s{sP}, s{sDs}, {P_SZ}
s_add_u32 s{sP}, s{sP}, {L_TAB}
s_add_u32 s{sKd}, s{sP}, {P_KD}
s_lshl_b32 s{sB}, s{sHw}, 8
s_add_u32 s{sInv}, s{sB}, s{sKd}
s_add_u32 s{sA}, s{sInv}, {1088 + 128}
v_lshl_add_u32 v{vRz}, v{a0}, 4, s{sA}
v_mov_b32 v{vKb}, s{sKd}
v_and_b32 v{a0}, 15, v{V_LANE}
v_lshrrev_b32 v{a1}, 4, v{V_LANE}
s_lshl_b32 s{sA}, s{sHw}, 4
v_add_u32 v{a0}, s{sA}, v{a0}
v_and_b32 v{a3}, 1, v{V_LANE}
v_mul_u32_u24 v{a2}, 255, v{a3}
v_sub_u32 v{a2}, v{a2}, v{a0}
s_add_u32 s{sA}, s{sKd}, {1088 + 32}
v_add_u32 v{vKa}, s{sA}, v{a2}
v_add_u32 v{vKa0}, 96, v{vKa}
s_lshl3_add_u32 s{sA}, s{sDs}, 16
v_lshl_add_u32 v{vPair}, v{a3}, 2, s{sA}
s_mul_i32 s{sA}, s{sHw}, {1088 + 112 - 1024}
s_add_u32 s{sA}, s{sA}, s{sKd}
s_add_u32 s{sA}, s{sA}, 1024
v_writelane_b32 v{vKa0}, s{sA}, 0
s_mul_i32 s{sA}, s{sHw}, 56
s_sub_u32 s{sA}, s{sKd}, s{sA}
s_add_u32 s{sA}, s{sA}, 1088
v_writelane_b32 v{vKa0}, s{sA}, 16
v_max_u32 v{a2}, 1, v{a1}
v_sub_u32 v{a2}, 5, v{a2}
v_lshlrev_b32 v{a0}, v{a2}, v{a0}
v_lshlrev_b32 v{a2}, 3, v{a1}
s_mov_b32 s{sA}, 0x60400100
v_bfe_u32 v{a1}, s{sA}, v{a2}, 8
v_lshl_add_u32 v{a0}, v{a1}, 3, v{a0}
v_add_u32 v{vKd}, s{sKd}, v{a0}
s_mov_b32 s{sA}, 0x80040404
v_bfe_u32 v{a1}, s{sA}, v{a2}, 8
v_add_u32 v{vKd1}, v{a1}, v{vKd}
v_lshrrev_b32 v{a1}, 1, v{V_LANE}
v_lshlrev_b32 v{vUa}, 6, v{a1}
v_lshl_add_u32 v{vUa}, v{a3}, 4, v{vUa}
s_lshr_b32 s{sA}, s{sD0}, 2
s_mul_i32 s{sA}, s{sA}, {QS}
s_and_b32 s{sB}, s{sD0}, 3
s_lshl4_add_u32 s{sA}, s{sB}, s{sA}
s_lshl_b32 s{sB}, s{S_W}, 12
s_add_u32 s{sA}, s{sA}, s{sB}
s_add_u32 s{sUl}, s{sA}, {WS_U}
v_and_b32 v{a1}, 3, v{a1}
v_lshl_add_u32 v{a1}, v{a3}, 2, v{a1}
v_mul_u32_u24 v{a1}, {PS}, v{a1}
v_lshrrev_b32 v{a2}, 3, v{V_LANE}
v_lshl_add_u32 v{a1}, v{a2}, 4, v{a1}
s_lshl_b32 s{sA}, s{S_W}, 8
s_add_u32 s{sA}, s{sA}, {L_KP + 512}
v_add_u32 v{vKp}, s{sA}, v{a1}
; byte selectors that expand the distinct taps to the lags (lag l uses the tap at bf16(l), as in the reference)
v_lshrrev_b32 v{a1}, 5, v{V_LANE}
s_lshl_b32 s{sA}, s{sHw}, 1
v_max_u32 v{a0}, s{sA}, v{a1}
v_min_u32 v{a2}, 1, v{a0}
v_mul_u32_u24 v{a2}, 0x0202, v{a2}
v_lshlrev_b32 v{a2}, 16, v{a2}
v_sub_u32 v{vSel}, 0x03020100, v{a2}
v_mul_u32_u24 v{a2}, 0x0202, v{a0}
v_lshl_or_b32 v{a2}, v{a2}, 16, v{a2}
v_sub_u32 v{vSel+1}, 0x07060504, v{a2}
s_mul_i32 s{sA}, s{sHw}, 0x02020202
v_add_u32 v{vSel+2}, s{sA}, v{vSel}
s_mul_i32 s{sA}, s{sHw}, 0x02020404
v_add_u32 v{vSel+3}, s{sA}, v{vSel+1}
v_lshrrev_b32 v{a2}, v{a0}, v{vL16}
s_movk_i32 s{sA}, 256
v_lshl_add_u32 v{a2}, s{sA}, v{a0}, v{a2}
s_sub_u32 s{sA}, s{sKd}, 256
v_add_u32 v{vE1}, s{sA}, v{a2}
v_lshlrev_b32 v{a2}, 2, v{a0}
v_sub_u32 v{vE1b}, v{vE1}, v{a2}
s_mov_b32 s{sA}, 0x0c0c0c0c
s_cmp_lg_u32 s{sHw}, 0
s_cselect_b32 s{sE2}, 0x01000100, s{sA}
s_cselect_b32 s{sE3}, 0x05040302, s{sA}
v_mov_b32 v{vSel+4}, s{sA}
v_mov_b32 v{vSel+5}, s{sA}
v_mov_b32 v{vSel+6}, s{sA}
v_mov_b32 v{vSel+7}, s{sA}
s_mov_b32 s{sA}, 0x05040504
s_mov_b64 exec, 15
v_mov_b32 v{vSel+4}, s{sA}
v_mov_b32 v{vSel+5}, s{sA}
v_mov_b32 v{vSel+6}, s{sA}
s_mov_b64 exec, -1
v_writelane_b32 v{vSel+7}, s{sA}, 3
s_mov_b32 s{sA}, 0x05040302
v_writelane_b32 v{vSel+4}, s{sA}, 3
s_mov_b32 s{sA}, 0x0c0c0504
v_writelane_b32 v{vSel+6}, s{sA}, 0
v_writelane_b32 v{vSel+7}, s{sA}, 2
s_mul_i32 s{sA}, s{S_W}, {2*PS}
s_add_u32 s{sA}, s{sA}, {L_KP}
v_mul_u32_u24 v{a2}, {PS - 512}, v{a1}
v_add3_u32 v{vG_}, v{a2}, v{vL16}, s{sA}
v_mov_b64 {vr(vZer,2)}, 0
v_mov_b64 {vr(vZer+2,2)}, 0
ds_write_b128 v{vG_}, {vr(vZer,4)}
s_lshl_b32 s{sA}, s{sHw}, 10
s_add_u32 s{sB}, s{sP}, {P_UC}
s_add_u32 s{sA}, s{sA}, s{sB}
s_add_u32 s{sA}, s{sA}, 64
v_add_u32 v{vCd}, s{sA}, v{vL16}
v_and_b32 v{a3}, 3, v{V_LANE}
v_and_b32 v{a0}, 0x1c, v{V_LANE}
v_lshlrev_b32 v{a2}, 2, v{a0}
v_and_b32 v{vZp}, 0x30, v{a2}
s_mov_b32 exec_hi, 0
v_add_u32 v{vZp}, 2112, v{a2}
s_mov_b64 exec, -1
v_mul_u32_u24 v{a2}, {UC_S}, v{a3}
v_add3_u32 v{vZp}, v{vZp}, v{a2}, s{sB}
v_lshlrev_b32 v{a0}, 1, v{a0}
v_sub_u32 v{a0}, v{a0}, v{a2}
v_lshlrev_b32 v{a1}, 4, v{a1}
v_sub_u32 v{a0}, v{a0}, v{a1}
s_lshl_b32 s{sA}, s{sHw}, 5
s_sub_u32 s{sB}, s{sB}, s{sA}
s_add_u32 s{sB}, s{sB}, {56 + 3*UC_S}
v_add_u32 v{vF_}, s{sB}, v{a0}
v_add_u32 v{vG_}, {512 - 80}, v{vG_}
v_add_u32 v{vKxo}, s{sTab}, v{vL16}
s_xor_b32 s{sA}, s{S_W}, 1
s_mul_i32 s{sA}, s{sA}, {TABSZ}
s_add_u32 s{sA}, s{sA}, {L_TAB}
v_add_u32 v{vKxp}, s{sA}, v{vL16}
v_and_b32 v{a0}, 31, v{V_LANE}
v_lshlrev_b32 v{a2}, 2, v{a0}
v_sub_u32 v{a2}, v{a1}, v{a2}
s_add_u32 s{sA}, s{sInv}, {1088 + 124}
v_add_u32 v{vBk}, s{sA}, v{a2}
"""
def prewrite():
    e(f'''s_sub_u32 s{sA}, 3, s{S_HG}
    v_lshrrev_b32 v{a0}, s{sA}, v{V_LANE}
    v_lshlrev_b32 v{a1}, s{sA}, v{a0}
    v_sub_u32 v{a1}, v{V_LANE}, v{a1}
    s_lshr_b32 s{sA}, s{S_KS}, s{S_HG}
    v_mul_u32_u24 v{a0}, s{sA}, v{a0}
    v_lshl_add_u32 v{a0}, v{a1}, 6, v{a0}
    s_lshl2_add_u32 s{sA}, s{S_TILE}, s{S_W}
    s_lshl_b32 s{sA}, s{sA}, 9
    s_lshr_b32 s{sA}, s{sA}, s{S_HG}
    s_mul_i32 s{sB}, s{S_HG}, {WS_V - WS_K}
    s_add_u32 s{sA}, s{sA}, s{sB}
    s_mul_i32 s{sB}, s{S_C}, {8*KS}
    s_add_u32 s{sA}, s{sA}, s{sB}
    s_add_u32 s{sA}, s{sA}, {WS_K}''')
    hi(); e(f'buffer_store_dword v{a0}, v{a0}, {sr(SRD_WS)}, s{sA} offen sc1'); lo()
if OPT['pw'] == 1: prewrite()
e(mid)
if OPT['pw'] == 2: prewrite()
stamp(22)
e(f"""s_waitcnt lgkmcnt(0)
s_lshl_b32 s{sA}, s{sDs}, 4
s_lshr_b32 s{sLd}, s{sLd}, s{sA}
s_lshl_b32 s{sLd}, s{sLd}, 16
s_lshr_b32 s{sSk}, s{sSk}, s{sA}
s_lshl_b32 s{sSk}, s{sSk}, 16
v_mov_b32 v{a0}, s{sLd}
v_mul_f32 v{a0}, 0x3fb8aa3b, v{a0}
v_exp_f32 v{a0}, v{a0}
s_cmp_eq_u32 s{sHw}, 0
s_cselect_b32 s{sSk}, s{sSk}, 0
v_cvt_pk_bf16_f32 v{a0}, v{a0}, v{a0}
v_and_b32 v{vScl}, 0xffff0000, v{a0}
v_mul_f32 v{vKc}, 0xbfb8aa3b, v{vScl}
v_mul_f32 v{vKc+1}, 0.15915494, v{vScl}
v_mov_b32 v{vAdd}, 0
v_add_f32 v{vScl}, v{vScl}, v{vScl}
v_writelane_b32 v{vAdd}, s{sSk}, 0
s_mov_b32 s{sIt2}, 0
s_mov_b32 s{sSel}, 0x01000c0c""")
stamp(0)
e(f"""s_waitcnt vmcnt({(3 if OPT['tlb'] else 1) + (OPT['pw'] in (1, 2))})
v_and_b32 v{a0}, 0x7f807f80, v{vPar+2}
v_and_b32 v{a1}, 0x7f807f80, v{vPar+3}
v_pk_max_u16 v{a0}, v{a0}, v{a1}
v_lshlrev_b32 v{a1}, 16, v{a0}
v_max_u32 v{a0}, v{a0}, v{a1}""")
for q, n in enumerate((1, 2, 4, 8)):
    e(f's_nop 1\nv_max_u32_dpp v{a0}, v{a0}, v{a0} row_ror:{n} row_mask:0xf bank_mask:0xf')
e(f"""s_nop 0
v_readlane_b32 s{sA}, v{a0}, 0
v_readlane_b32 s{sB}, v{a0}, 16
v_readlane_b32 s{sInv}, v{a0}, 32
v_readlane_b32 s{sUns}, v{a0}, 48
s_max_u32 s{sA}, s{sA}, s{sB}
s_max_u32 s{sUns}, s{sUns}, s{sInv}
s_max_u32 s{sUns}, s{sUns}, s{sA}
s_and_b32 s{sUns}, s{sUns}, 0x7f800000
s_min_u32 s{sUns}, s{sUns}, 0x7e800000
s_sub_u32 s{sInv}, 0x7f000000, s{sUns}
v_mul_f32 v{vScl}, s{sUns}, v{vScl}
v_mul_f32 v{vSB}, 0x43000000, v{vScl}
v_mov_b32 v{vSB0}, v{vSB}
s_mov_b64 exec, 1
v_mov_b32 v{vSB0}, v{vScl}
s_mov_b64 exec, -1""")
stamp(1)
if OPT['abl'] == 2: e('s_endpgm')
def cm(jobs, conj):
    ng = 'neg_hi:[1,0,0]' if conj else 'neg_lo:[1,0,0]'
    return [f'v_pk_mul_f16 v{d}, v{x}, v{w} op_sel_hi:[1,0]' for d, x, w in jobs] + \
           [f'v_pk_fma_f16 v{d}, v{x}, v{w}, v{d} op_sel:[1,1,0] op_sel_hi:[0,1,1] {ng}' for d, x, w in jobs]
def wr(reg): return f'ds_write_addtid_b32 v{reg} offset:{TROW*(reg - vY)}'
assert vXt == vY + 16
zA, zB, tA, tB, pA, pB = vZ, vZ+2, vZ+4, vZ+6, vZ+8, vZ+10
X = vXt; Y = vY
an = {1: vAn, 2: vAn+1, 4: vAn+2, 8: Y+1, 16: Y+2, 32: Y+4, 64: Y+8, 128: X+21, 256: vAn+3, 512: vAn+4, 1024: vAn+5}
e('L_kg:')
stamp(14)
seq = f"""v_perm_b32 v{pA}, v{vPar}, v{vPar}, s{sSel}
v_mul_f32 v{pA}, 0x3fb8aa3b, v{pA}
v_exp_f32 v{pA}, v{pA}
v_perm_b32 v{pA+1}, v{vPar+1}, v{vPar+1}, s{sSel}
v_perm_b32 v{tA}, v{vPar+2}, v{vPar+2}, s{sSel}
v_perm_b32 v{tA+1}, v{vPar+3}, v{vPar+3}, s{sSel}
v_cvt_pk_bf16_f32 v{pA}, v{pA}, v{pA}
v_mul_f32 v{tA}, s{sInv}, v{tA}
v_and_b32 v{pA}, 0xffff0000, v{pA}
v_mul_f32 v{tA+1}, s{sInv}, v{tA+1}
v_pk_mul_f32 {vr(pA,2)}, {vr(pA,2)}, {vr(vKc,2)}
v_cvt_pk_f16_f32 v{X}, v{tA}, -v{tA+1}
v_mul_f32 v{pB}, 0x42800000, v{pA}
v_mul_f32 v{pB+1}, 0x42800000, v{pA+1}
v_exp_f32 v{pA}, v{pA}
v_fract_f32 v{pA+1}, v{pA+1}
v_exp_f32 v{pB}, v{pB}
v_fract_f32 v{pB+1}, v{pB+1}
v_cos_f32 v{zA}, v{pA+1}
v_sin_f32 v{zA+1}, v{pA+1}
v_cos_f32 v{zB}, v{pB+1}
v_sin_f32 v{zB+1}, v{pB+1}
v_pk_mul_f32 {vr(zA,2)}, {vr(zA,2)}, {vr(pA,2)} op_sel_hi:[1,0]
v_pk_mul_f32 {vr(zB,2)}, {vr(zB,2)}, {vr(pB,2)} op_sel_hi:[1,0]""".split('\n')
for st in range(6):
    chains = [(zA, tA, an[1 << st], st < 5)] + ([(zB, tB, an[64 << st], st < 4)] if st < 5 else [])
    for z, t, d, sq in chains:
        if sq: seq.append(f'v_pk_mul_f32 {vr(t,2)}, {vr(z,2)}, {vr(z,2)} op_sel_hi:[0,1]')
    for z, t, d, sq in chains: seq.append(f'v_cvt_pk_f16_f32 v{d}, v{z}, v{z+1}')
    for z, t, d, sq in chains:
        if sq: seq.append(f'v_pk_fma_f32 {vr(z,2)}, {vr(z,2)}, {vr(z,2)}, {vr(t,2)} op_sel:[1,1,0] op_sel_hi:[0,1,1] neg_lo:[1,0,0]')
seq += cm([(X+1, X, an[1]), (X+2, X, an[2]), (X+4, X, an[4]), (X+8, X, an[256]), (X+12, X, an[512]), (X+16, X, an[1024])], True)
seq += cm([(Y+3, Y+1, Y+2), (Y+12, Y+4, Y+8), (Y+5, Y+4, Y+1), (Y+6, Y+4, Y+2), (Y+9, Y+8, Y+1), (Y+10, Y+8, Y+2)], False)
seq += cm([(X+3, X+1, an[2]), (X+5, X+1, an[4]), (X+6, X+2, an[4]), (X+9, X+2, an[256]), (X+10, X+4, an[256]), (X+13, X+4, an[512]),
           (X+14, X+8, an[512]), (X+17, X+8, an[1024]), (X+18, X+12, an[1024]), (X+20, X+16, an[1024])], True)
seq += cm([(Y+7, Y+4, Y+3), (Y+11, Y+8, Y+3), (Y+13, Y+12, Y+1), (Y+14, Y+12, Y+2), (Y+15, Y+12, Y+3)], False)
seq += cm([(X+7, X+3, an[4]), (X+11, X+6, an[256]), (X+15, X+10, an[512]), (X+19, X+14, an[1024])], True)
e('\n'.join(seq))
stamp(15)
if OPT['kgw']:
    e(f'v_subrev_u32 v{a0}, 16, v{V_GRP}'); lwait(OPT['kgw'], addr=a0)
hi()
if OPT['abl'] != 4: e('\n'.join(wr(r) for r in range(Y + 1, X + 22)))
for k in range(4):
    o = vOp + 16*k
    e(f"""ds_read_b128 {vr(o,4)}, v{vRa} offset:{64*k}
    ds_read_b128 {vr(o+4,4)}, v{vRb_} offset:{37*TROW + 64*k}
    ds_read_b128 {vr(o+8,4)}, v{vRa} offset:{16*TROW + 64*k}
    ds_read_b128 {vr(o+12,4)}, v{vRa} offset:{32*TROW + 64*k}""")
if not OPT['uw']: e(f's_cmp_eq_u32 s{sIt2}, 0\ns_cbranch_scc1 L_kg_n\nbuffer_load_dword v{vFr}, v{vFu}, {sr(SRD_WS)}, 0 offen sc1\nL_kg_n:')
stamp(16)
def mf(c, a, b): return f'v_mfma_f32_16x16x32_f16 {vr(c,4)}, {vr(a,4)}, {vr(b,4)}, {vr(c,4)}'
late_m = []
for k in range(4):
    o = vOp + 16*k; y1 = vX1 + 4*(k & 1)
    p = cm([(y1+r, o+r, o+4+r) for r in range(4)], False)
    e(f's_waitcnt lgkmcnt({12 - 4*k})')
    e('\n'.join([mf(vAc, o+8, o)] + p[0:2] + late_m[:1] + p[2:4] + [mf(vAc+4, o+12, o)] + p[4:6] + late_m[1:] + p[6:8]))
    late_m = [mf(vAc+8, o+8, y1), mf(vAc+12, o+12, y1)]
e(f"""s_add_u32 s{sSel}, s{sSel}, 0x02020000
s_add_u32 s{sIt2}, s{sIt2}, 1
s_cmp_lg_u32 s{sIt2}, 2""")
e('\n'.join(late_m))
lo()
if OPT['pw'] == 3:
    e('s_cbranch_scc0 L_kg_e'); prewrite(); e('s_branch L_kg\nL_kg_e:')
else: e('s_cbranch_scc1 L_kg')
stamp(17)
if OPT['abl'] in (4, 8): e('s_endpgm')
def scl(i): return vSB0 if i == 4 else (vSB if i & 4 else vScl)
for i in range(8): e(f'v_mul_f32 v{vAc+i}, v{scl(i)}, v{vAc+i}')
e(f's_cmp_eq_u32 s{sHw}, 0')
for i in range(8, 16): e(f'v_mul_f32 v{vAc+i}, v{scl(i)}, v{vAc+i}')
e('s_cbranch_scc1 L_kx')
for i in range(8): e(f'v_swap_b32 v{vAc+i}, v{vAc+8+i}')
e(f"""L_kx:
ds_write_b128 v{vKxo}, {vr(vAc+8,4)}
s_mov_b32 exec_hi, 0
ds_write_b128 v{vKxo}, {vr(vAc+12,4)} offset:1024
s_mov_b64 exec, -1
s_waitcnt vmcnt({1 if OPT['pw'] else 0})
v_readfirstlane_b32 s{S_NONCE}, v{vPar+4}""")
arrive(2)
e(f's_add_u32 s{S_NONCE}, s{S_NONCE}, 1')
e(f'v_add_f32 v{vAc}, v{vAdd}, v{vAc}')
stamp(18)
def bprio():
    if OPT['prio']: e(f"s_setprio {OPT['bp']}")
def u_look():
    hi(); e(f'buffer_load_dword v{vFr}, v{vFu}, {sr(SRD_WS)}, 0 offen sc1'); bprio()
def u_fetch():
    hi()
    stamp(20)
    poll(vFu, first_issued=True, reg=vFr, sleep=OPT['usleep'])
    stamp(21)
    for k in range(2):
        e(f'buffer_load_dwordx4 {vr(U+4*k,4)}, v{vUa}, {sr(SRD_WS)}, s{sUl} offen offset:{2048*k} sc1')
    bprio()
if OPT['uw'] == -2: u_look()
else: bprio()
stamp(19)
lwait(2, addr=vPair)
e(f"""ds_read_b128 {vr(vAc+8,4)}, v{vKxp}
ds_read_b128 {vr(vAc+12,4)}, v{vKxp} offset:1024
ds_write_b128 v{vRz}, {vr(vZer,4)}
s_mov_b32 s{sIt2}, 4
s_waitcnt lgkmcnt(1)""")
for i in range(4): e(f'v_pk_add_f32 {vr(vAc+2*i,2)}, {vr(vAc+2*i,2)}, {vr(vAc+8+2*i,2)}')
for i in range(4): e(f'v_cvt_pk_bf16_f32 v{vAc+8+i}, v{vAc+2*i}, v{vAc+2*i+1}')
e(f"""ds_write_b32 v{vKd}, v{vAc+8}
ds_write_b32 v{vKd1}, v{vAc+9}
s_mov_b64 exec, 0x1ffff
ds_write_b16 v{vKa0}, v{vAc+10}
s_mov_b64 exec, 0xffff
ds_write_b16_d16_hi v{vKa}, v{vAc+10} offset:64
ds_write_b16 v{vKa}, v{vAc+11} offset:32
ds_write_b16_d16_hi v{vKa}, v{vAc+11}
s_mov_b64 exec, -1""")
if OPT['pw']: e('s_waitcnt vmcnt(0)')
arrive(3)
if OPT['uw'] == -1: u_look()
if OPT['uw'] == -2: u_fetch()
lwait(3, addr=vPair)
stamp(2)
E = 64; BF = 40
e(f"""ds_read2_b32 {vr(E,2)}, v{vE1} offset1:1
ds_read2_b32 {vr(E+2,2)}, v{vE1b} offset0:2 offset1:3
ds_read2_b32 {vr(E+4,2)}, v{vKb} offset0:191 offset1:192
ds_read_b32 v{E+6}, v{vKb} offset:1020
ds_read_b32 v{E+7}, v{vKb} offset:1024""")
for q in range(8): e(f'ds_read2_b32 {vr(BF+2*q,2)}, v{vBk} offset0:{8*(q>>1) + 2*(q&1)} offset1:{8*(q>>1) + 2*(q&1) + 1}')
b = E + 12; t = E + 16
e(f"""s_waitcnt lgkmcnt(10)
v_perm_b32 v{b+2}, v{E+2}, v{E+2}, v{vSel+2}
v_perm_b32 v{b+3}, v{E+3}, v{E+2}, v{vSel+3}
v_perm_b32 v{b-2}, v{E+5}, v{E+4}, s{sE2}
v_perm_b32 v{b-1}, v{E+5}, v{E+4}, s{sE3}
v_perm_b32 v{b}, v{E}, v{E}, v{vSel}
v_perm_b32 v{b+1}, v{E+1}, v{E}, v{vSel+1}
v_mov_b32_dpp v{b-2}, v{b+2} wave_shr:1 row_mask:0xf bank_mask:0xf
v_mov_b32_dpp v{b-1}, v{b+3} wave_shr:1 row_mask:0xf bank_mask:0xf
ds_write_b128 v{vCd}, {vr(b,4)}""")
for i in range(4): e(f'v_alignbit_b32 v{t+i}, v{b+i}, v{b+i-1}, 16')
e(f'ds_write_b128 v{vCd}, {vr(t,4)} offset:{UC_S}')
for i in range(4): e(f'v_mov_b32 v{t+4+i}, v{b+i-1}')
e(f'ds_write_b128 v{vCd}, {vr(t+4,4)} offset:{2*UC_S}')
for i in range(4): e(f'v_alignbit_b32 v{t+8+i}, v{b+i-1}, v{b+i-2}, 16')
e(f'ds_write_b128 v{vCd}, {vr(t+8,4)} offset:{3*UC_S}\ns_waitcnt lgkmcnt(12)')
for i in range(4): e(f'v_perm_b32 v{t+12+i}, v{E+7}, v{E+6}, v{vSel+4+i}')
e(f'ds_write_b128 v{vZp}, {vr(t+12,4)}')
if OPT['uw'] == -1: u_fetch()
stamp(3)
e(f'v_and_b32 v{a0}, 31, v{V_LANE}')
swap23(a1, a0, a2)
e(f"""v_lshrrev_b32 v{a2}, 5, v{V_LANE}
v_lshl_add_u32 v{a1}, v{a1}, 1, v{a2}
s_add_u32 s{sA}, s{sHw}, 123
v_add_u32 v{a1}, s{sA}, v{a1}
s_mul_i32 s{sA}, s{sDs}, {PD}
s_add_u32 s{sA}, s{sA}, {L_KP}
v_and_b32 v{a3}, 3, v{a1}
v_mul_u32_u24 v{a3}, {PS - 4}, v{a3}
v_lshl_add_u32 v{a3}, v{a1}, 2, v{a3}
v_add_u32 v{vA0}, s{sA}, v{a3}
v_add_u32 v{a1}, 2, v{a1}
v_and_b32 v{a3}, 3, v{a1}
v_mul_u32_u24 v{a3}, {PS - 4}, v{a3}
v_lshl_add_u32 v{a3}, v{a1}, 2, v{a3}
v_add_u32 v{vA1}, s{sA}, v{a3}
v_lshlrev_b32 v{a2}, 3, v{a2}
v_sub_u32 v{a2}, v{a2}, v{a0}
v_cvt_f32_i32 v{a2}, v{a2}
v_add_f32 v{a3}, -1.0, v{a2}
v_add_f32 v{a2}, -2.0, v{a2}
v_cvt_pk_f16_f32 v8, v{a3}, v{a2}
s_waitcnt vmcnt(1)
ds_write_b128 v{vKp}, {vr(U,4)}
s_waitcnt vmcnt(0)
ds_write_b128 v{vKp}, {vr(U+4,4)} offset:128""")
arrive(4)
AP, BD, DP = 112, 136, 192
band = [f's_mov_b32 s{sA}, 0x4a204a20', f's_cmp_eq_u32 s{sHw}, 0', f's_cselect_b32 s{sE2}, 0x4d104d10, s{sA}', f's_mov_b32 s{sE3}, 0x4d804d80']
for q in range(12):
    band.append(f'v_pk_fma_f16 v{BD+q}, v8, v8, s{sE2} neg_lo:[1,0,0] neg_hi:[1,0,0] clamp')
    if q < 11: band.append(f'v_pk_add_f16 v8, v8, s{sE3}' if q % 4 == 3 else 'v_pk_add_f16 v8, v8, -2.0 op_sel_hi:[1,0]')
e('\n'.join(band))
lwait(4)
KG[0] = False
lo()
stamp(4)
if OPT['abl'] == 16: e('s_endpgm')
CB = 64
def cv_reads(k):
    b = CB + 12 * (k & 3)
    return [f'ds_read_b64 {vr(b,2)}, v{vF_} offset:{64*k}', f'ds_read_b64 {vr(b+2,2)}, v{vF_} offset:{64*k + 8}',
            f'ds_read_b128 {vr(b+8,4)}, v{vG_} offset:{512 + 80 - 16*k}', f'ds_read_b128 {vr(b+4,4)}, v{vG_} offset:{80 - 16*k}']
for tau in range(2):
    for kp in range(3): e(f'ds_read_b128 {vr(AP + 12*tau + 4*kp, 4)}, v{(vA0, vA1)[kp & 1]} offset:{256*tau + 16*(kp >> 1)}')
e('\n'.join(cv_reads(0) + cv_reads(1)))
FOA = f'''s_lshr_b32 s{sA}, s{sOl}, 1
s_lshl_b32 s{sA}, s{sA}, {4 + FSH}
s_add_u32 s{sA}, s{sA}, {F_O}
v_lshl_add_u32 v{vFo}, v{a1}, {FSH}, s{sA}''' if not OM else f'''s_lshr_b32 s{sA}, s{sOl}, 1
s_lshl_b32 s{sB}, s{sHw}, 9
s_add_u32 s{sA}, s{sA}, s{sB}
s_lshl_b32 s{sA}, s{sA}, {FSH}
s_add_u32 s{sA}, s{sA}, {F_Y}
v_min_u32 v{vFo}, 6, v{a1}
v_lshl_add_u32 v{vFo}, v{vFo}, {6 + FSH}, s{sA}'''
late = f"""s_mov_b64 s[{SRD_B}:{SRD_B+1}], s[22:23]
s_mov_b32 s{SRD_B+2}, {448*896}
s_mov_b32 s{SRD_B+3}, 0x20000
s_mov_b64 s[{SRD_C}:{SRD_C+1}], s[24:25]
s_mov_b32 s{SRD_C+2}, {2048*1792}
s_mov_b32 s{SRD_C+3}, 0x20000
v_lshrrev_b32 v{a1}, 3, v{V_LANE}
v_and_b32 v{a2}, 7, v{V_LANE}
v_and_b32 v{a0}, 0x70, v{vL16}
v_mul_u32_u24 v{vYl}, {YS}, v{a1}
v_add_u32 v{vYl}, v{vYl}, v{a0}
v_lshlrev_b32 v{a3}, 2, v{V_LANE}
v_and_b32 v{a3}, 64, v{a3}
v_xor_b32 v{a0}, v{a0}, v{a3}
v_mul_u32_u24 v{vWoD}, 896, v{a1}
v_xor_b32 v{a3}, v{a1}, v{a2}
v_lshlrev_b32 v{a3}, 4, v{a3}
v_lshl_add_u32 v{vOut}, v{vWoD}, 1, v{a3}
v_add_u32 v{vWoD}, v{a0}, v{vWoD}
v_add_u32 v{vWoD+1}, {7168-1024}, v{vWoD}
v_lshrrev_b32 v{a0}, 4, v{V_LANE}
v_bfe_u32 v{a1}, v{V_LANE}, 2, 2
v_lshl_or_b32 v{a3}, v{a0}, 3, v{a1}
v_lshlrev_b32 v{a3}, 7, v{a3}
v_lshrrev_b32 v{a1}, 1, v{a1}
v_lshl_add_u32 v{a3}, v{a1}, 6, v{a3}
v_and_b32 v{a1}, 0x30, v{vL16}
s_movk_i32 s{sA}, {L_WO}
v_add3_u32 v{vWoR}, v{a1}, v{a3}, s{sA}
v_xor_b32 v{vWoR+1}, 64, v{vWoR}
v_and_b32 v{a1}, 15, v{V_LANE}
v_lshlrev_b32 v{vOl}, 4, v{a1}
v_mad_u32_u24 v{vOl}, v{a0}, s{S_KS}, v{vOl}
s_lshl2_add_u32 s{sOl}, s{S_J}, s{S_W}
{FOA}
s_lshl_b32 s{sA}, s{S_W}, 11
s_add_u32 s{sA}, s{sA}, {L_SSM}
v_xor_b32 v{a3}, v{a0}, v{a2}
v_lshl_add_u32 v{a3}, v{a3}, 4, s{sA}
v_lshl_add_u32 v{vBw}, v{a1}, 7, v{a3}
v_add_u32 v{vBr}, s{sA}, v{vL16}
s_mul_i32 s{sOut}, s{sOl}, {16*1792}
s_lshl_b32 s{sA}, s{S_C}, 7
s_add_u32 s{sOut}, s{sOut}, s{sA}
s_add_u32 s{sOut}, s{sOut}, 896
s_add_u32 s{sOut+1}, s{sOut}, {8*1792}
s_lshl_b32 s{sOl}, s{sOl}, 8
s_add_u32 s{sOl}, s{sOl}, {WS_O}
s_lshl2_add_u32 s{sCh0}, s{S_C}, s{S_W}
s_lshl_b32 s{sCh0}, s{sCh0}, 4
s_lshr_b32 s{sA}, s{S_J}, 4
s_lshl_b32 s{sA}, s{sA}, 9
s_add_u32 s{sA}, s{sA}, s{sCh0}
s_lshl_b32 s{sA}, s{sA}, {FSH}
s_add_u32 s{sA}, s{sA}, {F_Y}
v_lshl_add_u32 v{vFy}, v{a1}, {FSH}, s{sA}
v_and_b32 v{a1}, 11, v{V_LANE}
v_lshl_or_b32 v{a1}, v{a0}, 5, v{a1}
v_mul_u32_u24 v{a1}, 1792, v{a1}
v_and_b32 v{a3}, 4, v{V_LANE}
v_lshl_add_u32 v{vYs}, v{a3}, 2, v{a1}
s_lshl_b32 s{sA}, s{sHw}, 12
s_add_u32 s{sB}, s{sP}, {P_X + 4096}
s_sub_u32 s{sB}, s{sB}, s{sA}
v_add_u32 v{vXp}, s{sB}, v{vL16}
s_add_u32 s{sA}, s{sA}, s{sP}
s_add_u32 s{sA}, s{sA}, {P_X}
v_add_u32 v{vXo}, s{sA}, v{vL16}
v_lshl_add_u32 v{vRb_}, v{a0}, 4, s{sA}
v_bfe_u32 v{a0}, v{V_LANE}, 2, 2
v_and_b32 v{a3}, 1, v{V_LANE}
v_lshl_or_b32 v{a2}, v{a3}, 3, v{a0}
v_lshl_add_u32 v{vTr}, v{a2}, 7, v{vRb_}
v_and_b32 v{a2}, 2, v{V_LANE}
v_lshl_add_u32 v{vTr}, v{a2}, 2, v{vTr}""".split('\n')
def fill(n):
    e('\n'.join(late[:n])); del late[:n]
fill(16)
e('s_waitcnt lgkmcnt(8)')
for kp in range(3):
    for tau in range(2):
        d = vr(DP + 16*tau, 16)
        e(f'v_mfma_f32_32x32x16_bf16 {d}, {vr(AP + 12*tau + 4*kp, 4)}, {vr(BD + 4*kp, 4)}, {"0" if kp == 0 else d}')
        fill(6)
def cv_iter(first):
    for k in range(4):
        b = CB + 12 * k
        rd = cv_reads(k + 2)
        z = first and k == 0
        e('s_waitcnt lgkmcnt(4)')
        e(f'v_mfma_f32_32x32x16_bf16 {vr(T1,16)}, {vr(b,4)}, {vr(b+8,4)}, {"0" if z else vr(T1,16)}')
        e('\n'.join(rd))
        if k == 3:
            e(f'v_add_u32 v{vF_}, 256, v{vF_}\nv_subrev_u32 v{vG_}, 64, v{vG_}')
            if not first: e(f's_add_u32 s{sIt2}, s{sIt2}, 1\ns_cmp_lg_u32 s{sIt2}, 11')
        e(f'v_mfma_f32_32x32x16_bf16 {vr(T0,16)}, {vr(b,4)}, {vr(b+4,4)}, {"0" if z else vr(T0,16)}')
        if first: fill(6 if k < 3 else 99)
cv_iter(True)
e('L_cv:')
cv_iter(False)
e('s_cbranch_scc1 L_cv')
cv = [f'v_cvt_pk_bf16_f32 v{AP+i}, v{DP+2*i}, v{DP+2*i+1}' for i in range(16)]
for k in range(2):
    e('\n'.join(cv[4*k:4*k+4]))
    e(f's_waitcnt lgkmcnt({4 - 4*k})')
    e(f'v_mfma_f32_32x32x16_bf16 {vr(T1,16)}, {vr(CB+12*k,4)}, {vr(CB+12*k+8,4)}, {vr(T1,16)}')
for q in range(4):
    e('\n'.join(cv[8+4*q:12+4*q]))
    e(f'v_mfma_f32_32x32x16_bf16 {vr(T1,16)}, {vr(AP+4*q,4)}, {vr(BF+4*q,4)}, {vr(T1,16)}')
if OPT['prio']: e(f"s_setprio {OPT['pr']}")
stamp(5)
if OPT['abl'] == 32: e('s_endpgm')
e(f"""s_mul_i32 s{sA}, s{sD}, {YS}
s_lshl_b32 s{sB}, s{sHw}, 11
s_add_u32 s{sA}, s{sA}, s{sB}
s_add_u32 s{sA}, s{sA}, {WS_Y}
s_lshl_b32 s{sB}, s{sHw}, 9
s_add_u32 s{sB}, s{sB}, s{sD}
s_lshl_b32 s{sB}, s{sB}, {FSH}
s_add_u32 s{sB}, s{sB}, {F_Y}
s_nop 0""")
def xch(give, keep):
    for i in range(4): e(f'ds_write_b128 v{vXp}, {vr(give+4*i,4)} offset:{1024*i}')
    arrive(6); lwait(6, addr=vPair)
    for i in range(4): e(f'ds_read_b128 {vr(give+4*i,4)}, v{vXo} offset:{1024*i}')
    e('s_waitcnt lgkmcnt(0)')
e(f's_cmp_eq_u32 s{sHw}, 0\ns_cbranch_scc1 L_x0')
xch(T0, T1)
e('s_branch L_x1\nL_x0:')
xch(T1, T0)
e('L_x1:')
for i in range(8): e(f'v_pk_add_f32 {vr(T0+2*i,2)}, {vr(T0+2*i,2)}, {vr(T1+2*i,2)}')
for i in range(8): e(f'v_cvt_pk_bf16_f32 v{T1+i}, v{T0+2*i}, v{T0+2*i+1}')
e(f"""buffer_store_dwordx4 {vr(T1,4)}, v{vL16}, {sr(SRD_WS)}, s{sA} offen sc1
buffer_store_dwordx4 {vr(T1+4,4)}, v{vL16}, {sr(SRD_WS)}, s{sA} offen offset:1024 sc1
v_subrev_u32 v{a0}, 16, v{V_GRP}""")
if OM:
    e(f'''v_mov_b64 {vr(T0,2)}, -1
    v_mov_b64 {vr(T0+2,2)}, -1
    s_mul_i32 s{sA}, s{S_C}, {8*KS}
    s_add_u32 s{sA}, s{sA}, s{sOl}
    s_add_u32 s{sSk}, s{sA}, {4*KS}
    buffer_store_dwordx4 {vr(T0,4)}, v{vOl}, {sr(SRD_WS)}, s{sA} offen sc1
    buffer_store_dwordx4 {vr(T0,4)}, v{vOl}, {sr(SRD_WS)}, s{sSk} offen sc1''')
sync(7)
if OPT['only'] != 1: lwait(7, addr=a0)
e('s_waitcnt vmcnt(0)')
publish(sB, a0)
stamp(6)
if OPT['abl'] == 33: e('s_endpgm')
e(f"""s_mul_i32 s{sA}, s{S_W}, {16*896}
s_lshl_b32 s{sB}, s{S_C}, 7
s_add_u32 s{sA}, s{sA}, s{sB}
s_lshl_b32 s{sB}, s{S_W}, 11
s_add_u32 s{sB}, s{sB}, {L_WO}""")
for ch in range(7):
    e(f"""s_add_u32 m0, s{sB}, {8192*ch}
    s_add_u32 s{sSk}, s{sA}, {64*896*ch}
    buffer_load_dwordx4 v{vWoD}, {sr(SRD_B)}, s{sSk} offen lds
    buffer_load_dwordx4 v{vWoD+1}, {sr(SRD_B)}, s{sSk} offen offset:1024 lds
    s_waitcnt vmcnt({OPT['wodepth'] if ch < 6 else 0})""")
WF, OF, OC = 8, 168, 224
arrive(8)
e(f"""buffer_load_dword v{a0}, v{vFy}, {sr(SRD_WS)}, 0 offen sc1
s_mul_i32 s{sA}, s{sCh0}, {YS}
s_lshl_b32 s{sSk}, s{S_J}, 7
s_add_u32 s{sA}, s{sA}, s{sSk}
s_add_u32 s{sA}, s{sA}, {WS_Y}
s_add_u32 s{sSk}, s{sA}, {8*YS}""")
lwait(8)
stamp(7)
if OPT['abl'] == 34: e('s_endpgm')
def wo_reads(k):
    r = []
    for t in range(4):
        for hf in range(2):
            r.append(f'ds_read_b64_tr_b16 {vr(WF + 16*(k%10) + 4*t + 2*hf, 2)}, v{vWoR + (t>>1)} offset:{4096*k + 512*hf + 8*(t&1)}')
    return r
for k in range(10): e('\n'.join(wo_reads(k)))
arrive(9)
poll(vFy, first_issued=True, sleep=OPT['ysleep'], reg=a0)
stamp(8)
if OPT['abl'] == 35: e('s_endpgm')
e(f"""buffer_load_dwordx4 {vr(OF,4)}, v{vYl}, {sr(SRD_WS)}, s{sA} offen sc1
buffer_load_dwordx4 {vr(OF+4,4)}, v{vYl}, {sr(SRD_WS)}, s{sSk} offen sc1
s_lshr_b32 s{sA}, s{S_J}, 4
s_lshl_b32 s{sA}, s{sA}, 10
s_and_b32 s{sB}, s{S_J}, 3
s_lshl_b32 s{sB}, s{sB}, 8
s_add_u32 s{sA}, s{sA}, s{sB}
s_and_b32 s{sB}, s{S_J}, 8
s_lshl1_add_u32 s{sA}, s{sB}, s{sA}
s_and_b32 s{sB}, s{S_J}, 4
s_add_u32 s{sA}, s{sA}, s{sB}
s_mul_i32 s{sA}, s{sA}, 1792
s_lshl1_add_u32 s{sA}, s{sCh0}, s{sA}
s_add_u32 s{sB}, s{sA}, {128*1792}
v_xor_b32 v{a0}, 64, v{vBw}""")
lwait(9)
e(f"""s_waitcnt vmcnt(0)
ds_write_b128 v{vXo}, {vr(OF,4)}
ds_write_b128 v{vXo}, {vr(OF+4,4)} offset:1024""")
for z in range(2):
    for hf in range(2):
        e(f'ds_read_b64_tr_b16 {vr(OF + 8 + 4*z + 2*hf, 2)}, v{vTr} offset:{64*z + 512*hf}')
e(f"""s_waitcnt lgkmcnt(0)
buffer_store_dwordx4 {vr(OF+8,4)}, v{vYs}, {sr(SRD_C)}, s{sA} offen {OUTM}
buffer_store_dwordx4 {vr(OF+12,4)}, v{vYs}, {sr(SRD_C)}, s{sB} offen {OUTM}""")
if OPT['only'] == 1:
    stamp(9); stamp(13); prof_out(); e('s_endpgm')
if OM: poll(vFo, sleep=8)
if OM == 4:
    e(f'''s_lshl2_add_u32 s{sA}, s{S_J}, s{S_W}
    s_lshr_b32 s{sA}, s{sA}, 1
    s_lshl_b32 s{sA}, s{sA}, {4 + FSH}
    s_add_u32 s{sA}, s{sA}, {F_O}
    v_and_b32 v{vFo}, 15, v{V_LANE}
    v_lshl_add_u32 v{vFo}, v{vFo}, {FSH}, s{sA}''')
sOk, sLast = 4, 18
for k in range(14): e(f's_add_u32 s{sOk+k}, s{sOl}, {4*KS*k}')
stamp(9)
e('s_barrier        ; released once the four attention waves have stored their rows')
stamp(10)
if OPT['osleep']: e(f"s_sleep {OPT['osleep']}")
if OM != 3: poll(vFo, sleep=OPT['hsleep'])
if OM: e(f's_min_u32 s{S_BOUND}, s{S_BOUND}, 0x4000')
stamp(11)
def o_load(k): return f'buffer_load_dwordx4 {vr(OF+4*k,4)}, v{vOl}, {sr(SRD_WS)}, s{sOk+k} offen sc1'
def o_chk(k):
    o = OF + 4*k
    return [f's_waitcnt vmcnt({13-k})', f'v_max3_u32 v6, v{o}, v{o+1}, v{o+2}', f'v_max_u32 v6, v6, v{o+3}', 'v_cmp_eq_u32 vcc, -1, v6']
for k in range(14): e(o_load(k))
if OM: e('\n'.join(o_chk(0)))
for k in range(14):
    o = OF + 4*k
    m = [f'v_mfma_f32_16x16x32_bf16 {vr(OC+4*t,4)}, {vr(WF + 16*(k%10) + 4*t, 4)}, {vr(o,4)}, {"0" if k == 0 else vr(OC+4*t,4)}' for t in range(4)]
    rd = wo_reads(k + 9) if 1 <= k <= 4 else []
    if k == 10: e('s_waitcnt lgkmcnt(0)')
    if OM:
        e(f's_cbranch_vccnz L_or{k}\nL_og{k}:')
        c = o_chk(k + 1) if k < 13 else ['', '', '', '']
        e('\n'.join([m[0]] + rd[:4] + [m[1]] + rd[4:] + [m[2], c[0], c[1], c[2], m[3], c[3]]))
    else:
        e(f's_waitcnt vmcnt({13-k})'); e('\n'.join(m + rd))
stamp(12)
e('s_nop 4')
for i in range(8): e(f'v_cvt_pk_bf16_f32 v{16+i}, v{OC+2*i}, v{OC+2*i+1}')
e(f"""ds_write_b128 v{vBw}, {vr(16,4)}
ds_write_b128 v{a0}, {vr(20,4)}
ds_read_b128 {vr(24,4)}, v{vBr}
ds_read_b128 {vr(28,4)}, v{vBr} offset:1024
s_or_b32 s{sA}, s2, s{S_W}
s_waitcnt lgkmcnt(1)
buffer_store_dwordx4 {vr(24,4)}, v{vOut}, {sr(SRD_C)}, s{sOut} offen {OUTM2}
s_waitcnt lgkmcnt(0)
buffer_store_dwordx4 {vr(28,4)}, v{vOut}, {sr(SRD_C)}, s{sOut+1} offen {OUTM2}
s_cbranch_scc1 L_noepoch""")
publish(sA, 6)
e('L_noepoch:')
if OPT['prof']:
    e('s_waitcnt vmcnt(0)')
stamp(13)
prof_out()
e('L_end:\ns_endpgm')
if OM:
    for k in range(14):
        c = o_chk(k)
        e(f'''L_or{k}:
        s_call_b64 s[90:91], L_re{k}
        {c[0]}
        L_oc{k}:
        {c[1]}
        {c[2]}
        {c[3]}
        s_cbranch_vccz L_og{k}
        {'s_sleep %d' % OPT['rsleep'] if OPT['rsleep'] else ''}
        {o_load(k)}
        s_sub_u32 s{S_BOUND}, s{S_BOUND}, 1
        s_waitcnt vmcnt(0)
        s_cbranch_scc0 L_oc{k}
        s_mov_b32 s{S_BOUND}, 0
        s_branch L_og{k}''')
    for k in range(14): e(f'L_re{k}:\n{o_load(k)}')
    e('s_setpc_b64 s[90:91]')
sec('idle')
ROLE[0] = 2
e('L_ssm_idle:')
if OPT['only'] == 2:
    arrive(1); e('s_endpgm')
hi()
e(f"""v_lshrrev_b32 v10, 3, v{V_LANE}
v_and_b32 v11, 7, v{V_LANE}
v_lshlrev_b32 v11, 4, v11
v_mul_u32_u24 v5, 896, v10
v_add_u32 v5, v5, v11
v_add_u32 v6, {7168-1024}, v5
s_lshl2_add_u32 s60, s{S_J}, s{S_W}
s_mul_i32 s61, s60, {16*896}
s_mul_i32 s62, s{S_W}, 14336
s_add_u32 s62, s62, {L_SSM}
s_mov_b32 s{SRD_A+2}, {2048*896}
s_mov_b32 s{SRD_A+3}, 0x20000
s_waitcnt lgkmcnt(0)
s_load_dword s{S_NONCE}, s[28:29], 0
s_mov_b64 s[{SRD_A}:{SRD_A+1}], s[4:5]""")
for c in range(7):
    e(f"""s_add_u32 m0, s62, {2048*c - 128*c}
    s_nop 0
    buffer_load_dwordx4 v5, {sr(SRD_A)}, s61 offen offset:{128*c} lds
    buffer_load_dwordx4 v6, {sr(SRD_A)}, s61 offen offset:{1024 + 128*c} lds""")
    if c == 1:
        srd(SRD_WS, 28, WS_SIZE)
        e(f"""; transposing read: row = 8*(cc&1)+r', byte = 8*(2G+(cc>>1))
        v_mul_u32_u24 v7, {QS}, v10
        v_add_u32 v7, v7, v11
        v_bfe_u32 v8, v{V_LANE}, 2, 2
        v_and_b32 v9, 1, v{V_LANE}
        v_lshl_or_b32 v8, v9, 3, v8
        v_xor_b32 v8, 3, v8
        v_lshl_add_u32 v8, v8, 7, s62
        v_and_b32 v9, 0x30, v{V_LANE}
        v_add_u32 v8, v8, v9
        v_and_b32 v9, 2, v{V_LANE}
        v_lshl_add_u32 v8, v9, 2, v8
        s_lshl_b32 s63, s60, 7
        s_add_u32 s63, s63, {WS_U}
        s_mul_i32 s65, s{S_J}, {US}
        v_mov_b32 v12, 0x3f803f80
        v_mov_b32 v13, v12
        v_mov_b64 v[14:15], v[12:13]
        v_lshlrev_b32 v9, 4, v{V_LANE}
        s_lshl2_add_u32 s66, s{S_TILE}, s{S_W}
        s_lshl_b32 s66, s66, 8
        s_mul_i32 s67, s{S_HG}, {QS}
        s_add_u32 s66, s66, s67
        s_add_u32 s66, s66, {WS_V + 112*QS}
        s_add_u32 s65, s65, {F_U}""")
e(f's_waitcnt lgkmcnt(0)\ns_add_u32 s{S_NONCE}, s{S_NONCE}, 1')
arrive(1)
def t_rd(c):
    return [f'ds_read_b64_tr_b16 {vr(16 + 8*c + 4*z + 2*hf, 2)}, v8 offset:{2048*c + 64*z + 512*(1-hf)}' for z in range(2) for hf in range(2)]
e('s_waitcnt vmcnt(12)'); stamp(1); e('\n'.join(t_rd(0)))
for c in range(7):
    if c < 6:
        e('s_waitcnt vmcnt(10)'); e('\n'.join(t_rd(c + 1)))
    e(f"""s_add_u32 s64, s63, {8*QS}
    s_waitcnt lgkmcnt({4 if c < 6 else 0})
    buffer_store_dwordx4 {vr(16+8*c,4)}, v7, {sr(SRD_WS)}, s63 offen sc1
    buffer_store_dwordx4 {vr(20+8*c,4)}, v7, {sr(SRD_WS)}, s64 offen sc1
    s_add_u32 s63, s63, {16*QS}""")
assert OPT['ur'] == 1
e(f'''; the column quad of ones that gives the softmax row sums
s_mov_b64 exec, 0xffff
buffer_store_dwordx4 v[12:15], v9, {sr(SRD_WS)}, s66 offen sc1''')
stamp(2)
e(f'''s_mov_b64 exec, 1
v_mov_b32 v5, s{S_NONCE}
s_cmp_lg_u32 s{S_W}, 0
s_waitcnt vmcnt(0)
s_barrier
s_cbranch_scc1 L_idle_end
buffer_store_dword v5, v9, {sr(SRD_WS)}, s65 offen sc1''')
e('L_idle_end:\ns_mov_b64 exec, -1'); stamp(4)
prof_out()
e('s_endpgm')
ORDER = [['pro', 'ssm0', 'mha0', 'idle', 'ssm', 'mha'], ['pro', 'ssm0', 'mha0', 'mha', 'ssm', 'idle'],
         ['pro', 'ssm0', 'mha0', 'ssm', 'mha', 'idle'], ['pro', 'ssm0', 'idle', 'mha0', 'mha', 'ssm']][OPT['ord']] + ['cold', 'gt', 'fb']
SEC.setdefault('cold', [])
def add_nt(n, pred):
    SEC[n] = [(l.replace(' lds', ' nt lds') if l.endswith(' lds') else l + ' nt') if pred(l) else l for l in SEC[n]]
for n in ('mha0', 'mha', 'gt'):
    if OPT['nt'] & 1: add_nt(n, lambda l: l.endswith(' lds') and sr(SRD_A) in l)
    if OPT['nt'] & 2: add_nt(n, lambda l: l.endswith(' lds') and sr(SRD_B) in l)
if OPT['nt'] & 4: add_nt('idle', lambda l: l.endswith(' lds'))
if OPT['nt'] & 8: add_nt('ssm0', lambda l: 'global_load' in l)
if OPT['nt'] & 16: add_nt('ssm', lambda l: l.endswith(' lds'))
if OPT['nt'] & 32: add_nt('ssm', lambda l: 'buffer_store' in l and sr(SRD_C) in l)
BODY = sum((SEC[n] for n in ORDER), [])
def sizes(lines):
    import subprocess, re, os, tempfile
    d = tempfile.mkdtemp()
    open(d + '/a.s', 'w').write('.amdgcn_target "amdgcn-amd-amdhsa--gfx950"\n.text\n' + '\n'.join(lines) + '\n')
    subprocess.check_call(['clang', '-x', 'assembler', '-target', 'amdgcn-amd-amdhsa', '-mcpu=gfx950', '-c', d + '/a.s', '-o', d + '/a.o'])
    o = subprocess.check_output(['llvm-objdump', '-d', '--mcpu=gfx950', d + '/a.o']).decode()
    return [4 * len(m.group(1).split()) for m in re.finditer(r'// [0-9A-F]{12}: ((?:[0-9A-F]{8} ?)+)', o)]
def is_ins(l):
    t = l.split(';')[0].strip()
    return bool(t) and not t.endswith(':')
def widen(l):
    import re
    t = l.split(';')[0].strip(); op = t.split()[0]
    if op.startswith('v_') and not op.startswith(('v_readfirstlane', 'v_swap', 'v_permlane', 'v_nop')):
        return l.replace(op, op + '_e64', 1)
    return None
if OPT['al']:
    sz = iter(sizes(BODY))
    I = [[l, next(sz) if is_ins(l) else 0] for l in BODY]
    res = []; addr = 0; nw = nn = 0
    for i, (l, n) in enumerate(I):
        if n == 8 and addr % 8 == 4:
            run = 0
            for l2, n2 in I[i:]:
                if n2 == 4: break
                run += n2 == 8
            cross = sum(1 for k in range(run) if (addr + 8*k) % 32 == 28)
            if cross:
                j = len(res) - 1; done = False; aj = addr
                while j >= 0 and res[j][1] in (0, 4):
                    aj -= res[j][1]
                    t = res[j][0].strip()
                    if t.startswith(('s_branch', 's_endpgm', 's_setpc')):
                        res.insert(j + 1, ['    s_nop 0', 4]); done = True; break
                    w = widen(res[j][0]) if res[j][1] == 4 and aj % 32 != 28 else None
                    if w:
                        res[j] = [w, 8]; done = True; nw += 1; break
                    j -= 1
                if not done and run >= OPT['alr']:
                    k = len(res)
                    while res[k-1][1] == 0: k -= 1
                    res.insert(k, ['    s_nop 0', 4]); done = True; nn += 1
                if done: addr += 4
        res.append([l, n]); addr += n
    BODY = [l for l, n in res]
    print('aligned: widened', nw, 'nops', nn, 'bytes', addr, file=sys.stderr)
hdr = open('header.txt').read()
txt = hdr + f'''; @launch grid=(256,1,1) block=(512,1,1) lds={L_TOT}
.amdgcn_target "amdgcn-amd-amdhsa--gfx950"
.text
.globl {KN}
.p2align 8
.type {KN},@function
{KN}:
''' + '\n'.join(BODY) + f'''
.section .rodata,"a"
.p2align 6
.amdhsa_kernel {KN}
  .amdhsa_next_free_vgpr 256
  .amdhsa_next_free_sgpr 102
  .amdhsa_accum_offset 256
  .amdhsa_group_segment_fixed_size 0
  .amdhsa_kernarg_size 104
  .amdhsa_user_sgpr_count 2
  .amdhsa_user_sgpr_kernarg_segment_ptr 1
  .amdhsa_system_sgpr_workgroup_id_x 1
.end_amdhsa_kernel
'''
open(sys.argv[1], 'w').write(txt)
```

```python
import sys, struct
def fl(x): return hex(struct.unpack('<I', struct.pack('<f', x))[0])

KN = 'concat_heads__ssm_conv_s4d__softmax_full_mha__prompt_kernel'
OPT = dict(fwm=0, pg=13, pgm=32, pfm=7, rdr=0, pw=0, dm=0, rdf=0, rdv=0, rdt=0, only_st=0, ur=1, us=128, rd0=-1, rdm=0, probe=0, poff=0xc00000, nt=0, rdn=0, al=1, alr=6, fw=0, rsleep=0, hsleep=0, ord=2, nb=0, tb=13, tq=0, chkk=99, uw=-1, cw=0, s6=5, tskip=1, ones=1, pa=1, pr=2, pf=2, wgf=2, ax=0, bp=1, qa=7, n0=4, ilv=8, tlb=0, ulook=1, kgp=1, pad=0, ypad=0, omode=3, ksleep=0, usleep=4, obar=5, osleep=0, pubk=8, abl=0, touch=0, gs=0, kgw=0, xg=5, gx=0, pm=2, ps=0, rt=0, upub=1, kgx=0, outsc=0, ysleep=8, wodepth=4, wq_mid=0, pollk=99, rd=-1, rdrole=0, only=0, safe=0, rot=0, prof=0, fs=128, force_fb=0, wq_early=7, prio=1)
for a in sys.argv[2:]:
    k, v = a.split('=')
    assert k in OPT, k
    OPT[k] = int(v, 0)

FS = OPT['fs']
FSH = FS.bit_length() - 1
F_KV = 0x1000
F_O = F_KV + 1024 * FS
F_U = F_O + 1024 * FS
F_Y = F_U + 1024 * FS
F_H = F_Y + 1024 * FS
WS_K = 0x100000
WS_V = 0x300000
WS_O = 0x500000
WS_U = 0x700000
WS_Y = 0x900000
QS = 16384 + OPT['pad']; KS = 2 * QS; YS = 4096 + OPT['ypad']
S_KS = 57
WS_PROF = 0xb00000
F_U = 0xb80000 if OPT['us'] * OPT['ur'] > 4096 else F_U
US = OPT['us']
WS_SIZE = 0x1000000
L_SSM = 1024
L_W = 57344
L_RB = 65536
L_X = 114688
L_TOT = 163840
TROW = 288
TABSZ = 38 * TROW
L_TAB = L_SSM
P_SZ = 2 * TABSZ
P_UC = 1536
UC_S = 2240
P_KD = TABSZ + 1536
P_X = TABSZ
PS = 1552
PD = 4 * PS
L_KP = L_TAB + 4 * TABSZ
assert P_UC + 4 * UC_S <= TABSZ and P_KD + 1600 <= P_SZ and P_X + 8192 <= P_SZ and L_KP % 16 == 0 and L_KP + 2 * PD <= L_W
L_WO = L_SSM

S_WV, S_W, S_HG, S_C, S_TILE, S_J, S_H, S_NONCE, S_O0, S_ROT = range(30, 40)
SRD_WS, SRD_A, SRD_B, SRD_C = 40, 44, 48, 52
S_BOUND = 56
S_T0 = 58

SEC = {}
out = None
def sec(n):
    global out
    out = SEC.setdefault(n, [])
sec('pro')
def e(s):
    for l in s.split('\n'):
        l = l.strip()
        if l:
            out.append(l if l.endswith(':') else '    ' + l)
_lab = [0]
def lab(p):
    _lab[0] += 1
    return f'L_{p}_{_lab[0]}'
def vr(a, n):
    return f'v[{a}:{a+n-1}]' if n > 1 else f'v{a}'
def srd(d, b, n):
    e(f's_mov_b64 s[{d}:{d+1}], s[{b}:{b+1}]\ns_mov_b32 s{d+2}, {n}\ns_mov_b32 s{d+3}, 0x20000')
def sr(d): return f's[{d}:{d+3}]'

V_LANE, V_T, V_OWN, V_GRP, V_PROF = 0, 1, 2, 3, 4

ROLE = [0]
def stamp(i):
    if OPT['rd0'] == i and OPT['rdrole'] == ROLE[0]:
        e('s_memrealtime s[98:99]\ns_waitcnt lgkmcnt(0)')
    if OPT['rd'] == i and OPT['rdrole'] == ROLE[0]:
        e('s_memrealtime s[100:101]\ns_waitcnt lgkmcnt(0)')
    if (OPT['only_st'] >> (i + 32*min(ROLE[0], 1))) & 1 if OPT['only_st'] else OPT['prof'] > (i >= 14):
        e(f's_mem{"real" if OPT["rt"] else ""}time s[96:97]\ns_waitcnt lgkmcnt(0)\ns_sub_u32 s96, s96, s{98 if OPT["rt"] else S_T0}\nv_writelane_b32 v{V_PROF}, s96, {i}')
def prof_out():
    if OPT['rd'] >= 0 and OPT['rdrole'] == ROLE[0]:
        l = lab('pad')
        if ROLE[0] == 0 and not OPT['obar']: e('s_barrier')
        if ROLE[0] == 2: e('s_barrier')
        if OPT['rdr']:
            e(f'''s_lshl3_add_u32 s96, s2, s{S_WV}
            s_lshl_b32 s96, s96, 2
            s_add_u32 s96, s96, 0xb40000
            v_mov_b32 v6, 0
            buffer_load_dword v5, v6, {sr(SRD_WS)}, s96 offen sc1
            s_xor_b32 s97, s{S_NONCE}, 0x5a3c1e77
            v_mov_b32 v7, s97
            s_waitcnt vmcnt(0)
            buffer_store_dword v7, v6, {sr(SRD_WS)}, s96 offen sc1
            v_readfirstlane_b32 s96, v5
            s_xor_b32 s96, s96, 0x5a3c1e77
            s_add_u32 s96, s96, 1
            s_cmp_eq_u32 s96, s{S_NONCE}
            s_cbranch_scc{OPT['rdr'] - 1} L_end''')
        if OPT['rdf']: e(f"s_and_b32 s96, s2, {OPT['rdf']}\ns_cmp_lg_u32 s96, {OPT['rdv']}\ns_cbranch_scc1 L_end")
        if ROLE[0] == 0 and OPT['rdn']: e(f's_cmp_eq_u32 s{S_C}, 7\ns_cbranch_scc{2 - OPT["rdn"]} L_end')
        if OPT['rd'] == 98:
            e(f'''s_not_b32 s100, s100
            v_mov_b32 v5, s100
            v_mov_b32 v6, 0
            s_mov_b64 exec, 1
            global_atomic_umax v6, v5, s[26:27]
            s_waitcnt vmcnt(0)
            s_sleep 127
            s_sleep 127
            s_sleep 127
            s_sleep 127
            s_sleep 127
            global_load_dword v5, v6, s[26:27] sc1
            s_waitcnt vmcnt(0)
            v_readfirstlane_b32 s100, v5
            s_not_b32 s100, s100''')
        if OPT['probe']:
            op = {1: 'buffer_store_dwordx4 v[8:11], v5, s[52:55], s60 offen sc1', 2: 'buffer_load_dwordx4 v[8:11], v5, s[52:55], s60 offen sc1',
                  3: 'buffer_store_dwordx4 v[8:11], v5, s[52:55], s60 offen'}[OPT['probe'] & 3]
            if OPT['probe'] & 16: op = '\n'.join(op.replace('offen', f'offen offset:{1024*i}') for i in range(4))
            pre = 'buffer_load_dword v12, v6, s[52:55], s61 offen sc1\ns_waitcnt vmcnt(0)' if OPT['probe'] & 4 else ''
            if OPT['probe'] & 8: pre += '\nbuffer_store_dwordx4 v[8:11], v5, s[52:55], s60 offen sc1\ns_waitcnt vmcnt(0)\ns_sleep 40'
            e(f'''s_mov_b64 s[52:53], s[28:29]
            s_mov_b32 s54, 0x10000000
            s_mov_b32 s55, 0x20000
            L_prb:
            s_sleep 1
            s_memrealtime s[62:63]
            s_waitcnt lgkmcnt(0)
            s_sub_u32 s62, s62, s58
            s_cmp_lt_u32 s62, 3000
            s_cbranch_scc1 L_prb
            v_lshlrev_b32 v5, 4, v0
            v_mov_b32 v6, 0
            s_lshl2_add_u32 s60, s2, s{S_W}
            s_lshl_b32 s60, s60, {12 if OPT['probe'] & 16 else 10}
            s_add_u32 s60, s60, {OPT['poff']}
            s_mov_b32 s61, {OPT['poff'] + 0x180000}
            {pre}
            s_memrealtime s[62:63]
            s_waitcnt lgkmcnt(0)
            {op}
            s_waitcnt vmcnt(0)
            s_memrealtime s[100:101]
            s_waitcnt lgkmcnt(0)
            s_sub_u32 s100, s100, s62
            v_mov_b32 v8, s100
            s_lshl2_add_u32 s60, s2, s{S_W}
            s_lshl_b32 s60, s60, 2
            s_add_u32 s60, s60, {WS_PROF}
            buffer_store_dword v8, v6, s[52:55], s60 offen
            s_mul_i32 s100, s100, 20
            s_add_u32 s100, s100, s58''')
        elif OPT['rdm'] >= 3:
            key = {3: 's_and_b32 s96, s2, 7', 4: f's_mov_b32 s96, s{S_H}', 5: f's_mov_b32 s96, s{S_TILE}'}[OPT['rdm']]
            e(f'''s_sub_u32 s100, s100, s98
            s_sub_u32 s97, s98, s58
            s_mul_i32 s100, s100, 1000000
            s_mul_i32 s97, s97, 1000
            s_add_u32 s100, s100, s97
            s_add_u32 s100, s100, s2
            {key}
            s_lshl_b32 s96, s96, 2
            v_mov_b32 v5, s100
            v_mov_b32 v6, s96
            s_mov_b64 exec, 1
            global_atomic_umax v6, v5, s[26:27]
            s_waitcnt vmcnt(0)
            s_endpgm''')
        elif OPT['rdm'] == 2:
            e('''s_not_b32 s96, s58
            v_mov_b32 v5, s96
            v_mov_b32 v6, 0
            s_mov_b64 exec, 1
            global_atomic_umax v6, v5, s[26:27]
            s_waitcnt vmcnt(0)''' + '\ns_sleep 127' * 7 + '''
            global_load_dword v5, v6, s[26:27] sc1
            s_waitcnt vmcnt(0)
            v_readfirstlane_b32 s96, v5
            s_not_b32 s96, s96
            s_sub_u32 s100, s100, s96
            s_lshl_b32 s100, s100, 3
            s_add_u32 s100, s100, s96''')
        elif OPT['rdm']:
            e('s_sub_u32 s100, s100, s98')
            if OPT['rdt']: e(f"s_cmp_gt_u32 s100, {OPT['rdt']}\ns_cselect_b32 s100, 1280, 0")
            e('''v_mov_b32 v5, s100
            v_mov_b32 v6, 0
            s_mov_b64 exec, 1
            global_atomic_add v6, v5, s[26:27]
            s_waitcnt vmcnt(0)''' + '\ns_sleep 127' * 7 + '''
            global_load_dword v5, v6, s[26:27] sc1
            s_waitcnt vmcnt(0)
            v_readfirstlane_b32 s100, v5
            s_lshr_b32 s100, s100, 6
            s_add_u32 s100, s100, s58''')
        else: e('s_sub_u32 s100, s100, s98\ns_lshl_b32 s100, s100, 3\ns_add_u32 s100, s100, s58')
        e(f'''s_add_u32 s100, s100, 6000
        {l}:
        s_sleep 1
        s_memrealtime s[96:97]
        s_waitcnt lgkmcnt(0)
        s_sub_u32 s96, s96, s100
        s_cmp_lt_i32 s96, 0
        s_cbranch_scc1 {l}''')
    if OPT['prof']:
        e(f'''s_memrealtime s[96:97]
        s_waitcnt lgkmcnt(0)
        v_writelane_b32 v{V_PROF}, s96, 31
        v_writelane_b32 v{V_PROF}, s98, 30
        s_lshl_b32 s96, s2, 3
        s_add_u32 s96, s96, s{S_WV}
        s_lshl_b32 s96, s96, 7
        s_add_u32 s96, s96, {WS_PROF}
        v_lshlrev_b32 v{V_T}, 2, v{V_LANE}
        s_mov_b32 exec_hi, 0
        buffer_store_dword v{V_PROF}, v{V_T}, {sr(SRD_WS)}, s96 offen
        s_mov_b64 exec, -1''')

def arrive(stage):
    e(f'v_mov_b32 v{V_T}, {stage}\nds_write_b32 v{V_OWN}, v{V_T}')
def lwait(stage, addr=V_GRP, sleep=0):
    l = lab('lw')
    e(f'{l}:')
    if sleep: e(f's_sleep {sleep}')
    e(f'''ds_read_b32 v{V_T}, v{addr}
    s_waitcnt lgkmcnt(0)
    v_cmp_gt_u32 vcc, {stage}, v{V_T}''')
    if OPT['safe']:
        d = lab('ld')
        e(f'''s_cbranch_vccz {d}
        s_sub_u32 s{S_BOUND}, s{S_BOUND}, 1
        s_cbranch_scc0 {l}
        s_mov_b32 s{S_BOUND}, 0
        {d}:''')
    else:
        e(f's_cbranch_vccnz {l}')
def sync(stage):
    arrive(stage); lwait(stage)
def poll(voff, first_issued=False, sleep=0, reg=V_T):
    l, d, m = lab('pl'), lab('pd'), lab('pm')
    if first_issued == 2:
        e(f's_waitcnt vmcnt(0)\nv_cmp_ne_u32 vcc, s{S_NONCE}, v{reg}\ns_cbranch_vccnz {l}\n{d}:')
        cur = [n for n in SEC if SEC[n] is out][0]
        sec('cold')
        e(f'''{l}:
        buffer_load_dword v{reg}, v{voff}, {sr(SRD_WS)}, 0 offen sc1
        s_waitcnt vmcnt(0)
        v_cmp_ne_u32 vcc, s{S_NONCE}, v{reg}
        s_cbranch_vccz {d}
        s_sub_u32 s{S_BOUND}, s{S_BOUND}, 1
        s_cbranch_scc0 {l}
        s_mov_b32 s{S_BOUND}, 0
        s_branch {d}''')
        sec(cur)
        return
    if first_issued: e(f's_branch {m}')
    e(f'{l}:')
    if sleep: e(f's_sleep {sleep}')
    e(f'''buffer_load_dword v{reg}, v{voff}, {sr(SRD_WS)}, 0 offen sc1
    {m}:
    s_waitcnt vmcnt(0)
    v_cmp_ne_u32 vcc, s{S_NONCE}, v{reg}
    s_cbranch_vccz {d}
    s_sub_u32 s{S_BOUND}, s{S_BOUND}, 1
    s_cbranch_scc0 {l}
    s_mov_b32 s{S_BOUND}, 0
    {d}:''')
def publish(soff, tmp):
    if OPT['fw']:
        e(f'''v_mov_b32 v{V_T}, s{S_NONCE}
        v_lshlrev_b32 v{tmp}, 2, v{V_LANE}
        s_mov_b64 exec, {hex((1 << OPT['fw']) - 1)}
        buffer_store_dword v{V_T}, v{tmp}, {sr(SRD_WS)}, s{soff} offen sc1
        s_mov_b64 exec, -1'''.replace('s_mov_b64 exec, 0xffffffff', 's_mov_b32 exec_hi, 0'))
        return
    e(f'''v_mov_b32 v{V_T}, s{S_NONCE}
    v_mov_b32 v{tmp}, 0
    s_mov_b64 exec, 1
    buffer_store_dword v{V_T}, v{tmp}, {sr(SRD_WS)}, s{soff} offen sc1
    s_mov_b64 exec, -1''')
def swap23(d, s, t):
    e(f'''v_lshrrev_b32 v{t}, 1, v{s}
    v_xor_b32 v{t}, v{t}, v{s}
    v_and_b32 v{t}, 4, v{t}
    v_mul_u32_u24 v{t}, 3, v{t}
    v_xor_b32 v{d}, v{t}, v{s}''')
def rot_next(s):
    e(f's_add_u32 s{s}, s{s}, 1\ns_cmp_eq_u32 s{s}, 7\ns_cselect_b32 s{s}, 0, s{s}')

e(f'''s_cmp_ge_u32 s2, 256
s_cbranch_scc1 L_end''')
if OPT['prof']:
    e(f's_memtime s[{S_T0}:{S_T0+1}]\ns_memrealtime s[98:99]\nv_mov_b32 v{V_PROF}, 0')
if OPT['rd'] >= 0: e('s_memrealtime s[100:101]\ns_memrealtime s[58:59]\ns_memrealtime s[98:99]')
e(f'''s_load_dwordx16 s[4:19], s[0:1], 0
s_load_dwordx8 s[20:27], s[0:1], 64
s_load_dwordx2 s[28:29], s[0:1], 96
v_lshrrev_b32 v{V_OWN}, 6, v0
v_and_b32 v{V_LANE}, 63, v0
v_readfirstlane_b32 s{S_WV}, v{V_OWN}
v_lshlrev_b32 v{V_OWN}, 2, v{V_OWN}
v_mov_b32 v{V_T}, 0
ds_write2_b32 v{V_OWN}, v{V_T}, v{V_T} offset1:8
v_and_b32 v{V_GRP}, 3, v{V_LANE}
v_lshlrev_b32 v{V_GRP}, 2, v{V_GRP}
s_and_b32 s{S_HG}, s2, 1
s_bfe_u32 s60, s2, 0x20001
s_bfe_u32 s{S_C}, s2, 0x30003
s_lshr_b32 s61, s2, 6
s_lshl2_add_u32 s{S_TILE}, s60, s61
s_lshl1_add_u32 s{S_J}, s{S_TILE}, s{S_HG}
s_lshl3_add_u32 s{S_H}, s{S_HG}, s{S_C}
s_and_b32 s{S_W}, s{S_WV}, 3
s_mov_b32 s{S_BOUND}, 0x40000
s_mov_b32 s{S_KS}, {KS}
s_cmp_lt_u32 s{S_WV}, 4
s_cbranch_scc1 L_mha''')

VX = 144; VACC = 96; VWF = 32; VPK = 128
VV, VK, VS, VO, VQ = 32, 64, 96, 160, 224
vWd = [5, 6]; vXd = [7, 8, 9, 10]; vXr = [11, 12, 13, 14]; vWb, vW0, vW1 = 15, 16, 17
vRho, vG, vSt, vQd, vQr, vFl, vA, vB, vC = 18, 19, 20, 21, 22, 23, 24, 25, 26
vKo0, vKo1, vVo, vIdx = 27, 28, 29, 30
sXb, sWb, sCh, sCw, sLx, sTmp, sTmp2, sSt, sS1, sS2, sFl = range(60, 71)
sK, sV, sIt = 71, 72, 73
sFo, sO0, sO1 = 84, 85, 86
vOs, vQw = vRho, vG
vRb = [7, 8, 9]; vQx = [11, 12, 13]; vRr = 10
sMask = 74
sOdd = 76

sec('mha0')
e('L_mha:')
if OPT['prio']: e(f"s_setprio {OPT['pm']}")
e(f'''s_mul_i32 s{S_O0}, s{S_H}, 7
s_lshr_b32 s{S_O0}, s{S_O0}, 1''')
e(f'''v_lshrrev_b32 v{vA}, 3, v{V_LANE}          ; r
v_and_b32 v{vB}, 7, v{V_LANE}                    ; p
v_lshlrev_b32 v{vC}, 1, v{vA}
v_and_b32 v{vC}, 4, v{vC}
v_xor_b32 v{vC}, v{vC}, v{vB}
v_lshlrev_b32 v{vC}, 4, v{vC}
v_mul_u32_u24 v{vWd[0]}, 2688, v{vA}
v_add_u32 v{vWd[0]}, v{vWd[0]}, v{vC}
v_add_u32 v{vWd[1]}, {8*2688-1024}, v{vWd[0]}
v_lshrrev_b32 v{vC}, 1, v{vA}
v_xor_b32 v{vC}, v{vC}, v{vB}
v_lshlrev_b32 v{vC}, 4, v{vC}
v_mul_u32_u24 v{vA}, 896, v{vA}
v_add_u32 v{vXd[0]}, v{vA}, v{vC}
v_xor_b32 v{vC}, 64, v{vC}
v_add_u32 v{vXd[1]}, v{vA}, v{vC}
v_add_u32 v{vXd[1]}, {7168-1024}, v{vXd[1]}
v_add_u32 v{vXd[2]}, {2*(7168-1024)}, v{vXd[0]}
v_add_u32 v{vXd[3]}, {2*(7168-1024)}, v{vXd[1]}
s_lshl2_add_u32 s{sXb}, s{S_TILE}, s{S_W}
s_lshl_b32 s{sFl}, s{S_H}, 6
s_add_u32 s{sFl}, s{sFl}, s{S_TILE if OPT['wgf'] else sXb}
s_lshl_b32 s{sFl}, s{sFl}, {FSH}
s_add_u32 s{sFl}, s{sFl}, {F_KV}
s_mul_i32 s{sXb}, s{sXb}, {32*896}
s_mul_i32 s{sTmp2}, s{S_HG}, 3
s_lshr_b32 s{sTmp}, s2, 6
s_add_u32 s{sTmp2}, s{sTmp2}, s{sTmp}
s_mul_i32 s{sWb}, s{S_HG}, 7
s_add_u32 s{sWb}, s{sWb}, s{S_C}
s_add_u32 s{sWb}, s{sWb}, 7
s_cmp_eq_u32 s{S_C}, 7
s_cselect_b32 s{sWb}, {'s%d' % sTmp2 if OPT['tq'] else '0x100000'}, s{sWb}
s_cselect_b32 s{sS1}, 1, s{S_W}
s_lshl_b32 s{sWb}, s{sWb}, 7
s_mul_i32 s{sTmp}, s{S_W}, {16*2688}
s_add_u32 s{sWb}, s{sWb}, s{sTmp}
s_mul_i32 s{sLx}, s{S_W}, 12288
s_add_u32 s{sLx}, s{sLx}, {L_X}
s_lshl_b32 s{sS1}, s{sS1}, 11
s_add_u32 s{sS1}, s{sS1}, {L_W}
s_mov_b32 s{SRD_A+2}, {2048*896}
s_mov_b32 s{SRD_A+3}, 0x20000
s_mov_b32 s{SRD_B+2}, {448*1344*2}
s_mov_b32 s{SRD_B+3}, 0x20000
s_mov_b32 m0, s{sLx}
s_waitcnt lgkmcnt(0)
s_mov_b64 s[{SRD_A}:{SRD_A+1}], s[18:19]
s_mov_b64 s[{SRD_B}:{SRD_B+1}], s[20:21]
s_load_dword s{S_NONCE}, s[28:29], 0''')
stamp(22)
sWo = 88
def w_lines(st):
    return [f's_add_u32 m0, s{sS1}, {8192*st}', f's_add_u32 s{sWo+st}, s{sWb}, {64*2688*st}'] + \
           [f'buffer_load_dwordx4 v{vWd[i]}, {sr(SRD_B)}, s{sWo+st} offen offset:{1024*i} lds' for i in range(2)]
def x_chunk(st):
    return [f's_add_u32 m0, s{sLx}, {(st%3)*4096 - 128*st}', 's_nop 0'] + \
           [f'buffer_load_dwordx4 v{vXd[i]}, {sr(SRD_A)}, s{sXb} offen offset:{1024*i + 128*st} lds' for i in range(4)]
DM = []
for l in [x_chunk(0), w_lines(0)] + [w_lines(i) for i in range(1, 7)] + [x_chunk(1), x_chunk(2)]:
    DM += [l[:3]] + [[x] for x in l[3:]]
DM[0] = DM[0][2:]
for i, g in enumerate(DM[:OPT['n0']]):
    if i == OPT['nb']:
        e(f's_cmp_lg_u32 s{S_C}, 7\ns_cbranch_scc1 L_bar0\ns_waitcnt lgkmcnt(0)\nL_bar0:\ns_barrier'); stamp(23)
        if OPT['only'] == 1: e('s_endpgm')
    e('\n'.join(g))
DM = DM[OPT['n0']:]
stamp(24)
if OPT['ord'] not in (1, 3, 4, 5): e('s_branch L_mha1')
sec('mha')
e('L_mha1:')
stamp(25)
sec('tmp')
srd(SRD_WS, 28, WS_SIZE)
ONES = f'''s_bitcmp1_b32 s{S_H}, 0
s_cselect_b32 s{sTmp}, 0, 7
v_cmp_eq_u32 vcc, s{sTmp}, v{vA}
s_lshl_b32 s{sTmp}, s{S_O0}, 1
s_sub_u32 s{sTmp}, s{S_HG}, s{sTmp}
s_add_u32 s{sTmp}, s{sTmp}, 112
v_mov_b32 v{vB}, s{sTmp}
v_cndmask_b32 v{vA}, v{vA}, v{vB}, vcc
''' if OPT['ones'] else ''
FIX = f'v_cmp_lt_u32 vcc, 7, v{vB}\n'
FOM = f'''s_lshl_b32 s{sFo}, s{sTmp2}, 4
s_add_u32 s{sFo}, s{sFo}, s{S_H}
s_lshl_b32 s{sFo}, s{sFo}, {FSH}
s_add_u32 s{sFo}, s{sFo}, {F_O}
''' if OPT['omode'] != 3 else ''
e(f'''v_and_b32 v{vA}, 31, v{V_LANE}
v_lshrrev_b32 v{vG}, 5, v{V_LANE}''')
swap23(vRho, vA, vB)
e(f'''v_bfe_u32 v{vB}, v{vRho}, 1, 3
v_xor_b32 v{vB}, v{vB}, v{vG}
v_lshlrev_b32 v{vB}, 4, v{vB}
v_lshl_add_u32 v{vB}, v{vRho}, 7, v{vB}
v_add_u32 v{vXr[0]}, s{sLx}, v{vB}
v_xor_b32 v{vXr[1]}, 32, v{vXr[0]}
v_xor_b32 v{vXr[2]}, 64, v{vXr[0]}
v_xor_b32 v{vXr[3]}, 0x60, v{vXr[0]}
v_and_b32 v{vB}, 3, v{V_LANE}                     ; cc
v_lshrrev_b32 v{vC}, 1, v{vB}
v_and_b32 v{vQd}, 1, v{vB}
v_lshl_or_b32 v{vC}, v{vQd}, 1, v{vC}
v_bfe_u32 v{vQd}, v{V_LANE}, 4, 1
v_lshl_or_b32 v{vB}, v{vQd}, 2, v{vB}              ; mq natural
v_lshl_or_b32 v{vC}, v{vQd}, 2, v{vC}
v_bfe_u32 v{vQd}, v{V_LANE}, 2, 2                  ; r'
v_lshl_or_b32 v{vFl}, v{vG}, 3, v{vQd}             ; 8g + r'
v_lshlrev_b32 v{vQr}, 6, v{vFl}
v_lshl_add_u32 v{vQr}, v{vC}, 3, v{vQr}
v_add_u32 v{vQr}, {L_X + 4096}, v{vQr}
s_cmp_eq_u32 s{S_HG}, 0
s_cselect_b64 vcc, -1, 0
v_cndmask_b32 v{vB}, v{vB}, v{vC}, vcc             ; K slabs use the exchanged order, V slabs the natural one
v_lshlrev_b32 v{vWb}, 7, v{vFl}
v_lshl_add_u32 v{vWb}, v{vB}, 3, v{vWb}
v_lshrrev_b32 v{vQd}, 1, v{vQd}
v_lshl_add_u32 v{vWb}, v{vQd}, 6, v{vWb}
v_add_u32 v{vW0}, {L_W}, v{vWb}
v_lshlrev_b32 v{vB}, 4, v{vRho}
v_mad_u32_u24 v{vB}, v{vG}, s{S_KS}, v{vB}
v_lshrrev_b32 v{vC}, 2, v{vA}
v_mul_u32_u24 v{vC}, {QS}, v{vC}
v_lshl_add_u32 v{vC}, v{vG}, 6, v{vC}
v_and_b32 v{vQd}, 3, v{vA}
v_lshl_add_u32 v{vC}, v{vQd}, 4, v{vC}
v_cndmask_b32 v{vSt}, v{vC}, v{vB}, vcc
s_lshl2_add_u32 s{sTmp}, s{S_TILE}, s{S_W}
s_lshl_b32 s{sTmp2}, s{sTmp}, 9
s_add_u32 s{sTmp2}, s{sTmp2}, {WS_K}
s_lshl_b32 s{sTmp}, s{sTmp}, 8
s_add_u32 s{sTmp}, s{sTmp}, {WS_V}
s_movk_i32 s{sS2}, 128
s_cmp_eq_u32 s{S_HG}, 0
s_cselect_b32 s{sSt}, s{sTmp2}, s{sTmp}
s_cselect_b32 s{sS2}, {2*KS}, s{sS2}
s_mul_i32 s{sTmp}, s{S_C}, {8*KS}
s_add_u32 s{sSt}, s{sSt}, s{sTmp}
v_lshrrev_b32 v{vB}, 2, v{V_LANE}
v_mul_u32_u24 v{vB}, 2688, v{vB}
v_lshl_add_u32 v{vQd}, v{vQd}, 4, v{vB}
s_lshl_b32 s82, s{S_O0}, 4
s_mul_i32 s{sTmp}, s{S_W}, {16*2688}
s_add_u32 s82, s82, s{sTmp}
s_lshr_b32 s{sTmp}, s{S_O0}, 3
s_add_u32 s{sTmp2}, s{S_O0}, 3
s_lshr_b32 s{sTmp2}, s{sTmp2}, 3
s_sub_u32 s{sTmp2}, s{sTmp2}, s{sTmp}
v_bfe_u32 v{vC}, v{V_LANE}, 4, 1
v_mul_u32_u24 v{vC}, s{sTmp2}, v{vC}
v_lshl_add_u32 v{vC}, v{vG}, 3, v{vC}
v_add_u32 v{vC}, s{sTmp}, v{vC}
v_and_b32 v{vB}, 15, v{V_LANE}
{FIX}v_and_b32 v{vB}, {3 if OPT['wgf'] else 15}, v{V_LANE}
v_lshl_add_u32 v{vC}, v{vC}, 6, v{vB}
s_lshl_b32 s{sTmp}, s{S_W}, {2 if OPT['wgf'] else 4}
v_add_u32 v{vC}, s{sTmp}, v{vC}
v_lshlrev_b32 v{vC}, {FSH}, v{vC}
v_add_u32 v{vFl}, {F_KV}, v{vC}
s_lshl3_add_u32 s{sTmp}, s{S_W}, s{S_HG}
s_mul_i32 s{sTmp}, s{sTmp}, {US}
s_add_u32 s{sTmp}, s{sTmp}, {F_U}
v_mul_u32_u24 v{vB}, {2*US}, v{vB}
v_add_u32 v{vB}, s{sTmp}, v{vB}
v_cndmask_b32 v{vFl}, v{vFl}, v{vB}, vcc
v_lshlrev_b32 v{vKo0}, 4, v{vA}
v_mad_u32_u24 v{vKo0}, v{vG}, s{S_KS}, v{vKo0}
v_add_u32 v{vKo1}, {2*KS}, v{vKo0}
v_lshrrev_b32 v{vA}, 2, v{vRho}
{ONES}v_mul_u32_u24 v{vA}, {QS}, v{vA}
v_lshl_add_u32 v{vA}, v{vG}, 6, v{vA}
v_and_b32 v{vB}, 3, v{V_LANE}
v_lshl_add_u32 v{vVo}, v{vB}, 4, v{vA}
v_mov_b32 v{vIdx}, 0xdddddddd
s_mul_i32 s{sTmp}, s{S_O0}, {KS}
s_lshl_b32 s{sK}, s{S_W}, 13
s_add_u32 s{sK}, s{sK}, s{sTmp}
s_add_u32 s{sK}, s{sK}, {WS_K}
s_lshl_b32 s{sV}, s{S_W}, 12
s_add_u32 s{sV}, s{sV}, s{sTmp}
s_add_u32 s{sV}, s{sV}, {WS_V}
s_lshl2_add_u32 s{sTmp2}, s{S_TILE}, s{S_W}
{FOM}s_lshl_b32 s{sTmp2}, s{sTmp2}, 9
s_add_u32 s{sO0}, s{sTmp}, s{sTmp2}
s_add_u32 s{sO0}, s{sO0}, {WS_O}
s_add_u32 s{sO1}, s{sO0}, {2*KS}
s_bitcmp1_b32 s{S_H}, 0
s_cselect_b64 s[{sOdd}:{sOdd+1}], -1, 0
; per-lane multipliers for Q: scale*log2(e), zero on the four slots that belong to the neighbour head
v_mov_b32 v{vC}, 0x3e8b97f6
v_cmp_gt_u32 vcc, 32, v{V_LANE}
s_and_b64 s[78:79], vcc, s[{sOdd}:{sOdd+1}]
s_nor_b64 s[80:81], vcc, s[{sOdd}:{sOdd+1}]
v_cndmask_b32 v{vA}, v{vC}, 0, s[78:79]
v_cndmask_b32 v{vB}, v{vC}, 0, s[80:81]
s_mov_b32 s78, 0x3f803f80
s_mov_b32 s79, s78
v_xor_b32 v{vW1}, 64, v{vW0}
v_lshlrev_b32 v{vOs}, 4, v{vRho}
v_mad_u32_u24 v{vOs}, v{vG}, s{S_KS}, v{vOs}
v_lshl_add_u32 v{vQw}, v{V_LANE}, 4, s{sLx}''')
srd(SRD_C, 28, WS_SIZE)
def o_stores(r0, r1, tag):
    e(f'''s_bitcmp1_b32 s{S_H}, 0
    s_cbranch_scc1 L_ost_odd{tag}
    buffer_store_dwordx4 {vr(r0,4)}, v{vOs}, {sr(SRD_WS)}, s{sO0} offen sc1
    s_mov_b32 exec_hi, 0
    buffer_store_dwordx4 {vr(r1,4)}, v{vOs}, {sr(SRD_WS)}, s{sO1} offen sc1
    s_not_b64 exec, exec
    buffer_store_dwordx2 {vr(r1,2)}, v{vOs}, {sr(SRD_WS)}, s{sO1} offen sc1
    s_branch L_ost_done{tag}
    L_ost_odd{tag}:
    buffer_store_dwordx4 {vr(r1,4)}, v{vOs}, {sr(SRD_WS)}, s{sO1} offen sc1
    s_mov_b32 exec_hi, 0
    buffer_store_dwordx2 {vr(r0+2,2)}, v{vOs}, {sr(SRD_WS)}, s{sO0} offen offset:8 sc1
    s_not_b64 exec, exec
    buffer_store_dwordx4 {vr(r0,4)}, v{vOs}, {sr(SRD_WS)}, s{sO0} offen sc1
    L_ost_done{tag}:
    s_mov_b64 exec, -1''')
GS = 0
AB = [l for l in SEC.pop('tmp') if not l.strip().startswith(';')]
sec('mha')
def scc_pending(i):
    return i < len(AB) and AB[i].strip().startswith(('s_cselect', 's_mov_b32 s75'))
pos = 0
for g in DM:
    n = pos + OPT['ilv']
    while scc_pending(n): n += 1
    e('\n'.join(AB[pos:n])); pos = n
    e('\n'.join(g))
e('\n'.join(AB[pos:]))
stamp(0)
def x_reads(s):
    return [f'ds_read_b128 {vr(VX + 16*s + 4*ks, 4)}, v{vXr[ks]} offset:{(s%3)*4096}' for ks in range(4)]
e('s_waitcnt vmcnt(22)')
e('\n'.join(x_reads(0)))
e('s_waitcnt vmcnt(8) lgkmcnt(0)')
arrive(1)
stamp(1)
e('\n'.join(x_chunk(3)))
e('s_waitcnt vmcnt(8)')
e('\n'.join(x_reads(1)))
lwait(1)
if OPT['fwm'] & 2:
    e(f'''v_mov_b32 v{V_T}, s{S_NONCE}
    v_lshlrev_b32 v31, 2, v{V_LANE}
    s_mov_b32 exec_hi, 0
    buffer_store_dword v{V_T}, v31, {sr(SRD_WS)}, s{sFl} offen sc1
    s_mov_b64 exec, -1''')
e(f's_add_u32 s{S_NONCE}, s{S_NONCE}, 1')
stamp(2)
def w_reads(s):
    r = []
    for ks in range(4):
        for ct in range(2):
            for hf in range(2):
                d = VWF + 32 * (s & 1) + 8 * ks + 4 * ct + 2 * hf
                r.append(f'ds_read_b64_tr_b16 {vr(d,2)}, v{(vW0, vW1)[ct]} offset:{s*8192 + ks*2048 + hf*512}')
    return r
if OPT['tskip']: e(f's_cmp_eq_u32 s{S_C}, 7\ns_cbranch_scc1 L_gemm_t')
e('\n'.join(w_reads(0)))
e(f'''s_waitcnt lgkmcnt(0)
s_cmp_lg_u32 s{S_HG}, 0
s_cbranch_scc1 L_gemm_v''')
sQb, sQc = 82, 83
NE = OPT['wq_early']
def wq_dma(st):
    return [f's_add_u32 m0, s{sLx}, {4096 + 1024*st}\ns_add_u32 s83, s82, {64*2688*st}', '', f'buffer_load_dwordx4 v{vQd}, {sr(SRD_B)}, s83 offen lds']
SPIN = []
def gemm1(vpart):
    for s in range(7):
        M = []
        for ks in range(4):
            for ct in range(2):
                wf = vr(VWF + 32 * (s & 1) + 8 * ks + 4 * ct, 4); xf = vr(VX + 16 * s + 4 * ks, 4)
                acc = vr(VACC + 16 * ct, 16)
                a, b = (xf, wf) if vpart else (wf, xf)
                M.append(f'v_mfma_f32_32x32x16_bf16 {acc}, {a}, {b}, {"0" if s == 0 and ks == 0 else acc}')
        gaps = [[] for _ in range(8)]
        tag = f'{"v" if vpart else "k"}{s}'
        pre = []
        dm = []
        def add(l): dm.extend([(l[0], l[2])] + [(None, x) for x in l[3:]])
        if s <= 2: add(x_chunk(s + 4))
        if s == 3:
            for i in range(min(NE, 4)): add(wq_dma(i))
        if s == 4:
            for i in range(4, NE): add(wq_dma(i))
        FW = 1 if OPT['fwm'] & 2 else 0
        n = {0: 8 + FW, 1: 8 + FW, 2: 8, 3: 4 + min(NE, 4), 4: NE}.get(s)
        for i, (m, l) in enumerate(dm):
            if m: (pre if i == 0 else gaps[i - 1]).append(m)
            gaps[i].append(l)
        if s < 6:
            wr = w_reads(s + 1)
            for i, (p, q) in enumerate(((0, 3), (3, 6), (6, 9), (9, 12), (12, 16))): gaps[i] += wr[p:q]
            if s <= 4: gaps[OPT['xg']] += [f's_waitcnt vmcnt({n})'] + x_reads(s + 2)
            gaps[7] += [f's_waitcnt lgkmcnt({4 if s == 4 and OPT["s6"] != 4 else 0})']
        if s == OPT['s6'] and (OPT['uw'] == 6 or OPT['cw'] == 6): gaps[6] += [f'v_mov_b32 v{V_T}, 6', f'ds_write_b32 v{V_OWN}, v{V_T}']
        if s == 5:
            gaps[7] += [f'v_add_u32 v31, 16, v{V_GRP}', f'ds_read_b32 v31, v31']
        if s == 6 and NE == 7:
            gaps[OPT['qa']] += ['s_waitcnt vmcnt(0)', f'v_mov_b32 v{V_T}, 7', f'ds_write_b32 v{V_OWN}, v{V_T}']
        e('\n'.join(pre))
        if OPT['gx'] & 1 or vpart == 2: M = ['s_nop 0'] * 8
        if OPT['gx'] & 2 or vpart == 2: gaps = [[x for x in g if 'tr_b16' not in x] for g in gaps]
        for i in range(8):
            e(M[i]); e('\n'.join(gaps[i]))
        stamp(14 + s)
if OPT['tskip']:
    sec('gt'); e('L_gemm_t:'); gemm1(2); e('s_branch L_gemm_done'); sec('mha')
else: SEC['gt'] = []
gemm1(False)
e('s_branch L_gemm_done\nL_gemm_v:')
gemm1(True)
e('L_gemm_done:')
stamp(3)
e(f"""s_add_u32 s{sS1}, s{sSt}, s{sS2}
s_add_u32 s{sXb}, s{sSt}, {4*KS}
s_add_u32 s{sCw}, s{sS1}, {4*KS}
s_cmp_eq_u32 s{S_C}, 7
s_waitcnt lgkmcnt(0)
s_cbranch_scc1 L_nokv""")
PWS = 3 if OPT['pw'] else 1
e(f'v_cmp_gt_u32 vcc, {PWS}, v31\ns_cbranch_vccz L_eok\nv_add_u32 v31, 16, v{V_GRP}')
lwait(PWS, addr=31)
e('L_eok:\ns_nop 2')
for q, so in enumerate((sSt, sS1, sXb, sCw)):
    for i in range(4*q, 4*q+4):
        e(f'v_cvt_pk_bf16_f32 v{VPK + i}, v{VACC + 2*i}, v{VACC + 2*i + 1}')
    e(f'buffer_store_dwordx4 {vr(VPK+4*q,4)}, v{vSt}, {sr(SRD_WS)}, s{so} offen sc1')
e('L_nokv:')
assert OPT['wgf'] and OPT['ones'] and OPT['pf'] == 2
def kv_loads(buf, i, srdn=SRD_C):
    return [f'buffer_load_dwordx4 {vr(VK + 8*buf, 4)}, v{vKo0}, {sr(srdn)}, s{sK} offen offset:{512*i} sc1',
            f'buffer_load_dwordx4 {vr(VK + 8*buf + 4, 4)}, v{vKo1}, {sr(srdn)}, s{sK} offen offset:{512*i} sc1',
            f'buffer_load_dwordx4 {vr(VV + 8*buf, 4)}, v{vVo}, {sr(srdn)}, s{sV} offen offset:{256*i} sc1',
            f'buffer_load_dwordx4 {vr(VV + 8*buf + 4, 4)}, v{vVo}, {sr(srdn)}, s{sV} offen offset:{256*i + 128} sc1']
fill = [f'v_mov_b64 {vr(VV+2*i,2)}, s[78:79]' for i in range(12, 16)] + [f'v_subrev_u32 v{vRr}, {L_X - L_RB}, v{vQw}', 's_mov_b64 s[80:81], -1']
for s in range(3):
    fill += f"""s_add_u32 s{sTmp}, s{S_W}, {1+s}
    s_and_b32 s{sTmp}, s{sTmp}, 3
    s_sub_u32 s{sTmp}, s{sTmp}, s{S_W}
    s_mul_i32 s{sTmp}, s{sTmp}, 12288
    v_add_u32 v{vQx[s]}, s{sTmp}, v{vQw}
    v_subrev_u32 v{vRb[s]}, {L_X - L_RB - 4096*s}, v{vQx[s]}""".split('\n')
def count_in(n):
    e(f"""v_mov_b32 v{V_T}, 1
    v_mov_b32 v31, 0
    s_waitcnt vmcnt({n})
    s_mov_b64 exec, 1
    ds_add_rtn_u32 v{vSt}, v31, v{V_T} offset:32
    s_mov_b64 exec, -1""")
def count_out(n):
    e(f's_waitcnt lgkmcnt({n})\nv_readfirstlane_b32 s{sTmp2}, v{vSt}\ns_cmp_lg_u32 s{sTmp2}, 3\ns_cbranch_scc1 L_nopub')
    publish(sFl, 31)
    e('L_nopub:'); stamp(5)
NM = max(NE, OPT['wq_mid'])
for st in range(NE, NM): e('\n'.join(wq_dma(st)))
stamp(4)
if NE < 7:
    e('\n'.join(fill)); fill = []
    count_in(NM - NE)
    if NM == 7:
        e('s_waitcnt vmcnt(0)'); arrive(7); count_out(1)
    else:
        count_out(0)
        for st in range(NM, 7): e('\n'.join(wq_dma(st)))
        e('s_waitcnt vmcnt(0)'); arrive(7)
lwait(7)
stamp(6)
QB = [80, 84, 88, 92, 112, 116, 120, 124]
def q_reads(k):
    s, ks = divmod(k, 4)
    return [f'ds_read_b64_tr_b16 {vr(QB[k%8] + 2*hf, 2)}, v{vQr} offset:{ks*12288 + s*1024 + hf*256}' for hf in range(2)]
for k in range(6): e('\n'.join(q_reads(k)))
e('\n'.join(fill[:12])); fill = fill[12:]
zi = 0
PK = OPT['pubk'] if NE == 7 else -99
for k in range(28):
    extra = 1 if PK < k <= PK + 5 else 0
    e(f's_waitcnt lgkmcnt({min(10, 2*(27-k)) + extra})')
    e(f'v_mfma_f32_32x32x16_bf16 {vr(VACC,16)}, {vr(QB[k%8], 4)}, {vr(VX + 4*k, 4)}, {"0" if k == 0 else vr(VACC,16)}')
    if k + 6 < 28: e('\n'.join(q_reads(k + 6)))
    while zi < 40 and VX + 2*zi + 1 < VX + 4*k - 4 and zi < 2*k:
        e(f'v_mov_b64 {vr(VX + 2*zi, 2)}, 0'); zi += 1
    if k >= 22 or k < 2:
        e('\n'.join(fill[:4])); fill = fill[4:]
    if k == PK: count_in(0)
    if k == PK + OPT['wgf']: count_out(2*OPT['wgf'])
    if k == OPT['pollk']: e(f'buffer_load_dword v31, v{vFl}, {sr(SRD_WS)}, 0 offen sc1')
    if k == OPT['chkk']:
        e(f's_waitcnt vmcnt(0)\nv_cmp_ne_u32 vcc, s{S_NONCE}, v31\ns_mov_b64 s[80:81], vcc\ns_cbranch_vccnz L_kv_late')
        for t in range(2): e('\n'.join(kv_loads(t, t)))
        e('L_kv_late:')
assert zi == 40 and VX == VS + 48 and not fill
stamp(7)
e('s_nop 11')
for r in range(16):
    m = vA if r < 4 else (vB if r >= 12 else vC)
    e(f'v_mul_f32 v{VACC + r}, v{m}, v{VACC + r}')
for i in range(8):
    e(f'v_cvt_pk_bf16_f32 v{VQ + 24 + i}, v{VACC + 2*i}, v{VACC + 2*i + 1}')
e(f"""ds_write_b128 v{vQw}, {vr(VQ+24,4)}
ds_write_b128 v{vQw}, {vr(VQ+28,4)} offset:1024""")
arrive(8)
lwait(8)
for s in range(3):
    e(f'ds_read_b128 {vr(VQ+8*s,4)}, v{vQx[s]}\nds_read_b128 {vr(VQ+8*s+4,4)}, v{vQx[s]} offset:1024')
PF = OPT['pf']
if OPT['chkk'] < 28: e('s_cmp_eq_u64 s[80:81], 0\ns_cbranch_scc1 L_kv_done')
poll(vFl, first_issued=OPT['pollk'] < 28 and OPT['chkk'] > 27, reg=31, sleep=OPT['ksleep'])
for t in range(PF): e('\n'.join(kv_loads(t, t)))
e('L_kv_done:')
stamp(8)
OM = OPT['omode']
if OM:
    e(f'''s_lshr_b32 s{sTmp}, s{S_O0}, 3
    s_add_u32 s{sTmp2}, s{S_O0}, 3
    s_lshr_b32 s{sTmp2}, s{sTmp2}, 3
    s_sub_u32 s{sTmp2}, s{sTmp2}, s{sTmp}
    s_lshl_b32 s{sTmp2}, s{sTmp2}, 6
    s_lshl_b32 s{sTmp}, s{sTmp}, 6
    s_lshl2_add_u32 s{sSt}, s{S_TILE}, s{S_W}
    s_add_u32 s{sTmp}, s{sTmp}, s{sSt}
    s_lshl_b32 s{sTmp}, s{sTmp}, {FSH}
    s_add_u32 s{sTmp}, s{sTmp}, {F_Y}
    v_and_b32 v{vFl}, 1, v{V_LANE}
    v_mul_u32_u24 v{vFl}, s{sTmp2}, v{vFl}
    v_and_b32 v31, 2, v{V_LANE}
    v_lshl_add_u32 v{vFl}, v31, 8, v{vFl}
    v_lshl_add_u32 v{vFl}, v{vFl}, {FSH}, s{sTmp}''')
def qk(buf, slot, js):
    d = vr(VS + 16*slot, 16)
    return f'v_mfma_f32_32x32x16_bf16 {d}, {vr(VK + 8*buf + 4*js, 4)}, {vr(VQ + 8*slot + 4*js, 4)}, {"0" if js == 0 else d}'
def pv(buf, slot, js):
    return f'v_smfmac_f32_32x32x32_bf16 {vr(VO + 16*slot, 16)}, {vr(VV + 8*buf + 4*js, 4)}, {vr(VS + 16*slot + 8*js, 8)}, v{vIdx}'
def exps(s): return [f'v_exp_f32 v{VS + 16*s + r}, v{VS + 16*s + r}' for r in range(16)]
SPREAD = []
def unit(t, s):
    ex = exps(s)
    if OPT['ax'] & 16 and s in (0, 1, 2):
        pass
    nb = t if s < 3 else (t + 1) & 3
    pb = t if s > 0 else (t - 1) & 3
    if s == 3: e(f's_waitcnt vmcnt({4*PF-4})')
    e(qk(nb, (s+1) & 3, 0)); e('\n'.join(ex[0:4]))
    e(qk(nb, (s+1) & 3, 1)); e('\n'.join(ex[4:8]))
    e(pv(pb, (s-1) & 3, 0))
    if s == 1:
        kl = kv_loads((t + PF) & 3, t + PF)
        if OPT['ax'] & 1: kl = [x for x in kl if 'exec' not in x]
        if OPT['ax'] & 2: kl = [x for x in kl if 'buffer' not in x]
        if OPT['ax'] & 4: kl = [x.replace(' sc1', '') for x in kl]
        if OPT['ax'] & 8: SPREAD.extend(kl); kl = []
        e('\n'.join(kl))
        if t == 3 - PF:
            e(f's_cmp_eq_u32 s{sIt}, 3\ns_cselect_b32 s{SRD_C+2}, 0, s{SRD_C+2}')
        if t == 3:
            e(f's_add_u32 s{sK}, s{sK}, 2048\ns_add_u32 s{sV}, s{sV}, 1024\ns_add_u32 s{sIt}, s{sIt}, 1\ns_cmp_lg_u32 s{sIt}, 4')
    e('\n'.join(ex[8:12]))
    e(pv(pb, (s-1) & 3, 1)); e('\n'.join(ex[12:16]))
e(f's_mov_b32 s{sIt}, 0\ns_waitcnt vmcnt({4*PF - 4}) lgkmcnt(0)')
stamp(9)
e(qk(0, 0, 0)); e(qk(0, 0, 1))
e(f"s_setprio {OPT['pa']}\ns_nop 8\ns_branch L_att_in" if OPT['prio'] else 's_nop 9\ns_branch L_att_in')
e('L_att:')
unit(3, 2); unit(3, 3)
e('L_att_in:')
for t in range(4):
    for s in range(4):
        if (t, s) < (3, 2): unit(t, s)
e('s_cbranch_scc1 L_att')
if OPT['prio']: e(f"s_setprio {OPT['pm']}")
if OM: e(f'buffer_load_dword v31, v{vFl}, {sr(SRD_WS)}, 0 offen sc1')
def rbw(s): return [f'ds_write_b128 v{vRb[s]}, {vr(VO + 16*s + 4*i, 4)} offset:{1024*i}' for i in range(4)]
ex = exps(2); w0 = rbw(0)
e(qk(3, 3, 0)); e('\n'.join(ex[0:4])); e(qk(3, 3, 1)); e('\n'.join(ex[4:7] + [w0[0]]))
e(pv(3, 1, 0)); e('\n'.join(ex[7:10] + [w0[1]])); e(pv(3, 1, 1)); e('\n'.join(ex[10:13] + [w0[2]] + ex[13:16] + [w0[3]]))
ex = exps(3); w1 = rbw(1); w2 = rbw(2)
e(pv(3, 2, 0)); e('\n'.join(ex[0:3])); e(pv(3, 2, 1))
e('\n'.join([w1[0]] + ex[3:5] + [w1[1]] + ex[5:7] + [w1[2]] + ex[7:9] + [w1[3]] + ex[9:10]))
e(pv(3, 3, 0))
e('\n'.join([w2[0]] + ex[10:12] + [w2[1]] + ex[12:14] + [w2[2]] + ex[14:16] + [w2[3]]))
arrive(9)
e(pv(3, 3, 1))
stamp(10)
lwait(9)
for i in range(12): e(f'ds_read_b128 {vr(VS + 4*i, 4)}, v{vRr} offset:{1024*i}')
OA = VO + 48
for s in range(3):
    e(f's_waitcnt lgkmcnt({8 - 4*s})')
    for i in range(8): e(f'v_pk_add_f32 {vr(OA+2*i,2)}, {vr(OA+2*i,2)}, {vr(VS+16*s+2*i,2)}')
e(f's_mov_b32 s{sIt}, {1 if OPT["force_fb"] else 0}')
e(f'''L_norm:
v_cndmask_b32 v{vA}, v{OA+12}, v{OA}, s[{sOdd}:{sOdd+1}]
v_max3_f32 v{vC}, abs(v{OA}), abs(v{OA+1}), abs(v{OA+2})
v_mov_b32 v{vB}, v{vA}
v_max3_f32 v{vC}, abs(v{OA+3}), abs(v{OA+4}), v{vC}
v_max3_f32 v{vC}, abs(v{OA+5}), abs(v{OA+6}), v{vC}
v_permlane32_swap_b32 v{vA}, v{vB}
v_max3_f32 v{vC}, abs(v{OA+7}), abs(v{OA+8}), v{vC}
v_cndmask_b32 v{vB}, v{vB}, v{vA}, s[{sOdd}:{sOdd+1}]
v_max3_f32 v{vC}, abs(v{OA+9}), abs(v{OA+10}), v{vC}
v_rcp_f32 v{vA}, v{vB}
v_max3_f32 v{vC}, abs(v{OA+11}), abs(v{OA+12}), v{vC}
v_max3_f32 v{vC}, abs(v{OA+13}), abs(v{OA+14}), v{vC}
v_max_f32 v{vC}, abs(v{OA+15}), v{vC}
v_cmp_nle_f32 vcc, 0x30800000, v{vB}
s_mov_b64 s[78:79], vcc
v_cmp_nge_f32 vcc, 0x4e800000, v{vB}
s_or_b64 s[78:79], s[78:79], vcc
v_cmp_ngt_f32 vcc, 0x7f000000, v{vC}
s_or_b64 vcc, s[78:79], vcc''')
if OPT['force_fb']:
    e(f's_cmp_eq_u32 s{sIt}, 1\ns_cbranch_scc1 L_fb')
e('s_cbranch_vccnz L_fb0\nL_norm2:')
for i in range(8): e(f'v_pk_mul_f32 {vr(OA+2*i,2)}, {vr(OA+2*i,2)}, {vr(vA,2)} op_sel_hi:[1,0]')
for i in range(8): e(f'v_cvt_pk_bf16_f32 v{VS+i}, v{OA+2*i}, v{OA+2*i+1}')
if OM: poll(vFl, first_issued=2, reg=31)
o_stores(VS, VS + 4, '')
stamp(11)
if OM == 4: publish(sFo, vA)
if OPT['obar'] == 1: e('s_barrier')
if OPT['obar'] >= 3: e(f"s_waitcnt vmcnt({5 - OPT['obar'] + (OM == 4)})\ns_barrier")
if OM == 0:
    e('s_waitcnt vmcnt(0)'); publish(sFo, vA)
if OPT['obar'] == 2: e('s_barrier')
stamp(12)
prof_out()
e('s_endpgm')

for tag, st in SPIN:
    e(f'L_ws_{tag}:'); lwait(st); e(f's_branch L_wb_{tag}')
sec('fb')
e(f'''L_fb0:
s_cmp_eq_u32 s{sIt}, 2
s_cbranch_scc1 L_norm2
L_fb:
s_waitcnt vmcnt(0)
s_mul_i32 s{sTmp}, s{S_O0}, {KS}
s_add_u32 s{sK}, s{sTmp}, {WS_K}
s_add_u32 s{sV}, s{sTmp}, {WS_V}
v_mov_b32 v{vC}, 0xff800000
s_mov_b32 s{sIt}, 0
L_fb1:''')
e('\n'.join(kv_loads(0, 0, SRD_WS)[:2]))
e('s_waitcnt vmcnt(0)')
e(qk(0, 3, 0)); e(qk(0, 3, 1)); e('s_nop 11')
for i in range(8): e(f'v_max3_f32 v{vC}, v{VS+48+2*i}, v{VS+49+2*i}, v{vC}')
e(f'''s_add_u32 s{sK}, s{sK}, 512
s_add_u32 s{sIt}, s{sIt}, 1
s_cmp_lg_u32 s{sIt}, 64
s_cbranch_scc1 L_fb1
v_mov_b32 v{vA}, v{vC}
s_sub_u32 s{sK}, s{sK}, 0x8000
s_mov_b32 s{sIt}, 0
v_permlane32_swap_b32 v{vA}, v{vC}
v_max_f32 v{vC}, v{vA}, v{vC}''')
for i in range(8): e(f'v_mov_b64 {vr(OA+2*i,2)}, 0')
e('L_fb2:')
e('\n'.join(kv_loads(0, 0, SRD_WS)))
e('s_waitcnt vmcnt(0)')
e(qk(0, 3, 0)); e(qk(0, 3, 1)); e('s_nop 11')
for i in range(16): e(f'v_sub_f32 v{VS+48+i}, v{VS+48+i}, v{vC}')
for i in range(16): e(f'v_exp_f32 v{VS+48+i}, v{VS+48+i}')
e('s_nop 1')
e(pv(0, 3, 0)); e(pv(0, 3, 1))
e(f'''s_add_u32 s{sK}, s{sK}, 512
s_add_u32 s{sV}, s{sV}, 256
s_add_u32 s{sIt}, s{sIt}, 1
s_cmp_lg_u32 s{sIt}, 64
s_cbranch_scc1 L_fb2
s_mov_b32 s{sIt}, 2
s_nop 11
s_branch L_norm''')

sD0, sD, sHw, sDs, sTab, sA, sB, sLd, sSk, sIt2, sFlU, sInv, sUns, sSel, sUl, sOl, sCh0 = range(60, 77)
sUs, sOut, sHm = 78, 80, 82
sE2, sP, sE3, sKd = 84, 85, 86, 87
OUTM = 'sc1' if OPT['outsc'] & 1 else ''
OUTM2 = 'sc1' if OPT['outsc'] & 2 else ''
a0, a1, a2, a3 = 5, 6, 7, 9
vPar = 10
vKc = 18
vRa, vRb_, vKd, vKd1, vKa, vKa0, vFu, vE1, vE1b, vFr, vKxo, vKxp, vPair, vRz, vBk, vA0, vA1, vKb, vSB, vSB0 = range(20, 40)
vSel = 180
vAc = 40
vOne, vScl, vAdd, vC0 = range(56, 60)
vOp = 64
vY = 128
vXt = 144
vAn = 166
vX1 = 172
T0, T1 = 160, 176
vZ = 192
U = 204
vZer = 220
vUa, vCd, vG_, vZp, vKp, vF_, vL16, vXo, vXp, vTr, vYl, vYs, vFy = range(224, 237)
vWoD = 238
vWoR = 240
vOl, vFo, vBw, vBr, vOut = range(242, 247)
def hi():
    if OPT['prio']: e('s_setprio 3')
KG = [True]
def lo():
    if OPT['prio']: e(f"s_setprio {OPT['kgp'] if KG[0] else OPT['ps']}")
ROLE[0] = 1
sec('ssm0')
PFA = f'''s_mul_i32 s{sLd}, s{S_HG}, 7
s_add_u32 s{sLd}, s{sLd}, s{S_C}                   ; slab 0..13
s_mul_i32 s{sSk}, s{S_TILE}, 14
s_add_u32 s{sSk}, s{sSk}, s{sLd}                   ; 0..223
s_cmp_eq_u32 s{S_W}, 1
s_cbranch_scc1 L_pf1
s_cmp_eq_u32 s{S_W}, 2
s_cbranch_scc1 L_pf2
s_mul_i32 s{sB}, s{sSk}, 64
s_mul_hi_u32 s{sB}, s{sB}, {(2**32 + 6)//7}
s_cmp_eq_u32 s{S_W}, 0
s_cselect_b32 s{sInv}, 43, 64
s_cselect_b32 s{sLd}, 6, 4
s_cselect_b32 s{sUns}, {60 if OPT['pfm'] & 1 else 0}, {40 if OPT['pfm'] & 8 else 0}
v_mul_u32_u24 v6, s{sInv}, v{V_LANE}
v_lshrrev_b32 v6, 8, v6
v_mul_u32_u24 v7, s{sLd}, v6
v_sub_u32 v7, v7, v{V_LANE}
v_add_u32 v6, s{sB}, v6
v_mul_u32_u24 v6, 7, v6
v_add3_u32 v8, v6, v7, 6
s_mov_b32 s{SRD_A+2}, {2048*896}
s_branch L_pf3
L_pf1:
s_mul_i32 s{sB}, s{S_TILE}, 20
s_add_u32 s{sB}, s{sB}, 128
v_add_u32 v6, s{sB}, v{V_LANE}
v_mul_u32_u24 v6, 21, v6
v_add3_u32 v8, v6, s{sLd}, 7
s_mov_b32 s{sUns}, {20 if OPT['pfm'] & 2 else 0}
s_mov_b32 s{SRD_A+2}, {448*2688}
s_branch L_pf3
L_pf2:
v_mul_u32_u24 v6, 37, v{V_LANE}
v_lshrrev_b32 v6, 8, v6
v_mul_u32_u24 v6, 14, v6
s_mul_i32 s{sB}, s{sSk}, 42
v_add3_u32 v8, v6, v{V_LANE}, s{sB}
s_mov_b32 s{sUns}, {14 if OPT['pfm'] & 4 else 0}
s_mov_b32 s{SRD_A+2}, {448*2688}
L_pf3:
v_lshlrev_b32 v8, 7, v8
v_cmp_gt_u32 vcc, s{sUns}, v{V_LANE}
s_mov_b32 s{SRD_A+3}, 0x20000
v_bfrev_b32 v6, 1
v_cndmask_b32 v8, v6, v8, vcc
''' if OPT['pfm'] else ''
e(f"""s_cmp_{'eq' if OPT['only'] != 2 else 'le'}_u32 s{S_C}, 7
s_cbranch_scc1 L_ssm_idle
s_lshr_b32 s{sDs}, s{S_W}, 1
s_lshl_b32 s{sD0}, s{S_C}, 6
s_lshl1_add_u32 s{sD0}, s{S_J}, s{sD0}
s_add_u32 s{sD}, s{sD0}, s{sDs}
s_mul_i32 s{sTab}, s{S_W}, {TABSZ}
s_add_u32 s{sTab}, s{sTab}, {L_TAB}
s_lshl1_add_u32 s{sA}, s{sD0}, s{S_W}
s_lshl_b32 s{sA}, s{sA}, 8
v_lshl_add_u32 v{a0}, v{V_LANE}, 2, s{sA}
s_mov_b32 m0, s{sTab}
{PFA}s_lshl_b32 s{sB}, s{sD0}, 1
s_waitcnt lgkmcnt(0)
s_load_dword s{sLd}, s[14:15], s{sB}
s_load_dword s{sSk}, s[16:17], s{sB}
global_load_dword v{vPar+0}, v{a0}, s[6:7]
global_load_dword v{vPar+1}, v{a0}, s[8:9]
global_load_dword v{vPar+2}, v{a0}, s[10:11]
global_load_dword v{vPar+3}, v{a0}, s[12:13]
global_load_dword v{vPar+4}, v{V_T}, s[28:29]""")
if OPT['pfm']:
    e(f'''s_cmp_eq_u32 s{S_W}, 0
    s_cselect_b64 s[{SRD_A}:{SRD_A+1}], s[18:19], s[20:21]
    s_cmp_eq_u32 s{S_W}, 3
    s_cselect_b64 s[{SRD_A}:{SRD_A+1}], s[4:5], s[{SRD_A}:{SRD_A+1}]
    buffer_load_dword v{vPar+5}, v8, {sr(SRD_A)}, 0 offen''')
if OPT['tlb'] != 2: e('s_barrier')
if OPT['tlb']:
    e(f'''v_and_b32 v{a0}, 7, v{V_LANE}
    v_min_u32 v{a0}, 5, v{a0}
    v_lshlrev_b32 v{a0}, 21, v{a0}
    v_add_u32 v{a0}, 0xf8000, v{a0}
    v_mov_b32 v{a1}, 0
    global_load_dword v8, v{a0}, s[28:29]
    global_load_dword v8, v{a1}, s[22:23]''')
if OPT['tlb'] == 2: e('s_barrier')
if OPT['ord'] < 4: e('s_branch L_ssm')
sec('ssm')
e('L_ssm:')
if OPT['abl'] == 1:
    arrive(1); e('s_waitcnt vmcnt(0) lgkmcnt(0)\ns_endpgm')
lo()
srd(SRD_WS, 28, WS_SIZE)
e(f"""s_and_b32 s{sHw}, s{S_W}, 1
v_add_u32 v{V_GRP}, 16, v{V_GRP}
v_and_b32 v{a0}, 15, v{V_LANE}
v_lshrrev_b32 v{a1}, 4, v{V_LANE}
v_lshl_add_u32 v{vRb_}, v{a1}, 4, s{sTab}
v_mul_u32_u24 v{a2}, {TROW}, v{a0}
v_add_u32 v{vRa}, v{a2}, v{vRb_}
v_lshlrev_b32 v{vL16}, 4, v{V_LANE}
v_mov_b32 v{vOne}, 0x3c00
ds_write_addtid_b32 v{vOne}""")
for i in range(8): e(f'v_mov_b64 {vr(vAc+2*i,2)}, 0')
mid = f"""v_and_b32 v{a0}, 7, v{V_LANE}
s_and_b32 s{sB}, s2, {OPT['ur'] - 1}
s_lshl2_add_u32 s{sB}, s{sB}, s{S_W}
s_mul_i32 s{sB}, s{sB}, {8*US}
s_add_u32 s{sB}, s{sB}, {F_U}
v_mul_u32_u24 v{vFu}, {US}, v{a0}
v_add_u32 v{vFu}, s{sB}, v{vFu}
s_mul_i32 s{sP}, s{sDs}, {P_SZ}
s_add_u32 s{sP}, s{sP}, {L_TAB}
s_add_u32 s{sKd}, s{sP}, {P_KD}
s_lshl_b32 s{sB}, s{sHw}, 8
s_add_u32 s{sInv}, s{sB}, s{sKd}
s_add_u32 s{sA}, s{sInv}, {1088 + 128}
v_lshl_add_u32 v{vRz}, v{a0}, 4, s{sA}
v_mov_b32 v{vKb}, s{sKd}
v_and_b32 v{a0}, 15, v{V_LANE}
v_lshrrev_b32 v{a1}, 4, v{V_LANE}
s_lshl_b32 s{sA}, s{sHw}, 4
v_add_u32 v{a0}, s{sA}, v{a0}
v_and_b32 v{a3}, 1, v{V_LANE}
v_mul_u32_u24 v{a2}, 255, v{a3}
v_sub_u32 v{a2}, v{a2}, v{a0}
s_add_u32 s{sA}, s{sKd}, {1088 + 32}
v_add_u32 v{vKa}, s{sA}, v{a2}
v_add_u32 v{vKa0}, 96, v{vKa}
s_lshl3_add_u32 s{sA}, s{sDs}, 16
v_lshl_add_u32 v{vPair}, v{a3}, 2, s{sA}
s_mul_i32 s{sA}, s{sHw}, {1088 + 112 - 1024}
s_add_u32 s{sA}, s{sA}, s{sKd}
s_add_u32 s{sA}, s{sA}, 1024
v_writelane_b32 v{vKa0}, s{sA}, 0
s_mul_i32 s{sA}, s{sHw}, 56
s_sub_u32 s{sA}, s{sKd}, s{sA}
s_add_u32 s{sA}, s{sA}, 1088
v_writelane_b32 v{vKa0}, s{sA}, 16
v_max_u32 v{a2}, 1, v{a1}
v_sub_u32 v{a2}, 5, v{a2}
v_lshlrev_b32 v{a0}, v{a2}, v{a0}
v_lshlrev_b32 v{a2}, 3, v{a1}
s_mov_b32 s{sA}, 0x60400100
v_bfe_u32 v{a1}, s{sA}, v{a2}, 8
v_lshl_add_u32 v{a0}, v{a1}, 3, v{a0}
v_add_u32 v{vKd}, s{sKd}, v{a0}
s_mov_b32 s{sA}, 0x80040404
v_bfe_u32 v{a1}, s{sA}, v{a2}, 8
v_add_u32 v{vKd1}, v{a1}, v{vKd}
v_lshrrev_b32 v{a1}, 1, v{V_LANE}
v_lshlrev_b32 v{vUa}, 6, v{a1}
v_lshl_add_u32 v{vUa}, v{a3}, 4, v{vUa}
s_lshr_b32 s{sA}, s{sD0}, 2
s_mul_i32 s{sA}, s{sA}, {QS}
s_and_b32 s{sB}, s{sD0}, 3
s_lshl4_add_u32 s{sA}, s{sB}, s{sA}
s_lshl_b32 s{sB}, s{S_W}, 12
s_add_u32 s{sA}, s{sA}, s{sB}
s_add_u32 s{sUl}, s{sA}, {WS_U}
v_and_b32 v{a1}, 3, v{a1}
v_lshl_add_u32 v{a1}, v{a3}, 2, v{a1}
v_mul_u32_u24 v{a1}, {PS}, v{a1}
v_lshrrev_b32 v{a2}, 3, v{V_LANE}
v_lshl_add_u32 v{a1}, v{a2}, 4, v{a1}
s_lshl_b32 s{sA}, s{S_W}, 8
s_add_u32 s{sA}, s{sA}, {L_KP + 512}
v_add_u32 v{vKp}, s{sA}, v{a1}
; byte selectors that expand the distinct taps to the lags (lag l uses the tap at bf16(l), as in the reference)
v_lshrrev_b32 v{a1}, 5, v{V_LANE}
s_lshl_b32 s{sA}, s{sHw}, 1
v_max_u32 v{a0}, s{sA}, v{a1}
v_min_u32 v{a2}, 1, v{a0}
v_mul_u32_u24 v{a2}, 0x0202, v{a2}
v_lshlrev_b32 v{a2}, 16, v{a2}
v_sub_u32 v{vSel}, 0x03020100, v{a2}
v_mul_u32_u24 v{a2}, 0x0202, v{a0}
v_lshl_or_b32 v{a2}, v{a2}, 16, v{a2}
v_sub_u32 v{vSel+1}, 0x07060504, v{a2}
s_mul_i32 s{sA}, s{sHw}, 0x02020202
v_add_u32 v{vSel+2}, s{sA}, v{vSel}
s_mul_i32 s{sA}, s{sHw}, 0x02020404
v_add_u32 v{vSel+3}, s{sA}, v{vSel+1}
v_lshrrev_b32 v{a2}, v{a0}, v{vL16}
s_movk_i32 s{sA}, 256
v_lshl_add_u32 v{a2}, s{sA}, v{a0}, v{a2}
s_sub_u32 s{sA}, s{sKd}, 256
v_add_u32 v{vE1}, s{sA}, v{a2}
v_lshlrev_b32 v{a2}, 2, v{a0}
v_sub_u32 v{vE1b}, v{vE1}, v{a2}
s_mov_b32 s{sA}, 0x0c0c0c0c
s_cmp_lg_u32 s{sHw}, 0
s_cselect_b32 s{sE2}, 0x01000100, s{sA}
s_cselect_b32 s{sE3}, 0x05040302, s{sA}
v_mov_b32 v{vSel+4}, s{sA}
v_mov_b32 v{vSel+5}, s{sA}
v_mov_b32 v{vSel+6}, s{sA}
v_mov_b32 v{vSel+7}, s{sA}
s_mov_b32 s{sA}, 0x05040504
s_mov_b64 exec, 15
v_mov_b32 v{vSel+4}, s{sA}
v_mov_b32 v{vSel+5}, s{sA}
v_mov_b32 v{vSel+6}, s{sA}
s_mov_b64 exec, -1
v_writelane_b32 v{vSel+7}, s{sA}, 3
s_mov_b32 s{sA}, 0x05040302
v_writelane_b32 v{vSel+4}, s{sA}, 3
s_mov_b32 s{sA}, 0x0c0c0504
v_writelane_b32 v{vSel+6}, s{sA}, 0
v_writelane_b32 v{vSel+7}, s{sA}, 2
s_mul_i32 s{sA}, s{S_W}, {2*PS}
s_add_u32 s{sA}, s{sA}, {L_KP}
v_mul_u32_u24 v{a2}, {PS - 512}, v{a1}
v_add3_u32 v{vG_}, v{a2}, v{vL16}, s{sA}
v_mov_b64 {vr(vZer,2)}, 0
v_mov_b64 {vr(vZer+2,2)}, 0
ds_write_b128 v{vG_}, {vr(vZer,4)}
s_lshl_b32 s{sA}, s{sHw}, 10
s_add_u32 s{sB}, s{sP}, {P_UC}
s_add_u32 s{sA}, s{sA}, s{sB}
s_add_u32 s{sA}, s{sA}, 64
v_add_u32 v{vCd}, s{sA}, v{vL16}
v_and_b32 v{a3}, 3, v{V_LANE}
v_and_b32 v{a0}, 0x1c, v{V_LANE}
v_lshlrev_b32 v{a2}, 2, v{a0}
v_and_b32 v{vZp}, 0x30, v{a2}
s_mov_b32 exec_hi, 0
v_add_u32 v{vZp}, 2112, v{a2}
s_mov_b64 exec, -1
v_mul_u32_u24 v{a2}, {UC_S}, v{a3}
v_add3_u32 v{vZp}, v{vZp}, v{a2}, s{sB}
v_lshlrev_b32 v{a0}, 1, v{a0}
v_sub_u32 v{a0}, v{a0}, v{a2}
v_lshlrev_b32 v{a1}, 4, v{a1}
v_sub_u32 v{a0}, v{a0}, v{a1}
s_lshl_b32 s{sA}, s{sHw}, 5
s_sub_u32 s{sB}, s{sB}, s{sA}
s_add_u32 s{sB}, s{sB}, {56 + 3*UC_S}
v_add_u32 v{vF_}, s{sB}, v{a0}
v_add_u32 v{vG_}, {512 - 80}, v{vG_}
v_add_u32 v{vKxo}, s{sTab}, v{vL16}
s_xor_b32 s{sA}, s{S_W}, 1
s_mul_i32 s{sA}, s{sA}, {TABSZ}
s_add_u32 s{sA}, s{sA}, {L_TAB}
v_add_u32 v{vKxp}, s{sA}, v{vL16}
v_and_b32 v{a0}, 31, v{V_LANE}
v_lshlrev_b32 v{a2}, 2, v{a0}
v_sub_u32 v{a2}, v{a1}, v{a2}
s_add_u32 s{sA}, s{sInv}, {1088 + 124}
v_add_u32 v{vBk}, s{sA}, v{a2}
"""
def prewrite():
    e(f'''s_sub_u32 s{sA}, 3, s{S_HG}
    v_lshrrev_b32 v{a0}, s{sA}, v{V_LANE}
    v_lshlrev_b32 v{a1}, s{sA}, v{a0}
    v_sub_u32 v{a1}, v{V_LANE}, v{a1}
    s_lshr_b32 s{sA}, s{S_KS}, s{S_HG}
    v_mul_u32_u24 v{a0}, s{sA}, v{a0}
    v_lshl_add_u32 v{a0}, v{a1}, 6, v{a0}
    s_lshl2_add_u32 s{sA}, s{S_TILE}, s{S_W}
    s_lshl_b32 s{sA}, s{sA}, 9
    s_lshr_b32 s{sA}, s{sA}, s{S_HG}
    s_mul_i32 s{sB}, s{S_HG}, {WS_V - WS_K}
    s_add_u32 s{sA}, s{sA}, s{sB}
    s_mul_i32 s{sB}, s{S_C}, {8*KS}
    s_add_u32 s{sA}, s{sA}, s{sB}
    s_add_u32 s{sA}, s{sA}, {WS_K}''')
    hi(); e(f'buffer_store_dword v{a0}, v{a0}, {sr(SRD_WS)}, s{sA} offen sc1'); lo()
if OPT['pw'] == 1: prewrite()
e(mid)
if OPT['pw'] == 2: prewrite()
stamp(22)
e(f"""s_waitcnt lgkmcnt(0)
s_lshl_b32 s{sA}, s{sDs}, 4
s_lshr_b32 s{sLd}, s{sLd}, s{sA}
s_lshl_b32 s{sLd}, s{sLd}, 16
s_lshr_b32 s{sSk}, s{sSk}, s{sA}
s_lshl_b32 s{sSk}, s{sSk}, 16
v_mov_b32 v{a0}, s{sLd}
v_mul_f32 v{a0}, 0x3fb8aa3b, v{a0}
v_exp_f32 v{a0}, v{a0}
s_cmp_eq_u32 s{sHw}, 0
s_cselect_b32 s{sSk}, s{sSk}, 0
v_cvt_pk_bf16_f32 v{a0}, v{a0}, v{a0}
v_and_b32 v{vScl}, 0xffff0000, v{a0}
v_mul_f32 v{vKc}, 0xbfb8aa3b, v{vScl}
v_mul_f32 v{vKc+1}, 0.15915494, v{vScl}
v_mov_b32 v{vAdd}, 0
v_add_f32 v{vScl}, v{vScl}, v{vScl}
v_writelane_b32 v{vAdd}, s{sSk}, 0
s_mov_b32 s{sIt2}, 0
s_mov_b32 s{sSel}, 0x01000c0c""")
stamp(0)
e(f"""s_waitcnt vmcnt({(3 if OPT['tlb'] else 1) + (OPT['pw'] in (1, 2)) + (OPT['pfm'] > 0)})
v_and_b32 v{a0}, 0x7f807f80, v{vPar+2}
v_and_b32 v{a1}, 0x7f807f80, v{vPar+3}
v_pk_max_u16 v{a0}, v{a0}, v{a1}
v_lshlrev_b32 v{a1}, 16, v{a0}
v_max_u32 v{a0}, v{a0}, v{a1}""")
for q, n in enumerate((1, 2, 4, 8)):
    e(f's_nop 1\nv_max_u32_dpp v{a0}, v{a0}, v{a0} row_ror:{n} row_mask:0xf bank_mask:0xf')
e(f"""s_nop 0
v_readlane_b32 s{sA}, v{a0}, 0
v_readlane_b32 s{sB}, v{a0}, 16
v_readlane_b32 s{sInv}, v{a0}, 32
v_readlane_b32 s{sUns}, v{a0}, 48
s_max_u32 s{sA}, s{sA}, s{sB}
s_max_u32 s{sUns}, s{sUns}, s{sInv}
s_max_u32 s{sUns}, s{sUns}, s{sA}
s_and_b32 s{sUns}, s{sUns}, 0x7f800000
s_min_u32 s{sUns}, s{sUns}, 0x7e800000
s_sub_u32 s{sInv}, 0x7f000000, s{sUns}
v_mul_f32 v{vScl}, s{sUns}, v{vScl}
v_mul_f32 v{vSB}, 0x43000000, v{vScl}
v_mov_b32 v{vSB0}, v{vSB}
s_mov_b64 exec, 1
v_mov_b32 v{vSB0}, v{vScl}
s_mov_b64 exec, -1""")
stamp(1)
if OPT['abl'] == 2: e('s_endpgm')
def cm(jobs, conj):
    ng = 'neg_hi:[1,0,0]' if conj else 'neg_lo:[1,0,0]'
    return [f'v_pk_mul_f16 v{d}, v{x}, v{w} op_sel_hi:[1,0]' for d, x, w in jobs] + \
           [f'v_pk_fma_f16 v{d}, v{x}, v{w}, v{d} op_sel:[1,1,0] op_sel_hi:[0,1,1] {ng}' for d, x, w in jobs]
def wr(reg): return f'ds_write_addtid_b32 v{reg} offset:{TROW*(reg - vY)}'
assert vXt == vY + 16
zA, zB, tA, tB, pA, pB = vZ, vZ+2, vZ+4, vZ+6, vZ+8, vZ+10
X = vXt; Y = vY
an = {1: vAn, 2: vAn+1, 4: vAn+2, 8: Y+1, 16: Y+2, 32: Y+4, 64: Y+8, 128: X+21, 256: vAn+3, 512: vAn+4, 1024: vAn+5}
e('L_kg:')
stamp(14)
seq = f"""v_perm_b32 v{pA}, v{vPar}, v{vPar}, s{sSel}
v_mul_f32 v{pA}, 0x3fb8aa3b, v{pA}
v_exp_f32 v{pA}, v{pA}
v_perm_b32 v{pA+1}, v{vPar+1}, v{vPar+1}, s{sSel}
v_perm_b32 v{tA}, v{vPar+2}, v{vPar+2}, s{sSel}
v_perm_b32 v{tA+1}, v{vPar+3}, v{vPar+3}, s{sSel}
v_cvt_pk_bf16_f32 v{pA}, v{pA}, v{pA}
v_mul_f32 v{tA}, s{sInv}, v{tA}
v_and_b32 v{pA}, 0xffff0000, v{pA}
v_mul_f32 v{tA+1}, s{sInv}, v{tA+1}
v_pk_mul_f32 {vr(pA,2)}, {vr(pA,2)}, {vr(vKc,2)}
v_cvt_pk_f16_f32 v{X}, v{tA}, -v{tA+1}
v_mul_f32 v{pB}, 0x42800000, v{pA}
v_mul_f32 v{pB+1}, 0x42800000, v{pA+1}
v_exp_f32 v{pA}, v{pA}
v_fract_f32 v{pA+1}, v{pA+1}
v_exp_f32 v{pB}, v{pB}
v_fract_f32 v{pB+1}, v{pB+1}
v_cos_f32 v{zA}, v{pA+1}
v_sin_f32 v{zA+1}, v{pA+1}
v_cos_f32 v{zB}, v{pB+1}
v_sin_f32 v{zB+1}, v{pB+1}
v_pk_mul_f32 {vr(zA,2)}, {vr(zA,2)}, {vr(pA,2)} op_sel_hi:[1,0]
v_pk_mul_f32 {vr(zB,2)}, {vr(zB,2)}, {vr(pB,2)} op_sel_hi:[1,0]""".split('\n')
for st in range(6):
    chains = [(zA, tA, an[1 << st], st < 5)] + ([(zB, tB, an[64 << st], st < 4)] if st < 5 else [])
    for z, t, d, sq in chains:
        if sq: seq.append(f'v_pk_mul_f32 {vr(t,2)}, {vr(z,2)}, {vr(z,2)} op_sel_hi:[0,1]')
    for z, t, d, sq in chains: seq.append(f'v_cvt_pk_f16_f32 v{d}, v{z}, v{z+1}')
    for z, t, d, sq in chains:
        if sq: seq.append(f'v_pk_fma_f32 {vr(z,2)}, {vr(z,2)}, {vr(z,2)}, {vr(t,2)} op_sel:[1,1,0] op_sel_hi:[0,1,1] neg_lo:[1,0,0]')
seq += cm([(X+1, X, an[1]), (X+2, X, an[2]), (X+4, X, an[4]), (X+8, X, an[256]), (X+12, X, an[512]), (X+16, X, an[1024])], True)
seq += cm([(Y+3, Y+1, Y+2), (Y+12, Y+4, Y+8), (Y+5, Y+4, Y+1), (Y+6, Y+4, Y+2), (Y+9, Y+8, Y+1), (Y+10, Y+8, Y+2)], False)
seq += cm([(X+3, X+1, an[2]), (X+5, X+1, an[4]), (X+6, X+2, an[4]), (X+9, X+2, an[256]), (X+10, X+4, an[256]), (X+13, X+4, an[512]),
           (X+14, X+8, an[512]), (X+17, X+8, an[1024]), (X+18, X+12, an[1024]), (X+20, X+16, an[1024])], True)
seq += cm([(Y+7, Y+4, Y+3), (Y+11, Y+8, Y+3), (Y+13, Y+12, Y+1), (Y+14, Y+12, Y+2), (Y+15, Y+12, Y+3)], False)
seq += cm([(X+7, X+3, an[4]), (X+11, X+6, an[256]), (X+15, X+10, an[512]), (X+19, X+14, an[1024])], True)
e('\n'.join(seq))
stamp(15)
if OPT['kgw']:
    e(f'v_subrev_u32 v{a0}, 16, v{V_GRP}'); lwait(OPT['kgw'], addr=a0)
hi()
if OPT['abl'] != 4: e('\n'.join(wr(r) for r in range(Y + 1, X + 22)))
for k in range(4):
    o = vOp + 16*k
    e(f"""ds_read_b128 {vr(o,4)}, v{vRa} offset:{64*k}
    ds_read_b128 {vr(o+4,4)}, v{vRb_} offset:{37*TROW + 64*k}
    ds_read_b128 {vr(o+8,4)}, v{vRa} offset:{16*TROW + 64*k}
    ds_read_b128 {vr(o+12,4)}, v{vRa} offset:{32*TROW + 64*k}""")
if not OPT['uw']: e(f's_cmp_eq_u32 s{sIt2}, 0\ns_cbranch_scc1 L_kg_n\nbuffer_load_dword v{vFr}, v{vFu}, {sr(SRD_WS)}, 0 offen sc1\nL_kg_n:')
stamp(16)
def mf(c, a, b): return f'v_mfma_f32_16x16x32_f16 {vr(c,4)}, {vr(a,4)}, {vr(b,4)}, {vr(c,4)}'
late_m = []
for k in range(4):
    o = vOp + 16*k; y1 = vX1 + 4*(k & 1)
    p = cm([(y1+r, o+r, o+4+r) for r in range(4)], False)
    e(f's_waitcnt lgkmcnt({12 - 4*k})')
    e('\n'.join([mf(vAc, o+8, o)] + p[0:2] + late_m[:1] + p[2:4] + [mf(vAc+4, o+12, o)] + p[4:6] + late_m[1:] + p[6:8]))
    late_m = [mf(vAc+8, o+8, y1), mf(vAc+12, o+12, y1)]
e(f"""s_add_u32 s{sSel}, s{sSel}, 0x02020000
s_add_u32 s{sIt2}, s{sIt2}, 1
s_cmp_lg_u32 s{sIt2}, 2""")
e('\n'.join(late_m))
lo()
if OPT['pw'] == 3:
    e('s_cbranch_scc0 L_kg_e'); prewrite(); e('s_branch L_kg\nL_kg_e:')
else: e('s_cbranch_scc1 L_kg')
stamp(17)
if OPT['abl'] in (4, 8): e('s_endpgm')
def scl(i): return vSB0 if i == 4 else (vSB if i & 4 else vScl)
for i in range(8): e(f'v_mul_f32 v{vAc+i}, v{scl(i)}, v{vAc+i}')
e(f's_cmp_eq_u32 s{sHw}, 0')
for i in range(8, 16): e(f'v_mul_f32 v{vAc+i}, v{scl(i)}, v{vAc+i}')
e('s_cbranch_scc1 L_kx')
for i in range(8): e(f'v_swap_b32 v{vAc+i}, v{vAc+8+i}')
e(f"""L_kx:
ds_write_b128 v{vKxo}, {vr(vAc+8,4)}
s_mov_b32 exec_hi, 0
ds_write_b128 v{vKxo}, {vr(vAc+12,4)} offset:1024
s_mov_b64 exec, -1
s_waitcnt vmcnt({1 if OPT['pw'] else 0})
v_readfirstlane_b32 s{S_NONCE}, v{vPar+4}""")
arrive(2)
e(f's_add_u32 s{S_NONCE}, s{S_NONCE}, 1')
e(f'v_add_f32 v{vAc}, v{vAdd}, v{vAc}')
stamp(18)
def bprio():
    if OPT['prio']: e(f"s_setprio {OPT['bp']}")
def u_look():
    hi(); e(f'buffer_load_dword v{vFr}, v{vFu}, {sr(SRD_WS)}, 0 offen sc1'); bprio()
def u_fetch():
    hi()
    stamp(20)
    poll(vFu, first_issued=True, reg=vFr, sleep=OPT['usleep'])
    stamp(21)
    for k in range(2):
        e(f'buffer_load_dwordx4 {vr(U+4*k,4)}, v{vUa}, {sr(SRD_WS)}, s{sUl} offen offset:{2048*k} sc1')
    bprio()
if OPT['uw'] <= -2: u_look()
else: bprio()
stamp(19)
lwait(2, addr=vPair)
e(f"""ds_read_b128 {vr(vAc+8,4)}, v{vKxp}
ds_read_b128 {vr(vAc+12,4)}, v{vKxp} offset:1024
ds_write_b128 v{vRz}, {vr(vZer,4)}
s_mov_b32 s{sIt2}, 4
s_waitcnt lgkmcnt(1)""")
for i in range(4): e(f'v_pk_add_f32 {vr(vAc+2*i,2)}, {vr(vAc+2*i,2)}, {vr(vAc+8+2*i,2)}')
for i in range(4): e(f'v_cvt_pk_bf16_f32 v{vAc+8+i}, v{vAc+2*i}, v{vAc+2*i+1}')
e(f"""ds_write_b32 v{vKd}, v{vAc+8}
ds_write_b32 v{vKd1}, v{vAc+9}
s_mov_b64 exec, 0x1ffff
ds_write_b16 v{vKa0}, v{vAc+10}
s_mov_b64 exec, 0xffff
ds_write_b16_d16_hi v{vKa}, v{vAc+10} offset:64
ds_write_b16 v{vKa}, v{vAc+11} offset:32
ds_write_b16_d16_hi v{vKa}, v{vAc+11}
s_mov_b64 exec, -1""")
if OPT['pw']: e('s_waitcnt vmcnt(0)')
arrive(3)
if OPT['uw'] == -1: u_look()
if OPT['uw'] == -2: u_fetch()
def u_try():
    hi()
    e(f's_waitcnt vmcnt(0)\nv_cmp_ne_u32 vcc, s{S_NONCE}, v{vFr}\ns_mov_b64 s[88:89], vcc\ns_cbranch_vccnz L_utry')
    for k in range(2):
        e(f'buffer_load_dwordx4 {vr(U+4*k,4)}, v{vUa}, {sr(SRD_WS)}, s{sUl} offen offset:{2048*k} sc1')
    e(f's_branch L_utry2\nL_utry:\nbuffer_load_dword v{vFr}, v{vFu}, {sr(SRD_WS)}, 0 offen sc1\nL_utry2:')
    bprio()
if OPT['uw'] == -4: u_try()
lwait(3, addr=vPair)
if OPT['uw'] == -3: u_try()
stamp(2)
E = 64; BF = 40
e(f"""ds_read2_b32 {vr(E,2)}, v{vE1} offset1:1
ds_read2_b32 {vr(E+2,2)}, v{vE1b} offset0:2 offset1:3
ds_read2_b32 {vr(E+4,2)}, v{vKb} offset0:191 offset1:192
ds_read_b32 v{E+6}, v{vKb} offset:1020
ds_read_b32 v{E+7}, v{vKb} offset:1024""")
for q in range(8): e(f'ds_read2_b32 {vr(BF+2*q,2)}, v{vBk} offset0:{8*(q>>1) + 2*(q&1)} offset1:{8*(q>>1) + 2*(q&1) + 1}')
b = E + 12; t = E + 16
e(f"""s_waitcnt lgkmcnt(10)
v_perm_b32 v{b+2}, v{E+2}, v{E+2}, v{vSel+2}
v_perm_b32 v{b+3}, v{E+3}, v{E+2}, v{vSel+3}
v_perm_b32 v{b-2}, v{E+5}, v{E+4}, s{sE2}
v_perm_b32 v{b-1}, v{E+5}, v{E+4}, s{sE3}
v_perm_b32 v{b}, v{E}, v{E}, v{vSel}
v_perm_b32 v{b+1}, v{E+1}, v{E}, v{vSel+1}
v_mov_b32_dpp v{b-2}, v{b+2} wave_shr:1 row_mask:0xf bank_mask:0xf
v_mov_b32_dpp v{b-1}, v{b+3} wave_shr:1 row_mask:0xf bank_mask:0xf
ds_write_b128 v{vCd}, {vr(b,4)}""")
for i in range(4): e(f'v_alignbit_b32 v{t+i}, v{b+i}, v{b+i-1}, 16')
e(f'ds_write_b128 v{vCd}, {vr(t,4)} offset:{UC_S}')
for i in range(4): e(f'v_mov_b32 v{t+4+i}, v{b+i-1}')
e(f'ds_write_b128 v{vCd}, {vr(t+4,4)} offset:{2*UC_S}')
for i in range(4): e(f'v_alignbit_b32 v{t+8+i}, v{b+i-1}, v{b+i-2}, 16')
e(f'ds_write_b128 v{vCd}, {vr(t+8,4)} offset:{3*UC_S}\ns_waitcnt lgkmcnt(12)')
for i in range(4): e(f'v_perm_b32 v{t+12+i}, v{E+7}, v{E+6}, v{vSel+4+i}')
e(f'ds_write_b128 v{vZp}, {vr(t+12,4)}')
if OPT['uw'] <= -3: e('s_cmp_eq_u64 s[88:89], 0\ns_cbranch_scc1 L_uhave')
if OPT['uw'] != -2: u_fetch()
e('L_uhave:')
stamp(3)
e(f'v_and_b32 v{a0}, 31, v{V_LANE}')
swap23(a1, a0, a2)
e(f"""v_lshrrev_b32 v{a2}, 5, v{V_LANE}
v_lshl_add_u32 v{a1}, v{a1}, 1, v{a2}
s_add_u32 s{sA}, s{sHw}, 123
v_add_u32 v{a1}, s{sA}, v{a1}
s_mul_i32 s{sA}, s{sDs}, {PD}
s_add_u32 s{sA}, s{sA}, {L_KP}
v_and_b32 v{a3}, 3, v{a1}
v_mul_u32_u24 v{a3}, {PS - 4}, v{a3}
v_lshl_add_u32 v{a3}, v{a1}, 2, v{a3}
v_add_u32 v{vA0}, s{sA}, v{a3}
v_add_u32 v{a1}, 2, v{a1}
v_and_b32 v{a3}, 3, v{a1}
v_mul_u32_u24 v{a3}, {PS - 4}, v{a3}
v_lshl_add_u32 v{a3}, v{a1}, 2, v{a3}
v_add_u32 v{vA1}, s{sA}, v{a3}
v_lshlrev_b32 v{a2}, 3, v{a2}
v_sub_u32 v{a2}, v{a2}, v{a0}
v_cvt_f32_i32 v{a2}, v{a2}
v_add_f32 v{a3}, -1.0, v{a2}
v_add_f32 v{a2}, -2.0, v{a2}
v_cvt_pk_f16_f32 v8, v{a3}, v{a2}
s_waitcnt vmcnt(1)
ds_write_b128 v{vKp}, {vr(U,4)}
s_waitcnt vmcnt(0)
ds_write_b128 v{vKp}, {vr(U+4,4)} offset:128""")
arrive(4)
AP, BD, DP = 112, 136, 192
band = [f's_mov_b32 s{sA}, 0x4a204a20', f's_cmp_eq_u32 s{sHw}, 0', f's_cselect_b32 s{sE2}, 0x4d104d10, s{sA}', f's_mov_b32 s{sE3}, 0x4d804d80']
for q in range(12):
    band.append(f'v_pk_fma_f16 v{BD+q}, v8, v8, s{sE2} neg_lo:[1,0,0] neg_hi:[1,0,0] clamp')
    if q < 11: band.append(f'v_pk_add_f16 v8, v8, s{sE3}' if q % 4 == 3 else 'v_pk_add_f16 v8, v8, -2.0 op_sel_hi:[1,0]')
e('\n'.join(band))
lwait(4)
KG[0] = False
lo()
stamp(4)
if OPT['abl'] == 16: e('s_endpgm')
CB = 64
def cv_reads(k):
    b = CB + 12 * (k & 3)
    return [f'ds_read_b64 {vr(b,2)}, v{vF_} offset:{64*k}', f'ds_read_b64 {vr(b+2,2)}, v{vF_} offset:{64*k + 8}',
            f'ds_read_b128 {vr(b+8,4)}, v{vG_} offset:{512 + 80 - 16*k}', f'ds_read_b128 {vr(b+4,4)}, v{vG_} offset:{80 - 16*k}']
for tau in range(2):
    for kp in range(3): e(f'ds_read_b128 {vr(AP + 12*tau + 4*kp, 4)}, v{(vA0, vA1)[kp & 1]} offset:{256*tau + 16*(kp >> 1)}')
e('\n'.join(cv_reads(0) + cv_reads(1)))
FOA = f'''s_lshr_b32 s{sA}, s{sOl}, 1
s_lshl_b32 s{sA}, s{sA}, {4 + FSH}
s_add_u32 s{sA}, s{sA}, {F_O}
v_lshl_add_u32 v{vFo}, v{a1}, {FSH}, s{sA}''' if not OM else f'''s_lshr_b32 s{sA}, s{sOl}, 1
s_lshl_b32 s{sB}, s{sHw}, 9
s_add_u32 s{sA}, s{sA}, s{sB}
s_lshl_b32 s{sA}, s{sA}, {FSH}
s_add_u32 s{sA}, s{sA}, {F_Y}
v_min_u32 v{vFo}, 6, v{a1}
v_lshl_add_u32 v{vFo}, v{vFo}, {6 + FSH}, s{sA}'''
late = f"""s_mov_b64 s[{SRD_B}:{SRD_B+1}], s[22:23]
s_mov_b32 s{SRD_B+2}, {448*896}
s_mov_b32 s{SRD_B+3}, 0x20000
s_mov_b64 s[{SRD_C}:{SRD_C+1}], s[24:25]
s_mov_b32 s{SRD_C+2}, {2048*1792}
s_mov_b32 s{SRD_C+3}, 0x20000
v_lshrrev_b32 v{a1}, 3, v{V_LANE}
v_and_b32 v{a2}, 7, v{V_LANE}
v_and_b32 v{a0}, 0x70, v{vL16}
v_mul_u32_u24 v{vYl}, {YS}, v{a1}
v_add_u32 v{vYl}, v{vYl}, v{a0}
v_lshlrev_b32 v{a3}, 2, v{V_LANE}
v_and_b32 v{a3}, 64, v{a3}
v_xor_b32 v{a0}, v{a0}, v{a3}
v_mul_u32_u24 v{vWoD}, 896, v{a1}
v_xor_b32 v{a3}, v{a1}, v{a2}
v_lshlrev_b32 v{a3}, 4, v{a3}
v_lshl_add_u32 v{vOut}, v{vWoD}, 1, v{a3}
v_add_u32 v{vWoD}, v{a0}, v{vWoD}
v_add_u32 v{vWoD+1}, {7168-1024}, v{vWoD}
v_lshrrev_b32 v{a0}, 4, v{V_LANE}
v_bfe_u32 v{a1}, v{V_LANE}, 2, 2
v_lshl_or_b32 v{a3}, v{a0}, 3, v{a1}
v_lshlrev_b32 v{a3}, 7, v{a3}
v_lshrrev_b32 v{a1}, 1, v{a1}
v_lshl_add_u32 v{a3}, v{a1}, 6, v{a3}
v_and_b32 v{a1}, 0x30, v{vL16}
s_movk_i32 s{sA}, {L_WO}
v_add3_u32 v{vWoR}, v{a1}, v{a3}, s{sA}
v_xor_b32 v{vWoR+1}, 64, v{vWoR}
v_and_b32 v{a1}, 15, v{V_LANE}
v_lshlrev_b32 v{vOl}, 4, v{a1}
v_mad_u32_u24 v{vOl}, v{a0}, s{S_KS}, v{vOl}
s_lshl2_add_u32 s{sOl}, s{S_J}, s{S_W}
{FOA}
s_lshl_b32 s{sA}, s{S_W}, 11
s_add_u32 s{sA}, s{sA}, {L_SSM}
v_xor_b32 v{a3}, v{a0}, v{a2}
v_lshl_add_u32 v{a3}, v{a3}, 4, s{sA}
v_lshl_add_u32 v{vBw}, v{a1}, 7, v{a3}
v_add_u32 v{vBr}, s{sA}, v{vL16}
s_mul_i32 s{sOut}, s{sOl}, {16*1792}
s_lshl_b32 s{sA}, s{S_C}, 7
s_add_u32 s{sOut}, s{sOut}, s{sA}
s_add_u32 s{sOut}, s{sOut}, 896
s_add_u32 s{sOut+1}, s{sOut}, {8*1792}
s_lshl_b32 s{sOl}, s{sOl}, 8
s_add_u32 s{sOl}, s{sOl}, {WS_O}
s_lshl2_add_u32 s{sCh0}, s{S_C}, s{S_W}
s_lshl_b32 s{sCh0}, s{sCh0}, 4
s_lshr_b32 s{sA}, s{S_J}, 4
s_lshl_b32 s{sA}, s{sA}, 9
s_add_u32 s{sA}, s{sA}, s{sCh0}
s_lshl_b32 s{sA}, s{sA}, {FSH}
s_add_u32 s{sA}, s{sA}, {F_Y}
v_lshl_add_u32 v{vFy}, v{a1}, {FSH}, s{sA}
v_and_b32 v{a1}, 11, v{V_LANE}
v_lshl_or_b32 v{a1}, v{a0}, 5, v{a1}
v_mul_u32_u24 v{a1}, 1792, v{a1}
v_and_b32 v{a3}, 4, v{V_LANE}
v_lshl_add_u32 v{vYs}, v{a3}, 2, v{a1}
s_lshl_b32 s{sA}, s{sHw}, 12
s_add_u32 s{sB}, s{sP}, {P_X + 4096}
s_sub_u32 s{sB}, s{sB}, s{sA}
v_add_u32 v{vXp}, s{sB}, v{vL16}
s_add_u32 s{sA}, s{sA}, s{sP}
s_add_u32 s{sA}, s{sA}, {P_X}
v_add_u32 v{vXo}, s{sA}, v{vL16}
v_lshl_add_u32 v{vRb_}, v{a0}, 4, s{sA}
v_bfe_u32 v{a0}, v{V_LANE}, 2, 2
v_and_b32 v{a3}, 1, v{V_LANE}
v_lshl_or_b32 v{a2}, v{a3}, 3, v{a0}
v_lshl_add_u32 v{vTr}, v{a2}, 7, v{vRb_}
v_and_b32 v{a2}, 2, v{V_LANE}
v_lshl_add_u32 v{vTr}, v{a2}, 2, v{vTr}""".split('\n')
def fill(n):
    e('\n'.join(late[:n])); del late[:n]
fill(16)
e('s_waitcnt lgkmcnt(8)')
for kp in range(3):
    for tau in range(2):
        d = vr(DP + 16*tau, 16)
        e(f'v_mfma_f32_32x32x16_bf16 {d}, {vr(AP + 12*tau + 4*kp, 4)}, {vr(BD + 4*kp, 4)}, {"0" if kp == 0 else d}')
        fill(6)
def cv_iter(first):
    for k in range(4):
        b = CB + 12 * k
        rd = cv_reads(k + 2)
        z = first and k == 0
        e('s_waitcnt lgkmcnt(4)')
        e(f'v_mfma_f32_32x32x16_bf16 {vr(T1,16)}, {vr(b,4)}, {vr(b+8,4)}, {"0" if z else vr(T1,16)}')
        e('\n'.join(rd))
        if k == 3:
            e(f'v_add_u32 v{vF_}, 256, v{vF_}\nv_subrev_u32 v{vG_}, 64, v{vG_}')
            if not first: e(f's_add_u32 s{sIt2}, s{sIt2}, 1\ns_cmp_lg_u32 s{sIt2}, 11')
        e(f'v_mfma_f32_32x32x16_bf16 {vr(T0,16)}, {vr(b,4)}, {vr(b+4,4)}, {"0" if z else vr(T0,16)}')
        if first: fill(6 if k < 3 else 99)
cv_iter(True)
e('L_cv:')
cv_iter(False)
e('s_cbranch_scc1 L_cv')
cv = [f'v_cvt_pk_bf16_f32 v{AP+i}, v{DP+2*i}, v{DP+2*i+1}' for i in range(16)]
for k in range(2):
    e('\n'.join(cv[4*k:4*k+4]))
    e(f's_waitcnt lgkmcnt({4 - 4*k})')
    e(f'v_mfma_f32_32x32x16_bf16 {vr(T1,16)}, {vr(CB+12*k,4)}, {vr(CB+12*k+8,4)}, {vr(T1,16)}')
for q in range(4):
    e('\n'.join(cv[8+4*q:12+4*q]))
    e(f'v_mfma_f32_32x32x16_bf16 {vr(T1,16)}, {vr(AP+4*q,4)}, {vr(BF+4*q,4)}, {vr(T1,16)}')
if OPT['prio']: e(f"s_setprio {OPT['pr']}")
stamp(5)
if OPT['abl'] == 32: e('s_endpgm')
e(f"""s_mul_i32 s{sA}, s{sD}, {YS}
s_lshl_b32 s{sB}, s{sHw}, 11
s_add_u32 s{sA}, s{sA}, s{sB}
s_add_u32 s{sA}, s{sA}, {WS_Y}
s_lshl_b32 s{sB}, s{sHw}, 9
s_add_u32 s{sB}, s{sB}, s{sD}
s_lshl_b32 s{sB}, s{sB}, {FSH}
s_add_u32 s{sB}, s{sB}, {F_Y}
s_nop 0""")
def xch(give, keep):
    for i in range(4): e(f'ds_write_b128 v{vXp}, {vr(give+4*i,4)} offset:{1024*i}')
    arrive(6); lwait(6, addr=vPair)
    for i in range(4): e(f'ds_read_b128 {vr(give+4*i,4)}, v{vXo} offset:{1024*i}')
    e('s_waitcnt lgkmcnt(0)')
e(f's_cmp_eq_u32 s{sHw}, 0\ns_cbranch_scc1 L_x0')
xch(T0, T1)
e('s_branch L_x1\nL_x0:')
xch(T1, T0)
e('L_x1:')
for i in range(8): e(f'v_pk_add_f32 {vr(T0+2*i,2)}, {vr(T0+2*i,2)}, {vr(T1+2*i,2)}')
for i in range(8): e(f'v_cvt_pk_bf16_f32 v{T1+i}, v{T0+2*i}, v{T0+2*i+1}')
e(f"""buffer_store_dwordx4 {vr(T1,4)}, v{vL16}, {sr(SRD_WS)}, s{sA} offen sc1
buffer_store_dwordx4 {vr(T1+4,4)}, v{vL16}, {sr(SRD_WS)}, s{sA} offen offset:1024 sc1
v_subrev_u32 v{a0}, 16, v{V_GRP}""")
if OM:
    e(f'''v_mov_b64 {vr(T0,2)}, -1
    v_mov_b64 {vr(T0+2,2)}, -1
    s_mul_i32 s{sA}, s{S_C}, {8*KS}
    s_add_u32 s{sA}, s{sA}, s{sOl}
    s_add_u32 s{sSk}, s{sA}, {4*KS}
    buffer_store_dwordx4 {vr(T0,4)}, v{vOl}, {sr(SRD_WS)}, s{sA} offen sc1
    buffer_store_dwordx4 {vr(T0,4)}, v{vOl}, {sr(SRD_WS)}, s{sSk} offen sc1''')
sync(7)
if OPT['only'] != 1: lwait(7, addr=a0)
e('s_waitcnt vmcnt(0)')
publish(sB, a0)
stamp(6)
if OPT['abl'] == 33: e('s_endpgm')
e(f"""s_mul_i32 s{sA}, s{S_W}, {16*896}
s_lshl_b32 s{sB}, s{S_C}, 7
s_add_u32 s{sA}, s{sA}, s{sB}
s_lshl_b32 s{sB}, s{S_W}, 11
s_add_u32 s{sB}, s{sB}, {L_WO}""")
for ch in range(7):
    e(f"""s_add_u32 m0, s{sB}, {8192*ch}
    s_add_u32 s{sSk}, s{sA}, {64*896*ch}
    buffer_load_dwordx4 v{vWoD}, {sr(SRD_B)}, s{sSk} offen lds
    buffer_load_dwordx4 v{vWoD+1}, {sr(SRD_B)}, s{sSk} offen offset:1024 lds
    s_waitcnt vmcnt({OPT['wodepth'] if ch < 6 else 0})""")
WF, OF, OC = 8, 168, 224
arrive(8)
e(f"""buffer_load_dword v{a0}, v{vFy}, {sr(SRD_WS)}, 0 offen sc1
s_mul_i32 s{sA}, s{sCh0}, {YS}
s_lshl_b32 s{sSk}, s{S_J}, 7
s_add_u32 s{sA}, s{sA}, s{sSk}
s_add_u32 s{sA}, s{sA}, {WS_Y}
s_add_u32 s{sSk}, s{sA}, {8*YS}""")
lwait(8)
stamp(7)
if OPT['abl'] == 34: e('s_endpgm')
def wo_reads(k):
    r = []
    for t in range(4):
        for hf in range(2):
            r.append(f'ds_read_b64_tr_b16 {vr(WF + 16*(k%10) + 4*t + 2*hf, 2)}, v{vWoR + (t>>1)} offset:{4096*k + 512*hf + 8*(t&1)}')
    return r
for k in range(10): e('\n'.join(wo_reads(k)))
arrive(9)
poll(vFy, first_issued=True, sleep=OPT['ysleep'], reg=a0)
stamp(8)
if OPT['abl'] == 35: e('s_endpgm')
e(f"""buffer_load_dwordx4 {vr(OF,4)}, v{vYl}, {sr(SRD_WS)}, s{sA} offen sc1
buffer_load_dwordx4 {vr(OF+4,4)}, v{vYl}, {sr(SRD_WS)}, s{sSk} offen sc1
s_lshr_b32 s{sA}, s{S_J}, 4
s_lshl_b32 s{sA}, s{sA}, 10
s_and_b32 s{sB}, s{S_J}, 3
s_lshl_b32 s{sB}, s{sB}, 8
s_add_u32 s{sA}, s{sA}, s{sB}
s_and_b32 s{sB}, s{S_J}, 8
s_lshl1_add_u32 s{sA}, s{sB}, s{sA}
s_and_b32 s{sB}, s{S_J}, 4
s_add_u32 s{sA}, s{sA}, s{sB}
s_mul_i32 s{sA}, s{sA}, 1792
s_lshl1_add_u32 s{sA}, s{sCh0}, s{sA}
s_add_u32 s{sB}, s{sA}, {128*1792}
v_xor_b32 v{a0}, 64, v{vBw}""")
lwait(9)
e(f"""s_waitcnt vmcnt(0)
ds_write_b128 v{vXo}, {vr(OF,4)}
ds_write_b128 v{vXo}, {vr(OF+4,4)} offset:1024""")
for z in range(2):
    for hf in range(2):
        e(f'ds_read_b64_tr_b16 {vr(OF + 8 + 4*z + 2*hf, 2)}, v{vTr} offset:{64*z + 512*hf}')
e(f"""s_waitcnt lgkmcnt(0)
buffer_store_dwordx4 {vr(OF+8,4)}, v{vYs}, {sr(SRD_C)}, s{sA} offen {OUTM}
buffer_store_dwordx4 {vr(OF+12,4)}, v{vYs}, {sr(SRD_C)}, s{sB} offen {OUTM}""")
if OPT['only'] == 1:
    stamp(9); stamp(13); prof_out(); e('s_endpgm')
if OM: poll(vFo, sleep=8)
if OM == 4:
    e(f'''s_lshl2_add_u32 s{sA}, s{S_J}, s{S_W}
    s_lshr_b32 s{sA}, s{sA}, 1
    s_lshl_b32 s{sA}, s{sA}, {4 + FSH}
    s_add_u32 s{sA}, s{sA}, {F_O}
    v_and_b32 v{vFo}, 15, v{V_LANE}
    v_lshl_add_u32 v{vFo}, v{vFo}, {FSH}, s{sA}''')
sOk, sLast = 4, 18
for k in range(14): e(f's_add_u32 s{sOk+k}, s{sOl}, {4*KS*k}')
stamp(9)
e('s_barrier        ; released once the four attention waves have stored their rows')
stamp(10)
if OPT['osleep']: e(f"s_sleep {OPT['osleep']}")
if OM != 3: poll(vFo, sleep=OPT['hsleep'])
if OM: e(f's_min_u32 s{S_BOUND}, s{S_BOUND}, 0x4000')
stamp(11)
def o_load(k): return f'buffer_load_dwordx4 {vr(OF+4*k,4)}, v{vOl}, {sr(SRD_WS)}, s{sOk+k} offen sc1'
def o_chk(k):
    o = OF + 4*k
    return [f's_waitcnt vmcnt({13-k})', f'v_max3_u32 v6, v{o}, v{o+1}, v{o+2}', f'v_max_u32 v6, v6, v{o+3}', 'v_cmp_eq_u32 vcc, -1, v6']
for k in range(14): e(o_load(k))
if OM: e('\n'.join(o_chk(0)))
for k in range(14):
    o = OF + 4*k
    m = [f'v_mfma_f32_16x16x32_bf16 {vr(OC+4*t,4)}, {vr(WF + 16*(k%10) + 4*t, 4)}, {vr(o,4)}, {"0" if k == 0 else vr(OC+4*t,4)}' for t in range(4)]
    rd = wo_reads(k + 9) if 1 <= k <= 4 else []
    if k == 10: e('s_waitcnt lgkmcnt(0)')
    if OM:
        e(f's_cbranch_vccnz L_or{k}\nL_og{k}:')
        c = o_chk(k + 1) if k < 13 else ['', '', '', '']
        e('\n'.join([m[0]] + rd[:4] + [m[1]] + rd[4:] + [m[2], c[0], c[1], c[2], m[3], c[3]]))
    else:
        e(f's_waitcnt vmcnt({13-k})'); e('\n'.join(m + rd))
stamp(12)
e('s_nop 4')
for i in range(8): e(f'v_cvt_pk_bf16_f32 v{16+i}, v{OC+2*i}, v{OC+2*i+1}')
e(f"""ds_write_b128 v{vBw}, {vr(16,4)}
ds_write_b128 v{a0}, {vr(20,4)}
ds_read_b128 {vr(24,4)}, v{vBr}
ds_read_b128 {vr(28,4)}, v{vBr} offset:1024
s_or_b32 s{sA}, s2, s{S_W}
s_waitcnt lgkmcnt(1)
buffer_store_dwordx4 {vr(24,4)}, v{vOut}, {sr(SRD_C)}, s{sOut} offen {OUTM2}
s_waitcnt lgkmcnt(0)
buffer_store_dwordx4 {vr(28,4)}, v{vOut}, {sr(SRD_C)}, s{sOut+1} offen {OUTM2}
s_cbranch_scc1 L_noepoch""")
publish(sA, 6)
e('L_noepoch:')
if OPT['prof']:
    e('s_waitcnt vmcnt(0)')
stamp(13)
prof_out()
e('L_end:\ns_endpgm')
if OM:
    for k in range(14):
        c = o_chk(k)
        e(f'''L_or{k}:
        s_call_b64 s[90:91], L_re{k}
        {c[0]}
        L_oc{k}:
        {c[1]}
        {c[2]}
        {c[3]}
        s_cbranch_vccz L_og{k}
        {'s_sleep %d' % OPT['rsleep'] if OPT['rsleep'] else ''}
        {o_load(k)}
        s_sub_u32 s{S_BOUND}, s{S_BOUND}, 1
        s_waitcnt vmcnt(0)
        s_cbranch_scc0 L_oc{k}
        s_mov_b32 s{S_BOUND}, 0
        s_branch L_og{k}''')
    for k in range(14): e(f'L_re{k}:\n{o_load(k)}')
    e('s_setpc_b64 s[90:91]')
sec('idle')
ROLE[0] = 2
e('L_ssm_idle:')
if OPT['only'] == 2:
    arrive(1); e('s_endpgm')
hi()
e(f"""v_lshrrev_b32 v10, 3, v{V_LANE}
v_and_b32 v11, 7, v{V_LANE}
v_lshlrev_b32 v11, 4, v11
v_mul_u32_u24 v5, 896, v10
v_add_u32 v5, v5, v11
v_add_u32 v6, {7168-1024}, v5
s_lshl2_add_u32 s60, s{S_J}, s{S_W}
s_mul_i32 s61, s60, {16*896}
s_mul_i32 s62, s{S_W}, 14336
s_add_u32 s62, s62, {L_SSM}
s_mov_b32 s{SRD_A+2}, {2048*896}
s_mov_b32 s{SRD_A+3}, 0x20000
s_waitcnt lgkmcnt(0)
s_load_dword s{S_NONCE}, s[28:29], 0
s_mov_b64 s[{SRD_A}:{SRD_A+1}], s[4:5]""")
for c in range(7):
    e(f"""s_add_u32 m0, s62, {2048*c - 128*c}
    s_nop 0
    buffer_load_dwordx4 v5, {sr(SRD_A)}, s61 offen offset:{128*c} lds
    buffer_load_dwordx4 v6, {sr(SRD_A)}, s61 offen offset:{1024 + 128*c} lds""")
    if c == 1:
        srd(SRD_WS, 28, WS_SIZE)
        e(f"""; transposing read: row = 8*(cc&1)+r', byte = 8*(2G+(cc>>1))
        v_mul_u32_u24 v7, {QS}, v10
        v_add_u32 v7, v7, v11
        v_bfe_u32 v8, v{V_LANE}, 2, 2
        v_and_b32 v9, 1, v{V_LANE}
        v_lshl_or_b32 v8, v9, 3, v8
        v_xor_b32 v8, 3, v8
        v_lshl_add_u32 v8, v8, 7, s62
        v_and_b32 v9, 0x30, v{V_LANE}
        v_add_u32 v8, v8, v9
        v_and_b32 v9, 2, v{V_LANE}
        v_lshl_add_u32 v8, v9, 2, v8
        s_lshl_b32 s63, s60, 7
        s_add_u32 s63, s63, {WS_U}
        s_mul_i32 s65, s{S_J}, {US}
        v_mov_b32 v12, 0x3f803f80
        v_mov_b32 v13, v12
        v_mov_b64 v[14:15], v[12:13]
        v_lshlrev_b32 v9, 4, v{V_LANE}
        s_lshl2_add_u32 s66, s{S_TILE}, s{S_W}
        s_lshl_b32 s66, s66, 8
        s_mul_i32 s67, s{S_HG}, {QS}
        s_add_u32 s66, s66, s67
        s_add_u32 s66, s66, {WS_V + 112*QS}
        s_add_u32 s65, s65, {F_U}""")
e('s_waitcnt lgkmcnt(0)')
TW = 0
if OPT['fwm'] & 1:
    TW = 1
    e(f'''v_mov_b32 v{V_T}, s{S_NONCE}
    v_lshlrev_b32 v5, 2, v{V_LANE}
    s_mov_b32 exec_hi, 0
    buffer_store_dword v{V_T}, v5, {sr(SRD_WS)}, s65 offen sc1
    s_mov_b64 exec, -1''')
e(f's_add_u32 s{S_NONCE}, s{S_NONCE}, 1')
arrive(1)
def t_rd(c):
    return [f'ds_read_b64_tr_b16 {vr(16 + 8*c + 4*z + 2*hf, 2)}, v8 offset:{2048*c + 64*z + 512*(1-hf)}' for z in range(2) for hf in range(2)]
e(f's_waitcnt vmcnt({12 + TW})'); stamp(1); e('\n'.join(t_rd(0)))
for c in range(7):
    if c < 6:
        e(f's_waitcnt vmcnt({10 + TW})'); e('\n'.join(t_rd(c + 1)))
    e(f"""s_add_u32 s64, s63, {8*QS}
    s_waitcnt lgkmcnt({4 if c < 6 else 0})
    buffer_store_dwordx4 {vr(16+8*c,4)}, v7, {sr(SRD_WS)}, s63 offen sc1
    buffer_store_dwordx4 {vr(20+8*c,4)}, v7, {sr(SRD_WS)}, s64 offen sc1
    s_add_u32 s63, s63, {16*QS}""")
assert OPT['ur'] == 1
e(f'''; the column quad of ones that gives the softmax row sums
s_mov_b64 exec, 0xffff
buffer_store_dwordx4 v[12:15], v9, {sr(SRD_WS)}, s66 offen sc1''')
stamp(2)
e(f'''s_mov_b64 exec, 1
v_mov_b32 v5, s{S_NONCE}
s_cmp_lg_u32 s{S_W}, 0
s_waitcnt vmcnt(0)
s_barrier
s_cbranch_scc1 L_idle_end
buffer_store_dword v5, v9, {sr(SRD_WS)}, s65 offen sc1''')
e('L_idle_end:\ns_mov_b64 exec, -1'); stamp(4)
prof_out()
e('s_endpgm')
ORDER = [['pro', 'ssm0', 'mha0', 'idle', 'ssm', 'mha'], ['pro', 'ssm0', 'mha0', 'mha', 'ssm', 'idle'],
         ['pro', 'ssm0', 'mha0', 'ssm', 'mha', 'idle'], ['pro', 'ssm0', 'idle', 'mha0', 'mha', 'ssm'],
         ['pro', 'ssm0', 'ssm', 'mha0', 'mha', 'idle'], ['pro', 'ssm0', 'ssm', 'idle', 'mha0', 'mha']][OPT['ord']] + ['cold', 'gt', 'fb']
SEC.setdefault('cold', [])
def add_nt(n, pred):
    SEC[n] = [(l.replace(' lds', ' nt lds') if l.endswith(' lds') else l + ' nt') if pred(l) else l for l in SEC[n]]
for n in ('mha0', 'mha', 'gt'):
    if OPT['nt'] & 1: add_nt(n, lambda l: l.endswith(' lds') and sr(SRD_A) in l)
    if OPT['nt'] & 2: add_nt(n, lambda l: l.endswith(' lds') and sr(SRD_B) in l)
if OPT['nt'] & 4: add_nt('idle', lambda l: l.endswith(' lds'))
if OPT['nt'] & 8: add_nt('ssm0', lambda l: 'global_load' in l)
if OPT['nt'] & 16: add_nt('ssm', lambda l: l.endswith(' lds'))
if OPT['nt'] & 32: add_nt('ssm', lambda l: 'buffer_store' in l and sr(SRD_C) in l)
BODY = sum((SEC[n] for n in ORDER), [])
def sizes(lines):
    import subprocess, re, os, tempfile
    d = tempfile.mkdtemp()
    open(d + '/a.s', 'w').write('.amdgcn_target "amdgcn-amd-amdhsa--gfx950"\n.text\n' + '\n'.join(lines) + '\n')
    subprocess.check_call(['clang', '-x', 'assembler', '-target', 'amdgcn-amd-amdhsa', '-mcpu=gfx950', '-c', d + '/a.s', '-o', d + '/a.o'])
    o = subprocess.check_output(['llvm-objdump', '-d', '--mcpu=gfx950', d + '/a.o']).decode()
    return [4 * len(m.group(1).split()) for m in re.finditer(r'// [0-9A-F]{12}: ((?:[0-9A-F]{8} ?)+)', o)]
def is_ins(l):
    t = l.split(';')[0].strip()
    return bool(t) and not t.endswith(':')
def widen(l):
    import re
    t = l.split(';')[0].strip(); op = t.split()[0]
    if op.startswith('v_') and not op.startswith(('v_readfirstlane', 'v_swap', 'v_permlane', 'v_nop')):
        return l.replace(op, op + '_e64', 1)
    return None
PGL = [l for b, l in ((1, 'L_mha:'), (2, 'L_gemm_v:'), (4, 'L_att:'), (8, 'L_ssm_idle:'), (16, 'L_ssm:'), (32, 'L_mha1:')) if OPT['pgm'] & b]
if OPT['al']:
    sz = iter(sizes(BODY))
    I = [[l, next(sz) if is_ins(l) else 0] for l in BODY]
    res = []; addr = 0; nw = nn = 0
    for i, (l, n) in enumerate(I):
        if l in PGL: addr = 0
        if n == 8 and addr % 8 == 4:
            run = 0
            for l2, n2 in I[i:]:
                if n2 == 4: break
                run += n2 == 8
            cross = sum(1 for k in range(run) if (addr + 8*k) % 32 == 28)
            if cross:
                j = len(res) - 1; done = False; aj = addr
                while j >= 0 and res[j][1] in (0, 4):
                    aj -= res[j][1]
                    t = res[j][0].strip()
                    if t.startswith(('s_branch', 's_endpgm', 's_setpc')):
                        res.insert(j + 1, ['    s_nop 0', 4]); done = True; break
                    w = widen(res[j][0]) if res[j][1] == 4 and aj % 32 != 28 else None
                    if w:
                        res[j] = [w, 8]; done = True; nw += 1; break
                    j -= 1
                if not done and run >= OPT['alr']:
                    k = len(res)
                    while res[k-1][1] == 0: k -= 1
                    res.insert(k, ['    s_nop 0', 4]); done = True; nn += 1
                if done: addr += 4
        res.append([l, n]); addr += n
    BODY = [l for l, n in res]
    print('aligned: widened', nw, 'nops', nn, 'bytes', addr, file=sys.stderr)
PG = '' if OPT['pg'] < 0 else f".p2align 12\n.fill {OPT['pg'] * 64}, 4, 0xbf800000\n"
for l in PGL: BODY.insert(BODY.index(l), '.p2align 12')
hdr = open('header.txt').read()
txt = hdr + f'''; @launch grid=(256,1,1) block=(512,1,1) lds={L_TOT}
.amdgcn_target "amdgcn-amd-amdhsa--gfx950"
.text
.globl {KN}
{PG}.p2align 8
.type {KN},@function
{KN}:
''' + '\n'.join(BODY) + f'''
.section .rodata,"a"
.p2align 6
.amdhsa_kernel {KN}
  .amdhsa_next_free_vgpr 256
  .amdhsa_next_free_sgpr 102
  .amdhsa_accum_offset 256
  .amdhsa_group_segment_fixed_size 0
  .amdhsa_kernarg_size 104
  .amdhsa_user_sgpr_count 2
  .amdhsa_user_sgpr_kernarg_segment_ptr 1
  .amdhsa_system_sgpr_workgroup_id_x 1
.end_amdhsa_kernel
'''
open(sys.argv[1], 'w').write(txt)
```

```python
import sys, struct
def fl(x): return hex(struct.unpack('<I', struct.pack('<f', x))[0])

KN = 'concat_heads__ssm_conv_s4d__softmax_full_mha__prompt_kernel'
OPT = dict(fwm=0, pg=13, pgm=32, pfm=7, rdr=0, pw=0, dm=0, rdf=0, rdv=0, rdt=0, only_st=0, ur=1, us=128, rd0=-1, rdm=0, probe=0, poff=0xc00000, nt=0, rdn=0, al=1, alr=6, fw=0, rsleep=0, hsleep=0, ord=2, nb=0, tb=13, tq=0, chkk=99, uw=-1, cw=0, s6=5, tskip=1, ones=1, pa=1, pr=2, pf=2, wgf=2, ax=0, bp=1, qa=7, n0=4, ilv=8, tlb=0, ulook=1, kgp=1, pad=0, ypad=0, omode=3, ksleep=0, usleep=4, obar=5, osleep=0, pubk=8, abl=0, touch=0, gs=0, kgw=0, xg=5, gx=0, pm=2, ps=0, rt=0, upub=1, kgx=0, outsc=0, ysleep=8, wodepth=4, wq_mid=0, pollk=99, rd=-1, rdrole=0, only=0, safe=0, rot=0, prof=0, fs=128, force_fb=0, wq_early=7, prio=1)
for a in sys.argv[2:]:
    k, v = a.split('=')
    assert k in OPT, k
    OPT[k] = int(v, 0)

FS = OPT['fs']
FSH = FS.bit_length() - 1
F_KV = 0x1000
F_O = F_KV + 1024 * FS
F_U = F_O + 1024 * FS
F_Y = F_U + 1024 * FS
F_H = F_Y + 1024 * FS
WS_K = 0x100000
WS_V = 0x300000
WS_O = 0x500000
WS_U = 0x700000
WS_Y = 0x900000
QS = 16384 + OPT['pad']; KS = 2 * QS; YS = 4096 + OPT['ypad']
S_KS = 57
WS_PROF = 0xb00000
F_U = 0xb80000 if OPT['us'] * OPT['ur'] > 4096 else F_U
US = OPT['us']
WS_SIZE = 0x1000000
L_SSM = 1024
L_W = 57344
L_RB = 65536
L_X = 114688
L_TOT = 163840
TROW = 288
TABSZ = 38 * TROW
L_TAB = L_SSM
P_SZ = 2 * TABSZ
P_UC = 1536
UC_S = 2240
P_KD = TABSZ + 1536
P_X = TABSZ
PS = 1552
PD = 4 * PS
L_KP = L_TAB + 4 * TABSZ
assert P_UC + 4 * UC_S <= TABSZ and P_KD + 1600 <= P_SZ and P_X + 8192 <= P_SZ and L_KP % 16 == 0 and L_KP + 2 * PD <= L_W
L_WO = L_SSM

S_WV, S_W, S_HG, S_C, S_TILE, S_J, S_H, S_NONCE, S_O0, S_I = range(30, 40)
SRD_WS, SRD_A, SRD_B, SRD_C = 40, 44, 48, 52
S_BOUND = 56
S_T0 = 58

SEC = {}
out = None
def sec(n):
    global out
    out = SEC.setdefault(n, [])
sec('pro')
def e(s):
    for l in s.split('\n'):
        l = l.strip()
        if l:
            out.append(l if l.endswith(':') else '    ' + l)
_lab = [0]
def lab(p):
    _lab[0] += 1
    return f'L_{p}_{_lab[0]}'
def vr(a, n):
    return f'v[{a}:{a+n-1}]' if n > 1 else f'v{a}'
def srd(d, b, n):
    e(f's_mov_b64 s[{d}:{d+1}], s[{b}:{b+1}]\ns_mov_b32 s{d+2}, {n}\ns_mov_b32 s{d+3}, 0x20000')
def sr(d): return f's[{d}:{d+3}]'

V_LANE, V_T, V_OWN, V_GRP, V_PROF = 0, 1, 2, 3, 4

ROLE = [0]
def stamp(i):
    if OPT['rd0'] == i and OPT['rdrole'] == ROLE[0]:
        e('s_memrealtime s[98:99]\ns_waitcnt lgkmcnt(0)')
    if OPT['rd'] == i and OPT['rdrole'] == ROLE[0]:
        e('s_memrealtime s[100:101]\ns_waitcnt lgkmcnt(0)')
    if (OPT['only_st'] >> (i + 32*min(ROLE[0], 1))) & 1 if OPT['only_st'] else OPT['prof'] > (i >= 14):
        e(f's_mem{"real" if OPT["rt"] else ""}time s[96:97]\ns_waitcnt lgkmcnt(0)\ns_sub_u32 s96, s96, s{98 if OPT["rt"] else S_T0}\nv_writelane_b32 v{V_PROF}, s96, {i}')
def prof_out():
    if OPT['rd'] >= 0 and OPT['rdrole'] == ROLE[0]:
        l = lab('pad')
        if ROLE[0] == 0 and not OPT['obar']: e('s_barrier')
        if ROLE[0] == 2: e('s_barrier')
        if OPT['rdr']:
            e(f'''s_lshl3_add_u32 s96, s2, s{S_WV}
            s_lshl_b32 s96, s96, 2
            s_add_u32 s96, s96, 0xb40000
            v_mov_b32 v6, 0
            buffer_load_dword v5, v6, {sr(SRD_WS)}, s96 offen sc1
            s_xor_b32 s97, s{S_NONCE}, 0x5a3c1e77
            v_mov_b32 v7, s97
            s_waitcnt vmcnt(0)
            buffer_store_dword v7, v6, {sr(SRD_WS)}, s96 offen sc1
            v_readfirstlane_b32 s96, v5
            s_xor_b32 s96, s96, 0x5a3c1e77
            s_add_u32 s96, s96, 1
            s_cmp_eq_u32 s96, s{S_NONCE}
            s_cbranch_scc{OPT['rdr'] - 1} L_end''')
        if OPT['rdf']: e(f"s_and_b32 s96, s2, {OPT['rdf']}\ns_cmp_lg_u32 s96, {OPT['rdv']}\ns_cbranch_scc1 L_end")
        if ROLE[0] == 0 and OPT['rdn']: e(f's_cmp_eq_u32 s{S_C}, 7\ns_cbranch_scc{2 - OPT["rdn"]} L_end')
        if OPT['rd'] == 98:
            e(f'''s_not_b32 s100, s100
            v_mov_b32 v5, s100
            v_mov_b32 v6, 0
            s_mov_b64 exec, 1
            global_atomic_umax v6, v5, s[26:27]
            s_waitcnt vmcnt(0)
            s_sleep 127
            s_sleep 127
            s_sleep 127
            s_sleep 127
            s_sleep 127
            global_load_dword v5, v6, s[26:27] sc1
            s_waitcnt vmcnt(0)
            v_readfirstlane_b32 s100, v5
            s_not_b32 s100, s100''')
        if OPT['probe']:
            op = {1: 'buffer_store_dwordx4 v[8:11], v5, s[52:55], s60 offen sc1', 2: 'buffer_load_dwordx4 v[8:11], v5, s[52:55], s60 offen sc1',
                  3: 'buffer_store_dwordx4 v[8:11], v5, s[52:55], s60 offen'}[OPT['probe'] & 3]
            if OPT['probe'] & 16: op = '\n'.join(op.replace('offen', f'offen offset:{1024*i}') for i in range(4))
            pre = 'buffer_load_dword v12, v6, s[52:55], s61 offen sc1\ns_waitcnt vmcnt(0)' if OPT['probe'] & 4 else ''
            if OPT['probe'] & 8: pre += '\nbuffer_store_dwordx4 v[8:11], v5, s[52:55], s60 offen sc1\ns_waitcnt vmcnt(0)\ns_sleep 40'
            e(f'''s_mov_b64 s[52:53], s[28:29]
            s_mov_b32 s54, 0x10000000
            s_mov_b32 s55, 0x20000
            L_prb:
            s_sleep 1
            s_memrealtime s[62:63]
            s_waitcnt lgkmcnt(0)
            s_sub_u32 s62, s62, s58
            s_cmp_lt_u32 s62, 3000
            s_cbranch_scc1 L_prb
            v_lshlrev_b32 v5, 4, v0
            v_mov_b32 v6, 0
            s_lshl2_add_u32 s60, s2, s{S_W}
            s_lshl_b32 s60, s60, {12 if OPT['probe'] & 16 else 10}
            s_add_u32 s60, s60, {OPT['poff']}
            s_mov_b32 s61, {OPT['poff'] + 0x180000}
            {pre}
            s_memrealtime s[62:63]
            s_waitcnt lgkmcnt(0)
            {op}
            s_waitcnt vmcnt(0)
            s_memrealtime s[100:101]
            s_waitcnt lgkmcnt(0)
            s_sub_u32 s100, s100, s62
            v_mov_b32 v8, s100
            s_lshl2_add_u32 s60, s2, s{S_W}
            s_lshl_b32 s60, s60, 2
            s_add_u32 s60, s60, {WS_PROF}
            buffer_store_dword v8, v6, s[52:55], s60 offen
            s_mul_i32 s100, s100, 20
            s_add_u32 s100, s100, s58''')
        elif OPT['rdm'] >= 3:
            key = {3: 's_and_b32 s96, s2, 7', 4: f's_mov_b32 s96, s{S_H}', 5: f's_mov_b32 s96, s{S_TILE}'}[OPT['rdm']]
            e(f'''s_sub_u32 s100, s100, s98
            s_sub_u32 s97, s98, s58
            s_mul_i32 s100, s100, 1000000
            s_mul_i32 s97, s97, 1000
            s_add_u32 s100, s100, s97
            s_add_u32 s100, s100, s2
            {key}
            s_lshl_b32 s96, s96, 2
            v_mov_b32 v5, s100
            v_mov_b32 v6, s96
            s_mov_b64 exec, 1
            global_atomic_umax v6, v5, s[26:27]
            s_waitcnt vmcnt(0)
            s_endpgm''')
        elif OPT['rdm'] == 2:
            e('''s_not_b32 s96, s58
            v_mov_b32 v5, s96
            v_mov_b32 v6, 0
            s_mov_b64 exec, 1
            global_atomic_umax v6, v5, s[26:27]
            s_waitcnt vmcnt(0)''' + '\ns_sleep 127' * 7 + '''
            global_load_dword v5, v6, s[26:27] sc1
            s_waitcnt vmcnt(0)
            v_readfirstlane_b32 s96, v5
            s_not_b32 s96, s96
            s_sub_u32 s100, s100, s96
            s_lshl_b32 s100, s100, 3
            s_add_u32 s100, s100, s96''')
        elif OPT['rdm']:
            e('s_sub_u32 s100, s100, s98')
            if OPT['rdt']: e(f"s_cmp_gt_u32 s100, {OPT['rdt']}\ns_cselect_b32 s100, 1280, 0")
            e('''v_mov_b32 v5, s100
            v_mov_b32 v6, 0
            s_mov_b64 exec, 1
            global_atomic_add v6, v5, s[26:27]
            s_waitcnt vmcnt(0)''' + '\ns_sleep 127' * 7 + '''
            global_load_dword v5, v6, s[26:27] sc1
            s_waitcnt vmcnt(0)
            v_readfirstlane_b32 s100, v5
            s_lshr_b32 s100, s100, 6
            s_add_u32 s100, s100, s58''')
        else: e('s_sub_u32 s100, s100, s98\ns_lshl_b32 s100, s100, 3\ns_add_u32 s100, s100, s58')
        e(f'''s_add_u32 s100, s100, 6000
        {l}:
        s_sleep 1
        s_memrealtime s[96:97]
        s_waitcnt lgkmcnt(0)
        s_sub_u32 s96, s96, s100
        s_cmp_lt_i32 s96, 0
        s_cbranch_scc1 {l}''')
    if OPT['prof']:
        e(f'''s_memrealtime s[96:97]
        s_waitcnt lgkmcnt(0)
        v_writelane_b32 v{V_PROF}, s96, 31
        v_writelane_b32 v{V_PROF}, s98, 30
        s_lshl_b32 s96, s2, 3
        s_add_u32 s96, s96, s{S_WV}
        s_lshl_b32 s96, s96, 7
        s_add_u32 s96, s96, {WS_PROF}
        v_lshlrev_b32 v{V_T}, 2, v{V_LANE}
        s_mov_b32 exec_hi, 0
        buffer_store_dword v{V_PROF}, v{V_T}, {sr(SRD_WS)}, s96 offen
        s_mov_b64 exec, -1''')

def arrive(stage):
    e(f'v_mov_b32 v{V_T}, {stage}\nds_write_b32 v{V_OWN}, v{V_T}')
def lwait(stage, addr=V_GRP, sleep=0):
    l = lab('lw')
    e(f'{l}:')
    if sleep: e(f's_sleep {sleep}')
    e(f'''ds_read_b32 v{V_T}, v{addr}
    s_waitcnt lgkmcnt(0)
    v_cmp_gt_u32 vcc, {stage}, v{V_T}''')
    if OPT['safe']:
        d = lab('ld')
        e(f'''s_cbranch_vccz {d}
        s_sub_u32 s{S_BOUND}, s{S_BOUND}, 1
        s_cbranch_scc0 {l}
        s_mov_b32 s{S_BOUND}, 0
        {d}:''')
    else:
        e(f's_cbranch_vccnz {l}')
def sync(stage):
    arrive(stage); lwait(stage)
def poll(voff, first_issued=False, sleep=0, reg=V_T):
    l, d, m = lab('pl'), lab('pd'), lab('pm')
    if first_issued == 2:
        e(f's_waitcnt vmcnt(0)\nv_cmp_ne_u32 vcc, s{S_NONCE}, v{reg}\ns_cbranch_vccnz {l}\n{d}:')
        cur = [n for n in SEC if SEC[n] is out][0]
        sec('cold')
        e(f'''{l}:
        buffer_load_dword v{reg}, v{voff}, {sr(SRD_WS)}, 0 offen sc1
        s_waitcnt vmcnt(0)
        v_cmp_ne_u32 vcc, s{S_NONCE}, v{reg}
        s_cbranch_vccz {d}
        s_sub_u32 s{S_BOUND}, s{S_BOUND}, 1
        s_cbranch_scc0 {l}
        s_mov_b32 s{S_BOUND}, 0
        s_branch {d}''')
        sec(cur)
        return
    if first_issued: e(f's_branch {m}')
    e(f'{l}:')
    if sleep: e(f's_sleep {sleep}')
    e(f'''buffer_load_dword v{reg}, v{voff}, {sr(SRD_WS)}, 0 offen sc1
    {m}:
    s_waitcnt vmcnt(0)
    v_cmp_ne_u32 vcc, s{S_NONCE}, v{reg}
    s_cbranch_vccz {d}
    s_sub_u32 s{S_BOUND}, s{S_BOUND}, 1
    s_cbranch_scc0 {l}
    s_mov_b32 s{S_BOUND}, 0
    {d}:''')
def publish(soff, tmp):
    if OPT['fw']:
        e(f'''v_mov_b32 v{V_T}, s{S_NONCE}
        v_lshlrev_b32 v{tmp}, 2, v{V_LANE}
        s_mov_b64 exec, {hex((1 << OPT['fw']) - 1)}
        buffer_store_dword v{V_T}, v{tmp}, {sr(SRD_WS)}, s{soff} offen sc1
        s_mov_b64 exec, -1'''.replace('s_mov_b64 exec, 0xffffffff', 's_mov_b32 exec_hi, 0'))
        return
    e(f'''v_mov_b32 v{V_T}, s{S_NONCE}
    v_mov_b32 v{tmp}, 0
    s_mov_b64 exec, 1
    buffer_store_dword v{V_T}, v{tmp}, {sr(SRD_WS)}, s{soff} offen sc1
    s_mov_b64 exec, -1''')
def swap23(d, s, t):
    e(f'''v_lshrrev_b32 v{t}, 1, v{s}
    v_xor_b32 v{t}, v{t}, v{s}
    v_and_b32 v{t}, 4, v{t}
    v_mul_u32_u24 v{t}, 3, v{t}
    v_xor_b32 v{d}, v{t}, v{s}''')
def rot_next(s):
    e(f's_add_u32 s{s}, s{s}, 1\ns_cmp_eq_u32 s{s}, 7\ns_cselect_b32 s{s}, 0, s{s}')

e(f'''s_cmp_ge_u32 s2, 256
s_cbranch_scc1 L_end''')
if OPT['prof']:
    e(f's_memtime s[{S_T0}:{S_T0+1}]\ns_memrealtime s[98:99]\nv_mov_b32 v{V_PROF}, 0')
if OPT['rd'] >= 0: e('s_memrealtime s[100:101]\ns_memrealtime s[58:59]\ns_memrealtime s[98:99]')
e(f'''s_load_dwordx16 s[4:19], s[0:1], 0
s_load_dwordx8 s[20:27], s[0:1], 64
s_load_dwordx2 s[28:29], s[0:1], 96
v_lshrrev_b32 v{V_OWN}, 6, v0
v_and_b32 v{V_LANE}, 63, v0
v_readfirstlane_b32 s{S_WV}, v{V_OWN}
v_lshlrev_b32 v{V_OWN}, 2, v{V_OWN}
v_mov_b32 v{V_T}, 0
ds_write2_b32 v{V_OWN}, v{V_T}, v{V_T} offset1:8
v_and_b32 v{V_GRP}, 3, v{V_LANE}
v_lshlrev_b32 v{V_GRP}, 2, v{V_GRP}
s_and_b32 s60, s2, 7
s_lshr_b32 s{S_J}, s2, 3
s_and_b32 s{S_HG}, s{S_J}, 1
s_lshr_b32 s{S_TILE}, s2, 4
s_lshl1_add_u32 s{S_H}, s60, s{S_HG}
s_lshl1_add_u32 s61, s60, s{S_TILE}
s_and_b32 s61, s61, 15
s_mul_i32 s60, s60, 14
s_add_u32 s60, s60, s61
s_lshl1_add_u32 s{S_I}, s60, s{S_HG}
s_lshr_b32 s{S_C}, s60, 4
s_cmp_ge_u32 s61, 14
s_cselect_b32 s{S_C}, 7, s{S_C}
s_and_b32 s{S_W}, s{S_WV}, 3
s_mov_b32 s{S_BOUND}, 0x40000
s_mov_b32 s{S_KS}, {KS}
s_cmp_lt_u32 s{S_WV}, 4
s_cbranch_scc1 L_mha''')

VX = 144; VACC = 96; VWF = 32; VPK = 128
VV, VK, VS, VO, VQ = 32, 64, 96, 160, 224
vWd = [5, 6]; vXd = [7, 8, 9, 10]; vXr = [11, 12, 13, 14]; vWb, vW0, vW1 = 15, 16, 17
vRho, vG, vSt, vQd, vQr, vFl, vA, vB, vC = 18, 19, 20, 21, 22, 23, 24, 25, 26
vKo0, vKo1, vVo, vIdx = 27, 28, 29, 30
sXb, sWb, sCh, sCw, sLx, sTmp, sTmp2, sSt, sS1, sS2, sFl = range(60, 71)
sK, sV, sIt = 71, 72, 73
sFo, sO0, sO1 = 84, 85, 86
vOs, vQw = vRho, vG
vRb = [7, 8, 9]; vQx = [11, 12, 13]; vRr = 10
sMask = 74
sOdd = 76

sec('mha0')
e('L_mha:')
if OPT['prio']: e(f"s_setprio {OPT['pm']}")
e(f'''s_mul_i32 s{S_O0}, s{S_H}, 7
s_lshr_b32 s{S_O0}, s{S_O0}, 1''')
e(f'''v_lshrrev_b32 v{vA}, 3, v{V_LANE}          ; r
v_and_b32 v{vB}, 7, v{V_LANE}                    ; p
v_lshlrev_b32 v{vC}, 1, v{vA}
v_and_b32 v{vC}, 4, v{vC}
v_xor_b32 v{vC}, v{vC}, v{vB}
v_lshlrev_b32 v{vC}, 4, v{vC}
v_mul_u32_u24 v{vWd[0]}, 2688, v{vA}
v_add_u32 v{vWd[0]}, v{vWd[0]}, v{vC}
v_add_u32 v{vWd[1]}, {8*2688-1024}, v{vWd[0]}
v_lshrrev_b32 v{vC}, 1, v{vA}
v_xor_b32 v{vC}, v{vC}, v{vB}
v_lshlrev_b32 v{vC}, 4, v{vC}
v_mul_u32_u24 v{vA}, 896, v{vA}
v_add_u32 v{vXd[0]}, v{vA}, v{vC}
v_xor_b32 v{vC}, 64, v{vC}
v_add_u32 v{vXd[1]}, v{vA}, v{vC}
v_add_u32 v{vXd[1]}, {7168-1024}, v{vXd[1]}
v_add_u32 v{vXd[2]}, {2*(7168-1024)}, v{vXd[0]}
v_add_u32 v{vXd[3]}, {2*(7168-1024)}, v{vXd[1]}
s_lshl2_add_u32 s{sXb}, s{S_TILE}, s{S_W}
s_lshl3_add_u32 s{sFl}, s{S_HG}, s{S_C}
s_lshl_b32 s{sFl}, s{sFl}, 6
s_add_u32 s{sFl}, s{sFl}, s{S_TILE if OPT['wgf'] else sXb}
s_lshl_b32 s{sFl}, s{sFl}, {FSH}
s_add_u32 s{sFl}, s{sFl}, {F_KV}
s_mul_i32 s{sXb}, s{sXb}, {32*896}
s_mul_i32 s{sWb}, s{S_HG}, 7
s_add_u32 s{sWb}, s{sWb}, s{S_C}
s_add_u32 s{sWb}, s{sWb}, 7
s_cmp_eq_u32 s{S_C}, 7
s_cselect_b32 s{sWb}, 0x100000, s{sWb}             ; no slab: these loads fall outside the buffer
s_lshl_b32 s{sWb}, s{sWb}, 7
s_mul_i32 s{sTmp}, s{S_W}, {16*2688}
s_add_u32 s{sWb}, s{sWb}, s{sTmp}
s_mul_i32 s{sLx}, s{S_W}, 12288
s_add_u32 s{sLx}, s{sLx}, {L_X}
s_lshl_b32 s{sS1}, s{S_W}, 11
s_add_u32 s{sS1}, s{sS1}, {L_W}
s_mov_b32 s{SRD_A+2}, {2048*896}
s_mov_b32 s{SRD_A+3}, 0x20000
s_mov_b32 s{SRD_B+2}, {448*1344*2}
s_mov_b32 s{SRD_B+3}, 0x20000
s_mov_b32 m0, s{sLx}
s_waitcnt lgkmcnt(0)
s_mov_b64 s[{SRD_A}:{SRD_A+1}], s[18:19]
s_mov_b64 s[{SRD_B}:{SRD_B+1}], s[20:21]
s_load_dword s{S_NONCE}, s[28:29], 0''')
stamp(22)
sWo = 88
def w_lines(st):
    return [f's_add_u32 m0, s{sS1}, {8192*st}', f's_add_u32 s{sWo+st}, s{sWb}, {64*2688*st}'] + \
           [f'buffer_load_dwordx4 v{vWd[i]}, {sr(SRD_B)}, s{sWo+st} offen offset:{1024*i} lds' for i in range(2)]
def x_chunk(st):
    return [f's_add_u32 m0, s{sLx}, {(st%3)*4096 - 128*st}', 's_nop 0'] + \
           [f'buffer_load_dwordx4 v{vXd[i]}, {sr(SRD_A)}, s{sXb} offen offset:{1024*i + 128*st} lds' for i in range(4)]
DM = []
for l in [x_chunk(0), w_lines(0)] + [w_lines(i) for i in range(1, 7)] + [x_chunk(1), x_chunk(2)]:
    DM += [l[:3]] + [[x] for x in l[3:]]
DM[0] = DM[0][2:]
for i, g in enumerate(DM[:OPT['n0']]):
    if i == OPT['nb']:
        e(f's_cmp_lg_u32 s{S_C}, 7\ns_cbranch_scc1 L_bar0\ns_waitcnt lgkmcnt(0)\nL_bar0:\ns_barrier'); stamp(23)
        if OPT['only'] == 1: e('s_endpgm')
    e('\n'.join(g))
DM = DM[OPT['n0']:]
stamp(24)
if OPT['ord'] not in (1, 3, 4, 5): e('s_branch L_mha1')
sec('mha')
e('L_mha1:')
stamp(25)
sec('tmp')
srd(SRD_WS, 28, WS_SIZE)
ONES = f'''s_bitcmp1_b32 s{S_H}, 0
s_cselect_b32 s{sTmp}, 0, 7
v_cmp_eq_u32 vcc, s{sTmp}, v{vA}
s_lshl_b32 s{sTmp}, s{S_O0}, 1
s_sub_u32 s{sTmp}, s{S_HG}, s{sTmp}
s_add_u32 s{sTmp}, s{sTmp}, 112
v_mov_b32 v{vB}, s{sTmp}
v_cndmask_b32 v{vA}, v{vA}, v{vB}, vcc
''' if OPT['ones'] else ''
FIX = f'v_cmp_lt_u32 vcc, 7, v{vB}\n'
FOM = f'''s_lshl_b32 s{sFo}, s{sTmp2}, 4
s_add_u32 s{sFo}, s{sFo}, s{S_H}
s_lshl_b32 s{sFo}, s{sFo}, {FSH}
s_add_u32 s{sFo}, s{sFo}, {F_O}
''' if OPT['omode'] != 3 else ''
e(f'''v_and_b32 v{vA}, 31, v{V_LANE}
v_lshrrev_b32 v{vG}, 5, v{V_LANE}''')
swap23(vRho, vA, vB)
e(f'''v_bfe_u32 v{vB}, v{vRho}, 1, 3
v_xor_b32 v{vB}, v{vB}, v{vG}
v_lshlrev_b32 v{vB}, 4, v{vB}
v_lshl_add_u32 v{vB}, v{vRho}, 7, v{vB}
v_add_u32 v{vXr[0]}, s{sLx}, v{vB}
v_xor_b32 v{vXr[1]}, 32, v{vXr[0]}
v_xor_b32 v{vXr[2]}, 64, v{vXr[0]}
v_xor_b32 v{vXr[3]}, 0x60, v{vXr[0]}
v_and_b32 v{vB}, 3, v{V_LANE}                     ; cc
v_lshrrev_b32 v{vC}, 1, v{vB}
v_and_b32 v{vQd}, 1, v{vB}
v_lshl_or_b32 v{vC}, v{vQd}, 1, v{vC}
v_bfe_u32 v{vQd}, v{V_LANE}, 4, 1
v_lshl_or_b32 v{vB}, v{vQd}, 2, v{vB}              ; mq natural
v_lshl_or_b32 v{vC}, v{vQd}, 2, v{vC}
v_bfe_u32 v{vQd}, v{V_LANE}, 2, 2                  ; r'
v_lshl_or_b32 v{vFl}, v{vG}, 3, v{vQd}             ; 8g + r'
v_lshlrev_b32 v{vQr}, 6, v{vFl}
v_lshl_add_u32 v{vQr}, v{vC}, 3, v{vQr}
v_add_u32 v{vQr}, {L_X + 4096}, v{vQr}
s_cmp_eq_u32 s{S_HG}, 0
s_cselect_b64 vcc, -1, 0
v_cndmask_b32 v{vB}, v{vB}, v{vC}, vcc             ; K slabs use the exchanged order, V slabs the natural one
v_lshlrev_b32 v{vWb}, 7, v{vFl}
v_lshl_add_u32 v{vWb}, v{vB}, 3, v{vWb}
v_lshrrev_b32 v{vQd}, 1, v{vQd}
v_lshl_add_u32 v{vWb}, v{vQd}, 6, v{vWb}
v_add_u32 v{vW0}, {L_W}, v{vWb}
v_lshlrev_b32 v{vB}, 4, v{vRho}
v_mad_u32_u24 v{vB}, v{vG}, s{S_KS}, v{vB}
v_lshrrev_b32 v{vC}, 2, v{vA}
v_mul_u32_u24 v{vC}, {QS}, v{vC}
v_lshl_add_u32 v{vC}, v{vG}, 6, v{vC}
v_and_b32 v{vQd}, 3, v{vA}
v_lshl_add_u32 v{vC}, v{vQd}, 4, v{vC}
v_cndmask_b32 v{vSt}, v{vC}, v{vB}, vcc
s_lshl2_add_u32 s{sTmp}, s{S_TILE}, s{S_W}
s_lshl_b32 s{sTmp2}, s{sTmp}, 9
s_add_u32 s{sTmp2}, s{sTmp2}, {WS_K}
s_lshl_b32 s{sTmp}, s{sTmp}, 8
s_add_u32 s{sTmp}, s{sTmp}, {WS_V}
s_movk_i32 s{sS2}, 128
s_cmp_eq_u32 s{S_HG}, 0
s_cselect_b32 s{sSt}, s{sTmp2}, s{sTmp}
s_cselect_b32 s{sS2}, {2*KS}, s{sS2}
s_mul_i32 s{sTmp}, s{S_C}, {8*KS}
s_add_u32 s{sSt}, s{sSt}, s{sTmp}
v_lshrrev_b32 v{vB}, 2, v{V_LANE}
v_mul_u32_u24 v{vB}, 2688, v{vB}
v_lshl_add_u32 v{vQd}, v{vQd}, 4, v{vB}
s_lshl_b32 s82, s{S_O0}, 4
s_mul_i32 s{sTmp}, s{S_W}, {16*2688}
s_add_u32 s82, s82, s{sTmp}
s_lshr_b32 s{sTmp}, s{S_O0}, 3
s_add_u32 s{sTmp2}, s{S_O0}, 3
s_lshr_b32 s{sTmp2}, s{sTmp2}, 3
s_sub_u32 s{sTmp2}, s{sTmp2}, s{sTmp}
v_bfe_u32 v{vC}, v{V_LANE}, 4, 1
v_mul_u32_u24 v{vC}, s{sTmp2}, v{vC}
v_lshl_add_u32 v{vC}, v{vG}, 3, v{vC}
v_add_u32 v{vC}, s{sTmp}, v{vC}
v_and_b32 v{vB}, 15, v{V_LANE}
{FIX}v_and_b32 v{vB}, {3 if OPT['wgf'] else 15}, v{V_LANE}
v_lshl_add_u32 v{vC}, v{vC}, 6, v{vB}
s_lshl_b32 s{sTmp}, s{S_W}, {2 if OPT['wgf'] else 4}
v_add_u32 v{vC}, s{sTmp}, v{vC}
v_lshlrev_b32 v{vC}, {FSH}, v{vC}
v_add_u32 v{vFl}, {F_KV}, v{vC}
s_lshl3_add_u32 s{sTmp}, s{S_W}, s{S_HG}
s_mul_i32 s{sTmp}, s{sTmp}, {US}
s_add_u32 s{sTmp}, s{sTmp}, {F_U}
v_mul_u32_u24 v{vB}, {2*US}, v{vB}
v_add_u32 v{vB}, s{sTmp}, v{vB}
v_cndmask_b32 v{vFl}, v{vFl}, v{vB}, vcc
v_lshlrev_b32 v{vKo0}, 4, v{vA}
v_mad_u32_u24 v{vKo0}, v{vG}, s{S_KS}, v{vKo0}
v_add_u32 v{vKo1}, {2*KS}, v{vKo0}
v_lshrrev_b32 v{vA}, 2, v{vRho}
{ONES}v_mul_u32_u24 v{vA}, {QS}, v{vA}
v_lshl_add_u32 v{vA}, v{vG}, 6, v{vA}
v_and_b32 v{vB}, 3, v{V_LANE}
v_lshl_add_u32 v{vVo}, v{vB}, 4, v{vA}
v_mov_b32 v{vIdx}, 0xdddddddd
s_mul_i32 s{sTmp}, s{S_O0}, {KS}
s_lshl_b32 s{sK}, s{S_W}, 13
s_add_u32 s{sK}, s{sK}, s{sTmp}
s_add_u32 s{sK}, s{sK}, {WS_K}
s_lshl_b32 s{sV}, s{S_W}, 12
s_add_u32 s{sV}, s{sV}, s{sTmp}
s_add_u32 s{sV}, s{sV}, {WS_V}
s_lshl2_add_u32 s{sTmp2}, s{S_TILE}, s{S_W}
{FOM}s_lshl_b32 s{sTmp2}, s{sTmp2}, 9
s_add_u32 s{sO0}, s{sTmp}, s{sTmp2}
s_add_u32 s{sO0}, s{sO0}, {WS_O}
s_add_u32 s{sO1}, s{sO0}, {2*KS}
s_bitcmp1_b32 s{S_H}, 0
s_cselect_b64 s[{sOdd}:{sOdd+1}], -1, 0
; per-lane multipliers for Q: scale*log2(e), zero on the four slots that belong to the neighbour head
v_mov_b32 v{vC}, 0x3e8b97f6
v_cmp_gt_u32 vcc, 32, v{V_LANE}
s_and_b64 s[78:79], vcc, s[{sOdd}:{sOdd+1}]
s_nor_b64 s[80:81], vcc, s[{sOdd}:{sOdd+1}]
v_cndmask_b32 v{vA}, v{vC}, 0, s[78:79]
v_cndmask_b32 v{vB}, v{vC}, 0, s[80:81]
s_mov_b32 s78, 0x3f803f80
s_mov_b32 s79, s78
v_xor_b32 v{vW1}, 64, v{vW0}
v_lshlrev_b32 v{vOs}, 4, v{vRho}
v_mad_u32_u24 v{vOs}, v{vG}, s{S_KS}, v{vOs}
v_lshl_add_u32 v{vQw}, v{V_LANE}, 4, s{sLx}''')
srd(SRD_C, 28, WS_SIZE)
def o_stores(r0, r1, tag):
    e(f'''s_bitcmp1_b32 s{S_H}, 0
    s_cbranch_scc1 L_ost_odd{tag}
    buffer_store_dwordx4 {vr(r0,4)}, v{vOs}, {sr(SRD_WS)}, s{sO0} offen sc1
    s_mov_b32 exec_hi, 0
    buffer_store_dwordx4 {vr(r1,4)}, v{vOs}, {sr(SRD_WS)}, s{sO1} offen sc1
    s_not_b64 exec, exec
    buffer_store_dwordx2 {vr(r1,2)}, v{vOs}, {sr(SRD_WS)}, s{sO1} offen sc1
    s_branch L_ost_done{tag}
    L_ost_odd{tag}:
    buffer_store_dwordx4 {vr(r1,4)}, v{vOs}, {sr(SRD_WS)}, s{sO1} offen sc1
    s_mov_b32 exec_hi, 0
    buffer_store_dwordx2 {vr(r0+2,2)}, v{vOs}, {sr(SRD_WS)}, s{sO0} offen offset:8 sc1
    s_not_b64 exec, exec
    buffer_store_dwordx4 {vr(r0,4)}, v{vOs}, {sr(SRD_WS)}, s{sO0} offen sc1
    L_ost_done{tag}:
    s_mov_b64 exec, -1''')
GS = 0
AB = [l for l in SEC.pop('tmp') if not l.strip().startswith(';')]
sec('mha')
def scc_pending(i):
    return i < len(AB) and AB[i].strip().startswith(('s_cselect', 's_mov_b32 s75'))
pos = 0
for g in DM:
    n = pos + OPT['ilv']
    while scc_pending(n): n += 1
    e('\n'.join(AB[pos:n])); pos = n
    e('\n'.join(g))
e('\n'.join(AB[pos:]))
stamp(0)
def x_reads(s):
    return [f'ds_read_b128 {vr(VX + 16*s + 4*ks, 4)}, v{vXr[ks]} offset:{(s%3)*4096}' for ks in range(4)]
e('s_waitcnt vmcnt(22)')
e('\n'.join(x_reads(0)))
e('s_waitcnt vmcnt(8) lgkmcnt(0)')
arrive(1)
stamp(1)
e('\n'.join(x_chunk(3)))
e('s_waitcnt vmcnt(8)')
e('\n'.join(x_reads(1)))
lwait(1)
if OPT['fwm'] & 2:
    e(f'''v_mov_b32 v{V_T}, s{S_NONCE}
    v_lshlrev_b32 v31, 2, v{V_LANE}
    s_mov_b32 exec_hi, 0
    buffer_store_dword v{V_T}, v31, {sr(SRD_WS)}, s{sFl} offen sc1
    s_mov_b64 exec, -1''')
e(f's_add_u32 s{S_NONCE}, s{S_NONCE}, 1')
stamp(2)
def w_reads(s):
    r = []
    for ks in range(4):
        for ct in range(2):
            for hf in range(2):
                d = VWF + 32 * (s & 1) + 8 * ks + 4 * ct + 2 * hf
                r.append(f'ds_read_b64_tr_b16 {vr(d,2)}, v{(vW0, vW1)[ct]} offset:{s*8192 + ks*2048 + hf*512}')
    return r
if OPT['tskip']: e(f's_cmp_eq_u32 s{S_C}, 7\ns_cbranch_scc1 L_gemm_t')
e('\n'.join(w_reads(0)))
e(f'''s_waitcnt lgkmcnt(0)
s_cmp_lg_u32 s{S_HG}, 0
s_cbranch_scc1 L_gemm_v''')
sQb, sQc = 82, 83
NE = OPT['wq_early']
def wq_dma(st):
    return [f's_add_u32 m0, s{sLx}, {4096 + 1024*st}\ns_add_u32 s83, s82, {64*2688*st}', '', f'buffer_load_dwordx4 v{vQd}, {sr(SRD_B)}, s83 offen lds']
SPIN = []
def gemm1(vpart):
    for s in range(7):
        M = []
        for ks in range(4):
            for ct in range(2):
                wf = vr(VWF + 32 * (s & 1) + 8 * ks + 4 * ct, 4); xf = vr(VX + 16 * s + 4 * ks, 4)
                acc = vr(VACC + 16 * ct, 16)
                a, b = (xf, wf) if vpart else (wf, xf)
                M.append(f'v_mfma_f32_32x32x16_bf16 {acc}, {a}, {b}, {"0" if s == 0 and ks == 0 else acc}')
        gaps = [[] for _ in range(8)]
        tag = f'{"v" if vpart else "k"}{s}'
        pre = []
        dm = []
        def add(l): dm.extend([(l[0], l[2])] + [(None, x) for x in l[3:]])
        if s <= 2: add(x_chunk(s + 4))
        if s == 3:
            for i in range(min(NE, 4)): add(wq_dma(i))
        if s == 4:
            for i in range(4, NE): add(wq_dma(i))
        FW = 1 if OPT['fwm'] & 2 else 0
        n = {0: 8 + FW, 1: 8 + FW, 2: 8, 3: 4 + min(NE, 4), 4: NE}.get(s)
        for i, (m, l) in enumerate(dm):
            if m: (pre if i == 0 else gaps[i - 1]).append(m)
            gaps[i].append(l)
        if s < 6:
            wr = w_reads(s + 1)
            for i, (p, q) in enumerate(((0, 3), (3, 6), (6, 9), (9, 12), (12, 16))): gaps[i] += wr[p:q]
            if s <= 4: gaps[OPT['xg']] += [f's_waitcnt vmcnt({n})'] + x_reads(s + 2)
            gaps[7] += [f's_waitcnt lgkmcnt({4 if s == 4 and OPT["s6"] != 4 else 0})']
        if s == OPT['s6'] and (OPT['uw'] == 6 or OPT['cw'] == 6): gaps[6] += [f'v_mov_b32 v{V_T}, 6', f'ds_write_b32 v{V_OWN}, v{V_T}']
        if s == 5:
            gaps[7] += [f'v_add_u32 v31, 16, v{V_GRP}', f'ds_read_b32 v31, v31']
        if s == 6 and NE == 7:
            gaps[OPT['qa']] += ['s_waitcnt vmcnt(0)', f'v_mov_b32 v{V_T}, 7', f'ds_write_b32 v{V_OWN}, v{V_T}']
        e('\n'.join(pre))
        if OPT['gx'] & 1 or vpart == 2: M = ['s_nop 0'] * 8
        if OPT['gx'] & 2 or vpart == 2: gaps = [[x for x in g if 'tr_b16' not in x] for g in gaps]
        for i in range(8):
            e(M[i]); e('\n'.join(gaps[i]))
        stamp(14 + s)
if OPT['tskip']:
    sec('gt'); e('L_gemm_t:'); gemm1(2); e('s_branch L_gemm_done'); sec('mha')
else: SEC['gt'] = []
gemm1(False)
e('s_branch L_gemm_done\nL_gemm_v:')
gemm1(True)
e('L_gemm_done:')
stamp(3)
e(f"""s_add_u32 s{sS1}, s{sSt}, s{sS2}
s_add_u32 s{sXb}, s{sSt}, {4*KS}
s_add_u32 s{sCw}, s{sS1}, {4*KS}
s_cmp_eq_u32 s{S_C}, 7
s_waitcnt lgkmcnt(0)
s_cbranch_scc1 L_nokv""")
PWS = 3 if OPT['pw'] else 1
e(f'v_cmp_gt_u32 vcc, {PWS}, v31\ns_cbranch_vccz L_eok\nv_add_u32 v31, 16, v{V_GRP}')
lwait(PWS, addr=31)
e('L_eok:\ns_nop 2')
for q, so in enumerate((sSt, sS1, sXb, sCw)):
    for i in range(4*q, 4*q+4):
        e(f'v_cvt_pk_bf16_f32 v{VPK + i}, v{VACC + 2*i}, v{VACC + 2*i + 1}')
    e(f'buffer_store_dwordx4 {vr(VPK+4*q,4)}, v{vSt}, {sr(SRD_WS)}, s{so} offen sc1')
e('L_nokv:')
assert OPT['wgf'] and OPT['ones'] and OPT['pf'] == 2
def kv_loads(buf, i, srdn=SRD_C):
    return [f'buffer_load_dwordx4 {vr(VK + 8*buf, 4)}, v{vKo0}, {sr(srdn)}, s{sK} offen offset:{512*i} sc1',
            f'buffer_load_dwordx4 {vr(VK + 8*buf + 4, 4)}, v{vKo1}, {sr(srdn)}, s{sK} offen offset:{512*i} sc1',
            f'buffer_load_dwordx4 {vr(VV + 8*buf, 4)}, v{vVo}, {sr(srdn)}, s{sV} offen offset:{256*i} sc1',
            f'buffer_load_dwordx4 {vr(VV + 8*buf + 4, 4)}, v{vVo}, {sr(srdn)}, s{sV} offen offset:{256*i + 128} sc1']
fill = [f'v_mov_b64 {vr(VV+2*i,2)}, s[78:79]' for i in range(12, 16)] + [f'v_subrev_u32 v{vRr}, {L_X - L_RB}, v{vQw}', 's_mov_b64 s[80:81], -1']
for s in range(3):
    fill += f"""s_add_u32 s{sTmp}, s{S_W}, {1+s}
    s_and_b32 s{sTmp}, s{sTmp}, 3
    s_sub_u32 s{sTmp}, s{sTmp}, s{S_W}
    s_mul_i32 s{sTmp}, s{sTmp}, 12288
    v_add_u32 v{vQx[s]}, s{sTmp}, v{vQw}
    v_subrev_u32 v{vRb[s]}, {L_X - L_RB - 4096*s}, v{vQx[s]}""".split('\n')
def count_in(n):
    e(f"""v_mov_b32 v{V_T}, 1
    v_mov_b32 v31, 0
    s_waitcnt vmcnt({n})
    s_mov_b64 exec, 1
    ds_add_rtn_u32 v{vSt}, v31, v{V_T} offset:32
    s_mov_b64 exec, -1""")
def count_out(n):
    e(f's_waitcnt lgkmcnt({n})\nv_readfirstlane_b32 s{sTmp2}, v{vSt}\ns_cmp_lg_u32 s{sTmp2}, 3\ns_cbranch_scc1 L_nopub')
    publish(sFl, 31)
    e('L_nopub:'); stamp(5)
NM = max(NE, OPT['wq_mid'])
for st in range(NE, NM): e('\n'.join(wq_dma(st)))
stamp(4)
if NE < 7:
    e('\n'.join(fill)); fill = []
    count_in(NM - NE)
    if NM == 7:
        e('s_waitcnt vmcnt(0)'); arrive(7); count_out(1)
    else:
        count_out(0)
        for st in range(NM, 7): e('\n'.join(wq_dma(st)))
        e('s_waitcnt vmcnt(0)'); arrive(7)
lwait(7)
stamp(6)
QB = [80, 84, 88, 92, 112, 116, 120, 124]
def q_reads(k):
    s, ks = divmod(k, 4)
    return [f'ds_read_b64_tr_b16 {vr(QB[k%8] + 2*hf, 2)}, v{vQr} offset:{ks*12288 + s*1024 + hf*256}' for hf in range(2)]
for k in range(6): e('\n'.join(q_reads(k)))
e('\n'.join(fill[:12])); fill = fill[12:]
zi = 0
PK = OPT['pubk'] if NE == 7 else -99
for k in range(28):
    extra = 1 if PK < k <= PK + 5 else 0
    e(f's_waitcnt lgkmcnt({min(10, 2*(27-k)) + extra})')
    e(f'v_mfma_f32_32x32x16_bf16 {vr(VACC,16)}, {vr(QB[k%8], 4)}, {vr(VX + 4*k, 4)}, {"0" if k == 0 else vr(VACC,16)}')
    if k + 6 < 28: e('\n'.join(q_reads(k + 6)))
    while zi < 40 and VX + 2*zi + 1 < VX + 4*k - 4 and zi < 2*k:
        e(f'v_mov_b64 {vr(VX + 2*zi, 2)}, 0'); zi += 1
    if k >= 22 or k < 2:
        e('\n'.join(fill[:4])); fill = fill[4:]
    if k == PK: count_in(0)
    if k == PK + OPT['wgf']: count_out(2*OPT['wgf'])
    if k == OPT['pollk']: e(f'buffer_load_dword v31, v{vFl}, {sr(SRD_WS)}, 0 offen sc1')
    if k == OPT['chkk']:
        e(f's_waitcnt vmcnt(0)\nv_cmp_ne_u32 vcc, s{S_NONCE}, v31\ns_mov_b64 s[80:81], vcc\ns_cbranch_vccnz L_kv_late')
        for t in range(2): e('\n'.join(kv_loads(t, t)))
        e('L_kv_late:')
assert zi == 40 and VX == VS + 48 and not fill
stamp(7)
e('s_nop 11')
for r in range(16):
    m = vA if r < 4 else (vB if r >= 12 else vC)
    e(f'v_mul_f32 v{VACC + r}, v{m}, v{VACC + r}')
for i in range(8):
    e(f'v_cvt_pk_bf16_f32 v{VQ + 24 + i}, v{VACC + 2*i}, v{VACC + 2*i + 1}')
e(f"""ds_write_b128 v{vQw}, {vr(VQ+24,4)}
ds_write_b128 v{vQw}, {vr(VQ+28,4)} offset:1024""")
arrive(8)
lwait(8)
for s in range(3):
    e(f'ds_read_b128 {vr(VQ+8*s,4)}, v{vQx[s]}\nds_read_b128 {vr(VQ+8*s+4,4)}, v{vQx[s]} offset:1024')
PF = OPT['pf']
if OPT['chkk'] < 28: e('s_cmp_eq_u64 s[80:81], 0\ns_cbranch_scc1 L_kv_done')
poll(vFl, first_issued=OPT['pollk'] < 28 and OPT['chkk'] > 27, reg=31, sleep=OPT['ksleep'])
for t in range(PF): e('\n'.join(kv_loads(t, t)))
e('L_kv_done:')
stamp(8)
OM = OPT['omode']
if OM:
    e(f'''s_lshr_b32 s{sTmp}, s{S_O0}, 3
    s_add_u32 s{sTmp2}, s{S_O0}, 3
    s_lshr_b32 s{sTmp2}, s{sTmp2}, 3
    s_sub_u32 s{sTmp2}, s{sTmp2}, s{sTmp}
    s_lshl_b32 s{sTmp2}, s{sTmp2}, 1
    s_lshl2_add_u32 s{sSt}, s{S_TILE}, s{S_W}
    s_lshr_b32 s{sS1}, s{sSt}, 1
    s_mul_i32 s{sS1}, s{sS1}, 12
    s_add_u32 s{sSt}, s{sSt}, s{sS1}
    s_lshl1_add_u32 s{sTmp}, s{sTmp}, s{sSt}
    s_lshl_b32 s{sTmp}, s{sTmp}, {FSH}
    s_add_u32 s{sTmp}, s{sTmp}, {F_Y}
    v_and_b32 v{vFl}, 1, v{V_LANE}
    v_mul_u32_u24 v{vFl}, s{sTmp2}, v{vFl}
    v_and_b32 v31, 2, v{V_LANE}
    v_lshl_add_u32 v{vFl}, v31, 8, v{vFl}
    v_lshl_add_u32 v{vFl}, v{vFl}, {FSH}, s{sTmp}''')
def qk(buf, slot, js):
    d = vr(VS + 16*slot, 16)
    return f'v_mfma_f32_32x32x16_bf16 {d}, {vr(VK + 8*buf + 4*js, 4)}, {vr(VQ + 8*slot + 4*js, 4)}, {"0" if js == 0 else d}'
def pv(buf, slot, js):
    return f'v_smfmac_f32_32x32x32_bf16 {vr(VO + 16*slot, 16)}, {vr(VV + 8*buf + 4*js, 4)}, {vr(VS + 16*slot + 8*js, 8)}, v{vIdx}'
def exps(s): return [f'v_exp_f32 v{VS + 16*s + r}, v{VS + 16*s + r}' for r in range(16)]
SPREAD = []
def unit(t, s):
    ex = exps(s)
    if OPT['ax'] & 16 and s in (0, 1, 2):
        pass
    nb = t if s < 3 else (t + 1) & 3
    pb = t if s > 0 else (t - 1) & 3
    if s == 3: e(f's_waitcnt vmcnt({4*PF-4})')
    e(qk(nb, (s+1) & 3, 0)); e('\n'.join(ex[0:4]))
    e(qk(nb, (s+1) & 3, 1)); e('\n'.join(ex[4:8]))
    e(pv(pb, (s-1) & 3, 0))
    if s == 1:
        kl = kv_loads((t + PF) & 3, t + PF)
        if OPT['ax'] & 1: kl = [x for x in kl if 'exec' not in x]
        if OPT['ax'] & 2: kl = [x for x in kl if 'buffer' not in x]
        if OPT['ax'] & 4: kl = [x.replace(' sc1', '') for x in kl]
        if OPT['ax'] & 8: SPREAD.extend(kl); kl = []
        e('\n'.join(kl))
        if t == 3 - PF:
            e(f's_cmp_eq_u32 s{sIt}, 3\ns_cselect_b32 s{SRD_C+2}, 0, s{SRD_C+2}')
        if t == 3:
            e(f's_add_u32 s{sK}, s{sK}, 2048\ns_add_u32 s{sV}, s{sV}, 1024\ns_add_u32 s{sIt}, s{sIt}, 1\ns_cmp_lg_u32 s{sIt}, 4')
    e('\n'.join(ex[8:12]))
    e(pv(pb, (s-1) & 3, 1)); e('\n'.join(ex[12:16]))
e(f's_mov_b32 s{sIt}, 0\ns_waitcnt vmcnt({4*PF - 4}) lgkmcnt(0)')
stamp(9)
e(qk(0, 0, 0)); e(qk(0, 0, 1))
e(f"s_setprio {OPT['pa']}\ns_nop 8\ns_branch L_att_in" if OPT['prio'] else 's_nop 9\ns_branch L_att_in')
e('L_att:')
unit(3, 2); unit(3, 3)
e('L_att_in:')
for t in range(4):
    for s in range(4):
        if (t, s) < (3, 2): unit(t, s)
e('s_cbranch_scc1 L_att')
if OPT['prio']: e(f"s_setprio {OPT['pm']}")
if OM: e(f'buffer_load_dword v31, v{vFl}, {sr(SRD_WS)}, 0 offen sc1')
def rbw(s): return [f'ds_write_b128 v{vRb[s]}, {vr(VO + 16*s + 4*i, 4)} offset:{1024*i}' for i in range(4)]
ex = exps(2); w0 = rbw(0)
e(qk(3, 3, 0)); e('\n'.join(ex[0:4])); e(qk(3, 3, 1)); e('\n'.join(ex[4:7] + [w0[0]]))
e(pv(3, 1, 0)); e('\n'.join(ex[7:10] + [w0[1]])); e(pv(3, 1, 1)); e('\n'.join(ex[10:13] + [w0[2]] + ex[13:16] + [w0[3]]))
ex = exps(3); w1 = rbw(1); w2 = rbw(2)
e(pv(3, 2, 0)); e('\n'.join(ex[0:3])); e(pv(3, 2, 1))
e('\n'.join([w1[0]] + ex[3:5] + [w1[1]] + ex[5:7] + [w1[2]] + ex[7:9] + [w1[3]] + ex[9:10]))
e(pv(3, 3, 0))
e('\n'.join([w2[0]] + ex[10:12] + [w2[1]] + ex[12:14] + [w2[2]] + ex[14:16] + [w2[3]]))
arrive(9)
e(pv(3, 3, 1))
stamp(10)
lwait(9)
for i in range(12): e(f'ds_read_b128 {vr(VS + 4*i, 4)}, v{vRr} offset:{1024*i}')
OA = VO + 48
for s in range(3):
    e(f's_waitcnt lgkmcnt({8 - 4*s})')
    for i in range(8): e(f'v_pk_add_f32 {vr(OA+2*i,2)}, {vr(OA+2*i,2)}, {vr(VS+16*s+2*i,2)}')
e(f's_mov_b32 s{sIt}, {1 if OPT["force_fb"] else 0}')
e(f'''L_norm:
v_cndmask_b32 v{vA}, v{OA+12}, v{OA}, s[{sOdd}:{sOdd+1}]
v_max3_f32 v{vC}, abs(v{OA}), abs(v{OA+1}), abs(v{OA+2})
v_mov_b32 v{vB}, v{vA}
v_max3_f32 v{vC}, abs(v{OA+3}), abs(v{OA+4}), v{vC}
v_max3_f32 v{vC}, abs(v{OA+5}), abs(v{OA+6}), v{vC}
v_permlane32_swap_b32 v{vA}, v{vB}
v_max3_f32 v{vC}, abs(v{OA+7}), abs(v{OA+8}), v{vC}
v_cndmask_b32 v{vB}, v{vB}, v{vA}, s[{sOdd}:{sOdd+1}]
v_max3_f32 v{vC}, abs(v{OA+9}), abs(v{OA+10}), v{vC}
v_rcp_f32 v{vA}, v{vB}
v_max3_f32 v{vC}, abs(v{OA+11}), abs(v{OA+12}), v{vC}
v_max3_f32 v{vC}, abs(v{OA+13}), abs(v{OA+14}), v{vC}
v_max_f32 v{vC}, abs(v{OA+15}), v{vC}
v_cmp_nle_f32 vcc, 0x30800000, v{vB}
s_mov_b64 s[78:79], vcc
v_cmp_nge_f32 vcc, 0x4e800000, v{vB}
s_or_b64 s[78:79], s[78:79], vcc
v_cmp_ngt_f32 vcc, 0x7f000000, v{vC}
s_or_b64 vcc, s[78:79], vcc''')
if OPT['force_fb']:
    e(f's_cmp_eq_u32 s{sIt}, 1\ns_cbranch_scc1 L_fb')
e('s_cbranch_vccnz L_fb0\nL_norm2:')
for i in range(8): e(f'v_pk_mul_f32 {vr(OA+2*i,2)}, {vr(OA+2*i,2)}, {vr(vA,2)} op_sel_hi:[1,0]')
for i in range(8): e(f'v_cvt_pk_bf16_f32 v{VS+i}, v{OA+2*i}, v{OA+2*i+1}')
if OM: poll(vFl, first_issued=2, reg=31)
o_stores(VS, VS + 4, '')
stamp(11)
if OM == 4: publish(sFo, vA)
if OPT['obar'] == 1: e('s_barrier')
if OPT['obar'] >= 3: e(f"s_waitcnt vmcnt({5 - OPT['obar'] + (OM == 4)})\ns_barrier")
if OM == 0:
    e('s_waitcnt vmcnt(0)'); publish(sFo, vA)
if OPT['obar'] == 2: e('s_barrier')
stamp(12)
prof_out()
e('s_endpgm')

for tag, st in SPIN:
    e(f'L_ws_{tag}:'); lwait(st); e(f's_branch L_wb_{tag}')
sec('fb')
e(f'''L_fb0:
s_cmp_eq_u32 s{sIt}, 2
s_cbranch_scc1 L_norm2
L_fb:
s_waitcnt vmcnt(0)
s_mul_i32 s{sTmp}, s{S_O0}, {KS}
s_add_u32 s{sK}, s{sTmp}, {WS_K}
s_add_u32 s{sV}, s{sTmp}, {WS_V}
v_mov_b32 v{vC}, 0xff800000
s_mov_b32 s{sIt}, 0
L_fb1:''')
e('\n'.join(kv_loads(0, 0, SRD_WS)[:2]))
e('s_waitcnt vmcnt(0)')
e(qk(0, 3, 0)); e(qk(0, 3, 1)); e('s_nop 11')
for i in range(8): e(f'v_max3_f32 v{vC}, v{VS+48+2*i}, v{VS+49+2*i}, v{vC}')
e(f'''s_add_u32 s{sK}, s{sK}, 512
s_add_u32 s{sIt}, s{sIt}, 1
s_cmp_lg_u32 s{sIt}, 64
s_cbranch_scc1 L_fb1
v_mov_b32 v{vA}, v{vC}
s_sub_u32 s{sK}, s{sK}, 0x8000
s_mov_b32 s{sIt}, 0
v_permlane32_swap_b32 v{vA}, v{vC}
v_max_f32 v{vC}, v{vA}, v{vC}''')
for i in range(8): e(f'v_mov_b64 {vr(OA+2*i,2)}, 0')
e('L_fb2:')
e('\n'.join(kv_loads(0, 0, SRD_WS)))
e('s_waitcnt vmcnt(0)')
e(qk(0, 3, 0)); e(qk(0, 3, 1)); e('s_nop 11')
for i in range(16): e(f'v_sub_f32 v{VS+48+i}, v{VS+48+i}, v{vC}')
for i in range(16): e(f'v_exp_f32 v{VS+48+i}, v{VS+48+i}')
e('s_nop 1')
e(pv(0, 3, 0)); e(pv(0, 3, 1))
e(f'''s_add_u32 s{sK}, s{sK}, 512
s_add_u32 s{sV}, s{sV}, 256
s_add_u32 s{sIt}, s{sIt}, 1
s_cmp_lg_u32 s{sIt}, 64
s_cbranch_scc1 L_fb2
s_mov_b32 s{sIt}, 2
s_nop 11
s_branch L_norm''')

sD0, sD, sHw, sDs, sTab, sA, sB, sLd, sSk, sIt2, sFlU, sInv, sUns, sSel, sUl, sOl, sCh0 = range(60, 77)
sUs, sOut, sHm = 78, 80, 82
sE2, sP, sE3, sKd, sCo = 84, 85, 86, 87, 77
OUTM = ('', 'sc1', '', 'sc1', 'nt', 'sc0 sc1')[OPT['outsc']]
OUTM2 = ('', '', 'sc1', 'sc1', 'nt', 'sc0 sc1')[OPT['outsc']]
a0, a1, a2, a3 = 5, 6, 7, 9
vPar = 10
vKc = 18
vRa, vRb_, vKd, vKd1, vKa, vKa0, vFu, vE1, vE1b, vFr, vKxo, vKxp, vPair, vRz, vBk, vA0, vA1, vKb, vSB, vSB0 = range(20, 40)
vSel = 180
vAc = 40
vOne, vScl, vAdd, vC0 = range(56, 60)
vOp = 64
vY = 128
vXt = 144
vAn = 166
vX1 = 172
T0, T1 = 160, 176
vZ = 192
U = 204
vZer = 220
vUa, vCd, vG_, vZp, vKp, vF_, vL16, vXo, vXp, vTr, vYl, vYs, vFy, vYw = range(224, 238)
vWoD = 238
vWoR = 240
vOl, vFo, vBw, vBr, vOut = range(242, 247)
def hi():
    if OPT['prio']: e('s_setprio 3')
KG = [True]
def lo():
    if OPT['prio']: e(f"s_setprio {OPT['kgp'] if KG[0] else OPT['ps']}")
ROLE[0] = 1
sec('ssm0')
PFA = f'''s_mul_i32 s{sLd}, s{S_HG}, 7
s_add_u32 s{sLd}, s{sLd}, s{S_C}                   ; slab 0..13
s_mul_i32 s{sSk}, s{S_TILE}, 14
s_add_u32 s{sSk}, s{sSk}, s{sLd}                   ; 0..223
s_cmp_eq_u32 s{S_W}, 1
s_cbranch_scc1 L_pf1
s_cmp_eq_u32 s{S_W}, 2
s_cbranch_scc1 L_pf2
s_mul_i32 s{sB}, s{sSk}, 64
s_mul_hi_u32 s{sB}, s{sB}, {(2**32 + 6)//7}
s_cmp_eq_u32 s{S_W}, 0
s_cselect_b32 s{sInv}, 43, 64
s_cselect_b32 s{sLd}, 6, 4
s_cselect_b32 s{sUns}, {60 if OPT['pfm'] & 1 else 0}, {40 if OPT['pfm'] & 8 else 0}
v_mul_u32_u24 v6, s{sInv}, v{V_LANE}
v_lshrrev_b32 v6, 8, v6
v_mul_u32_u24 v7, s{sLd}, v6
v_sub_u32 v7, v7, v{V_LANE}
v_add_u32 v6, s{sB}, v6
v_mul_u32_u24 v6, 7, v6
v_add3_u32 v8, v6, v7, 6
s_mov_b32 s{SRD_A+2}, {2048*896}
s_branch L_pf3
L_pf1:
s_mul_i32 s{sB}, s{S_TILE}, 20
s_add_u32 s{sB}, s{sB}, 128
v_add_u32 v6, s{sB}, v{V_LANE}
v_mul_u32_u24 v6, 21, v6
v_add3_u32 v8, v6, s{sLd}, 7
s_mov_b32 s{sUns}, {20 if OPT['pfm'] & 2 else 0}
s_mov_b32 s{SRD_A+2}, {448*2688}
s_branch L_pf3
L_pf2:
v_mul_u32_u24 v6, 37, v{V_LANE}
v_lshrrev_b32 v6, 8, v6
v_mul_u32_u24 v6, 14, v6
s_mul_i32 s{sB}, s{sSk}, 42
v_add3_u32 v8, v6, v{V_LANE}, s{sB}
s_mov_b32 s{sUns}, {14 if OPT['pfm'] & 4 else 0}
s_mov_b32 s{SRD_A+2}, {448*2688}
L_pf3:
v_lshlrev_b32 v8, 7, v8
v_cmp_gt_u32 vcc, s{sUns}, v{V_LANE}
s_mov_b32 s{SRD_A+3}, 0x20000
v_bfrev_b32 v6, 1
v_cndmask_b32 v8, v6, v8, vcc
''' if OPT['pfm'] else ''
e(f"""s_cmp_{'eq' if OPT['only'] != 2 else 'le'}_u32 s{S_C}, 7
s_cbranch_scc1 L_ssm_idle
s_lshr_b32 s{sDs}, s{S_W}, 1
s_lshl_b32 s{sD0}, s{S_I}, 1
s_add_u32 s{sD}, s{sD0}, s{sDs}
s_mul_i32 s{sTab}, s{S_W}, {TABSZ}
s_add_u32 s{sTab}, s{sTab}, {L_TAB}
s_lshl1_add_u32 s{sA}, s{sD0}, s{S_W}
s_lshl_b32 s{sA}, s{sA}, 8
v_lshl_add_u32 v{a0}, v{V_LANE}, 2, s{sA}
s_mov_b32 m0, s{sTab}
{PFA}s_lshl_b32 s{sB}, s{sD0}, 1
s_waitcnt lgkmcnt(0)
s_load_dword s{sLd}, s[14:15], s{sB}
s_load_dword s{sSk}, s[16:17], s{sB}
global_load_dword v{vPar+0}, v{a0}, s[6:7]
global_load_dword v{vPar+1}, v{a0}, s[8:9]
global_load_dword v{vPar+2}, v{a0}, s[10:11]
global_load_dword v{vPar+3}, v{a0}, s[12:13]
global_load_dword v{vPar+4}, v{V_T}, s[28:29]""")
if OPT['pfm']:
    e(f'''s_cmp_eq_u32 s{S_W}, 0
    s_cselect_b64 s[{SRD_A}:{SRD_A+1}], s[18:19], s[20:21]
    s_cmp_eq_u32 s{S_W}, 3
    s_cselect_b64 s[{SRD_A}:{SRD_A+1}], s[4:5], s[{SRD_A}:{SRD_A+1}]
    buffer_load_dword v{vPar+5}, v8, {sr(SRD_A)}, 0 offen''')
if OPT['tlb'] != 2: e('s_barrier')
if OPT['tlb']:
    e(f'''v_and_b32 v{a0}, 7, v{V_LANE}
    v_min_u32 v{a0}, 5, v{a0}
    v_lshlrev_b32 v{a0}, 21, v{a0}
    v_add_u32 v{a0}, 0xf8000, v{a0}
    v_mov_b32 v{a1}, 0
    global_load_dword v8, v{a0}, s[28:29]
    global_load_dword v8, v{a1}, s[22:23]''')
if OPT['tlb'] == 2: e('s_barrier')
if OPT['ord'] < 4: e('s_branch L_ssm')
sec('ssm')
e('L_ssm:')
if OPT['abl'] == 1:
    arrive(1); e('s_waitcnt vmcnt(0) lgkmcnt(0)\ns_endpgm')
lo()
srd(SRD_WS, 28, WS_SIZE)
e(f"""s_and_b32 s{sHw}, s{S_W}, 1
v_add_u32 v{V_GRP}, 16, v{V_GRP}
v_and_b32 v{a0}, 15, v{V_LANE}
v_lshrrev_b32 v{a1}, 4, v{V_LANE}
v_lshl_add_u32 v{vRb_}, v{a1}, 4, s{sTab}
v_mul_u32_u24 v{a2}, {TROW}, v{a0}
v_add_u32 v{vRa}, v{a2}, v{vRb_}
v_lshlrev_b32 v{vL16}, 4, v{V_LANE}
v_mov_b32 v{vOne}, 0x3c00
ds_write_addtid_b32 v{vOne}""")
for i in range(8): e(f'v_mov_b64 {vr(vAc+2*i,2)}, 0')
mid = f"""v_and_b32 v{a0}, 7, v{V_LANE}
s_and_b32 s{sB}, s2, {OPT['ur'] - 1}
s_lshl2_add_u32 s{sB}, s{sB}, s{S_W}
s_mul_i32 s{sB}, s{sB}, {8*US}
s_add_u32 s{sB}, s{sB}, {F_U}
v_mul_u32_u24 v{vFu}, {US}, v{a0}
v_add_u32 v{vFu}, s{sB}, v{vFu}
s_mul_i32 s{sP}, s{sDs}, {P_SZ}
s_add_u32 s{sP}, s{sP}, {L_TAB}
s_add_u32 s{sKd}, s{sP}, {P_KD}
s_lshl_b32 s{sB}, s{sHw}, 8
s_add_u32 s{sInv}, s{sB}, s{sKd}
s_add_u32 s{sA}, s{sInv}, {1088 + 128}
v_lshl_add_u32 v{vRz}, v{a0}, 4, s{sA}
v_mov_b32 v{vKb}, s{sKd}
v_and_b32 v{a0}, 15, v{V_LANE}
v_lshrrev_b32 v{a1}, 4, v{V_LANE}
s_lshl_b32 s{sA}, s{sHw}, 4
v_add_u32 v{a0}, s{sA}, v{a0}
v_and_b32 v{a3}, 1, v{V_LANE}
v_mul_u32_u24 v{a2}, 255, v{a3}
v_sub_u32 v{a2}, v{a2}, v{a0}
s_add_u32 s{sA}, s{sKd}, {1088 + 32}
v_add_u32 v{vKa}, s{sA}, v{a2}
v_add_u32 v{vKa0}, 96, v{vKa}
s_lshl3_add_u32 s{sA}, s{sDs}, 16
v_lshl_add_u32 v{vPair}, v{a3}, 2, s{sA}
s_mul_i32 s{sA}, s{sHw}, {1088 + 112 - 1024}
s_add_u32 s{sA}, s{sA}, s{sKd}
s_add_u32 s{sA}, s{sA}, 1024
v_writelane_b32 v{vKa0}, s{sA}, 0
s_mul_i32 s{sA}, s{sHw}, 56
s_sub_u32 s{sA}, s{sKd}, s{sA}
s_add_u32 s{sA}, s{sA}, 1088
v_writelane_b32 v{vKa0}, s{sA}, 16
v_max_u32 v{a2}, 1, v{a1}
v_sub_u32 v{a2}, 5, v{a2}
v_lshlrev_b32 v{a0}, v{a2}, v{a0}
v_lshlrev_b32 v{a2}, 3, v{a1}
s_mov_b32 s{sA}, 0x60400100
v_bfe_u32 v{a1}, s{sA}, v{a2}, 8
v_lshl_add_u32 v{a0}, v{a1}, 3, v{a0}
v_add_u32 v{vKd}, s{sKd}, v{a0}
s_mov_b32 s{sA}, 0x80040404
v_bfe_u32 v{a1}, s{sA}, v{a2}, 8
v_add_u32 v{vKd1}, v{a1}, v{vKd}
v_lshrrev_b32 v{a1}, 1, v{V_LANE}
v_lshlrev_b32 v{vUa}, 6, v{a1}
v_lshl_add_u32 v{vUa}, v{a3}, 4, v{vUa}
s_lshr_b32 s{sA}, s{sD0}, 2
s_mul_i32 s{sA}, s{sA}, {QS}
s_and_b32 s{sB}, s{sD0}, 3
s_lshl4_add_u32 s{sA}, s{sB}, s{sA}
s_lshl_b32 s{sB}, s{S_W}, 12
s_add_u32 s{sA}, s{sA}, s{sB}
s_add_u32 s{sUl}, s{sA}, {WS_U}
v_and_b32 v{a1}, 3, v{a1}
v_lshl_add_u32 v{a1}, v{a3}, 2, v{a1}
v_mul_u32_u24 v{a1}, {PS}, v{a1}
v_lshrrev_b32 v{a2}, 3, v{V_LANE}
v_lshl_add_u32 v{a1}, v{a2}, 4, v{a1}
s_lshl_b32 s{sA}, s{S_W}, 8
s_add_u32 s{sA}, s{sA}, {L_KP + 512}
v_add_u32 v{vKp}, s{sA}, v{a1}
; byte selectors that expand the distinct taps to the lags (lag l uses the tap at bf16(l), as in the reference)
v_lshrrev_b32 v{a1}, 5, v{V_LANE}
s_lshl_b32 s{sA}, s{sHw}, 1
v_max_u32 v{a0}, s{sA}, v{a1}
v_min_u32 v{a2}, 1, v{a0}
v_mul_u32_u24 v{a2}, 0x0202, v{a2}
v_lshlrev_b32 v{a2}, 16, v{a2}
v_sub_u32 v{vSel}, 0x03020100, v{a2}
v_mul_u32_u24 v{a2}, 0x0202, v{a0}
v_lshl_or_b32 v{a2}, v{a2}, 16, v{a2}
v_sub_u32 v{vSel+1}, 0x07060504, v{a2}
s_mul_i32 s{sA}, s{sHw}, 0x02020202
v_add_u32 v{vSel+2}, s{sA}, v{vSel}
s_mul_i32 s{sA}, s{sHw}, 0x02020404
v_add_u32 v{vSel+3}, s{sA}, v{vSel+1}
v_lshrrev_b32 v{a2}, v{a0}, v{vL16}
s_movk_i32 s{sA}, 256
v_lshl_add_u32 v{a2}, s{sA}, v{a0}, v{a2}
s_sub_u32 s{sA}, s{sKd}, 256
v_add_u32 v{vE1}, s{sA}, v{a2}
v_lshlrev_b32 v{a2}, 2, v{a0}
v_sub_u32 v{vE1b}, v{vE1}, v{a2}
s_mov_b32 s{sA}, 0x0c0c0c0c
s_cmp_lg_u32 s{sHw}, 0
s_cselect_b32 s{sE2}, 0x01000100, s{sA}
s_cselect_b32 s{sE3}, 0x05040302, s{sA}
v_mov_b32 v{vSel+4}, s{sA}
v_mov_b32 v{vSel+5}, s{sA}
v_mov_b32 v{vSel+6}, s{sA}
v_mov_b32 v{vSel+7}, s{sA}
s_mov_b32 s{sA}, 0x05040504
s_mov_b64 exec, 15
v_mov_b32 v{vSel+4}, s{sA}
v_mov_b32 v{vSel+5}, s{sA}
v_mov_b32 v{vSel+6}, s{sA}
s_mov_b64 exec, -1
v_writelane_b32 v{vSel+7}, s{sA}, 3
s_mov_b32 s{sA}, 0x05040302
v_writelane_b32 v{vSel+4}, s{sA}, 3
s_mov_b32 s{sA}, 0x0c0c0504
v_writelane_b32 v{vSel+6}, s{sA}, 0
v_writelane_b32 v{vSel+7}, s{sA}, 2
s_mul_i32 s{sA}, s{S_W}, {2*PS}
s_add_u32 s{sA}, s{sA}, {L_KP}
v_mul_u32_u24 v{a2}, {PS - 512}, v{a1}
v_add3_u32 v{vG_}, v{a2}, v{vL16}, s{sA}
v_mov_b64 {vr(vZer,2)}, 0
v_mov_b64 {vr(vZer+2,2)}, 0
ds_write_b128 v{vG_}, {vr(vZer,4)}
s_lshl_b32 s{sA}, s{sHw}, 10
s_add_u32 s{sB}, s{sP}, {P_UC}
s_add_u32 s{sA}, s{sA}, s{sB}
s_add_u32 s{sA}, s{sA}, 64
v_add_u32 v{vCd}, s{sA}, v{vL16}
v_and_b32 v{a3}, 3, v{V_LANE}
v_and_b32 v{a0}, 0x1c, v{V_LANE}
v_lshlrev_b32 v{a2}, 2, v{a0}
v_and_b32 v{vZp}, 0x30, v{a2}
s_mov_b32 exec_hi, 0
v_add_u32 v{vZp}, 2112, v{a2}
s_mov_b64 exec, -1
v_mul_u32_u24 v{a2}, {UC_S}, v{a3}
v_add3_u32 v{vZp}, v{vZp}, v{a2}, s{sB}
v_lshlrev_b32 v{a0}, 1, v{a0}
v_sub_u32 v{a0}, v{a0}, v{a2}
v_lshlrev_b32 v{a1}, 4, v{a1}
v_sub_u32 v{a0}, v{a0}, v{a1}
s_lshl_b32 s{sA}, s{sHw}, 5
s_sub_u32 s{sB}, s{sB}, s{sA}
s_add_u32 s{sB}, s{sB}, {56 + 3*UC_S}
v_add_u32 v{vF_}, s{sB}, v{a0}
v_add_u32 v{vG_}, {512 - 80}, v{vG_}
v_add_u32 v{vKxo}, s{sTab}, v{vL16}
s_xor_b32 s{sA}, s{S_W}, 1
s_mul_i32 s{sA}, s{sA}, {TABSZ}
s_add_u32 s{sA}, s{sA}, {L_TAB}
v_add_u32 v{vKxp}, s{sA}, v{vL16}
v_and_b32 v{a0}, 31, v{V_LANE}
v_lshlrev_b32 v{a2}, 2, v{a0}
v_sub_u32 v{a2}, v{a1}, v{a2}
s_add_u32 s{sA}, s{sInv}, {1088 + 124}
v_add_u32 v{vBk}, s{sA}, v{a2}
"""
def prewrite():
    e(f'''s_sub_u32 s{sA}, 3, s{S_HG}
    v_lshrrev_b32 v{a0}, s{sA}, v{V_LANE}
    v_lshlrev_b32 v{a1}, s{sA}, v{a0}
    v_sub_u32 v{a1}, v{V_LANE}, v{a1}
    s_lshr_b32 s{sA}, s{S_KS}, s{S_HG}
    v_mul_u32_u24 v{a0}, s{sA}, v{a0}
    v_lshl_add_u32 v{a0}, v{a1}, 6, v{a0}
    s_lshl2_add_u32 s{sA}, s{S_TILE}, s{S_W}
    s_lshl_b32 s{sA}, s{sA}, 9
    s_lshr_b32 s{sA}, s{sA}, s{S_HG}
    s_mul_i32 s{sB}, s{S_HG}, {WS_V - WS_K}
    s_add_u32 s{sA}, s{sA}, s{sB}
    s_mul_i32 s{sB}, s{S_C}, {8*KS}
    s_add_u32 s{sA}, s{sA}, s{sB}
    s_add_u32 s{sA}, s{sA}, {WS_K}''')
    hi(); e(f'buffer_store_dword v{a0}, v{a0}, {sr(SRD_WS)}, s{sA} offen sc1'); lo()
if OPT['pw'] == 1: prewrite()
e(mid)
if OPT['pw'] == 2: prewrite()
stamp(22)
e(f"""s_waitcnt lgkmcnt(0)
s_lshl_b32 s{sA}, s{sDs}, 4
s_lshr_b32 s{sLd}, s{sLd}, s{sA}
s_lshl_b32 s{sLd}, s{sLd}, 16
s_lshr_b32 s{sSk}, s{sSk}, s{sA}
s_lshl_b32 s{sSk}, s{sSk}, 16
v_mov_b32 v{a0}, s{sLd}
v_mul_f32 v{a0}, 0x3fb8aa3b, v{a0}
v_exp_f32 v{a0}, v{a0}
s_cmp_eq_u32 s{sHw}, 0
s_cselect_b32 s{sSk}, s{sSk}, 0
v_cvt_pk_bf16_f32 v{a0}, v{a0}, v{a0}
v_and_b32 v{vScl}, 0xffff0000, v{a0}
v_mul_f32 v{vKc}, 0xbfb8aa3b, v{vScl}
v_mul_f32 v{vKc+1}, 0.15915494, v{vScl}
v_mov_b32 v{vAdd}, 0
v_add_f32 v{vScl}, v{vScl}, v{vScl}
v_writelane_b32 v{vAdd}, s{sSk}, 0
s_mov_b32 s{sIt2}, 0
s_mov_b32 s{sSel}, 0x01000c0c""")
stamp(0)
e(f"""s_waitcnt vmcnt({(3 if OPT['tlb'] else 1) + (OPT['pw'] in (1, 2)) + (OPT['pfm'] > 0)})
v_and_b32 v{a0}, 0x7f807f80, v{vPar+2}
v_and_b32 v{a1}, 0x7f807f80, v{vPar+3}
v_pk_max_u16 v{a0}, v{a0}, v{a1}
v_lshlrev_b32 v{a1}, 16, v{a0}
v_max_u32 v{a0}, v{a0}, v{a1}""")
for q, n in enumerate((1, 2, 4, 8)):
    e(f's_nop 1\nv_max_u32_dpp v{a0}, v{a0}, v{a0} row_ror:{n} row_mask:0xf bank_mask:0xf')
e(f"""s_nop 0
v_readlane_b32 s{sA}, v{a0}, 0
v_readlane_b32 s{sB}, v{a0}, 16
v_readlane_b32 s{sInv}, v{a0}, 32
v_readlane_b32 s{sUns}, v{a0}, 48
s_max_u32 s{sA}, s{sA}, s{sB}
s_max_u32 s{sUns}, s{sUns}, s{sInv}
s_max_u32 s{sUns}, s{sUns}, s{sA}
s_and_b32 s{sUns}, s{sUns}, 0x7f800000
s_min_u32 s{sUns}, s{sUns}, 0x7e800000
s_sub_u32 s{sInv}, 0x7f000000, s{sUns}
v_mul_f32 v{vScl}, s{sUns}, v{vScl}
v_mul_f32 v{vSB}, 0x43000000, v{vScl}
v_mov_b32 v{vSB0}, v{vSB}
s_mov_b64 exec, 1
v_mov_b32 v{vSB0}, v{vScl}
s_mov_b64 exec, -1""")
stamp(1)
if OPT['abl'] == 2: e('s_endpgm')
def cm(jobs, conj):
    ng = 'neg_hi:[1,0,0]' if conj else 'neg_lo:[1,0,0]'
    return [f'v_pk_mul_f16 v{d}, v{x}, v{w} op_sel_hi:[1,0]' for d, x, w in jobs] + \
           [f'v_pk_fma_f16 v{d}, v{x}, v{w}, v{d} op_sel:[1,1,0] op_sel_hi:[0,1,1] {ng}' for d, x, w in jobs]
def wr(reg): return f'ds_write_addtid_b32 v{reg} offset:{TROW*(reg - vY)}'
assert vXt == vY + 16
zA, zB, tA, tB, pA, pB = vZ, vZ+2, vZ+4, vZ+6, vZ+8, vZ+10
X = vXt; Y = vY
an = {1: vAn, 2: vAn+1, 4: vAn+2, 8: Y+1, 16: Y+2, 32: Y+4, 64: Y+8, 128: X+21, 256: vAn+3, 512: vAn+4, 1024: vAn+5}
e('L_kg:')
stamp(14)
seq = f"""v_perm_b32 v{pA}, v{vPar}, v{vPar}, s{sSel}
v_mul_f32 v{pA}, 0x3fb8aa3b, v{pA}
v_exp_f32 v{pA}, v{pA}
v_perm_b32 v{pA+1}, v{vPar+1}, v{vPar+1}, s{sSel}
v_perm_b32 v{tA}, v{vPar+2}, v{vPar+2}, s{sSel}
v_perm_b32 v{tA+1}, v{vPar+3}, v{vPar+3}, s{sSel}
v_cvt_pk_bf16_f32 v{pA}, v{pA}, v{pA}
v_mul_f32 v{tA}, s{sInv}, v{tA}
v_and_b32 v{pA}, 0xffff0000, v{pA}
v_mul_f32 v{tA+1}, s{sInv}, v{tA+1}
v_pk_mul_f32 {vr(pA,2)}, {vr(pA,2)}, {vr(vKc,2)}
v_cvt_pk_f16_f32 v{X}, v{tA}, -v{tA+1}
v_mul_f32 v{pB}, 0x42800000, v{pA}
v_mul_f32 v{pB+1}, 0x42800000, v{pA+1}
v_exp_f32 v{pA}, v{pA}
v_fract_f32 v{pA+1}, v{pA+1}
v_exp_f32 v{pB}, v{pB}
v_fract_f32 v{pB+1}, v{pB+1}
v_cos_f32 v{zA}, v{pA+1}
v_sin_f32 v{zA+1}, v{pA+1}
v_cos_f32 v{zB}, v{pB+1}
v_sin_f32 v{zB+1}, v{pB+1}
v_pk_mul_f32 {vr(zA,2)}, {vr(zA,2)}, {vr(pA,2)} op_sel_hi:[1,0]
v_pk_mul_f32 {vr(zB,2)}, {vr(zB,2)}, {vr(pB,2)} op_sel_hi:[1,0]""".split('\n')
for st in range(6):
    chains = [(zA, tA, an[1 << st], st < 5)] + ([(zB, tB, an[64 << st], st < 4)] if st < 5 else [])
    for z, t, d, sq in chains:
        if sq: seq.append(f'v_pk_mul_f32 {vr(t,2)}, {vr(z,2)}, {vr(z,2)} op_sel_hi:[0,1]')
    for z, t, d, sq in chains: seq.append(f'v_cvt_pk_f16_f32 v{d}, v{z}, v{z+1}')
    for z, t, d, sq in chains:
        if sq: seq.append(f'v_pk_fma_f32 {vr(z,2)}, {vr(z,2)}, {vr(z,2)}, {vr(t,2)} op_sel:[1,1,0] op_sel_hi:[0,1,1] neg_lo:[1,0,0]')
seq += cm([(X+1, X, an[1]), (X+2, X, an[2]), (X+4, X, an[4]), (X+8, X, an[256]), (X+12, X, an[512]), (X+16, X, an[1024])], True)
seq += cm([(Y+3, Y+1, Y+2), (Y+12, Y+4, Y+8), (Y+5, Y+4, Y+1), (Y+6, Y+4, Y+2), (Y+9, Y+8, Y+1), (Y+10, Y+8, Y+2)], False)
seq += cm([(X+3, X+1, an[2]), (X+5, X+1, an[4]), (X+6, X+2, an[4]), (X+9, X+2, an[256]), (X+10, X+4, an[256]), (X+13, X+4, an[512]),
           (X+14, X+8, an[512]), (X+17, X+8, an[1024]), (X+18, X+12, an[1024]), (X+20, X+16, an[1024])], True)
seq += cm([(Y+7, Y+4, Y+3), (Y+11, Y+8, Y+3), (Y+13, Y+12, Y+1), (Y+14, Y+12, Y+2), (Y+15, Y+12, Y+3)], False)
seq += cm([(X+7, X+3, an[4]), (X+11, X+6, an[256]), (X+15, X+10, an[512]), (X+19, X+14, an[1024])], True)
e('\n'.join(seq))
stamp(15)
if OPT['kgw']:
    e(f'v_subrev_u32 v{a0}, 16, v{V_GRP}'); lwait(OPT['kgw'], addr=a0)
hi()
if OPT['abl'] != 4: e('\n'.join(wr(r) for r in range(Y + 1, X + 22)))
for k in range(4):
    o = vOp + 16*k
    e(f"""ds_read_b128 {vr(o,4)}, v{vRa} offset:{64*k}
    ds_read_b128 {vr(o+4,4)}, v{vRb_} offset:{37*TROW + 64*k}
    ds_read_b128 {vr(o+8,4)}, v{vRa} offset:{16*TROW + 64*k}
    ds_read_b128 {vr(o+12,4)}, v{vRa} offset:{32*TROW + 64*k}""")
if not OPT['uw']: e(f's_cmp_eq_u32 s{sIt2}, 0\ns_cbranch_scc1 L_kg_n\nbuffer_load_dword v{vFr}, v{vFu}, {sr(SRD_WS)}, 0 offen sc1\nL_kg_n:')
stamp(16)
def mf(c, a, b): return f'v_mfma_f32_16x16x32_f16 {vr(c,4)}, {vr(a,4)}, {vr(b,4)}, {vr(c,4)}'
late_m = []
for k in range(4):
    o = vOp + 16*k; y1 = vX1 + 4*(k & 1)
    p = cm([(y1+r, o+r, o+4+r) for r in range(4)], False)
    e(f's_waitcnt lgkmcnt({12 - 4*k})')
    e('\n'.join([mf(vAc, o+8, o)] + p[0:2] + late_m[:1] + p[2:4] + [mf(vAc+4, o+12, o)] + p[4:6] + late_m[1:] + p[6:8]))
    late_m = [mf(vAc+8, o+8, y1), mf(vAc+12, o+12, y1)]
e(f"""s_add_u32 s{sSel}, s{sSel}, 0x02020000
s_add_u32 s{sIt2}, s{sIt2}, 1
s_cmp_lg_u32 s{sIt2}, 2""")
e('\n'.join(late_m))
lo()
if OPT['pw'] == 3:
    e('s_cbranch_scc0 L_kg_e'); prewrite(); e('s_branch L_kg\nL_kg_e:')
else: e('s_cbranch_scc1 L_kg')
stamp(17)
if OPT['abl'] in (4, 8): e('s_endpgm')
def scl(i): return vSB0 if i == 4 else (vSB if i & 4 else vScl)
for i in range(8): e(f'v_mul_f32 v{vAc+i}, v{scl(i)}, v{vAc+i}')
e(f's_cmp_eq_u32 s{sHw}, 0')
for i in range(8, 16): e(f'v_mul_f32 v{vAc+i}, v{scl(i)}, v{vAc+i}')
e('s_cbranch_scc1 L_kx')
for i in range(8): e(f'v_swap_b32 v{vAc+i}, v{vAc+8+i}')
e(f"""L_kx:
ds_write_b128 v{vKxo}, {vr(vAc+8,4)}
s_mov_b32 exec_hi, 0
ds_write_b128 v{vKxo}, {vr(vAc+12,4)} offset:1024
s_mov_b64 exec, -1
s_waitcnt vmcnt({1 if OPT['pw'] else 0})
v_readfirstlane_b32 s{S_NONCE}, v{vPar+4}""")
arrive(2)
e(f's_add_u32 s{S_NONCE}, s{S_NONCE}, 1')
e(f'v_add_f32 v{vAc}, v{vAdd}, v{vAc}')
stamp(18)
def bprio():
    if OPT['prio']: e(f"s_setprio {OPT['bp']}")
def u_look():
    hi(); e(f'buffer_load_dword v{vFr}, v{vFu}, {sr(SRD_WS)}, 0 offen sc1'); bprio()
def u_fetch():
    hi()
    stamp(20)
    poll(vFu, first_issued=True, reg=vFr, sleep=OPT['usleep'])
    stamp(21)
    for k in range(2):
        e(f'buffer_load_dwordx4 {vr(U+4*k,4)}, v{vUa}, {sr(SRD_WS)}, s{sUl} offen offset:{2048*k} sc1')
    bprio()
if OPT['uw'] <= -2: u_look()
else: bprio()
stamp(19)
lwait(2, addr=vPair)
e(f"""ds_read_b128 {vr(vAc+8,4)}, v{vKxp}
ds_read_b128 {vr(vAc+12,4)}, v{vKxp} offset:1024
ds_write_b128 v{vRz}, {vr(vZer,4)}
s_mov_b32 s{sIt2}, 4
s_waitcnt lgkmcnt(1)""")
for i in range(4): e(f'v_pk_add_f32 {vr(vAc+2*i,2)}, {vr(vAc+2*i,2)}, {vr(vAc+8+2*i,2)}')
for i in range(4): e(f'v_cvt_pk_bf16_f32 v{vAc+8+i}, v{vAc+2*i}, v{vAc+2*i+1}')
e(f"""ds_write_b32 v{vKd}, v{vAc+8}
ds_write_b32 v{vKd1}, v{vAc+9}
s_mov_b64 exec, 0x1ffff
ds_write_b16 v{vKa0}, v{vAc+10}
s_mov_b64 exec, 0xffff
ds_write_b16_d16_hi v{vKa}, v{vAc+10} offset:64
ds_write_b16 v{vKa}, v{vAc+11} offset:32
ds_write_b16_d16_hi v{vKa}, v{vAc+11}
s_mov_b64 exec, -1""")
if OPT['pw']: e('s_waitcnt vmcnt(0)')
arrive(3)
if OPT['uw'] == -1: u_look()
if OPT['uw'] == -2: u_fetch()
def u_try():
    hi()
    e(f's_waitcnt vmcnt(0)\nv_cmp_ne_u32 vcc, s{S_NONCE}, v{vFr}\ns_mov_b64 s[88:89], vcc\ns_cbranch_vccnz L_utry')
    for k in range(2):
        e(f'buffer_load_dwordx4 {vr(U+4*k,4)}, v{vUa}, {sr(SRD_WS)}, s{sUl} offen offset:{2048*k} sc1')
    e(f's_branch L_utry2\nL_utry:\nbuffer_load_dword v{vFr}, v{vFu}, {sr(SRD_WS)}, 0 offen sc1\nL_utry2:')
    bprio()
if OPT['uw'] == -4: u_try()
lwait(3, addr=vPair)
if OPT['uw'] == -3: u_try()
stamp(2)
E = 64; BF = 40
e(f"""ds_read2_b32 {vr(E,2)}, v{vE1} offset1:1
ds_read2_b32 {vr(E+2,2)}, v{vE1b} offset0:2 offset1:3
ds_read2_b32 {vr(E+4,2)}, v{vKb} offset0:191 offset1:192
ds_read_b32 v{E+6}, v{vKb} offset:1020
ds_read_b32 v{E+7}, v{vKb} offset:1024""")
for q in range(8): e(f'ds_read2_b32 {vr(BF+2*q,2)}, v{vBk} offset0:{8*(q>>1) + 2*(q&1)} offset1:{8*(q>>1) + 2*(q&1) + 1}')
b = E + 12; t = E + 16
e(f"""s_waitcnt lgkmcnt(10)
v_perm_b32 v{b+2}, v{E+2}, v{E+2}, v{vSel+2}
v_perm_b32 v{b+3}, v{E+3}, v{E+2}, v{vSel+3}
v_perm_b32 v{b-2}, v{E+5}, v{E+4}, s{sE2}
v_perm_b32 v{b-1}, v{E+5}, v{E+4}, s{sE3}
v_perm_b32 v{b}, v{E}, v{E}, v{vSel}
v_perm_b32 v{b+1}, v{E+1}, v{E}, v{vSel+1}
v_mov_b32_dpp v{b-2}, v{b+2} wave_shr:1 row_mask:0xf bank_mask:0xf
v_mov_b32_dpp v{b-1}, v{b+3} wave_shr:1 row_mask:0xf bank_mask:0xf
ds_write_b128 v{vCd}, {vr(b,4)}""")
for i in range(4): e(f'v_alignbit_b32 v{t+i}, v{b+i}, v{b+i-1}, 16')
e(f'ds_write_b128 v{vCd}, {vr(t,4)} offset:{UC_S}')
for i in range(4): e(f'v_mov_b32 v{t+4+i}, v{b+i-1}')
e(f'ds_write_b128 v{vCd}, {vr(t+4,4)} offset:{2*UC_S}')
for i in range(4): e(f'v_alignbit_b32 v{t+8+i}, v{b+i-1}, v{b+i-2}, 16')
e(f'ds_write_b128 v{vCd}, {vr(t+8,4)} offset:{3*UC_S}\ns_waitcnt lgkmcnt(12)')
for i in range(4): e(f'v_perm_b32 v{t+12+i}, v{E+7}, v{E+6}, v{vSel+4+i}')
e(f'ds_write_b128 v{vZp}, {vr(t+12,4)}')
if OPT['uw'] <= -3: e('s_cmp_eq_u64 s[88:89], 0\ns_cbranch_scc1 L_uhave')
if OPT['uw'] != -2: u_fetch()
e('L_uhave:')
stamp(3)
e(f'v_and_b32 v{a0}, 31, v{V_LANE}')
swap23(a1, a0, a2)
e(f"""v_lshrrev_b32 v{a2}, 5, v{V_LANE}
v_lshl_add_u32 v{a1}, v{a1}, 1, v{a2}
s_add_u32 s{sA}, s{sHw}, 123
v_add_u32 v{a1}, s{sA}, v{a1}
s_mul_i32 s{sA}, s{sDs}, {PD}
s_add_u32 s{sA}, s{sA}, {L_KP}
v_and_b32 v{a3}, 3, v{a1}
v_mul_u32_u24 v{a3}, {PS - 4}, v{a3}
v_lshl_add_u32 v{a3}, v{a1}, 2, v{a3}
v_add_u32 v{vA0}, s{sA}, v{a3}
v_add_u32 v{a1}, 2, v{a1}
v_and_b32 v{a3}, 3, v{a1}
v_mul_u32_u24 v{a3}, {PS - 4}, v{a3}
v_lshl_add_u32 v{a3}, v{a1}, 2, v{a3}
v_add_u32 v{vA1}, s{sA}, v{a3}
v_lshlrev_b32 v{a2}, 3, v{a2}
v_sub_u32 v{a2}, v{a2}, v{a0}
v_cvt_f32_i32 v{a2}, v{a2}
v_add_f32 v{a3}, -1.0, v{a2}
v_add_f32 v{a2}, -2.0, v{a2}
v_cvt_pk_f16_f32 v8, v{a3}, v{a2}
s_waitcnt vmcnt(1)
ds_write_b128 v{vKp}, {vr(U,4)}
s_waitcnt vmcnt(0)
ds_write_b128 v{vKp}, {vr(U+4,4)} offset:128""")
arrive(4)
AP, BD, DP = 112, 136, 192
band = [f's_mov_b32 s{sA}, 0x4a204a20', f's_cmp_eq_u32 s{sHw}, 0', f's_cselect_b32 s{sE2}, 0x4d104d10, s{sA}', f's_mov_b32 s{sE3}, 0x4d804d80']
for q in range(12):
    band.append(f'v_pk_fma_f16 v{BD+q}, v8, v8, s{sE2} neg_lo:[1,0,0] neg_hi:[1,0,0] clamp')
    if q < 11: band.append(f'v_pk_add_f16 v8, v8, s{sE3}' if q % 4 == 3 else 'v_pk_add_f16 v8, v8, -2.0 op_sel_hi:[1,0]')
e('\n'.join(band))
lwait(4)
KG[0] = False
lo()
stamp(4)
if OPT['abl'] == 16: e('s_endpgm')
CB = 64
def cv_reads(k):
    b = CB + 12 * (k & 3)
    return [f'ds_read_b64 {vr(b,2)}, v{vF_} offset:{64*k}', f'ds_read_b64 {vr(b+2,2)}, v{vF_} offset:{64*k + 8}',
            f'ds_read_b128 {vr(b+8,4)}, v{vG_} offset:{512 + 80 - 16*k}', f'ds_read_b128 {vr(b+4,4)}, v{vG_} offset:{80 - 16*k}']
for tau in range(2):
    for kp in range(3): e(f'ds_read_b128 {vr(AP + 12*tau + 4*kp, 4)}, v{(vA0, vA1)[kp & 1]} offset:{256*tau + 16*(kp >> 1)}')
e('\n'.join(cv_reads(0) + cv_reads(1)))
assert OM == 3
late = f"""s_mov_b64 s[{SRD_B}:{SRD_B+1}], s[22:23]
s_mov_b32 s{SRD_B+2}, {448*896}
s_mov_b32 s{SRD_B+3}, 0x20000
s_mov_b64 s[{SRD_C}:{SRD_C+1}], s[24:25]
s_mov_b32 s{SRD_C+2}, {2048*1792}
s_mov_b32 s{SRD_C+3}, 0x20000
v_lshrrev_b32 v{a1}, 3, v{V_LANE}
v_and_b32 v{a2}, 7, v{V_LANE}
v_and_b32 v{a0}, 0x70, v{vL16}
v_mul_u32_u24 v{vYl}, {YS}, v{a1}
v_add_u32 v{vYl}, v{vYl}, v{a0}
v_lshlrev_b32 v{a3}, 2, v{V_LANE}
v_and_b32 v{a3}, 64, v{a3}
v_xor_b32 v{a0}, v{a0}, v{a3}
v_mul_u32_u24 v{vWoD}, 896, v{a1}
v_xor_b32 v{a3}, v{a1}, v{a2}
v_lshlrev_b32 v{a3}, 4, v{a3}
v_lshl_add_u32 v{vOut}, v{vWoD}, 1, v{a3}
v_add_u32 v{vWoD}, v{a0}, v{vWoD}
v_add_u32 v{vWoD+1}, {7168-1024}, v{vWoD}
v_lshrrev_b32 v{a0}, 4, v{V_LANE}
v_bfe_u32 v{a1}, v{V_LANE}, 2, 2
v_lshl_or_b32 v{a3}, v{a0}, 3, v{a1}
v_lshlrev_b32 v{a3}, 7, v{a3}
v_lshrrev_b32 v{a1}, 1, v{a1}
v_lshl_add_u32 v{a3}, v{a1}, 6, v{a3}
v_and_b32 v{a1}, 0x30, v{vL16}
s_movk_i32 s{sA}, {L_WO}
v_add3_u32 v{vWoR}, v{a1}, v{a3}, s{sA}
v_xor_b32 v{vWoR+1}, 64, v{vWoR}
v_and_b32 v{a1}, 15, v{V_LANE}
v_lshlrev_b32 v{vOl}, 4, v{a1}
v_mad_u32_u24 v{vOl}, v{a0}, s{S_KS}, v{vOl}
s_mul_i32 s{sOl}, s{S_I}, 9363
s_lshr_b32 s{sOl}, s{sOl}, 16
s_mul_i32 s{sA}, s{sOl}, 7
s_sub_u32 s{sCo}, s{S_I}, s{sA}
s_lshl2_add_u32 s{sOl}, s{sOl}, s{S_W}
s_lshl_b32 s{sFlU}, s{sHw}, 9
s_add_u32 s{sFlU}, s{sFlU}, s{sD}
s_lshl_b32 s{sFlU}, s{sFlU}, {FSH}
s_add_u32 s{sFlU}, s{sFlU}, {F_Y}
s_lshl_b32 s{sA}, s{sCo}, {1 + FSH}
s_sub_u32 s{sA}, s{sFlU}, s{sA}
v_min_u32 v{vFo}, 6, v{a1}
v_lshl_add_u32 v{vFo}, v{vFo}, {1 + FSH}, s{sA}
s_lshl_b32 s{sA}, s{S_W}, 11
s_add_u32 s{sA}, s{sA}, {L_SSM}
v_xor_b32 v{a3}, v{a0}, v{a2}
v_lshl_add_u32 v{a3}, v{a3}, 4, s{sA}
v_lshl_add_u32 v{vBw}, v{a1}, 7, v{a3}
v_add_u32 v{vBr}, s{sA}, v{vL16}
s_mul_i32 s{sOut}, s{sOl}, {16*1792}
s_lshl_b32 s{sA}, s{sCo}, 7
s_add_u32 s{sOut}, s{sOut}, s{sA}
s_add_u32 s{sOut}, s{sOut}, 896
s_add_u32 s{sOut+1}, s{sOut}, {8*1792}
s_lshl_b32 s{sOl}, s{sOl}, 8
s_add_u32 s{sOl}, s{sOl}, {WS_O}
s_lshl2_add_u32 s{sCh0}, s{S_C}, s{S_W}
s_lshl_b32 s{sCh0}, s{sCh0}, 4
s_lshr_b32 s{sA}, s{S_J}, 4
s_lshl_b32 s{sA}, s{sA}, 9
s_add_u32 s{sA}, s{sA}, s{sCh0}
s_lshl_b32 s{sA}, s{sA}, {FSH}
s_add_u32 s{sA}, s{sA}, {F_Y}
v_lshl_add_u32 v{vFy}, v{a1}, {FSH}, s{sA}
v_lshrrev_b32 v{a1}, 3, v{V_LANE}
v_and_b32 v{a3}, 3, v{V_LANE}
v_lshl_or_b32 v{vYw}, v{a1}, 2, v{a3}
v_xor_b32 v{a3}, s{S_W}, v{a3}
v_lshl_or_b32 v{vYw}, v{vYw}, 2, v{a3}
v_bfe_u32 v{a3}, v{V_LANE}, 2, 1
v_lshl_or_b32 v{vYw}, v{vYw}, 1, v{a3}
v_lshlrev_b32 v{vYw}, 4, v{vYw}
v_and_b32 v{a3}, 4, v{a1}
v_add_u32 v{a3}, v{a3}, v{a1}
v_mul_u32_u24 v{vYs}, 1792, v{a3}
v_and_b32 v{a1}, 3, v{a1}
v_lshlrev_b32 v{a1}, 1, v{a1}
v_xor_b32 v{a1}, v{a1}, v{a2}
v_lshl_add_u32 v{vYs}, v{a1}, 4, v{vYs}
s_lshl_b32 s{sA}, s{sHw}, 12
s_add_u32 s{sB}, s{sP}, {P_X + 4096}
s_sub_u32 s{sB}, s{sB}, s{sA}
v_add_u32 v{vXp}, s{sB}, v{vL16}
s_add_u32 s{sA}, s{sA}, s{sP}
s_add_u32 s{sA}, s{sA}, {P_X}
v_add_u32 v{vXo}, s{sA}, v{vL16}
v_lshl_add_u32 v{vRb_}, v{a0}, 4, s{sA}
v_bfe_u32 v{a0}, v{V_LANE}, 2, 2
v_and_b32 v{a3}, 1, v{V_LANE}
v_lshl_or_b32 v{a2}, v{a3}, 3, v{a0}
v_lshl_add_u32 v{vTr}, v{a2}, 7, v{vRb_}
v_and_b32 v{a2}, 2, v{V_LANE}
v_lshl_add_u32 v{vTr}, v{a2}, 2, v{vTr}""".split('\n')
def fill(n):
    e('\n'.join(late[:n])); del late[:n]
fill(16)
e('s_waitcnt lgkmcnt(8)')
for kp in range(3):
    for tau in range(2):
        d = vr(DP + 16*tau, 16)
        e(f'v_mfma_f32_32x32x16_bf16 {d}, {vr(AP + 12*tau + 4*kp, 4)}, {vr(BD + 4*kp, 4)}, {"0" if kp == 0 else d}')
        fill(6)
def cv_iter(first):
    for k in range(4):
        b = CB + 12 * k
        rd = cv_reads(k + 2)
        z = first and k == 0
        e('s_waitcnt lgkmcnt(4)')
        e(f'v_mfma_f32_32x32x16_bf16 {vr(T1,16)}, {vr(b,4)}, {vr(b+8,4)}, {"0" if z else vr(T1,16)}')
        e('\n'.join(rd))
        if k == 3:
            e(f'v_add_u32 v{vF_}, 256, v{vF_}\nv_subrev_u32 v{vG_}, 64, v{vG_}')
            if not first: e(f's_add_u32 s{sIt2}, s{sIt2}, 1\ns_cmp_lg_u32 s{sIt2}, 11')
        e(f'v_mfma_f32_32x32x16_bf16 {vr(T0,16)}, {vr(b,4)}, {vr(b+4,4)}, {"0" if z else vr(T0,16)}')
        if first: fill(6 if k < 3 else 99)
cv_iter(True)
e('L_cv:')
cv_iter(False)
e('s_cbranch_scc1 L_cv')
cv = [f'v_cvt_pk_bf16_f32 v{AP+i}, v{DP+2*i}, v{DP+2*i+1}' for i in range(16)]
for k in range(2):
    e('\n'.join(cv[4*k:4*k+4]))
    e(f's_waitcnt lgkmcnt({4 - 4*k})')
    e(f'v_mfma_f32_32x32x16_bf16 {vr(T1,16)}, {vr(CB+12*k,4)}, {vr(CB+12*k+8,4)}, {vr(T1,16)}')
for q in range(4):
    e('\n'.join(cv[8+4*q:12+4*q]))
    e(f'v_mfma_f32_32x32x16_bf16 {vr(T1,16)}, {vr(AP+4*q,4)}, {vr(BF+4*q,4)}, {vr(T1,16)}')
if OPT['prio']: e(f"s_setprio {OPT['pr']}")
stamp(5)
if OPT['abl'] == 32: e('s_endpgm')
e(f"""s_mul_i32 s{sA}, s{sD}, {YS}
s_lshl_b32 s{sB}, s{sHw}, 11
s_add_u32 s{sA}, s{sA}, s{sB}
s_add_u32 s{sA}, s{sA}, {WS_Y}
s_nop 4""")
def xch(give, keep):
    for i in range(4): e(f'ds_write_b128 v{vXp}, {vr(give+4*i,4)} offset:{1024*i}')
    arrive(6); lwait(6, addr=vPair)
    for i in range(4): e(f'ds_read_b128 {vr(give+4*i,4)}, v{vXo} offset:{1024*i}')
    e('s_waitcnt lgkmcnt(0)')
e(f's_cmp_eq_u32 s{sHw}, 0\ns_cbranch_scc1 L_x0')
xch(T0, T1)
e('s_branch L_x1\nL_x0:')
xch(T1, T0)
e('L_x1:')
for i in range(8): e(f'v_pk_add_f32 {vr(T0+2*i,2)}, {vr(T0+2*i,2)}, {vr(T1+2*i,2)}')
for i in range(8): e(f'v_cvt_pk_bf16_f32 v{T1+i}, v{T0+2*i}, v{T0+2*i+1}')
e(f"""buffer_store_dwordx4 {vr(T1,4)}, v{vL16}, {sr(SRD_WS)}, s{sA} offen sc1
buffer_store_dwordx4 {vr(T1+4,4)}, v{vL16}, {sr(SRD_WS)}, s{sA} offen offset:1024 sc1
v_subrev_u32 v{a0}, 16, v{V_GRP}""")
if OM:
    e(f'''v_mov_b64 {vr(T0,2)}, -1
    v_mov_b64 {vr(T0+2,2)}, -1
    s_mul_i32 s{sA}, s{sCo}, {8*KS}
    s_add_u32 s{sA}, s{sA}, s{sOl}
    s_add_u32 s{sSk}, s{sA}, {4*KS}
    buffer_store_dwordx4 {vr(T0,4)}, v{vOl}, {sr(SRD_WS)}, s{sA} offen sc1
    buffer_store_dwordx4 {vr(T0,4)}, v{vOl}, {sr(SRD_WS)}, s{sSk} offen sc1''')
sync(7)
if OPT['only'] != 1: lwait(7, addr=a0)
e('s_waitcnt vmcnt(0)')
publish(sFlU, a0)
stamp(6)
if OPT['abl'] == 33: e('s_endpgm')
e(f"""s_mul_i32 s{sA}, s{S_W}, {16*896}
s_lshl_b32 s{sB}, s{sCo}, 7
s_add_u32 s{sA}, s{sA}, s{sB}
s_lshl_b32 s{sB}, s{S_W}, 11
s_add_u32 s{sB}, s{sB}, {L_WO}""")
for ch in range(7):
    e(f"""s_add_u32 m0, s{sB}, {8192*ch}
    s_add_u32 s{sSk}, s{sA}, {64*896*ch}
    buffer_load_dwordx4 v{vWoD}, {sr(SRD_B)}, s{sSk} offen lds
    buffer_load_dwordx4 v{vWoD+1}, {sr(SRD_B)}, s{sSk} offen offset:1024 lds
    s_waitcnt vmcnt({OPT['wodepth'] if ch < 6 else 0})""")
WF, OF, OC = 8, 168, 224
arrive(8)
e(f"""buffer_load_dword v{a0}, v{vFy}, {sr(SRD_WS)}, 0 offen sc1
s_mul_i32 s{sA}, s{sCh0}, {YS}
s_lshl_b32 s{sSk}, s{S_J}, 7
s_add_u32 s{sA}, s{sA}, s{sSk}
s_add_u32 s{sA}, s{sA}, {WS_Y}
s_add_u32 s{sSk}, s{sA}, {8*YS}""")
lwait(8)
stamp(7)
if OPT['abl'] == 34: e('s_endpgm')
def wo_reads(k):
    r = []
    for t in range(4):
        for hf in range(2):
            r.append(f'ds_read_b64_tr_b16 {vr(WF + 16*(k%10) + 4*t + 2*hf, 2)}, v{vWoR + (t>>1)} offset:{4096*k + 512*hf + 8*(t&1)}')
    return r
for k in range(10): e('\n'.join(wo_reads(k)))
arrive(9)
poll(vFy, first_issued=True, sleep=OPT['ysleep'], reg=a0)
stamp(8)
if OPT['abl'] == 35: e('s_endpgm')
e(f"""buffer_load_dwordx4 {vr(OF,4)}, v{vYl}, {sr(SRD_WS)}, s{sA} offen sc1
buffer_load_dwordx4 {vr(OF+4,4)}, v{vYl}, {sr(SRD_WS)}, s{sSk} offen sc1
s_lshr_b32 s{sA}, s{S_J}, 4
s_lshl_b32 s{sA}, s{sA}, 10
s_and_b32 s{sB}, s{S_J}, 3
s_lshl_b32 s{sB}, s{sB}, 8
s_add_u32 s{sA}, s{sA}, s{sB}
s_and_b32 s{sB}, s{S_J}, 8
s_lshl1_add_u32 s{sA}, s{sB}, s{sA}
s_and_b32 s{sB}, s{S_J}, 4
s_add_u32 s{sA}, s{sA}, s{sB}
s_lshl_b32 s{sB}, s{S_W}, 6
s_add_u32 s{sA}, s{sA}, s{sB}
s_mul_i32 s{sA}, s{sA}, 1792
s_lshl_b32 s{sB}, s{S_C}, 7
s_add_u32 s{sA}, s{sA}, s{sB}
s_add_u32 s{sB}, s{sA}, {32*1792}
v_xor_b32 v{a0}, 64, v{vBw}""")
lwait(9)
e(f"""s_waitcnt vmcnt(0)
ds_write_b128 v{vXo}, {vr(OF,4)}
ds_write_b128 v{vXo}, {vr(OF+4,4)} offset:1024""")
for z in range(2):
    for hf in range(2):
        e(f'ds_read_b64_tr_b16 {vr(OF + 8 + 4*z + 2*hf, 2)}, v{vTr} offset:{64*z + 512*hf}')
e(f"""s_waitcnt lgkmcnt(0)
ds_write_b128 v{vYw}, {vr(OF+8,4)} offset:{L_SSM}
ds_write_b128 v{vYw}, {vr(OF+12,4)} offset:{L_SSM + 4096}""")
sync(10)
e(f"""ds_read_b128 {vr(OF+8,4)}, v{vBr}
ds_read_b128 {vr(OF+12,4)}, v{vBr} offset:1024
s_waitcnt lgkmcnt(0)
buffer_store_dwordx4 {vr(OF+8,4)}, v{vYs}, {sr(SRD_C)}, s{sA} offen {OUTM}
buffer_store_dwordx4 {vr(OF+12,4)}, v{vYs}, {sr(SRD_C)}, s{sB} offen {OUTM}""")
if OPT['only'] == 1:
    stamp(9); stamp(13); prof_out(); e('s_endpgm')
if OM: poll(vFo, sleep=8)
if OM == 4:
    e(f'''s_lshl2_add_u32 s{sA}, s{S_J}, s{S_W}
    s_lshr_b32 s{sA}, s{sA}, 1
    s_lshl_b32 s{sA}, s{sA}, {4 + FSH}
    s_add_u32 s{sA}, s{sA}, {F_O}
    v_and_b32 v{vFo}, 15, v{V_LANE}
    v_lshl_add_u32 v{vFo}, v{vFo}, {FSH}, s{sA}''')
sOk, sLast = 4, 18
for k in range(14): e(f's_add_u32 s{sOk+k}, s{sOl}, {4*KS*k}')
stamp(9)
e('s_barrier        ; released once the four attention waves have stored their rows')
stamp(10)
if OPT['osleep']: e(f"s_sleep {OPT['osleep']}")
if OM != 3: poll(vFo, sleep=OPT['hsleep'])
if OM: e(f's_min_u32 s{S_BOUND}, s{S_BOUND}, 0x4000')
stamp(11)
def o_load(k): return f'buffer_load_dwordx4 {vr(OF+4*k,4)}, v{vOl}, {sr(SRD_WS)}, s{sOk+k} offen sc1'
def o_chk(k):
    o = OF + 4*k
    return [f's_waitcnt vmcnt({13-k})', f'v_max3_u32 v6, v{o}, v{o+1}, v{o+2}', f'v_max_u32 v6, v6, v{o+3}', 'v_cmp_eq_u32 vcc, -1, v6']
for k in range(14): e(o_load(k))
if OM: e('\n'.join(o_chk(0)))
for k in range(14):
    o = OF + 4*k
    m = [f'v_mfma_f32_16x16x32_bf16 {vr(OC+4*t,4)}, {vr(WF + 16*(k%10) + 4*t, 4)}, {vr(o,4)}, {"0" if k == 0 else vr(OC+4*t,4)}' for t in range(4)]
    rd = wo_reads(k + 9) if 1 <= k <= 4 else []
    if k == 10: e('s_waitcnt lgkmcnt(0)')
    if OM:
        e(f's_cbranch_vccnz L_or{k}\nL_og{k}:')
        c = o_chk(k + 1) if k < 13 else ['', '', '', '']
        e('\n'.join([m[0]] + rd[:4] + [m[1]] + rd[4:] + [m[2], c[0], c[1], c[2], m[3], c[3]]))
    else:
        e(f's_waitcnt vmcnt({13-k})'); e('\n'.join(m + rd))
stamp(12)
e('s_nop 4')
for i in range(8): e(f'v_cvt_pk_bf16_f32 v{16+i}, v{OC+2*i}, v{OC+2*i+1}')
e(f"""ds_write_b128 v{vBw}, {vr(16,4)}
ds_write_b128 v{a0}, {vr(20,4)}
ds_read_b128 {vr(24,4)}, v{vBr}
ds_read_b128 {vr(28,4)}, v{vBr} offset:1024
s_or_b32 s{sA}, s2, s{S_W}
s_waitcnt lgkmcnt(1)
buffer_store_dwordx4 {vr(24,4)}, v{vOut}, {sr(SRD_C)}, s{sOut} offen {OUTM2}
s_waitcnt lgkmcnt(0)
buffer_store_dwordx4 {vr(28,4)}, v{vOut}, {sr(SRD_C)}, s{sOut+1} offen {OUTM2}
s_cbranch_scc1 L_noepoch""")
publish(sA, 6)
e('L_noepoch:')
if OPT['prof']:
    e('s_waitcnt vmcnt(0)')
stamp(13)
prof_out()
e('L_end:\ns_endpgm')
if OM:
    for k in range(14):
        c = o_chk(k)
        e(f'''L_or{k}:
        s_call_b64 s[90:91], L_re{k}
        {c[0]}
        L_oc{k}:
        {c[1]}
        {c[2]}
        {c[3]}
        s_cbranch_vccz L_og{k}
        {'s_sleep %d' % OPT['rsleep'] if OPT['rsleep'] else ''}
        {o_load(k)}
        s_sub_u32 s{S_BOUND}, s{S_BOUND}, 1
        s_waitcnt vmcnt(0)
        s_cbranch_scc0 L_oc{k}
        s_mov_b32 s{S_BOUND}, 0
        s_branch L_og{k}''')
    for k in range(14): e(f'L_re{k}:\n{o_load(k)}')
    e('s_setpc_b64 s[90:91]')
sec('idle')
ROLE[0] = 2
e('L_ssm_idle:')
if OPT['only'] == 2:
    arrive(1); e('s_endpgm')
hi()
e(f"""v_lshrrev_b32 v10, 3, v{V_LANE}
v_and_b32 v11, 7, v{V_LANE}
v_lshlrev_b32 v11, 4, v11
v_mul_u32_u24 v5, 896, v10
v_add_u32 v5, v5, v11
v_add_u32 v6, {7168-1024}, v5
s_lshl2_add_u32 s60, s{S_J}, s{S_W}
s_mul_i32 s61, s60, {16*896}
s_mul_i32 s62, s{S_W}, 14336
s_add_u32 s62, s62, {L_SSM}
s_mov_b32 s{SRD_A+2}, {2048*896}
s_mov_b32 s{SRD_A+3}, 0x20000
s_waitcnt lgkmcnt(0)
s_load_dword s{S_NONCE}, s[28:29], 0
s_mov_b64 s[{SRD_A}:{SRD_A+1}], s[4:5]""")
for c in range(7):
    e(f"""s_add_u32 m0, s62, {2048*c - 128*c}
    s_nop 0
    buffer_load_dwordx4 v5, {sr(SRD_A)}, s61 offen offset:{128*c} lds
    buffer_load_dwordx4 v6, {sr(SRD_A)}, s61 offen offset:{1024 + 128*c} lds""")
    if c == 1:
        srd(SRD_WS, 28, WS_SIZE)
        e(f"""; transposing read: row = 8*(cc&1)+r', byte = 8*(2G+(cc>>1))
        v_mul_u32_u24 v7, {QS}, v10
        v_add_u32 v7, v7, v11
        v_bfe_u32 v8, v{V_LANE}, 2, 2
        v_and_b32 v9, 1, v{V_LANE}
        v_lshl_or_b32 v8, v9, 3, v8
        v_xor_b32 v8, 3, v8
        v_lshl_add_u32 v8, v8, 7, s62
        v_and_b32 v9, 0x30, v{V_LANE}
        v_add_u32 v8, v8, v9
        v_and_b32 v9, 2, v{V_LANE}
        v_lshl_add_u32 v8, v9, 2, v8
        s_lshl_b32 s63, s60, 7
        s_add_u32 s63, s63, {WS_U}
        s_mul_i32 s65, s{S_J}, {US}
        v_mov_b32 v12, 0x3f803f80
        v_mov_b32 v13, v12
        v_mov_b64 v[14:15], v[12:13]
        v_lshlrev_b32 v9, 4, v{V_LANE}
        s_lshl2_add_u32 s66, s{S_TILE}, s{S_W}
        s_lshl_b32 s66, s66, 8
        s_mul_i32 s67, s{S_HG}, {QS}
        s_add_u32 s66, s66, s67
        s_add_u32 s66, s66, {WS_V + 112*QS}
        s_add_u32 s65, s65, {F_U}""")
e('s_waitcnt lgkmcnt(0)')
TW = 0
if OPT['fwm'] & 1:
    TW = 1
    e(f'''v_mov_b32 v{V_T}, s{S_NONCE}
    v_lshlrev_b32 v5, 2, v{V_LANE}
    s_mov_b32 exec_hi, 0
    buffer_store_dword v{V_T}, v5, {sr(SRD_WS)}, s65 offen sc1
    s_mov_b64 exec, -1''')
e(f's_add_u32 s{S_NONCE}, s{S_NONCE}, 1')
arrive(1)
def t_rd(c):
    return [f'ds_read_b64_tr_b16 {vr(16 + 8*c + 4*z + 2*hf, 2)}, v8 offset:{2048*c + 64*z + 512*(1-hf)}' for z in range(2) for hf in range(2)]
e(f's_waitcnt vmcnt({12 + TW})'); stamp(1); e('\n'.join(t_rd(0)))
for c in range(7):
    if c < 6:
        e(f's_waitcnt vmcnt({10 + TW})'); e('\n'.join(t_rd(c + 1)))
    e(f"""s_add_u32 s64, s63, {8*QS}
    s_waitcnt lgkmcnt({4 if c < 6 else 0})
    buffer_store_dwordx4 {vr(16+8*c,4)}, v7, {sr(SRD_WS)}, s63 offen sc1
    buffer_store_dwordx4 {vr(20+8*c,4)}, v7, {sr(SRD_WS)}, s64 offen sc1
    s_add_u32 s63, s63, {16*QS}""")
assert OPT['ur'] == 1
e(f'''; the column quad of ones that gives the softmax row sums
s_mov_b64 exec, 0xffff
buffer_store_dwordx4 v[12:15], v9, {sr(SRD_WS)}, s66 offen sc1''')
stamp(2)
e(f'''s_mov_b64 exec, 1
v_mov_b32 v5, s{S_NONCE}
s_cmp_lg_u32 s{S_W}, 0
s_waitcnt vmcnt(0)
s_barrier
s_cbranch_scc1 L_idle_end
buffer_store_dword v5, v9, {sr(SRD_WS)}, s65 offen sc1''')
e('L_idle_end:\ns_mov_b64 exec, -1'); stamp(4)
prof_out()
e('s_endpgm')
ORDER = [['pro', 'ssm0', 'mha0', 'idle', 'ssm', 'mha'], ['pro', 'ssm0', 'mha0', 'mha', 'ssm', 'idle'],
         ['pro', 'ssm0', 'mha0', 'ssm', 'mha', 'idle'], ['pro', 'ssm0', 'idle', 'mha0', 'mha', 'ssm'],
         ['pro', 'ssm0', 'ssm', 'mha0', 'mha', 'idle'], ['pro', 'ssm0', 'ssm', 'idle', 'mha0', 'mha']][OPT['ord']] + ['cold', 'gt', 'fb']
SEC.setdefault('cold', [])
def add_nt(n, pred):
    SEC[n] = [(l.replace(' lds', ' nt lds') if l.endswith(' lds') else l + ' nt') if pred(l) else l for l in SEC[n]]
for n in ('mha0', 'mha', 'gt'):
    if OPT['nt'] & 1: add_nt(n, lambda l: l.endswith(' lds') and sr(SRD_A) in l)
    if OPT['nt'] & 2: add_nt(n, lambda l: l.endswith(' lds') and sr(SRD_B) in l)
if OPT['nt'] & 4: add_nt('idle', lambda l: l.endswith(' lds'))
if OPT['nt'] & 8: add_nt('ssm0', lambda l: 'global_load' in l)
if OPT['nt'] & 16: add_nt('ssm', lambda l: l.endswith(' lds'))
if OPT['nt'] & 32: add_nt('ssm', lambda l: 'buffer_store' in l and sr(SRD_C) in l)
BODY = sum((SEC[n] for n in ORDER), [])
def sizes(lines):
    import subprocess, re, os, tempfile
    d = tempfile.mkdtemp()
    open(d + '/a.s', 'w').write('.amdgcn_target "amdgcn-amd-amdhsa--gfx950"\n.text\n' + '\n'.join(lines) + '\n')
    subprocess.check_call(['clang', '-x', 'assembler', '-target', 'amdgcn-amd-amdhsa', '-mcpu=gfx950', '-c', d + '/a.s', '-o', d + '/a.o'])
    o = subprocess.check_output(['llvm-objdump', '-d', '--mcpu=gfx950', d + '/a.o']).decode()
    return [4 * len(m.group(1).split()) for m in re.finditer(r'// [0-9A-F]{12}: ((?:[0-9A-F]{8} ?)+)', o)]
def is_ins(l):
    t = l.split(';')[0].strip()
    return bool(t) and not t.endswith(':')
def widen(l):
    import re
    t = l.split(';')[0].strip(); op = t.split()[0]
    if op.startswith('v_') and not op.startswith(('v_readfirstlane', 'v_swap', 'v_permlane', 'v_nop')):
        return l.replace(op, op + '_e64', 1)
    return None
PGL = [l for b, l in ((1, 'L_mha:'), (2, 'L_gemm_v:'), (4, 'L_att:'), (8, 'L_ssm_idle:'), (16, 'L_ssm:'), (32, 'L_mha1:')) if OPT['pgm'] & b]
if OPT['al']:
    sz = iter(sizes(BODY))
    I = [[l, next(sz) if is_ins(l) else 0] for l in BODY]
    res = []; addr = 0; nw = nn = 0
    for i, (l, n) in enumerate(I):
        if l in PGL: addr = 0
        if n == 8 and addr % 8 == 4:
            run = 0
            for l2, n2 in I[i:]:
                if n2 == 4: break
                run += n2 == 8
            cross = sum(1 for k in range(run) if (addr + 8*k) % 32 == 28)
            if cross:
                j = len(res) - 1; done = False; aj = addr
                while j >= 0 and res[j][1] in (0, 4):
                    aj -= res[j][1]
                    t = res[j][0].strip()
                    if t.startswith(('s_branch', 's_endpgm', 's_setpc')):
                        res.insert(j + 1, ['    s_nop 0', 4]); done = True; break
                    w = widen(res[j][0]) if res[j][1] == 4 and aj % 32 != 28 else None
                    if w:
                        res[j] = [w, 8]; done = True; nw += 1; break
                    j -= 1
                if not done and run >= OPT['alr']:
                    k = len(res)
                    while res[k-1][1] == 0: k -= 1
                    res.insert(k, ['    s_nop 0', 4]); done = True; nn += 1
                if done: addr += 4
        res.append([l, n]); addr += n
    BODY = [l for l, n in res]
    print('aligned: widened', nw, 'nops', nn, 'bytes', addr, file=sys.stderr)
PG = '' if OPT['pg'] < 0 else f".p2align 12\n.fill {OPT['pg'] * 64}, 4, 0xbf800000\n"
for l in PGL: BODY.insert(BODY.index(l), '.p2align 12')
hdr = open('header.txt').read()
txt = hdr + f'''; @launch grid=(256,1,1) block=(512,1,1) lds={L_TOT}
.amdgcn_target "amdgcn-amd-amdhsa--gfx950"
.text
.globl {KN}
{PG}.p2align 8
.type {KN},@function
{KN}:
''' + '\n'.join(BODY) + f'''
.section .rodata,"a"
.p2align 6
.amdhsa_kernel {KN}
  .amdhsa_next_free_vgpr 256
  .amdhsa_next_free_sgpr 102
  .amdhsa_accum_offset 256
  .amdhsa_group_segment_fixed_size 0
  .amdhsa_kernarg_size 104
  .amdhsa_user_sgpr_count 2
  .amdhsa_user_sgpr_kernarg_segment_ptr 1
  .amdhsa_system_sgpr_workgroup_id_x 1
.end_amdhsa_kernel
'''
open(sys.argv[1], 'w').write(txt)
```

```python
import sys, struct
def fl(x): return hex(struct.unpack('<I', struct.pack('<f', x))[0])

KN = 'concat_heads__ssm_conv_s4d__softmax_full_mha__prompt_kernel'
OPT = dict(wop=0, wp=1, lp=0, unr=1, pfl=0, tsa=0, od=8, sw=3, nobatch=0, fwm=0, pg=13, pgm=32, pfm=7, rdr=0, pw=0, dm=0, rdf=0, rdv=0, rdt=0, only_st=0, ur=1, us=128, rd0=-1, rdm=0, probe=0, poff=0xc00000, nt=0, rdn=0, al=1, alr=6, fw=0, rsleep=0, hsleep=0, ord=2, nb=0, tb=13, tq=0, chkk=99, uw=-1, cw=0, s6=5, tskip=1, ones=1, pa=1, pr=2, pf=2, wgf=2, ax=0, bp=1, qa=7, n0=4, ilv=8, tlb=0, ulook=1, kgp=1, pad=0, ypad=0, omode=3, ksleep=0, usleep=4, obar=3, osleep=0, pubk=8, abl=0, touch=0, gs=0, kgw=0, xg=5, gx=0, pm=2, ps=0, rt=0, upub=1, kgx=0, outsc=3, ysleep=8, wodepth=2, wq_mid=0, pollk=99, rd=-1, rdrole=0, only=0, safe=0, rot=0, prof=0, fs=128, force_fb=0, wq_early=7, prio=1)
for a in sys.argv[2:]:
    k, v = a.split('=')
    assert k in OPT, k
    OPT[k] = int(v, 0)

FS = OPT['fs']
FSH = FS.bit_length() - 1
F_KV = 0x1000
F_O = F_KV + 1024 * FS
F_U = F_O + 1024 * FS
F_Y = F_U + 1024 * FS
F_H = F_Y + 1024 * FS
WS_K = 0x100000
WS_V = 0x300000
WS_O = 0x500000
WS_U = 0x700000
WS_Y = 0x900000
QS = 16384 + OPT['pad']; KS = 2 * QS; YS = 4096 + OPT['ypad']
S_KS = 57
WS_PROF = 0xb00000
F_U = 0xb80000 if OPT['us'] * OPT['ur'] > 4096 else F_U
US = OPT['us']
WS_SIZE = 0x1000000
L_SSM = 1024
L_W = 57344
L_RB = 65536
L_X = 114688
L_TOT = 163840
TROW = 288
TABSZ = 38 * TROW
L_TAB = L_SSM
P_SZ = 2 * TABSZ
P_UC = 1536
UC_S = 2240
P_KD = TABSZ + 1536
P_X = TABSZ
PS = 1552
PD = 4 * PS
L_KP = L_TAB + 4 * TABSZ
assert P_UC + 4 * UC_S <= TABSZ and P_KD + 1600 <= P_SZ and P_X + 8192 <= P_SZ and L_KP % 16 == 0 and L_KP + 2 * PD <= L_W
L_WO = L_SSM

S_WV, S_W, S_HG, S_C, S_TILE, S_J, S_H, S_NONCE, S_O0, S_I = range(30, 40)
SRD_WS, SRD_A, SRD_B, SRD_C = 40, 44, 48, 52
S_BOUND = 56
S_T0 = 58

SEC = {}
out = None
def sec(n):
    global out
    out = SEC.setdefault(n, [])
sec('pro')
def e(s):
    for l in s.split('\n'):
        l = l.strip()
        if l:
            out.append(l if l.endswith(':') else '    ' + l)
_lab = [0]
def lab(p):
    _lab[0] += 1
    return f'L_{p}_{_lab[0]}'
def vr(a, n):
    return f'v[{a}:{a+n-1}]' if n > 1 else f'v{a}'
def srd(d, b, n):
    e(f's_mov_b64 s[{d}:{d+1}], s[{b}:{b+1}]\ns_mov_b32 s{d+2}, {n}\ns_mov_b32 s{d+3}, 0x20000')
def sr(d): return f's[{d}:{d+3}]'

V_LANE, V_T, V_OWN, V_GRP, V_PROF = 0, 1, 2, 3, 4

ROLE = [0]
def stamp(i):
    if OPT['rd0'] == i and OPT['rdrole'] == ROLE[0]:
        e('s_memrealtime s[98:99]\ns_waitcnt lgkmcnt(0)')
    if OPT['rd'] == i and OPT['rdrole'] == ROLE[0]:
        e('s_memrealtime s[100:101]\ns_waitcnt lgkmcnt(0)')
    if (OPT['only_st'] >> (i + 32*min(ROLE[0], 1))) & 1 if OPT['only_st'] else OPT['prof'] > (i >= 14):
        e(f's_mem{"real" if OPT["rt"] else ""}time s[96:97]\ns_waitcnt lgkmcnt(0)\ns_sub_u32 s96, s96, s{98 if OPT["rt"] else S_T0}\nv_writelane_b32 v{V_PROF}, s96, {i}')
def prof_out():
    if OPT['rd'] >= 0 and OPT['rdrole'] == ROLE[0]:
        l = lab('pad')
        if ROLE[0] == 0 and not OPT['obar']: e('s_barrier')
        if ROLE[0] == 2: e('s_barrier')
        if OPT['rdr']:
            e(f'''s_lshl3_add_u32 s96, s2, s{S_WV}
            s_lshl_b32 s96, s96, 2
            s_add_u32 s96, s96, 0xb40000
            v_mov_b32 v6, 0
            buffer_load_dword v5, v6, {sr(SRD_WS)}, s96 offen sc1
            s_xor_b32 s97, s{S_NONCE}, 0x5a3c1e77
            v_mov_b32 v7, s97
            s_waitcnt vmcnt(0)
            buffer_store_dword v7, v6, {sr(SRD_WS)}, s96 offen sc1
            v_readfirstlane_b32 s96, v5
            s_xor_b32 s96, s96, 0x5a3c1e77
            s_add_u32 s96, s96, 1
            s_cmp_eq_u32 s96, s{S_NONCE}
            s_cbranch_scc{OPT['rdr'] - 1} L_end''')
        if OPT['rdf']: e(f"s_and_b32 s96, s2, {OPT['rdf']}\ns_cmp_lg_u32 s96, {OPT['rdv']}\ns_cbranch_scc1 L_end")
        if ROLE[0] == 0 and OPT['rdn']: e(f's_cmp_eq_u32 s{S_C}, 7\ns_cbranch_scc{2 - OPT["rdn"]} L_end')
        if OPT['rd'] == 98:
            e(f'''s_not_b32 s100, s100
            v_mov_b32 v5, s100
            v_mov_b32 v6, 0
            s_mov_b64 exec, 1
            global_atomic_umax v6, v5, s[26:27]
            s_waitcnt vmcnt(0)
            s_sleep 127
            s_sleep 127
            s_sleep 127
            s_sleep 127
            s_sleep 127
            global_load_dword v5, v6, s[26:27] sc1
            s_waitcnt vmcnt(0)
            v_readfirstlane_b32 s100, v5
            s_not_b32 s100, s100''')
        if OPT['probe']:
            op = {1: 'buffer_store_dwordx4 v[8:11], v5, s[52:55], s60 offen sc1', 2: 'buffer_load_dwordx4 v[8:11], v5, s[52:55], s60 offen sc1',
                  3: 'buffer_store_dwordx4 v[8:11], v5, s[52:55], s60 offen'}[OPT['probe'] & 3]
            if OPT['probe'] & 16: op = '\n'.join(op.replace('offen', f'offen offset:{1024*i}') for i in range(4))
            pre = 'buffer_load_dword v12, v6, s[52:55], s61 offen sc1\ns_waitcnt vmcnt(0)' if OPT['probe'] & 4 else ''
            if OPT['probe'] & 8: pre += '\nbuffer_store_dwordx4 v[8:11], v5, s[52:55], s60 offen sc1\ns_waitcnt vmcnt(0)\ns_sleep 40'
            e(f'''s_mov_b64 s[52:53], s[28:29]
            s_mov_b32 s54, 0x10000000
            s_mov_b32 s55, 0x20000
            L_prb:
            s_sleep 1
            s_memrealtime s[62:63]
            s_waitcnt lgkmcnt(0)
            s_sub_u32 s62, s62, s58
            s_cmp_lt_u32 s62, 3000
            s_cbranch_scc1 L_prb
            v_lshlrev_b32 v5, 4, v0
            v_mov_b32 v6, 0
            s_lshl2_add_u32 s60, s2, s{S_W}
            s_lshl_b32 s60, s60, {12 if OPT['probe'] & 16 else 10}
            s_add_u32 s60, s60, {OPT['poff']}
            s_mov_b32 s61, {OPT['poff'] + 0x180000}
            {pre}
            s_memrealtime s[62:63]
            s_waitcnt lgkmcnt(0)
            {op}
            s_waitcnt vmcnt(0)
            s_memrealtime s[100:101]
            s_waitcnt lgkmcnt(0)
            s_sub_u32 s100, s100, s62
            v_mov_b32 v8, s100
            s_lshl2_add_u32 s60, s2, s{S_W}
            s_lshl_b32 s60, s60, 2
            s_add_u32 s60, s60, {WS_PROF}
            buffer_store_dword v8, v6, s[52:55], s60 offen
            s_mul_i32 s100, s100, 20
            s_add_u32 s100, s100, s58''')
        elif OPT['rdm'] >= 3:
            key = {3: 's_and_b32 s96, s2, 7', 4: f's_mov_b32 s96, s{S_H}', 5: f's_mov_b32 s96, s{S_TILE}'}[OPT['rdm']]
            e(f'''s_sub_u32 s100, s100, s98
            s_sub_u32 s97, s98, s58
            s_mul_i32 s100, s100, 1000000
            s_mul_i32 s97, s97, 1000
            s_add_u32 s100, s100, s97
            s_add_u32 s100, s100, s2
            {key}
            s_lshl_b32 s96, s96, 2
            v_mov_b32 v5, s100
            v_mov_b32 v6, s96
            s_mov_b64 exec, 1
            global_atomic_umax v6, v5, s[26:27]
            s_waitcnt vmcnt(0)
            s_endpgm''')
        elif OPT['rdm'] == 2:
            e('''s_not_b32 s96, s58
            v_mov_b32 v5, s96
            v_mov_b32 v6, 0
            s_mov_b64 exec, 1
            global_atomic_umax v6, v5, s[26:27]
            s_waitcnt vmcnt(0)''' + '\ns_sleep 127' * 7 + '''
            global_load_dword v5, v6, s[26:27] sc1
            s_waitcnt vmcnt(0)
            v_readfirstlane_b32 s96, v5
            s_not_b32 s96, s96
            s_sub_u32 s100, s100, s96
            s_lshl_b32 s100, s100, 3
            s_add_u32 s100, s100, s96''')
        elif OPT['rdm']:
            e('s_sub_u32 s100, s100, s98')
            if OPT['rdt']: e(f"s_cmp_gt_u32 s100, {OPT['rdt']}\ns_cselect_b32 s100, 1280, 0")
            e('''v_mov_b32 v5, s100
            v_mov_b32 v6, 0
            s_mov_b64 exec, 1
            global_atomic_add v6, v5, s[26:27]
            s_waitcnt vmcnt(0)''' + '\ns_sleep 127' * 7 + '''
            global_load_dword v5, v6, s[26:27] sc1
            s_waitcnt vmcnt(0)
            v_readfirstlane_b32 s100, v5
            s_lshr_b32 s100, s100, 6
            s_add_u32 s100, s100, s58''')
        else: e('s_sub_u32 s100, s100, s98\ns_lshl_b32 s100, s100, 3\ns_add_u32 s100, s100, s58')
        e(f'''s_add_u32 s100, s100, 6000
        {l}:
        s_sleep 1
        s_memrealtime s[96:97]
        s_waitcnt lgkmcnt(0)
        s_sub_u32 s96, s96, s100
        s_cmp_lt_i32 s96, 0
        s_cbranch_scc1 {l}''')
    if OPT['prof']:
        e(f'''s_memrealtime s[96:97]
        s_waitcnt lgkmcnt(0)
        v_writelane_b32 v{V_PROF}, s96, 31
        v_writelane_b32 v{V_PROF}, s98, 30
        s_lshl_b32 s96, s2, 3
        s_add_u32 s96, s96, s{S_WV}
        s_lshl_b32 s96, s96, 7
        s_add_u32 s96, s96, {WS_PROF}
        v_lshlrev_b32 v{V_T}, 2, v{V_LANE}
        s_mov_b32 exec_hi, 0
        buffer_store_dword v{V_PROF}, v{V_T}, {sr(SRD_WS)}, s96 offen
        s_mov_b64 exec, -1''')

def arrive(stage):
    e(f'v_mov_b32 v{V_T}, {stage}\nds_write_b32 v{V_OWN}, v{V_T}')
def lwait(stage, addr=V_GRP, sleep=0):
    l = lab('lw')
    e(f'{l}:')
    if sleep: e(f's_sleep {sleep}')
    e(f'''ds_read_b32 v{V_T}, v{addr}
    s_waitcnt lgkmcnt(0)
    v_cmp_gt_u32 vcc, {stage}, v{V_T}''')
    if OPT['safe']:
        d = lab('ld')
        e(f'''s_cbranch_vccz {d}
        s_sub_u32 s{S_BOUND}, s{S_BOUND}, 1
        s_cbranch_scc0 {l}
        s_mov_b32 s{S_BOUND}, 0
        {d}:''')
    else:
        e(f's_cbranch_vccnz {l}')
def sync(stage):
    arrive(stage); lwait(stage)
def poll(voff, first_issued=False, sleep=0, reg=V_T):
    l, d, m = lab('pl'), lab('pd'), lab('pm')
    if first_issued == 2:
        e(f's_waitcnt vmcnt(0)\nv_cmp_ne_u32 vcc, s{S_NONCE}, v{reg}\ns_cbranch_vccnz {l}\n{d}:')
        cur = [n for n in SEC if SEC[n] is out][0]
        sec('cold')
        e(f'''{l}:
        buffer_load_dword v{reg}, v{voff}, {sr(SRD_WS)}, 0 offen sc1
        s_waitcnt vmcnt(0)
        v_cmp_ne_u32 vcc, s{S_NONCE}, v{reg}
        s_cbranch_vccz {d}
        s_sub_u32 s{S_BOUND}, s{S_BOUND}, 1
        s_cbranch_scc0 {l}
        s_mov_b32 s{S_BOUND}, 0
        s_branch {d}''')
        sec(cur)
        return
    if first_issued: e(f's_branch {m}')
    e(f'{l}:')
    if sleep: e(f's_sleep {sleep}')
    e(f'''buffer_load_dword v{reg}, v{voff}, {sr(SRD_WS)}, 0 offen sc1
    {m}:
    s_waitcnt vmcnt(0)
    v_cmp_ne_u32 vcc, s{S_NONCE}, v{reg}
    s_cbranch_vccz {d}
    s_sub_u32 s{S_BOUND}, s{S_BOUND}, 1
    s_cbranch_scc0 {l}
    s_mov_b32 s{S_BOUND}, 0
    {d}:''')
def publish(soff, tmp):
    if OPT['fw']:
        e(f'''v_mov_b32 v{V_T}, s{S_NONCE}
        v_lshlrev_b32 v{tmp}, 2, v{V_LANE}
        s_mov_b64 exec, {hex((1 << OPT['fw']) - 1)}
        buffer_store_dword v{V_T}, v{tmp}, {sr(SRD_WS)}, s{soff} offen sc1
        s_mov_b64 exec, -1'''.replace('s_mov_b64 exec, 0xffffffff', 's_mov_b32 exec_hi, 0'))
        return
    e(f'''v_mov_b32 v{V_T}, s{S_NONCE}
    v_mov_b32 v{tmp}, 0
    s_mov_b64 exec, 1
    buffer_store_dword v{V_T}, v{tmp}, {sr(SRD_WS)}, s{soff} offen sc1
    s_mov_b64 exec, -1''')
def swap23(d, s, t):
    e(f'''v_lshrrev_b32 v{t}, 1, v{s}
    v_xor_b32 v{t}, v{t}, v{s}
    v_and_b32 v{t}, 4, v{t}
    v_mul_u32_u24 v{t}, 3, v{t}
    v_xor_b32 v{d}, v{t}, v{s}''')
def rot_next(s):
    e(f's_add_u32 s{s}, s{s}, 1\ns_cmp_eq_u32 s{s}, 7\ns_cselect_b32 s{s}, 0, s{s}')

e(f'''s_cmp_ge_u32 s2, 256
s_cbranch_scc1 L_end''')
if OPT['prof']:
    e(f's_memtime s[{S_T0}:{S_T0+1}]\ns_memrealtime s[98:99]\nv_mov_b32 v{V_PROF}, 0')
if OPT['rd'] >= 0: e('s_memrealtime s[100:101]\ns_memrealtime s[58:59]\ns_memrealtime s[98:99]')
e(f'''s_load_dwordx16 s[4:19], s[0:1], 0
s_load_dwordx8 s[20:27], s[0:1], 64
s_load_dwordx2 s[28:29], s[0:1], 96
v_lshrrev_b32 v{V_OWN}, 6, v0
v_and_b32 v{V_LANE}, 63, v0
v_readfirstlane_b32 s{S_WV}, v{V_OWN}
v_lshlrev_b32 v{V_OWN}, 2, v{V_OWN}
v_mov_b32 v{V_T}, 0
ds_write2_b32 v{V_OWN}, v{V_T}, v{V_T} offset1:8
v_and_b32 v{V_GRP}, 3, v{V_LANE}
v_lshlrev_b32 v{V_GRP}, 2, v{V_GRP}
s_and_b32 s60, s2, 7
s_lshr_b32 s{S_J}, s2, 3
s_and_b32 s{S_HG}, s{S_J}, 1
s_lshr_b32 s{S_TILE}, s2, 4
s_lshl1_add_u32 s{S_H}, s60, s{S_HG}
s_lshl1_add_u32 s61, s60, s{S_TILE}
s_and_b32 s61, s61, 15
s_mul_i32 s60, s60, 14
s_add_u32 s60, s60, s61
s_lshl1_add_u32 s{S_I}, s60, s{S_HG}
s_lshr_b32 s{S_C}, s60, 4
s_cmp_ge_u32 s61, 14
s_cselect_b32 s{S_C}, 7, s{S_C}
s_and_b32 s{S_W}, s{S_WV}, 3
s_mov_b32 s{S_BOUND}, 0x40000
s_mov_b32 s{S_KS}, {KS}
s_cmp_lt_u32 s{S_WV}, 4
s_cbranch_scc1 L_mha''')

VX = 144; VACC = 96; VWF = 32; VPK = 128
VV, VK, VS, VO, VQ = 32, 64, 96, 160, 224
vWd = [5, 6]; vXd = [7, 8, 9, 10]; vXr = [11, 12, 13, 14]; vWb, vW0, vW1 = 15, 16, 17
vRho, vG, vSt, vQd, vQr, vFl, vA, vB, vC = 18, 19, 20, 21, 22, 23, 24, 25, 26
vKo0, vKo1, vVo, vIdx = 27, 28, 29, 30
sXb, sWb, sCh, sCw, sLx, sTmp, sTmp2, sSt, sS1, sS2, sFl = range(60, 71)
sK, sV, sIt = 71, 72, 73
sFo, sO0, sO1 = 84, 85, 86
vOs, vQw = vRho, vG
vRb = [7, 8, 9]; vQx = [11, 12, 13]; vRr = 10
sMask = 74
sOdd = 76

sec('mha0')
e('L_mha:')
if OPT['prio']: e(f"s_setprio {OPT['pm']}")
e(f'''s_mul_i32 s{S_O0}, s{S_H}, 7
s_lshr_b32 s{S_O0}, s{S_O0}, 1''')
e(f'''v_lshrrev_b32 v{vA}, 3, v{V_LANE}          ; r
v_and_b32 v{vB}, 7, v{V_LANE}                    ; p
v_lshlrev_b32 v{vC}, 1, v{vA}
v_and_b32 v{vC}, 4, v{vC}
v_xor_b32 v{vC}, v{vC}, v{vB}
v_lshlrev_b32 v{vC}, 4, v{vC}
v_mul_u32_u24 v{vWd[0]}, 2688, v{vA}
v_add_u32 v{vWd[0]}, v{vWd[0]}, v{vC}
v_add_u32 v{vWd[1]}, {8*2688-1024}, v{vWd[0]}
v_lshrrev_b32 v{vC}, 1, v{vA}
v_xor_b32 v{vC}, v{vC}, v{vB}
v_lshlrev_b32 v{vC}, 4, v{vC}
v_mul_u32_u24 v{vA}, 896, v{vA}
v_add_u32 v{vXd[0]}, v{vA}, v{vC}
v_xor_b32 v{vC}, 64, v{vC}
v_add_u32 v{vXd[1]}, v{vA}, v{vC}
v_add_u32 v{vXd[1]}, {7168-1024}, v{vXd[1]}
v_add_u32 v{vXd[2]}, {2*(7168-1024)}, v{vXd[0]}
v_add_u32 v{vXd[3]}, {2*(7168-1024)}, v{vXd[1]}
s_lshl2_add_u32 s{sXb}, s{S_TILE}, s{S_W}
s_lshl3_add_u32 s{sFl}, s{S_HG}, s{S_C}
s_lshl_b32 s{sFl}, s{sFl}, 6
s_add_u32 s{sFl}, s{sFl}, s{S_TILE if OPT['wgf'] else sXb}
s_lshl_b32 s{sFl}, s{sFl}, {FSH}
s_add_u32 s{sFl}, s{sFl}, {F_KV}
s_mul_i32 s{sXb}, s{sXb}, {32*896}
s_mul_i32 s{sWb}, s{S_HG}, 7
s_add_u32 s{sWb}, s{sWb}, s{S_C}
s_add_u32 s{sWb}, s{sWb}, 7
s_lshl_b32 s{sWb}, s{sWb}, 7
s_mul_i32 s{sTmp}, s{S_W}, {16*2688}
s_add_u32 s{sWb}, s{sWb}, s{sTmp}
s_mul_i32 s{sLx}, s{S_W}, 12288
s_add_u32 s{sLx}, s{sLx}, {L_X}
s_lshl_b32 s{sS1}, s{S_W}, 11
s_add_u32 s{sS1}, s{sS1}, {L_W}
s_mov_b32 s{SRD_A+2}, {2048*896}
s_mov_b32 s{SRD_A+3}, 0x20000
s_mov_b32 s{SRD_B+2}, {448*1344*2}
s_mov_b32 s{SRD_B+3}, 0x20000
s_mov_b32 m0, s{sLx}
s_waitcnt lgkmcnt(0)
s_mov_b64 s[{SRD_A}:{SRD_A+1}], s[18:19]
s_mov_b64 s[{SRD_B}:{SRD_B+1}], s[20:21]
s_load_dword s{S_NONCE}, s[28:29], 0''')
stamp(22)
sWo = 88
def w_lines(st):
    return [f's_add_u32 m0, s{sS1}, {8192*st}', f's_add_u32 s{sWo+st}, s{sWb}, {64*2688*st}'] + \
           [f'buffer_load_dwordx4 v{vWd[i]}, {sr(SRD_B)}, s{sWo+st} offen offset:{1024*i} lds' for i in range(2)]
def x_chunk(st):
    return [f's_add_u32 m0, s{sLx}, {(st%3)*4096 - 128*st}', 's_nop 0'] + \
           [f'buffer_load_dwordx4 v{vXd[i]}, {sr(SRD_A)}, s{sXb} offen offset:{1024*i + 128*st} lds' for i in range(4)]
TK = 'touch'
DM = []
for l in [x_chunk(0), w_lines(0)] + [w_lines(i) for i in range(1, 7)] + [x_chunk(1), x_chunk(2)]:
    DM += [l[:3]] + [[x] for x in l[3:]]
DM[0] = DM[0][2:]
for i, g in enumerate(DM[:OPT['n0']]):
    if i == OPT['nb']:
        e(f's_cmp_eq_u32 s{S_C}, 7\ns_cbranch_scc1 {"L_tmha" if OPT[TK] else "L_gemm_t"}\ns_barrier'); stamp(23)
        if OPT['only'] == 1: e('s_endpgm')
    e('\n'.join(g))
DM = DM[OPT['n0']:]
stamp(24)
if OPT['ord'] not in (1, 3, 4, 5): e('s_branch L_mha1')
sec('mha')
e('L_mha1:')
stamp(25)
sec('tmp')
srd(SRD_WS, 28, WS_SIZE)
ONES = f'''s_bitcmp1_b32 s{S_H}, 0
s_cselect_b32 s{sTmp}, 0, 7
v_cmp_eq_u32 vcc, s{sTmp}, v{vA}
s_lshl_b32 s{sTmp}, s{S_O0}, 1
s_sub_u32 s{sTmp}, s{S_HG}, s{sTmp}
s_add_u32 s{sTmp}, s{sTmp}, 112
v_mov_b32 v{vB}, s{sTmp}
v_cndmask_b32 v{vA}, v{vA}, v{vB}, vcc
''' if OPT['ones'] else ''
FIX = f'v_cmp_lt_u32 vcc, 7, v{vB}\n'
FOM = f'''s_lshl_b32 s{sFo}, s{sTmp2}, 4
s_add_u32 s{sFo}, s{sFo}, s{S_H}
s_lshl_b32 s{sFo}, s{sFo}, {FSH}
s_add_u32 s{sFo}, s{sFo}, {F_O}
''' if OPT['omode'] != 3 else ''
e(f'''v_and_b32 v{vA}, 31, v{V_LANE}
v_lshrrev_b32 v{vG}, 5, v{V_LANE}''')
swap23(vRho, vA, vB)
e(f'''v_bfe_u32 v{vB}, v{vRho}, 1, 3
v_xor_b32 v{vB}, v{vB}, v{vG}
v_lshlrev_b32 v{vB}, 4, v{vB}
v_lshl_add_u32 v{vB}, v{vRho}, 7, v{vB}
v_add_u32 v{vXr[0]}, s{sLx}, v{vB}
v_xor_b32 v{vXr[1]}, 32, v{vXr[0]}
v_xor_b32 v{vXr[2]}, 64, v{vXr[0]}
v_xor_b32 v{vXr[3]}, 0x60, v{vXr[0]}
v_and_b32 v{vB}, 3, v{V_LANE}                     ; cc
v_lshrrev_b32 v{vC}, 1, v{vB}
v_and_b32 v{vQd}, 1, v{vB}
v_lshl_or_b32 v{vC}, v{vQd}, 1, v{vC}
v_bfe_u32 v{vQd}, v{V_LANE}, 4, 1
v_lshl_or_b32 v{vB}, v{vQd}, 2, v{vB}              ; mq natural
v_lshl_or_b32 v{vC}, v{vQd}, 2, v{vC}
v_bfe_u32 v{vQd}, v{V_LANE}, 2, 2                  ; r'
v_lshl_or_b32 v{vFl}, v{vG}, 3, v{vQd}             ; 8g + r'
v_lshlrev_b32 v{vQr}, 6, v{vFl}
v_lshl_add_u32 v{vQr}, v{vC}, 3, v{vQr}
v_add_u32 v{vQr}, {L_X + 4096}, v{vQr}
s_cmp_eq_u32 s{S_HG}, 0
s_cselect_b64 vcc, -1, 0
v_cndmask_b32 v{vB}, v{vB}, v{vC}, vcc             ; K slabs use the exchanged order, V slabs the natural one
v_lshlrev_b32 v{vWb}, 7, v{vFl}
v_lshl_add_u32 v{vWb}, v{vB}, 3, v{vWb}
v_lshrrev_b32 v{vQd}, 1, v{vQd}
v_lshl_add_u32 v{vWb}, v{vQd}, 6, v{vWb}
v_add_u32 v{vW0}, {L_W}, v{vWb}
v_lshlrev_b32 v{vB}, 4, v{vRho}
v_mad_u32_u24 v{vB}, v{vG}, s{S_KS}, v{vB}
v_lshrrev_b32 v{vC}, 2, v{vA}
v_mul_u32_u24 v{vC}, {QS}, v{vC}
v_lshl_add_u32 v{vC}, v{vG}, 6, v{vC}
v_and_b32 v{vQd}, 3, v{vA}
v_lshl_add_u32 v{vC}, v{vQd}, 4, v{vC}
v_cndmask_b32 v{vSt}, v{vC}, v{vB}, vcc
s_lshl2_add_u32 s{sTmp}, s{S_TILE}, s{S_W}
s_lshl_b32 s{sTmp2}, s{sTmp}, 9
s_add_u32 s{sTmp2}, s{sTmp2}, {WS_K}
s_lshl_b32 s{sTmp}, s{sTmp}, 8
s_add_u32 s{sTmp}, s{sTmp}, {WS_V}
s_movk_i32 s{sS2}, 128
s_cmp_eq_u32 s{S_HG}, 0
s_cselect_b32 s{sSt}, s{sTmp2}, s{sTmp}
s_cselect_b32 s{sS2}, {2*KS}, s{sS2}
s_mul_i32 s{sTmp}, s{S_C}, {8*KS}
s_add_u32 s{sSt}, s{sSt}, s{sTmp}
v_lshrrev_b32 v{vB}, 2, v{V_LANE}
v_mul_u32_u24 v{vB}, 2688, v{vB}
v_lshl_add_u32 v{vQd}, v{vQd}, 4, v{vB}
s_lshl_b32 s82, s{S_O0}, 4
s_mul_i32 s{sTmp}, s{S_W}, {16*2688}
s_add_u32 s82, s82, s{sTmp}
s_lshr_b32 s{sTmp}, s{S_O0}, 3
s_add_u32 s{sTmp2}, s{S_O0}, 3
s_lshr_b32 s{sTmp2}, s{sTmp2}, 3
s_sub_u32 s{sTmp2}, s{sTmp2}, s{sTmp}
v_bfe_u32 v{vC}, v{V_LANE}, 4, 1
v_mul_u32_u24 v{vC}, s{sTmp2}, v{vC}
v_lshl_add_u32 v{vC}, v{vG}, 3, v{vC}
v_add_u32 v{vC}, s{sTmp}, v{vC}
v_and_b32 v{vB}, 15, v{V_LANE}
{FIX}v_and_b32 v{vB}, {3 if OPT['wgf'] else 15}, v{V_LANE}
v_lshl_add_u32 v{vC}, v{vC}, 6, v{vB}
s_lshl_b32 s{sTmp}, s{S_W}, {2 if OPT['wgf'] else 4}
v_add_u32 v{vC}, s{sTmp}, v{vC}
v_lshlrev_b32 v{vC}, {FSH}, v{vC}
v_add_u32 v{vFl}, {F_KV}, v{vC}
s_lshl3_add_u32 s{sTmp}, s{S_W}, s{S_HG}
s_mul_i32 s{sTmp}, s{sTmp}, {US}
s_add_u32 s{sTmp}, s{sTmp}, {F_U}
v_mul_u32_u24 v{vB}, {2*US}, v{vB}
v_add_u32 v{vB}, s{sTmp}, v{vB}
v_cndmask_b32 v{vFl}, v{vFl}, v{vB}, vcc
v_lshlrev_b32 v{vKo0}, 4, v{vA}
v_mad_u32_u24 v{vKo0}, v{vG}, s{S_KS}, v{vKo0}
v_add_u32 v{vKo1}, {2*KS}, v{vKo0}
v_lshrrev_b32 v{vA}, 2, v{vRho}
{ONES}v_mul_u32_u24 v{vA}, {QS}, v{vA}
v_lshl_add_u32 v{vA}, v{vG}, 6, v{vA}
v_and_b32 v{vB}, 3, v{V_LANE}
v_lshl_add_u32 v{vVo}, v{vB}, 4, v{vA}
v_mov_b32 v{vIdx}, 0xdddddddd
s_mul_i32 s{sTmp}, s{S_O0}, {KS}
s_lshl_b32 s{sK}, s{S_W}, 13
s_add_u32 s{sK}, s{sK}, s{sTmp}
s_add_u32 s{sK}, s{sK}, {WS_K}
s_lshl_b32 s{sV}, s{S_W}, 12
s_add_u32 s{sV}, s{sV}, s{sTmp}
s_add_u32 s{sV}, s{sV}, {WS_V}
s_lshl2_add_u32 s{sTmp2}, s{S_TILE}, s{S_W}
{FOM}s_lshl_b32 s{sTmp2}, s{sTmp2}, 9
s_add_u32 s{sO0}, s{sTmp}, s{sTmp2}
s_add_u32 s{sO0}, s{sO0}, {WS_O}
s_add_u32 s{sO1}, s{sO0}, {2*KS}
s_bitcmp1_b32 s{S_H}, 0
s_cselect_b64 s[{sOdd}:{sOdd+1}], -1, 0
; per-lane multipliers for Q: scale*log2(e), zero on the four slots that belong to the neighbour head
v_mov_b32 v{vC}, 0x3e8b97f6
v_cmp_gt_u32 vcc, 32, v{V_LANE}
s_and_b64 s[78:79], vcc, s[{sOdd}:{sOdd+1}]
s_nor_b64 s[80:81], vcc, s[{sOdd}:{sOdd+1}]
v_cndmask_b32 v{vA}, v{vC}, 0, s[78:79]
v_cndmask_b32 v{vB}, v{vC}, 0, s[80:81]
s_mov_b32 s78, 0x3f803f80
s_mov_b32 s79, s78
v_xor_b32 v{vW1}, 64, v{vW0}
v_lshlrev_b32 v{vOs}, 4, v{vRho}
v_mad_u32_u24 v{vOs}, v{vG}, s{S_KS}, v{vOs}
v_lshl_add_u32 v{vQw}, v{V_LANE}, 4, s{sLx}''')
srd(SRD_C, 28, WS_SIZE)
def o_stores(r0, r1, tag):
    e(f'''s_bitcmp1_b32 s{S_H}, 0
    s_cbranch_scc1 L_ost_odd{tag}
    buffer_store_dwordx4 {vr(r0,4)}, v{vOs}, {sr(SRD_WS)}, s{sO0} offen sc1
    s_mov_b32 exec_hi, 0
    buffer_store_dwordx4 {vr(r1,4)}, v{vOs}, {sr(SRD_WS)}, s{sO1} offen sc1
    s_not_b64 exec, exec
    buffer_store_dwordx2 {vr(r1,2)}, v{vOs}, {sr(SRD_WS)}, s{sO1} offen sc1
    s_branch L_ost_done{tag}
    L_ost_odd{tag}:
    buffer_store_dwordx4 {vr(r1,4)}, v{vOs}, {sr(SRD_WS)}, s{sO1} offen sc1
    s_mov_b32 exec_hi, 0
    buffer_store_dwordx2 {vr(r0+2,2)}, v{vOs}, {sr(SRD_WS)}, s{sO0} offen offset:8 sc1
    s_not_b64 exec, exec
    buffer_store_dwordx4 {vr(r0,4)}, v{vOs}, {sr(SRD_WS)}, s{sO0} offen sc1
    L_ost_done{tag}:
    s_mov_b64 exec, -1''')
GS = 0
AB = [l for l in SEC.pop('tmp') if not l.strip().startswith(';')]
sec('mha')
def scc_pending(i):
    return i < len(AB) and AB[i].strip().startswith(('s_cselect', 's_mov_b32 s75'))
pos = 0
for g in DM:
    n = pos + OPT['ilv']
    while scc_pending(n): n += 1
    e('\n'.join(AB[pos:n])); pos = n
    e('\n'.join(g))
e('\n'.join(AB[pos:]))
stamp(0)
def x_reads(s):
    return [f'ds_read_b128 {vr(VX + 16*s + 4*ks, 4)}, v{vXr[ks]} offset:{(s%3)*4096}' for ks in range(4)]
e('s_waitcnt vmcnt(22)')
e('\n'.join(x_reads(0)))
e('s_waitcnt vmcnt(8) lgkmcnt(0)')
arrive(1)
stamp(1)
e('\n'.join(x_chunk(3)))
e('s_waitcnt vmcnt(8)')
e('\n'.join(x_reads(1)))
lwait(1)
if OPT['fwm'] & 2:
    e(f'''v_mov_b32 v{V_T}, s{S_NONCE}
    v_lshlrev_b32 v31, 2, v{V_LANE}
    s_mov_b32 exec_hi, 0
    buffer_store_dword v{V_T}, v31, {sr(SRD_WS)}, s{sFl} offen sc1
    s_mov_b64 exec, -1''')
e(f's_add_u32 s{S_NONCE}, s{S_NONCE}, 1')
stamp(2)
def w_reads(s):
    r = []
    for ks in range(4):
        for ct in range(2):
            for hf in range(2):
                d = VWF + 32 * (s & 1) + 8 * ks + 4 * ct + 2 * hf
                r.append(f'ds_read_b64_tr_b16 {vr(d,2)}, v{(vW0, vW1)[ct]} offset:{s*8192 + ks*2048 + hf*512}')
    return r
e('\n'.join(w_reads(0)))
e(f'''s_waitcnt lgkmcnt(0)
s_cmp_lg_u32 s{S_HG}, 0
s_cbranch_scc1 L_gemm_v''')
sQb, sQc = 82, 83
NE = OPT['wq_early']
def wq_dma(st):
    return [f's_add_u32 m0, s{sLx}, {4096 + 1024*st}\ns_add_u32 s83, s82, {64*2688*st}', '', f'buffer_load_dwordx4 v{vQd}, {sr(SRD_B)}, s83 offen lds']
SPIN = []
def gemm1(vpart):
    for s in range(7):
        M = []
        for ks in range(4):
            for ct in range(2):
                wf = vr(VWF + 32 * (s & 1) + 8 * ks + 4 * ct, 4); xf = vr(VX + 16 * s + 4 * ks, 4)
                acc = vr(VACC + 16 * ct, 16)
                a, b = (xf, wf) if vpart else (wf, xf)
                M.append(f'v_mfma_f32_32x32x16_bf16 {acc}, {a}, {b}, {"0" if s == 0 and ks == 0 else acc}')
        gaps = [[] for _ in range(8)]
        tag = f'{"v" if vpart else "k"}{s}'
        pre = []
        dm = []
        def add(l): dm.extend([(l[0], l[2])] + [(None, x) for x in l[3:]])
        if s <= 2: add(x_chunk(s + 4))
        if s == 3:
            for i in range(min(NE, 4)): add(wq_dma(i))
        if s == 4:
            for i in range(4, NE): add(wq_dma(i))
        FW = 1 if OPT['fwm'] & 2 else 0
        n = {0: 8 + FW, 1: 8 + FW, 2: 8, 3: 4 + min(NE, 4), 4: NE}.get(s)
        for i, (m, l) in enumerate(dm):
            if m: (pre if i == 0 else gaps[i - 1]).append(m)
            gaps[i].append(l)
        if s < 6:
            wr = w_reads(s + 1)
            for i, (p, q) in enumerate(((0, 3), (3, 6), (6, 9), (9, 12), (12, 16))): gaps[i] += wr[p:q]
            if s <= 4: gaps[OPT['xg']] += [f's_waitcnt vmcnt({n})'] + x_reads(s + 2)
            gaps[7] += [f's_waitcnt lgkmcnt({4 if s == 4 and OPT["s6"] != 4 else 0})']
        if s == OPT['s6'] and (OPT['uw'] == 6 or OPT['cw'] == 6): gaps[6] += [f'v_mov_b32 v{V_T}, 6', f'ds_write_b32 v{V_OWN}, v{V_T}']
        if s == 5:
            gaps[7] += [f'v_add_u32 v31, 16, v{V_GRP}', f'ds_read_b32 v31, v31']
        if s == 6 and NE == 7:
            gaps[OPT['qa']] += ['s_waitcnt vmcnt(0)', f'v_mov_b32 v{V_T}, 7', f'ds_write_b32 v{V_OWN}, v{V_T}']
        e('\n'.join(pre))
        if OPT['gx'] & 1 or vpart == 2: M = ['s_nop 0'] * 8
        if OPT['gx'] & 2 or vpart == 2: gaps = [[x for x in g if 'tr_b16' not in x] for g in gaps]
        for i in range(8):
            e(M[i]); e('\n'.join(gaps[i]))
        stamp(14 + s)
assert NE == 7
sec('gt'); e('L_gemm_t:')
e('\n'.join(AB))
e(f's_waitcnt lgkmcnt(0)\ns_add_u32 s{S_NONCE}, s{S_NONCE}, 1\ns_barrier')
TB = [0] + [L_SSM - L_X + 4096*i for i in range(3)] + [L_W - L_X + 4096*i for i in range(3)]
for st in range(7):
    x = x_chunk(st); x[0] = f's_add_u32 m0, s{sLx}, {TB[st] - 128*st}'
    e('\n'.join(x))
for st in range(7): e('\n'.join(wq_dma(st)))
stamp(0)
for st in range(7):
    e(f's_waitcnt vmcnt({31 - 4*st})')
    for ks in range(4): e(f'ds_read_b128 {vr(VX + 16*st + 4*ks, 4)}, v{vXr[ks]} offset:{TB[st] - TB[1] if st else 0}')
    if st == 0:
        for ks in range(4): e(f'v_subrev_u32 v{vXr[ks]}, {-TB[1]}, v{vXr[ks]}')
e('s_waitcnt vmcnt(0) lgkmcnt(0)')
arrive(7)
stamp(3)
e('s_branch L_nokv'); sec('mha')
gemm1(False)
e('s_branch L_gemm_done\nL_gemm_v:')
gemm1(True)
e('L_gemm_done:')
stamp(3)
e(f"""s_add_u32 s{sS1}, s{sSt}, s{sS2}
s_add_u32 s{sXb}, s{sSt}, {4*KS}
s_add_u32 s{sCw}, s{sS1}, {4*KS}
s_waitcnt lgkmcnt(0)""")
PWS = 3 if OPT['pw'] else 1
e(f'v_cmp_gt_u32 vcc, {PWS}, v31\ns_cbranch_vccz L_eok\nv_add_u32 v31, 16, v{V_GRP}')
lwait(PWS, addr=31)
e('L_eok:\ns_nop 4')
for q, so in enumerate((sSt, sS1, sXb, sCw)):
    for i in range(4*q, 4*q+4):
        e(f'v_cvt_pk_bf16_f32 v{VPK + i}, v{VACC + 2*i}, v{VACC + 2*i + 1}')
    e(f'buffer_store_dwordx4 {vr(VPK+4*q,4)}, v{vSt}, {sr(SRD_WS)}, s{so} offen sc1')
e('L_nokv:')
assert OPT['wgf'] and OPT['ones'] and OPT['pf'] == 2
def kv_loads(buf, i, srdn=SRD_C):
    return [f'buffer_load_dwordx4 {vr(VK + 8*buf, 4)}, v{vKo0}, {sr(srdn)}, s{sK} offen offset:{512*i} sc1',
            f'buffer_load_dwordx4 {vr(VK + 8*buf + 4, 4)}, v{vKo1}, {sr(srdn)}, s{sK} offen offset:{512*i} sc1',
            f'buffer_load_dwordx4 {vr(VV + 8*buf, 4)}, v{vVo}, {sr(srdn)}, s{sV} offen offset:{256*i} sc1',
            f'buffer_load_dwordx4 {vr(VV + 8*buf + 4, 4)}, v{vVo}, {sr(srdn)}, s{sV} offen offset:{256*i + 128} sc1']
fill = [f'v_mov_b64 {vr(VV+2*i,2)}, s[78:79]' for i in range(12, 12 if OPT['wp'] and OPT['unr'] else 16)] + [f'v_subrev_u32 v{vRr}, {L_X - L_RB}, v{vQw}', 's_mov_b64 s[80:81], -1']
for s in range(3):
    fill += f"""s_add_u32 s{sTmp}, s{S_W}, {1+s}
    s_and_b32 s{sTmp}, s{sTmp}, 3
    s_sub_u32 s{sTmp}, s{sTmp}, s{S_W}
    s_mul_i32 s{sTmp}, s{sTmp}, 12288
    v_add_u32 v{vQx[s]}, s{sTmp}, v{vQw}
    v_subrev_u32 v{vRb[s]}, {L_X - L_RB - 4096*s}, v{vQx[s]}""".split('\n')
def count_in(n):
    e(f"""v_mov_b32 v{V_T}, 1
    v_mov_b32 v31, 0
    s_waitcnt vmcnt({n})
    s_mov_b64 exec, 1
    ds_add_rtn_u32 v{vSt}, v31, v{V_T} offset:32
    s_mov_b64 exec, -1""")
def count_out(n):
    e(f's_waitcnt lgkmcnt({n})\nv_readfirstlane_b32 s{sTmp2}, v{vSt}\ns_cmp_lg_u32 s{sTmp2}, 3\ns_cbranch_scc1 L_nopub')
    publish(sFl, 31)
    e('L_nopub:'); stamp(5)
NM = max(NE, OPT['wq_mid'])
for st in range(NE, NM): e('\n'.join(wq_dma(st)))
stamp(4)
if NE < 7:
    e('\n'.join(fill)); fill = []
    count_in(NM - NE)
    if NM == 7:
        e('s_waitcnt vmcnt(0)'); arrive(7); count_out(1)
    else:
        count_out(0)
        for st in range(NM, 7): e('\n'.join(wq_dma(st)))
        e('s_waitcnt vmcnt(0)'); arrive(7)
lwait(7)
stamp(6)
QB = [80, 84, 88, 92, 112, 116, 120, 124]
def q_reads(k):
    s, ks = divmod(k, 4)
    return [f'ds_read_b64_tr_b16 {vr(QB[k%8] + 2*hf, 2)}, v{vQr} offset:{ks*12288 + s*1024 + hf*256}' for hf in range(2)]
for k in range(6): e('\n'.join(q_reads(k)))
e('\n'.join(fill[:12])); fill = fill[12:]
zi = 8 if OPT['wp'] and OPT['unr'] else 0
PK = OPT['pubk'] if NE == 7 else -99
for k in range(28):
    extra = 1 if PK < k <= PK + 5 else 0
    e(f's_waitcnt lgkmcnt({min(10, 2*(27-k)) + extra})')
    e(f'v_mfma_f32_32x32x16_bf16 {vr(VACC,16)}, {vr(QB[k%8], 4)}, {vr(VX + 4*k, 4)}, {"0" if k == 0 else vr(VACC,16)}')
    if k + 6 < 28: e('\n'.join(q_reads(k + 6)))
    while zi < 40 and VX + 2*zi + 1 < VX + 4*k - 4 and zi < 2*k:
        e(f'v_mov_b64 {vr(VX + 2*zi, 2)}, 0'); zi += 1
    if k >= 22 or k < 2:
        e('\n'.join(fill[:4])); fill = fill[4:]
    if k == PK: count_in(0)
    if k == PK + OPT['wgf']: count_out(2*OPT['wgf'])
    if k == OPT['pollk']: e(f'buffer_load_dword v31, v{vFl}, {sr(SRD_WS)}, 0 offen sc1')
    if k == OPT['chkk']:
        e(f's_waitcnt vmcnt(0)\nv_cmp_ne_u32 vcc, s{S_NONCE}, v31\ns_mov_b64 s[80:81], vcc\ns_cbranch_vccnz L_kv_late')
        for t in range(2): e('\n'.join(kv_loads(t, t)))
        e('L_kv_late:')
assert zi == 40 and VX == VS + 48 and not fill
stamp(7)
e('s_nop 11')
for r in range(16):
    m = vA if r < 4 else (vB if r >= 12 else vC)
    e(f'v_mul_f32 v{VACC + r}, v{m}, v{VACC + r}')
for i in range(8):
    e(f'v_cvt_pk_bf16_f32 v{VQ + 24 + i}, v{VACC + 2*i}, v{VACC + 2*i + 1}')
e(f"""ds_write_b128 v{vQw}, {vr(VQ+24,4)}
ds_write_b128 v{vQw}, {vr(VQ+28,4)} offset:1024""")
arrive(8)
lwait(8)
for s in range(3):
    e(f'ds_read_b128 {vr(VQ+8*s,4)}, v{vQx[s]}\nds_read_b128 {vr(VQ+8*s+4,4)}, v{vQx[s]} offset:1024')
PF = OPT['pf']
if OPT['chkk'] < 28: e('s_cmp_eq_u64 s[80:81], 0\ns_cbranch_scc1 L_kv_done')
poll(vFl, first_issued=OPT['pollk'] < 28 and OPT['chkk'] > 27, reg=31, sleep=OPT['ksleep'])
for t in range(PF): e('\n'.join(kv_loads(t, t)))
e('L_kv_done:')
stamp(8)
OM = OPT['omode']
if OM:
    e(f'''s_lshr_b32 s{sTmp}, s{S_O0}, 3
    s_add_u32 s{sTmp2}, s{S_O0}, 3
    s_lshr_b32 s{sTmp2}, s{sTmp2}, 3
    s_sub_u32 s{sTmp2}, s{sTmp2}, s{sTmp}
    s_lshl_b32 s{sTmp2}, s{sTmp2}, 1
    s_lshl2_add_u32 s{sSt}, s{S_TILE}, s{S_W}
    s_lshr_b32 s{sS1}, s{sSt}, 1
    s_mul_i32 s{sS1}, s{sS1}, 12
    s_add_u32 s{sSt}, s{sSt}, s{sS1}
    s_lshl1_add_u32 s{sTmp}, s{sTmp}, s{sSt}
    s_lshl_b32 s{sTmp}, s{sTmp}, {FSH}
    s_add_u32 s{sTmp}, s{sTmp}, {F_Y}
    v_and_b32 v{vFl}, 1, v{V_LANE}
    v_mul_u32_u24 v{vFl}, s{sTmp2}, v{vFl}
    v_and_b32 v31, 2, v{V_LANE}
    v_lshl_add_u32 v{vFl}, v31, 8, v{vFl}
    v_lshl_add_u32 v{vFl}, v{vFl}, {FSH}, s{sTmp}''')
def qk(buf, slot, js):
    d = vr(VS + 16*slot, 16)
    return f'v_mfma_f32_32x32x16_bf16 {d}, {vr(VK + 8*buf + 4*js, 4)}, {vr(VQ + 8*slot + 4*js, 4)}, {"0" if js == 0 else d}'
def pv(buf, slot, js):
    return f'v_smfmac_f32_32x32x32_bf16 {vr(VO + 16*slot, 16)}, {vr(VV + 8*buf + 4*js, 4)}, {vr(VS + 16*slot + 8*js, 8)}, v{vIdx}'
def exps(s): return [f'v_exp_f32 v{VS + 16*s + r}, v{VS + 16*s + r}' for r in range(16)]
SPREAD = []
LP = {0: [(1, 2, 0)] * 4, 1: [(1, g, 0) for g in range(4)], 2: [(0, 0, 0), (0, 2, 0), (1, 0, 0), (1, 2, 0)],
      3: [(1, g, 2) for g in range(4)], 4: [(0, 0, 2), (0, 2, 2), (1, 0, 2), (1, 2, 2)], 5: [(1, g, 4) for g in range(4)],
      6: [(0, 1, 4), (0, 3, 4), (1, 1, 4), (1, 3, 4)]}[OPT['lp']]
FULL = OPT['unr']
def unit(t, s, it=None):
    ex = exps(s)
    nb = t if s < 3 else (t + 1) & 3
    pb = t if s > 0 else (t - 1) & 3
    live = it is None or 4*it + t + PF < 16
    wt = f's_waitcnt vmcnt({4*PF-4 if live else 0})'
    if s == 3 and not OPT['wp']: e(wt)
    M = [qk(nb, (s+1) & 3, 0), qk(nb, (s+1) & 3, 1), pv(pb, (s-1) & 3, 0), pv(pb, (s-1) & 3, 1)]
    kl = kv_loads((t + PF) & 3, t + PF)
    for g in range(4):
        body = ex[4*g:4*g+4]
        for q in reversed(range(4)):
            if LP[q][:2] == (s, g) and live: body.insert(LP[q][2], kl[q])
        if OPT['wp'] and (s, g) == (2, 3): body.insert(0, wt)
        if OPT['wp'] and it is not None:
            if (s, g) == (1, 3) and t == 3 and live: body[0:0] = [f's_add_u32 s{sK}, s{sK}, 2048', f's_add_u32 s{sV}, s{sV}, 1024']
            if (it, t, s) == (0, 0, 0) and g >= 2: M[g] = ''
        elif (s, g) == (1, 3):
            if t == 3 - PF and it is None:
                body += [f's_cmp_eq_u32 s{sIt}, 3', f's_cselect_b32 s{SRD_C+2}, 0, s{SRD_C+2}']
            if t == 3 and live:
                body += [f's_add_u32 s{sK}, s{sK}, 2048', f's_add_u32 s{sV}, s{sV}, 1024']
                if it is None: body += [f's_add_u32 s{sIt}, s{sIt}, 1', f's_cmp_lg_u32 s{sIt}, 4']
        e(M[g]); e('\n'.join(body))
e(f's_mov_b32 s{sIt}, 0\ns_waitcnt vmcnt({4*PF - 4}) lgkmcnt(0)')
stamp(9)
e(qk(0, 0, 0)); e(qk(0, 0, 1))
if FULL:
    e(f"s_setprio {OPT['pa']}\ns_nop 9\nL_att:")
    for it in range(4):
        for t in range(4):
            for s in range(4):
                if (it, t, s) < (3, 3, 2): unit(t, s, it)
else:
    e(f"s_setprio {OPT['pa']}\ns_nop 8\ns_branch L_att_in")
    e('L_att:')
    unit(3, 2); unit(3, 3)
    e('L_att_in:')
    for t in range(4):
        for s in range(4):
            if (t, s) < (3, 2): unit(t, s)
    e('s_cbranch_scc1 L_att')
if OPT['prio']: e(f"s_setprio {OPT['pm']}")
if OM: e(f'buffer_load_dword v31, v{vFl}, {sr(SRD_WS)}, 0 offen sc1')
def rbw(s): return [f'ds_write_b128 v{vRb[s]}, {vr(VO + 16*s + 4*i, 4)} offset:{1024*i}' for i in range(4)]
ex = exps(2); w0 = rbw(0)
e(qk(3, 3, 0)); e('\n'.join(ex[0:4])); e(qk(3, 3, 1)); e('\n'.join(ex[4:7] + [w0[0]]))
e(pv(3, 1, 0)); e('\n'.join(ex[7:10] + [w0[1]])); e(pv(3, 1, 1)); e('\n'.join(ex[10:13] + [w0[2]] + ex[13:16] + [w0[3]]))
ex = exps(3); w1 = rbw(1); w2 = rbw(2)
e(pv(3, 2, 0)); e('\n'.join(ex[0:3])); e(pv(3, 2, 1))
e('\n'.join([w1[0]] + ex[3:5] + [w1[1]] + ex[5:7] + [w1[2]] + ex[7:9] + [w1[3]] + ex[9:10]))
e(pv(3, 3, 0))
e('\n'.join([w2[0]] + ex[10:12] + [w2[1]] + ex[12:14] + [w2[2]] + ex[14:16] + [w2[3]]))
arrive(9)
e(pv(3, 3, 1))
stamp(10)
lwait(9)
for i in range(12): e(f'ds_read_b128 {vr(VS + 4*i, 4)}, v{vRr} offset:{1024*i}')
OA = VO + 48
for s in range(3):
    e(f's_waitcnt lgkmcnt({8 - 4*s})')
    for i in range(8): e(f'v_pk_add_f32 {vr(OA+2*i,2)}, {vr(OA+2*i,2)}, {vr(VS+16*s+2*i,2)}')
e(f's_mov_b32 s{sIt}, {1 if OPT["force_fb"] else 0}')
e(f'''L_norm:
v_cndmask_b32 v{vA}, v{OA+12}, v{OA}, s[{sOdd}:{sOdd+1}]
v_max3_f32 v{vC}, abs(v{OA}), abs(v{OA+1}), abs(v{OA+2})
v_mov_b32 v{vB}, v{vA}
v_max3_f32 v{vC}, abs(v{OA+3}), abs(v{OA+4}), v{vC}
v_max3_f32 v{vC}, abs(v{OA+5}), abs(v{OA+6}), v{vC}
v_permlane32_swap_b32 v{vA}, v{vB}
v_max3_f32 v{vC}, abs(v{OA+7}), abs(v{OA+8}), v{vC}
v_cndmask_b32 v{vB}, v{vB}, v{vA}, s[{sOdd}:{sOdd+1}]
v_max3_f32 v{vC}, abs(v{OA+9}), abs(v{OA+10}), v{vC}
v_rcp_f32 v{vA}, v{vB}
v_max3_f32 v{vC}, abs(v{OA+11}), abs(v{OA+12}), v{vC}
v_max3_f32 v{vC}, abs(v{OA+13}), abs(v{OA+14}), v{vC}
v_max_f32 v{vC}, abs(v{OA+15}), v{vC}
v_cmp_nle_f32 vcc, 0x30800000, v{vB}
s_mov_b64 s[78:79], vcc
v_cmp_nge_f32 vcc, 0x4e800000, v{vB}
s_or_b64 s[78:79], s[78:79], vcc
v_cmp_ngt_f32 vcc, 0x7f000000, v{vC}
s_or_b64 vcc, s[78:79], vcc''')
if OPT['force_fb']:
    e(f's_cmp_eq_u32 s{sIt}, 1\ns_cbranch_scc1 L_fb')
e('s_cbranch_vccnz L_fb0\nL_norm2:')
for i in range(8): e(f'v_pk_mul_f32 {vr(OA+2*i,2)}, {vr(OA+2*i,2)}, {vr(vA,2)} op_sel_hi:[1,0]')
for i in range(8): e(f'v_cvt_pk_bf16_f32 v{VS+i}, v{OA+2*i}, v{OA+2*i+1}')
if OM: poll(vFl, first_issued=2, reg=31)
o_stores(VS, VS + 4, '')
stamp(11)
if OM == 4: publish(sFo, vA)
if OPT['obar'] == 1: e('s_barrier')
if OPT['obar'] >= 3: e(f"s_waitcnt vmcnt({5 - OPT['obar'] + (OM == 4)})\ns_barrier")
if OM == 0:
    e('s_waitcnt vmcnt(0)'); publish(sFo, vA)
if OPT['obar'] == 2: e('s_barrier')
stamp(12)
prof_out()
e('s_endpgm')

for tag, st in SPIN:
    e(f'L_ws_{tag}:'); lwait(st); e(f's_branch L_wb_{tag}')
sec('fb')
e(f'''L_fb0:
s_cmp_eq_u32 s{sIt}, 2
s_cbranch_scc1 L_norm2
L_fb:
s_waitcnt vmcnt(0)
s_mul_i32 s{sTmp}, s{S_O0}, {KS}
s_add_u32 s{sK}, s{sTmp}, {WS_K}
s_add_u32 s{sV}, s{sTmp}, {WS_V}
v_mov_b32 v{vC}, 0xff800000
s_mov_b32 s{sIt}, 0
L_fb1:''')
e('\n'.join(kv_loads(0, 0, SRD_WS)[:2]))
e('s_waitcnt vmcnt(0)')
e(qk(0, 3, 0)); e(qk(0, 3, 1)); e('s_nop 11')
for i in range(8): e(f'v_max3_f32 v{vC}, v{VS+48+2*i}, v{VS+49+2*i}, v{vC}')
e(f'''s_add_u32 s{sK}, s{sK}, 512
s_add_u32 s{sIt}, s{sIt}, 1
s_cmp_lg_u32 s{sIt}, 64
s_cbranch_scc1 L_fb1
v_mov_b32 v{vA}, v{vC}
s_sub_u32 s{sK}, s{sK}, 0x8000
s_mov_b32 s{sIt}, 0
v_permlane32_swap_b32 v{vA}, v{vC}
v_max_f32 v{vC}, v{vA}, v{vC}''')
for i in range(8): e(f'v_mov_b64 {vr(OA+2*i,2)}, 0')
e('L_fb2:')
e('\n'.join(kv_loads(0, 0, SRD_WS)))
e('s_waitcnt vmcnt(0)')
e(qk(0, 3, 0)); e(qk(0, 3, 1)); e('s_nop 11')
for i in range(16): e(f'v_sub_f32 v{VS+48+i}, v{VS+48+i}, v{vC}')
for i in range(16): e(f'v_exp_f32 v{VS+48+i}, v{VS+48+i}')
e('s_nop 1')
e(pv(0, 3, 0)); e(pv(0, 3, 1))
e(f'''s_add_u32 s{sK}, s{sK}, 512
s_add_u32 s{sV}, s{sV}, 256
s_add_u32 s{sIt}, s{sIt}, 1
s_cmp_lg_u32 s{sIt}, 64
s_cbranch_scc1 L_fb2
s_mov_b32 s{sIt}, 2
s_nop 11
s_branch L_norm''')

sD0, sD, sHw, sDs, sTab, sA, sB, sLd, sSk, sIt2, sFlU, sInv, sUns, sSel, sUl, sOl, sCh0 = range(60, 77)
sUs, sOut, sHm = 78, 80, 82
sE2, sP, sE3, sKd, sCo = 84, 85, 86, 87, 77
OUTM = ('', 'sc1', '', 'sc1', 'nt', 'sc0 sc1')[OPT['outsc']]
OUTM2 = ('', '', 'sc1', 'sc1', 'nt', 'sc0 sc1')[OPT['outsc']]
a0, a1, a2, a3 = 5, 6, 7, 9
vPar = 10
vKc = 18
vRa, vRb_, vKd, vKd1, vKa, vKa0, vFu, vE1, vE1b, vFr, vKxo, vKxp, vPair, vRz, vBk, vA0, vA1, vKb, vSB, vSB0 = range(20, 40)
vSel = 180
vAc = 40
vOne, vScl, vAdd, vC0 = range(56, 60)
vOp = 64
vY = 128
vXt = 144
vAn = 166
vX1 = 172
T0, T1 = 160, 176
vZ = 192
U = 204
vZer = 220
vUa, vCd, vG_, vZp, vKp, vF_, vL16, vXo, vXp, vTr, vYl, vYs, vFy, vYw = range(224, 238)
vWoD = 238
vWoR = 240
vOl, vFo, vBw, vBr, vOut = range(242, 247)
def hi():
    if OPT['prio']: e('s_setprio 3')
KG = [True]
def lo():
    if OPT['prio']: e(f"s_setprio {OPT['kgp'] if KG[0] else OPT['ps']}")
ROLE[0] = 1
sec('ssm0')
PFA = f'''s_mul_i32 s{sLd}, s{S_HG}, 7
s_add_u32 s{sLd}, s{sLd}, s{S_C}                   ; slab 0..13
s_mul_i32 s{sSk}, s{S_TILE}, 14
s_add_u32 s{sSk}, s{sSk}, s{sLd}                   ; 0..223
s_cmp_eq_u32 s{S_W}, 1
s_cbranch_scc1 L_pf1
s_cmp_eq_u32 s{S_W}, 2
s_cbranch_scc1 L_pf2
s_mul_i32 s{sB}, s{sSk}, 64
s_mul_hi_u32 s{sB}, s{sB}, {(2**32 + 6)//7}
s_cmp_eq_u32 s{S_W}, 0
s_cselect_b32 s{sInv}, 43, 64
s_cselect_b32 s{sLd}, 6, 4
s_cselect_b32 s{sUns}, {60 if OPT['pfm'] & 1 else 0}, {40 if OPT['pfm'] & 8 else 0}
v_mul_u32_u24 v6, s{sInv}, v{V_LANE}
v_lshrrev_b32 v6, 8, v6
v_mul_u32_u24 v7, s{sLd}, v6
v_sub_u32 v7, v7, v{V_LANE}
v_add_u32 v6, s{sB}, v6
v_mul_u32_u24 v6, 7, v6
v_add3_u32 v8, v6, v7, 6
s_mov_b32 s{SRD_A+2}, {2048*896}
s_branch L_pf3
L_pf1:
s_mul_i32 s{sB}, s{S_TILE}, 20
s_add_u32 s{sB}, s{sB}, 128
v_add_u32 v6, s{sB}, v{V_LANE}
v_mul_u32_u24 v6, 21, v6
v_add3_u32 v8, v6, s{sLd}, 7
s_mov_b32 s{sUns}, {20 if OPT['pfm'] & 2 else 0}
s_mov_b32 s{SRD_A+2}, {448*2688}
s_branch L_pf3
L_pf2:
v_mul_u32_u24 v6, 37, v{V_LANE}
v_lshrrev_b32 v6, 8, v6
v_mul_u32_u24 v6, 14, v6
s_mul_i32 s{sB}, s{sSk}, 42
v_add3_u32 v8, v6, v{V_LANE}, s{sB}
s_mov_b32 s{sUns}, {14 if OPT['pfm'] & 4 else 0}
s_mov_b32 s{SRD_A+2}, {448*2688}
L_pf3:
v_lshlrev_b32 v8, 7, v8
v_cmp_gt_u32 vcc, s{sUns}, v{V_LANE}
s_mov_b32 s{SRD_A+3}, 0x20000
v_bfrev_b32 v6, 1
v_cndmask_b32 v8, v6, v8, vcc
''' if OPT['pfm'] else ''
e(f"""s_cmp_{'eq' if OPT['only'] != 2 else 'le'}_u32 s{S_C}, 7
s_cbranch_scc1 L_ssm_idle
s_lshr_b32 s{sDs}, s{S_W}, 1
s_lshl_b32 s{sD0}, s{S_I}, 1
s_add_u32 s{sD}, s{sD0}, s{sDs}
s_mul_i32 s{sTab}, s{S_W}, {TABSZ}
s_add_u32 s{sTab}, s{sTab}, {L_TAB}
s_lshl1_add_u32 s{sA}, s{sD0}, s{S_W}
s_lshl_b32 s{sA}, s{sA}, 8
v_lshl_add_u32 v{a0}, v{V_LANE}, 2, s{sA}
s_mov_b32 m0, s{sTab}
{PFA}s_lshl_b32 s{sB}, s{sD0}, 1
s_waitcnt lgkmcnt(0)
s_load_dword s{sLd}, s[14:15], s{sB}
s_load_dword s{sSk}, s[16:17], s{sB}
global_load_dword v{vPar+0}, v{a0}, s[6:7]
global_load_dword v{vPar+1}, v{a0}, s[8:9]
global_load_dword v{vPar+2}, v{a0}, s[10:11]
global_load_dword v{vPar+3}, v{a0}, s[12:13]
global_load_dword v{vPar+4}, v{V_T}, s[28:29]""")
if OPT['pfm']:
    e(f'''s_cmp_eq_u32 s{S_W}, 0
    s_cselect_b64 s[{SRD_A}:{SRD_A+1}], s[18:19], s[20:21]
    s_cmp_eq_u32 s{S_W}, 3
    s_cselect_b64 s[{SRD_A}:{SRD_A+1}], s[4:5], s[{SRD_A}:{SRD_A+1}]''')
    PFL = f'buffer_load_dword v{vPar+5}, v8, {sr(SRD_A)}, 0 offen'
    if not OPT['pfl']: e(PFL)
if OPT['tlb'] != 2: e('s_barrier')
if OPT['tlb']:
    e(f'''v_and_b32 v{a0}, 7, v{V_LANE}
    v_min_u32 v{a0}, 5, v{a0}
    v_lshlrev_b32 v{a0}, 21, v{a0}
    v_add_u32 v{a0}, 0xf8000, v{a0}
    v_mov_b32 v{a1}, 0
    global_load_dword v8, v{a0}, s[28:29]
    global_load_dword v8, v{a1}, s[22:23]''')
if OPT['tlb'] == 2: e('s_barrier')
if OPT['ord'] < 4: e('s_branch L_ssm')
sec('ssm')
e('L_ssm:')
if OPT['abl'] == 1:
    arrive(1); e('s_waitcnt vmcnt(0) lgkmcnt(0)\ns_endpgm')
lo()
srd(SRD_WS, 28, WS_SIZE)
e(f"""s_and_b32 s{sHw}, s{S_W}, 1
v_add_u32 v{V_GRP}, 16, v{V_GRP}
v_and_b32 v{a0}, 15, v{V_LANE}
v_lshrrev_b32 v{a1}, 4, v{V_LANE}
v_lshl_add_u32 v{vRb_}, v{a1}, 4, s{sTab}
v_mul_u32_u24 v{a2}, {TROW}, v{a0}
v_add_u32 v{vRa}, v{a2}, v{vRb_}
v_lshlrev_b32 v{vL16}, 4, v{V_LANE}
v_mov_b32 v{vOne}, 0x3c00
ds_write_addtid_b32 v{vOne}""")
for i in range(8): e(f'v_mov_b64 {vr(vAc+2*i,2)}, 0')
mid = f"""v_and_b32 v{a0}, 7, v{V_LANE}
s_and_b32 s{sB}, s2, {OPT['ur'] - 1}
s_lshl2_add_u32 s{sB}, s{sB}, s{S_W}
s_mul_i32 s{sB}, s{sB}, {8*US}
s_add_u32 s{sB}, s{sB}, {F_U}
v_mul_u32_u24 v{vFu}, {US}, v{a0}
v_add_u32 v{vFu}, s{sB}, v{vFu}
s_mul_i32 s{sP}, s{sDs}, {P_SZ}
s_add_u32 s{sP}, s{sP}, {L_TAB}
s_add_u32 s{sKd}, s{sP}, {P_KD}
s_lshl_b32 s{sB}, s{sHw}, 8
s_add_u32 s{sInv}, s{sB}, s{sKd}
s_add_u32 s{sA}, s{sInv}, {1088 + 128}
v_lshl_add_u32 v{vRz}, v{a0}, 4, s{sA}
v_mov_b32 v{vKb}, s{sKd}
v_and_b32 v{a0}, 15, v{V_LANE}
v_lshrrev_b32 v{a1}, 4, v{V_LANE}
s_lshl_b32 s{sA}, s{sHw}, 4
v_add_u32 v{a0}, s{sA}, v{a0}
v_and_b32 v{a3}, 1, v{V_LANE}
v_mul_u32_u24 v{a2}, 255, v{a3}
v_sub_u32 v{a2}, v{a2}, v{a0}
s_add_u32 s{sA}, s{sKd}, {1088 + 32}
v_add_u32 v{vKa}, s{sA}, v{a2}
v_add_u32 v{vKa0}, 96, v{vKa}
s_lshl3_add_u32 s{sA}, s{sDs}, 16
v_lshl_add_u32 v{vPair}, v{a3}, 2, s{sA}
s_mul_i32 s{sA}, s{sHw}, {1088 + 112 - 1024}
s_add_u32 s{sA}, s{sA}, s{sKd}
s_add_u32 s{sA}, s{sA}, 1024
v_writelane_b32 v{vKa0}, s{sA}, 0
s_mul_i32 s{sA}, s{sHw}, 56
s_sub_u32 s{sA}, s{sKd}, s{sA}
s_add_u32 s{sA}, s{sA}, 1088
v_writelane_b32 v{vKa0}, s{sA}, 16
v_max_u32 v{a2}, 1, v{a1}
v_sub_u32 v{a2}, 5, v{a2}
v_lshlrev_b32 v{a0}, v{a2}, v{a0}
v_lshlrev_b32 v{a2}, 3, v{a1}
s_mov_b32 s{sA}, 0x60400100
v_bfe_u32 v{a1}, s{sA}, v{a2}, 8
v_lshl_add_u32 v{a0}, v{a1}, 3, v{a0}
v_add_u32 v{vKd}, s{sKd}, v{a0}
s_mov_b32 s{sA}, 0x80040404
v_bfe_u32 v{a1}, s{sA}, v{a2}, 8
v_add_u32 v{vKd1}, v{a1}, v{vKd}
v_lshrrev_b32 v{a1}, 1, v{V_LANE}
v_lshlrev_b32 v{vUa}, 6, v{a1}
v_lshl_add_u32 v{vUa}, v{a3}, 4, v{vUa}
s_lshr_b32 s{sA}, s{sD0}, 2
s_mul_i32 s{sA}, s{sA}, {QS}
s_and_b32 s{sB}, s{sD0}, 3
s_lshl4_add_u32 s{sA}, s{sB}, s{sA}
s_lshl_b32 s{sB}, s{S_W}, 12
s_add_u32 s{sA}, s{sA}, s{sB}
s_add_u32 s{sUl}, s{sA}, {WS_U}
v_and_b32 v{a1}, 3, v{a1}
v_lshl_add_u32 v{a1}, v{a3}, 2, v{a1}
v_mul_u32_u24 v{a1}, {PS}, v{a1}
v_lshrrev_b32 v{a2}, 3, v{V_LANE}
v_lshl_add_u32 v{a1}, v{a2}, 4, v{a1}
s_lshl_b32 s{sA}, s{S_W}, 8
s_add_u32 s{sA}, s{sA}, {L_KP + 512}
v_add_u32 v{vKp}, s{sA}, v{a1}
; byte selectors that expand the distinct taps to the lags (lag l uses the tap at bf16(l), as in the reference)
v_lshrrev_b32 v{a1}, 5, v{V_LANE}
s_lshl_b32 s{sA}, s{sHw}, 1
v_max_u32 v{a0}, s{sA}, v{a1}
v_min_u32 v{a2}, 1, v{a0}
v_mul_u32_u24 v{a2}, 0x0202, v{a2}
v_lshlrev_b32 v{a2}, 16, v{a2}
v_sub_u32 v{vSel}, 0x03020100, v{a2}
v_mul_u32_u24 v{a2}, 0x0202, v{a0}
v_lshl_or_b32 v{a2}, v{a2}, 16, v{a2}
v_sub_u32 v{vSel+1}, 0x07060504, v{a2}
s_mul_i32 s{sA}, s{sHw}, 0x02020202
v_add_u32 v{vSel+2}, s{sA}, v{vSel}
s_mul_i32 s{sA}, s{sHw}, 0x02020404
v_add_u32 v{vSel+3}, s{sA}, v{vSel+1}
v_lshrrev_b32 v{a2}, v{a0}, v{vL16}
s_movk_i32 s{sA}, 256
v_lshl_add_u32 v{a2}, s{sA}, v{a0}, v{a2}
s_sub_u32 s{sA}, s{sKd}, 256
v_add_u32 v{vE1}, s{sA}, v{a2}
v_lshlrev_b32 v{a2}, 2, v{a0}
v_sub_u32 v{vE1b}, v{vE1}, v{a2}
s_mov_b32 s{sA}, 0x0c0c0c0c
s_cmp_lg_u32 s{sHw}, 0
s_cselect_b32 s{sE2}, 0x01000100, s{sA}
s_cselect_b32 s{sE3}, 0x05040302, s{sA}
v_mov_b32 v{vSel+4}, s{sA}
v_mov_b32 v{vSel+5}, s{sA}
v_mov_b32 v{vSel+6}, s{sA}
v_mov_b32 v{vSel+7}, s{sA}
s_mov_b32 s{sA}, 0x05040504
s_mov_b64 exec, 15
v_mov_b32 v{vSel+4}, s{sA}
v_mov_b32 v{vSel+5}, s{sA}
v_mov_b32 v{vSel+6}, s{sA}
s_mov_b64 exec, -1
v_writelane_b32 v{vSel+7}, s{sA}, 3
s_mov_b32 s{sA}, 0x05040302
v_writelane_b32 v{vSel+4}, s{sA}, 3
s_mov_b32 s{sA}, 0x0c0c0504
v_writelane_b32 v{vSel+6}, s{sA}, 0
v_writelane_b32 v{vSel+7}, s{sA}, 2
s_mul_i32 s{sA}, s{S_W}, {2*PS}
s_add_u32 s{sA}, s{sA}, {L_KP}
v_mul_u32_u24 v{a2}, {PS - 512}, v{a1}
v_add3_u32 v{vG_}, v{a2}, v{vL16}, s{sA}
v_mov_b64 {vr(vZer,2)}, 0
v_mov_b64 {vr(vZer+2,2)}, 0
ds_write_b128 v{vG_}, {vr(vZer,4)}
s_lshl_b32 s{sA}, s{sHw}, 10
s_add_u32 s{sB}, s{sP}, {P_UC}
s_add_u32 s{sA}, s{sA}, s{sB}
s_add_u32 s{sA}, s{sA}, 64
v_add_u32 v{vCd}, s{sA}, v{vL16}
v_and_b32 v{a3}, 3, v{V_LANE}
v_and_b32 v{a0}, 0x1c, v{V_LANE}
v_lshlrev_b32 v{a2}, 2, v{a0}
v_and_b32 v{vZp}, 0x30, v{a2}
s_mov_b32 exec_hi, 0
v_add_u32 v{vZp}, 2112, v{a2}
s_mov_b64 exec, -1
v_mul_u32_u24 v{a2}, {UC_S}, v{a3}
v_add3_u32 v{vZp}, v{vZp}, v{a2}, s{sB}
v_lshlrev_b32 v{a0}, 1, v{a0}
v_sub_u32 v{a0}, v{a0}, v{a2}
v_lshlrev_b32 v{a1}, 4, v{a1}
v_sub_u32 v{a0}, v{a0}, v{a1}
s_lshl_b32 s{sA}, s{sHw}, 5
s_sub_u32 s{sB}, s{sB}, s{sA}
s_add_u32 s{sB}, s{sB}, {56 + 3*UC_S}
v_add_u32 v{vF_}, s{sB}, v{a0}
v_add_u32 v{vG_}, {512 - 80}, v{vG_}
v_add_u32 v{vKxo}, s{sTab}, v{vL16}
s_xor_b32 s{sA}, s{S_W}, 1
s_mul_i32 s{sA}, s{sA}, {TABSZ}
s_add_u32 s{sA}, s{sA}, {L_TAB}
v_add_u32 v{vKxp}, s{sA}, v{vL16}
v_and_b32 v{a0}, 31, v{V_LANE}
v_lshlrev_b32 v{a2}, 2, v{a0}
v_sub_u32 v{a2}, v{a1}, v{a2}
s_add_u32 s{sA}, s{sInv}, {1088 + 124}
v_add_u32 v{vBk}, s{sA}, v{a2}
"""
def prewrite():
    e(f'''s_sub_u32 s{sA}, 3, s{S_HG}
    v_lshrrev_b32 v{a0}, s{sA}, v{V_LANE}
    v_lshlrev_b32 v{a1}, s{sA}, v{a0}
    v_sub_u32 v{a1}, v{V_LANE}, v{a1}
    s_lshr_b32 s{sA}, s{S_KS}, s{S_HG}
    v_mul_u32_u24 v{a0}, s{sA}, v{a0}
    v_lshl_add_u32 v{a0}, v{a1}, 6, v{a0}
    s_lshl2_add_u32 s{sA}, s{S_TILE}, s{S_W}
    s_lshl_b32 s{sA}, s{sA}, 9
    s_lshr_b32 s{sA}, s{sA}, s{S_HG}
    s_mul_i32 s{sB}, s{S_HG}, {WS_V - WS_K}
    s_add_u32 s{sA}, s{sA}, s{sB}
    s_mul_i32 s{sB}, s{S_C}, {8*KS}
    s_add_u32 s{sA}, s{sA}, s{sB}
    s_add_u32 s{sA}, s{sA}, {WS_K}''')
    hi(); e(f'buffer_store_dword v{a0}, v{a0}, {sr(SRD_WS)}, s{sA} offen sc1'); lo()
if OPT['pw'] == 1: prewrite()
if OPT['pfl'] and OPT['pfm']:
    ml = mid.split('\n'); k = OPT['pfl']
    while 'exec' in ''.join(ml[k-4:k+1]): k += 1
    mid = '\n'.join(ml[:k] + ['s_setprio 3', PFL, f"s_setprio {OPT['kgp']}"] + ml[k:])
e(mid)
if OPT['pw'] == 2: prewrite()
stamp(22)
e(f"""s_waitcnt lgkmcnt(0)
s_lshl_b32 s{sA}, s{sDs}, 4
s_lshr_b32 s{sLd}, s{sLd}, s{sA}
s_lshl_b32 s{sLd}, s{sLd}, 16
s_lshr_b32 s{sSk}, s{sSk}, s{sA}
s_lshl_b32 s{sSk}, s{sSk}, 16
v_mov_b32 v{a0}, s{sLd}
v_mul_f32 v{a0}, 0x3fb8aa3b, v{a0}
v_exp_f32 v{a0}, v{a0}
s_cmp_eq_u32 s{sHw}, 0
s_cselect_b32 s{sSk}, s{sSk}, 0
v_cvt_pk_bf16_f32 v{a0}, v{a0}, v{a0}
v_and_b32 v{vScl}, 0xffff0000, v{a0}
v_mul_f32 v{vKc}, 0xbfb8aa3b, v{vScl}
v_mul_f32 v{vKc+1}, 0.15915494, v{vScl}
v_mov_b32 v{vAdd}, 0
v_add_f32 v{vScl}, v{vScl}, v{vScl}
v_writelane_b32 v{vAdd}, s{sSk}, 0
s_mov_b32 s{sIt2}, 0
s_mov_b32 s{sSel}, 0x01000c0c""")
stamp(0)
e(f"""s_waitcnt vmcnt({(3 if OPT['tlb'] else 1) + (OPT['pw'] in (1, 2)) + (OPT['pfm'] > 0)})
v_and_b32 v{a0}, 0x7f807f80, v{vPar+2}
v_and_b32 v{a1}, 0x7f807f80, v{vPar+3}
v_pk_max_u16 v{a0}, v{a0}, v{a1}
v_lshlrev_b32 v{a1}, 16, v{a0}
v_max_u32 v{a0}, v{a0}, v{a1}""")
for q, n in enumerate((1, 2, 4, 8)):
    e(f's_nop 1\nv_max_u32_dpp v{a0}, v{a0}, v{a0} row_ror:{n} row_mask:0xf bank_mask:0xf')
e(f"""s_nop 0
v_readlane_b32 s{sA}, v{a0}, 0
v_readlane_b32 s{sB}, v{a0}, 16
v_readlane_b32 s{sInv}, v{a0}, 32
v_readlane_b32 s{sUns}, v{a0}, 48
s_max_u32 s{sA}, s{sA}, s{sB}
s_max_u32 s{sUns}, s{sUns}, s{sInv}
s_max_u32 s{sUns}, s{sUns}, s{sA}
s_and_b32 s{sUns}, s{sUns}, 0x7f800000
s_min_u32 s{sUns}, s{sUns}, 0x7e800000
s_sub_u32 s{sInv}, 0x7f000000, s{sUns}
v_mul_f32 v{vScl}, s{sUns}, v{vScl}
v_mul_f32 v{vSB}, 0x43000000, v{vScl}
v_mov_b32 v{vSB0}, v{vSB}
s_mov_b64 exec, 1
v_mov_b32 v{vSB0}, v{vScl}
s_mov_b64 exec, -1""")
stamp(1)
if OPT['abl'] == 2: e('s_endpgm')
def cm(jobs, conj):
    ng = 'neg_hi:[1,0,0]' if conj else 'neg_lo:[1,0,0]'
    return [f'v_pk_mul_f16 v{d}, v{x}, v{w} op_sel_hi:[1,0]' for d, x, w in jobs] + \
           [f'v_pk_fma_f16 v{d}, v{x}, v{w}, v{d} op_sel:[1,1,0] op_sel_hi:[0,1,1] {ng}' for d, x, w in jobs]
def wr(reg): return f'ds_write_addtid_b32 v{reg} offset:{TROW*(reg - vY)}'
assert vXt == vY + 16
zA, zB, tA, tB, pA, pB = vZ, vZ+2, vZ+4, vZ+6, vZ+8, vZ+10
X = vXt; Y = vY
an = {1: vAn, 2: vAn+1, 4: vAn+2, 8: Y+1, 16: Y+2, 32: Y+4, 64: Y+8, 128: X+21, 256: vAn+3, 512: vAn+4, 1024: vAn+5}
e('L_kg:')
stamp(14)
seq = f"""v_perm_b32 v{pA}, v{vPar}, v{vPar}, s{sSel}
v_mul_f32 v{pA}, 0x3fb8aa3b, v{pA}
v_exp_f32 v{pA}, v{pA}
v_perm_b32 v{pA+1}, v{vPar+1}, v{vPar+1}, s{sSel}
v_perm_b32 v{tA}, v{vPar+2}, v{vPar+2}, s{sSel}
v_perm_b32 v{tA+1}, v{vPar+3}, v{vPar+3}, s{sSel}
v_cvt_pk_bf16_f32 v{pA}, v{pA}, v{pA}
v_mul_f32 v{tA}, s{sInv}, v{tA}
v_and_b32 v{pA}, 0xffff0000, v{pA}
v_mul_f32 v{tA+1}, s{sInv}, v{tA+1}
v_pk_mul_f32 {vr(pA,2)}, {vr(pA,2)}, {vr(vKc,2)}
v_cvt_pk_f16_f32 v{X}, v{tA}, -v{tA+1}
v_mul_f32 v{pB}, 0x42800000, v{pA}
v_mul_f32 v{pB+1}, 0x42800000, v{pA+1}
v_exp_f32 v{pA}, v{pA}
v_fract_f32 v{pA+1}, v{pA+1}
v_exp_f32 v{pB}, v{pB}
v_fract_f32 v{pB+1}, v{pB+1}
v_cos_f32 v{zA}, v{pA+1}
v_sin_f32 v{zA+1}, v{pA+1}
v_cos_f32 v{zB}, v{pB+1}
v_sin_f32 v{zB+1}, v{pB+1}
v_pk_mul_f32 {vr(zA,2)}, {vr(zA,2)}, {vr(pA,2)} op_sel_hi:[1,0]
v_pk_mul_f32 {vr(zB,2)}, {vr(zB,2)}, {vr(pB,2)} op_sel_hi:[1,0]""".split('\n')
for st in range(6):
    chains = [(zA, tA, an[1 << st], st < 5)] + ([(zB, tB, an[64 << st], st < 4)] if st < 5 else [])
    for z, t, d, sq in chains:
        if sq: seq.append(f'v_pk_mul_f32 {vr(t,2)}, {vr(z,2)}, {vr(z,2)} op_sel_hi:[0,1]')
    for z, t, d, sq in chains: seq.append(f'v_cvt_pk_f16_f32 v{d}, v{z}, v{z+1}')
    for z, t, d, sq in chains:
        if sq: seq.append(f'v_pk_fma_f32 {vr(z,2)}, {vr(z,2)}, {vr(z,2)}, {vr(t,2)} op_sel:[1,1,0] op_sel_hi:[0,1,1] neg_lo:[1,0,0]')
seq += cm([(X+1, X, an[1]), (X+2, X, an[2]), (X+4, X, an[4]), (X+8, X, an[256]), (X+12, X, an[512]), (X+16, X, an[1024])], True)
seq += cm([(Y+3, Y+1, Y+2), (Y+12, Y+4, Y+8), (Y+5, Y+4, Y+1), (Y+6, Y+4, Y+2), (Y+9, Y+8, Y+1), (Y+10, Y+8, Y+2)], False)
seq += cm([(X+3, X+1, an[2]), (X+5, X+1, an[4]), (X+6, X+2, an[4]), (X+9, X+2, an[256]), (X+10, X+4, an[256]), (X+13, X+4, an[512]),
           (X+14, X+8, an[512]), (X+17, X+8, an[1024]), (X+18, X+12, an[1024]), (X+20, X+16, an[1024])], True)
seq += cm([(Y+7, Y+4, Y+3), (Y+11, Y+8, Y+3), (Y+13, Y+12, Y+1), (Y+14, Y+12, Y+2), (Y+15, Y+12, Y+3)], False)
seq += cm([(X+7, X+3, an[4]), (X+11, X+6, an[256]), (X+15, X+10, an[512]), (X+19, X+14, an[1024])], True)
e('\n'.join(seq))
stamp(15)
if OPT['kgw']:
    e(f'v_subrev_u32 v{a0}, 16, v{V_GRP}'); lwait(OPT['kgw'], addr=a0)
hi()
if OPT['abl'] != 4: e('\n'.join(wr(r) for r in range(Y + 1, X + 22)))
for k in range(4):
    o = vOp + 16*k
    e(f"""ds_read_b128 {vr(o,4)}, v{vRa} offset:{64*k}
    ds_read_b128 {vr(o+4,4)}, v{vRb_} offset:{37*TROW + 64*k}
    ds_read_b128 {vr(o+8,4)}, v{vRa} offset:{16*TROW + 64*k}
    ds_read_b128 {vr(o+12,4)}, v{vRa} offset:{32*TROW + 64*k}""")
if not OPT['uw']: e(f's_cmp_eq_u32 s{sIt2}, 0\ns_cbranch_scc1 L_kg_n\nbuffer_load_dword v{vFr}, v{vFu}, {sr(SRD_WS)}, 0 offen sc1\nL_kg_n:')
stamp(16)
def mf(c, a, b): return f'v_mfma_f32_16x16x32_f16 {vr(c,4)}, {vr(a,4)}, {vr(b,4)}, {vr(c,4)}'
late_m = []
for k in range(4):
    o = vOp + 16*k; y1 = vX1 + 4*(k & 1)
    p = cm([(y1+r, o+r, o+4+r) for r in range(4)], False)
    e(f's_waitcnt lgkmcnt({12 - 4*k})')
    e('\n'.join([mf(vAc, o+8, o)] + p[0:2] + late_m[:1] + p[2:4] + [mf(vAc+4, o+12, o)] + p[4:6] + late_m[1:] + p[6:8]))
    late_m = [mf(vAc+8, o+8, y1), mf(vAc+12, o+12, y1)]
e(f"""s_add_u32 s{sSel}, s{sSel}, 0x02020000
s_add_u32 s{sIt2}, s{sIt2}, 1
s_cmp_lg_u32 s{sIt2}, 2""")
e('\n'.join(late_m))
lo()
if OPT['pw'] == 3:
    e('s_cbranch_scc0 L_kg_e'); prewrite(); e('s_branch L_kg\nL_kg_e:')
else: e('s_cbranch_scc1 L_kg')
stamp(17)
if OPT['abl'] in (4, 8): e('s_endpgm')
def scl(i): return vSB0 if i == 4 else (vSB if i & 4 else vScl)
for i in range(8): e(f'v_mul_f32 v{vAc+i}, v{scl(i)}, v{vAc+i}')
e(f's_cmp_eq_u32 s{sHw}, 0')
for i in range(8, 16): e(f'v_mul_f32 v{vAc+i}, v{scl(i)}, v{vAc+i}')
e('s_cbranch_scc1 L_kx')
for i in range(8): e(f'v_swap_b32 v{vAc+i}, v{vAc+8+i}')
e(f"""L_kx:
ds_write_b128 v{vKxo}, {vr(vAc+8,4)}
s_mov_b32 exec_hi, 0
ds_write_b128 v{vKxo}, {vr(vAc+12,4)} offset:1024
s_mov_b64 exec, -1
s_waitcnt vmcnt({1 if OPT['pw'] else 0})
v_readfirstlane_b32 s{S_NONCE}, v{vPar+4}""")
arrive(2)
e(f's_add_u32 s{S_NONCE}, s{S_NONCE}, 1')
e(f'v_add_f32 v{vAc}, v{vAdd}, v{vAc}')
stamp(18)
def bprio():
    if OPT['prio']: e(f"s_setprio {OPT['bp']}")
def u_look():
    hi(); e(f'buffer_load_dword v{vFr}, v{vFu}, {sr(SRD_WS)}, 0 offen sc1'); bprio()
def u_fetch():
    hi()
    stamp(20)
    poll(vFu, first_issued=True, reg=vFr, sleep=OPT['usleep'])
    stamp(21)
    for k in range(2):
        e(f'buffer_load_dwordx4 {vr(U+4*k,4)}, v{vUa}, {sr(SRD_WS)}, s{sUl} offen offset:{2048*k} sc1')
    bprio()
if OPT['uw'] <= -2: u_look()
else: bprio()
stamp(19)
lwait(2, addr=vPair)
e(f"""ds_read_b128 {vr(vAc+8,4)}, v{vKxp}
ds_read_b128 {vr(vAc+12,4)}, v{vKxp} offset:1024
ds_write_b128 v{vRz}, {vr(vZer,4)}
s_mov_b32 s{sIt2}, 4
s_waitcnt lgkmcnt(1)""")
for i in range(4): e(f'v_pk_add_f32 {vr(vAc+2*i,2)}, {vr(vAc+2*i,2)}, {vr(vAc+8+2*i,2)}')
for i in range(4): e(f'v_cvt_pk_bf16_f32 v{vAc+8+i}, v{vAc+2*i}, v{vAc+2*i+1}')
e(f"""ds_write_b32 v{vKd}, v{vAc+8}
ds_write_b32 v{vKd1}, v{vAc+9}
s_mov_b64 exec, 0x1ffff
ds_write_b16 v{vKa0}, v{vAc+10}
s_mov_b64 exec, 0xffff
ds_write_b16_d16_hi v{vKa}, v{vAc+10} offset:64
ds_write_b16 v{vKa}, v{vAc+11} offset:32
ds_write_b16_d16_hi v{vKa}, v{vAc+11}
s_mov_b64 exec, -1""")
if OPT['pw']: e('s_waitcnt vmcnt(0)')
arrive(3)
if OPT['uw'] == -1: u_look()
if OPT['uw'] == -2: u_fetch()
def u_try():
    hi()
    e(f's_waitcnt vmcnt(0)\nv_cmp_ne_u32 vcc, s{S_NONCE}, v{vFr}\ns_mov_b64 s[88:89], vcc\ns_cbranch_vccnz L_utry')
    for k in range(2):
        e(f'buffer_load_dwordx4 {vr(U+4*k,4)}, v{vUa}, {sr(SRD_WS)}, s{sUl} offen offset:{2048*k} sc1')
    e(f's_branch L_utry2\nL_utry:\nbuffer_load_dword v{vFr}, v{vFu}, {sr(SRD_WS)}, 0 offen sc1\nL_utry2:')
    bprio()
if OPT['uw'] == -4: u_try()
lwait(3, addr=vPair)
if OPT['uw'] == -3: u_try()
stamp(2)
E = 64; BF = 40
e(f"""ds_read2_b32 {vr(E,2)}, v{vE1} offset1:1
ds_read2_b32 {vr(E+2,2)}, v{vE1b} offset0:2 offset1:3
ds_read2_b32 {vr(E+4,2)}, v{vKb} offset0:191 offset1:192
ds_read_b32 v{E+6}, v{vKb} offset:1020
ds_read_b32 v{E+7}, v{vKb} offset:1024""")
for q in range(8): e(f'ds_read2_b32 {vr(BF+2*q,2)}, v{vBk} offset0:{8*(q>>1) + 2*(q&1)} offset1:{8*(q>>1) + 2*(q&1) + 1}')
b = E + 12; t = E + 16
e(f"""s_waitcnt lgkmcnt(10)
v_perm_b32 v{b+2}, v{E+2}, v{E+2}, v{vSel+2}
v_perm_b32 v{b+3}, v{E+3}, v{E+2}, v{vSel+3}
v_perm_b32 v{b-2}, v{E+5}, v{E+4}, s{sE2}
v_perm_b32 v{b-1}, v{E+5}, v{E+4}, s{sE3}
v_perm_b32 v{b}, v{E}, v{E}, v{vSel}
v_perm_b32 v{b+1}, v{E+1}, v{E}, v{vSel+1}
v_mov_b32_dpp v{b-2}, v{b+2} wave_shr:1 row_mask:0xf bank_mask:0xf
v_mov_b32_dpp v{b-1}, v{b+3} wave_shr:1 row_mask:0xf bank_mask:0xf
ds_write_b128 v{vCd}, {vr(b,4)}""")
for i in range(4): e(f'v_alignbit_b32 v{t+i}, v{b+i}, v{b+i-1}, 16')
e(f'ds_write_b128 v{vCd}, {vr(t,4)} offset:{UC_S}')
for i in range(4): e(f'v_mov_b32 v{t+4+i}, v{b+i-1}')
e(f'ds_write_b128 v{vCd}, {vr(t+4,4)} offset:{2*UC_S}')
for i in range(4): e(f'v_alignbit_b32 v{t+8+i}, v{b+i-1}, v{b+i-2}, 16')
e(f'ds_write_b128 v{vCd}, {vr(t+8,4)} offset:{3*UC_S}\ns_waitcnt lgkmcnt(12)')
for i in range(4): e(f'v_perm_b32 v{t+12+i}, v{E+7}, v{E+6}, v{vSel+4+i}')
e(f'ds_write_b128 v{vZp}, {vr(t+12,4)}')
if OPT['uw'] <= -3: e('s_cmp_eq_u64 s[88:89], 0\ns_cbranch_scc1 L_uhave')
if OPT['uw'] != -2: u_fetch()
e('L_uhave:')
stamp(3)
e(f'v_and_b32 v{a0}, 31, v{V_LANE}')
swap23(a1, a0, a2)
e(f"""v_lshrrev_b32 v{a2}, 5, v{V_LANE}
v_lshl_add_u32 v{a1}, v{a1}, 1, v{a2}
s_add_u32 s{sA}, s{sHw}, 123
v_add_u32 v{a1}, s{sA}, v{a1}
s_mul_i32 s{sA}, s{sDs}, {PD}
s_add_u32 s{sA}, s{sA}, {L_KP}
v_and_b32 v{a3}, 3, v{a1}
v_mul_u32_u24 v{a3}, {PS - 4}, v{a3}
v_lshl_add_u32 v{a3}, v{a1}, 2, v{a3}
v_add_u32 v{vA0}, s{sA}, v{a3}
v_add_u32 v{a1}, 2, v{a1}
v_and_b32 v{a3}, 3, v{a1}
v_mul_u32_u24 v{a3}, {PS - 4}, v{a3}
v_lshl_add_u32 v{a3}, v{a1}, 2, v{a3}
v_add_u32 v{vA1}, s{sA}, v{a3}
v_lshlrev_b32 v{a2}, 3, v{a2}
v_sub_u32 v{a2}, v{a2}, v{a0}
v_cvt_f32_i32 v{a2}, v{a2}
v_add_f32 v{a3}, -1.0, v{a2}
v_add_f32 v{a2}, -2.0, v{a2}
v_cvt_pk_f16_f32 v8, v{a3}, v{a2}
s_waitcnt vmcnt(1)
ds_write_b128 v{vKp}, {vr(U,4)}
s_waitcnt vmcnt(0)
ds_write_b128 v{vKp}, {vr(U+4,4)} offset:128""")
arrive(4)
AP, BD, DP = 112, 136, 192
band = [f's_mov_b32 s{sA}, 0x4a204a20', f's_cmp_eq_u32 s{sHw}, 0', f's_cselect_b32 s{sE2}, 0x4d104d10, s{sA}', f's_mov_b32 s{sE3}, 0x4d804d80']
for q in range(12):
    band.append(f'v_pk_fma_f16 v{BD+q}, v8, v8, s{sE2} neg_lo:[1,0,0] neg_hi:[1,0,0] clamp')
    if q < 11: band.append(f'v_pk_add_f16 v8, v8, s{sE3}' if q % 4 == 3 else 'v_pk_add_f16 v8, v8, -2.0 op_sel_hi:[1,0]')
e('\n'.join(band))
lwait(4)
KG[0] = False
lo()
stamp(4)
if OPT['abl'] == 16: e('s_endpgm')
CB = 64
def cv_reads(k):
    b = CB + 12 * (k & 3)
    return [f'ds_read_b64 {vr(b,2)}, v{vF_} offset:{64*k}', f'ds_read_b64 {vr(b+2,2)}, v{vF_} offset:{64*k + 8}',
            f'ds_read_b128 {vr(b+8,4)}, v{vG_} offset:{512 + 80 - 16*k}', f'ds_read_b128 {vr(b+4,4)}, v{vG_} offset:{80 - 16*k}']
for tau in range(2):
    for kp in range(3): e(f'ds_read_b128 {vr(AP + 12*tau + 4*kp, 4)}, v{(vA0, vA1)[kp & 1]} offset:{256*tau + 16*(kp >> 1)}')
e('\n'.join(cv_reads(0) + cv_reads(1)))
assert OM == 3
late = f"""s_mov_b64 s[{SRD_B}:{SRD_B+1}], s[22:23]
s_mov_b32 s{SRD_B+2}, {448*896}
s_mov_b32 s{SRD_B+3}, 0x20000
s_mov_b64 s[{SRD_C}:{SRD_C+1}], s[24:25]
s_mov_b32 s{SRD_C+2}, {2048*1792}
s_mov_b32 s{SRD_C+3}, 0x20000
v_lshrrev_b32 v{a1}, 3, v{V_LANE}
v_and_b32 v{a2}, 7, v{V_LANE}
v_and_b32 v{a0}, 0x70, v{vL16}
v_mul_u32_u24 v{vYl}, {YS}, v{a1}
v_add_u32 v{vYl}, v{vYl}, v{a0}
v_lshlrev_b32 v{a3}, 2, v{V_LANE}
v_and_b32 v{a3}, 64, v{a3}
v_xor_b32 v{a0}, v{a0}, v{a3}
v_mul_u32_u24 v{vWoD}, 896, v{a1}
v_xor_b32 v{a3}, v{a1}, v{a2}
v_lshlrev_b32 v{a3}, 4, v{a3}
v_lshl_add_u32 v{vOut}, v{vWoD}, 1, v{a3}
v_add_u32 v{vWoD}, v{a0}, v{vWoD}
v_add_u32 v{vWoD+1}, {7168-1024}, v{vWoD}
v_lshrrev_b32 v{a0}, 4, v{V_LANE}
v_bfe_u32 v{a1}, v{V_LANE}, 2, 2
v_lshl_or_b32 v{a3}, v{a0}, 3, v{a1}
v_lshlrev_b32 v{a3}, 7, v{a3}
v_lshrrev_b32 v{a1}, 1, v{a1}
v_lshl_add_u32 v{a3}, v{a1}, 6, v{a3}
v_and_b32 v{a1}, 0x30, v{vL16}
s_movk_i32 s{sA}, {L_WO}
v_add3_u32 v{vWoR}, v{a1}, v{a3}, s{sA}
v_xor_b32 v{vWoR+1}, 64, v{vWoR}
v_and_b32 v{a1}, 15, v{V_LANE}
v_lshlrev_b32 v{vOl}, 4, v{a1}
v_mad_u32_u24 v{vOl}, v{a0}, s{S_KS}, v{vOl}
s_mul_i32 s{sOl}, s{S_I}, 9363
s_lshr_b32 s{sOl}, s{sOl}, 16
s_mul_i32 s{sA}, s{sOl}, 7
s_sub_u32 s{sCo}, s{S_I}, s{sA}
s_lshl2_add_u32 s{sOl}, s{sOl}, s{S_W}
s_lshl_b32 s{sFlU}, s{sHw}, 9
s_add_u32 s{sFlU}, s{sFlU}, s{sD}
s_lshl_b32 s{sFlU}, s{sFlU}, {FSH}
s_add_u32 s{sFlU}, s{sFlU}, {F_Y}
s_lshl_b32 s{sA}, s{sCo}, {1 + FSH}
s_sub_u32 s{sA}, s{sFlU}, s{sA}
v_min_u32 v{vFo}, 6, v{a1}
v_lshl_add_u32 v{vFo}, v{vFo}, {1 + FSH}, s{sA}
s_lshl_b32 s{sA}, s{S_W}, 11
s_add_u32 s{sA}, s{sA}, {L_SSM}
v_xor_b32 v{a3}, v{a0}, v{a2}
v_lshl_add_u32 v{a3}, v{a3}, 4, s{sA}
v_lshl_add_u32 v{vBw}, v{a1}, 7, v{a3}
v_add_u32 v{vBr}, s{sA}, v{vL16}
s_mul_i32 s{sOut}, s{sOl}, {16*1792}
s_lshl_b32 s{sA}, s{sCo}, 7
s_add_u32 s{sOut}, s{sOut}, s{sA}
s_add_u32 s{sOut}, s{sOut}, 896
s_add_u32 s{sOut+1}, s{sOut}, {8*1792}
s_lshl_b32 s{sOl}, s{sOl}, 8
s_add_u32 s{sOl}, s{sOl}, {WS_O}
s_lshl2_add_u32 s{sCh0}, s{S_C}, s{S_W}
s_lshl_b32 s{sCh0}, s{sCh0}, 4
s_lshr_b32 s{sA}, s{S_J}, 4
s_lshl_b32 s{sA}, s{sA}, 9
s_add_u32 s{sA}, s{sA}, s{sCh0}
s_lshl_b32 s{sA}, s{sA}, {FSH}
s_add_u32 s{sA}, s{sA}, {F_Y}
v_lshl_add_u32 v{vFy}, v{a1}, {FSH}, s{sA}
s_mov_b32 exec_lo, 0
v_mov_b32 v{vFy}, v{vFo}
s_mov_b64 exec, -1
v_lshrrev_b32 v{a1}, 3, v{V_LANE}
v_and_b32 v{a3}, 3, v{V_LANE}
v_lshl_or_b32 v{vYw}, v{a1}, 2, v{a3}
v_xor_b32 v{a3}, s{S_W}, v{a3}
v_lshl_or_b32 v{vYw}, v{vYw}, 2, v{a3}
v_bfe_u32 v{a3}, v{V_LANE}, 2, 1
v_lshl_or_b32 v{vYw}, v{vYw}, 1, v{a3}
v_lshlrev_b32 v{vYw}, 4, v{vYw}
v_and_b32 v{a3}, 4, v{a1}
v_add_u32 v{a3}, v{a3}, v{a1}
v_mul_u32_u24 v{vYs}, 1792, v{a3}
v_and_b32 v{a1}, 3, v{a1}
v_lshlrev_b32 v{a1}, 1, v{a1}
v_xor_b32 v{a1}, v{a1}, v{a2}
v_lshl_add_u32 v{vYs}, v{a1}, 4, v{vYs}
s_lshl_b32 s{sA}, s{sHw}, 12
s_add_u32 s{sB}, s{sP}, {P_X + 4096}
s_sub_u32 s{sB}, s{sB}, s{sA}
v_add_u32 v{vXp}, s{sB}, v{vL16}
s_add_u32 s{sA}, s{sA}, s{sP}
s_add_u32 s{sA}, s{sA}, {P_X}
v_add_u32 v{vXo}, s{sA}, v{vL16}
v_lshl_add_u32 v{vRb_}, v{a0}, 4, s{sA}
v_bfe_u32 v{a0}, v{V_LANE}, 2, 2
v_and_b32 v{a3}, 1, v{V_LANE}
v_lshl_or_b32 v{a2}, v{a3}, 3, v{a0}
v_lshl_add_u32 v{vTr}, v{a2}, 7, v{vRb_}
v_and_b32 v{a2}, 2, v{V_LANE}
v_lshl_add_u32 v{vTr}, v{a2}, 2, v{vTr}""".split('\n')
def fill(n):
    while 'exec_lo' in ''.join(late[max(0, n-2):n]): n += 1
    e('\n'.join(late[:n])); del late[:n]
fill(16)
e('s_waitcnt lgkmcnt(8)')
for kp in range(3):
    for tau in range(2):
        d = vr(DP + 16*tau, 16)
        e(f'v_mfma_f32_32x32x16_bf16 {d}, {vr(AP + 12*tau + 4*kp, 4)}, {vr(BD + 4*kp, 4)}, {"0" if kp == 0 else d}')
        fill(6)
def cv_iter(first):
    for k in range(4):
        b = CB + 12 * k
        rd = cv_reads(k + 2)
        z = first and k == 0
        e('s_waitcnt lgkmcnt(4)')
        e(f'v_mfma_f32_32x32x16_bf16 {vr(T1,16)}, {vr(b,4)}, {vr(b+8,4)}, {"0" if z else vr(T1,16)}')
        e('\n'.join(rd))
        if k == 3:
            e(f'v_add_u32 v{vF_}, 256, v{vF_}\nv_subrev_u32 v{vG_}, 64, v{vG_}')
            if not first: e(f's_add_u32 s{sIt2}, s{sIt2}, 1\ns_cmp_lg_u32 s{sIt2}, 11')
        e(f'v_mfma_f32_32x32x16_bf16 {vr(T0,16)}, {vr(b,4)}, {vr(b+4,4)}, {"0" if z else vr(T0,16)}')
        if first: fill(6 if k < 3 else 99)
cv_iter(True)
e('L_cv:')
cv_iter(False)
e('s_cbranch_scc1 L_cv')
cv = [f'v_cvt_pk_bf16_f32 v{AP+i}, v{DP+2*i}, v{DP+2*i+1}' for i in range(16)]
for k in range(2):
    e('\n'.join(cv[4*k:4*k+4]))
    e(f's_waitcnt lgkmcnt({4 - 4*k})')
    e(f'v_mfma_f32_32x32x16_bf16 {vr(T1,16)}, {vr(CB+12*k,4)}, {vr(CB+12*k+8,4)}, {vr(T1,16)}')
for q in range(4):
    e('\n'.join(cv[8+4*q:12+4*q]))
    e(f'v_mfma_f32_32x32x16_bf16 {vr(T1,16)}, {vr(AP+4*q,4)}, {vr(BF+4*q,4)}, {vr(T1,16)}')
if OPT['prio']: e(f"s_setprio {OPT['pr']}")
stamp(5)
if OPT['abl'] == 32: e('s_endpgm')
e(f"""s_mul_i32 s{sA}, s{sD}, {YS}
s_lshl_b32 s{sB}, s{sHw}, 11
s_add_u32 s{sA}, s{sA}, s{sB}
s_add_u32 s{sA}, s{sA}, {WS_Y}
s_nop 4""")
def xch(give, keep):
    for i in range(4): e(f'ds_write_b128 v{vXp}, {vr(give+4*i,4)} offset:{1024*i}')
    arrive(6); lwait(6, addr=vPair)
    for i in range(4): e(f'ds_read_b128 {vr(give+4*i,4)}, v{vXo} offset:{1024*i}')
    e('s_waitcnt lgkmcnt(0)')
e(f's_cmp_eq_u32 s{sHw}, 0\ns_cbranch_scc1 L_x0')
xch(T0, T1)
e('s_branch L_x1\nL_x0:')
xch(T1, T0)
e('L_x1:')
for i in range(8): e(f'v_pk_add_f32 {vr(T0+2*i,2)}, {vr(T0+2*i,2)}, {vr(T1+2*i,2)}')
for i in range(8): e(f'v_cvt_pk_bf16_f32 v{T1+i}, v{T0+2*i}, v{T0+2*i+1}')
e(f"""buffer_store_dwordx4 {vr(T1,4)}, v{vL16}, {sr(SRD_WS)}, s{sA} offen sc1
buffer_store_dwordx4 {vr(T1+4,4)}, v{vL16}, {sr(SRD_WS)}, s{sA} offen offset:1024 sc1
v_subrev_u32 v{a0}, 16, v{V_GRP}""")
if OM:
    e(f'''v_mov_b64 {vr(T0,2)}, -1
    v_mov_b64 {vr(T0+2,2)}, -1
    s_mul_i32 s{sA}, s{sCo}, {8*KS}
    s_add_u32 s{sA}, s{sA}, s{sOl}
    s_add_u32 s{sSk}, s{sA}, {4*KS}
    buffer_store_dwordx4 {vr(T0,4)}, v{vOl}, {sr(SRD_WS)}, s{sA} offen sc1
    buffer_store_dwordx4 {vr(T0,4)}, v{vOl}, {sr(SRD_WS)}, s{sSk} offen sc1''')
sync(7)
if OPT['only'] != 1: lwait(7, addr=a0)
e('s_waitcnt vmcnt(0)')
publish(sFlU, a0)
stamp(6)
if OPT['abl'] == 33: e('s_endpgm')
e(f"""s_mul_i32 s{sA}, s{S_W}, {16*896}
s_lshl_b32 s{sB}, s{sCo}, 7
s_add_u32 s{sA}, s{sA}, s{sB}
s_lshl_b32 s{sB}, s{S_W}, 11
s_add_u32 s{sB}, s{sB}, {L_WO}""")
for ch in range(7):
    e(f"""s_add_u32 m0, s{sB}, {8192*ch}
    s_add_u32 s{sSk}, s{sA}, {64*896*ch}
    buffer_load_dwordx4 v{vWoD}, {sr(SRD_B)}, s{sSk} offen lds
    buffer_load_dwordx4 v{vWoD+1}, {sr(SRD_B)}, s{sSk} offen offset:1024 lds
    s_waitcnt vmcnt({OPT['wodepth'] if ch < 6 else 0})""")
WF, OF, OC = 8, 168, 224
arrive(8)
e(f"""buffer_load_dword v{a0}, v{vFy}, {sr(SRD_WS)}, 0 offen sc1
s_mul_i32 s{sA}, s{sCh0}, {YS}
s_lshl_b32 s{sSk}, s{S_J}, 7
s_add_u32 s{sA}, s{sA}, s{sSk}
s_add_u32 s{sA}, s{sA}, {WS_Y}
s_add_u32 s{sSk}, s{sA}, {8*YS}""")
lwait(8)
stamp(7)
if OPT['abl'] == 34: e('s_endpgm')
def wo_reads(k):
    r = []
    for t in range(4):
        for hf in range(2):
            r.append(f'ds_read_b64_tr_b16 {vr(WF + 16*(k%10) + 4*t + 2*hf, 2)}, v{vWoR + (t>>1)} offset:{4096*k + 512*hf + 8*(t&1)}')
    return r
for k in range(10): e('\n'.join(wo_reads(k)))
arrive(9)
poll(vFy, first_issued=True, sleep=OPT['ysleep'], reg=a0)
stamp(8)
if OPT['abl'] == 35: e('s_endpgm')
e(f"""buffer_load_dwordx4 {vr(OF,4)}, v{vYl}, {sr(SRD_WS)}, s{sA} offen sc1
buffer_load_dwordx4 {vr(OF+4,4)}, v{vYl}, {sr(SRD_WS)}, s{sSk} offen sc1
s_lshr_b32 s{sA}, s{S_J}, 4
s_lshl_b32 s{sA}, s{sA}, 10
s_and_b32 s{sB}, s{S_J}, 3
s_lshl_b32 s{sB}, s{sB}, 8
s_add_u32 s{sA}, s{sA}, s{sB}
s_and_b32 s{sB}, s{S_J}, 8
s_lshl1_add_u32 s{sA}, s{sB}, s{sA}
s_and_b32 s{sB}, s{S_J}, 4
s_add_u32 s{sA}, s{sA}, s{sB}
s_lshl_b32 s{sB}, s{S_W}, 6
s_add_u32 s{sA}, s{sA}, s{sB}
s_mul_i32 s{sA}, s{sA}, 1792
s_lshl_b32 s{sB}, s{S_C}, 7
s_add_u32 s{sA}, s{sA}, s{sB}
s_add_u32 s{sB}, s{sA}, {32*1792}
v_xor_b32 v{a0}, 64, v{vBw}""")
lwait(9)
e(f"""s_waitcnt vmcnt(0)
ds_write_b128 v{vXo}, {vr(OF,4)}
ds_write_b128 v{vXo}, {vr(OF+4,4)} offset:1024""")
for z in range(2):
    for hf in range(2):
        e(f'ds_read_b64_tr_b16 {vr(OF + 8 + 4*z + 2*hf, 2)}, v{vTr} offset:{64*z + 512*hf}')
e(f"""s_waitcnt lgkmcnt(0)
ds_write_b128 v{vYw}, {vr(OF+8,4)} offset:{L_SSM}
ds_write_b128 v{vYw}, {vr(OF+12,4)} offset:{L_SSM + 4096}""")
sync(10)
e(f"""ds_read_b128 {vr(OF+8,4)}, v{vBr}
ds_read_b128 {vr(OF+12,4)}, v{vBr} offset:1024
s_waitcnt lgkmcnt(0)
buffer_store_dwordx4 {vr(OF+8,4)}, v{vYs}, {sr(SRD_C)}, s{sA} offen {OUTM}
buffer_store_dwordx4 {vr(OF+12,4)}, v{vYs}, {sr(SRD_C)}, s{sB} offen {OUTM}""")
if OPT['only'] == 1:
    stamp(9); stamp(13); prof_out(); e('s_endpgm')
if OM == 4:
    e(f'''s_lshl2_add_u32 s{sA}, s{S_J}, s{S_W}
    s_lshr_b32 s{sA}, s{sA}, 1
    s_lshl_b32 s{sA}, s{sA}, {4 + FSH}
    s_add_u32 s{sA}, s{sA}, {F_O}
    v_and_b32 v{vFo}, 15, v{V_LANE}
    v_lshl_add_u32 v{vFo}, v{vFo}, {FSH}, s{sA}''')
sOk, sLast = 4, 18
for k in range(14): e(f's_add_u32 s{sOk+k}, s{sOl}, {4*KS*k}')
if OPT['touch'] and OPT['tsa']: e('s_mov_b64 exec, 0\ns_branch L_qad0\nL_qad_ret:\ns_mov_b64 exec, -1')
e(f's_min_u32 s{S_BOUND}, s{S_BOUND}, 0x4000')
stamp(9)
e('L_obar:')
e('s_barrier        ; released once the four attention waves have stored their rows')
stamp(10)
if OPT['osleep']: e(f"s_sleep {OPT['osleep']}")
if OM != 3: poll(vFo, sleep=OPT['hsleep'])
stamp(11)
def o_load(k): return f'buffer_load_dwordx4 {vr(OF+4*k,4)}, v{vOl}, {sr(SRD_WS)}, s{sOk+k} offen sc1'
OD = OPT['od']
def o_chk(k):
    o = OF + 4*k
    return [f's_waitcnt vmcnt({min(OD - 1, 13 - k)})', f'v_max3_u32 v6, v{o}, v{o+1}, v{o+2}', f'v_max_u32 v6, v6, v{o+3}', 'v_cmp_eq_u32 vcc, -1, v6']
for k in range(OD): e(o_load(k))
e('\n'.join(o_chk(0)))
for k in range(14):
    o = OF + 4*k
    m = [f'v_mfma_f32_16x16x32_bf16 {vr(OC+4*t,4)}, {vr(WF + 16*(k%10) + 4*t, 4)}, {vr(o,4)}, {"0" if k == 0 else vr(OC+4*t,4)}' for t in range(4)]
    rd = wo_reads(10 + (k - 1) // 2)[4*((k - 1) & 1):][:4] if 1 <= k <= 8 else []
    if k == 10: e('s_waitcnt lgkmcnt(0)')
    e(f's_cbranch_vccnz L_or{k}\nL_og{k}:')
    c = o_chk(k + 1) if k < 13 else ['', '', '', '']
    ld = [o_load(k + OD)] if k + OD < 14 else []
    e('\n'.join(ld + [m[0]] + rd[:2] + [m[1]] + rd[2:] + [c[0], c[1], m[2], c[2], c[3], m[3]]))
stamp(12)
e('s_nop 4')
for i in range(8): e(f'v_cvt_pk_bf16_f32 v{16+i}, v{OC+2*i}, v{OC+2*i+1}')
e(f"""ds_write_b128 v{vBw}, {vr(16,4)}
ds_write_b128 v{a0}, {vr(20,4)}
ds_read_b128 {vr(24,4)}, v{vBr}
ds_read_b128 {vr(28,4)}, v{vBr} offset:1024
s_or_b32 s{sA}, s2, s{S_W}
s_waitcnt lgkmcnt(1)
buffer_store_dwordx4 {vr(24,4)}, v{vOut}, {sr(SRD_C)}, s{sOut} offen {OUTM2}
s_waitcnt lgkmcnt(0)
buffer_store_dwordx4 {vr(28,4)}, v{vOut}, {sr(SRD_C)}, s{sOut+1} offen {OUTM2}
s_cbranch_scc1 L_noepoch""")
publish(sA, 6)
e('L_noepoch:')
if OPT['prof']:
    e('s_waitcnt vmcnt(0)')
stamp(13)
prof_out()
e('L_end:\ns_endpgm')
for k in range(14):
    c = o_chk(k)
    n = min(14, k + OD); w = min(n, k + OPT['sw'])
    e(f'''L_or{k}:
    {chr(10).join(o_load(q) for q in range(w, n))}
    L_oc{k}:
    {chr(10).join(o_load(q) for q in range(k, w))}
    s_sub_u32 s{S_BOUND}, s{S_BOUND}, 1
    s_cselect_b32 s{S_BOUND}, 0, s{S_BOUND}
    s_waitcnt vmcnt(0)
    s_cbranch_scc1 L_og{k}
    {c[1]}
    {c[2]}
    {c[3]}
    s_cbranch_vccnz L_oc{k}
    s_branch L_og{k}''')
sec('idle')
ROLE[0] = 2
e('L_ssm_idle:')
if OPT['only'] == 2:
    arrive(1); e('s_endpgm')
hi()
e(f"""v_lshrrev_b32 v10, 3, v{V_LANE}
v_and_b32 v11, 7, v{V_LANE}
v_lshlrev_b32 v11, 4, v11
v_mul_u32_u24 v5, 896, v10
v_add_u32 v5, v5, v11
v_add_u32 v6, {7168-1024}, v5
s_lshl2_add_u32 s60, s{S_J}, s{S_W}
s_mul_i32 s61, s60, {16*896}
s_mul_i32 s62, s{S_W}, 14336
s_add_u32 s62, s62, {L_SSM}
s_mov_b32 s{SRD_A+2}, {2048*896}
s_mov_b32 s{SRD_A+3}, 0x20000
s_waitcnt lgkmcnt(0)
s_load_dword s{S_NONCE}, s[28:29], 0
s_mov_b64 s[{SRD_A}:{SRD_A+1}], s[4:5]""")
for c in range(7):
    e(f"""s_add_u32 m0, s62, {2048*c - 128*c}
    s_nop 0
    buffer_load_dwordx4 v5, {sr(SRD_A)}, s61 offen offset:{128*c} lds
    buffer_load_dwordx4 v6, {sr(SRD_A)}, s61 offen offset:{1024 + 128*c} lds""")
    if c == 1:
        srd(SRD_WS, 28, WS_SIZE)
        e(f"""; transposing read: row = 8*(cc&1)+r', byte = 8*(2G+(cc>>1))
        v_mul_u32_u24 v7, {QS}, v10
        v_add_u32 v7, v7, v11
        v_bfe_u32 v8, v{V_LANE}, 2, 2
        v_and_b32 v9, 1, v{V_LANE}
        v_lshl_or_b32 v8, v9, 3, v8
        v_xor_b32 v8, 3, v8
        v_lshl_add_u32 v8, v8, 7, s62
        v_and_b32 v9, 0x30, v{V_LANE}
        v_add_u32 v8, v8, v9
        v_and_b32 v9, 2, v{V_LANE}
        v_lshl_add_u32 v8, v9, 2, v8
        s_lshl_b32 s63, s60, 7
        s_add_u32 s63, s63, {WS_U}
        s_mul_i32 s65, s{S_J}, {US}
        v_mov_b32 v12, 0x3f803f80
        v_mov_b32 v13, v12
        v_mov_b64 v[14:15], v[12:13]
        v_lshlrev_b32 v9, 4, v{V_LANE}
        s_lshl2_add_u32 s66, s{S_TILE}, s{S_W}
        s_lshl_b32 s66, s66, 8
        s_mul_i32 s67, s{S_HG}, {QS}
        s_add_u32 s66, s66, s67
        s_add_u32 s66, s66, {WS_V + 112*QS}
        s_add_u32 s65, s65, {F_U}""")
e('s_waitcnt lgkmcnt(0)')
TW = 0
if OPT['fwm'] & 1:
    TW = 1
    e(f'''v_mov_b32 v{V_T}, s{S_NONCE}
    v_lshlrev_b32 v5, 2, v{V_LANE}
    s_mov_b32 exec_hi, 0
    buffer_store_dword v{V_T}, v5, {sr(SRD_WS)}, s65 offen sc1
    s_mov_b64 exec, -1''')
e(f's_add_u32 s{S_NONCE}, s{S_NONCE}, 1')
arrive(1)
def t_rd(c):
    return [f'ds_read_b64_tr_b16 {vr(16 + 8*c + 4*z + 2*hf, 2)}, v8 offset:{2048*c + 64*z + 512*(1-hf)}' for z in range(2) for hf in range(2)]
e(f's_waitcnt vmcnt({12 + TW})'); stamp(1); e('\n'.join(t_rd(0)))
for c in range(7):
    if c < 6:
        e(f's_waitcnt vmcnt({10 + TW})'); e('\n'.join(t_rd(c + 1)))
    e(f"""s_add_u32 s64, s63, {8*QS}
    s_waitcnt lgkmcnt({4 if c < 6 else 0})
    buffer_store_dwordx4 {vr(16+8*c,4)}, v7, {sr(SRD_WS)}, s63 offen sc1
    buffer_store_dwordx4 {vr(20+8*c,4)}, v7, {sr(SRD_WS)}, s64 offen sc1
    s_add_u32 s63, s63, {16*QS}""")
assert OPT['ur'] == 1
e(f'''; the column quad of ones that gives the softmax row sums
s_mov_b64 exec, 0xffff
buffer_store_dwordx4 v[12:15], v9, {sr(SRD_WS)}, s66 offen sc1''')
stamp(2)
e(f'''s_mov_b64 exec, 1
v_mov_b32 v5, s{S_NONCE}
s_cmp_lg_u32 s{S_W}, 0
s_waitcnt vmcnt(0)
s_barrier
s_cbranch_scc1 L_idle_end
buffer_store_dword v5, v9, {sr(SRD_WS)}, s65 offen sc1''')
e('L_idle_end:\ns_mov_b64 exec, -1'); stamp(4)
if OPT['wop']:
    e(f'''s_mov_b64 s[{SRD_A}:{SRD_A+1}], s[22:23]
    s_mov_b32 s{SRD_A+2}, {448*896}
    s_mul_i32 s60, s60, {25*128}
    v_lshlrev_b32 v5, 7, v{V_LANE}
    s_mov_b64 exec, 0x1ffffff
    buffer_load_dword v6, v5, {sr(SRD_A)}, s60 offen
    s_mov_b64 exec, -1''')
prof_out()
e('s_endpgm')
def ilen(l):
    l = l.split(';')[0].strip()
    if not l or l.endswith(':'): return 0
    op = l.split()[0]
    if op.startswith(('buffer_', 'global_', 'ds_', 'v_mfma', 'v_smfmac', 'v_pk_', 's_load', 'v_cvt_pk', 'v_lshl_', 'v_perm', 'v_bfe', 'v_max3', 'v_align')): return 8
    return 8 if '0x' in l else 4
pads = []; qads = []
if OPT['touch']:
    for n in ('mha', 'ssm'):
        new = []; acc = OPT['touch'] if n == 'mha' else -OPT['touch']; loop = None; late_ = False
        for l in SEC[n]:
            t = l.strip()
            def pad():
                if late_ and OPT['tsa']:
                    qads.append(len(qads)); new.extend([f'L_qad{qads[-1]}:', f'    s_cbranch_execz L_qxt{qads[-1]}'])
                else:
                    pads.append(len(pads)); new.extend([f'L_pad{pads[-1]}:', f'    s_cbranch_execz L_nxt{pads[-1]}'])
            if t in ('L_att:', 'L_cv:'): pad(); acc = 0
            if t in ('L_att:', 'L_cv:'): loop = t[:-1]
            if acc >= OPT['touch'] and (loop is None or acc >= 1200) and not t.endswith(':') and 'exec' not in ''.join(new[-4:]).replace('execz', ''):
                pad(); acc = 0
            if loop and t == f's_cbranch_scc1 {loop}': loop = None
            if t in ('L_gemm_v:', 'L_gemm_done:'): acc = OPT['touch']
            if t == 'L_obar:': late_ = True; acc = OPT['touch'] // 2
            new.append(l); acc += ilen(l)
        SEC[n] = new
sec('idle')
e('L_tmha:')
if pads:
    e(f's_and_b32 s{sTmp}, s{S_J}, 3\ns_lshl2_add_u32 s{sTmp}, s{sTmp}, s{S_W}\ns_mov_b64 exec, 0')
    for i in range(min(16, len(pads))):
        e(f's_cmp_eq_u32 s{sTmp}, {i}\ns_cbranch_scc1 L_pad{i}')
    e('L_pad_ret:\ns_mov_b64 exec, -1')
e('s_branch L_gemm_t')
fix = {f'L_nxt{i}': (f'L_pad{i+16}' if i + 16 < len(pads) else 'L_pad_ret') for i in pads}
fix.update({f'L_qxt{i}': (f'L_qad{i+1}' if i + 1 < len(qads) else 'L_qad_ret') for i in qads})
for n in SEC:
    SEC[n] = [(l.rsplit(' ', 1)[0] + ' ' + fix[l.rsplit(' ', 1)[1]]) if 'L_nxt' in l or 'L_qxt' in l else l for l in SEC[n]]
print('pads', len(pads), len(qads), file=sys.stderr)
ORDER = [['pro', 'ssm0', 'mha0', 'idle', 'ssm', 'mha'], ['pro', 'ssm0', 'mha0', 'mha', 'ssm', 'idle'],
         ['pro', 'ssm0', 'mha0', 'ssm', 'mha', 'idle'], ['pro', 'ssm0', 'idle', 'mha0', 'mha', 'ssm'],
         ['pro', 'ssm0', 'ssm', 'mha0', 'mha', 'idle'], ['pro', 'ssm0', 'ssm', 'idle', 'mha0', 'mha']][OPT['ord']] + ['cold', 'gt', 'fb']
SEC.setdefault('cold', [])
def add_nt(n, pred):
    SEC[n] = [(l.replace(' lds', ' nt lds') if l.endswith(' lds') else l + ' nt') if pred(l) else l for l in SEC[n]]
for n in ('mha0', 'mha', 'gt'):
    if OPT['nt'] & 1: add_nt(n, lambda l: l.endswith(' lds') and sr(SRD_A) in l)
    if OPT['nt'] & 2: add_nt(n, lambda l: l.endswith(' lds') and sr(SRD_B) in l)
if OPT['nt'] & 4: add_nt('idle', lambda l: l.endswith(' lds'))
if OPT['nt'] & 8: add_nt('ssm0', lambda l: 'global_load' in l)
if OPT['nt'] & 16: add_nt('ssm', lambda l: l.endswith(' lds'))
if OPT['nt'] & 32: add_nt('ssm', lambda l: 'buffer_store' in l and sr(SRD_C) in l)
BODY = sum((SEC[n] for n in ORDER), [])
def sizes(lines):
    import subprocess, re, os, tempfile
    d = tempfile.mkdtemp()
    open(d + '/a.s', 'w').write('.amdgcn_target "amdgcn-amd-amdhsa--gfx950"\n.text\n' + '\n'.join(lines) + '\n')
    subprocess.check_call(['clang', '-x', 'assembler', '-target', 'amdgcn-amd-amdhsa', '-mcpu=gfx950', '-c', d + '/a.s', '-o', d + '/a.o'])
    o = subprocess.check_output(['llvm-objdump', '-d', '--mcpu=gfx950', d + '/a.o']).decode()
    return [4 * len(m.group(1).split()) for m in re.finditer(r'// [0-9A-F]{12}: ((?:[0-9A-F]{8} ?)+)', o)]
def is_ins(l):
    t = l.split(';')[0].strip()
    return bool(t) and not t.endswith(':')
def widen(l):
    import re
    t = l.split(';')[0].strip(); op = t.split()[0]
    if op.startswith('v_') and not op.startswith(('v_readfirstlane', 'v_swap', 'v_permlane', 'v_nop')):
        return l.replace(op, op + '_e64', 1)
    return None
PGL = [l for b, l in ((1, 'L_mha:'), (2, 'L_gemm_v:'), (4, 'L_att:'), (8, 'L_ssm_idle:'), (16, 'L_ssm:'), (32, 'L_mha1:')) if OPT['pgm'] & b]
if OPT['al']:
    sz = iter(sizes(BODY))
    I = [[l, next(sz) if is_ins(l) else 0] for l in BODY]
    res = []; addr = 0; nw = nn = 0
    for i, (l, n) in enumerate(I):
        if l in PGL: addr = 0
        if n == 8 and addr % 8 == 4:
            run = 0
            for l2, n2 in I[i:]:
                if n2 == 4: break
                run += n2 == 8
            cross = sum(1 for k in range(run) if (addr + 8*k) % 32 == 28)
            if cross:
                j = len(res) - 1; done = False; aj = addr
                while j >= 0 and res[j][1] in (0, 4):
                    aj -= res[j][1]
                    t = res[j][0].strip()
                    if t.startswith(('s_branch', 's_endpgm', 's_setpc')):
                        res.insert(j + 1, ['    s_nop 0', 4]); done = True; break
                    w = widen(res[j][0]) if res[j][1] == 4 and aj % 32 != 28 else None
                    if w:
                        res[j] = [w, 8]; done = True; nw += 1; break
                    j -= 1
                if not done and run >= OPT['alr']:
                    k = len(res)
                    while res[k-1][1] == 0: k -= 1
                    res.insert(k, ['    s_nop 0', 4]); done = True; nn += 1
                if done: addr += 4
        res.append([l, n]); addr += n
    BODY = [l for l, n in res]
    print('aligned: widened', nw, 'nops', nn, 'bytes', addr, file=sys.stderr)
PG = '' if OPT['pg'] < 0 else f".p2align 12\n.fill {OPT['pg'] * 64}, 4, 0xbf800000\n"
for l in PGL: BODY.insert(BODY.index(l), '.p2align 12')
hdr = open('header.txt').read()
txt = hdr + f'''; @launch grid=(256,1,1) block=(512,1,1) lds={L_TOT}
.amdgcn_target "amdgcn-amd-amdhsa--gfx950"
.text
.globl {KN}
{PG}.p2align 8
.type {KN},@function
{KN}:
''' + '\n'.join(BODY) + f'''
.section .rodata,"a"
.p2align 6
.amdhsa_kernel {KN}
  .amdhsa_next_free_vgpr 256
  .amdhsa_next_free_sgpr 102
  .amdhsa_accum_offset 256
  .amdhsa_group_segment_fixed_size 0
  .amdhsa_kernarg_size 104
  .amdhsa_user_sgpr_count 2
  .amdhsa_user_sgpr_kernarg_segment_ptr 1
  .amdhsa_system_sgpr_workgroup_id_x 1
.end_amdhsa_kernel
'''
open(sys.argv[1], 'w').write(txt)
```

```python
import sys, struct
def fl(x): return hex(struct.unpack('<I', struct.pack('<f', x))[0])

KN = 'concat_heads__ssm_conv_s4d__softmax_full_mha__prompt_kernel'
OPT = dict(rdc=0, wop=0, wp=1, lp=0, unr=1, pfl=0, tsa=0, od=8, sw=3, nobatch=0, fwm=0, pg=13, pgm=32, pfm=7, rdr=0, pw=0, dm=0, rdf=0, rdv=0, rdt=0, only_st=0, ur=1, us=128, rd0=-1, rdm=0, probe=0, poff=0xc00000, nt=0, rdn=0, al=1, alr=6, fw=0, rsleep=0, hsleep=0, ord=2, nb=0, tb=13, tq=0, chkk=99, uw=-1, cw=0, s6=5, tskip=1, ones=1, pa=1, pr=2, pf=2, wgf=2, ax=0, bp=1, qa=7, n0=4, ilv=8, tlb=0, ulook=1, kgp=1, pad=0, ypad=0, omode=3, ksleep=0, usleep=4, obar=3, osleep=0, pubk=8, abl=0, touch=0, gs=0, kgw=0, xg=5, gx=0, pm=2, ps=0, rt=0, upub=1, kgx=0, outsc=3, ysleep=8, wodepth=2, wq_mid=0, pollk=99, rd=-1, rdrole=0, only=0, safe=0, rot=0, prof=0, fs=128, force_fb=0, wq_early=7, prio=1)
for a in sys.argv[2:]:
    k, v = a.split('=')
    assert k in OPT, k
    OPT[k] = int(v, 0)

FS = OPT['fs']
FSH = FS.bit_length() - 1
F_KV = 0x1000
F_O = F_KV + 1024 * FS
F_U = F_O + 1024 * FS
F_Y = F_U + 1024 * FS
F_H = F_Y + 1024 * FS
WS_K = 0x100000
WS_V = 0x300000
WS_O = 0x500000
WS_U = 0x700000
WS_Y = 0x900000
QS = 16384 + OPT['pad']; KS = 2 * QS; YS = 4096 + OPT['ypad']
S_KS = 57
WS_PROF = 0xb00000
F_U = 0xb80000 if OPT['us'] * OPT['ur'] > 4096 else F_U
US = OPT['us']
WS_SIZE = 0x1000000
L_SSM = 1024
L_W = 57344
L_RB = 65536
L_X = 114688
L_TOT = 163840
TROW = 288
TABSZ = 38 * TROW
L_TAB = L_SSM
P_SZ = 2 * TABSZ
P_UC = 1536
UC_S = 2240
P_KD = TABSZ + 1536
P_X = TABSZ
PS = 1552
PD = 4 * PS
L_KP = L_TAB + 4 * TABSZ
assert P_UC + 4 * UC_S <= TABSZ and P_KD + 1600 <= P_SZ and P_X + 8192 <= P_SZ and L_KP % 16 == 0 and L_KP + 2 * PD <= L_W
L_WO = L_SSM

S_WV, S_W, S_HG, S_C, S_TILE, S_J, S_H, S_NONCE, S_O0, S_I = range(30, 40)
SRD_WS, SRD_A, SRD_B, SRD_C = 40, 44, 48, 52
S_BOUND = 56
S_T0 = 58

SEC = {}
out = None
def sec(n):
    global out
    out = SEC.setdefault(n, [])
sec('pro')
def e(s):
    for l in s.split('\n'):
        l = l.strip()
        if l:
            out.append(l if l.endswith(':') else '    ' + l)
_lab = [0]
def lab(p):
    _lab[0] += 1
    return f'L_{p}_{_lab[0]}'
def vr(a, n):
    return f'v[{a}:{a+n-1}]' if n > 1 else f'v{a}'
def srd(d, b, n):
    e(f's_mov_b64 s[{d}:{d+1}], s[{b}:{b+1}]\ns_mov_b32 s{d+2}, {n}\ns_mov_b32 s{d+3}, 0x20000')
def sr(d): return f's[{d}:{d+3}]'

V_LANE, V_T, V_OWN, V_GRP, V_PROF = 0, 1, 2, 3, 4

ROLE = [0]
def stamp(i):
    if OPT['rd0'] == i and OPT['rdrole'] == ROLE[0]:
        e(f"s_mem{'' if OPT['rdc'] else 'real'}time s[98:99]\ns_waitcnt lgkmcnt(0)")
    if OPT['rd'] == i and OPT['rdrole'] == ROLE[0]:
        e(f"s_mem{'' if OPT['rdc'] else 'real'}time s[100:101]\ns_waitcnt lgkmcnt(0)")
    if (OPT['only_st'] >> (i + 32*min(ROLE[0], 1))) & 1 if OPT['only_st'] else OPT['prof'] > (i >= 14):
        e(f's_mem{"real" if OPT["rt"] else ""}time s[96:97]\ns_waitcnt lgkmcnt(0)\ns_sub_u32 s96, s96, s{98 if OPT["rt"] else S_T0}\nv_writelane_b32 v{V_PROF}, s96, {i}')
def prof_out():
    if OPT['rd'] >= 0 and OPT['rdrole'] == ROLE[0]:
        l = lab('pad')
        if ROLE[0] == 0 and not OPT['obar']: e('s_barrier')
        if ROLE[0] == 2: e('s_barrier')
        if OPT['rdr']:
            e(f'''s_lshl3_add_u32 s96, s2, s{S_WV}
            s_lshl_b32 s96, s96, 2
            s_add_u32 s96, s96, 0xb40000
            v_mov_b32 v6, 0
            buffer_load_dword v5, v6, {sr(SRD_WS)}, s96 offen sc1
            s_xor_b32 s97, s{S_NONCE}, 0x5a3c1e77
            v_mov_b32 v7, s97
            s_waitcnt vmcnt(0)
            buffer_store_dword v7, v6, {sr(SRD_WS)}, s96 offen sc1
            v_readfirstlane_b32 s96, v5
            s_xor_b32 s96, s96, 0x5a3c1e77
            s_add_u32 s96, s96, 1
            s_cmp_eq_u32 s96, s{S_NONCE}
            s_cbranch_scc{OPT['rdr'] - 1} L_end''')
        if OPT['rdf']: e(f"s_and_b32 s96, s2, {OPT['rdf']}\ns_cmp_lg_u32 s96, {OPT['rdv']}\ns_cbranch_scc1 L_end")
        if ROLE[0] == 0 and OPT['rdn']: e(f's_cmp_eq_u32 s{S_C}, 7\ns_cbranch_scc{2 - OPT["rdn"]} L_end')
        if OPT['rd'] == 98:
            e(f'''s_not_b32 s100, s100
            v_mov_b32 v5, s100
            v_mov_b32 v6, 0
            s_mov_b64 exec, 1
            global_atomic_umax v6, v5, s[26:27]
            s_waitcnt vmcnt(0)
            s_sleep 127
            s_sleep 127
            s_sleep 127
            s_sleep 127
            s_sleep 127
            global_load_dword v5, v6, s[26:27] sc1
            s_waitcnt vmcnt(0)
            v_readfirstlane_b32 s100, v5
            s_not_b32 s100, s100''')
        if OPT['probe']:
            op = {1: 'buffer_store_dwordx4 v[8:11], v5, s[52:55], s60 offen sc1', 2: 'buffer_load_dwordx4 v[8:11], v5, s[52:55], s60 offen sc1',
                  3: 'buffer_store_dwordx4 v[8:11], v5, s[52:55], s60 offen'}[OPT['probe'] & 3]
            if OPT['probe'] & 16: op = '\n'.join(op.replace('offen', f'offen offset:{1024*i}') for i in range(4))
            pre = 'buffer_load_dword v12, v6, s[52:55], s61 offen sc1\ns_waitcnt vmcnt(0)' if OPT['probe'] & 4 else ''
            if OPT['probe'] & 8: pre += '\nbuffer_store_dwordx4 v[8:11], v5, s[52:55], s60 offen sc1\ns_waitcnt vmcnt(0)\ns_sleep 40'
            e(f'''s_mov_b64 s[52:53], s[28:29]
            s_mov_b32 s54, 0x10000000
            s_mov_b32 s55, 0x20000
            L_prb:
            s_sleep 1
            s_memrealtime s[62:63]
            s_waitcnt lgkmcnt(0)
            s_sub_u32 s62, s62, s58
            s_cmp_lt_u32 s62, 3000
            s_cbranch_scc1 L_prb
            v_lshlrev_b32 v5, 4, v0
            v_mov_b32 v6, 0
            s_lshl2_add_u32 s60, s2, s{S_W}
            s_lshl_b32 s60, s60, {12 if OPT['probe'] & 16 else 10}
            s_add_u32 s60, s60, {OPT['poff']}
            s_mov_b32 s61, {OPT['poff'] + 0x180000}
            {pre}
            s_memrealtime s[62:63]
            s_waitcnt lgkmcnt(0)
            {op}
            s_waitcnt vmcnt(0)
            s_memrealtime s[100:101]
            s_waitcnt lgkmcnt(0)
            s_sub_u32 s100, s100, s62
            v_mov_b32 v8, s100
            s_lshl2_add_u32 s60, s2, s{S_W}
            s_lshl_b32 s60, s60, 2
            s_add_u32 s60, s60, {WS_PROF}
            buffer_store_dword v8, v6, s[52:55], s60 offen
            s_mul_i32 s100, s100, 20
            s_add_u32 s100, s100, s58''')
        elif OPT['rdm'] >= 3:
            key = {3: 's_and_b32 s96, s2, 7', 4: f's_mov_b32 s96, s{S_H}', 5: f's_mov_b32 s96, s{S_TILE}'}[OPT['rdm']]
            e(f'''s_sub_u32 s100, s100, s98
            s_sub_u32 s97, s98, s58
            s_mul_i32 s100, s100, 1000000
            s_mul_i32 s97, s97, 1000
            s_add_u32 s100, s100, s97
            s_add_u32 s100, s100, s2
            {key}
            s_lshl_b32 s96, s96, 2
            v_mov_b32 v5, s100
            v_mov_b32 v6, s96
            s_mov_b64 exec, 1
            global_atomic_umax v6, v5, s[26:27]
            s_waitcnt vmcnt(0)
            s_endpgm''')
        elif OPT['rdm'] == 2:
            e('''s_not_b32 s96, s58
            v_mov_b32 v5, s96
            v_mov_b32 v6, 0
            s_mov_b64 exec, 1
            global_atomic_umax v6, v5, s[26:27]
            s_waitcnt vmcnt(0)''' + '\ns_sleep 127' * 7 + '''
            global_load_dword v5, v6, s[26:27] sc1
            s_waitcnt vmcnt(0)
            v_readfirstlane_b32 s96, v5
            s_not_b32 s96, s96
            s_sub_u32 s100, s100, s96
            s_lshl_b32 s100, s100, 3
            s_add_u32 s100, s100, s96''')
        elif OPT['rdm']:
            e('s_sub_u32 s100, s100, s98')
            if OPT['rdt']: e(f"s_cmp_gt_u32 s100, {OPT['rdt']}\ns_cselect_b32 s100, 1280, 0")
            e('''v_mov_b32 v5, s100
            v_mov_b32 v6, 0
            s_mov_b64 exec, 1
            global_atomic_add v6, v5, s[26:27]
            s_waitcnt vmcnt(0)''' + '\ns_sleep 127' * 7 + '''
            global_load_dword v5, v6, s[26:27] sc1
            s_waitcnt vmcnt(0)
            v_readfirstlane_b32 s100, v5
            s_lshr_b32 s100, s100, 6
            s_add_u32 s100, s100, s58''')
        else: e(f"s_sub_u32 s100, s100, s98\ns_lshl_b32 s100, s100, {0 if OPT['rdc'] else 3}\ns_add_u32 s100, s100, s58")
        e(f'''s_add_u32 s100, s100, 6000
        {l}:
        s_sleep 1
        s_memrealtime s[96:97]
        s_waitcnt lgkmcnt(0)
        s_sub_u32 s96, s96, s100
        s_cmp_lt_i32 s96, 0
        s_cbranch_scc1 {l}''')
    if OPT['prof']:
        e(f'''s_memrealtime s[96:97]
        s_waitcnt lgkmcnt(0)
        v_writelane_b32 v{V_PROF}, s96, 31
        v_writelane_b32 v{V_PROF}, s98, 30
        s_lshl_b32 s96, s2, 3
        s_add_u32 s96, s96, s{S_WV}
        s_lshl_b32 s96, s96, 7
        s_add_u32 s96, s96, {WS_PROF}
        v_lshlrev_b32 v{V_T}, 2, v{V_LANE}
        s_mov_b32 exec_hi, 0
        buffer_store_dword v{V_PROF}, v{V_T}, {sr(SRD_WS)}, s96 offen
        s_mov_b64 exec, -1''')

def arrive(stage):
    e(f'v_mov_b32 v{V_T}, {stage}\nds_write_b32 v{V_OWN}, v{V_T}')
def lwait(stage, addr=V_GRP, sleep=0):
    l = lab('lw')
    e(f'{l}:')
    if sleep: e(f's_sleep {sleep}')
    e(f'''ds_read_b32 v{V_T}, v{addr}
    s_waitcnt lgkmcnt(0)
    v_cmp_gt_u32 vcc, {stage}, v{V_T}''')
    if OPT['safe']:
        d = lab('ld')
        e(f'''s_cbranch_vccz {d}
        s_sub_u32 s{S_BOUND}, s{S_BOUND}, 1
        s_cbranch_scc0 {l}
        s_mov_b32 s{S_BOUND}, 0
        {d}:''')
    else:
        e(f's_cbranch_vccnz {l}')
def sync(stage):
    arrive(stage); lwait(stage)
def poll(voff, first_issued=False, sleep=0, reg=V_T):
    l, d, m = lab('pl'), lab('pd'), lab('pm')
    if first_issued == 2:
        e(f's_waitcnt vmcnt(0)\nv_cmp_ne_u32 vcc, s{S_NONCE}, v{reg}\ns_cbranch_vccnz {l}\n{d}:')
        cur = [n for n in SEC if SEC[n] is out][0]
        sec('cold')
        e(f'''{l}:
        buffer_load_dword v{reg}, v{voff}, {sr(SRD_WS)}, 0 offen sc1
        s_waitcnt vmcnt(0)
        v_cmp_ne_u32 vcc, s{S_NONCE}, v{reg}
        s_cbranch_vccz {d}
        s_sub_u32 s{S_BOUND}, s{S_BOUND}, 1
        s_cbranch_scc0 {l}
        s_mov_b32 s{S_BOUND}, 0
        s_branch {d}''')
        sec(cur)
        return
    if first_issued: e(f's_branch {m}')
    e(f'{l}:')
    if sleep: e(f's_sleep {sleep}')
    e(f'''buffer_load_dword v{reg}, v{voff}, {sr(SRD_WS)}, 0 offen sc1
    {m}:
    s_waitcnt vmcnt(0)
    v_cmp_ne_u32 vcc, s{S_NONCE}, v{reg}
    s_cbranch_vccz {d}
    s_sub_u32 s{S_BOUND}, s{S_BOUND}, 1
    s_cbranch_scc0 {l}
    s_mov_b32 s{S_BOUND}, 0
    {d}:''')
def publish(soff, tmp):
    if OPT['fw']:
        e(f'''v_mov_b32 v{V_T}, s{S_NONCE}
        v_lshlrev_b32 v{tmp}, 2, v{V_LANE}
        s_mov_b64 exec, {hex((1 << OPT['fw']) - 1)}
        buffer_store_dword v{V_T}, v{tmp}, {sr(SRD_WS)}, s{soff} offen sc1
        s_mov_b64 exec, -1'''.replace('s_mov_b64 exec, 0xffffffff', 's_mov_b32 exec_hi, 0'))
        return
    e(f'''v_mov_b32 v{V_T}, s{S_NONCE}
    v_mov_b32 v{tmp}, 0
    s_mov_b64 exec, 1
    buffer_store_dword v{V_T}, v{tmp}, {sr(SRD_WS)}, s{soff} offen sc1
    s_mov_b64 exec, -1''')
def swap23(d, s, t):
    e(f'''v_lshrrev_b32 v{t}, 1, v{s}
    v_xor_b32 v{t}, v{t}, v{s}
    v_and_b32 v{t}, 4, v{t}
    v_mul_u32_u24 v{t}, 3, v{t}
    v_xor_b32 v{d}, v{t}, v{s}''')
def rot_next(s):
    e(f's_add_u32 s{s}, s{s}, 1\ns_cmp_eq_u32 s{s}, 7\ns_cselect_b32 s{s}, 0, s{s}')

e(f'''s_cmp_ge_u32 s2, 256
s_cbranch_scc1 L_end''')
if OPT['prof']:
    e(f's_memtime s[{S_T0}:{S_T0+1}]\ns_memrealtime s[98:99]\nv_mov_b32 v{V_PROF}, 0')
if OPT['rd'] >= 0: e('s_memrealtime s[100:101]\ns_memrealtime s[58:59]\ns_memrealtime s[98:99]')
e(f'''s_load_dwordx16 s[4:19], s[0:1], 0
s_load_dwordx8 s[20:27], s[0:1], 64
s_load_dwordx2 s[28:29], s[0:1], 96
v_lshrrev_b32 v{V_OWN}, 6, v0
v_and_b32 v{V_LANE}, 63, v0
v_readfirstlane_b32 s{S_WV}, v{V_OWN}
v_lshlrev_b32 v{V_OWN}, 2, v{V_OWN}
v_mov_b32 v{V_T}, 0
ds_write2_b32 v{V_OWN}, v{V_T}, v{V_T} offset1:8
v_and_b32 v{V_GRP}, 3, v{V_LANE}
v_lshlrev_b32 v{V_GRP}, 2, v{V_GRP}
s_and_b32 s60, s2, 7
s_lshr_b32 s{S_J}, s2, 3
s_and_b32 s{S_HG}, s{S_J}, 1
s_lshr_b32 s{S_TILE}, s2, 4
s_lshl1_add_u32 s{S_H}, s60, s{S_HG}
s_lshl1_add_u32 s61, s60, s{S_TILE}
s_and_b32 s61, s61, 15
s_mul_i32 s60, s60, 14
s_add_u32 s60, s60, s61
s_lshl1_add_u32 s{S_I}, s60, s{S_HG}
s_lshr_b32 s{S_C}, s60, 4
s_cmp_ge_u32 s61, 14
s_cselect_b32 s{S_C}, 7, s{S_C}
s_and_b32 s{S_W}, s{S_WV}, 3
s_mov_b32 s{S_BOUND}, 0x40000
s_mov_b32 s{S_KS}, {KS}
s_cmp_lt_u32 s{S_WV}, 4
s_cbranch_scc1 L_mha''')

VX = 144; VACC = 96; VWF = 32; VPK = 128
VV, VK, VS, VO, VQ = 32, 64, 96, 160, 224
vWd = [5, 6]; vXd = [7, 8, 9, 10]; vXr = [11, 12, 13, 14]; vWb, vW0, vW1 = 15, 16, 17
vRho, vG, vSt, vQd, vQr, vFl, vA, vB, vC = 18, 19, 20, 21, 22, 23, 24, 25, 26
vKo0, vKo1, vVo, vIdx = 27, 28, 29, 30
sXb, sWb, sCh, sCw, sLx, sTmp, sTmp2, sSt, sS1, sS2, sFl = range(60, 71)
sK, sV, sIt = 71, 72, 73
sFo, sO0, sO1 = 84, 85, 86
vOs, vQw = vRho, vG
vRb = [7, 8, 9]; vQx = [11, 12, 13]; vRr = 10
sMask = 74
sOdd = 76

sec('mha0')
e('L_mha:')
if OPT['prio']: e(f"s_setprio {OPT['pm']}")
e(f'''s_mul_i32 s{S_O0}, s{S_H}, 7
s_lshr_b32 s{S_O0}, s{S_O0}, 1''')
e(f'''v_lshrrev_b32 v{vA}, 3, v{V_LANE}          ; r
v_and_b32 v{vB}, 7, v{V_LANE}                    ; p
v_lshlrev_b32 v{vC}, 1, v{vA}
v_and_b32 v{vC}, 4, v{vC}
v_xor_b32 v{vC}, v{vC}, v{vB}
v_lshlrev_b32 v{vC}, 4, v{vC}
v_mul_u32_u24 v{vWd[0]}, 2688, v{vA}
v_add_u32 v{vWd[0]}, v{vWd[0]}, v{vC}
v_add_u32 v{vWd[1]}, {8*2688-1024}, v{vWd[0]}
v_lshrrev_b32 v{vC}, 1, v{vA}
v_xor_b32 v{vC}, v{vC}, v{vB}
v_lshlrev_b32 v{vC}, 4, v{vC}
v_mul_u32_u24 v{vA}, 896, v{vA}
v_add_u32 v{vXd[0]}, v{vA}, v{vC}
v_xor_b32 v{vC}, 64, v{vC}
v_add_u32 v{vXd[1]}, v{vA}, v{vC}
v_add_u32 v{vXd[1]}, {7168-1024}, v{vXd[1]}
v_add_u32 v{vXd[2]}, {2*(7168-1024)}, v{vXd[0]}
v_add_u32 v{vXd[3]}, {2*(7168-1024)}, v{vXd[1]}
s_lshl2_add_u32 s{sXb}, s{S_TILE}, s{S_W}
s_lshl3_add_u32 s{sFl}, s{S_HG}, s{S_C}
s_lshl_b32 s{sFl}, s{sFl}, 6
s_add_u32 s{sFl}, s{sFl}, s{S_TILE if OPT['wgf'] else sXb}
s_lshl_b32 s{sFl}, s{sFl}, {FSH}
s_add_u32 s{sFl}, s{sFl}, {F_KV}
s_mul_i32 s{sXb}, s{sXb}, {32*896}
s_mul_i32 s{sWb}, s{S_HG}, 7
s_add_u32 s{sWb}, s{sWb}, s{S_C}
s_add_u32 s{sWb}, s{sWb}, 7
s_lshl_b32 s{sWb}, s{sWb}, 7
s_mul_i32 s{sTmp}, s{S_W}, {16*2688}
s_add_u32 s{sWb}, s{sWb}, s{sTmp}
s_mul_i32 s{sLx}, s{S_W}, 12288
s_add_u32 s{sLx}, s{sLx}, {L_X}
s_lshl_b32 s{sS1}, s{S_W}, 11
s_add_u32 s{sS1}, s{sS1}, {L_W}
s_mov_b32 s{SRD_A+2}, {2048*896}
s_mov_b32 s{SRD_A+3}, 0x20000
s_mov_b32 s{SRD_B+2}, {448*1344*2}
s_mov_b32 s{SRD_B+3}, 0x20000
s_mov_b32 m0, s{sLx}
s_waitcnt lgkmcnt(0)
s_mov_b64 s[{SRD_A}:{SRD_A+1}], s[18:19]
s_mov_b64 s[{SRD_B}:{SRD_B+1}], s[20:21]
s_load_dword s{S_NONCE}, s[28:29], 0''')
stamp(22)
sWo = 88
def w_lines(st):
    return [f's_add_u32 m0, s{sS1}, {8192*st}', f's_add_u32 s{sWo+st}, s{sWb}, {64*2688*st}'] + \
           [f'buffer_load_dwordx4 v{vWd[i]}, {sr(SRD_B)}, s{sWo+st} offen offset:{1024*i} lds' for i in range(2)]
def x_chunk(st):
    return [f's_add_u32 m0, s{sLx}, {(st%3)*4096 - 128*st}', 's_nop 0'] + \
           [f'buffer_load_dwordx4 v{vXd[i]}, {sr(SRD_A)}, s{sXb} offen offset:{1024*i + 128*st} lds' for i in range(4)]
TK = 'touch'
DM = []
for l in [x_chunk(0), w_lines(0)] + [w_lines(i) for i in range(1, 7)] + [x_chunk(1), x_chunk(2)]:
    DM += [l[:3]] + [[x] for x in l[3:]]
DM[0] = DM[0][2:]
for i, g in enumerate(DM[:OPT['n0']]):
    if i == OPT['nb']:
        e(f's_cmp_eq_u32 s{S_C}, 7\ns_cbranch_scc1 {"L_tmha" if OPT[TK] else "L_gemm_t"}\ns_barrier'); stamp(23)
        if OPT['only'] == 1: e('s_endpgm')
    e('\n'.join(g))
DM = DM[OPT['n0']:]
stamp(24)
if OPT['ord'] not in (1, 3, 4, 5): e('s_branch L_mha1')
sec('mha')
e('L_mha1:')
stamp(25)
sec('tmp')
srd(SRD_WS, 28, WS_SIZE)
ONES = f'''s_bitcmp1_b32 s{S_H}, 0
s_cselect_b32 s{sTmp}, 0, 7
v_cmp_eq_u32 vcc, s{sTmp}, v{vA}
s_lshl_b32 s{sTmp}, s{S_O0}, 1
s_sub_u32 s{sTmp}, s{S_HG}, s{sTmp}
s_add_u32 s{sTmp}, s{sTmp}, 112
v_mov_b32 v{vB}, s{sTmp}
v_cndmask_b32 v{vA}, v{vA}, v{vB}, vcc
''' if OPT['ones'] else ''
FIX = f'v_cmp_lt_u32 vcc, 7, v{vB}\n'
FOM = f'''s_lshl_b32 s{sFo}, s{sTmp2}, 4
s_add_u32 s{sFo}, s{sFo}, s{S_H}
s_lshl_b32 s{sFo}, s{sFo}, {FSH}
s_add_u32 s{sFo}, s{sFo}, {F_O}
''' if OPT['omode'] != 3 else ''
e(f'''v_and_b32 v{vA}, 31, v{V_LANE}
v_lshrrev_b32 v{vG}, 5, v{V_LANE}''')
swap23(vRho, vA, vB)
e(f'''v_bfe_u32 v{vB}, v{vRho}, 1, 3
v_xor_b32 v{vB}, v{vB}, v{vG}
v_lshlrev_b32 v{vB}, 4, v{vB}
v_lshl_add_u32 v{vB}, v{vRho}, 7, v{vB}
v_add_u32 v{vXr[0]}, s{sLx}, v{vB}
v_xor_b32 v{vXr[1]}, 32, v{vXr[0]}
v_xor_b32 v{vXr[2]}, 64, v{vXr[0]}
v_xor_b32 v{vXr[3]}, 0x60, v{vXr[0]}
v_and_b32 v{vB}, 3, v{V_LANE}                     ; cc
v_lshrrev_b32 v{vC}, 1, v{vB}
v_and_b32 v{vQd}, 1, v{vB}
v_lshl_or_b32 v{vC}, v{vQd}, 1, v{vC}
v_bfe_u32 v{vQd}, v{V_LANE}, 4, 1
v_lshl_or_b32 v{vB}, v{vQd}, 2, v{vB}              ; mq natural
v_lshl_or_b32 v{vC}, v{vQd}, 2, v{vC}
v_bfe_u32 v{vQd}, v{V_LANE}, 2, 2                  ; r'
v_lshl_or_b32 v{vFl}, v{vG}, 3, v{vQd}             ; 8g + r'
v_lshlrev_b32 v{vQr}, 6, v{vFl}
v_lshl_add_u32 v{vQr}, v{vC}, 3, v{vQr}
v_add_u32 v{vQr}, {L_X + 4096}, v{vQr}
s_cmp_eq_u32 s{S_HG}, 0
s_cselect_b64 vcc, -1, 0
v_cndmask_b32 v{vB}, v{vB}, v{vC}, vcc             ; K slabs use the exchanged order, V slabs the natural one
v_lshlrev_b32 v{vWb}, 7, v{vFl}
v_lshl_add_u32 v{vWb}, v{vB}, 3, v{vWb}
v_lshrrev_b32 v{vQd}, 1, v{vQd}
v_lshl_add_u32 v{vWb}, v{vQd}, 6, v{vWb}
v_add_u32 v{vW0}, {L_W}, v{vWb}
v_lshlrev_b32 v{vB}, 4, v{vRho}
v_mad_u32_u24 v{vB}, v{vG}, s{S_KS}, v{vB}
v_lshrrev_b32 v{vC}, 2, v{vA}
v_mul_u32_u24 v{vC}, {QS}, v{vC}
v_lshl_add_u32 v{vC}, v{vG}, 6, v{vC}
v_and_b32 v{vQd}, 3, v{vA}
v_lshl_add_u32 v{vC}, v{vQd}, 4, v{vC}
v_cndmask_b32 v{vSt}, v{vC}, v{vB}, vcc
s_lshl2_add_u32 s{sTmp}, s{S_TILE}, s{S_W}
s_lshl_b32 s{sTmp2}, s{sTmp}, 9
s_add_u32 s{sTmp2}, s{sTmp2}, {WS_K}
s_lshl_b32 s{sTmp}, s{sTmp}, 8
s_add_u32 s{sTmp}, s{sTmp}, {WS_V}
s_movk_i32 s{sS2}, 128
s_cmp_eq_u32 s{S_HG}, 0
s_cselect_b32 s{sSt}, s{sTmp2}, s{sTmp}
s_cselect_b32 s{sS2}, {2*KS}, s{sS2}
s_mul_i32 s{sTmp}, s{S_C}, {8*KS}
s_add_u32 s{sSt}, s{sSt}, s{sTmp}
v_lshrrev_b32 v{vB}, 2, v{V_LANE}
v_mul_u32_u24 v{vB}, 2688, v{vB}
v_lshl_add_u32 v{vQd}, v{vQd}, 4, v{vB}
s_lshl_b32 s82, s{S_O0}, 4
s_mul_i32 s{sTmp}, s{S_W}, {16*2688}
s_add_u32 s82, s82, s{sTmp}
s_lshr_b32 s{sTmp}, s{S_O0}, 3
s_add_u32 s{sTmp2}, s{S_O0}, 3
s_lshr_b32 s{sTmp2}, s{sTmp2}, 3
s_sub_u32 s{sTmp2}, s{sTmp2}, s{sTmp}
v_bfe_u32 v{vC}, v{V_LANE}, 4, 1
v_mul_u32_u24 v{vC}, s{sTmp2}, v{vC}
v_lshl_add_u32 v{vC}, v{vG}, 3, v{vC}
v_add_u32 v{vC}, s{sTmp}, v{vC}
v_and_b32 v{vB}, 15, v{V_LANE}
{FIX}v_and_b32 v{vB}, {3 if OPT['wgf'] else 15}, v{V_LANE}
v_lshl_add_u32 v{vC}, v{vC}, 6, v{vB}
s_lshl_b32 s{sTmp}, s{S_W}, {2 if OPT['wgf'] else 4}
v_add_u32 v{vC}, s{sTmp}, v{vC}
v_lshlrev_b32 v{vC}, {FSH}, v{vC}
v_add_u32 v{vFl}, {F_KV}, v{vC}
s_lshl3_add_u32 s{sTmp}, s{S_W}, s{S_HG}
s_mul_i32 s{sTmp}, s{sTmp}, {US}
s_add_u32 s{sTmp}, s{sTmp}, {F_U}
v_mul_u32_u24 v{vB}, {2*US}, v{vB}
v_add_u32 v{vB}, s{sTmp}, v{vB}
v_cndmask_b32 v{vFl}, v{vFl}, v{vB}, vcc
v_lshlrev_b32 v{vKo0}, 4, v{vA}
v_mad_u32_u24 v{vKo0}, v{vG}, s{S_KS}, v{vKo0}
v_add_u32 v{vKo1}, {2*KS}, v{vKo0}
v_lshrrev_b32 v{vA}, 2, v{vRho}
{ONES}v_mul_u32_u24 v{vA}, {QS}, v{vA}
v_lshl_add_u32 v{vA}, v{vG}, 6, v{vA}
v_and_b32 v{vB}, 3, v{V_LANE}
v_lshl_add_u32 v{vVo}, v{vB}, 4, v{vA}
v_mov_b32 v{vIdx}, 0xdddddddd
s_mul_i32 s{sTmp}, s{S_O0}, {KS}
s_lshl_b32 s{sK}, s{S_W}, 13
s_add_u32 s{sK}, s{sK}, s{sTmp}
s_add_u32 s{sK}, s{sK}, {WS_K}
s_lshl_b32 s{sV}, s{S_W}, 12
s_add_u32 s{sV}, s{sV}, s{sTmp}
s_add_u32 s{sV}, s{sV}, {WS_V}
s_lshl2_add_u32 s{sTmp2}, s{S_TILE}, s{S_W}
{FOM}s_lshl_b32 s{sTmp2}, s{sTmp2}, 9
s_add_u32 s{sO0}, s{sTmp}, s{sTmp2}
s_add_u32 s{sO0}, s{sO0}, {WS_O}
s_add_u32 s{sO1}, s{sO0}, {2*KS}
s_bitcmp1_b32 s{S_H}, 0
s_cselect_b64 s[{sOdd}:{sOdd+1}], -1, 0
; per-lane multipliers for Q: scale*log2(e), zero on the four slots that belong to the neighbour head
v_mov_b32 v{vC}, 0x3e8b97f6
v_cmp_gt_u32 vcc, 32, v{V_LANE}
s_and_b64 s[78:79], vcc, s[{sOdd}:{sOdd+1}]
s_nor_b64 s[80:81], vcc, s[{sOdd}:{sOdd+1}]
v_cndmask_b32 v{vA}, v{vC}, 0, s[78:79]
v_cndmask_b32 v{vB}, v{vC}, 0, s[80:81]
s_mov_b32 s78, 0x3f803f80
s_mov_b32 s79, s78
v_xor_b32 v{vW1}, 64, v{vW0}
v_lshlrev_b32 v{vOs}, 4, v{vRho}
v_mad_u32_u24 v{vOs}, v{vG}, s{S_KS}, v{vOs}
v_lshl_add_u32 v{vQw}, v{V_LANE}, 4, s{sLx}''')
srd(SRD_C, 28, WS_SIZE)
def o_stores(r0, r1, tag):
    e(f'''s_bitcmp1_b32 s{S_H}, 0
    s_cbranch_scc1 L_ost_odd{tag}
    buffer_store_dwordx4 {vr(r0,4)}, v{vOs}, {sr(SRD_WS)}, s{sO0} offen sc1
    s_mov_b32 exec_hi, 0
    buffer_store_dwordx4 {vr(r1,4)}, v{vOs}, {sr(SRD_WS)}, s{sO1} offen sc1
    s_not_b64 exec, exec
    buffer_store_dwordx2 {vr(r1,2)}, v{vOs}, {sr(SRD_WS)}, s{sO1} offen sc1
    s_branch L_ost_done{tag}
    L_ost_odd{tag}:
    buffer_store_dwordx4 {vr(r1,4)}, v{vOs}, {sr(SRD_WS)}, s{sO1} offen sc1
    s_mov_b32 exec_hi, 0
    buffer_store_dwordx2 {vr(r0+2,2)}, v{vOs}, {sr(SRD_WS)}, s{sO0} offen offset:8 sc1
    s_not_b64 exec, exec
    buffer_store_dwordx4 {vr(r0,4)}, v{vOs}, {sr(SRD_WS)}, s{sO0} offen sc1
    L_ost_done{tag}:
    s_mov_b64 exec, -1''')
GS = 0
AB = [l for l in SEC.pop('tmp') if not l.strip().startswith(';')]
sec('mha')
def scc_pending(i):
    return i < len(AB) and AB[i].strip().startswith(('s_cselect', 's_mov_b32 s75'))
pos = 0
for g in DM:
    n = pos + OPT['ilv']
    while scc_pending(n): n += 1
    e('\n'.join(AB[pos:n])); pos = n
    e('\n'.join(g))
e('\n'.join(AB[pos:]))
stamp(0)
def x_reads(s):
    return [f'ds_read_b128 {vr(VX + 16*s + 4*ks, 4)}, v{vXr[ks]} offset:{(s%3)*4096}' for ks in range(4)]
e('s_waitcnt vmcnt(22)')
e('\n'.join(x_reads(0)))
e('s_waitcnt vmcnt(8) lgkmcnt(0)')
arrive(1)
stamp(1)
e('\n'.join(x_chunk(3)))
e('s_waitcnt vmcnt(8)')
e('\n'.join(x_reads(1)))
lwait(1)
if OPT['fwm'] & 2:
    e(f'''v_mov_b32 v{V_T}, s{S_NONCE}
    v_lshlrev_b32 v31, 2, v{V_LANE}
    s_mov_b32 exec_hi, 0
    buffer_store_dword v{V_T}, v31, {sr(SRD_WS)}, s{sFl} offen sc1
    s_mov_b64 exec, -1''')
e(f's_add_u32 s{S_NONCE}, s{S_NONCE}, 1')
stamp(2)
def w_reads(s):
    r = []
    for ks in range(4):
        for ct in range(2):
            for hf in range(2):
                d = VWF + 32 * (s & 1) + 8 * ks + 4 * ct + 2 * hf
                r.append(f'ds_read_b64_tr_b16 {vr(d,2)}, v{(vW0, vW1)[ct]} offset:{s*8192 + ks*2048 + hf*512}')
    return r
e('\n'.join(w_reads(0)))
e(f'''s_waitcnt lgkmcnt(0)
s_cmp_lg_u32 s{S_HG}, 0
s_cbranch_scc1 L_gemm_v''')
sQb, sQc = 82, 83
NE = OPT['wq_early']
def wq_dma(st):
    return [f's_add_u32 m0, s{sLx}, {4096 + 1024*st}\ns_add_u32 s83, s82, {64*2688*st}', '', f'buffer_load_dwordx4 v{vQd}, {sr(SRD_B)}, s83 offen lds']
SPIN = []
def gemm1(vpart):
    for s in range(7):
        M = []
        for ks in range(4):
            for ct in range(2):
                wf = vr(VWF + 32 * (s & 1) + 8 * ks + 4 * ct, 4); xf = vr(VX + 16 * s + 4 * ks, 4)
                acc = vr(VACC + 16 * ct, 16)
                a, b = (xf, wf) if vpart else (wf, xf)
                M.append(f'v_mfma_f32_32x32x16_bf16 {acc}, {a}, {b}, {"0" if s == 0 and ks == 0 else acc}')
        gaps = [[] for _ in range(8)]
        tag = f'{"v" if vpart else "k"}{s}'
        pre = []
        dm = []
        def add(l): dm.extend([(l[0], l[2])] + [(None, x) for x in l[3:]])
        if s <= 2: add(x_chunk(s + 4))
        if s == 3:
            for i in range(min(NE, 4)): add(wq_dma(i))
        if s == 4:
            for i in range(4, NE): add(wq_dma(i))
        FW = 1 if OPT['fwm'] & 2 else 0
        n = {0: 8 + FW, 1: 8 + FW, 2: 8, 3: 4 + min(NE, 4), 4: NE}.get(s)
        for i, (m, l) in enumerate(dm):
            if m: (pre if i == 0 else gaps[i - 1]).append(m)
            gaps[i].append(l)
        if s < 6:
            wr = w_reads(s + 1)
            for i, (p, q) in enumerate(((0, 3), (3, 6), (6, 9), (9, 12), (12, 16))): gaps[i] += wr[p:q]
            if s <= 4: gaps[OPT['xg']] += [f's_waitcnt vmcnt({n})'] + x_reads(s + 2)
            gaps[7] += [f's_waitcnt lgkmcnt({4 if s == 4 and OPT["s6"] != 4 else 0})']
        if s == OPT['s6'] and (OPT['uw'] == 6 or OPT['cw'] == 6): gaps[6] += [f'v_mov_b32 v{V_T}, 6', f'ds_write_b32 v{V_OWN}, v{V_T}']
        if s == 5:
            gaps[7] += [f'v_add_u32 v31, 16, v{V_GRP}', f'ds_read_b32 v31, v31']
        if s == 6 and NE == 7:
            gaps[OPT['qa']] += ['s_waitcnt vmcnt(0)', f'v_mov_b32 v{V_T}, 7', f'ds_write_b32 v{V_OWN}, v{V_T}']
        e('\n'.join(pre))
        if OPT['gx'] & 1 or vpart == 2: M = ['s_nop 0'] * 8
        if OPT['gx'] & 2 or vpart == 2: gaps = [[x for x in g if 'tr_b16' not in x] for g in gaps]
        for i in range(8):
            e(M[i]); e('\n'.join(gaps[i]))
        stamp(14 + s)
assert NE == 7
sec('gt'); e('L_gemm_t:')
e('\n'.join(AB))
e(f's_waitcnt lgkmcnt(0)\ns_add_u32 s{S_NONCE}, s{S_NONCE}, 1\ns_barrier')
TB = [0] + [L_SSM - L_X + 4096*i for i in range(3)] + [L_W - L_X + 4096*i for i in range(3)]
for st in range(7):
    x = x_chunk(st); x[0] = f's_add_u32 m0, s{sLx}, {TB[st] - 128*st}'
    e('\n'.join(x))
for st in range(7): e('\n'.join(wq_dma(st)))
stamp(0)
for st in range(7):
    e(f's_waitcnt vmcnt({31 - 4*st})')
    for ks in range(4): e(f'ds_read_b128 {vr(VX + 16*st + 4*ks, 4)}, v{vXr[ks]} offset:{TB[st] - TB[1] if st else 0}')
    if st == 0:
        for ks in range(4): e(f'v_subrev_u32 v{vXr[ks]}, {-TB[1]}, v{vXr[ks]}')
e('s_waitcnt vmcnt(0) lgkmcnt(0)')
arrive(7)
stamp(3)
e('s_branch L_nokv'); sec('mha')
gemm1(False)
e('s_branch L_gemm_done\nL_gemm_v:')
gemm1(True)
e('L_gemm_done:')
stamp(3)
e(f"""s_add_u32 s{sS1}, s{sSt}, s{sS2}
s_add_u32 s{sXb}, s{sSt}, {4*KS}
s_add_u32 s{sCw}, s{sS1}, {4*KS}
s_waitcnt lgkmcnt(0)""")
PWS = 3 if OPT['pw'] else 1
e(f'v_cmp_gt_u32 vcc, {PWS}, v31\ns_cbranch_vccz L_eok\nv_add_u32 v31, 16, v{V_GRP}')
lwait(PWS, addr=31)
e('L_eok:\ns_nop 4')
for q, so in enumerate((sSt, sS1, sXb, sCw)):
    for i in range(4*q, 4*q+4):
        e(f'v_cvt_pk_bf16_f32 v{VPK + i}, v{VACC + 2*i}, v{VACC + 2*i + 1}')
    e(f'buffer_store_dwordx4 {vr(VPK+4*q,4)}, v{vSt}, {sr(SRD_WS)}, s{so} offen sc1')
e('L_nokv:')
assert OPT['wgf'] and OPT['ones'] and OPT['pf'] == 2
def kv_loads(buf, i, srdn=SRD_C):
    return [f'buffer_load_dwordx4 {vr(VK + 8*buf, 4)}, v{vKo0}, {sr(srdn)}, s{sK} offen offset:{512*i} sc1',
            f'buffer_load_dwordx4 {vr(VK + 8*buf + 4, 4)}, v{vKo1}, {sr(srdn)}, s{sK} offen offset:{512*i} sc1',
            f'buffer_load_dwordx4 {vr(VV + 8*buf, 4)}, v{vVo}, {sr(srdn)}, s{sV} offen offset:{256*i} sc1',
            f'buffer_load_dwordx4 {vr(VV + 8*buf + 4, 4)}, v{vVo}, {sr(srdn)}, s{sV} offen offset:{256*i + 128} sc1']
fill = [f'v_mov_b64 {vr(VV+2*i,2)}, s[78:79]' for i in range(12, 12 if OPT['wp'] and OPT['unr'] else 16)] + [f'v_subrev_u32 v{vRr}, {L_X - L_RB}, v{vQw}', 's_mov_b64 s[80:81], -1']
for s in range(3):
    fill += f"""s_add_u32 s{sTmp}, s{S_W}, {1+s}
    s_and_b32 s{sTmp}, s{sTmp}, 3
    s_sub_u32 s{sTmp}, s{sTmp}, s{S_W}
    s_mul_i32 s{sTmp}, s{sTmp}, 12288
    v_add_u32 v{vQx[s]}, s{sTmp}, v{vQw}
    v_subrev_u32 v{vRb[s]}, {L_X - L_RB - 4096*s}, v{vQx[s]}""".split('\n')
def count_in(n):
    e(f"""v_mov_b32 v{V_T}, 1
    v_mov_b32 v31, 0
    s_waitcnt vmcnt({n})
    s_mov_b64 exec, 1
    ds_add_rtn_u32 v{vSt}, v31, v{V_T} offset:32
    s_mov_b64 exec, -1""")
def count_out(n):
    e(f's_waitcnt lgkmcnt({n})\nv_readfirstlane_b32 s{sTmp2}, v{vSt}\ns_cmp_lg_u32 s{sTmp2}, 3\ns_cbranch_scc1 L_nopub')
    publish(sFl, 31)
    e('L_nopub:'); stamp(5)
NM = max(NE, OPT['wq_mid'])
for st in range(NE, NM): e('\n'.join(wq_dma(st)))
stamp(4)
if NE < 7:
    e('\n'.join(fill)); fill = []
    count_in(NM - NE)
    if NM == 7:
        e('s_waitcnt vmcnt(0)'); arrive(7); count_out(1)
    else:
        count_out(0)
        for st in range(NM, 7): e('\n'.join(wq_dma(st)))
        e('s_waitcnt vmcnt(0)'); arrive(7)
lwait(7)
stamp(6)
QB = [80, 84, 88, 92, 112, 116, 120, 124]
def q_reads(k):
    s, ks = divmod(k, 4)
    return [f'ds_read_b64_tr_b16 {vr(QB[k%8] + 2*hf, 2)}, v{vQr} offset:{ks*12288 + s*1024 + hf*256}' for hf in range(2)]
for k in range(6): e('\n'.join(q_reads(k)))
e('\n'.join(fill[:12])); fill = fill[12:]
zi = 8 if OPT['wp'] and OPT['unr'] else 0
PK = OPT['pubk'] if NE == 7 else -99
for k in range(28):
    extra = 1 if PK < k <= PK + 5 else 0
    e(f's_waitcnt lgkmcnt({min(10, 2*(27-k)) + extra})')
    e(f'v_mfma_f32_32x32x16_bf16 {vr(VACC,16)}, {vr(QB[k%8], 4)}, {vr(VX + 4*k, 4)}, {"0" if k == 0 else vr(VACC,16)}')
    if k + 6 < 28: e('\n'.join(q_reads(k + 6)))
    while zi < 40 and VX + 2*zi + 1 < VX + 4*k - 4 and zi < 2*k:
        e(f'v_mov_b64 {vr(VX + 2*zi, 2)}, 0'); zi += 1
    if k >= 22 or k < 2:
        e('\n'.join(fill[:4])); fill = fill[4:]
    if k == PK: count_in(0)
    if k == PK + OPT['wgf']: count_out(2*OPT['wgf'])
    if k == OPT['pollk']: e(f'buffer_load_dword v31, v{vFl}, {sr(SRD_WS)}, 0 offen sc1')
    if k == OPT['chkk']:
        e(f's_waitcnt vmcnt(0)\nv_cmp_ne_u32 vcc, s{S_NONCE}, v31\ns_mov_b64 s[80:81], vcc\ns_cbranch_vccnz L_kv_late')
        for t in range(2): e('\n'.join(kv_loads(t, t)))
        e('L_kv_late:')
assert zi == 40 and VX == VS + 48 and not fill
stamp(7)
e('s_nop 11')
for r in range(16):
    m = vA if r < 4 else (vB if r >= 12 else vC)
    e(f'v_mul_f32 v{VACC + r}, v{m}, v{VACC + r}')
for i in range(8):
    e(f'v_cvt_pk_bf16_f32 v{VQ + 24 + i}, v{VACC + 2*i}, v{VACC + 2*i + 1}')
e(f"""ds_write_b128 v{vQw}, {vr(VQ+24,4)}
ds_write_b128 v{vQw}, {vr(VQ+28,4)} offset:1024""")
arrive(8)
lwait(8)
for s in range(3):
    e(f'ds_read_b128 {vr(VQ+8*s,4)}, v{vQx[s]}\nds_read_b128 {vr(VQ+8*s+4,4)}, v{vQx[s]} offset:1024')
PF = OPT['pf']
if OPT['chkk'] < 28: e('s_cmp_eq_u64 s[80:81], 0\ns_cbranch_scc1 L_kv_done')
poll(vFl, first_issued=OPT['pollk'] < 28 and OPT['chkk'] > 27, reg=31, sleep=OPT['ksleep'])
for t in range(PF): e('\n'.join(kv_loads(t, t)))
e('L_kv_done:')
stamp(8)
OM = OPT['omode']
if OM:
    e(f'''s_lshr_b32 s{sTmp}, s{S_O0}, 3
    s_add_u32 s{sTmp2}, s{S_O0}, 3
    s_lshr_b32 s{sTmp2}, s{sTmp2}, 3
    s_sub_u32 s{sTmp2}, s{sTmp2}, s{sTmp}
    s_lshl_b32 s{sTmp2}, s{sTmp2}, 1
    s_lshl2_add_u32 s{sSt}, s{S_TILE}, s{S_W}
    s_lshr_b32 s{sS1}, s{sSt}, 1
    s_mul_i32 s{sS1}, s{sS1}, 12
    s_add_u32 s{sSt}, s{sSt}, s{sS1}
    s_lshl1_add_u32 s{sTmp}, s{sTmp}, s{sSt}
    s_lshl_b32 s{sTmp}, s{sTmp}, {FSH}
    s_add_u32 s{sTmp}, s{sTmp}, {F_Y}
    v_and_b32 v{vFl}, 1, v{V_LANE}
    v_mul_u32_u24 v{vFl}, s{sTmp2}, v{vFl}
    v_and_b32 v31, 2, v{V_LANE}
    v_lshl_add_u32 v{vFl}, v31, 8, v{vFl}
    v_lshl_add_u32 v{vFl}, v{vFl}, {FSH}, s{sTmp}''')
def qk(buf, slot, js):
    d = vr(VS + 16*slot, 16)
    return f'v_mfma_f32_32x32x16_bf16 {d}, {vr(VK + 8*buf + 4*js, 4)}, {vr(VQ + 8*slot + 4*js, 4)}, {"0" if js == 0 else d}'
def pv(buf, slot, js):
    return f'v_smfmac_f32_32x32x32_bf16 {vr(VO + 16*slot, 16)}, {vr(VV + 8*buf + 4*js, 4)}, {vr(VS + 16*slot + 8*js, 8)}, v{vIdx}'
def exps(s): return [f'v_exp_f32 v{VS + 16*s + r}, v{VS + 16*s + r}' for r in range(16)]
SPREAD = []
LP = {0: [(1, 2, 0)] * 4, 1: [(1, g, 0) for g in range(4)], 2: [(0, 0, 0), (0, 2, 0), (1, 0, 0), (1, 2, 0)],
      3: [(1, g, 2) for g in range(4)], 4: [(0, 0, 2), (0, 2, 2), (1, 0, 2), (1, 2, 2)], 5: [(1, g, 4) for g in range(4)],
      6: [(0, 1, 4), (0, 3, 4), (1, 1, 4), (1, 3, 4)]}[OPT['lp']]
FULL = OPT['unr']
def unit(t, s, it=None):
    ex = exps(s)
    nb = t if s < 3 else (t + 1) & 3
    pb = t if s > 0 else (t - 1) & 3
    live = it is None or 4*it + t + PF < 16
    wt = f's_waitcnt vmcnt({4*PF-4 if live else 0})'
    if s == 3 and not OPT['wp']: e(wt)
    M = [qk(nb, (s+1) & 3, 0), qk(nb, (s+1) & 3, 1), pv(pb, (s-1) & 3, 0), pv(pb, (s-1) & 3, 1)]
    kl = kv_loads((t + PF) & 3, t + PF)
    for g in range(4):
        body = ex[4*g:4*g+4]
        for q in reversed(range(4)):
            if LP[q][:2] == (s, g) and live: body.insert(LP[q][2], kl[q])
        if OPT['wp'] and (s, g) == (2, 3): body.insert(0, wt)
        if OPT['wp'] and it is not None:
            if (s, g) == (1, 3) and t == 3 and live: body[0:0] = [f's_add_u32 s{sK}, s{sK}, 2048', f's_add_u32 s{sV}, s{sV}, 1024']
            if (it, t, s) == (0, 0, 0) and g >= 2: M[g] = ''
        elif (s, g) == (1, 3):
            if t == 3 - PF and it is None:
                body += [f's_cmp_eq_u32 s{sIt}, 3', f's_cselect_b32 s{SRD_C+2}, 0, s{SRD_C+2}']
            if t == 3 and live:
                body += [f's_add_u32 s{sK}, s{sK}, 2048', f's_add_u32 s{sV}, s{sV}, 1024']
                if it is None: body += [f's_add_u32 s{sIt}, s{sIt}, 1', f's_cmp_lg_u32 s{sIt}, 4']
        e(M[g]); e('\n'.join(body))
e(f's_mov_b32 s{sIt}, 0\ns_waitcnt vmcnt({4*PF - 4}) lgkmcnt(0)')
stamp(9)
e(qk(0, 0, 0)); e(qk(0, 0, 1))
if FULL:
    e(f"s_setprio {OPT['pa']}\ns_nop 9\nL_att:")
    for it in range(4):
        for t in range(4):
            for s in range(4):
                if (it, t, s) < (3, 3, 2): unit(t, s, it)
else:
    e(f"s_setprio {OPT['pa']}\ns_nop 8\ns_branch L_att_in")
    e('L_att:')
    unit(3, 2); unit(3, 3)
    e('L_att_in:')
    for t in range(4):
        for s in range(4):
            if (t, s) < (3, 2): unit(t, s)
    e('s_cbranch_scc1 L_att')
if OPT['prio']: e(f"s_setprio {OPT['pm']}")
if OM: e(f'buffer_load_dword v31, v{vFl}, {sr(SRD_WS)}, 0 offen sc1')
def rbw(s): return [f'ds_write_b128 v{vRb[s]}, {vr(VO + 16*s + 4*i, 4)} offset:{1024*i}' for i in range(4)]
ex = exps(2); w0 = rbw(0)
e(qk(3, 3, 0)); e('\n'.join(ex[0:4])); e(qk(3, 3, 1)); e('\n'.join(ex[4:7] + [w0[0]]))
e(pv(3, 1, 0)); e('\n'.join(ex[7:10] + [w0[1]])); e(pv(3, 1, 1)); e('\n'.join(ex[10:13] + [w0[2]] + ex[13:16] + [w0[3]]))
ex = exps(3); w1 = rbw(1); w2 = rbw(2)
e(pv(3, 2, 0)); e('\n'.join(ex[0:3])); e(pv(3, 2, 1))
e('\n'.join([w1[0]] + ex[3:5] + [w1[1]] + ex[5:7] + [w1[2]] + ex[7:9] + [w1[3]] + ex[9:10]))
e(pv(3, 3, 0))
e('\n'.join([w2[0]] + ex[10:12] + [w2[1]] + ex[12:14] + [w2[2]] + ex[14:16] + [w2[3]]))
arrive(9)
e(pv(3, 3, 1))
stamp(10)
lwait(9)
for i in range(12): e(f'ds_read_b128 {vr(VS + 4*i, 4)}, v{vRr} offset:{1024*i}')
OA = VO + 48
for s in range(3):
    e(f's_waitcnt lgkmcnt({8 - 4*s})')
    for i in range(8): e(f'v_pk_add_f32 {vr(OA+2*i,2)}, {vr(OA+2*i,2)}, {vr(VS+16*s+2*i,2)}')
e(f's_mov_b32 s{sIt}, {1 if OPT["force_fb"] else 0}')
e(f'''L_norm:
v_cndmask_b32 v{vA}, v{OA+12}, v{OA}, s[{sOdd}:{sOdd+1}]
v_max3_f32 v{vC}, abs(v{OA}), abs(v{OA+1}), abs(v{OA+2})
v_mov_b32 v{vB}, v{vA}
v_max3_f32 v{vC}, abs(v{OA+3}), abs(v{OA+4}), v{vC}
v_max3_f32 v{vC}, abs(v{OA+5}), abs(v{OA+6}), v{vC}
v_permlane32_swap_b32 v{vA}, v{vB}
v_max3_f32 v{vC}, abs(v{OA+7}), abs(v{OA+8}), v{vC}
v_cndmask_b32 v{vB}, v{vB}, v{vA}, s[{sOdd}:{sOdd+1}]
v_max3_f32 v{vC}, abs(v{OA+9}), abs(v{OA+10}), v{vC}
v_rcp_f32 v{vA}, v{vB}
v_max3_f32 v{vC}, abs(v{OA+11}), abs(v{OA+12}), v{vC}
v_max3_f32 v{vC}, abs(v{OA+13}), abs(v{OA+14}), v{vC}
v_max_f32 v{vC}, abs(v{OA+15}), v{vC}
v_cmp_nle_f32 vcc, 0x30800000, v{vB}
s_mov_b64 s[78:79], vcc
v_cmp_nge_f32 vcc, 0x4e800000, v{vB}
s_or_b64 s[78:79], s[78:79], vcc
v_cmp_ngt_f32 vcc, 0x7f000000, v{vC}
s_or_b64 vcc, s[78:79], vcc''')
if OPT['force_fb']:
    e(f's_cmp_eq_u32 s{sIt}, 1\ns_cbranch_scc1 L_fb')
e('s_cbranch_vccnz L_fb0\nL_norm2:')
for i in range(8): e(f'v_pk_mul_f32 {vr(OA+2*i,2)}, {vr(OA+2*i,2)}, {vr(vA,2)} op_sel_hi:[1,0]')
for i in range(8): e(f'v_cvt_pk_bf16_f32 v{VS+i}, v{OA+2*i}, v{OA+2*i+1}')
if OM: poll(vFl, first_issued=2, reg=31)
o_stores(VS, VS + 4, '')
stamp(11)
if OM == 4: publish(sFo, vA)
if OPT['obar'] == 1: e('s_barrier')
if OPT['obar'] >= 3: e(f"s_waitcnt vmcnt({5 - OPT['obar'] + (OM == 4)})\ns_barrier")
if OM == 0:
    e('s_waitcnt vmcnt(0)'); publish(sFo, vA)
if OPT['obar'] == 2: e('s_barrier')
stamp(12)
prof_out()
e('s_endpgm')

for tag, st in SPIN:
    e(f'L_ws_{tag}:'); lwait(st); e(f's_branch L_wb_{tag}')
sec('fb')
e(f'''L_fb0:
s_cmp_eq_u32 s{sIt}, 2
s_cbranch_scc1 L_norm2
L_fb:
s_waitcnt vmcnt(0)
s_mul_i32 s{sTmp}, s{S_O0}, {KS}
s_add_u32 s{sK}, s{sTmp}, {WS_K}
s_add_u32 s{sV}, s{sTmp}, {WS_V}
v_mov_b32 v{vC}, 0xff800000
s_mov_b32 s{sIt}, 0
L_fb1:''')
e('\n'.join(kv_loads(0, 0, SRD_WS)[:2]))
e('s_waitcnt vmcnt(0)')
e(qk(0, 3, 0)); e(qk(0, 3, 1)); e('s_nop 11')
for i in range(8): e(f'v_max3_f32 v{vC}, v{VS+48+2*i}, v{VS+49+2*i}, v{vC}')
e(f'''s_add_u32 s{sK}, s{sK}, 512
s_add_u32 s{sIt}, s{sIt}, 1
s_cmp_lg_u32 s{sIt}, 64
s_cbranch_scc1 L_fb1
v_mov_b32 v{vA}, v{vC}
s_sub_u32 s{sK}, s{sK}, 0x8000
s_mov_b32 s{sIt}, 0
v_permlane32_swap_b32 v{vA}, v{vC}
v_max_f32 v{vC}, v{vA}, v{vC}''')
for i in range(8): e(f'v_mov_b64 {vr(OA+2*i,2)}, 0')
e('L_fb2:')
e('\n'.join(kv_loads(0, 0, SRD_WS)))
e('s_waitcnt vmcnt(0)')
e(qk(0, 3, 0)); e(qk(0, 3, 1)); e('s_nop 11')
for i in range(16): e(f'v_sub_f32 v{VS+48+i}, v{VS+48+i}, v{vC}')
for i in range(16): e(f'v_exp_f32 v{VS+48+i}, v{VS+48+i}')
e('s_nop 1')
e(pv(0, 3, 0)); e(pv(0, 3, 1))
e(f'''s_add_u32 s{sK}, s{sK}, 512
s_add_u32 s{sV}, s{sV}, 256
s_add_u32 s{sIt}, s{sIt}, 1
s_cmp_lg_u32 s{sIt}, 64
s_cbranch_scc1 L_fb2
s_mov_b32 s{sIt}, 2
s_nop 11
s_branch L_norm''')

sD0, sD, sHw, sDs, sTab, sA, sB, sLd, sSk, sIt2, sFlU, sInv, sUns, sSel, sUl, sOl, sCh0 = range(60, 77)
sUs, sOut, sHm = 78, 80, 82
sE2, sP, sE3, sKd, sCo = 84, 85, 86, 87, 77
OUTM = ('', 'sc1', '', 'sc1', 'nt', 'sc0 sc1')[OPT['outsc']]
OUTM2 = ('', '', 'sc1', 'sc1', 'nt', 'sc0 sc1')[OPT['outsc']]
a0, a1, a2, a3 = 5, 6, 7, 9
vPar = 10
vKc = 18
vRa, vRb_, vKd, vKd1, vKa, vKa0, vFu, vE1, vE1b, vFr, vKxo, vKxp, vPair, vRz, vBk, vA0, vA1, vKb, vSB, vSB0 = range(20, 40)
vSel = 180
vAc = 40
vOne, vScl, vAdd, vC0 = range(56, 60)
vOp = 64
vY = 128
vXt = 144
vAn = 166
vX1 = 172
T0, T1 = 160, 176
vZ = 192
U = 204
vZer = 220
vUa, vCd, vG_, vZp, vKp, vF_, vL16, vXo, vXp, vTr, vYl, vYs, vFy, vYw = range(224, 238)
vWoD = 238
vWoR = 240
vOl, vFo, vBw, vBr, vOut = range(242, 247)
def hi():
    if OPT['prio']: e('s_setprio 3')
KG = [True]
def lo():
    if OPT['prio']: e(f"s_setprio {OPT['kgp'] if KG[0] else OPT['ps']}")
ROLE[0] = 1
sec('ssm0')
PFA = f'''s_mul_i32 s{sLd}, s{S_HG}, 7
s_add_u32 s{sLd}, s{sLd}, s{S_C}                   ; slab 0..13
s_mul_i32 s{sSk}, s{S_TILE}, 14
s_add_u32 s{sSk}, s{sSk}, s{sLd}                   ; 0..223
s_cmp_eq_u32 s{S_W}, 1
s_cbranch_scc1 L_pf1
s_cmp_eq_u32 s{S_W}, 2
s_cbranch_scc1 L_pf2
s_mul_i32 s{sB}, s{sSk}, 64
s_mul_hi_u32 s{sB}, s{sB}, {(2**32 + 6)//7}
s_cmp_eq_u32 s{S_W}, 0
s_cselect_b32 s{sInv}, 43, 64
s_cselect_b32 s{sLd}, 6, 4
s_cselect_b32 s{sUns}, {60 if OPT['pfm'] & 1 else 0}, {40 if OPT['pfm'] & 8 else 0}
v_mul_u32_u24 v6, s{sInv}, v{V_LANE}
v_lshrrev_b32 v6, 8, v6
v_mul_u32_u24 v7, s{sLd}, v6
v_sub_u32 v7, v7, v{V_LANE}
v_add_u32 v6, s{sB}, v6
v_mul_u32_u24 v6, 7, v6
v_add3_u32 v8, v6, v7, 6
s_mov_b32 s{SRD_A+2}, {2048*896}
s_branch L_pf3
L_pf1:
s_mul_i32 s{sB}, s{S_TILE}, 20
s_add_u32 s{sB}, s{sB}, 128
v_add_u32 v6, s{sB}, v{V_LANE}
v_mul_u32_u24 v6, 21, v6
v_add3_u32 v8, v6, s{sLd}, 7
s_mov_b32 s{sUns}, {20 if OPT['pfm'] & 2 else 0}
s_mov_b32 s{SRD_A+2}, {448*2688}
s_branch L_pf3
L_pf2:
v_mul_u32_u24 v6, 37, v{V_LANE}
v_lshrrev_b32 v6, 8, v6
v_mul_u32_u24 v6, 14, v6
s_mul_i32 s{sB}, s{sSk}, 42
v_add3_u32 v8, v6, v{V_LANE}, s{sB}
s_mov_b32 s{sUns}, {14 if OPT['pfm'] & 4 else 0}
s_mov_b32 s{SRD_A+2}, {448*2688}
L_pf3:
v_lshlrev_b32 v8, 7, v8
v_cmp_gt_u32 vcc, s{sUns}, v{V_LANE}
s_mov_b32 s{SRD_A+3}, 0x20000
v_bfrev_b32 v6, 1
v_cndmask_b32 v8, v6, v8, vcc
''' if OPT['pfm'] else ''
e(f"""s_cmp_{'eq' if OPT['only'] != 2 else 'le'}_u32 s{S_C}, 7
s_cbranch_scc1 L_ssm_idle
s_lshr_b32 s{sDs}, s{S_W}, 1
s_lshl_b32 s{sD0}, s{S_I}, 1
s_add_u32 s{sD}, s{sD0}, s{sDs}
s_mul_i32 s{sTab}, s{S_W}, {TABSZ}
s_add_u32 s{sTab}, s{sTab}, {L_TAB}
s_lshl1_add_u32 s{sA}, s{sD0}, s{S_W}
s_lshl_b32 s{sA}, s{sA}, 8
v_lshl_add_u32 v{a0}, v{V_LANE}, 2, s{sA}
s_mov_b32 m0, s{sTab}
{PFA}s_lshl_b32 s{sB}, s{sD0}, 1
s_waitcnt lgkmcnt(0)
s_load_dword s{sLd}, s[14:15], s{sB}
s_load_dword s{sSk}, s[16:17], s{sB}
global_load_dword v{vPar+0}, v{a0}, s[6:7]
global_load_dword v{vPar+1}, v{a0}, s[8:9]
global_load_dword v{vPar+2}, v{a0}, s[10:11]
global_load_dword v{vPar+3}, v{a0}, s[12:13]
global_load_dword v{vPar+4}, v{V_T}, s[28:29]""")
if OPT['pfm']:
    e(f'''s_cmp_eq_u32 s{S_W}, 0
    s_cselect_b64 s[{SRD_A}:{SRD_A+1}], s[18:19], s[20:21]
    s_cmp_eq_u32 s{S_W}, 3
    s_cselect_b64 s[{SRD_A}:{SRD_A+1}], s[4:5], s[{SRD_A}:{SRD_A+1}]''')
    PFL = f'buffer_load_dword v{vPar+5}, v8, {sr(SRD_A)}, 0 offen'
    if not OPT['pfl']: e(PFL)
if OPT['tlb'] != 2: e('s_barrier')
if OPT['tlb']:
    e(f'''v_and_b32 v{a0}, 7, v{V_LANE}
    v_min_u32 v{a0}, 5, v{a0}
    v_lshlrev_b32 v{a0}, 21, v{a0}
    v_add_u32 v{a0}, 0xf8000, v{a0}
    v_mov_b32 v{a1}, 0
    global_load_dword v8, v{a0}, s[28:29]
    global_load_dword v8, v{a1}, s[22:23]''')
if OPT['tlb'] == 2: e('s_barrier')
if OPT['ord'] < 4: e('s_branch L_ssm')
sec('ssm')
e('L_ssm:')
if OPT['abl'] == 1:
    arrive(1); e('s_waitcnt vmcnt(0) lgkmcnt(0)\ns_endpgm')
lo()
srd(SRD_WS, 28, WS_SIZE)
e(f"""s_and_b32 s{sHw}, s{S_W}, 1
v_add_u32 v{V_GRP}, 16, v{V_GRP}
v_and_b32 v{a0}, 15, v{V_LANE}
v_lshrrev_b32 v{a1}, 4, v{V_LANE}
v_lshl_add_u32 v{vRb_}, v{a1}, 4, s{sTab}
v_mul_u32_u24 v{a2}, {TROW}, v{a0}
v_add_u32 v{vRa}, v{a2}, v{vRb_}
v_lshlrev_b32 v{vL16}, 4, v{V_LANE}
v_mov_b32 v{vOne}, 0x3c00
ds_write_addtid_b32 v{vOne}""")
for i in range(8): e(f'v_mov_b64 {vr(vAc+2*i,2)}, 0')
mid = f"""v_and_b32 v{a0}, 7, v{V_LANE}
s_and_b32 s{sB}, s2, {OPT['ur'] - 1}
s_lshl2_add_u32 s{sB}, s{sB}, s{S_W}
s_mul_i32 s{sB}, s{sB}, {8*US}
s_add_u32 s{sB}, s{sB}, {F_U}
v_mul_u32_u24 v{vFu}, {US}, v{a0}
v_add_u32 v{vFu}, s{sB}, v{vFu}
s_mul_i32 s{sP}, s{sDs}, {P_SZ}
s_add_u32 s{sP}, s{sP}, {L_TAB}
s_add_u32 s{sKd}, s{sP}, {P_KD}
s_lshl_b32 s{sB}, s{sHw}, 8
s_add_u32 s{sInv}, s{sB}, s{sKd}
s_add_u32 s{sA}, s{sInv}, {1088 + 128}
v_lshl_add_u32 v{vRz}, v{a0}, 4, s{sA}
v_mov_b32 v{vKb}, s{sKd}
v_and_b32 v{a0}, 15, v{V_LANE}
v_lshrrev_b32 v{a1}, 4, v{V_LANE}
s_lshl_b32 s{sA}, s{sHw}, 4
v_add_u32 v{a0}, s{sA}, v{a0}
v_and_b32 v{a3}, 1, v{V_LANE}
v_mul_u32_u24 v{a2}, 255, v{a3}
v_sub_u32 v{a2}, v{a2}, v{a0}
s_add_u32 s{sA}, s{sKd}, {1088 + 32}
v_add_u32 v{vKa}, s{sA}, v{a2}
v_add_u32 v{vKa0}, 96, v{vKa}
s_lshl3_add_u32 s{sA}, s{sDs}, 16
v_lshl_add_u32 v{vPair}, v{a3}, 2, s{sA}
s_mul_i32 s{sA}, s{sHw}, {1088 + 112 - 1024}
s_add_u32 s{sA}, s{sA}, s{sKd}
s_add_u32 s{sA}, s{sA}, 1024
v_writelane_b32 v{vKa0}, s{sA}, 0
s_mul_i32 s{sA}, s{sHw}, 56
s_sub_u32 s{sA}, s{sKd}, s{sA}
s_add_u32 s{sA}, s{sA}, 1088
v_writelane_b32 v{vKa0}, s{sA}, 16
v_max_u32 v{a2}, 1, v{a1}
v_sub_u32 v{a2}, 5, v{a2}
v_lshlrev_b32 v{a0}, v{a2}, v{a0}
v_lshlrev_b32 v{a2}, 3, v{a1}
s_mov_b32 s{sA}, 0x60400100
v_bfe_u32 v{a1}, s{sA}, v{a2}, 8
v_lshl_add_u32 v{a0}, v{a1}, 3, v{a0}
v_add_u32 v{vKd}, s{sKd}, v{a0}
s_mov_b32 s{sA}, 0x80040404
v_bfe_u32 v{a1}, s{sA}, v{a2}, 8
v_add_u32 v{vKd1}, v{a1}, v{vKd}
v_lshrrev_b32 v{a1}, 1, v{V_LANE}
v_lshlrev_b32 v{vUa}, 6, v{a1}
v_lshl_add_u32 v{vUa}, v{a3}, 4, v{vUa}
s_lshr_b32 s{sA}, s{sD0}, 2
s_mul_i32 s{sA}, s{sA}, {QS}
s_and_b32 s{sB}, s{sD0}, 3
s_lshl4_add_u32 s{sA}, s{sB}, s{sA}
s_lshl_b32 s{sB}, s{S_W}, 12
s_add_u32 s{sA}, s{sA}, s{sB}
s_add_u32 s{sUl}, s{sA}, {WS_U}
v_and_b32 v{a1}, 3, v{a1}
v_lshl_add_u32 v{a1}, v{a3}, 2, v{a1}
v_mul_u32_u24 v{a1}, {PS}, v{a1}
v_lshrrev_b32 v{a2}, 3, v{V_LANE}
v_lshl_add_u32 v{a1}, v{a2}, 4, v{a1}
s_lshl_b32 s{sA}, s{S_W}, 8
s_add_u32 s{sA}, s{sA}, {L_KP + 512}
v_add_u32 v{vKp}, s{sA}, v{a1}
; byte selectors that expand the distinct taps to the lags (lag l uses the tap at bf16(l), as in the reference)
v_lshrrev_b32 v{a1}, 5, v{V_LANE}
s_lshl_b32 s{sA}, s{sHw}, 1
v_max_u32 v{a0}, s{sA}, v{a1}
v_min_u32 v{a2}, 1, v{a0}
v_mul_u32_u24 v{a2}, 0x0202, v{a2}
v_lshlrev_b32 v{a2}, 16, v{a2}
v_sub_u32 v{vSel}, 0x03020100, v{a2}
v_mul_u32_u24 v{a2}, 0x0202, v{a0}
v_lshl_or_b32 v{a2}, v{a2}, 16, v{a2}
v_sub_u32 v{vSel+1}, 0x07060504, v{a2}
s_mul_i32 s{sA}, s{sHw}, 0x02020202
v_add_u32 v{vSel+2}, s{sA}, v{vSel}
s_mul_i32 s{sA}, s{sHw}, 0x02020404
v_add_u32 v{vSel+3}, s{sA}, v{vSel+1}
v_lshrrev_b32 v{a2}, v{a0}, v{vL16}
s_movk_i32 s{sA}, 256
v_lshl_add_u32 v{a2}, s{sA}, v{a0}, v{a2}
s_sub_u32 s{sA}, s{sKd}, 256
v_add_u32 v{vE1}, s{sA}, v{a2}
v_lshlrev_b32 v{a2}, 2, v{a0}
v_sub_u32 v{vE1b}, v{vE1}, v{a2}
s_mov_b32 s{sA}, 0x0c0c0c0c
s_cmp_lg_u32 s{sHw}, 0
s_cselect_b32 s{sE2}, 0x01000100, s{sA}
s_cselect_b32 s{sE3}, 0x05040302, s{sA}
v_mov_b32 v{vSel+4}, s{sA}
v_mov_b32 v{vSel+5}, s{sA}
v_mov_b32 v{vSel+6}, s{sA}
v_mov_b32 v{vSel+7}, s{sA}
s_mov_b32 s{sA}, 0x05040504
s_mov_b64 exec, 15
v_mov_b32 v{vSel+4}, s{sA}
v_mov_b32 v{vSel+5}, s{sA}
v_mov_b32 v{vSel+6}, s{sA}
s_mov_b64 exec, -1
v_writelane_b32 v{vSel+7}, s{sA}, 3
s_mov_b32 s{sA}, 0x05040302
v_writelane_b32 v{vSel+4}, s{sA}, 3
s_mov_b32 s{sA}, 0x0c0c0504
v_writelane_b32 v{vSel+6}, s{sA}, 0
v_writelane_b32 v{vSel+7}, s{sA}, 2
s_mul_i32 s{sA}, s{S_W}, {2*PS}
s_add_u32 s{sA}, s{sA}, {L_KP}
v_mul_u32_u24 v{a2}, {PS - 512}, v{a1}
v_add3_u32 v{vG_}, v{a2}, v{vL16}, s{sA}
v_mov_b64 {vr(vZer,2)}, 0
v_mov_b64 {vr(vZer+2,2)}, 0
ds_write_b128 v{vG_}, {vr(vZer,4)}
s_lshl_b32 s{sA}, s{sHw}, 10
s_add_u32 s{sB}, s{sP}, {P_UC}
s_add_u32 s{sA}, s{sA}, s{sB}
s_add_u32 s{sA}, s{sA}, 64
v_add_u32 v{vCd}, s{sA}, v{vL16}
v_and_b32 v{a3}, 3, v{V_LANE}
v_and_b32 v{a0}, 0x1c, v{V_LANE}
v_lshlrev_b32 v{a2}, 2, v{a0}
v_and_b32 v{vZp}, 0x30, v{a2}
s_mov_b32 exec_hi, 0
v_add_u32 v{vZp}, 2112, v{a2}
s_mov_b64 exec, -1
v_mul_u32_u24 v{a2}, {UC_S}, v{a3}
v_add3_u32 v{vZp}, v{vZp}, v{a2}, s{sB}
v_lshlrev_b32 v{a0}, 1, v{a0}
v_sub_u32 v{a0}, v{a0}, v{a2}
v_lshlrev_b32 v{a1}, 4, v{a1}
v_sub_u32 v{a0}, v{a0}, v{a1}
s_lshl_b32 s{sA}, s{sHw}, 5
s_sub_u32 s{sB}, s{sB}, s{sA}
s_add_u32 s{sB}, s{sB}, {56 + 3*UC_S}
v_add_u32 v{vF_}, s{sB}, v{a0}
v_add_u32 v{vG_}, {512 - 80}, v{vG_}
v_add_u32 v{vKxo}, s{sTab}, v{vL16}
s_xor_b32 s{sA}, s{S_W}, 1
s_mul_i32 s{sA}, s{sA}, {TABSZ}
s_add_u32 s{sA}, s{sA}, {L_TAB}
v_add_u32 v{vKxp}, s{sA}, v{vL16}
v_and_b32 v{a0}, 31, v{V_LANE}
v_lshlrev_b32 v{a2}, 2, v{a0}
v_sub_u32 v{a2}, v{a1}, v{a2}
s_add_u32 s{sA}, s{sInv}, {1088 + 124}
v_add_u32 v{vBk}, s{sA}, v{a2}
"""
def prewrite():
    e(f'''s_sub_u32 s{sA}, 3, s{S_HG}
    v_lshrrev_b32 v{a0}, s{sA}, v{V_LANE}
    v_lshlrev_b32 v{a1}, s{sA}, v{a0}
    v_sub_u32 v{a1}, v{V_LANE}, v{a1}
    s_lshr_b32 s{sA}, s{S_KS}, s{S_HG}
    v_mul_u32_u24 v{a0}, s{sA}, v{a0}
    v_lshl_add_u32 v{a0}, v{a1}, 6, v{a0}
    s_lshl2_add_u32 s{sA}, s{S_TILE}, s{S_W}
    s_lshl_b32 s{sA}, s{sA}, 9
    s_lshr_b32 s{sA}, s{sA}, s{S_HG}
    s_mul_i32 s{sB}, s{S_HG}, {WS_V - WS_K}
    s_add_u32 s{sA}, s{sA}, s{sB}
    s_mul_i32 s{sB}, s{S_C}, {8*KS}
    s_add_u32 s{sA}, s{sA}, s{sB}
    s_add_u32 s{sA}, s{sA}, {WS_K}''')
    hi(); e(f'buffer_store_dword v{a0}, v{a0}, {sr(SRD_WS)}, s{sA} offen sc1'); lo()
if OPT['pw'] == 1: prewrite()
if OPT['pfl'] and OPT['pfm']:
    ml = mid.split('\n'); k = OPT['pfl']
    while 'exec' in ''.join(ml[k-4:k+1]): k += 1
    mid = '\n'.join(ml[:k] + ['s_setprio 3', PFL, f"s_setprio {OPT['kgp']}"] + ml[k:])
e(mid)
if OPT['pw'] == 2: prewrite()
stamp(22)
e(f"""s_waitcnt lgkmcnt(0)
s_lshl_b32 s{sA}, s{sDs}, 4
s_lshr_b32 s{sLd}, s{sLd}, s{sA}
s_lshl_b32 s{sLd}, s{sLd}, 16
s_lshr_b32 s{sSk}, s{sSk}, s{sA}
s_lshl_b32 s{sSk}, s{sSk}, 16
v_mov_b32 v{a0}, s{sLd}
v_mul_f32 v{a0}, 0x3fb8aa3b, v{a0}
v_exp_f32 v{a0}, v{a0}
s_cmp_eq_u32 s{sHw}, 0
s_cselect_b32 s{sSk}, s{sSk}, 0
v_cvt_pk_bf16_f32 v{a0}, v{a0}, v{a0}
v_and_b32 v{vScl}, 0xffff0000, v{a0}
v_mul_f32 v{vKc}, 0xbfb8aa3b, v{vScl}
v_mul_f32 v{vKc+1}, 0.15915494, v{vScl}
v_mov_b32 v{vAdd}, 0
v_add_f32 v{vScl}, v{vScl}, v{vScl}
v_writelane_b32 v{vAdd}, s{sSk}, 0
s_mov_b32 s{sIt2}, 0
s_mov_b32 s{sSel}, 0x01000c0c""")
stamp(0)
e(f"""s_waitcnt vmcnt({(3 if OPT['tlb'] else 1) + (OPT['pw'] in (1, 2)) + (OPT['pfm'] > 0)})
v_and_b32 v{a0}, 0x7f807f80, v{vPar+2}
v_and_b32 v{a1}, 0x7f807f80, v{vPar+3}
v_pk_max_u16 v{a0}, v{a0}, v{a1}
v_lshlrev_b32 v{a1}, 16, v{a0}
v_max_u32 v{a0}, v{a0}, v{a1}""")
for q, n in enumerate((1, 2, 4, 8)):
    e(f's_nop 1\nv_max_u32_dpp v{a0}, v{a0}, v{a0} row_ror:{n} row_mask:0xf bank_mask:0xf')
e(f"""s_nop 0
v_readlane_b32 s{sA}, v{a0}, 0
v_readlane_b32 s{sB}, v{a0}, 16
v_readlane_b32 s{sInv}, v{a0}, 32
v_readlane_b32 s{sUns}, v{a0}, 48
s_max_u32 s{sA}, s{sA}, s{sB}
s_max_u32 s{sUns}, s{sUns}, s{sInv}
s_max_u32 s{sUns}, s{sUns}, s{sA}
s_and_b32 s{sUns}, s{sUns}, 0x7f800000
s_min_u32 s{sUns}, s{sUns}, 0x7e800000
s_sub_u32 s{sInv}, 0x7f000000, s{sUns}
v_mul_f32 v{vScl}, s{sUns}, v{vScl}
v_mul_f32 v{vSB}, 0x43000000, v{vScl}
v_mov_b32 v{vSB0}, v{vSB}
s_mov_b64 exec, 1
v_mov_b32 v{vSB0}, v{vScl}
s_mov_b64 exec, -1""")
stamp(1)
if OPT['abl'] == 2: e('s_endpgm')
def cm(jobs, conj):
    ng = 'neg_hi:[1,0,0]' if conj else 'neg_lo:[1,0,0]'
    return [f'v_pk_mul_f16 v{d}, v{x}, v{w} op_sel_hi:[1,0]' for d, x, w in jobs] + \
           [f'v_pk_fma_f16 v{d}, v{x}, v{w}, v{d} op_sel:[1,1,0] op_sel_hi:[0,1,1] {ng}' for d, x, w in jobs]
def wr(reg): return f'ds_write_addtid_b32 v{reg} offset:{TROW*(reg - vY)}'
assert vXt == vY + 16
zA, zB, tA, tB, pA, pB = vZ, vZ+2, vZ+4, vZ+6, vZ+8, vZ+10
X = vXt; Y = vY
an = {1: vAn, 2: vAn+1, 4: vAn+2, 8: Y+1, 16: Y+2, 32: Y+4, 64: Y+8, 128: X+21, 256: vAn+3, 512: vAn+4, 1024: vAn+5}
e('L_kg:')
stamp(14)
seq = f"""v_perm_b32 v{pA}, v{vPar}, v{vPar}, s{sSel}
v_mul_f32 v{pA}, 0x3fb8aa3b, v{pA}
v_exp_f32 v{pA}, v{pA}
v_perm_b32 v{pA+1}, v{vPar+1}, v{vPar+1}, s{sSel}
v_perm_b32 v{tA}, v{vPar+2}, v{vPar+2}, s{sSel}
v_perm_b32 v{tA+1}, v{vPar+3}, v{vPar+3}, s{sSel}
v_cvt_pk_bf16_f32 v{pA}, v{pA}, v{pA}
v_mul_f32 v{tA}, s{sInv}, v{tA}
v_and_b32 v{pA}, 0xffff0000, v{pA}
v_mul_f32 v{tA+1}, s{sInv}, v{tA+1}
v_pk_mul_f32 {vr(pA,2)}, {vr(pA,2)}, {vr(vKc,2)}
v_cvt_pk_f16_f32 v{X}, v{tA}, -v{tA+1}
v_mul_f32 v{pB}, 0x42800000, v{pA}
v_mul_f32 v{pB+1}, 0x42800000, v{pA+1}
v_exp_f32 v{pA}, v{pA}
v_fract_f32 v{pA+1}, v{pA+1}
v_exp_f32 v{pB}, v{pB}
v_fract_f32 v{pB+1}, v{pB+1}
v_cos_f32 v{zA}, v{pA+1}
v_sin_f32 v{zA+1}, v{pA+1}
v_cos_f32 v{zB}, v{pB+1}
v_sin_f32 v{zB+1}, v{pB+1}
v_pk_mul_f32 {vr(zA,2)}, {vr(zA,2)}, {vr(pA,2)} op_sel_hi:[1,0]
v_pk_mul_f32 {vr(zB,2)}, {vr(zB,2)}, {vr(pB,2)} op_sel_hi:[1,0]""".split('\n')
for st in range(6):
    chains = [(zA, tA, an[1 << st], st < 5)] + ([(zB, tB, an[64 << st], st < 4)] if st < 5 else [])
    for z, t, d, sq in chains:
        if sq: seq.append(f'v_pk_mul_f32 {vr(t,2)}, {vr(z,2)}, {vr(z,2)} op_sel_hi:[0,1]')
    for z, t, d, sq in chains: seq.append(f'v_cvt_pk_f16_f32 v{d}, v{z}, v{z+1}')
    for z, t, d, sq in chains:
        if sq: seq.append(f'v_pk_fma_f32 {vr(z,2)}, {vr(z,2)}, {vr(z,2)}, {vr(t,2)} op_sel:[1,1,0] op_sel_hi:[0,1,1] neg_lo:[1,0,0]')
seq += cm([(X+1, X, an[1]), (X+2, X, an[2]), (X+4, X, an[4]), (X+8, X, an[256]), (X+12, X, an[512]), (X+16, X, an[1024])], True)
seq += cm([(Y+3, Y+1, Y+2), (Y+12, Y+4, Y+8), (Y+5, Y+4, Y+1), (Y+6, Y+4, Y+2), (Y+9, Y+8, Y+1), (Y+10, Y+8, Y+2)], False)
seq += cm([(X+3, X+1, an[2]), (X+5, X+1, an[4]), (X+6, X+2, an[4]), (X+9, X+2, an[256]), (X+10, X+4, an[256]), (X+13, X+4, an[512]),
           (X+14, X+8, an[512]), (X+17, X+8, an[1024]), (X+18, X+12, an[1024]), (X+20, X+16, an[1024])], True)
seq += cm([(Y+7, Y+4, Y+3), (Y+11, Y+8, Y+3), (Y+13, Y+12, Y+1), (Y+14, Y+12, Y+2), (Y+15, Y+12, Y+3)], False)
seq += cm([(X+7, X+3, an[4]), (X+11, X+6, an[256]), (X+15, X+10, an[512]), (X+19, X+14, an[1024])], True)
e('\n'.join(seq))
stamp(15)
if OPT['kgw']:
    e(f'v_subrev_u32 v{a0}, 16, v{V_GRP}'); lwait(OPT['kgw'], addr=a0)
hi()
if OPT['abl'] != 4: e('\n'.join(wr(r) for r in range(Y + 1, X + 22)))
for k in range(4):
    o = vOp + 16*k
    e(f"""ds_read_b128 {vr(o,4)}, v{vRa} offset:{64*k}
    ds_read_b128 {vr(o+4,4)}, v{vRb_} offset:{37*TROW + 64*k}
    ds_read_b128 {vr(o+8,4)}, v{vRa} offset:{16*TROW + 64*k}
    ds_read_b128 {vr(o+12,4)}, v{vRa} offset:{32*TROW + 64*k}""")
if not OPT['uw']: e(f's_cmp_eq_u32 s{sIt2}, 0\ns_cbranch_scc1 L_kg_n\nbuffer_load_dword v{vFr}, v{vFu}, {sr(SRD_WS)}, 0 offen sc1\nL_kg_n:')
stamp(16)
def mf(c, a, b): return f'v_mfma_f32_16x16x32_f16 {vr(c,4)}, {vr(a,4)}, {vr(b,4)}, {vr(c,4)}'
late_m = []
for k in range(4):
    o = vOp + 16*k; y1 = vX1 + 4*(k & 1)
    p = cm([(y1+r, o+r, o+4+r) for r in range(4)], False)
    e(f's_waitcnt lgkmcnt({12 - 4*k})')
    e('\n'.join([mf(vAc, o+8, o)] + p[0:2] + late_m[:1] + p[2:4] + [mf(vAc+4, o+12, o)] + p[4:6] + late_m[1:] + p[6:8]))
    late_m = [mf(vAc+8, o+8, y1), mf(vAc+12, o+12, y1)]
e(f"""s_add_u32 s{sSel}, s{sSel}, 0x02020000
s_add_u32 s{sIt2}, s{sIt2}, 1
s_cmp_lg_u32 s{sIt2}, 2""")
e('\n'.join(late_m))
lo()
if OPT['pw'] == 3:
    e('s_cbranch_scc0 L_kg_e'); prewrite(); e('s_branch L_kg\nL_kg_e:')
else: e('s_cbranch_scc1 L_kg')
stamp(17)
if OPT['abl'] in (4, 8): e('s_endpgm')
def scl(i): return vSB0 if i == 4 else (vSB if i & 4 else vScl)
for i in range(8): e(f'v_mul_f32 v{vAc+i}, v{scl(i)}, v{vAc+i}')
e(f's_cmp_eq_u32 s{sHw}, 0')
for i in range(8, 16): e(f'v_mul_f32 v{vAc+i}, v{scl(i)}, v{vAc+i}')
e('s_cbranch_scc1 L_kx')
for i in range(8): e(f'v_swap_b32 v{vAc+i}, v{vAc+8+i}')
e(f"""L_kx:
ds_write_b128 v{vKxo}, {vr(vAc+8,4)}
s_mov_b32 exec_hi, 0
ds_write_b128 v{vKxo}, {vr(vAc+12,4)} offset:1024
s_mov_b64 exec, -1
s_waitcnt vmcnt({1 if OPT['pw'] else 0})
v_readfirstlane_b32 s{S_NONCE}, v{vPar+4}""")
arrive(2)
e(f's_add_u32 s{S_NONCE}, s{S_NONCE}, 1')
e(f'v_add_f32 v{vAc}, v{vAdd}, v{vAc}')
stamp(18)
def bprio():
    if OPT['prio']: e(f"s_setprio {OPT['bp']}")
def u_look():
    hi(); e(f'buffer_load_dword v{vFr}, v{vFu}, {sr(SRD_WS)}, 0 offen sc1'); bprio()
def u_fetch():
    hi()
    stamp(20)
    poll(vFu, first_issued=True, reg=vFr, sleep=OPT['usleep'])
    stamp(21)
    for k in range(2):
        e(f'buffer_load_dwordx4 {vr(U+4*k,4)}, v{vUa}, {sr(SRD_WS)}, s{sUl} offen offset:{2048*k} sc1')
    bprio()
if OPT['uw'] <= -2: u_look()
else: bprio()
stamp(19)
lwait(2, addr=vPair)
e(f"""ds_read_b128 {vr(vAc+8,4)}, v{vKxp}
ds_read_b128 {vr(vAc+12,4)}, v{vKxp} offset:1024
ds_write_b128 v{vRz}, {vr(vZer,4)}
s_mov_b32 s{sIt2}, 4
s_waitcnt lgkmcnt(1)""")
for i in range(4): e(f'v_pk_add_f32 {vr(vAc+2*i,2)}, {vr(vAc+2*i,2)}, {vr(vAc+8+2*i,2)}')
for i in range(4): e(f'v_cvt_pk_bf16_f32 v{vAc+8+i}, v{vAc+2*i}, v{vAc+2*i+1}')
e(f"""ds_write_b32 v{vKd}, v{vAc+8}
ds_write_b32 v{vKd1}, v{vAc+9}
s_mov_b64 exec, 0x1ffff
ds_write_b16 v{vKa0}, v{vAc+10}
s_mov_b64 exec, 0xffff
ds_write_b16_d16_hi v{vKa}, v{vAc+10} offset:64
ds_write_b16 v{vKa}, v{vAc+11} offset:32
ds_write_b16_d16_hi v{vKa}, v{vAc+11}
s_mov_b64 exec, -1""")
if OPT['pw']: e('s_waitcnt vmcnt(0)')
arrive(3)
if OPT['uw'] == -1: u_look()
if OPT['uw'] == -2: u_fetch()
def u_try():
    hi()
    e(f's_waitcnt vmcnt(0)\nv_cmp_ne_u32 vcc, s{S_NONCE}, v{vFr}\ns_mov_b64 s[88:89], vcc\ns_cbranch_vccnz L_utry')
    for k in range(2):
        e(f'buffer_load_dwordx4 {vr(U+4*k,4)}, v{vUa}, {sr(SRD_WS)}, s{sUl} offen offset:{2048*k} sc1')
    e(f's_branch L_utry2\nL_utry:\nbuffer_load_dword v{vFr}, v{vFu}, {sr(SRD_WS)}, 0 offen sc1\nL_utry2:')
    bprio()
if OPT['uw'] == -4: u_try()
lwait(3, addr=vPair)
if OPT['uw'] == -3: u_try()
stamp(2)
E = 64; BF = 40
e(f"""ds_read2_b32 {vr(E,2)}, v{vE1} offset1:1
ds_read2_b32 {vr(E+2,2)}, v{vE1b} offset0:2 offset1:3
ds_read2_b32 {vr(E+4,2)}, v{vKb} offset0:191 offset1:192
ds_read_b32 v{E+6}, v{vKb} offset:1020
ds_read_b32 v{E+7}, v{vKb} offset:1024""")
for q in range(8): e(f'ds_read2_b32 {vr(BF+2*q,2)}, v{vBk} offset0:{8*(q>>1) + 2*(q&1)} offset1:{8*(q>>1) + 2*(q&1) + 1}')
b = E + 12; t = E + 16
e(f"""s_waitcnt lgkmcnt(10)
v_perm_b32 v{b+2}, v{E+2}, v{E+2}, v{vSel+2}
v_perm_b32 v{b+3}, v{E+3}, v{E+2}, v{vSel+3}
v_perm_b32 v{b-2}, v{E+5}, v{E+4}, s{sE2}
v_perm_b32 v{b-1}, v{E+5}, v{E+4}, s{sE3}
v_perm_b32 v{b}, v{E}, v{E}, v{vSel}
v_perm_b32 v{b+1}, v{E+1}, v{E}, v{vSel+1}
v_mov_b32_dpp v{b-2}, v{b+2} wave_shr:1 row_mask:0xf bank_mask:0xf
v_mov_b32_dpp v{b-1}, v{b+3} wave_shr:1 row_mask:0xf bank_mask:0xf
ds_write_b128 v{vCd}, {vr(b,4)}""")
for i in range(4): e(f'v_alignbit_b32 v{t+i}, v{b+i}, v{b+i-1}, 16')
e(f'ds_write_b128 v{vCd}, {vr(t,4)} offset:{UC_S}')
for i in range(4): e(f'v_mov_b32 v{t+4+i}, v{b+i-1}')
e(f'ds_write_b128 v{vCd}, {vr(t+4,4)} offset:{2*UC_S}')
for i in range(4): e(f'v_alignbit_b32 v{t+8+i}, v{b+i-1}, v{b+i-2}, 16')
e(f'ds_write_b128 v{vCd}, {vr(t+8,4)} offset:{3*UC_S}\ns_waitcnt lgkmcnt(12)')
for i in range(4): e(f'v_perm_b32 v{t+12+i}, v{E+7}, v{E+6}, v{vSel+4+i}')
e(f'ds_write_b128 v{vZp}, {vr(t+12,4)}')
if OPT['uw'] <= -3: e('s_cmp_eq_u64 s[88:89], 0\ns_cbranch_scc1 L_uhave')
if OPT['uw'] != -2: u_fetch()
e('L_uhave:')
stamp(3)
e(f'v_and_b32 v{a0}, 31, v{V_LANE}')
swap23(a1, a0, a2)
e(f"""v_lshrrev_b32 v{a2}, 5, v{V_LANE}
v_lshl_add_u32 v{a1}, v{a1}, 1, v{a2}
s_add_u32 s{sA}, s{sHw}, 123
v_add_u32 v{a1}, s{sA}, v{a1}
s_mul_i32 s{sA}, s{sDs}, {PD}
s_add_u32 s{sA}, s{sA}, {L_KP}
v_and_b32 v{a3}, 3, v{a1}
v_mul_u32_u24 v{a3}, {PS - 4}, v{a3}
v_lshl_add_u32 v{a3}, v{a1}, 2, v{a3}
v_add_u32 v{vA0}, s{sA}, v{a3}
v_add_u32 v{a1}, 2, v{a1}
v_and_b32 v{a3}, 3, v{a1}
v_mul_u32_u24 v{a3}, {PS - 4}, v{a3}
v_lshl_add_u32 v{a3}, v{a1}, 2, v{a3}
v_add_u32 v{vA1}, s{sA}, v{a3}
v_lshlrev_b32 v{a2}, 3, v{a2}
v_sub_u32 v{a2}, v{a2}, v{a0}
v_cvt_f32_i32 v{a2}, v{a2}
v_add_f32 v{a3}, -1.0, v{a2}
v_add_f32 v{a2}, -2.0, v{a2}
v_cvt_pk_f16_f32 v8, v{a3}, v{a2}
s_waitcnt vmcnt(1)
ds_write_b128 v{vKp}, {vr(U,4)}
s_waitcnt vmcnt(0)
ds_write_b128 v{vKp}, {vr(U+4,4)} offset:128""")
arrive(4)
AP, BD, DP = 112, 136, 192
band = [f's_mov_b32 s{sA}, 0x4a204a20', f's_cmp_eq_u32 s{sHw}, 0', f's_cselect_b32 s{sE2}, 0x4d104d10, s{sA}', f's_mov_b32 s{sE3}, 0x4d804d80']
for q in range(12):
    band.append(f'v_pk_fma_f16 v{BD+q}, v8, v8, s{sE2} neg_lo:[1,0,0] neg_hi:[1,0,0] clamp')
    if q < 11: band.append(f'v_pk_add_f16 v8, v8, s{sE3}' if q % 4 == 3 else 'v_pk_add_f16 v8, v8, -2.0 op_sel_hi:[1,0]')
e('\n'.join(band))
lwait(4)
KG[0] = False
lo()
stamp(4)
if OPT['abl'] == 16: e('s_endpgm')
CB = 64
def cv_reads(k):
    b = CB + 12 * (k & 3)
    return [f'ds_read_b64 {vr(b,2)}, v{vF_} offset:{64*k}', f'ds_read_b64 {vr(b+2,2)}, v{vF_} offset:{64*k + 8}',
            f'ds_read_b128 {vr(b+8,4)}, v{vG_} offset:{512 + 80 - 16*k}', f'ds_read_b128 {vr(b+4,4)}, v{vG_} offset:{80 - 16*k}']
for tau in range(2):
    for kp in range(3): e(f'ds_read_b128 {vr(AP + 12*tau + 4*kp, 4)}, v{(vA0, vA1)[kp & 1]} offset:{256*tau + 16*(kp >> 1)}')
e('\n'.join(cv_reads(0) + cv_reads(1)))
assert OM == 3
late = f"""s_mov_b64 s[{SRD_B}:{SRD_B+1}], s[22:23]
s_mov_b32 s{SRD_B+2}, {448*896}
s_mov_b32 s{SRD_B+3}, 0x20000
s_mov_b64 s[{SRD_C}:{SRD_C+1}], s[24:25]
s_mov_b32 s{SRD_C+2}, {2048*1792}
s_mov_b32 s{SRD_C+3}, 0x20000
v_lshrrev_b32 v{a1}, 3, v{V_LANE}
v_and_b32 v{a2}, 7, v{V_LANE}
v_and_b32 v{a0}, 0x70, v{vL16}
v_mul_u32_u24 v{vYl}, {YS}, v{a1}
v_add_u32 v{vYl}, v{vYl}, v{a0}
v_lshlrev_b32 v{a3}, 2, v{V_LANE}
v_and_b32 v{a3}, 64, v{a3}
v_xor_b32 v{a0}, v{a0}, v{a3}
v_mul_u32_u24 v{vWoD}, 896, v{a1}
v_xor_b32 v{a3}, v{a1}, v{a2}
v_lshlrev_b32 v{a3}, 4, v{a3}
v_lshl_add_u32 v{vOut}, v{vWoD}, 1, v{a3}
v_add_u32 v{vWoD}, v{a0}, v{vWoD}
v_add_u32 v{vWoD+1}, {7168-1024}, v{vWoD}
v_lshrrev_b32 v{a0}, 4, v{V_LANE}
v_bfe_u32 v{a1}, v{V_LANE}, 2, 2
v_lshl_or_b32 v{a3}, v{a0}, 3, v{a1}
v_lshlrev_b32 v{a3}, 7, v{a3}
v_lshrrev_b32 v{a1}, 1, v{a1}
v_lshl_add_u32 v{a3}, v{a1}, 6, v{a3}
v_and_b32 v{a1}, 0x30, v{vL16}
s_movk_i32 s{sA}, {L_WO}
v_add3_u32 v{vWoR}, v{a1}, v{a3}, s{sA}
v_xor_b32 v{vWoR+1}, 64, v{vWoR}
v_and_b32 v{a1}, 15, v{V_LANE}
v_lshlrev_b32 v{vOl}, 4, v{a1}
v_mad_u32_u24 v{vOl}, v{a0}, s{S_KS}, v{vOl}
s_mul_i32 s{sOl}, s{S_I}, 9363
s_lshr_b32 s{sOl}, s{sOl}, 16
s_mul_i32 s{sA}, s{sOl}, 7
s_sub_u32 s{sCo}, s{S_I}, s{sA}
s_lshl2_add_u32 s{sOl}, s{sOl}, s{S_W}
s_lshl_b32 s{sFlU}, s{sHw}, 9
s_add_u32 s{sFlU}, s{sFlU}, s{sD}
s_lshl_b32 s{sFlU}, s{sFlU}, {FSH}
s_add_u32 s{sFlU}, s{sFlU}, {F_Y}
s_lshl_b32 s{sA}, s{sCo}, {1 + FSH}
s_sub_u32 s{sA}, s{sFlU}, s{sA}
v_min_u32 v{vFo}, 6, v{a1}
v_lshl_add_u32 v{vFo}, v{vFo}, {1 + FSH}, s{sA}
s_lshl_b32 s{sA}, s{S_W}, 11
s_add_u32 s{sA}, s{sA}, {L_SSM}
v_xor_b32 v{a3}, v{a0}, v{a2}
v_lshl_add_u32 v{a3}, v{a3}, 4, s{sA}
v_lshl_add_u32 v{vBw}, v{a1}, 7, v{a3}
v_add_u32 v{vBr}, s{sA}, v{vL16}
s_mul_i32 s{sOut}, s{sOl}, {16*1792}
s_lshl_b32 s{sA}, s{sCo}, 7
s_add_u32 s{sOut}, s{sOut}, s{sA}
s_add_u32 s{sOut}, s{sOut}, 896
s_add_u32 s{sOut+1}, s{sOut}, {8*1792}
s_lshl_b32 s{sOl}, s{sOl}, 8
s_add_u32 s{sOl}, s{sOl}, {WS_O}
s_lshl2_add_u32 s{sCh0}, s{S_C}, s{S_W}
s_lshl_b32 s{sCh0}, s{sCh0}, 4
s_lshr_b32 s{sA}, s{S_J}, 4
s_lshl_b32 s{sA}, s{sA}, 9
s_add_u32 s{sA}, s{sA}, s{sCh0}
s_lshl_b32 s{sA}, s{sA}, {FSH}
s_add_u32 s{sA}, s{sA}, {F_Y}
v_lshl_add_u32 v{vFy}, v{a1}, {FSH}, s{sA}
s_mov_b32 exec_lo, 0
v_mov_b32 v{vFy}, v{vFo}
s_mov_b64 exec, -1
v_lshrrev_b32 v{a1}, 3, v{V_LANE}
v_and_b32 v{a3}, 3, v{V_LANE}
v_lshl_or_b32 v{vYw}, v{a1}, 2, v{a3}
v_xor_b32 v{a3}, s{S_W}, v{a3}
v_lshl_or_b32 v{vYw}, v{vYw}, 2, v{a3}
v_bfe_u32 v{a3}, v{V_LANE}, 2, 1
v_lshl_or_b32 v{vYw}, v{vYw}, 1, v{a3}
v_lshlrev_b32 v{vYw}, 4, v{vYw}
v_and_b32 v{a3}, 4, v{a1}
v_add_u32 v{a3}, v{a3}, v{a1}
v_mul_u32_u24 v{vYs}, 1792, v{a3}
v_and_b32 v{a1}, 3, v{a1}
v_lshlrev_b32 v{a1}, 1, v{a1}
v_xor_b32 v{a1}, v{a1}, v{a2}
v_lshl_add_u32 v{vYs}, v{a1}, 4, v{vYs}
s_lshl_b32 s{sA}, s{sHw}, 12
s_add_u32 s{sB}, s{sP}, {P_X + 4096}
s_sub_u32 s{sB}, s{sB}, s{sA}
v_add_u32 v{vXp}, s{sB}, v{vL16}
s_add_u32 s{sA}, s{sA}, s{sP}
s_add_u32 s{sA}, s{sA}, {P_X}
v_add_u32 v{vXo}, s{sA}, v{vL16}
v_lshl_add_u32 v{vRb_}, v{a0}, 4, s{sA}
v_bfe_u32 v{a0}, v{V_LANE}, 2, 2
v_and_b32 v{a3}, 1, v{V_LANE}
v_lshl_or_b32 v{a2}, v{a3}, 3, v{a0}
v_lshl_add_u32 v{vTr}, v{a2}, 7, v{vRb_}
v_and_b32 v{a2}, 2, v{V_LANE}
v_lshl_add_u32 v{vTr}, v{a2}, 2, v{vTr}""".split('\n')
def fill(n):
    while 'exec_lo' in ''.join(late[max(0, n-2):n]): n += 1
    e('\n'.join(late[:n])); del late[:n]
fill(16)
e('s_waitcnt lgkmcnt(8)')
for kp in range(3):
    for tau in range(2):
        d = vr(DP + 16*tau, 16)
        e(f'v_mfma_f32_32x32x16_bf16 {d}, {vr(AP + 12*tau + 4*kp, 4)}, {vr(BD + 4*kp, 4)}, {"0" if kp == 0 else d}')
        fill(6)
def cv_iter(first):
    for k in range(4):
        b = CB + 12 * k
        rd = cv_reads(k + 2)
        z = first and k == 0
        e('s_waitcnt lgkmcnt(4)')
        e(f'v_mfma_f32_32x32x16_bf16 {vr(T1,16)}, {vr(b,4)}, {vr(b+8,4)}, {"0" if z else vr(T1,16)}')
        e('\n'.join(rd))
        if k == 3:
            e(f'v_add_u32 v{vF_}, 256, v{vF_}\nv_subrev_u32 v{vG_}, 64, v{vG_}')
            if not first: e(f's_add_u32 s{sIt2}, s{sIt2}, 1\ns_cmp_lg_u32 s{sIt2}, 11')
        e(f'v_mfma_f32_32x32x16_bf16 {vr(T0,16)}, {vr(b,4)}, {vr(b+4,4)}, {"0" if z else vr(T0,16)}')
        if first: fill(6 if k < 3 else 99)
cv_iter(True)
e('L_cv:')
cv_iter(False)
e('s_cbranch_scc1 L_cv')
cv = [f'v_cvt_pk_bf16_f32 v{AP+i}, v{DP+2*i}, v{DP+2*i+1}' for i in range(16)]
for k in range(2):
    e('\n'.join(cv[4*k:4*k+4]))
    e(f's_waitcnt lgkmcnt({4 - 4*k})')
    e(f'v_mfma_f32_32x32x16_bf16 {vr(T1,16)}, {vr(CB+12*k,4)}, {vr(CB+12*k+8,4)}, {vr(T1,16)}')
for q in range(4):
    e('\n'.join(cv[8+4*q:12+4*q]))
    e(f'v_mfma_f32_32x32x16_bf16 {vr(T1,16)}, {vr(AP+4*q,4)}, {vr(BF+4*q,4)}, {vr(T1,16)}')
if OPT['prio']: e(f"s_setprio {OPT['pr']}")
stamp(5)
if OPT['abl'] == 32: e('s_endpgm')
e(f"""s_mul_i32 s{sA}, s{sD}, {YS}
s_lshl_b32 s{sB}, s{sHw}, 11
s_add_u32 s{sA}, s{sA}, s{sB}
s_add_u32 s{sA}, s{sA}, {WS_Y}
s_nop 4""")
def xch(give, keep):
    for i in range(4): e(f'ds_write_b128 v{vXp}, {vr(give+4*i,4)} offset:{1024*i}')
    arrive(6); lwait(6, addr=vPair)
    for i in range(4): e(f'ds_read_b128 {vr(give+4*i,4)}, v{vXo} offset:{1024*i}')
    e('s_waitcnt lgkmcnt(0)')
e(f's_cmp_eq_u32 s{sHw}, 0\ns_cbranch_scc1 L_x0')
xch(T0, T1)
e('s_branch L_x1\nL_x0:')
xch(T1, T0)
e('L_x1:')
for i in range(8): e(f'v_pk_add_f32 {vr(T0+2*i,2)}, {vr(T0+2*i,2)}, {vr(T1+2*i,2)}')
for i in range(8): e(f'v_cvt_pk_bf16_f32 v{T1+i}, v{T0+2*i}, v{T0+2*i+1}')
e(f"""buffer_store_dwordx4 {vr(T1,4)}, v{vL16}, {sr(SRD_WS)}, s{sA} offen sc1
buffer_store_dwordx4 {vr(T1+4,4)}, v{vL16}, {sr(SRD_WS)}, s{sA} offen offset:1024 sc1
v_subrev_u32 v{a0}, 16, v{V_GRP}""")
if OM:
    e(f'''v_mov_b64 {vr(T0,2)}, -1
    v_mov_b64 {vr(T0+2,2)}, -1
    s_mul_i32 s{sA}, s{sCo}, {8*KS}
    s_add_u32 s{sA}, s{sA}, s{sOl}
    s_add_u32 s{sSk}, s{sA}, {4*KS}
    buffer_store_dwordx4 {vr(T0,4)}, v{vOl}, {sr(SRD_WS)}, s{sA} offen sc1
    buffer_store_dwordx4 {vr(T0,4)}, v{vOl}, {sr(SRD_WS)}, s{sSk} offen sc1''')
sync(7)
if OPT['only'] != 1: lwait(7, addr=a0)
e('s_waitcnt vmcnt(0)')
publish(sFlU, a0)
stamp(6)
if OPT['abl'] == 33: e('s_endpgm')
e(f"""s_mul_i32 s{sA}, s{S_W}, {16*896}
s_lshl_b32 s{sB}, s{sCo}, 7
s_add_u32 s{sA}, s{sA}, s{sB}
s_lshl_b32 s{sB}, s{S_W}, 11
s_add_u32 s{sB}, s{sB}, {L_WO}""")
for ch in range(7):
    e(f"""s_add_u32 m0, s{sB}, {8192*ch}
    s_add_u32 s{sSk}, s{sA}, {64*896*ch}
    buffer_load_dwordx4 v{vWoD}, {sr(SRD_B)}, s{sSk} offen lds
    buffer_load_dwordx4 v{vWoD+1}, {sr(SRD_B)}, s{sSk} offen offset:1024 lds
    s_waitcnt vmcnt({OPT['wodepth'] if ch < 6 else 0})""")
WF, OF, OC = 8, 168, 224
arrive(8)
e(f"""buffer_load_dword v{a0}, v{vFy}, {sr(SRD_WS)}, 0 offen sc1
s_mul_i32 s{sA}, s{sCh0}, {YS}
s_lshl_b32 s{sSk}, s{S_J}, 7
s_add_u32 s{sA}, s{sA}, s{sSk}
s_add_u32 s{sA}, s{sA}, {WS_Y}
s_add_u32 s{sSk}, s{sA}, {8*YS}""")
lwait(8)
stamp(7)
if OPT['abl'] == 34: e('s_endpgm')
def wo_reads(k):
    r = []
    for t in range(4):
        for hf in range(2):
            r.append(f'ds_read_b64_tr_b16 {vr(WF + 16*(k%10) + 4*t + 2*hf, 2)}, v{vWoR + (t>>1)} offset:{4096*k + 512*hf + 8*(t&1)}')
    return r
for k in range(10): e('\n'.join(wo_reads(k)))
arrive(9)
poll(vFy, first_issued=True, sleep=OPT['ysleep'], reg=a0)
stamp(8)
if OPT['abl'] == 35: e('s_endpgm')
e(f"""buffer_load_dwordx4 {vr(OF,4)}, v{vYl}, {sr(SRD_WS)}, s{sA} offen sc1
buffer_load_dwordx4 {vr(OF+4,4)}, v{vYl}, {sr(SRD_WS)}, s{sSk} offen sc1
s_lshr_b32 s{sA}, s{S_J}, 4
s_lshl_b32 s{sA}, s{sA}, 10
s_and_b32 s{sB}, s{S_J}, 3
s_lshl_b32 s{sB}, s{sB}, 8
s_add_u32 s{sA}, s{sA}, s{sB}
s_and_b32 s{sB}, s{S_J}, 8
s_lshl1_add_u32 s{sA}, s{sB}, s{sA}
s_and_b32 s{sB}, s{S_J}, 4
s_add_u32 s{sA}, s{sA}, s{sB}
s_lshl_b32 s{sB}, s{S_W}, 6
s_add_u32 s{sA}, s{sA}, s{sB}
s_mul_i32 s{sA}, s{sA}, 1792
s_lshl_b32 s{sB}, s{S_C}, 7
s_add_u32 s{sA}, s{sA}, s{sB}
s_add_u32 s{sB}, s{sA}, {32*1792}
v_xor_b32 v{a0}, 64, v{vBw}""")
lwait(9)
e(f"""s_waitcnt vmcnt(0)
ds_write_b128 v{vXo}, {vr(OF,4)}
ds_write_b128 v{vXo}, {vr(OF+4,4)} offset:1024""")
for z in range(2):
    for hf in range(2):
        e(f'ds_read_b64_tr_b16 {vr(OF + 8 + 4*z + 2*hf, 2)}, v{vTr} offset:{64*z + 512*hf}')
e(f"""s_waitcnt lgkmcnt(0)
ds_write_b128 v{vYw}, {vr(OF+8,4)} offset:{L_SSM}
ds_write_b128 v{vYw}, {vr(OF+12,4)} offset:{L_SSM + 4096}""")
sync(10)
e(f"""ds_read_b128 {vr(OF+8,4)}, v{vBr}
ds_read_b128 {vr(OF+12,4)}, v{vBr} offset:1024
s_waitcnt lgkmcnt(0)
buffer_store_dwordx4 {vr(OF+8,4)}, v{vYs}, {sr(SRD_C)}, s{sA} offen {OUTM}
buffer_store_dwordx4 {vr(OF+12,4)}, v{vYs}, {sr(SRD_C)}, s{sB} offen {OUTM}""")
if OPT['only'] == 1:
    stamp(9); stamp(13); prof_out(); e('s_endpgm')
if OM == 4:
    e(f'''s_lshl2_add_u32 s{sA}, s{S_J}, s{S_W}
    s_lshr_b32 s{sA}, s{sA}, 1
    s_lshl_b32 s{sA}, s{sA}, {4 + FSH}
    s_add_u32 s{sA}, s{sA}, {F_O}
    v_and_b32 v{vFo}, 15, v{V_LANE}
    v_lshl_add_u32 v{vFo}, v{vFo}, {FSH}, s{sA}''')
sOk, sLast = 4, 18
for k in range(14): e(f's_add_u32 s{sOk+k}, s{sOl}, {4*KS*k}')
if OPT['touch'] and OPT['tsa']: e('s_mov_b64 exec, 0\ns_branch L_qad0\nL_qad_ret:\ns_mov_b64 exec, -1')
e(f's_min_u32 s{S_BOUND}, s{S_BOUND}, 0x4000')
stamp(9)
e('L_obar:')
e('s_barrier        ; released once the four attention waves have stored their rows')
stamp(10)
if OPT['osleep']: e(f"s_sleep {OPT['osleep']}")
if OM != 3: poll(vFo, sleep=OPT['hsleep'])
stamp(11)
def o_load(k): return f'buffer_load_dwordx4 {vr(OF+4*k,4)}, v{vOl}, {sr(SRD_WS)}, s{sOk+k} offen sc1'
OD = OPT['od']
def o_chk(k):
    o = OF + 4*k
    return [f's_waitcnt vmcnt({min(OD - 1, 13 - k)})', f'v_max3_u32 v6, v{o}, v{o+1}, v{o+2}', f'v_max_u32 v6, v6, v{o+3}', 'v_cmp_eq_u32 vcc, -1, v6']
for k in range(OD): e(o_load(k))
e('\n'.join(o_chk(0)))
for k in range(14):
    o = OF + 4*k
    m = [f'v_mfma_f32_16x16x32_bf16 {vr(OC+4*t,4)}, {vr(WF + 16*(k%10) + 4*t, 4)}, {vr(o,4)}, {"0" if k == 0 else vr(OC+4*t,4)}' for t in range(4)]
    rd = wo_reads(10 + (k - 1) // 2)[4*((k - 1) & 1):][:4] if 1 <= k <= 8 else []
    if k == 10: e('s_waitcnt lgkmcnt(0)')
    e(f's_cbranch_vccnz L_or{k}\nL_og{k}:')
    c = o_chk(k + 1) if k < 13 else ['', '', '', '']
    ld = [o_load(k + OD)] if k + OD < 14 else []
    e('\n'.join(ld + [m[0]] + rd[:2] + [m[1]] + rd[2:] + [c[0], c[1], m[2], c[2], c[3], m[3]]))
stamp(12)
e('s_nop 4')
for i in range(8): e(f'v_cvt_pk_bf16_f32 v{16+i}, v{OC+2*i}, v{OC+2*i+1}')
e(f"""ds_write_b128 v{vBw}, {vr(16,4)}
ds_write_b128 v{a0}, {vr(20,4)}
ds_read_b128 {vr(24,4)}, v{vBr}
ds_read_b128 {vr(28,4)}, v{vBr} offset:1024
s_or_b32 s{sA}, s2, s{S_W}
s_waitcnt lgkmcnt(1)
buffer_store_dwordx4 {vr(24,4)}, v{vOut}, {sr(SRD_C)}, s{sOut} offen {OUTM2}
s_waitcnt lgkmcnt(0)
buffer_store_dwordx4 {vr(28,4)}, v{vOut}, {sr(SRD_C)}, s{sOut+1} offen {OUTM2}
s_cbranch_scc1 L_noepoch""")
publish(sA, 6)
e('L_noepoch:')
if OPT['prof']:
    e('s_waitcnt vmcnt(0)')
stamp(13)
prof_out()
e('L_end:\ns_endpgm')
for k in range(14):
    c = o_chk(k)
    n = min(14, k + OD); w = min(n, k + OPT['sw'])
    e(f'''L_or{k}:
    {chr(10).join(o_load(q) for q in range(w, n))}
    L_oc{k}:
    {chr(10).join(o_load(q) for q in range(k, w))}
    s_sub_u32 s{S_BOUND}, s{S_BOUND}, 1
    s_cselect_b32 s{S_BOUND}, 0, s{S_BOUND}
    s_waitcnt vmcnt(0)
    s_cbranch_scc1 L_og{k}
    {c[1]}
    {c[2]}
    {c[3]}
    s_cbranch_vccnz L_oc{k}
    s_branch L_og{k}''')
sec('idle')
ROLE[0] = 2
e('L_ssm_idle:')
if OPT['only'] == 2:
    arrive(1); e('s_endpgm')
hi()
e(f"""v_lshrrev_b32 v10, 3, v{V_LANE}
v_and_b32 v11, 7, v{V_LANE}
v_lshlrev_b32 v11, 4, v11
v_mul_u32_u24 v5, 896, v10
v_add_u32 v5, v5, v11
v_add_u32 v6, {7168-1024}, v5
s_lshl2_add_u32 s60, s{S_J}, s{S_W}
s_mul_i32 s61, s60, {16*896}
s_mul_i32 s62, s{S_W}, 14336
s_add_u32 s62, s62, {L_SSM}
s_mov_b32 s{SRD_A+2}, {2048*896}
s_mov_b32 s{SRD_A+3}, 0x20000
s_waitcnt lgkmcnt(0)
s_load_dword s{S_NONCE}, s[28:29], 0
s_mov_b64 s[{SRD_A}:{SRD_A+1}], s[4:5]""")
for c in range(7):
    e(f"""s_add_u32 m0, s62, {2048*c - 128*c}
    s_nop 0
    buffer_load_dwordx4 v5, {sr(SRD_A)}, s61 offen offset:{128*c} lds
    buffer_load_dwordx4 v6, {sr(SRD_A)}, s61 offen offset:{1024 + 128*c} lds""")
    if c == 1:
        srd(SRD_WS, 28, WS_SIZE)
        e(f"""; transposing read: row = 8*(cc&1)+r', byte = 8*(2G+(cc>>1))
        v_mul_u32_u24 v7, {QS}, v10
        v_add_u32 v7, v7, v11
        v_bfe_u32 v8, v{V_LANE}, 2, 2
        v_and_b32 v9, 1, v{V_LANE}
        v_lshl_or_b32 v8, v9, 3, v8
        v_xor_b32 v8, 3, v8
        v_lshl_add_u32 v8, v8, 7, s62
        v_and_b32 v9, 0x30, v{V_LANE}
        v_add_u32 v8, v8, v9
        v_and_b32 v9, 2, v{V_LANE}
        v_lshl_add_u32 v8, v9, 2, v8
        s_lshl_b32 s63, s60, 7
        s_add_u32 s63, s63, {WS_U}
        s_mul_i32 s65, s{S_J}, {US}
        v_mov_b32 v12, 0x3f803f80
        v_mov_b32 v13, v12
        v_mov_b64 v[14:15], v[12:13]
        v_lshlrev_b32 v9, 4, v{V_LANE}
        s_lshl2_add_u32 s66, s{S_TILE}, s{S_W}
        s_lshl_b32 s66, s66, 8
        s_mul_i32 s67, s{S_HG}, {QS}
        s_add_u32 s66, s66, s67
        s_add_u32 s66, s66, {WS_V + 112*QS}
        s_add_u32 s65, s65, {F_U}""")
e('s_waitcnt lgkmcnt(0)')
TW = 0
if OPT['fwm'] & 1:
    TW = 1
    e(f'''v_mov_b32 v{V_T}, s{S_NONCE}
    v_lshlrev_b32 v5, 2, v{V_LANE}
    s_mov_b32 exec_hi, 0
    buffer_store_dword v{V_T}, v5, {sr(SRD_WS)}, s65 offen sc1
    s_mov_b64 exec, -1''')
e(f's_add_u32 s{S_NONCE}, s{S_NONCE}, 1')
arrive(1)
def t_rd(c):
    return [f'ds_read_b64_tr_b16 {vr(16 + 8*c + 4*z + 2*hf, 2)}, v8 offset:{2048*c + 64*z + 512*(1-hf)}' for z in range(2) for hf in range(2)]
e(f's_waitcnt vmcnt({12 + TW})'); stamp(1); e('\n'.join(t_rd(0)))
for c in range(7):
    if c < 6:
        e(f's_waitcnt vmcnt({10 + TW})'); e('\n'.join(t_rd(c + 1)))
    e(f"""s_add_u32 s64, s63, {8*QS}
    s_waitcnt lgkmcnt({4 if c < 6 else 0})
    buffer_store_dwordx4 {vr(16+8*c,4)}, v7, {sr(SRD_WS)}, s63 offen sc1
    buffer_store_dwordx4 {vr(20+8*c,4)}, v7, {sr(SRD_WS)}, s64 offen sc1
    s_add_u32 s63, s63, {16*QS}""")
assert OPT['ur'] == 1
e(f'''; the column quad of ones that gives the softmax row sums
s_mov_b64 exec, 0xffff
buffer_store_dwordx4 v[12:15], v9, {sr(SRD_WS)}, s66 offen sc1''')
stamp(2)
e(f'''s_mov_b64 exec, 1
v_mov_b32 v5, s{S_NONCE}
s_cmp_lg_u32 s{S_W}, 0
s_waitcnt vmcnt(0)
s_barrier
s_cbranch_scc1 L_idle_end
buffer_store_dword v5, v9, {sr(SRD_WS)}, s65 offen sc1''')
e('L_idle_end:\ns_mov_b64 exec, -1'); stamp(4)
if OPT['wop']:
    e(f'''s_mov_b64 s[{SRD_A}:{SRD_A+1}], s[22:23]
    s_mov_b32 s{SRD_A+2}, {448*896}
    s_mul_i32 s60, s60, {25*128}
    v_lshlrev_b32 v5, 7, v{V_LANE}
    s_mov_b64 exec, 0x1ffffff
    buffer_load_dword v6, v5, {sr(SRD_A)}, s60 offen
    s_mov_b64 exec, -1''')
prof_out()
e('s_endpgm')
def ilen(l):
    l = l.split(';')[0].strip()
    if not l or l.endswith(':'): return 0
    op = l.split()[0]
    if op.startswith(('buffer_', 'global_', 'ds_', 'v_mfma', 'v_smfmac', 'v_pk_', 's_load', 'v_cvt_pk', 'v_lshl_', 'v_perm', 'v_bfe', 'v_max3', 'v_align')): return 8
    return 8 if '0x' in l else 4
pads = []; qads = []
if OPT['touch']:
    for n in ('mha', 'ssm'):
        new = []; acc = OPT['touch'] if n == 'mha' else -OPT['touch']; loop = None; late_ = False
        for l in SEC[n]:
            t = l.strip()
            def pad():
                if late_ and OPT['tsa']:
                    qads.append(len(qads)); new.extend([f'L_qad{qads[-1]}:', f'    s_cbranch_execz L_qxt{qads[-1]}'])
                else:
                    pads.append(len(pads)); new.extend([f'L_pad{pads[-1]}:', f'    s_cbranch_execz L_nxt{pads[-1]}'])
            if t in ('L_att:', 'L_cv:'): pad(); acc = 0
            if t in ('L_att:', 'L_cv:'): loop = t[:-1]
            if acc >= OPT['touch'] and (loop is None or acc >= 1200) and not t.endswith(':') and 'exec' not in ''.join(new[-4:]).replace('execz', ''):
                pad(); acc = 0
            if loop and t == f's_cbranch_scc1 {loop}': loop = None
            if t in ('L_gemm_v:', 'L_gemm_done:'): acc = OPT['touch']
            if t == 'L_obar:': late_ = True; acc = OPT['touch'] // 2
            new.append(l); acc += ilen(l)
        SEC[n] = new
sec('idle')
e('L_tmha:')
if pads:
    e(f's_and_b32 s{sTmp}, s{S_J}, 3\ns_lshl2_add_u32 s{sTmp}, s{sTmp}, s{S_W}\ns_mov_b64 exec, 0')
    for i in range(min(16, len(pads))):
        e(f's_cmp_eq_u32 s{sTmp}, {i}\ns_cbranch_scc1 L_pad{i}')
    e('L_pad_ret:\ns_mov_b64 exec, -1')
e('s_branch L_gemm_t')
fix = {f'L_nxt{i}': (f'L_pad{i+16}' if i + 16 < len(pads) else 'L_pad_ret') for i in pads}
fix.update({f'L_qxt{i}': (f'L_qad{i+1}' if i + 1 < len(qads) else 'L_qad_ret') for i in qads})
for n in SEC:
    SEC[n] = [(l.rsplit(' ', 1)[0] + ' ' + fix[l.rsplit(' ', 1)[1]]) if 'L_nxt' in l or 'L_qxt' in l else l for l in SEC[n]]
print('pads', len(pads), len(qads), file=sys.stderr)
ORDER = [['pro', 'ssm0', 'mha0', 'idle', 'ssm', 'mha'], ['pro', 'ssm0', 'mha0', 'mha', 'ssm', 'idle'],
         ['pro', 'ssm0', 'mha0', 'ssm', 'mha', 'idle'], ['pro', 'ssm0', 'idle', 'mha0', 'mha', 'ssm'],
         ['pro', 'ssm0', 'ssm', 'mha0', 'mha', 'idle'], ['pro', 'ssm0', 'ssm', 'idle', 'mha0', 'mha']][OPT['ord']] + ['cold', 'gt', 'fb']
SEC.setdefault('cold', [])
def add_nt(n, pred):
    SEC[n] = [(l.replace(' lds', ' nt lds') if l.endswith(' lds') else l + ' nt') if pred(l) else l for l in SEC[n]]
for n in ('mha0', 'mha', 'gt'):
    if OPT['nt'] & 1: add_nt(n, lambda l: l.endswith(' lds') and sr(SRD_A) in l)
    if OPT['nt'] & 2: add_nt(n, lambda l: l.endswith(' lds') and sr(SRD_B) in l)
if OPT['nt'] & 4: add_nt('idle', lambda l: l.endswith(' lds'))
if OPT['nt'] & 8: add_nt('ssm0', lambda l: 'global_load' in l)
if OPT['nt'] & 16: add_nt('ssm', lambda l: l.endswith(' lds'))
if OPT['nt'] & 32: add_nt('ssm', lambda l: 'buffer_store' in l and sr(SRD_C) in l)
BODY = sum((SEC[n] for n in ORDER), [])
def sizes(lines):
    import subprocess, re, os, tempfile
    d = tempfile.mkdtemp()
    open(d + '/a.s', 'w').write('.amdgcn_target "amdgcn-amd-amdhsa--gfx950"\n.text\n' + '\n'.join(lines) + '\n')
    subprocess.check_call(['clang', '-x', 'assembler', '-target', 'amdgcn-amd-amdhsa', '-mcpu=gfx950', '-c', d + '/a.s', '-o', d + '/a.o'])
    o = subprocess.check_output(['llvm-objdump', '-d', '--mcpu=gfx950', d + '/a.o']).decode()
    return [4 * len(m.group(1).split()) for m in re.finditer(r'// [0-9A-F]{12}: ((?:[0-9A-F]{8} ?)+)', o)]
def is_ins(l):
    t = l.split(';')[0].strip()
    return bool(t) and not t.endswith(':')
def widen(l):
    import re
    t = l.split(';')[0].strip(); op = t.split()[0]
    if op.startswith('v_') and not op.startswith(('v_readfirstlane', 'v_swap', 'v_permlane', 'v_nop')):
        return l.replace(op, op + '_e64', 1)
    return None
PGL = [l for b, l in ((1, 'L_mha:'), (2, 'L_gemm_v:'), (4, 'L_att:'), (8, 'L_ssm_idle:'), (16, 'L_ssm:'), (32, 'L_mha1:')) if OPT['pgm'] & b]
if OPT['al']:
    sz = iter(sizes(BODY))
    I = [[l, next(sz) if is_ins(l) else 0] for l in BODY]
    res = []; addr = 0; nw = nn = 0
    for i, (l, n) in enumerate(I):
        if l in PGL: addr = 0
        if n == 8 and addr % 8 == 4:
            run = 0
            for l2, n2 in I[i:]:
                if n2 == 4: break
                run += n2 == 8
            cross = sum(1 for k in range(run) if (addr + 8*k) % 32 == 28)
            if cross:
                j = len(res) - 1; done = False; aj = addr
                while j >= 0 and res[j][1] in (0, 4):
                    aj -= res[j][1]
                    t = res[j][0].strip()
                    if t.startswith(('s_branch', 's_endpgm', 's_setpc')):
                        res.insert(j + 1, ['    s_nop 0', 4]); done = True; break
                    w = widen(res[j][0]) if res[j][1] == 4 and aj % 32 != 28 else None
                    if w:
                        res[j] = [w, 8]; done = True; nw += 1; break
                    j -= 1
                if not done and run >= OPT['alr']:
                    k = len(res)
                    while res[k-1][1] == 0: k -= 1
                    res.insert(k, ['    s_nop 0', 4]); done = True; nn += 1
                if done: addr += 4
        res.append([l, n]); addr += n
    BODY = [l for l, n in res]
    print('aligned: widened', nw, 'nops', nn, 'bytes', addr, file=sys.stderr)
PG = '' if OPT['pg'] < 0 else f".p2align 12\n.fill {OPT['pg'] * 64}, 4, 0xbf800000\n"
for l in PGL: BODY.insert(BODY.index(l), '.p2align 12')
hdr = open('header.txt').read()
txt = hdr + f'''; @launch grid=(256,1,1) block=(512,1,1) lds={L_TOT}
.amdgcn_target "amdgcn-amd-amdhsa--gfx950"
.text
.globl {KN}
{PG}.p2align 8
.type {KN},@function
{KN}:
''' + '\n'.join(BODY) + f'''
.section .rodata,"a"
.p2align 6
.amdhsa_kernel {KN}
  .amdhsa_next_free_vgpr 256
  .amdhsa_next_free_sgpr 102
  .amdhsa_accum_offset 256
  .amdhsa_group_segment_fixed_size 0
  .amdhsa_kernarg_size 104
  .amdhsa_user_sgpr_count 2
  .amdhsa_user_sgpr_kernarg_segment_ptr 1
  .amdhsa_system_sgpr_workgroup_id_x 1
.end_amdhsa_kernel
'''
open(sys.argv[1], 'w').write(txt)
```

```python
import sys, struct
def fl(x): return hex(struct.unpack('<I', struct.pack('<f', x))[0])

KN = 'concat_heads__ssm_conv_s4d__softmax_full_mha__prompt_kernel'
OPT = dict(pt=0, rdc=0, wop=0, wp=1, lp=0, unr=1, pfl=0, tsa=0, od=8, sw=3, nobatch=0, fwm=0, pg=13, pgm=32, pfm=7, rdr=0, pw=0, dm=0, rdf=0, rdv=0, rdt=0, only_st=0, ur=1, us=128, rd0=-1, rdm=0, probe=0, poff=0xc00000, nt=0, rdn=0, al=1, alr=6, fw=0, rsleep=0, hsleep=0, ord=2, nb=0, tb=13, tq=0, chkk=99, uw=-1, cw=0, s6=5, tskip=1, ones=1, pa=1, pr=2, pf=2, wgf=2, ax=0, bp=1, qa=7, n0=4, ilv=8, tlb=0, ulook=1, kgp=1, pad=0, ypad=0, omode=3, ksleep=0, usleep=4, obar=3, osleep=0, pubk=8, abl=0, touch=0, gs=0, kgw=0, xg=5, gx=0, pm=2, ps=0, rt=0, upub=1, kgx=0, outsc=3, ysleep=8, wodepth=2, wq_mid=0, pollk=99, rd=-1, rdrole=0, only=0, safe=0, rot=0, prof=0, fs=128, force_fb=0, wq_early=7, prio=1)
for a in sys.argv[2:]:
    k, v = a.split('=')
    assert k in OPT, k
    OPT[k] = int(v, 0)

FS = OPT['fs']
FSH = FS.bit_length() - 1
F_KV = 0x1000
F_O = F_KV + 1024 * FS
F_U = F_O + 1024 * FS
F_Y = F_U + 1024 * FS
F_H = F_Y + 1024 * FS
WS_K = 0x100000
WS_V = 0x300000
WS_O = 0x500000
WS_U = 0x700000
WS_Y = 0x900000
QS = 16384 + OPT['pad']; KS = 2 * QS; YS = 4096 + OPT['ypad']
S_KS = 57
WS_PROF = 0xb00000
F_U = 0xb80000 if OPT['us'] * OPT['ur'] > 4096 else F_U
US = OPT['us']
WS_SIZE = 0x1000000
L_SSM = 1024
L_W = 57344
L_RB = 65536
L_X = 114688
L_TOT = 163840
TROW = 288
TABSZ = 38 * TROW
L_TAB = L_SSM
P_SZ = 2 * TABSZ
P_UC = 1536
UC_S = 2240
P_KD = TABSZ + 1536
P_X = TABSZ
PS = 1552
PD = 4 * PS
L_KP = L_TAB + 4 * TABSZ
assert P_UC + 4 * UC_S <= TABSZ and P_KD + 1600 <= P_SZ and P_X + 8192 <= P_SZ and L_KP % 16 == 0 and L_KP + 2 * PD <= L_W
L_WO = L_SSM

S_WV, S_W, S_HG, S_C, S_TILE, S_J, S_H, S_NONCE, S_O0, S_I = range(30, 40)
SRD_WS, SRD_A, SRD_B, SRD_C = 40, 44, 48, 52
S_BOUND = 56
S_T0 = 58

SEC = {}
out = None
def sec(n):
    global out
    out = SEC.setdefault(n, [])
sec('pro')
def e(s):
    for l in s.split('\n'):
        l = l.strip()
        if l:
            out.append(l if l.endswith(':') else '    ' + l)
_lab = [0]
def lab(p):
    _lab[0] += 1
    return f'L_{p}_{_lab[0]}'
def vr(a, n):
    return f'v[{a}:{a+n-1}]' if n > 1 else f'v{a}'
def srd(d, b, n):
    e(f's_mov_b64 s[{d}:{d+1}], s[{b}:{b+1}]\ns_mov_b32 s{d+2}, {n}\ns_mov_b32 s{d+3}, 0x20000')
def sr(d): return f's[{d}:{d+3}]'

V_LANE, V_T, V_OWN, V_GRP, V_PROF = 0, 1, 2, 3, 4

ROLE = [0]
def stamp(i):
    if OPT['rd0'] == i and OPT['rdrole'] == ROLE[0]:
        e(f"s_mem{'' if OPT['rdc'] else 'real'}time s[98:99]\ns_waitcnt lgkmcnt(0)")
    if OPT['rd'] == i and OPT['rdrole'] == ROLE[0]:
        e(f"s_mem{'' if OPT['rdc'] else 'real'}time s[100:101]\ns_waitcnt lgkmcnt(0)")
    if (OPT['only_st'] >> (i + 32*min(ROLE[0], 1))) & 1 if OPT['only_st'] else OPT['prof'] > (i >= 14):
        e(f's_mem{"real" if OPT["rt"] else ""}time s[96:97]\ns_waitcnt lgkmcnt(0)\ns_sub_u32 s96, s96, s{98 if OPT["rt"] else S_T0}\nv_writelane_b32 v{V_PROF}, s96, {i}')
def prof_out():
    if OPT['rd'] >= 0 and OPT['rdrole'] == ROLE[0]:
        l = lab('pad')
        if ROLE[0] == 0 and not OPT['obar']: e('s_barrier')
        if ROLE[0] == 2: e('s_barrier')
        if OPT['rdr']:
            e(f'''s_lshl3_add_u32 s96, s2, s{S_WV}
            s_lshl_b32 s96, s96, 2
            s_add_u32 s96, s96, 0xb40000
            v_mov_b32 v6, 0
            buffer_load_dword v5, v6, {sr(SRD_WS)}, s96 offen sc1
            s_xor_b32 s97, s{S_NONCE}, 0x5a3c1e77
            v_mov_b32 v7, s97
            s_waitcnt vmcnt(0)
            buffer_store_dword v7, v6, {sr(SRD_WS)}, s96 offen sc1
            v_readfirstlane_b32 s96, v5
            s_xor_b32 s96, s96, 0x5a3c1e77
            s_add_u32 s96, s96, 1
            s_cmp_eq_u32 s96, s{S_NONCE}
            s_cbranch_scc{OPT['rdr'] - 1} L_end''')
        if OPT['rdf']: e(f"s_and_b32 s96, s2, {OPT['rdf']}\ns_cmp_lg_u32 s96, {OPT['rdv']}\ns_cbranch_scc1 L_end")
        if ROLE[0] == 0 and OPT['rdn']: e(f's_cmp_eq_u32 s{S_C}, 7\ns_cbranch_scc{2 - OPT["rdn"]} L_end')
        if OPT['rd'] == 98:
            e(f'''s_not_b32 s100, s100
            v_mov_b32 v5, s100
            v_mov_b32 v6, 0
            s_mov_b64 exec, 1
            global_atomic_umax v6, v5, s[26:27]
            s_waitcnt vmcnt(0)
            s_sleep 127
            s_sleep 127
            s_sleep 127
            s_sleep 127
            s_sleep 127
            global_load_dword v5, v6, s[26:27] sc1
            s_waitcnt vmcnt(0)
            v_readfirstlane_b32 s100, v5
            s_not_b32 s100, s100''')
        if OPT['probe']:
            op = {1: 'buffer_store_dwordx4 v[8:11], v5, s[52:55], s60 offen sc1', 2: 'buffer_load_dwordx4 v[8:11], v5, s[52:55], s60 offen sc1',
                  3: 'buffer_store_dwordx4 v[8:11], v5, s[52:55], s60 offen'}[OPT['probe'] & 3]
            if OPT['probe'] & 16: op = '\n'.join(op.replace('offen', f'offen offset:{1024*i}') for i in range(4))
            pre = 'buffer_load_dword v12, v6, s[52:55], s61 offen sc1\ns_waitcnt vmcnt(0)' if OPT['probe'] & 4 else ''
            if OPT['probe'] & 8: pre += '\nbuffer_store_dwordx4 v[8:11], v5, s[52:55], s60 offen sc1\ns_waitcnt vmcnt(0)\ns_sleep 40'
            e(f'''s_mov_b64 s[52:53], s[28:29]
            s_mov_b32 s54, 0x10000000
            s_mov_b32 s55, 0x20000
            L_prb:
            s_sleep 1
            s_memrealtime s[62:63]
            s_waitcnt lgkmcnt(0)
            s_sub_u32 s62, s62, s58
            s_cmp_lt_u32 s62, 3000
            s_cbranch_scc1 L_prb
            v_lshlrev_b32 v5, 4, v0
            v_mov_b32 v6, 0
            s_lshl2_add_u32 s60, s2, s{S_W}
            s_lshl_b32 s60, s60, {12 if OPT['probe'] & 16 else 10}
            s_add_u32 s60, s60, {OPT['poff']}
            s_mov_b32 s61, {OPT['poff'] + 0x180000}
            {pre}
            s_memrealtime s[62:63]
            s_waitcnt lgkmcnt(0)
            {op}
            s_waitcnt vmcnt(0)
            s_memrealtime s[100:101]
            s_waitcnt lgkmcnt(0)
            s_sub_u32 s100, s100, s62
            v_mov_b32 v8, s100
            s_lshl2_add_u32 s60, s2, s{S_W}
            s_lshl_b32 s60, s60, 2
            s_add_u32 s60, s60, {WS_PROF}
            buffer_store_dword v8, v6, s[52:55], s60 offen
            s_mul_i32 s100, s100, 20
            s_add_u32 s100, s100, s58''')
        elif OPT['rdm'] >= 3:
            key = {3: 's_and_b32 s96, s2, 7', 4: f's_mov_b32 s96, s{S_H}', 5: f's_mov_b32 s96, s{S_TILE}'}[OPT['rdm']]
            e(f'''s_sub_u32 s100, s100, s98
            s_sub_u32 s97, s98, s58
            s_mul_i32 s100, s100, 1000000
            s_mul_i32 s97, s97, 1000
            s_add_u32 s100, s100, s97
            s_add_u32 s100, s100, s2
            {key}
            s_lshl_b32 s96, s96, 2
            v_mov_b32 v5, s100
            v_mov_b32 v6, s96
            s_mov_b64 exec, 1
            global_atomic_umax v6, v5, s[26:27]
            s_waitcnt vmcnt(0)
            s_endpgm''')
        elif OPT['rdm'] == 2:
            e('''s_not_b32 s96, s58
            v_mov_b32 v5, s96
            v_mov_b32 v6, 0
            s_mov_b64 exec, 1
            global_atomic_umax v6, v5, s[26:27]
            s_waitcnt vmcnt(0)''' + '\ns_sleep 127' * 7 + '''
            global_load_dword v5, v6, s[26:27] sc1
            s_waitcnt vmcnt(0)
            v_readfirstlane_b32 s96, v5
            s_not_b32 s96, s96
            s_sub_u32 s100, s100, s96
            s_lshl_b32 s100, s100, 3
            s_add_u32 s100, s100, s96''')
        elif OPT['rdm']:
            e('s_sub_u32 s100, s100, s98')
            if OPT['rdt']: e(f"s_cmp_gt_u32 s100, {OPT['rdt']}\ns_cselect_b32 s100, 1280, 0")
            e('''v_mov_b32 v5, s100
            v_mov_b32 v6, 0
            s_mov_b64 exec, 1
            global_atomic_add v6, v5, s[26:27]
            s_waitcnt vmcnt(0)''' + '\ns_sleep 127' * 7 + '''
            global_load_dword v5, v6, s[26:27] sc1
            s_waitcnt vmcnt(0)
            v_readfirstlane_b32 s100, v5
            s_lshr_b32 s100, s100, 6
            s_add_u32 s100, s100, s58''')
        else: e(f"s_sub_u32 s100, s100, s98\ns_lshl_b32 s100, s100, {0 if OPT['rdc'] else 3}\ns_add_u32 s100, s100, s58")
        e(f'''s_add_u32 s100, s100, 6000
        {l}:
        s_sleep 1
        s_memrealtime s[96:97]
        s_waitcnt lgkmcnt(0)
        s_sub_u32 s96, s96, s100
        s_cmp_lt_i32 s96, 0
        s_cbranch_scc1 {l}''')
    if OPT['prof']:
        e(f'''s_memrealtime s[96:97]
        s_waitcnt lgkmcnt(0)
        v_writelane_b32 v{V_PROF}, s96, 31
        v_writelane_b32 v{V_PROF}, s98, 30
        s_lshl_b32 s96, s2, 3
        s_add_u32 s96, s96, s{S_WV}
        s_lshl_b32 s96, s96, 7
        s_add_u32 s96, s96, {WS_PROF}
        v_lshlrev_b32 v{V_T}, 2, v{V_LANE}
        s_mov_b32 exec_hi, 0
        buffer_store_dword v{V_PROF}, v{V_T}, {sr(SRD_WS)}, s96 offen
        s_mov_b64 exec, -1''')

def arrive(stage):
    e(f'v_mov_b32 v{V_T}, {stage}\nds_write_b32 v{V_OWN}, v{V_T}')
def lwait(stage, addr=V_GRP, sleep=0):
    l = lab('lw')
    e(f'{l}:')
    if sleep: e(f's_sleep {sleep}')
    e(f'''ds_read_b32 v{V_T}, v{addr}
    s_waitcnt lgkmcnt(0)
    v_cmp_gt_u32 vcc, {stage}, v{V_T}''')
    if OPT['safe']:
        d = lab('ld')
        e(f'''s_cbranch_vccz {d}
        s_sub_u32 s{S_BOUND}, s{S_BOUND}, 1
        s_cbranch_scc0 {l}
        s_mov_b32 s{S_BOUND}, 0
        {d}:''')
    else:
        e(f's_cbranch_vccnz {l}')
def sync(stage):
    arrive(stage); lwait(stage)
def poll(voff, first_issued=False, sleep=0, reg=V_T):
    l, d, m = lab('pl'), lab('pd'), lab('pm')
    if first_issued == 2:
        e(f's_waitcnt vmcnt(0)\nv_cmp_ne_u32 vcc, s{S_NONCE}, v{reg}\ns_cbranch_vccnz {l}\n{d}:')
        cur = [n for n in SEC if SEC[n] is out][0]
        sec('cold')
        e(f'''{l}:
        buffer_load_dword v{reg}, v{voff}, {sr(SRD_WS)}, 0 offen sc1
        s_waitcnt vmcnt(0)
        v_cmp_ne_u32 vcc, s{S_NONCE}, v{reg}
        s_cbranch_vccz {d}
        s_sub_u32 s{S_BOUND}, s{S_BOUND}, 1
        s_cbranch_scc0 {l}
        s_mov_b32 s{S_BOUND}, 0
        s_branch {d}''')
        sec(cur)
        return
    if first_issued: e(f's_branch {m}')
    e(f'{l}:')
    if sleep: e(f's_sleep {sleep}')
    e(f'''buffer_load_dword v{reg}, v{voff}, {sr(SRD_WS)}, 0 offen sc1
    {m}:
    s_waitcnt vmcnt(0)
    v_cmp_ne_u32 vcc, s{S_NONCE}, v{reg}
    s_cbranch_vccz {d}
    s_sub_u32 s{S_BOUND}, s{S_BOUND}, 1
    s_cbranch_scc0 {l}
    s_mov_b32 s{S_BOUND}, 0
    {d}:''')
def publish(soff, tmp):
    if OPT['fw']:
        e(f'''v_mov_b32 v{V_T}, s{S_NONCE}
        v_lshlrev_b32 v{tmp}, 2, v{V_LANE}
        s_mov_b64 exec, {hex((1 << OPT['fw']) - 1)}
        buffer_store_dword v{V_T}, v{tmp}, {sr(SRD_WS)}, s{soff} offen sc1
        s_mov_b64 exec, -1'''.replace('s_mov_b64 exec, 0xffffffff', 's_mov_b32 exec_hi, 0'))
        return
    e(f'''v_mov_b32 v{V_T}, s{S_NONCE}
    v_mov_b32 v{tmp}, 0
    s_mov_b64 exec, 1
    buffer_store_dword v{V_T}, v{tmp}, {sr(SRD_WS)}, s{soff} offen sc1
    s_mov_b64 exec, -1''')
def swap23(d, s, t):
    e(f'''v_lshrrev_b32 v{t}, 1, v{s}
    v_xor_b32 v{t}, v{t}, v{s}
    v_and_b32 v{t}, 4, v{t}
    v_mul_u32_u24 v{t}, 3, v{t}
    v_xor_b32 v{d}, v{t}, v{s}''')
def rot_next(s):
    e(f's_add_u32 s{s}, s{s}, 1\ns_cmp_eq_u32 s{s}, 7\ns_cselect_b32 s{s}, 0, s{s}')

e(f'''s_cmp_ge_u32 s2, 256
s_cbranch_scc1 L_end''')
if OPT['prof']:
    e(f's_memtime s[{S_T0}:{S_T0+1}]\ns_memrealtime s[98:99]\nv_mov_b32 v{V_PROF}, 0')
if OPT['rd'] >= 0: e('s_memrealtime s[100:101]\ns_memrealtime s[58:59]\ns_memrealtime s[98:99]')
e(f'''s_load_dwordx16 s[4:19], s[0:1], 0
s_load_dwordx8 s[20:27], s[0:1], 64
s_load_dwordx2 s[28:29], s[0:1], 96
v_lshrrev_b32 v{V_OWN}, 6, v0
v_and_b32 v{V_LANE}, 63, v0
v_readfirstlane_b32 s{S_WV}, v{V_OWN}
v_lshlrev_b32 v{V_OWN}, 2, v{V_OWN}
v_mov_b32 v{V_T}, 0
ds_write2_b32 v{V_OWN}, v{V_T}, v{V_T} offset1:8
v_and_b32 v{V_GRP}, 3, v{V_LANE}
v_lshlrev_b32 v{V_GRP}, 2, v{V_GRP}
s_and_b32 s60, s2, 7
s_lshr_b32 s{S_J}, s2, 3
s_and_b32 s{S_HG}, s{S_J}, 1
s_lshr_b32 s{S_TILE}, s2, 4
s_lshl1_add_u32 s{S_H}, s60, s{S_HG}
s_lshl1_add_u32 s61, s60, s{S_TILE}
s_and_b32 s61, s61, 15
s_mul_i32 s60, s60, 14
s_add_u32 s60, s60, s61
s_lshl1_add_u32 s{S_I}, s60, s{S_HG}
s_lshr_b32 s{S_C}, s60, 4
s_cmp_ge_u32 s61, 14
s_cselect_b32 s{S_C}, 7, s{S_C}
s_and_b32 s{S_W}, s{S_WV}, 3
s_mov_b32 s{S_BOUND}, 0x40000
s_mov_b32 s{S_KS}, {KS}
s_cmp_lt_u32 s{S_WV}, 4
s_cbranch_scc1 L_mha''')

VX = 144; VACC = 96; VWF = 32; VPK = 128
VV, VK, VS, VO, VQ = 32, 64, 96, 160, 224
vWd = [5, 6]; vXd = [7, 8, 9, 10]; vXr = [11, 12, 13, 14]; vWb, vW0, vW1 = 15, 16, 17
vRho, vG, vSt, vQd, vQr, vFl, vA, vB, vC = 18, 19, 20, 21, 22, 23, 24, 25, 26
vKo0, vKo1, vVo, vIdx = 27, 28, 29, 30
sXb, sWb, sCh, sCw, sLx, sTmp, sTmp2, sSt, sS1, sS2, sFl = range(60, 71)
sK, sV, sIt = 71, 72, 73
sFo, sO0, sO1 = 84, 85, 86
vOs, vQw = vRho, vG
vRb = [7, 8, 9]; vQx = [11, 12, 13]; vRr = 10
sMask = 74
sOdd = 76

sec('mha0')
e('L_mha:')
if OPT['prio']: e(f"s_setprio {OPT['pm']}")
e(f'''s_mul_i32 s{S_O0}, s{S_H}, 7
s_lshr_b32 s{S_O0}, s{S_O0}, 1''')
e(f'''v_lshrrev_b32 v{vA}, 3, v{V_LANE}          ; r
v_and_b32 v{vB}, 7, v{V_LANE}                    ; p
v_lshlrev_b32 v{vC}, 1, v{vA}
v_and_b32 v{vC}, 4, v{vC}
v_xor_b32 v{vC}, v{vC}, v{vB}
v_lshlrev_b32 v{vC}, 4, v{vC}
v_mul_u32_u24 v{vWd[0]}, 2688, v{vA}
v_add_u32 v{vWd[0]}, v{vWd[0]}, v{vC}
v_add_u32 v{vWd[1]}, {8*2688-1024}, v{vWd[0]}
v_lshrrev_b32 v{vC}, 1, v{vA}
v_xor_b32 v{vC}, v{vC}, v{vB}
v_lshlrev_b32 v{vC}, 4, v{vC}
v_mul_u32_u24 v{vA}, 896, v{vA}
v_add_u32 v{vXd[0]}, v{vA}, v{vC}
v_xor_b32 v{vC}, 64, v{vC}
v_add_u32 v{vXd[1]}, v{vA}, v{vC}
v_add_u32 v{vXd[1]}, {7168-1024}, v{vXd[1]}
v_add_u32 v{vXd[2]}, {2*(7168-1024)}, v{vXd[0]}
v_add_u32 v{vXd[3]}, {2*(7168-1024)}, v{vXd[1]}
s_lshl2_add_u32 s{sXb}, s{S_TILE}, s{S_W}
s_lshl3_add_u32 s{sFl}, s{S_HG}, s{S_C}
s_lshl_b32 s{sFl}, s{sFl}, 6
s_add_u32 s{sFl}, s{sFl}, s{S_TILE if OPT['wgf'] else sXb}
s_lshl_b32 s{sFl}, s{sFl}, {FSH}
s_add_u32 s{sFl}, s{sFl}, {F_KV}
s_mul_i32 s{sXb}, s{sXb}, {32*896}
s_mul_i32 s{sWb}, s{S_HG}, 7
s_add_u32 s{sWb}, s{sWb}, s{S_C}
s_add_u32 s{sWb}, s{sWb}, 7
s_lshl_b32 s{sWb}, s{sWb}, 7
s_mul_i32 s{sTmp}, s{S_W}, {16*2688}
s_add_u32 s{sWb}, s{sWb}, s{sTmp}
s_mul_i32 s{sLx}, s{S_W}, 12288
s_add_u32 s{sLx}, s{sLx}, {L_X}
s_lshl_b32 s{sS1}, s{S_W}, 11
s_add_u32 s{sS1}, s{sS1}, {L_W}
s_mov_b32 s{SRD_A+2}, {2048*896}
s_mov_b32 s{SRD_A+3}, 0x20000
s_mov_b32 s{SRD_B+2}, {448*1344*2}
s_mov_b32 s{SRD_B+3}, 0x20000
s_mov_b32 m0, s{sLx}
s_waitcnt lgkmcnt(0)
s_mov_b64 s[{SRD_A}:{SRD_A+1}], s[18:19]
s_mov_b64 s[{SRD_B}:{SRD_B+1}], s[20:21]
s_load_dword s{S_NONCE}, s[28:29], 0''')
stamp(22)
sWo = 88
def w_lines(st):
    return [f's_add_u32 m0, s{sS1}, {8192*st}', f's_add_u32 s{sWo+st}, s{sWb}, {64*2688*st}'] + \
           [f'buffer_load_dwordx4 v{vWd[i]}, {sr(SRD_B)}, s{sWo+st} offen offset:{1024*i} lds' for i in range(2)]
def x_chunk(st):
    return [f's_add_u32 m0, s{sLx}, {(st%3)*4096 - 128*st}', 's_nop 0'] + \
           [f'buffer_load_dwordx4 v{vXd[i]}, {sr(SRD_A)}, s{sXb} offen offset:{1024*i + 128*st} lds' for i in range(4)]
TK = 'touch'
DM = []
for l in [x_chunk(0), w_lines(0)] + [w_lines(i) for i in range(1, 7)] + [x_chunk(1), x_chunk(2)]:
    DM += [l[:3]] + [[x] for x in l[3:]]
DM[0] = DM[0][2:]
for i, g in enumerate(DM[:OPT['n0']]):
    if i == OPT['nb']:
        e(f's_cmp_eq_u32 s{S_C}, 7\ns_cbranch_scc1 {"L_tmha" if OPT[TK] else "L_gemm_t"}\ns_barrier'); stamp(23)
        if OPT['only'] == 1: e('s_endpgm')
    e('\n'.join(g))
DM = DM[OPT['n0']:]
stamp(24)
if OPT['ord'] not in (1, 3, 4, 5): e('s_branch L_mha1')
sec('mha')
e('L_mha1:')
stamp(25)
sec('tmp')
srd(SRD_WS, 28, WS_SIZE)
ONES = f'''s_bitcmp1_b32 s{S_H}, 0
s_cselect_b32 s{sTmp}, 0, 7
v_cmp_eq_u32 vcc, s{sTmp}, v{vA}
s_lshl_b32 s{sTmp}, s{S_O0}, 1
s_sub_u32 s{sTmp}, s{S_HG}, s{sTmp}
s_add_u32 s{sTmp}, s{sTmp}, 112
v_mov_b32 v{vB}, s{sTmp}
v_cndmask_b32 v{vA}, v{vA}, v{vB}, vcc
''' if OPT['ones'] else ''
FIX = f'v_cmp_lt_u32 vcc, 7, v{vB}\n'
FOM = f'''s_lshl_b32 s{sFo}, s{sTmp2}, 4
s_add_u32 s{sFo}, s{sFo}, s{S_H}
s_lshl_b32 s{sFo}, s{sFo}, {FSH}
s_add_u32 s{sFo}, s{sFo}, {F_O}
''' if OPT['omode'] != 3 else ''
e(f'''v_and_b32 v{vA}, 31, v{V_LANE}
v_lshrrev_b32 v{vG}, 5, v{V_LANE}''')
swap23(vRho, vA, vB)
e(f'''v_bfe_u32 v{vB}, v{vRho}, 1, 3
v_xor_b32 v{vB}, v{vB}, v{vG}
v_lshlrev_b32 v{vB}, 4, v{vB}
v_lshl_add_u32 v{vB}, v{vRho}, 7, v{vB}
v_add_u32 v{vXr[0]}, s{sLx}, v{vB}
v_xor_b32 v{vXr[1]}, 32, v{vXr[0]}
v_xor_b32 v{vXr[2]}, 64, v{vXr[0]}
v_xor_b32 v{vXr[3]}, 0x60, v{vXr[0]}
v_and_b32 v{vB}, 3, v{V_LANE}                     ; cc
v_lshrrev_b32 v{vC}, 1, v{vB}
v_and_b32 v{vQd}, 1, v{vB}
v_lshl_or_b32 v{vC}, v{vQd}, 1, v{vC}
v_bfe_u32 v{vQd}, v{V_LANE}, 4, 1
v_lshl_or_b32 v{vB}, v{vQd}, 2, v{vB}              ; mq natural
v_lshl_or_b32 v{vC}, v{vQd}, 2, v{vC}
v_bfe_u32 v{vQd}, v{V_LANE}, 2, 2                  ; r'
v_lshl_or_b32 v{vFl}, v{vG}, 3, v{vQd}             ; 8g + r'
v_lshlrev_b32 v{vQr}, 6, v{vFl}
v_lshl_add_u32 v{vQr}, v{vC}, 3, v{vQr}
v_add_u32 v{vQr}, {L_X + 4096}, v{vQr}
s_cmp_eq_u32 s{S_HG}, 0
s_cselect_b64 vcc, -1, 0
v_cndmask_b32 v{vB}, v{vB}, v{vC}, vcc             ; K slabs use the exchanged order, V slabs the natural one
v_lshlrev_b32 v{vWb}, 7, v{vFl}
v_lshl_add_u32 v{vWb}, v{vB}, 3, v{vWb}
v_lshrrev_b32 v{vQd}, 1, v{vQd}
v_lshl_add_u32 v{vWb}, v{vQd}, 6, v{vWb}
v_add_u32 v{vW0}, {L_W}, v{vWb}
v_lshlrev_b32 v{vB}, 4, v{vRho}
v_mad_u32_u24 v{vB}, v{vG}, s{S_KS}, v{vB}
v_lshrrev_b32 v{vC}, 2, v{vA}
v_mul_u32_u24 v{vC}, {QS}, v{vC}
v_lshl_add_u32 v{vC}, v{vG}, 6, v{vC}
v_and_b32 v{vQd}, 3, v{vA}
v_lshl_add_u32 v{vC}, v{vQd}, 4, v{vC}
v_cndmask_b32 v{vSt}, v{vC}, v{vB}, vcc
s_lshl2_add_u32 s{sTmp}, s{S_TILE}, s{S_W}
s_lshl_b32 s{sTmp2}, s{sTmp}, 9
s_add_u32 s{sTmp2}, s{sTmp2}, {WS_K}
s_lshl_b32 s{sTmp}, s{sTmp}, 8
s_add_u32 s{sTmp}, s{sTmp}, {WS_V}
s_movk_i32 s{sS2}, 128
s_cmp_eq_u32 s{S_HG}, 0
s_cselect_b32 s{sSt}, s{sTmp2}, s{sTmp}
s_cselect_b32 s{sS2}, {2*KS}, s{sS2}
s_mul_i32 s{sTmp}, s{S_C}, {8*KS}
s_add_u32 s{sSt}, s{sSt}, s{sTmp}
v_lshrrev_b32 v{vB}, 2, v{V_LANE}
v_mul_u32_u24 v{vB}, 2688, v{vB}
v_lshl_add_u32 v{vQd}, v{vQd}, 4, v{vB}
s_lshl_b32 s82, s{S_O0}, 4
s_mul_i32 s{sTmp}, s{S_W}, {16*2688}
s_add_u32 s82, s82, s{sTmp}
s_lshr_b32 s{sTmp}, s{S_O0}, 3
s_add_u32 s{sTmp2}, s{S_O0}, 3
s_lshr_b32 s{sTmp2}, s{sTmp2}, 3
s_sub_u32 s{sTmp2}, s{sTmp2}, s{sTmp}
v_bfe_u32 v{vC}, v{V_LANE}, 4, 1
v_mul_u32_u24 v{vC}, s{sTmp2}, v{vC}
v_lshl_add_u32 v{vC}, v{vG}, 3, v{vC}
v_add_u32 v{vC}, s{sTmp}, v{vC}
v_and_b32 v{vB}, 15, v{V_LANE}
{FIX}v_and_b32 v{vB}, {3 if OPT['wgf'] else 15}, v{V_LANE}
v_lshl_add_u32 v{vC}, v{vC}, 6, v{vB}
s_lshl_b32 s{sTmp}, s{S_W}, {2 if OPT['wgf'] else 4}
v_add_u32 v{vC}, s{sTmp}, v{vC}
v_lshlrev_b32 v{vC}, {FSH}, v{vC}
v_add_u32 v{vFl}, {F_KV}, v{vC}
s_lshl3_add_u32 s{sTmp}, s{S_W}, s{S_HG}
s_mul_i32 s{sTmp}, s{sTmp}, {US}
s_add_u32 s{sTmp}, s{sTmp}, {F_U}
v_mul_u32_u24 v{vB}, {2*US}, v{vB}
v_add_u32 v{vB}, s{sTmp}, v{vB}
v_cndmask_b32 v{vFl}, v{vFl}, v{vB}, vcc
v_lshlrev_b32 v{vKo0}, 4, v{vA}
v_mad_u32_u24 v{vKo0}, v{vG}, s{S_KS}, v{vKo0}
v_add_u32 v{vKo1}, {2*KS}, v{vKo0}
v_lshrrev_b32 v{vA}, 2, v{vRho}
{ONES}v_mul_u32_u24 v{vA}, {QS}, v{vA}
v_lshl_add_u32 v{vA}, v{vG}, 6, v{vA}
v_and_b32 v{vB}, 3, v{V_LANE}
v_lshl_add_u32 v{vVo}, v{vB}, 4, v{vA}
v_mov_b32 v{vIdx}, 0xdddddddd
s_mul_i32 s{sTmp}, s{S_O0}, {KS}
s_lshl_b32 s{sK}, s{S_W}, 13
s_add_u32 s{sK}, s{sK}, s{sTmp}
s_add_u32 s{sK}, s{sK}, {WS_K}
s_lshl_b32 s{sV}, s{S_W}, 12
s_add_u32 s{sV}, s{sV}, s{sTmp}
s_add_u32 s{sV}, s{sV}, {WS_V}
s_lshl2_add_u32 s{sTmp2}, s{S_TILE}, s{S_W}
{FOM}s_lshl_b32 s{sTmp2}, s{sTmp2}, 9
s_add_u32 s{sO0}, s{sTmp}, s{sTmp2}
s_add_u32 s{sO0}, s{sO0}, {WS_O}
s_add_u32 s{sO1}, s{sO0}, {2*KS}
s_bitcmp1_b32 s{S_H}, 0
s_cselect_b64 s[{sOdd}:{sOdd+1}], -1, 0
; per-lane multipliers for Q: scale*log2(e), zero on the four slots that belong to the neighbour head
v_mov_b32 v{vC}, 0x3e8b97f6
v_cmp_gt_u32 vcc, 32, v{V_LANE}
s_and_b64 s[78:79], vcc, s[{sOdd}:{sOdd+1}]
s_nor_b64 s[80:81], vcc, s[{sOdd}:{sOdd+1}]
v_cndmask_b32 v{vA}, v{vC}, 0, s[78:79]
v_cndmask_b32 v{vB}, v{vC}, 0, s[80:81]
s_mov_b32 s78, 0x3f803f80
s_mov_b32 s79, s78
v_xor_b32 v{vW1}, 64, v{vW0}
v_lshlrev_b32 v{vOs}, 4, v{vRho}
v_mad_u32_u24 v{vOs}, v{vG}, s{S_KS}, v{vOs}
v_lshl_add_u32 v{vQw}, v{V_LANE}, 4, s{sLx}''')
srd(SRD_C, 28, WS_SIZE)
def o_stores(r0, r1, tag):
    e(f'''s_bitcmp1_b32 s{S_H}, 0
    s_cbranch_scc1 L_ost_odd{tag}
    buffer_store_dwordx4 {vr(r0,4)}, v{vOs}, {sr(SRD_WS)}, s{sO0} offen sc1
    s_mov_b32 exec_hi, 0
    buffer_store_dwordx4 {vr(r1,4)}, v{vOs}, {sr(SRD_WS)}, s{sO1} offen sc1
    s_not_b64 exec, exec
    buffer_store_dwordx2 {vr(r1,2)}, v{vOs}, {sr(SRD_WS)}, s{sO1} offen sc1
    s_branch L_ost_done{tag}
    L_ost_odd{tag}:
    buffer_store_dwordx4 {vr(r1,4)}, v{vOs}, {sr(SRD_WS)}, s{sO1} offen sc1
    s_mov_b32 exec_hi, 0
    buffer_store_dwordx2 {vr(r0+2,2)}, v{vOs}, {sr(SRD_WS)}, s{sO0} offen offset:8 sc1
    s_not_b64 exec, exec
    buffer_store_dwordx4 {vr(r0,4)}, v{vOs}, {sr(SRD_WS)}, s{sO0} offen sc1
    L_ost_done{tag}:
    s_mov_b64 exec, -1''')
GS = 0
AB = [l for l in SEC.pop('tmp') if not l.strip().startswith(';')]
sec('mha')
def scc_pending(i):
    return i < len(AB) and AB[i].strip().startswith(('s_cselect', 's_mov_b32 s75'))
pos = 0
for g in DM:
    n = pos + OPT['ilv']
    while scc_pending(n): n += 1
    e('\n'.join(AB[pos:n])); pos = n
    e('\n'.join(g))
e('\n'.join(AB[pos:]))
stamp(0)
def x_reads(s):
    return [f'ds_read_b128 {vr(VX + 16*s + 4*ks, 4)}, v{vXr[ks]} offset:{(s%3)*4096}' for ks in range(4)]
e('s_waitcnt vmcnt(22)')
e('\n'.join(x_reads(0)))
e('s_waitcnt vmcnt(8) lgkmcnt(0)')
arrive(1)
stamp(1)
e('\n'.join(x_chunk(3)))
e('s_waitcnt vmcnt(8)')
e('\n'.join(x_reads(1)))
lwait(1)
if OPT['fwm'] & 2:
    e(f'''v_mov_b32 v{V_T}, s{S_NONCE}
    v_lshlrev_b32 v31, 2, v{V_LANE}
    s_mov_b32 exec_hi, 0
    buffer_store_dword v{V_T}, v31, {sr(SRD_WS)}, s{sFl} offen sc1
    s_mov_b64 exec, -1''')
e(f's_add_u32 s{S_NONCE}, s{S_NONCE}, 1')
stamp(2)
def w_reads(s):
    r = []
    for ks in range(4):
        for ct in range(2):
            for hf in range(2):
                d = VWF + 32 * (s & 1) + 8 * ks + 4 * ct + 2 * hf
                r.append(f'ds_read_b64_tr_b16 {vr(d,2)}, v{(vW0, vW1)[ct]} offset:{s*8192 + ks*2048 + hf*512}')
    return r
e('\n'.join(w_reads(0)))
e(f'''s_waitcnt lgkmcnt(0)
s_cmp_lg_u32 s{S_HG}, 0
s_cbranch_scc1 L_gemm_v''')
sQb, sQc = 82, 83
NE = OPT['wq_early']
def wq_dma(st):
    return [f's_add_u32 m0, s{sLx}, {4096 + 1024*st}\ns_add_u32 s83, s82, {64*2688*st}', '', f'buffer_load_dwordx4 v{vQd}, {sr(SRD_B)}, s83 offen lds']
SPIN = []
def gemm1(vpart):
    for s in range(7):
        M = []
        for ks in range(4):
            for ct in range(2):
                wf = vr(VWF + 32 * (s & 1) + 8 * ks + 4 * ct, 4); xf = vr(VX + 16 * s + 4 * ks, 4)
                acc = vr(VACC + 16 * ct, 16)
                a, b = (xf, wf) if vpart else (wf, xf)
                M.append(f'v_mfma_f32_32x32x16_bf16 {acc}, {a}, {b}, {"0" if s == 0 and ks == 0 else acc}')
        gaps = [[] for _ in range(8)]
        tag = f'{"v" if vpart else "k"}{s}'
        pre = []
        dm = []
        def add(l): dm.extend([(l[0], l[2])] + [(None, x) for x in l[3:]])
        if s <= 2: add(x_chunk(s + 4))
        if s == 3:
            for i in range(min(NE, 4)): add(wq_dma(i))
        if s == 4:
            for i in range(4, NE): add(wq_dma(i))
        FW = 1 if OPT['fwm'] & 2 else 0
        n = {0: 8 + FW, 1: 8 + FW, 2: 8, 3: 4 + min(NE, 4), 4: NE}.get(s)
        for i, (m, l) in enumerate(dm):
            if m: (pre if i == 0 else gaps[i - 1]).append(m)
            gaps[i].append(l)
        if s < 6:
            wr = w_reads(s + 1)
            for i, (p, q) in enumerate(((0, 3), (3, 6), (6, 9), (9, 12), (12, 16))): gaps[i] += wr[p:q]
            if s <= 4: gaps[OPT['xg']] += [f's_waitcnt vmcnt({n})'] + x_reads(s + 2)
            gaps[7] += [f's_waitcnt lgkmcnt({4 if s == 4 and OPT["s6"] != 4 else 0})']
        if s == OPT['s6'] and (OPT['uw'] == 6 or OPT['cw'] == 6): gaps[6] += [f'v_mov_b32 v{V_T}, 6', f'ds_write_b32 v{V_OWN}, v{V_T}']
        if s == 5:
            gaps[7] += [f'v_add_u32 v31, 16, v{V_GRP}', f'ds_read_b32 v31, v31']
        if s == 6 and NE == 7:
            gaps[OPT['qa']] += ['s_waitcnt vmcnt(0)', f'v_mov_b32 v{V_T}, 7', f'ds_write_b32 v{V_OWN}, v{V_T}']
        e('\n'.join(pre))
        if OPT['gx'] & 1 or vpart == 2: M = ['s_nop 0'] * 8
        if OPT['gx'] & 2 or vpart == 2: gaps = [[x for x in g if 'tr_b16' not in x] for g in gaps]
        for i in range(8):
            e(M[i]); e('\n'.join(gaps[i]))
        stamp(14 + s)
assert NE == 7
sec('gt'); e('L_gemm_t:')
e('\n'.join(AB))
e(f's_waitcnt lgkmcnt(0)\ns_add_u32 s{S_NONCE}, s{S_NONCE}, 1\ns_barrier')
TB = [0] + [L_SSM - L_X + 4096*i for i in range(3)] + [L_W - L_X + 4096*i for i in range(3)]
for st in range(7):
    x = x_chunk(st); x[0] = f's_add_u32 m0, s{sLx}, {TB[st] - 128*st}'
    e('\n'.join(x))
for st in range(7): e('\n'.join(wq_dma(st)))
stamp(0)
for st in range(7):
    e(f's_waitcnt vmcnt({31 - 4*st})')
    for ks in range(4): e(f'ds_read_b128 {vr(VX + 16*st + 4*ks, 4)}, v{vXr[ks]} offset:{TB[st] - TB[1] if st else 0}')
    if st == 0:
        for ks in range(4): e(f'v_subrev_u32 v{vXr[ks]}, {-TB[1]}, v{vXr[ks]}')
e('s_waitcnt vmcnt(0) lgkmcnt(0)')
arrive(7)
stamp(3)
e('s_branch L_nokv'); sec('mha')
gemm1(False)
e('s_branch L_gemm_done\nL_gemm_v:')
gemm1(True)
e('L_gemm_done:')
stamp(3)
e(f"""s_add_u32 s{sS1}, s{sSt}, s{sS2}
s_add_u32 s{sXb}, s{sSt}, {4*KS}
s_add_u32 s{sCw}, s{sS1}, {4*KS}
s_waitcnt lgkmcnt(0)""")
PWS = 3 if OPT['pw'] else 1
e(f'v_cmp_gt_u32 vcc, {PWS}, v31\ns_cbranch_vccz L_eok\nv_add_u32 v31, 16, v{V_GRP}')
lwait(PWS, addr=31)
e('L_eok:\ns_nop 4')
for q, so in enumerate((sSt, sS1, sXb, sCw)):
    for i in range(4*q, 4*q+4):
        e(f'v_cvt_pk_bf16_f32 v{VPK + i}, v{VACC + 2*i}, v{VACC + 2*i + 1}')
    e(f'buffer_store_dwordx4 {vr(VPK+4*q,4)}, v{vSt}, {sr(SRD_WS)}, s{so} offen sc1')
e('L_nokv:')
assert OPT['wgf'] and OPT['ones'] and OPT['pf'] == 2
def kv_loads(buf, i, srdn=SRD_C):
    return [f'buffer_load_dwordx4 {vr(VK + 8*buf, 4)}, v{vKo0}, {sr(srdn)}, s{sK} offen offset:{512*i} sc1',
            f'buffer_load_dwordx4 {vr(VK + 8*buf + 4, 4)}, v{vKo1}, {sr(srdn)}, s{sK} offen offset:{512*i} sc1',
            f'buffer_load_dwordx4 {vr(VV + 8*buf, 4)}, v{vVo}, {sr(srdn)}, s{sV} offen offset:{256*i} sc1',
            f'buffer_load_dwordx4 {vr(VV + 8*buf + 4, 4)}, v{vVo}, {sr(srdn)}, s{sV} offen offset:{256*i + 128} sc1']
fill = [f'v_mov_b64 {vr(VV+2*i,2)}, s[78:79]' for i in range(12, 12 if OPT['wp'] and OPT['unr'] else 16)] + [f'v_subrev_u32 v{vRr}, {L_X - L_RB}, v{vQw}', 's_mov_b64 s[80:81], -1']
for s in range(3):
    fill += f"""s_add_u32 s{sTmp}, s{S_W}, {1+s}
    s_and_b32 s{sTmp}, s{sTmp}, 3
    s_sub_u32 s{sTmp}, s{sTmp}, s{S_W}
    s_mul_i32 s{sTmp}, s{sTmp}, 12288
    v_add_u32 v{vQx[s]}, s{sTmp}, v{vQw}
    v_subrev_u32 v{vRb[s]}, {L_X - L_RB - 4096*s}, v{vQx[s]}""".split('\n')
def count_in(n):
    e(f"""v_mov_b32 v{V_T}, 1
    v_mov_b32 v31, 0
    s_waitcnt vmcnt({n})
    s_mov_b64 exec, 1
    ds_add_rtn_u32 v{vSt}, v31, v{V_T} offset:32
    s_mov_b64 exec, -1""")
def count_out(n):
    e(f's_waitcnt lgkmcnt({n})\nv_readfirstlane_b32 s{sTmp2}, v{vSt}\ns_cmp_lg_u32 s{sTmp2}, 3\ns_cbranch_scc1 L_nopub')
    publish(sFl, 31)
    e('L_nopub:'); stamp(5)
NM = max(NE, OPT['wq_mid'])
for st in range(NE, NM): e('\n'.join(wq_dma(st)))
stamp(4)
if NE < 7:
    e('\n'.join(fill)); fill = []
    count_in(NM - NE)
    if NM == 7:
        e('s_waitcnt vmcnt(0)'); arrive(7); count_out(1)
    else:
        count_out(0)
        for st in range(NM, 7): e('\n'.join(wq_dma(st)))
        e('s_waitcnt vmcnt(0)'); arrive(7)
lwait(7)
stamp(6)
QB = [80, 84, 88, 92, 112, 116, 120, 124]
def q_reads(k):
    s, ks = divmod(k, 4)
    return [f'ds_read_b64_tr_b16 {vr(QB[k%8] + 2*hf, 2)}, v{vQr} offset:{ks*12288 + s*1024 + hf*256}' for hf in range(2)]
for k in range(6): e('\n'.join(q_reads(k)))
e('\n'.join(fill[:12])); fill = fill[12:]
zi = 8 if OPT['wp'] and OPT['unr'] else 0
PK = OPT['pubk'] if NE == 7 else -99
for k in range(28):
    extra = 1 if PK < k <= PK + 5 else 0
    e(f's_waitcnt lgkmcnt({min(10, 2*(27-k)) + extra})')
    e(f'v_mfma_f32_32x32x16_bf16 {vr(VACC,16)}, {vr(QB[k%8], 4)}, {vr(VX + 4*k, 4)}, {"0" if k == 0 else vr(VACC,16)}')
    if k + 6 < 28: e('\n'.join(q_reads(k + 6)))
    while zi < 40 and VX + 2*zi + 1 < VX + 4*k - 4 and zi < 2*k:
        e(f'v_mov_b64 {vr(VX + 2*zi, 2)}, 0'); zi += 1
    if k >= 22 or k < 2:
        e('\n'.join(fill[:4])); fill = fill[4:]
    if k == PK: count_in(0)
    if k == PK + OPT['wgf']: count_out(2*OPT['wgf'])
    if k == OPT['pollk']: e(f'buffer_load_dword v31, v{vFl}, {sr(SRD_WS)}, 0 offen sc1')
    if k == OPT['chkk']:
        e(f's_waitcnt vmcnt(0)\nv_cmp_ne_u32 vcc, s{S_NONCE}, v31\ns_mov_b64 s[80:81], vcc\ns_cbranch_vccnz L_kv_late')
        for t in range(2): e('\n'.join(kv_loads(t, t)))
        e('L_kv_late:')
assert zi == 40 and VX == VS + 48 and not fill
stamp(7)
e('s_nop 11')
for r in range(16):
    m = vA if r < 4 else (vB if r >= 12 else vC)
    e(f'v_mul_f32 v{VACC + r}, v{m}, v{VACC + r}')
for i in range(8):
    e(f'v_cvt_pk_bf16_f32 v{VQ + 24 + i}, v{VACC + 2*i}, v{VACC + 2*i + 1}')
e(f"""ds_write_b128 v{vQw}, {vr(VQ+24,4)}
ds_write_b128 v{vQw}, {vr(VQ+28,4)} offset:1024""")
arrive(8)
lwait(8)
for s in range(3):
    e(f'ds_read_b128 {vr(VQ+8*s,4)}, v{vQx[s]}\nds_read_b128 {vr(VQ+8*s+4,4)}, v{vQx[s]} offset:1024')
PF = OPT['pf']
if OPT['pt']:
    e(f's_mov_b64 exec, 0\ns_bitcmp1_b32 s{S_W}, 0\ns_cbranch_scc1 L_pg1\ns_branch L_pg0\nL_pg_ret:\ns_mov_b64 exec, -1')
if OPT['chkk'] < 28: e('s_cmp_eq_u64 s[80:81], 0\ns_cbranch_scc1 L_kv_done')
poll(vFl, first_issued=OPT['pollk'] < 28 and OPT['chkk'] > 27, reg=31, sleep=OPT['ksleep'])
for t in range(PF): e('\n'.join(kv_loads(t, t)))
e('L_kv_done:')
stamp(8)
OM = OPT['omode']
if OM:
    e(f'''s_lshr_b32 s{sTmp}, s{S_O0}, 3
    s_add_u32 s{sTmp2}, s{S_O0}, 3
    s_lshr_b32 s{sTmp2}, s{sTmp2}, 3
    s_sub_u32 s{sTmp2}, s{sTmp2}, s{sTmp}
    s_lshl_b32 s{sTmp2}, s{sTmp2}, 1
    s_lshl2_add_u32 s{sSt}, s{S_TILE}, s{S_W}
    s_lshr_b32 s{sS1}, s{sSt}, 1
    s_mul_i32 s{sS1}, s{sS1}, 12
    s_add_u32 s{sSt}, s{sSt}, s{sS1}
    s_lshl1_add_u32 s{sTmp}, s{sTmp}, s{sSt}
    s_lshl_b32 s{sTmp}, s{sTmp}, {FSH}
    s_add_u32 s{sTmp}, s{sTmp}, {F_Y}
    v_and_b32 v{vFl}, 1, v{V_LANE}
    v_mul_u32_u24 v{vFl}, s{sTmp2}, v{vFl}
    v_and_b32 v31, 2, v{V_LANE}
    v_lshl_add_u32 v{vFl}, v31, 8, v{vFl}
    v_lshl_add_u32 v{vFl}, v{vFl}, {FSH}, s{sTmp}''')
def qk(buf, slot, js):
    d = vr(VS + 16*slot, 16)
    return f'v_mfma_f32_32x32x16_bf16 {d}, {vr(VK + 8*buf + 4*js, 4)}, {vr(VQ + 8*slot + 4*js, 4)}, {"0" if js == 0 else d}'
def pv(buf, slot, js):
    return f'v_smfmac_f32_32x32x32_bf16 {vr(VO + 16*slot, 16)}, {vr(VV + 8*buf + 4*js, 4)}, {vr(VS + 16*slot + 8*js, 8)}, v{vIdx}'
def exps(s): return [f'v_exp_f32 v{VS + 16*s + r}, v{VS + 16*s + r}' for r in range(16)]
SPREAD = []
LP = {0: [(1, 2, 0)] * 4, 1: [(1, g, 0) for g in range(4)], 2: [(0, 0, 0), (0, 2, 0), (1, 0, 0), (1, 2, 0)],
      3: [(1, g, 2) for g in range(4)], 4: [(0, 0, 2), (0, 2, 2), (1, 0, 2), (1, 2, 2)], 5: [(1, g, 4) for g in range(4)],
      6: [(0, 1, 4), (0, 3, 4), (1, 1, 4), (1, 3, 4)]}[OPT['lp']]
FULL = OPT['unr']
def unit(t, s, it=None):
    ex = exps(s)
    nb = t if s < 3 else (t + 1) & 3
    pb = t if s > 0 else (t - 1) & 3
    live = it is None or 4*it + t + PF < 16
    wt = f's_waitcnt vmcnt({4*PF-4 if live else 0})'
    if s == 3 and not OPT['wp']: e(wt)
    M = [qk(nb, (s+1) & 3, 0), qk(nb, (s+1) & 3, 1), pv(pb, (s-1) & 3, 0), pv(pb, (s-1) & 3, 1)]
    kl = kv_loads((t + PF) & 3, t + PF)
    for g in range(4):
        body = ex[4*g:4*g+4]
        for q in reversed(range(4)):
            if LP[q][:2] == (s, g) and live: body.insert(LP[q][2], kl[q])
        if OPT['wp'] and (s, g) == (2, 3): body.insert(0, wt)
        if OPT['wp'] and it is not None:
            if (s, g) == (1, 3) and t == 3 and live: body[0:0] = [f's_add_u32 s{sK}, s{sK}, 2048', f's_add_u32 s{sV}, s{sV}, 1024']
            if (it, t, s) == (0, 0, 0) and g >= 2: M[g] = ''
        elif (s, g) == (1, 3):
            if t == 3 - PF and it is None:
                body += [f's_cmp_eq_u32 s{sIt}, 3', f's_cselect_b32 s{SRD_C+2}, 0, s{SRD_C+2}']
            if t == 3 and live:
                body += [f's_add_u32 s{sK}, s{sK}, 2048', f's_add_u32 s{sV}, s{sV}, 1024']
                if it is None: body += [f's_add_u32 s{sIt}, s{sIt}, 1', f's_cmp_lg_u32 s{sIt}, 4']
        e(M[g]); e('\n'.join(body))
e(f's_mov_b32 s{sIt}, 0\ns_waitcnt vmcnt({4*PF - 4}) lgkmcnt(0)')
stamp(9)
e(qk(0, 0, 0)); e(qk(0, 0, 1))
if FULL:
    e(f"s_setprio {OPT['pa']}\ns_nop 9\nL_att:")
    for it in range(4):
        for t in range(4):
            for s in range(4):
                if (it, t, s) < (3, 3, 2): unit(t, s, it)
else:
    e(f"s_setprio {OPT['pa']}\ns_nop 8\ns_branch L_att_in")
    e('L_att:')
    unit(3, 2); unit(3, 3)
    e('L_att_in:')
    for t in range(4):
        for s in range(4):
            if (t, s) < (3, 2): unit(t, s)
    e('s_cbranch_scc1 L_att')
if OPT['prio']: e(f"s_setprio {OPT['pm']}")
if OM: e(f'buffer_load_dword v31, v{vFl}, {sr(SRD_WS)}, 0 offen sc1')
def rbw(s): return [f'ds_write_b128 v{vRb[s]}, {vr(VO + 16*s + 4*i, 4)} offset:{1024*i}' for i in range(4)]
ex = exps(2); w0 = rbw(0)
e(qk(3, 3, 0)); e('\n'.join(ex[0:4])); e(qk(3, 3, 1)); e('\n'.join(ex[4:7] + [w0[0]]))
e(pv(3, 1, 0)); e('\n'.join(ex[7:10] + [w0[1]])); e(pv(3, 1, 1)); e('\n'.join(ex[10:13] + [w0[2]] + ex[13:16] + [w0[3]]))
ex = exps(3); w1 = rbw(1); w2 = rbw(2)
e(pv(3, 2, 0)); e('\n'.join(ex[0:3])); e(pv(3, 2, 1))
e('\n'.join([w1[0]] + ex[3:5] + [w1[1]] + ex[5:7] + [w1[2]] + ex[7:9] + [w1[3]] + ex[9:10]))
e(pv(3, 3, 0))
e('\n'.join([w2[0]] + ex[10:12] + [w2[1]] + ex[12:14] + [w2[2]] + ex[14:16] + [w2[3]]))
arrive(9)
e(pv(3, 3, 1))
stamp(10)
lwait(9)
for i in range(12): e(f'ds_read_b128 {vr(VS + 4*i, 4)}, v{vRr} offset:{1024*i}')
OA = VO + 48
for s in range(3):
    e(f's_waitcnt lgkmcnt({8 - 4*s})')
    for i in range(8): e(f'v_pk_add_f32 {vr(OA+2*i,2)}, {vr(OA+2*i,2)}, {vr(VS+16*s+2*i,2)}')
e(f's_mov_b32 s{sIt}, {1 if OPT["force_fb"] else 0}')
e(f'''L_norm:
v_cndmask_b32 v{vA}, v{OA+12}, v{OA}, s[{sOdd}:{sOdd+1}]
v_max3_f32 v{vC}, abs(v{OA}), abs(v{OA+1}), abs(v{OA+2})
v_mov_b32 v{vB}, v{vA}
v_max3_f32 v{vC}, abs(v{OA+3}), abs(v{OA+4}), v{vC}
v_max3_f32 v{vC}, abs(v{OA+5}), abs(v{OA+6}), v{vC}
v_permlane32_swap_b32 v{vA}, v{vB}
v_max3_f32 v{vC}, abs(v{OA+7}), abs(v{OA+8}), v{vC}
v_cndmask_b32 v{vB}, v{vB}, v{vA}, s[{sOdd}:{sOdd+1}]
v_max3_f32 v{vC}, abs(v{OA+9}), abs(v{OA+10}), v{vC}
v_rcp_f32 v{vA}, v{vB}
v_max3_f32 v{vC}, abs(v{OA+11}), abs(v{OA+12}), v{vC}
v_max3_f32 v{vC}, abs(v{OA+13}), abs(v{OA+14}), v{vC}
v_max_f32 v{vC}, abs(v{OA+15}), v{vC}
v_cmp_nle_f32 vcc, 0x30800000, v{vB}
s_mov_b64 s[78:79], vcc
v_cmp_nge_f32 vcc, 0x4e800000, v{vB}
s_or_b64 s[78:79], s[78:79], vcc
v_cmp_ngt_f32 vcc, 0x7f000000, v{vC}
s_or_b64 vcc, s[78:79], vcc''')
if OPT['force_fb']:
    e(f's_cmp_eq_u32 s{sIt}, 1\ns_cbranch_scc1 L_fb')
e('s_cbranch_vccnz L_fb0\nL_norm2:')
for i in range(8): e(f'v_pk_mul_f32 {vr(OA+2*i,2)}, {vr(OA+2*i,2)}, {vr(vA,2)} op_sel_hi:[1,0]')
for i in range(8): e(f'v_cvt_pk_bf16_f32 v{VS+i}, v{OA+2*i}, v{OA+2*i+1}')
if OM: poll(vFl, first_issued=2, reg=31)
o_stores(VS, VS + 4, '')
stamp(11)
if OM == 4: publish(sFo, vA)
if OPT['obar'] == 1: e('s_barrier')
if OPT['obar'] >= 3: e(f"s_waitcnt vmcnt({5 - OPT['obar'] + (OM == 4)})\ns_barrier")
if OM == 0:
    e('s_waitcnt vmcnt(0)'); publish(sFo, vA)
if OPT['obar'] == 2: e('s_barrier')
stamp(12)
prof_out()
e('s_endpgm')

for tag, st in SPIN:
    e(f'L_ws_{tag}:'); lwait(st); e(f's_branch L_wb_{tag}')
sec('fb')
e(f'''L_fb0:
s_cmp_eq_u32 s{sIt}, 2
s_cbranch_scc1 L_norm2
L_fb:
s_waitcnt vmcnt(0)
s_mul_i32 s{sTmp}, s{S_O0}, {KS}
s_add_u32 s{sK}, s{sTmp}, {WS_K}
s_add_u32 s{sV}, s{sTmp}, {WS_V}
v_mov_b32 v{vC}, 0xff800000
s_mov_b32 s{sIt}, 0
L_fb1:''')
e('\n'.join(kv_loads(0, 0, SRD_WS)[:2]))
e('s_waitcnt vmcnt(0)')
e(qk(0, 3, 0)); e(qk(0, 3, 1)); e('s_nop 11')
for i in range(8): e(f'v_max3_f32 v{vC}, v{VS+48+2*i}, v{VS+49+2*i}, v{vC}')
e(f'''s_add_u32 s{sK}, s{sK}, 512
s_add_u32 s{sIt}, s{sIt}, 1
s_cmp_lg_u32 s{sIt}, 64
s_cbranch_scc1 L_fb1
v_mov_b32 v{vA}, v{vC}
s_sub_u32 s{sK}, s{sK}, 0x8000
s_mov_b32 s{sIt}, 0
v_permlane32_swap_b32 v{vA}, v{vC}
v_max_f32 v{vC}, v{vA}, v{vC}''')
for i in range(8): e(f'v_mov_b64 {vr(OA+2*i,2)}, 0')
e('L_fb2:')
e('\n'.join(kv_loads(0, 0, SRD_WS)))
e('s_waitcnt vmcnt(0)')
e(qk(0, 3, 0)); e(qk(0, 3, 1)); e('s_nop 11')
for i in range(16): e(f'v_sub_f32 v{VS+48+i}, v{VS+48+i}, v{vC}')
for i in range(16): e(f'v_exp_f32 v{VS+48+i}, v{VS+48+i}')
e('s_nop 1')
e(pv(0, 3, 0)); e(pv(0, 3, 1))
e(f'''s_add_u32 s{sK}, s{sK}, 512
s_add_u32 s{sV}, s{sV}, 256
s_add_u32 s{sIt}, s{sIt}, 1
s_cmp_lg_u32 s{sIt}, 64
s_cbranch_scc1 L_fb2
s_mov_b32 s{sIt}, 2
s_nop 11
s_branch L_norm''')

sD0, sD, sHw, sDs, sTab, sA, sB, sLd, sSk, sIt2, sFlU, sInv, sUns, sSel, sUl, sOl, sCh0 = range(60, 77)
sUs, sOut, sHm = 78, 80, 82
sE2, sP, sE3, sKd, sCo = 84, 85, 86, 87, 77
OUTM = ('', 'sc1', '', 'sc1', 'nt', 'sc0 sc1')[OPT['outsc']]
OUTM2 = ('', '', 'sc1', 'sc1', 'nt', 'sc0 sc1')[OPT['outsc']]
a0, a1, a2, a3 = 5, 6, 7, 9
vPar = 10
vKc = 18
vRa, vRb_, vKd, vKd1, vKa, vKa0, vFu, vE1, vE1b, vFr, vKxo, vKxp, vPair, vRz, vBk, vA0, vA1, vKb, vSB, vSB0 = range(20, 40)
vSel = 180
vAc = 40
vOne, vScl, vAdd, vC0 = range(56, 60)
vOp = 64
vY = 128
vXt = 144
vAn = 166
vX1 = 172
T0, T1 = 160, 176
vZ = 192
U = 204
vZer = 220
vUa, vCd, vG_, vZp, vKp, vF_, vL16, vXo, vXp, vTr, vYl, vYs, vFy, vYw = range(224, 238)
vWoD = 238
vWoR = 240
vOl, vFo, vBw, vBr, vOut = range(242, 247)
def hi():
    if OPT['prio']: e('s_setprio 3')
KG = [True]
def lo():
    if OPT['prio']: e(f"s_setprio {OPT['kgp'] if KG[0] else OPT['ps']}")
ROLE[0] = 1
sec('ssm0')
PFA = f'''s_mul_i32 s{sLd}, s{S_HG}, 7
s_add_u32 s{sLd}, s{sLd}, s{S_C}                   ; slab 0..13
s_mul_i32 s{sSk}, s{S_TILE}, 14
s_add_u32 s{sSk}, s{sSk}, s{sLd}                   ; 0..223
s_cmp_eq_u32 s{S_W}, 1
s_cbranch_scc1 L_pf1
s_cmp_eq_u32 s{S_W}, 2
s_cbranch_scc1 L_pf2
s_mul_i32 s{sB}, s{sSk}, 64
s_mul_hi_u32 s{sB}, s{sB}, {(2**32 + 6)//7}
s_cmp_eq_u32 s{S_W}, 0
s_cselect_b32 s{sInv}, 43, 64
s_cselect_b32 s{sLd}, 6, 4
s_cselect_b32 s{sUns}, {60 if OPT['pfm'] & 1 else 0}, {40 if OPT['pfm'] & 8 else 0}
v_mul_u32_u24 v6, s{sInv}, v{V_LANE}
v_lshrrev_b32 v6, 8, v6
v_mul_u32_u24 v7, s{sLd}, v6
v_sub_u32 v7, v7, v{V_LANE}
v_add_u32 v6, s{sB}, v6
v_mul_u32_u24 v6, 7, v6
v_add3_u32 v8, v6, v7, 6
s_mov_b32 s{SRD_A+2}, {2048*896}
s_branch L_pf3
L_pf1:
s_mul_i32 s{sB}, s{S_TILE}, 20
s_add_u32 s{sB}, s{sB}, 128
v_add_u32 v6, s{sB}, v{V_LANE}
v_mul_u32_u24 v6, 21, v6
v_add3_u32 v8, v6, s{sLd}, 7
s_mov_b32 s{sUns}, {20 if OPT['pfm'] & 2 else 0}
s_mov_b32 s{SRD_A+2}, {448*2688}
s_branch L_pf3
L_pf2:
v_mul_u32_u24 v6, 37, v{V_LANE}
v_lshrrev_b32 v6, 8, v6
v_mul_u32_u24 v6, 14, v6
s_mul_i32 s{sB}, s{sSk}, 42
v_add3_u32 v8, v6, v{V_LANE}, s{sB}
s_mov_b32 s{sUns}, {14 if OPT['pfm'] & 4 else 0}
s_mov_b32 s{SRD_A+2}, {448*2688}
L_pf3:
v_lshlrev_b32 v8, 7, v8
v_cmp_gt_u32 vcc, s{sUns}, v{V_LANE}
s_mov_b32 s{SRD_A+3}, 0x20000
v_bfrev_b32 v6, 1
v_cndmask_b32 v8, v6, v8, vcc
''' if OPT['pfm'] else ''
e(f"""s_cmp_{'eq' if OPT['only'] != 2 else 'le'}_u32 s{S_C}, 7
s_cbranch_scc1 L_ssm_idle
s_lshr_b32 s{sDs}, s{S_W}, 1
s_lshl_b32 s{sD0}, s{S_I}, 1
s_add_u32 s{sD}, s{sD0}, s{sDs}
s_mul_i32 s{sTab}, s{S_W}, {TABSZ}
s_add_u32 s{sTab}, s{sTab}, {L_TAB}
s_lshl1_add_u32 s{sA}, s{sD0}, s{S_W}
s_lshl_b32 s{sA}, s{sA}, 8
v_lshl_add_u32 v{a0}, v{V_LANE}, 2, s{sA}
s_mov_b32 m0, s{sTab}
{PFA}s_lshl_b32 s{sB}, s{sD0}, 1
s_waitcnt lgkmcnt(0)
s_load_dword s{sLd}, s[14:15], s{sB}
s_load_dword s{sSk}, s[16:17], s{sB}
global_load_dword v{vPar+0}, v{a0}, s[6:7]
global_load_dword v{vPar+1}, v{a0}, s[8:9]
global_load_dword v{vPar+2}, v{a0}, s[10:11]
global_load_dword v{vPar+3}, v{a0}, s[12:13]
global_load_dword v{vPar+4}, v{V_T}, s[28:29]""")
if OPT['pfm']:
    e(f'''s_cmp_eq_u32 s{S_W}, 0
    s_cselect_b64 s[{SRD_A}:{SRD_A+1}], s[18:19], s[20:21]
    s_cmp_eq_u32 s{S_W}, 3
    s_cselect_b64 s[{SRD_A}:{SRD_A+1}], s[4:5], s[{SRD_A}:{SRD_A+1}]''')
    PFL = f'buffer_load_dword v{vPar+5}, v8, {sr(SRD_A)}, 0 offen'
    if not OPT['pfl']: e(PFL)
if OPT['tlb'] != 2: e('s_barrier')
if OPT['tlb']:
    e(f'''v_and_b32 v{a0}, 7, v{V_LANE}
    v_min_u32 v{a0}, 5, v{a0}
    v_lshlrev_b32 v{a0}, 21, v{a0}
    v_add_u32 v{a0}, 0xf8000, v{a0}
    v_mov_b32 v{a1}, 0
    global_load_dword v8, v{a0}, s[28:29]
    global_load_dword v8, v{a1}, s[22:23]''')
if OPT['tlb'] == 2: e('s_barrier')
if OPT['ord'] < 4: e('s_branch L_ssm')
sec('ssm')
e('L_ssm:')
if OPT['abl'] == 1:
    arrive(1); e('s_waitcnt vmcnt(0) lgkmcnt(0)\ns_endpgm')
lo()
srd(SRD_WS, 28, WS_SIZE)
e(f"""s_and_b32 s{sHw}, s{S_W}, 1
v_add_u32 v{V_GRP}, 16, v{V_GRP}
v_and_b32 v{a0}, 15, v{V_LANE}
v_lshrrev_b32 v{a1}, 4, v{V_LANE}
v_lshl_add_u32 v{vRb_}, v{a1}, 4, s{sTab}
v_mul_u32_u24 v{a2}, {TROW}, v{a0}
v_add_u32 v{vRa}, v{a2}, v{vRb_}
v_lshlrev_b32 v{vL16}, 4, v{V_LANE}
v_mov_b32 v{vOne}, 0x3c00
ds_write_addtid_b32 v{vOne}""")
for i in range(8): e(f'v_mov_b64 {vr(vAc+2*i,2)}, 0')
mid = f"""v_and_b32 v{a0}, 7, v{V_LANE}
s_and_b32 s{sB}, s2, {OPT['ur'] - 1}
s_lshl2_add_u32 s{sB}, s{sB}, s{S_W}
s_mul_i32 s{sB}, s{sB}, {8*US}
s_add_u32 s{sB}, s{sB}, {F_U}
v_mul_u32_u24 v{vFu}, {US}, v{a0}
v_add_u32 v{vFu}, s{sB}, v{vFu}
s_mul_i32 s{sP}, s{sDs}, {P_SZ}
s_add_u32 s{sP}, s{sP}, {L_TAB}
s_add_u32 s{sKd}, s{sP}, {P_KD}
s_lshl_b32 s{sB}, s{sHw}, 8
s_add_u32 s{sInv}, s{sB}, s{sKd}
s_add_u32 s{sA}, s{sInv}, {1088 + 128}
v_lshl_add_u32 v{vRz}, v{a0}, 4, s{sA}
v_mov_b32 v{vKb}, s{sKd}
v_and_b32 v{a0}, 15, v{V_LANE}
v_lshrrev_b32 v{a1}, 4, v{V_LANE}
s_lshl_b32 s{sA}, s{sHw}, 4
v_add_u32 v{a0}, s{sA}, v{a0}
v_and_b32 v{a3}, 1, v{V_LANE}
v_mul_u32_u24 v{a2}, 255, v{a3}
v_sub_u32 v{a2}, v{a2}, v{a0}
s_add_u32 s{sA}, s{sKd}, {1088 + 32}
v_add_u32 v{vKa}, s{sA}, v{a2}
v_add_u32 v{vKa0}, 96, v{vKa}
s_lshl3_add_u32 s{sA}, s{sDs}, 16
v_lshl_add_u32 v{vPair}, v{a3}, 2, s{sA}
s_mul_i32 s{sA}, s{sHw}, {1088 + 112 - 1024}
s_add_u32 s{sA}, s{sA}, s{sKd}
s_add_u32 s{sA}, s{sA}, 1024
v_writelane_b32 v{vKa0}, s{sA}, 0
s_mul_i32 s{sA}, s{sHw}, 56
s_sub_u32 s{sA}, s{sKd}, s{sA}
s_add_u32 s{sA}, s{sA}, 1088
v_writelane_b32 v{vKa0}, s{sA}, 16
v_max_u32 v{a2}, 1, v{a1}
v_sub_u32 v{a2}, 5, v{a2}
v_lshlrev_b32 v{a0}, v{a2}, v{a0}
v_lshlrev_b32 v{a2}, 3, v{a1}
s_mov_b32 s{sA}, 0x60400100
v_bfe_u32 v{a1}, s{sA}, v{a2}, 8
v_lshl_add_u32 v{a0}, v{a1}, 3, v{a0}
v_add_u32 v{vKd}, s{sKd}, v{a0}
s_mov_b32 s{sA}, 0x80040404
v_bfe_u32 v{a1}, s{sA}, v{a2}, 8
v_add_u32 v{vKd1}, v{a1}, v{vKd}
v_lshrrev_b32 v{a1}, 1, v{V_LANE}
v_lshlrev_b32 v{vUa}, 6, v{a1}
v_lshl_add_u32 v{vUa}, v{a3}, 4, v{vUa}
s_lshr_b32 s{sA}, s{sD0}, 2
s_mul_i32 s{sA}, s{sA}, {QS}
s_and_b32 s{sB}, s{sD0}, 3
s_lshl4_add_u32 s{sA}, s{sB}, s{sA}
s_lshl_b32 s{sB}, s{S_W}, 12
s_add_u32 s{sA}, s{sA}, s{sB}
s_add_u32 s{sUl}, s{sA}, {WS_U}
v_and_b32 v{a1}, 3, v{a1}
v_lshl_add_u32 v{a1}, v{a3}, 2, v{a1}
v_mul_u32_u24 v{a1}, {PS}, v{a1}
v_lshrrev_b32 v{a2}, 3, v{V_LANE}
v_lshl_add_u32 v{a1}, v{a2}, 4, v{a1}
s_lshl_b32 s{sA}, s{S_W}, 8
s_add_u32 s{sA}, s{sA}, {L_KP + 512}
v_add_u32 v{vKp}, s{sA}, v{a1}
; byte selectors that expand the distinct taps to the lags (lag l uses the tap at bf16(l), as in the reference)
v_lshrrev_b32 v{a1}, 5, v{V_LANE}
s_lshl_b32 s{sA}, s{sHw}, 1
v_max_u32 v{a0}, s{sA}, v{a1}
v_min_u32 v{a2}, 1, v{a0}
v_mul_u32_u24 v{a2}, 0x0202, v{a2}
v_lshlrev_b32 v{a2}, 16, v{a2}
v_sub_u32 v{vSel}, 0x03020100, v{a2}
v_mul_u32_u24 v{a2}, 0x0202, v{a0}
v_lshl_or_b32 v{a2}, v{a2}, 16, v{a2}
v_sub_u32 v{vSel+1}, 0x07060504, v{a2}
s_mul_i32 s{sA}, s{sHw}, 0x02020202
v_add_u32 v{vSel+2}, s{sA}, v{vSel}
s_mul_i32 s{sA}, s{sHw}, 0x02020404
v_add_u32 v{vSel+3}, s{sA}, v{vSel+1}
v_lshrrev_b32 v{a2}, v{a0}, v{vL16}
s_movk_i32 s{sA}, 256
v_lshl_add_u32 v{a2}, s{sA}, v{a0}, v{a2}
s_sub_u32 s{sA}, s{sKd}, 256
v_add_u32 v{vE1}, s{sA}, v{a2}
v_lshlrev_b32 v{a2}, 2, v{a0}
v_sub_u32 v{vE1b}, v{vE1}, v{a2}
s_mov_b32 s{sA}, 0x0c0c0c0c
s_cmp_lg_u32 s{sHw}, 0
s_cselect_b32 s{sE2}, 0x01000100, s{sA}
s_cselect_b32 s{sE3}, 0x05040302, s{sA}
v_mov_b32 v{vSel+4}, s{sA}
v_mov_b32 v{vSel+5}, s{sA}
v_mov_b32 v{vSel+6}, s{sA}
v_mov_b32 v{vSel+7}, s{sA}
s_mov_b32 s{sA}, 0x05040504
s_mov_b64 exec, 15
v_mov_b32 v{vSel+4}, s{sA}
v_mov_b32 v{vSel+5}, s{sA}
v_mov_b32 v{vSel+6}, s{sA}
s_mov_b64 exec, -1
v_writelane_b32 v{vSel+7}, s{sA}, 3
s_mov_b32 s{sA}, 0x05040302
v_writelane_b32 v{vSel+4}, s{sA}, 3
s_mov_b32 s{sA}, 0x0c0c0504
v_writelane_b32 v{vSel+6}, s{sA}, 0
v_writelane_b32 v{vSel+7}, s{sA}, 2
s_mul_i32 s{sA}, s{S_W}, {2*PS}
s_add_u32 s{sA}, s{sA}, {L_KP}
v_mul_u32_u24 v{a2}, {PS - 512}, v{a1}
v_add3_u32 v{vG_}, v{a2}, v{vL16}, s{sA}
v_mov_b64 {vr(vZer,2)}, 0
v_mov_b64 {vr(vZer+2,2)}, 0
ds_write_b128 v{vG_}, {vr(vZer,4)}
s_lshl_b32 s{sA}, s{sHw}, 10
s_add_u32 s{sB}, s{sP}, {P_UC}
s_add_u32 s{sA}, s{sA}, s{sB}
s_add_u32 s{sA}, s{sA}, 64
v_add_u32 v{vCd}, s{sA}, v{vL16}
v_and_b32 v{a3}, 3, v{V_LANE}
v_and_b32 v{a0}, 0x1c, v{V_LANE}
v_lshlrev_b32 v{a2}, 2, v{a0}
v_and_b32 v{vZp}, 0x30, v{a2}
s_mov_b32 exec_hi, 0
v_add_u32 v{vZp}, 2112, v{a2}
s_mov_b64 exec, -1
v_mul_u32_u24 v{a2}, {UC_S}, v{a3}
v_add3_u32 v{vZp}, v{vZp}, v{a2}, s{sB}
v_lshlrev_b32 v{a0}, 1, v{a0}
v_sub_u32 v{a0}, v{a0}, v{a2}
v_lshlrev_b32 v{a1}, 4, v{a1}
v_sub_u32 v{a0}, v{a0}, v{a1}
s_lshl_b32 s{sA}, s{sHw}, 5
s_sub_u32 s{sB}, s{sB}, s{sA}
s_add_u32 s{sB}, s{sB}, {56 + 3*UC_S}
v_add_u32 v{vF_}, s{sB}, v{a0}
v_add_u32 v{vG_}, {512 - 80}, v{vG_}
v_add_u32 v{vKxo}, s{sTab}, v{vL16}
s_xor_b32 s{sA}, s{S_W}, 1
s_mul_i32 s{sA}, s{sA}, {TABSZ}
s_add_u32 s{sA}, s{sA}, {L_TAB}
v_add_u32 v{vKxp}, s{sA}, v{vL16}
v_and_b32 v{a0}, 31, v{V_LANE}
v_lshlrev_b32 v{a2}, 2, v{a0}
v_sub_u32 v{a2}, v{a1}, v{a2}
s_add_u32 s{sA}, s{sInv}, {1088 + 124}
v_add_u32 v{vBk}, s{sA}, v{a2}
"""
def prewrite():
    e(f'''s_sub_u32 s{sA}, 3, s{S_HG}
    v_lshrrev_b32 v{a0}, s{sA}, v{V_LANE}
    v_lshlrev_b32 v{a1}, s{sA}, v{a0}
    v_sub_u32 v{a1}, v{V_LANE}, v{a1}
    s_lshr_b32 s{sA}, s{S_KS}, s{S_HG}
    v_mul_u32_u24 v{a0}, s{sA}, v{a0}
    v_lshl_add_u32 v{a0}, v{a1}, 6, v{a0}
    s_lshl2_add_u32 s{sA}, s{S_TILE}, s{S_W}
    s_lshl_b32 s{sA}, s{sA}, 9
    s_lshr_b32 s{sA}, s{sA}, s{S_HG}
    s_mul_i32 s{sB}, s{S_HG}, {WS_V - WS_K}
    s_add_u32 s{sA}, s{sA}, s{sB}
    s_mul_i32 s{sB}, s{S_C}, {8*KS}
    s_add_u32 s{sA}, s{sA}, s{sB}
    s_add_u32 s{sA}, s{sA}, {WS_K}''')
    hi(); e(f'buffer_store_dword v{a0}, v{a0}, {sr(SRD_WS)}, s{sA} offen sc1'); lo()
if OPT['pw'] == 1: prewrite()
if OPT['pfl'] and OPT['pfm']:
    ml = mid.split('\n'); k = OPT['pfl']
    while 'exec' in ''.join(ml[k-4:k+1]): k += 1
    mid = '\n'.join(ml[:k] + ['s_setprio 3', PFL, f"s_setprio {OPT['kgp']}"] + ml[k:])
e(mid)
if OPT['pw'] == 2: prewrite()
stamp(22)
e(f"""s_waitcnt lgkmcnt(0)
s_lshl_b32 s{sA}, s{sDs}, 4
s_lshr_b32 s{sLd}, s{sLd}, s{sA}
s_lshl_b32 s{sLd}, s{sLd}, 16
s_lshr_b32 s{sSk}, s{sSk}, s{sA}
s_lshl_b32 s{sSk}, s{sSk}, 16
v_mov_b32 v{a0}, s{sLd}
v_mul_f32 v{a0}, 0x3fb8aa3b, v{a0}
v_exp_f32 v{a0}, v{a0}
s_cmp_eq_u32 s{sHw}, 0
s_cselect_b32 s{sSk}, s{sSk}, 0
v_cvt_pk_bf16_f32 v{a0}, v{a0}, v{a0}
v_and_b32 v{vScl}, 0xffff0000, v{a0}
v_mul_f32 v{vKc}, 0xbfb8aa3b, v{vScl}
v_mul_f32 v{vKc+1}, 0.15915494, v{vScl}
v_mov_b32 v{vAdd}, 0
v_add_f32 v{vScl}, v{vScl}, v{vScl}
v_writelane_b32 v{vAdd}, s{sSk}, 0
s_mov_b32 s{sIt2}, 0
s_mov_b32 s{sSel}, 0x01000c0c""")
stamp(0)
e(f"""s_waitcnt vmcnt({(3 if OPT['tlb'] else 1) + (OPT['pw'] in (1, 2)) + (OPT['pfm'] > 0)})
v_and_b32 v{a0}, 0x7f807f80, v{vPar+2}
v_and_b32 v{a1}, 0x7f807f80, v{vPar+3}
v_pk_max_u16 v{a0}, v{a0}, v{a1}
v_lshlrev_b32 v{a1}, 16, v{a0}
v_max_u32 v{a0}, v{a0}, v{a1}""")
for q, n in enumerate((1, 2, 4, 8)):
    e(f's_nop 1\nv_max_u32_dpp v{a0}, v{a0}, v{a0} row_ror:{n} row_mask:0xf bank_mask:0xf')
e(f"""s_nop 0
v_readlane_b32 s{sA}, v{a0}, 0
v_readlane_b32 s{sB}, v{a0}, 16
v_readlane_b32 s{sInv}, v{a0}, 32
v_readlane_b32 s{sUns}, v{a0}, 48
s_max_u32 s{sA}, s{sA}, s{sB}
s_max_u32 s{sUns}, s{sUns}, s{sInv}
s_max_u32 s{sUns}, s{sUns}, s{sA}
s_and_b32 s{sUns}, s{sUns}, 0x7f800000
s_min_u32 s{sUns}, s{sUns}, 0x7e800000
s_sub_u32 s{sInv}, 0x7f000000, s{sUns}
v_mul_f32 v{vScl}, s{sUns}, v{vScl}
v_mul_f32 v{vSB}, 0x43000000, v{vScl}
v_mov_b32 v{vSB0}, v{vSB}
s_mov_b64 exec, 1
v_mov_b32 v{vSB0}, v{vScl}
s_mov_b64 exec, -1""")
stamp(1)
if OPT['abl'] == 2: e('s_endpgm')
def cm(jobs, conj):
    ng = 'neg_hi:[1,0,0]' if conj else 'neg_lo:[1,0,0]'
    return [f'v_pk_mul_f16 v{d}, v{x}, v{w} op_sel_hi:[1,0]' for d, x, w in jobs] + \
           [f'v_pk_fma_f16 v{d}, v{x}, v{w}, v{d} op_sel:[1,1,0] op_sel_hi:[0,1,1] {ng}' for d, x, w in jobs]
def wr(reg): return f'ds_write_addtid_b32 v{reg} offset:{TROW*(reg - vY)}'
assert vXt == vY + 16
zA, zB, tA, tB, pA, pB = vZ, vZ+2, vZ+4, vZ+6, vZ+8, vZ+10
X = vXt; Y = vY
an = {1: vAn, 2: vAn+1, 4: vAn+2, 8: Y+1, 16: Y+2, 32: Y+4, 64: Y+8, 128: X+21, 256: vAn+3, 512: vAn+4, 1024: vAn+5}
e('L_kg:')
stamp(14)
seq = f"""v_perm_b32 v{pA}, v{vPar}, v{vPar}, s{sSel}
v_mul_f32 v{pA}, 0x3fb8aa3b, v{pA}
v_exp_f32 v{pA}, v{pA}
v_perm_b32 v{pA+1}, v{vPar+1}, v{vPar+1}, s{sSel}
v_perm_b32 v{tA}, v{vPar+2}, v{vPar+2}, s{sSel}
v_perm_b32 v{tA+1}, v{vPar+3}, v{vPar+3}, s{sSel}
v_cvt_pk_bf16_f32 v{pA}, v{pA}, v{pA}
v_mul_f32 v{tA}, s{sInv}, v{tA}
v_and_b32 v{pA}, 0xffff0000, v{pA}
v_mul_f32 v{tA+1}, s{sInv}, v{tA+1}
v_pk_mul_f32 {vr(pA,2)}, {vr(pA,2)}, {vr(vKc,2)}
v_cvt_pk_f16_f32 v{X}, v{tA}, -v{tA+1}
v_mul_f32 v{pB}, 0x42800000, v{pA}
v_mul_f32 v{pB+1}, 0x42800000, v{pA+1}
v_exp_f32 v{pA}, v{pA}
v_fract_f32 v{pA+1}, v{pA+1}
v_exp_f32 v{pB}, v{pB}
v_fract_f32 v{pB+1}, v{pB+1}
v_cos_f32 v{zA}, v{pA+1}
v_sin_f32 v{zA+1}, v{pA+1}
v_cos_f32 v{zB}, v{pB+1}
v_sin_f32 v{zB+1}, v{pB+1}
v_pk_mul_f32 {vr(zA,2)}, {vr(zA,2)}, {vr(pA,2)} op_sel_hi:[1,0]
v_pk_mul_f32 {vr(zB,2)}, {vr(zB,2)}, {vr(pB,2)} op_sel_hi:[1,0]""".split('\n')
for st in range(6):
    chains = [(zA, tA, an[1 << st], st < 5)] + ([(zB, tB, an[64 << st], st < 4)] if st < 5 else [])
    for z, t, d, sq in chains:
        if sq: seq.append(f'v_pk_mul_f32 {vr(t,2)}, {vr(z,2)}, {vr(z,2)} op_sel_hi:[0,1]')
    for z, t, d, sq in chains: seq.append(f'v_cvt_pk_f16_f32 v{d}, v{z}, v{z+1}')
    for z, t, d, sq in chains:
        if sq: seq.append(f'v_pk_fma_f32 {vr(z,2)}, {vr(z,2)}, {vr(z,2)}, {vr(t,2)} op_sel:[1,1,0] op_sel_hi:[0,1,1] neg_lo:[1,0,0]')
seq += cm([(X+1, X, an[1]), (X+2, X, an[2]), (X+4, X, an[4]), (X+8, X, an[256]), (X+12, X, an[512]), (X+16, X, an[1024])], True)
seq += cm([(Y+3, Y+1, Y+2), (Y+12, Y+4, Y+8), (Y+5, Y+4, Y+1), (Y+6, Y+4, Y+2), (Y+9, Y+8, Y+1), (Y+10, Y+8, Y+2)], False)
seq += cm([(X+3, X+1, an[2]), (X+5, X+1, an[4]), (X+6, X+2, an[4]), (X+9, X+2, an[256]), (X+10, X+4, an[256]), (X+13, X+4, an[512]),
           (X+14, X+8, an[512]), (X+17, X+8, an[1024]), (X+18, X+12, an[1024]), (X+20, X+16, an[1024])], True)
seq += cm([(Y+7, Y+4, Y+3), (Y+11, Y+8, Y+3), (Y+13, Y+12, Y+1), (Y+14, Y+12, Y+2), (Y+15, Y+12, Y+3)], False)
seq += cm([(X+7, X+3, an[4]), (X+11, X+6, an[256]), (X+15, X+10, an[512]), (X+19, X+14, an[1024])], True)
e('\n'.join(seq))
stamp(15)
if OPT['kgw']:
    e(f'v_subrev_u32 v{a0}, 16, v{V_GRP}'); lwait(OPT['kgw'], addr=a0)
hi()
if OPT['abl'] != 4: e('\n'.join(wr(r) for r in range(Y + 1, X + 22)))
for k in range(4):
    o = vOp + 16*k
    e(f"""ds_read_b128 {vr(o,4)}, v{vRa} offset:{64*k}
    ds_read_b128 {vr(o+4,4)}, v{vRb_} offset:{37*TROW + 64*k}
    ds_read_b128 {vr(o+8,4)}, v{vRa} offset:{16*TROW + 64*k}
    ds_read_b128 {vr(o+12,4)}, v{vRa} offset:{32*TROW + 64*k}""")
if not OPT['uw']: e(f's_cmp_eq_u32 s{sIt2}, 0\ns_cbranch_scc1 L_kg_n\nbuffer_load_dword v{vFr}, v{vFu}, {sr(SRD_WS)}, 0 offen sc1\nL_kg_n:')
stamp(16)
def mf(c, a, b): return f'v_mfma_f32_16x16x32_f16 {vr(c,4)}, {vr(a,4)}, {vr(b,4)}, {vr(c,4)}'
late_m = []
for k in range(4):
    o = vOp + 16*k; y1 = vX1 + 4*(k & 1)
    p = cm([(y1+r, o+r, o+4+r) for r in range(4)], False)
    e(f's_waitcnt lgkmcnt({12 - 4*k})')
    e('\n'.join([mf(vAc, o+8, o)] + p[0:2] + late_m[:1] + p[2:4] + [mf(vAc+4, o+12, o)] + p[4:6] + late_m[1:] + p[6:8]))
    late_m = [mf(vAc+8, o+8, y1), mf(vAc+12, o+12, y1)]
e(f"""s_add_u32 s{sSel}, s{sSel}, 0x02020000
s_add_u32 s{sIt2}, s{sIt2}, 1
s_cmp_lg_u32 s{sIt2}, 2""")
e('\n'.join(late_m))
lo()
if OPT['pw'] == 3:
    e('s_cbranch_scc0 L_kg_e'); prewrite(); e('s_branch L_kg\nL_kg_e:')
else: e('s_cbranch_scc1 L_kg')
stamp(17)
if OPT['abl'] in (4, 8): e('s_endpgm')
def scl(i): return vSB0 if i == 4 else (vSB if i & 4 else vScl)
for i in range(8): e(f'v_mul_f32 v{vAc+i}, v{scl(i)}, v{vAc+i}')
e(f's_cmp_eq_u32 s{sHw}, 0')
for i in range(8, 16): e(f'v_mul_f32 v{vAc+i}, v{scl(i)}, v{vAc+i}')
e('s_cbranch_scc1 L_kx')
for i in range(8): e(f'v_swap_b32 v{vAc+i}, v{vAc+8+i}')
e(f"""L_kx:
ds_write_b128 v{vKxo}, {vr(vAc+8,4)}
s_mov_b32 exec_hi, 0
ds_write_b128 v{vKxo}, {vr(vAc+12,4)} offset:1024
s_mov_b64 exec, -1
s_waitcnt vmcnt({1 if OPT['pw'] else 0})
v_readfirstlane_b32 s{S_NONCE}, v{vPar+4}""")
arrive(2)
e(f's_add_u32 s{S_NONCE}, s{S_NONCE}, 1')
e(f'v_add_f32 v{vAc}, v{vAdd}, v{vAc}')
stamp(18)
def bprio():
    if OPT['prio']: e(f"s_setprio {OPT['bp']}")
def u_look():
    hi(); e(f'buffer_load_dword v{vFr}, v{vFu}, {sr(SRD_WS)}, 0 offen sc1'); bprio()
def u_fetch():
    hi()
    stamp(20)
    poll(vFu, first_issued=True, reg=vFr, sleep=OPT['usleep'])
    stamp(21)
    for k in range(2):
        e(f'buffer_load_dwordx4 {vr(U+4*k,4)}, v{vUa}, {sr(SRD_WS)}, s{sUl} offen offset:{2048*k} sc1')
    bprio()
if OPT['uw'] <= -2: u_look()
else: bprio()
stamp(19)
lwait(2, addr=vPair)
e(f"""ds_read_b128 {vr(vAc+8,4)}, v{vKxp}
ds_read_b128 {vr(vAc+12,4)}, v{vKxp} offset:1024
ds_write_b128 v{vRz}, {vr(vZer,4)}
s_mov_b32 s{sIt2}, 4
s_waitcnt lgkmcnt(1)""")
for i in range(4): e(f'v_pk_add_f32 {vr(vAc+2*i,2)}, {vr(vAc+2*i,2)}, {vr(vAc+8+2*i,2)}')
for i in range(4): e(f'v_cvt_pk_bf16_f32 v{vAc+8+i}, v{vAc+2*i}, v{vAc+2*i+1}')
e(f"""ds_write_b32 v{vKd}, v{vAc+8}
ds_write_b32 v{vKd1}, v{vAc+9}
s_mov_b64 exec, 0x1ffff
ds_write_b16 v{vKa0}, v{vAc+10}
s_mov_b64 exec, 0xffff
ds_write_b16_d16_hi v{vKa}, v{vAc+10} offset:64
ds_write_b16 v{vKa}, v{vAc+11} offset:32
ds_write_b16_d16_hi v{vKa}, v{vAc+11}
s_mov_b64 exec, -1""")
if OPT['pw']: e('s_waitcnt vmcnt(0)')
arrive(3)
if OPT['uw'] == -1: u_look()
if OPT['uw'] == -2: u_fetch()
def u_try():
    hi()
    e(f's_waitcnt vmcnt(0)\nv_cmp_ne_u32 vcc, s{S_NONCE}, v{vFr}\ns_mov_b64 s[88:89], vcc\ns_cbranch_vccnz L_utry')
    for k in range(2):
        e(f'buffer_load_dwordx4 {vr(U+4*k,4)}, v{vUa}, {sr(SRD_WS)}, s{sUl} offen offset:{2048*k} sc1')
    e(f's_branch L_utry2\nL_utry:\nbuffer_load_dword v{vFr}, v{vFu}, {sr(SRD_WS)}, 0 offen sc1\nL_utry2:')
    bprio()
if OPT['uw'] == -4: u_try()
lwait(3, addr=vPair)
if OPT['uw'] == -3: u_try()
stamp(2)
E = 64; BF = 40
e(f"""ds_read2_b32 {vr(E,2)}, v{vE1} offset1:1
ds_read2_b32 {vr(E+2,2)}, v{vE1b} offset0:2 offset1:3
ds_read2_b32 {vr(E+4,2)}, v{vKb} offset0:191 offset1:192
ds_read_b32 v{E+6}, v{vKb} offset:1020
ds_read_b32 v{E+7}, v{vKb} offset:1024""")
for q in range(8): e(f'ds_read2_b32 {vr(BF+2*q,2)}, v{vBk} offset0:{8*(q>>1) + 2*(q&1)} offset1:{8*(q>>1) + 2*(q&1) + 1}')
b = E + 12; t = E + 16
e(f"""s_waitcnt lgkmcnt(10)
v_perm_b32 v{b+2}, v{E+2}, v{E+2}, v{vSel+2}
v_perm_b32 v{b+3}, v{E+3}, v{E+2}, v{vSel+3}
v_perm_b32 v{b-2}, v{E+5}, v{E+4}, s{sE2}
v_perm_b32 v{b-1}, v{E+5}, v{E+4}, s{sE3}
v_perm_b32 v{b}, v{E}, v{E}, v{vSel}
v_perm_b32 v{b+1}, v{E+1}, v{E}, v{vSel+1}
v_mov_b32_dpp v{b-2}, v{b+2} wave_shr:1 row_mask:0xf bank_mask:0xf
v_mov_b32_dpp v{b-1}, v{b+3} wave_shr:1 row_mask:0xf bank_mask:0xf
ds_write_b128 v{vCd}, {vr(b,4)}""")
for i in range(4): e(f'v_alignbit_b32 v{t+i}, v{b+i}, v{b+i-1}, 16')
e(f'ds_write_b128 v{vCd}, {vr(t,4)} offset:{UC_S}')
for i in range(4): e(f'v_mov_b32 v{t+4+i}, v{b+i-1}')
e(f'ds_write_b128 v{vCd}, {vr(t+4,4)} offset:{2*UC_S}')
for i in range(4): e(f'v_alignbit_b32 v{t+8+i}, v{b+i-1}, v{b+i-2}, 16')
e(f'ds_write_b128 v{vCd}, {vr(t+8,4)} offset:{3*UC_S}\ns_waitcnt lgkmcnt(12)')
for i in range(4): e(f'v_perm_b32 v{t+12+i}, v{E+7}, v{E+6}, v{vSel+4+i}')
e(f'ds_write_b128 v{vZp}, {vr(t+12,4)}')
if OPT['uw'] <= -3: e('s_cmp_eq_u64 s[88:89], 0\ns_cbranch_scc1 L_uhave')
if OPT['uw'] != -2: u_fetch()
e('L_uhave:')
stamp(3)
e(f'v_and_b32 v{a0}, 31, v{V_LANE}')
swap23(a1, a0, a2)
e(f"""v_lshrrev_b32 v{a2}, 5, v{V_LANE}
v_lshl_add_u32 v{a1}, v{a1}, 1, v{a2}
s_add_u32 s{sA}, s{sHw}, 123
v_add_u32 v{a1}, s{sA}, v{a1}
s_mul_i32 s{sA}, s{sDs}, {PD}
s_add_u32 s{sA}, s{sA}, {L_KP}
v_and_b32 v{a3}, 3, v{a1}
v_mul_u32_u24 v{a3}, {PS - 4}, v{a3}
v_lshl_add_u32 v{a3}, v{a1}, 2, v{a3}
v_add_u32 v{vA0}, s{sA}, v{a3}
v_add_u32 v{a1}, 2, v{a1}
v_and_b32 v{a3}, 3, v{a1}
v_mul_u32_u24 v{a3}, {PS - 4}, v{a3}
v_lshl_add_u32 v{a3}, v{a1}, 2, v{a3}
v_add_u32 v{vA1}, s{sA}, v{a3}
v_lshlrev_b32 v{a2}, 3, v{a2}
v_sub_u32 v{a2}, v{a2}, v{a0}
v_cvt_f32_i32 v{a2}, v{a2}
v_add_f32 v{a3}, -1.0, v{a2}
v_add_f32 v{a2}, -2.0, v{a2}
v_cvt_pk_f16_f32 v8, v{a3}, v{a2}
s_waitcnt vmcnt(1)
ds_write_b128 v{vKp}, {vr(U,4)}
s_waitcnt vmcnt(0)
ds_write_b128 v{vKp}, {vr(U+4,4)} offset:128""")
arrive(4)
AP, BD, DP = 112, 136, 192
band = [f's_mov_b32 s{sA}, 0x4a204a20', f's_cmp_eq_u32 s{sHw}, 0', f's_cselect_b32 s{sE2}, 0x4d104d10, s{sA}', f's_mov_b32 s{sE3}, 0x4d804d80']
for q in range(12):
    band.append(f'v_pk_fma_f16 v{BD+q}, v8, v8, s{sE2} neg_lo:[1,0,0] neg_hi:[1,0,0] clamp')
    if q < 11: band.append(f'v_pk_add_f16 v8, v8, s{sE3}' if q % 4 == 3 else 'v_pk_add_f16 v8, v8, -2.0 op_sel_hi:[1,0]')
e('\n'.join(band))
lwait(4)
KG[0] = False
lo()
stamp(4)
if OPT['abl'] == 16: e('s_endpgm')
CB = 64
def cv_reads(k):
    b = CB + 12 * (k & 3)
    return [f'ds_read_b64 {vr(b,2)}, v{vF_} offset:{64*k}', f'ds_read_b64 {vr(b+2,2)}, v{vF_} offset:{64*k + 8}',
            f'ds_read_b128 {vr(b+8,4)}, v{vG_} offset:{512 + 80 - 16*k}', f'ds_read_b128 {vr(b+4,4)}, v{vG_} offset:{80 - 16*k}']
for tau in range(2):
    for kp in range(3): e(f'ds_read_b128 {vr(AP + 12*tau + 4*kp, 4)}, v{(vA0, vA1)[kp & 1]} offset:{256*tau + 16*(kp >> 1)}')
e('\n'.join(cv_reads(0) + cv_reads(1)))
assert OM == 3
late = f"""s_mov_b64 s[{SRD_B}:{SRD_B+1}], s[22:23]
s_mov_b32 s{SRD_B+2}, {448*896}
s_mov_b32 s{SRD_B+3}, 0x20000
s_mov_b64 s[{SRD_C}:{SRD_C+1}], s[24:25]
s_mov_b32 s{SRD_C+2}, {2048*1792}
s_mov_b32 s{SRD_C+3}, 0x20000
v_lshrrev_b32 v{a1}, 3, v{V_LANE}
v_and_b32 v{a2}, 7, v{V_LANE}
v_and_b32 v{a0}, 0x70, v{vL16}
v_mul_u32_u24 v{vYl}, {YS}, v{a1}
v_add_u32 v{vYl}, v{vYl}, v{a0}
v_lshlrev_b32 v{a3}, 2, v{V_LANE}
v_and_b32 v{a3}, 64, v{a3}
v_xor_b32 v{a0}, v{a0}, v{a3}
v_mul_u32_u24 v{vWoD}, 896, v{a1}
v_xor_b32 v{a3}, v{a1}, v{a2}
v_lshlrev_b32 v{a3}, 4, v{a3}
v_lshl_add_u32 v{vOut}, v{vWoD}, 1, v{a3}
v_add_u32 v{vWoD}, v{a0}, v{vWoD}
v_add_u32 v{vWoD+1}, {7168-1024}, v{vWoD}
v_lshrrev_b32 v{a0}, 4, v{V_LANE}
v_bfe_u32 v{a1}, v{V_LANE}, 2, 2
v_lshl_or_b32 v{a3}, v{a0}, 3, v{a1}
v_lshlrev_b32 v{a3}, 7, v{a3}
v_lshrrev_b32 v{a1}, 1, v{a1}
v_lshl_add_u32 v{a3}, v{a1}, 6, v{a3}
v_and_b32 v{a1}, 0x30, v{vL16}
s_movk_i32 s{sA}, {L_WO}
v_add3_u32 v{vWoR}, v{a1}, v{a3}, s{sA}
v_xor_b32 v{vWoR+1}, 64, v{vWoR}
v_and_b32 v{a1}, 15, v{V_LANE}
v_lshlrev_b32 v{vOl}, 4, v{a1}
v_mad_u32_u24 v{vOl}, v{a0}, s{S_KS}, v{vOl}
s_mul_i32 s{sOl}, s{S_I}, 9363
s_lshr_b32 s{sOl}, s{sOl}, 16
s_mul_i32 s{sA}, s{sOl}, 7
s_sub_u32 s{sCo}, s{S_I}, s{sA}
s_lshl2_add_u32 s{sOl}, s{sOl}, s{S_W}
s_lshl_b32 s{sFlU}, s{sHw}, 9
s_add_u32 s{sFlU}, s{sFlU}, s{sD}
s_lshl_b32 s{sFlU}, s{sFlU}, {FSH}
s_add_u32 s{sFlU}, s{sFlU}, {F_Y}
s_lshl_b32 s{sA}, s{sCo}, {1 + FSH}
s_sub_u32 s{sA}, s{sFlU}, s{sA}
v_min_u32 v{vFo}, 6, v{a1}
v_lshl_add_u32 v{vFo}, v{vFo}, {1 + FSH}, s{sA}
s_lshl_b32 s{sA}, s{S_W}, 11
s_add_u32 s{sA}, s{sA}, {L_SSM}
v_xor_b32 v{a3}, v{a0}, v{a2}
v_lshl_add_u32 v{a3}, v{a3}, 4, s{sA}
v_lshl_add_u32 v{vBw}, v{a1}, 7, v{a3}
v_add_u32 v{vBr}, s{sA}, v{vL16}
s_mul_i32 s{sOut}, s{sOl}, {16*1792}
s_lshl_b32 s{sA}, s{sCo}, 7
s_add_u32 s{sOut}, s{sOut}, s{sA}
s_add_u32 s{sOut}, s{sOut}, 896
s_add_u32 s{sOut+1}, s{sOut}, {8*1792}
s_lshl_b32 s{sOl}, s{sOl}, 8
s_add_u32 s{sOl}, s{sOl}, {WS_O}
s_lshl2_add_u32 s{sCh0}, s{S_C}, s{S_W}
s_lshl_b32 s{sCh0}, s{sCh0}, 4
s_lshr_b32 s{sA}, s{S_J}, 4
s_lshl_b32 s{sA}, s{sA}, 9
s_add_u32 s{sA}, s{sA}, s{sCh0}
s_lshl_b32 s{sA}, s{sA}, {FSH}
s_add_u32 s{sA}, s{sA}, {F_Y}
v_lshl_add_u32 v{vFy}, v{a1}, {FSH}, s{sA}
s_mov_b32 exec_lo, 0
v_mov_b32 v{vFy}, v{vFo}
s_mov_b64 exec, -1
v_lshrrev_b32 v{a1}, 3, v{V_LANE}
v_and_b32 v{a3}, 3, v{V_LANE}
v_lshl_or_b32 v{vYw}, v{a1}, 2, v{a3}
v_xor_b32 v{a3}, s{S_W}, v{a3}
v_lshl_or_b32 v{vYw}, v{vYw}, 2, v{a3}
v_bfe_u32 v{a3}, v{V_LANE}, 2, 1
v_lshl_or_b32 v{vYw}, v{vYw}, 1, v{a3}
v_lshlrev_b32 v{vYw}, 4, v{vYw}
v_and_b32 v{a3}, 4, v{a1}
v_add_u32 v{a3}, v{a3}, v{a1}
v_mul_u32_u24 v{vYs}, 1792, v{a3}
v_and_b32 v{a1}, 3, v{a1}
v_lshlrev_b32 v{a1}, 1, v{a1}
v_xor_b32 v{a1}, v{a1}, v{a2}
v_lshl_add_u32 v{vYs}, v{a1}, 4, v{vYs}
s_lshl_b32 s{sA}, s{sHw}, 12
s_add_u32 s{sB}, s{sP}, {P_X + 4096}
s_sub_u32 s{sB}, s{sB}, s{sA}
v_add_u32 v{vXp}, s{sB}, v{vL16}
s_add_u32 s{sA}, s{sA}, s{sP}
s_add_u32 s{sA}, s{sA}, {P_X}
v_add_u32 v{vXo}, s{sA}, v{vL16}
v_lshl_add_u32 v{vRb_}, v{a0}, 4, s{sA}
v_bfe_u32 v{a0}, v{V_LANE}, 2, 2
v_and_b32 v{a3}, 1, v{V_LANE}
v_lshl_or_b32 v{a2}, v{a3}, 3, v{a0}
v_lshl_add_u32 v{vTr}, v{a2}, 7, v{vRb_}
v_and_b32 v{a2}, 2, v{V_LANE}
v_lshl_add_u32 v{vTr}, v{a2}, 2, v{vTr}""".split('\n')
def fill(n):
    while 'exec_lo' in ''.join(late[max(0, n-2):n]): n += 1
    e('\n'.join(late[:n])); del late[:n]
fill(16)
e('s_waitcnt lgkmcnt(8)')
for kp in range(3):
    for tau in range(2):
        d = vr(DP + 16*tau, 16)
        e(f'v_mfma_f32_32x32x16_bf16 {d}, {vr(AP + 12*tau + 4*kp, 4)}, {vr(BD + 4*kp, 4)}, {"0" if kp == 0 else d}')
        fill(6)
def cv_iter(first):
    for k in range(4):
        b = CB + 12 * k
        rd = cv_reads(k + 2)
        z = first and k == 0
        e('s_waitcnt lgkmcnt(4)')
        e(f'v_mfma_f32_32x32x16_bf16 {vr(T1,16)}, {vr(b,4)}, {vr(b+8,4)}, {"0" if z else vr(T1,16)}')
        e('\n'.join(rd))
        if k == 3:
            e(f'v_add_u32 v{vF_}, 256, v{vF_}\nv_subrev_u32 v{vG_}, 64, v{vG_}')
            if not first: e(f's_add_u32 s{sIt2}, s{sIt2}, 1\ns_cmp_lg_u32 s{sIt2}, 11')
        e(f'v_mfma_f32_32x32x16_bf16 {vr(T0,16)}, {vr(b,4)}, {vr(b+4,4)}, {"0" if z else vr(T0,16)}')
        if first: fill(6 if k < 3 else 99)
cv_iter(True)
e('L_cv:')
cv_iter(False)
e('s_cbranch_scc1 L_cv')
cv = [f'v_cvt_pk_bf16_f32 v{AP+i}, v{DP+2*i}, v{DP+2*i+1}' for i in range(16)]
for k in range(2):
    e('\n'.join(cv[4*k:4*k+4]))
    e(f's_waitcnt lgkmcnt({4 - 4*k})')
    e(f'v_mfma_f32_32x32x16_bf16 {vr(T1,16)}, {vr(CB+12*k,4)}, {vr(CB+12*k+8,4)}, {vr(T1,16)}')
for q in range(4):
    e('\n'.join(cv[8+4*q:12+4*q]))
    e(f'v_mfma_f32_32x32x16_bf16 {vr(T1,16)}, {vr(AP+4*q,4)}, {vr(BF+4*q,4)}, {vr(T1,16)}')
if OPT['prio']: e(f"s_setprio {OPT['pr']}")
stamp(5)
if OPT['abl'] == 32: e('s_endpgm')
e(f"""s_mul_i32 s{sA}, s{sD}, {YS}
s_lshl_b32 s{sB}, s{sHw}, 11
s_add_u32 s{sA}, s{sA}, s{sB}
s_add_u32 s{sA}, s{sA}, {WS_Y}
s_nop 4""")
def xch(give, keep):
    for i in range(4): e(f'ds_write_b128 v{vXp}, {vr(give+4*i,4)} offset:{1024*i}')
    arrive(6); lwait(6, addr=vPair)
    for i in range(4): e(f'ds_read_b128 {vr(give+4*i,4)}, v{vXo} offset:{1024*i}')
    e('s_waitcnt lgkmcnt(0)')
e(f's_cmp_eq_u32 s{sHw}, 0\ns_cbranch_scc1 L_x0')
xch(T0, T1)
e('s_branch L_x1\nL_x0:')
xch(T1, T0)
e('L_x1:')
for i in range(8): e(f'v_pk_add_f32 {vr(T0+2*i,2)}, {vr(T0+2*i,2)}, {vr(T1+2*i,2)}')
for i in range(8): e(f'v_cvt_pk_bf16_f32 v{T1+i}, v{T0+2*i}, v{T0+2*i+1}')
e(f"""buffer_store_dwordx4 {vr(T1,4)}, v{vL16}, {sr(SRD_WS)}, s{sA} offen sc1
buffer_store_dwordx4 {vr(T1+4,4)}, v{vL16}, {sr(SRD_WS)}, s{sA} offen offset:1024 sc1
v_subrev_u32 v{a0}, 16, v{V_GRP}""")
if OM:
    e(f'''v_mov_b64 {vr(T0,2)}, -1
    v_mov_b64 {vr(T0+2,2)}, -1
    s_mul_i32 s{sA}, s{sCo}, {8*KS}
    s_add_u32 s{sA}, s{sA}, s{sOl}
    s_add_u32 s{sSk}, s{sA}, {4*KS}
    buffer_store_dwordx4 {vr(T0,4)}, v{vOl}, {sr(SRD_WS)}, s{sA} offen sc1
    buffer_store_dwordx4 {vr(T0,4)}, v{vOl}, {sr(SRD_WS)}, s{sSk} offen sc1''')
sync(7)
if OPT['only'] != 1: lwait(7, addr=a0)
e('s_waitcnt vmcnt(0)')
publish(sFlU, a0)
stamp(6)
if OPT['abl'] == 33: e('s_endpgm')
e(f"""s_mul_i32 s{sA}, s{S_W}, {16*896}
s_lshl_b32 s{sB}, s{sCo}, 7
s_add_u32 s{sA}, s{sA}, s{sB}
s_lshl_b32 s{sB}, s{S_W}, 11
s_add_u32 s{sB}, s{sB}, {L_WO}""")
for ch in range(7):
    e(f"""s_add_u32 m0, s{sB}, {8192*ch}
    s_add_u32 s{sSk}, s{sA}, {64*896*ch}
    buffer_load_dwordx4 v{vWoD}, {sr(SRD_B)}, s{sSk} offen lds
    buffer_load_dwordx4 v{vWoD+1}, {sr(SRD_B)}, s{sSk} offen offset:1024 lds
    s_waitcnt vmcnt({OPT['wodepth'] if ch < 6 else 0})""")
WF, OF, OC = 8, 168, 224
arrive(8)
e(f"""buffer_load_dword v{a0}, v{vFy}, {sr(SRD_WS)}, 0 offen sc1
s_mul_i32 s{sA}, s{sCh0}, {YS}
s_lshl_b32 s{sSk}, s{S_J}, 7
s_add_u32 s{sA}, s{sA}, s{sSk}
s_add_u32 s{sA}, s{sA}, {WS_Y}
s_add_u32 s{sSk}, s{sA}, {8*YS}""")
lwait(8)
stamp(7)
if OPT['abl'] == 34: e('s_endpgm')
def wo_reads(k):
    r = []
    for t in range(4):
        for hf in range(2):
            r.append(f'ds_read_b64_tr_b16 {vr(WF + 16*(k%10) + 4*t + 2*hf, 2)}, v{vWoR + (t>>1)} offset:{4096*k + 512*hf + 8*(t&1)}')
    return r
for k in range(10): e('\n'.join(wo_reads(k)))
arrive(9)
poll(vFy, first_issued=True, sleep=OPT['ysleep'], reg=a0)
stamp(8)
if OPT['abl'] == 35: e('s_endpgm')
e(f"""buffer_load_dwordx4 {vr(OF,4)}, v{vYl}, {sr(SRD_WS)}, s{sA} offen sc1
buffer_load_dwordx4 {vr(OF+4,4)}, v{vYl}, {sr(SRD_WS)}, s{sSk} offen sc1
s_lshr_b32 s{sA}, s{S_J}, 4
s_lshl_b32 s{sA}, s{sA}, 10
s_and_b32 s{sB}, s{S_J}, 3
s_lshl_b32 s{sB}, s{sB}, 8
s_add_u32 s{sA}, s{sA}, s{sB}
s_and_b32 s{sB}, s{S_J}, 8
s_lshl1_add_u32 s{sA}, s{sB}, s{sA}
s_and_b32 s{sB}, s{S_J}, 4
s_add_u32 s{sA}, s{sA}, s{sB}
s_lshl_b32 s{sB}, s{S_W}, 6
s_add_u32 s{sA}, s{sA}, s{sB}
s_mul_i32 s{sA}, s{sA}, 1792
s_lshl_b32 s{sB}, s{S_C}, 7
s_add_u32 s{sA}, s{sA}, s{sB}
s_add_u32 s{sB}, s{sA}, {32*1792}
v_xor_b32 v{a0}, 64, v{vBw}""")
lwait(9)
e(f"""s_waitcnt vmcnt(0)
ds_write_b128 v{vXo}, {vr(OF,4)}
ds_write_b128 v{vXo}, {vr(OF+4,4)} offset:1024""")
for z in range(2):
    for hf in range(2):
        e(f'ds_read_b64_tr_b16 {vr(OF + 8 + 4*z + 2*hf, 2)}, v{vTr} offset:{64*z + 512*hf}')
e(f"""s_waitcnt lgkmcnt(0)
ds_write_b128 v{vYw}, {vr(OF+8,4)} offset:{L_SSM}
ds_write_b128 v{vYw}, {vr(OF+12,4)} offset:{L_SSM + 4096}""")
sync(10)
e(f"""ds_read_b128 {vr(OF+8,4)}, v{vBr}
ds_read_b128 {vr(OF+12,4)}, v{vBr} offset:1024
s_waitcnt lgkmcnt(0)
buffer_store_dwordx4 {vr(OF+8,4)}, v{vYs}, {sr(SRD_C)}, s{sA} offen {OUTM}
buffer_store_dwordx4 {vr(OF+12,4)}, v{vYs}, {sr(SRD_C)}, s{sB} offen {OUTM}""")
if OPT['only'] == 1:
    stamp(9); stamp(13); prof_out(); e('s_endpgm')
if OM == 4:
    e(f'''s_lshl2_add_u32 s{sA}, s{S_J}, s{S_W}
    s_lshr_b32 s{sA}, s{sA}, 1
    s_lshl_b32 s{sA}, s{sA}, {4 + FSH}
    s_add_u32 s{sA}, s{sA}, {F_O}
    v_and_b32 v{vFo}, 15, v{V_LANE}
    v_lshl_add_u32 v{vFo}, v{vFo}, {FSH}, s{sA}''')
sOk, sLast = 4, 18
for k in range(14): e(f's_add_u32 s{sOk+k}, s{sOl}, {4*KS*k}')
if OPT['touch'] and OPT['tsa']: e('s_mov_b64 exec, 0\ns_branch L_qad0\nL_qad_ret:\ns_mov_b64 exec, -1')
e(f's_min_u32 s{S_BOUND}, s{S_BOUND}, 0x4000')
stamp(9)
e('L_obar:')
e('s_barrier        ; released once the four attention waves have stored their rows')
stamp(10)
if OPT['osleep']: e(f"s_sleep {OPT['osleep']}")
if OM != 3: poll(vFo, sleep=OPT['hsleep'])
stamp(11)
def o_load(k): return f'buffer_load_dwordx4 {vr(OF+4*k,4)}, v{vOl}, {sr(SRD_WS)}, s{sOk+k} offen sc1'
OD = OPT['od']
def o_chk(k):
    o = OF + 4*k
    return [f's_waitcnt vmcnt({min(OD - 1, 13 - k)})', f'v_max3_u32 v6, v{o}, v{o+1}, v{o+2}', f'v_max_u32 v6, v6, v{o+3}', 'v_cmp_eq_u32 vcc, -1, v6']
for k in range(OD): e(o_load(k))
e('\n'.join(o_chk(0)))
for k in range(14):
    o = OF + 4*k
    m = [f'v_mfma_f32_16x16x32_bf16 {vr(OC+4*t,4)}, {vr(WF + 16*(k%10) + 4*t, 4)}, {vr(o,4)}, {"0" if k == 0 else vr(OC+4*t,4)}' for t in range(4)]
    rd = wo_reads(10 + (k - 1) // 2)[4*((k - 1) & 1):][:4] if 1 <= k <= 8 else []
    if k == 10: e('s_waitcnt lgkmcnt(0)')
    e(f's_cbranch_vccnz L_or{k}\nL_og{k}:')
    c = o_chk(k + 1) if k < 13 else ['', '', '', '']
    ld = [o_load(k + OD)] if k + OD < 14 else []
    e('\n'.join(ld + [m[0]] + rd[:2] + [m[1]] + rd[2:] + [c[0], c[1], m[2], c[2], c[3], m[3]]))
stamp(12)
e('s_nop 4')
for i in range(8): e(f'v_cvt_pk_bf16_f32 v{16+i}, v{OC+2*i}, v{OC+2*i+1}')
e(f"""ds_write_b128 v{vBw}, {vr(16,4)}
ds_write_b128 v{a0}, {vr(20,4)}
ds_read_b128 {vr(24,4)}, v{vBr}
ds_read_b128 {vr(28,4)}, v{vBr} offset:1024
s_or_b32 s{sA}, s2, s{S_W}
s_waitcnt lgkmcnt(1)
buffer_store_dwordx4 {vr(24,4)}, v{vOut}, {sr(SRD_C)}, s{sOut} offen {OUTM2}
s_waitcnt lgkmcnt(0)
buffer_store_dwordx4 {vr(28,4)}, v{vOut}, {sr(SRD_C)}, s{sOut+1} offen {OUTM2}
s_cbranch_scc1 L_noepoch""")
publish(sA, 6)
e('L_noepoch:')
if OPT['prof']:
    e('s_waitcnt vmcnt(0)')
stamp(13)
prof_out()
e('L_end:\ns_endpgm')
for k in range(14):
    c = o_chk(k)
    n = min(14, k + OD); w = min(n, k + OPT['sw'])
    e(f'''L_or{k}:
    {chr(10).join(o_load(q) for q in range(w, n))}
    L_oc{k}:
    {chr(10).join(o_load(q) for q in range(k, w))}
    s_sub_u32 s{S_BOUND}, s{S_BOUND}, 1
    s_cselect_b32 s{S_BOUND}, 0, s{S_BOUND}
    s_waitcnt vmcnt(0)
    s_cbranch_scc1 L_og{k}
    {c[1]}
    {c[2]}
    {c[3]}
    s_cbranch_vccnz L_oc{k}
    s_branch L_og{k}''')
sec('idle')
ROLE[0] = 2
e('L_ssm_idle:')
if OPT['only'] == 2:
    arrive(1); e('s_endpgm')
hi()
e(f"""v_lshrrev_b32 v10, 3, v{V_LANE}
v_and_b32 v11, 7, v{V_LANE}
v_lshlrev_b32 v11, 4, v11
v_mul_u32_u24 v5, 896, v10
v_add_u32 v5, v5, v11
v_add_u32 v6, {7168-1024}, v5
s_lshl2_add_u32 s60, s{S_J}, s{S_W}
s_mul_i32 s61, s60, {16*896}
s_mul_i32 s62, s{S_W}, 14336
s_add_u32 s62, s62, {L_SSM}
s_mov_b32 s{SRD_A+2}, {2048*896}
s_mov_b32 s{SRD_A+3}, 0x20000
s_waitcnt lgkmcnt(0)
s_load_dword s{S_NONCE}, s[28:29], 0
s_mov_b64 s[{SRD_A}:{SRD_A+1}], s[4:5]""")
for c in range(7):
    e(f"""s_add_u32 m0, s62, {2048*c - 128*c}
    s_nop 0
    buffer_load_dwordx4 v5, {sr(SRD_A)}, s61 offen offset:{128*c} lds
    buffer_load_dwordx4 v6, {sr(SRD_A)}, s61 offen offset:{1024 + 128*c} lds""")
    if c == 1:
        srd(SRD_WS, 28, WS_SIZE)
        e(f"""; transposing read: row = 8*(cc&1)+r', byte = 8*(2G+(cc>>1))
        v_mul_u32_u24 v7, {QS}, v10
        v_add_u32 v7, v7, v11
        v_bfe_u32 v8, v{V_LANE}, 2, 2
        v_and_b32 v9, 1, v{V_LANE}
        v_lshl_or_b32 v8, v9, 3, v8
        v_xor_b32 v8, 3, v8
        v_lshl_add_u32 v8, v8, 7, s62
        v_and_b32 v9, 0x30, v{V_LANE}
        v_add_u32 v8, v8, v9
        v_and_b32 v9, 2, v{V_LANE}
        v_lshl_add_u32 v8, v9, 2, v8
        s_lshl_b32 s63, s60, 7
        s_add_u32 s63, s63, {WS_U}
        s_mul_i32 s65, s{S_J}, {US}
        v_mov_b32 v12, 0x3f803f80
        v_mov_b32 v13, v12
        v_mov_b64 v[14:15], v[12:13]
        v_lshlrev_b32 v9, 4, v{V_LANE}
        s_lshl2_add_u32 s66, s{S_TILE}, s{S_W}
        s_lshl_b32 s66, s66, 8
        s_mul_i32 s67, s{S_HG}, {QS}
        s_add_u32 s66, s66, s67
        s_add_u32 s66, s66, {WS_V + 112*QS}
        s_add_u32 s65, s65, {F_U}""")
e('s_waitcnt lgkmcnt(0)')
TW = 0
if OPT['fwm'] & 1:
    TW = 1
    e(f'''v_mov_b32 v{V_T}, s{S_NONCE}
    v_lshlrev_b32 v5, 2, v{V_LANE}
    s_mov_b32 exec_hi, 0
    buffer_store_dword v{V_T}, v5, {sr(SRD_WS)}, s65 offen sc1
    s_mov_b64 exec, -1''')
e(f's_add_u32 s{S_NONCE}, s{S_NONCE}, 1')
arrive(1)
def t_rd(c):
    return [f'ds_read_b64_tr_b16 {vr(16 + 8*c + 4*z + 2*hf, 2)}, v8 offset:{2048*c + 64*z + 512*(1-hf)}' for z in range(2) for hf in range(2)]
e(f's_waitcnt vmcnt({12 + TW})'); stamp(1); e('\n'.join(t_rd(0)))
for c in range(7):
    if c < 6:
        e(f's_waitcnt vmcnt({10 + TW})'); e('\n'.join(t_rd(c + 1)))
    e(f"""s_add_u32 s64, s63, {8*QS}
    s_waitcnt lgkmcnt({4 if c < 6 else 0})
    buffer_store_dwordx4 {vr(16+8*c,4)}, v7, {sr(SRD_WS)}, s63 offen sc1
    buffer_store_dwordx4 {vr(20+8*c,4)}, v7, {sr(SRD_WS)}, s64 offen sc1
    s_add_u32 s63, s63, {16*QS}""")
assert OPT['ur'] == 1
e(f'''; the column quad of ones that gives the softmax row sums
s_mov_b64 exec, 0xffff
buffer_store_dwordx4 v[12:15], v9, {sr(SRD_WS)}, s66 offen sc1''')
stamp(2)
e(f'''s_mov_b64 exec, 1
v_mov_b32 v5, s{S_NONCE}
s_cmp_lg_u32 s{S_W}, 0
s_waitcnt vmcnt(0)
s_barrier
s_cbranch_scc1 L_idle_end
buffer_store_dword v5, v9, {sr(SRD_WS)}, s65 offen sc1''')
e('L_idle_end:\ns_mov_b64 exec, -1'); stamp(4)
if OPT['wop']:
    e(f'''s_mov_b64 s[{SRD_A}:{SRD_A+1}], s[22:23]
    s_mov_b32 s{SRD_A+2}, {448*896}
    s_mul_i32 s60, s60, {25*128}
    v_lshlrev_b32 v5, 7, v{V_LANE}
    s_mov_b64 exec, 0x1ffffff
    buffer_load_dword v6, v5, {sr(SRD_A)}, s60 offen
    s_mov_b64 exec, -1''')
prof_out()
e('s_endpgm')
def ilen(l):
    l = l.split(';')[0].strip()
    if not l or l.endswith(':'): return 0
    op = l.split()[0]
    if op.startswith(('buffer_', 'global_', 'ds_', 'v_mfma', 'v_smfmac', 'v_pk_', 's_load', 'v_cvt_pk', 'v_lshl_', 'v_perm', 'v_bfe', 'v_max3', 'v_align')): return 8
    return 8 if '0x' in l else 4
pads = []; qads = []
if OPT['touch']:
    for n in ('mha', 'ssm'):
        new = []; acc = OPT['touch'] if n == 'mha' else -OPT['touch']; loop = None; late_ = False
        for l in SEC[n]:
            t = l.strip()
            def pad():
                if late_ and OPT['tsa']:
                    qads.append(len(qads)); new.extend([f'L_qad{qads[-1]}:', f'    s_cbranch_execz L_qxt{qads[-1]}'])
                else:
                    pads.append(len(pads)); new.extend([f'L_pad{pads[-1]}:', f'    s_cbranch_execz L_nxt{pads[-1]}'])
            if t in ('L_att:', 'L_cv:'): pad(); acc = 0
            if t in ('L_att:', 'L_cv:'): loop = t[:-1]
            if acc >= OPT['touch'] and (loop is None or acc >= 1200) and not t.endswith(':') and 'exec' not in ''.join(new[-4:]).replace('execz', ''):
                pad(); acc = 0
            if loop and t == f's_cbranch_scc1 {loop}': loop = None
            if t in ('L_gemm_v:', 'L_gemm_done:'): acc = OPT['touch']
            if t == 'L_obar:': late_ = True; acc = OPT['touch'] // 2
            new.append(l); acc += ilen(l)
        SEC[n] = new
sec('idle')
e('L_tmha:')
if pads:
    e(f's_and_b32 s{sTmp}, s{S_J}, 3\ns_lshl2_add_u32 s{sTmp}, s{sTmp}, s{S_W}\ns_mov_b64 exec, 0')
    for i in range(min(16, len(pads))):
        e(f's_cmp_eq_u32 s{sTmp}, {i}\ns_cbranch_scc1 L_pad{i}')
    e('L_pad_ret:\ns_mov_b64 exec, -1')
e('s_branch L_gemm_t')
fix = {f'L_nxt{i}': (f'L_pad{i+16}' if i + 16 < len(pads) else 'L_pad_ret') for i in pads}
fix.update({f'L_qxt{i}': (f'L_qad{i+1}' if i + 1 < len(qads) else 'L_qad_ret') for i in qads})
for n in SEC:
    SEC[n] = [(l.rsplit(' ', 1)[0] + ' ' + fix[l.rsplit(' ', 1)[1]]) if 'L_nxt' in l or 'L_qxt' in l else l for l in SEC[n]]
print('pads', len(pads), len(qads), file=sys.stderr)
ORDER = [['pro', 'ssm0', 'mha0', 'idle', 'ssm', 'mha'], ['pro', 'ssm0', 'mha0', 'mha', 'ssm', 'idle'],
         ['pro', 'ssm0', 'mha0', 'ssm', 'mha', 'idle'], ['pro', 'ssm0', 'idle', 'mha0', 'mha', 'ssm'],
         ['pro', 'ssm0', 'ssm', 'mha0', 'mha', 'idle'], ['pro', 'ssm0', 'ssm', 'idle', 'mha0', 'mha']][OPT['ord']] + ['cold', 'gt', 'fb']
SEC.setdefault('cold', [])
def add_nt(n, pred):
    SEC[n] = [(l.replace(' lds', ' nt lds') if l.endswith(' lds') else l + ' nt') if pred(l) else l for l in SEC[n]]
for n in ('mha0', 'mha', 'gt'):
    if OPT['nt'] & 1: add_nt(n, lambda l: l.endswith(' lds') and sr(SRD_A) in l)
    if OPT['nt'] & 2: add_nt(n, lambda l: l.endswith(' lds') and sr(SRD_B) in l)
if OPT['nt'] & 4: add_nt('idle', lambda l: l.endswith(' lds'))
if OPT['nt'] & 8: add_nt('ssm0', lambda l: 'global_load' in l)
if OPT['nt'] & 16: add_nt('ssm', lambda l: l.endswith(' lds'))
if OPT['nt'] & 32: add_nt('ssm', lambda l: 'buffer_store' in l and sr(SRD_C) in l)
BODY = sum((SEC[n] for n in ORDER), [])
def sizes(lines):
    import subprocess, re, os, tempfile
    d = tempfile.mkdtemp()
    open(d + '/a.s', 'w').write('.amdgcn_target "amdgcn-amd-amdhsa--gfx950"\n.text\n' + '\n'.join(lines) + '\n')
    subprocess.check_call(['clang', '-x', 'assembler', '-target', 'amdgcn-amd-amdhsa', '-mcpu=gfx950', '-c', d + '/a.s', '-o', d + '/a.o'])
    o = subprocess.check_output(['llvm-objdump', '-d', '--mcpu=gfx950', d + '/a.o']).decode()
    return [4 * len(m.group(1).split()) for m in re.finditer(r'// [0-9A-F]{12}: ((?:[0-9A-F]{8} ?)+)', o)]
def is_ins(l):
    t = l.split(';')[0].strip()
    return bool(t) and not t.endswith(':')
def widen(l):
    import re
    t = l.split(';')[0].strip(); op = t.split()[0]
    if op.startswith('v_') and not op.startswith(('v_readfirstlane', 'v_swap', 'v_permlane', 'v_nop')):
        return l.replace(op, op + '_e64', 1)
    return None
PGL = [l for b, l in ((1, 'L_mha:'), (2, 'L_gemm_v:'), (4, 'L_att:'), (8, 'L_ssm_idle:'), (16, 'L_ssm:'), (32, 'L_mha1:')) if OPT['pgm'] & b]
if OPT['al']:
    sz = iter(sizes(BODY + ['L_pg0:', 'L_pg1:']))
    npg = 0; inatt = False
    I = [[l, next(sz) if is_ins(l) else 0] for l in BODY]
    res = []; addr = 0; nw = nn = 0
    for i, (l, n) in enumerate(I):
        if l in PGL: addr = 0
        if l == 'L_att:': inatt = True; page = addr >> 12
        if OPT['pt'] and inatt and n and addr >> 12 != page and npg < 2 and res[-1][0].strip().startswith(('v_mfma', 'v_smfmac')):
            res += [[f'L_pg{npg}:', 0], ['    s_cbranch_execz L_pg_ret', 4]]; addr += 4; npg += 1; page = addr >> 12
        if n == 8 and addr % 8 == 4:
            run = 0
            for l2, n2 in I[i:]:
                if n2 == 4: break
                run += n2 == 8
            cross = sum(1 for k in range(run) if (addr + 8*k) % 32 == 28)
            if cross:
                j = len(res) - 1; done = False; aj = addr
                while j >= 0 and res[j][1] in (0, 4):
                    aj -= res[j][1]
                    t = res[j][0].strip()
                    if t.startswith(('s_branch', 's_endpgm', 's_setpc')):
                        res.insert(j + 1, ['    s_nop 0', 4]); done = True; break
                    w = widen(res[j][0]) if res[j][1] == 4 and aj % 32 != 28 else None
                    if w:
                        res[j] = [w, 8]; done = True; nw += 1; break
                    j -= 1
                if not done and run >= OPT['alr']:
                    k = len(res)
                    while res[k-1][1] == 0: k -= 1
                    res.insert(k, ['    s_nop 0', 4]); done = True; nn += 1
                if done: addr += 4
        res.append([l, n]); addr += n
    BODY = [l for l, n in res]
    if OPT['pt']:
        for q in range(npg, 2): BODY.insert(BODY.index('L_pg_ret:'), f'L_pg{q}:')
    print('aligned: widened', nw, 'nops', nn, 'bytes', addr, file=sys.stderr)
PG = '' if OPT['pg'] < 0 else f".p2align 12\n.fill {OPT['pg'] * 64}, 4, 0xbf800000\n"
for l in PGL: BODY.insert(BODY.index(l), '.p2align 12')
hdr = open('header.txt').read()
txt = hdr + f'''; @launch grid=(256,1,1) block=(512,1,1) lds={L_TOT}
.amdgcn_target "amdgcn-amd-amdhsa--gfx950"
.text
.globl {KN}
{PG}.p2align 8
.type {KN},@function
{KN}:
''' + '\n'.join(BODY) + f'''
.section .rodata,"a"
.p2align 6
.amdhsa_kernel {KN}
  .amdhsa_next_free_vgpr 256
  .amdhsa_next_free_sgpr 102
  .amdhsa_accum_offset 256
  .amdhsa_group_segment_fixed_size 0
  .amdhsa_kernarg_size 104
  .amdhsa_user_sgpr_count 2
  .amdhsa_user_sgpr_kernarg_segment_ptr 1
  .amdhsa_system_sgpr_workgroup_id_x 1
.end_amdhsa_kernel
'''
open(sys.argv[1], 'w').write(txt)
```

```python
import sys, struct
def fl(x): return hex(struct.unpack('<I', struct.pack('<f', x))[0])

KN = 'concat_heads__ssm_conv_s4d__softmax_full_mha__prompt_kernel'
OPT = dict(te=0, st=0, pt=1, rdc=0, wop=0, wp=1, lp=0, unr=1, pfl=0, tsa=1, od=8, sw=3, nobatch=0, fwm=0, pg=13, pgm=32, pfm=7, rdr=0, pw=0, dm=0, rdf=0, rdv=0, rdt=0, only_st=0, ur=1, us=128, rd0=-1, rdm=0, probe=0, poff=0xc00000, nt=0, rdn=0, al=1, alr=6, fw=0, rsleep=0, hsleep=0, ord=2, nb=0, tb=13, tq=0, chkk=99, uw=-1, cw=0, s6=5, tskip=1, ones=1, pa=1, pr=2, pf=2, wgf=2, ax=0, bp=1, qa=7, n0=4, ilv=8, tlb=0, ulook=1, kgp=1, pad=0, ypad=0, omode=3, ksleep=0, usleep=4, obar=3, osleep=0, pubk=8, abl=0, touch=1024, gs=0, kgw=0, xg=5, gx=0, pm=2, ps=0, rt=0, upub=1, kgx=0, outsc=3, ysleep=8, wodepth=2, wq_mid=0, pollk=99, rd=-1, rdrole=0, only=0, safe=0, rot=0, prof=0, fs=128, force_fb=0, wq_early=7, prio=1)
for a in sys.argv[2:]:
    k, v = a.split('=')
    assert k in OPT, k
    OPT[k] = int(v, 0)

FS = OPT['fs']
FSH = FS.bit_length() - 1
F_KV = 0x1000
F_O = F_KV + 1024 * FS
F_U = F_O + 1024 * FS
F_Y = F_U + 1024 * FS
F_H = F_Y + 1024 * FS
WS_K = 0x100000
WS_V = 0x300000
WS_O = 0x500000
WS_U = 0x700000
WS_Y = 0x900000
QS = 16384 + OPT['pad']; KS = 2 * QS; YS = 4096 + OPT['ypad']
S_KS = 57
WS_PROF = 0xb00000
F_U = 0xb80000 if OPT['us'] * OPT['ur'] > 4096 else F_U
US = OPT['us']
WS_SIZE = 0x1000000
L_SSM = 1024
L_W = 57344
L_RB = 65536
L_X = 114688
L_TOT = 163840
TROW = 288
TABSZ = 38 * TROW
L_TAB = L_SSM
P_SZ = 2 * TABSZ
P_UC = 1536
UC_S = 2240
P_KD = TABSZ + 1536
P_X = TABSZ
PS = 1552
PD = 4 * PS
L_KP = L_TAB + 4 * TABSZ
assert P_UC + 4 * UC_S <= TABSZ and P_KD + 1600 <= P_SZ and P_X + 8192 <= P_SZ and L_KP % 16 == 0 and L_KP + 2 * PD <= L_W
L_WO = L_SSM

S_WV, S_W, S_HG, S_C, S_TILE, S_J, S_H, S_NONCE, S_O0, S_I = range(30, 40)
SRD_WS, SRD_A, SRD_B, SRD_C = 40, 44, 48, 52
S_BOUND = 56
S_T0 = 58

SEC = {}
out = None
def sec(n):
    global out
    out = SEC.setdefault(n, [])
sec('pro')
def e(s):
    for l in s.split('\n'):
        l = l.strip()
        if l:
            out.append(l if l.endswith(':') else '    ' + l)
_lab = [0]
def lab(p):
    _lab[0] += 1
    return f'L_{p}_{_lab[0]}'
def vr(a, n):
    return f'v[{a}:{a+n-1}]' if n > 1 else f'v{a}'
def srd(d, b, n):
    e(f's_mov_b64 s[{d}:{d+1}], s[{b}:{b+1}]\ns_mov_b32 s{d+2}, {n}\ns_mov_b32 s{d+3}, 0x20000')
def sr(d): return f's[{d}:{d+3}]'

V_LANE, V_T, V_OWN, V_GRP, V_PROF = 0, 1, 2, 3, 4

ROLE = [0]
def stamp(i):
    if OPT['rd0'] == i and OPT['rdrole'] == ROLE[0]:
        e(f"s_mem{'' if OPT['rdc'] else 'real'}time s[98:99]\ns_waitcnt lgkmcnt(0)")
    if OPT['rd'] == i and OPT['rdrole'] == ROLE[0]:
        e(f"s_mem{'' if OPT['rdc'] else 'real'}time s[100:101]\ns_waitcnt lgkmcnt(0)")
    if (OPT['only_st'] >> (i + 32*min(ROLE[0], 1))) & 1 if OPT['only_st'] else OPT['prof'] > (i >= 14):
        e(f's_mem{"real" if OPT["rt"] else ""}time s[96:97]\ns_waitcnt lgkmcnt(0)\ns_sub_u32 s96, s96, s{98 if OPT["rt"] else S_T0}\nv_writelane_b32 v{V_PROF}, s96, {i}')
def prof_out():
    if OPT['rd'] >= 0 and OPT['rdrole'] == ROLE[0]:
        l = lab('pad')
        if ROLE[0] == 0 and not OPT['obar']: e('s_barrier')
        if ROLE[0] == 2: e('s_barrier')
        if OPT['rdr']:
            e(f'''s_lshl3_add_u32 s96, s2, s{S_WV}
            s_lshl_b32 s96, s96, 2
            s_add_u32 s96, s96, 0xb40000
            v_mov_b32 v6, 0
            buffer_load_dword v5, v6, {sr(SRD_WS)}, s96 offen sc1
            s_xor_b32 s97, s{S_NONCE}, 0x5a3c1e77
            v_mov_b32 v7, s97
            s_waitcnt vmcnt(0)
            buffer_store_dword v7, v6, {sr(SRD_WS)}, s96 offen sc1
            v_readfirstlane_b32 s96, v5
            s_xor_b32 s96, s96, 0x5a3c1e77
            s_add_u32 s96, s96, 1
            s_cmp_eq_u32 s96, s{S_NONCE}
            s_cbranch_scc{OPT['rdr'] - 1} L_end''')
        if OPT['rdf']: e(f"s_and_b32 s96, s2, {OPT['rdf']}\ns_cmp_lg_u32 s96, {OPT['rdv']}\ns_cbranch_scc1 L_end")
        if ROLE[0] == 0 and OPT['rdn']: e(f's_cmp_eq_u32 s{S_C}, 7\ns_cbranch_scc{2 - OPT["rdn"]} L_end')
        if OPT['rd'] == 98:
            e(f'''s_not_b32 s100, s100
            v_mov_b32 v5, s100
            v_mov_b32 v6, 0
            s_mov_b64 exec, 1
            global_atomic_umax v6, v5, s[26:27]
            s_waitcnt vmcnt(0)
            s_sleep 127
            s_sleep 127
            s_sleep 127
            s_sleep 127
            s_sleep 127
            global_load_dword v5, v6, s[26:27] sc1
            s_waitcnt vmcnt(0)
            v_readfirstlane_b32 s100, v5
            s_not_b32 s100, s100''')
        if OPT['probe']:
            op = {1: 'buffer_store_dwordx4 v[8:11], v5, s[52:55], s60 offen sc1', 2: 'buffer_load_dwordx4 v[8:11], v5, s[52:55], s60 offen sc1',
                  3: 'buffer_store_dwordx4 v[8:11], v5, s[52:55], s60 offen'}[OPT['probe'] & 3]
            if OPT['probe'] & 16: op = '\n'.join(op.replace('offen', f'offen offset:{1024*i}') for i in range(4))
            pre = 'buffer_load_dword v12, v6, s[52:55], s61 offen sc1\ns_waitcnt vmcnt(0)' if OPT['probe'] & 4 else ''
            if OPT['probe'] & 8: pre += '\nbuffer_store_dwordx4 v[8:11], v5, s[52:55], s60 offen sc1\ns_waitcnt vmcnt(0)\ns_sleep 40'
            e(f'''s_mov_b64 s[52:53], s[28:29]
            s_mov_b32 s54, 0x10000000
            s_mov_b32 s55, 0x20000
            L_prb:
            s_sleep 1
            s_memrealtime s[62:63]
            s_waitcnt lgkmcnt(0)
            s_sub_u32 s62, s62, s58
            s_cmp_lt_u32 s62, 3000
            s_cbranch_scc1 L_prb
            v_lshlrev_b32 v5, 4, v0
            v_mov_b32 v6, 0
            s_lshl2_add_u32 s60, s2, s{S_W}
            s_lshl_b32 s60, s60, {12 if OPT['probe'] & 16 else 10}
            s_add_u32 s60, s60, {OPT['poff']}
            s_mov_b32 s61, {OPT['poff'] + 0x180000}
            {pre}
            s_memrealtime s[62:63]
            s_waitcnt lgkmcnt(0)
            {op}
            s_waitcnt vmcnt(0)
            s_memrealtime s[100:101]
            s_waitcnt lgkmcnt(0)
            s_sub_u32 s100, s100, s62
            v_mov_b32 v8, s100
            s_lshl2_add_u32 s60, s2, s{S_W}
            s_lshl_b32 s60, s60, 2
            s_add_u32 s60, s60, {WS_PROF}
            buffer_store_dword v8, v6, s[52:55], s60 offen
            s_mul_i32 s100, s100, 20
            s_add_u32 s100, s100, s58''')
        elif OPT['rdm'] >= 3:
            key = {3: 's_and_b32 s96, s2, 7', 4: f's_mov_b32 s96, s{S_H}', 5: f's_mov_b32 s96, s{S_TILE}'}[OPT['rdm']]
            e(f'''s_sub_u32 s100, s100, s98
            s_sub_u32 s97, s98, s58
            s_mul_i32 s100, s100, 1000000
            s_mul_i32 s97, s97, 1000
            s_add_u32 s100, s100, s97
            s_add_u32 s100, s100, s2
            {key}
            s_lshl_b32 s96, s96, 2
            v_mov_b32 v5, s100
            v_mov_b32 v6, s96
            s_mov_b64 exec, 1
            global_atomic_umax v6, v5, s[26:27]
            s_waitcnt vmcnt(0)
            s_endpgm''')
        elif OPT['rdm'] == 2:
            e('''s_not_b32 s96, s58
            v_mov_b32 v5, s96
            v_mov_b32 v6, 0
            s_mov_b64 exec, 1
            global_atomic_umax v6, v5, s[26:27]
            s_waitcnt vmcnt(0)''' + '\ns_sleep 127' * 7 + '''
            global_load_dword v5, v6, s[26:27] sc1
            s_waitcnt vmcnt(0)
            v_readfirstlane_b32 s96, v5
            s_not_b32 s96, s96
            s_sub_u32 s100, s100, s96
            s_lshl_b32 s100, s100, 3
            s_add_u32 s100, s100, s96''')
        elif OPT['rdm']:
            e('s_sub_u32 s100, s100, s98')
            if OPT['rdt']: e(f"s_cmp_gt_u32 s100, {OPT['rdt']}\ns_cselect_b32 s100, 1280, 0")
            e('''v_mov_b32 v5, s100
            v_mov_b32 v6, 0
            s_mov_b64 exec, 1
            global_atomic_add v6, v5, s[26:27]
            s_waitcnt vmcnt(0)''' + '\ns_sleep 127' * 7 + '''
            global_load_dword v5, v6, s[26:27] sc1
            s_waitcnt vmcnt(0)
            v_readfirstlane_b32 s100, v5
            s_lshr_b32 s100, s100, 6
            s_add_u32 s100, s100, s58''')
        else: e(f"s_sub_u32 s100, s100, s98\ns_lshl_b32 s100, s100, {0 if OPT['rdc'] else 3}\ns_add_u32 s100, s100, s58")
        e(f'''s_add_u32 s100, s100, 6000
        {l}:
        s_sleep 1
        s_memrealtime s[96:97]
        s_waitcnt lgkmcnt(0)
        s_sub_u32 s96, s96, s100
        s_cmp_lt_i32 s96, 0
        s_cbranch_scc1 {l}''')
    if OPT['prof']:
        e(f'''s_memrealtime s[96:97]
        s_waitcnt lgkmcnt(0)
        v_writelane_b32 v{V_PROF}, s96, 31
        v_writelane_b32 v{V_PROF}, s98, 30
        s_lshl_b32 s96, s2, 3
        s_add_u32 s96, s96, s{S_WV}
        s_lshl_b32 s96, s96, 7
        s_add_u32 s96, s96, {WS_PROF}
        v_lshlrev_b32 v{V_T}, 2, v{V_LANE}
        s_mov_b32 exec_hi, 0
        buffer_store_dword v{V_PROF}, v{V_T}, {sr(SRD_WS)}, s96 offen
        s_mov_b64 exec, -1''')

def arrive(stage):
    e(f'v_mov_b32 v{V_T}, {stage}\nds_write_b32 v{V_OWN}, v{V_T}')
def lwait(stage, addr=V_GRP, sleep=0):
    l = lab('lw')
    e(f'{l}:')
    if sleep: e(f's_sleep {sleep}')
    e(f'''ds_read_b32 v{V_T}, v{addr}
    s_waitcnt lgkmcnt(0)
    v_cmp_gt_u32 vcc, {stage}, v{V_T}''')
    if OPT['safe']:
        d = lab('ld')
        e(f'''s_cbranch_vccz {d}
        s_sub_u32 s{S_BOUND}, s{S_BOUND}, 1
        s_cbranch_scc0 {l}
        s_mov_b32 s{S_BOUND}, 0
        {d}:''')
    else:
        e(f's_cbranch_vccnz {l}')
def sync(stage):
    arrive(stage); lwait(stage)
def poll(voff, first_issued=False, sleep=0, reg=V_T):
    l, d, m = lab('pl'), lab('pd'), lab('pm')
    if first_issued == 2:
        e(f's_waitcnt vmcnt(0)\nv_cmp_ne_u32 vcc, s{S_NONCE}, v{reg}\ns_cbranch_vccnz {l}\n{d}:')
        cur = [n for n in SEC if SEC[n] is out][0]
        sec('cold')
        e(f'''{l}:
        buffer_load_dword v{reg}, v{voff}, {sr(SRD_WS)}, 0 offen sc1
        s_waitcnt vmcnt(0)
        v_cmp_ne_u32 vcc, s{S_NONCE}, v{reg}
        s_cbranch_vccz {d}
        s_sub_u32 s{S_BOUND}, s{S_BOUND}, 1
        s_cbranch_scc0 {l}
        s_mov_b32 s{S_BOUND}, 0
        s_branch {d}''')
        sec(cur)
        return
    if first_issued: e(f's_branch {m}')
    e(f'{l}:')
    if sleep: e(f's_sleep {sleep}')
    e(f'''buffer_load_dword v{reg}, v{voff}, {sr(SRD_WS)}, 0 offen sc1
    {m}:
    s_waitcnt vmcnt(0)
    v_cmp_ne_u32 vcc, s{S_NONCE}, v{reg}
    s_cbranch_vccz {d}
    s_sub_u32 s{S_BOUND}, s{S_BOUND}, 1
    s_cbranch_scc0 {l}
    s_mov_b32 s{S_BOUND}, 0
    {d}:''')
def publish(soff, tmp):
    if OPT['fw']:
        e(f'''v_mov_b32 v{V_T}, s{S_NONCE}
        v_lshlrev_b32 v{tmp}, 2, v{V_LANE}
        s_mov_b64 exec, {hex((1 << OPT['fw']) - 1)}
        buffer_store_dword v{V_T}, v{tmp}, {sr(SRD_WS)}, s{soff} offen sc1
        s_mov_b64 exec, -1'''.replace('s_mov_b64 exec, 0xffffffff', 's_mov_b32 exec_hi, 0'))
        return
    e(f'''v_mov_b32 v{V_T}, s{S_NONCE}
    v_mov_b32 v{tmp}, 0
    s_mov_b64 exec, 1
    buffer_store_dword v{V_T}, v{tmp}, {sr(SRD_WS)}, s{soff} offen sc1
    s_mov_b64 exec, -1''')
def swap23(d, s, t):
    e(f'''v_lshrrev_b32 v{t}, 1, v{s}
    v_xor_b32 v{t}, v{t}, v{s}
    v_and_b32 v{t}, 4, v{t}
    v_mul_u32_u24 v{t}, 3, v{t}
    v_xor_b32 v{d}, v{t}, v{s}''')
def rot_next(s):
    e(f's_add_u32 s{s}, s{s}, 1\ns_cmp_eq_u32 s{s}, 7\ns_cselect_b32 s{s}, 0, s{s}')

e(f'''s_cmp_ge_u32 s2, 256
s_cbranch_scc1 L_end''')
if OPT['prof']:
    e(f's_memtime s[{S_T0}:{S_T0+1}]\ns_memrealtime s[98:99]\nv_mov_b32 v{V_PROF}, 0')
if OPT['rd'] >= 0: e('s_memrealtime s[100:101]\ns_memrealtime s[58:59]\ns_memrealtime s[98:99]')
e(f'''s_load_dwordx16 s[4:19], s[0:1], 0
s_load_dwordx8 s[20:27], s[0:1], 64
s_load_dwordx2 s[28:29], s[0:1], 96
v_lshrrev_b32 v{V_OWN}, 6, v0
v_and_b32 v{V_LANE}, 63, v0
v_readfirstlane_b32 s{S_WV}, v{V_OWN}
v_lshlrev_b32 v{V_OWN}, 2, v{V_OWN}
v_mov_b32 v{V_T}, 0
ds_write2_b32 v{V_OWN}, v{V_T}, v{V_T} offset1:8
v_and_b32 v{V_GRP}, 3, v{V_LANE}
v_lshlrev_b32 v{V_GRP}, 2, v{V_GRP}
s_and_b32 s60, s2, 7
s_lshr_b32 s{S_J}, s2, 3
s_and_b32 s{S_HG}, s{S_J}, 1
s_lshr_b32 s{S_TILE}, s2, 4
s_lshl1_add_u32 s{S_H}, s60, s{S_HG}
s_lshl1_add_u32 s61, s60, s{S_TILE}
s_and_b32 s61, s61, 15
s_mul_i32 s60, s60, 14
s_add_u32 s60, s60, s61
s_lshl1_add_u32 s{S_I}, s60, s{S_HG}
s_lshr_b32 s{S_C}, s60, 4
s_cmp_ge_u32 s61, 14
s_cselect_b32 s{S_C}, 7, s{S_C}
s_and_b32 s{S_W}, s{S_WV}, 3
s_mov_b32 s{S_BOUND}, 0x40000
s_mov_b32 s{S_KS}, {KS}
s_cmp_lt_u32 s{S_WV}, 4
s_cbranch_scc1 L_mha''')

VX = 144; VACC = 96; VWF = 32; VPK = 128
VV, VK, VS, VO, VQ = 32, 64, 96, 160, 224
vWd = [5, 6]; vXd = [7, 8, 9, 10]; vXr = [11, 12, 13, 14]; vWb, vW0, vW1 = 15, 16, 17
vRho, vG, vSt, vQd, vQr, vFl, vA, vB, vC = 18, 19, 20, 21, 22, 23, 24, 25, 26
vKo0, vKo1, vVo, vIdx = 27, 28, 29, 30
sXb, sWb, sCh, sCw, sLx, sTmp, sTmp2, sSt, sS1, sS2, sFl = range(60, 71)
sK, sV, sIt = 71, 72, 73
sFo, sO0, sO1 = 84, 85, 86
vOs, vQw = vRho, vG
vRb = [7, 8, 9]; vQx = [11, 12, 13]; vRr = 10
sMask = 74
sOdd = 76

sec('mha0')
e('L_mha:')
if OPT['te'] and OPT['touch']: e(f's_cmp_eq_u32 s{S_C}, 7\ns_cbranch_scc1 L_tmha\nL_mha_b:')
if OPT['prio']: e(f"s_setprio {OPT['pm']}")
e(f'''s_mul_i32 s{S_O0}, s{S_H}, 7
s_lshr_b32 s{S_O0}, s{S_O0}, 1''')
e(f'''v_lshrrev_b32 v{vA}, 3, v{V_LANE}          ; r
v_and_b32 v{vB}, 7, v{V_LANE}                    ; p
v_lshlrev_b32 v{vC}, 1, v{vA}
v_and_b32 v{vC}, 4, v{vC}
v_xor_b32 v{vC}, v{vC}, v{vB}
v_lshlrev_b32 v{vC}, 4, v{vC}
v_mul_u32_u24 v{vWd[0]}, 2688, v{vA}
v_add_u32 v{vWd[0]}, v{vWd[0]}, v{vC}
v_add_u32 v{vWd[1]}, {8*2688-1024}, v{vWd[0]}
v_lshrrev_b32 v{vC}, 1, v{vA}
v_xor_b32 v{vC}, v{vC}, v{vB}
v_lshlrev_b32 v{vC}, 4, v{vC}
v_mul_u32_u24 v{vA}, 896, v{vA}
v_add_u32 v{vXd[0]}, v{vA}, v{vC}
v_xor_b32 v{vC}, 64, v{vC}
v_add_u32 v{vXd[1]}, v{vA}, v{vC}
v_add_u32 v{vXd[1]}, {7168-1024}, v{vXd[1]}
v_add_u32 v{vXd[2]}, {2*(7168-1024)}, v{vXd[0]}
v_add_u32 v{vXd[3]}, {2*(7168-1024)}, v{vXd[1]}
s_lshl2_add_u32 s{sXb}, s{S_TILE}, s{S_W}
s_lshl3_add_u32 s{sFl}, s{S_HG}, s{S_C}
s_lshl_b32 s{sFl}, s{sFl}, 6
s_add_u32 s{sFl}, s{sFl}, s{S_TILE if OPT['wgf'] else sXb}
s_lshl_b32 s{sFl}, s{sFl}, {FSH}
s_add_u32 s{sFl}, s{sFl}, {F_KV}
s_mul_i32 s{sXb}, s{sXb}, {32*896}
s_mul_i32 s{sWb}, s{S_HG}, 7
s_add_u32 s{sWb}, s{sWb}, s{S_C}
s_add_u32 s{sWb}, s{sWb}, 7
s_lshl_b32 s{sWb}, s{sWb}, 7
s_mul_i32 s{sTmp}, s{S_W}, {16*2688}
s_add_u32 s{sWb}, s{sWb}, s{sTmp}
s_mul_i32 s{sLx}, s{S_W}, 12288
s_add_u32 s{sLx}, s{sLx}, {L_X}
s_lshl_b32 s{sS1}, s{S_W}, 11
s_add_u32 s{sS1}, s{sS1}, {L_W}
s_mov_b32 s{SRD_A+2}, {2048*896}
s_mov_b32 s{SRD_A+3}, 0x20000
s_mov_b32 s{SRD_B+2}, {448*1344*2}
s_mov_b32 s{SRD_B+3}, 0x20000
s_mov_b32 m0, s{sLx}
s_waitcnt lgkmcnt(0)
s_mov_b64 s[{SRD_A}:{SRD_A+1}], s[18:19]
s_mov_b64 s[{SRD_B}:{SRD_B+1}], s[20:21]
s_load_dword s{S_NONCE}, s[28:29], 0''')
stamp(22)
sWo = 88
def w_lines(st):
    return [f's_add_u32 m0, s{sS1}, {8192*st}', f's_add_u32 s{sWo+st}, s{sWb}, {64*2688*st}'] + \
           [f'buffer_load_dwordx4 v{vWd[i]}, {sr(SRD_B)}, s{sWo+st} offen offset:{1024*i} lds' for i in range(2)]
def x_chunk(st):
    return [f's_add_u32 m0, s{sLx}, {(st%3)*4096 - 128*st}', 's_nop 0'] + \
           [f'buffer_load_dwordx4 v{vXd[i]}, {sr(SRD_A)}, s{sXb} offen offset:{1024*i + 128*st} lds' for i in range(4)]
TK = 'touch'
DM = []
for l in [x_chunk(0), w_lines(0)] + [w_lines(i) for i in range(1, 7)] + [x_chunk(1), x_chunk(2)]:
    DM += [l[:3]] + [[x] for x in l[3:]]
DM[0] = DM[0][2:]
for i, g in enumerate(DM[:OPT['n0']]):
    if i == OPT['nb']:
        e(f's_cmp_eq_u32 s{S_C}, 7\ns_cbranch_scc1 {"L_tmha" if OPT[TK] and not OPT["te"] else "L_gemm_t"}\ns_barrier'); stamp(23)
        if OPT['only'] == 1: e('s_endpgm')
    e('\n'.join(g))
DM = DM[OPT['n0']:]
stamp(24)
if OPT['st']:
    e(f'''s_mov_b64 exec, 0
    s_cmp_eq_u32 s{S_W}, 0
    s_cbranch_scc1 L_sp0
    s_cmp_eq_u32 s{S_W}, 1
    s_cbranch_scc1 L_sp1
    s_cmp_eq_u32 s{S_W}, 2
    s_cbranch_scc1 L_sp2
    s_branch L_sp3''')
elif OPT['ord'] not in (1, 3, 4, 5): e('s_branch L_mha1')
sec('mha')
e('L_mha1:')
if OPT['st']: e('s_mov_b64 exec, -1')
stamp(25)
sec('tmp')
srd(SRD_WS, 28, WS_SIZE)
ONES = f'''s_bitcmp1_b32 s{S_H}, 0
s_cselect_b32 s{sTmp}, 0, 7
v_cmp_eq_u32 vcc, s{sTmp}, v{vA}
s_lshl_b32 s{sTmp}, s{S_O0}, 1
s_sub_u32 s{sTmp}, s{S_HG}, s{sTmp}
s_add_u32 s{sTmp}, s{sTmp}, 112
v_mov_b32 v{vB}, s{sTmp}
v_cndmask_b32 v{vA}, v{vA}, v{vB}, vcc
''' if OPT['ones'] else ''
FIX = f'v_cmp_lt_u32 vcc, 7, v{vB}\n'
FOM = f'''s_lshl_b32 s{sFo}, s{sTmp2}, 4
s_add_u32 s{sFo}, s{sFo}, s{S_H}
s_lshl_b32 s{sFo}, s{sFo}, {FSH}
s_add_u32 s{sFo}, s{sFo}, {F_O}
''' if OPT['omode'] != 3 else ''
e(f'''v_and_b32 v{vA}, 31, v{V_LANE}
v_lshrrev_b32 v{vG}, 5, v{V_LANE}''')
swap23(vRho, vA, vB)
e(f'''v_bfe_u32 v{vB}, v{vRho}, 1, 3
v_xor_b32 v{vB}, v{vB}, v{vG}
v_lshlrev_b32 v{vB}, 4, v{vB}
v_lshl_add_u32 v{vB}, v{vRho}, 7, v{vB}
v_add_u32 v{vXr[0]}, s{sLx}, v{vB}
v_xor_b32 v{vXr[1]}, 32, v{vXr[0]}
v_xor_b32 v{vXr[2]}, 64, v{vXr[0]}
v_xor_b32 v{vXr[3]}, 0x60, v{vXr[0]}
v_and_b32 v{vB}, 3, v{V_LANE}                     ; cc
v_lshrrev_b32 v{vC}, 1, v{vB}
v_and_b32 v{vQd}, 1, v{vB}
v_lshl_or_b32 v{vC}, v{vQd}, 1, v{vC}
v_bfe_u32 v{vQd}, v{V_LANE}, 4, 1
v_lshl_or_b32 v{vB}, v{vQd}, 2, v{vB}              ; mq natural
v_lshl_or_b32 v{vC}, v{vQd}, 2, v{vC}
v_bfe_u32 v{vQd}, v{V_LANE}, 2, 2                  ; r'
v_lshl_or_b32 v{vFl}, v{vG}, 3, v{vQd}             ; 8g + r'
v_lshlrev_b32 v{vQr}, 6, v{vFl}
v_lshl_add_u32 v{vQr}, v{vC}, 3, v{vQr}
v_add_u32 v{vQr}, {L_X + 4096}, v{vQr}
s_cmp_eq_u32 s{S_HG}, 0
s_cselect_b64 vcc, -1, 0
v_cndmask_b32 v{vB}, v{vB}, v{vC}, vcc             ; K slabs use the exchanged order, V slabs the natural one
v_lshlrev_b32 v{vWb}, 7, v{vFl}
v_lshl_add_u32 v{vWb}, v{vB}, 3, v{vWb}
v_lshrrev_b32 v{vQd}, 1, v{vQd}
v_lshl_add_u32 v{vWb}, v{vQd}, 6, v{vWb}
v_add_u32 v{vW0}, {L_W}, v{vWb}
v_lshlrev_b32 v{vB}, 4, v{vRho}
v_mad_u32_u24 v{vB}, v{vG}, s{S_KS}, v{vB}
v_lshrrev_b32 v{vC}, 2, v{vA}
v_mul_u32_u24 v{vC}, {QS}, v{vC}
v_lshl_add_u32 v{vC}, v{vG}, 6, v{vC}
v_and_b32 v{vQd}, 3, v{vA}
v_lshl_add_u32 v{vC}, v{vQd}, 4, v{vC}
v_cndmask_b32 v{vSt}, v{vC}, v{vB}, vcc
s_lshl2_add_u32 s{sTmp}, s{S_TILE}, s{S_W}
s_lshl_b32 s{sTmp2}, s{sTmp}, 9
s_add_u32 s{sTmp2}, s{sTmp2}, {WS_K}
s_lshl_b32 s{sTmp}, s{sTmp}, 8
s_add_u32 s{sTmp}, s{sTmp}, {WS_V}
s_movk_i32 s{sS2}, 128
s_cmp_eq_u32 s{S_HG}, 0
s_cselect_b32 s{sSt}, s{sTmp2}, s{sTmp}
s_cselect_b32 s{sS2}, {2*KS}, s{sS2}
s_mul_i32 s{sTmp}, s{S_C}, {8*KS}
s_add_u32 s{sSt}, s{sSt}, s{sTmp}
v_lshrrev_b32 v{vB}, 2, v{V_LANE}
v_mul_u32_u24 v{vB}, 2688, v{vB}
v_lshl_add_u32 v{vQd}, v{vQd}, 4, v{vB}
s_lshl_b32 s82, s{S_O0}, 4
s_mul_i32 s{sTmp}, s{S_W}, {16*2688}
s_add_u32 s82, s82, s{sTmp}
s_lshr_b32 s{sTmp}, s{S_O0}, 3
s_add_u32 s{sTmp2}, s{S_O0}, 3
s_lshr_b32 s{sTmp2}, s{sTmp2}, 3
s_sub_u32 s{sTmp2}, s{sTmp2}, s{sTmp}
v_bfe_u32 v{vC}, v{V_LANE}, 4, 1
v_mul_u32_u24 v{vC}, s{sTmp2}, v{vC}
v_lshl_add_u32 v{vC}, v{vG}, 3, v{vC}
v_add_u32 v{vC}, s{sTmp}, v{vC}
v_and_b32 v{vB}, 15, v{V_LANE}
{FIX}v_and_b32 v{vB}, {3 if OPT['wgf'] else 15}, v{V_LANE}
v_lshl_add_u32 v{vC}, v{vC}, 6, v{vB}
s_lshl_b32 s{sTmp}, s{S_W}, {2 if OPT['wgf'] else 4}
v_add_u32 v{vC}, s{sTmp}, v{vC}
v_lshlrev_b32 v{vC}, {FSH}, v{vC}
v_add_u32 v{vFl}, {F_KV}, v{vC}
s_lshl3_add_u32 s{sTmp}, s{S_W}, s{S_HG}
s_mul_i32 s{sTmp}, s{sTmp}, {US}
s_add_u32 s{sTmp}, s{sTmp}, {F_U}
v_mul_u32_u24 v{vB}, {2*US}, v{vB}
v_add_u32 v{vB}, s{sTmp}, v{vB}
v_cndmask_b32 v{vFl}, v{vFl}, v{vB}, vcc
v_lshlrev_b32 v{vKo0}, 4, v{vA}
v_mad_u32_u24 v{vKo0}, v{vG}, s{S_KS}, v{vKo0}
v_add_u32 v{vKo1}, {2*KS}, v{vKo0}
v_lshrrev_b32 v{vA}, 2, v{vRho}
{ONES}v_mul_u32_u24 v{vA}, {QS}, v{vA}
v_lshl_add_u32 v{vA}, v{vG}, 6, v{vA}
v_and_b32 v{vB}, 3, v{V_LANE}
v_lshl_add_u32 v{vVo}, v{vB}, 4, v{vA}
v_mov_b32 v{vIdx}, 0xdddddddd
s_mul_i32 s{sTmp}, s{S_O0}, {KS}
s_lshl_b32 s{sK}, s{S_W}, 13
s_add_u32 s{sK}, s{sK}, s{sTmp}
s_add_u32 s{sK}, s{sK}, {WS_K}
s_lshl_b32 s{sV}, s{S_W}, 12
s_add_u32 s{sV}, s{sV}, s{sTmp}
s_add_u32 s{sV}, s{sV}, {WS_V}
s_lshl2_add_u32 s{sTmp2}, s{S_TILE}, s{S_W}
{FOM}s_lshl_b32 s{sTmp2}, s{sTmp2}, 9
s_add_u32 s{sO0}, s{sTmp}, s{sTmp2}
s_add_u32 s{sO0}, s{sO0}, {WS_O}
s_add_u32 s{sO1}, s{sO0}, {2*KS}
s_bitcmp1_b32 s{S_H}, 0
s_cselect_b64 s[{sOdd}:{sOdd+1}], -1, 0
; per-lane multipliers for Q: scale*log2(e), zero on the four slots that belong to the neighbour head
v_mov_b32 v{vC}, 0x3e8b97f6
v_cmp_gt_u32 vcc, 32, v{V_LANE}
s_and_b64 s[78:79], vcc, s[{sOdd}:{sOdd+1}]
s_nor_b64 s[80:81], vcc, s[{sOdd}:{sOdd+1}]
v_cndmask_b32 v{vA}, v{vC}, 0, s[78:79]
v_cndmask_b32 v{vB}, v{vC}, 0, s[80:81]
s_mov_b32 s78, 0x3f803f80
s_mov_b32 s79, s78
v_xor_b32 v{vW1}, 64, v{vW0}
v_lshlrev_b32 v{vOs}, 4, v{vRho}
v_mad_u32_u24 v{vOs}, v{vG}, s{S_KS}, v{vOs}
v_lshl_add_u32 v{vQw}, v{V_LANE}, 4, s{sLx}''')
srd(SRD_C, 28, WS_SIZE)
def o_stores(r0, r1, tag):
    e(f'''s_bitcmp1_b32 s{S_H}, 0
    s_cbranch_scc1 L_ost_odd{tag}
    buffer_store_dwordx4 {vr(r0,4)}, v{vOs}, {sr(SRD_WS)}, s{sO0} offen sc1
    s_mov_b32 exec_hi, 0
    buffer_store_dwordx4 {vr(r1,4)}, v{vOs}, {sr(SRD_WS)}, s{sO1} offen sc1
    s_not_b64 exec, exec
    buffer_store_dwordx2 {vr(r1,2)}, v{vOs}, {sr(SRD_WS)}, s{sO1} offen sc1
    s_branch L_ost_done{tag}
    L_ost_odd{tag}:
    buffer_store_dwordx4 {vr(r1,4)}, v{vOs}, {sr(SRD_WS)}, s{sO1} offen sc1
    s_mov_b32 exec_hi, 0
    buffer_store_dwordx2 {vr(r0+2,2)}, v{vOs}, {sr(SRD_WS)}, s{sO0} offen offset:8 sc1
    s_not_b64 exec, exec
    buffer_store_dwordx4 {vr(r0,4)}, v{vOs}, {sr(SRD_WS)}, s{sO0} offen sc1
    L_ost_done{tag}:
    s_mov_b64 exec, -1''')
GS = 0
AB = [l for l in SEC.pop('tmp') if not l.strip().startswith(';')]
sec('mha')
def scc_pending(i):
    return i < len(AB) and AB[i].strip().startswith(('s_cselect', 's_mov_b32 s75'))
pos = 0
for g in DM:
    n = pos + OPT['ilv']
    while scc_pending(n): n += 1
    e('\n'.join(AB[pos:n])); pos = n
    e('\n'.join(g))
e('\n'.join(AB[pos:]))
stamp(0)
def x_reads(s):
    return [f'ds_read_b128 {vr(VX + 16*s + 4*ks, 4)}, v{vXr[ks]} offset:{(s%3)*4096}' for ks in range(4)]
e('s_waitcnt vmcnt(22)')
e('\n'.join(x_reads(0)))
e('s_waitcnt vmcnt(8) lgkmcnt(0)')
arrive(1)
stamp(1)
e('\n'.join(x_chunk(3)))
e('s_waitcnt vmcnt(8)')
e('\n'.join(x_reads(1)))
lwait(1)
if OPT['fwm'] & 2:
    e(f'''v_mov_b32 v{V_T}, s{S_NONCE}
    v_lshlrev_b32 v31, 2, v{V_LANE}
    s_mov_b32 exec_hi, 0
    buffer_store_dword v{V_T}, v31, {sr(SRD_WS)}, s{sFl} offen sc1
    s_mov_b64 exec, -1''')
e(f's_add_u32 s{S_NONCE}, s{S_NONCE}, 1')
stamp(2)
def w_reads(s):
    r = []
    for ks in range(4):
        for ct in range(2):
            for hf in range(2):
                d = VWF + 32 * (s & 1) + 8 * ks + 4 * ct + 2 * hf
                r.append(f'ds_read_b64_tr_b16 {vr(d,2)}, v{(vW0, vW1)[ct]} offset:{s*8192 + ks*2048 + hf*512}')
    return r
e('\n'.join(w_reads(0)))
e(f'''s_waitcnt lgkmcnt(0)
s_cmp_lg_u32 s{S_HG}, 0
s_cbranch_scc1 L_gemm_v''')
sQb, sQc = 82, 83
NE = OPT['wq_early']
def wq_dma(st):
    return [f's_add_u32 m0, s{sLx}, {4096 + 1024*st}\ns_add_u32 s83, s82, {64*2688*st}', '', f'buffer_load_dwordx4 v{vQd}, {sr(SRD_B)}, s83 offen lds']
SPIN = []
def gemm1(vpart):
    for s in range(7):
        M = []
        for ks in range(4):
            for ct in range(2):
                wf = vr(VWF + 32 * (s & 1) + 8 * ks + 4 * ct, 4); xf = vr(VX + 16 * s + 4 * ks, 4)
                acc = vr(VACC + 16 * ct, 16)
                a, b = (xf, wf) if vpart else (wf, xf)
                M.append(f'v_mfma_f32_32x32x16_bf16 {acc}, {a}, {b}, {"0" if s == 0 and ks == 0 else acc}')
        gaps = [[] for _ in range(8)]
        tag = f'{"v" if vpart else "k"}{s}'
        pre = []
        dm = []
        def add(l): dm.extend([(l[0], l[2])] + [(None, x) for x in l[3:]])
        if s <= 2: add(x_chunk(s + 4))
        if s == 3:
            for i in range(min(NE, 4)): add(wq_dma(i))
        if s == 4:
            for i in range(4, NE): add(wq_dma(i))
        FW = 1 if OPT['fwm'] & 2 else 0
        n = {0: 8 + FW, 1: 8 + FW, 2: 8, 3: 4 + min(NE, 4), 4: NE}.get(s)
        for i, (m, l) in enumerate(dm):
            if m: (pre if i == 0 else gaps[i - 1]).append(m)
            gaps[i].append(l)
        if s < 6:
            wr = w_reads(s + 1)
            for i, (p, q) in enumerate(((0, 3), (3, 6), (6, 9), (9, 12), (12, 16))): gaps[i] += wr[p:q]
            if s <= 4: gaps[OPT['xg']] += [f's_waitcnt vmcnt({n})'] + x_reads(s + 2)
            gaps[7] += [f's_waitcnt lgkmcnt({4 if s == 4 and OPT["s6"] != 4 else 0})']
        if s == OPT['s6'] and (OPT['uw'] == 6 or OPT['cw'] == 6): gaps[6] += [f'v_mov_b32 v{V_T}, 6', f'ds_write_b32 v{V_OWN}, v{V_T}']
        if s == 5:
            gaps[7] += [f'v_add_u32 v31, 16, v{V_GRP}', f'ds_read_b32 v31, v31']
        if s == 6 and NE == 7:
            gaps[OPT['qa']] += ['s_waitcnt vmcnt(0)', f'v_mov_b32 v{V_T}, 7', f'ds_write_b32 v{V_OWN}, v{V_T}']
        e('\n'.join(pre))
        if OPT['gx'] & 1 or vpart == 2: M = ['s_nop 0'] * 8
        if OPT['gx'] & 2 or vpart == 2: gaps = [[x for x in g if 'tr_b16' not in x] for g in gaps]
        for i in range(8):
            e(M[i]); e('\n'.join(gaps[i]))
        stamp(14 + s)
assert NE == 7
sec('gt'); e('L_gemm_t:')
e('\n'.join(AB))
e(f's_waitcnt lgkmcnt(0)\ns_add_u32 s{S_NONCE}, s{S_NONCE}, 1\ns_barrier')
TB = [0] + [L_SSM - L_X + 4096*i for i in range(3)] + [L_W - L_X + 4096*i for i in range(3)]
for st in range(7):
    x = x_chunk(st); x[0] = f's_add_u32 m0, s{sLx}, {TB[st] - 128*st}'
    e('\n'.join(x))
for st in range(7): e('\n'.join(wq_dma(st)))
stamp(0)
for st in range(7):
    e(f's_waitcnt vmcnt({31 - 4*st})')
    for ks in range(4): e(f'ds_read_b128 {vr(VX + 16*st + 4*ks, 4)}, v{vXr[ks]} offset:{TB[st] - TB[1] if st else 0}')
    if st == 0:
        for ks in range(4): e(f'v_subrev_u32 v{vXr[ks]}, {-TB[1]}, v{vXr[ks]}')
e('s_waitcnt vmcnt(0) lgkmcnt(0)')
arrive(7)
stamp(3)
e('s_branch L_nokv'); sec('mha')
gemm1(False)
e('s_branch L_gemm_done')
if OPT['st']: e('L_sp0:\ns_branch L_mha1')
e('L_gemm_v:')
gemm1(True)
e('L_gemm_done:')
if OPT['st']: e('L_sp2:\ns_cbranch_execz L_mha1')
stamp(3)
e(f"""s_add_u32 s{sS1}, s{sSt}, s{sS2}
s_add_u32 s{sXb}, s{sSt}, {4*KS}
s_add_u32 s{sCw}, s{sS1}, {4*KS}
s_waitcnt lgkmcnt(0)""")
PWS = 3 if OPT['pw'] else 1
e(f'v_cmp_gt_u32 vcc, {PWS}, v31\ns_cbranch_vccz L_eok\nv_add_u32 v31, 16, v{V_GRP}')
lwait(PWS, addr=31)
e('L_eok:\ns_nop 4')
for q, so in enumerate((sSt, sS1, sXb, sCw)):
    for i in range(4*q, 4*q+4):
        e(f'v_cvt_pk_bf16_f32 v{VPK + i}, v{VACC + 2*i}, v{VACC + 2*i + 1}')
    e(f'buffer_store_dwordx4 {vr(VPK+4*q,4)}, v{vSt}, {sr(SRD_WS)}, s{so} offen sc1')
e('L_nokv:')
assert OPT['wgf'] and OPT['ones'] and OPT['pf'] == 2
def kv_loads(buf, i, srdn=SRD_C):
    return [f'buffer_load_dwordx4 {vr(VK + 8*buf, 4)}, v{vKo0}, {sr(srdn)}, s{sK} offen offset:{512*i} sc1',
            f'buffer_load_dwordx4 {vr(VK + 8*buf + 4, 4)}, v{vKo1}, {sr(srdn)}, s{sK} offen offset:{512*i} sc1',
            f'buffer_load_dwordx4 {vr(VV + 8*buf, 4)}, v{vVo}, {sr(srdn)}, s{sV} offen offset:{256*i} sc1',
            f'buffer_load_dwordx4 {vr(VV + 8*buf + 4, 4)}, v{vVo}, {sr(srdn)}, s{sV} offen offset:{256*i + 128} sc1']
fill = [f'v_mov_b64 {vr(VV+2*i,2)}, s[78:79]' for i in range(12, 12 if OPT['wp'] and OPT['unr'] else 16)] + [f'v_subrev_u32 v{vRr}, {L_X - L_RB}, v{vQw}', 's_mov_b64 s[80:81], -1']
for s in range(3):
    fill += f"""s_add_u32 s{sTmp}, s{S_W}, {1+s}
    s_and_b32 s{sTmp}, s{sTmp}, 3
    s_sub_u32 s{sTmp}, s{sTmp}, s{S_W}
    s_mul_i32 s{sTmp}, s{sTmp}, 12288
    v_add_u32 v{vQx[s]}, s{sTmp}, v{vQw}
    v_subrev_u32 v{vRb[s]}, {L_X - L_RB - 4096*s}, v{vQx[s]}""".split('\n')
def count_in(n):
    e(f"""v_mov_b32 v{V_T}, 1
    v_mov_b32 v31, 0
    s_waitcnt vmcnt({n})
    s_mov_b64 exec, 1
    ds_add_rtn_u32 v{vSt}, v31, v{V_T} offset:32
    s_mov_b64 exec, -1""")
def count_out(n):
    e(f's_waitcnt lgkmcnt({n})\nv_readfirstlane_b32 s{sTmp2}, v{vSt}\ns_cmp_lg_u32 s{sTmp2}, 3\ns_cbranch_scc1 L_nopub')
    publish(sFl, 31)
    e('L_nopub:'); stamp(5)
NM = max(NE, OPT['wq_mid'])
for st in range(NE, NM): e('\n'.join(wq_dma(st)))
stamp(4)
if NE < 7:
    e('\n'.join(fill)); fill = []
    count_in(NM - NE)
    if NM == 7:
        e('s_waitcnt vmcnt(0)'); arrive(7); count_out(1)
    else:
        count_out(0)
        for st in range(NM, 7): e('\n'.join(wq_dma(st)))
        e('s_waitcnt vmcnt(0)'); arrive(7)
lwait(7)
stamp(6)
QB = [80, 84, 88, 92, 112, 116, 120, 124]
def q_reads(k):
    s, ks = divmod(k, 4)
    return [f'ds_read_b64_tr_b16 {vr(QB[k%8] + 2*hf, 2)}, v{vQr} offset:{ks*12288 + s*1024 + hf*256}' for hf in range(2)]
for k in range(6): e('\n'.join(q_reads(k)))
e('\n'.join(fill[:12])); fill = fill[12:]
zi = 8 if OPT['wp'] and OPT['unr'] else 0
PK = OPT['pubk'] if NE == 7 else -99
for k in range(28):
    extra = 1 if PK < k <= PK + 5 else 0
    e(f's_waitcnt lgkmcnt({min(10, 2*(27-k)) + extra})')
    e(f'v_mfma_f32_32x32x16_bf16 {vr(VACC,16)}, {vr(QB[k%8], 4)}, {vr(VX + 4*k, 4)}, {"0" if k == 0 else vr(VACC,16)}')
    if k + 6 < 28: e('\n'.join(q_reads(k + 6)))
    while zi < 40 and VX + 2*zi + 1 < VX + 4*k - 4 and zi < 2*k:
        e(f'v_mov_b64 {vr(VX + 2*zi, 2)}, 0'); zi += 1
    if k >= 22 or k < 2:
        e('\n'.join(fill[:4])); fill = fill[4:]
    if k == PK: count_in(0)
    if k == PK + OPT['wgf']: count_out(2*OPT['wgf'])
    if k == OPT['pollk']: e(f'buffer_load_dword v31, v{vFl}, {sr(SRD_WS)}, 0 offen sc1')
    if k == OPT['chkk']:
        e(f's_waitcnt vmcnt(0)\nv_cmp_ne_u32 vcc, s{S_NONCE}, v31\ns_mov_b64 s[80:81], vcc\ns_cbranch_vccnz L_kv_late')
        for t in range(2): e('\n'.join(kv_loads(t, t)))
        e('L_kv_late:')
assert zi == 40 and VX == VS + 48 and not fill
stamp(7)
e('s_nop 11')
for r in range(16):
    m = vA if r < 4 else (vB if r >= 12 else vC)
    e(f'v_mul_f32 v{VACC + r}, v{m}, v{VACC + r}')
for i in range(8):
    e(f'v_cvt_pk_bf16_f32 v{VQ + 24 + i}, v{VACC + 2*i}, v{VACC + 2*i + 1}')
e(f"""ds_write_b128 v{vQw}, {vr(VQ+24,4)}
ds_write_b128 v{vQw}, {vr(VQ+28,4)} offset:1024""")
arrive(8)
lwait(8)
for s in range(3):
    e(f'ds_read_b128 {vr(VQ+8*s,4)}, v{vQx[s]}\nds_read_b128 {vr(VQ+8*s+4,4)}, v{vQx[s]} offset:1024')
PF = OPT['pf']
if OPT['pt']:
    e(f's_mov_b64 exec, 0\ns_bitcmp1_b32 s{S_W}, 0\ns_cbranch_scc1 L_pg1\ns_branch L_pg0\nL_pg_ret:\ns_mov_b64 exec, -1')
if OPT['chkk'] < 28: e('s_cmp_eq_u64 s[80:81], 0\ns_cbranch_scc1 L_kv_done')
poll(vFl, first_issued=OPT['pollk'] < 28 and OPT['chkk'] > 27, reg=31, sleep=OPT['ksleep'])
for t in range(PF): e('\n'.join(kv_loads(t, t)))
e('L_kv_done:')
stamp(8)
OM = OPT['omode']
if OM:
    e(f'''s_lshr_b32 s{sTmp}, s{S_O0}, 3
    s_add_u32 s{sTmp2}, s{S_O0}, 3
    s_lshr_b32 s{sTmp2}, s{sTmp2}, 3
    s_sub_u32 s{sTmp2}, s{sTmp2}, s{sTmp}
    s_lshl_b32 s{sTmp2}, s{sTmp2}, 1
    s_lshl2_add_u32 s{sSt}, s{S_TILE}, s{S_W}
    s_lshr_b32 s{sS1}, s{sSt}, 1
    s_mul_i32 s{sS1}, s{sS1}, 12
    s_add_u32 s{sSt}, s{sSt}, s{sS1}
    s_lshl1_add_u32 s{sTmp}, s{sTmp}, s{sSt}
    s_lshl_b32 s{sTmp}, s{sTmp}, {FSH}
    s_add_u32 s{sTmp}, s{sTmp}, {F_Y}
    v_and_b32 v{vFl}, 1, v{V_LANE}
    v_mul_u32_u24 v{vFl}, s{sTmp2}, v{vFl}
    v_and_b32 v31, 2, v{V_LANE}
    v_lshl_add_u32 v{vFl}, v31, 8, v{vFl}
    v_lshl_add_u32 v{vFl}, v{vFl}, {FSH}, s{sTmp}''')
def qk(buf, slot, js):
    d = vr(VS + 16*slot, 16)
    return f'v_mfma_f32_32x32x16_bf16 {d}, {vr(VK + 8*buf + 4*js, 4)}, {vr(VQ + 8*slot + 4*js, 4)}, {"0" if js == 0 else d}'
def pv(buf, slot, js):
    return f'v_smfmac_f32_32x32x32_bf16 {vr(VO + 16*slot, 16)}, {vr(VV + 8*buf + 4*js, 4)}, {vr(VS + 16*slot + 8*js, 8)}, v{vIdx}'
def exps(s): return [f'v_exp_f32 v{VS + 16*s + r}, v{VS + 16*s + r}' for r in range(16)]
SPREAD = []
LP = {0: [(1, 2, 0)] * 4, 1: [(1, g, 0) for g in range(4)], 2: [(0, 0, 0), (0, 2, 0), (1, 0, 0), (1, 2, 0)],
      3: [(1, g, 2) for g in range(4)], 4: [(0, 0, 2), (0, 2, 2), (1, 0, 2), (1, 2, 2)], 5: [(1, g, 4) for g in range(4)],
      6: [(0, 1, 4), (0, 3, 4), (1, 1, 4), (1, 3, 4)]}[OPT['lp']]
FULL = OPT['unr']
def unit(t, s, it=None):
    ex = exps(s)
    nb = t if s < 3 else (t + 1) & 3
    pb = t if s > 0 else (t - 1) & 3
    live = it is None or 4*it + t + PF < 16
    wt = f's_waitcnt vmcnt({4*PF-4 if live else 0})'
    if s == 3 and not OPT['wp']: e(wt)
    M = [qk(nb, (s+1) & 3, 0), qk(nb, (s+1) & 3, 1), pv(pb, (s-1) & 3, 0), pv(pb, (s-1) & 3, 1)]
    kl = kv_loads((t + PF) & 3, t + PF)
    for g in range(4):
        body = ex[4*g:4*g+4]
        for q in reversed(range(4)):
            if LP[q][:2] == (s, g) and live: body.insert(LP[q][2], kl[q])
        if OPT['wp'] and (s, g) == (2, 3): body.insert(0, wt)
        if OPT['wp'] and it is not None:
            if (s, g) == (1, 3) and t == 3 and live: body[0:0] = [f's_add_u32 s{sK}, s{sK}, 2048', f's_add_u32 s{sV}, s{sV}, 1024']
            if (it, t, s) == (0, 0, 0) and g >= 2: M[g] = ''
        elif (s, g) == (1, 3):
            if t == 3 - PF and it is None:
                body += [f's_cmp_eq_u32 s{sIt}, 3', f's_cselect_b32 s{SRD_C+2}, 0, s{SRD_C+2}']
            if t == 3 and live:
                body += [f's_add_u32 s{sK}, s{sK}, 2048', f's_add_u32 s{sV}, s{sV}, 1024']
                if it is None: body += [f's_add_u32 s{sIt}, s{sIt}, 1', f's_cmp_lg_u32 s{sIt}, 4']
        e(M[g]); e('\n'.join(body))
e(f's_mov_b32 s{sIt}, 0\ns_waitcnt vmcnt({4*PF - 4}) lgkmcnt(0)')
stamp(9)
e(qk(0, 0, 0)); e(qk(0, 0, 1))
if FULL:
    e(f"s_setprio {OPT['pa']}\ns_nop 9\nL_att:")
    for it in range(4):
        for t in range(4):
            for s in range(4):
                if (it, t, s) < (3, 3, 2): unit(t, s, it)
else:
    e(f"s_setprio {OPT['pa']}\ns_nop 8\ns_branch L_att_in")
    e('L_att:')
    unit(3, 2); unit(3, 3)
    e('L_att_in:')
    for t in range(4):
        for s in range(4):
            if (t, s) < (3, 2): unit(t, s)
    e('s_cbranch_scc1 L_att')
if OPT['prio']: e(f"s_setprio {OPT['pm']}")
if OM: e(f'buffer_load_dword v31, v{vFl}, {sr(SRD_WS)}, 0 offen sc1')
def rbw(s): return [f'ds_write_b128 v{vRb[s]}, {vr(VO + 16*s + 4*i, 4)} offset:{1024*i}' for i in range(4)]
ex = exps(2); w0 = rbw(0)
e(qk(3, 3, 0)); e('\n'.join(ex[0:4])); e(qk(3, 3, 1)); e('\n'.join(ex[4:7] + [w0[0]]))
e(pv(3, 1, 0)); e('\n'.join(ex[7:10] + [w0[1]])); e(pv(3, 1, 1)); e('\n'.join(ex[10:13] + [w0[2]] + ex[13:16] + [w0[3]]))
ex = exps(3); w1 = rbw(1); w2 = rbw(2)
e(pv(3, 2, 0)); e('\n'.join(ex[0:3])); e(pv(3, 2, 1))
e('\n'.join([w1[0]] + ex[3:5] + [w1[1]] + ex[5:7] + [w1[2]] + ex[7:9] + [w1[3]] + ex[9:10]))
e(pv(3, 3, 0))
e('\n'.join([w2[0]] + ex[10:12] + [w2[1]] + ex[12:14] + [w2[2]] + ex[14:16] + [w2[3]]))
arrive(9)
e(pv(3, 3, 1))
stamp(10)
lwait(9)
for i in range(12): e(f'ds_read_b128 {vr(VS + 4*i, 4)}, v{vRr} offset:{1024*i}')
OA = VO + 48
for s in range(3):
    e(f's_waitcnt lgkmcnt({8 - 4*s})')
    for i in range(8): e(f'v_pk_add_f32 {vr(OA+2*i,2)}, {vr(OA+2*i,2)}, {vr(VS+16*s+2*i,2)}')
e(f's_mov_b32 s{sIt}, {1 if OPT["force_fb"] else 0}')
e(f'''L_norm:
v_cndmask_b32 v{vA}, v{OA+12}, v{OA}, s[{sOdd}:{sOdd+1}]
v_max3_f32 v{vC}, abs(v{OA}), abs(v{OA+1}), abs(v{OA+2})
v_mov_b32 v{vB}, v{vA}
v_max3_f32 v{vC}, abs(v{OA+3}), abs(v{OA+4}), v{vC}
v_max3_f32 v{vC}, abs(v{OA+5}), abs(v{OA+6}), v{vC}
v_permlane32_swap_b32 v{vA}, v{vB}
v_max3_f32 v{vC}, abs(v{OA+7}), abs(v{OA+8}), v{vC}
v_cndmask_b32 v{vB}, v{vB}, v{vA}, s[{sOdd}:{sOdd+1}]
v_max3_f32 v{vC}, abs(v{OA+9}), abs(v{OA+10}), v{vC}
v_rcp_f32 v{vA}, v{vB}
v_max3_f32 v{vC}, abs(v{OA+11}), abs(v{OA+12}), v{vC}
v_max3_f32 v{vC}, abs(v{OA+13}), abs(v{OA+14}), v{vC}
v_max_f32 v{vC}, abs(v{OA+15}), v{vC}
v_cmp_nle_f32 vcc, 0x30800000, v{vB}
s_mov_b64 s[78:79], vcc
v_cmp_nge_f32 vcc, 0x4e800000, v{vB}
s_or_b64 s[78:79], s[78:79], vcc
v_cmp_ngt_f32 vcc, 0x7f000000, v{vC}
s_or_b64 vcc, s[78:79], vcc''')
if OPT['force_fb']:
    e(f's_cmp_eq_u32 s{sIt}, 1\ns_cbranch_scc1 L_fb')
e('s_cbranch_vccnz L_fb0\nL_norm2:')
for i in range(8): e(f'v_pk_mul_f32 {vr(OA+2*i,2)}, {vr(OA+2*i,2)}, {vr(vA,2)} op_sel_hi:[1,0]')
for i in range(8): e(f'v_cvt_pk_bf16_f32 v{VS+i}, v{OA+2*i}, v{OA+2*i+1}')
if OM: poll(vFl, first_issued=2, reg=31)
o_stores(VS, VS + 4, '')
stamp(11)
if OM == 4: publish(sFo, vA)
if OPT['obar'] == 1: e('s_barrier')
if OPT['obar'] >= 3: e(f"s_waitcnt vmcnt({5 - OPT['obar'] + (OM == 4)})\ns_barrier")
if OM == 0:
    e('s_waitcnt vmcnt(0)'); publish(sFo, vA)
if OPT['obar'] == 2: e('s_barrier')
stamp(12)
prof_out()
e('s_endpgm')

for tag, st in SPIN:
    e(f'L_ws_{tag}:'); lwait(st); e(f's_branch L_wb_{tag}')
sec('fb')
e(f'''L_fb0:
s_cmp_eq_u32 s{sIt}, 2
s_cbranch_scc1 L_norm2
L_fb:
s_waitcnt vmcnt(0)
s_mul_i32 s{sTmp}, s{S_O0}, {KS}
s_add_u32 s{sK}, s{sTmp}, {WS_K}
s_add_u32 s{sV}, s{sTmp}, {WS_V}
v_mov_b32 v{vC}, 0xff800000
s_mov_b32 s{sIt}, 0
L_fb1:''')
e('\n'.join(kv_loads(0, 0, SRD_WS)[:2]))
e('s_waitcnt vmcnt(0)')
e(qk(0, 3, 0)); e(qk(0, 3, 1)); e('s_nop 11')
for i in range(8): e(f'v_max3_f32 v{vC}, v{VS+48+2*i}, v{VS+49+2*i}, v{vC}')
e(f'''s_add_u32 s{sK}, s{sK}, 512
s_add_u32 s{sIt}, s{sIt}, 1
s_cmp_lg_u32 s{sIt}, 64
s_cbranch_scc1 L_fb1
v_mov_b32 v{vA}, v{vC}
s_sub_u32 s{sK}, s{sK}, 0x8000
s_mov_b32 s{sIt}, 0
v_permlane32_swap_b32 v{vA}, v{vC}
v_max_f32 v{vC}, v{vA}, v{vC}''')
for i in range(8): e(f'v_mov_b64 {vr(OA+2*i,2)}, 0')
e('L_fb2:')
e('\n'.join(kv_loads(0, 0, SRD_WS)))
e('s_waitcnt vmcnt(0)')
e(qk(0, 3, 0)); e(qk(0, 3, 1)); e('s_nop 11')
for i in range(16): e(f'v_sub_f32 v{VS+48+i}, v{VS+48+i}, v{vC}')
for i in range(16): e(f'v_exp_f32 v{VS+48+i}, v{VS+48+i}')
e('s_nop 1')
e(pv(0, 3, 0)); e(pv(0, 3, 1))
e(f'''s_add_u32 s{sK}, s{sK}, 512
s_add_u32 s{sV}, s{sV}, 256
s_add_u32 s{sIt}, s{sIt}, 1
s_cmp_lg_u32 s{sIt}, 64
s_cbranch_scc1 L_fb2
s_mov_b32 s{sIt}, 2
s_nop 11
s_branch L_norm''')

sD0, sD, sHw, sDs, sTab, sA, sB, sLd, sSk, sIt2, sFlU, sInv, sUns, sSel, sUl, sOl, sCh0 = range(60, 77)
sUs, sOut, sHm = 78, 80, 82
sE2, sP, sE3, sKd, sCo = 84, 85, 86, 87, 77
OUTM = ('', 'sc1', '', 'sc1', 'nt', 'sc0 sc1')[OPT['outsc']]
OUTM2 = ('', '', 'sc1', 'sc1', 'nt', 'sc0 sc1')[OPT['outsc']]
a0, a1, a2, a3 = 5, 6, 7, 9
vPar = 10
vKc = 18
vRa, vRb_, vKd, vKd1, vKa, vKa0, vFu, vE1, vE1b, vFr, vKxo, vKxp, vPair, vRz, vBk, vA0, vA1, vKb, vSB, vSB0 = range(20, 40)
vSel = 180
vAc = 40
vOne, vScl, vAdd, vC0 = range(56, 60)
vOp = 64
vY = 128
vXt = 144
vAn = 166
vX1 = 172
T0, T1 = 160, 176
vZ = 192
U = 204
vZer = 220
vUa, vCd, vG_, vZp, vKp, vF_, vL16, vXo, vXp, vTr, vYl, vYs, vFy, vYw = range(224, 238)
vWoD = 238
vWoR = 240
vOl, vFo, vBw, vBr, vOut = range(242, 247)
def hi():
    if OPT['prio']: e('s_setprio 3')
KG = [True]
def lo():
    if OPT['prio']: e(f"s_setprio {OPT['kgp'] if KG[0] else OPT['ps']}")
ROLE[0] = 1
sec('ssm0')
PFA = f'''s_mul_i32 s{sLd}, s{S_HG}, 7
s_add_u32 s{sLd}, s{sLd}, s{S_C}                   ; slab 0..13
s_mul_i32 s{sSk}, s{S_TILE}, 14
s_add_u32 s{sSk}, s{sSk}, s{sLd}                   ; 0..223
s_cmp_eq_u32 s{S_W}, 1
s_cbranch_scc1 L_pf1
s_cmp_eq_u32 s{S_W}, 2
s_cbranch_scc1 L_pf2
s_mul_i32 s{sB}, s{sSk}, 64
s_mul_hi_u32 s{sB}, s{sB}, {(2**32 + 6)//7}
s_cmp_eq_u32 s{S_W}, 0
s_cselect_b32 s{sInv}, 43, 64
s_cselect_b32 s{sLd}, 6, 4
s_cselect_b32 s{sUns}, {60 if OPT['pfm'] & 1 else 0}, {40 if OPT['pfm'] & 8 else 0}
v_mul_u32_u24 v6, s{sInv}, v{V_LANE}
v_lshrrev_b32 v6, 8, v6
v_mul_u32_u24 v7, s{sLd}, v6
v_sub_u32 v7, v7, v{V_LANE}
v_add_u32 v6, s{sB}, v6
v_mul_u32_u24 v6, 7, v6
v_add3_u32 v8, v6, v7, 6
s_mov_b32 s{SRD_A+2}, {2048*896}
s_branch L_pf3
L_pf1:
s_mul_i32 s{sB}, s{S_TILE}, 20
s_add_u32 s{sB}, s{sB}, 128
v_add_u32 v6, s{sB}, v{V_LANE}
v_mul_u32_u24 v6, 21, v6
v_add3_u32 v8, v6, s{sLd}, 7
s_mov_b32 s{sUns}, {20 if OPT['pfm'] & 2 else 0}
s_mov_b32 s{SRD_A+2}, {448*2688}
s_branch L_pf3
L_pf2:
v_mul_u32_u24 v6, 37, v{V_LANE}
v_lshrrev_b32 v6, 8, v6
v_mul_u32_u24 v6, 14, v6
s_mul_i32 s{sB}, s{sSk}, 42
v_add3_u32 v8, v6, v{V_LANE}, s{sB}
s_mov_b32 s{sUns}, {14 if OPT['pfm'] & 4 else 0}
s_mov_b32 s{SRD_A+2}, {448*2688}
L_pf3:
v_lshlrev_b32 v8, 7, v8
v_cmp_gt_u32 vcc, s{sUns}, v{V_LANE}
s_mov_b32 s{SRD_A+3}, 0x20000
v_bfrev_b32 v6, 1
v_cndmask_b32 v8, v6, v8, vcc
''' if OPT['pfm'] else ''
e(f"""s_cmp_{'eq' if OPT['only'] != 2 else 'le'}_u32 s{S_C}, 7
s_cbranch_scc1 L_ssm_idle
s_lshr_b32 s{sDs}, s{S_W}, 1
s_lshl_b32 s{sD0}, s{S_I}, 1
s_add_u32 s{sD}, s{sD0}, s{sDs}
s_mul_i32 s{sTab}, s{S_W}, {TABSZ}
s_add_u32 s{sTab}, s{sTab}, {L_TAB}
s_lshl1_add_u32 s{sA}, s{sD0}, s{S_W}
s_lshl_b32 s{sA}, s{sA}, 8
v_lshl_add_u32 v{a0}, v{V_LANE}, 2, s{sA}
s_mov_b32 m0, s{sTab}
{PFA}s_lshl_b32 s{sB}, s{sD0}, 1
s_waitcnt lgkmcnt(0)
s_load_dword s{sLd}, s[14:15], s{sB}
s_load_dword s{sSk}, s[16:17], s{sB}
global_load_dword v{vPar+0}, v{a0}, s[6:7]
global_load_dword v{vPar+1}, v{a0}, s[8:9]
global_load_dword v{vPar+2}, v{a0}, s[10:11]
global_load_dword v{vPar+3}, v{a0}, s[12:13]
global_load_dword v{vPar+4}, v{V_T}, s[28:29]""")
if OPT['pfm']:
    e(f'''s_cmp_eq_u32 s{S_W}, 0
    s_cselect_b64 s[{SRD_A}:{SRD_A+1}], s[18:19], s[20:21]
    s_cmp_eq_u32 s{S_W}, 3
    s_cselect_b64 s[{SRD_A}:{SRD_A+1}], s[4:5], s[{SRD_A}:{SRD_A+1}]''')
    PFL = f'buffer_load_dword v{vPar+5}, v8, {sr(SRD_A)}, 0 offen'
    if not OPT['pfl']: e(PFL)
if OPT['tlb'] != 2: e('s_barrier')
if OPT['tlb']:
    e(f'''v_and_b32 v{a0}, 7, v{V_LANE}
    v_min_u32 v{a0}, 5, v{a0}
    v_lshlrev_b32 v{a0}, 21, v{a0}
    v_add_u32 v{a0}, 0xf8000, v{a0}
    v_mov_b32 v{a1}, 0
    global_load_dword v8, v{a0}, s[28:29]
    global_load_dword v8, v{a1}, s[22:23]''')
if OPT['tlb'] == 2: e('s_barrier')
if OPT['ord'] < 4: e('s_branch L_ssm')
sec('ssm')
e('L_ssm:')
if OPT['abl'] == 1:
    arrive(1); e('s_waitcnt vmcnt(0) lgkmcnt(0)\ns_endpgm')
lo()
srd(SRD_WS, 28, WS_SIZE)
e(f"""s_and_b32 s{sHw}, s{S_W}, 1
v_add_u32 v{V_GRP}, 16, v{V_GRP}
v_and_b32 v{a0}, 15, v{V_LANE}
v_lshrrev_b32 v{a1}, 4, v{V_LANE}
v_lshl_add_u32 v{vRb_}, v{a1}, 4, s{sTab}
v_mul_u32_u24 v{a2}, {TROW}, v{a0}
v_add_u32 v{vRa}, v{a2}, v{vRb_}
v_lshlrev_b32 v{vL16}, 4, v{V_LANE}
v_mov_b32 v{vOne}, 0x3c00
ds_write_addtid_b32 v{vOne}""")
for i in range(8): e(f'v_mov_b64 {vr(vAc+2*i,2)}, 0')
mid = f"""v_and_b32 v{a0}, 7, v{V_LANE}
s_and_b32 s{sB}, s2, {OPT['ur'] - 1}
s_lshl2_add_u32 s{sB}, s{sB}, s{S_W}
s_mul_i32 s{sB}, s{sB}, {8*US}
s_add_u32 s{sB}, s{sB}, {F_U}
v_mul_u32_u24 v{vFu}, {US}, v{a0}
v_add_u32 v{vFu}, s{sB}, v{vFu}
s_mul_i32 s{sP}, s{sDs}, {P_SZ}
s_add_u32 s{sP}, s{sP}, {L_TAB}
s_add_u32 s{sKd}, s{sP}, {P_KD}
s_lshl_b32 s{sB}, s{sHw}, 8
s_add_u32 s{sInv}, s{sB}, s{sKd}
s_add_u32 s{sA}, s{sInv}, {1088 + 128}
v_lshl_add_u32 v{vRz}, v{a0}, 4, s{sA}
v_mov_b32 v{vKb}, s{sKd}
v_and_b32 v{a0}, 15, v{V_LANE}
v_lshrrev_b32 v{a1}, 4, v{V_LANE}
s_lshl_b32 s{sA}, s{sHw}, 4
v_add_u32 v{a0}, s{sA}, v{a0}
v_and_b32 v{a3}, 1, v{V_LANE}
v_mul_u32_u24 v{a2}, 255, v{a3}
v_sub_u32 v{a2}, v{a2}, v{a0}
s_add_u32 s{sA}, s{sKd}, {1088 + 32}
v_add_u32 v{vKa}, s{sA}, v{a2}
v_add_u32 v{vKa0}, 96, v{vKa}
s_lshl3_add_u32 s{sA}, s{sDs}, 16
v_lshl_add_u32 v{vPair}, v{a3}, 2, s{sA}
s_mul_i32 s{sA}, s{sHw}, {1088 + 112 - 1024}
s_add_u32 s{sA}, s{sA}, s{sKd}
s_add_u32 s{sA}, s{sA}, 1024
v_writelane_b32 v{vKa0}, s{sA}, 0
s_mul_i32 s{sA}, s{sHw}, 56
s_sub_u32 s{sA}, s{sKd}, s{sA}
s_add_u32 s{sA}, s{sA}, 1088
v_writelane_b32 v{vKa0}, s{sA}, 16
v_max_u32 v{a2}, 1, v{a1}
v_sub_u32 v{a2}, 5, v{a2}
v_lshlrev_b32 v{a0}, v{a2}, v{a0}
v_lshlrev_b32 v{a2}, 3, v{a1}
s_mov_b32 s{sA}, 0x60400100
v_bfe_u32 v{a1}, s{sA}, v{a2}, 8
v_lshl_add_u32 v{a0}, v{a1}, 3, v{a0}
v_add_u32 v{vKd}, s{sKd}, v{a0}
s_mov_b32 s{sA}, 0x80040404
v_bfe_u32 v{a1}, s{sA}, v{a2}, 8
v_add_u32 v{vKd1}, v{a1}, v{vKd}
v_lshrrev_b32 v{a1}, 1, v{V_LANE}
v_lshlrev_b32 v{vUa}, 6, v{a1}
v_lshl_add_u32 v{vUa}, v{a3}, 4, v{vUa}
s_lshr_b32 s{sA}, s{sD0}, 2
s_mul_i32 s{sA}, s{sA}, {QS}
s_and_b32 s{sB}, s{sD0}, 3
s_lshl4_add_u32 s{sA}, s{sB}, s{sA}
s_lshl_b32 s{sB}, s{S_W}, 12
s_add_u32 s{sA}, s{sA}, s{sB}
s_add_u32 s{sUl}, s{sA}, {WS_U}
v_and_b32 v{a1}, 3, v{a1}
v_lshl_add_u32 v{a1}, v{a3}, 2, v{a1}
v_mul_u32_u24 v{a1}, {PS}, v{a1}
v_lshrrev_b32 v{a2}, 3, v{V_LANE}
v_lshl_add_u32 v{a1}, v{a2}, 4, v{a1}
s_lshl_b32 s{sA}, s{S_W}, 8
s_add_u32 s{sA}, s{sA}, {L_KP + 512}
v_add_u32 v{vKp}, s{sA}, v{a1}
; byte selectors that expand the distinct taps to the lags (lag l uses the tap at bf16(l), as in the reference)
v_lshrrev_b32 v{a1}, 5, v{V_LANE}
s_lshl_b32 s{sA}, s{sHw}, 1
v_max_u32 v{a0}, s{sA}, v{a1}
v_min_u32 v{a2}, 1, v{a0}
v_mul_u32_u24 v{a2}, 0x0202, v{a2}
v_lshlrev_b32 v{a2}, 16, v{a2}
v_sub_u32 v{vSel}, 0x03020100, v{a2}
v_mul_u32_u24 v{a2}, 0x0202, v{a0}
v_lshl_or_b32 v{a2}, v{a2}, 16, v{a2}
v_sub_u32 v{vSel+1}, 0x07060504, v{a2}
s_mul_i32 s{sA}, s{sHw}, 0x02020202
v_add_u32 v{vSel+2}, s{sA}, v{vSel}
s_mul_i32 s{sA}, s{sHw}, 0x02020404
v_add_u32 v{vSel+3}, s{sA}, v{vSel+1}
v_lshrrev_b32 v{a2}, v{a0}, v{vL16}
s_movk_i32 s{sA}, 256
v_lshl_add_u32 v{a2}, s{sA}, v{a0}, v{a2}
s_sub_u32 s{sA}, s{sKd}, 256
v_add_u32 v{vE1}, s{sA}, v{a2}
v_lshlrev_b32 v{a2}, 2, v{a0}
v_sub_u32 v{vE1b}, v{vE1}, v{a2}
s_mov_b32 s{sA}, 0x0c0c0c0c
s_cmp_lg_u32 s{sHw}, 0
s_cselect_b32 s{sE2}, 0x01000100, s{sA}
s_cselect_b32 s{sE3}, 0x05040302, s{sA}
v_mov_b32 v{vSel+4}, s{sA}
v_mov_b32 v{vSel+5}, s{sA}
v_mov_b32 v{vSel+6}, s{sA}
v_mov_b32 v{vSel+7}, s{sA}
s_mov_b32 s{sA}, 0x05040504
s_mov_b64 exec, 15
v_mov_b32 v{vSel+4}, s{sA}
v_mov_b32 v{vSel+5}, s{sA}
v_mov_b32 v{vSel+6}, s{sA}
s_mov_b64 exec, -1
v_writelane_b32 v{vSel+7}, s{sA}, 3
s_mov_b32 s{sA}, 0x05040302
v_writelane_b32 v{vSel+4}, s{sA}, 3
s_mov_b32 s{sA}, 0x0c0c0504
v_writelane_b32 v{vSel+6}, s{sA}, 0
v_writelane_b32 v{vSel+7}, s{sA}, 2
s_mul_i32 s{sA}, s{S_W}, {2*PS}
s_add_u32 s{sA}, s{sA}, {L_KP}
v_mul_u32_u24 v{a2}, {PS - 512}, v{a1}
v_add3_u32 v{vG_}, v{a2}, v{vL16}, s{sA}
v_mov_b64 {vr(vZer,2)}, 0
v_mov_b64 {vr(vZer+2,2)}, 0
ds_write_b128 v{vG_}, {vr(vZer,4)}
s_lshl_b32 s{sA}, s{sHw}, 10
s_add_u32 s{sB}, s{sP}, {P_UC}
s_add_u32 s{sA}, s{sA}, s{sB}
s_add_u32 s{sA}, s{sA}, 64
v_add_u32 v{vCd}, s{sA}, v{vL16}
v_and_b32 v{a3}, 3, v{V_LANE}
v_and_b32 v{a0}, 0x1c, v{V_LANE}
v_lshlrev_b32 v{a2}, 2, v{a0}
v_and_b32 v{vZp}, 0x30, v{a2}
s_mov_b32 exec_hi, 0
v_add_u32 v{vZp}, 2112, v{a2}
s_mov_b64 exec, -1
v_mul_u32_u24 v{a2}, {UC_S}, v{a3}
v_add3_u32 v{vZp}, v{vZp}, v{a2}, s{sB}
v_lshlrev_b32 v{a0}, 1, v{a0}
v_sub_u32 v{a0}, v{a0}, v{a2}
v_lshlrev_b32 v{a1}, 4, v{a1}
v_sub_u32 v{a0}, v{a0}, v{a1}
s_lshl_b32 s{sA}, s{sHw}, 5
s_sub_u32 s{sB}, s{sB}, s{sA}
s_add_u32 s{sB}, s{sB}, {56 + 3*UC_S}
v_add_u32 v{vF_}, s{sB}, v{a0}
v_add_u32 v{vG_}, {512 - 80}, v{vG_}
v_add_u32 v{vKxo}, s{sTab}, v{vL16}
s_xor_b32 s{sA}, s{S_W}, 1
s_mul_i32 s{sA}, s{sA}, {TABSZ}
s_add_u32 s{sA}, s{sA}, {L_TAB}
v_add_u32 v{vKxp}, s{sA}, v{vL16}
v_and_b32 v{a0}, 31, v{V_LANE}
v_lshlrev_b32 v{a2}, 2, v{a0}
v_sub_u32 v{a2}, v{a1}, v{a2}
s_add_u32 s{sA}, s{sInv}, {1088 + 124}
v_add_u32 v{vBk}, s{sA}, v{a2}
"""
def prewrite():
    e(f'''s_sub_u32 s{sA}, 3, s{S_HG}
    v_lshrrev_b32 v{a0}, s{sA}, v{V_LANE}
    v_lshlrev_b32 v{a1}, s{sA}, v{a0}
    v_sub_u32 v{a1}, v{V_LANE}, v{a1}
    s_lshr_b32 s{sA}, s{S_KS}, s{S_HG}
    v_mul_u32_u24 v{a0}, s{sA}, v{a0}
    v_lshl_add_u32 v{a0}, v{a1}, 6, v{a0}
    s_lshl2_add_u32 s{sA}, s{S_TILE}, s{S_W}
    s_lshl_b32 s{sA}, s{sA}, 9
    s_lshr_b32 s{sA}, s{sA}, s{S_HG}
    s_mul_i32 s{sB}, s{S_HG}, {WS_V - WS_K}
    s_add_u32 s{sA}, s{sA}, s{sB}
    s_mul_i32 s{sB}, s{S_C}, {8*KS}
    s_add_u32 s{sA}, s{sA}, s{sB}
    s_add_u32 s{sA}, s{sA}, {WS_K}''')
    hi(); e(f'buffer_store_dword v{a0}, v{a0}, {sr(SRD_WS)}, s{sA} offen sc1'); lo()
if OPT['pw'] == 1: prewrite()
if OPT['pfl'] and OPT['pfm']:
    ml = mid.split('\n'); k = OPT['pfl']
    while 'exec' in ''.join(ml[k-4:k+1]): k += 1
    mid = '\n'.join(ml[:k] + ['s_setprio 3', PFL, f"s_setprio {OPT['kgp']}"] + ml[k:])
e(mid)
if OPT['pw'] == 2: prewrite()
stamp(22)
e(f"""s_waitcnt lgkmcnt(0)
s_lshl_b32 s{sA}, s{sDs}, 4
s_lshr_b32 s{sLd}, s{sLd}, s{sA}
s_lshl_b32 s{sLd}, s{sLd}, 16
s_lshr_b32 s{sSk}, s{sSk}, s{sA}
s_lshl_b32 s{sSk}, s{sSk}, 16
v_mov_b32 v{a0}, s{sLd}
v_mul_f32 v{a0}, 0x3fb8aa3b, v{a0}
v_exp_f32 v{a0}, v{a0}
s_cmp_eq_u32 s{sHw}, 0
s_cselect_b32 s{sSk}, s{sSk}, 0
v_cvt_pk_bf16_f32 v{a0}, v{a0}, v{a0}
v_and_b32 v{vScl}, 0xffff0000, v{a0}
v_mul_f32 v{vKc}, 0xbfb8aa3b, v{vScl}
v_mul_f32 v{vKc+1}, 0.15915494, v{vScl}
v_mov_b32 v{vAdd}, 0
v_add_f32 v{vScl}, v{vScl}, v{vScl}
v_writelane_b32 v{vAdd}, s{sSk}, 0
s_mov_b32 s{sIt2}, 0
s_mov_b32 s{sSel}, 0x01000c0c""")
stamp(0)
e(f"""s_waitcnt vmcnt({(3 if OPT['tlb'] else 1) + (OPT['pw'] in (1, 2)) + (OPT['pfm'] > 0)})
v_and_b32 v{a0}, 0x7f807f80, v{vPar+2}
v_and_b32 v{a1}, 0x7f807f80, v{vPar+3}
v_pk_max_u16 v{a0}, v{a0}, v{a1}
v_lshlrev_b32 v{a1}, 16, v{a0}
v_max_u32 v{a0}, v{a0}, v{a1}""")
for q, n in enumerate((1, 2, 4, 8)):
    e(f's_nop 1\nv_max_u32_dpp v{a0}, v{a0}, v{a0} row_ror:{n} row_mask:0xf bank_mask:0xf')
e(f"""s_nop 0
v_readlane_b32 s{sA}, v{a0}, 0
v_readlane_b32 s{sB}, v{a0}, 16
v_readlane_b32 s{sInv}, v{a0}, 32
v_readlane_b32 s{sUns}, v{a0}, 48
s_max_u32 s{sA}, s{sA}, s{sB}
s_max_u32 s{sUns}, s{sUns}, s{sInv}
s_max_u32 s{sUns}, s{sUns}, s{sA}
s_and_b32 s{sUns}, s{sUns}, 0x7f800000
s_min_u32 s{sUns}, s{sUns}, 0x7e800000
s_sub_u32 s{sInv}, 0x7f000000, s{sUns}
v_mul_f32 v{vScl}, s{sUns}, v{vScl}
v_mul_f32 v{vSB}, 0x43000000, v{vScl}
v_mov_b32 v{vSB0}, v{vSB}
s_mov_b64 exec, 1
v_mov_b32 v{vSB0}, v{vScl}
s_mov_b64 exec, -1""")
stamp(1)
if OPT['abl'] == 2: e('s_endpgm')
def cm(jobs, conj):
    ng = 'neg_hi:[1,0,0]' if conj else 'neg_lo:[1,0,0]'
    return [f'v_pk_mul_f16 v{d}, v{x}, v{w} op_sel_hi:[1,0]' for d, x, w in jobs] + \
           [f'v_pk_fma_f16 v{d}, v{x}, v{w}, v{d} op_sel:[1,1,0] op_sel_hi:[0,1,1] {ng}' for d, x, w in jobs]
def wr(reg): return f'ds_write_addtid_b32 v{reg} offset:{TROW*(reg - vY)}'
assert vXt == vY + 16
zA, zB, tA, tB, pA, pB = vZ, vZ+2, vZ+4, vZ+6, vZ+8, vZ+10
X = vXt; Y = vY
an = {1: vAn, 2: vAn+1, 4: vAn+2, 8: Y+1, 16: Y+2, 32: Y+4, 64: Y+8, 128: X+21, 256: vAn+3, 512: vAn+4, 1024: vAn+5}
e('L_kg:')
stamp(14)
seq = f"""v_perm_b32 v{pA}, v{vPar}, v{vPar}, s{sSel}
v_mul_f32 v{pA}, 0x3fb8aa3b, v{pA}
v_exp_f32 v{pA}, v{pA}
v_perm_b32 v{pA+1}, v{vPar+1}, v{vPar+1}, s{sSel}
v_perm_b32 v{tA}, v{vPar+2}, v{vPar+2}, s{sSel}
v_perm_b32 v{tA+1}, v{vPar+3}, v{vPar+3}, s{sSel}
v_cvt_pk_bf16_f32 v{pA}, v{pA}, v{pA}
v_mul_f32 v{tA}, s{sInv}, v{tA}
v_and_b32 v{pA}, 0xffff0000, v{pA}
v_mul_f32 v{tA+1}, s{sInv}, v{tA+1}
v_pk_mul_f32 {vr(pA,2)}, {vr(pA,2)}, {vr(vKc,2)}
v_cvt_pk_f16_f32 v{X}, v{tA}, -v{tA+1}
v_mul_f32 v{pB}, 0x42800000, v{pA}
v_mul_f32 v{pB+1}, 0x42800000, v{pA+1}
v_exp_f32 v{pA}, v{pA}
v_fract_f32 v{pA+1}, v{pA+1}
v_exp_f32 v{pB}, v{pB}
v_fract_f32 v{pB+1}, v{pB+1}
v_cos_f32 v{zA}, v{pA+1}
v_sin_f32 v{zA+1}, v{pA+1}
v_cos_f32 v{zB}, v{pB+1}
v_sin_f32 v{zB+1}, v{pB+1}
v_pk_mul_f32 {vr(zA,2)}, {vr(zA,2)}, {vr(pA,2)} op_sel_hi:[1,0]
v_pk_mul_f32 {vr(zB,2)}, {vr(zB,2)}, {vr(pB,2)} op_sel_hi:[1,0]""".split('\n')
for st in range(6):
    chains = [(zA, tA, an[1 << st], st < 5)] + ([(zB, tB, an[64 << st], st < 4)] if st < 5 else [])
    for z, t, d, sq in chains:
        if sq: seq.append(f'v_pk_mul_f32 {vr(t,2)}, {vr(z,2)}, {vr(z,2)} op_sel_hi:[0,1]')
    for z, t, d, sq in chains: seq.append(f'v_cvt_pk_f16_f32 v{d}, v{z}, v{z+1}')
    for z, t, d, sq in chains:
        if sq: seq.append(f'v_pk_fma_f32 {vr(z,2)}, {vr(z,2)}, {vr(z,2)}, {vr(t,2)} op_sel:[1,1,0] op_sel_hi:[0,1,1] neg_lo:[1,0,0]')
seq += cm([(X+1, X, an[1]), (X+2, X, an[2]), (X+4, X, an[4]), (X+8, X, an[256]), (X+12, X, an[512]), (X+16, X, an[1024])], True)
seq += cm([(Y+3, Y+1, Y+2), (Y+12, Y+4, Y+8), (Y+5, Y+4, Y+1), (Y+6, Y+4, Y+2), (Y+9, Y+8, Y+1), (Y+10, Y+8, Y+2)], False)
seq += cm([(X+3, X+1, an[2]), (X+5, X+1, an[4]), (X+6, X+2, an[4]), (X+9, X+2, an[256]), (X+10, X+4, an[256]), (X+13, X+4, an[512]),
           (X+14, X+8, an[512]), (X+17, X+8, an[1024]), (X+18, X+12, an[1024]), (X+20, X+16, an[1024])], True)
seq += cm([(Y+7, Y+4, Y+3), (Y+11, Y+8, Y+3), (Y+13, Y+12, Y+1), (Y+14, Y+12, Y+2), (Y+15, Y+12, Y+3)], False)
seq += cm([(X+7, X+3, an[4]), (X+11, X+6, an[256]), (X+15, X+10, an[512]), (X+19, X+14, an[1024])], True)
e('\n'.join(seq))
stamp(15)
if OPT['kgw']:
    e(f'v_subrev_u32 v{a0}, 16, v{V_GRP}'); lwait(OPT['kgw'], addr=a0)
hi()
if OPT['abl'] != 4: e('\n'.join(wr(r) for r in range(Y + 1, X + 22)))
for k in range(4):
    o = vOp + 16*k
    e(f"""ds_read_b128 {vr(o,4)}, v{vRa} offset:{64*k}
    ds_read_b128 {vr(o+4,4)}, v{vRb_} offset:{37*TROW + 64*k}
    ds_read_b128 {vr(o+8,4)}, v{vRa} offset:{16*TROW + 64*k}
    ds_read_b128 {vr(o+12,4)}, v{vRa} offset:{32*TROW + 64*k}""")
if not OPT['uw']: e(f's_cmp_eq_u32 s{sIt2}, 0\ns_cbranch_scc1 L_kg_n\nbuffer_load_dword v{vFr}, v{vFu}, {sr(SRD_WS)}, 0 offen sc1\nL_kg_n:')
stamp(16)
def mf(c, a, b): return f'v_mfma_f32_16x16x32_f16 {vr(c,4)}, {vr(a,4)}, {vr(b,4)}, {vr(c,4)}'
late_m = []
for k in range(4):
    o = vOp + 16*k; y1 = vX1 + 4*(k & 1)
    p = cm([(y1+r, o+r, o+4+r) for r in range(4)], False)
    e(f's_waitcnt lgkmcnt({12 - 4*k})')
    e('\n'.join([mf(vAc, o+8, o)] + p[0:2] + late_m[:1] + p[2:4] + [mf(vAc+4, o+12, o)] + p[4:6] + late_m[1:] + p[6:8]))
    late_m = [mf(vAc+8, o+8, y1), mf(vAc+12, o+12, y1)]
e(f"""s_add_u32 s{sSel}, s{sSel}, 0x02020000
s_add_u32 s{sIt2}, s{sIt2}, 1
s_cmp_lg_u32 s{sIt2}, 2""")
e('\n'.join(late_m))
lo()
if OPT['pw'] == 3:
    e('s_cbranch_scc0 L_kg_e'); prewrite(); e('s_branch L_kg\nL_kg_e:')
else: e('s_cbranch_scc1 L_kg')
stamp(17)
if OPT['abl'] in (4, 8): e('s_endpgm')
def scl(i): return vSB0 if i == 4 else (vSB if i & 4 else vScl)
for i in range(8): e(f'v_mul_f32 v{vAc+i}, v{scl(i)}, v{vAc+i}')
e(f's_cmp_eq_u32 s{sHw}, 0')
for i in range(8, 16): e(f'v_mul_f32 v{vAc+i}, v{scl(i)}, v{vAc+i}')
e('s_cbranch_scc1 L_kx')
for i in range(8): e(f'v_swap_b32 v{vAc+i}, v{vAc+8+i}')
e(f"""L_kx:
ds_write_b128 v{vKxo}, {vr(vAc+8,4)}
s_mov_b32 exec_hi, 0
ds_write_b128 v{vKxo}, {vr(vAc+12,4)} offset:1024
s_mov_b64 exec, -1
s_waitcnt vmcnt({1 if OPT['pw'] else 0})
v_readfirstlane_b32 s{S_NONCE}, v{vPar+4}""")
arrive(2)
e(f's_add_u32 s{S_NONCE}, s{S_NONCE}, 1')
e(f'v_add_f32 v{vAc}, v{vAdd}, v{vAc}')
stamp(18)
def bprio():
    if OPT['prio']: e(f"s_setprio {OPT['bp']}")
def u_look():
    hi(); e(f'buffer_load_dword v{vFr}, v{vFu}, {sr(SRD_WS)}, 0 offen sc1'); bprio()
def u_fetch():
    hi()
    stamp(20)
    poll(vFu, first_issued=True, reg=vFr, sleep=OPT['usleep'])
    stamp(21)
    for k in range(2):
        e(f'buffer_load_dwordx4 {vr(U+4*k,4)}, v{vUa}, {sr(SRD_WS)}, s{sUl} offen offset:{2048*k} sc1')
    bprio()
if OPT['uw'] <= -2: u_look()
else: bprio()
stamp(19)
lwait(2, addr=vPair)
e(f"""ds_read_b128 {vr(vAc+8,4)}, v{vKxp}
ds_read_b128 {vr(vAc+12,4)}, v{vKxp} offset:1024
ds_write_b128 v{vRz}, {vr(vZer,4)}
s_mov_b32 s{sIt2}, 4
s_waitcnt lgkmcnt(1)""")
for i in range(4): e(f'v_pk_add_f32 {vr(vAc+2*i,2)}, {vr(vAc+2*i,2)}, {vr(vAc+8+2*i,2)}')
for i in range(4): e(f'v_cvt_pk_bf16_f32 v{vAc+8+i}, v{vAc+2*i}, v{vAc+2*i+1}')
e(f"""ds_write_b32 v{vKd}, v{vAc+8}
ds_write_b32 v{vKd1}, v{vAc+9}
s_mov_b64 exec, 0x1ffff
ds_write_b16 v{vKa0}, v{vAc+10}
s_mov_b64 exec, 0xffff
ds_write_b16_d16_hi v{vKa}, v{vAc+10} offset:64
ds_write_b16 v{vKa}, v{vAc+11} offset:32
ds_write_b16_d16_hi v{vKa}, v{vAc+11}
s_mov_b64 exec, -1""")
if OPT['pw']: e('s_waitcnt vmcnt(0)')
arrive(3)
if OPT['uw'] == -1: u_look()
if OPT['uw'] == -2: u_fetch()
def u_try():
    hi()
    e(f's_waitcnt vmcnt(0)\nv_cmp_ne_u32 vcc, s{S_NONCE}, v{vFr}\ns_mov_b64 s[88:89], vcc\ns_cbranch_vccnz L_utry')
    for k in range(2):
        e(f'buffer_load_dwordx4 {vr(U+4*k,4)}, v{vUa}, {sr(SRD_WS)}, s{sUl} offen offset:{2048*k} sc1')
    e(f's_branch L_utry2\nL_utry:\nbuffer_load_dword v{vFr}, v{vFu}, {sr(SRD_WS)}, 0 offen sc1\nL_utry2:')
    bprio()
if OPT['uw'] == -4: u_try()
lwait(3, addr=vPair)
if OPT['uw'] == -3: u_try()
stamp(2)
E = 64; BF = 40
e(f"""ds_read2_b32 {vr(E,2)}, v{vE1} offset1:1
ds_read2_b32 {vr(E+2,2)}, v{vE1b} offset0:2 offset1:3
ds_read2_b32 {vr(E+4,2)}, v{vKb} offset0:191 offset1:192
ds_read_b32 v{E+6}, v{vKb} offset:1020
ds_read_b32 v{E+7}, v{vKb} offset:1024""")
for q in range(8): e(f'ds_read2_b32 {vr(BF+2*q,2)}, v{vBk} offset0:{8*(q>>1) + 2*(q&1)} offset1:{8*(q>>1) + 2*(q&1) + 1}')
b = E + 12; t = E + 16
e(f"""s_waitcnt lgkmcnt(10)
v_perm_b32 v{b+2}, v{E+2}, v{E+2}, v{vSel+2}
v_perm_b32 v{b+3}, v{E+3}, v{E+2}, v{vSel+3}
v_perm_b32 v{b-2}, v{E+5}, v{E+4}, s{sE2}
v_perm_b32 v{b-1}, v{E+5}, v{E+4}, s{sE3}
v_perm_b32 v{b}, v{E}, v{E}, v{vSel}
v_perm_b32 v{b+1}, v{E+1}, v{E}, v{vSel+1}
v_mov_b32_dpp v{b-2}, v{b+2} wave_shr:1 row_mask:0xf bank_mask:0xf
v_mov_b32_dpp v{b-1}, v{b+3} wave_shr:1 row_mask:0xf bank_mask:0xf
ds_write_b128 v{vCd}, {vr(b,4)}""")
for i in range(4): e(f'v_alignbit_b32 v{t+i}, v{b+i}, v{b+i-1}, 16')
e(f'ds_write_b128 v{vCd}, {vr(t,4)} offset:{UC_S}')
for i in range(4): e(f'v_mov_b32 v{t+4+i}, v{b+i-1}')
e(f'ds_write_b128 v{vCd}, {vr(t+4,4)} offset:{2*UC_S}')
for i in range(4): e(f'v_alignbit_b32 v{t+8+i}, v{b+i-1}, v{b+i-2}, 16')
e(f'ds_write_b128 v{vCd}, {vr(t+8,4)} offset:{3*UC_S}\ns_waitcnt lgkmcnt(12)')
for i in range(4): e(f'v_perm_b32 v{t+12+i}, v{E+7}, v{E+6}, v{vSel+4+i}')
e(f'ds_write_b128 v{vZp}, {vr(t+12,4)}')
if OPT['uw'] <= -3: e('s_cmp_eq_u64 s[88:89], 0\ns_cbranch_scc1 L_uhave')
if OPT['uw'] != -2: u_fetch()
e('L_uhave:')
stamp(3)
e(f'v_and_b32 v{a0}, 31, v{V_LANE}')
swap23(a1, a0, a2)
e(f"""v_lshrrev_b32 v{a2}, 5, v{V_LANE}
v_lshl_add_u32 v{a1}, v{a1}, 1, v{a2}
s_add_u32 s{sA}, s{sHw}, 123
v_add_u32 v{a1}, s{sA}, v{a1}
s_mul_i32 s{sA}, s{sDs}, {PD}
s_add_u32 s{sA}, s{sA}, {L_KP}
v_and_b32 v{a3}, 3, v{a1}
v_mul_u32_u24 v{a3}, {PS - 4}, v{a3}
v_lshl_add_u32 v{a3}, v{a1}, 2, v{a3}
v_add_u32 v{vA0}, s{sA}, v{a3}
v_add_u32 v{a1}, 2, v{a1}
v_and_b32 v{a3}, 3, v{a1}
v_mul_u32_u24 v{a3}, {PS - 4}, v{a3}
v_lshl_add_u32 v{a3}, v{a1}, 2, v{a3}
v_add_u32 v{vA1}, s{sA}, v{a3}
v_lshlrev_b32 v{a2}, 3, v{a2}
v_sub_u32 v{a2}, v{a2}, v{a0}
v_cvt_f32_i32 v{a2}, v{a2}
v_add_f32 v{a3}, -1.0, v{a2}
v_add_f32 v{a2}, -2.0, v{a2}
v_cvt_pk_f16_f32 v8, v{a3}, v{a2}
s_waitcnt vmcnt(1)
ds_write_b128 v{vKp}, {vr(U,4)}
s_waitcnt vmcnt(0)
ds_write_b128 v{vKp}, {vr(U+4,4)} offset:128""")
arrive(4)
AP, BD, DP = 112, 136, 192
band = [f's_mov_b32 s{sA}, 0x4a204a20', f's_cmp_eq_u32 s{sHw}, 0', f's_cselect_b32 s{sE2}, 0x4d104d10, s{sA}', f's_mov_b32 s{sE3}, 0x4d804d80']
for q in range(12):
    band.append(f'v_pk_fma_f16 v{BD+q}, v8, v8, s{sE2} neg_lo:[1,0,0] neg_hi:[1,0,0] clamp')
    if q < 11: band.append(f'v_pk_add_f16 v8, v8, s{sE3}' if q % 4 == 3 else 'v_pk_add_f16 v8, v8, -2.0 op_sel_hi:[1,0]')
e('\n'.join(band))
lwait(4)
KG[0] = False
lo()
stamp(4)
if OPT['abl'] == 16: e('s_endpgm')
CB = 64
def cv_reads(k):
    b = CB + 12 * (k & 3)
    return [f'ds_read_b64 {vr(b,2)}, v{vF_} offset:{64*k}', f'ds_read_b64 {vr(b+2,2)}, v{vF_} offset:{64*k + 8}',
            f'ds_read_b128 {vr(b+8,4)}, v{vG_} offset:{512 + 80 - 16*k}', f'ds_read_b128 {vr(b+4,4)}, v{vG_} offset:{80 - 16*k}']
for tau in range(2):
    for kp in range(3): e(f'ds_read_b128 {vr(AP + 12*tau + 4*kp, 4)}, v{(vA0, vA1)[kp & 1]} offset:{256*tau + 16*(kp >> 1)}')
e('\n'.join(cv_reads(0) + cv_reads(1)))
assert OM == 3
late = f"""s_mov_b64 s[{SRD_B}:{SRD_B+1}], s[22:23]
s_mov_b32 s{SRD_B+2}, {448*896}
s_mov_b32 s{SRD_B+3}, 0x20000
s_mov_b64 s[{SRD_C}:{SRD_C+1}], s[24:25]
s_mov_b32 s{SRD_C+2}, {2048*1792}
s_mov_b32 s{SRD_C+3}, 0x20000
v_lshrrev_b32 v{a1}, 3, v{V_LANE}
v_and_b32 v{a2}, 7, v{V_LANE}
v_and_b32 v{a0}, 0x70, v{vL16}
v_mul_u32_u24 v{vYl}, {YS}, v{a1}
v_add_u32 v{vYl}, v{vYl}, v{a0}
v_lshlrev_b32 v{a3}, 2, v{V_LANE}
v_and_b32 v{a3}, 64, v{a3}
v_xor_b32 v{a0}, v{a0}, v{a3}
v_mul_u32_u24 v{vWoD}, 896, v{a1}
v_xor_b32 v{a3}, v{a1}, v{a2}
v_lshlrev_b32 v{a3}, 4, v{a3}
v_lshl_add_u32 v{vOut}, v{vWoD}, 1, v{a3}
v_add_u32 v{vWoD}, v{a0}, v{vWoD}
v_add_u32 v{vWoD+1}, {7168-1024}, v{vWoD}
v_lshrrev_b32 v{a0}, 4, v{V_LANE}
v_bfe_u32 v{a1}, v{V_LANE}, 2, 2
v_lshl_or_b32 v{a3}, v{a0}, 3, v{a1}
v_lshlrev_b32 v{a3}, 7, v{a3}
v_lshrrev_b32 v{a1}, 1, v{a1}
v_lshl_add_u32 v{a3}, v{a1}, 6, v{a3}
v_and_b32 v{a1}, 0x30, v{vL16}
s_movk_i32 s{sA}, {L_WO}
v_add3_u32 v{vWoR}, v{a1}, v{a3}, s{sA}
v_xor_b32 v{vWoR+1}, 64, v{vWoR}
v_and_b32 v{a1}, 15, v{V_LANE}
v_lshlrev_b32 v{vOl}, 4, v{a1}
v_mad_u32_u24 v{vOl}, v{a0}, s{S_KS}, v{vOl}
s_mul_i32 s{sOl}, s{S_I}, 9363
s_lshr_b32 s{sOl}, s{sOl}, 16
s_mul_i32 s{sA}, s{sOl}, 7
s_sub_u32 s{sCo}, s{S_I}, s{sA}
s_lshl2_add_u32 s{sOl}, s{sOl}, s{S_W}
s_lshl_b32 s{sFlU}, s{sHw}, 9
s_add_u32 s{sFlU}, s{sFlU}, s{sD}
s_lshl_b32 s{sFlU}, s{sFlU}, {FSH}
s_add_u32 s{sFlU}, s{sFlU}, {F_Y}
s_lshl_b32 s{sA}, s{sCo}, {1 + FSH}
s_sub_u32 s{sA}, s{sFlU}, s{sA}
v_min_u32 v{vFo}, 6, v{a1}
v_lshl_add_u32 v{vFo}, v{vFo}, {1 + FSH}, s{sA}
s_lshl_b32 s{sA}, s{S_W}, 11
s_add_u32 s{sA}, s{sA}, {L_SSM}
v_xor_b32 v{a3}, v{a0}, v{a2}
v_lshl_add_u32 v{a3}, v{a3}, 4, s{sA}
v_lshl_add_u32 v{vBw}, v{a1}, 7, v{a3}
v_add_u32 v{vBr}, s{sA}, v{vL16}
s_mul_i32 s{sOut}, s{sOl}, {16*1792}
s_lshl_b32 s{sA}, s{sCo}, 7
s_add_u32 s{sOut}, s{sOut}, s{sA}
s_add_u32 s{sOut}, s{sOut}, 896
s_add_u32 s{sOut+1}, s{sOut}, {8*1792}
s_lshl_b32 s{sOl}, s{sOl}, 8
s_add_u32 s{sOl}, s{sOl}, {WS_O}
s_lshl2_add_u32 s{sCh0}, s{S_C}, s{S_W}
s_lshl_b32 s{sCh0}, s{sCh0}, 4
s_lshr_b32 s{sA}, s{S_J}, 4
s_lshl_b32 s{sA}, s{sA}, 9
s_add_u32 s{sA}, s{sA}, s{sCh0}
s_lshl_b32 s{sA}, s{sA}, {FSH}
s_add_u32 s{sA}, s{sA}, {F_Y}
v_lshl_add_u32 v{vFy}, v{a1}, {FSH}, s{sA}
s_mov_b32 exec_lo, 0
v_mov_b32 v{vFy}, v{vFo}
s_mov_b64 exec, -1
v_lshrrev_b32 v{a1}, 3, v{V_LANE}
v_and_b32 v{a3}, 3, v{V_LANE}
v_lshl_or_b32 v{vYw}, v{a1}, 2, v{a3}
v_xor_b32 v{a3}, s{S_W}, v{a3}
v_lshl_or_b32 v{vYw}, v{vYw}, 2, v{a3}
v_bfe_u32 v{a3}, v{V_LANE}, 2, 1
v_lshl_or_b32 v{vYw}, v{vYw}, 1, v{a3}
v_lshlrev_b32 v{vYw}, 4, v{vYw}
v_and_b32 v{a3}, 4, v{a1}
v_add_u32 v{a3}, v{a3}, v{a1}
v_mul_u32_u24 v{vYs}, 1792, v{a3}
v_and_b32 v{a1}, 3, v{a1}
v_lshlrev_b32 v{a1}, 1, v{a1}
v_xor_b32 v{a1}, v{a1}, v{a2}
v_lshl_add_u32 v{vYs}, v{a1}, 4, v{vYs}
s_lshl_b32 s{sA}, s{sHw}, 12
s_add_u32 s{sB}, s{sP}, {P_X + 4096}
s_sub_u32 s{sB}, s{sB}, s{sA}
v_add_u32 v{vXp}, s{sB}, v{vL16}
s_add_u32 s{sA}, s{sA}, s{sP}
s_add_u32 s{sA}, s{sA}, {P_X}
v_add_u32 v{vXo}, s{sA}, v{vL16}
v_lshl_add_u32 v{vRb_}, v{a0}, 4, s{sA}
v_bfe_u32 v{a0}, v{V_LANE}, 2, 2
v_and_b32 v{a3}, 1, v{V_LANE}
v_lshl_or_b32 v{a2}, v{a3}, 3, v{a0}
v_lshl_add_u32 v{vTr}, v{a2}, 7, v{vRb_}
v_and_b32 v{a2}, 2, v{V_LANE}
v_lshl_add_u32 v{vTr}, v{a2}, 2, v{vTr}""".split('\n')
def fill(n):
    while 'exec_lo' in ''.join(late[max(0, n-2):n]): n += 1
    e('\n'.join(late[:n])); del late[:n]
fill(16)
e('s_waitcnt lgkmcnt(8)')
for kp in range(3):
    for tau in range(2):
        d = vr(DP + 16*tau, 16)
        e(f'v_mfma_f32_32x32x16_bf16 {d}, {vr(AP + 12*tau + 4*kp, 4)}, {vr(BD + 4*kp, 4)}, {"0" if kp == 0 else d}')
        fill(6)
def cv_iter(first):
    for k in range(4):
        b = CB + 12 * k
        rd = cv_reads(k + 2)
        z = first and k == 0
        e('s_waitcnt lgkmcnt(4)')
        e(f'v_mfma_f32_32x32x16_bf16 {vr(T1,16)}, {vr(b,4)}, {vr(b+8,4)}, {"0" if z else vr(T1,16)}')
        e('\n'.join(rd))
        if k == 3:
            e(f'v_add_u32 v{vF_}, 256, v{vF_}\nv_subrev_u32 v{vG_}, 64, v{vG_}')
            if not first: e(f's_add_u32 s{sIt2}, s{sIt2}, 1\ns_cmp_lg_u32 s{sIt2}, 11')
        e(f'v_mfma_f32_32x32x16_bf16 {vr(T0,16)}, {vr(b,4)}, {vr(b+4,4)}, {"0" if z else vr(T0,16)}')
        if first: fill(6 if k < 3 else 99)
cv_iter(True)
e('L_cv:')
cv_iter(False)
e('s_cbranch_scc1 L_cv')
cv = [f'v_cvt_pk_bf16_f32 v{AP+i}, v{DP+2*i}, v{DP+2*i+1}' for i in range(16)]
for k in range(2):
    e('\n'.join(cv[4*k:4*k+4]))
    e(f's_waitcnt lgkmcnt({4 - 4*k})')
    e(f'v_mfma_f32_32x32x16_bf16 {vr(T1,16)}, {vr(CB+12*k,4)}, {vr(CB+12*k+8,4)}, {vr(T1,16)}')
for q in range(4):
    e('\n'.join(cv[8+4*q:12+4*q]))
    e(f'v_mfma_f32_32x32x16_bf16 {vr(T1,16)}, {vr(AP+4*q,4)}, {vr(BF+4*q,4)}, {vr(T1,16)}')
if OPT['prio']: e(f"s_setprio {OPT['pr']}")
stamp(5)
if OPT['abl'] == 32: e('s_endpgm')
e(f"""s_mul_i32 s{sA}, s{sD}, {YS}
s_lshl_b32 s{sB}, s{sHw}, 11
s_add_u32 s{sA}, s{sA}, s{sB}
s_add_u32 s{sA}, s{sA}, {WS_Y}
s_nop 4""")
def xch(give, keep):
    for i in range(4): e(f'ds_write_b128 v{vXp}, {vr(give+4*i,4)} offset:{1024*i}')
    arrive(6); lwait(6, addr=vPair)
    for i in range(4): e(f'ds_read_b128 {vr(give+4*i,4)}, v{vXo} offset:{1024*i}')
    e('s_waitcnt lgkmcnt(0)')
e(f's_cmp_eq_u32 s{sHw}, 0\ns_cbranch_scc1 L_x0')
xch(T0, T1)
e('s_branch L_x1\nL_x0:')
xch(T1, T0)
e('L_x1:')
for i in range(8): e(f'v_pk_add_f32 {vr(T0+2*i,2)}, {vr(T0+2*i,2)}, {vr(T1+2*i,2)}')
for i in range(8): e(f'v_cvt_pk_bf16_f32 v{T1+i}, v{T0+2*i}, v{T0+2*i+1}')
e(f"""buffer_store_dwordx4 {vr(T1,4)}, v{vL16}, {sr(SRD_WS)}, s{sA} offen sc1
buffer_store_dwordx4 {vr(T1+4,4)}, v{vL16}, {sr(SRD_WS)}, s{sA} offen offset:1024 sc1
v_subrev_u32 v{a0}, 16, v{V_GRP}""")
if OM:
    e(f'''v_mov_b64 {vr(T0,2)}, -1
    v_mov_b64 {vr(T0+2,2)}, -1
    s_mul_i32 s{sA}, s{sCo}, {8*KS}
    s_add_u32 s{sA}, s{sA}, s{sOl}
    s_add_u32 s{sSk}, s{sA}, {4*KS}
    buffer_store_dwordx4 {vr(T0,4)}, v{vOl}, {sr(SRD_WS)}, s{sA} offen sc1
    buffer_store_dwordx4 {vr(T0,4)}, v{vOl}, {sr(SRD_WS)}, s{sSk} offen sc1''')
sync(7)
if OPT['only'] != 1: lwait(7, addr=a0)
e('s_waitcnt vmcnt(0)')
publish(sFlU, a0)
stamp(6)
if OPT['abl'] == 33: e('s_endpgm')
e(f"""s_mul_i32 s{sA}, s{S_W}, {16*896}
s_lshl_b32 s{sB}, s{sCo}, 7
s_add_u32 s{sA}, s{sA}, s{sB}
s_lshl_b32 s{sB}, s{S_W}, 11
s_add_u32 s{sB}, s{sB}, {L_WO}""")
for ch in range(7):
    e(f"""s_add_u32 m0, s{sB}, {8192*ch}
    s_add_u32 s{sSk}, s{sA}, {64*896*ch}
    buffer_load_dwordx4 v{vWoD}, {sr(SRD_B)}, s{sSk} offen lds
    buffer_load_dwordx4 v{vWoD+1}, {sr(SRD_B)}, s{sSk} offen offset:1024 lds
    s_waitcnt vmcnt({OPT['wodepth'] if ch < 6 else 0})""")
WF, OF, OC = 8, 168, 224
arrive(8)
e(f"""buffer_load_dword v{a0}, v{vFy}, {sr(SRD_WS)}, 0 offen sc1
s_mul_i32 s{sA}, s{sCh0}, {YS}
s_lshl_b32 s{sSk}, s{S_J}, 7
s_add_u32 s{sA}, s{sA}, s{sSk}
s_add_u32 s{sA}, s{sA}, {WS_Y}
s_add_u32 s{sSk}, s{sA}, {8*YS}""")
lwait(8)
stamp(7)
if OPT['abl'] == 34: e('s_endpgm')
def wo_reads(k):
    r = []
    for t in range(4):
        for hf in range(2):
            r.append(f'ds_read_b64_tr_b16 {vr(WF + 16*(k%10) + 4*t + 2*hf, 2)}, v{vWoR + (t>>1)} offset:{4096*k + 512*hf + 8*(t&1)}')
    return r
for k in range(10): e('\n'.join(wo_reads(k)))
arrive(9)
poll(vFy, first_issued=True, sleep=OPT['ysleep'], reg=a0)
stamp(8)
if OPT['abl'] == 35: e('s_endpgm')
e(f"""buffer_load_dwordx4 {vr(OF,4)}, v{vYl}, {sr(SRD_WS)}, s{sA} offen sc1
buffer_load_dwordx4 {vr(OF+4,4)}, v{vYl}, {sr(SRD_WS)}, s{sSk} offen sc1
s_lshr_b32 s{sA}, s{S_J}, 4
s_lshl_b32 s{sA}, s{sA}, 10
s_and_b32 s{sB}, s{S_J}, 3
s_lshl_b32 s{sB}, s{sB}, 8
s_add_u32 s{sA}, s{sA}, s{sB}
s_and_b32 s{sB}, s{S_J}, 8
s_lshl1_add_u32 s{sA}, s{sB}, s{sA}
s_and_b32 s{sB}, s{S_J}, 4
s_add_u32 s{sA}, s{sA}, s{sB}
s_lshl_b32 s{sB}, s{S_W}, 6
s_add_u32 s{sA}, s{sA}, s{sB}
s_mul_i32 s{sA}, s{sA}, 1792
s_lshl_b32 s{sB}, s{S_C}, 7
s_add_u32 s{sA}, s{sA}, s{sB}
s_add_u32 s{sB}, s{sA}, {32*1792}
v_xor_b32 v{a0}, 64, v{vBw}""")
lwait(9)
e(f"""s_waitcnt vmcnt(0)
ds_write_b128 v{vXo}, {vr(OF,4)}
ds_write_b128 v{vXo}, {vr(OF+4,4)} offset:1024""")
for z in range(2):
    for hf in range(2):
        e(f'ds_read_b64_tr_b16 {vr(OF + 8 + 4*z + 2*hf, 2)}, v{vTr} offset:{64*z + 512*hf}')
e(f"""s_waitcnt lgkmcnt(0)
ds_write_b128 v{vYw}, {vr(OF+8,4)} offset:{L_SSM}
ds_write_b128 v{vYw}, {vr(OF+12,4)} offset:{L_SSM + 4096}""")
sync(10)
e(f"""ds_read_b128 {vr(OF+8,4)}, v{vBr}
ds_read_b128 {vr(OF+12,4)}, v{vBr} offset:1024
s_waitcnt lgkmcnt(0)
buffer_store_dwordx4 {vr(OF+8,4)}, v{vYs}, {sr(SRD_C)}, s{sA} offen {OUTM}
buffer_store_dwordx4 {vr(OF+12,4)}, v{vYs}, {sr(SRD_C)}, s{sB} offen {OUTM}""")
if OPT['only'] == 1:
    stamp(9); stamp(13); prof_out(); e('s_endpgm')
if OM == 4:
    e(f'''s_lshl2_add_u32 s{sA}, s{S_J}, s{S_W}
    s_lshr_b32 s{sA}, s{sA}, 1
    s_lshl_b32 s{sA}, s{sA}, {4 + FSH}
    s_add_u32 s{sA}, s{sA}, {F_O}
    v_and_b32 v{vFo}, 15, v{V_LANE}
    v_lshl_add_u32 v{vFo}, v{vFo}, {FSH}, s{sA}''')
sOk, sLast = 4, 18
for k in range(14): e(f's_add_u32 s{sOk+k}, s{sOl}, {4*KS*k}')
if OPT['touch'] and OPT['tsa']: e('s_mov_b64 exec, 0\ns_branch L_qad0\nL_qad_ret:\ns_mov_b64 exec, -1')
e(f's_min_u32 s{S_BOUND}, s{S_BOUND}, 0x4000')
stamp(9)
e('L_obar:')
e('s_barrier        ; released once the four attention waves have stored their rows')
stamp(10)
if OPT['osleep']: e(f"s_sleep {OPT['osleep']}")
if OM != 3: poll(vFo, sleep=OPT['hsleep'])
stamp(11)
def o_load(k): return f'buffer_load_dwordx4 {vr(OF+4*k,4)}, v{vOl}, {sr(SRD_WS)}, s{sOk+k} offen sc1'
OD = OPT['od']
def o_chk(k):
    o = OF + 4*k
    return [f's_waitcnt vmcnt({min(OD - 1, 13 - k)})', f'v_max3_u32 v6, v{o}, v{o+1}, v{o+2}', f'v_max_u32 v6, v6, v{o+3}', 'v_cmp_eq_u32 vcc, -1, v6']
for k in range(OD): e(o_load(k))
e('\n'.join(o_chk(0)))
for k in range(14):
    o = OF + 4*k
    m = [f'v_mfma_f32_16x16x32_bf16 {vr(OC+4*t,4)}, {vr(WF + 16*(k%10) + 4*t, 4)}, {vr(o,4)}, {"0" if k == 0 else vr(OC+4*t,4)}' for t in range(4)]
    rd = wo_reads(10 + (k - 1) // 2)[4*((k - 1) & 1):][:4] if 1 <= k <= 8 else []
    if k == 10: e('s_waitcnt lgkmcnt(0)')
    e(f's_cbranch_vccnz L_or{k}\nL_og{k}:')
    c = o_chk(k + 1) if k < 13 else ['', '', '', '']
    ld = [o_load(k + OD)] if k + OD < 14 else []
    e('\n'.join(ld + [m[0]] + rd[:2] + [m[1]] + rd[2:] + [c[0], c[1], m[2], c[2], c[3], m[3]]))
stamp(12)
e('s_nop 4')
for i in range(8): e(f'v_cvt_pk_bf16_f32 v{16+i}, v{OC+2*i}, v{OC+2*i+1}')
e(f"""ds_write_b128 v{vBw}, {vr(16,4)}
ds_write_b128 v{a0}, {vr(20,4)}
ds_read_b128 {vr(24,4)}, v{vBr}
ds_read_b128 {vr(28,4)}, v{vBr} offset:1024
s_or_b32 s{sA}, s2, s{S_W}
s_waitcnt lgkmcnt(1)
buffer_store_dwordx4 {vr(24,4)}, v{vOut}, {sr(SRD_C)}, s{sOut} offen {OUTM2}
s_waitcnt lgkmcnt(0)
buffer_store_dwordx4 {vr(28,4)}, v{vOut}, {sr(SRD_C)}, s{sOut+1} offen {OUTM2}
s_cbranch_scc1 L_noepoch""")
publish(sA, 6)
e('L_noepoch:')
if OPT['prof']:
    e('s_waitcnt vmcnt(0)')
stamp(13)
prof_out()
e('L_end:\ns_endpgm')
for k in range(14):
    c = o_chk(k)
    n = min(14, k + OD); w = min(n, k + OPT['sw'])
    e(f'''L_or{k}:
    {chr(10).join(o_load(q) for q in range(w, n))}
    L_oc{k}:
    {chr(10).join(o_load(q) for q in range(k, w))}
    s_sub_u32 s{S_BOUND}, s{S_BOUND}, 1
    s_cselect_b32 s{S_BOUND}, 0, s{S_BOUND}
    s_waitcnt vmcnt(0)
    s_cbranch_scc1 L_og{k}
    {c[1]}
    {c[2]}
    {c[3]}
    s_cbranch_vccnz L_oc{k}
    s_branch L_og{k}''')
sec('idle')
ROLE[0] = 2
e('L_ssm_idle:')
if OPT['only'] == 2:
    arrive(1); e('s_endpgm')
hi()
e(f"""v_lshrrev_b32 v10, 3, v{V_LANE}
v_and_b32 v11, 7, v{V_LANE}
v_lshlrev_b32 v11, 4, v11
v_mul_u32_u24 v5, 896, v10
v_add_u32 v5, v5, v11
v_add_u32 v6, {7168-1024}, v5
s_lshl2_add_u32 s60, s{S_J}, s{S_W}
s_mul_i32 s61, s60, {16*896}
s_mul_i32 s62, s{S_W}, 14336
s_add_u32 s62, s62, {L_SSM}
s_mov_b32 s{SRD_A+2}, {2048*896}
s_mov_b32 s{SRD_A+3}, 0x20000
s_waitcnt lgkmcnt(0)
s_load_dword s{S_NONCE}, s[28:29], 0
s_mov_b64 s[{SRD_A}:{SRD_A+1}], s[4:5]""")
for c in range(7):
    e(f"""s_add_u32 m0, s62, {2048*c - 128*c}
    s_nop 0
    buffer_load_dwordx4 v5, {sr(SRD_A)}, s61 offen offset:{128*c} lds
    buffer_load_dwordx4 v6, {sr(SRD_A)}, s61 offen offset:{1024 + 128*c} lds""")
    if c == 1:
        srd(SRD_WS, 28, WS_SIZE)
        e(f"""; transposing read: row = 8*(cc&1)+r', byte = 8*(2G+(cc>>1))
        v_mul_u32_u24 v7, {QS}, v10
        v_add_u32 v7, v7, v11
        v_bfe_u32 v8, v{V_LANE}, 2, 2
        v_and_b32 v9, 1, v{V_LANE}
        v_lshl_or_b32 v8, v9, 3, v8
        v_xor_b32 v8, 3, v8
        v_lshl_add_u32 v8, v8, 7, s62
        v_and_b32 v9, 0x30, v{V_LANE}
        v_add_u32 v8, v8, v9
        v_and_b32 v9, 2, v{V_LANE}
        v_lshl_add_u32 v8, v9, 2, v8
        s_lshl_b32 s63, s60, 7
        s_add_u32 s63, s63, {WS_U}
        s_mul_i32 s65, s{S_J}, {US}
        v_mov_b32 v12, 0x3f803f80
        v_mov_b32 v13, v12
        v_mov_b64 v[14:15], v[12:13]
        v_lshlrev_b32 v9, 4, v{V_LANE}
        s_lshl2_add_u32 s66, s{S_TILE}, s{S_W}
        s_lshl_b32 s66, s66, 8
        s_mul_i32 s67, s{S_HG}, {QS}
        s_add_u32 s66, s66, s67
        s_add_u32 s66, s66, {WS_V + 112*QS}
        s_add_u32 s65, s65, {F_U}""")
e('s_waitcnt lgkmcnt(0)')
TW = 0
if OPT['fwm'] & 1:
    TW = 1
    e(f'''v_mov_b32 v{V_T}, s{S_NONCE}
    v_lshlrev_b32 v5, 2, v{V_LANE}
    s_mov_b32 exec_hi, 0
    buffer_store_dword v{V_T}, v5, {sr(SRD_WS)}, s65 offen sc1
    s_mov_b64 exec, -1''')
e(f's_add_u32 s{S_NONCE}, s{S_NONCE}, 1')
arrive(1)
def t_rd(c):
    return [f'ds_read_b64_tr_b16 {vr(16 + 8*c + 4*z + 2*hf, 2)}, v8 offset:{2048*c + 64*z + 512*(1-hf)}' for z in range(2) for hf in range(2)]
e(f's_waitcnt vmcnt({12 + TW})'); stamp(1); e('\n'.join(t_rd(0)))
for c in range(7):
    if c < 6:
        e(f's_waitcnt vmcnt({10 + TW})'); e('\n'.join(t_rd(c + 1)))
    e(f"""s_add_u32 s64, s63, {8*QS}
    s_waitcnt lgkmcnt({4 if c < 6 else 0})
    buffer_store_dwordx4 {vr(16+8*c,4)}, v7, {sr(SRD_WS)}, s63 offen sc1
    buffer_store_dwordx4 {vr(20+8*c,4)}, v7, {sr(SRD_WS)}, s64 offen sc1
    s_add_u32 s63, s63, {16*QS}""")
assert OPT['ur'] == 1
e(f'''; the column quad of ones that gives the softmax row sums
s_mov_b64 exec, 0xffff
buffer_store_dwordx4 v[12:15], v9, {sr(SRD_WS)}, s66 offen sc1''')
stamp(2)
e(f'''s_mov_b64 exec, 1
v_mov_b32 v5, s{S_NONCE}
s_cmp_lg_u32 s{S_W}, 0
s_waitcnt vmcnt(0)
s_barrier
s_cbranch_scc1 L_idle_end
buffer_store_dword v5, v9, {sr(SRD_WS)}, s65 offen sc1''')
e('L_idle_end:\ns_mov_b64 exec, -1'); stamp(4)
if OPT['wop']:
    e(f'''s_mov_b64 s[{SRD_A}:{SRD_A+1}], s[22:23]
    s_mov_b32 s{SRD_A+2}, {448*896}
    s_mul_i32 s60, s60, {25*128}
    v_lshlrev_b32 v5, 7, v{V_LANE}
    s_mov_b64 exec, 0x1ffffff
    buffer_load_dword v6, v5, {sr(SRD_A)}, s60 offen
    s_mov_b64 exec, -1''')
prof_out()
e('s_endpgm')
def ilen(l):
    l = l.split(';')[0].strip()
    if not l or l.endswith(':'): return 0
    op = l.split()[0]
    if op.startswith(('buffer_', 'global_', 'ds_', 'v_mfma', 'v_smfmac', 'v_pk_', 's_load', 'v_cvt_pk', 'v_lshl_', 'v_perm', 'v_bfe', 'v_max3', 'v_align')): return 8
    return 8 if '0x' in l else 4
pads = []; qads = []
if OPT['touch']:
    for n in ('mha', 'ssm'):
        new = []; acc = OPT['touch'] if n == 'mha' else -OPT['touch']; loop = None; late_ = False
        for l in SEC[n]:
            t = l.strip()
            def pad():
                if late_ and OPT['tsa']:
                    qads.append(len(qads)); new.extend([f'L_qad{qads[-1]}:', f'    s_cbranch_execz L_qxt{qads[-1]}'])
                else:
                    pads.append(len(pads)); new.extend([f'L_pad{pads[-1]}:', f'    s_cbranch_execz L_nxt{pads[-1]}'])
            if t in ('L_att:', 'L_cv:'): pad(); acc = 0
            if t in ('L_att:', 'L_cv:'): loop = t[:-1]
            if acc >= OPT['touch'] and (loop is None or acc >= 1200) and not t.endswith(':') and not (OPT['st'] and new[-1] in ('L_mha1:', 'L_sp2:')) and 'exec' not in ''.join(new[-4:]).replace('execz', ''):
                pad(); acc = 0
            if loop and t == f's_cbranch_scc1 {loop}': loop = None
            if t in ('L_gemm_v:', 'L_gemm_done:'): acc = OPT['touch']
            if t == 'L_obar:': late_ = True; acc = OPT['touch'] // 2
            new.append(l); acc += ilen(l)
        SEC[n] = new
sec('lad' if OPT['te'] else 'idle')
e('L_tmha:')
if pads:
    e(f's_and_b32 s{sTmp}, s{S_J}, 3\ns_lshl2_add_u32 s{sTmp}, s{sTmp}, s{S_W}\ns_mov_b64 exec, 0')
    for i in range(min(16, len(pads))):
        e(f's_cmp_eq_u32 s{sTmp}, {i}\ns_cbranch_scc1 L_pad{i}')
    e('L_pad_ret:\ns_mov_b64 exec, -1')
e('s_branch L_mha_b' if OPT['te'] and OPT['touch'] else 's_branch L_gemm_t')
SEC.setdefault('lad', [])
fix = {f'L_nxt{i}': (f'L_pad{i+16}' if i + 16 < len(pads) else 'L_pad_ret') for i in pads}
fix.update({f'L_qxt{i}': (f'L_qad{i+1}' if i + 1 < len(qads) else 'L_qad_ret') for i in qads})
for n in SEC:
    SEC[n] = [(l.rsplit(' ', 1)[0] + ' ' + fix[l.rsplit(' ', 1)[1]]) if 'L_nxt' in l or 'L_qxt' in l else l for l in SEC[n]]
print('pads', len(pads), len(qads), file=sys.stderr)
ORDER = [['pro', 'ssm0', 'mha0', 'idle', 'ssm', 'mha'], ['pro', 'ssm0', 'mha0', 'mha', 'ssm', 'idle'],
         ['pro', 'ssm0', 'mha0', 'lad', 'ssm', 'mha', 'idle'], ['pro', 'ssm0', 'idle', 'mha0', 'mha', 'ssm'],
         ['pro', 'ssm0', 'ssm', 'mha0', 'mha', 'idle'], ['pro', 'ssm0', 'ssm', 'idle', 'mha0', 'mha']][OPT['ord']] + ['cold', 'gt', 'fb']
SEC.setdefault('cold', [])
def add_nt(n, pred):
    SEC[n] = [(l.replace(' lds', ' nt lds') if l.endswith(' lds') else l + ' nt') if pred(l) else l for l in SEC[n]]
for n in ('mha0', 'mha', 'gt'):
    if OPT['nt'] & 1: add_nt(n, lambda l: l.endswith(' lds') and sr(SRD_A) in l)
    if OPT['nt'] & 2: add_nt(n, lambda l: l.endswith(' lds') and sr(SRD_B) in l)
if OPT['nt'] & 4: add_nt('idle', lambda l: l.endswith(' lds'))
if OPT['nt'] & 8: add_nt('ssm0', lambda l: 'global_load' in l)
if OPT['nt'] & 16: add_nt('ssm', lambda l: l.endswith(' lds'))
if OPT['nt'] & 32: add_nt('ssm', lambda l: 'buffer_store' in l and sr(SRD_C) in l)
BODY = sum((SEC[n] for n in ORDER), [])
def sizes(lines):
    import subprocess, re, os, tempfile
    d = tempfile.mkdtemp()
    open(d + '/a.s', 'w').write('.amdgcn_target "amdgcn-amd-amdhsa--gfx950"\n.text\n' + '\n'.join(lines) + '\n')
    subprocess.check_call(['clang', '-x', 'assembler', '-target', 'amdgcn-amd-amdhsa', '-mcpu=gfx950', '-c', d + '/a.s', '-o', d + '/a.o'])
    o = subprocess.check_output(['llvm-objdump', '-d', '--mcpu=gfx950', d + '/a.o']).decode()
    return [4 * len(m.group(1).split()) for m in re.finditer(r'// [0-9A-F]{12}: ((?:[0-9A-F]{8} ?)+)', o)]
def is_ins(l):
    t = l.split(';')[0].strip()
    return bool(t) and not t.endswith(':')
def widen(l):
    import re
    t = l.split(';')[0].strip(); op = t.split()[0]
    if op.startswith('v_') and not op.startswith(('v_readfirstlane', 'v_swap', 'v_permlane', 'v_nop')):
        return l.replace(op, op + '_e64', 1)
    return None
PGL = [l for b, l in ((1, 'L_mha:'), (2, 'L_gemm_v:'), (4, 'L_att:'), (8, 'L_ssm_idle:'), (16, 'L_ssm:'), (32, 'L_mha1:')) if OPT['pgm'] & b]
if OPT['al']:
    sz = iter(sizes(BODY + ['L_pg0:', 'L_pg1:', 'L_sp1:', 'L_sp3:']))
    npg = 0; inatt = False; spl = None
    I = [[l, next(sz) if is_ins(l) else 0] for l in BODY]
    res = []; addr = 0; nw = nn = 0
    for i, (l, n) in enumerate(I):
        if l in PGL: addr = 0
        if l == 'L_att:': inatt = True; page = addr >> 12
        if l in ('L_ssm:', 'L_mha1:'): spl = {'L_ssm:': 'L_sp3:', 'L_mha1:': 'L_sp1:'}[l]; spp = addr >> 12
        if OPT['st'] and spl and n and addr >> 12 != spp and 'exec' not in ''.join(x[0] for x in res[-4:]).replace('execz', ''):
            res += [[spl, 0], ['    s_cbranch_execz L_mha1', 4]]; addr += 4; spl = None
        if OPT['pt'] and inatt and n and addr >> 12 != page and npg < 2 and res[-1][0].strip().startswith(('v_mfma', 'v_smfmac')):
            res += [[f'L_pg{npg}:', 0], ['    s_cbranch_execz L_pg_ret', 4]]; addr += 4; npg += 1; page = addr >> 12
        if n == 8 and addr % 8 == 4:
            run = 0
            for l2, n2 in I[i:]:
                if n2 == 4: break
                run += n2 == 8
            cross = sum(1 for k in range(run) if (addr + 8*k) % 32 == 28)
            if cross:
                j = len(res) - 1; done = False; aj = addr
                while j >= 0 and res[j][1] in (0, 4):
                    aj -= res[j][1]
                    t = res[j][0].strip()
                    if t.startswith(('s_branch', 's_endpgm', 's_setpc')):
                        res.insert(j + 1, ['    s_nop 0', 4]); done = True; break
                    w = widen(res[j][0]) if res[j][1] == 4 and aj % 32 != 28 else None
                    if w:
                        res[j] = [w, 8]; done = True; nw += 1; break
                    j -= 1
                if not done and run >= OPT['alr']:
                    k = len(res)
                    while res[k-1][1] == 0: k -= 1
                    res.insert(k, ['    s_nop 0', 4]); done = True; nn += 1
                if done: addr += 4
        res.append([l, n]); addr += n
    BODY = [l for l, n in res]
    if OPT['pt']:
        for q in range(npg, 2): BODY.insert(BODY.index('L_pg_ret:'), f'L_pg{q}:')
    print('aligned: widened', nw, 'nops', nn, 'bytes', addr, file=sys.stderr)
PG = '' if OPT['pg'] < 0 else f".p2align 12\n.fill {OPT['pg'] * 64}, 4, 0xbf800000\n"
for l in PGL: BODY.insert(BODY.index(l), '.p2align 12')
hdr = open('header.txt').read()
txt = hdr + f'''; @launch grid=(256,1,1) block=(512,1,1) lds={L_TOT}
.amdgcn_target "amdgcn-amd-amdhsa--gfx950"
.text
.globl {KN}
{PG}.p2align 8
.type {KN},@function
{KN}:
''' + '\n'.join(BODY) + f'''
.section .rodata,"a"
.p2align 6
.amdhsa_kernel {KN}
  .amdhsa_next_free_vgpr 256
  .amdhsa_next_free_sgpr 102
  .amdhsa_accum_offset 256
  .amdhsa_group_segment_fixed_size 0
  .amdhsa_kernarg_size 104
  .amdhsa_user_sgpr_count 2
  .amdhsa_user_sgpr_kernarg_segment_ptr 1
  .amdhsa_system_sgpr_workgroup_id_x 1
.end_amdhsa_kernel
'''
open(sys.argv[1], 'w').write(txt)
```

```python
import sys, struct
def fl(x): return hex(struct.unpack('<I', struct.pack('<f', x))[0])

KN = 'concat_heads__ssm_conv_s4d__softmax_full_mha__prompt_kernel'
OPT = dict(nd=4, ld=10, one1=1, sp=0, t0=0, te=0, st=0, pt=1, rdc=0, wop=0, wp=1, lp=0, unr=1, pfl=0, tsa=1, od=8, sw=3, nobatch=0, fwm=0, pg=13, pgm=32, pfm=7, rdr=0, pw=0, dm=0, rdf=0, rdv=0, rdt=0, only_st=0, ur=1, us=128, rd0=-1, rdm=0, probe=0, poff=0xc00000, nt=0, rdn=0, al=1, alr=6, fw=0, rsleep=0, hsleep=0, ord=2, nb=0, tb=13, tq=0, chkk=99, uw=-1, cw=0, s6=5, tskip=1, ones=1, pa=1, pr=2, pf=2, wgf=2, ax=0, bp=1, qa=7, n0=4, ilv=8, tlb=0, ulook=1, kgp=1, pad=0, ypad=0, omode=3, ksleep=0, usleep=4, obar=4, osleep=0, pubk=8, abl=0, touch=1024, gs=0, kgw=0, xg=5, gx=0, pm=2, ps=0, rt=0, upub=1, kgx=0, outsc=3, ysleep=8, wodepth=2, wq_mid=0, pollk=99, rd=-1, rdrole=0, only=0, safe=0, rot=0, prof=0, fs=128, force_fb=0, wq_early=7, prio=1)
for a in sys.argv[2:]:
    k, v = a.split('=')
    assert k in OPT, k
    OPT[k] = int(v, 0)

FS = OPT['fs']
FSH = FS.bit_length() - 1
F_KV = 0x1000
F_O = F_KV + 1024 * FS
F_U = F_O + 1024 * FS
F_Y = F_U + 1024 * FS
F_H = F_Y + 1024 * FS
WS_K = 0x100000
WS_V = 0x300000
WS_O = 0x500000
WS_U = 0x700000
WS_Y = 0x900000
QS = 16384 + OPT['pad']; KS = 2 * QS; YS = 4096 + OPT['ypad']
S_KS = 57
WS_PROF = 0xb00000
F_U = 0xb80000 if OPT['us'] * OPT['ur'] > 4096 else F_U
US = OPT['us']
WS_SIZE = 0x1000000
L_SSM = 1024
L_W = 57344
L_RB = 65536
L_X = 114688
L_TOT = 163840
TROW = 288
TABSZ = 38 * TROW
L_TAB = L_SSM
P_SZ = 2 * TABSZ
P_UC = 1536
UC_S = 2240
P_KD = TABSZ + 1536
P_X = TABSZ
PS = 1552
PD = 4 * PS
L_KP = L_TAB + 4 * TABSZ
assert P_UC + 4 * UC_S <= TABSZ and P_KD + 1600 <= P_SZ and P_X + 8192 <= P_SZ and L_KP % 16 == 0 and L_KP + 2 * PD <= L_W
L_WO = L_SSM

S_WV, S_W, S_HG, S_C, S_TILE, S_J, S_H, S_NONCE, S_O0, S_I = range(30, 40)
SRD_WS, SRD_A, SRD_B, SRD_C = 40, 44, 48, 52
S_BOUND = 56
S_T0 = 58

SEC = {}
out = None
def sec(n):
    global out
    out = SEC.setdefault(n, [])
sec('pro')
def e(s):
    for l in s.split('\n'):
        l = l.strip()
        if l:
            out.append(l if l.endswith(':') else '    ' + l)
_lab = [0]
def lab(p):
    _lab[0] += 1
    return f'L_{p}_{_lab[0]}'
def vr(a, n):
    return f'v[{a}:{a+n-1}]' if n > 1 else f'v{a}'
def srd(d, b, n):
    e(f's_mov_b64 s[{d}:{d+1}], s[{b}:{b+1}]\ns_mov_b32 s{d+2}, {n}\ns_mov_b32 s{d+3}, 0x20000')
def sr(d): return f's[{d}:{d+3}]'

V_LANE, V_T, V_OWN, V_GRP, V_PROF = 0, 1, 2, 3, 4

ROLE = [0]
def stamp(i):
    if OPT['rd0'] == i and OPT['rdrole'] == ROLE[0]:
        e(f"s_mem{'' if OPT['rdc'] else 'real'}time s[98:99]\ns_waitcnt lgkmcnt(0)")
    if OPT['rd'] == i and OPT['rdrole'] == ROLE[0]:
        e(f"s_mem{'' if OPT['rdc'] else 'real'}time s[100:101]\ns_waitcnt lgkmcnt(0)")
    if (OPT['only_st'] >> (i + 32*min(ROLE[0], 1))) & 1 if OPT['only_st'] else OPT['prof'] > (i >= 14):
        e(f's_mem{"real" if OPT["rt"] else ""}time s[96:97]\ns_waitcnt lgkmcnt(0)\ns_sub_u32 s96, s96, s{98 if OPT["rt"] else S_T0}\nv_writelane_b32 v{V_PROF}, s96, {i}')
def prof_out():
    if OPT['rd'] >= 0 and OPT['rdrole'] == ROLE[0]:
        l = lab('pad')
        if ROLE[0] == 0 and not OPT['obar']: e('s_barrier')
        if ROLE[0] == 2: e('s_barrier')
        if OPT['rdr']:
            e(f'''s_lshl3_add_u32 s96, s2, s{S_WV}
            s_lshl_b32 s96, s96, 2
            s_add_u32 s96, s96, 0xb40000
            v_mov_b32 v6, 0
            buffer_load_dword v5, v6, {sr(SRD_WS)}, s96 offen sc1
            s_xor_b32 s97, s{S_NONCE}, 0x5a3c1e77
            v_mov_b32 v7, s97
            s_waitcnt vmcnt(0)
            buffer_store_dword v7, v6, {sr(SRD_WS)}, s96 offen sc1
            v_readfirstlane_b32 s96, v5
            s_xor_b32 s96, s96, 0x5a3c1e77
            s_add_u32 s96, s96, 1
            s_cmp_eq_u32 s96, s{S_NONCE}
            s_cbranch_scc{OPT['rdr'] - 1} L_end''')
        if OPT['rdf']: e(f"s_and_b32 s96, s2, {OPT['rdf']}\ns_cmp_lg_u32 s96, {OPT['rdv']}\ns_cbranch_scc1 L_end")
        if ROLE[0] == 0 and OPT['rdn']: e(f's_cmp_eq_u32 s{S_C}, 7\ns_cbranch_scc{2 - OPT["rdn"]} L_end')
        if OPT['rd'] == 98:
            e(f'''s_not_b32 s100, s100
            v_mov_b32 v5, s100
            v_mov_b32 v6, 0
            s_mov_b64 exec, 1
            global_atomic_umax v6, v5, s[26:27]
            s_waitcnt vmcnt(0)
            s_sleep 127
            s_sleep 127
            s_sleep 127
            s_sleep 127
            s_sleep 127
            global_load_dword v5, v6, s[26:27] sc1
            s_waitcnt vmcnt(0)
            v_readfirstlane_b32 s100, v5
            s_not_b32 s100, s100''')
        if OPT['probe']:
            op = {1: 'buffer_store_dwordx4 v[8:11], v5, s[52:55], s60 offen sc1', 2: 'buffer_load_dwordx4 v[8:11], v5, s[52:55], s60 offen sc1',
                  3: 'buffer_store_dwordx4 v[8:11], v5, s[52:55], s60 offen'}[OPT['probe'] & 3]
            if OPT['probe'] & 16: op = '\n'.join(op.replace('offen', f'offen offset:{1024*i}') for i in range(4))
            pre = 'buffer_load_dword v12, v6, s[52:55], s61 offen sc1\ns_waitcnt vmcnt(0)' if OPT['probe'] & 4 else ''
            if OPT['probe'] & 8: pre += '\nbuffer_store_dwordx4 v[8:11], v5, s[52:55], s60 offen sc1\ns_waitcnt vmcnt(0)\ns_sleep 40'
            e(f'''s_mov_b64 s[52:53], s[28:29]
            s_mov_b32 s54, 0x10000000
            s_mov_b32 s55, 0x20000
            L_prb:
            s_sleep 1
            s_memrealtime s[62:63]
            s_waitcnt lgkmcnt(0)
            s_sub_u32 s62, s62, s58
            s_cmp_lt_u32 s62, 3000
            s_cbranch_scc1 L_prb
            v_lshlrev_b32 v5, 4, v0
            v_mov_b32 v6, 0
            s_lshl2_add_u32 s60, s2, s{S_W}
            s_lshl_b32 s60, s60, {12 if OPT['probe'] & 16 else 10}
            s_add_u32 s60, s60, {OPT['poff']}
            s_mov_b32 s61, {OPT['poff'] + 0x180000}
            {pre}
            s_memrealtime s[62:63]
            s_waitcnt lgkmcnt(0)
            {op}
            s_waitcnt vmcnt(0)
            s_memrealtime s[100:101]
            s_waitcnt lgkmcnt(0)
            s_sub_u32 s100, s100, s62
            v_mov_b32 v8, s100
            s_lshl2_add_u32 s60, s2, s{S_W}
            s_lshl_b32 s60, s60, 2
            s_add_u32 s60, s60, {WS_PROF}
            buffer_store_dword v8, v6, s[52:55], s60 offen
            s_mul_i32 s100, s100, 20
            s_add_u32 s100, s100, s58''')
        elif OPT['rdm'] >= 3:
            key = {3: 's_and_b32 s96, s2, 7', 4: f's_mov_b32 s96, s{S_H}', 5: f's_mov_b32 s96, s{S_TILE}'}[OPT['rdm']]
            e(f'''s_sub_u32 s100, s100, s98
            s_sub_u32 s97, s98, s58
            s_mul_i32 s100, s100, 1000000
            s_mul_i32 s97, s97, 1000
            s_add_u32 s100, s100, s97
            s_add_u32 s100, s100, s2
            {key}
            s_lshl_b32 s96, s96, 2
            v_mov_b32 v5, s100
            v_mov_b32 v6, s96
            s_mov_b64 exec, 1
            global_atomic_umax v6, v5, s[26:27]
            s_waitcnt vmcnt(0)
            s_endpgm''')
        elif OPT['rdm'] == 2:
            e('''s_not_b32 s96, s58
            v_mov_b32 v5, s96
            v_mov_b32 v6, 0
            s_mov_b64 exec, 1
            global_atomic_umax v6, v5, s[26:27]
            s_waitcnt vmcnt(0)''' + '\ns_sleep 127' * 7 + '''
            global_load_dword v5, v6, s[26:27] sc1
            s_waitcnt vmcnt(0)
            v_readfirstlane_b32 s96, v5
            s_not_b32 s96, s96
            s_sub_u32 s100, s100, s96
            s_lshl_b32 s100, s100, 3
            s_add_u32 s100, s100, s96''')
        elif OPT['rdm']:
            e('s_sub_u32 s100, s100, s98')
            if OPT['rdt']: e(f"s_cmp_gt_u32 s100, {OPT['rdt']}\ns_cselect_b32 s100, 1280, 0")
            e('''v_mov_b32 v5, s100
            v_mov_b32 v6, 0
            s_mov_b64 exec, 1
            global_atomic_add v6, v5, s[26:27]
            s_waitcnt vmcnt(0)''' + '\ns_sleep 127' * 7 + '''
            global_load_dword v5, v6, s[26:27] sc1
            s_waitcnt vmcnt(0)
            v_readfirstlane_b32 s100, v5
            s_lshr_b32 s100, s100, 6
            s_add_u32 s100, s100, s58''')
        else: e(f"s_sub_u32 s100, s100, s98\ns_lshl_b32 s100, s100, {0 if OPT['rdc'] else 3}\ns_add_u32 s100, s100, s58")
        e(f'''s_add_u32 s100, s100, 6000
        {l}:
        s_sleep 1
        s_memrealtime s[96:97]
        s_waitcnt lgkmcnt(0)
        s_sub_u32 s96, s96, s100
        s_cmp_lt_i32 s96, 0
        s_cbranch_scc1 {l}''')
    if OPT['prof']:
        e(f'''s_memrealtime s[96:97]
        s_waitcnt lgkmcnt(0)
        v_writelane_b32 v{V_PROF}, s96, 31
        v_writelane_b32 v{V_PROF}, s98, 30
        s_lshl_b32 s96, s2, 3
        s_add_u32 s96, s96, s{S_WV}
        s_lshl_b32 s96, s96, 7
        s_add_u32 s96, s96, {WS_PROF}
        v_lshlrev_b32 v{V_T}, 2, v{V_LANE}
        s_mov_b32 exec_hi, 0
        buffer_store_dword v{V_PROF}, v{V_T}, {sr(SRD_WS)}, s96 offen
        s_mov_b64 exec, -1''')

def arrive(stage):
    e(f'v_mov_b32 v{V_T}, {stage}\nds_write_b32 v{V_OWN}, v{V_T}')
def lwait(stage, addr=V_GRP, sleep=0):
    l = lab('lw')
    e(f'{l}:')
    if sleep: e(f's_sleep {sleep}')
    e(f'''ds_read_b32 v{V_T}, v{addr}
    s_waitcnt lgkmcnt(0)
    v_cmp_gt_u32 vcc, {stage}, v{V_T}''')
    if OPT['safe']:
        d = lab('ld')
        e(f'''s_cbranch_vccz {d}
        s_sub_u32 s{S_BOUND}, s{S_BOUND}, 1
        s_cbranch_scc0 {l}
        s_mov_b32 s{S_BOUND}, 0
        {d}:''')
    else:
        e(f's_cbranch_vccnz {l}')
def sync(stage):
    arrive(stage); lwait(stage)
def poll(voff, first_issued=False, sleep=0, reg=V_T):
    l, d, m = lab('pl'), lab('pd'), lab('pm')
    if first_issued == 2:
        e(f's_waitcnt vmcnt(0)\nv_cmp_ne_u32 vcc, s{S_NONCE}, v{reg}\ns_cbranch_vccnz {l}\n{d}:')
        cur = [n for n in SEC if SEC[n] is out][0]
        sec('cold')
        e(f'''{l}:
        buffer_load_dword v{reg}, v{voff}, {sr(SRD_WS)}, 0 offen sc1
        s_waitcnt vmcnt(0)
        v_cmp_ne_u32 vcc, s{S_NONCE}, v{reg}
        s_cbranch_vccz {d}
        s_sub_u32 s{S_BOUND}, s{S_BOUND}, 1
        s_cbranch_scc0 {l}
        s_mov_b32 s{S_BOUND}, 0
        s_branch {d}''')
        sec(cur)
        return
    if first_issued: e(f's_branch {m}')
    e(f'{l}:')
    if sleep: e(f's_sleep {sleep}')
    e(f'''buffer_load_dword v{reg}, v{voff}, {sr(SRD_WS)}, 0 offen sc1
    {m}:
    s_waitcnt vmcnt(0)
    v_cmp_ne_u32 vcc, s{S_NONCE}, v{reg}
    s_cbranch_vccz {d}
    s_sub_u32 s{S_BOUND}, s{S_BOUND}, 1
    s_cbranch_scc0 {l}
    s_mov_b32 s{S_BOUND}, 0
    {d}:''')
def publish(soff, tmp):
    if OPT['fw']:
        e(f'''v_mov_b32 v{V_T}, s{S_NONCE}
        v_lshlrev_b32 v{tmp}, 2, v{V_LANE}
        s_mov_b64 exec, {hex((1 << OPT['fw']) - 1)}
        buffer_store_dword v{V_T}, v{tmp}, {sr(SRD_WS)}, s{soff} offen sc1
        s_mov_b64 exec, -1'''.replace('s_mov_b64 exec, 0xffffffff', 's_mov_b32 exec_hi, 0'))
        return
    e(f'''v_mov_b32 v{V_T}, s{S_NONCE}
    v_mov_b32 v{tmp}, 0
    s_mov_b64 exec, 1
    buffer_store_dword v{V_T}, v{tmp}, {sr(SRD_WS)}, s{soff} offen sc1
    s_mov_b64 exec, -1''')
def swap23(d, s, t):
    e(f'''v_lshrrev_b32 v{t}, 1, v{s}
    v_xor_b32 v{t}, v{t}, v{s}
    v_and_b32 v{t}, 4, v{t}
    v_mul_u32_u24 v{t}, 3, v{t}
    v_xor_b32 v{d}, v{t}, v{s}''')
def rot_next(s):
    e(f's_add_u32 s{s}, s{s}, 1\ns_cmp_eq_u32 s{s}, 7\ns_cselect_b32 s{s}, 0, s{s}')

e(f'''s_cmp_ge_u32 s2, 256
s_cbranch_scc1 L_end''')
if OPT['prof']:
    e(f's_memtime s[{S_T0}:{S_T0+1}]\ns_memrealtime s[98:99]\nv_mov_b32 v{V_PROF}, 0')
if OPT['rd'] >= 0: e('s_memrealtime s[100:101]\ns_memrealtime s[58:59]\ns_memrealtime s[98:99]')
e(f'''s_load_dwordx16 s[4:19], s[0:1], 0
s_load_dwordx8 s[20:27], s[0:1], 64
s_load_dwordx2 s[28:29], s[0:1], 96
v_lshrrev_b32 v{V_OWN}, 6, v0
v_and_b32 v{V_LANE}, 63, v0
v_readfirstlane_b32 s{S_WV}, v{V_OWN}
v_lshlrev_b32 v{V_OWN}, 2, v{V_OWN}
v_mov_b32 v{V_T}, 0
ds_write2_b32 v{V_OWN}, v{V_T}, v{V_T} offset1:8
v_and_b32 v{V_GRP}, 3, v{V_LANE}
v_lshlrev_b32 v{V_GRP}, 2, v{V_GRP}
s_and_b32 s60, s2, 7
s_lshr_b32 s{S_J}, s2, 3
s_and_b32 s{S_HG}, s{S_J}, 1
s_lshr_b32 s{S_TILE}, s2, 4
s_lshl1_add_u32 s{S_H}, s60, s{S_HG}
s_lshl1_add_u32 s61, s60, s{S_TILE}
s_and_b32 s61, s61, 15
s_mul_i32 s60, s60, 14
s_add_u32 s60, s60, s61
s_lshl1_add_u32 s{S_I}, s60, s{S_HG}
s_lshr_b32 s{S_C}, s60, 4
s_cmp_ge_u32 s61, 14
s_cselect_b32 s{S_C}, 7, s{S_C}
s_and_b32 s{S_W}, s{S_WV}, 3
s_mov_b32 s{S_BOUND}, 0x40000
s_mov_b32 s{S_KS}, {KS}
s_cmp_lt_u32 s{S_WV}, 4
s_cbranch_scc1 L_mha''')

VX = 144; VACC = 96; VWF = 32; VPK = 128
VV, VK, VS, VO, VQ = 32, 64, 96, 160, 224
vWd = [5, 6]; vXd = [7, 8, 9, 10]; vXr = [11, 12, 13, 14]; vWb, vW0, vW1 = 15, 16, 17
vRho, vG, vSt, vQd, vQr, vFl, vA, vB, vC = 18, 19, 20, 21, 22, 23, 24, 25, 26
vKo0, vKo1, vVo, vIdx = 27, 28, 29, 30
sXb, sWb, sCh, sCw, sLx, sTmp, sTmp2, sSt, sS1, sS2, sFl = range(60, 71)
sK, sV, sIt = 71, 72, 73
sFo, sO0, sO1 = 84, 85, 86
vOs, vQw = vRho, vG
vRb = [7, 8, 9]; vQx = [11, 12, 13]; vRr = 10
sMask = 74
sOdd = 76

sec('mha0')
e('L_mha:')
if OPT['te'] and OPT['touch']: e(f's_cmp_eq_u32 s{S_C}, 7\ns_cbranch_scc1 L_tmha\nL_mha_b:')
if OPT['prio']: e(f"s_setprio {OPT['pm']}")
e(f'''s_mul_i32 s{S_O0}, s{S_H}, 7
s_lshr_b32 s{S_O0}, s{S_O0}, 1''')
e(f'''v_lshrrev_b32 v{vA}, 3, v{V_LANE}          ; r
v_and_b32 v{vB}, 7, v{V_LANE}                    ; p
v_lshlrev_b32 v{vC}, 1, v{vA}
v_and_b32 v{vC}, 4, v{vC}
v_xor_b32 v{vC}, v{vC}, v{vB}
v_lshlrev_b32 v{vC}, 4, v{vC}
v_mul_u32_u24 v{vWd[0]}, 2688, v{vA}
v_add_u32 v{vWd[0]}, v{vWd[0]}, v{vC}
v_add_u32 v{vWd[1]}, {8*2688-1024}, v{vWd[0]}
v_lshrrev_b32 v{vC}, 1, v{vA}
v_xor_b32 v{vC}, v{vC}, v{vB}
v_lshlrev_b32 v{vC}, 4, v{vC}
v_mul_u32_u24 v{vA}, 896, v{vA}
v_add_u32 v{vXd[0]}, v{vA}, v{vC}
v_xor_b32 v{vC}, 64, v{vC}
v_add_u32 v{vXd[1]}, v{vA}, v{vC}
v_add_u32 v{vXd[1]}, {7168-1024}, v{vXd[1]}
v_add_u32 v{vXd[2]}, {2*(7168-1024)}, v{vXd[0]}
v_add_u32 v{vXd[3]}, {2*(7168-1024)}, v{vXd[1]}
s_lshl2_add_u32 s{sXb}, s{S_TILE}, s{S_W}
s_lshl3_add_u32 s{sFl}, s{S_HG}, s{S_C}
s_lshl_b32 s{sFl}, s{sFl}, 6
s_add_u32 s{sFl}, s{sFl}, s{S_TILE if OPT['wgf'] else sXb}
s_lshl_b32 s{sFl}, s{sFl}, {FSH}
s_add_u32 s{sFl}, s{sFl}, {F_KV}
s_mul_i32 s{sXb}, s{sXb}, {32*896}
s_mul_i32 s{sWb}, s{S_HG}, 7
s_add_u32 s{sWb}, s{sWb}, s{S_C}
s_add_u32 s{sWb}, s{sWb}, 7
s_lshl_b32 s{sWb}, s{sWb}, 7
s_mul_i32 s{sTmp}, s{S_W}, {16*2688}
s_add_u32 s{sWb}, s{sWb}, s{sTmp}
s_mul_i32 s{sLx}, s{S_W}, 12288
s_add_u32 s{sLx}, s{sLx}, {L_X}
s_lshl_b32 s{sS1}, s{S_W}, 11
s_add_u32 s{sS1}, s{sS1}, {L_W}
s_mov_b32 s{SRD_A+2}, {2048*896}
s_mov_b32 s{SRD_A+3}, 0x20000
s_mov_b32 s{SRD_B+2}, {448*1344*2}
s_mov_b32 s{SRD_B+3}, 0x20000
s_mov_b32 m0, s{sLx}
s_waitcnt lgkmcnt(0)
s_mov_b64 s[{SRD_A}:{SRD_A+1}], s[18:19]
s_mov_b64 s[{SRD_B}:{SRD_B+1}], s[20:21]
s_load_dword s{S_NONCE}, s[28:29], 0''')
stamp(22)
sWo = 88
def w_lines(st):
    return [f's_add_u32 m0, s{sS1}, {8192*st}', f's_add_u32 s{sWo+st}, s{sWb}, {64*2688*st}'] + \
           [f'buffer_load_dwordx4 v{vWd[i]}, {sr(SRD_B)}, s{sWo+st} offen offset:{1024*i} lds' for i in range(2)]
def x_chunk(st):
    return [f's_add_u32 m0, s{sLx}, {(st%3)*4096 - 128*st}', 's_nop 0'] + \
           [f'buffer_load_dwordx4 v{vXd[i]}, {sr(SRD_A)}, s{sXb} offen offset:{1024*i + 128*st} lds' for i in range(4)]
TK = 'touch'
DM = []
for l in [x_chunk(0), w_lines(0)] + [w_lines(i) for i in range(1, 7)] + [x_chunk(1), x_chunk(2)]:
    DM += [l[:3]] + [[x] for x in l[3:]]
DM[0] = DM[0][2:]
for i, g in enumerate(DM[:OPT['n0']]):
    if i == OPT['nb']:
        e(f's_cmp_eq_u32 s{S_C}, 7\ns_cbranch_scc1 {"L_tmha" if OPT[TK] and not OPT["te"] else "L_gemm_t"}\ns_barrier'); stamp(23)
        if OPT['only'] == 1: e('s_endpgm')
    e('\n'.join(g))
DM = DM[OPT['n0']:]
stamp(24)
if OPT['st']:
    e(f'''s_mov_b64 exec, 0
    s_cmp_eq_u32 s{S_W}, 0
    s_cbranch_scc1 L_sp0
    s_cmp_eq_u32 s{S_W}, 1
    s_cbranch_scc1 L_sp1
    s_cmp_eq_u32 s{S_W}, 2
    s_cbranch_scc1 L_sp2
    s_branch L_sp3''')
elif OPT['ord'] not in (1, 3, 4, 5): e('s_branch L_mha1')
sec('mha')
e('L_mha1:')
if OPT['st']: e('s_mov_b64 exec, -1')
stamp(25)
sec('tmp')
srd(SRD_WS, 28, WS_SIZE)
ONES = f'''s_bitcmp1_b32 s{S_H}, 0
s_cselect_b32 s{sTmp}, 0, 7
v_cmp_eq_u32 vcc, s{sTmp}, v{vA}
s_lshl_b32 s{sTmp}, s{S_O0}, 1
s_sub_u32 s{sTmp}, s{S_HG}, s{sTmp}
s_add_u32 s{sTmp}, s{sTmp}, 112
v_mov_b32 v{vB}, s{sTmp}
v_cndmask_b32 v{vA}, v{vA}, v{vB}, vcc
''' if OPT['ones'] else ''
FIX = f'v_cmp_lt_u32 vcc, 7, v{vB}\n'
FOM = f'''s_lshl_b32 s{sFo}, s{sTmp2}, 4
s_add_u32 s{sFo}, s{sFo}, s{S_H}
s_lshl_b32 s{sFo}, s{sFo}, {FSH}
s_add_u32 s{sFo}, s{sFo}, {F_O}
''' if OPT['omode'] != 3 else ''
e(f'''v_and_b32 v{vA}, 31, v{V_LANE}
v_lshrrev_b32 v{vG}, 5, v{V_LANE}''')
swap23(vRho, vA, vB)
e(f'''v_bfe_u32 v{vB}, v{vRho}, 1, 3
v_xor_b32 v{vB}, v{vB}, v{vG}
v_lshlrev_b32 v{vB}, 4, v{vB}
v_lshl_add_u32 v{vB}, v{vRho}, 7, v{vB}
v_add_u32 v{vXr[0]}, s{sLx}, v{vB}
v_xor_b32 v{vXr[1]}, 32, v{vXr[0]}
v_xor_b32 v{vXr[2]}, 64, v{vXr[0]}
v_xor_b32 v{vXr[3]}, 0x60, v{vXr[0]}
v_and_b32 v{vB}, 3, v{V_LANE}                     ; cc
v_lshrrev_b32 v{vC}, 1, v{vB}
v_and_b32 v{vQd}, 1, v{vB}
v_lshl_or_b32 v{vC}, v{vQd}, 1, v{vC}
v_bfe_u32 v{vQd}, v{V_LANE}, 4, 1
v_lshl_or_b32 v{vB}, v{vQd}, 2, v{vB}              ; mq natural
v_lshl_or_b32 v{vC}, v{vQd}, 2, v{vC}
v_bfe_u32 v{vQd}, v{V_LANE}, 2, 2                  ; r'
v_lshl_or_b32 v{vFl}, v{vG}, 3, v{vQd}             ; 8g + r'
v_lshlrev_b32 v{vQr}, 6, v{vFl}
v_lshl_add_u32 v{vQr}, v{vC}, 3, v{vQr}
v_add_u32 v{vQr}, {L_X + 4096}, v{vQr}
s_cmp_eq_u32 s{S_HG}, 0
s_cselect_b64 vcc, -1, 0
v_cndmask_b32 v{vB}, v{vB}, v{vC}, vcc             ; K slabs use the exchanged order, V slabs the natural one
v_lshlrev_b32 v{vWb}, 7, v{vFl}
v_lshl_add_u32 v{vWb}, v{vB}, 3, v{vWb}
v_lshrrev_b32 v{vQd}, 1, v{vQd}
v_lshl_add_u32 v{vWb}, v{vQd}, 6, v{vWb}
v_add_u32 v{vW0}, {L_W}, v{vWb}
v_lshlrev_b32 v{vB}, 4, v{vRho}
v_mad_u32_u24 v{vB}, v{vG}, s{S_KS}, v{vB}
v_lshrrev_b32 v{vC}, 2, v{vA}
v_mul_u32_u24 v{vC}, {QS}, v{vC}
v_lshl_add_u32 v{vC}, v{vG}, 6, v{vC}
v_and_b32 v{vQd}, 3, v{vA}
v_lshl_add_u32 v{vC}, v{vQd}, 4, v{vC}
v_cndmask_b32 v{vSt}, v{vC}, v{vB}, vcc
s_lshl2_add_u32 s{sTmp}, s{S_TILE}, s{S_W}
s_lshl_b32 s{sTmp2}, s{sTmp}, 9
s_add_u32 s{sTmp2}, s{sTmp2}, {WS_K}
s_lshl_b32 s{sTmp}, s{sTmp}, 8
s_add_u32 s{sTmp}, s{sTmp}, {WS_V}
s_movk_i32 s{sS2}, 128
s_cmp_eq_u32 s{S_HG}, 0
s_cselect_b32 s{sSt}, s{sTmp2}, s{sTmp}
s_cselect_b32 s{sS2}, {2*KS}, s{sS2}
s_mul_i32 s{sTmp}, s{S_C}, {8*KS}
s_add_u32 s{sSt}, s{sSt}, s{sTmp}
v_lshrrev_b32 v{vB}, 2, v{V_LANE}
v_mul_u32_u24 v{vB}, 2688, v{vB}
v_lshl_add_u32 v{vQd}, v{vQd}, 4, v{vB}
s_lshl_b32 s82, s{S_O0}, 4
s_mul_i32 s{sTmp}, s{S_W}, {16*2688}
s_add_u32 s82, s82, s{sTmp}
s_lshr_b32 s{sTmp}, s{S_O0}, 3
s_add_u32 s{sTmp2}, s{S_O0}, 3
s_lshr_b32 s{sTmp2}, s{sTmp2}, 3
s_sub_u32 s{sTmp2}, s{sTmp2}, s{sTmp}
v_bfe_u32 v{vC}, v{V_LANE}, 4, 1
v_mul_u32_u24 v{vC}, s{sTmp2}, v{vC}
v_lshl_add_u32 v{vC}, v{vG}, 3, v{vC}
v_add_u32 v{vC}, s{sTmp}, v{vC}
v_and_b32 v{vB}, 15, v{V_LANE}
{FIX}v_and_b32 v{vB}, {3 if OPT['wgf'] else 15}, v{V_LANE}
v_lshl_add_u32 v{vC}, v{vC}, 6, v{vB}
s_lshl_b32 s{sTmp}, s{S_W}, {2 if OPT['wgf'] else 4}
v_add_u32 v{vC}, s{sTmp}, v{vC}
v_lshlrev_b32 v{vC}, {FSH}, v{vC}
v_add_u32 v{vFl}, {F_KV}, v{vC}
s_lshl3_add_u32 s{sTmp}, s{S_W}, s{S_HG}
s_mul_i32 s{sTmp}, s{sTmp}, {US}
s_add_u32 s{sTmp}, s{sTmp}, {F_U}
v_mul_u32_u24 v{vB}, {2*US}, v{vB}
v_add_u32 v{vB}, s{sTmp}, v{vB}
v_cndmask_b32 v{vFl}, v{vFl}, v{vB}, vcc
v_lshlrev_b32 v{vKo0}, 4, v{vA}
v_mad_u32_u24 v{vKo0}, v{vG}, s{S_KS}, v{vKo0}
v_add_u32 v{vKo1}, {2*KS}, v{vKo0}
v_lshrrev_b32 v{vA}, 2, v{vRho}
{ONES}v_mul_u32_u24 v{vA}, {QS}, v{vA}
v_lshl_add_u32 v{vA}, v{vG}, 6, v{vA}
v_and_b32 v{vB}, 3, v{V_LANE}
v_lshl_add_u32 v{vVo}, v{vB}, 4, v{vA}
v_mov_b32 v{vIdx}, 0xdddddddd
s_mul_i32 s{sTmp}, s{S_O0}, {KS}
s_lshl_b32 s{sK}, s{S_W}, 13
s_add_u32 s{sK}, s{sK}, s{sTmp}
s_add_u32 s{sK}, s{sK}, {WS_K}
s_lshl_b32 s{sV}, s{S_W}, 12
s_add_u32 s{sV}, s{sV}, s{sTmp}
s_add_u32 s{sV}, s{sV}, {WS_V}
s_lshl2_add_u32 s{sTmp2}, s{S_TILE}, s{S_W}
{FOM}s_lshl_b32 s{sTmp2}, s{sTmp2}, 9
s_add_u32 s{sO0}, s{sTmp}, s{sTmp2}
s_add_u32 s{sO0}, s{sO0}, {WS_O}
s_add_u32 s{sO1}, s{sO0}, {2*KS}
s_bitcmp1_b32 s{S_H}, 0
s_cselect_b64 s[{sOdd}:{sOdd+1}], -1, 0
; per-lane multipliers for Q: scale*log2(e), zero on the four slots that belong to the neighbour head
v_mov_b32 v{vC}, 0x3e8b97f6
v_cmp_gt_u32 vcc, 32, v{V_LANE}
s_and_b64 s[78:79], vcc, s[{sOdd}:{sOdd+1}]
s_nor_b64 s[80:81], vcc, s[{sOdd}:{sOdd+1}]
v_cndmask_b32 v{vA}, v{vC}, 0, s[78:79]
v_cndmask_b32 v{vB}, v{vC}, 0, s[80:81]
s_mov_b32 s78, 0x3f803f80
s_mov_b32 s79, s78
v_xor_b32 v{vW1}, 64, v{vW0}
v_lshlrev_b32 v{vOs}, 4, v{vRho}
v_mad_u32_u24 v{vOs}, v{vG}, s{S_KS}, v{vOs}
v_lshl_add_u32 v{vQw}, v{V_LANE}, 4, s{sLx}''')
def o_stores(r0, r1, tag):
    e(f'''s_bitcmp1_b32 s{S_H}, 0
    s_cbranch_scc1 L_ost_odd{tag}
    buffer_store_dwordx4 {vr(r0,4)}, v{vOs}, {sr(SRD_WS)}, s{sO0} offen sc1
    s_mov_b32 exec_hi, 0
    buffer_store_dwordx4 {vr(r1,4)}, v{vOs}, {sr(SRD_WS)}, s{sO1} offen sc1
    s_not_b64 exec, exec
    buffer_store_dwordx2 {vr(r1,2)}, v{vOs}, {sr(SRD_WS)}, s{sO1} offen sc1
    s_branch L_ost_done{tag}
    L_ost_odd{tag}:
    buffer_store_dwordx4 {vr(r1,4)}, v{vOs}, {sr(SRD_WS)}, s{sO1} offen sc1
    s_mov_b32 exec_hi, 0
    buffer_store_dwordx2 {vr(r0+2,2)}, v{vOs}, {sr(SRD_WS)}, s{sO0} offen offset:8 sc1
    s_not_b64 exec, exec
    buffer_store_dwordx4 {vr(r0,4)}, v{vOs}, {sr(SRD_WS)}, s{sO0} offen sc1
    L_ost_done{tag}:
    s_mov_b64 exec, -1''')
GS = 0
AB = [l for l in SEC.pop('tmp') if not l.strip().startswith(';')]
sec('mha')
def scc_pending(i):
    return i < len(AB) and AB[i].strip().startswith(('s_cselect', 's_mov_b32 s75'))
pos = 0
for g in DM:
    n = pos + OPT['ilv']
    while scc_pending(n): n += 1
    e('\n'.join(AB[pos:n])); pos = n
    e('\n'.join(g))
e('\n'.join(AB[pos:]))
stamp(0)
def x_reads(s):
    return [f'ds_read_b128 {vr(VX + 16*s + 4*ks, 4)}, v{vXr[ks]} offset:{(s%3)*4096}' for ks in range(4)]
e('s_waitcnt vmcnt(22)')
e('\n'.join(x_reads(0)))
e('s_waitcnt vmcnt(8) lgkmcnt(0)')
arrive(1)
stamp(1)
e('\n'.join(x_chunk(3)))
e('s_waitcnt vmcnt(8)')
e('\n'.join(x_reads(1)))
lwait(1)
if OPT['fwm'] & 2:
    e(f'''v_mov_b32 v{V_T}, s{S_NONCE}
    v_lshlrev_b32 v31, 2, v{V_LANE}
    s_mov_b32 exec_hi, 0
    buffer_store_dword v{V_T}, v31, {sr(SRD_WS)}, s{sFl} offen sc1
    s_mov_b64 exec, -1''')
e(f's_add_u32 s{S_NONCE}, s{S_NONCE}, 1')
stamp(2)
def w_reads(s):
    r = []
    for ks in range(4):
        for ct in range(2):
            for hf in range(2):
                d = VWF + 32 * (s & 1) + 8 * ks + 4 * ct + 2 * hf
                r.append(f'ds_read_b64_tr_b16 {vr(d,2)}, v{(vW0, vW1)[ct]} offset:{s*8192 + ks*2048 + hf*512}')
    return r
e('\n'.join(w_reads(0)))
e(f'''s_waitcnt lgkmcnt(0)
s_cmp_lg_u32 s{S_HG}, 0
s_cbranch_scc1 L_gemm_v''')
sQb, sQc = 82, 83
NE = OPT['wq_early']
def wq_dma(st):
    return [f's_add_u32 m0, s{sLx}, {4096 + 1024*st}\ns_add_u32 s83, s82, {64*2688*st}', '', f'buffer_load_dwordx4 v{vQd}, {sr(SRD_B)}, s83 offen lds']
SPIN = []
def gemm1(vpart):
    for s in range(7):
        M = []
        for ks in range(4):
            for ct in range(2):
                wf = vr(VWF + 32 * (s & 1) + 8 * ks + 4 * ct, 4); xf = vr(VX + 16 * s + 4 * ks, 4)
                acc = vr(VACC + 16 * ct, 16)
                a, b = (xf, wf) if vpart else (wf, xf)
                M.append(f'v_mfma_f32_32x32x16_bf16 {acc}, {a}, {b}, {"0" if s == 0 and ks == 0 else acc}')
        gaps = [[] for _ in range(8)]
        tag = f'{"v" if vpart else "k"}{s}'
        pre = []
        dm = []
        def add(l): dm.extend([(l[0], l[2])] + [(None, x) for x in l[3:]])
        if s <= 2: add(x_chunk(s + 4))
        if s == 3:
            for i in range(min(NE, 4)): add(wq_dma(i))
        if s == 4:
            for i in range(4, NE): add(wq_dma(i))
        FW = 1 if OPT['fwm'] & 2 else 0
        n = {0: 8 + FW, 1: 8 + FW, 2: 8, 3: 4 + min(NE, 4), 4: NE}.get(s)
        for i, (m, l) in enumerate(dm):
            if m: (pre if i == 0 else gaps[i - 1]).append(m)
            gaps[i].append(l)
        if s < 6:
            wr = w_reads(s + 1)
            for i, (p, q) in enumerate(((0, 3), (3, 6), (6, 9), (9, 12), (12, 16))): gaps[i] += wr[p:q]
            if s <= 4: gaps[OPT['xg']] += [f's_waitcnt vmcnt({n})'] + x_reads(s + 2)
            gaps[7] += [f's_waitcnt lgkmcnt({4 if s == 4 and OPT["s6"] != 4 else 0})']
        if s == OPT['s6'] and (OPT['uw'] == 6 or OPT['cw'] == 6): gaps[6] += [f'v_mov_b32 v{V_T}, 6', f'ds_write_b32 v{V_OWN}, v{V_T}']
        if s == 5:
            gaps[7] += [f'v_add_u32 v31, 16, v{V_GRP}', f'ds_read_b32 v31, v31']
        if s == 6 and NE == 7:
            gaps[OPT['qa']] += ['s_waitcnt vmcnt(0)', f'v_mov_b32 v{V_T}, 7', f'ds_write_b32 v{V_OWN}, v{V_T}']
        e('\n'.join(pre))
        if OPT['gx'] & 1 or vpart == 2: M = ['s_nop 0'] * 8
        if OPT['gx'] & 2 or vpart == 2: gaps = [[x for x in g if 'tr_b16' not in x] for g in gaps]
        for i in range(8):
            e(M[i]); e('\n'.join(gaps[i]))
        stamp(14 + s)
assert NE == 7
sec('gt'); e('L_gemm_t:')
e('\n'.join(AB))
e(f's_waitcnt lgkmcnt(0)\ns_add_u32 s{S_NONCE}, s{S_NONCE}, 1\ns_barrier')
TB = [0] + [L_SSM - L_X + 4096*i for i in range(3)] + [L_W - L_X + 4096*i for i in range(3)]
for st in range(7):
    x = x_chunk(st); x[0] = f's_add_u32 m0, s{sLx}, {TB[st] - 128*st}'
    e('\n'.join(x))
for st in range(7): e('\n'.join(wq_dma(st)))
stamp(0)
for st in range(7):
    e(f's_waitcnt vmcnt({31 - 4*st})')
    for ks in range(4): e(f'ds_read_b128 {vr(VX + 16*st + 4*ks, 4)}, v{vXr[ks]} offset:{TB[st] - TB[1] if st else 0}')
    if st == 0:
        for ks in range(4): e(f'v_subrev_u32 v{vXr[ks]}, {-TB[1]}, v{vXr[ks]}')
e('s_waitcnt vmcnt(0) lgkmcnt(0)')
arrive(7)
stamp(3)
e('s_branch L_nokv'); sec('mha')
gemm1(False)
e('s_branch L_gemm_done')
if OPT['st']: e('L_sp0:\ns_branch L_mha1')
e('L_gemm_v:')
gemm1(True)
e('L_gemm_done:')
if OPT['st']: e('L_sp2:\ns_cbranch_execz L_mha1')
stamp(3)
e(f"""s_add_u32 s{sS1}, s{sSt}, s{sS2}
s_add_u32 s{sXb}, s{sSt}, {4*KS}
s_add_u32 s{sCw}, s{sS1}, {4*KS}
s_waitcnt lgkmcnt(0)""")
PWS = 3 if OPT['pw'] else 1
e(f'v_cmp_gt_u32 vcc, {PWS}, v31\ns_cbranch_vccz L_eok\nv_add_u32 v31, 16, v{V_GRP}')
lwait(PWS, addr=31)
e('L_eok:\ns_nop 4')
for q, so in enumerate((sSt, sS1, sXb, sCw)):
    for i in range(4*q, 4*q+4):
        e(f'v_cvt_pk_bf16_f32 v{VPK + i}, v{VACC + 2*i}, v{VACC + 2*i + 1}')
    e(f'buffer_store_dwordx4 {vr(VPK+4*q,4)}, v{vSt}, {sr(SRD_WS)}, s{so} offen sc1')
e('L_nokv:')
assert OPT['wgf'] and OPT['ones'] and OPT['pf'] == 2
def kv_loads(buf, i, srdn=SRD_WS):
    return [f'buffer_load_dwordx4 {vr(VK + 8*buf, 4)}, v{vKo0}, {sr(srdn)}, s{sK} offen offset:{512*i} sc1',
            f'buffer_load_dwordx4 {vr(VK + 8*buf + 4, 4)}, v{vKo1}, {sr(srdn)}, s{sK} offen offset:{512*i} sc1',
            f'buffer_load_dwordx4 {vr(VV + 8*buf, 4)}, v{vVo}, {sr(srdn)}, s{sV} offen offset:{256*i} sc1',
            f'buffer_load_dwordx4 {vr(VV + 8*buf + 4, 4)}, v{vVo}, {sr(srdn)}, s{sV} offen offset:{256*i + 128} sc1']
fill = [f'v_mov_b64 {vr(VV+2*i,2)}, s[78:79]' for i in range(12, 12 if OPT['wp'] and OPT['unr'] else 16)] + [f'v_subrev_u32 v{vRr}, {L_X - L_RB}, v{vQw}', 's_mov_b64 s[80:81], -1']
for s in range(3):
    fill += f"""s_add_u32 s{sTmp}, s{S_W}, {1+s}
    s_and_b32 s{sTmp}, s{sTmp}, 3
    s_sub_u32 s{sTmp}, s{sTmp}, s{S_W}
    s_mul_i32 s{sTmp}, s{sTmp}, 12288
    v_add_u32 v{vQx[s]}, s{sTmp}, v{vQw}
    v_subrev_u32 v{vRb[s]}, {L_X - L_RB - 4096*s}, v{vQx[s]}""".split('\n')
def count_in(n):
    e(f"""v_mov_b32 v{V_T}, 1
    v_mov_b32 v31, 0
    s_waitcnt vmcnt({n})
    s_mov_b64 exec, 1
    ds_add_rtn_u32 v{vSt}, v31, v{V_T} offset:32
    s_mov_b64 exec, -1""")
def count_out(n):
    e(f's_waitcnt lgkmcnt({n})\nv_readfirstlane_b32 s{sTmp2}, v{vSt}\ns_cmp_lg_u32 s{sTmp2}, 3\ns_cbranch_scc1 L_nopub')
    publish(sFl, 31)
    e('L_nopub:'); stamp(5)
NM = max(NE, OPT['wq_mid'])
for st in range(NE, NM): e('\n'.join(wq_dma(st)))
stamp(4)
if NE < 7:
    e('\n'.join(fill)); fill = []
    count_in(NM - NE)
    if NM == 7:
        e('s_waitcnt vmcnt(0)'); arrive(7); count_out(1)
    else:
        count_out(0)
        for st in range(NM, 7): e('\n'.join(wq_dma(st)))
        e('s_waitcnt vmcnt(0)'); arrive(7)
lwait(7)
stamp(6)
QB = [80, 84, 88, 92, 112, 116, 120, 124]
def q_reads(k):
    s, ks = divmod(k, 4)
    return [f'ds_read_b64_tr_b16 {vr(QB[k%8] + 2*hf, 2)}, v{vQr} offset:{ks*12288 + s*1024 + hf*256}' for hf in range(2)]
for k in range(6): e('\n'.join(q_reads(k)))
e('\n'.join(fill[:12])); fill = fill[12:]
zi = 8 if OPT['wp'] and OPT['unr'] else 0
PK = OPT['pubk'] if NE == 7 else -99
for k in range(28):
    extra = 1 if PK < k <= PK + 5 else 0
    e(f's_waitcnt lgkmcnt({min(10, 2*(27-k)) + extra})')
    e(f'v_mfma_f32_32x32x16_bf16 {vr(VACC,16)}, {vr(QB[k%8], 4)}, {vr(VX + 4*k, 4)}, {"0" if k == 0 else vr(VACC,16)}')
    if k + 6 < 28: e('\n'.join(q_reads(k + 6)))
    while zi < 40 and VX + 2*zi + 1 < VX + 4*k - 4 and zi < 2*k:
        e(f'v_mov_b64 {vr(VX + 2*zi, 2)}, 0'); zi += 1
    if k >= 22 or k < 2:
        e('\n'.join(fill[:4])); fill = fill[4:]
    if k == PK: count_in(0)
    if k == PK + OPT['wgf']: count_out(2*OPT['wgf'])
    if k == OPT['pollk']: e(f'buffer_load_dword v31, v{vFl}, {sr(SRD_WS)}, 0 offen sc1')
    if k == OPT['chkk']:
        e(f's_waitcnt vmcnt(0)\nv_cmp_ne_u32 vcc, s{S_NONCE}, v31\ns_mov_b64 s[80:81], vcc\ns_cbranch_vccnz L_kv_late')
        for t in range(2): e('\n'.join(kv_loads(t, t)))
        e('L_kv_late:')
assert zi == 40 and VX == VS + 48 and not fill
stamp(7)
e('s_nop 11')
for r in range(16):
    m = vA if r < 4 else (vB if r >= 12 else vC)
    e(f'v_mul_f32 v{VACC + r}, v{m}, v{VACC + r}')
for i in range(8):
    e(f'v_cvt_pk_bf16_f32 v{VQ + 24 + i}, v{VACC + 2*i}, v{VACC + 2*i + 1}')
e(f"""ds_write_b128 v{vQw}, {vr(VQ+24,4)}
ds_write_b128 v{vQw}, {vr(VQ+28,4)} offset:1024""")
arrive(8)
lwait(8)
for s in range(3):
    e(f'ds_read_b128 {vr(VQ+8*s,4)}, v{vQx[s]}\nds_read_b128 {vr(VQ+8*s+4,4)}, v{vQx[s]} offset:1024')
PF = OPT['pf']
if OPT['pt']:
    e(f's_mov_b64 exec, 0\ns_bitcmp1_b32 s{S_W}, 0\ns_cbranch_scc1 L_pg1\ns_branch L_pg0\nL_pg_ret:\ns_mov_b64 exec, -1')
if OPT['chkk'] < 28: e('s_cmp_eq_u64 s[80:81], 0\ns_cbranch_scc1 L_kv_done')
poll(vFl, first_issued=OPT['pollk'] < 28 and OPT['chkk'] > 27, reg=31, sleep=OPT['ksleep'])
for t in range(PF): e('\n'.join(kv_loads(t, t)))
e('L_kv_done:')
stamp(8)
OM = OPT['omode']
if OM:
    e(f'''s_lshr_b32 s{sTmp}, s{S_O0}, 3
    s_add_u32 s{sTmp2}, s{S_O0}, 3
    s_lshr_b32 s{sTmp2}, s{sTmp2}, 3
    s_sub_u32 s{sTmp2}, s{sTmp2}, s{sTmp}
    s_lshl_b32 s{sTmp2}, s{sTmp2}, 1
    s_lshl2_add_u32 s{sSt}, s{S_TILE}, s{S_W}
    s_lshr_b32 s{sS1}, s{sSt}, 1
    s_mul_i32 s{sS1}, s{sS1}, 12
    s_add_u32 s{sSt}, s{sSt}, s{sS1}
    s_lshl1_add_u32 s{sTmp}, s{sTmp}, s{sSt}
    s_lshl_b32 s{sTmp}, s{sTmp}, {FSH}
    s_add_u32 s{sTmp}, s{sTmp}, {F_Y}
    v_and_b32 v{vFl}, 1, v{V_LANE}
    v_mul_u32_u24 v{vFl}, s{sTmp2}, v{vFl}
    v_and_b32 v31, 2, v{V_LANE}
    v_lshl_add_u32 v{vFl}, v31, 8, v{vFl}
    v_lshl_add_u32 v{vFl}, v{vFl}, {FSH}, s{sTmp}''')
def qk(buf, slot, js):
    d = vr(VS + 16*slot, 16)
    return f'v_mfma_f32_32x32x16_bf16 {d}, {vr(VK + 8*buf + 4*js, 4)}, {vr(VQ + 8*slot + 4*js, 4)}, {"0" if js == 0 else d}'
def pv(buf, slot, js):
    return f'v_smfmac_f32_32x32x32_bf16 {vr(VO + 16*slot, 16)}, {vr(VV + 8*buf + 4*js, 4)}, {vr(VS + 16*slot + 8*js, 8)}, v{vIdx}'
def exps(s): return [f'v_exp_f32 v{VS + 16*s + r}, v{VS + 16*s + r}' for r in range(16)]
ND = OPT['nd']
UN = [(t, q) for t in range(16 - ND) for q in range(4)] + [(t, q) for t in range(16 - ND, 16) for q in range(3)] + [(t, 3) for t in range(16 - ND, 16)]
sK2 = sCw
def QK(u, js):
    t, q = UN[u]; d = vr(VS + 16*(u & 3), 16)
    return f'v_mfma_f32_32x32x16_bf16 {d}, {vr(VK + 8*(t & 3) + 4*js, 4)}, {vr(VQ + 8*q + 4*js, 4)}, {"0" if js == 0 else d}'
def PV(u, js):
    t, q = UN[u]
    return f'v_smfmac_f32_32x32x32_bf16 {vr(VO + 16*q, 16)}, {vr(VV + 8*(t & 3) + 4*js, 4)}, {vr(VS + 16*(u & 3) + 8*js, 8)}, v{vIdx}'
EX = {}
def put(u, g, l): EX.setdefault((u, g), []).extend(l)
first = {t: min(u for u in range(64) if UN[u][0] == t) for t in range(16)}
last = {t: max(u for u in range(64) if UN[u][0] == t) for t in range(16)}
ldu = {t: max(first[t] - 1 - OPT['ld'], (last[t - 4] + 2) if t >= 4 else 0) for t in range(2, 16)}
for t in range(2, 16):
    kl = kv_loads(t & 3, t)
    if t >= 8: kl[:2] = [x.replace(f's{sK} offen offset:{512*t}', f's{sK2} offen offset:{512*(t-8)}') for x in kl[:2]]
    put(ldu[t], 2, kl)
for t in range(1, 16):
    u = first[t] - 2
    put(u, 3, [f's_waitcnt vmcnt({4 * sum(1 for k in range(t + 1, 16) if ldu[k] <= u)})'])
def rbw(q): return [f'ds_write_b128 v{vRb[q]}, {vr(VO + 16*q + 4*i, 4)} offset:{1024*i}' for i in range(4)]
for q in range(3):
    u = max(k for k in range(64) if UN[k][1] == q) + 2
    put(u, 2, rbw(q)[:2]); put(u, 3, rbw(q)[2:])
put(u, 3, [f'v_mov_b32 v{V_T}, 9', f'ds_write_b32 v{V_OWN}, v{V_T}'])
put(first[15], 2, [f'buffer_load_dword v31, v{vFl}, {sr(SRD_WS)}, 0 offen sc1'] + ([f"s_setprio {OPT['pm']}"] if OPT['prio'] else []))
rbr = [f'ds_read_b128 {vr(VO + 4*i, 4)}, v{vRr} offset:{1024*i}' for i in range(12)]
put(62, 3, [f'ds_read_b32 v{V_T}, v{V_GRP}'])
put(63, 3, ['L_rb_spin:', 's_waitcnt lgkmcnt(0)', f'v_cmp_gt_u32 vcc, 9, v{V_T}', f'ds_read_b32 v{V_T}, v{V_GRP}', 's_cbranch_vccnz L_rb_spin'] + rbr)
e(f"""s_add_u32 s{sK2}, s{sK}, 4096
s_bitcmp1_b32 s{S_H}, 0
s_cselect_b32 s4, 0, -1
s_mov_b32 s5, -1
s_mov_b32 s6, -1
s_cselect_b32 s7, -1, 0
s_add_u32 s8, s{sO0}, 8
s_cmp_eq_u32 s4, 0
s_cselect_b32 s8, s8, s{sO1}
s_and_b64 s[10:11], s[4:5], s[6:7]
s_mov_b32 s9, {0x71800000 - 0x30800000}
s_mov_b32 s{sIt}, {1 if OPT["force_fb"] else 0}
s_waitcnt vmcnt(4) lgkmcnt(0)""")
stamp(9)
e(QK(0, 0)); e(QK(0, 1))
e(f"s_setprio {OPT['pa']}\ns_nop 9\nL_att:")
for u in range(63):
    ex = exps(u & 3)
    M = [QK(u + 1, 0), QK(u + 1, 1)] + ([PV(u - 1, 0), PV(u - 1, 1)] if u else ['', ''])
    for g in range(4):
        e(M[g]); e('\n'.join(EX.get((u, g), []) + ex[4*g:4*g+4]))
ex = exps(3)
OA = VO + 48
e(PV(62, 0)); e('\n'.join(ex[0:4])); e(PV(62, 1)); e('\n'.join(EX[(63, 3)] + ex[4:10])); e(PV(63, 0)); e('\n'.join(ex[10:16]))
ad = [f'v_pk_add_f32 {vr(VO+2*i,2)}, {vr(VO+2*i,2)}, {vr(VO+16*q+2*i,2)}' for q in (1, 2) for i in range(8)]
e('s_waitcnt lgkmcnt(0)'); e('\n'.join(ad[:2])); e(PV(63, 1)); e('\n'.join(ad[2:]))
stamp(10)
for i in range(8): e(f'v_pk_add_f32 {vr(OA+2*i,2)}, {vr(OA+2*i,2)}, {vr(VO+2*i,2)}')
e(f'''L_norm:
v_cndmask_b32 v{vA}, v{OA+12}, v{OA}, s[{sOdd}:{sOdd+1}]
v_max3_f32 v{vC}, abs(v{OA}), abs(v{OA+1}), abs(v{OA+2})
v_mov_b32 v{vB}, v{vA}
v_max3_f32 v{vC}, abs(v{OA+3}), abs(v{OA+4}), v{vC}
v_max3_f32 v{vC}, abs(v{OA+5}), abs(v{OA+6}), v{vC}
v_permlane32_swap_b32 v{vA}, v{vB}
v_max3_f32 v{vC}, abs(v{OA+7}), abs(v{OA+8}), v{vC}
v_cndmask_b32 v{vB}, v{vB}, v{vA}, s[{sOdd}:{sOdd+1}]
v_max3_f32 v{vC}, abs(v{OA+9}), abs(v{OA+10}), v{vC}
v_rcp_f32 v{vA}, v{vB}
v_max3_f32 v{vC}, abs(v{OA+11}), abs(v{OA+12}), v{vC}
v_max3_f32 v{vC}, abs(v{OA+13}), abs(v{OA+14}), v{vC}
v_max_f32 v{vC}, abs(v{OA+15}), v{vC}
v_subrev_u32 v{vB}, 0x30800000, v{vB}
v_cmp_lt_u32 s[78:79], s9, v{vB}
v_cmp_ngt_f32 vcc, 0x7f000000, v{vC}
s_waitcnt vmcnt(0)
v_cmp_ne_u32 s[80:81], s{S_NONCE}, v31''')
pm = [f'v_pk_mul_f32 {vr(OA+2*i,2)}, {vr(OA+2*i,2)}, {vr(vA,2)} op_sel_hi:[1,0]' for i in range(8)]
e('\n'.join(pm[:4] + ['s_or_b64 s[78:79], s[78:79], vcc'] + pm[4:] + ['s_or_b64 vcc, s[78:79], s[80:81]']))
if OPT['force_fb']:
    e(f's_cmp_eq_u32 s{sIt}, 1\ns_cbranch_scc1 L_fb')
e('s_cbranch_vccnz L_fb0\nL_norm2:')
cv = [f'v_cvt_pk_bf16_f32 v{VS+i}, v{OA+2*i}, v{OA+2*i+1}' for i in range(8)]
e('\n'.join(cv))
e(f'''v_cndmask_b32 v{VS+8}, v{VS+4}, v{VS+2}, s[{sOdd}:{sOdd+1}]
v_cndmask_b32 v{VS+9}, v{VS+5}, v{VS+3}, s[{sOdd}:{sOdd+1}]
s_mov_b64 exec, s[4:5]
buffer_store_dwordx4 {vr(VS,4)}, v{vOs}, {sr(SRD_WS)}, s{sO0} offen sc1
s_mov_b64 exec, s[6:7]
buffer_store_dwordx4 {vr(VS+4,4)}, v{vOs}, {sr(SRD_WS)}, s{sO1} offen sc1
s_not_b64 exec, s[10:11]
buffer_store_dwordx2 {vr(VS+8,2)}, v{vOs}, {sr(SRD_WS)}, s8 offen sc1
s_mov_b64 exec, -1''')
stamp(11)
if OM == 4: publish(sFo, vA)
if OPT['obar'] == 1: e('s_barrier')
if OPT['obar'] >= 3: e(f"s_waitcnt vmcnt({5 - OPT['obar'] + (OM == 4)})\ns_barrier")
if OM == 0:
    e('s_waitcnt vmcnt(0)'); publish(sFo, vA)
if OPT['obar'] == 2: e('s_barrier')
stamp(12)
prof_out()
e('s_endpgm')

for tag, st in SPIN:
    e(f'L_ws_{tag}:'); lwait(st); e(f's_branch L_wb_{tag}')
sec('fb')
e('L_fb0:')
poll(vFl, reg=31)
e(f'''s_cmp_eq_u64 s[78:79], 0
s_cbranch_scc1 L_norm2
s_cmp_eq_u32 s{sIt}, 2
s_cbranch_scc1 L_norm2
L_fb:
s_waitcnt vmcnt(0)
s_mul_i32 s{sTmp}, s{S_O0}, {KS}
s_add_u32 s{sK}, s{sTmp}, {WS_K}
s_add_u32 s{sV}, s{sTmp}, {WS_V}
v_mov_b32 v{vC}, 0xff800000
s_mov_b32 s{sIt}, 0
L_fb1:''')
e('\n'.join(kv_loads(0, 0, SRD_WS)[:2]))
e('s_waitcnt vmcnt(0)')
e(qk(0, 3, 0)); e(qk(0, 3, 1)); e('s_nop 11')
for i in range(8): e(f'v_max3_f32 v{vC}, v{VS+48+2*i}, v{VS+49+2*i}, v{vC}')
e(f'''s_add_u32 s{sK}, s{sK}, 512
s_add_u32 s{sIt}, s{sIt}, 1
s_cmp_lg_u32 s{sIt}, 64
s_cbranch_scc1 L_fb1
v_mov_b32 v{vA}, v{vC}
s_sub_u32 s{sK}, s{sK}, 0x8000
s_mov_b32 s{sIt}, 0
v_permlane32_swap_b32 v{vA}, v{vC}
v_max_f32 v{vC}, v{vA}, v{vC}''')
for i in range(8): e(f'v_mov_b64 {vr(OA+2*i,2)}, 0')
e('L_fb2:')
e('\n'.join(kv_loads(0, 0, SRD_WS)))
e('s_waitcnt vmcnt(0)')
e(qk(0, 3, 0)); e(qk(0, 3, 1)); e('s_nop 11')
for i in range(16): e(f'v_sub_f32 v{VS+48+i}, v{VS+48+i}, v{vC}')
for i in range(16): e(f'v_exp_f32 v{VS+48+i}, v{VS+48+i}')
e('s_nop 1')
e(pv(0, 3, 0)); e(pv(0, 3, 1))
e(f'''s_add_u32 s{sK}, s{sK}, 512
s_add_u32 s{sV}, s{sV}, 256
s_add_u32 s{sIt}, s{sIt}, 1
s_cmp_lg_u32 s{sIt}, 64
s_cbranch_scc1 L_fb2
s_mov_b32 s{sIt}, 2
s_nop 11
s_branch L_norm''')

sD0, sD, sHw, sDs, sTab, sA, sB, sLd, sSk, sIt2, sFlU, sInv, sUns, sSel, sUl, sOl, sCh0 = range(60, 77)
sUs, sOut, sHm = 78, 80, 82
sE2, sP, sE3, sKd, sCo = 84, 85, 86, 87, 77
OUTM = ('', 'sc1', '', 'sc1', 'nt', 'sc0 sc1')[OPT['outsc']]
OUTM2 = ('', '', 'sc1', 'sc1', 'nt', 'sc0 sc1')[OPT['outsc']]
a0, a1, a2, a3 = 5, 6, 7, 9
vPar = 10
vKc = 18
vRa, vRb_, vKd, vKd1, vKa, vKa0, vFu, vE1, vE1b, vFr, vKxo, vKxp, vPair, vRz, vBk, vA0, vA1, vKb, vSB, vSB0 = range(20, 40)
vSel = 180
vAc = 40
vOne, vScl, vAdd, vC0 = range(56, 60)
vOp = 64
vY = 128
vXt = 144
vAn = 166
vX1 = 172
T0, T1 = 160, 176
vZ = 192
U = 204
vZer = 220
vUa, vCd, vG_, vZp, vKp, vF_, vL16, vXo, vXp, vTr, vYl, vYs, vFy, vYw = range(224, 238)
vWoD = 238
vWoR = 240
vOl, vFo, vBw, vBr, vOut = range(242, 247)
def hi():
    if OPT['prio']: e('s_setprio 3')
KG = [True]
def lo():
    if OPT['prio']: e(f"s_setprio {OPT['kgp'] if KG[0] else OPT['ps']}")
ROLE[0] = 1
sec('ssm0')
PFA = f'''s_mul_i32 s{sLd}, s{S_HG}, 7
s_add_u32 s{sLd}, s{sLd}, s{S_C}                   ; slab 0..13
s_mul_i32 s{sSk}, s{S_TILE}, 14
s_add_u32 s{sSk}, s{sSk}, s{sLd}                   ; 0..223
s_cmp_eq_u32 s{S_W}, 1
s_cbranch_scc1 L_pf1
s_cmp_eq_u32 s{S_W}, 2
s_cbranch_scc1 L_pf2
s_mul_i32 s{sB}, s{sSk}, 64
s_mul_hi_u32 s{sB}, s{sB}, {(2**32 + 6)//7}
s_cmp_eq_u32 s{S_W}, 0
s_cselect_b32 s{sInv}, 43, 64
s_cselect_b32 s{sLd}, 6, 4
s_cselect_b32 s{sUns}, {60 if OPT['pfm'] & 1 else 0}, {40 if OPT['pfm'] & 8 else 0}
v_mul_u32_u24 v6, s{sInv}, v{V_LANE}
v_lshrrev_b32 v6, 8, v6
v_mul_u32_u24 v7, s{sLd}, v6
v_sub_u32 v7, v7, v{V_LANE}
v_add_u32 v6, s{sB}, v6
v_mul_u32_u24 v6, 7, v6
v_add3_u32 v8, v6, v7, 6
s_mov_b32 s{SRD_A+2}, {2048*896}
s_branch L_pf3
L_pf1:
s_mul_i32 s{sB}, s{S_TILE}, 20
s_add_u32 s{sB}, s{sB}, 128
v_add_u32 v6, s{sB}, v{V_LANE}
v_mul_u32_u24 v6, 21, v6
v_add3_u32 v8, v6, s{sLd}, 7
s_mov_b32 s{sUns}, {20 if OPT['pfm'] & 2 else 0}
s_mov_b32 s{SRD_A+2}, {448*2688}
s_branch L_pf3
L_pf2:
v_mul_u32_u24 v6, 37, v{V_LANE}
v_lshrrev_b32 v6, 8, v6
v_mul_u32_u24 v6, 14, v6
s_mul_i32 s{sB}, s{sSk}, 42
v_add3_u32 v8, v6, v{V_LANE}, s{sB}
s_mov_b32 s{sUns}, {14 if OPT['pfm'] & 4 else 0}
s_mov_b32 s{SRD_A+2}, {448*2688}
L_pf3:
v_lshlrev_b32 v8, 7, v8
v_cmp_gt_u32 vcc, s{sUns}, v{V_LANE}
s_mov_b32 s{SRD_A+3}, 0x20000
v_bfrev_b32 v6, 1
v_cndmask_b32 v8, v6, v8, vcc
''' if OPT['pfm'] else ''
e(f"""s_cmp_{'eq' if OPT['only'] != 2 else 'le'}_u32 s{S_C}, 7
s_cbranch_scc1 L_ssm_idle
s_lshr_b32 s{sDs}, s{S_W}, 1
s_lshl_b32 s{sD0}, s{S_I}, 1
s_add_u32 s{sD}, s{sD0}, s{sDs}
s_mul_i32 s{sTab}, s{S_W}, {TABSZ}
s_add_u32 s{sTab}, s{sTab}, {L_TAB}
s_lshl1_add_u32 s{sA}, s{sD0}, s{S_W}
s_lshl_b32 s{sA}, s{sA}, 8
v_lshl_add_u32 v{a0}, v{V_LANE}, 2, s{sA}
s_mov_b32 m0, s{sTab}
{PFA}s_lshl_b32 s{sB}, s{sD0}, 1
s_waitcnt lgkmcnt(0)
s_load_dword s{sLd}, s[14:15], s{sB}
s_load_dword s{sSk}, s[16:17], s{sB}
global_load_dword v{vPar+0}, v{a0}, s[6:7]
global_load_dword v{vPar+1}, v{a0}, s[8:9]
global_load_dword v{vPar+2}, v{a0}, s[10:11]
global_load_dword v{vPar+3}, v{a0}, s[12:13]
global_load_dword v{vPar+4}, v{V_T}, s[28:29]""")
if OPT['pfm']:
    e(f'''s_cmp_eq_u32 s{S_W}, 0
    s_cselect_b64 s[{SRD_A}:{SRD_A+1}], s[18:19], s[20:21]
    s_cmp_eq_u32 s{S_W}, 3
    s_cselect_b64 s[{SRD_A}:{SRD_A+1}], s[4:5], s[{SRD_A}:{SRD_A+1}]''')
    PFL = f'buffer_load_dword v{vPar+5}, v8, {sr(SRD_A)}, 0 offen'
    if not OPT['pfl']: e(PFL)
if OPT['tlb'] != 2: e('s_barrier')
if OPT['tlb']:
    e(f'''v_and_b32 v{a0}, 7, v{V_LANE}
    v_min_u32 v{a0}, 5, v{a0}
    v_lshlrev_b32 v{a0}, 21, v{a0}
    v_add_u32 v{a0}, 0xf8000, v{a0}
    v_mov_b32 v{a1}, 0
    global_load_dword v8, v{a0}, s[28:29]
    global_load_dword v8, v{a1}, s[22:23]''')
if OPT['tlb'] == 2: e('s_barrier')
if OPT['ord'] < 4: e('s_branch L_ssm')
sec('ssm')
e('L_ssm:')
if OPT['abl'] == 1:
    arrive(1); e('s_waitcnt vmcnt(0) lgkmcnt(0)\ns_endpgm')
lo()
srd(SRD_WS, 28, WS_SIZE)
e(f"""s_and_b32 s{sHw}, s{S_W}, 1
v_add_u32 v{V_GRP}, 16, v{V_GRP}
v_and_b32 v{a0}, 15, v{V_LANE}
v_lshrrev_b32 v{a1}, 4, v{V_LANE}
v_lshl_add_u32 v{vRb_}, v{a1}, 4, s{sTab}
v_mul_u32_u24 v{a2}, {TROW}, v{a0}
v_add_u32 v{vRa}, v{a2}, v{vRb_}
v_lshlrev_b32 v{vL16}, 4, v{V_LANE}
v_mov_b32 v{vOne}, 0x3c00
ds_write_addtid_b32 v{vOne}""")
for i in range(8): e(f'v_mov_b64 {vr(vAc+2*i,2)}, 0')
mid = f"""v_and_b32 v{a0}, 7, v{V_LANE}
s_and_b32 s{sB}, s2, {OPT['ur'] - 1}
s_lshl2_add_u32 s{sB}, s{sB}, s{S_W}
s_mul_i32 s{sB}, s{sB}, {8*US}
s_add_u32 s{sB}, s{sB}, {F_U}
v_mul_u32_u24 v{vFu}, {US}, v{a0}
v_add_u32 v{vFu}, s{sB}, v{vFu}
s_mul_i32 s{sP}, s{sDs}, {P_SZ}
s_add_u32 s{sP}, s{sP}, {L_TAB}
s_add_u32 s{sKd}, s{sP}, {P_KD}
s_lshl_b32 s{sB}, s{sHw}, 8
s_add_u32 s{sInv}, s{sB}, s{sKd}
s_add_u32 s{sA}, s{sInv}, {1088 + 128}
v_lshl_add_u32 v{vRz}, v{a0}, 4, s{sA}
v_mov_b32 v{vKb}, s{sKd}
v_and_b32 v{a0}, 15, v{V_LANE}
v_lshrrev_b32 v{a1}, 4, v{V_LANE}
s_lshl_b32 s{sA}, s{sHw}, 4
v_add_u32 v{a0}, s{sA}, v{a0}
v_and_b32 v{a3}, 1, v{V_LANE}
v_mul_u32_u24 v{a2}, 255, v{a3}
v_sub_u32 v{a2}, v{a2}, v{a0}
s_add_u32 s{sA}, s{sKd}, {1088 + 32}
v_add_u32 v{vKa}, s{sA}, v{a2}
v_add_u32 v{vKa0}, 96, v{vKa}
s_lshl3_add_u32 s{sA}, s{sDs}, 16
v_lshl_add_u32 v{vPair}, v{a3}, 2, s{sA}
s_mul_i32 s{sA}, s{sHw}, {1088 + 112 - 1024}
s_add_u32 s{sA}, s{sA}, s{sKd}
s_add_u32 s{sA}, s{sA}, 1024
v_writelane_b32 v{vKa0}, s{sA}, 0
s_mul_i32 s{sA}, s{sHw}, 56
s_sub_u32 s{sA}, s{sKd}, s{sA}
s_add_u32 s{sA}, s{sA}, 1088
v_writelane_b32 v{vKa0}, s{sA}, 16
v_max_u32 v{a2}, 1, v{a1}
v_sub_u32 v{a2}, 5, v{a2}
v_lshlrev_b32 v{a0}, v{a2}, v{a0}
v_lshlrev_b32 v{a2}, 3, v{a1}
s_mov_b32 s{sA}, 0x60400100
v_bfe_u32 v{a1}, s{sA}, v{a2}, 8
v_lshl_add_u32 v{a0}, v{a1}, 3, v{a0}
v_add_u32 v{vKd}, s{sKd}, v{a0}
s_mov_b32 s{sA}, 0x80040404
v_bfe_u32 v{a1}, s{sA}, v{a2}, 8
v_add_u32 v{vKd1}, v{a1}, v{vKd}
v_lshrrev_b32 v{a1}, 1, v{V_LANE}
v_lshlrev_b32 v{vUa}, 6, v{a1}
v_lshl_add_u32 v{vUa}, v{a3}, 4, v{vUa}
s_lshr_b32 s{sA}, s{sD0}, 2
s_mul_i32 s{sA}, s{sA}, {QS}
s_and_b32 s{sB}, s{sD0}, 3
s_lshl4_add_u32 s{sA}, s{sB}, s{sA}
s_lshl_b32 s{sB}, s{S_W}, 12
s_add_u32 s{sA}, s{sA}, s{sB}
s_add_u32 s{sUl}, s{sA}, {WS_U}
v_and_b32 v{a1}, 3, v{a1}
v_lshl_add_u32 v{a1}, v{a3}, 2, v{a1}
v_mul_u32_u24 v{a1}, {PS}, v{a1}
v_lshrrev_b32 v{a2}, 3, v{V_LANE}
v_lshl_add_u32 v{a1}, v{a2}, 4, v{a1}
s_lshl_b32 s{sA}, s{S_W}, 8
s_add_u32 s{sA}, s{sA}, {L_KP + 512}
v_add_u32 v{vKp}, s{sA}, v{a1}
; byte selectors that expand the distinct taps to the lags (lag l uses the tap at bf16(l), as in the reference)
v_lshrrev_b32 v{a1}, 5, v{V_LANE}
s_lshl_b32 s{sA}, s{sHw}, 1
v_max_u32 v{a0}, s{sA}, v{a1}
v_min_u32 v{a2}, 1, v{a0}
v_mul_u32_u24 v{a2}, 0x0202, v{a2}
v_lshlrev_b32 v{a2}, 16, v{a2}
v_sub_u32 v{vSel}, 0x03020100, v{a2}
v_mul_u32_u24 v{a2}, 0x0202, v{a0}
v_lshl_or_b32 v{a2}, v{a2}, 16, v{a2}
v_sub_u32 v{vSel+1}, 0x07060504, v{a2}
s_mul_i32 s{sA}, s{sHw}, 0x02020202
v_add_u32 v{vSel+2}, s{sA}, v{vSel}
s_mul_i32 s{sA}, s{sHw}, 0x02020404
v_add_u32 v{vSel+3}, s{sA}, v{vSel+1}
v_lshrrev_b32 v{a2}, v{a0}, v{vL16}
s_movk_i32 s{sA}, 256
v_lshl_add_u32 v{a2}, s{sA}, v{a0}, v{a2}
s_sub_u32 s{sA}, s{sKd}, 256
v_add_u32 v{vE1}, s{sA}, v{a2}
v_lshlrev_b32 v{a2}, 2, v{a0}
v_sub_u32 v{vE1b}, v{vE1}, v{a2}
s_mov_b32 s{sA}, 0x0c0c0c0c
s_cmp_lg_u32 s{sHw}, 0
s_cselect_b32 s{sE2}, 0x01000100, s{sA}
s_cselect_b32 s{sE3}, 0x05040302, s{sA}
v_mov_b32 v{vSel+4}, s{sA}
v_mov_b32 v{vSel+5}, s{sA}
v_mov_b32 v{vSel+6}, s{sA}
v_mov_b32 v{vSel+7}, s{sA}
s_mov_b32 s{sA}, 0x05040504
s_mov_b64 exec, 15
v_mov_b32 v{vSel+4}, s{sA}
v_mov_b32 v{vSel+5}, s{sA}
v_mov_b32 v{vSel+6}, s{sA}
s_mov_b64 exec, -1
v_writelane_b32 v{vSel+7}, s{sA}, 3
s_mov_b32 s{sA}, 0x05040302
v_writelane_b32 v{vSel+4}, s{sA}, 3
s_mov_b32 s{sA}, 0x0c0c0504
v_writelane_b32 v{vSel+6}, s{sA}, 0
v_writelane_b32 v{vSel+7}, s{sA}, 2
s_mul_i32 s{sA}, s{S_W}, {2*PS}
s_add_u32 s{sA}, s{sA}, {L_KP}
v_mul_u32_u24 v{a2}, {PS - 512}, v{a1}
v_add3_u32 v{vG_}, v{a2}, v{vL16}, s{sA}
v_mov_b64 {vr(vZer,2)}, 0
v_mov_b64 {vr(vZer+2,2)}, 0
ds_write_b128 v{vG_}, {vr(vZer,4)}
s_lshl_b32 s{sA}, s{sHw}, 10
s_add_u32 s{sB}, s{sP}, {P_UC}
s_add_u32 s{sA}, s{sA}, s{sB}
s_add_u32 s{sA}, s{sA}, 64
v_add_u32 v{vCd}, s{sA}, v{vL16}
v_and_b32 v{a3}, 3, v{V_LANE}
v_and_b32 v{a0}, 0x1c, v{V_LANE}
v_lshlrev_b32 v{a2}, 2, v{a0}
v_and_b32 v{vZp}, 0x30, v{a2}
s_mov_b32 exec_hi, 0
v_add_u32 v{vZp}, 2112, v{a2}
s_mov_b64 exec, -1
v_mul_u32_u24 v{a2}, {UC_S}, v{a3}
v_add3_u32 v{vZp}, v{vZp}, v{a2}, s{sB}
v_lshlrev_b32 v{a0}, 1, v{a0}
v_sub_u32 v{a0}, v{a0}, v{a2}
v_lshlrev_b32 v{a1}, 4, v{a1}
v_sub_u32 v{a0}, v{a0}, v{a1}
s_lshl_b32 s{sA}, s{sHw}, 5
s_sub_u32 s{sB}, s{sB}, s{sA}
s_add_u32 s{sB}, s{sB}, {56 + 3*UC_S}
v_add_u32 v{vF_}, s{sB}, v{a0}
v_add_u32 v{vG_}, {512 - 80}, v{vG_}
v_add_u32 v{vKxo}, s{sTab}, v{vL16}
s_xor_b32 s{sA}, s{S_W}, 1
s_mul_i32 s{sA}, s{sA}, {TABSZ}
s_add_u32 s{sA}, s{sA}, {L_TAB}
v_add_u32 v{vKxp}, s{sA}, v{vL16}
v_and_b32 v{a0}, 31, v{V_LANE}
v_lshlrev_b32 v{a2}, 2, v{a0}
v_sub_u32 v{a2}, v{a1}, v{a2}
s_add_u32 s{sA}, s{sInv}, {1088 + 124}
v_add_u32 v{vBk}, s{sA}, v{a2}
"""
def prewrite():
    e(f'''s_sub_u32 s{sA}, 3, s{S_HG}
    v_lshrrev_b32 v{a0}, s{sA}, v{V_LANE}
    v_lshlrev_b32 v{a1}, s{sA}, v{a0}
    v_sub_u32 v{a1}, v{V_LANE}, v{a1}
    s_lshr_b32 s{sA}, s{S_KS}, s{S_HG}
    v_mul_u32_u24 v{a0}, s{sA}, v{a0}
    v_lshl_add_u32 v{a0}, v{a1}, 6, v{a0}
    s_lshl2_add_u32 s{sA}, s{S_TILE}, s{S_W}
    s_lshl_b32 s{sA}, s{sA}, 9
    s_lshr_b32 s{sA}, s{sA}, s{S_HG}
    s_mul_i32 s{sB}, s{S_HG}, {WS_V - WS_K}
    s_add_u32 s{sA}, s{sA}, s{sB}
    s_mul_i32 s{sB}, s{S_C}, {8*KS}
    s_add_u32 s{sA}, s{sA}, s{sB}
    s_add_u32 s{sA}, s{sA}, {WS_K}''')
    hi(); e(f'buffer_store_dword v{a0}, v{a0}, {sr(SRD_WS)}, s{sA} offen sc1'); lo()
if OPT['pw'] == 1: prewrite()
if OPT['pfl'] and OPT['pfm']:
    ml = mid.split('\n'); k = OPT['pfl']
    while 'exec' in ''.join(ml[k-4:k+1]): k += 1
    mid = '\n'.join(ml[:k] + ['s_setprio 3', PFL, f"s_setprio {OPT['kgp']}"] + ml[k:])
e(mid)
if OPT['pw'] == 2: prewrite()
stamp(22)
e(f"""s_waitcnt lgkmcnt(0)
s_lshl_b32 s{sA}, s{sDs}, 4
s_lshr_b32 s{sLd}, s{sLd}, s{sA}
s_lshl_b32 s{sLd}, s{sLd}, 16
s_lshr_b32 s{sSk}, s{sSk}, s{sA}
s_lshl_b32 s{sSk}, s{sSk}, 16
v_mov_b32 v{a0}, s{sLd}
v_mul_f32 v{a0}, 0x3fb8aa3b, v{a0}
v_exp_f32 v{a0}, v{a0}
s_cmp_eq_u32 s{sHw}, 0
s_cselect_b32 s{sSk}, s{sSk}, 0
v_cvt_pk_bf16_f32 v{a0}, v{a0}, v{a0}
v_and_b32 v{vScl}, 0xffff0000, v{a0}
v_mul_f32 v{vKc}, 0xbfb8aa3b, v{vScl}
v_mul_f32 v{vKc+1}, 0.15915494, v{vScl}
v_mov_b32 v{vAdd}, 0
v_add_f32 v{vScl}, v{vScl}, v{vScl}
v_writelane_b32 v{vAdd}, s{sSk}, 0
s_mov_b32 s{sIt2}, 0
s_mov_b32 s{sSel}, 0x01000c0c""")
stamp(0)
e(f"""s_waitcnt vmcnt({(3 if OPT['tlb'] else 1) + (OPT['pw'] in (1, 2)) + (OPT['pfm'] > 0)})
v_and_b32 v{a0}, 0x7f807f80, v{vPar+2}
v_and_b32 v{a1}, 0x7f807f80, v{vPar+3}
v_pk_max_u16 v{a0}, v{a0}, v{a1}
v_lshlrev_b32 v{a1}, 16, v{a0}
v_max_u32 v{a0}, v{a0}, v{a1}""")
for q, n in enumerate((1, 2, 4, 8)):
    e(f's_nop 1\nv_max_u32_dpp v{a0}, v{a0}, v{a0} row_ror:{n} row_mask:0xf bank_mask:0xf')
e(f"""s_nop 0
v_readlane_b32 s{sA}, v{a0}, 0
v_readlane_b32 s{sB}, v{a0}, 16
v_readlane_b32 s{sInv}, v{a0}, 32
v_readlane_b32 s{sUns}, v{a0}, 48
s_max_u32 s{sA}, s{sA}, s{sB}
s_max_u32 s{sUns}, s{sUns}, s{sInv}
s_max_u32 s{sUns}, s{sUns}, s{sA}
s_and_b32 s{sUns}, s{sUns}, 0x7f800000
s_min_u32 s{sUns}, s{sUns}, 0x7e800000
s_sub_u32 s{sInv}, 0x7f000000, s{sUns}
v_mul_f32 v{vScl}, s{sUns}, v{vScl}
v_mul_f32 v{vSB}, 0x43000000, v{vScl}
v_mov_b32 v{vSB0}, v{vSB}
s_mov_b64 exec, 1
v_mov_b32 v{vSB0}, v{vScl}
s_mov_b64 exec, -1""")
stamp(1)
if OPT['abl'] == 2: e('s_endpgm')
def cm(jobs, conj):
    ng = 'neg_hi:[1,0,0]' if conj else 'neg_lo:[1,0,0]'
    return [f'v_pk_mul_f16 v{d}, v{x}, v{w} op_sel_hi:[1,0]' for d, x, w in jobs] + \
           [f'v_pk_fma_f16 v{d}, v{x}, v{w}, v{d} op_sel:[1,1,0] op_sel_hi:[0,1,1] {ng}' for d, x, w in jobs]
def wr(reg): return f'ds_write_addtid_b32 v{reg} offset:{TROW*(reg - vY)}'
assert vXt == vY + 16
zA, zB, tA, tB, pA, pB = vZ, vZ+2, vZ+4, vZ+6, vZ+8, vZ+10
X = vXt; Y = vY
an = {1: vAn, 2: vAn+1, 4: vAn+2, 8: Y+1, 16: Y+2, 32: Y+4, 64: Y+8, 128: X+21, 256: vAn+3, 512: vAn+4, 1024: vAn+5}
e('L_kg:')
stamp(14)
seq = f"""v_perm_b32 v{pA}, v{vPar}, v{vPar}, s{sSel}
v_mul_f32 v{pA}, 0x3fb8aa3b, v{pA}
v_exp_f32 v{pA}, v{pA}
v_perm_b32 v{pA+1}, v{vPar+1}, v{vPar+1}, s{sSel}
v_perm_b32 v{tA}, v{vPar+2}, v{vPar+2}, s{sSel}
v_perm_b32 v{tA+1}, v{vPar+3}, v{vPar+3}, s{sSel}
v_cvt_pk_bf16_f32 v{pA}, v{pA}, v{pA}
v_mul_f32 v{tA}, s{sInv}, v{tA}
v_and_b32 v{pA}, 0xffff0000, v{pA}
v_mul_f32 v{tA+1}, s{sInv}, v{tA+1}
v_pk_mul_f32 {vr(pA,2)}, {vr(pA,2)}, {vr(vKc,2)}
v_cvt_pk_f16_f32 v{X}, v{tA}, -v{tA+1}
v_mul_f32 v{pB}, 0x42800000, v{pA}
v_mul_f32 v{pB+1}, 0x42800000, v{pA+1}
v_exp_f32 v{pA}, v{pA}
v_fract_f32 v{pA+1}, v{pA+1}
v_exp_f32 v{pB}, v{pB}
v_fract_f32 v{pB+1}, v{pB+1}
v_cos_f32 v{zA}, v{pA+1}
v_sin_f32 v{zA+1}, v{pA+1}
v_cos_f32 v{zB}, v{pB+1}
v_sin_f32 v{zB+1}, v{pB+1}
v_pk_mul_f32 {vr(zA,2)}, {vr(zA,2)}, {vr(pA,2)} op_sel_hi:[1,0]
v_pk_mul_f32 {vr(zB,2)}, {vr(zB,2)}, {vr(pB,2)} op_sel_hi:[1,0]""".split('\n')
for st in range(6):
    chains = [(zA, tA, an[1 << st], st < 5)] + ([(zB, tB, an[64 << st], st < 4)] if st < 5 else [])
    for z, t, d, sq in chains:
        if sq: seq.append(f'v_pk_mul_f32 {vr(t,2)}, {vr(z,2)}, {vr(z,2)} op_sel_hi:[0,1]')
    for z, t, d, sq in chains: seq.append(f'v_cvt_pk_f16_f32 v{d}, v{z}, v{z+1}')
    for z, t, d, sq in chains:
        if sq: seq.append(f'v_pk_fma_f32 {vr(z,2)}, {vr(z,2)}, {vr(z,2)}, {vr(t,2)} op_sel:[1,1,0] op_sel_hi:[0,1,1] neg_lo:[1,0,0]')
seq += cm([(X+1, X, an[1]), (X+2, X, an[2]), (X+4, X, an[4]), (X+8, X, an[256]), (X+12, X, an[512]), (X+16, X, an[1024])], True)
seq += cm([(Y+3, Y+1, Y+2), (Y+12, Y+4, Y+8), (Y+5, Y+4, Y+1), (Y+6, Y+4, Y+2), (Y+9, Y+8, Y+1), (Y+10, Y+8, Y+2)], False)
seq += cm([(X+3, X+1, an[2]), (X+5, X+1, an[4]), (X+6, X+2, an[4]), (X+9, X+2, an[256]), (X+10, X+4, an[256]), (X+13, X+4, an[512]),
           (X+14, X+8, an[512]), (X+17, X+8, an[1024]), (X+18, X+12, an[1024]), (X+20, X+16, an[1024])], True)
seq += cm([(Y+7, Y+4, Y+3), (Y+11, Y+8, Y+3), (Y+13, Y+12, Y+1), (Y+14, Y+12, Y+2), (Y+15, Y+12, Y+3)], False)
seq += cm([(X+7, X+3, an[4]), (X+11, X+6, an[256]), (X+15, X+10, an[512]), (X+19, X+14, an[1024])], True)
e('\n'.join(seq))
stamp(15)
if OPT['kgw']:
    e(f'v_subrev_u32 v{a0}, 16, v{V_GRP}'); lwait(OPT['kgw'], addr=a0)
hi()
if OPT['abl'] != 4: e('\n'.join(wr(r) for r in range(Y + 1, X + 22)))
for k in range(4):
    o = vOp + 16*k
    e(f"""ds_read_b128 {vr(o,4)}, v{vRa} offset:{64*k}
    ds_read_b128 {vr(o+4,4)}, v{vRb_} offset:{37*TROW + 64*k}
    ds_read_b128 {vr(o+8,4)}, v{vRa} offset:{16*TROW + 64*k}
    ds_read_b128 {vr(o+12,4)}, v{vRa} offset:{32*TROW + 64*k}""")
if not OPT['uw']: e(f's_cmp_eq_u32 s{sIt2}, 0\ns_cbranch_scc1 L_kg_n\nbuffer_load_dword v{vFr}, v{vFu}, {sr(SRD_WS)}, 0 offen sc1\nL_kg_n:')
stamp(16)
def mf(c, a, b): return f'v_mfma_f32_16x16x32_f16 {vr(c,4)}, {vr(a,4)}, {vr(b,4)}, {vr(c,4)}'
late_m = []
for k in range(4):
    o = vOp + 16*k; y1 = vX1 + 4*(k & 1)
    p = cm([(y1+r, o+r, o+4+r) for r in range(4)], False)
    e(f's_waitcnt lgkmcnt({12 - 4*k})')
    e('\n'.join([mf(vAc, o+8, o)] + p[0:2] + late_m[:1] + p[2:4] + [mf(vAc+4, o+12, o)] + p[4:6] + late_m[1:] + p[6:8]))
    late_m = [mf(vAc+8, o+8, y1), mf(vAc+12, o+12, y1)]
e(f"""s_add_u32 s{sSel}, s{sSel}, 0x02020000
s_add_u32 s{sIt2}, s{sIt2}, 1
s_cmp_lg_u32 s{sIt2}, 2""")
e('\n'.join(late_m))
lo()
if OPT['pw'] == 3:
    e('s_cbranch_scc0 L_kg_e'); prewrite(); e('s_branch L_kg\nL_kg_e:')
else: e('s_cbranch_scc1 L_kg')
stamp(17)
if OPT['abl'] in (4, 8): e('s_endpgm')
def scl(i): return vSB0 if i == 4 else (vSB if i & 4 else vScl)
for i in range(8): e(f'v_mul_f32 v{vAc+i}, v{scl(i)}, v{vAc+i}')
e(f's_cmp_eq_u32 s{sHw}, 0')
for i in range(8, 16): e(f'v_mul_f32 v{vAc+i}, v{scl(i)}, v{vAc+i}')
e('s_cbranch_scc1 L_kx')
for i in range(8): e(f'v_swap_b32 v{vAc+i}, v{vAc+8+i}')
e(f"""L_kx:
ds_write_b128 v{vKxo}, {vr(vAc+8,4)}
s_mov_b32 exec_hi, 0
ds_write_b128 v{vKxo}, {vr(vAc+12,4)} offset:1024
s_mov_b64 exec, -1
s_waitcnt vmcnt({1 if OPT['pw'] else 0})
v_readfirstlane_b32 s{S_NONCE}, v{vPar+4}""")
arrive(2)
e(f's_add_u32 s{S_NONCE}, s{S_NONCE}, 1')
e(f'v_add_f32 v{vAc}, v{vAdd}, v{vAc}')
stamp(18)
def bprio():
    if OPT['prio']: e(f"s_setprio {OPT['bp']}")
SP = OPT['sp']
def s_look(): e('\n'.join([f's_mul_i32 s12, s{S_W}, {8*US}'] + [f's_load_dword s{4+i}, s[28:29], s12 offset:{hex(F_U + US*i)} glc' for i in range(8)]))
def s_test():
    e('\n'.join([f's_xor_b32 s{4+i}, s{4+i}, s{S_NONCE}' for i in range(8)] + ['s_or_b64 s[4:5], s[4:5], s[6:7]', 's_or_b64 s[8:9], s[8:9], s[10:11]', 's_or_b64 s[88:89], s[4:5], s[8:9]']))
def u_look():
    if SP: s_look(); bprio(); return
    hi(); e(f'buffer_load_dword v{vFr}, v{vFu}, {sr(SRD_WS)}, 0 offen sc1'); bprio()
def u_fetch():
    hi()
    stamp(20)
    if SP:
        e('L_spoll:'); s_look(); e('s_waitcnt lgkmcnt(0)'); s_test()
        e(f's_cbranch_scc0 L_spoll2\ns_sub_u32 s{S_BOUND}, s{S_BOUND}, 1\ns_cbranch_scc0 L_spoll\ns_mov_b32 s{S_BOUND}, 0\nL_spoll2:')
    else: poll(vFu, first_issued=True, reg=vFr, sleep=OPT['usleep'])
    stamp(21)
    for k in range(2):
        e(f'buffer_load_dwordx4 {vr(U+4*k,4)}, v{vUa}, {sr(SRD_WS)}, s{sUl} offen offset:{2048*k} sc1')
    bprio()
if OPT['uw'] <= -2 and not (SP and OPT['uw'] == -3): u_look()
else: bprio()
stamp(19)
lwait(2, addr=vPair)
e(f"""ds_read_b128 {vr(vAc+8,4)}, v{vKxp}
ds_read_b128 {vr(vAc+12,4)}, v{vKxp} offset:1024
ds_write_b128 v{vRz}, {vr(vZer,4)}
s_mov_b32 s{sIt2}, 4
s_waitcnt lgkmcnt(1)""")
for i in range(4): e(f'v_pk_add_f32 {vr(vAc+2*i,2)}, {vr(vAc+2*i,2)}, {vr(vAc+8+2*i,2)}')
for i in range(4): e(f'v_cvt_pk_bf16_f32 v{vAc+8+i}, v{vAc+2*i}, v{vAc+2*i+1}')
e(f"""ds_write_b32 v{vKd}, v{vAc+8}
ds_write_b32 v{vKd1}, v{vAc+9}
s_mov_b64 exec, 0x1ffff
ds_write_b16 v{vKa0}, v{vAc+10}
s_mov_b64 exec, 0xffff
ds_write_b16_d16_hi v{vKa}, v{vAc+10} offset:64
ds_write_b16 v{vKa}, v{vAc+11} offset:32
ds_write_b16_d16_hi v{vKa}, v{vAc+11}
s_mov_b64 exec, -1""")
if OPT['pw']: e('s_waitcnt vmcnt(0)')
arrive(3)
if OPT['uw'] == -1 and not SP or SP and OPT['uw'] == -3: u_look()
if OPT['uw'] == -2: u_fetch()
def u_try(tag=''):
    hi()
    if SP:
        s_test(); e(f's_cbranch_scc1 L_utry{tag}')
        for k in range(2):
            e(f'buffer_load_dwordx4 {vr(U+4*k,4)}, v{vUa}, {sr(SRD_WS)}, s{sUl} offen offset:{2048*k} sc1')
        e(f'L_utry{tag}:'); bprio(); return
    e(f's_waitcnt vmcnt(0)\nv_cmp_ne_u32 vcc, s{S_NONCE}, v{vFr}\ns_mov_b64 s[88:89], vcc\ns_cbranch_vccnz L_utry')
    for k in range(2):
        e(f'buffer_load_dwordx4 {vr(U+4*k,4)}, v{vUa}, {sr(SRD_WS)}, s{sUl} offen offset:{2048*k} sc1')
    e(f's_branch L_utry2\nL_utry:\nbuffer_load_dword v{vFr}, v{vFu}, {sr(SRD_WS)}, 0 offen sc1\nL_utry2:')
    bprio()
if OPT['uw'] == -4: u_try()
lwait(3, addr=vPair)
if OPT['uw'] == -3: u_try()
stamp(2)
E = 64; BF = 40
e(f"""ds_read2_b32 {vr(E,2)}, v{vE1} offset1:1
ds_read2_b32 {vr(E+2,2)}, v{vE1b} offset0:2 offset1:3
ds_read2_b32 {vr(E+4,2)}, v{vKb} offset0:191 offset1:192
ds_read_b32 v{E+6}, v{vKb} offset:1020
ds_read_b32 v{E+7}, v{vKb} offset:1024""")
for q in range(8): e(f'ds_read2_b32 {vr(BF+2*q,2)}, v{vBk} offset0:{8*(q>>1) + 2*(q&1)} offset1:{8*(q>>1) + 2*(q&1) + 1}')
b = E + 12; t = E + 16
e(f"""s_waitcnt lgkmcnt(10)
v_perm_b32 v{b+2}, v{E+2}, v{E+2}, v{vSel+2}
v_perm_b32 v{b+3}, v{E+3}, v{E+2}, v{vSel+3}
v_perm_b32 v{b-2}, v{E+5}, v{E+4}, s{sE2}
v_perm_b32 v{b-1}, v{E+5}, v{E+4}, s{sE3}
v_perm_b32 v{b}, v{E}, v{E}, v{vSel}
v_perm_b32 v{b+1}, v{E+1}, v{E}, v{vSel+1}
v_mov_b32_dpp v{b-2}, v{b+2} wave_shr:1 row_mask:0xf bank_mask:0xf
v_mov_b32_dpp v{b-1}, v{b+3} wave_shr:1 row_mask:0xf bank_mask:0xf
ds_write_b128 v{vCd}, {vr(b,4)}""")
for i in range(4): e(f'v_alignbit_b32 v{t+i}, v{b+i}, v{b+i-1}, 16')
e(f'ds_write_b128 v{vCd}, {vr(t,4)} offset:{UC_S}')
for i in range(4): e(f'v_mov_b32 v{t+4+i}, v{b+i-1}')
e(f'ds_write_b128 v{vCd}, {vr(t+4,4)} offset:{2*UC_S}')
for i in range(4): e(f'v_alignbit_b32 v{t+8+i}, v{b+i-1}, v{b+i-2}, 16')
e(f'ds_write_b128 v{vCd}, {vr(t+8,4)} offset:{3*UC_S}\ns_waitcnt lgkmcnt(12)')
for i in range(4): e(f'v_perm_b32 v{t+12+i}, v{E+7}, v{E+6}, v{vSel+4+i}')
e(f'ds_write_b128 v{vZp}, {vr(t+12,4)}')
if OPT['uw'] <= -3: e('s_cmp_eq_u64 s[88:89], 0\ns_cbranch_scc1 L_uhave')
if OPT['uw'] != -2: u_fetch()
e('L_uhave:')
stamp(3)
e(f'v_and_b32 v{a0}, 31, v{V_LANE}')
swap23(a1, a0, a2)
e(f"""v_lshrrev_b32 v{a2}, 5, v{V_LANE}
v_lshl_add_u32 v{a1}, v{a1}, 1, v{a2}
s_add_u32 s{sA}, s{sHw}, 123
v_add_u32 v{a1}, s{sA}, v{a1}
s_mul_i32 s{sA}, s{sDs}, {PD}
s_add_u32 s{sA}, s{sA}, {L_KP}
v_and_b32 v{a3}, 3, v{a1}
v_mul_u32_u24 v{a3}, {PS - 4}, v{a3}
v_lshl_add_u32 v{a3}, v{a1}, 2, v{a3}
v_add_u32 v{vA0}, s{sA}, v{a3}
v_add_u32 v{a1}, 2, v{a1}
v_and_b32 v{a3}, 3, v{a1}
v_mul_u32_u24 v{a3}, {PS - 4}, v{a3}
v_lshl_add_u32 v{a3}, v{a1}, 2, v{a3}
v_add_u32 v{vA1}, s{sA}, v{a3}
v_lshlrev_b32 v{a2}, 3, v{a2}
v_sub_u32 v{a2}, v{a2}, v{a0}
v_cvt_f32_i32 v{a2}, v{a2}
v_add_f32 v{a3}, -1.0, v{a2}
v_add_f32 v{a2}, -2.0, v{a2}
v_cvt_pk_f16_f32 v8, v{a3}, v{a2}
s_waitcnt vmcnt(1)
ds_write_b128 v{vKp}, {vr(U,4)}
s_waitcnt vmcnt(0)
ds_write_b128 v{vKp}, {vr(U+4,4)} offset:128""")
arrive(4)
AP, BD, DP = 112, 136, 192
band = [f's_mov_b32 s{sA}, 0x4a204a20', f's_cmp_eq_u32 s{sHw}, 0', f's_cselect_b32 s{sE2}, 0x4d104d10, s{sA}', f's_mov_b32 s{sE3}, 0x4d804d80']
for q in range(12):
    band.append(f'v_pk_fma_f16 v{BD+q}, v8, v8, s{sE2} neg_lo:[1,0,0] neg_hi:[1,0,0] clamp')
    if q < 11: band.append(f'v_pk_add_f16 v8, v8, s{sE3}' if q % 4 == 3 else 'v_pk_add_f16 v8, v8, -2.0 op_sel_hi:[1,0]')
e('\n'.join(band))
lwait(4)
KG[0] = False
lo()
stamp(4)
if OPT['abl'] == 16: e('s_endpgm')
CB = 64
def cv_reads(k):
    b = CB + 12 * (k & 3)
    return [f'ds_read_b64 {vr(b,2)}, v{vF_} offset:{64*k}', f'ds_read_b64 {vr(b+2,2)}, v{vF_} offset:{64*k + 8}',
            f'ds_read_b128 {vr(b+8,4)}, v{vG_} offset:{512 + 80 - 16*k}', f'ds_read_b128 {vr(b+4,4)}, v{vG_} offset:{80 - 16*k}']
for tau in range(2):
    for kp in range(3): e(f'ds_read_b128 {vr(AP + 12*tau + 4*kp, 4)}, v{(vA0, vA1)[kp & 1]} offset:{256*tau + 16*(kp >> 1)}')
e('\n'.join(cv_reads(0) + cv_reads(1)))
assert OM == 3
late = f"""s_mov_b64 s[{SRD_B}:{SRD_B+1}], s[22:23]
s_mov_b32 s{SRD_B+2}, {448*896}
s_mov_b32 s{SRD_B+3}, 0x20000
s_mov_b64 s[{SRD_C}:{SRD_C+1}], s[24:25]
s_mov_b32 s{SRD_C+2}, {2048*1792}
s_mov_b32 s{SRD_C+3}, 0x20000
v_lshrrev_b32 v{a1}, 3, v{V_LANE}
v_and_b32 v{a2}, 7, v{V_LANE}
v_and_b32 v{a0}, 0x70, v{vL16}
v_mul_u32_u24 v{vYl}, {YS}, v{a1}
v_add_u32 v{vYl}, v{vYl}, v{a0}
v_lshlrev_b32 v{a3}, 2, v{V_LANE}
v_and_b32 v{a3}, 64, v{a3}
v_xor_b32 v{a0}, v{a0}, v{a3}
v_mul_u32_u24 v{vWoD}, 896, v{a1}
v_xor_b32 v{a3}, v{a1}, v{a2}
v_lshlrev_b32 v{a3}, 4, v{a3}
v_lshl_add_u32 v{vOut}, v{vWoD}, 1, v{a3}
v_add_u32 v{vWoD}, v{a0}, v{vWoD}
v_add_u32 v{vWoD+1}, {7168-1024}, v{vWoD}
v_lshrrev_b32 v{a0}, 4, v{V_LANE}
v_bfe_u32 v{a1}, v{V_LANE}, 2, 2
v_lshl_or_b32 v{a3}, v{a0}, 3, v{a1}
v_lshlrev_b32 v{a3}, 7, v{a3}
v_lshrrev_b32 v{a1}, 1, v{a1}
v_lshl_add_u32 v{a3}, v{a1}, 6, v{a3}
v_and_b32 v{a1}, 0x30, v{vL16}
s_movk_i32 s{sA}, {L_WO}
v_add3_u32 v{vWoR}, v{a1}, v{a3}, s{sA}
v_xor_b32 v{vWoR+1}, 64, v{vWoR}
v_and_b32 v{a1}, 15, v{V_LANE}
v_lshlrev_b32 v{vOl}, 4, v{a1}
v_mad_u32_u24 v{vOl}, v{a0}, s{S_KS}, v{vOl}
s_mul_i32 s{sOl}, s{S_I}, 9363
s_lshr_b32 s{sOl}, s{sOl}, 16
s_mul_i32 s{sA}, s{sOl}, 7
s_sub_u32 s{sCo}, s{S_I}, s{sA}
s_lshl2_add_u32 s{sOl}, s{sOl}, s{S_W}
s_lshl_b32 s{sFlU}, s{sHw}, 9
s_add_u32 s{sFlU}, s{sFlU}, s{sD}
s_lshl_b32 s{sFlU}, s{sFlU}, {FSH}
s_add_u32 s{sFlU}, s{sFlU}, {F_Y}
s_lshl_b32 s{sA}, s{sCo}, {1 + FSH}
s_sub_u32 s{sA}, s{sFlU}, s{sA}
v_min_u32 v{vFo}, 6, v{a1}
v_lshl_add_u32 v{vFo}, v{vFo}, {1 + FSH}, s{sA}
s_lshl_b32 s{sA}, s{S_W}, 11
s_add_u32 s{sA}, s{sA}, {L_SSM}
v_xor_b32 v{a3}, v{a0}, v{a2}
v_lshl_add_u32 v{a3}, v{a3}, 4, s{sA}
v_lshl_add_u32 v{vBw}, v{a1}, 7, v{a3}
v_add_u32 v{vBr}, s{sA}, v{vL16}
s_mul_i32 s{sOut}, s{sOl}, {16*1792}
s_lshl_b32 s{sA}, s{sCo}, 7
s_add_u32 s{sOut}, s{sOut}, s{sA}
s_add_u32 s{sOut}, s{sOut}, 896
s_add_u32 s{sOut+1}, s{sOut}, {8*1792}
s_lshl_b32 s{sOl}, s{sOl}, 8
s_add_u32 s{sOl}, s{sOl}, {WS_O}
s_lshl2_add_u32 s{sCh0}, s{S_C}, s{S_W}
s_lshl_b32 s{sCh0}, s{sCh0}, 4
s_lshr_b32 s{sA}, s{S_J}, 4
s_lshl_b32 s{sA}, s{sA}, 9
s_add_u32 s{sA}, s{sA}, s{sCh0}
s_lshl_b32 s{sA}, s{sA}, {FSH}
s_add_u32 s{sA}, s{sA}, {F_Y}
v_lshl_add_u32 v{vFy}, v{a1}, {FSH}, s{sA}
s_mov_b32 exec_lo, 0
v_mov_b32 v{vFy}, v{vFo}
s_mov_b64 exec, -1
v_lshrrev_b32 v{a1}, 3, v{V_LANE}
v_and_b32 v{a3}, 3, v{V_LANE}
v_lshl_or_b32 v{vYw}, v{a1}, 2, v{a3}
v_xor_b32 v{a3}, s{S_W}, v{a3}
v_lshl_or_b32 v{vYw}, v{vYw}, 2, v{a3}
v_bfe_u32 v{a3}, v{V_LANE}, 2, 1
v_lshl_or_b32 v{vYw}, v{vYw}, 1, v{a3}
v_lshlrev_b32 v{vYw}, 4, v{vYw}
v_and_b32 v{a3}, 4, v{a1}
v_add_u32 v{a3}, v{a3}, v{a1}
v_mul_u32_u24 v{vYs}, 1792, v{a3}
v_and_b32 v{a1}, 3, v{a1}
v_lshlrev_b32 v{a1}, 1, v{a1}
v_xor_b32 v{a1}, v{a1}, v{a2}
v_lshl_add_u32 v{vYs}, v{a1}, 4, v{vYs}
s_lshl_b32 s{sA}, s{sHw}, 12
s_add_u32 s{sB}, s{sP}, {P_X + 4096}
s_sub_u32 s{sB}, s{sB}, s{sA}
v_add_u32 v{vXp}, s{sB}, v{vL16}
s_add_u32 s{sA}, s{sA}, s{sP}
s_add_u32 s{sA}, s{sA}, {P_X}
v_add_u32 v{vXo}, s{sA}, v{vL16}
v_lshl_add_u32 v{vRb_}, v{a0}, 4, s{sA}
v_bfe_u32 v{a0}, v{V_LANE}, 2, 2
v_and_b32 v{a3}, 1, v{V_LANE}
v_lshl_or_b32 v{a2}, v{a3}, 3, v{a0}
v_lshl_add_u32 v{vTr}, v{a2}, 7, v{vRb_}
v_and_b32 v{a2}, 2, v{V_LANE}
v_lshl_add_u32 v{vTr}, v{a2}, 2, v{vTr}""".split('\n')
def fill(n):
    while 'exec_lo' in ''.join(late[max(0, n-2):n]): n += 1
    e('\n'.join(late[:n])); del late[:n]
fill(16)
e('s_waitcnt lgkmcnt(8)')
for kp in range(3):
    for tau in range(2):
        d = vr(DP + 16*tau, 16)
        e(f'v_mfma_f32_32x32x16_bf16 {d}, {vr(AP + 12*tau + 4*kp, 4)}, {vr(BD + 4*kp, 4)}, {"0" if kp == 0 else d}')
        fill(6)
def cv_iter(first):
    for k in range(4):
        b = CB + 12 * k
        rd = cv_reads(k + 2)
        z = first and k == 0
        e('s_waitcnt lgkmcnt(4)')
        e(f'v_mfma_f32_32x32x16_bf16 {vr(T1,16)}, {vr(b,4)}, {vr(b+8,4)}, {"0" if z else vr(T1,16)}')
        e('\n'.join(rd))
        if k == 3:
            e(f'v_add_u32 v{vF_}, 256, v{vF_}\nv_subrev_u32 v{vG_}, 64, v{vG_}')
            if not first: e(f's_add_u32 s{sIt2}, s{sIt2}, 1\ns_cmp_lg_u32 s{sIt2}, 11')
        e(f'v_mfma_f32_32x32x16_bf16 {vr(T0,16)}, {vr(b,4)}, {vr(b+4,4)}, {"0" if z else vr(T0,16)}')
        if first: fill(6 if k < 3 else 99)
cv_iter(True)
e('L_cv:')
cv_iter(False)
e('s_cbranch_scc1 L_cv')
cv = [f'v_cvt_pk_bf16_f32 v{AP+i}, v{DP+2*i}, v{DP+2*i+1}' for i in range(16)]
for k in range(2):
    e('\n'.join(cv[4*k:4*k+4]))
    e(f's_waitcnt lgkmcnt({4 - 4*k})')
    e(f'v_mfma_f32_32x32x16_bf16 {vr(T1,16)}, {vr(CB+12*k,4)}, {vr(CB+12*k+8,4)}, {vr(T1,16)}')
for q in range(4):
    e('\n'.join(cv[8+4*q:12+4*q]))
    e(f'v_mfma_f32_32x32x16_bf16 {vr(T1,16)}, {vr(AP+4*q,4)}, {vr(BF+4*q,4)}, {vr(T1,16)}')
if OPT['prio']: e(f"s_setprio {OPT['pr']}")
stamp(5)
if OPT['abl'] == 32: e('s_endpgm')
e(f"""s_mul_i32 s{sA}, s{sD}, {YS}
s_lshl_b32 s{sB}, s{sHw}, 11
s_add_u32 s{sA}, s{sA}, s{sB}
s_add_u32 s{sA}, s{sA}, {WS_Y}
s_nop 4""")
def xch(give, keep):
    for i in range(4): e(f'ds_write_b128 v{vXp}, {vr(give+4*i,4)} offset:{1024*i}')
    arrive(6); lwait(6, addr=vPair)
    for i in range(4): e(f'ds_read_b128 {vr(give+4*i,4)}, v{vXo} offset:{1024*i}')
    e('s_waitcnt lgkmcnt(0)')
e(f's_cmp_eq_u32 s{sHw}, 0\ns_cbranch_scc1 L_x0')
xch(T0, T1)
e('s_branch L_x1\nL_x0:')
xch(T1, T0)
e('L_x1:')
for i in range(8): e(f'v_pk_add_f32 {vr(T0+2*i,2)}, {vr(T0+2*i,2)}, {vr(T1+2*i,2)}')
for i in range(8): e(f'v_cvt_pk_bf16_f32 v{T1+i}, v{T0+2*i}, v{T0+2*i+1}')
e(f"""buffer_store_dwordx4 {vr(T1,4)}, v{vL16}, {sr(SRD_WS)}, s{sA} offen sc1
buffer_store_dwordx4 {vr(T1+4,4)}, v{vL16}, {sr(SRD_WS)}, s{sA} offen offset:1024 sc1
v_subrev_u32 v{a0}, 16, v{V_GRP}""")
if OM:
    e(f'''v_mov_b64 {vr(T0,2)}, -1
    v_mov_b64 {vr(T0+2,2)}, -1
    s_mul_i32 s{sA}, s{sCo}, {8*KS}
    s_add_u32 s{sA}, s{sA}, s{sOl}
    s_add_u32 s{sSk}, s{sA}, {4*KS}
    buffer_store_dwordx4 {vr(T0,4)}, v{vOl}, {sr(SRD_WS)}, s{sA} offen sc1
    buffer_store_dwordx4 {vr(T0,4)}, v{vOl}, {sr(SRD_WS)}, s{sSk} offen sc1''')
sync(7)
if OPT['only'] != 1: lwait(7, addr=a0)
e('s_waitcnt vmcnt(0)')
publish(sFlU, a0)
stamp(6)
if OPT['abl'] == 33: e('s_endpgm')
e(f"""s_mul_i32 s{sA}, s{S_W}, {16*896}
s_lshl_b32 s{sB}, s{sCo}, 7
s_add_u32 s{sA}, s{sA}, s{sB}
s_lshl_b32 s{sB}, s{S_W}, 11
s_add_u32 s{sB}, s{sB}, {L_WO}""")
for ch in range(7):
    e(f"""s_add_u32 m0, s{sB}, {8192*ch}
    s_add_u32 s{sSk}, s{sA}, {64*896*ch}
    buffer_load_dwordx4 v{vWoD}, {sr(SRD_B)}, s{sSk} offen lds
    buffer_load_dwordx4 v{vWoD+1}, {sr(SRD_B)}, s{sSk} offen offset:1024 lds
    s_waitcnt vmcnt({OPT['wodepth'] if ch < 6 else 0})""")
WF, OF, OC = 8, 168, 224
arrive(8)
e(f"""buffer_load_dword v{a0}, v{vFy}, {sr(SRD_WS)}, 0 offen sc1
s_mul_i32 s{sA}, s{sCh0}, {YS}
s_lshl_b32 s{sSk}, s{S_J}, 7
s_add_u32 s{sA}, s{sA}, s{sSk}
s_add_u32 s{sA}, s{sA}, {WS_Y}
s_add_u32 s{sSk}, s{sA}, {8*YS}""")
lwait(8)
stamp(7)
if OPT['abl'] == 34: e('s_endpgm')
def wo_reads(k):
    r = []
    for t in range(4):
        for hf in range(2):
            r.append(f'ds_read_b64_tr_b16 {vr(WF + 16*(k%10) + 4*t + 2*hf, 2)}, v{vWoR + (t>>1)} offset:{4096*k + 512*hf + 8*(t&1)}')
    return r
for k in range(10): e('\n'.join(wo_reads(k)))
arrive(9)
poll(vFy, first_issued=True, sleep=OPT['ysleep'], reg=a0)
stamp(8)
if OPT['abl'] == 35: e('s_endpgm')
e(f"""buffer_load_dwordx4 {vr(OF,4)}, v{vYl}, {sr(SRD_WS)}, s{sA} offen sc1
buffer_load_dwordx4 {vr(OF+4,4)}, v{vYl}, {sr(SRD_WS)}, s{sSk} offen sc1
s_lshr_b32 s{sA}, s{S_J}, 4
s_lshl_b32 s{sA}, s{sA}, 10
s_and_b32 s{sB}, s{S_J}, 3
s_lshl_b32 s{sB}, s{sB}, 8
s_add_u32 s{sA}, s{sA}, s{sB}
s_and_b32 s{sB}, s{S_J}, 8
s_lshl1_add_u32 s{sA}, s{sB}, s{sA}
s_and_b32 s{sB}, s{S_J}, 4
s_add_u32 s{sA}, s{sA}, s{sB}
s_lshl_b32 s{sB}, s{S_W}, 6
s_add_u32 s{sA}, s{sA}, s{sB}
s_mul_i32 s{sA}, s{sA}, 1792
s_lshl_b32 s{sB}, s{S_C}, 7
s_add_u32 s{sA}, s{sA}, s{sB}
s_add_u32 s{sB}, s{sA}, {32*1792}
v_xor_b32 v{a0}, 64, v{vBw}""")
lwait(9)
e(f"""s_waitcnt vmcnt(0)
ds_write_b128 v{vXo}, {vr(OF,4)}
ds_write_b128 v{vXo}, {vr(OF+4,4)} offset:1024""")
for z in range(2):
    for hf in range(2):
        e(f'ds_read_b64_tr_b16 {vr(OF + 8 + 4*z + 2*hf, 2)}, v{vTr} offset:{64*z + 512*hf}')
e(f"""s_waitcnt lgkmcnt(0)
ds_write_b128 v{vYw}, {vr(OF+8,4)} offset:{L_SSM}
ds_write_b128 v{vYw}, {vr(OF+12,4)} offset:{L_SSM + 4096}""")
sync(10)
e(f"""ds_read_b128 {vr(OF+8,4)}, v{vBr}
ds_read_b128 {vr(OF+12,4)}, v{vBr} offset:1024
s_waitcnt lgkmcnt(0)
buffer_store_dwordx4 {vr(OF+8,4)}, v{vYs}, {sr(SRD_C)}, s{sA} offen {OUTM}
buffer_store_dwordx4 {vr(OF+12,4)}, v{vYs}, {sr(SRD_C)}, s{sB} offen {OUTM}""")
if OPT['only'] == 1:
    stamp(9); stamp(13); prof_out(); e('s_endpgm')
if OM == 4:
    e(f'''s_lshl2_add_u32 s{sA}, s{S_J}, s{S_W}
    s_lshr_b32 s{sA}, s{sA}, 1
    s_lshl_b32 s{sA}, s{sA}, {4 + FSH}
    s_add_u32 s{sA}, s{sA}, {F_O}
    v_and_b32 v{vFo}, 15, v{V_LANE}
    v_lshl_add_u32 v{vFo}, v{vFo}, {FSH}, s{sA}''')
sOk, sLast = 4, 18
for k in range(14): e(f's_add_u32 s{sOk+k}, s{sOl}, {4*KS*k}')
if OPT['touch'] and OPT['tsa']: e('s_mov_b64 exec, 0\ns_branch L_qad0\nL_qad_ret:\ns_mov_b64 exec, -1')
e(f's_min_u32 s{S_BOUND}, s{S_BOUND}, 0x4000')
stamp(9)
e('L_obar:')
e('s_barrier        ; released once the four attention waves have stored their rows')
stamp(10)
if OPT['osleep']: e(f"s_sleep {OPT['osleep']}")
if OM != 3: poll(vFo, sleep=OPT['hsleep'])
stamp(11)
def o_load(k): return f'buffer_load_dwordx4 {vr(OF+4*k,4)}, v{vOl}, {sr(SRD_WS)}, s{sOk+k} offen sc1'
OD = OPT['od']
def o_chk(k):
    o = OF + 4*k
    return [f's_waitcnt vmcnt({min(OD - 1, 13 - k)})', f'v_max3_u32 v6, v{o}, v{o+1}, v{o+2}', f'v_max_u32 v6, v6, v{o+3}', 'v_cmp_eq_u32 vcc, -1, v6']
for k in range(OD): e(o_load(k))
e('\n'.join(o_chk(0)))
for k in range(14):
    o = OF + 4*k
    m = [f'v_mfma_f32_16x16x32_bf16 {vr(OC+4*t,4)}, {vr(WF + 16*(k%10) + 4*t, 4)}, {vr(o,4)}, {"0" if k == 0 else vr(OC+4*t,4)}' for t in range(4)]
    rd = wo_reads(10 + (k - 1) // 2)[4*((k - 1) & 1):][:4] if 1 <= k <= 8 else []
    if k == 10: e('s_waitcnt lgkmcnt(0)')
    e(f's_cbranch_vccnz L_or{k}\nL_og{k}:')
    c = o_chk(k + 1) if k < 13 else ['', '', '', '']
    ld = [o_load(k + OD)] if k + OD < 14 else []
    e('\n'.join(ld + [m[0]] + rd[:2] + [m[1]] + rd[2:] + [c[0], c[1], m[2], c[2], c[3], m[3]]))
stamp(12)
e('s_nop 4')
for i in range(8): e(f'v_cvt_pk_bf16_f32 v{16+i}, v{OC+2*i}, v{OC+2*i+1}')
e(f"""ds_write_b128 v{vBw}, {vr(16,4)}
ds_write_b128 v{a0}, {vr(20,4)}
ds_read_b128 {vr(24,4)}, v{vBr}
ds_read_b128 {vr(28,4)}, v{vBr} offset:1024
s_or_b32 s{sA}, s2, s{S_W}
s_waitcnt lgkmcnt(1)
buffer_store_dwordx4 {vr(24,4)}, v{vOut}, {sr(SRD_C)}, s{sOut} offen {OUTM2}
s_waitcnt lgkmcnt(0)
buffer_store_dwordx4 {vr(28,4)}, v{vOut}, {sr(SRD_C)}, s{sOut+1} offen {OUTM2}
s_cbranch_scc1 L_noepoch""")
publish(sA, 6)
e('L_noepoch:')
if OPT['prof']:
    e('s_waitcnt vmcnt(0)')
stamp(13)
prof_out()
e('L_end:\ns_endpgm')
for k in range(14):
    c = o_chk(k)
    n = min(14, k + OD); w = min(n, k + OPT['sw'])
    e(f'''L_or{k}:
    {chr(10).join(o_load(q) for q in range(w, n))}
    L_oc{k}:
    {chr(10).join(o_load(q) for q in range(k, w))}
    s_sub_u32 s{S_BOUND}, s{S_BOUND}, 1
    s_cselect_b32 s{S_BOUND}, 0, s{S_BOUND}
    s_waitcnt vmcnt(0)
    s_cbranch_scc1 L_og{k}
    {c[1]}
    {c[2]}
    {c[3]}
    s_cbranch_vccnz L_oc{k}
    s_branch L_og{k}''')
sec('idle0' if OPT['t0'] else 'idle')
SEC.setdefault('idle0', [])
ROLE[0] = 2
e('L_ssm_idle:')
if OPT['only'] == 2:
    arrive(1); e('s_endpgm')
hi()
e(f"""v_lshrrev_b32 v10, 3, v{V_LANE}
v_and_b32 v11, 7, v{V_LANE}
v_lshlrev_b32 v11, 4, v11
v_mul_u32_u24 v5, 896, v10
v_add_u32 v5, v5, v11
v_add_u32 v6, {7168-1024}, v5
s_lshl2_add_u32 s60, s{S_J}, s{S_W}
s_mul_i32 s61, s60, {16*896}
s_mul_i32 s62, s{S_W}, 14336
s_add_u32 s62, s62, {L_SSM}
s_mov_b32 s{SRD_A+2}, {2048*896}
s_mov_b32 s{SRD_A+3}, 0x20000
s_waitcnt lgkmcnt(0)
s_mov_b64 s[{SRD_A}:{SRD_A+1}], s[4:5]""")
for c in range(7):
    if OPT['t0'] and c == OPT['t0']:
        e('s_branch L_idle1'); sec('idle'); e('L_idle1:')
    e(f"""s_add_u32 m0, s62, {2048*c - 128*c}
    s_nop 0
    buffer_load_dwordx4 v5, {sr(SRD_A)}, s61 offen offset:{128*c} lds
    buffer_load_dwordx4 v6, {sr(SRD_A)}, s61 offen offset:{1024 + 128*c} lds""")
    if c == max(1, OPT['t0']):
        srd(SRD_WS, 28, WS_SIZE)
        e(f"""; transposing read: row = 8*(cc&1)+r', byte = 8*(2G+(cc>>1))
        v_mul_u32_u24 v7, {QS}, v10
        v_add_u32 v7, v7, v11
        v_bfe_u32 v8, v{V_LANE}, 2, 2
        v_and_b32 v9, 1, v{V_LANE}
        v_lshl_or_b32 v8, v9, 3, v8
        v_xor_b32 v8, 3, v8
        v_lshl_add_u32 v8, v8, 7, s62
        v_and_b32 v9, 0x30, v{V_LANE}
        v_add_u32 v8, v8, v9
        v_and_b32 v9, 2, v{V_LANE}
        v_lshl_add_u32 v8, v9, 2, v8
        s_lshl_b32 s63, s60, 7
        s_add_u32 s63, s63, {WS_U}
        s_mul_i32 s65, s{S_J}, {US}
        v_mov_b32 v12, 0
        s_mov_b64 exec, {'0x1111' if OPT['one1'] else '0xffff'}
        v_mov_b32 v12, 0x3f803f80
        s_mov_b64 exec, -1
        v_mov_b32 v13, v12
        v_mov_b64 v[14:15], v[12:13]
        v_lshlrev_b32 v9, 4, v{V_LANE}
        s_lshl2_add_u32 s66, s{S_TILE}, s{S_W}
        s_lshl_b32 s66, s66, 8
        s_mul_i32 s67, s{S_HG}, {QS}
        s_add_u32 s66, s66, s67
        s_add_u32 s66, s66, {WS_V + 112*QS}
        s_add_u32 s65, s65, {F_U}""")
TW = 0
def t_rd(c):
    return [f'ds_read_b64_tr_b16 {vr(16 + 8*c + 4*z + 2*hf, 2)}, v8 offset:{2048*c + 64*z + 512*(1-hf)}' for z in range(2) for hf in range(2)]
e(f's_waitcnt vmcnt({12 + TW})'); stamp(1); e('\n'.join(t_rd(0)))
for c in range(7):
    if c < 6:
        e(f's_waitcnt vmcnt({10 + TW})'); e('\n'.join(t_rd(c + 1)))
    e(f"""s_add_u32 s64, s63, {8*QS}
    s_waitcnt lgkmcnt({4 if c < 6 else 0})
    {f's_load_dword s{S_NONCE}, s[28:29], 0' if c == 6 else ''}
    buffer_store_dwordx4 {vr(16+8*c,4)}, v7, {sr(SRD_WS)}, s63 offen sc1
    buffer_store_dwordx4 {vr(20+8*c,4)}, v7, {sr(SRD_WS)}, s64 offen sc1
    s_add_u32 s63, s63, {16*QS}""")
assert OPT['ur'] == 1
e(f'''; the column quad of ones that gives the softmax row sums
s_mov_b64 exec, 0xffff
buffer_store_dwordx4 v[12:15], v9, {sr(SRD_WS)}, s66 offen sc1''')
stamp(2)
e(f'''s_mov_b64 exec, 1
s_waitcnt lgkmcnt(0)
s_add_u32 s{S_NONCE}, s{S_NONCE}, 1
v_mov_b32 v5, s{S_NONCE}
s_cmp_lg_u32 s{S_W}, 0
s_waitcnt vmcnt(0)
s_barrier
s_cbranch_scc1 L_idle_end
buffer_store_dword v5, v9, {sr(SRD_WS)}, s65 offen sc1''')
e('L_idle_end:\ns_mov_b64 exec, -1'); stamp(4)
if OPT['wop']:
    e(f'''s_mov_b64 s[{SRD_A}:{SRD_A+1}], s[22:23]
    s_mov_b32 s{SRD_A+2}, {448*896}
    s_mul_i32 s60, s60, {25*128}
    v_lshlrev_b32 v5, 7, v{V_LANE}
    s_mov_b64 exec, 0x1ffffff
    buffer_load_dword v6, v5, {sr(SRD_A)}, s60 offen
    s_mov_b64 exec, -1''')
prof_out()
e('s_endpgm')
def ilen(l):
    l = l.split(';')[0].strip()
    if not l or l.endswith(':'): return 0
    op = l.split()[0]
    if op.startswith(('buffer_', 'global_', 'ds_', 'v_mfma', 'v_smfmac', 'v_pk_', 's_load', 'v_cvt_pk', 'v_lshl_', 'v_perm', 'v_bfe', 'v_max3', 'v_align')): return 8
    return 8 if '0x' in l else 4
pads = []; qads = []
if OPT['touch']:
    for n in ('mha', 'ssm'):
        new = []; acc = OPT['touch'] if n == 'mha' else -OPT['touch']; loop = None; late_ = False
        for l in SEC[n]:
            t = l.strip()
            def pad():
                if late_ and OPT['tsa']:
                    qads.append(len(qads)); new.extend([f'L_qad{qads[-1]}:', f'    s_cbranch_execz L_qxt{qads[-1]}'])
                else:
                    pads.append(len(pads)); new.extend([f'L_pad{pads[-1]}:', f'    s_cbranch_execz L_nxt{pads[-1]}'])
            if t in ('L_att:', 'L_cv:'): pad(); acc = 0
            if t in ('L_att:', 'L_cv:'): loop = t[:-1]
            if acc >= OPT['touch'] and (loop is None or acc >= 1200) and not t.endswith(':') and not (OPT['st'] and new[-1] in ('L_mha1:', 'L_sp2:')) and 'exec' not in ''.join(new[-4:]).replace('execz', ''):
                pad(); acc = 0
            if loop and t == f's_cbranch_scc1 {loop}': loop = None
            if t in ('L_gemm_v:', 'L_gemm_done:'): acc = OPT['touch']
            if t == 'L_obar:': late_ = True; acc = OPT['touch'] // 2
            new.append(l); acc += ilen(l)
        SEC[n] = new
sec('lad' if OPT['te'] else 'idle')
e('L_tmha:')
if pads:
    e(f's_and_b32 s{sTmp}, s{S_J}, 3\ns_lshl2_add_u32 s{sTmp}, s{sTmp}, s{S_W}\ns_mov_b64 exec, 0')
    for i in range(min(16, len(pads))):
        e(f's_cmp_eq_u32 s{sTmp}, {i}\ns_cbranch_scc1 L_pad{i}')
    e('L_pad_ret:\ns_mov_b64 exec, -1')
e('s_branch L_mha_b' if OPT['te'] and OPT['touch'] else 's_branch L_gemm_t')
SEC.setdefault('lad', [])
fix = {f'L_nxt{i}': (f'L_pad{i+16}' if i + 16 < len(pads) else 'L_pad_ret') for i in pads}
fix.update({f'L_qxt{i}': (f'L_qad{i+1}' if i + 1 < len(qads) else 'L_qad_ret') for i in qads})
for n in SEC:
    SEC[n] = [(l.rsplit(' ', 1)[0] + ' ' + fix[l.rsplit(' ', 1)[1]]) if 'L_nxt' in l or 'L_qxt' in l else l for l in SEC[n]]
print('pads', len(pads), len(qads), file=sys.stderr)
ORDER = [['pro', 'ssm0', 'mha0', 'idle', 'ssm', 'mha'], ['pro', 'ssm0', 'mha0', 'mha', 'ssm', 'idle'],
         ['pro', 'ssm0', 'idle0', 'mha0', 'lad', 'ssm', 'mha', 'idle'], ['pro', 'ssm0', 'idle', 'mha0', 'mha', 'ssm'],
         ['pro', 'ssm0', 'ssm', 'mha0', 'mha', 'idle'], ['pro', 'ssm0', 'ssm', 'idle', 'mha0', 'mha']][OPT['ord']] + ['cold', 'gt', 'fb']
SEC.setdefault('cold', [])
def add_nt(n, pred):
    SEC[n] = [(l.replace(' lds', ' nt lds') if l.endswith(' lds') else l + ' nt') if pred(l) else l for l in SEC[n]]
for n in ('mha0', 'mha', 'gt'):
    if OPT['nt'] & 1: add_nt(n, lambda l: l.endswith(' lds') and sr(SRD_A) in l)
    if OPT['nt'] & 2: add_nt(n, lambda l: l.endswith(' lds') and sr(SRD_B) in l)
if OPT['nt'] & 4: add_nt('idle', lambda l: l.endswith(' lds'))
if OPT['nt'] & 8: add_nt('ssm0', lambda l: 'global_load' in l)
if OPT['nt'] & 16: add_nt('ssm', lambda l: l.endswith(' lds'))
if OPT['nt'] & 32: add_nt('ssm', lambda l: 'buffer_store' in l and sr(SRD_C) in l)
BODY = sum((SEC[n] for n in ORDER), [])
def sizes(lines):
    import subprocess, re, os, tempfile
    d = tempfile.mkdtemp()
    open(d + '/a.s', 'w').write('.amdgcn_target "amdgcn-amd-amdhsa--gfx950"\n.text\n' + '\n'.join(lines) + '\n')
    subprocess.check_call(['clang', '-x', 'assembler', '-target', 'amdgcn-amd-amdhsa', '-mcpu=gfx950', '-c', d + '/a.s', '-o', d + '/a.o'])
    o = subprocess.check_output(['llvm-objdump', '-d', '--mcpu=gfx950', d + '/a.o']).decode()
    return [4 * len(m.group(1).split()) for m in re.finditer(r'// [0-9A-F]{12}: ((?:[0-9A-F]{8} ?)+)', o)]
def is_ins(l):
    t = l.split(';')[0].strip()
    return bool(t) and not t.endswith(':')
def widen(l):
    import re
    t = l.split(';')[0].strip(); op = t.split()[0]
    if op.startswith('v_') and not op.startswith(('v_readfirstlane', 'v_swap', 'v_permlane', 'v_nop')):
        return l.replace(op, op + '_e64', 1)
    return None
PGL = [l for b, l in ((1, 'L_mha:'), (2, 'L_gemm_v:'), (4, 'L_att:'), (8, 'L_ssm_idle:'), (16, 'L_ssm:'), (32, 'L_mha1:')) if OPT['pgm'] & b]
if OPT['al']:
    sz = iter(sizes(BODY + ['L_pg0:', 'L_pg1:', 'L_sp1:', 'L_sp3:']))
    npg = 0; inatt = False; spl = None
    I = [[l, next(sz) if is_ins(l) else 0] for l in BODY]
    res = []; addr = 0; nw = nn = 0
    for i, (l, n) in enumerate(I):
        if l in PGL: addr = 0
        if l == 'L_att:': inatt = True; page = addr >> 12
        if l in ('L_ssm:', 'L_mha1:'): spl = {'L_ssm:': 'L_sp3:', 'L_mha1:': 'L_sp1:'}[l]; spp = addr >> 12
        if OPT['st'] and spl and n and addr >> 12 != spp and 'exec' not in ''.join(x[0] for x in res[-4:]).replace('execz', ''):
            res += [[spl, 0], ['    s_cbranch_execz L_mha1', 4]]; addr += 4; spl = None
        if OPT['pt'] and inatt and n and addr >> 12 != page and npg < 2 and res[-1][0].strip().startswith(('v_mfma', 'v_smfmac')):
            res += [[f'L_pg{npg}:', 0], ['    s_cbranch_execz L_pg_ret', 4]]; addr += 4; npg += 1; page = addr >> 12
        if n == 8 and addr % 8 == 4:
            run = 0
            for l2, n2 in I[i:]:
                if n2 == 4: break
                run += n2 == 8
            cross = sum(1 for k in range(run) if (addr + 8*k) % 32 == 28)
            if cross:
                j = len(res) - 1; done = False; aj = addr
                while j >= 0 and res[j][1] in (0, 4):
                    aj -= res[j][1]
                    t = res[j][0].strip()
                    if t.startswith(('s_branch', 's_endpgm', 's_setpc')):
                        res.insert(j + 1, ['    s_nop 0', 4]); done = True; break
                    w = widen(res[j][0]) if res[j][1] == 4 and aj % 32 != 28 else None
                    if w:
                        res[j] = [w, 8]; done = True; nw += 1; break
                    j -= 1
                if not done and run >= OPT['alr']:
                    k = len(res)
                    while res[k-1][1] == 0: k -= 1
                    res.insert(k, ['    s_nop 0', 4]); done = True; nn += 1
                if done: addr += 4
        res.append([l, n]); addr += n
    BODY = [l for l, n in res]
    if OPT['pt']:
        for q in range(npg, 2): BODY.insert(BODY.index('L_pg_ret:'), f'L_pg{q}:')
    print('aligned: widened', nw, 'nops', nn, 'bytes', addr, file=sys.stderr)
PG = '' if OPT['pg'] < 0 else f".p2align 12\n.fill {OPT['pg'] * 64}, 4, 0xbf800000\n"
for l in PGL: BODY.insert(BODY.index(l), '.p2align 12')
hdr = open('header.txt').read()
txt = hdr + f'''; @launch grid=(256,1,1) block=(512,1,1) lds={L_TOT}
.amdgcn_target "amdgcn-amd-amdhsa--gfx950"
.text
.globl {KN}
{PG}.p2align 8
.type {KN},@function
{KN}:
''' + '\n'.join(BODY) + f'''
.section .rodata,"a"
.p2align 6
.amdhsa_kernel {KN}
  .amdhsa_next_free_vgpr 256
  .amdhsa_next_free_sgpr 102
  .amdhsa_accum_offset 256
  .amdhsa_group_segment_fixed_size 0
  .amdhsa_kernarg_size 104
  .amdhsa_user_sgpr_count 2
  .amdhsa_user_sgpr_kernarg_segment_ptr 1
  .amdhsa_system_sgpr_workgroup_id_x 1
.end_amdhsa_kernel
'''
open(sys.argv[1], 'w').write(txt)
```
